```python
import torch

def _softmax(x, axis=-1):
    return torch.softmax(x, dim=axis)

def _gelu(x):
    return torch.nn.functional.gelu(x, approximate='tanh')

def _silu(x):
    return torch.nn.functional.silu(x)

def _sigmoid(x):
    return torch.sigmoid(x)

def _layernorm(x, axis=-1, eps=1e-05):
    m = x.mean(dim=axis, keepdim=True)
    v = x.var(dim=axis, keepdim=True, unbiased=False)
    return (x - m) / torch.sqrt(v + eps)

def _scatter_add(tgt, idx, src, axis=0):
    return tgt.clone().index_add_(axis, idx, src)

def _segment_sum(src, seg, n):
    out = torch.zeros((n,) + src.shape[1:], dtype=src.dtype)
    return out.index_add_(0, seg, src)

def _pad(x, pw):
    flat = tuple((v for pair in reversed(pw) for v in pair))
    return torch.nn.functional.pad(x, flat)
kernel_name = 'parallel_sum__mha_block__mixer_gmlp__prompt'

def setup_inputs():

    _w = lambda a: (lambda t: t.to(torch.bfloat16) if t.is_floating_point() else t)(torch.as_tensor(a))

    def _A_setup():
        B, S, D, H = (1, 2048, 512, 32)
        return {'x': _w((lambda *s: torch.randn(*s, dtype=torch.bfloat16) * 0.05)(B, S, D)), 'wqkv': _w((lambda *s: torch.randn(*s, dtype=torch.bfloat16) * 0.2)(D, 3 * D)), 'wo': _w((lambda *s: torch.randn(*s, dtype=torch.bfloat16) * 0.2)(D, D))}
    _A_in = _A_setup()

    def _B_setup():
        B, S, D, F = (1, 2048, 512, 1792)
        Fh = F // 2
        return {'x': _w((lambda *s: torch.randn(*s, dtype=torch.bfloat16) * 0.05)(B, S, D)), 'w_in': _w((lambda *s: torch.randn(*s, dtype=torch.bfloat16) * 0.8)(D, 2 * Fh)), 'w_sp': _w(0.01 * (lambda *s: torch.randn(*s, dtype=torch.bfloat16) * 0.8)(S, S)), 'b_sp': _w(1.0 + 0.01 * (lambda *s: torch.randn(*s, dtype=torch.bfloat16) * 0.2)(S)), 'w_out': _w((lambda *s: torch.randn(*s, dtype=torch.bfloat16) * 0.2)(Fh, D))}
    _B_in = _B_setup()
    return {'A_x': _A_in['x'], 'A_wqkv': _A_in['wqkv'], 'A_wo': _A_in['wo'], 'B_x': _B_in['x'], 'B_w_in': _B_in['w_in'], 'B_w_sp': _B_in['w_sp'], 'B_b_sp': _B_in['b_sp'], 'B_w_out': _B_in['w_out']}

def reference(A_x, A_wqkv, A_wo, B_x, B_w_in, B_w_sp, B_b_sp, B_w_out):

    def _A_ref(x, wqkv, wo):
        B, S, D = x.shape
        H = 32
        Dh = D // H
        qkv = (lambda x, *d: x.permute(*d))((x @ wqkv).reshape(B, S, 3, H, Dh), 2, 0, 3, 1, 4)
        q, k, v = (qkv[0], qkv[1], qkv[2])
        scores = torch.einsum('bhqd,bhkd->bhqk', q, k) * Dh ** (-0.5)
        p = _softmax(scores, axis=-1)
        o = torch.einsum('bhqk,bhkd->bhqd', p, v)
        return (lambda x, *d: x.permute(*d))(o, 0, 2, 1, 3).reshape(B, S, D) @ wo

    def _B_ref(x, w_in, w_sp, b_sp, w_out):
        B, S, D = x.shape
        F = w_in.shape[-1]
        Fh = F // 2
        z = _gelu(torch.einsum('bsd,df->bsf', x, w_in))
        z1 = z[..., :Fh].clone()
        z2 = _layernorm(z[..., Fh:], axis=-1)
        g = torch.einsum('ts,bsf->btf', w_sp, z2) + b_sp[None, :, None]
        return torch.einsum('bsf,fd->bsd', z1 * g, w_out)
    x = A_x
    xn = _layernorm(x, axis=-1)
    return x + _A_ref(xn, A_wqkv, A_wo) + _B_ref(xn, B_w_in, B_w_sp, B_b_sp, B_w_out)
```

```python
import re

TRANS = ("v_exp_f32","v_log_f32","v_rcp_f32","v_rsq_f32","v_sqrt_f32","v_sin_f32","v_cos_f32","v_exp_f16","v_rcp_iflag_f32")
MFMA_PASSES = {"v_mfma_f32_32x32x16_bf16":8, "v_mfma_f32_16x16x32_bf16":4, "v_mfma_f32_4x4x4_16b_bf16":2}

def regs_of(tok):
    tok = tok.strip()
    tok = re.sub(r"^-", "", tok)
    m = re.match(r"^abs\((.*)\)$", tok) or re.match(r"^\|(.*)\|$", tok)
    if m: tok = m.group(1)
    m = re.match(r"^([vas])\[(\d+):(\d+)\]$", tok)
    if m: return [f"{m.group(1)}{i}" for i in range(int(m.group(2)), int(m.group(3))+1)]
    m = re.match(r"^([vas])(\d+)$", tok)
    if m: return [tok]
    if tok in ("vcc","exec"): return [tok+"_lo", tok+"_hi"]
    if tok in ("vcc_lo","vcc_hi","exec_lo","exec_hi","m0"): return [tok]
    return []

class I:
    def __init__(self, text, tag=None, needs=None, comment=None):
        self.text = text.strip()
        self.tag = tag
        self.needs = needs or []
        self.comment = comment
        self.kind = None
        self.rd = set(); self.wr = set()
        self.parse()
    def parse(self):
        t = self.text
        if t.endswith(":") : self.kind = "label"; self.op = t[:-1]; return
        if t.startswith("."): self.kind = "dir"; self.op = t; return
        parts = t.split(None, 1)
        op = parts[0]; self.op = op
        rest = parts[1] if len(parts) > 1 else ""
        ops = []; depth = 0; cur = ""
        for ch in rest:
            if ch in "[(": depth += 1
            if ch in "])": depth -= 1
            if ch == "," and depth == 0: ops.append(cur); cur = ""
            else: cur += ch
        if cur.strip(): ops.append(cur)
        mods = ""
        if ops:
            last = ops[-1].strip()
            sp = re.split(r"\s+", last, 1) if not last.startswith("abs(") else [last]
            ops[-1] = sp[0]
            if len(sp) > 1: mods = sp[1]
        ops = [o.strip() for o in ops]
        self.ops = ops; self.mods = mods
        R = lambda i: regs_of(ops[i]) if i < len(ops) else []
        base = re.sub(r"_(e32|e64|dpp|sdwa)$", "", op)
        self.base = base
        self.dpp = op.endswith("_dpp") or "row_" in mods or "quad_perm" in mods
        if base.startswith("v_mfma"):
            self.kind = "mfma"; self.passes = MFMA_PASSES[base]
            self.D = R(0); self.A = R(1); self.B = R(2); self.C = R(3)
            self.wr = set(self.D); self.rd = set(self.A + self.B + self.C)
        elif base.startswith("v_"):
            self.kind = "valu"
            self.trans = base in TRANS
            if base.startswith("v_cmp"):
                self.wr = set(R(0)); self.rd = set(sum([R(i) for i in range(1, len(ops))], []))
            elif base in ("v_readfirstlane_b32", "v_readlane_b32"):
                self.wr = set(R(0)); self.rd = set(sum([R(i) for i in range(1, len(ops))], []))
            elif (base.startswith("v_permlane") and "swap" in base) or base == "v_swap_b32":
                self.wr = set(R(0)+R(1)); self.rd = set(R(0)+R(1))
            elif base in ("v_add_co_u32","v_sub_co_u32","v_addc_co_u32","v_subb_co_u32"):
                self.wr = set(R(0)+R(1)); self.rd = set(sum([R(i) for i in range(2, len(ops))], []))
            else:
                self.wr = set(R(0)); self.rd = set(sum([R(i) for i in range(1, len(ops))], []))
                if base in ("v_fmac_f32","v_dot2c_f32_bf16","v_writelane_b32") or "UNUSED_PRESERVE" in mods or self.dpp:
                    self.rd |= set(R(0))
                if base == "v_cndmask_b32" and len(ops) == 3: self.rd |= {"vcc_lo","vcc_hi"}
        elif base.startswith("ds_"):
            self.kind = "ds"
            if base.startswith("ds_write2"): ops_ = ops
            if base.startswith("ds_read") or base.startswith("ds_bpermute") or base.startswith("ds_swizzle") or "_rtn" in base:
                self.wr = set(R(0)); self.rd = set(sum([R(i) for i in range(1, len(ops))], []))
            else:
                self.rd = set(sum([R(i) for i in range(len(ops))], []))
        elif base.startswith("buffer_") or base.startswith("global_"):
            self.kind = "vmem"
            allm = " " + mods + " "
            self.lds = " lds " in allm or "load_lds" in base
            if base in ("buffer_inv","buffer_wbl2"):
                pass
            elif "load" in base and not self.lds:
                self.wr = set(R(0)); self.rd = set(sum([R(i) for i in range(1, len(ops))], []))
            elif "atomic" in base and " sc0 " in allm:
                self.wr = set(R(0)); self.rd = set(sum([R(i) for i in range(len(ops))], []))
            else:
                self.rd = set(sum([R(i) for i in range(len(ops))], []))
                if self.lds: self.rd |= {"m0"}
            self.store = "store" in base
            self.wide = self.store and ("x4" in base or "x3" in base)
            if self.store:
                self.data = set(R(0)) if base.startswith("buffer_") else set(R(1))
        elif base.startswith("s_load") or base.startswith("s_memtime") or base.startswith("s_memrealtime") or base.startswith("s_buffer_load"):
            self.kind = "smem"
            self.wr = set(R(0)); self.rd = set(sum([R(i) for i in range(1, len(ops))], []))
        elif base == "s_waitcnt":
            self.kind = "wait"
            self.vm = self.lg = None
            m = re.search(r"vmcnt\((\d+)\)", t);  self.vm = int(m.group(1)) if m else None
            m = re.search(r"lgkmcnt\((\d+)\)", t); self.lg = int(m.group(1)) if m else None
        elif base == "s_nop":
            self.kind = "nop"; self.n = int(ops[0]) + 1
        elif base.startswith("s_cbranch") or base == "s_branch":
            self.kind = "branch"; self.target = ops[0]
        elif base in ("s_barrier","s_endpgm","s_setprio","s_sleep"):
            self.kind = "misc"
        elif base.startswith("s_"):
            self.kind = "salu"
            if base.startswith("s_cmp") or base.startswith("s_bitcmp"):
                self.rd = set(sum([R(i) for i in range(len(ops))], []))
            else:
                self.wr = set(R(0)); self.rd = set(sum([R(i) for i in range(1, len(ops))], []))
                if "saveexec" in base: self.wr |= {"exec_lo","exec_hi"}; self.rd |= {"exec_lo", "exec_hi"}
                if base in ("s_addk_i32","s_mulk_i32"): self.rd |= set(R(0))
        else:
            raise ValueError("unknown instr " + t)
    def states(self):
        if self.kind in ("label","dir"): return 0
        if self.kind == "nop": return self.n
        return 1
    def __repr__(self): return self.text

class W:
    def __init__(self, vm=(), lg=(), vm0=False, lg0=False):
        self.vm = [vm] if isinstance(vm, str) else list(vm)
        self.lg = [lg] if isinstance(lg, str) else list(lg)
        self.vm0 = vm0; self.lg0 = lg0
        self.kind = "symwait"

def need_states(p, c):
    n = 0
    if p.kind == "valu":
        vw = {r for r in p.wr if r[0] in "va" and not r.startswith("vcc")}
        sw = {r for r in p.wr if r[0] == "s" or r.startswith("vcc")}
        if c.kind == "mfma" and vw & c.rd: n = max(n, 2)
        if c.kind == "valu":
            if p.trans and not c.trans and (vw & c.rd): n = max(n, 1)
            if p.trans and c.trans and (vw & c.rd): n = max(n, 1)
            if c.base.startswith("v_permlane") and vw & c.rd: n = max(n, 2)
            if c.dpp and vw & c.rd: n = max(n, 2)
            if c.base in ("v_readfirstlane_b32","v_readlane_b32") and vw & c.rd: n = max(n, 1)
            if sw & c.rd: n = max(n, 4 if c.base in ("v_readlane_b32","v_writelane_b32") else 2)
            if ("sdwa" in p.op or "op_sel" in p.mods and not p.base.startswith("v_pk")) and vw & (c.rd | c.wr): n = max(n, 1)
        if c.kind == "vmem" and sw & c.rd: n = max(n, 5)
        if c.kind in ("salu","smem","branch") and sw & c.rd: n = max(n, 1)
    if p.kind == "mfma":
        P = p.passes
        D = set(p.D)
        big = {2:5, 4:8, 8:12}[P]
        if c.kind == "mfma":
            if D & (set(c.A) | set(c.B)): n = max(n, big)
            if D & set(c.C):
                if c.C == p.D and c.passes == P: n = max(n, 2 if P == 2 else 0)
                else: n = max(n, {2:4, 4:6, 8:10}[P])
            elif D & set(c.D):
                n = max(n, big)
        elif c.kind in ("valu","vmem","ds"):
            if D & (c.rd | c.wr): n = max(n, big)
        if c.kind == "valu" and set(p.C) & c.wr: n = max(n, {2:1, 4:3, 8:7}[P])
        if c.kind in ("ds","vmem") and set(p.C) & c.wr: n = max(n, {2:1, 4:3, 8:7}[P])
    if p.kind == "salu" and "m0" in p.wr and c.kind == "vmem" and getattr(c, "lds", False): n = max(n, 1)
    if p.kind == "vmem" and getattr(p, "wide", False):
        if p.data & c.wr: n = max(n, 2 if c.kind == "valu" else 1)
    if p.kind == "ds" and p.base in ("ds_write_b128","ds_write_b96"):
        pass
    return n

class Prog:
    def __init__(self):
        self.l = []
    def __call__(self, text, **kw):
        for line in text.strip().split("\n"):
            line = line.split(";")[0].strip()
            if line: self.l.append(I(line, **kw))
        return self
    def add(self, items):
        for x in items:
            if isinstance(x, str): self(x)
            else: self.l.append(x)
        return self
    def wait(self, **kw): self.l.append(W(**kw)); return self
    def label(self, n): self.l.append(I(n + ":")); return self

def resolve_waits(l, reset_labels=()):
    vmq = []; lgq = []
    out = []
    for x in l:
        if x.kind == "symwait":
            parts = []
            vm = None; lg = None
            if x.vm0: vm = 0
            for t in x.vm:
                idx = [i for i, q in enumerate(vmq) if q.tag == t]
                if idx:
                    n = len(vmq) - 1 - max(idx)
                    vm = n if vm is None else min(vm, n)
            if x.lg0: lg = 0
            for t in x.lg:
                idx = [i for i, q in enumerate(lgq) if q.tag == t]
                if idx:
                    n = len(lgq) - 1 - max(idx)
                    if any(q.kind == "smem" for q in lgq): n = 0
                    lg = n if lg is None else min(lg, n)
            if vm is not None and vm >= len(vmq) and not x.vm0: vm = None
            if vm is not None:
                vm = min(vm, 63); parts.append(f"vmcnt({vm})"); vmq = vmq[len(vmq)-vm:] if vm else []
            if lg is not None:
                lg = min(lg, 15); parts.append(f"lgkmcnt({lg})"); lgq = lgq[len(lgq)-lg:] if lg else []
            if parts: out.append(I("s_waitcnt " + " ".join(parts)))
            continue
        if x.kind == "wait":
            if x.vm is not None and x.vm < len(vmq): vmq = vmq[len(vmq)-x.vm:] if x.vm else []
            if x.lg is not None and x.lg < len(lgq): lgq = lgq[len(lgq)-x.lg:] if x.lg else []
        if x.kind == "vmem": vmq.append(x)
        if x.kind in ("ds","smem"): lgq.append(x)
        out.append(x)
    return out

def pad_hazards(l, verbose=False):
    out = []
    WIN = 24
    npad = 0
    for c in l:
        if c.kind in ("label","dir"): out.append(c); continue
        need = 0; dist = 0
        for p in reversed(out):
            if dist > WIN: break
            if p.kind in ("label","dir"): continue
            if p.kind == "branch" and p.base == "s_branch": break
            if p.kind == "misc" and p.base == "s_endpgm": break
            n = need_states(p, c)
            if n > dist: need = max(need, n - dist)
            dist += p.states()
        if need:
            npad += need
            if verbose: print("pad", need, "before", c.text)
            while need > 0:
                k = min(need, 16); out.append(I(f"s_nop {k-1}")); need -= k
        out.append(c)
    return out, npad

def check_branch_hazards(l):
    labels = {x.op: i for i, x in enumerate(l) if x.kind == "label"}
    errs = []
    for i, b in enumerate(l):
        if b.kind != "branch" or b.target not in labels: continue
        before = [x for x in l[max(0, i-40):i+1] if x.kind not in ("label","dir")]
        after = []
        for x in l[labels[b.target]:labels[b.target]+60]:
            if x.kind in ("label","dir"): continue
            after.append(x)
            if x.kind == "branch" and x.base == "s_branch": break
        d_after = 0
        for c in after:
            dist = d_after
            for p in reversed(before):
                if dist > 24: break
                n = need_states(p, c)
                if n > dist: errs.append(f"branch hazard via {b.text}: {p.text} -> {c.text} need {n} have {dist}")
                dist += p.states()
            d_after += c.states()
            if d_after > 24: break
    return errs

def check_waits(seq):
    vmq = []; lgq = []; errs = []
    for x in seq:
        if x.kind in ("label","dir"): continue
        if x.kind == "wait":
            if x.vm is not None and x.vm < len(vmq): vmq = vmq[len(vmq)-x.vm:] if x.vm else []
            if x.lg is not None:
                if any(q.kind == "smem" for q in lgq):
                    if x.lg == 0: lgq = []
                elif x.lg < len(lgq): lgq = lgq[len(lgq)-x.lg:] if x.lg else []
            continue
        touched = x.rd | x.wr
        for q in vmq + lgq:
            if q.wr & touched and not (q.kind == x.kind and not (q.wr & x.rd) and x.kind in ("vmem","ds")):
                errs.append(f"unwaited: {q.text}  -> {x.text}")
        for t in x.needs:
            if any(q.tag == t for q in vmq + lgq): errs.append(f"needs {t} outstanding at {x.text}")
        if x.kind == "vmem":
            vmq.append(x)
            if len(vmq) > 63: errs.append("vmcnt overflow at " + x.text)
        if x.kind in ("ds","smem"): lgq.append(x)
    return errs

def linearize(l, loops):
    out = []; i = 0
    labels = {x.op: k for k, x in enumerate(l) if x.kind == "label"}
    while i < len(l):
        x = l[i]
        if x.kind == "label" and x.op in loops:
            j = next(k for k in range(i, len(l)) if l[k].kind == "branch" and l[k].target == x.op)
            body = l[i:j+1]
            for _ in range(loops[x.op]): out += body
            i = j + 1
        else:
            out.append(x); i += 1
    return out

def interleave(main, fill, per_gap=None, start=0, is_anchor=lambda x: getattr(x, "kind", "") == "mfma" and x.passes == 8, budget=None):
    out = []; fi = 0; k = 0
    def cost(x):
        if getattr(x, "kind", "") == "valu" and x.trans: return 2
        if getattr(x, "kind", "") in ("symwait",): return 1
        return 1
    for x in main:
        out.append(x)
        if is_anchor(x):
            if k >= start:
                b = per_gap(k) if callable(per_gap) else per_gap
                while fi < len(fill) and b - cost(fill[fi]) >= 0:
                    b -= cost(fill[fi]); out.append(fill[fi]); fi += 1
            k += 1
    out += fill[fi:]
    return out

def render(l):
    s = []
    for x in l:
        if x.kind == "label": s.append(x.text)
        elif x.kind == "dir": s.append(x.text)
        else: s.append("    " + x.text)
    return "\n".join(s) + "\n"

def finalize(name, prog, loops=None, verbose=False, paths=None):
    l = resolve_waits(prog.l)
    l, npad = pad_hazards(l, verbose)
    errs = check_branch_hazards(l)
    seqs = paths(l) if paths else [linearize(l, loops or {})]
    for s in seqs: errs += check_waits(s)
    n_ins = sum(1 for x in l if x.kind not in ("label","dir"))
    print(f"[{name}] instrs={n_ins} nops_padded={npad} errs={len(errs)}")
    for e in errs[:30]: print("   ERR", e)
    return l, errs

def kernel_text(name, l, vgpr, sgpr, accum):
    s = f".globl {name}\n.p2align 8\n.type {name},@function\n{name}:\n" + render(l)
    return s

def descriptor(name, vgpr, sgpr, accum):
    return f""".p2align 6
.amdhsa_kernel {name}
  .amdhsa_next_free_vgpr {vgpr}
  .amdhsa_next_free_sgpr {sgpr}
  .amdhsa_accum_offset {accum}
  .amdhsa_group_segment_fixed_size 0
  .amdhsa_kernarg_size 88
  .amdhsa_user_sgpr_count 2
  .amdhsa_user_sgpr_kernarg_segment_ptr 1
  .amdhsa_system_sgpr_workgroup_id_x 1
  .amdhsa_float_denorm_mode_32 3
.end_amdhsa_kernel
"""
```

```python
import sys
from common import *
HDR = open("parallel_sum__mha_block__mixer_gmlp__prompt.s.ref").read().split("; Override launch")[0]
def build(kernels, path):
    s = HDR
    for k in kernels:
        s += f"; @launch kernel={k['name']} grid=({k['grid']},1,1) block=({k['block']},1,1) lds={k['lds']}\n"
    s += '.amdgcn_target "amdgcn-amd-amdhsa--gfx950"\n.text\n'
    seen = []
    for k in kernels:
        if k['name'] in seen: continue
        seen.append(k['name'])
        txt = kernel_text(k['name'], k['l'], k['vgpr'], k['sgpr'], k['accum'])
        import re
        txt = re.sub(r"\bL_(\w+)", lambda m: f"L_{k['name'][:2]}_{m.group(1)}", txt)
        s += txt
    s += 'CODE_END:\n    s_endpgm\n.section .rodata,"a"\n'
    seen = []
    for k in kernels:
        if k['name'] in seen: continue
        seen.append(k['name'])
        s += descriptor(k['name'], k['vgpr'], k['sgpr'], k['accum'])
    open(path, "w").write(s)
    return s
```

```python
from asmlib import *
QF   = 0x000000
KV   = 0x200000
KVT  = 2080
KVH  = 64*KVT
Z1F  = 0x680000
Z2F  = 0xA00000
A3   = 0xE00000
W3F  = 0x1400000
ZZ   = 0x1600000
STAT = 0x1A00000
WS_USED = 0x2000000
assert KV + 32*KVH + 4096 <= Z1F
KA_X, KA_WQKV, KA_WO, KA_BX, KA_WIN, KA_WSP, KA_BSP, KA_WOUT, KA_OUT, KA_DBG, KA_WS = [8*i for i in range(11)]

def srd(p, d, lo, size):
    p(f"s_mov_b32 s{d}, s{lo}\ns_mov_b32 s{d+1}, s{lo+1}\ns_mov_b32 s{d+2}, {size:#x}\ns_mov_b32 s{d+3}, 0x20000")

def vr(b, n): return f"v[{b}:{b+n-1}]"
def ar(b, n): return f"a[{b}:{b+n-1}]"
def mfma32(d, a, b, c):
    return I(f"v_mfma_f32_32x32x16_bf16 {d}, {a}, {b}, {c}")

def bitswap23(p, dst, src, tmp):
    p(f"v_lshrrev_b32 v{tmp}, 1, v{src}\nv_xor_b32 v{tmp}, v{tmp}, v{src}\nv_and_b32 v{tmp}, 4, v{tmp}\nv_mul_u32_u24 v{tmp}, 3, v{tmp}\nv_xor_b32 v{dst}, v{src}, v{tmp}")

STAMP = 0x1C00000
class Stamper:
    def __init__(self, on, wave_s, vt, srd_=12):
        self.on = on; self.w = wave_s; self.vt = vt; self.srd = srd_
    def __call__(self, p, k):
        if not self.on: return
        vt = self.vt
        p(f"""
        s_memtime s[90:91]
        s_memrealtime s[92:93]
        s_lshl_b32 s94, s2, 4
        s_add_u32 s94, s94, s{self.w}
        s_lshl_b32 s94, s94, 7
        s_add_u32 s94, s94, {STAMP + k*8}
        s_waitcnt lgkmcnt(0)
        v_mov_b32 v{vt}, s90
        v_mov_b32 v{vt+1}, s92
        v_mov_b32 v{vt+2}, 0
        buffer_store_dwordx2 v[{vt}:{vt+1}], v{vt+2}, s[{self.srd}:{self.srd+3}], s94 offen
        """)
```

```python
from common import *
import struct, math
def fh(f): return hex(struct.unpack("<I", struct.pack("<f", f))[0])
K1_LDS = 163840
WRING = 65536
ACC = 4
WB = 116
CSF = 140
CSA = 152
SX = 164; Q0 = 168; Q1 = 172
SEL = 176
XC = 180; WC = 184
RR = 188
T = 204
R1 = 228; RI = 229; C0R = 230; C1R = 231; VC0 = 232
VL = 233
VXD = 234
VXR = 238
VWI = 242; VWQ = 243
VW0 = 244; VW1 = 245
VC0A = 246; VC1A = 247
VC3A = 248; VC3B = 249
VS = 250
VV = 251
ST = 252
def acc(t): return ACC + 16*t
VAR = dict(inter=True, gapB=4, gapC=4)

PASS = [dict(tiles=[0,1], base=[0,16,32,48]), dict(tiles=[2,3], base=[64,80,0,16]), dict(tiles=[4,5,6], base=[32,56,0,24])]
NORI = {0,1,6}
def w_dma(P, st):
    ps = PASS[P]; nt = len(ps['tiles']); pitch = 3584 if P < 2 else 3072
    vo = VWI if P < 2 else VWQ; sr = "s[16:19]" if P < 2 else "s[20:23]"
    o = []
    for idx in range(2*nt):
        u, ti = divmod(idx, nt)
        if idx % 4 == 0 or (P == 1 and st == 0 and idx == 1):
            o.append(I(f"s_add_u32 s68, s{58 if nt == 2 else 59}, {WRING + (ps['base'][st] + idx)*1024}"))
            o.append(I("s_mov_b32 m0, s68"))
            m0i = idx
        imm = (idx - m0i)*1024
        c = (st*8 + u)*16*pitch - imm
        o.append(I(f"s_add_u32 s69, s{60+ps['tiles'][ti]}, {c & 0xffffffff:#x}"))
        o.append(I(f"buffer_load_dwordx4 v{vo}, {sr}, s69 offen offset:{imm} lds", tag=f"W{P}_{st}"))
    return o
def x_dma(c):
    o = [I(f"s_add_u32 s68, s57, {(c%4)*4096}"), I("s_mov_b32 m0, s68"), I(f"s_add_u32 s69, s56, {c*128}")]
    for i in range(4):
        o.append(I(f"buffer_load_dwordx4 v{VXD+i}, s[24:27], s69 offen offset:{i*1024} lds", tag=f"X{c}"))
    return o
def x_read(c):
    return [I(f"ds_read_b128 {ar(4*(4*c+m),4)}, v{VXR+m} offset:{(c%4)*4096}", tag=f"xr{c}", needs=[f"X{c}"]) for m in range(4)]
def tr_read(dst, slot, a0, a1, tag, needs=()):
    off = slot*1024; a = a0
    if slot >= 64: off -= 65536; a = a1
    return [I(f"ds_read_b64_tr_b16 {vr(dst+2*e,2)}, v{a} offset:{off+256*e}", tag=tag, needs=list(needs)) for e in range(2)]
def slot_of(P, ks, ti):
    ps = PASS[P]; return ps['base'][ks//8] + (ks%8)*len(ps['tiles']) + ti
def w_read(P, ks):
    o = []
    for ti in range(len(PASS[P]['tiles'])):
        o += tr_read(WB + ((gstep(P,ks)%2)*3+ti)*4, slot_of(P, ks, ti), VW0, VW1, f"w{P}_{ks}", [f"W{P}_{ks//8}"])
    return o
def gstep(P, ks): return P*32+ks
def stats_mfma(ks):
    x = 4*ks; z = ks == 0
    return [I(f"v_mfma_f32_16x16x32_bf16 {vr(SX,4)}, {vr(SEL,4)}, {ar(x,4)}, {'0' if z else vr(SX,4)}"),
            I(f"v_mfma_f32_4x4x4_16b_bf16 {vr(Q0,4)}, {ar(x,2)}, {ar(x,2)}, {'0' if z else vr(Q0,4)}"),
            I(f"v_mfma_f32_4x4x4_16b_bf16 {vr(Q1,4)}, {ar(x+2,2)}, {ar(x+2,2)}, {'0' if z else vr(Q1,4)}")]
REFILL = {1: (1,2), 2: (1,3), 4: (2,0), 5: (2,1), 8: (2,2), 9: (2,3)}

def pass_main(P, extra_bound=None):
    ps = PASS[P]; tiles = ps['tiles']; nt = len(tiles)
    o = []
    for ks in range(32):
        gs = P*4 + ks//8
        mf = []
        for ti, t in enumerate(tiles):
            w = vr(WB + ((gstep(P,ks)%2)*3+ti)*4, 4); x = ar(4*ks, 4); d = vr(acc(t), 16)
            a, b = (x, w) if t in NORI else (w, x)
            mf.append(mfma32(d, a, b, "0" if ks == 0 else d))
        pre = [W(lg=[f"w{P}_{ks}"] + ([f"xr{ks//4}"] if P == 0 else []))]
        nxt = (P, ks+1) if ks < 31 else ((P+1, 0) if P < 2 else None)
        post = []
        bound = (ks % 8 == 7)
        if bound:
            if ks == 31:
                for ti in range(nt): post.append(I(f"ds_write_b32 v{VS}, v{CSA+4*ti} offset:{(P*3+ti)*256}", tag="csw"))
            wl = W(vm=[f"W{nxt[0]}_{nxt[1]//8}"] if nxt else [], lg0=True)
            if extra_bound and gs+1 in extra_bound: wl.vm += extra_bound[gs+1][0]
            post += [wl, I("s_barrier")]
        if nxt: post += w_read(*nxt)
        tail = []
        if bound and extra_bound and gs+1 in extra_bound: tail += extra_bound[gs+1][1]
        if bound and gs+1 in REFILL: tail += w_dma(*REFILL[gs+1])
        if ks % 4 == 0:
            for ti in range(nt):
                a0, a1 = (VC0A, VC1A) if nt == 2 else (VC3A, VC3B)
                tail += tr_read(CSF+4*ti, slot_of(P, ks, ti), a0, a1, f"c{P}_{ks}")
        if ks % 4 == 1:
            pre[0].lg.append(f"c{P}_{ks-1}")
            for ti in range(nt):
                tail.append(I(f"v_mfma_f32_16x16x32_bf16 {vr(CSA+4*ti,4)}, {vr(SEL,4)}, {vr(CSF+4*ti,4)}, {'0' if ks == 1 else vr(CSA+4*ti,4)}"))
        if P == 0:
            if ks % 4 == 1 and ks//4+1 < 8:
                c = ks//4+1
                tail += [W(vm=f"X{c}")] + x_read(c)
            if ks % 4 == 2:
                c = ks//4
                if c+4 < 8: tail += x_dma(c+4)
            if ks+2 < 32:
                if (ks+2) % 4 == 0: tail.append(W(lg=f"xr{(ks+2)//4}"))
                tail += stats_mfma(ks+2)
        o += pre + mf[:1] + post + mf[1:] + tail
    return o

def cs_corr(P):
    o = []
    tiles = PASS[P]['tiles']
    for ti, t in enumerate(tiles):
        for w in range(4):
            o.append(I(f"ds_read_b32 v{T+4*ti+w}, v{T+20} offset:{w*16384 + (P*3+ti)*256}", tag=f"csr{P}_{ti}"))
    o.append(I(f"v_mov_b32 v{WC+2}, 0")); o.append(I(f"v_mov_b32 v{WC+3}, 0"))
    for ti, t in enumerate(tiles):
        b = T+4*ti
        o += [W(lg=f"csr{P}_{ti}"),
              I(f"v_add_f32 v{b}, v{b}, v{b+1}"), I(f"v_add_f32 v{b+2}, v{b+2}, v{b+3}"),
              I(f"v_sub_f32_e64 v{b}, -v{b}, v{b+2}"),
              I(f"v_cvt_pk_bf16_f32 v{WC+1}, v{b}, 0"),
              I(f"v_lshlrev_b32 v{b+1}, 16, v{WC+1}"),
              I(f"v_sub_f32 v{b+1}, v{b}, v{b+1}"),
              I(f"v_cvt_pk_bf16_f32 v{WC}, v{b}, v{b+1}")]
        d = vr(acc(t), 16)
        a_, b_ = (vr(XC,4), vr(WC,4)) if t in NORI else (vr(WC,4), vr(XC,4))
        o.append(mfma32(d, a_, b_, d))
    return o

def ln1_final():
    o = Prog()
    c0 = -2.0*math.sqrt(2.0/math.pi)*1.4426950408889634
    o(f"""
    v_add_f32 v{Q0}, v{Q0}, v{Q1}
    v_add_f32 v{Q0+1}, v{Q0+1}, v{Q1+1}
    v_add_f32 v{Q0+2}, v{Q0+2}, v{Q1+2}
    v_add_f32 v{Q0+3}, v{Q0+3}, v{Q1+3}
    v_cndmask_b32 v{Q0}, v{Q0}, v{Q0+1}, s[70:71]
    v_cndmask_b32 v{Q0+2}, v{Q0+2}, v{Q0+3}, s[70:71]
    v_mul_f32 v{SX}, {fh(1/512)}, v{SX}
    v_cndmask_b32 v{Q0}, v{Q0}, v{Q0+2}, s[72:73]
    v_mov_b32 v{Q1}, v{Q0}
    v_cndmask_b32 v{SX+1}, v{SX}, 0, s[74:75]
    v_mul_f32 v{SX+2}, v{SX}, v{SX}
    v_permlane32_swap_b32 v{Q0}, v{Q1}
    v_cvt_pk_bf16_f32 v{XC}, v{SX+1}, v{SX+1}
    v_add_f32 v{Q0}, v{Q0}, v{Q1}
    v_and_b32 v{SX+3}, 0xffff0000, v{XC}
    v_fma_f32 v{Q0}, v{Q0}, s76, -v{SX+2}
    v_sub_f32 v{SX+3}, v{SX+1}, v{SX+3}
    v_max_f32 v{Q0}, 0, v{Q0}
    v_cvt_pk_bf16_f32 v{XC+1}, v{SX+3}, 0
    v_add_f32 v{Q0}, {fh(1e-5)}, v{Q0}
    v_mov_b32 v{XC+2}, 0
    v_rsq_f32 v{R1}, v{Q0}
    v_mov_b32 v{XC+3}, 0
    v_sqrt_f32 v{RI}, v{Q0}
    ds_write_b32 v{T+21}, v{R1}
    v_mul_f32 v{C0R}, {fh(c0)}, v{R1}
    v_mul_f32 v{C1R}, v{R1}, v{R1}
    v_mul_f32 v{C1R}, v{C1R}, v{C0R}
    v_mul_f32 v{C1R}, {fh(0.044715)}, v{C1R}
    v_mov_b32 v{VC0}, {fh(c0)}
    s_waitcnt lgkmcnt(0)
    """)
    for k in range(4):
        o(f"ds_read_b128 {vr(RR+4*k,4)}, v{T+22} offset:{(k//2)*64 + (k%2)*16}", tag="rr")
    return o.l

def gelu_T(t, P0):
    o = []
    a = acc(t)
    for g in range(0, 16, 4):
        rs = range(g, g+4)
        tt = lambda r: T + (r % 4)
        o += [I(f"v_mul_f32 v{tt(r)}, v{a+r}, v{a+r}") for r in rs]
        o += [I(f"v_fma_f32 v{tt(r)}, v{tt(r)}, v{C1R}, v{C0R}") for r in rs]
        o += [I(f"v_mul_f32 v{tt(r)}, v{tt(r)}, v{a+r}") for r in rs]
        o += [I(f"v_exp_f32 v{tt(r)}, v{tt(r)}") for r in rs]
        o += [I(f"v_fma_f32 v{tt(r)}, v{tt(r)}, v{RI}, v{RI}") for r in rs]
        o += [I(f"v_rcp_f32 v{tt(r)}, v{tt(r)}") for r in rs]
        o += [I(f"v_mul_f32 v{a+r}, v{a+r}, v{tt(r)}") for r in rs]
        o += [I(f"v_cvt_pk_bf16_f32 v{P0+r//2}, v{a+r}, v{a+r+1}") for r in (g, g+2)]
    return o
def gelu_N(t):
    o = []
    a = acc(t)
    for g in range(0, 16, 4):
        rs = range(g, g+4)
        tt = lambda r: T + (r % 4)
        o += [I(f"v_mul_f32 v{a+r}, v{a+r}, v{RR+r}") for r in rs]
        o += [I(f"v_mul_f32 v{tt(r)}, v{a+r}, v{a+r}") for r in rs]
        o += [I(f"v_fma_f32 v{tt(r)}, v{tt(r)}, s77, v{VC0}") for r in rs]
        o += [I(f"v_mul_f32 v{tt(r)}, v{tt(r)}, v{a+r}") for r in rs]
        o += [I(f"v_exp_f32 v{tt(r)}, v{tt(r)}") for r in rs]
        o += [I(f"v_add_f32 v{tt(r)}, 1.0, v{tt(r)}") for r in rs]
        o += [I(f"v_rcp_f32 v{tt(r)}, v{tt(r)}") for r in rs]
        o += [I(f"v_mul_f32 v{a+r}, v{a+r}, v{tt(r)}") for r in rs]
    return o

def z2_stats():
    o = []
    a0, a1 = acc(0), acc(1)
    for hf in range(2):
        S1 = lambda r: T + 4 + r
        S2 = lambda r: T + 12 + r
        for r in range(8):
            R = hf*8 + r
            o.append(I(f"v_mul_f32 v{S2(r)}, v{a0+R}, v{a0+R}"))
            o.append(I(f"v_add_f32 v{S1(r)}, v{a0+R}, v{a1+R}"))
        for r in range(8): o.append(I(f"v_fmac_f32 v{S2(r)}, v{a1+hf*8+r}, v{a1+hf*8+r}"))
        for S in (S1, S2):
            for r in range(4): o.append(I(f"v_permlane16_swap_b32 v{S(r)}, v{S(r+4)}"))
        for S in (S1, S2):
            for r in range(4): o.append(I(f"v_add_f32 v{S(r)}, v{S(r)}, v{S(r+4)}"))
        for S in (S1, S2):
            for r in range(2): o.append(I(f"v_add_f32_dpp v{S(r+4)}, v{S(r)}, v{S(r)} row_ror:8 row_mask:0xf bank_mask:0x3"))
        for S in (S1, S2):
            for r in range(2): o.append(I(f"v_add_f32_dpp v{S(r+4)}, v{S(r+2)}, v{S(r+2)} row_ror:8 row_mask:0xf bank_mask:0xc"))
        for S in (S1, S2): o.append(I(f"v_add_f32_dpp v{S(0)}, v{S(4)}, v{S(4)} row_half_mirror row_mask:0xf bank_mask:0x5"))
        o.append(I("s_nop 0"))
        for S in (S1, S2): o.append(I(f"v_add_f32_dpp v{S(0)}, v{S(5)}, v{S(5)} row_half_mirror row_mask:0xf bank_mask:0xa"))
        for S in (S1, S2): o.append(I(f"v_add_f32_dpp v{S(0)}, v{S(0)}, v{S(0)} quad_perm:[1,0,3,2] row_mask:0xf bank_mask:0xf"))
        for k, S in enumerate((S1, S2)): o.append(I(f"v_add_f32_dpp v{Q0+2*hf+k}, v{S(0)}, v{S(0)} quad_perm:[2,3,0,1] row_mask:0xf bank_mask:0xf"))
    return o

def gen_k1(stamp=False):
    p = Prog()
    st = Stamper(stamp, 28, ST)
    p(f"""
    s_cmp_ge_u32 s2, 256
    s_cbranch_scc1 L_end
    s_load_dwordx4 s[4:7], s[0:1], {KA_X}       ; x, wqkv
    s_load_dwordx2 s[8:9], s[0:1], {KA_WIN}
    s_load_dwordx4 s[48:51], s[0:1], {KA_DBG}
    v_and_b32 v1, 63, v0
    v_lshrrev_b32 v2, 6, v0
    v_readfirstlane_b32 s28, v2                 ; wave
    s_and_b32 s29, s2, 7
    s_lshr_b32 s30, s2, 3
    s_and_b32 s31, s29, 1
    s_lshl_b32 s31, s31, 3
    s_and_b32 s32, s30, 7
    s_add_u32 s31, s31, s32                     ; rb
    s_lshr_b32 s32, s29, 1
    s_lshl_b32 s32, s32, 2
    s_lshr_b32 s33, s30, 3
    s_add_u32 s32, s32, s33                     ; cg
    s_lshl_b32 s33, s31, 2
    s_add_u32 s33, s33, s28
    s_lshl_b32 s56, s33, 15
    s_lshl_b32 s57, s28, 14
    s_lshl_b32 s58, s28, 12
    s_mul_i32 s59, s28, 6144
    s_mul_i32 s34, s28, {2*16*3584}
    s_lshl_b32 s35, s32, 7
    s_add_u32 s62, s34, s35
    s_add_u32 s63, s62, 64
    s_add_u32 s60, s62, 1792
    s_add_u32 s61, s62, 1856
    s_mul_i32 s34, s28, {2*16*3072}
    s_lshl_b32 s35, s32, 6
    s_add_u32 s64, s34, s35
    s_add_u32 s65, s64, 1024
    s_add_u32 s66, s64, 2048
    v_lshlrev_b32 v{VL}, 4, v1
    v_lshrrev_b32 v2, 3, v1
    v_lshlrev_b32 v2, 10, v2
    v_lshrrev_b32 v3, 4, v1
    v_xor_b32 v3, v3, v1
    v_and_b32 v3, 7, v3
    v_lshl_add_u32 v{VXD}, v3, 4, v2
    v_xor_b32 v{VXD+1}, 64, v{VXD}
    v_add_u32 v{VXD+2}, {2*7168}, v{VXD}
    v_add_u32 v{VXD+1}, 7168, v{VXD+1}
    v_add_u32 v{VXD+3}, {2*7168}, v{VXD+1}
    v_lshrrev_b32 v2, 2, v1
    v_and_b32 v3, 3, v1
    v_lshlrev_b32 v3, 4, v3
    v_mul_u32_u24 v{VWI}, 3584, v2
    v_mul_u32_u24 v{VWQ}, 3072, v2
    v_add_u32 v{VWI}, v{VWI}, v3
    v_add_u32 v{VWQ}, v{VWQ}, v3
    s_waitcnt lgkmcnt(0)
    """)
    srd(p, 12, 50, WS_USED); srd(p, 16, 8, 512*3584); srd(p, 20, 6, 512*3072); srd(p, 24, 4, 2048*1024)
    srd(p, 40, 50, WS_USED); srd(p, 44, 48, 256)
    st(p, 0)
    p("s_cmp_ge_u32 s32, 14\ns_cbranch_scc1 L_light")
    for c in range(4):
        p.add(x_dma(c)); p.add(w_dma(0, c))
    p.add(w_dma(1, 0)); p.add(w_dma(1, 1))
    p.label("L_setup")
    setup = Prog()
    setup(f"v_and_b32 v2, 31, v1")
    bitswap23(setup, 2, 2, 3)
    setup(f"""
    v_lshrrev_b32 v3, 1, v2
    v_lshrrev_b32 v{T}, 5, v1                   ; h
    v_xor_b32 v3, v3, v{T}
    v_and_b32 v3, 7, v3
    v_lshlrev_b32 v3, 4, v3
    v_lshl_add_u32 v{VXR}, v2, 7, v3
    v_add_u32 v{VXR}, s57, v{VXR}
    v_xor_b32 v{VXR+1}, 32, v{VXR}
    v_xor_b32 v{VXR+2}, 64, v{VXR}
    v_xor_b32 v{VXR+3}, 96, v{VXR}
    v_lshlrev_b32 v{T+21}, 2, v2
    v_add_u32 v{T+21}, s57, v{T+21}
    v_add_u32 v{T+21}, 4096, v{T+21}
    v_lshlrev_b32 v{T+22}, 5, v{T}
    v_add_u32 v{T+22}, s57, v{T+22}
    v_add_u32 v{T+22}, 4096, v{T+22}
    v_lshlrev_b32 v{T+20}, 2, v1
    v_add_u32 v{VS}, s57, v{T+20}
    v_lshlrev_b32 v{VW0}, 9, v{T}               ; h*512
    v_bfe_u32 v3, v1, 2, 2
    v_lshl_add_u32 v{VW0}, v3, 6, v{VW0}        ; + r*64
    v_bfe_u32 v3, v1, 4, 1
    v_lshl_add_u32 v{VW0}, v3, 5, v{VW0}        ; + colhalf*32
    v_and_b32 v3, 1, v1
    v_lshl_add_u32 v{VW0}, v3, 4, v{VW0}        ; c bit0 -> 16
    v_bfe_u32 v3, v1, 1, 1
    v_lshl_add_u32 v{VW0}, v3, 3, v{VW0}        ; c bit1 -> 8
    v_add_u32 v{VW0}, {WRING}, v{VW0}
    v_add_u32 v{VW1}, 65536, v{VW0}
    s_lshl_b32 s34, s28, 11
    v_add_u32 v{VC0A}, s34, v{VW0}
    v_add_u32 v{VC1A}, s34, v{VW1}
    s_mul_i32 s34, s28, 3072
    v_add_u32 v{VC3A}, s34, v{VW0}
    v_add_u32 v{VC3B}, s34, v{VW1}
    v_and_b32 v3, 3, v1
    v_cmp_eq_u32 vcc, 0, v3
    v_lshrrev_b32 v3, 2, v1
    v_lshrrev_b32 v{T+1}, 4, v1
    v_xor_b32 v3, v3, v{T+1}
    v_and_b32 v3, 1, v3
    v_cmp_eq_u32 s[34:35], 0, v3
    s_and_b64 vcc, vcc, s[34:35]
    v_mov_b32 v3, 0x3f803f80
    v_cndmask_b32 v{SEL}, 0, v3, vcc
    v_mov_b32 v{SEL+1}, v{SEL}
    v_mov_b32 v{SEL+2}, v{SEL}
    v_mov_b32 v{SEL+3}, v{SEL}
    v_and_b32 v3, 1, v1
    v_cmp_eq_u32 s[70:71], 1, v3
    v_and_b32 v3, 2, v1
    v_cmp_eq_u32 s[72:73], 2, v3
    v_cmp_lt_u32 s[74:75], 31, v1
    s_mov_b32 s76, {fh(1/512)}
    s_mov_b32 s77, {fh(-2.0*math.sqrt(2.0/math.pi)*1.4426950408889634*0.044715)}
    """)
    setup(f"""
    s_mul_i32 s80, s33, {56*1024}
    s_lshl_b32 s34, s32, 12
    s_add_u32 s80, s80, s34
    s_add_u32 s80, s80, {Z1F}                   ; z1 frags (4 consecutive)
    s_lshr_b32 s34, s32, 1
    s_lshl_b32 s81, s34, 19                     ; fb*512KB
    s_lshl_b32 s34, s33, 13                     ; ss0*4096 = tt*2*4096
    s_add_u32 s81, s81, s34
    s_and_b32 s34, s32, 1
    s_lshl_b32 s34, s34, 11                     ; fi0*1024
    s_add_u32 s81, s81, s34
    s_add_u32 s81, s81, {Z2F}
    s_add_u32 s82, s81, 4096
    s_lshl_b32 s83, s32, 17                     ; head0*64KB
    s_lshl_b32 s34, s33, 10
    s_add_u32 s83, s83, s34                     ; QF (base 0)
    s_add_u32 s84, s83, 65536
    s_mul_i32 s85, s32, {2*KVH}
    s_mul_i32 s34, s33, {KVT}
    s_add_u32 s85, s85, s34
    s_add_u32 s85, s85, {KV}                    ; KV tile of head0
    s_add_u32 s86, s85, {KVH}
    s_lshl_b32 s87, s33, 14
    s_add_u32 s87, s87, {STAT}                  ; stats of this tt : [cg16][1KB]
    s_lshl_b32 s34, s32, 10
    s_add_u32 s88, s87, s34
    s_lshl_b32 s89, s31, 4                      ; counter offset in d_debug
    s_cmp_eq_u32 s28, 0
    s_cselect_b32 s79, s89, 0x1000              ; only wave 0 hits the counter, the others fall outside the buffer
    v_bfe_u32 v3, v1, 4, 1
    v_mul_lo_u32 v{VV}, v3, s78
    v_and_b32 v3, 15, v1
    v_lshl_add_u32 v{VV}, v3, 4, v{VV}
    v_lshl_add_u32 v{VV}, v{T}, 8, v{VV}
    """.replace("v_mul_lo_u32", f"s_mov_b32 s78, {KVH}\n    v_mul_lo_u32", 1))
    p.add(setup.l)
    p("s_cmp_ge_u32 s32, 14\ns_cbranch_scc1 L_light2")
    p.wait(vm="X0"); p.add(x_read(0))
    p.wait(vm="W0_0"); p("s_barrier")
    p.add(w_read(0, 0))
    p.wait(lg="xr0"); p.add(stats_mfma(0)); p.add(stats_mfma(1))
    st(p, 1)
    p.add(pass_main(0))
    st(p, 2)
    epiA = ln1_final() + cs_corr(0) + [W(lg="rr")] + gelu_N(0) + gelu_N(1) + z2_stats()
    epiA.append(I(f"buffer_store_dwordx4 {vr(Q0,4)}, v{VL}, s[40:43], s88 offen sc1", tag="stat"))
    flag = [I("s_mov_b64 exec, 1"), I(f"v_mov_b32 v2, 1"), I("buffer_atomic_add v2, off, s[44:47], s79"), I("s_mov_b64 exec, -1")]
    mainB = pass_main(1, extra_bound={8: (["stat"], flag)})
    epiB = cs_corr(1)
    for k, t in enumerate((2, 3)):
        epiB += gelu_T(t, T+4+8*k)
        epiB += [I(f"buffer_store_dwordx4 {vr(T+4+8*k,4)}, v{VL}, s[40:43], s80 offen offset:{k*2048}"),
                 I(f"buffer_store_dwordx4 {vr(T+8+8*k,4)}, v{VL}, s[40:43], s80 offen offset:{k*2048+1024}")]
    mainC = pass_main(2)
    if VAR['inter']:
        cut = max(i for i, x in enumerate(mainB) if getattr(x, 'kind', '') == 'symwait' and 'stat' in x.vm)
        p.add(interleave(mainB[:cut], epiA, per_gap=VAR['gapB'])); p.add(mainB[cut:])
        st(p, 3)
        p.label("L_passC")
        p.add(interleave(mainC, epiB, per_gap=VAR['gapC']))
    else:
        p.add(epiA); p.add(mainB); st(p, 3); p.label("L_passC"); p.add(epiB); p.add(mainC)
    st(p, 4)
    p("s_cmp_ge_u32 s32, 14\ns_cbranch_scc1 L_nopoll\ns_mov_b32 s34, 0")
    p.label("L_poll")
    p("buffer_load_dword v2, off, s[44:47], s89 sc1\ns_add_u32 s34, s34, 1\ns_waitcnt vmcnt(0)\nv_cmp_gt_u32 vcc, 14, v2")
    p("s_cbranch_vccz L_poll_ok\ns_cmp_gt_u32 s34, 0x40000\ns_cbranch_scc1 L_poll_ok\ns_sleep 2\ns_branch L_poll")
    p.label("L_poll_ok")
    PR = [acc(2)+4*k for k in range(8)] + [WB+4*k for k in range(6)]
    for k in range(14):
        if k % 4 == 0 and k: p("s_add_u32 s87, s87, 4096")
        p(f"buffer_load_dwordx4 {vr(PR[k],4)}, v{VL}, s[12:15], s87 offen offset:{(k%4)*1024} sc1", tag="part")
    p.label("L_nopoll")
    p.add(cs_corr(2))
    p(f"v_mul_f32 v{C0R}, {fh(0.25*1.4426950408889634)}, v{R1}")
    p(f"v_mov_b32 v{CSF}, 0x3f803f80\nv_mov_b32 v{CSF+1}, 0x3f803f80\nv_mov_b32 v{CSF+2}, 0x3f803f80\nv_mov_b32 v{CSF+3}, 0x3f803f80")
    for r in range(4, 8): p(f"v_mov_b32 v{CSF+r}, 0")
    p(f"s_mov_b64 exec, 0x10001\nbuffer_store_dwordx4 {vr(CSF,4)}, v{VV}, s[12:15], s85 offen offset:2048\nbuffer_store_dwordx4 {vr(CSF+4,4)}, v{VV}, s[12:15], s85 offen offset:2064\ns_mov_b64 exec, -1")
    for t, sc, so in ((4, C0R, (83, 84)), (5, R1, (85, 86))):
        a = acc(t)
        for r in range(16): p(f"v_mul_f32 v{a+r}, v{a+r}, v{sc}")
        for d in range(8): p(f"v_cvt_pk_bf16_f32 v{a+d}, v{a+2*d}, v{a+2*d+1}")
        p(f"buffer_store_dwordx4 {vr(a,4)}, v{VL}, s[12:15], s{so[0]} offen")
        p(f"buffer_store_dwordx4 {vr(a+4,4)}, v{VL}, s[12:15], s{so[1]} offen")
    a = acc(6)
    for r in range(16): p(f"v_mul_f32 v{a+r}, v{a+r}, v{RR+r}")
    for d in range(8): p(f"v_cvt_pk_bf16_f32 v{a+d}, v{a+2*d}, v{a+2*d+1}")
    p(f"buffer_store_dwordx4 {vr(a,4)}, v{VV}, s[12:15], s85 offen offset:1024")
    p(f"buffer_store_dwordx4 {vr(a+4,4)}, v{VV}, s[12:15], s85 offen offset:1536")
    p("s_cmp_ge_u32 s32, 14\ns_cbranch_scc1 L_w3")
    p.wait(vm="part")
    for k in range(1, 14):
        dst = PR[0] if k % 2 == 0 or k == 1 else PR[1]
        if k == 1: continue
        for e in range(4): p(f"v_add_f32 v{dst+e}, v{dst+e}, v{PR[k]+e}")
    for e in range(4): p(f"v_add_f32 v{PR[0]+e}, v{PR[0]+e}, v{PR[1]+e}")
    b = PR[0]
    p(f"""
    s_mov_b32 s34, {fh(1/896)}
    v_bfe_u32 v2, v1, 2, 1
    v_bfe_u32 v3, v1, 3, 1
    v_lshl_add_u32 v2, v3, 1, v2
    v_bfe_u32 v3, v1, 4, 2
    v_lshl_add_u32 v2, v3, 2, v2               ; 8h + 4b4 + 2b3 + b2
    v_lshlrev_b32 v2, 2, v2
    v_add_u32 v2, s57, v2
    v_mul_f32 v{b}, s34, v{b}
    v_mul_f32 v{b+2}, s34, v{b+2}
    v_mul_f32 v{b+4}, v{b}, v{b}
    v_mul_f32 v{b+5}, v{b+2}, v{b+2}
    v_fma_f32 v{b+1}, v{b+1}, s34, -v{b+4}
    v_fma_f32 v{b+3}, v{b+3}, s34, -v{b+5}
    v_max_f32 v{b+1}, 0, v{b+1}
    v_max_f32 v{b+3}, 0, v{b+3}
    v_add_f32 v{b+1}, {fh(1e-5)}, v{b+1}
    v_add_f32 v{b+3}, {fh(1e-5)}, v{b+3}
    v_rsq_f32 v{b+1}, v{b+1}
    v_rsq_f32 v{b+3}, v{b+3}
    s_nop 0
    v_mul_f32_e64 v{b}, -v{b}, v{b+1}
    v_mul_f32_e64 v{b+2}, -v{b+2}, v{b+3}
    ds_write_b32 v2, v{b+1} offset:4096
    ds_write_b32 v2, v{b+3} offset:4160
    ds_write_b32 v2, v{b} offset:4224
    ds_write_b32 v2, v{b+2} offset:4288
    s_waitcnt lgkmcnt(0)
    """)
    for k in range(4): p(f"ds_read_b128 {vr(RR+4*k,4)}, v{T+22} offset:{(k//2)*64 + (k%2)*16}", tag="r2")
    for k in range(4): p(f"ds_read_b128 {vr(T+4+4*k,4)}, v{T+22} offset:{128 + (k//2)*64 + (k%2)*16}", tag="r2")
    p.wait(lg="r2")
    for t in range(2):
        a = acc(t)
        for r in range(16): p(f"v_fma_f32 v{a+r}, v{a+r}, v{RR+r}, v{T+4+r}")
        for d in range(8): p(f"v_cvt_pk_bf16_f32 v{a+d}, v{a+2*d}, v{a+2*d+1}")
        p(f"buffer_store_dwordx4 {vr(a,4)}, v{VL}, s[12:15], s81 offen offset:{t*1024}")
        p(f"buffer_store_dwordx4 {vr(a+4,4)}, v{VL}, s[12:15], s82 offen offset:{t*1024}")
    st(p, 5)
    p("s_endpgm")
    p.label("L_light")
    p("s_mov_b32 s42, 0")
    p(f"s_load_dwordx2 s[36:37], s[0:1], {KA_WO}\ns_load_dwordx2 s[38:39], s[0:1], {KA_WOUT}")
    for c in range(4): p.add(x_dma(c))
    for s_ in range(3): p.add(w_dma(2, s_))
    p("s_waitcnt lgkmcnt(0)\ns_branch L_setup")
    p.label("L_light2")
    p("s_waitcnt vmcnt(18)")
    for c in range(4): p.add(x_read(c))
    p("s_waitcnt lgkmcnt(0)")
    for c in range(4, 8): p.add(x_dma(c))
    for ks in range(16): p.add(stats_mfma(ks))
    p("s_waitcnt vmcnt(0)")
    for c in range(4, 8): p.add(x_read(c))
    p("s_waitcnt lgkmcnt(0)")
    for ks in range(16, 32): p.add(stats_mfma(ks))
    p.add(ln1_final())
    p("s_barrier")
    p.add(w_read(2, 0))
    p("s_waitcnt lgkmcnt(0)\ns_branch L_passC")
    p.label("L_w3")
    p(f"""
    s_lshl_b32 s34, s31, 1
    s_add_u32 s34, s34, s32
    s_sub_u32 s34, s34, 14                      ; L
    s_cmp_lt_u32 s34, 16
    s_cselect_b32 s52, s36, s38
    s_cselect_b32 s53, s37, s39
    s_cselect_b32 s54, {512*1024}, s54
    s_cselect_b32 s35, 8, 14
    s_cselect_b32 s67, 0, {32*1024}
    s_mov_b32 s55, 0x20000
    s_and_b32 s34, s34, 15                      ; nt
    s_mul_i32 s68, s28, s35                     ; first ks (relative)
    s_lshl_b32 s69, s68, 14                     ; *16 rows*1024
    s_lshl_b32 s60, s34, 6
    s_add_u32 s69, s69, s60                     ; source offset
    s_mul_i32 s60, s34, {88*1024}
    s_lshl_b32 s68, s68, 10
    s_add_u32 s60, s60, s68
    s_add_u32 s60, s60, s67
    s_add_u32 s60, s60, {W3F}                   ; destination
    v_lshrrev_b32 v2, 2, v1
    v_and_b32 v3, 3, v1
    v_lshlrev_b32 v3, 4, v3
    v_lshl_add_u32 v2, v2, 10, v3
    v_add_u32 v3, s57, v{VW0}
    s_add_u32 s61, s57, {WRING}
    s_mov_b32 s62, 0
    """.replace("s_cselect_b32 s54, 524288, s54", f"s_mov_b32 s54, {896*1024}\n    s_cselect_b32 s54, 524288, s54"))
    p.label("L_w3a")
    p("s_mov_b32 m0, s61\ns_add_u32 s61, s61, 1024\nbuffer_load_dwordx4 v2, s[52:55], s69 offen lds\ns_add_u32 s69, s69, 16384\ns_add_u32 s62, s62, 1\ns_cmp_lt_u32 s62, s35\ns_cbranch_scc1 L_w3a")
    p("s_waitcnt vmcnt(0)\ns_mov_b32 s62, 0")
    p.label("L_w3b")
    p(f"ds_read_b64_tr_b16 {vr(T,2)}, v3\nds_read_b64_tr_b16 {vr(T+2,2)}, v3 offset:256\nv_add_u32 v3, 1024, v3\ns_waitcnt lgkmcnt(0)")
    p(f"buffer_store_dwordx4 {vr(T,4)}, v{VL}, s[12:15], s60 offen\ns_add_u32 s60, s60, 1024\ns_add_u32 s62, s62, 1\ns_cmp_lt_u32 s62, s35\ns_cbranch_scc1 L_w3b")
    st(p, 5)
    p.label("L_end")
    p("s_endpgm")
    return p

def k1_paths(l):
    lab = {x.op: i for i, x in enumerate(l) if x.kind == "label"}
    e = next(i for i, x in enumerate(l) if x.kind == "misc" and x.base == "s_endpgm")
    heavy = l[:e+1]
    b0 = next(i for i, x in enumerate(l) if x.kind == "branch" and x.target == "L_light")
    b1 = next(i for i, x in enumerate(l) if x.kind == "branch" and x.target == "L_light2")
    b2 = next(i for i, x in enumerate(l) if x.kind == "branch" and x.target == "L_nopoll")
    b3 = next(i for i, x in enumerate(l) if x.kind == "branch" and x.target == "L_w3")
    light = l[:b0] + l[lab["L_light"]:lab["L_light2"]] + l[lab["L_setup"]:b1] + l[lab["L_light2"]:lab["L_w3"]] + l[lab["L_passC"]:b2] + l[lab["L_nopoll"]:b3] + l[lab["L_w3"]:]
    return [heavy, light]
K1_DESC = dict(name="k1_kernel", vgpr=384, sgpr=100, accum=256, grid=256, block=256, lds=K1_LDS)
if __name__ == "__main__":
    import sys
    from build import build
    for nm, inter in (("k1", True), ("k1s", False)):
        VAR['inter'] = inter
        p = gen_k1(stamp=len(sys.argv)>1)
        l, errs = finalize(nm, p, paths=k1_paths, verbose=False)
        build([dict(K1_DESC, l=l)], f"out_{nm}.s")
```

```python
from common import *
import struct
def float_hex(f): return hex(struct.unpack("<I", struct.pack("<f", f))[0])

LDS_FLAG = 130048
LDS_STG = 131072
K2_LDS = 163840
VAR = dict(margin=80.0, U=8, prio_att=1, prio_g=0, cdelay=2)

QA, QB = 4, 8
CA, CB = 16, 32
OA, OB = 48, 64
SA, SB = 80, 96
PA, PB = 112, 120
KR = [128, 132, 136, 140]
V0R = [144, 148, 152, 156]
V1R = [160, 164, 168, 172]
AK, AV0, AV1 = 176, 177, 178
GK, GV0, GV1 = 179, 180, 181
MA, MB = 182, 183
TM = 184
FL = 188
PF, PFA = 190, 191
STT = 192

def max16(p, S, M, first):
    if first:
        p(f"v_max3_f32 v{M}, v{S}, v{S+1}, v{S+2}")
        p(f"v_max_f32 v{M}, v{M}, v{S+3}")
        r = range(4, 16, 2)
    else: r = range(0, 16, 2)
    for k in r: p(f"v_max3_f32 v{M}, v{M}, v{S+k}, v{S+k+1}")

def flag_wait(p, name, addr_v, off, val, tmpq):
    p.label(name)
    p(f"ds_read_b128 {vr(tmpq,4)}, v{addr_v} offset:{off}")
    p("s_waitcnt lgkmcnt(0)")
    p(f"v_min_u32 v{tmpq}, v{tmpq}, v{tmpq+1}\nv_min3_u32 v{tmpq}, v{tmpq}, v{tmpq+2}, v{tmpq+3}")
    p(f"v_cmp_gt_u32 vcc, {val}, v{tmpq}")
    p(f"s_cbranch_vccz {name}_ok\ns_sleep 1\ns_branch {name}")
    p.label(name + "_ok")

def spin1(p, name, addr_v, off, val, tmp):
    p.label(name)
    p(f"ds_read_b32 v{tmp}, v{addr_v} offset:{off}")
    p("s_waitcnt lgkmcnt(0)")
    p(f"v_cmp_gt_u32 vcc, {val}, v{tmp}")
    p(f"s_cbranch_vccz {name}_ok\ns_sleep 1\ns_branch {name}")
    p.label(name + "_ok")

def att_loop_body(U):
    out = []
    def blk(S, P, So, Po, Mqk, Mpv1, Mpv0, extra):
        e = lambda k: I(f"v_exp_f32 v{S+k}, v{S+k}")
        c = lambda k: I(f"v_cvt_pk_bf16_f32 v{P+k}, v{S+2*k}, v{S+2*k+1}")
        co = lambda k: I(f"v_cvt_pk_bf16_f32 v{Po+k}, v{So+2*k}, v{So+2*k+1}")
        o = []
        pq, p1, p0 = VAR.get('pos', (2, 6, 12))
        cs = VAR.get('cs', {0: [-6], 1: [-7], 3: [0], 5: [1], 7: [2], 9: [3], 11: [4], 13: [5]})
        if VAR.get('perm'):
            c = lambda k: I(f"v_perm_b32 v{P+k}, v{S+2*k+1}, v{S+2*k}, s45")
            co = lambda k: I(f"v_perm_b32 v{Po+k}, v{So+2*k+1}, v{So+2*k}, s45")
        for k in range(16):
            o.append(e(k))
            for j in cs.get(k, []):
                if j < 0: o.append(co(-j))
            if k == pq and not VAR.get('nom'): o.append(Mqk)
            if k == p1 and not VAR.get('nom'): o.append(Mpv1)
            if k == p0 and not VAR.get('nom'): o.append(Mpv0)
            o += extra.get(k, [])
            for j in cs.get(k, []):
                if j >= 0: o.append(c(j))
        return o
    for u in range(U):
        s0 = u % 4; s1 = (u+1) % 4; sm = (u-1) % 4
        exA = {}; exB = {}
        if u % 2 == 0:
            rd = []
            for d in (2, 3):
                o_ = (u+d-1)*KVT
                rd += [I(f"ds_read_b128 {vr(KR[(u+d)%4],4)}, v{AK} offset:{o_}"),
                       I(f"ds_read_b128 {vr(V0R[(u+d)%4],4)}, v{AV0} offset:{o_}"),
                       I(f"ds_read_b128 {vr(V1R[(u+d)%4],4)}, v{AV1} offset:{o_}")]
            exA = {6: rd}
            if VAR.get('nods'): exA = {}
        if u == U-1:
            exB = {2: [I("s_add_u32 s41, s41, 1")], 3: [I(f"s_cmp_eq_u32 s41, {12//U}")], 4: [I("s_cbranch_scc1 L_att_sync2"), I("L_att_sync2_ret:")],
                   6: [I(f"v_add_u32 v{AK}, {U*KVT}, v{AK}")], 8: [I(f"v_add_u32 v{AV0}, {U*KVT}, v{AV0}")], 10: [I(f"v_add_u32 v{AV1}, {U*KVT}, v{AV1}")],
                   14: [I(f"s_cmp_lt_u32 s41, {64//U}")]}
        if u % 2 == 1: exB[0] = [I("s_waitcnt lgkmcnt(0)")]
        out += blk(SA, PA, SB, PB, mfma32(vr(SB,16), vr(KR[s0],4), vr(QB,4), vr(CB,16)),
                   mfma32(vr(OB,16), vr(V1R[sm],4), vr(PB+4,4), vr(OB,16)),
                   mfma32(vr(OA,16), vr(V0R[s0],4), vr(PA,4), vr(OA,16)), exA)
        out += blk(SB, PB, SA, PA, mfma32(vr(SA,16), vr(KR[s1],4), vr(QA,4), vr(CA,16)),
                   mfma32(vr(OA,16), vr(V1R[s0],4), vr(PA+4,4), vr(OA,16)),
                   mfma32(vr(OB,16), vr(V0R[s0],4), vr(PB,4), vr(OB,16)), exB)
    return out

def gen_attention(p, st):
    U = VAR['U']
    p(f"s_setprio {VAR['prio_att']}")
    p(f"""
    s_mul_i32 s30, s27, {KVH}
    s_add_u32 s30, s30, {KV}
    s_lshl_b32 s31, s27, 16
    s_lshl_b32 s32, s28, 3
    s_lshl_b32 s33, s24, 1
    s_add_u32 s32, s32, s33
    s_lshl_b32 s33, s32, 10
    s_add_u32 s31, s31, s33
    v_lshlrev_b32 v{GK}, 4, v1
    """)
    p(f"buffer_load_dwordx4 {vr(QA,4)}, v{GK}, s[12:15], s31 offen")
    p(f"buffer_load_dwordx4 {vr(QB,4)}, v{GK}, s[12:15], s31 offen offset:1024")
    p(f"buffer_load_dwordx4 {vr(KR[0],4)}, v{GK}, s[12:15], s30 offen")
    p(f"buffer_load_dwordx4 {vr(KR[1],4)}, v{GK}, s[12:15], s30 offen offset:{KVT}")
    p(f"""
    v_and_b32 v{TM}, 31, v1
    v_lshrrev_b32 v{TM+1}, 5, v1
    v_lshlrev_b32 v{TM+1}, 8, v{TM+1}
    v_lshl_add_u32 v{TM+1}, v{TM}, 4, v{TM+1}
    v_and_b32 v{TM+2}, 27, v{TM}
    v_cmp_eq_u32 vcc, 16, v{TM+2}
    v_mov_b32 v{TM+2}, 2064
    v_mov_b32 v{TM+3}, 2048
    v_cndmask_b32 v{TM+2}, v{TM+2}, v{TM+3}, vcc
    v_cmp_gt_u32 vcc, 16, v{TM}
    v_add_u32 v{GV0}, 1024, v{TM+1}
    v_add_u32 v{GV1}, 1536, v{TM+1}
    v_cndmask_b32 v{GV0}, v{TM+2}, v{GV0}, vcc
    v_cndmask_b32 v{GV1}, v{TM+2}, v{GV1}, vcc
    """)
    for t in range(2):
        p(f"buffer_load_dwordx4 {vr(V0R[t],4)}, v{GV0}, s[12:15], s30 offen offset:{t*KVT}")
        p(f"buffer_load_dwordx4 {vr(V1R[t],4)}, v{GV1}, s[12:15], s30 offen offset:{t*KVT}")
    p(f"""
    s_lshl_b32 s37, s24, 12
    s_add_u32 s38, s30, {KVT+1024}
    s_add_u32 s38, s38, s37
    """)
    for i in range(8):
        p("s_mov_b32 m0, s37")
        if i < 7: p("s_add_u32 s37, s37, 16384")
        else: p("s_cmp_eq_u32 s24, 3")
        for k in range(4):
            if i == 7 and k == 3: p("s_cbranch_scc1 L_att_dma_done")
            p(f"buffer_load_dwordx4 v{GK}, s[12:15], s38 offen offset:{k*1024} lds")
        if i < 7: p("s_add_u32 s38, s38, 16384")
    p.label("L_att_dma_done")
    p(f"""
    v_mov_b32 v{FL}, {LDS_FLAG}
    s_lshl_b32 s37, s24, 2
    v_add_u32 v{FL+1}, s37, v{FL}
    v_subrev_u32 v{AK}, 1024, v{GK}
    v_subrev_u32 v{AV0}, 1024, v{GV0}
    v_subrev_u32 v{AV1}, 1024, v{GV1}
    """)
    for r in list(range(OA, OA+32)) + list(range(PB+4, PB+6)) + list(range(V1R[3], V1R[3]+4)):
        p(f"v_mov_b32 v{r}, 0")
    p("s_waitcnt vmcnt(35)")
    p.add([mfma32(vr(SA,16), vr(KR[0],4), vr(QA,4), "0"), mfma32(vr(SB,16), vr(KR[0],4), vr(QB,4), "0"),
           mfma32(vr(CA,16), vr(KR[1],4), vr(QA,4), "0"), mfma32(vr(CB,16), vr(KR[1],4), vr(QB,4), "0")])
    max16(p, SA, MA, True); max16(p, SB, MB, True); max16(p, CA, MA, False); max16(p, CB, MB, False)
    p(f"""
    s_mov_b32 s40, {float_hex(VAR['margin'])}
    v_mov_b32 v{TM}, v{MA}
    v_mov_b32 v{TM+1}, v{MB}
    v_permlane32_swap_b32 v{TM}, v{MA}
    v_permlane32_swap_b32 v{TM+1}, v{MB}
    v_max_f32 v{MA}, v{MA}, v{TM}
    v_max_f32 v{MB}, v{MB}, v{TM+1}
    v_add_f32 v{MA}, s40, v{MA}
    v_add_f32 v{MB}, s40, v{MB}
    """)
    for r in range(16): p(f"v_sub_f32 v{CA+r}, 0, v{MA}")
    for r in range(12, 16): p(f"v_mov_b32 v{SB+r}, 0")
    p.add([mfma32(vr(SA,16), vr(KR[0],4), vr(QA,4), vr(CA,16))])
    for r in range(16): p(f"v_sub_f32 v{CB+r}, 0, v{MB}")
    p("s_waitcnt vmcnt(23)")
    p(f"v_mov_b32 v{TM}, 1\nds_write_b32 v{FL+1}, v{TM}")
    flag_wait(p, "L_att_f1", FL, 0, 1, TM)
    st(p, 1)
    p("s_mov_b32 s41, 0\ns_mov_b32 s45, 0x07060302")
    p(".p2align 6")
    p.label("L_att_loop")
    p.add(att_loop_body(U))
    p("s_cbranch_scc1 L_att_loop")
    st(p, 2)
    p(f"v_cvt_pk_bf16_f32 v{PB+6}, v{SB+12}, v{SB+13}\nv_cvt_pk_bf16_f32 v{PB+7}, v{SB+14}, v{SB+15}")
    p(f"""
    s_mul_i32 s33, s32, {88*1024}
    s_lshl_b32 s34, s27, 10
    s_add_u32 s33, s33, s34
    s_add_u32 s33, s33, {A3}
    """)
    p.add([mfma32(vr(OB,16), vr(V1R[3],4), vr(PB+4,4), vr(OB,16))])
    p("s_waitcnt lgkmcnt(0)")
    p("s_mov_b32 s36, 0")
    p.label("L_att_chk")
    p(f"v_mul_f32 v{TM}, 0, v{OA+8}")
    for r in range(8): p(f"v_fmac_f32 v{TM}, 0, v{OA+r}")
    p(f"v_cmp_u_f32 vcc, v{TM}, v{TM}")
    p("s_cbranch_vccnz L_att_slow")
    p.label("L_att_fin")
    p(f"v_rcp_f32 v{MA}, v{OA+8}")
    p("s_cmp_lg_u32 s36, 0")
    for r in range(8): p(f"v_mul_f32 v{OA+r}, v{OA+r}, v{MA}")
    for k in range(4): p(f"v_cvt_pk_bf16_f32 v{PA+k}, v{OA+2*k}, v{OA+2*k+1}")
    p(f"buffer_store_dwordx4 {vr(PA,4)}, v{GK}, s[12:15], s33 offen")
    p("s_cbranch_scc1 L_att_done")
    p(f"s_mov_b32 s36, 1\ns_add_u32 s33, s33, {88*1024}")
    for r in range(9): p(f"v_mov_b32 v{OA+r}, v{OB+r}")
    for r in range(4): p(f"v_mov_b32 v{QA+r}, v{QB+r}")
    p("s_branch L_att_chk")
    p.label("L_att_done")
    st(p, 3)
    p("s_endpgm")
    p.label("L_att_sync2")
    p("s_waitcnt vmcnt(0)")
    p(f"v_mov_b32 v{TM}, 2\nds_write_b32 v{FL+1}, v{TM}")
    flag_wait(p, "L_att_f2", FL, 0, 2, TM)
    p("s_branch L_att_sync2_ret")
    p.label("L_att_slow")
    p(f"v_mov_b32 v{MA}, 0xff800000\ns_mov_b32 s41, 0\ns_mov_b32 s37, s30")
    p.label("L_att_sl1")
    p(f"buffer_load_dwordx4 {vr(KR[0],4)}, v{GK}, s[12:15], s37 offen")
    p("s_waitcnt vmcnt(0)")
    p.add([mfma32(vr(SA,16), vr(KR[0],4), vr(QA,4), "0")])
    max16(p, SA, MA, False)
    p(f"s_add_u32 s37, s37, {KVT}\ns_add_u32 s41, s41, 1\ns_cmp_lt_u32 s41, 64\ns_cbranch_scc1 L_att_sl1")
    p(f"v_mov_b32 v{TM}, v{MA}\nv_permlane32_swap_b32 v{TM}, v{MA}\nv_max_f32 v{MA}, v{MA}, v{TM}")
    for r in range(16): p(f"v_sub_f32 v{CA+r}, 0, v{MA}\nv_mov_b32 v{OA+r}, 0")
    p("s_mov_b32 s41, 0\ns_mov_b32 s37, s30")
    p.label("L_att_sl2")
    p(f"buffer_load_dwordx4 {vr(KR[0],4)}, v{GK}, s[12:15], s37 offen")
    p(f"buffer_load_dwordx4 {vr(V0R[0],4)}, v{GV0}, s[12:15], s37 offen")
    p(f"buffer_load_dwordx4 {vr(V1R[0],4)}, v{GV1}, s[12:15], s37 offen")
    p("s_waitcnt vmcnt(0)")
    p.add([mfma32(vr(SA,16), vr(KR[0],4), vr(QA,4), vr(CA,16))])
    for k in range(16): p(f"v_exp_f32 v{SA+k}, v{SA+k}")
    for k in range(8): p(f"v_cvt_pk_bf16_f32 v{PA+k}, v{SA+2*k}, v{SA+2*k+1}")
    p.add([mfma32(vr(OA,16), vr(V0R[0],4), vr(PA,4), vr(OA,16)), mfma32(vr(OA,16), vr(V1R[0],4), vr(PA+4,4), vr(OA,16))])
    p(f"s_add_u32 s37, s37, {KVT}\ns_add_u32 s41, s41, 1\ns_cmp_lt_u32 s41, 64\ns_cbranch_scc1 L_att_sl2")
    p("s_nop 15\ns_branch L_att_fin")

ACC = 4
NZF = 16
ZR = 132
WR = 196
VL = 228; VD = 229; VW = 230
G = 232
def acc(i, tt): return ACC + (i*2+tt)*16

def gen_gemm(p, st):
    p(f"""
    s_cmp_ge_u32 s26, 28
    s_cbranch_scc1 L_end
    s_setprio 3
    s_sub_u32 s24, s24, 4                  ; q = K quarter
    s_mul_i32 s30, s26, 9363
    s_lshr_b32 s30, s30, 16                ; j/7
    s_mul_i32 s31, s30, 7
    s_sub_u32 s31, s26, s31                ; fb = j%7
    s_lshl_b32 s32, s25, 2
    s_add_u32 s30, s30, s32                ; tb
    s_lshl_b32 s33, s31, 19
    s_add_u32 s33, s33, {Z2F}
    s_lshl_b32 s34, s24, 17
    s_add_u32 s33, s33, s34
    s_lshl_b32 s35, s30, 18
    s_lshl_b32 s34, s24, 10
    s_add_u32 s35, s35, s34
    s_lshl_b32 s36, s24, 13
    s_add_u32 s36, s36, {LDS_STG}
    s_add_u32 s37, s36, 4096
    v_lshlrev_b32 v{VL}, 4, v1
    """)
    for i in range(4):
        p(f"s_add_u32 s38, s24, {i}\ns_and_b32 s38, s38, 3\ns_lshl_b32 s38, s38, 10\ns_add_u32 s{52+i}, s33, s38")
        p(f"s_add_u32 s{56+i}, s35, {i*(65536-1024)}")
    p(f"""
    v_lshrrev_b32 v2, 2, v1
    v_lshlrev_b32 v2, 12, v2
    v_lshrrev_b32 v3, 4, v1
    v_xor_b32 v3, v3, v1
    v_and_b32 v3, 3, v3
    v_lshl_add_u32 v{VD}, v3, 4, v2
    """)
    def dma(b):
        out = [I(f"s_mov_b32 m0, s{36 + b%2}"), I("s_nop 0")]
        for k in range(4):
            out.append(I(f"buffer_load_dwordx4 v{VD}, s[16:19], s{56+k} offen offset:{k*1024} lds", tag=f"d{b}"))
            out.append(I(f"s_add_u32 s{56+k}, s{56+k}, 64"))
        return out
    def zload(n):
        i = n % 4
        return [I(f"buffer_load_dwordx4 {vr(ZR + (n%NZF)*4, 4)}, v{VL}, s[12:15], s{52+i} offen", tag=f"z{n}"),
                I(f"s_add_u32 s{52+i}, s{52+i}, 4096")]
    p.add(dma(0))
    for n in range(8): p.add(zload(n))
    p.add(dma(1))
    for n in range(8, 16): p.add(zload(n))
    p(f"v_and_b32 v2, 31, v1")
    bitswap23(p, 2, 2, 3)
    p(f"""
    v_lshrrev_b32 v3, 2, v2
    v_lshrrev_b32 v{VW}, 5, v1
    v_xor_b32 v3, v3, v{VW}
    v_and_b32 v3, 3, v3
    v_lshlrev_b32 v3, 4, v3
    v_lshl_add_u32 v{VW}, v2, 6, v3
    v_add_u32 v{VW}, s36, v{VW}
    v_xor_b32 v{VW+1}, 32, v{VW}
    """)
    p(f"s_setprio {VAR['prio_g']}")
    st(p, 1)
    NB = 16
    def wread(b):
        return [I(f"ds_read_b128 {vr(WR + ((b%2)*4+u*2+tt)*4, 4)}, v{VW+u} offset:{(b%2)*4096 + tt*2048}", tag=f"w{b}", needs=[f"d{b}"]) for u in range(2) for tt in range(2)]
    def block(b, first=False, dma_on=True, z_on=True, w_on=True):
        o = [W(lg=f"w{b}")]
        if dma_on: o += dma(b+2)
        for u in range(2):
            s = 2*b+u
            o.append(W(vm=[f"z{4*s+3}"] + ([f"d{b+1}"] if (u == 1 and w_on) else [])))
            for i in range(4):
                n = 4*s+i
                for tt in range(2):
                    c = "0" if (first and u == 0) else vr(acc(i,tt),16)
                    o.append(mfma32(vr(acc(i,tt),16), vr(ZR+(n%NZF)*4,4), vr(WR+((b%2)*4+u*2+tt)*4,4), c))
                if u == 1 and i == 0 and w_on: o += wread(b+1)
            if z_on:
                for i in range(4): o += zload(4*s+i+NZF)
        return o
    p.wait(vm="d0"); p.add(wread(0))
    p.add(block(0, first=True)); p.add(block(1))
    p("s_mov_b32 s60, 0")
    p.label("L_g_loop")
    p.add(block(2)); p.add(block(3))
    p("s_add_u32 s60, s60, 1\ns_cmp_lt_u32 s60, 6\ns_cbranch_scc1 L_g_loop")
    p.add(block(4, dma_on=False, z_on=False)); p.add(block(5, dma_on=False, z_on=False, w_on=False))
    st(p, 2)
    p("s_setprio 3")
    p(f"""
    s_lshl_b32 s38, s30, 1
    s_mul_i32 s39, s38, {56*1024}
    s_lshl_b32 s40, s31, 2
    s_add_u32 s40, s40, s24
    s_lshl_b32 s41, s40, 11
    s_add_u32 s39, s39, s41
    s_add_u32 s39, s39, {Z1F}
    s_add_u32 s42, s39, {56*1024}
    s_mul_i32 s43, s38, {88*1024}
    s_add_u32 s43, s43, s41
    s_add_u32 s43, s43, {A3 + 32*1024}
    s_add_u32 s44, s43, {88*1024}
    s_lshl_b32 s45, s30, 7
    v_lshlrev_b32 v2, 1, v2
    """)
    Z = ZR
    p(f"buffer_load_dwordx4 {vr(Z,4)}, v{VL}, s[12:15], s39 offen", tag="z1")
    p(f"buffer_load_dwordx4 {vr(Z+4,4)}, v{VL}, s[12:15], s39 offen offset:1024", tag="z1")
    p(f"buffer_load_dwordx4 {vr(Z+8,4)}, v{VL}, s[12:15], s42 offen", tag="z1")
    p(f"buffer_load_dwordx4 {vr(Z+12,4)}, v{VL}, s[12:15], s42 offen offset:1024", tag="z1")
    p(f"buffer_load_ushort v{Z+16}, v2, s[20:23], s45 offen", tag="z1")
    p(f"buffer_load_ushort v{Z+17}, v2, s[20:23], s45 offen offset:64", tag="z1")
    p(f"""
    v_add_u32 v{G}, s36, v{VL}
    s_lshl_b32 s46, s24, 2
    s_add_u32 s46, s46, {LDS_FLAG}
    v_mov_b32 v{G+1}, s46
    """)
    for r in range(1, 4):
        if r > 1:
            p(f"s_add_u32 s47, s24, {r-1}\ns_and_b32 s47, s47, 3\ns_lshl_b32 s47, s47, 2\ns_add_u32 s47, s47, {LDS_FLAG}\nv_mov_b32 v{G+2}, s47")
            spin1(p, f"L_g_ack{r}", G+2, 32, r-1, G+3)
        for k in range(8):
            p(f"ds_write_b128 v{G}, {vr(acc(r,0)+4*k, 4)} offset:{k*1024}")
        p(f"v_mov_b32 v{G+3}, {r}\ns_waitcnt lgkmcnt(0)\nds_write_b32 v{G+1}, v{G+3} offset:16")
        p(f"s_add_u32 s47, s24, {4-r}\ns_and_b32 s47, s47, 3\ns_lshl_b32 s48, s47, 2\ns_add_u32 s48, s48, {LDS_FLAG}\nv_mov_b32 v{G+2}, s48\ns_lshl_b32 s47, s47, 13\ns_add_u32 s47, s47, {LDS_STG}\nv_add_u32 v{G+4}, s47, v{VL}")
        spin1(p, f"L_g_dat{r}", G+2, 16, r, G+3)
        T = acc(r, 0)
        for k in range(8):
            p(f"ds_read_b128 {vr(T+4*k,4)}, v{G+4} offset:{k*1024}", tag=f"r{k}")
        for k in range(8):
            p.wait(lg=f"r{k}")
            for e in range(4): p(f"v_add_f32 v{acc(0,0)+4*k+e}, v{acc(0,0)+4*k+e}, v{T+4*k+e}")
        if r < 3:
            p(f"v_mov_b32 v{G+3}, {r}\nds_write_b32 v{G+1}, v{G+3} offset:32")
    p.wait(vm="z1")
    T = acc(1, 0)
    p(f"v_lshlrev_b32 v{Z+16}, 16, v{Z+16}\nv_lshlrev_b32 v{Z+17}, 16, v{Z+17}")
    for tt in range(2):
        a = acc(0, tt)
        for r in range(16): p(f"v_add_f32 v{a+r}, v{a+r}, v{Z+16+tt}")
        for d in range(8):
            z = Z + tt*8 + d
            p(f"v_lshlrev_b32 v{T}, 16, v{z}\nv_and_b32 v{T+1}, 0xffff0000, v{z}")
            p(f"v_mul_f32 v{a+2*d}, v{a+2*d}, v{T}\nv_mul_f32 v{a+2*d+1}, v{a+2*d+1}, v{T+1}")
            p(f"v_cvt_pk_bf16_f32 v{T+8+tt*8+d}, v{a+2*d}, v{a+2*d+1}")
        so = 43 + tt
        p(f"buffer_store_dwordx4 {vr(T+8+tt*8,4)}, v{VL}, s[12:15], s{so} offen")
        p(f"buffer_store_dwordx4 {vr(T+12+tt*8,4)}, v{VL}, s[12:15], s{so} offen offset:1024")
    st(p, 3)
    p("s_endpgm")

def gen_k2(with_gemm=True, with_att=True, stamp=False):
    p = Prog()
    p(f"""
    s_cmp_ge_u32 s2, 256
    s_cbranch_scc1 L_end
    s_load_dwordx2 s[4:5], s[0:1], {KA_WS}
    s_load_dwordx4 s[8:11], s[0:1], {KA_WSP}
    v_and_b32 v1, 63, v0
    v_lshrrev_b32 v2, 6, v0
    v_readfirstlane_b32 s24, v2
    s_and_b32 s25, s2, 7
    s_lshr_b32 s26, s2, 3
    s_lshr_b32 s27, s26, 3
    s_lshl_b32 s28, s25, 2
    s_add_u32 s27, s27, s28                ; head
    s_and_b32 s28, s26, 7                  ; qb
    v_mov_b32 v2, 0
    v_lshlrev_b32 v3, 2, v1
    v_add_u32 v3, {LDS_FLAG}, v3
    ds_write_b32 v3, v2
    s_mov_b32 s50, s24
    s_waitcnt lgkmcnt(0)
    """)
    srd(p, 12, 4, WS_USED); srd(p, 16, 8, 2048*2048*2); srd(p, 20, 10, 4096)
    p("s_barrier")
    Stamper(stamp, 50, 240)(p, 0)
    p("s_cmp_ge_u32 s24, 4\ns_cbranch_scc1 L_gemm")
    if with_att: gen_attention(p, Stamper(stamp, 50, 240))
    else: p("s_endpgm")
    p.label("L_gemm")
    if with_gemm: gen_gemm(p, Stamper(stamp, 50, 240))
    p.label("L_end")
    p("s_endpgm")
    return p

def k2_paths(l):
    lab = {x.op: i for i, x in enumerate(l) if x.kind == "label"}
    g = lab["L_gemm"]
    att = l[:g]
    end_att = next(i for i, x in enumerate(att) if x.kind == "misc" and x.base == "s_endpgm")
    head_end = next(i for i, x in enumerate(l) if x.kind == "branch" and x.target == "L_gemm")
    return [linearize(att[:end_att+1], {"L_att_loop": 3}), linearize(l[:head_end] + l[g:], {"L_g_loop": 3})]

K2_DESC = dict(name="k2_kernel", vgpr=248, sgpr=100, accum=248, grid=256, block=512, lds=K2_LDS)
if __name__ == "__main__":
    p = gen_k2()
    l, errs = finalize("k2", p, paths=k2_paths, verbose=True)
```

```python
from common import *
K3_LDS = 49152
ACC = 4
XR = 68
VL = 76; VO = 77; VT = 78
FR0 = 84
NVF = 43
def fr(n):
    return vr(FR0 + 4*n, 4) if n < NVF else ar(4*(n-NVF), 4)

def gen_k3(stamp=False, KS=22, nsplit=4):
    p = Prog()
    st = Stamper(stamp, 24, VT)
    p(f"""
    s_cmp_ge_u32 s2, 256
    s_cbranch_scc1 L_end
    s_load_dwordx2 s[4:5], s[0:1], {KA_WS}
    s_load_dwordx2 s[6:7], s[0:1], {KA_X}
    s_load_dwordx2 s[8:9], s[0:1], {KA_OUT}
    v_and_b32 v1, 63, v0
    v_lshrrev_b32 v2, 6, v0
    v_readfirstlane_b32 s24, v2
    v_lshlrev_b32 v{VL}, 4, v1
    s_and_b32 s25, s2, 7
    s_lshr_b32 s26, s2, 3
    s_lshr_b32 s27, s26, 3
    s_lshl_b32 s28, s25, 2
    s_add_u32 s27, s27, s28                ; tb
    s_and_b32 s28, s26, 7                  ; nb
    s_and_b32 s29, s24, 1
    s_lshr_b32 s30, s24, 1
    s_mul_i32 s31, s24, {KS*1024}          ; k offset
    s_lshl_b32 s32, s27, 1
    s_add_u32 s33, s32, s29
    s_xor_b32 s34, s33, 1
    s_lshl_b32 s32, s28, 1
    s_add_u32 s35, s32, s30
    s_xor_b32 s36, s35, 1
    s_mul_i32 s40, s33, {88*1024}
    s_mul_i32 s41, s34, {88*1024}
    s_mul_i32 s42, s35, {88*1024}
    s_mul_i32 s43, s36, {88*1024}
    s_add_u32 s32, s31, {A3}
    s_add_u32 s40, s40, s32
    s_add_u32 s41, s41, s32
    s_add_u32 s32, s31, {W3F}
    s_add_u32 s42, s42, s32
    s_add_u32 s43, s43, s32
    s_waitcnt lgkmcnt(0)
    """)
    srd(p, 12, 4, WS_USED); srd(p, 16, 6, 2048*1024); srd(p, 20, 8, 2048*1024)
    st(p, 0)
    def loads(s):
        o = []
        if s and s % 4 == 0:
            o += [I(f"s_add_u32 s{40+i}, s{40+i}, 4096") for i in range(4)]
        for i in (0, 2, 1, 3):
            o.append(I(f"buffer_load_dwordx4 {fr(4*s+i)}, v{VL}, s[12:15], s{40+i} offen offset:{(s%4)*1024}", tag=f"f{s}_{i}"))
        return o
    PRE = 14
    for s in range(4): p.add(loads(s))
    p(f"v_and_b32 v2, 31, v1")
    bitswap23(p, 2, 2, 3)
    p(f"""
    v_lshrrev_b32 v3, 5, v1
    v_lshlrev_b32 v3, 4, v3
    v_lshl_add_u32 v{VO}, v2, 10, v3
    s_lshl_b32 s44, s33, 15
    s_lshl_b32 s45, s35, 6
    s_add_u32 s44, s44, s45
    """)
    p(f"buffer_load_dwordx4 {vr(XR,4)}, v{VO}, s[16:19], s44 offen", tag="x")
    p(f"buffer_load_dwordx4 {vr(XR+4,4)}, v{VO}, s[16:19], s44 offen offset:32", tag="x")
    for s in range(4, PRE): p.add(loads(s))
    for s in range(KS):
        p.wait(vm=[f"f{s}_0", f"f{s}_2"])
        for (a, b) in ((0,0), (0,1), (1,0), (1,1)):
            if (a, b) == (0, 1): p.wait(vm=f"f{s}_1")
            if (a, b) == (1, 0): p.wait(vm=f"f{s}_3")
            d = vr(ACC + (a*2+b)*16, 16)
            p.add([mfma32(d, fr(4*s+2+a), fr(4*s+b), "0" if s == 0 else d)])
        if s + PRE < KS: p.add(loads(s+PRE))
    st(p, 1)
    for i in range(1, 4):
        p(f"s_xor_b32 s46, s24, {i}\ns_mul_i32 s46, s46, 12288\ns_add_u32 s46, s46, {(i-1)*4096}\nv_add_u32 v{VT}, s46, v{VL}")
        for k in range(4): p(f"ds_write_b128 v{VT}, {vr(ACC+i*16+4*k,4)} offset:{k*1024}")
    p(f"s_mul_i32 s46, s24, 12288\nv_add_u32 v{VT}, s46, v{VL}\ns_waitcnt lgkmcnt(0)\ns_barrier")
    for k in range(12): p(f"ds_read_b128 {vr(ACC+16+4*k,4)}, v{VT} offset:{k*1024}", tag=f"r{k}")
    p.wait(vm="x")
    for d in range(8):
        p(f"v_lshlrev_b32 v{VT+1}, 16, v{XR+d}\nv_and_b32 v{VT+2}, 0xffff0000, v{XR+d}")
        p(f"v_add_f32 v{ACC+2*d}, v{ACC+2*d}, v{VT+1}\nv_add_f32 v{ACC+2*d+1}, v{ACC+2*d+1}, v{VT+2}")
    for k in range(12):
        p.wait(lg=f"r{k}")
        for e in range(4): p(f"v_add_f32 v{ACC+(4*k+e)%16}, v{ACC+(4*k+e)%16}, v{ACC+16+4*k+e}")
    for d in range(8): p(f"v_cvt_pk_bf16_f32 v{XR+d}, v{ACC+2*d}, v{ACC+2*d+1}")
    p(f"buffer_store_dwordx4 {vr(XR,4)}, v{VO}, s[20:23], s44 offen")
    p(f"buffer_store_dwordx4 {vr(XR+4,4)}, v{VO}, s[20:23], s44 offen offset:32")
    st(p, 2)
    p.label("L_end")
    p("s_endpgm")
    return p
K3_DESC = dict(name="k3_kernel", vgpr=256+4*(88-NVF), sgpr=100, accum=256, grid=256, block=256, lds=K3_LDS)
if __name__ == "__main__":
    import sys
    from build import build
    p = gen_k3(stamp=len(sys.argv)>1)
    l, errs = finalize("k3", p, verbose=False)
    build([dict(K3_DESC, l=l)], "out_k3.s")
```

```python
import sys
from build import build
from asmlib import finalize
import k1, k2, k3
stamp = 'st' in sys.argv
out = [a for a in sys.argv[1:] if a.endswith('.s')]
out = out[0] if out else "out_all.s"
l1, e1 = k1.finalize_k1(k1.gen_k1(stamp=stamp))
l2, e2 = finalize("k2", k2.gen_k2(stamp=stamp), paths=k2.k2_paths)
l3, e3 = finalize("k3", k3.gen_k3(stamp=stamp))
assert not (e1 or e2 or e3)
build([dict(k1.K1_DESC, l=l1), dict(k2.K2_DESC, l=l2), dict(k3.K3_DESC, l=l3)], out)
```

```python
from asmlib import *
QF   = 0x000000
KV   = 0x200000
KVT  = 2080
KVH  = 64*KVT
Z1F  = 0x680000
Z2F  = 0xA00000
A3   = 0xE00000
W3F  = 0x1400000
ZZ   = 0x1600000
STAT = 0x1A00000
WS_USED = 0x2000000
assert KV + 32*KVH + 4096 <= Z1F
KA_X, KA_WQKV, KA_WO, KA_BX, KA_WIN, KA_WSP, KA_BSP, KA_WOUT, KA_OUT, KA_DBG, KA_WS = [8*i for i in range(11)]

def srd(p, d, lo, size):
    p(f"s_mov_b32 s{d}, s{lo}\ns_mov_b32 s{d+1}, s{lo+1}\ns_mov_b32 s{d+2}, {size:#x}\ns_mov_b32 s{d+3}, 0x20000")

def vr(b, n): return f"v[{b}:{b+n-1}]"
def ar(b, n): return f"a[{b}:{b+n-1}]"
def mfma32(d, a, b, c):
    return I(f"v_mfma_f32_32x32x16_bf16 {d}, {a}, {b}, {c}")

def bitswap23(p, dst, src, tmp):
    p(f"v_lshrrev_b32 v{tmp}, 1, v{src}\nv_xor_b32 v{tmp}, v{tmp}, v{src}\nv_and_b32 v{tmp}, 4, v{tmp}\nv_mul_u32_u24 v{tmp}, 3, v{tmp}\nv_xor_b32 v{dst}, v{src}, v{tmp}")

STAMP = 0x1C00000
class Stamper:
    def __init__(self, on, wave_s, vt, srd_=12):
        self.on = on; self.w = wave_s; self.vt = vt; self.srd = srd_
    def __call__(self, p, k):
        if not self.on: return
        vt = self.vt
        if vt == 0:
            p(f"""
            s_memtime s[90:91]
            s_memrealtime s[92:93]
            s_lshl_b32 s94, s2, 4
            s_add_u32 s94, s94, s{self.w}
            s_lshl_b32 s94, s94, 7
            s_add_u32 s94, s94, {STAMP + k*8}
            s_waitcnt lgkmcnt(0)
            v_mov_b32 v2, s90
            v_mov_b32 v3, s92
            buffer_store_dwordx2 v[2:3], off, s[{self.srd}:{self.srd+3}], s94
            """)
            return
        p(f"""
        s_memtime s[90:91]
        s_memrealtime s[92:93]
        s_lshl_b32 s94, s2, 4
        s_add_u32 s94, s94, s{self.w}
        s_lshl_b32 s94, s94, 7
        s_add_u32 s94, s94, {STAMP + k*8}
        s_waitcnt lgkmcnt(0)
        v_mov_b32 v{vt}, s90
        v_mov_b32 v{vt+1}, s92
        v_mov_b32 v{vt+2}, 0
        buffer_store_dwordx2 v[{vt}:{vt+1}], v{vt+2}, s[{self.srd}:{self.srd+3}], s94 offen
        """)
```

```python
from common import *
import struct, math
def fh(f): return hex(struct.unpack("<I", struct.pack("<f", f))[0])
K1_LDS = 163840
RING = 65536
BIAS = 3072
CNT = 3072
C0 = -2.0*math.sqrt(2.0/math.pi)*1.4426950408889634
A0, A1, A2, A3_ = 4, 20, 36, 52
LA = 2
WB = 68
CSF = 92
CSA = 100
T = 68
WC = 92; STQ = 96
SEL = 108; XC = 112
R1, RI, C0R, C1R = 116, 117, 118, 119
VXD = 116
VXR = 112
VL, VPI, VQ, VB = 120, 121, 122, 123
VA = 124
RR = 52
SX, Q0, Q1 = 52, 56, 60
VAR = dict(prio=True, per=1, rot=True)
WI, WQ, XS = "s[16:19]", "s[20:23]", "s[24:27]"
SXE, SIE, SQE = 60, 64, 96

def dma1(lds_s, lds_c, sr, vo, sb, se, c, tag):
    return [I(f"s_add_u32 m0, s{lds_s}, {lds_c}"), I(f"s_add_u32 s69, s{sb}, s{se}"),
            I(f"buffer_load_dwordx4 v{vo}, {sr}, s69 offen offset:{c} lds" if False else f"s_add_u32 s69, s69, {c}"),
            I(f"buffer_load_dwordx4 v{vo}, {sr}, s69 offen lds", tag=tag)]
def E_addr(ks): return RING + ((ks//8)*24 + (ks%8)*3)*1024
def Z_addr(ks): return RING + ks*2048
def Q_addr(ks):
    if ks < 16: return RING + 65536 + ks*2048
    r = ks-16; return (r//4)*16384 + 8192 + (r%4)*2048
def dma_E(e):
    b = RING + e*24*1024
    return [dma1(58, b, WI, VPI, 80, SIE+e, 1792, f"E{e}"), dma1(58, b+1024, WI, VPI, 80, SIE+e, 1792+8*3584, f"E{e}"),
            dma1(58, b+2048, WQ, VQ, 81, SQE+e, 2048, f"E{e}")]
def dma_Z(e):
    b = RING + e*16384
    return [dma1(55, b, WI, VPI, 80, SIE+e, 0, f"Z{e}"), dma1(55, b+1024, WI, VPI, 80, SIE+e, 8*3584, f"Z{e}")]
def dma_Q(e):
    ls, b = (55, RING + 65536 + e*16384) if e < 2 else (54, (e-2)*32768 + 8192)
    return [dma1(ls, b, WQ, VQ, 82, SQE+e, 0, "Q"), dma1(ls, b+1024, WQ, VQ, 82, SQE+e, 8*3072, "Q")]
def x_dma(e):
    return [[I(f"s_add_u32 m0, s59, {(2*e % 4)*4096 + i*1024}"), I(f"s_add_u32 s69, s56, s{SXE+e}"),
             I(f"buffer_load_dwordx4 v{VXD+i}, {XS}, s69 offen lds", tag=f"X{e}")] for i in range(4)]
def flat(x): return sum(x, [])
def x_read(ks):
    return [I(f"ds_read_b128 {ar(4*ks,4)}, v{VXR+ks%4} offset:{((ks//4)%4)*4096}", tag=f"xr{ks}")]
class Addr:
    def __init__(self, base): self.base = base
    def off(self, addr, out, span=2048+1024+6*1024*2):
        if not (0 <= addr - self.base and addr - self.base + 1024 <= 65535):
            nb = addr if addr < self.base else addr
            d = (nb - self.base) & 0xffffffff
            out += [I(f"v_add_u32 v{VA+k}, {d:#x}, v{VA+k}") for k in range(4)]
            self.base = nb
        return addr - self.base
def tr_read(dst, areg, off, e2, tag):
    return [I(f"ds_read_b64_tr_b16 {vr(dst+2*e,2)}, v{areg} offset:{off+e2*e}", tag=tag) for e in range(2)]
def m16(d, b, first): return I(f"v_mfma_f32_16x16x32_bf16 {vr(d,4)}, {vr(SEL,4)}, {b}, {'0' if first else vr(d,4)}")
def stats_mfma(ks):
    x = 4*ks; z = ks == 0
    return [m16(SX, ar(x,4), z),
            I(f"v_mfma_f32_4x4x4_16b_bf16 {vr(Q0,4)}, {ar(x,2)}, {ar(x,2)}, {'0' if z else vr(Q0,4)}"),
            I(f"v_mfma_f32_4x4x4_16b_bf16 {vr(Q1,4)}, {ar(x+2,2)}, {ar(x+2,2)}, {'0' if z else vr(Q1,4)}")]
def wb(ks, ti): return WB + ((ks % (LA+1))*2 + ti)*4
def stl(st, k):
    q = Prog(); st(q, k); return q.l

def gemm_pass(accs, addr_of, base0, nori, tagp, e2, hooks=None, cs_tiles=None, stats=False):
    nt = len(accs)
    am = Addr(base0)
    def rd(ks, dst, regs, tag):
        o = []
        off = am.off(addr_of(ks), o)
        for ti in range(nt): o += tr_read(dst(ti), regs+ti, off, e2, tag)
        return o
    o = []
    for ks in range(LA): o += rd(ks, lambda ti: wb(ks,ti), VA, f"{tagp}{ks}")
    for ks in range(32):
        pre = W(lg=[f"{tagp}{ks}", f"xr{ks}"])
        mf = []
        for ti in range(nt):
            w = vr(wb(ks,ti),4); x = ar(4*ks,4); d = vr(accs[ti],16)
            mf.append(mfma32(d, x, w, "0" if ks == 0 else d) if nori else mfma32(d, w, x, "0" if ks == 0 else d))
        h0, h1, h2 = hooks(ks) if hooks else ([], [], [])
        post = list(h0)
        tail = []
        if ks % 4 == 0:
            post += rd(ks, lambda ti: CSF+4*ti, VA+2, f"c{tagp}{ks}")
        if ks+LA < 32: post += rd(ks+LA, lambda ti: wb(ks+LA,ti), VA, f"{tagp}{ks+LA}")
        post += h1
        if ks % 4 == 1:
            pre.lg.append(f"c{tagp}{ks-1}")
            for ti in range(nt): tail.append(m16(CSA+4*ti, vr(CSF+4*ti,4), ks == 1))
        if ks == 30:
            tail.append(I(f"v_lshl_add_u32 v3, v1, 2, s57"))
            for ti in range(nt): tail.append(I(f"ds_write_b32 v3, v{CSA+4*ti} offset:{cs_tiles[ti]*256}"))
        if stats: tail += stats_mfma(ks)
        tail += h2
        o += [pre] + mf[:1] + post + mf[1:] + tail
    return o

def phase1_hooks(st):
    sched = {}
    def spread(pcs, first, per):
        pcs = list(pcs); k = first
        while pcs:
            for _ in range(per):
                if pcs: sched.setdefault(k, []).append(pcs.pop(0))
            k += 1
    spread(dma_E(2) + dma_E(3), 0, 1)
    spread(x_dma(2) + dma_Z(0), 8-LA, VAR['per'])
    spread(x_dma(3) + dma_Z(1) + dma_Z(2), 16-LA, VAR['per'])
    spread(dma_Z(3), 24-LA, VAR['per'])
    def hooks(ks):
        e, r8 = divmod(ks, 8)
        h0 = []; h1 = []
        if r8 == 8-LA and e < 3:
            h0 = [W(vm=[f"X{e+1}", f"E{e+1}"], lg0=True), I("s_barrier")] + stl(st, 2+e)
        if r8 >= 8-LA and e < 3:
            k0 = 8*(e+1) + 2*(r8-(8-LA)); h1 += x_read(k0) + x_read(k0+1)
        if r8 < 4: h1 += x_read(8*e+4+r8)
        return h0, h1, flat(sched.get(ks, []))
    return hooks

def set_va(p, pair, base, mstride):
    sh = 7 if pair else 6
    p(f"""
    v_lshrrev_b32 v2, 5, v1
    v_lshlrev_b32 v{VA}, {sh+3}, v2
    v_bfe_u32 v3, v1, 2, 2
    v_lshl_add_u32 v{VA}, v3, {sh}, v{VA}
    v_bfe_u32 v3, v1, 4, 1
    v_lshl_add_u32 v{VA}, v3, 5, v{VA}
    v_and_b32 v3, 1, v1
    v_lshl_add_u32 v{VA}, v3, 4, v{VA}
    v_bfe_u32 v3, v1, 1, 1
    v_lshl_add_u32 v{VA}, v3, 3, v{VA}
    """)
    if pair: p(f"v_bfe_u32 v3, v1, 3, 1\nv_lshl_add_u32 v{VA}, v3, 6, v{VA}")
    p(f"""
    v_add_u32 v{VA}, {base}, v{VA}
    s_mul_i32 s34, s29, {mstride}
    v_xor_b32 v{VA+1}, 64, v{VA}
    v_add_u32 v{VA+2}, s34, v{VA}
    v_add_u32 v{VA+3}, s34, v{VA+1}
    """)

def corr_from(b, d, nori):
    o = [I(f"v_sub_f32 v{b}, 0, v{b}"),
         I(f"v_cvt_pk_bf16_f32 v{WC+1}, v{b}, 0"),
         I(f"v_lshlrev_b32 v{b+1}, 16, v{WC+1}"),
         I(f"v_sub_f32 v{b+1}, v{b}, v{b+1}"),
         I(f"v_cvt_pk_bf16_f32 v{WC}, v{b}, v{b+1}")]
    a_, b_ = (vr(XC,4), vr(WC,4)) if nori else (vr(WC,4), vr(XC,4))
    o.append(mfma32(vr(d,16), a_, b_, vr(d,16)))
    return o
def cs_reads(tiles, tag):
    o = [I(f"v_lshlrev_b32 v2, 2, v1")]
    for k, tl in enumerate(tiles):
        for w in range(4): o.append(I(f"ds_read_b32 v{T+4*k+w}, v2 offset:{w*16384 + tl*256}", tag=tag))
    return o
def cs_corr(accs, nori, tag):
    o = [I(f"v_mov_b32 v{WC+2}, 0"), I(f"v_mov_b32 v{WC+3}, 0"), W(lg=tag)]
    for k, d in enumerate(accs):
        b = T+4*k
        o += [I(f"v_add_f32 v{b}, v{b}, v{b+1}"), I(f"v_add_f32 v{b+2}, v{b+2}, v{b+3}"), I(f"v_add_f32 v{b}, v{b}, v{b+2}")]
        o += corr_from(b, d, nori)
    return o

def ln1_final(g, S, Q):
    o = Prog()
    o(f"""
    v_mul_f32 v{S}, {fh(1/512)}, v{S}
    v_cndmask_b32 v{S+1}, v{S}, 0, s[74:75]
    v_mul_f32 v{S+2}, v{S}, v{S}
    v_cvt_pk_bf16_f32 v{XC}, v{S+1}, v{S+1}
    v_fma_f32 v{Q}, v{Q}, s76, -v{S+2}
    v_and_b32 v{S+3}, 0xffff0000, v{XC}
    v_max_f32 v{Q}, 0, v{Q}
    v_sub_f32 v{S+3}, v{S+1}, v{S+3}
    v_add_f32 v{Q}, {fh(1e-5)}, v{Q}
    v_cvt_pk_bf16_f32 v{XC+1}, v{S+3}, 0
    v_rsq_f32 v{R1}, v{Q}
    v_mov_b32 v{XC+2}, 0
    v_mov_b32 v{XC+3}, 0
    """)
    rr = RR if g == 0 else A1
    tb = 4096 + 512*g
    o(f"""
    v_lshl_add_u32 v3, v{VB}, 2, s57
    ds_write_b32 v3, v{R1} offset:{tb}
    v_lshrrev_b32 v3, 5, v1
    v_lshl_add_u32 v3, v3, 5, s57
    s_waitcnt lgkmcnt(0)
    """)
    for k in range(4): o(f"ds_read_b128 {vr(rr+4*k,4)}, v3 offset:{tb + (k//2)*64 + (k%2)*16}", tag="rr")
    if g == 0:
        o(f"v_mov_b32 v{C0R}, {fh(C0)}")
    else:
        o(f"""
        v_sqrt_f32 v{RI}, v{Q}
        v_mul_f32 v{C0R}, {fh(C0)}, v{R1}
        v_mul_f32 v{C1R}, v{R1}, v{R1}
        v_mul_f32 v{C1R}, v{C1R}, v{C0R}
        v_mul_f32 v{C1R}, {fh(0.044715)}, v{C1R}
        """)
    return o.l

def gelu_T(a, P0):
    o = []
    for g in range(0, 16, 4):
        rs = range(g, g+4); tt = lambda r: T + (r % 4)
        o += [I(f"v_mul_f32 v{tt(r)}, v{a+r}, v{a+r}") for r in rs]
        o += [I(f"v_fma_f32 v{tt(r)}, v{tt(r)}, v{C1R}, v{C0R}") for r in rs]
        o += [I(f"v_mul_f32 v{tt(r)}, v{tt(r)}, v{a+r}") for r in rs]
        o += [I(f"v_exp_f32 v{tt(r)}, v{tt(r)}") for r in rs]
        o += [I(f"v_fma_f32 v{tt(r)}, v{tt(r)}, v{RI}, v{RI}") for r in rs]
        o += [I(f"v_rcp_f32 v{tt(r)}, v{tt(r)}") for r in rs]
        o += [I(f"v_mul_f32 v{a+r}, v{a+r}, v{tt(r)}") for r in rs]
        o += [I(f"v_cvt_pk_bf16_f32 v{P0+r//2}, v{a+r}, v{a+r+1}") for r in (g, g+2)]
    return o
def gelu_N(a):
    o = []
    for g in range(0, 16, 4):
        rs = range(g, g+4); tt = lambda r: T + (r % 4)
        o += [I(f"v_mul_f32 v{a+r}, v{a+r}, v{RR+r}") for r in rs]
        o += [I(f"v_mul_f32 v{tt(r)}, v{a+r}, v{a+r}") for r in rs]
        o += [I(f"v_fma_f32 v{tt(r)}, v{tt(r)}, s77, v{C0R}") for r in rs]
        o += [I(f"v_mul_f32 v{tt(r)}, v{tt(r)}, v{a+r}") for r in rs]
        o += [I(f"v_exp_f32 v{tt(r)}, v{tt(r)}") for r in rs]
        o += [I(f"v_add_f32 v{tt(r)}, 1.0, v{tt(r)}") for r in rs]
        o += [I(f"v_rcp_f32 v{tt(r)}, v{tt(r)}") for r in rs]
        o += [I(f"v_mul_f32 v{a+r}, v{a+r}, v{tt(r)}") for r in rs]
    return o

def z2_stats():
    o = []
    a0, a1 = A0, A1
    for hf in range(2):
        S1 = lambda r: T + 4 + r
        S2 = lambda r: T + 12 + r
        for r in range(8):
            R = hf*8 + r
            o.append(I(f"v_mul_f32 v{S2(r)}, v{a0+R}, v{a0+R}"))
            o.append(I(f"v_add_f32 v{S1(r)}, v{a0+R}, v{a1+R}"))
        for r in range(8): o.append(I(f"v_fmac_f32 v{S2(r)}, v{a1+hf*8+r}, v{a1+hf*8+r}"))
        for S in (S1, S2):
            for r in range(4): o.append(I(f"v_permlane16_swap_b32 v{S(r)}, v{S(r+4)}"))
        for S in (S1, S2):
            for r in range(4): o.append(I(f"v_add_f32 v{S(r)}, v{S(r)}, v{S(r+4)}"))
        for S in (S1, S2):
            for r in range(2): o.append(I(f"v_add_f32_dpp v{S(r+4)}, v{S(r)}, v{S(r)} row_ror:8 row_mask:0xf bank_mask:0x3"))
        for S in (S1, S2):
            for r in range(2): o.append(I(f"v_add_f32_dpp v{S(r+4)}, v{S(r+2)}, v{S(r+2)} row_ror:8 row_mask:0xf bank_mask:0xc"))
        for S in (S1, S2): o.append(I(f"v_add_f32_dpp v{S(0)}, v{S(4)}, v{S(4)} row_half_mirror row_mask:0xf bank_mask:0x5"))
        for S in (S1, S2): o.append(I(f"v_add_f32_dpp v{S(0)}, v{S(5)}, v{S(5)} row_half_mirror row_mask:0xf bank_mask:0xa"))
        for S in (S1, S2): o.append(I(f"v_add_f32_dpp v{S(0)}, v{S(0)}, v{S(0)} quad_perm:[1,0,3,2] row_mask:0xf bank_mask:0xf"))
        for k, S in enumerate((S1, S2)): o.append(I(f"v_add_f32_dpp v{STQ+2*hf+k}, v{S(0)}, v{S(0)} quad_perm:[2,3,0,1] row_mask:0xf bank_mask:0xf"))
    return o

def prio(p, n):
    if VAR['prio']: p(f"s_setprio {n}")

def gen_k1(stamp=False):
    p = Prog()
    st = Stamper(stamp, 28, 0)
    p(f"""
    s_cmp_ge_u32 s2, 256
    s_cbranch_scc1 L_end
    s_load_dwordx4 s[4:7], s[0:1], {KA_X}
    s_load_dwordx2 s[8:9], s[0:1], {KA_WIN}
    s_load_dwordx4 s[48:51], s[0:1], {KA_DBG}
    v_and_b32 v1, 63, v0
    v_lshrrev_b32 v2, 6, v0
    v_readfirstlane_b32 s28, v2                 ; wave 0..7
    s_and_b32 s29, s2, 7
    s_lshr_b32 s30, s2, 3
    s_and_b32 s31, s29, 1
    s_lshl_b32 s31, s31, 3
    s_and_b32 s32, s30, 7
    s_add_u32 s31, s31, s32                     ; rb
    s_lshr_b32 s32, s29, 1
    s_lshl_b32 s32, s32, 2
    s_lshr_b32 s33, s30, 3
    s_add_u32 s32, s32, s33                     ; cg
    v_lshrrev_b32 v2, 3, v1
    v_lshrrev_b32 v3, 4, v1
    v_xor_b32 v{VXD}, v3, v1
    v_and_b32 v{VXD}, 7, v{VXD}
    v_lshlrev_b32 v{VXD}, 4, v{VXD}
    v_lshl_add_u32 v{VXD}, v2, 10, v{VXD}
    v_and_b32 v3, 1, v3
    v_lshlrev_b32 v3, 2, v3
    v_xor_b32 v3, v3, v1
    v_and_b32 v3, 7, v3
    v_lshlrev_b32 v{VB}, 4, v3
    v_mul_u32_u24 v{VPI}, 3584, v2
    v_add_u32 v{VPI}, v{VPI}, v{VB}
    v_lshrrev_b32 v2, 2, v1
    v_and_b32 v3, 3, v1
    v_lshlrev_b32 v3, 4, v3
    v_mul_u32_u24 v{VQ}, 3072, v2
    v_add_u32 v{VQ}, v{VQ}, v3
    s_and_b32 s29, s28, 3                       ; m tile
    s_lshr_b32 s30, s28, 2                      ; group
    s_lshl_b32 s33, s31, 2
    s_add_u32 s33, s33, s29                     ; tt
    s_lshl_b32 s56, s33, 15
    s_lshl_b32 s34, s30, 7
    s_add_u32 s56, s56, s34
    s_lshl_b32 s57, s29, 14
    s_lshl_b32 s34, s30, 12
    s_add_u32 s59, s57, s34
    s_mul_i32 s58, s28, 3072
    s_lshl_b32 s55, s28, 11
    s_lshl_b32 s54, s30, 14
    s_lshl_b32 s34, s29, 11
    s_add_u32 s54, s54, s34
    v_xor_b32 v{VXD+1}, 64, v{VXD}
    v_add_u32 v{VXD+2}, 16384, v{VXD}
    v_add_u32 v{VXD+1}, 8192, v{VXD+1}
    v_add_u32 v{VXD+3}, 16384, v{VXD+1}
    s_mul_i32 s80, s28, {16*3584}
    s_lshl_b32 s35, s32, 7
    s_add_u32 s80, s80, s35
    s_mul_i32 s81, s28, {16*3072}
    s_lshl_b32 s35, s32, 6
    s_and_b32 s34, s32, 1
    s_mul_i32 s34, s34, {1024-64}
    s_add_u32 s82, s81, s34
    s_add_u32 s81, s81, s35
    s_add_u32 s82, s82, s35
    {"s_add_u32 s35, s31, s32" if VAR['rot'] else "s_mov_b32 s35, 0"}
    """)
    for e in range(4):
        p(f"s_add_u32 s34, s35, {e}\ns_and_b32 s34, s34, 3\ns_lshl_b32 s{SXE+e}, s34, 8\ns_mul_i32 s{SIE+e}, s34, {128*3584}\ns_mul_i32 s{SQE+e}, s34, {128*3072}")
    p(f"""
    s_cmp_lt_u32 s32, 14
    s_cselect_b32 s18, {512*3584}, 0
    s_cselect_b32 s42, {WS_USED}, 0
    s_mov_b32 s19, 0x20000
    s_mov_b32 s43, 0x20000
    s_waitcnt lgkmcnt(0)
    s_mov_b32 s16, s8
    s_mov_b32 s17, s9
    """)
    srd(p, 24, 4, 2048*1024); srd(p, 20, 6, 512*3072)
    p.add(flat(x_dma(0))); p.add(flat(dma_E(0)))
    srd(p, 12, 50, WS_USED); srd(p, 44, 48, 256)
    p("s_mov_b32 s40, s50\ns_mov_b32 s41, s51")
    st(p, 0)
    p(f"v_mov_b32 v2, 0\nv_mov_b32 v3, {RING + 95*1024 + 1020 if False else 0}")
    p(f"v_and_b32 v{VB}, 31, v1")
    bitswap23(p, VB, VB, 3)
    p(f"""
    v_lshrrev_b32 v3, 1, v{VB}
    v_lshrrev_b32 v2, 5, v1
    v_xor_b32 v3, v3, v2
    v_and_b32 v3, 7, v3
    v_lshlrev_b32 v3, 4, v3
    v_lshl_add_u32 v{VXR}, v{VB}, 7, v3
    v_add_u32 v{VXR}, s57, v{VXR}
    v_xor_b32 v{VXR+1}, 32, v{VXR}
    v_xor_b32 v{VXR+2}, 64, v{VXR}
    v_xor_b32 v{VXR+3}, 96, v{VXR}
    """)
    p.add(flat(x_dma(1))); p.add(flat(dma_E(1)))
    p(f"""
    v_lshlrev_b32 v{VL}, 4, v1
    v_and_b32 v3, 3, v1
    v_cmp_eq_u32 vcc, 0, v3
    v_lshrrev_b32 v3, 2, v1
    v_lshrrev_b32 v2, 4, v1
    v_xor_b32 v3, v3, v2
    v_and_b32 v3, 1, v3
    v_cmp_eq_u32 s[34:35], 0, v3
    s_and_b64 vcc, vcc, s[34:35]
    v_mov_b32 v3, 0x3f803f80
    v_cndmask_b32 v{SEL}, 0, v3, vcc
    v_mov_b32 v{SEL+1}, v{SEL}
    v_mov_b32 v{SEL+2}, v{SEL}
    v_mov_b32 v{SEL+3}, v{SEL}
    v_cmp_lt_u32 s[74:75], 31, v1
    s_mov_b32 s76, {fh(1/512)}
    s_cmp_eq_u32 s30, 1
    s_cbranch_scc1 L_g1
    """)
    def start(p):
        p.wait(vm=["X0", "E0"]); p("s_barrier"); st(p, 1)
        for ks in range(4): p.add(x_read(ks))
    def qdma(p):
        p(f"""
        v_lshrrev_b32 v2, 3, v1
        v_mul_u32_u24 v{VQ}, 512, v2
        v_sub_u32 v{VQ}, v{VPI}, v{VQ}
        """)
        for e in range(4): p.add(flat(dma_Q(e)))
    set_va(p, True, RING, 3072)
    p(f"""
    s_mov_b32 s77, {fh(C0*0.044715)}
    s_lshr_b32 s34, s32, 1
    s_lshl_b32 s83, s34, 19
    s_lshl_b32 s35, s33, 13
    s_add_u32 s83, s83, s35
    s_and_b32 s35, s32, 1
    s_lshl_b32 s35, s35, 11
    s_add_u32 s83, s83, s35
    s_add_u32 s83, s83, {Z2F}
    s_add_u32 s84, s83, 4096
    s_lshl_b32 s87, s33, 14
    s_add_u32 s87, s87, {STAT}
    s_lshl_b32 s35, s32, 10
    s_add_u32 s88, s87, s35
    s_lshl_b32 s89, s31, 4
    s_cmp_lt_u32 s32, 14
    s_cselect_b32 s79, s89, 0x1000
    s_lshl_b32 s85, s34, 18
    s_lshl_b32 s35, s33, 10
    s_add_u32 s85, s85, s35
    s_mul_i32 s86, s34, {4*KVH}
    s_mul_i32 s35, s33, {KVT}
    s_add_u32 s86, s86, s35
    s_add_u32 s86, s86, {KV}
    s_bitcmp1_b32 s32, 0
    s_cselect_b32 s85, s86, s85
    s_mov_b32 s86, {KVH}
    s_cselect_b32 s86, s86, 0x10000
    s_mov_b32 s78, {fh(0.25*1.4426950408889634)}
    s_cselect_b32 s78, 1.0, s78                  ; scale
    """)
    prio(p, 1)
    start(p)
    p.add(gemm_pass([A0, A1], E_addr, RING, True, "w", 512, hooks=phase1_hooks(st), cs_tiles=[0, 1]))
    p(f"v_mov_b32 v2, 0\nv_mov_b32 v3, {CNT}\nds_write_b32 v3, v2")
    p.wait(vm=["Z0","Z1","Z2","Z3"], lg0=True)
    p("s_barrier")
    st(p, 5)
    prio(p, 0)
    p(f"v_lshl_add_u32 v3, v1, 2, s57")
    p(f"ds_read_b32 v{T+16}, v3 offset:2048", tag="raw"); p(f"ds_read_b32 v{T+20}, v3 offset:2304", tag="raw")
    p.add(cs_reads([0, 1], "cs0"))
    qdma(p)
    p.wait(lg="raw")
    p.add(ln1_final(0, T+16, T+20))
    p.add(cs_corr([A0, A1], True, "cs0"))
    p.wait(lg="rr")
    p.add(gelu_N(A0)); p.add(gelu_N(A1)); p.add(z2_stats())
    p(f"buffer_store_dwordx4 {vr(STQ,4)}, v{VL}, s[40:43], s88 offen sc1", tag="stat")
    set_va(p, True, RING+65536, 2048)
    st(p, 6)
    p.wait(vm=["Q"], lg0=True)
    p("s_barrier")
    prio(p, 1)
    st(p, 7)
    FSTEP = VAR.get('fstep', 8)
    def qhooks(ks):
        if ks == FSTEP:
            return [], [], [W(vm="stat"), I(f"v_mov_b32 v2, 1"), I(f"v_mov_b32 v3, {CNT}"), I("s_mov_b64 exec, 1"), I("ds_add_rtn_u32 v3, v3, v2", tag="cnt"), I("s_mov_b64 exec, -1")]
        if ks == FSTEP+2:
            return [], [], [W(lg="cnt"), I("v_readfirstlane_b32 s34, v3"), I("s_cmp_eq_u32 s34, 3"), I("s_cselect_b32 s34, s79, 0x1000"),
                            I("s_mov_b64 exec, 1"), I("buffer_atomic_add v2, off, s[44:47], s34"), I("s_mov_b64 exec, -1")]
        return [], [], []
    p.add(gemm_pass([A2, A3_], Q_addr, RING+65536, False, "q", 512, hooks=qhooks, cs_tiles=[5, 6]))
    p("s_waitcnt lgkmcnt(0)\ns_barrier")
    st(p, 8)
    p.add(cs_reads([5, 6], "cs3"))
    p("s_cmp_ge_u32 s32, 14\ns_cbranch_scc1 L_nopoll\ns_mov_b32 s34, 0")
    p.label("L_poll")
    p("buffer_load_dword v2, off, s[44:47], s89 sc1\ns_add_u32 s34, s34, 1\ns_waitcnt vmcnt(0)\nv_cmp_gt_u32 vcc, 14, v2")
    p("s_cbranch_vccz L_poll_ok\ns_cmp_gt_u32 s34, 0x40000\ns_cbranch_scc1 L_poll_ok\ns_sleep 2\ns_branch L_poll")
    p.label("L_poll_ok")
    for k in range(14):
        if k % 4 == 0 and k: p("s_add_u32 s87, s87, 4096")
        p(f"buffer_load_dwordx4 {ar(4*k,4)}, v{VL}, s[12:15], s87 offen offset:{(k%4)*1024} sc1", tag="part")
    p.label("L_nopoll")
    p.add(cs_corr([A2, A3_], False, "cs3"))
    p(f"v_mul_f32 v{R1}, s78, v{R1}")
    for a in (A2, A3_):
        for r in range(16): p(f"v_mul_f32 v{a+r}, v{a+r}, v{R1}")
        for d in range(8): p(f"v_cvt_pk_bf16_f32 v{a+d}, v{a+2*d}, v{a+2*d+1}")
        p(f"buffer_store_dwordx4 {vr(a,4)}, v{VL}, s[12:15], s85 offen\ns_add_u32 s85, s85, s86")
        p(f"buffer_store_dwordx4 {vr(a+4,4)}, v{VL}, s[12:15], s85 offen\ns_add_u32 s85, s85, s86")
    p("s_cmp_ge_u32 s32, 14\ns_cbranch_scc1 L_end")
    p(f"""
    s_mov_b32 s34, {fh(1/896)}
    v_bfe_u32 v2, v1, 2, 1
    v_bfe_u32 v3, v1, 3, 1
    v_lshl_add_u32 v2, v3, 1, v2
    v_bfe_u32 v3, v1, 4, 2
    v_lshl_add_u32 v2, v3, 2, v2
    v_lshl_add_u32 v2, v2, 2, s57
    v_lshrrev_b32 v3, 5, v1
    v_lshl_add_u32 v3, v3, 5, s57
    """)
    p.wait(vm="part")
    b = T+8
    for e in range(4): p(f"v_accvgpr_read_b32 v{b+e}, a{e}")
    for k in range(1, 14):
        for e in range(4): p(f"v_accvgpr_read_b32 v{b+4+e}, a{4*k+e}")
        for e in range(4): p(f"v_add_f32 v{b+e}, v{b+e}, v{b+4+e}")
    p(f"""
    v_mul_f32 v{b}, s34, v{b}
    v_mul_f32 v{b+2}, s34, v{b+2}
    v_mul_f32 v{b+4}, v{b}, v{b}
    v_mul_f32 v{b+5}, v{b+2}, v{b+2}
    v_fma_f32 v{b+1}, v{b+1}, s34, -v{b+4}
    v_fma_f32 v{b+3}, v{b+3}, s34, -v{b+5}
    v_max_f32 v{b+1}, 0, v{b+1}
    v_max_f32 v{b+3}, 0, v{b+3}
    v_add_f32 v{b+1}, {fh(1e-5)}, v{b+1}
    v_add_f32 v{b+3}, {fh(1e-5)}, v{b+3}
    v_rsq_f32 v{b+1}, v{b+1}
    v_rsq_f32 v{b+3}, v{b+3}
    v_mul_f32_e64 v{b}, -v{b}, v{b+1}
    v_mul_f32_e64 v{b+2}, -v{b+2}, v{b+3}
    ds_write_b32 v2, v{b+1} offset:4096
    ds_write_b32 v2, v{b+3} offset:4160
    ds_write_b32 v2, v{b} offset:4224
    ds_write_b32 v2, v{b+2} offset:4288
    s_waitcnt lgkmcnt(0)
    """)
    R2 = A2+8; NM = T+8
    R2 = CSF
    for k in range(4): p(f"ds_read_b128 {vr(R2+4*k,4)}, v3 offset:{4096 + (k//2)*64 + (k%2)*16}", tag="r2")
    for k in range(4): p(f"ds_read_b128 {vr(NM+4*k,4)}, v3 offset:{4096 + 128 + (k//2)*64 + (k%2)*16}", tag="r2")
    p.wait(lg="r2")
    for t in range(2):
        a = A0 + 16*t
        for r in range(16): p(f"v_fma_f32 v{a+r}, v{a+r}, v{R2+r}, v{NM+r}")
        for d in range(8): p(f"v_cvt_pk_bf16_f32 v{a+d}, v{a+2*d}, v{a+2*d+1}")
        p(f"buffer_store_dwordx4 {vr(a,4)}, v{VL}, s[12:15], s83 offen offset:{t*1024}")
        p(f"buffer_store_dwordx4 {vr(a+4,4)}, v{VL}, s[12:15], s84 offen offset:{t*1024}")
    st(p, 9)
    p("s_endpgm")
    p.label("L_g1")
    set_va(p, False, RING+2048, 3072)
    p(f"""
    s_load_dwordx2 s[36:37], s[0:1], {KA_WO}
    s_load_dwordx2 s[38:39], s[0:1], {KA_WOUT}
    v_and_b32 v3, 1, v1
    v_cmp_eq_u32 s[70:71], 1, v3
    v_and_b32 v3, 2, v1
    v_cmp_eq_u32 s[72:73], 2, v3
    s_mul_i32 s83, s33, {56*1024}
    s_lshl_b32 s34, s32, 12
    s_add_u32 s83, s83, s34
    s_add_u32 s83, s83, {Z1F}
    s_mul_i32 s85, s32, {2*KVH}
    s_mul_i32 s34, s33, {KVT}
    s_add_u32 s85, s85, s34
    s_add_u32 s85, s85, {KV}
    s_waitcnt lgkmcnt(0)
    """)
    prio(p, 1)
    start(p)
    p.add(gemm_pass([A0], lambda ks: E_addr(ks)+2048, RING+2048, True, "w", 256, hooks=phase1_hooks(st), cs_tiles=[2], stats=True))
    p(f"""
    v_add_f32 v{Q0}, v{Q0}, v{Q1}
    v_add_f32 v{Q0+1}, v{Q0+1}, v{Q1+1}
    v_add_f32 v{Q0+2}, v{Q0+2}, v{Q1+2}
    v_add_f32 v{Q0+3}, v{Q0+3}, v{Q1+3}
    v_cndmask_b32 v{Q0}, v{Q0}, v{Q0+1}, s[70:71]
    v_cndmask_b32 v{Q0+2}, v{Q0+2}, v{Q0+3}, s[70:71]
    ds_write_b32 v3, v{SX} offset:2048
    v_cndmask_b32 v{Q0}, v{Q0}, v{Q0+2}, s[72:73]
    v_mov_b32 v{Q1}, v{Q0}
    v_permlane32_swap_b32 v{Q0}, v{Q1}
    v_add_f32 v{Q0}, v{Q0}, v{Q1}
    ds_write_b32 v3, v{Q0} offset:2304
    """)
    p.wait(vm=["Z0","Z1","Z2","Z3"], lg0=True)
    p("s_barrier")
    st(p, 5)
    p.add(cs_reads([2], "cs1"))
    p.add(ln1_final(1, SX, Q0))
    p.add(cs_corr([A0], True, "cs1"))
    set_va(p, True, RING, 2048)
    qd = Prog(); qdma(qd)
    zp = gemm_pass([A2, A3_], Z_addr, RING, False, "z", 512, cs_tiles=[3, 4])
    e = Prog()
    e(f"""
    s_mov_b32 s78, {KVH}
    v_bfe_u32 v3, v1, 4, 1
    v_mul_lo_u32 v{VB}, v3, s78
    v_and_b32 v3, 15, v1
    v_lshl_add_u32 v{VB}, v3, 4, v{VB}
    v_lshrrev_b32 v3, 5, v1
    v_lshl_add_u32 v{VB}, v3, 8, v{VB}
    """)
    e.wait(lg="rr")
    for r in range(16): e(f"v_mul_f32 v{A0+r}, v{A0+r}, v{A1+r}")
    for d in range(8): e(f"v_cvt_pk_bf16_f32 v{A0+d}, v{A0+2*d}, v{A0+2*d+1}")
    e(f"buffer_store_dwordx4 {vr(A0,4)}, v{VB}, s[12:15], s85 offen offset:1024")
    e(f"buffer_store_dwordx4 {vr(A0+4,4)}, v{VB}, s[12:15], s85 offen offset:1536")
    for r in range(4): e(f"v_mov_b32 v{A1+r}, 0x3f803f80\nv_mov_b32 v{A1+4+r}, 0")
    p.add(interleave(zp, qd.l + e.l, per_gap=2, start=1))
    p(f"s_mov_b64 exec, 0x10001\nbuffer_store_dwordx4 {vr(A1,4)}, v{VB}, s[12:15], s85 offen offset:2048\nbuffer_store_dwordx4 {vr(A1+4,4)}, v{VB}, s[12:15], s85 offen offset:2064\ns_mov_b64 exec, -1")
    st(p, 6)
    p.wait(vm=["Q"], lg0=True)
    p("s_barrier")
    prio(p, 0)
    st(p, 7)
    p("s_cmp_ge_u32 s32, 14\ns_cbranch_scc1 L_w3")
    p.add(cs_reads([3, 4], "cs2"))
    p.add(cs_corr([A2, A3_], False, "cs2"))
    st(p, 8)
    for k, a in enumerate((A2, A3_)):
        p.add(gelu_T(a, T+4+8*k))
        p(f"buffer_store_dwordx4 {vr(T+4+8*k,4)}, v{VL}, s[40:43], s83 offen offset:{k*2048}")
        p(f"buffer_store_dwordx4 {vr(T+8+8*k,4)}, v{VL}, s[40:43], s83 offen offset:{k*2048+1024}")
    st(p, 9)
    p("s_endpgm")
    p.label("L_w3")
    set_va(p, False, RING, 0)
    p(f"""
    s_lshl_b32 s34, s31, 1
    s_add_u32 s34, s34, s32
    s_sub_u32 s34, s34, 14                      ; L
    s_mov_b32 s54, {896*1024}
    s_cmp_lt_u32 s34, 16
    s_cselect_b32 s52, s36, s38
    s_cselect_b32 s53, s37, s39
    s_cselect_b32 s54, {512*1024}, s54
    s_cselect_b32 s35, 8, 14
    s_cselect_b32 s67, 0, {32*1024}
    s_mov_b32 s55, 0x20000
    s_and_b32 s34, s34, 15
    s_mul_i32 s68, s29, s35
    s_lshl_b32 s69, s68, 14
    s_lshl_b32 s60, s34, 6
    s_add_u32 s69, s69, s60
    s_mul_i32 s60, s34, {88*1024}
    s_lshl_b32 s68, s68, 10
    s_add_u32 s60, s60, s68
    s_add_u32 s60, s60, s67
    s_add_u32 s60, s60, {W3F}
    v_lshrrev_b32 v2, 2, v1
    v_and_b32 v3, 3, v1
    v_lshlrev_b32 v3, 4, v3
    v_lshl_add_u32 v2, v2, 10, v3
    v_add_u32 v3, s57, v{VA}
    s_add_u32 s61, s57, {RING}
    s_mov_b32 s62, 0
    """)
    p.label("L_w3a")
    p("s_mov_b32 m0, s61\ns_add_u32 s61, s61, 1024\nbuffer_load_dwordx4 v2, s[52:55], s69 offen lds\ns_add_u32 s69, s69, 16384\ns_add_u32 s62, s62, 1\ns_cmp_lt_u32 s62, s35\ns_cbranch_scc1 L_w3a")
    p("s_waitcnt vmcnt(0)\ns_mov_b32 s62, 0")
    p.label("L_w3b")
    p(f"ds_read_b64_tr_b16 {vr(T,2)}, v3\nds_read_b64_tr_b16 {vr(T+2,2)}, v3 offset:256\nv_add_u32 v3, 1024, v3\ns_waitcnt lgkmcnt(0)")
    p(f"buffer_store_dwordx4 {vr(T,4)}, v{VL}, s[12:15], s60 offen\ns_add_u32 s60, s60, 1024\ns_add_u32 s62, s62, 1\ns_cmp_lt_u32 s62, s35\ns_cbranch_scc1 L_w3b")
    p.label("L_end")
    p("s_endpgm")
    return p

def split_groups(l):
    lab = {x.op: i for i, x in enumerate(l) if getattr(x, 'kind', '') == "label"}
    b = next(i for i, x in enumerate(l) if getattr(x, 'kind', '') == "branch" and x.target == "L_g1")
    return b, lab["L_g1"]
def k1_paths(l):
    b, g1 = split_groups(l)
    return [l[:g1], l[:b] + l[g1:]]
def finalize_k1(p, verbose=False):
    l = p.l
    b, g1 = split_groups(l)
    head = l[:b+1]
    r0 = resolve_waits(l[:g1])
    r1 = resolve_waits(head + l[g1:])
    nh = len(resolve_waits(head))
    p2 = Prog(); p2.l = r0 + r1[nh:]
    return finalize("k1", p2, paths=k1_paths, verbose=verbose)
K1_DESC = dict(name="k1_kernel", vgpr=256, sgpr=100, accum=128, grid=256, block=512, lds=K1_LDS)
if __name__ == "__main__":
    import sys
    from build import build
    vars_ = eval(sys.argv[2]) if len(sys.argv) > 2 else {"k1": {}}
    base = dict(VAR)
    for nm, kw in vars_.items():
        VAR.clear(); VAR.update(base); VAR.update(kw)
        p = gen_k1(stamp=len(sys.argv)>1)
        l, errs = finalize_k1(p, verbose=len(sys.argv) < 2)
        build([dict(K1_DESC, l=l)], f"out_{nm}.s")
```

```python
from asmlib import *
QF   = 0x000000
KV   = 0x200000
KVT  = 2080
KVG  = 2048
KVH  = 64*KVG
Z1F  = 0x680000
Z2F  = 0xA00000
A3   = 0xE00000
W3F  = 0x1400000
ZZ   = 0x1600000
STAT = 0x1A00000
FLG  = 0x1B00000
OFL  = FLG + 0x1000
UFL  = FLG + 0x2000
WFL  = FLG + 0x3000
EPO  = FLG + 0x3800
PFL  = FLG + 0x8000
UFX  = FLG + 0x20000
OFX  = FLG + 0x40000
WS_USED = 0x2000000
assert KV + 32*KVH + 4096 <= Z1F
KA_X, KA_WQKV, KA_WO, KA_BX, KA_WIN, KA_WSP, KA_BSP, KA_WOUT, KA_OUT, KA_DBG, KA_WS = [8*i for i in range(11)]

def srd(p, d, lo, size):
    p(f"s_mov_b32 s{d}, s{lo}\ns_mov_b32 s{d+1}, s{lo+1}\ns_mov_b32 s{d+2}, {size:#x}\ns_mov_b32 s{d+3}, 0x20000")

def vr(b, n): return f"v[{b}:{b+n-1}]"
def ar(b, n): return f"a[{b}:{b+n-1}]"
def mfma32(d, a, b, c):
    return I(f"v_mfma_f32_32x32x16_bf16 {d}, {a}, {b}, {c}")

def bitswap23(p, dst, src, tmp):
    p(f"v_lshrrev_b32 v{tmp}, 1, v{src}\nv_xor_b32 v{tmp}, v{tmp}, v{src}\nv_and_b32 v{tmp}, 4, v{tmp}\nv_mul_u32_u24 v{tmp}, 3, v{tmp}\nv_xor_b32 v{dst}, v{src}, v{tmp}")

STAMP = 0x1C00000
class Stamper:
    def __init__(self, on, wave_s, vt, srd_=12, kid=0):
        self.kid = kid
        self.on = on; self.w = wave_s; self.vt = vt; self.srd = srd_
    def __call__(self, p, k):
        if not self.on: return
        vt = self.vt
        if vt == 0:
            p(f"""
            s_memtime s[90:91]
            s_memrealtime s[92:93]
            s_lshl_b32 s94, s2, 4
            s_add_u32 s94, s94, s{self.w}
            s_lshl_b32 s94, s94, 7
            s_add_u32 s94, s94, {STAMP + self.kid*0x80000 + k*8}
            s_waitcnt lgkmcnt(0)
            v_mov_b32 v2, s90
            v_mov_b32 v3, s92
            buffer_store_dwordx2 v[2:3], off, s[{self.srd}:{self.srd+3}], s94
            """)
            return
        p(f"""
        s_memtime s[90:91]
        s_memrealtime s[92:93]
        s_lshl_b32 s94, s2, 4
        s_add_u32 s94, s94, s{self.w}
        s_lshl_b32 s94, s94, 7
        s_add_u32 s94, s94, {STAMP + self.kid*0x80000 + k*8}
        s_waitcnt lgkmcnt(0)
        v_mov_b32 v{vt}, s90
        v_mov_b32 v{vt+1}, s92
        v_mov_b32 v{vt+2}, 0
        buffer_store_dwordx2 v[{vt}:{vt+1}], v{vt+2}, s[{self.srd}:{self.srd+3}], s94 offen
        """)

def entry_stamp(p, on):
    if on: p("s_memrealtime s[100:101]")
def entry_store(p, st):
    if not st.on: return
    v = 2 if st.vt == 0 else st.vt
    p(f"s_add_u32 s94, s94, {15*8}\nv_mov_b32 v{v}, s100\nv_mov_b32 v{v+1}, s100\nbuffer_store_dwordx2 v[{v}:{v+1}], off, s[{st.srd}:{st.srd+3}], s94")

def code_prefetch(p, wave_s, vtmp, vdst, sp, uniq, start=None, shift=13):
    start = start or uniq
    p(f"s_getpc_b64 s[{sp}:{sp+1}]")
    p.label(uniq)
    if start != uniq:
        p(f"s_add_u32 s{sp}, s{sp}, {start}-{uniq}")
        p(f"s_addc_u32 s{sp+1}, s{sp+1}, 0")
    p(f"s_lshl_b32 s{sp+2}, s{wave_s}, {shift}")
    p(f"v_lshl_add_u32 v{vtmp}, v1, 7, s{sp+2}")
    p(f"v_min_u32 v{vtmp}, CODE_END-{start}-4, v{vtmp}")
    p(f"global_load_dword {vdst}, v{vtmp}, s[{sp}:{sp+1}]")
```

```python
from common import *
import struct, math
def fh(f): return hex(struct.unpack("<I", struct.pack("<f", f))[0])
K1_LDS = 163840
RING = 65536
BIAS = 3072
CNT = 3072
C0 = -2.0*math.sqrt(2.0/math.pi)*1.4426950408889634
A0, A1, A2, A3_ = 4, 20, 36, 52
LA = 2
WB = 68
CSF = 92
CSA = 100
T = 68
WC = 92; STQ = 96
SEL = 108; XC = 112
R1, RI, C0R, C1R = 116, 117, 118, 119
VXD = 116
VXR = 112
VL, VPI, VQ, VB = 120, 121, 122, 123
VA = 124
RR = 52
SX, Q0, Q1 = 52, 56, 60
VAR = dict(prio=True, per=1, rot=True, cpf=40960)
WI, WQ, XS = "s[16:19]", "s[20:23]", "s[24:27]"
SXE, SIE, SQE = 60, 64, 96

def dma1(lds_s, lds_c, sr, vo, sb, se, c, tag):
    return [I(f"s_add_u32 m0, s{lds_s}, {lds_c}"), I(f"s_add_u32 s69, s{sb}, s{se}"),
            I(f"buffer_load_dwordx4 v{vo}, {sr}, s69 offen offset:{c} lds" if False else f"s_add_u32 s69, s69, {c}"),
            I(f"buffer_load_dwordx4 v{vo}, {sr}, s69 offen lds", tag=tag)]
def E_addr(ks): return RING + ((ks//8)*24 + (ks%8)*3)*1024
def Z_addr(ks): return RING + ks*2048
def Q_addr(ks):
    if ks < 16: return RING + 65536 + ks*2048
    r = ks-16; return (r//4)*16384 + 8192 + (r%4)*2048
def dma_E(e):
    b = RING + e*24*1024
    return [dma1(58, b, WI, VPI, 80, SIE+e, 1792, f"E{e}"), dma1(58, b+1024, WI, VPI, 80, SIE+e, 1792+8*3584, f"E{e}"),
            dma1(58, b+2048, WQ, VQ, 81, SQE+e, 2048, f"E{e}")]
def dma_Z(e):
    b = RING + e*16384
    return [dma1(55, b, WI, VPI, 80, SIE+e, 0, f"Z{e}"), dma1(55, b+1024, WI, VPI, 80, SIE+e, 8*3584, f"Z{e}")]
def dma_Q(e):
    ls, b = (55, RING + 65536 + e*16384) if e < 2 else (54, (e-2)*32768 + 8192)
    return [dma1(ls, b, WQ, VQ, 82, SQE+e, 0, "Q"), dma1(ls, b+1024, WQ, VQ, 82, SQE+e, 8*3072, "Q")]
def x_dma(e):
    return [[I(f"s_add_u32 m0, s59, {(2*e % 4)*4096 + i*1024}"), I(f"s_add_u32 s69, s56, s{SXE+e}"),
             I(f"buffer_load_dwordx4 v{VXD+i}, {XS}, s69 offen lds", tag=f"X{e}")] for i in range(4)]
def flat(x): return sum(x, [])
def x_read(ks):
    return [I(f"ds_read_b128 {ar(4*ks,4)}, v{VXR+ks%4} offset:{((ks//4)%4)*4096}", tag=f"xr{ks}")]
class Addr:
    def __init__(self, base): self.base = base
    def off(self, addr, out, span=2048+1024+6*1024*2):
        if not (0 <= addr - self.base and addr - self.base + 1024 <= 65535):
            nb = addr if addr < self.base else addr
            d = (nb - self.base) & 0xffffffff
            out += [I(f"v_add_u32 v{VA+k}, {d:#x}, v{VA+k}") for k in range(4)]
            self.base = nb
        return addr - self.base
def tr_read(dst, areg, off, e2, tag):
    return [I(f"ds_read_b64_tr_b16 {vr(dst+2*e,2)}, v{areg} offset:{off+e2*e}", tag=tag) for e in range(2)]
def m16(d, b, first): return I(f"v_mfma_f32_16x16x32_bf16 {vr(d,4)}, {vr(SEL,4)}, {b}, {'0' if first else vr(d,4)}")
def stats_mfma(ks):
    x = 4*ks; z = ks == 0
    return [m16(SX, ar(x,4), z),
            I(f"v_mfma_f32_4x4x4_16b_bf16 {vr(Q0,4)}, {ar(x,2)}, {ar(x,2)}, {'0' if z else vr(Q0,4)}"),
            I(f"v_mfma_f32_4x4x4_16b_bf16 {vr(Q1,4)}, {ar(x+2,2)}, {ar(x+2,2)}, {'0' if z else vr(Q1,4)}")]
def wb(ks, ti): return WB + ((ks % (LA+1))*2 + ti)*4
def stl(st, k):
    q = Prog(); st(q, k); return q.l

def gemm_pass(accs, addr_of, base0, nori, tagp, e2, hooks=None, cs_tiles=None, stats=False):
    nt = len(accs)
    am = Addr(base0)
    def rd(ks, dst, regs, tag):
        o = []
        off = am.off(addr_of(ks), o)
        for ti in range(nt): o += tr_read(dst(ti), regs+ti, off, e2, tag)
        return o
    o = []
    for ks in range(LA): o += rd(ks, lambda ti: wb(ks,ti), VA, f"{tagp}{ks}")
    for ks in range(32):
        pre = W(lg=[f"{tagp}{ks}", f"xr{ks}"])
        mf = []
        for ti in range(nt):
            w = vr(wb(ks,ti),4); x = ar(4*ks,4); d = vr(accs[ti],16)
            mf.append(mfma32(d, x, w, "0" if ks == 0 else d) if nori else mfma32(d, w, x, "0" if ks == 0 else d))
        h0, h1, h2 = hooks(ks) if hooks else ([], [], [])
        post = list(h0)
        tail = []
        if ks % 4 == 0:
            post += rd(ks, lambda ti: CSF+4*ti, VA+2, f"c{tagp}{ks}")
        if ks+LA < 32: post += rd(ks+LA, lambda ti: wb(ks+LA,ti), VA, f"{tagp}{ks+LA}")
        post += h1
        if ks % 4 == 1:
            pre.lg.append(f"c{tagp}{ks-1}")
            for ti in range(nt): tail.append(m16(CSA+4*ti, vr(CSF+4*ti,4), ks == 1))
        if ks == 30:
            tail.append(I(f"v_lshl_add_u32 v3, v1, 2, s57"))
            for ti in range(nt): tail.append(I(f"ds_write_b32 v3, v{CSA+4*ti} offset:{cs_tiles[ti]*256}"))
        if stats: tail += stats_mfma(ks)
        tail += h2
        o += [pre] + mf[:1] + post + mf[1:] + tail
    return o

def phase1_hooks(st):
    sched = {}
    def spread(pcs, first, per):
        pcs = list(pcs); k = first
        while pcs:
            for _ in range(per):
                if pcs: sched.setdefault(k, []).append(pcs.pop(0))
            k += 1
    spread(dma_E(2) + dma_E(3), 0, 1)
    spread(x_dma(2) + dma_Z(0), 8-LA, VAR['per'])
    spread(x_dma(3) + dma_Z(1) + dma_Z(2), 16-LA, VAR['per'])
    spread(dma_Z(3), 24-LA, VAR['per'])
    def hooks(ks):
        e, r8 = divmod(ks, 8)
        h0 = []; h1 = []
        if r8 == 8-LA and e < 3:
            h0 = [W(vm=[f"X{e+1}", f"E{e+1}"], lg0=True), I("s_barrier")] + stl(st, 2+e)
        if r8 >= 8-LA and e < 3:
            k0 = 8*(e+1) + 2*(r8-(8-LA)); h1 += x_read(k0) + x_read(k0+1)
        if r8 < 4: h1 += x_read(8*e+4+r8)
        return h0, h1, flat(sched.get(ks, []))
    return hooks

def set_va(p, pair, base, mstride):
    sh = 7 if pair else 6
    p(f"""
    v_lshrrev_b32 v2, 5, v1
    v_lshlrev_b32 v{VA}, {sh+3}, v2
    v_bfe_u32 v3, v1, 2, 2
    v_lshl_add_u32 v{VA}, v3, {sh}, v{VA}
    v_bfe_u32 v3, v1, 4, 1
    v_lshl_add_u32 v{VA}, v3, 5, v{VA}
    v_and_b32 v3, 1, v1
    v_lshl_add_u32 v{VA}, v3, 4, v{VA}
    v_bfe_u32 v3, v1, 1, 1
    v_lshl_add_u32 v{VA}, v3, 3, v{VA}
    """)
    if pair: p(f"v_bfe_u32 v3, v1, 3, 1\nv_lshl_add_u32 v{VA}, v3, 6, v{VA}")
    p(f"""
    v_add_u32 v{VA}, {base}, v{VA}
    s_mul_i32 s34, s29, {mstride}
    v_xor_b32 v{VA+1}, 64, v{VA}
    v_add_u32 v{VA+2}, s34, v{VA}
    v_add_u32 v{VA+3}, s34, v{VA+1}
    """)

def corr_from(b, d, nori):
    o = [I(f"v_sub_f32 v{b}, 0, v{b}"),
         I(f"v_cvt_pk_bf16_f32 v{WC+1}, v{b}, 0"),
         I(f"v_lshlrev_b32 v{b+1}, 16, v{WC+1}"),
         I(f"v_sub_f32 v{b+1}, v{b}, v{b+1}"),
         I(f"v_cvt_pk_bf16_f32 v{WC}, v{b}, v{b+1}")]
    a_, b_ = (vr(XC,4), vr(WC,4)) if nori else (vr(WC,4), vr(XC,4))
    o.append(mfma32(vr(d,16), a_, b_, vr(d,16)))
    return o
def cs_reads(tiles, tag):
    o = [I(f"v_lshlrev_b32 v2, 2, v1")]
    for k, tl in enumerate(tiles):
        for w in range(4): o.append(I(f"ds_read_b32 v{T+4*k+w}, v2 offset:{w*16384 + tl*256}", tag=tag))
    return o
def cs_corr(accs, nori, tag):
    o = [I(f"v_mov_b32 v{WC+2}, 0"), I(f"v_mov_b32 v{WC+3}, 0"), W(lg=tag)]
    for k, d in enumerate(accs):
        b = T+4*k
        o += [I(f"v_add_f32 v{b}, v{b}, v{b+1}"), I(f"v_add_f32 v{b+2}, v{b+2}, v{b+3}"), I(f"v_add_f32 v{b}, v{b}, v{b+2}")]
        o += corr_from(b, d, nori)
    return o

def ln1_final(g, S, Q):
    o = Prog()
    o(f"""
    v_mul_f32 v{S}, {fh(1/512)}, v{S}
    v_cndmask_b32 v{S+1}, v{S}, 0, s[74:75]
    v_mul_f32 v{S+2}, v{S}, v{S}
    v_cvt_pk_bf16_f32 v{XC}, v{S+1}, v{S+1}
    v_fma_f32 v{Q}, v{Q}, s76, -v{S+2}
    v_and_b32 v{S+3}, 0xffff0000, v{XC}
    v_max_f32 v{Q}, 0, v{Q}
    v_sub_f32 v{S+3}, v{S+1}, v{S+3}
    v_add_f32 v{Q}, {fh(1e-5)}, v{Q}
    v_cvt_pk_bf16_f32 v{XC+1}, v{S+3}, 0
    v_rsq_f32 v{R1}, v{Q}
    v_mov_b32 v{XC+2}, 0
    v_mov_b32 v{XC+3}, 0
    """)
    rr = RR if g == 0 else A1
    tb = 4096 + 512*g
    o(f"""
    v_lshl_add_u32 v3, v{VB}, 2, s57
    ds_write_b32 v3, v{R1} offset:{tb}
    v_lshrrev_b32 v3, 5, v1
    v_lshl_add_u32 v3, v3, 5, s57
    s_waitcnt lgkmcnt(0)
    """)
    for k in range(4): o(f"ds_read_b128 {vr(rr+4*k,4)}, v3 offset:{tb + (k//2)*64 + (k%2)*16}", tag="rr")
    if g == 0:
        o(f"v_mov_b32 v{C0R}, {fh(C0)}")
    else:
        o(f"""
        v_sqrt_f32 v{RI}, v{Q}
        v_mul_f32 v{C0R}, {fh(C0)}, v{R1}
        v_mul_f32 v{C1R}, v{R1}, v{R1}
        v_mul_f32 v{C1R}, v{C1R}, v{C0R}
        v_mul_f32 v{C1R}, {fh(0.044715)}, v{C1R}
        """)
    return o.l

def gelu_T(a, P0):
    o = []
    for g in range(0, 16, 4):
        rs = range(g, g+4); tt = lambda r: T + (r % 4)
        o += [I(f"v_mul_f32 v{tt(r)}, v{a+r}, v{a+r}") for r in rs]
        o += [I(f"v_fma_f32 v{tt(r)}, v{tt(r)}, v{C1R}, v{C0R}") for r in rs]
        o += [I(f"v_mul_f32 v{tt(r)}, v{tt(r)}, v{a+r}") for r in rs]
        o += [I(f"v_exp_f32 v{tt(r)}, v{tt(r)}") for r in rs]
        o += [I(f"v_fma_f32 v{tt(r)}, v{tt(r)}, v{RI}, v{RI}") for r in rs]
        o += [I(f"v_rcp_f32 v{tt(r)}, v{tt(r)}") for r in rs]
        o += [I(f"v_mul_f32 v{a+r}, v{a+r}, v{tt(r)}") for r in rs]
        o += [I(f"v_cvt_pk_bf16_f32 v{P0+r//2}, v{a+r}, v{a+r+1}") for r in (g, g+2)]
    return o
def gelu_N(a):
    o = []
    for g in range(0, 16, 4):
        rs = range(g, g+4); tt = lambda r: T + (r % 4)
        o += [I(f"v_mul_f32 v{a+r}, v{a+r}, v{RR+r}") for r in rs]
        o += [I(f"v_mul_f32 v{tt(r)}, v{a+r}, v{a+r}") for r in rs]
        o += [I(f"v_fma_f32 v{tt(r)}, v{tt(r)}, s77, v{C0R}") for r in rs]
        o += [I(f"v_mul_f32 v{tt(r)}, v{tt(r)}, v{a+r}") for r in rs]
        o += [I(f"v_exp_f32 v{tt(r)}, v{tt(r)}") for r in rs]
        o += [I(f"v_add_f32 v{tt(r)}, 1.0, v{tt(r)}") for r in rs]
        o += [I(f"v_rcp_f32 v{tt(r)}, v{tt(r)}") for r in rs]
        o += [I(f"v_mul_f32 v{a+r}, v{a+r}, v{tt(r)}") for r in rs]
    return o

def z2_stats():
    o = []
    a0, a1 = A0, A1
    for hf in range(2):
        S1 = lambda r: T + 4 + r
        S2 = lambda r: T + 12 + r
        for r in range(8):
            R = hf*8 + r
            o.append(I(f"v_mul_f32 v{S2(r)}, v{a0+R}, v{a0+R}"))
            o.append(I(f"v_add_f32 v{S1(r)}, v{a0+R}, v{a1+R}"))
        for r in range(8): o.append(I(f"v_fmac_f32 v{S2(r)}, v{a1+hf*8+r}, v{a1+hf*8+r}"))
        for S in (S1, S2):
            for r in range(4): o.append(I(f"v_permlane16_swap_b32 v{S(r)}, v{S(r+4)}"))
        for S in (S1, S2):
            for r in range(4): o.append(I(f"v_add_f32 v{S(r)}, v{S(r)}, v{S(r+4)}"))
        for S in (S1, S2):
            for r in range(2): o.append(I(f"v_add_f32_dpp v{S(r+4)}, v{S(r)}, v{S(r)} row_ror:8 row_mask:0xf bank_mask:0x3"))
        for S in (S1, S2):
            for r in range(2): o.append(I(f"v_add_f32_dpp v{S(r+4)}, v{S(r+2)}, v{S(r+2)} row_ror:8 row_mask:0xf bank_mask:0xc"))
        for S in (S1, S2): o.append(I(f"v_add_f32_dpp v{S(0)}, v{S(4)}, v{S(4)} row_half_mirror row_mask:0xf bank_mask:0x5"))
        for S in (S1, S2): o.append(I(f"v_add_f32_dpp v{S(0)}, v{S(5)}, v{S(5)} row_half_mirror row_mask:0xf bank_mask:0xa"))
        for S in (S1, S2): o.append(I(f"v_add_f32_dpp v{S(0)}, v{S(0)}, v{S(0)} quad_perm:[1,0,3,2] row_mask:0xf bank_mask:0xf"))
        for k, S in enumerate((S1, S2)): o.append(I(f"v_add_f32_dpp v{STQ+2*hf+k}, v{S(0)}, v{S(0)} quad_perm:[2,3,0,1] row_mask:0xf bank_mask:0xf"))
    return o

def prio(p, n):
    if VAR['prio']: p(f"s_setprio {n}")

def gen_k1(stamp=False):
    p = Prog()
    st = Stamper(stamp, 28, 0)
    entry_stamp(p, stamp)
    p(f"""
    s_cmp_ge_u32 s2, 256
    s_cbranch_scc1 L_end
    s_load_dwordx4 s[4:7], s[0:1], {KA_X}
    s_load_dwordx2 s[8:9], s[0:1], {KA_WIN}
    s_load_dwordx4 s[48:51], s[0:1], {KA_DBG}
    v_and_b32 v1, 63, v0
    v_lshrrev_b32 v2, 6, v0
    v_readfirstlane_b32 s28, v2                 ; wave 0..7
    s_and_b32 s29, s2, 7
    s_lshr_b32 s30, s2, 3
    s_and_b32 s31, s29, 1
    s_lshl_b32 s31, s31, 3
    s_and_b32 s32, s30, 7
    s_add_u32 s31, s31, s32                     ; rb
    s_lshr_b32 s32, s29, 1
    s_lshl_b32 s32, s32, 2
    s_lshr_b32 s33, s30, 3
    s_add_u32 s32, s32, s33                     ; cg
    v_lshrrev_b32 v2, 3, v1
    v_lshrrev_b32 v3, 4, v1
    v_xor_b32 v{VXD}, v3, v1
    v_and_b32 v{VXD}, 7, v{VXD}
    v_lshlrev_b32 v{VXD}, 4, v{VXD}
    v_lshl_add_u32 v{VXD}, v2, 10, v{VXD}
    v_and_b32 v3, 1, v3
    v_lshlrev_b32 v3, 2, v3
    v_xor_b32 v3, v3, v1
    v_and_b32 v3, 7, v3
    v_lshlrev_b32 v{VB}, 4, v3
    v_mul_u32_u24 v{VPI}, 3584, v2
    v_add_u32 v{VPI}, v{VPI}, v{VB}
    v_lshrrev_b32 v2, 2, v1
    v_and_b32 v3, 3, v1
    v_lshlrev_b32 v3, 4, v3
    v_mul_u32_u24 v{VQ}, 3072, v2
    v_add_u32 v{VQ}, v{VQ}, v3
    s_and_b32 s29, s28, 3                       ; m tile
    s_lshr_b32 s30, s28, 2                      ; group
    s_lshl_b32 s33, s31, 2
    s_add_u32 s33, s33, s29                     ; tt
    s_lshl_b32 s56, s33, 15
    s_lshl_b32 s34, s30, 7
    s_add_u32 s56, s56, s34
    s_lshl_b32 s57, s29, 14
    s_lshl_b32 s34, s30, 12
    s_add_u32 s59, s57, s34
    s_mul_i32 s58, s28, 3072
    s_lshl_b32 s55, s28, 11
    s_lshl_b32 s54, s30, 14
    s_lshl_b32 s34, s29, 11
    s_add_u32 s54, s54, s34
    v_xor_b32 v{VXD+1}, 64, v{VXD}
    v_add_u32 v{VXD+2}, 16384, v{VXD}
    v_add_u32 v{VXD+1}, 8192, v{VXD+1}
    v_add_u32 v{VXD+3}, 16384, v{VXD+1}
    s_mul_i32 s80, s28, {16*3584}
    s_lshl_b32 s35, s32, 7
    s_add_u32 s80, s80, s35
    s_mul_i32 s81, s28, {16*3072}
    s_lshl_b32 s35, s32, 6
    s_and_b32 s34, s32, 1
    s_mul_i32 s34, s34, {1024-64}
    s_add_u32 s82, s81, s34
    s_add_u32 s81, s81, s35
    s_add_u32 s82, s82, s35
    {"s_add_u32 s35, s31, s32" if VAR['rot'] else "s_mov_b32 s35, 0"}
    """)
    for e in range(4):
        p(f"s_add_u32 s34, s35, {e}\ns_and_b32 s34, s34, 3\ns_lshl_b32 s{SXE+e}, s34, 8\ns_mul_i32 s{SIE+e}, s34, {128*3584}\ns_mul_i32 s{SQE+e}, s34, {128*3072}")
    p(f"""
    s_cmp_lt_u32 s32, 14
    s_cselect_b32 s18, {512*3584}, 0
    s_cselect_b32 s42, {WS_USED}, 0
    s_mov_b32 s19, 0x20000
    s_mov_b32 s43, 0x20000
    s_waitcnt lgkmcnt(0)
    s_mov_b32 s16, s8
    s_mov_b32 s17, s9
    """)
    srd(p, 24, 4, 2048*1024); srd(p, 20, 6, 512*3072)
    p.add(flat(x_dma(0))); p.add(flat(dma_E(0)))
    srd(p, 12, 50, WS_USED); srd(p, 44, 48, 256)
    p("s_mov_b32 s40, s50\ns_mov_b32 s41, s51")
    st(p, 0); entry_store(p, st)
    if VAR.get('cpf'): code_prefetch(p, 28, 3, 0, 36, "L_cpf")
    p(f"v_and_b32 v{VB}, 31, v1")
    bitswap23(p, VB, VB, 3)
    p(f"""
    v_lshrrev_b32 v3, 1, v{VB}
    v_lshrrev_b32 v2, 5, v1
    v_xor_b32 v3, v3, v2
    v_and_b32 v3, 7, v3
    v_lshlrev_b32 v3, 4, v3
    v_lshl_add_u32 v{VXR}, v{VB}, 7, v3
    v_add_u32 v{VXR}, s57, v{VXR}
    v_xor_b32 v{VXR+1}, 32, v{VXR}
    v_xor_b32 v{VXR+2}, 64, v{VXR}
    v_xor_b32 v{VXR+3}, 96, v{VXR}
    """)
    p.add(flat(x_dma(1))); p.add(flat(dma_E(1)))
    p(f"""
    v_lshlrev_b32 v{VL}, 4, v1
    v_and_b32 v3, 3, v1
    v_cmp_eq_u32 vcc, 0, v3
    v_lshrrev_b32 v3, 2, v1
    v_lshrrev_b32 v2, 4, v1
    v_xor_b32 v3, v3, v2
    v_and_b32 v3, 1, v3
    v_cmp_eq_u32 s[34:35], 0, v3
    s_and_b64 vcc, vcc, s[34:35]
    v_mov_b32 v3, 0x3f803f80
    v_cndmask_b32 v{SEL}, 0, v3, vcc
    v_mov_b32 v{SEL+1}, v{SEL}
    v_mov_b32 v{SEL+2}, v{SEL}
    v_mov_b32 v{SEL+3}, v{SEL}
    v_cmp_lt_u32 s[74:75], 31, v1
    s_mov_b32 s76, {fh(1/512)}
    s_cmp_eq_u32 s30, 1
    s_cbranch_scc1 L_g1
    """)
    def start(p):
        p.wait(vm=["X0", "E0"]); p("s_barrier"); st(p, 1)
        for ks in range(4): p.add(x_read(ks))
    def qdma(p):
        p(f"""
        v_lshrrev_b32 v2, 3, v1
        v_mul_u32_u24 v{VQ}, 512, v2
        v_sub_u32 v{VQ}, v{VPI}, v{VQ}
        """)
        for e in range(4): p.add(flat(dma_Q(e)))
    set_va(p, True, RING, 3072)
    p(f"""
    s_mov_b32 s77, {fh(C0*0.044715)}
    s_lshr_b32 s34, s32, 1
    s_lshl_b32 s83, s34, 19
    s_lshl_b32 s35, s33, 13
    s_add_u32 s83, s83, s35
    s_and_b32 s35, s32, 1
    s_lshl_b32 s35, s35, 11
    s_add_u32 s83, s83, s35
    s_add_u32 s83, s83, {Z2F}
    s_add_u32 s84, s83, 4096
    s_lshl_b32 s87, s33, 14
    s_add_u32 s87, s87, {STAT}
    s_lshl_b32 s35, s32, 10
    s_add_u32 s88, s87, s35
    s_lshl_b32 s89, s31, 4
    s_cmp_lt_u32 s32, 14
    s_cselect_b32 s79, s89, 0x1000
    s_lshl_b32 s85, s34, 18
    s_lshl_b32 s35, s33, 10
    s_add_u32 s85, s85, s35
    s_mul_i32 s86, s34, {4*KVH}
    s_mul_i32 s35, s33, {KVT}
    s_add_u32 s86, s86, s35
    s_add_u32 s86, s86, {KV}
    s_bitcmp1_b32 s32, 0
    s_cselect_b32 s85, s86, s85
    s_mov_b32 s86, {KVH}
    s_cselect_b32 s86, s86, 0x10000
    s_mov_b32 s78, {fh(0.25*1.4426950408889634)}
    s_cselect_b32 s78, 1.0, s78                  ; scale
    """)
    prio(p, 1)
    start(p)
    p.add(gemm_pass([A0, A1], E_addr, RING, True, "w", 512, hooks=phase1_hooks(st), cs_tiles=[0, 1]))
    p(f"v_mov_b32 v2, 0\nv_mov_b32 v3, {CNT}\nds_write_b32 v3, v2")
    p.wait(vm=["Z0","Z1","Z2","Z3"], lg0=True)
    p("s_barrier")
    st(p, 5)
    prio(p, 0)
    p(f"v_lshl_add_u32 v3, v1, 2, s57")
    p(f"ds_read_b32 v{T+16}, v3 offset:2048", tag="raw"); p(f"ds_read_b32 v{T+20}, v3 offset:2304", tag="raw")
    p.add(cs_reads([0, 1], "cs0"))
    qdma(p)
    p.wait(lg="raw")
    p.add(ln1_final(0, T+16, T+20))
    p.add(cs_corr([A0, A1], True, "cs0"))
    p.wait(lg="rr")
    p.add(gelu_N(A0)); p.add(gelu_N(A1)); p.add(z2_stats())
    p(f"buffer_store_dwordx4 {vr(STQ,4)}, v{VL}, s[40:43], s88 offen sc1", tag="stat")
    set_va(p, True, RING+65536, 2048)
    st(p, 6)
    p.wait(vm=["Q"], lg0=True)
    p("s_barrier")
    prio(p, 1)
    st(p, 7)
    FSTEP = VAR.get('fstep', 8)
    def qhooks(ks):
        if ks == FSTEP:
            return [], [], [W(vm="stat"), I(f"v_mov_b32 v2, 1"), I(f"v_mov_b32 v3, {CNT}"), I("s_mov_b64 exec, 1"), I("ds_add_rtn_u32 v3, v3, v2", tag="cnt"), I("s_mov_b64 exec, -1")]
        if ks == FSTEP+2:
            return [], [], [W(lg="cnt"), I("v_readfirstlane_b32 s34, v3"), I("s_cmp_eq_u32 s34, 3"), I("s_cselect_b32 s34, s79, 0x1000"),
                            I("s_mov_b64 exec, 1"), I("buffer_atomic_add v2, off, s[44:47], s34"), I("s_mov_b64 exec, -1")]
        return [], [], []
    p.add(gemm_pass([A2, A3_], Q_addr, RING+65536, False, "q", 512, hooks=qhooks, cs_tiles=[5, 6]))
    p("s_waitcnt lgkmcnt(0)\ns_barrier")
    st(p, 8)
    p.add(cs_reads([5, 6], "cs3"))
    p("s_cmp_ge_u32 s32, 14\ns_cbranch_scc1 L_nopoll\ns_mov_b32 s34, 0")
    p.label("L_poll")
    p("buffer_load_dword v2, off, s[44:47], s89 sc1\ns_add_u32 s34, s34, 1\ns_waitcnt vmcnt(0)\nv_cmp_gt_u32 vcc, 14, v2")
    p("s_cbranch_vccz L_poll_ok\ns_cmp_gt_u32 s34, 0x40000\ns_cbranch_scc1 L_poll_ok\ns_sleep 2\ns_branch L_poll")
    p.label("L_poll_ok")
    for k in range(14):
        if k % 4 == 0 and k: p("s_add_u32 s87, s87, 4096")
        p(f"buffer_load_dwordx4 {ar(4*k,4)}, v{VL}, s[12:15], s87 offen offset:{(k%4)*1024} sc1", tag="part")
    p.label("L_nopoll")
    p.add(cs_corr([A2, A3_], False, "cs3"))
    p(f"v_mul_f32 v{R1}, s78, v{R1}")
    for a in (A2, A3_):
        for r in range(16): p(f"v_mul_f32 v{a+r}, v{a+r}, v{R1}")
        for d in range(8): p(f"v_cvt_pk_bf16_f32 v{a+d}, v{a+2*d}, v{a+2*d+1}")
        p(f"buffer_store_dwordx4 {vr(a,4)}, v{VL}, s[12:15], s85 offen\ns_add_u32 s85, s85, s86")
        p(f"buffer_store_dwordx4 {vr(a+4,4)}, v{VL}, s[12:15], s85 offen\ns_add_u32 s85, s85, s86")
    p("s_cmp_ge_u32 s32, 14\ns_cbranch_scc1 L_end")
    p(f"""
    s_mov_b32 s34, {fh(1/896)}
    v_bfe_u32 v2, v1, 2, 1
    v_bfe_u32 v3, v1, 3, 1
    v_lshl_add_u32 v2, v3, 1, v2
    v_bfe_u32 v3, v1, 4, 2
    v_lshl_add_u32 v2, v3, 2, v2
    v_lshl_add_u32 v2, v2, 2, s57
    v_lshrrev_b32 v3, 5, v1
    v_lshl_add_u32 v3, v3, 5, s57
    """)
    p.wait(vm="part")
    b = T+8
    for e in range(4): p(f"v_accvgpr_read_b32 v{b+e}, a{e}")
    for k in range(1, 14):
        for e in range(4): p(f"v_accvgpr_read_b32 v{b+4+e}, a{4*k+e}")
        for e in range(4): p(f"v_add_f32 v{b+e}, v{b+e}, v{b+4+e}")
    p(f"""
    v_mul_f32 v{b}, s34, v{b}
    v_mul_f32 v{b+2}, s34, v{b+2}
    v_mul_f32 v{b+4}, v{b}, v{b}
    v_mul_f32 v{b+5}, v{b+2}, v{b+2}
    v_fma_f32 v{b+1}, v{b+1}, s34, -v{b+4}
    v_fma_f32 v{b+3}, v{b+3}, s34, -v{b+5}
    v_max_f32 v{b+1}, 0, v{b+1}
    v_max_f32 v{b+3}, 0, v{b+3}
    v_add_f32 v{b+1}, {fh(1e-5)}, v{b+1}
    v_add_f32 v{b+3}, {fh(1e-5)}, v{b+3}
    v_rsq_f32 v{b+1}, v{b+1}
    v_rsq_f32 v{b+3}, v{b+3}
    v_mul_f32_e64 v{b}, -v{b}, v{b+1}
    v_mul_f32_e64 v{b+2}, -v{b+2}, v{b+3}
    ds_write_b32 v2, v{b+1} offset:4096
    ds_write_b32 v2, v{b+3} offset:4160
    ds_write_b32 v2, v{b} offset:4224
    ds_write_b32 v2, v{b+2} offset:4288
    s_waitcnt lgkmcnt(0)
    """)
    R2 = A2+8; NM = T+8
    R2 = CSF
    for k in range(4): p(f"ds_read_b128 {vr(R2+4*k,4)}, v3 offset:{4096 + (k//2)*64 + (k%2)*16}", tag="r2")
    for k in range(4): p(f"ds_read_b128 {vr(NM+4*k,4)}, v3 offset:{4096 + 128 + (k//2)*64 + (k%2)*16}", tag="r2")
    p.wait(lg="r2")
    for t in range(2):
        a = A0 + 16*t
        for r in range(16): p(f"v_fma_f32 v{a+r}, v{a+r}, v{R2+r}, v{NM+r}")
        for d in range(8): p(f"v_cvt_pk_bf16_f32 v{a+d}, v{a+2*d}, v{a+2*d+1}")
        p(f"buffer_store_dwordx4 {vr(a,4)}, v{VL}, s[12:15], s83 offen offset:{t*1024}")
        p(f"buffer_store_dwordx4 {vr(a+4,4)}, v{VL}, s[12:15], s84 offen offset:{t*1024}")
    st(p, 9)
    p("s_endpgm")
    p.label("L_g1")
    set_va(p, False, RING+2048, 3072)
    p(f"""
    v_and_b32 v3, 1, v1
    v_cmp_eq_u32 s[70:71], 1, v3
    v_and_b32 v3, 2, v1
    v_cmp_eq_u32 s[72:73], 2, v3
    s_mul_i32 s83, s33, {56*1024}
    s_lshl_b32 s34, s32, 12
    s_add_u32 s83, s83, s34
    s_add_u32 s83, s83, {Z1F}
    s_mul_i32 s85, s32, {2*KVH}
    s_mul_i32 s34, s33, {KVT}
    s_add_u32 s85, s85, s34
    s_add_u32 s85, s85, {KV}
    """)
    prio(p, 1)
    start(p)
    p.add(gemm_pass([A0], lambda ks: E_addr(ks)+2048, RING+2048, True, "w", 256, hooks=phase1_hooks(st), cs_tiles=[2], stats=True))
    p(f"""
    v_add_f32 v{Q0}, v{Q0}, v{Q1}
    v_add_f32 v{Q0+1}, v{Q0+1}, v{Q1+1}
    v_add_f32 v{Q0+2}, v{Q0+2}, v{Q1+2}
    v_add_f32 v{Q0+3}, v{Q0+3}, v{Q1+3}
    v_cndmask_b32 v{Q0}, v{Q0}, v{Q0+1}, s[70:71]
    v_cndmask_b32 v{Q0+2}, v{Q0+2}, v{Q0+3}, s[70:71]
    ds_write_b32 v3, v{SX} offset:2048
    v_cndmask_b32 v{Q0}, v{Q0}, v{Q0+2}, s[72:73]
    v_mov_b32 v{Q1}, v{Q0}
    v_permlane32_swap_b32 v{Q0}, v{Q1}
    v_add_f32 v{Q0}, v{Q0}, v{Q1}
    ds_write_b32 v3, v{Q0} offset:2304
    """)
    p.wait(vm=["Z0","Z1","Z2","Z3"], lg0=True)
    p("s_barrier")
    st(p, 5)
    p.add(cs_reads([2], "cs1"))
    p.add(ln1_final(1, SX, Q0))
    p.add(cs_corr([A0], True, "cs1"))
    set_va(p, True, RING, 2048)
    qd = Prog(); qdma(qd)
    zp = gemm_pass([A2, A3_], Z_addr, RING, False, "z", 512, cs_tiles=[3, 4])
    e = Prog()
    e(f"""
    s_mov_b32 s78, {KVH}
    v_bfe_u32 v3, v1, 4, 1
    v_mul_lo_u32 v{VB}, v3, s78
    v_and_b32 v3, 15, v1
    v_lshl_add_u32 v{VB}, v3, 4, v{VB}
    v_lshrrev_b32 v3, 5, v1
    v_lshl_add_u32 v{VB}, v3, 8, v{VB}
    """)
    e.wait(lg="rr")
    for r in range(16): e(f"v_mul_f32 v{A0+r}, v{A0+r}, v{A1+r}")
    for d in range(8): e(f"v_cvt_pk_bf16_f32 v{A0+d}, v{A0+2*d}, v{A0+2*d+1}")
    e(f"buffer_store_dwordx4 {vr(A0,4)}, v{VB}, s[12:15], s85 offen offset:1024")
    e(f"buffer_store_dwordx4 {vr(A0+4,4)}, v{VB}, s[12:15], s85 offen offset:1536")
    for r in range(4): e(f"v_mov_b32 v{A1+r}, 0x3f803f80\nv_mov_b32 v{A1+4+r}, 0")
    p.add(interleave(zp, qd.l + e.l, per_gap=2, start=1))
    p(f"s_mov_b64 exec, 0x10001\nbuffer_store_dwordx4 {vr(A1,4)}, v{VB}, s[12:15], s85 offen offset:2048\nbuffer_store_dwordx4 {vr(A1+4,4)}, v{VB}, s[12:15], s85 offen offset:2064\ns_mov_b64 exec, -1")
    st(p, 6)
    p.wait(vm=["Q"], lg0=True)
    p("s_barrier")
    prio(p, 0)
    st(p, 7)
    p("s_cmp_ge_u32 s32, 14\ns_cbranch_scc1 L_end")
    p.add(cs_reads([3, 4], "cs2"))
    p.add(cs_corr([A2, A3_], False, "cs2"))
    st(p, 8)
    for k, a in enumerate((A2, A3_)):
        p.add(gelu_T(a, T+4+8*k))
        p(f"buffer_store_dwordx4 {vr(T+4+8*k,4)}, v{VL}, s[40:43], s83 offen offset:{k*2048}")
        p(f"buffer_store_dwordx4 {vr(T+8+8*k,4)}, v{VL}, s[40:43], s83 offen offset:{k*2048+1024}")
    st(p, 9)
    p("s_endpgm")
    p.label("L_end")
    p("s_endpgm")
    return p

def split_groups(l):
    lab = {x.op: i for i, x in enumerate(l) if getattr(x, 'kind', '') == "label"}
    b = next(i for i, x in enumerate(l) if getattr(x, 'kind', '') == "branch" and x.target == "L_g1")
    return b, lab["L_g1"]
def k1_paths(l):
    b, g1 = split_groups(l)
    return [l[:g1], l[:b] + l[g1:]]
def finalize_k1(p, verbose=False):
    l = p.l
    b, g1 = split_groups(l)
    head = l[:b+1]
    r0 = resolve_waits(l[:g1])
    r1 = resolve_waits(head + l[g1:])
    nh = len(resolve_waits(head))
    p2 = Prog(); p2.l = r0 + r1[nh:]
    return finalize("k1", p2, paths=k1_paths, verbose=verbose)
K1_DESC = dict(name="k1_kernel", vgpr=256, sgpr=102, accum=128, grid=256, block=512, lds=K1_LDS)
if __name__ == "__main__":
    import sys
    from build import build
    vars_ = eval(sys.argv[2]) if len(sys.argv) > 2 else {"k1": {}}
    base = dict(VAR)
    for nm, kw in vars_.items():
        VAR.clear(); VAR.update(base); VAR.update(kw)
        p = gen_k1(stamp=len(sys.argv)>1)
        l, errs = finalize_k1(p, verbose=len(sys.argv) < 2)
        build([dict(K1_DESC, l=l)], f"out_{nm}.s")
```

```python
from common import *
SOLO = True
import struct
def float_hex(f): return hex(struct.unpack("<I", struct.pack("<f", f))[0])

LDS_FLAG = 130048
LDS_STG = 131072
K2_LDS = 163840
VAR = dict(margin=80.0, U=8, prio_att=1, prio_g=0, cdelay=2)

QA, QB = 4, 8
CA, CB = 16, 32
OA, OB = 48, 64
SA, SB = 80, 96
PA, PB = 112, 120
KR = [128, 132, 136, 140]
V0R = [144, 148, 152, 156]
V1R = [160, 164, 168, 172]
AK, AV0, AV1 = 176, 177, 178
GK, GV0, GV1 = 179, 180, 181
MA, MB = 182, 183
TM = 184
FL = 188
PF, PFA = 190, 191
STT = 192

def max16(p, S, M, first):
    if first:
        p(f"v_max3_f32 v{M}, v{S}, v{S+1}, v{S+2}")
        p(f"v_max_f32 v{M}, v{M}, v{S+3}")
        r = range(4, 16, 2)
    else: r = range(0, 16, 2)
    for k in r: p(f"v_max3_f32 v{M}, v{M}, v{S+k}, v{S+k+1}")

def flag_wait(p, name, addr_v, off, val, tmpq):
    p.label(name)
    p(f"ds_read_b128 {vr(tmpq,4)}, v{addr_v} offset:{off}")
    p("s_waitcnt lgkmcnt(0)")
    p(f"v_min_u32 v{tmpq}, v{tmpq}, v{tmpq+1}\nv_min3_u32 v{tmpq}, v{tmpq}, v{tmpq+2}, v{tmpq+3}")
    p(f"v_cmp_gt_u32 vcc, {val}, v{tmpq}")
    p(f"s_cbranch_vccz {name}_ok\ns_sleep 1\ns_branch {name}")
    p.label(name + "_ok")

def spin1(p, name, addr_v, off, val, tmp):
    p.label(name)
    p(f"ds_read_b32 v{tmp}, v{addr_v} offset:{off}")
    p("s_waitcnt lgkmcnt(0)")
    p(f"v_cmp_gt_u32 vcc, {val}, v{tmp}")
    p(f"s_cbranch_vccz {name}_ok\ns_sleep 1\ns_branch {name}")
    p.label(name + "_ok")

def att_loop_body(U):
    out = []
    def blk(S, P, So, Po, Mqk, Mpv1, Mpv0, extra):
        e = lambda k: I(f"v_exp_f32 v{S+k}, v{S+k}")
        c = lambda k: I(f"v_cvt_pk_bf16_f32 v{P+k}, v{S+2*k}, v{S+2*k+1}")
        co = lambda k: I(f"v_cvt_pk_bf16_f32 v{Po+k}, v{So+2*k}, v{So+2*k+1}")
        o = []
        pq, p1, p0 = VAR.get('pos', (2, 6, 12))
        cs = VAR.get('cs', {0: [-6], 1: [-7], 3: [0], 5: [1], 7: [2], 9: [3], 11: [4], 13: [5]})
        if VAR.get('perm'):
            c = lambda k: I(f"v_perm_b32 v{P+k}, v{S+2*k+1}, v{S+2*k}, s45")
            co = lambda k: I(f"v_perm_b32 v{Po+k}, v{So+2*k+1}, v{So+2*k}, s45")
        for k in range(16):
            o.append(e(k))
            for j in cs.get(k, []):
                if j < 0: o.append(co(-j))
            if k == pq and not VAR.get('nom'): o.append(Mqk)
            if k == p1 and not VAR.get('nom'): o.append(Mpv1)
            if k == p0 and not VAR.get('nom'): o.append(Mpv0)
            o += extra.get(k, [])
            for j in cs.get(k, []):
                if j >= 0: o.append(c(j))
        return o
    for u in range(U):
        s0 = u % 4; s1 = (u+1) % 4; sm = (u-1) % 4
        exA = {}; exB = {}
        if u % 2 == 0:
            rd = []
            for d in (2, 3):
                o_ = (u+d-1)*KVT
                rd += [I(f"ds_read_b128 {vr(KR[(u+d)%4],4)}, v{AK} offset:{o_}"),
                       I(f"ds_read_b128 {vr(V0R[(u+d)%4],4)}, v{AV0} offset:{o_}"),
                       I(f"ds_read_b128 {vr(V1R[(u+d)%4],4)}, v{AV1} offset:{o_}")]
            exA = {6: rd}
            if VAR.get('nods'): exA = {}
        if u == U-1:
            exB = {2: [I("s_add_u32 s41, s41, 1")], 3: [I(f"s_cmp_eq_u32 s41, {12//U}")], 4: [I("s_cbranch_scc1 L_att_sync2"), I("L_att_sync2_ret:")],
                   6: [I(f"v_add_u32 v{AK}, {U*KVT}, v{AK}")], 8: [I(f"v_add_u32 v{AV0}, {U*KVT}, v{AV0}")], 10: [I(f"v_add_u32 v{AV1}, {U*KVT}, v{AV1}")],
                   14: [I(f"s_cmp_lt_u32 s41, {64//U}")]}
        if u % 2 == 1: exB[0] = [I("s_waitcnt lgkmcnt(0)")]
        out += blk(SA, PA, SB, PB, mfma32(vr(SB,16), vr(KR[s0],4), vr(QB,4), vr(CB,16)),
                   mfma32(vr(OB,16), vr(V1R[sm],4), vr(PB+4,4), vr(OB,16)),
                   mfma32(vr(OA,16), vr(V0R[s0],4), vr(PA,4), vr(OA,16)), exA)
        out += blk(SB, PB, SA, PA, mfma32(vr(SA,16), vr(KR[s1],4), vr(QA,4), vr(CA,16)),
                   mfma32(vr(OA,16), vr(V1R[s0],4), vr(PA+4,4), vr(OA,16)),
                   mfma32(vr(OB,16), vr(V0R[s0],4), vr(PB,4), vr(OB,16)), exB)
    return out

def gen_attention(p, st):
    U = VAR['U']
    p(f"s_setprio {VAR['prio_att']}")
    p(f"""
    s_mul_i32 s30, s27, {KVH}
    s_add_u32 s30, s30, {KV}
    s_lshl_b32 s31, s27, 16
    s_lshl_b32 s32, s28, 3
    s_lshl_b32 s33, s24, 1
    s_add_u32 s32, s32, s33
    s_lshl_b32 s33, s32, 10
    s_add_u32 s31, s31, s33
    v_lshlrev_b32 v{GK}, 4, v1
    """)
    p(f"buffer_load_dwordx4 {vr(QA,4)}, v{GK}, s[12:15], s31 offen")
    p(f"buffer_load_dwordx4 {vr(QB,4)}, v{GK}, s[12:15], s31 offen offset:1024")
    p(f"buffer_load_dwordx4 {vr(KR[0],4)}, v{GK}, s[12:15], s30 offen")
    p(f"buffer_load_dwordx4 {vr(KR[1],4)}, v{GK}, s[12:15], s30 offen offset:{KVT}")
    p(f"""
    v_and_b32 v{TM}, 31, v1
    v_lshrrev_b32 v{TM+1}, 5, v1
    v_lshlrev_b32 v{TM+1}, 8, v{TM+1}
    v_lshl_add_u32 v{TM+1}, v{TM}, 4, v{TM+1}
    v_and_b32 v{TM+2}, 27, v{TM}
    v_cmp_eq_u32 vcc, 16, v{TM+2}
    v_mov_b32 v{TM+2}, 2064
    v_mov_b32 v{TM+3}, 2048
    v_cndmask_b32 v{TM+2}, v{TM+2}, v{TM+3}, vcc
    v_cmp_gt_u32 vcc, 16, v{TM}
    v_add_u32 v{GV0}, 1024, v{TM+1}
    v_add_u32 v{GV1}, 1536, v{TM+1}
    v_cndmask_b32 v{GV0}, v{TM+2}, v{GV0}, vcc
    v_cndmask_b32 v{GV1}, v{TM+2}, v{GV1}, vcc
    """)
    for t in range(2):
        p(f"buffer_load_dwordx4 {vr(V0R[t],4)}, v{GV0}, s[12:15], s30 offen offset:{t*KVT}")
        p(f"buffer_load_dwordx4 {vr(V1R[t],4)}, v{GV1}, s[12:15], s30 offen offset:{t*KVT}")
    p(f"""
    s_lshl_b32 s37, s24, 12
    s_add_u32 s38, s30, {KVT+1024}
    s_add_u32 s38, s38, s37
    """)
    for i in range(2):
        p("s_mov_b32 m0, s37")
        p("s_add_u32 s37, s37, 16384")
        for k in range(4):
            p(f"buffer_load_dwordx4 v{GK}, s[12:15], s38 offen offset:{k*1024} lds")
        p("s_add_u32 s38, s38, 16384")
    p("s_barrier")
    p(f"""
    v_mov_b32 v{FL}, {LDS_FLAG}
    s_lshl_b32 s37, s24, 2
    v_add_u32 v{FL+1}, s37, v{FL}
    v_subrev_u32 v{AK}, 1024, v{GK}
    v_subrev_u32 v{AV0}, 1024, v{GV0}
    v_subrev_u32 v{AV1}, 1024, v{GV1}
    """)
    for r in list(range(OA, OA+32)) + list(range(PB+4, PB+6)) + list(range(V1R[3], V1R[3]+4)):
        p(f"v_mov_b32 v{r}, 0")
    p("s_waitcnt vmcnt(12)")
    p.add([mfma32(vr(SA,16), vr(KR[0],4), vr(QA,4), "0"), mfma32(vr(SB,16), vr(KR[0],4), vr(QB,4), "0"),
           mfma32(vr(CA,16), vr(KR[1],4), vr(QA,4), "0"), mfma32(vr(CB,16), vr(KR[1],4), vr(QB,4), "0")])
    max16(p, SA, MA, True); max16(p, SB, MB, True); max16(p, CA, MA, False); max16(p, CB, MB, False)
    p(f"""
    s_mov_b32 s40, {float_hex(VAR['margin'])}
    v_mov_b32 v{TM}, v{MA}
    v_mov_b32 v{TM+1}, v{MB}
    v_permlane32_swap_b32 v{TM}, v{MA}
    v_permlane32_swap_b32 v{TM+1}, v{MB}
    v_max_f32 v{MA}, v{MA}, v{TM}
    v_max_f32 v{MB}, v{MB}, v{TM+1}
    v_add_f32 v{MA}, s40, v{MA}
    v_add_f32 v{MB}, s40, v{MB}
    """)
    for r in range(16): p(f"v_sub_f32 v{CA+r}, 0, v{MA}")
    for r in range(12, 16): p(f"v_mov_b32 v{SB+r}, 0")
    p.add([mfma32(vr(SA,16), vr(KR[0],4), vr(QA,4), vr(CA,16))])
    for r in range(16): p(f"v_sub_f32 v{CB+r}, 0, v{MB}")
    p("s_waitcnt vmcnt(0)")
    p(f"v_mov_b32 v{TM}, 1\nds_write_b32 v{FL+1}, v{TM}")
    flag_wait(p, "L_att_f1", FL, 0, 1, TM)
    st(p, 1)
    p("s_mov_b32 s41, 0\ns_mov_b32 s45, 0x07060302")
    p(".p2align 6")
    p.label("L_att_loop")
    p.add(att_loop_body(U))
    p("s_cbranch_scc1 L_att_loop")
    st(p, 2)
    p(f"v_cvt_pk_bf16_f32 v{PB+6}, v{SB+12}, v{SB+13}\nv_cvt_pk_bf16_f32 v{PB+7}, v{SB+14}, v{SB+15}")
    p(f"""
    s_mul_i32 s33, s32, {88*1024}
    s_lshl_b32 s34, s27, 10
    s_add_u32 s33, s33, s34
    s_add_u32 s33, s33, {A3}
    """)
    p.add([mfma32(vr(OB,16), vr(V1R[3],4), vr(PB+4,4), vr(OB,16))])
    p("s_waitcnt lgkmcnt(0)")
    p("s_mov_b32 s36, 0")
    p.label("L_att_chk")
    p(f"v_mul_f32 v{TM}, 0, v{OA+8}")
    for r in range(8): p(f"v_fmac_f32 v{TM}, 0, v{OA+r}")
    p(f"v_cmp_u_f32 vcc, v{TM}, v{TM}")
    p("s_cbranch_vccnz L_att_slow")
    p.label("L_att_fin")
    p(f"v_rcp_f32 v{MA}, v{OA+8}")
    p("s_cmp_lg_u32 s36, 0")
    for r in range(8): p(f"v_mul_f32 v{OA+r}, v{OA+r}, v{MA}")
    for k in range(4): p(f"v_cvt_pk_bf16_f32 v{PA+k}, v{OA+2*k}, v{OA+2*k+1}")
    p(f"buffer_store_dwordx4 {vr(PA,4)}, v{GK}, s[12:15], s33 offen")
    p("s_cbranch_scc1 L_att_done")
    p(f"s_mov_b32 s36, 1\ns_add_u32 s33, s33, {88*1024}")
    for r in range(9): p(f"v_mov_b32 v{OA+r}, v{OB+r}")
    for r in range(4): p(f"v_mov_b32 v{QA+r}, v{QB+r}")
    p("s_branch L_att_chk")
    p.label("L_att_done")
    st(p, 3)
    p("s_endpgm")
    p.label("L_att_sync2")
    flag_wait(p, "L_att_f2", FL, 48, 1, TM)
    p("s_branch L_att_sync2_ret")
    p.label("L_att_slow")
    p(f"v_mov_b32 v{MA}, 0xff800000\ns_mov_b32 s41, 0\ns_mov_b32 s37, s30")
    p.label("L_att_sl1")
    p(f"buffer_load_dwordx4 {vr(KR[0],4)}, v{GK}, s[12:15], s37 offen")
    p("s_waitcnt vmcnt(0)")
    p.add([mfma32(vr(SA,16), vr(KR[0],4), vr(QA,4), "0")])
    max16(p, SA, MA, False)
    p(f"s_add_u32 s37, s37, {KVT}\ns_add_u32 s41, s41, 1\ns_cmp_lt_u32 s41, 64\ns_cbranch_scc1 L_att_sl1")
    p(f"v_mov_b32 v{TM}, v{MA}\nv_permlane32_swap_b32 v{TM}, v{MA}\nv_max_f32 v{MA}, v{MA}, v{TM}")
    for r in range(16): p(f"v_sub_f32 v{CA+r}, 0, v{MA}\nv_mov_b32 v{OA+r}, 0")
    p("s_mov_b32 s41, 0\ns_mov_b32 s37, s30")
    p.label("L_att_sl2")
    p(f"buffer_load_dwordx4 {vr(KR[0],4)}, v{GK}, s[12:15], s37 offen")
    p(f"buffer_load_dwordx4 {vr(V0R[0],4)}, v{GV0}, s[12:15], s37 offen")
    p(f"buffer_load_dwordx4 {vr(V1R[0],4)}, v{GV1}, s[12:15], s37 offen")
    p("s_waitcnt vmcnt(0)")
    p.add([mfma32(vr(SA,16), vr(KR[0],4), vr(QA,4), vr(CA,16))])
    for k in range(16): p(f"v_exp_f32 v{SA+k}, v{SA+k}")
    for k in range(8): p(f"v_cvt_pk_bf16_f32 v{PA+k}, v{SA+2*k}, v{SA+2*k+1}")
    p.add([mfma32(vr(OA,16), vr(V0R[0],4), vr(PA,4), vr(OA,16)), mfma32(vr(OA,16), vr(V1R[0],4), vr(PA+4,4), vr(OA,16))])
    p(f"s_add_u32 s37, s37, {KVT}\ns_add_u32 s41, s41, 1\ns_cmp_lt_u32 s41, 64\ns_cbranch_scc1 L_att_sl2")
    p("s_nop 15\ns_branch L_att_fin")

ACC = 4
NZF = 16
ZR = 132
WR = 196
VL = 228; VD = 229; VW = 230
G = 232
def acc(i, tt): return ACC + (i*2+tt)*16

def gen_gemm(p, st):
    p(f"""
    s_sub_u32 s24, s24, 4                  ; q = K quarter
    v_lshlrev_b32 v{VL}, 4, v1
    s_mul_i32 s38, s27, {KVH}
    s_lshl_b32 s37, s24, 12
    s_add_u32 s37, s37, 32768
    s_add_u32 s38, s38, s37
    s_add_u32 s38, s38, {KV + KVT + 1024}
    s_lshl_b32 s46, s24, 2
    s_add_u32 s46, s46, {LDS_FLAG}
    v_mov_b32 v{G+1}, s46
    v_mov_b32 v{G+3}, 1
    s_barrier
    """)
    for i in range(6):
        p("s_mov_b32 m0, s37")
        if i < 5: p("s_add_u32 s37, s37, 16384")
        else: p("s_cmp_eq_u32 s24, 3")
        for k in range(4):
            if i == 5 and k == 3: p("s_cbranch_scc1 L_g_kvdone")
            p(f"buffer_load_dwordx4 v{VL}, s[12:15], s38 offen offset:{k*1024} lds")
        if i < 5: p("s_add_u32 s38, s38, 16384")
    p.label("L_g_kvdone")
    p(f"""
    s_cmp_ge_u32 s26, 28
    s_cbranch_scc1 L_idle
    s_setprio 3
    s_mul_i32 s30, s26, 9363
    s_lshr_b32 s30, s30, 16                ; j/7
    s_mul_i32 s31, s30, 7
    s_sub_u32 s31, s26, s31                ; fb = j%7
    s_lshl_b32 s32, s25, 2
    s_add_u32 s30, s30, s32                ; tb
    s_lshl_b32 s33, s31, 19
    s_add_u32 s33, s33, {Z2F}
    s_lshl_b32 s34, s24, 17
    s_add_u32 s33, s33, s34
    s_lshl_b32 s35, s30, 18
    s_lshl_b32 s34, s24, 10
    s_add_u32 s35, s35, s34
    s_lshl_b32 s36, s24, 13
    s_add_u32 s36, s36, {LDS_STG}
    s_add_u32 s37, s36, 4096
    """)
    for i in range(4):
        p(f"s_add_u32 s38, s24, {i}\ns_and_b32 s38, s38, 3\ns_lshl_b32 s38, s38, 10\ns_add_u32 s{52+i}, s33, s38")
        p(f"s_add_u32 s{56+i}, s35, {i*(65536-1024)}")
    p(f"""
    v_lshrrev_b32 v2, 2, v1
    v_lshlrev_b32 v2, 12, v2
    v_lshrrev_b32 v3, 4, v1
    v_xor_b32 v3, v3, v1
    v_and_b32 v3, 3, v3
    v_lshl_add_u32 v{VD}, v3, 4, v2
    """)
    def dma(b):
        out = [I(f"s_mov_b32 m0, s{36 + b%2}"), I("s_nop 0")]
        for k in range(4):
            out.append(I(f"buffer_load_dwordx4 v{VD}, s[16:19], s{56+k} offen offset:{k*1024} lds", tag=f"d{b}"))
            out.append(I(f"s_add_u32 s{56+k}, s{56+k}, 64"))
        return out
    def zload(n):
        i = n % 4
        return [I(f"buffer_load_dwordx4 {vr(ZR + (n%NZF)*4, 4)}, v{VL}, s[12:15], s{52+i} offen", tag=f"z{n}"),
                I(f"s_add_u32 s{52+i}, s{52+i}, 4096")]
    p.add(dma(0))
    for n in range(8): p.add(zload(n))
    p.add(dma(1))
    for n in range(8, 16): p.add(zload(n))
    p(f"v_and_b32 v2, 31, v1")
    bitswap23(p, 2, 2, 3)
    p(f"""
    v_lshrrev_b32 v3, 2, v2
    v_lshrrev_b32 v{VW}, 5, v1
    v_xor_b32 v3, v3, v{VW}
    v_and_b32 v3, 3, v3
    v_lshlrev_b32 v3, 4, v3
    v_lshl_add_u32 v{VW}, v2, 6, v3
    v_add_u32 v{VW}, s36, v{VW}
    v_xor_b32 v{VW+1}, 32, v{VW}
    """)
    p(f"s_setprio {VAR['prio_g']}")
    st(p, 1)
    NB = 16
    def wread(b):
        return [I(f"ds_read_b128 {vr(WR + ((b%2)*4+u*2+tt)*4, 4)}, v{VW+u} offset:{(b%2)*4096 + tt*2048}", tag=f"w{b}", needs=[f"d{b}"]) for u in range(2) for tt in range(2)]
    def block(b, first=False, dma_on=True, z_on=True, w_on=True):
        o = [W(lg=f"w{b}")]
        if dma_on: o += dma(b+2)
        for u in range(2):
            s = 2*b+u
            o.append(W(vm=[f"z{4*s+3}"] + ([f"d{b+1}"] if (u == 1 and w_on) else [])))
            for i in range(4):
                n = 4*s+i
                for tt in range(2):
                    c = "0" if (first and u == 0) else vr(acc(i,tt),16)
                    o.append(mfma32(vr(acc(i,tt),16), vr(ZR+(n%NZF)*4,4), vr(WR+((b%2)*4+u*2+tt)*4,4), c))
                if u == 1 and i == 0 and w_on: o += wread(b+1)
            if z_on:
                for i in range(4): o += zload(4*s+i+NZF)
        return o
    p.wait(vm="d0"); p(f"ds_write_b32 v{G+1}, v{G+3} offset:48"); p.add(wread(0))
    p.add(block(0, first=True)); p.add(block(1))
    p("s_mov_b32 s60, 0")
    p.label("L_g_loop")
    p.add(block(2)); p.add(block(3))
    p("s_add_u32 s60, s60, 1\ns_cmp_lt_u32 s60, 6\ns_cbranch_scc1 L_g_loop")
    p.add(block(4, dma_on=False, z_on=False)); p.add(block(5, dma_on=False, z_on=False, w_on=False))
    st(p, 2)
    p("s_setprio 3")
    p(f"""
    s_lshl_b32 s38, s30, 1
    s_mul_i32 s39, s38, {56*1024}
    s_lshl_b32 s40, s31, 2
    s_add_u32 s40, s40, s24
    s_lshl_b32 s41, s40, 11
    s_add_u32 s39, s39, s41
    s_add_u32 s39, s39, {Z1F}
    s_add_u32 s42, s39, {56*1024}
    s_mul_i32 s43, s38, {88*1024}
    s_add_u32 s43, s43, s41
    s_add_u32 s43, s43, {A3 + 32*1024}
    s_add_u32 s44, s43, {88*1024}
    s_lshl_b32 s45, s30, 7
    v_lshlrev_b32 v2, 1, v2
    """)
    Z = ZR
    p(f"buffer_load_dwordx4 {vr(Z,4)}, v{VL}, s[12:15], s39 offen", tag="z1")
    p(f"buffer_load_dwordx4 {vr(Z+4,4)}, v{VL}, s[12:15], s39 offen offset:1024", tag="z1")
    p(f"buffer_load_dwordx4 {vr(Z+8,4)}, v{VL}, s[12:15], s42 offen", tag="z1")
    p(f"buffer_load_dwordx4 {vr(Z+12,4)}, v{VL}, s[12:15], s42 offen offset:1024", tag="z1")
    p(f"buffer_load_ushort v{Z+16}, v2, s[20:23], s45 offen", tag="z1")
    p(f"buffer_load_ushort v{Z+17}, v2, s[20:23], s45 offen offset:64", tag="z1")
    p(f"""
    v_add_u32 v{G}, s36, v{VL}
    """)
    for r in range(1, 4):
        if r > 1:
            p(f"s_add_u32 s47, s24, {r-1}\ns_and_b32 s47, s47, 3\ns_lshl_b32 s47, s47, 2\ns_add_u32 s47, s47, {LDS_FLAG}\nv_mov_b32 v{G+2}, s47")
            spin1(p, f"L_g_ack{r}", G+2, 32, r-1, G+3)
        for k in range(8):
            p(f"ds_write_b128 v{G}, {vr(acc(r,0)+4*k, 4)} offset:{k*1024}")
        p(f"v_mov_b32 v{G+3}, {r}\ns_waitcnt lgkmcnt(0)\nds_write_b32 v{G+1}, v{G+3} offset:16")
        p(f"s_add_u32 s47, s24, {4-r}\ns_and_b32 s47, s47, 3\ns_lshl_b32 s48, s47, 2\ns_add_u32 s48, s48, {LDS_FLAG}\nv_mov_b32 v{G+2}, s48\ns_lshl_b32 s47, s47, 13\ns_add_u32 s47, s47, {LDS_STG}\nv_add_u32 v{G+4}, s47, v{VL}")
        spin1(p, f"L_g_dat{r}", G+2, 16, r, G+3)
        T = acc(r, 0)
        for k in range(8):
            p(f"ds_read_b128 {vr(T+4*k,4)}, v{G+4} offset:{k*1024}", tag=f"r{k}")
        for k in range(8):
            p.wait(lg=f"r{k}")
            for e in range(4): p(f"v_add_f32 v{acc(0,0)+4*k+e}, v{acc(0,0)+4*k+e}, v{T+4*k+e}")
        if r < 3:
            p(f"v_mov_b32 v{G+3}, {r}\nds_write_b32 v{G+1}, v{G+3} offset:32")
    p.wait(vm="z1")
    T = acc(1, 0)
    p(f"v_lshlrev_b32 v{Z+16}, 16, v{Z+16}\nv_lshlrev_b32 v{Z+17}, 16, v{Z+17}")
    for tt in range(2):
        a = acc(0, tt)
        for r in range(16): p(f"v_add_f32 v{a+r}, v{a+r}, v{Z+16+tt}")
        for d in range(8):
            z = Z + tt*8 + d
            p(f"v_lshlrev_b32 v{T}, 16, v{z}\nv_and_b32 v{T+1}, 0xffff0000, v{z}")
            p(f"v_mul_f32 v{a+2*d}, v{a+2*d}, v{T}\nv_mul_f32 v{a+2*d+1}, v{a+2*d+1}, v{T+1}")
            p(f"v_cvt_pk_bf16_f32 v{T+8+tt*8+d}, v{a+2*d}, v{a+2*d+1}")
        so = 43 + tt
        p(f"buffer_store_dwordx4 {vr(T+8+tt*8,4)}, v{VL}, s[12:15], s{so} offen")
        p(f"buffer_store_dwordx4 {vr(T+12+tt*8,4)}, v{VL}, s[12:15], s{so} offen offset:1024")
    st(p, 3)
    p("s_endpgm")
    p.label("L_idle")
    p(f"""
    s_load_dwordx2 s[36:37], s[0:1], {KA_WO}
    s_load_dwordx2 s[38:39], s[0:1], {KA_WOUT}
    s_lshl_b32 s34, s25, 2
    s_add_u32 s34, s34, s26
    s_sub_u32 s34, s34, 28                      ; L
    s_mov_b32 s54, {896*1024}
    s_waitcnt vmcnt(0) lgkmcnt(0)
    ds_write_b32 v{G+1}, v{G+3} offset:48
    s_cmp_lt_u32 s34, 16
    s_cselect_b32 s52, s36, s38
    s_cselect_b32 s53, s37, s39
    s_cselect_b32 s54, {512*1024}, s54
    s_cselect_b32 s35, 8, 14
    s_cselect_b32 s67, 0, {32*1024}
    s_mov_b32 s55, 0x20000
    s_and_b32 s34, s34, 15
    s_mul_i32 s68, s24, s35
    s_lshl_b32 s69, s68, 14
    s_lshl_b32 s60, s34, 6
    s_add_u32 s69, s69, s60
    s_mul_i32 s60, s34, {88*1024}
    s_lshl_b32 s68, s68, 10
    s_add_u32 s60, s60, s68
    s_add_u32 s60, s60, s67
    s_add_u32 s60, s60, {W3F}
    v_lshrrev_b32 v2, 2, v1
    v_and_b32 v3, 3, v1
    v_lshlrev_b32 v3, 4, v3
    v_lshl_add_u32 v2, v2, 10, v3
    s_lshl_b32 s61, s24, 13
    s_add_u32 s61, s61, {LDS_STG}
    v_lshrrev_b32 v4, 5, v1
    v_lshlrev_b32 v3, 9, v4
    v_bfe_u32 v4, v1, 2, 2
    v_lshl_add_u32 v3, v4, 6, v3
    v_bfe_u32 v4, v1, 4, 1
    v_lshl_add_u32 v3, v4, 5, v3
    v_and_b32 v4, 1, v1
    v_lshl_add_u32 v3, v4, 4, v3
    v_bfe_u32 v4, v1, 1, 1
    v_lshl_add_u32 v3, v4, 3, v3
    v_add_u32 v3, s61, v3
    s_mov_b32 m0, s61
    s_mov_b32 s62, 0
    """)
    p.label("L_w3a")
    p("buffer_load_dwordx4 v2, s[52:55], s69 offen lds\ns_add_u32 s69, s69, 16384\ns_add_u32 s62, s62, 1\ns_waitcnt vmcnt(0)")
    p(f"ds_read_b64_tr_b16 v[8:9], v3\nds_read_b64_tr_b16 v[10:11], v3 offset:256\ns_waitcnt lgkmcnt(0)")
    p(f"buffer_store_dwordx4 v[8:11], v{VL}, s[12:15], s60 offen\ns_add_u32 s60, s60, 1024\ns_cmp_lt_u32 s62, s35\ns_cbranch_scc1 L_w3a")
    p("s_endpgm")

def gen_k2(with_gemm=True, with_att=True, stamp=False):
    p = Prog()
    entry_stamp(p, stamp)
    p(f"""
    s_cmp_ge_u32 s2, 256
    s_cbranch_scc1 L_end
    s_load_dwordx2 s[4:5], s[0:1], {KA_WS}
    s_load_dwordx4 s[8:11], s[0:1], {KA_WSP}
    v_and_b32 v1, 63, v0
    v_lshrrev_b32 v2, 6, v0
    v_readfirstlane_b32 s24, v2
    s_and_b32 s25, s2, 7
    s_lshr_b32 s26, s2, 3
    s_lshr_b32 s27, s26, 3
    s_lshl_b32 s28, s25, 2
    s_add_u32 s27, s27, s28                ; head
    s_and_b32 s28, s26, 7                  ; qb
    v_mov_b32 v2, 0
    v_lshlrev_b32 v3, 2, v1
    v_add_u32 v3, {LDS_FLAG}, v3
    ds_write_b32 v3, v2
    s_mov_b32 s50, s24
    s_waitcnt lgkmcnt(0)
    """)
    srd(p, 12, 4, WS_USED); srd(p, 16, 8, 2048*2048*2); srd(p, 20, 10, 4096)
    st0 = (Stamper(stamp and not SOLO, 50, 240, kid=1) if not SOLO else Stamper(stamp, 50, 240))
    st0(p, 0); entry_store(p, st0)
    p("s_cmp_ge_u32 s24, 4\ns_cbranch_scc1 L_gemm")
    if with_att: gen_attention(p, (Stamper(stamp and not SOLO, 50, 240, kid=1) if not SOLO else Stamper(stamp, 50, 240)))
    else: p("s_endpgm")
    p.label("L_gemm")
    if with_gemm: gen_gemm(p, (Stamper(stamp and not SOLO, 50, 240, kid=1) if not SOLO else Stamper(stamp, 50, 240)))
    p.label("L_end")
    p("s_endpgm")
    return p

def k2_paths(l):
    lab = {x.op: i for i, x in enumerate(l) if x.kind == "label"}
    g = lab["L_gemm"]
    att = l[:g]
    end_att = next(i for i, x in enumerate(att) if x.kind == "misc" and x.base == "s_endpgm")
    head_end = next(i for i, x in enumerate(l) if x.kind == "branch" and x.target == "L_gemm")
    return [linearize(att[:end_att+1], {"L_att_loop": 3}), linearize(l[:head_end] + l[g:], {"L_g_loop": 3})]

K2_DESC = dict(name="k2_kernel", vgpr=248, sgpr=102, accum=248, grid=256, block=512, lds=K2_LDS)
if __name__ == "__main__":
    p = gen_k2()
    l, errs = finalize("k2", p, paths=k2_paths, verbose=True)
```

```python
from common import *
SOLO = True
K3_LDS = 49152
ACC = 4
XR = 68
VL = 76; VO = 77; VT = 78
FR0 = 84
NVF = 43
def fr(n):
    return vr(FR0 + 4*n, 4) if n < NVF else ar(4*(n-NVF), 4)

def gen_k3(stamp=False, KS=22, nsplit=4):
    p = Prog()
    st = (Stamper(stamp, 24, VT, kid=0 if SOLO else 2))
    entry_stamp(p, stamp)
    p(f"""
    s_cmp_ge_u32 s2, 256
    s_cbranch_scc1 L_end
    s_load_dwordx2 s[4:5], s[0:1], {KA_WS}
    s_load_dwordx2 s[6:7], s[0:1], {KA_X}
    s_load_dwordx2 s[8:9], s[0:1], {KA_OUT}
    v_and_b32 v1, 63, v0
    v_lshrrev_b32 v2, 6, v0
    v_readfirstlane_b32 s24, v2
    v_lshlrev_b32 v{VL}, 4, v1
    s_and_b32 s25, s2, 7
    s_lshr_b32 s26, s2, 3
    s_lshr_b32 s27, s26, 3
    s_lshl_b32 s28, s25, 2
    s_add_u32 s27, s27, s28                ; tb
    s_and_b32 s28, s26, 7                  ; nb
    s_and_b32 s29, s24, 1
    s_lshr_b32 s30, s24, 1
    s_mul_i32 s31, s24, {KS*1024}          ; k offset
    s_lshl_b32 s32, s27, 1
    s_add_u32 s33, s32, s29
    s_xor_b32 s34, s33, 1
    s_lshl_b32 s32, s28, 1
    s_add_u32 s35, s32, s30
    s_xor_b32 s36, s35, 1
    s_mul_i32 s40, s33, {88*1024}
    s_mul_i32 s41, s34, {88*1024}
    s_mul_i32 s42, s35, {88*1024}
    s_mul_i32 s43, s36, {88*1024}
    s_add_u32 s32, s31, {A3}
    s_add_u32 s40, s40, s32
    s_add_u32 s41, s41, s32
    s_add_u32 s32, s31, {W3F}
    s_add_u32 s42, s42, s32
    s_add_u32 s43, s43, s32
    s_waitcnt lgkmcnt(0)
    """)
    srd(p, 12, 4, WS_USED); srd(p, 16, 6, 2048*1024); srd(p, 20, 8, 2048*1024)
    st(p, 0); entry_store(p, st)
    def loads(s):
        o = []
        if s and s % 4 == 0:
            o += [I(f"s_add_u32 s{40+i}, s{40+i}, 4096") for i in range(4)]
        for i in (0, 2, 1, 3):
            o.append(I(f"buffer_load_dwordx4 {fr(4*s+i)}, v{VL}, s[12:15], s{40+i} offen offset:{(s%4)*1024}", tag=f"f{s}_{i}"))
        return o
    PRE = 14
    for s in range(4): p.add(loads(s))
    p(f"v_and_b32 v2, 31, v1")
    bitswap23(p, 2, 2, 3)
    p(f"""
    v_lshrrev_b32 v3, 5, v1
    v_lshlrev_b32 v3, 4, v3
    v_lshl_add_u32 v{VO}, v2, 10, v3
    s_lshl_b32 s44, s33, 15
    s_lshl_b32 s45, s35, 6
    s_add_u32 s44, s44, s45
    """)
    p(f"buffer_load_dwordx4 {vr(XR,4)}, v{VO}, s[16:19], s44 offen", tag="x")
    p(f"buffer_load_dwordx4 {vr(XR+4,4)}, v{VO}, s[16:19], s44 offen offset:32", tag="x")
    for s in range(4, PRE): p.add(loads(s))
    for s in range(KS):
        p.wait(vm=[f"f{s}_0", f"f{s}_2"])
        for (a, b) in ((0,0), (0,1), (1,0), (1,1)):
            if (a, b) == (0, 1): p.wait(vm=f"f{s}_1")
            if (a, b) == (1, 0): p.wait(vm=f"f{s}_3")
            d = vr(ACC + (a*2+b)*16, 16)
            p.add([mfma32(d, fr(4*s+2+a), fr(4*s+b), "0" if s == 0 else d)])
        if s + PRE < KS: p.add(loads(s+PRE))
    st(p, 1)
    for i in range(1, 4):
        p(f"s_xor_b32 s46, s24, {i}\ns_mul_i32 s46, s46, 12288\ns_add_u32 s46, s46, {(i-1)*4096}\nv_add_u32 v{VT}, s46, v{VL}")
        for k in range(4): p(f"ds_write_b128 v{VT}, {vr(ACC+i*16+4*k,4)} offset:{k*1024}")
    p(f"s_mul_i32 s46, s24, 12288\nv_add_u32 v{VT}, s46, v{VL}\ns_waitcnt lgkmcnt(0)\ns_barrier")
    for k in range(12): p(f"ds_read_b128 {vr(ACC+16+4*k,4)}, v{VT} offset:{k*1024}", tag=f"r{k}")
    p.wait(vm="x")
    for d in range(8):
        p(f"v_lshlrev_b32 v{VT+1}, 16, v{XR+d}\nv_and_b32 v{VT+2}, 0xffff0000, v{XR+d}")
        p(f"v_add_f32 v{ACC+2*d}, v{ACC+2*d}, v{VT+1}\nv_add_f32 v{ACC+2*d+1}, v{ACC+2*d+1}, v{VT+2}")
    for k in range(12):
        p.wait(lg=f"r{k}")
        for e in range(4): p(f"v_add_f32 v{ACC+(4*k+e)%16}, v{ACC+(4*k+e)%16}, v{ACC+16+4*k+e}")
    for d in range(8): p(f"v_cvt_pk_bf16_f32 v{XR+d}, v{ACC+2*d}, v{ACC+2*d+1}")
    p(f"buffer_store_dwordx4 {vr(XR,4)}, v{VO}, s[20:23], s44 offen")
    p(f"buffer_store_dwordx4 {vr(XR+4,4)}, v{VO}, s[20:23], s44 offen offset:32")
    st(p, 2)
    p.label("L_end")
    p("s_endpgm")
    return p
K3_DESC = dict(name="k3_kernel", vgpr=256+4*(88-NVF), sgpr=102, accum=256, grid=256, block=256, lds=K3_LDS)
if __name__ == "__main__":
    import sys
    from build import build
    p = gen_k3(stamp=len(sys.argv)>1)
    l, errs = finalize("k3", p, verbose=False)
    build([dict(K3_DESC, l=l)], "out_k3.s")
```

```python
import sys
from build import build
from asmlib import finalize
import k1, k2, k3
stamp = 'st' in sys.argv
k2.SOLO = False; k3.SOLO = False
out = [a for a in sys.argv[1:] if a.endswith('.s')]
out = out[0] if out else "out_all.s"
l1, e1 = k1.finalize_k1(k1.gen_k1(stamp=stamp))
l2, e2 = finalize("k2", k2.gen_k2(stamp=stamp), paths=k2.k2_paths)
l3, e3 = finalize("k3", k3.gen_k3(stamp=stamp))
assert not (e1 or e2 or e3)
from asmlib import I
mod = [a[4:] for a in sys.argv if a.startswith('mod=')]
if mod:
    def addmod(l):
        out = []
        for x in l:
            if x.kind == 'vmem' and x.base == 'buffer_store_dwordx4' and 'sc1' not in x.text:
                x = I(x.text + ' ' + mod[0].replace('+', ' '))
            out.append(x)
        return out
    l1, l2, l3 = addmod(l1), addmod(l2), addmod(l3)
if 'nost1' in sys.argv:
    l1 = [x for x in l1 if not (x.kind == 'vmem' and x.base == 'buffer_store_dwordx4' and 's88' not in x.text)]
build([dict(k1.K1_DESC, l=l1), dict(k2.K2_DESC, l=l2), dict(k3.K3_DESC, l=l3)], out)
```

```python
import sys
from build import build
from asmlib import finalize
import k1, k2, k3
stamp = 'st' in sys.argv
k3.DBGOUT = next((int(a[4:]) for a in sys.argv if a.startswith('dbg=')), None)
k2.SOLO = False; k3.SOLO = False
out = [a for a in sys.argv[1:] if a.endswith('.s')]
out = out[0] if out else "out_all.s"
l1, e1 = k1.finalize_k1(k1.gen_k1(stamp=stamp))
l2, e2 = finalize("k2", k2.gen_k2(stamp=stamp), paths=k2.k2_paths)
l3, e3 = finalize("k3", k3.gen_k3(stamp=stamp))
assert not (e1 or e2 or e3)
from asmlib import I
mod = [a[4:] for a in sys.argv if a.startswith('mod=')]
if mod:
    def addmod(l):
        out = []
        for x in l:
            if x.kind == 'vmem' and x.base == 'buffer_store_dwordx4' and 'sc1' not in x.text:
                x = I(x.text + ' ' + mod[0].replace('+', ' '))
            out.append(x)
        return out
    l1, l2, l3 = addmod(l1), addmod(l2), addmod(l3)
if 'nost1' in sys.argv:
    l1 = [x for x in l1 if not (x.kind == 'vmem' and x.base == 'buffer_store_dwordx4' and 's88' not in x.text)]
if 'scr' in sys.argv:
    def scr(l):
        i = next(k for k, x in enumerate(l) if x.kind == 'branch')
        return l[:i+1] + [I("s_and_b32 s3, s2, 31"), I("s_lshl_b32 s3, s3, 3"), I("s_lshr_b32 s2, s2, 5"), I("s_or_b32 s2, s2, s3")] + l[i+1:]
    l1, l2, l3 = scr(l1), scr(l2), scr(l3)
build([dict(k1.K1_DESC, l=l1), dict(k2.K2_DESC, l=l2), dict(k3.K3_DESC, l=l3)], out)
```

```python
from common import *
SOLO = True
DBGOUT = None
K3_LDS = 49152
ACC = 4
XR = 68
VL = 76; VO = 77; VT = 78
FR0 = 84
NVF = 43
def fr(n):
    return vr(FR0 + 4*n, 4) if n < NVF else ar(4*(n-NVF), 4)

def gen_k3(stamp=False, KS=22, nsplit=4):
    p = Prog()
    st = (Stamper(stamp, 24, VT, kid=0 if SOLO else 2))
    entry_stamp(p, stamp)
    p(f"""
    s_cmp_ge_u32 s2, 256
    s_cbranch_scc1 L_end
    s_load_dwordx2 s[4:5], s[0:1], {KA_WS}
    s_load_dwordx2 s[6:7], s[0:1], {KA_X}
    s_load_dwordx2 s[8:9], s[0:1], {KA_OUT}
    v_and_b32 v1, 63, v0
    v_lshrrev_b32 v2, 6, v0
    v_readfirstlane_b32 s24, v2
    v_lshlrev_b32 v{VL}, 4, v1
    s_and_b32 s25, s2, 7
    s_lshr_b32 s26, s2, 3
    s_lshr_b32 s27, s26, 3
    s_lshl_b32 s28, s25, 2
    s_add_u32 s27, s27, s28                ; tb
    s_and_b32 s28, s26, 7                  ; nb
    s_and_b32 s29, s24, 1
    s_lshr_b32 s30, s24, 1
    s_mul_i32 s31, s24, {KS*1024}          ; k offset
    s_lshl_b32 s32, s27, 1
    s_add_u32 s33, s32, s29
    s_xor_b32 s34, s33, 1
    s_lshl_b32 s32, s28, 1
    s_add_u32 s35, s32, s30
    s_xor_b32 s36, s35, 1
    s_mul_i32 s40, s33, {88*1024}
    s_mul_i32 s41, s34, {88*1024}
    s_mul_i32 s42, s35, {88*1024}
    s_mul_i32 s43, s36, {88*1024}
    s_add_u32 s32, s31, {A3}
    s_add_u32 s40, s40, s32
    s_add_u32 s41, s41, s32
    s_add_u32 s32, s31, {W3F}
    s_add_u32 s42, s42, s32
    s_add_u32 s43, s43, s32
    s_waitcnt lgkmcnt(0)
    """)
    srd(p, 12, 4, WS_USED); srd(p, 16, 6, 2048*1024); srd(p, 20, 8, 2048*1024)
    st(p, 0); entry_store(p, st)
    def loads(s):
        o = []
        if s and s % 4 == 0:
            o += [I(f"s_add_u32 s{40+i}, s{40+i}, 4096") for i in range(4)]
        for i in (0, 2, 1, 3):
            o.append(I(f"buffer_load_dwordx4 {fr(4*s+i)}, v{VL}, s[12:15], s{40+i} offen offset:{(s%4)*1024}", tag=f"f{s}_{i}"))
        return o
    PRE = 14
    for s in range(4): p.add(loads(s))
    p(f"v_and_b32 v2, 31, v1")
    bitswap23(p, 2, 2, 3)
    p(f"""
    v_lshrrev_b32 v3, 5, v1
    v_lshlrev_b32 v3, 4, v3
    v_lshl_add_u32 v{VO}, v2, 10, v3
    s_lshl_b32 s44, s33, 15
    s_lshl_b32 s45, s35, 6
    s_add_u32 s44, s44, s45
    """)
    p(f"buffer_load_dwordx4 {vr(XR,4)}, v{VO}, s[16:19], s44 offen", tag="x")
    p(f"buffer_load_dwordx4 {vr(XR+4,4)}, v{VO}, s[16:19], s44 offen offset:32", tag="x")
    for s in range(4, PRE): p.add(loads(s))
    for s in range(KS):
        p.wait(vm=[f"f{s}_0", f"f{s}_2"])
        for (a, b) in ((0,0), (0,1), (1,0), (1,1)):
            if (a, b) == (0, 1): p.wait(vm=f"f{s}_1")
            if (a, b) == (1, 0): p.wait(vm=f"f{s}_3")
            d = vr(ACC + (a*2+b)*16, 16)
            p.add([mfma32(d, fr(4*s+2+a), fr(4*s+b), "0" if s == 0 else d)])
        if s + PRE < KS: p.add(loads(s+PRE))
    st(p, 1)
    for i in range(1, 4):
        p(f"s_xor_b32 s46, s24, {i}\ns_mul_i32 s46, s46, 12288\ns_add_u32 s46, s46, {(i-1)*4096}\nv_add_u32 v{VT}, s46, v{VL}")
        for k in range(4): p(f"ds_write_b128 v{VT}, {vr(ACC+i*16+4*k,4)} offset:{k*1024}")
    p(f"s_mul_i32 s46, s24, 12288\nv_add_u32 v{VT}, s46, v{VL}\ns_waitcnt lgkmcnt(0)\ns_barrier")
    for k in range(12): p(f"ds_read_b128 {vr(ACC+16+4*k,4)}, v{VT} offset:{k*1024}", tag=f"r{k}")
    p.wait(vm="x")
    for d in range(8):
        p(f"v_lshlrev_b32 v{VT+1}, 16, v{XR+d}\nv_and_b32 v{VT+2}, 0xffff0000, v{XR+d}")
        p(f"v_add_f32 v{ACC+2*d}, v{ACC+2*d}, v{VT+1}\nv_add_f32 v{ACC+2*d+1}, v{ACC+2*d+1}, v{VT+2}")
    for k in range(12):
        p.wait(lg=f"r{k}")
        for e in range(4): p(f"v_add_f32 v{ACC+(4*k+e)%16}, v{ACC+(4*k+e)%16}, v{ACC+16+4*k+e}")
    for d in range(8): p(f"v_cvt_pk_bf16_f32 v{XR+d}, v{ACC+2*d}, v{ACC+2*d+1}")
    p(f"buffer_store_dwordx4 {vr(XR,4)}, v{VO}, s[20:23], s44 offen")
    p(f"buffer_store_dwordx4 {vr(XR+4,4)}, v{VO}, s[20:23], s44 offen offset:32")
    st(p, 2)
    if stamp and DBGOUT is not None:
        p(f"s_cmp_lg_u32 s2, {DBGOUT}\ns_cbranch_scc1 L_end\ns_cmp_lg_u32 s24, 0\ns_cbranch_scc1 L_end")
        p(f"s_load_dwordx2 s[6:7], s[0:1], {KA_DBG}\ns_waitcnt vmcnt(0)")
        sel = [(0,0,15),(0,0,1),(0,0,2),(0,0,5),(0,0,7),(0,0,8),(0,0,9),(1,0,15),(1,0,1),(1,0,2),(1,0,3),(1,4,2),(1,4,3),(2,0,15),(2,0,1),(2,0,2)]
        for i, (k, w, sl) in enumerate(sel):
            off = STAMP + k*0x80000 + (DBGOUT*16 + w)*128 + sl*8 + 4
            p(f"v_mov_b32 v3, {off:#x}\nbuffer_load_dword v{100+i}, v3, s[12:15], 0 offen sc1")
        p("s_waitcnt vmcnt(0) lgkmcnt(0)")
        srd(p, 16, 6, 256)
        for i in range(16):
            p(f"v_sub_u32 v2, v{100+i}, v100\nbuffer_store_dword v2, off, s[16:19], 0 offset:{4*i}")
    p.label("L_end")
    p("s_endpgm")
    return p
K3_DESC = dict(name="k3_kernel", vgpr=256+4*(88-NVF), sgpr=102, accum=256, grid=256, block=256, lds=K3_LDS)
if __name__ == "__main__":
    import sys
    from build import build
    p = gen_k3(stamp=len(sys.argv)>1)
    l, errs = finalize("k3", p, verbose=False)
    build([dict(K3_DESC, l=l)], "out_k3.s")
```

```python
from common import *
import struct, math
def fh(f): return hex(struct.unpack("<I", struct.pack("<f", f))[0])
K1_LDS = 163840
RING = 65536
BIAS = 3072
CNT = 3072
C0 = -2.0*math.sqrt(2.0/math.pi)*1.4426950408889634
A0, A1, A2, A3_ = 4, 20, 36, 52
LA = 2
WB = 68
CSF = 92
CSA = 100
T = 68
WC = 92; STQ = 96
SEL = 108; XC = 112
R1, RI, C0R, C1R = 116, 117, 118, 119
VXD = 116
VXR = 112
VL, VPI, VQ, VB = 120, 121, 122, 123
VA = 124
RR = 52
SX, Q0, Q1 = 52, 56, 60
VAR = dict(prio=True, per=1, rot=True, cpf=40960)
WI, WQ, XS = "s[16:19]", "s[20:23]", "s[24:27]"
SXE, SIE, SQE = 60, 64, 96

def dma1(lds_s, lds_c, sr, vo, sb, se, c, tag):
    return [I(f"s_add_u32 m0, s{lds_s}, {lds_c}"), I(f"s_add_u32 s69, s{sb}, s{se}"),
            I(f"buffer_load_dwordx4 v{vo}, {sr}, s69 offen offset:{c} lds" if False else f"s_add_u32 s69, s69, {c}"),
            I(f"buffer_load_dwordx4 v{vo}, {sr}, s69 offen lds", tag=tag)]
def E_addr(ks): return RING + ((ks//8)*24 + (ks%8)*3)*1024
def Z_addr(ks): return RING + ks*2048
def Q_addr(ks):
    if ks < 16: return RING + 65536 + ks*2048
    r = ks-16; return (r//4)*16384 + 8192 + (r%4)*2048
def dma_E(e):
    b = RING + e*24*1024
    return [dma1(58, b, WI, VPI, 80, SIE+e, 1792, f"E{e}"), dma1(58, b+1024, WI, VPI, 80, SIE+e, 1792+8*3584, f"E{e}"),
            dma1(58, b+2048, WQ, VQ, 81, SQE+e, 2048, f"E{e}")]
def dma_Z(e):
    b = RING + e*16384
    return [dma1(55, b, WI, VPI, 80, SIE+e, 0, f"Z{e}"), dma1(55, b+1024, WI, VPI, 80, SIE+e, 8*3584, f"Z{e}")]
def dma_Q(e):
    ls, b = (55, RING + 65536 + e*16384) if e < 2 else (54, (e-2)*32768 + 8192)
    return [dma1(ls, b, WQ, VQ, 82, SQE+e, 0, "Q"), dma1(ls, b+1024, WQ, VQ, 82, SQE+e, 8*3072, "Q")]
def x_dma(e):
    return [[I(f"s_add_u32 m0, s59, {(2*e % 4)*4096 + i*1024}"), I(f"s_add_u32 s69, s56, s{SXE+e}"),
             I(f"buffer_load_dwordx4 v{VXD+i}, {XS}, s69 offen lds", tag=f"X{e}")] for i in range(4)]
def flat(x): return sum(x, [])
def x_read(ks):
    return [I(f"ds_read_b128 {ar(4*ks,4)}, v{VXR+ks%4} offset:{((ks//4)%4)*4096}", tag=f"xr{ks}")]
class Addr:
    def __init__(self, base): self.base = base
    def off(self, addr, out, span=2048+1024+6*1024*2):
        if not (0 <= addr - self.base and addr - self.base + 1024 <= 65535):
            nb = addr if addr < self.base else addr
            d = (nb - self.base) & 0xffffffff
            out += [I(f"v_add_u32 v{VA+k}, {d:#x}, v{VA+k}") for k in range(4)]
            self.base = nb
        return addr - self.base
def tr_read(dst, areg, off, e2, tag):
    return [I(f"ds_read_b64_tr_b16 {vr(dst+2*e,2)}, v{areg} offset:{off+e2*e}", tag=tag) for e in range(2)]
def m16(d, b, first): return I(f"v_mfma_f32_16x16x32_bf16 {vr(d,4)}, {vr(SEL,4)}, {b}, {'0' if first else vr(d,4)}")
def stats_mfma(ks):
    x = 4*ks; z = ks == 0
    return [m16(SX, ar(x,4), z),
            I(f"v_mfma_f32_4x4x4_16b_bf16 {vr(Q0,4)}, {ar(x,2)}, {ar(x,2)}, {'0' if z else vr(Q0,4)}"),
            I(f"v_mfma_f32_4x4x4_16b_bf16 {vr(Q1,4)}, {ar(x+2,2)}, {ar(x+2,2)}, {'0' if z else vr(Q1,4)}")]
def wb(ks, ti): return WB + ((ks % (LA+1))*2 + ti)*4
def stl(st, k):
    q = Prog(); st(q, k); return q.l

def gemm_pass(accs, addr_of, base0, nori, tagp, e2, hooks=None, cs_tiles=None, stats=False):
    nt = len(accs)
    am = Addr(base0)
    def rd(ks, dst, regs, tag):
        o = []
        off = am.off(addr_of(ks), o)
        for ti in range(nt): o += tr_read(dst(ti), regs+ti, off, e2, tag)
        return o
    o = []
    for ks in range(LA): o += rd(ks, lambda ti: wb(ks,ti), VA, f"{tagp}{ks}")
    for ks in range(32):
        pre = W(lg=[f"{tagp}{ks}", f"xr{ks}"])
        mf = []
        for ti in range(nt):
            w = vr(wb(ks,ti),4); x = ar(4*ks,4); d = vr(accs[ti],16)
            mf.append(mfma32(d, x, w, "0" if ks == 0 else d) if nori else mfma32(d, w, x, "0" if ks == 0 else d))
        h0, h1, h2 = hooks(ks) if hooks else ([], [], [])
        post = list(h0)
        tail = []
        if ks % 4 == 0 and cs_tiles:
            post += rd(ks, lambda ti: CSF+4*ti, VA+2, f"c{tagp}{ks}")
        if ks+LA < 32: post += rd(ks+LA, lambda ti: wb(ks+LA,ti), VA, f"{tagp}{ks+LA}")
        post += h1
        if ks % 4 == 1 and cs_tiles:
            pre.lg.append(f"c{tagp}{ks-1}")
            for ti in range(nt): tail.append(m16(CSA+4*ti, vr(CSF+4*ti,4), ks == 1))
        if ks == 30 and cs_tiles:
            tail.append(I(f"v_lshl_add_u32 v3, v1, 2, s57"))
            for ti in range(nt): tail.append(I(f"ds_write_b32 v3, v{CSA+4*ti} offset:{cs_tiles[ti]*256}"))
        if stats: tail += stats_mfma(ks)
        tail += h2
        o += [pre] + mf[:1] + post + mf[1:] + tail
    return o

def phase1_hooks(st):
    sched = {}
    def spread(pcs, first, per):
        pcs = list(pcs); k = first
        while pcs:
            for _ in range(per):
                if pcs: sched.setdefault(k, []).append(pcs.pop(0))
            k += 1
    spread(dma_E(2) + dma_E(3), 0, 1)
    spread(x_dma(2) + dma_Z(0), 8-LA, VAR['per'])
    spread(x_dma(3) + dma_Z(1) + dma_Z(2), 16-LA, VAR['per'])
    spread(dma_Z(3), 24-LA, VAR['per'])
    def hooks(ks):
        e, r8 = divmod(ks, 8)
        h0 = []; h1 = []
        if r8 == 8-LA and e < 3:
            h0 = [W(vm=[f"X{e+1}", f"E{e+1}"], lg0=True), I("s_barrier")] + stl(st, 2+e)
        if r8 >= 8-LA and e < 3:
            k0 = 8*(e+1) + 2*(r8-(8-LA)); h1 += x_read(k0) + x_read(k0+1)
        if r8 < 4: h1 += x_read(8*e+4+r8)
        return h0, h1, flat(sched.get(ks, []))
    return hooks

def set_va(p, pair, base, mstride):
    sh = 7 if pair else 6
    p(f"""
    v_lshrrev_b32 v2, 5, v1
    v_lshlrev_b32 v{VA}, {sh+3}, v2
    v_bfe_u32 v3, v1, 2, 2
    v_lshl_add_u32 v{VA}, v3, {sh}, v{VA}
    v_bfe_u32 v3, v1, 4, 1
    v_lshl_add_u32 v{VA}, v3, 5, v{VA}
    v_and_b32 v3, 1, v1
    v_lshl_add_u32 v{VA}, v3, 4, v{VA}
    v_bfe_u32 v3, v1, 1, 1
    v_lshl_add_u32 v{VA}, v3, 3, v{VA}
    """)
    if pair: p(f"v_bfe_u32 v3, v1, 3, 1\nv_lshl_add_u32 v{VA}, v3, 6, v{VA}")
    p(f"""
    v_add_u32 v{VA}, {base}, v{VA}
    s_mul_i32 s34, s29, {mstride}
    v_xor_b32 v{VA+1}, 64, v{VA}
    v_add_u32 v{VA+2}, s34, v{VA}
    v_add_u32 v{VA+3}, s34, v{VA+1}
    """)

def corr_from(b, d, nori):
    o = [I(f"v_sub_f32 v{b}, 0, v{b}"),
         I(f"v_cvt_pk_bf16_f32 v{WC+1}, v{b}, 0"),
         I(f"v_lshlrev_b32 v{b+1}, 16, v{WC+1}"),
         I(f"v_sub_f32 v{b+1}, v{b}, v{b+1}"),
         I(f"v_cvt_pk_bf16_f32 v{WC}, v{b}, v{b+1}")]
    a_, b_ = (vr(XC,4), vr(WC,4)) if nori else (vr(WC,4), vr(XC,4))
    o.append(mfma32(vr(d,16), a_, b_, vr(d,16)))
    return o
def cs_reads(tiles, tag):
    o = [I(f"v_lshlrev_b32 v2, 2, v1")]
    for k, tl in enumerate(tiles):
        for w in range(4): o.append(I(f"ds_read_b32 v{T+4*k+w}, v2 offset:{w*16384 + tl*256}", tag=tag))
    return o
def cs_corr(accs, nori, tag):
    o = [I(f"v_mov_b32 v{WC+2}, 0"), I(f"v_mov_b32 v{WC+3}, 0"), W(lg=tag)]
    for k, d in enumerate(accs):
        b = T+4*k
        o += [I(f"v_add_f32 v{b}, v{b}, v{b+1}"), I(f"v_add_f32 v{b+2}, v{b+2}, v{b+3}"), I(f"v_add_f32 v{b}, v{b}, v{b+2}")]
        o += corr_from(b, d, nori)
    return o

def ln1_final(g, S, Q):
    o = Prog()
    o(f"""
    v_mul_f32 v{S}, {fh(1/512)}, v{S}
    v_cndmask_b32 v{S+1}, v{S}, 0, s[74:75]
    v_mul_f32 v{S+2}, v{S}, v{S}
    v_cvt_pk_bf16_f32 v{XC}, v{S+1}, v{S+1}
    v_fma_f32 v{Q}, v{Q}, s76, -v{S+2}
    v_and_b32 v{S+3}, 0xffff0000, v{XC}
    v_max_f32 v{Q}, 0, v{Q}
    v_sub_f32 v{S+3}, v{S+1}, v{S+3}
    v_add_f32 v{Q}, {fh(1e-5)}, v{Q}
    v_cvt_pk_bf16_f32 v{XC+1}, v{S+3}, 0
    v_rsq_f32 v{R1}, v{Q}
    v_mov_b32 v{XC+2}, 0
    v_mov_b32 v{XC+3}, 0
    """)
    rr = RR if g == 0 else A1
    tb = 4096 + 512*g
    o(f"""
    v_lshl_add_u32 v3, v{VB}, 2, s57
    ds_write_b32 v3, v{R1} offset:{tb}
    v_lshrrev_b32 v3, 5, v1
    v_lshl_add_u32 v3, v3, 5, s57
    s_waitcnt lgkmcnt(0)
    """)
    for k in range(4): o(f"ds_read_b128 {vr(rr+4*k,4)}, v3 offset:{tb + (k//2)*64 + (k%2)*16}", tag="rr")
    if g == 0:
        o(f"v_mov_b32 v{C0R}, {fh(C0)}")
    else:
        o(f"""
        v_sqrt_f32 v{RI}, v{Q}
        v_mul_f32 v{C0R}, {fh(C0)}, v{R1}
        v_mul_f32 v{C1R}, v{R1}, v{R1}
        v_mul_f32 v{C1R}, v{C1R}, v{C0R}
        v_mul_f32 v{C1R}, {fh(0.044715)}, v{C1R}
        """)
    return o.l

def gelu_T(a, P0):
    o = []
    for g in range(0, 16, 4):
        rs = range(g, g+4); tt = lambda r: T + (r % 4)
        o += [I(f"v_mul_f32 v{tt(r)}, v{a+r}, v{a+r}") for r in rs]
        o += [I(f"v_fma_f32 v{tt(r)}, v{tt(r)}, v{C1R}, v{C0R}") for r in rs]
        o += [I(f"v_mul_f32 v{tt(r)}, v{tt(r)}, v{a+r}") for r in rs]
        o += [I(f"v_exp_f32 v{tt(r)}, v{tt(r)}") for r in rs]
        o += [I(f"v_fma_f32 v{tt(r)}, v{tt(r)}, v{RI}, v{RI}") for r in rs]
        o += [I(f"v_rcp_f32 v{tt(r)}, v{tt(r)}") for r in rs]
        o += [I(f"v_mul_f32 v{a+r}, v{a+r}, v{tt(r)}") for r in rs]
        o += [I(f"v_cvt_pk_bf16_f32 v{P0+r//2}, v{a+r}, v{a+r+1}") for r in (g, g+2)]
    return o
def gelu_N(a):
    o = []
    for g in range(0, 16, 4):
        rs = range(g, g+4); tt = lambda r: T + (r % 4)
        o += [I(f"v_mul_f32 v{a+r}, v{a+r}, v{RR+r}") for r in rs]
        o += [I(f"v_mul_f32 v{tt(r)}, v{a+r}, v{a+r}") for r in rs]
        o += [I(f"v_fma_f32 v{tt(r)}, v{tt(r)}, s77, v{C0R}") for r in rs]
        o += [I(f"v_mul_f32 v{tt(r)}, v{tt(r)}, v{a+r}") for r in rs]
        o += [I(f"v_exp_f32 v{tt(r)}, v{tt(r)}") for r in rs]
        o += [I(f"v_add_f32 v{tt(r)}, 1.0, v{tt(r)}") for r in rs]
        o += [I(f"v_rcp_f32 v{tt(r)}, v{tt(r)}") for r in rs]
        o += [I(f"v_mul_f32 v{a+r}, v{a+r}, v{tt(r)}") for r in rs]
    return o

def z2_stats():
    o = []
    a0, a1 = A0, A1
    for hf in range(2):
        S1 = lambda r: T + 4 + r
        S2 = lambda r: T + 12 + r
        for r in range(8):
            R = hf*8 + r
            o.append(I(f"v_mul_f32 v{S2(r)}, v{a0+R}, v{a0+R}"))
            o.append(I(f"v_add_f32 v{S1(r)}, v{a0+R}, v{a1+R}"))
        for r in range(8): o.append(I(f"v_fmac_f32 v{S2(r)}, v{a1+hf*8+r}, v{a1+hf*8+r}"))
        for S in (S1, S2):
            for r in range(4): o.append(I(f"v_permlane16_swap_b32 v{S(r)}, v{S(r+4)}"))
        for S in (S1, S2):
            for r in range(4): o.append(I(f"v_add_f32 v{S(r)}, v{S(r)}, v{S(r+4)}"))
        for S in (S1, S2):
            for r in range(2): o.append(I(f"v_add_f32_dpp v{S(r+4)}, v{S(r)}, v{S(r)} row_ror:8 row_mask:0xf bank_mask:0x3"))
        for S in (S1, S2):
            for r in range(2): o.append(I(f"v_add_f32_dpp v{S(r+4)}, v{S(r+2)}, v{S(r+2)} row_ror:8 row_mask:0xf bank_mask:0xc"))
        for S in (S1, S2): o.append(I(f"v_add_f32_dpp v{S(0)}, v{S(4)}, v{S(4)} row_half_mirror row_mask:0xf bank_mask:0x5"))
        for S in (S1, S2): o.append(I(f"v_add_f32_dpp v{S(0)}, v{S(5)}, v{S(5)} row_half_mirror row_mask:0xf bank_mask:0xa"))
        for S in (S1, S2): o.append(I(f"v_add_f32_dpp v{S(0)}, v{S(0)}, v{S(0)} quad_perm:[1,0,3,2] row_mask:0xf bank_mask:0xf"))
        for k, S in enumerate((S1, S2)): o.append(I(f"v_add_f32_dpp v{STQ+2*hf+k}, v{S(0)}, v{S(0)} quad_perm:[2,3,0,1] row_mask:0xf bank_mask:0xf"))
    return o

def prio(p, n):
    if VAR['prio']: p(f"s_setprio {n}")

def gen_k1(stamp=False):
    p = Prog()
    st = Stamper(stamp, 28, 0)
    entry_stamp(p, stamp)
    p(f"""
    s_cmp_ge_u32 s2, 256
    s_cbranch_scc1 L_end
    s_load_dwordx4 s[4:7], s[0:1], {KA_X}
    s_load_dwordx2 s[8:9], s[0:1], {KA_WIN}
    s_load_dwordx2 s[50:51], s[0:1], {KA_WS}
    v_and_b32 v1, 63, v0
    v_lshrrev_b32 v2, 6, v0
    v_readfirstlane_b32 s28, v2                 ; wave 0..7
    s_and_b32 s29, s2, 7
    s_lshr_b32 s30, s2, 3
    s_and_b32 s31, s29, 1
    s_lshl_b32 s31, s31, 3
    s_and_b32 s32, s30, 7
    s_add_u32 s31, s31, s32                     ; rb
    s_lshr_b32 s32, s29, 1
    s_lshl_b32 s32, s32, 2
    s_lshr_b32 s33, s30, 3
    s_add_u32 s32, s32, s33                     ; cg
    v_lshrrev_b32 v2, 3, v1
    v_lshrrev_b32 v3, 4, v1
    v_xor_b32 v{VXD}, v3, v1
    v_and_b32 v{VXD}, 7, v{VXD}
    v_lshlrev_b32 v{VXD}, 4, v{VXD}
    v_lshl_add_u32 v{VXD}, v2, 10, v{VXD}
    v_and_b32 v3, 1, v3
    v_lshlrev_b32 v3, 2, v3
    v_xor_b32 v3, v3, v1
    v_and_b32 v3, 7, v3
    v_lshlrev_b32 v{VB}, 4, v3
    v_mul_u32_u24 v{VPI}, 3584, v2
    v_add_u32 v{VPI}, v{VPI}, v{VB}
    v_lshrrev_b32 v2, 2, v1
    v_and_b32 v3, 3, v1
    v_lshlrev_b32 v3, 4, v3
    v_mul_u32_u24 v{VQ}, 3072, v2
    v_add_u32 v{VQ}, v{VQ}, v3
    s_and_b32 s29, s28, 3                       ; m tile
    s_lshr_b32 s30, s28, 2                      ; group
    s_lshl_b32 s33, s31, 2
    s_add_u32 s33, s33, s29                     ; tt
    s_lshl_b32 s56, s33, 15
    s_lshl_b32 s34, s30, 7
    s_add_u32 s56, s56, s34
    s_lshl_b32 s57, s29, 14
    s_lshl_b32 s34, s30, 12
    s_add_u32 s59, s57, s34
    s_mul_i32 s58, s28, 3072
    s_lshl_b32 s55, s28, 11
    s_lshl_b32 s54, s30, 14
    s_lshl_b32 s34, s29, 11
    s_add_u32 s54, s54, s34
    v_xor_b32 v{VXD+1}, 64, v{VXD}
    v_add_u32 v{VXD+2}, 16384, v{VXD}
    v_add_u32 v{VXD+1}, 8192, v{VXD+1}
    v_add_u32 v{VXD+3}, 16384, v{VXD+1}
    s_mul_i32 s80, s28, {16*3584}
    s_lshl_b32 s35, s32, 7
    s_add_u32 s80, s80, s35
    s_mul_i32 s81, s28, {16*3072}
    s_lshl_b32 s35, s32, 6
    s_and_b32 s34, s32, 1
    s_mul_i32 s34, s34, {1024-64}
    s_add_u32 s82, s81, s34
    s_add_u32 s81, s81, s35
    s_add_u32 s82, s82, s35
    {"s_add_u32 s35, s31, s32" if VAR['rot'] else "s_mov_b32 s35, 0"}
    """)
    for e in range(4):
        p(f"s_add_u32 s34, s35, {e}\ns_and_b32 s34, s34, 3\ns_lshl_b32 s{SXE+e}, s34, 8\ns_mul_i32 s{SIE+e}, s34, {128*3584}\ns_mul_i32 s{SQE+e}, s34, {128*3072}")
    p(f"""
    s_cmp_lt_u32 s32, 14
    s_cselect_b32 s18, {512*3584}, 0
    s_cselect_b32 s42, {WS_USED}, 0
    s_mov_b32 s19, 0x20000
    s_mov_b32 s43, 0x20000
    s_waitcnt lgkmcnt(0)
    s_mov_b32 s16, s8
    s_mov_b32 s17, s9
    """)
    srd(p, 24, 4, 2048*1024); srd(p, 20, 6, 512*3072)
    p.add(flat(x_dma(0))); p.add(flat(dma_E(0)))
    srd(p, 12, 50, WS_USED)
    p("s_mov_b32 s40, s50\ns_mov_b32 s41, s51")
    st(p, 0); entry_store(p, st)
    p(f"v_and_b32 v{VB}, 31, v1")
    bitswap23(p, VB, VB, 3)
    p(f"""
    v_lshrrev_b32 v3, 1, v{VB}
    v_lshrrev_b32 v2, 5, v1
    v_xor_b32 v3, v3, v2
    v_and_b32 v3, 7, v3
    v_lshlrev_b32 v3, 4, v3
    v_lshl_add_u32 v{VXR}, v{VB}, 7, v3
    v_add_u32 v{VXR}, s57, v{VXR}
    v_xor_b32 v{VXR+1}, 32, v{VXR}
    v_xor_b32 v{VXR+2}, 64, v{VXR}
    v_xor_b32 v{VXR+3}, 96, v{VXR}
    """)
    if VAR.get('b00', False): p("s_barrier")
    p.add(flat(x_dma(1))); p.add(flat(dma_E(1)))
    if VAR.get('cpf'): code_prefetch(p, 28, 3, "a127", 36, "L_cpf")
    p(f"s_lshl_b32 s79, s31, 7\ns_add_u32 s79, s79, {FLG}")
    p(f"buffer_load_dword v0, off, s[12:15], s79 sc1", tag="old")
    p(f"""
    v_lshlrev_b32 v{VL}, 4, v1
    v_and_b32 v3, 3, v1
    v_cmp_eq_u32 vcc, 0, v3
    v_lshrrev_b32 v3, 2, v1
    v_lshrrev_b32 v2, 4, v1
    v_xor_b32 v3, v3, v2
    v_and_b32 v3, 1, v3
    v_cmp_eq_u32 s[34:35], 0, v3
    s_and_b64 vcc, vcc, s[34:35]
    v_mov_b32 v3, 0x3f803f80
    v_cndmask_b32 v{SEL}, 0, v3, vcc
    v_mov_b32 v{SEL+1}, v{SEL}
    v_mov_b32 v{SEL+2}, v{SEL}
    v_mov_b32 v{SEL+3}, v{SEL}
    v_cmp_lt_u32 s[74:75], 31, v1
    s_mov_b32 s76, {fh(1/512)}
    s_cmp_eq_u32 s30, 1
    s_cbranch_scc1 L_g1
    """)
    def start(p):
        if VAR.get('fine'):
            st(p, 10); p.wait(vm="X0"); st(p, 11); p.wait(vm="E0"); st(p, 12)
        p.wait(vm=["X0", "E0"]); p("s_barrier"); st(p, 1)
        for ks in range(4): p.add(x_read(ks))
    def qdma(p):
        p(f"""
        v_lshrrev_b32 v2, 3, v1
        v_mul_u32_u24 v{VQ}, 512, v2
        v_sub_u32 v{VQ}, v{VPI}, v{VQ}
        """)
        for e in range(4): p.add(flat(dma_Q(e)))
    set_va(p, True, RING, 3072)
    p(f"""
    s_mov_b32 s77, {fh(C0*0.044715)}
    s_lshr_b32 s34, s32, 1
    s_lshl_b32 s83, s34, 19
    s_lshl_b32 s35, s33, 13
    s_add_u32 s83, s83, s35
    s_and_b32 s35, s32, 1
    s_lshl_b32 s35, s35, 11
    s_add_u32 s83, s83, s35
    s_add_u32 s83, s83, {Z2F}
    s_add_u32 s84, s83, 4096
    s_lshl_b32 s87, s33, 13
    s_add_u32 s87, s87, {STAT}
    s_lshl_b32 s35, s32, 9
    s_add_u32 s88, s87, s35
    s_lshl_b32 s85, s34, 18
    s_lshl_b32 s35, s33, 10
    s_add_u32 s85, s85, s35
    s_mul_i32 s86, s34, {4*KVH}
    s_mul_i32 s35, s33, {KVT}
    s_add_u32 s86, s86, s35
    s_add_u32 s86, s86, {KV}
    s_bitcmp1_b32 s32, 0
    s_cselect_b32 s85, s86, s85
    s_mov_b32 s86, {KVH}
    s_cselect_b32 s86, s86, 0x10000
    s_mov_b32 s78, {fh(0.25*1.4426950408889634)}
    s_cselect_b32 s78, 1.0, s78                  ; scale
    """)
    prio(p, 1)
    start(p)
    p.add(gemm_pass([A0, A1], E_addr, RING, True, "w", 512, hooks=phase1_hooks(st), cs_tiles=[0, 1]))
    p.wait(vm=["Z0","Z1","Z2","Z3"], lg0=True)
    p("s_barrier")
    st(p, 5)
    prio(p, 0)
    p(f"v_lshl_add_u32 v3, v1, 2, s57")
    p(f"ds_read_b32 v{T+16}, v3 offset:2048", tag="raw"); p(f"ds_read_b32 v{T+20}, v3 offset:2304", tag="raw")
    p.add(cs_reads([0, 1], "cs0"))
    qdma(p)
    p.wait(lg="raw")
    p.add(ln1_final(0, T+16, T+20))
    p.add(cs_corr([A0, A1], True, "cs0"))
    p.wait(lg="rr")
    p.add(gelu_N(A0)); p.add(gelu_N(A1)); p.add(z2_stats())
    p(f"""
    v_and_b32 v3, 1, v1
    v_cmp_eq_u32 vcc, 1, v3
    v_bfe_u32 v2, v1, 2, 1
    v_lshl_add_u32 v2, v3, 4, v2
    v_bfe_u32 v3, v1, 3, 1
    v_lshl_add_u32 v2, v3, 1, v2
    v_bfe_u32 v3, v1, 4, 2
    v_lshl_add_u32 v2, v3, 2, v2                ; row = 16*(l&1) + 8h + 4b4 + 2b3 + b2
    v_lshlrev_b32 v2, 4, v2
    v_add_u32 v0, 1, v0
    v_cndmask_b32 v{STQ}, v{STQ}, v{STQ+2}, vcc
    v_cndmask_b32 v{STQ+2}, v{STQ+1}, v{STQ+3}, vcc
    v_mov_b32 v{STQ+1}, v0
    v_mov_b32 v{STQ+3}, v0
    buffer_store_dwordx4 {vr(STQ,4)}, v2, s[40:43], s88 offen sc1
    """)
    set_va(p, True, RING+65536, 2048)
    st(p, 6)
    p.wait(vm=["Q"], lg0=True)
    p("s_barrier")
    prio(p, 1)
    st(p, 7)
    PS = VAR.get('pstep', 24)
    def part_loads():
        o = [I("v_and_b32 v2, 31, v1"), I("v_lshlrev_b32 v2, 4, v2"), I("v_lshrrev_b32 v3, 5, v1"), I("v_mul_u32_u24 v3, 3584, v3"), I("v_add_u32 v2, v2, v3")]
        for k in range(7):
            o.append(I(f"buffer_load_dwordx4 {ar(4*k,4)}, v2, s[40:43], s87 offen offset:{k*512} sc1", tag="part"))
        return o
    pl = part_loads()
    def qhooks(ks):
        if ks == PS: return [], [], pl[:8]
        if ks == PS+1: return [], [], pl[8:10]
        if ks == PS+2: return [], [], pl[10:]
        return [], [], []
    p.add(gemm_pass([A2, A3_], Q_addr, RING+65536, False, "q", 512, hooks=qhooks, cs_tiles=None if VAR.get('csq', False) else [5, 6]))
    p("s_waitcnt lgkmcnt(0)\ns_barrier")
    st(p, 8)
    p.add(cs_reads([5, 6], "cs3"))
    p.add(cs_corr([A2, A3_], False, "cs3"))
    p(f"v_mul_f32 v{R1}, s78, v{R1}")
    for a in (A2, A3_):
        for r in range(16): p(f"v_mul_f32 v{a+r}, v{a+r}, v{R1}")
        for d in range(8): p(f"v_cvt_pk_bf16_f32 v{a+d}, v{a+2*d}, v{a+2*d+1}")
        p(f"buffer_store_dwordx4 {vr(a,4)}, v{VL}, s[12:15], s85 offen\ns_add_u32 s85, s85, s86")
        p(f"buffer_store_dwordx4 {vr(a+4,4)}, v{VL}, s[12:15], s85 offen\ns_add_u32 s85, s85, s86")
    p("s_cmp_ge_u32 s32, 14\ns_cbranch_scc1 L_end")
    p(f"s_mov_b32 s34, 0\ns_mov_b32 s35, {fh(1/896)}")
    p.wait(vm="part")
    p.label("L_chk")
    b = T+8
    p(f"v_accvgpr_read_b32 v{b}, a0\nv_accvgpr_read_b32 v{b+1}, a2\nv_accvgpr_read_b32 v{b+2}, a1\nv_accvgpr_read_b32 v{b+3}, a3")
    p(f"v_xor_b32 v{b+2}, v{b+2}, v0\nv_xor_b32 v{b+3}, v{b+3}, v0\nv_or_b32 v{b+2}, v{b+2}, v{b+3}")
    for k in range(1, 7):
        for e in range(4): p(f"v_accvgpr_read_b32 v{b+4+e}, a{4*k+e}")
        p(f"v_add_f32 v{b}, v{b}, v{b+4}\nv_add_f32 v{b+1}, v{b+1}, v{b+6}")
        p(f"v_xor_b32 v{b+5}, v{b+5}, v0\nv_xor_b32 v{b+7}, v{b+7}, v0\nv_or3_b32 v{b+2}, v{b+2}, v{b+5}, v{b+7}")
    p(f"v_cmp_ne_u32 vcc, 0, v{b+2}\ns_cbranch_vccnz L_retry")
    p.label("L_chk_ok")
    p(f"""
    v_mov_b32 v{b+2}, v{b}
    v_mov_b32 v{b+3}, v{b+1}
    v_and_b32 v2, 31, v1
    v_permlane32_swap_b32 v{b}, v{b+2}
    v_permlane32_swap_b32 v{b+1}, v{b+3}
    v_lshl_add_u32 v2, v2, 2, s57
    v_add_f32 v{b}, v{b}, v{b+2}
    v_add_f32 v{b+1}, v{b+1}, v{b+3}
    v_mul_f32 v{b}, s35, v{b}
    v_mul_f32 v{b+2}, v{b}, v{b}
    v_fma_f32 v{b+1}, v{b+1}, s35, -v{b+2}
    v_max_f32 v{b+1}, 0, v{b+1}
    v_add_f32 v{b+1}, {fh(1e-5)}, v{b+1}
    v_rsq_f32 v{b+1}, v{b+1}
    v_lshrrev_b32 v3, 5, v1
    v_lshl_add_u32 v3, v3, 5, s57
    v_mul_f32_e64 v{b}, -v{b}, v{b+1}
    ds_write_b32 v2, v{b+1} offset:4096
    ds_write_b32 v2, v{b} offset:4224
    s_or_b32 s34, s32, s28
    s_cmp_eq_u32 s34, 0
    s_cselect_b32 s79, s79, 0x7fffff00
    s_waitcnt lgkmcnt(0)
    """)
    R2 = A2+8; NM = T+8
    R2 = CSF
    for k in range(4): p(f"ds_read_b128 {vr(R2+4*k,4)}, v3 offset:{4096 + (k//2)*64 + (k%2)*16}", tag="r2")
    for k in range(4): p(f"ds_read_b128 {vr(NM+4*k,4)}, v3 offset:{4096 + 128 + (k//2)*64 + (k%2)*16}", tag="r2")
    p.wait(lg="r2")
    for t in range(2):
        a = A0 + 16*t
        for r in range(16): p(f"v_fma_f32 v{a+r}, v{a+r}, v{R2+r}, v{NM+r}")
        for d in range(8): p(f"v_cvt_pk_bf16_f32 v{a+d}, v{a+2*d}, v{a+2*d+1}")
        p(f"buffer_store_dwordx4 {vr(a,4)}, v{VL}, s[12:15], s83 offen offset:{t*1024}")
        p(f"buffer_store_dwordx4 {vr(a+4,4)}, v{VL}, s[12:15], s84 offen offset:{t*1024}")
    p("buffer_store_dword v0, off, s[12:15], s79 sc1")
    st(p, 9)
    p("s_endpgm")
    p.label("L_retry")
    p("s_add_u32 s34, s34, 1\ns_cmp_gt_u32 s34, 0x40000\ns_cbranch_scc1 L_chk_ok")
    p.add(part_loads())
    p("s_waitcnt vmcnt(0)\ns_branch L_chk")
    p.label("L_g1")
    set_va(p, False, RING+2048, 3072)
    p(f"""
    v_and_b32 v3, 1, v1
    v_cmp_eq_u32 s[70:71], 1, v3
    v_and_b32 v3, 2, v1
    v_cmp_eq_u32 s[72:73], 2, v3
    s_mul_i32 s83, s33, {56*1024}
    s_lshl_b32 s34, s32, 12
    s_add_u32 s83, s83, s34
    s_add_u32 s83, s83, {Z1F}
    s_mul_i32 s85, s32, {2*KVH}
    s_mul_i32 s34, s33, {KVT}
    s_add_u32 s85, s85, s34
    s_add_u32 s85, s85, {KV}
    """)
    prio(p, 1)
    start(p)
    p.add(gemm_pass([A0], lambda ks: E_addr(ks)+2048, RING+2048, True, "w", 256, hooks=phase1_hooks(st), cs_tiles=[2], stats=True))
    p(f"""
    v_add_f32 v{Q0}, v{Q0}, v{Q1}
    v_add_f32 v{Q0+1}, v{Q0+1}, v{Q1+1}
    v_add_f32 v{Q0+2}, v{Q0+2}, v{Q1+2}
    v_add_f32 v{Q0+3}, v{Q0+3}, v{Q1+3}
    v_cndmask_b32 v{Q0}, v{Q0}, v{Q0+1}, s[70:71]
    v_cndmask_b32 v{Q0+2}, v{Q0+2}, v{Q0+3}, s[70:71]
    ds_write_b32 v3, v{SX} offset:2048
    v_cndmask_b32 v{Q0}, v{Q0}, v{Q0+2}, s[72:73]
    v_mov_b32 v{Q1}, v{Q0}
    v_permlane32_swap_b32 v{Q0}, v{Q1}
    v_add_f32 v{Q0}, v{Q0}, v{Q1}
    ds_write_b32 v3, v{Q0} offset:2304
    """)
    p.wait(vm=["Z0","Z1","Z2","Z3"], lg0=True)
    p("s_barrier")
    st(p, 5)
    p.add(cs_reads([2], "cs1"))
    p.add(ln1_final(1, SX, Q0))
    p.add(cs_corr([A0], True, "cs1"))
    set_va(p, True, RING, 2048)
    qd = Prog(); qdma(qd)
    zp = gemm_pass([A2, A3_], Z_addr, RING, False, "z", 512, cs_tiles=[3, 4])
    e = Prog()
    e(f"""
    s_mov_b32 s77, {KVH}
    v_bfe_u32 v3, v1, 4, 1
    v_mul_lo_u32 v{VB}, v3, s77
    v_and_b32 v3, 15, v1
    v_lshl_add_u32 v{VB}, v3, 4, v{VB}
    v_lshrrev_b32 v3, 5, v1
    v_lshl_add_u32 v{VB}, v3, 8, v{VB}
    """)
    e.wait(lg="rr")
    for r in range(16): e(f"v_mul_f32 v{A0+r}, v{A0+r}, v{A1+r}")
    for d in range(8): e(f"v_cvt_pk_bf16_f32 v{A0+d}, v{A0+2*d}, v{A0+2*d+1}")
    e(f"buffer_store_dwordx4 {vr(A0,4)}, v{VB}, s[12:15], s85 offen offset:1024")
    e(f"buffer_store_dwordx4 {vr(A0+4,4)}, v{VB}, s[12:15], s85 offen offset:1536")
    for r in range(4): e(f"v_mov_b32 v{A1+r}, 0x3f803f80\nv_mov_b32 v{A1+4+r}, 0")
    p.add(interleave(zp, qd.l + e.l, per_gap=2, start=1))
    p(f"s_mov_b64 exec, 0x10001\nbuffer_store_dwordx4 {vr(A1,4)}, v{VB}, s[12:15], s85 offen offset:2048\nbuffer_store_dwordx4 {vr(A1+4,4)}, v{VB}, s[12:15], s85 offen offset:2064\ns_mov_b64 exec, -1")
    st(p, 6)
    p.wait(vm=["Q"], lg0=True)
    p("s_barrier")
    prio(p, 0)
    st(p, 7)
    if VAR.get('csq', False):
        set_va(p, True, RING+65536, 2048)
        am = Addr(RING+65536)
        def rdq(j):
            o = []; off = am.off(Q_addr(4*j), o)
            for ti in range(2): o += tr_read(WB+((j%3)*2+ti)*4, VA+2+ti, off, 512, f"cq{j}")
            return o
        p.add(rdq(0)); p.add(rdq(1))
        for j in range(8):
            if j+2 < 8: p.add(rdq(j+2))
            p.wait(lg=f"cq{j}")
            for ti in range(2): p.add([m16(CSA+4*ti, vr(WB+((j%3)*2+ti)*4,4), j == 0)])
        p(f"v_lshl_add_u32 v3, v1, 2, s57")
        for ti in range(2): p(f"ds_write_b32 v3, v{CSA+4*ti} offset:{(5+ti)*256}")
        p("s_waitcnt lgkmcnt(0)")
    p("s_cmp_ge_u32 s32, 14\ns_cbranch_scc1 L_end")
    p.add(cs_reads([3, 4], "cs2"))
    p.add(cs_corr([A2, A3_], False, "cs2"))
    st(p, 8)
    for k, a in enumerate((A2, A3_)):
        p.add(gelu_T(a, T+4+8*k))
        p(f"buffer_store_dwordx4 {vr(T+4+8*k,4)}, v{VL}, s[40:43], s83 offen offset:{k*2048}")
        p(f"buffer_store_dwordx4 {vr(T+8+8*k,4)}, v{VL}, s[40:43], s83 offen offset:{k*2048+1024}")
    st(p, 9)
    p("s_endpgm")
    p.label("L_end")
    p("s_endpgm")
    return p

def split_groups(l):
    lab = {x.op: i for i, x in enumerate(l) if getattr(x, 'kind', '') == "label"}
    b = next(i for i, x in enumerate(l) if getattr(x, 'kind', '') == "branch" and x.target == "L_g1")
    return b, lab["L_g1"]
def k1_paths(l):
    b, g1 = split_groups(l)
    return [l[:g1], l[:b] + l[g1:]]
def finalize_k1(p, verbose=False):
    l = p.l
    b, g1 = split_groups(l)
    head = l[:b+1]
    r0 = resolve_waits(l[:g1])
    r1 = resolve_waits(head + l[g1:])
    nh = len(resolve_waits(head))
    p2 = Prog(); p2.l = r0 + r1[nh:]
    return finalize("k1", p2, paths=k1_paths, verbose=verbose)
K1_DESC = dict(name="k1_kernel", vgpr=256, sgpr=102, accum=128, grid=256, block=512, lds=K1_LDS)
if __name__ == "__main__":
    import sys
    from build import build
    vars_ = eval(sys.argv[2]) if len(sys.argv) > 2 else {"k1": {}}
    base = dict(VAR)
    for nm, kw in vars_.items():
        VAR.clear(); VAR.update(base); VAR.update(kw)
        p = gen_k1(stamp=len(sys.argv)>1)
        l, errs = finalize_k1(p, verbose=len(sys.argv) < 2)
        build([dict(K1_DESC, l=l)], f"out_{nm}.s")
```

```python
from common import *
SOLO = True
import struct
def float_hex(f): return hex(struct.unpack("<I", struct.pack("<f", f))[0])

LDS_FLAG = 130048
LDS_STG = 131072
K2_LDS = 163840
VAR = dict(margin=100.0, U=8, prio_att=1, prio_g=0, cdelay=2)

QA, QB = 4, 8
CA, CB = 16, 32
OA, OB = 48, 64
SA, SB = 80, 96
PA, PB = 112, 120
KR = [128, 132, 136, 140]
V0R = [144, 148, 152, 156]
V1R = [160, 164, 168, 172]
AK, AV0, AV1 = 176, 177, 178
GK, GV0, GV1 = 179, 180, 181
MA, MB = 182, 183
TM = 184
FL = 188
PF, PFA = 190, 191
STT = 192

def max16(p, S, M, first):
    if first:
        p(f"v_max3_f32 v{M}, v{S}, v{S+1}, v{S+2}")
        p(f"v_max_f32 v{M}, v{M}, v{S+3}")
        r = range(4, 16, 2)
    else: r = range(0, 16, 2)
    for k in r: p(f"v_max3_f32 v{M}, v{M}, v{S+k}, v{S+k+1}")

def flag_wait(p, name, addr_v, off, val, tmpq):
    p.label(name)
    p(f"ds_read_b128 {vr(tmpq,4)}, v{addr_v} offset:{off}")
    p("s_waitcnt lgkmcnt(0)")
    p(f"v_min_u32 v{tmpq}, v{tmpq}, v{tmpq+1}\nv_min3_u32 v{tmpq}, v{tmpq}, v{tmpq+2}, v{tmpq+3}")
    p(f"v_cmp_gt_u32 vcc, {val}, v{tmpq}")
    p(f"s_cbranch_vccz {name}_ok\ns_sleep 1\ns_branch {name}")
    p.label(name + "_ok")

def spin1(p, name, addr_v, off, val, tmp):
    p.label(name)
    p(f"ds_read_b32 v{tmp}, v{addr_v} offset:{off}")
    p("s_waitcnt lgkmcnt(0)")
    p(f"v_cmp_gt_u32 vcc, {val}, v{tmp}")
    p(f"s_cbranch_vccz {name}_ok\ns_sleep 1\ns_branch {name}")
    p.label(name + "_ok")

def att_loop_body(U):
    out = []
    def blk(S, P, So, Po, Mqk, Mpv1, Mpv0, extra):
        e = lambda k: I(f"v_exp_f32 v{S+k}, v{S+k}")
        c = lambda k: I(f"v_cvt_pk_bf16_f32 v{P+k}, v{S+2*k}, v{S+2*k+1}")
        co = lambda k: I(f"v_cvt_pk_bf16_f32 v{Po+k}, v{So+2*k}, v{So+2*k+1}")
        o = []
        pq, p1, p0 = VAR.get('pos', (2, 6, 12))
        cs = VAR.get('cs', {0: [-6], 1: [-7], 3: [0], 5: [1], 7: [2], 9: [3], 11: [4], 13: [5]})
        if VAR.get('perm'):
            c = lambda k: I(f"v_perm_b32 v{P+k}, v{S+2*k+1}, v{S+2*k}, s45")
            co = lambda k: I(f"v_perm_b32 v{Po+k}, v{So+2*k+1}, v{So+2*k}, s45")
        for k in range(16):
            o.append(e(k))
            for j in cs.get(k, []):
                if j < 0: o.append(co(-j))
            if k == pq and not VAR.get('nom'): o.append(Mqk)
            if k == p1 and not VAR.get('nom'): o.append(Mpv1)
            if k == p0 and not VAR.get('nom'): o.append(Mpv0)
            o += extra.get(k, [])
            for j in cs.get(k, []):
                if j >= 0: o.append(c(j))
        return o
    for u in range(U):
        s0 = u % 4; s1 = (u+1) % 4; sm = (u-1) % 4
        exA = {}; exB = {}
        if u % 2 == 0:
            rd = []
            for d in (2, 3):
                o_ = (u+d-1)*KVT
                rd += [I(f"ds_read_b128 {vr(KR[(u+d)%4],4)}, v{AK} offset:{o_}"),
                       I(f"ds_read_b128 {vr(V0R[(u+d)%4],4)}, v{AV0} offset:{o_}"),
                       I(f"ds_read_b128 {vr(V1R[(u+d)%4],4)}, v{AV1} offset:{o_}")]
            exA = {6: rd}
            if VAR.get('nods'): exA = {}
        if u == U-1:
            exB = {2: [I("s_add_u32 s41, s41, 1")], 3: [I(f"s_cmp_eq_u32 s41, {12//U}")], 4: [I("s_cbranch_scc1 L_att_sync2"), I("L_att_sync2_ret:")],
                   6: [I(f"v_add_u32 v{AK}, {U*KVT}, v{AK}")], 8: [I(f"v_add_u32 v{AV0}, {U*KVT}, v{AV0}")], 10: [I(f"v_add_u32 v{AV1}, {U*KVT}, v{AV1}")],
                   14: [I(f"s_cmp_lt_u32 s41, {64//U}")]}
        if u % 2 == 1: exB[0] = [I("s_waitcnt lgkmcnt(0)")]
        out += blk(SA, PA, SB, PB, mfma32(vr(SB,16), vr(KR[s0],4), vr(QB,4), vr(CB,16)),
                   mfma32(vr(OB,16), vr(V1R[sm],4), vr(PB+4,4), vr(OB,16)),
                   mfma32(vr(OA,16), vr(V0R[s0],4), vr(PA,4), vr(OA,16)), exA)
        out += blk(SB, PB, SA, PA, mfma32(vr(SA,16), vr(KR[s1],4), vr(QA,4), vr(CA,16)),
                   mfma32(vr(OA,16), vr(V1R[s0],4), vr(PA+4,4), vr(OA,16)),
                   mfma32(vr(OB,16), vr(V0R[s0],4), vr(PB,4), vr(OB,16)), exB)
    return out

def gen_attention(p, st):
    U = VAR['U']
    p(f"s_setprio {VAR['prio_att']}")
    p(f"""
    s_mul_i32 s30, s27, {KVH}
    s_add_u32 s30, s30, {KV}
    s_lshl_b32 s31, s27, 16
    s_lshl_b32 s32, s28, 3
    s_lshl_b32 s33, s24, 1
    s_add_u32 s32, s32, s33
    s_lshl_b32 s33, s32, 10
    s_add_u32 s31, s31, s33
    v_lshlrev_b32 v{GK}, 4, v1
    """)
    p(f"buffer_load_dwordx4 {vr(QA,4)}, v{GK}, s[12:15], s31 offen")
    p(f"buffer_load_dwordx4 {vr(QB,4)}, v{GK}, s[12:15], s31 offen offset:1024")
    p(f"buffer_load_dwordx4 {vr(KR[0],4)}, v{GK}, s[12:15], s30 offen")
    p(f"buffer_load_dwordx4 {vr(KR[1],4)}, v{GK}, s[12:15], s30 offen offset:{KVT}")
    p(f"""
    v_and_b32 v{TM}, 31, v1
    v_lshrrev_b32 v{TM+1}, 5, v1
    v_lshlrev_b32 v{TM+1}, 8, v{TM+1}
    v_lshl_add_u32 v{TM+1}, v{TM}, 4, v{TM+1}
    v_and_b32 v{TM+2}, 27, v{TM}
    v_cmp_eq_u32 vcc, 16, v{TM+2}
    v_mov_b32 v{TM+2}, 2064
    v_mov_b32 v{TM+3}, 2048
    v_cndmask_b32 v{TM+2}, v{TM+2}, v{TM+3}, vcc
    v_cmp_gt_u32 vcc, 16, v{TM}
    v_add_u32 v{GV0}, 1024, v{TM+1}
    v_add_u32 v{GV1}, 1536, v{TM+1}
    v_cndmask_b32 v{GV0}, v{TM+2}, v{GV0}, vcc
    v_cndmask_b32 v{GV1}, v{TM+2}, v{GV1}, vcc
    """)
    for t in range(2):
        p(f"buffer_load_dwordx4 {vr(V0R[t],4)}, v{GV0}, s[12:15], s30 offen offset:{t*KVT}")
        p(f"buffer_load_dwordx4 {vr(V1R[t],4)}, v{GV1}, s[12:15], s30 offen offset:{t*KVT}")
    p(f"""
    s_lshl_b32 s37, s24, 12
    s_add_u32 s38, s30, {KVT+1024}
    s_add_u32 s38, s38, s37
    """)
    for i in range(2):
        p("s_mov_b32 m0, s37")
        p("s_add_u32 s37, s37, 16384")
        for k in range(4):
            p(f"buffer_load_dwordx4 v{GK}, s[12:15], s38 offen offset:{k*1024} lds")
        p("s_add_u32 s38, s38, 16384")
    p("s_barrier")
    p(f"""
    v_mov_b32 v{FL}, {LDS_FLAG}
    s_lshl_b32 s37, s24, 2
    v_add_u32 v{FL+1}, s37, v{FL}
    v_subrev_u32 v{AK}, 1024, v{GK}
    v_subrev_u32 v{AV0}, 1024, v{GV0}
    v_subrev_u32 v{AV1}, 1024, v{GV1}
    """)
    for r in list(range(OA, OA+32)) + list(range(PB+4, PB+6)) + list(range(V1R[3], V1R[3]+4)):
        p(f"v_mov_b32 v{r}, 0")
    p("s_waitcnt vmcnt(12)")
    p.add([mfma32(vr(SA,16), vr(KR[0],4), vr(QA,4), "0"), mfma32(vr(SB,16), vr(KR[0],4), vr(QB,4), "0"),
           mfma32(vr(CA,16), vr(KR[1],4), vr(QA,4), "0"), mfma32(vr(CB,16), vr(KR[1],4), vr(QB,4), "0")])
    max16(p, SA, MA, True); max16(p, SB, MB, True); max16(p, CA, MA, False); max16(p, CB, MB, False)
    p(f"""
    s_mov_b32 s40, {float_hex(VAR['margin'])}
    v_mov_b32 v{TM}, v{MA}
    v_mov_b32 v{TM+1}, v{MB}
    v_permlane32_swap_b32 v{TM}, v{MA}
    v_permlane32_swap_b32 v{TM+1}, v{MB}
    v_max_f32 v{MA}, v{MA}, v{TM}
    v_max_f32 v{MB}, v{MB}, v{TM+1}
    v_add_f32 v{MA}, s40, v{MA}
    v_add_f32 v{MB}, s40, v{MB}
    """)
    for r in range(16): p(f"v_sub_f32 v{CA+r}, 0, v{MA}")
    for r in range(12, 16): p(f"v_mov_b32 v{SB+r}, 0")
    p.add([mfma32(vr(SA,16), vr(KR[0],4), vr(QA,4), vr(CA,16))])
    for r in range(16): p(f"v_sub_f32 v{CB+r}, 0, v{MB}")
    p("s_waitcnt vmcnt(0)")
    p(f"v_mov_b32 v{TM}, 1\nds_write_b32 v{FL+1}, v{TM}")
    flag_wait(p, "L_att_f1", FL, 0, 1, TM)
    st(p, 1)
    p("s_mov_b32 s41, 0\ns_mov_b32 s45, 0x07060302")
    p(".p2align 6")
    p.label("L_att_loop")
    p.add(att_loop_body(U))
    p("s_cbranch_scc1 L_att_loop")
    st(p, 2)
    p(f"v_cvt_pk_bf16_f32 v{PB+6}, v{SB+12}, v{SB+13}\nv_cvt_pk_bf16_f32 v{PB+7}, v{SB+14}, v{SB+15}")
    p(f"""
    s_mul_i32 s33, s32, {88*1024}
    s_lshl_b32 s34, s27, 10
    s_add_u32 s33, s33, s34
    s_add_u32 s33, s33, {A3}
    """)
    p.add([mfma32(vr(OB,16), vr(V1R[3],4), vr(PB+4,4), vr(OB,16))])
    p("s_waitcnt lgkmcnt(0)")
    p("s_mov_b32 s36, 0")
    p.label("L_att_chk")
    p(f"v_mul_f32 v{TM}, 0, v{OA+8}")
    for r in range(8): p(f"v_fmac_f32 v{TM}, 0, v{OA+r}")
    p(f"v_cmp_u_f32 vcc, v{TM}, v{TM}")
    p("s_cbranch_vccnz L_att_slow")
    p.label("L_att_fin")
    p(f"v_rcp_f32 v{MA}, v{OA+8}")
    p("s_cmp_lg_u32 s36, 0")
    for r in range(8): p(f"v_mul_f32 v{OA+r}, v{OA+r}, v{MA}")
    for k in range(4): p(f"v_cvt_pk_bf16_f32 v{PA+k}, v{OA+2*k}, v{OA+2*k+1}")
    p(f"buffer_store_dwordx4 {vr(PA,4)}, v{GK}, s[12:15], s33 offen")
    p("s_cbranch_scc1 L_att_done")
    p(f"s_mov_b32 s36, 1\ns_add_u32 s33, s33, {88*1024}")
    for r in range(9): p(f"v_mov_b32 v{OA+r}, v{OB+r}")
    for r in range(4): p(f"v_mov_b32 v{QA+r}, v{QB+r}")
    p("s_branch L_att_chk")
    p.label("L_att_done")
    st(p, 3)
    p("s_endpgm")
    p.label("L_att_sync2")
    flag_wait(p, "L_att_f2", FL, 48, 1, TM)
    p("s_branch L_att_sync2_ret")
    p.label("L_att_slow")
    p(f"v_mov_b32 v{MA}, 0xff800000\ns_mov_b32 s41, 0\ns_mov_b32 s37, s30")
    p.label("L_att_sl1")
    p(f"buffer_load_dwordx4 {vr(KR[0],4)}, v{GK}, s[12:15], s37 offen")
    p("s_waitcnt vmcnt(0)")
    p.add([mfma32(vr(SA,16), vr(KR[0],4), vr(QA,4), "0")])
    max16(p, SA, MA, False)
    p(f"s_add_u32 s37, s37, {KVT}\ns_add_u32 s41, s41, 1\ns_cmp_lt_u32 s41, 64\ns_cbranch_scc1 L_att_sl1")
    p(f"v_mov_b32 v{TM}, v{MA}\nv_permlane32_swap_b32 v{TM}, v{MA}\nv_max_f32 v{MA}, v{MA}, v{TM}")
    for r in range(16): p(f"v_sub_f32 v{CA+r}, 0, v{MA}\nv_mov_b32 v{OA+r}, 0")
    p("s_mov_b32 s41, 0\ns_mov_b32 s37, s30")
    p.label("L_att_sl2")
    p(f"buffer_load_dwordx4 {vr(KR[0],4)}, v{GK}, s[12:15], s37 offen")
    p(f"buffer_load_dwordx4 {vr(V0R[0],4)}, v{GV0}, s[12:15], s37 offen")
    p(f"buffer_load_dwordx4 {vr(V1R[0],4)}, v{GV1}, s[12:15], s37 offen")
    p("s_waitcnt vmcnt(0)")
    p.add([mfma32(vr(SA,16), vr(KR[0],4), vr(QA,4), vr(CA,16))])
    for k in range(16): p(f"v_exp_f32 v{SA+k}, v{SA+k}")
    for k in range(8): p(f"v_cvt_pk_bf16_f32 v{PA+k}, v{SA+2*k}, v{SA+2*k+1}")
    p.add([mfma32(vr(OA,16), vr(V0R[0],4), vr(PA,4), vr(OA,16)), mfma32(vr(OA,16), vr(V1R[0],4), vr(PA+4,4), vr(OA,16))])
    p(f"s_add_u32 s37, s37, {KVT}\ns_add_u32 s41, s41, 1\ns_cmp_lt_u32 s41, 64\ns_cbranch_scc1 L_att_sl2")
    p("s_nop 15\ns_branch L_att_fin")

ACC = 4
NZF = 16
ZR = 132
WR = 196
VL = 228; VD = 229; VW = 230
G = 232
def acc(i, tt): return ACC + (i*2+tt)*16

def gen_gemm(p, st):
    p(f"""
    s_sub_u32 s24, s24, 4                  ; q = K quarter
    v_lshlrev_b32 v{VL}, 4, v1
    s_mul_i32 s38, s27, {KVH}
    s_lshl_b32 s37, s24, 12
    s_add_u32 s37, s37, 32768
    s_add_u32 s38, s38, s37
    s_add_u32 s38, s38, {KV + KVT + 1024}
    s_lshl_b32 s46, s24, 2
    s_add_u32 s46, s46, {LDS_FLAG}
    v_mov_b32 v{G+1}, s46
    v_mov_b32 v{G+3}, 1
    s_barrier
    """)
    for i in range(6):
        p("s_mov_b32 m0, s37")
        if i < 5: p("s_add_u32 s37, s37, 16384")
        else: p("s_cmp_eq_u32 s24, 3")
        for k in range(4):
            if i == 5 and k == 3: p("s_cbranch_scc1 L_g_kvdone")
            p(f"buffer_load_dwordx4 v{VL}, s[12:15], s38 offen offset:{k*1024} lds")
        if i < 5: p("s_add_u32 s38, s38, 16384")
    p.label("L_g_kvdone")
    p(f"""
    s_cmp_ge_u32 s26, 28
    s_cbranch_scc1 L_idle
    s_setprio 3
    s_mul_i32 s30, s26, 9363
    s_lshr_b32 s30, s30, 16                ; j/7
    s_mul_i32 s31, s30, 7
    s_sub_u32 s31, s26, s31                ; fb = j%7
    s_lshl_b32 s32, s25, 2
    s_add_u32 s30, s30, s32                ; tb
    s_lshl_b32 s33, s31, 19
    s_add_u32 s33, s33, {Z2F}
    s_lshl_b32 s34, s24, 17
    s_add_u32 s33, s33, s34
    s_lshl_b32 s35, s30, 18
    s_lshl_b32 s34, s24, 10
    s_add_u32 s35, s35, s34
    s_lshl_b32 s36, s24, 13
    s_add_u32 s36, s36, {LDS_STG}
    s_add_u32 s37, s36, 4096
    """)
    for i in range(4):
        p(f"s_add_u32 s38, s24, {i}\ns_and_b32 s38, s38, 3\ns_lshl_b32 s38, s38, 10\ns_add_u32 s{52+i}, s33, s38")
        p(f"s_add_u32 s{56+i}, s35, {i*(65536-1024)}")
    p(f"""
    v_lshrrev_b32 v2, 2, v1
    v_lshlrev_b32 v2, 12, v2
    v_lshrrev_b32 v3, 4, v1
    v_xor_b32 v3, v3, v1
    v_and_b32 v3, 3, v3
    v_lshl_add_u32 v{VD}, v3, 4, v2
    """)
    def dma(b):
        out = [I(f"s_mov_b32 m0, s{36 + b%2}"), I("s_nop 0")]
        for k in range(4):
            out.append(I(f"buffer_load_dwordx4 v{VD}, s[16:19], s{56+k} offen offset:{k*1024} lds", tag=f"d{b}"))
            out.append(I(f"s_add_u32 s{56+k}, s{56+k}, 64"))
        return out
    def zload(n):
        i = n % 4
        return [I(f"buffer_load_dwordx4 {vr(ZR + (n%NZF)*4, 4)}, v{VL}, s[12:15], s{52+i} offen", tag=f"z{n}"),
                I(f"s_add_u32 s{52+i}, s{52+i}, 4096")]
    p.add(dma(0))
    for n in range(8): p.add(zload(n))
    p.add(dma(1))
    for n in range(8, 16): p.add(zload(n))
    p(f"v_and_b32 v2, 31, v1")
    bitswap23(p, 2, 2, 3)
    p(f"""
    v_lshrrev_b32 v3, 2, v2
    v_lshrrev_b32 v{VW}, 5, v1
    v_xor_b32 v3, v3, v{VW}
    v_and_b32 v3, 3, v3
    v_lshlrev_b32 v3, 4, v3
    v_lshl_add_u32 v{VW}, v2, 6, v3
    v_add_u32 v{VW}, s36, v{VW}
    v_xor_b32 v{VW+1}, 32, v{VW}
    """)
    p(f"s_setprio {VAR['prio_g']}")
    st(p, 1)
    NB = 16
    def wread(b):
        return [I(f"ds_read_b128 {vr(WR + ((b%2)*4+u*2+tt)*4, 4)}, v{VW+u} offset:{(b%2)*4096 + tt*2048}", tag=f"w{b}", needs=[f"d{b}"]) for u in range(2) for tt in range(2)]
    def block(b, first=False, dma_on=True, z_on=True, w_on=True):
        o = [W(lg=f"w{b}")]
        if dma_on: o += dma(b+2)
        for u in range(2):
            s = 2*b+u
            o.append(W(vm=[f"z{4*s+3}"] + ([f"d{b+1}"] if (u == 1 and w_on) else [])))
            for i in range(4):
                n = 4*s+i
                for tt in range(2):
                    c = "0" if (first and u == 0) else vr(acc(i,tt),16)
                    o.append(mfma32(vr(acc(i,tt),16), vr(ZR+(n%NZF)*4,4), vr(WR+((b%2)*4+u*2+tt)*4,4), c))
                if u == 1 and i == 0 and w_on: o += wread(b+1)
            if z_on:
                for i in range(4): o += zload(4*s+i+NZF)
        return o
    p.wait(vm="d0"); p(f"ds_write_b32 v{G+1}, v{G+3} offset:48"); p.add(wread(0))
    p.add(block(0, first=True)); p.add(block(1))
    p("s_mov_b32 s60, 0")
    p.label("L_g_loop")
    p.add(block(2)); p.add(block(3))
    p("s_add_u32 s60, s60, 1\ns_cmp_lt_u32 s60, 6\ns_cbranch_scc1 L_g_loop")
    p.add(block(4, dma_on=False, z_on=False)); p.add(block(5, dma_on=False, z_on=False, w_on=False))
    st(p, 2)
    p(f"s_setprio {VAR.get('prio_e', 3)}")
    p(f"""
    s_lshl_b32 s38, s30, 1
    s_mul_i32 s39, s38, {56*1024}
    s_lshl_b32 s40, s31, 2
    s_add_u32 s40, s40, s24
    s_lshl_b32 s41, s40, 11
    s_add_u32 s39, s39, s41
    s_add_u32 s39, s39, {Z1F}
    s_add_u32 s42, s39, {56*1024}
    s_mul_i32 s43, s38, {88*1024}
    s_add_u32 s43, s43, s41
    s_add_u32 s43, s43, {A3 + 32*1024}
    s_add_u32 s44, s43, {88*1024}
    s_lshl_b32 s45, s30, 7
    v_lshlrev_b32 v2, 1, v2
    """)
    Z = ZR
    p(f"buffer_load_dwordx4 {vr(Z,4)}, v{VL}, s[12:15], s39 offen", tag="z1")
    p(f"buffer_load_dwordx4 {vr(Z+4,4)}, v{VL}, s[12:15], s39 offen offset:1024", tag="z1")
    p(f"buffer_load_dwordx4 {vr(Z+8,4)}, v{VL}, s[12:15], s42 offen", tag="z1")
    p(f"buffer_load_dwordx4 {vr(Z+12,4)}, v{VL}, s[12:15], s42 offen offset:1024", tag="z1")
    p(f"buffer_load_ushort v{Z+16}, v2, s[20:23], s45 offen", tag="z1")
    p(f"buffer_load_ushort v{Z+17}, v2, s[20:23], s45 offen offset:64", tag="z1")
    p(f"""
    v_add_u32 v{G}, s36, v{VL}
    """)
    for r in range(1, 4):
        if r > 1:
            p(f"s_add_u32 s47, s24, {r-1}\ns_and_b32 s47, s47, 3\ns_lshl_b32 s47, s47, 2\ns_add_u32 s47, s47, {LDS_FLAG}\nv_mov_b32 v{G+2}, s47")
            spin1(p, f"L_g_ack{r}", G+2, 32, r-1, G+3)
        for k in range(8):
            p(f"ds_write_b128 v{G}, {vr(acc(r,0)+4*k, 4)} offset:{k*1024}")
        p(f"v_mov_b32 v{G+3}, {r}\ns_waitcnt lgkmcnt(0)\nds_write_b32 v{G+1}, v{G+3} offset:16")
        p(f"s_add_u32 s47, s24, {4-r}\ns_and_b32 s47, s47, 3\ns_lshl_b32 s48, s47, 2\ns_add_u32 s48, s48, {LDS_FLAG}\nv_mov_b32 v{G+2}, s48\ns_lshl_b32 s47, s47, 13\ns_add_u32 s47, s47, {LDS_STG}\nv_add_u32 v{G+4}, s47, v{VL}")
        spin1(p, f"L_g_dat{r}", G+2, 16, r, G+3)
        T = acc(r, 0)
        for k in range(8):
            p(f"ds_read_b128 {vr(T+4*k,4)}, v{G+4} offset:{k*1024}", tag=f"r{k}")
        for k in range(8):
            p.wait(lg=f"r{k}")
            for e in range(4): p(f"v_add_f32 v{acc(0,0)+4*k+e}, v{acc(0,0)+4*k+e}, v{T+4*k+e}")
        if r < 3:
            p(f"v_mov_b32 v{G+3}, {r}\nds_write_b32 v{G+1}, v{G+3} offset:32")
    p.wait(vm="z1")
    T = acc(1, 0)
    p(f"v_lshlrev_b32 v{Z+16}, 16, v{Z+16}\nv_lshlrev_b32 v{Z+17}, 16, v{Z+17}")
    for tt in range(2):
        a = acc(0, tt)
        for r in range(16): p(f"v_add_f32 v{a+r}, v{a+r}, v{Z+16+tt}")
        for d in range(8):
            z = Z + tt*8 + d
            p(f"v_lshlrev_b32 v{T}, 16, v{z}\nv_and_b32 v{T+1}, 0xffff0000, v{z}")
            p(f"v_mul_f32 v{a+2*d}, v{a+2*d}, v{T}\nv_mul_f32 v{a+2*d+1}, v{a+2*d+1}, v{T+1}")
            p(f"v_cvt_pk_bf16_f32 v{T+8+tt*8+d}, v{a+2*d}, v{a+2*d+1}")
        so = 43 + tt
        p(f"buffer_store_dwordx4 {vr(T+8+tt*8,4)}, v{VL}, s[12:15], s{so} offen")
        p(f"buffer_store_dwordx4 {vr(T+12+tt*8,4)}, v{VL}, s[12:15], s{so} offen offset:1024")
    if VAR.get('pf3'):
        p(f"s_lshl_b32 s38, s26, 2\ns_add_u32 s38, s38, s24\ns_mul_i32 s38, s38, 16384\ns_add_u32 s38, s38, {W3F}\nv_lshlrev_b32 v2, 7, v1")
        p(f"buffer_load_dword v3, v2, s[12:15], s38 offen\ns_add_u32 s38, s38, 8192\nbuffer_load_dword v3, v2, s[12:15], s38 offen")
    st(p, 3)
    p("s_endpgm")
    p.label("L_idle")
    p(f"""
    s_load_dwordx2 s[36:37], s[0:1], {KA_WO}
    s_load_dwordx2 s[38:39], s[0:1], {KA_WOUT}
    s_lshl_b32 s34, s25, 2
    s_add_u32 s34, s34, s26
    s_sub_u32 s34, s34, 28                      ; L
    s_mov_b32 s54, {896*1024}
    s_waitcnt vmcnt(0) lgkmcnt(0)
    ds_write_b32 v{G+1}, v{G+3} offset:48
    s_cmp_lt_u32 s34, 16
    s_cselect_b32 s52, s36, s38
    s_cselect_b32 s53, s37, s39
    s_cselect_b32 s54, {512*1024}, s54
    s_cselect_b32 s35, 8, 14
    s_cselect_b32 s67, 0, {32*1024}
    s_mov_b32 s55, 0x20000
    s_and_b32 s34, s34, 15
    s_mul_i32 s68, s24, s35
    s_lshl_b32 s69, s68, 14
    s_lshl_b32 s60, s34, 6
    s_add_u32 s69, s69, s60
    s_mul_i32 s60, s34, {88*1024}
    s_lshl_b32 s68, s68, 10
    s_add_u32 s60, s60, s68
    s_add_u32 s60, s60, s67
    s_add_u32 s60, s60, {W3F}
    v_lshrrev_b32 v2, 2, v1
    v_and_b32 v3, 3, v1
    v_lshlrev_b32 v3, 4, v3
    v_lshl_add_u32 v2, v2, 10, v3
    s_lshl_b32 s61, s24, 13
    s_add_u32 s61, s61, {LDS_STG}
    v_lshrrev_b32 v4, 5, v1
    v_lshlrev_b32 v3, 9, v4
    v_bfe_u32 v4, v1, 2, 2
    v_lshl_add_u32 v3, v4, 6, v3
    v_bfe_u32 v4, v1, 4, 1
    v_lshl_add_u32 v3, v4, 5, v3
    v_and_b32 v4, 1, v1
    v_lshl_add_u32 v3, v4, 4, v3
    v_bfe_u32 v4, v1, 1, 1
    v_lshl_add_u32 v3, v4, 3, v3
    v_add_u32 v3, s61, v3
    s_mov_b32 m0, s61
    s_mov_b32 s62, 0
    """)
    p.label("L_w3a")
    p("buffer_load_dwordx4 v2, s[52:55], s69 offen lds\ns_add_u32 s69, s69, 16384\ns_add_u32 s62, s62, 1\ns_waitcnt vmcnt(0)")
    p(f"ds_read_b64_tr_b16 v[8:9], v3\nds_read_b64_tr_b16 v[10:11], v3 offset:256\ns_waitcnt lgkmcnt(0)")
    p(f"buffer_store_dwordx4 v[8:11], v{VL}, s[12:15], s60 offen\ns_add_u32 s60, s60, 1024\ns_cmp_lt_u32 s62, s35\ns_cbranch_scc1 L_w3a")
    p("s_endpgm")

def gen_k2(with_gemm=True, with_att=True, stamp=False):
    p = Prog()
    entry_stamp(p, stamp)
    p(f"""
    s_cmp_ge_u32 s2, 256
    s_cbranch_scc1 L_end
    s_load_dwordx2 s[4:5], s[0:1], {KA_WS}
    s_load_dwordx4 s[8:11], s[0:1], {KA_WSP}
    v_and_b32 v1, 63, v0
    v_lshrrev_b32 v2, 6, v0
    v_readfirstlane_b32 s24, v2
    s_and_b32 s25, s2, 7
    s_lshr_b32 s26, s2, 3
    s_lshr_b32 s27, s26, 3
    s_lshl_b32 s28, s25, 2
    s_add_u32 s27, s27, s28                ; head
    s_and_b32 s28, s26, 7                  ; qb
    v_mov_b32 v2, 0
    v_lshlrev_b32 v3, 2, v1
    v_add_u32 v3, {LDS_FLAG}, v3
    ds_write_b32 v3, v2
    s_mov_b32 s50, s24
    s_waitcnt lgkmcnt(0)
    """)
    srd(p, 12, 4, WS_USED); srd(p, 16, 8, 2048*2048*2); srd(p, 20, 10, 4096)
    st0 = (Stamper(stamp and not SOLO, 50, 240, kid=1) if not SOLO else Stamper(stamp, 50, 240))
    st0(p, 0); entry_store(p, st0)
    p("s_cmp_ge_u32 s24, 4\ns_cbranch_scc1 L_gemm")
    if with_att: gen_attention(p, (Stamper(stamp and not SOLO, 50, 240, kid=1) if not SOLO else Stamper(stamp, 50, 240)))
    else: p("s_endpgm")
    p.label("L_gemm")
    if with_gemm: gen_gemm(p, (Stamper(stamp and not SOLO, 50, 240, kid=1) if not SOLO else Stamper(stamp, 50, 240)))
    p.label("L_end")
    p("s_endpgm")
    return p

def k2_paths(l):
    lab = {x.op: i for i, x in enumerate(l) if x.kind == "label"}
    g = lab["L_gemm"]
    att = l[:g]
    end_att = next(i for i, x in enumerate(att) if x.kind == "misc" and x.base == "s_endpgm")
    head_end = next(i for i, x in enumerate(l) if x.kind == "branch" and x.target == "L_gemm")
    return [linearize(att[:end_att+1], {"L_att_loop": 3}), linearize(l[:head_end] + l[g:], {"L_g_loop": 3})]

K2_DESC = dict(name="k2_kernel", vgpr=248, sgpr=102, accum=248, grid=256, block=512, lds=K2_LDS)
if __name__ == "__main__":
    p = gen_k2()
    l, errs = finalize("k2", p, paths=k2_paths, verbose=True)
```

```python
from common import *
SOLO = True
VAR = {}
DBGOUT = None
K3_LDS = 49152
ACC = 4
XR = 68
VL = 76; VO = 77; VT = 78
FR0 = 84
NVF = 43
def fr(n):
    return vr(FR0 + 4*n, 4) if n < NVF else ar(4*(n-NVF), 4)

def gen_k3(stamp=False, KS=22, nsplit=4):
    p = Prog()
    st = (Stamper(stamp, 24, VT, kid=0 if SOLO else 2))
    entry_stamp(p, stamp)
    p(f"""
    s_cmp_ge_u32 s2, 256
    s_cbranch_scc1 L_end
    s_load_dwordx2 s[4:5], s[0:1], {KA_WS}
    s_load_dwordx2 s[6:7], s[0:1], {KA_X}
    s_load_dwordx2 s[8:9], s[0:1], {KA_OUT}
    v_and_b32 v1, 63, v0
    v_lshrrev_b32 v2, 6, v0
    v_readfirstlane_b32 s24, v2
    v_lshlrev_b32 v{VL}, 4, v1
    s_and_b32 s25, s2, 7
    s_lshr_b32 s26, s2, 3
    s_lshr_b32 s27, s26, 3
    s_lshl_b32 s28, s25, 2
    s_add_u32 s27, s27, s28                ; tb
    s_and_b32 s28, s26, 7                  ; nb
    s_and_b32 s29, s24, 1
    s_lshr_b32 s30, s24, 1
    s_mul_i32 s31, s24, {KS*1024}          ; k offset
    s_lshl_b32 s32, s27, 1
    s_add_u32 s33, s32, s29
    s_xor_b32 s34, s33, 1
    s_lshl_b32 s32, s28, 1
    s_add_u32 s35, s32, s30
    s_xor_b32 s36, s35, 1
    s_mul_i32 s40, s33, {88*1024}
    s_mul_i32 s41, s34, {88*1024}
    s_mul_i32 s42, s35, {88*1024}
    s_mul_i32 s43, s36, {88*1024}
    s_add_u32 s32, s31, {A3}
    s_add_u32 s40, s40, s32
    s_add_u32 s41, s41, s32
    s_add_u32 s32, s31, {W3F}
    s_add_u32 s42, s42, s32
    s_add_u32 s43, s43, s32
    s_waitcnt lgkmcnt(0)
    """)
    srd(p, 12, 4, WS_USED); srd(p, 16, 6, 2048*1024); srd(p, 20, 8, 2048*1024)
    st(p, 0); entry_store(p, st)
    def loads(s):
        o = []
        if s and s % 4 == 0:
            o += [I(f"s_add_u32 s{40+i}, s{40+i}, 4096") for i in range(4)]
        for i in (0, 2, 1, 3):
            o.append(I(f"buffer_load_dwordx4 {fr(4*s+i)}, v{VL}, s[12:15], s{40+i} offen offset:{(s%4)*1024}", tag=f"f{s}_{i}"))
        return o
    PRE = VAR.get('pre', 4)
    if VAR.get('pf'):
        g = VAR['pf']
        sh = g.bit_length()-1
        p(f"""
        s_lshl_b32 s46, s26, 2
        s_add_u32 s46, s46, s24
        s_mul_i32 s47, s46, {11*1024}
        s_add_u32 s47, s47, {W3F}
        s_mul_i32 s48, s25, {8*88*1024}
        s_mul_i32 s49, s46, {11*512}
        s_add_u32 s48, s48, s49
        s_add_u32 s48, s48, {A3}
        v_lshlrev_b32 v2, {sh}, v1
        """)
        for base, n in ((47, 11*1024), (48, 11*512)):
            o = 0
            while o < n:
                lanes = min(64, (n-o)//g)
                if lanes < 64: p(f"s_mov_b64 exec, {(1<<lanes)-1:#x}" if lanes <= 31 else f"s_mov_b32 exec_hi, {(1<<(lanes-32))-1:#x}")
                p(f"buffer_load_dword v0, v2, s[12:15], s{base} offen")
                if lanes < 64: p("s_mov_b64 exec, -1")
                o += 64*g
                if o < n: p(f"s_add_u32 s{base}, s{base}, {64*g}")
    for s in range(min(4, PRE)): p.add(loads(s))
    p(f"v_and_b32 v2, 31, v1")
    bitswap23(p, 2, 2, 3)
    p(f"""
    v_lshrrev_b32 v3, 5, v1
    v_lshlrev_b32 v3, 4, v3
    v_lshl_add_u32 v{VO}, v2, 10, v3
    s_lshl_b32 s44, s33, 15
    s_lshl_b32 s45, s35, 6
    s_add_u32 s44, s44, s45
    """)
    p(f"buffer_load_dwordx4 {vr(XR,4)}, v{VO}, s[16:19], s44 offen", tag="x")
    p(f"buffer_load_dwordx4 {vr(XR+4,4)}, v{VO}, s[16:19], s44 offen offset:32", tag="x")
    for s in range(4, PRE): p.add(loads(s))
    if VAR.get('fine'): st(p, 7)
    for s in range(KS):
        p.wait(vm=[f"f{s}_0", f"f{s}_2"])
        for (a, b) in ((0,0), (0,1), (1,0), (1,1)):
            if (a, b) == (0, 1): p.wait(vm=f"f{s}_1")
            if (a, b) == (1, 0): p.wait(vm=f"f{s}_3")
            d = vr(ACC + (a*2+b)*16, 16)
            p.add([mfma32(d, fr(4*s+2+a), fr(4*s+b), "0" if s == 0 else d)])
            if s + PRE < KS:
                ld = loads(s+PRE); vm = [x for x in ld if x.kind == "vmem"]
                if (a, b) == (0, 0): p.add([x for x in ld if x.kind != "vmem"])
                p.add([vm[a*2+b]])
        if s == KS-6:
            p.wait(vm="x")
            for d_ in range(8):
                p(f"v_lshlrev_b32 v{FR0+2*d_}, 16, v{XR+d_}\nv_and_b32 v{FR0+2*d_+1}, 0xffff0000, v{XR+d_}")
        if VAR.get('fine') and s in (0, 5, 10, 15): st(p, 3 + s//5)
    st(p, 1)
    for i in range(1, 4):
        p(f"s_xor_b32 s46, s24, {i}\ns_mul_i32 s46, s46, 12288\ns_add_u32 s46, s46, {(i-1)*4096}\nv_add_u32 v{VT}, s46, v{VL}")
        for k in range(4): p(f"ds_write_b128 v{VT}, {vr(ACC+i*16+4*k,4)} offset:{k*1024}")
    p(f"s_mul_i32 s46, s24, 12288\nv_add_u32 v{VT}, s46, v{VL}\ns_waitcnt lgkmcnt(0)\ns_barrier")
    for k in range(12): p(f"ds_read_b128 {vr(ACC+16+4*k,4)}, v{VT} offset:{k*1024}", tag=f"r{k}")
    for r in range(16): p(f"v_add_f32 v{ACC+r}, v{ACC+r}, v{FR0+r}")
    for k in range(12):
        p.wait(lg=f"r{k}")
        for e in range(4): p(f"v_add_f32 v{ACC+(4*k+e)%16}, v{ACC+(4*k+e)%16}, v{ACC+16+4*k+e}")
    for d in range(8): p(f"v_cvt_pk_bf16_f32 v{XR+d}, v{ACC+2*d}, v{ACC+2*d+1}")
    p(f"buffer_store_dwordx4 {vr(XR,4)}, v{VO}, s[20:23], s44 offen")
    p(f"buffer_store_dwordx4 {vr(XR+4,4)}, v{VO}, s[20:23], s44 offen offset:32")
    st(p, 2)
    if stamp and DBGOUT is not None:
        p(f"s_cmp_lg_u32 s2, {DBGOUT}\ns_cbranch_scc1 L_end\ns_cmp_lg_u32 s24, 0\ns_cbranch_scc1 L_end")
        p(f"s_load_dwordx2 s[6:7], s[0:1], {KA_DBG}\ns_waitcnt vmcnt(0)")
        sel = [(0,0,15),(0,0,1),(0,0,2),(0,0,5),(0,0,7),(0,0,8),(0,0,9),(1,0,15),(1,0,1),(1,0,2),(1,0,3),(1,4,2),(1,4,3),(2,0,15),(2,0,1),(2,0,2)]
        for i, (k, w, sl) in enumerate(sel):
            off = STAMP + k*0x80000 + (DBGOUT*16 + w)*128 + sl*8 + 4
            p(f"v_mov_b32 v3, {off:#x}\nbuffer_load_dword v{100+i}, v3, s[12:15], 0 offen sc1")
        p("s_waitcnt vmcnt(0) lgkmcnt(0)")
        srd(p, 16, 6, 256)
        for i in range(16):
            p(f"v_sub_u32 v2, v{100+i}, v100\nbuffer_store_dword v2, off, s[16:19], 0 offset:{4*i}")
    p.label("L_end")
    p("s_endpgm")
    return p
K3_DESC = dict(name="k3_kernel", vgpr=256+4*(88-NVF), sgpr=102, accum=256, grid=256, block=256, lds=K3_LDS)
if __name__ == "__main__":
    import sys
    from build import build
    p = gen_k3(stamp=len(sys.argv)>1)
    l, errs = finalize("k3", p, verbose=False)
    build([dict(K3_DESC, l=l)], "out_k3.s")
```

```python
import sys
from build import build
from asmlib import finalize
import k1, k2, k3
stamp = 'st' in sys.argv
k3.DBGOUT = next((int(a[4:]) for a in sys.argv if a.startswith('dbg=')), None)
k2.SOLO = False; k3.SOLO = False
out = [a for a in sys.argv[1:] if a.endswith('.s')]
out = out[0] if out else "out_all.s"
for a in sys.argv:
    if a.startswith('v1:'): k1.VAR.update(eval(a[3:]))
    if a.startswith('v2:'): k2.VAR.update(eval(a[3:]))
    if a.startswith('v3:'): k3.VAR.update(eval(a[3:]))
l1, e1 = k1.finalize_k1(k1.gen_k1(stamp=stamp))
l2, e2 = finalize("k2", k2.gen_k2(stamp=stamp), paths=k2.k2_paths)
l3, e3 = finalize("k3", k3.gen_k3(stamp=stamp))
assert not (e1 or e2 or e3)
from asmlib import I
mod = [a[4:] for a in sys.argv if a.startswith('mod=')]
if mod:
    def addmod(l):
        out = []
        for x in l:
            if x.kind == 'vmem' and x.base == 'buffer_store_dwordx4' and 'sc1' not in x.text:
                x = I(x.text + ' ' + mod[0].replace('+', ' '))
            out.append(x)
        return out
    l1, l3 = addmod(l1), addmod(l3)
    if 'uplain' in sys.argv:
        g = next(i for i, x in enumerate(l2) if x.kind == 'label' and x.op == 'L_gemm'); h = next(i for i, x in enumerate(l2) if x.kind == 'label' and x.op == 'L_idle')
        l2 = addmod(l2[:g]) + l2[g:h] + addmod(l2[h:])
    else: l2 = addmod(l2)
if 'nost1' in sys.argv:
    l1 = [x for x in l1 if not (x.kind == 'vmem' and x.base == 'buffer_store_dwordx4' and 's88' not in x.text)]
if 'scr' in sys.argv:
    def scr(l):
        i = next(k for k, x in enumerate(l) if x.kind == 'branch')
        return l[:i+1] + [I("s_and_b32 s3, s2, 31"), I("s_lshl_b32 s3, s3, 3"), I("s_lshr_b32 s2, s2, 5"), I("s_or_b32 s2, s2, s3")] + l[i+1:]
    l1, l2, l3 = scr(l1), scr(l2), scr(l3)
build([dict(k1.K1_DESC, l=l1), dict(k2.K2_DESC, l=l2), dict(k3.K3_DESC, l=l3)] + ([dict(k3.K3_DESC, l=l3)] if 'k3x2' in sys.argv else []), out)
```

```python
import sys
from build import build
from asmlib import finalize
import k1, k2, k3
stamp = 'st' in sys.argv
k3.DBGOUT = next((int(a[4:]) for a in sys.argv if a.startswith('dbg=')), None)
k2.SOLO = False; k3.SOLO = False
out = [a for a in sys.argv[1:] if a.endswith('.s')]
out = out[0] if out else "out_all.s"
for a in sys.argv:
    if a.startswith('v1:'): k1.VAR.update(eval(a[3:]))
    if a.startswith('v2:'): k2.VAR.update(eval(a[3:]))
    if a.startswith('v3:'): k3.VAR.update(eval(a[3:]))
l1, e1 = k1.finalize_k1(k1.gen_k1(stamp=stamp))
l2, e2 = finalize("k2", k2.gen_k2(stamp=stamp), paths=k2.k2_paths)
l3, e3 = finalize("k3", k3.gen_k3(stamp=stamp))
assert not (e1 or e2 or e3)
from asmlib import I
mod = [a[4:] for a in sys.argv if a.startswith('mod=')]
if mod:
    def addmod(l):
        out = []
        for x in l:
            if x.kind == 'vmem' and x.base == 'buffer_store_dwordx4' and 'sc1' not in x.text:
                x = I(x.text + ' ' + mod[0].replace('+', ' '))
            out.append(x)
        return out
    l1, l3 = addmod(l1), addmod(l3)
    if 'uplain' in sys.argv:
        g = next(i for i, x in enumerate(l2) if x.kind == 'label' and x.op == 'L_gemm'); h = next(i for i, x in enumerate(l2) if x.kind == 'label' and x.op == 'L_idle')
        l2 = addmod(l2[:g]) + l2[g:h] + addmod(l2[h:])
    else: l2 = addmod(l2)
if 'nost1' in sys.argv:
    l1 = [x for x in l1 if not (x.kind == 'vmem' and x.base == 'buffer_store_dwordx4' and 's88' not in x.text)]
if 'scr' in sys.argv:
    def scr(l):
        i = next(k for k, x in enumerate(l) if x.kind == 'branch')
        return l[:i+1] + [I("s_and_b32 s3, s2, 31"), I("s_lshl_b32 s3, s3, 3"), I("s_lshr_b32 s2, s2, 5"), I("s_or_b32 s2, s2, s3")] + l[i+1:]
    l1, l2, l3 = scr(l1), scr(l2), scr(l3)
if 'plainld' in sys.argv:
    l2 = [I(x.text.replace(' sc1', '')) if (x.kind == 'vmem' and x.base == 'buffer_load_dwordx4' and 'sc1' in x.text and not ('s56' in x.text or 's57' in x.text or 's58' in x.text or 's59' in x.text)) else x for x in l2]
from asmlib import Prog
pe = Prog(); pe("s_endpgm")
EMP = dict(name="k0_kernel", l=pe.l, vgpr=8, sgpr=16, accum=8, grid=256, block=64, lds=0)
pre_ = [EMP]*sum(1 for a in sys.argv if a == 'epre'); post_ = [EMP]*sum(1 for a in sys.argv if a == 'epost')
build(pre_ + [dict(k1.K1_DESC, l=l1), dict(k2.K2_DESC, l=l2)] + ([] if k2.VAR['fuse3'] else [dict(k3.K3_DESC, l=l3)]) + ([dict(k3.K3_DESC, l=l3)] if 'k3x2' in sys.argv else []) + post_, out)
```

```python
from common import *
import struct, math
def fh(f): return hex(struct.unpack("<I", struct.pack("<f", f))[0])
K1_LDS = 163840
RING = 65536
BIAS = 3072
CNT = 3072
C0 = -2.0*math.sqrt(2.0/math.pi)*1.4426950408889634
A0, A1, A2, A3_ = 4, 20, 36, 52
LA = 2
WB = 68
CSF = 92
CSA = 100
T = 68
WC = 92; STQ = 96
SEL = 108; XC = 112
R1, RI, C0R, C1R = 116, 117, 118, 119
VXD = 116
VXR = 112
VL, VPI, VQ, VB = 120, 121, 122, 123
VA = 124
RR = 52
SX, Q0, Q1 = 52, 56, 60
VAR = dict(prio=True, per=1, rot=True, cpf=40960)
WI, WQ, XS = "s[16:19]", "s[20:23]", "s[24:27]"
SXE, SIE, SQE = 60, 64, 96

def dma1(lds_s, lds_c, sr, vo, sb, se, c, tag):
    return [I(f"s_add_u32 m0, s{lds_s}, {lds_c}"), I(f"s_add_u32 s69, s{sb}, s{se}"),
            I(f"buffer_load_dwordx4 v{vo}, {sr}, s69 offen offset:{c} lds" if False else f"s_add_u32 s69, s69, {c}"),
            I(f"buffer_load_dwordx4 v{vo}, {sr}, s69 offen lds", tag=tag)]
def E_addr(ks): return RING + ((ks//8)*24 + (ks%8)*3)*1024
def Z_addr(ks): return RING + ks*2048
def Q_addr(ks):
    if ks < 16: return RING + 65536 + ks*2048
    r = ks-16; return (r//4)*16384 + 8192 + (r%4)*2048
def dma_E(e):
    b = RING + e*24*1024
    return [dma1(58, b, WI, VPI, 80, SIE+e, 1792, f"E{e}"), dma1(58, b+1024, WI, VPI, 80, SIE+e, 1792+8*3584, f"E{e}"),
            dma1(58, b+2048, WQ, VQ, 81, SQE+e, 2048, f"E{e}")]
def dma_Z(e):
    b = RING + e*16384
    return [dma1(55, b, WI, VPI, 80, SIE+e, 0, f"Z{e}"), dma1(55, b+1024, WI, VPI, 80, SIE+e, 8*3584, f"Z{e}")]
def dma_Q(e):
    ls, b = (55, RING + 65536 + e*16384) if e < 2 else (54, (e-2)*32768 + 8192)
    return [dma1(ls, b, WQ, VQ, 82, SQE+e, 0, "Q"), dma1(ls, b+1024, WQ, VQ, 82, SQE+e, 8*3072, "Q")]
def x_dma(e):
    return [[I(f"s_add_u32 m0, s59, {(2*e % 4)*4096 + i*1024}"), I(f"s_add_u32 s69, s56, s{SXE+e}"),
             I(f"buffer_load_dwordx4 v{VXD+i}, {XS}, s69 offen lds", tag=f"X{e}")] for i in range(4)]
def flat(x): return sum(x, [])
def x_read(ks):
    return [I(f"ds_read_b128 {ar(4*ks,4)}, v{VXR+ks%4} offset:{((ks//4)%4)*4096}", tag=f"xr{ks}")]
class Addr:
    def __init__(self, base): self.base = base
    def off(self, addr, out, span=2048+1024+6*1024*2):
        if not (0 <= addr - self.base and addr - self.base + 1024 <= 65535):
            nb = addr if addr < self.base else addr
            d = (nb - self.base) & 0xffffffff
            out += [I(f"v_add_u32 v{VA+k}, {d:#x}, v{VA+k}") for k in range(4)]
            self.base = nb
        return addr - self.base
def tr_read(dst, areg, off, e2, tag):
    return [I(f"ds_read_b64_tr_b16 {vr(dst+2*e,2)}, v{areg} offset:{off+e2*e}", tag=tag) for e in range(2)]
def m16(d, b, first): return I(f"v_mfma_f32_16x16x32_bf16 {vr(d,4)}, {vr(SEL,4)}, {b}, {'0' if first else vr(d,4)}")
def stats_mfma(ks):
    x = 4*ks; z = ks == 0
    return [m16(SX, ar(x,4), z),
            I(f"v_mfma_f32_4x4x4_16b_bf16 {vr(Q0,4)}, {ar(x,2)}, {ar(x,2)}, {'0' if z else vr(Q0,4)}"),
            I(f"v_mfma_f32_4x4x4_16b_bf16 {vr(Q1,4)}, {ar(x+2,2)}, {ar(x+2,2)}, {'0' if z else vr(Q1,4)}")]
def wb(ks, ti): return WB + ((ks % (LA+1))*2 + ti)*4
def stl(st, k):
    q = Prog(); st(q, k); return q.l

def gemm_pass(accs, addr_of, base0, nori, tagp, e2, hooks=None, cs_tiles=None, stats=False):
    nt = len(accs)
    am = Addr(base0)
    def rd(ks, dst, regs, tag):
        o = []
        off = am.off(addr_of(ks), o)
        for ti in range(nt): o += tr_read(dst(ti), regs+ti, off, e2, tag)
        return o
    o = []
    for ks in range(LA): o += rd(ks, lambda ti: wb(ks,ti), VA, f"{tagp}{ks}")
    for ks in range(32):
        pre = W(lg=[f"{tagp}{ks}", f"xr{ks}"])
        mf = []
        for ti in range(nt):
            w = vr(wb(ks,ti),4); x = ar(4*ks,4); d = vr(accs[ti],16)
            mf.append(mfma32(d, x, w, "0" if ks == 0 else d) if nori else mfma32(d, w, x, "0" if ks == 0 else d))
        h0, h1, h2 = hooks(ks) if hooks else ([], [], [])
        post = list(h0)
        tail = []
        if ks % 4 == 0 and cs_tiles:
            post += rd(ks, lambda ti: CSF+4*ti, VA+2, f"c{tagp}{ks}")
        if ks+LA < 32: post += rd(ks+LA, lambda ti: wb(ks+LA,ti), VA, f"{tagp}{ks+LA}")
        post += h1
        if ks % 4 == 1 and cs_tiles:
            pre.lg.append(f"c{tagp}{ks-1}")
            for ti in range(nt): tail.append(m16(CSA+4*ti, vr(CSF+4*ti,4), ks == 1))
        if ks == 30 and cs_tiles:
            tail.append(I(f"v_lshl_add_u32 v3, v1, 2, s57"))
            for ti in range(nt): tail.append(I(f"ds_write_b32 v3, v{CSA+4*ti} offset:{cs_tiles[ti]*256}"))
        if stats: tail += stats_mfma(ks)
        tail += h2
        o += [pre] + mf[:1] + post + mf[1:] + tail
    return o

def phase1_hooks(st):
    sched = {}
    def spread(pcs, first, per):
        pcs = list(pcs); k = first
        while pcs:
            for _ in range(per):
                if pcs: sched.setdefault(k, []).append(pcs.pop(0))
            k += 1
    spread(dma_E(2) + dma_E(3), 0, 1)
    spread(x_dma(2) + dma_Z(0), 8-LA, VAR['per'])
    spread(x_dma(3) + dma_Z(1) + dma_Z(2), 16-LA, VAR['per'])
    spread(dma_Z(3), 24-LA, VAR['per'])
    def hooks(ks):
        e, r8 = divmod(ks, 8)
        h0 = []; h1 = []
        if r8 == 8-LA and e < 3:
            h0 = [W(vm=[f"X{e+1}", f"E{e+1}"], lg0=True), I("s_barrier")] + stl(st, 2+e)
        if r8 >= 8-LA and e < 3:
            k0 = 8*(e+1) + 2*(r8-(8-LA)); h1 += x_read(k0) + x_read(k0+1)
        if r8 < 4: h1 += x_read(8*e+4+r8)
        return h0, h1, flat(sched.get(ks, []))
    return hooks

def set_va(p, pair, base, mstride):
    sh = 7 if pair else 6
    p(f"""
    v_lshrrev_b32 v2, 5, v1
    v_lshlrev_b32 v{VA}, {sh+3}, v2
    v_bfe_u32 v3, v1, 2, 2
    v_lshl_add_u32 v{VA}, v3, {sh}, v{VA}
    v_bfe_u32 v3, v1, 4, 1
    v_lshl_add_u32 v{VA}, v3, 5, v{VA}
    v_and_b32 v3, 1, v1
    v_lshl_add_u32 v{VA}, v3, 4, v{VA}
    v_bfe_u32 v3, v1, 1, 1
    v_lshl_add_u32 v{VA}, v3, 3, v{VA}
    """)
    if pair: p(f"v_bfe_u32 v3, v1, 3, 1\nv_lshl_add_u32 v{VA}, v3, 6, v{VA}")
    p(f"""
    v_add_u32 v{VA}, {base}, v{VA}
    s_mul_i32 s34, s29, {mstride}
    v_xor_b32 v{VA+1}, 64, v{VA}
    v_add_u32 v{VA+2}, s34, v{VA}
    v_add_u32 v{VA+3}, s34, v{VA+1}
    """)

def corr_from(b, d, nori):
    o = [I(f"v_sub_f32 v{b}, 0, v{b}"),
         I(f"v_cvt_pk_bf16_f32 v{WC+1}, v{b}, 0"),
         I(f"v_lshlrev_b32 v{b+1}, 16, v{WC+1}"),
         I(f"v_sub_f32 v{b+1}, v{b}, v{b+1}"),
         I(f"v_cvt_pk_bf16_f32 v{WC}, v{b}, v{b+1}")]
    a_, b_ = (vr(XC,4), vr(WC,4)) if nori else (vr(WC,4), vr(XC,4))
    o.append(mfma32(vr(d,16), a_, b_, vr(d,16)))
    return o
def cs_reads(tiles, tag):
    o = [I(f"v_lshlrev_b32 v2, 2, v1")]
    for k, tl in enumerate(tiles):
        for w in range(4): o.append(I(f"ds_read_b32 v{T+4*k+w}, v2 offset:{w*16384 + tl*256}", tag=tag))
    return o
def cs_corr(accs, nori, tag):
    o = [I(f"v_mov_b32 v{WC+2}, 0"), I(f"v_mov_b32 v{WC+3}, 0"), W(lg=tag)]
    for k, d in enumerate(accs):
        b = T+4*k
        o += [I(f"v_add_f32 v{b}, v{b}, v{b+1}"), I(f"v_add_f32 v{b+2}, v{b+2}, v{b+3}"), I(f"v_add_f32 v{b}, v{b}, v{b+2}")]
        o += corr_from(b, d, nori)
    return o

def ln1_final(g, S, Q):
    o = Prog()
    o(f"""
    v_mul_f32 v{S}, {fh(1/512)}, v{S}
    v_cndmask_b32 v{S+1}, v{S}, 0, s[74:75]
    v_mul_f32 v{S+2}, v{S}, v{S}
    v_cvt_pk_bf16_f32 v{XC}, v{S+1}, v{S+1}
    v_fma_f32 v{Q}, v{Q}, s76, -v{S+2}
    v_and_b32 v{S+3}, 0xffff0000, v{XC}
    v_max_f32 v{Q}, 0, v{Q}
    v_sub_f32 v{S+3}, v{S+1}, v{S+3}
    v_add_f32 v{Q}, {fh(1e-5)}, v{Q}
    v_cvt_pk_bf16_f32 v{XC+1}, v{S+3}, 0
    v_rsq_f32 v{R1}, v{Q}
    v_mov_b32 v{XC+2}, 0
    v_mov_b32 v{XC+3}, 0
    """)
    rr = RR if g == 0 else A1
    tb = 4096 + 512*g
    o(f"""
    v_lshl_add_u32 v3, v{VB}, 2, s57
    ds_write_b32 v3, v{R1} offset:{tb}
    v_lshrrev_b32 v3, 5, v1
    v_lshl_add_u32 v3, v3, 5, s57
    s_waitcnt lgkmcnt(0)
    """)
    for k in range(4): o(f"ds_read_b128 {vr(rr+4*k,4)}, v3 offset:{tb + (k//2)*64 + (k%2)*16}", tag="rr")
    if g == 0:
        o(f"v_mov_b32 v{C0R}, {fh(C0)}")
    else:
        o(f"""
        v_sqrt_f32 v{RI}, v{Q}
        v_mul_f32 v{C0R}, {fh(C0)}, v{R1}
        v_mul_f32 v{C1R}, v{R1}, v{R1}
        v_mul_f32 v{C1R}, v{C1R}, v{C0R}
        v_mul_f32 v{C1R}, {fh(0.044715)}, v{C1R}
        """)
    return o.l

def gelu_T(a, P0):
    o = []
    for g in range(0, 16, 4):
        rs = range(g, g+4); tt = lambda r: T + (r % 4)
        o += [I(f"v_mul_f32 v{tt(r)}, v{a+r}, v{a+r}") for r in rs]
        o += [I(f"v_fma_f32 v{tt(r)}, v{tt(r)}, v{C1R}, v{C0R}") for r in rs]
        o += [I(f"v_mul_f32 v{tt(r)}, v{tt(r)}, v{a+r}") for r in rs]
        o += [I(f"v_exp_f32 v{tt(r)}, v{tt(r)}") for r in rs]
        o += [I(f"v_fma_f32 v{tt(r)}, v{tt(r)}, v{RI}, v{RI}") for r in rs]
        o += [I(f"v_rcp_f32 v{tt(r)}, v{tt(r)}") for r in rs]
        o += [I(f"v_mul_f32 v{a+r}, v{a+r}, v{tt(r)}") for r in rs]
        o += [I(f"v_cvt_pk_bf16_f32 v{P0+r//2}, v{a+r}, v{a+r+1}") for r in (g, g+2)]
    return o
def gelu_N(a):
    o = []
    for g in range(0, 16, 4):
        rs = range(g, g+4); tt = lambda r: T + (r % 4)
        o += [I(f"v_mul_f32 v{a+r}, v{a+r}, v{RR+r}") for r in rs]
        o += [I(f"v_mul_f32 v{tt(r)}, v{a+r}, v{a+r}") for r in rs]
        o += [I(f"v_fma_f32 v{tt(r)}, v{tt(r)}, s77, v{C0R}") for r in rs]
        o += [I(f"v_mul_f32 v{tt(r)}, v{tt(r)}, v{a+r}") for r in rs]
        o += [I(f"v_exp_f32 v{tt(r)}, v{tt(r)}") for r in rs]
        o += [I(f"v_add_f32 v{tt(r)}, 1.0, v{tt(r)}") for r in rs]
        o += [I(f"v_rcp_f32 v{tt(r)}, v{tt(r)}") for r in rs]
        o += [I(f"v_mul_f32 v{a+r}, v{a+r}, v{tt(r)}") for r in rs]
    return o

def z2_stats():
    o = []
    a0, a1 = A0, A1
    for hf in range(2):
        S1 = lambda r: T + 4 + r
        S2 = lambda r: T + 12 + r
        for r in range(8):
            R = hf*8 + r
            o.append(I(f"v_mul_f32 v{S2(r)}, v{a0+R}, v{a0+R}"))
            o.append(I(f"v_add_f32 v{S1(r)}, v{a0+R}, v{a1+R}"))
        for r in range(8): o.append(I(f"v_fmac_f32 v{S2(r)}, v{a1+hf*8+r}, v{a1+hf*8+r}"))
        for S in (S1, S2):
            for r in range(4): o.append(I(f"v_permlane16_swap_b32 v{S(r)}, v{S(r+4)}"))
        for S in (S1, S2):
            for r in range(4): o.append(I(f"v_add_f32 v{S(r)}, v{S(r)}, v{S(r+4)}"))
        for S in (S1, S2):
            for r in range(2): o.append(I(f"v_add_f32_dpp v{S(r+4)}, v{S(r)}, v{S(r)} row_ror:8 row_mask:0xf bank_mask:0x3"))
        for S in (S1, S2):
            for r in range(2): o.append(I(f"v_add_f32_dpp v{S(r+4)}, v{S(r+2)}, v{S(r+2)} row_ror:8 row_mask:0xf bank_mask:0xc"))
        for S in (S1, S2): o.append(I(f"v_add_f32_dpp v{S(0)}, v{S(4)}, v{S(4)} row_half_mirror row_mask:0xf bank_mask:0x5"))
        for S in (S1, S2): o.append(I(f"v_add_f32_dpp v{S(0)}, v{S(5)}, v{S(5)} row_half_mirror row_mask:0xf bank_mask:0xa"))
        for S in (S1, S2): o.append(I(f"v_add_f32_dpp v{S(0)}, v{S(0)}, v{S(0)} quad_perm:[1,0,3,2] row_mask:0xf bank_mask:0xf"))
        for k, S in enumerate((S1, S2)): o.append(I(f"v_add_f32_dpp v{STQ+2*hf+k}, v{S(0)}, v{S(0)} quad_perm:[2,3,0,1] row_mask:0xf bank_mask:0xf"))
    return o

def prio(p, n):
    if VAR['prio']: p(f"s_setprio {n}")

def gen_k1(stamp=False):
    p = Prog()
    st = Stamper(stamp, 28, 0)
    entry_stamp(p, stamp)
    p(f"""
    s_cmp_ge_u32 s2, 256
    s_cbranch_scc1 L_end
    s_load_dwordx4 s[4:7], s[0:1], {KA_X}
    s_load_dwordx2 s[8:9], s[0:1], {KA_WIN}
    s_load_dwordx2 s[50:51], s[0:1], {KA_WS}
    v_and_b32 v1, 63, v0
    v_lshrrev_b32 v2, 6, v0
    v_readfirstlane_b32 s28, v2                 ; wave 0..7
    s_and_b32 s29, s2, 7
    s_lshr_b32 s30, s2, 3
    s_and_b32 s31, s29, 1
    s_lshl_b32 s31, s31, 3
    s_and_b32 s32, s30, 7
    s_add_u32 s31, s31, s32                     ; rb
    s_lshr_b32 s32, s29, 1
    s_lshl_b32 s32, s32, 2
    s_lshr_b32 s33, s30, 3
    s_add_u32 s32, s32, s33                     ; cg
    v_lshrrev_b32 v2, 3, v1
    v_lshrrev_b32 v3, 4, v1
    v_xor_b32 v{VXD}, v3, v1
    v_and_b32 v{VXD}, 7, v{VXD}
    v_lshlrev_b32 v{VXD}, 4, v{VXD}
    v_lshl_add_u32 v{VXD}, v2, 10, v{VXD}
    v_and_b32 v3, 1, v3
    v_lshlrev_b32 v3, 2, v3
    v_xor_b32 v3, v3, v1
    v_and_b32 v3, 7, v3
    v_lshlrev_b32 v{VB}, 4, v3
    v_mul_u32_u24 v{VPI}, 3584, v2
    v_add_u32 v{VPI}, v{VPI}, v{VB}
    v_lshrrev_b32 v2, 2, v1
    v_and_b32 v3, 3, v1
    v_lshlrev_b32 v3, 4, v3
    v_mul_u32_u24 v{VQ}, 3072, v2
    v_add_u32 v{VQ}, v{VQ}, v3
    s_and_b32 s29, s28, 3                       ; m tile
    s_lshr_b32 s30, s28, 2                      ; group
    s_lshl_b32 s33, s31, 2
    s_add_u32 s33, s33, s29                     ; tt
    s_lshl_b32 s56, s33, 15
    s_lshl_b32 s34, s30, 7
    s_add_u32 s56, s56, s34
    s_lshl_b32 s57, s29, 14
    s_lshl_b32 s34, s30, 12
    s_add_u32 s59, s57, s34
    s_mul_i32 s58, s28, 3072
    s_lshl_b32 s55, s28, 11
    s_lshl_b32 s54, s30, 14
    s_lshl_b32 s34, s29, 11
    s_add_u32 s54, s54, s34
    v_xor_b32 v{VXD+1}, 64, v{VXD}
    v_add_u32 v{VXD+2}, 16384, v{VXD}
    v_add_u32 v{VXD+1}, 8192, v{VXD+1}
    v_add_u32 v{VXD+3}, 16384, v{VXD+1}
    s_mul_i32 s80, s28, {16*3584}
    s_lshl_b32 s35, s32, 7
    s_add_u32 s80, s80, s35
    s_mul_i32 s81, s28, {16*3072}
    s_lshl_b32 s35, s32, 6
    s_and_b32 s34, s32, 1
    s_mul_i32 s34, s34, {1024-64}
    s_add_u32 s82, s81, s34
    s_add_u32 s81, s81, s35
    s_add_u32 s82, s82, s35
    {"s_add_u32 s35, s31, s32" if VAR['rot'] else "s_mov_b32 s35, 0"}
    """)
    for e in range(4):
        p(f"s_add_u32 s34, s35, {e}\ns_and_b32 s34, s34, 3\ns_lshl_b32 s{SXE+e}, s34, 8\ns_mul_i32 s{SIE+e}, s34, {128*3584}\ns_mul_i32 s{SQE+e}, s34, {128*3072}")
    p(f"""
    s_cmp_lt_u32 s32, 14
    s_cselect_b32 s18, {512*3584}, 0
    s_cselect_b32 s42, {WS_USED}, 0
    s_mov_b32 s19, 0x20000
    s_mov_b32 s43, 0x20000
    s_waitcnt lgkmcnt(0)
    s_mov_b32 s16, s8
    s_mov_b32 s17, s9
    """)
    srd(p, 24, 4, 2048*1024); srd(p, 20, 6, 512*3072)
    p.add(flat(x_dma(0))); p.add(flat(dma_E(0)))
    srd(p, 12, 50, WS_USED)
    p("s_mov_b32 s40, s50\ns_mov_b32 s41, s51")
    st(p, 0); entry_store(p, st)
    p(f"v_and_b32 v{VB}, 31, v1")
    bitswap23(p, VB, VB, 3)
    p(f"""
    v_lshrrev_b32 v3, 1, v{VB}
    v_lshrrev_b32 v2, 5, v1
    v_xor_b32 v3, v3, v2
    v_and_b32 v3, 7, v3
    v_lshlrev_b32 v3, 4, v3
    v_lshl_add_u32 v{VXR}, v{VB}, 7, v3
    v_add_u32 v{VXR}, s57, v{VXR}
    v_xor_b32 v{VXR+1}, 32, v{VXR}
    v_xor_b32 v{VXR+2}, 64, v{VXR}
    v_xor_b32 v{VXR+3}, 96, v{VXR}
    """)
    if VAR.get('b00', False): p("s_barrier")
    p.add(flat(x_dma(1))); p.add(flat(dma_E(1)))
    if VAR.get('cpf'): code_prefetch(p, 28, 3, "a127", 36, "L_cpf")
    p(f"s_lshl_b32 s34, s2, 7\ns_add_u32 s34, s34, {OFL}\ns_lshl_b32 s35, s28, 8\ns_add_u32 s35, s35, s2\ns_cmp_lt_u32 s35, 72\ns_cselect_b32 s34, s34, 0x7fffff00")
    p(f"v_and_b32 v3, 31, v1\nv_lshlrev_b32 v3, 2, v3\nv_mov_b32 v2, 0\nbuffer_store_dword v2, v3, s[12:15], s34 offen")
    p(f"s_lshl_b32 s79, s31, 7\ns_add_u32 s79, s79, {FLG}")
    p(f"buffer_load_dword v0, off, s[12:15], s79 sc1", tag="old")
    p(f"""
    v_lshlrev_b32 v{VL}, 4, v1
    v_and_b32 v3, 3, v1
    v_cmp_eq_u32 vcc, 0, v3
    v_lshrrev_b32 v3, 2, v1
    v_lshrrev_b32 v2, 4, v1
    v_xor_b32 v3, v3, v2
    v_and_b32 v3, 1, v3
    v_cmp_eq_u32 s[34:35], 0, v3
    s_and_b64 vcc, vcc, s[34:35]
    v_mov_b32 v3, 0x3f803f80
    v_cndmask_b32 v{SEL}, 0, v3, vcc
    v_mov_b32 v{SEL+1}, v{SEL}
    v_mov_b32 v{SEL+2}, v{SEL}
    v_mov_b32 v{SEL+3}, v{SEL}
    v_cmp_lt_u32 s[74:75], 31, v1
    s_mov_b32 s76, {fh(1/512)}
    s_cmp_eq_u32 s30, 1
    s_cbranch_scc1 L_g1
    """)
    def start(p):
        if VAR.get('fine'):
            st(p, 10); p.wait(vm="X0"); st(p, 11); p.wait(vm="E0"); st(p, 12)
        p.wait(vm=["X0", "E0"]); p("s_barrier"); st(p, 1)
        for ks in range(4): p.add(x_read(ks))
    def qdma(p):
        p(f"""
        v_lshrrev_b32 v2, 3, v1
        v_mul_u32_u24 v{VQ}, 512, v2
        v_sub_u32 v{VQ}, v{VPI}, v{VQ}
        """)
        for e in range(4): p.add(flat(dma_Q(e)))
    set_va(p, True, RING, 3072)
    p(f"""
    s_mov_b32 s77, {fh(C0*0.044715)}
    s_lshr_b32 s34, s32, 1
    s_lshl_b32 s83, s34, 19
    s_lshl_b32 s35, s33, 13
    s_add_u32 s83, s83, s35
    s_and_b32 s35, s32, 1
    s_lshl_b32 s35, s35, 11
    s_add_u32 s83, s83, s35
    s_add_u32 s83, s83, {Z2F}
    s_add_u32 s84, s83, 4096
    s_lshl_b32 s87, s33, 13
    s_add_u32 s87, s87, {STAT}
    s_lshl_b32 s35, s32, 9
    s_add_u32 s88, s87, s35
    s_lshl_b32 s85, s34, 18
    s_lshl_b32 s35, s33, 10
    s_add_u32 s85, s85, s35
    s_mul_i32 s86, s34, {4*KVH}
    s_mul_i32 s35, s33, {KVT}
    s_add_u32 s86, s86, s35
    s_add_u32 s86, s86, {KV}
    s_bitcmp1_b32 s32, 0
    s_cselect_b32 s85, s86, s85
    s_mov_b32 s86, {KVH}
    s_cselect_b32 s86, s86, 0x10000
    s_mov_b32 s78, {fh(0.25*1.4426950408889634)}
    s_cselect_b32 s78, 1.0, s78                  ; scale
    """)
    prio(p, 1)
    start(p)
    p.add(gemm_pass([A0, A1], E_addr, RING, True, "w", 512, hooks=phase1_hooks(st), cs_tiles=[0, 1]))
    p.wait(vm=["Z0","Z1","Z2","Z3"], lg0=True)
    p("s_barrier")
    st(p, 5)
    prio(p, 0)
    p(f"v_lshl_add_u32 v3, v1, 2, s57")
    p(f"ds_read_b32 v{T+16}, v3 offset:2048", tag="raw"); p(f"ds_read_b32 v{T+20}, v3 offset:2304", tag="raw")
    p.add(cs_reads([0, 1], "cs0"))
    qdma(p)
    p.wait(lg="raw")
    p.add(ln1_final(0, T+16, T+20))
    p.add(cs_corr([A0, A1], True, "cs0"))
    p.wait(lg="rr")
    p.add(gelu_N(A0)); p.add(gelu_N(A1)); p.add(z2_stats())
    p(f"""
    v_and_b32 v3, 1, v1
    v_cmp_eq_u32 vcc, 1, v3
    v_bfe_u32 v2, v1, 2, 1
    v_lshl_add_u32 v2, v3, 4, v2
    v_bfe_u32 v3, v1, 3, 1
    v_lshl_add_u32 v2, v3, 1, v2
    v_bfe_u32 v3, v1, 4, 2
    v_lshl_add_u32 v2, v3, 2, v2                ; row = 16*(l&1) + 8h + 4b4 + 2b3 + b2
    v_lshlrev_b32 v2, 4, v2
    v_add_u32 v0, 1, v0
    v_cndmask_b32 v{STQ}, v{STQ}, v{STQ+2}, vcc
    v_cndmask_b32 v{STQ+2}, v{STQ+1}, v{STQ+3}, vcc
    v_mov_b32 v{STQ+1}, v0
    v_mov_b32 v{STQ+3}, v0
    buffer_store_dwordx4 {vr(STQ,4)}, v2, s[40:43], s88 offen sc1
    """)
    set_va(p, True, RING+65536, 2048)
    st(p, 6)
    p.wait(vm=["Q"], lg0=True)
    p("s_barrier")
    prio(p, 1)
    st(p, 7)
    PS = VAR.get('pstep', 24)
    def part_loads():
        o = [I("v_and_b32 v2, 31, v1"), I("v_lshlrev_b32 v2, 4, v2"), I("v_lshrrev_b32 v3, 5, v1"), I("v_mul_u32_u24 v3, 3584, v3"), I("v_add_u32 v2, v2, v3")]
        for k in range(7):
            o.append(I(f"buffer_load_dwordx4 {ar(4*k,4)}, v2, s[40:43], s87 offen offset:{k*512} sc1", tag="part"))
        return o
    pl = part_loads()
    def qhooks(ks):
        if ks == PS: return [], [], pl[:8]
        if ks == PS+1: return [], [], pl[8:10]
        if ks == PS+2: return [], [], pl[10:]
        return [], [], []
    p.add(gemm_pass([A2, A3_], Q_addr, RING+65536, False, "q", 512, hooks=qhooks, cs_tiles=None if VAR.get('csq', False) else [5, 6]))
    p("s_waitcnt lgkmcnt(0)\ns_barrier")
    st(p, 8)
    p.add(cs_reads([5, 6], "cs3"))
    p.add(cs_corr([A2, A3_], False, "cs3"))
    p(f"v_mul_f32 v{R1}, s78, v{R1}")
    for a in (A2, A3_):
        for r in range(16): p(f"v_mul_f32 v{a+r}, v{a+r}, v{R1}")
        for d in range(8): p(f"v_cvt_pk_bf16_f32 v{a+d}, v{a+2*d}, v{a+2*d+1}")
        p(f"buffer_store_dwordx4 {vr(a,4)}, v{VL}, s[12:15], s85 offen\ns_add_u32 s85, s85, s86")
        p(f"buffer_store_dwordx4 {vr(a+4,4)}, v{VL}, s[12:15], s85 offen\ns_add_u32 s85, s85, s86")
    p("s_cmp_ge_u32 s32, 14\ns_cbranch_scc1 L_end")
    p(f"s_mov_b32 s34, 0\ns_mov_b32 s35, {fh(1/896)}")
    p.wait(vm="part")
    p.label("L_chk")
    b = T+8
    p(f"v_accvgpr_read_b32 v{b}, a0\nv_accvgpr_read_b32 v{b+1}, a2\nv_accvgpr_read_b32 v{b+2}, a1\nv_accvgpr_read_b32 v{b+3}, a3")
    p(f"v_xor_b32 v{b+2}, v{b+2}, v0\nv_xor_b32 v{b+3}, v{b+3}, v0\nv_or_b32 v{b+2}, v{b+2}, v{b+3}")
    for k in range(1, 7):
        for e in range(4): p(f"v_accvgpr_read_b32 v{b+4+e}, a{4*k+e}")
        p(f"v_add_f32 v{b}, v{b}, v{b+4}\nv_add_f32 v{b+1}, v{b+1}, v{b+6}")
        p(f"v_xor_b32 v{b+5}, v{b+5}, v0\nv_xor_b32 v{b+7}, v{b+7}, v0\nv_or3_b32 v{b+2}, v{b+2}, v{b+5}, v{b+7}")
    p(f"v_cmp_ne_u32 vcc, 0, v{b+2}\ns_cbranch_vccnz L_retry")
    p.label("L_chk_ok")
    p(f"""
    v_mov_b32 v{b+2}, v{b}
    v_mov_b32 v{b+3}, v{b+1}
    v_and_b32 v2, 31, v1
    v_permlane32_swap_b32 v{b}, v{b+2}
    v_permlane32_swap_b32 v{b+1}, v{b+3}
    v_lshl_add_u32 v2, v2, 2, s57
    v_add_f32 v{b}, v{b}, v{b+2}
    v_add_f32 v{b+1}, v{b+1}, v{b+3}
    v_mul_f32 v{b}, s35, v{b}
    v_mul_f32 v{b+2}, v{b}, v{b}
    v_fma_f32 v{b+1}, v{b+1}, s35, -v{b+2}
    v_max_f32 v{b+1}, 0, v{b+1}
    v_add_f32 v{b+1}, {fh(1e-5)}, v{b+1}
    v_rsq_f32 v{b+1}, v{b+1}
    v_lshrrev_b32 v3, 5, v1
    v_lshl_add_u32 v3, v3, 5, s57
    v_mul_f32_e64 v{b}, -v{b}, v{b+1}
    ds_write_b32 v2, v{b+1} offset:4096
    ds_write_b32 v2, v{b} offset:4224
    s_or_b32 s34, s32, s28
    s_cmp_eq_u32 s34, 0
    s_cselect_b32 s79, s79, 0x7fffff00
    s_waitcnt lgkmcnt(0)
    """)
    R2 = A2+8; NM = T+8
    R2 = CSF
    for k in range(4): p(f"ds_read_b128 {vr(R2+4*k,4)}, v3 offset:{4096 + (k//2)*64 + (k%2)*16}", tag="r2")
    for k in range(4): p(f"ds_read_b128 {vr(NM+4*k,4)}, v3 offset:{4096 + 128 + (k//2)*64 + (k%2)*16}", tag="r2")
    p.wait(lg="r2")
    for t in range(2):
        a = A0 + 16*t
        for r in range(16): p(f"v_fma_f32 v{a+r}, v{a+r}, v{R2+r}, v{NM+r}")
        for d in range(8): p(f"v_cvt_pk_bf16_f32 v{a+d}, v{a+2*d}, v{a+2*d+1}")
        p(f"buffer_store_dwordx4 {vr(a,4)}, v{VL}, s[12:15], s83 offen offset:{t*1024}")
        p(f"buffer_store_dwordx4 {vr(a+4,4)}, v{VL}, s[12:15], s84 offen offset:{t*1024}")
    p("buffer_store_dword v0, off, s[12:15], s79 sc1")
    st(p, 9)
    p("s_endpgm")
    p.label("L_retry")
    p("s_add_u32 s34, s34, 1\ns_cmp_gt_u32 s34, 0x40000\ns_cbranch_scc1 L_chk_ok")
    p.add(part_loads())
    p("s_waitcnt vmcnt(0)\ns_branch L_chk")
    p.label("L_g1")
    set_va(p, False, RING+2048, 3072)
    p(f"""
    s_load_dwordx2 s[36:37], s[0:1], {KA_WSP}
    v_and_b32 v3, 1, v1
    v_cmp_eq_u32 s[70:71], 1, v3
    v_and_b32 v3, 2, v1
    v_cmp_eq_u32 s[72:73], 2, v3
    s_mul_i32 s83, s33, {56*1024}
    s_lshl_b32 s34, s32, 12
    s_add_u32 s83, s83, s34
    s_add_u32 s83, s83, {Z1F}
    s_mul_i32 s85, s32, {2*KVH}
    s_mul_i32 s34, s33, {KVT}
    s_add_u32 s85, s85, s34
    s_add_u32 s85, s85, {KV}
    s_waitcnt lgkmcnt(0)
    """)
    prio(p, 1)
    start(p)
    p.add(gemm_pass([A0], lambda ks: E_addr(ks)+2048, RING+2048, True, "w", 256, hooks=phase1_hooks(st), cs_tiles=[2], stats=True))
    p(f"""
    v_add_f32 v{Q0}, v{Q0}, v{Q1}
    v_add_f32 v{Q0+1}, v{Q0+1}, v{Q1+1}
    v_add_f32 v{Q0+2}, v{Q0+2}, v{Q1+2}
    v_add_f32 v{Q0+3}, v{Q0+3}, v{Q1+3}
    v_cndmask_b32 v{Q0}, v{Q0}, v{Q0+1}, s[70:71]
    v_cndmask_b32 v{Q0+2}, v{Q0+2}, v{Q0+3}, s[70:71]
    ds_write_b32 v3, v{SX} offset:2048
    v_cndmask_b32 v{Q0}, v{Q0}, v{Q0+2}, s[72:73]
    v_mov_b32 v{Q1}, v{Q0}
    v_permlane32_swap_b32 v{Q0}, v{Q1}
    v_add_f32 v{Q0}, v{Q0}, v{Q1}
    ds_write_b32 v3, v{Q0} offset:2304
    """)
    p.wait(vm=["Z0","Z1","Z2","Z3"], lg0=True)
    p("s_barrier")
    st(p, 5)
    p.add(cs_reads([2], "cs1"))
    p.add(ln1_final(1, SX, Q0))
    p.add(cs_corr([A0], True, "cs1"))
    set_va(p, True, RING, 2048)
    qd = Prog(); qdma(qd)
    zp = gemm_pass([A2, A3_], Z_addr, RING, False, "z", 512, cs_tiles=[3, 4])
    e = Prog()
    e(f"""
    s_mov_b32 s77, {KVH}
    v_bfe_u32 v3, v1, 4, 1
    v_mul_lo_u32 v{VB}, v3, s77
    v_and_b32 v3, 15, v1
    v_lshl_add_u32 v{VB}, v3, 4, v{VB}
    v_lshrrev_b32 v3, 5, v1
    v_lshl_add_u32 v{VB}, v3, 8, v{VB}
    """)
    e.wait(lg="rr")
    for r in range(16): e(f"v_mul_f32 v{A0+r}, v{A0+r}, v{A1+r}")
    for d in range(8): e(f"v_cvt_pk_bf16_f32 v{A0+d}, v{A0+2*d}, v{A0+2*d+1}")
    e(f"buffer_store_dwordx4 {vr(A0,4)}, v{VB}, s[12:15], s85 offen offset:1024")
    e(f"buffer_store_dwordx4 {vr(A0+4,4)}, v{VB}, s[12:15], s85 offen offset:1536")
    for r in range(4): e(f"v_mov_b32 v{A1+r}, 0x3f803f80\nv_mov_b32 v{A1+4+r}, 0")
    if VAR.get('wpf', 0):
        e(f"""
        s_and_b32 s34, s2, 7
        s_lshl_b32 s34, s34, 20
        s_lshr_b32 s35, s2, 3
        s_lshl_b32 s35, s35, 2
        s_add_u32 s35, s35, s29
        s_lshl_b32 s35, s35, 13
        s_add_u32 s34, s34, s35
        """)
        if VAR.get('wpf', 0) == 1:
            e("v_lshl_add_u32 v3, v1, 7, s34\nglobal_load_dword a0, v3, s[36:37]")
        else:
            e(f"v_add_u32 v3, s34, v{VL}")
            for k in range(8):
                if k == 4: e("v_add_u32 v3, 0x1000, v3")
                e(f"global_load_dwordx4 a[0:3], v3, s[36:37] offset:{(k%4)*1024}")
    p.add(interleave(zp, qd.l + e.l, per_gap=2, start=1))
    p(f"s_mov_b64 exec, 0x10001\nbuffer_store_dwordx4 {vr(A1,4)}, v{VB}, s[12:15], s85 offen offset:2048\nbuffer_store_dwordx4 {vr(A1+4,4)}, v{VB}, s[12:15], s85 offen offset:2064\ns_mov_b64 exec, -1")
    st(p, 6)
    p.wait(vm=["Q"], lg0=True)
    p("s_barrier")
    prio(p, 0)
    st(p, 7)
    if VAR.get('csq', False):
        set_va(p, True, RING+65536, 2048)
        am = Addr(RING+65536)
        def rdq(j):
            o = []; off = am.off(Q_addr(4*j), o)
            for ti in range(2): o += tr_read(WB+((j%3)*2+ti)*4, VA+2+ti, off, 512, f"cq{j}")
            return o
        p.add(rdq(0)); p.add(rdq(1))
        for j in range(8):
            if j+2 < 8: p.add(rdq(j+2))
            p.wait(lg=f"cq{j}")
            for ti in range(2): p.add([m16(CSA+4*ti, vr(WB+((j%3)*2+ti)*4,4), j == 0)])
        p(f"v_lshl_add_u32 v3, v1, 2, s57")
        for ti in range(2): p(f"ds_write_b32 v3, v{CSA+4*ti} offset:{(5+ti)*256}")
        p("s_waitcnt lgkmcnt(0)")
    p("s_cmp_ge_u32 s32, 14\ns_cbranch_scc1 L_end")
    p.add(cs_reads([3, 4], "cs2"))
    p.add(cs_corr([A2, A3_], False, "cs2"))
    st(p, 8)
    for k, a in enumerate((A2, A3_)):
        p.add(gelu_T(a, T+4+8*k))
        p(f"buffer_store_dwordx4 {vr(T+4+8*k,4)}, v{VL}, s[40:43], s83 offen offset:{k*2048}")
        p(f"buffer_store_dwordx4 {vr(T+8+8*k,4)}, v{VL}, s[40:43], s83 offen offset:{k*2048+1024}")
    st(p, 9)
    p("s_endpgm")
    p.label("L_end")
    p("s_endpgm")
    return p

def split_groups(l):
    lab = {x.op: i for i, x in enumerate(l) if getattr(x, 'kind', '') == "label"}
    b = next(i for i, x in enumerate(l) if getattr(x, 'kind', '') == "branch" and x.target == "L_g1")
    return b, lab["L_g1"]
def k1_paths(l):
    b, g1 = split_groups(l)
    return [l[:g1], l[:b] + l[g1:]]
def finalize_k1(p, verbose=False):
    l = p.l
    b, g1 = split_groups(l)
    head = l[:b+1]
    r0 = resolve_waits(l[:g1])
    r1 = resolve_waits(head + l[g1:])
    nh = len(resolve_waits(head))
    p2 = Prog(); p2.l = r0 + r1[nh:]
    return finalize("k1", p2, paths=k1_paths, verbose=verbose)
K1_DESC = dict(name="k1_kernel", vgpr=256, sgpr=102, accum=128, grid=256, block=512, lds=K1_LDS)
if __name__ == "__main__":
    import sys
    from build import build
    vars_ = eval(sys.argv[2]) if len(sys.argv) > 2 else {"k1": {}}
    base = dict(VAR)
    for nm, kw in vars_.items():
        VAR.clear(); VAR.update(base); VAR.update(kw)
        p = gen_k1(stamp=len(sys.argv)>1)
        l, errs = finalize_k1(p, verbose=len(sys.argv) < 2)
        build([dict(K1_DESC, l=l)], f"out_{nm}.s")
```

```python
from common import *
SOLO = True
import struct
def float_hex(f): return hex(struct.unpack("<I", struct.pack("<f", f))[0])

LDS_FLAG = 130048
LDS_STG = 131072
K2_LDS = 163840
VAR = dict(margin=100.0, U=8, prio_att=1, prio_g=0, fuse3=True, cdelay=2)

QA, QB = 4, 8
CA, CB = 16, 32
OA, OB = 48, 64
SA, SB = 80, 96
PA, PB = 112, 120
KR = [128, 132, 136, 140]
V0R = [144, 148, 152, 156]
V1R = [160, 164, 168, 172]
AK, AV0, AV1 = 176, 177, 178
GK, GV0, GV1 = 179, 180, 181
MA, MB = 182, 183
TM = 184
FL = 188
PF, PFA = 190, 191
STT = 192

def max16(p, S, M, first):
    if first:
        p(f"v_max3_f32 v{M}, v{S}, v{S+1}, v{S+2}")
        p(f"v_max_f32 v{M}, v{M}, v{S+3}")
        r = range(4, 16, 2)
    else: r = range(0, 16, 2)
    for k in r: p(f"v_max3_f32 v{M}, v{M}, v{S+k}, v{S+k+1}")

def flag_wait(p, name, addr_v, off, val, tmpq, sleep=1):
    p.label(name)
    p(f"ds_read_b128 {vr(tmpq,4)}, v{addr_v} offset:{off}")
    p("s_waitcnt lgkmcnt(0)")
    p(f"v_min_u32 v{tmpq}, v{tmpq}, v{tmpq+1}\nv_min3_u32 v{tmpq}, v{tmpq}, v{tmpq+2}, v{tmpq+3}")
    p(f"v_cmp_gt_u32 vcc, {val}, v{tmpq}")
    p(f"s_cbranch_vccz {name}_ok\ns_sleep {sleep}\ns_branch {name}")
    p.label(name + "_ok")

def spin1(p, name, addr_v, off, val, tmp):
    p.label(name)
    p(f"ds_read_b32 v{tmp}, v{addr_v} offset:{off}")
    p("s_waitcnt lgkmcnt(0)")
    p(f"v_cmp_gt_u32 vcc, {val}, v{tmp}")
    p(f"s_cbranch_vccz {name}_ok\ns_sleep 1\ns_branch {name}")
    p.label(name + "_ok")

def att_loop_body(U):
    out = []
    def blk(S, P, So, Po, Mqk, Mpv1, Mpv0, extra):
        e = lambda k: I(f"v_exp_f32 v{S+k}, v{S+k}")
        c = lambda k: I(f"v_cvt_pk_bf16_f32 v{P+k}, v{S+2*k}, v{S+2*k+1}")
        co = lambda k: I(f"v_cvt_pk_bf16_f32 v{Po+k}, v{So+2*k}, v{So+2*k+1}")
        o = []
        pq, p1, p0 = VAR.get('pos', (2, 6, 12))
        cs = VAR.get('cs', {0: [-6], 1: [-7], 3: [0], 5: [1], 7: [2], 9: [3], 11: [4], 13: [5]})
        if VAR.get('perm'):
            c = lambda k: I(f"v_perm_b32 v{P+k}, v{S+2*k+1}, v{S+2*k}, s45")
            co = lambda k: I(f"v_perm_b32 v{Po+k}, v{So+2*k+1}, v{So+2*k}, s45")
        for k in range(16):
            o.append(e(k))
            for j in cs.get(k, []):
                if j < 0: o.append(co(-j))
            if k == pq and not VAR.get('nom'): o.append(Mqk)
            if k == p1 and not VAR.get('nom'): o.append(Mpv1)
            if k == p0 and not VAR.get('nom'): o.append(Mpv0)
            o += extra.get(k, [])
            for j in cs.get(k, []):
                if j >= 0: o.append(c(j))
        return o
    for u in range(U):
        s0 = u % 4; s1 = (u+1) % 4; sm = (u-1) % 4
        exA = {}; exB = {}
        if u % 2 == 0:
            rd = []
            for d in (2, 3):
                o_ = (u+d-1)*KVT
                rd += [I(f"ds_read_b128 {vr(KR[(u+d)%4],4)}, v{AK} offset:{o_}"),
                       I(f"ds_read_b128 {vr(V0R[(u+d)%4],4)}, v{AV0} offset:{o_}"),
                       I(f"ds_read_b128 {vr(V1R[(u+d)%4],4)}, v{AV1} offset:{o_}")]
            exA = {6: rd}
            if VAR.get('nods'): exA = {}
        if u == U-1:
            exB = {2: [I("s_add_u32 s41, s41, 1")], 3: [I(f"s_cmp_eq_u32 s41, {12//U}")], 4: [I("s_cbranch_scc1 L_att_sync2"), I("L_att_sync2_ret:")],
                   6: [I(f"v_add_u32 v{AK}, {U*KVT}, v{AK}")], 8: [I(f"v_add_u32 v{AV0}, {U*KVT}, v{AV0}")], 10: [I(f"v_add_u32 v{AV1}, {U*KVT}, v{AV1}")],
                   14: [I(f"s_cmp_lt_u32 s41, {64//U}")]}
        if u % 2 == 1: exB[0] = [I("s_waitcnt lgkmcnt(0)")]
        out += blk(SA, PA, SB, PB, mfma32(vr(SB,16), vr(KR[s0],4), vr(QB,4), vr(CB,16)),
                   mfma32(vr(OB,16), vr(V1R[sm],4), vr(PB+4,4), vr(OB,16)),
                   mfma32(vr(OA,16), vr(V0R[s0],4), vr(PA,4), vr(OA,16)), exA)
        out += blk(SB, PB, SA, PA, mfma32(vr(SA,16), vr(KR[s1],4), vr(QA,4), vr(CA,16)),
                   mfma32(vr(OA,16), vr(V1R[s0],4), vr(PA+4,4), vr(OA,16)),
                   mfma32(vr(OB,16), vr(V0R[s0],4), vr(PB,4), vr(OB,16)), exB)
    return out

def gen_attention(p, st):
    U = VAR['U']
    p(f"s_setprio {VAR['prio_att']}")
    p(f"""
    s_mul_i32 s30, s27, {KVH}
    s_add_u32 s30, s30, {KV}
    s_lshl_b32 s31, s27, 16
    s_lshl_b32 s32, s28, 3
    s_lshl_b32 s33, s24, 1
    s_add_u32 s32, s32, s33
    s_lshl_b32 s33, s32, 10
    s_add_u32 s31, s31, s33
    v_lshlrev_b32 v{GK}, 4, v1
    """)
    p(f"buffer_load_dwordx4 {vr(QA,4)}, v{GK}, s[12:15], s31 offen")
    p(f"buffer_load_dwordx4 {vr(QB,4)}, v{GK}, s[12:15], s31 offen offset:1024")
    p(f"buffer_load_dwordx4 {vr(KR[0],4)}, v{GK}, s[12:15], s30 offen")
    p(f"buffer_load_dwordx4 {vr(KR[1],4)}, v{GK}, s[12:15], s30 offen offset:{KVT}")
    p(f"""
    v_and_b32 v{TM}, 31, v1
    v_lshrrev_b32 v{TM+1}, 5, v1
    v_lshlrev_b32 v{TM+1}, 8, v{TM+1}
    v_lshl_add_u32 v{TM+1}, v{TM}, 4, v{TM+1}
    v_and_b32 v{TM+2}, 27, v{TM}
    v_cmp_eq_u32 vcc, 16, v{TM+2}
    v_mov_b32 v{TM+2}, 2064
    v_mov_b32 v{TM+3}, 2048
    v_cndmask_b32 v{TM+2}, v{TM+2}, v{TM+3}, vcc
    v_cmp_gt_u32 vcc, 16, v{TM}
    v_add_u32 v{GV0}, 1024, v{TM+1}
    v_add_u32 v{GV1}, 1536, v{TM+1}
    v_cndmask_b32 v{GV0}, v{TM+2}, v{GV0}, vcc
    v_cndmask_b32 v{GV1}, v{TM+2}, v{GV1}, vcc
    """)
    for t in range(2):
        p(f"buffer_load_dwordx4 {vr(V0R[t],4)}, v{GV0}, s[12:15], s30 offen offset:{t*KVT}")
        p(f"buffer_load_dwordx4 {vr(V1R[t],4)}, v{GV1}, s[12:15], s30 offen offset:{t*KVT}")
    p(f"""
    s_lshl_b32 s37, s24, 12
    s_add_u32 s38, s30, {KVT+1024}
    s_add_u32 s38, s38, s37
    """)
    for i in range(2):
        p("s_mov_b32 m0, s37")
        p("s_add_u32 s37, s37, 16384")
        for k in range(4):
            p(f"buffer_load_dwordx4 v{GK}, s[12:15], s38 offen offset:{k*1024} lds")
        p("s_add_u32 s38, s38, 16384")
    p("s_barrier")
    if VAR['fuse3']:
        p(f"""
        s_mul_i32 s33, s32, {88*1024}
        s_lshl_b32 s34, s27, 10
        s_add_u32 s33, s33, s34
        s_add_u32 s33, s33, {A3}
        s_add_u32 s35, s33, {88*1024}
        v_mov_b32 v{PA}, -1
        v_mov_b32 v{PA+1}, -1
        v_mov_b32 v{PA+2}, -1
        v_mov_b32 v{PA+3}, -1
        buffer_store_dwordx4 {vr(PA,4)}, v{GK}, s[12:15], s33 offen sc1
        buffer_store_dwordx4 {vr(PA,4)}, v{GK}, s[12:15], s35 offen sc1
        s_lshl_b32 s35, s32, 6
        s_lshl_b32 s34, s27, 2
        s_add_u32 s35, s35, s34
        s_add_u32 s35, s35, {OFL}
        """)
    p(f"""
    v_mov_b32 v{FL}, {LDS_FLAG}
    s_lshl_b32 s37, s24, 2
    v_add_u32 v{FL+1}, s37, v{FL}
    v_subrev_u32 v{AK}, 1024, v{GK}
    v_subrev_u32 v{AV0}, 1024, v{GV0}
    v_subrev_u32 v{AV1}, 1024, v{GV1}
    """)
    for r in list(range(OA, OA+32)) + list(range(PB+4, PB+6)) + list(range(V1R[3], V1R[3]+4)):
        p(f"v_mov_b32 v{r}, 0")
    p(f"s_waitcnt vmcnt({14 if VAR['fuse3'] else 12})")
    p.add([mfma32(vr(SA,16), vr(KR[0],4), vr(QA,4), "0"), mfma32(vr(SB,16), vr(KR[0],4), vr(QB,4), "0"),
           mfma32(vr(CA,16), vr(KR[1],4), vr(QA,4), "0"), mfma32(vr(CB,16), vr(KR[1],4), vr(QB,4), "0")])
    max16(p, SA, MA, True); max16(p, SB, MB, True); max16(p, CA, MA, False); max16(p, CB, MB, False)
    p(f"""
    s_mov_b32 s40, {float_hex(VAR['margin'])}
    v_mov_b32 v{TM}, v{MA}
    v_mov_b32 v{TM+1}, v{MB}
    v_permlane32_swap_b32 v{TM}, v{MA}
    v_permlane32_swap_b32 v{TM+1}, v{MB}
    v_max_f32 v{MA}, v{MA}, v{TM}
    v_max_f32 v{MB}, v{MB}, v{TM+1}
    v_add_f32 v{MA}, s40, v{MA}
    v_add_f32 v{MB}, s40, v{MB}
    """)
    for r in range(16): p(f"v_sub_f32 v{CA+r}, 0, v{MA}")
    for r in range(12, 16): p(f"v_mov_b32 v{SB+r}, 0")
    p.add([mfma32(vr(SA,16), vr(KR[0],4), vr(QA,4), vr(CA,16))])
    for r in range(16): p(f"v_sub_f32 v{CB+r}, 0, v{MB}")
    p(f"s_waitcnt vmcnt({2 if VAR['fuse3'] else 0})")
    p(f"v_mov_b32 v{TM}, 1\nds_write_b32 v{FL+1}, v{TM}")
    flag_wait(p, "L_att_f1", FL, 0, 1, TM)
    if VAR.get('wpf', 0):
        p(f"s_lshl_b32 s37, s25, 20\ns_lshl_b32 s38, s26, 2\ns_add_u32 s38, s38, s24\ns_lshl_b32 s38, s38, 13\ns_add_u32 s37, s37, s38")
        for k in range(8):
            if k == 4: p("s_add_u32 s37, s37, 4096")
            p(f"buffer_load_dwordx4 {vr(STT,4)}, v{GK}, s[16:19], s37 offen offset:{(k%4)*1024}")
    st(p, 1)
    p("s_mov_b32 s41, 0\ns_mov_b32 s45, 0x07060302")
    p(".p2align 6")
    p.label("L_att_loop")
    p.add(att_loop_body(U))
    p("s_cbranch_scc1 L_att_loop")
    st(p, 2)
    p(f"v_cvt_pk_bf16_f32 v{PB+6}, v{SB+12}, v{SB+13}\nv_cvt_pk_bf16_f32 v{PB+7}, v{SB+14}, v{SB+15}")
    p(f"""
    s_mul_i32 s33, s32, {88*1024}
    s_lshl_b32 s34, s27, 10
    s_add_u32 s33, s33, s34
    s_add_u32 s33, s33, {A3}
    """)
    p.add([mfma32(vr(OB,16), vr(V1R[3],4), vr(PB+4,4), vr(OB,16))])
    p("s_waitcnt lgkmcnt(0)")
    p("s_mov_b32 s36, 0")
    p.label("L_att_chk")
    p(f"v_mul_f32 v{TM}, 0, v{OA+8}")
    for r in range(8): p(f"v_fmac_f32 v{TM}, 0, v{OA+r}")
    p(f"v_cmp_u_f32 vcc, v{TM}, v{TM}")
    p("s_cbranch_vccnz L_att_slow")
    p.label("L_att_fin")
    p(f"v_rcp_f32 v{MA}, v{OA+8}")
    p("s_cmp_lg_u32 s36, 0")
    for r in range(8): p(f"v_mul_f32 v{OA+r}, v{OA+r}, v{MA}")
    for k in range(4): p(f"v_cvt_pk_bf16_f32 v{PA+k}, v{OA+2*k}, v{OA+2*k+1}")
    for k in range(4): p(f"v_min_u32 v{PA+k}, -2, v{PA+k}")
    p(f"buffer_store_dwordx4 {vr(PA,4)}, v{GK}, s[12:15], s33 offen")
    p("s_cbranch_scc1 L_att_done")
    p(f"s_mov_b32 s36, 1\ns_add_u32 s33, s33, {88*1024}")
    for r in range(9): p(f"v_mov_b32 v{OA+r}, v{OB+r}")
    for r in range(4): p(f"v_mov_b32 v{QA+r}, v{QB+r}")
    p("s_branch L_att_chk")
    p.label("L_att_done")
    st(p, 3)
    p("s_endpgm")
    p.label("L_att_sync2")
    if VAR['fuse3']:
        p(f"v_mov_b32 v{TM}, 1\ns_waitcnt vmcnt(0)\nbuffer_store_dword v{TM}, off, s[12:15], s35 sc1")
    if VAR.get('zpf'):
        p(f"s_lshl_b32 s37, s26, 2\ns_add_u32 s37, s37, s24\ns_mul_i32 s37, s37, {28*1024}\ns_add_u32 s37, s37, {Z2F}\nv_lshlrev_b32 v{PFA}, 7, v1")
        for k in range(4):
            if k == 3: p("s_mov_b32 exec_hi, 0")
            p(f"buffer_load_dword v{PF}, v{PFA}, s[12:15], s37 offen")
            if k < 3: p("s_add_u32 s37, s37, 8192")
        p("s_mov_b64 exec, -1")
    flag_wait(p, "L_att_f2", FL, 48, 1, TM)
    p("s_branch L_att_sync2_ret")
    p.label("L_att_slow")
    p(f"v_mov_b32 v{MA}, 0xff800000\ns_mov_b32 s41, 0\ns_mov_b32 s37, s30")
    p.label("L_att_sl1")
    p(f"buffer_load_dwordx4 {vr(KR[0],4)}, v{GK}, s[12:15], s37 offen")
    p("s_waitcnt vmcnt(0)")
    p.add([mfma32(vr(SA,16), vr(KR[0],4), vr(QA,4), "0")])
    max16(p, SA, MA, False)
    p(f"s_add_u32 s37, s37, {KVT}\ns_add_u32 s41, s41, 1\ns_cmp_lt_u32 s41, 64\ns_cbranch_scc1 L_att_sl1")
    p(f"v_mov_b32 v{TM}, v{MA}\nv_permlane32_swap_b32 v{TM}, v{MA}\nv_max_f32 v{MA}, v{MA}, v{TM}")
    for r in range(16): p(f"v_sub_f32 v{CA+r}, 0, v{MA}\nv_mov_b32 v{OA+r}, 0")
    p("s_mov_b32 s41, 0\ns_mov_b32 s37, s30")
    p.label("L_att_sl2")
    p(f"buffer_load_dwordx4 {vr(KR[0],4)}, v{GK}, s[12:15], s37 offen")
    p(f"buffer_load_dwordx4 {vr(V0R[0],4)}, v{GV0}, s[12:15], s37 offen")
    p(f"buffer_load_dwordx4 {vr(V1R[0],4)}, v{GV1}, s[12:15], s37 offen")
    p("s_waitcnt vmcnt(0)")
    p.add([mfma32(vr(SA,16), vr(KR[0],4), vr(QA,4), vr(CA,16))])
    for k in range(16): p(f"v_exp_f32 v{SA+k}, v{SA+k}")
    for k in range(8): p(f"v_cvt_pk_bf16_f32 v{PA+k}, v{SA+2*k}, v{SA+2*k+1}")
    p.add([mfma32(vr(OA,16), vr(V0R[0],4), vr(PA,4), vr(OA,16)), mfma32(vr(OA,16), vr(V1R[0],4), vr(PA+4,4), vr(OA,16))])
    p(f"s_add_u32 s37, s37, {KVT}\ns_add_u32 s41, s41, 1\ns_cmp_lt_u32 s41, 64\ns_cbranch_scc1 L_att_sl2")
    p("s_nop 15\ns_branch L_att_fin")

ACC = 4
NZF = 16
ZR = 132
WR = 196
VL = 228; VD = 229; VW = 230
G = 232
def acc(i, tt): return ACC + (i*2+tt)*16

def kv_rest(p, uniq):
    for i in range(6):
        p("s_mov_b32 m0, s62")
        if i < 5: p("s_add_u32 s62, s62, 16384")
        else: p("s_cmp_eq_u32 s24, 3")
        for k in range(4):
            if i == 5 and k == 3: p(f"s_cbranch_scc1 L_g_kvdone{uniq}")
            p(f"buffer_load_dwordx4 v{VL}, s[12:15], s63 offen offset:{k*1024} lds")
        if i < 5: p("s_add_u32 s63, s63, 16384")
    p.label(f"L_g_kvdone{uniq}")

def gen_gemm(p, st):
    p(f"""
    s_sub_u32 s24, s24, 4                  ; q = K quarter
    v_lshlrev_b32 v{VL}, 4, v1
    s_mul_i32 s63, s27, {KVH}
    s_lshl_b32 s62, s24, 12
    s_add_u32 s62, s62, 32768
    s_add_u32 s63, s63, s62
    s_add_u32 s63, s63, {KV + KVT + 1024}
    s_lshl_b32 s46, s24, 2
    s_add_u32 s46, s46, {LDS_FLAG}
    v_mov_b32 v{G+1}, s46
    v_mov_b32 v{G+3}, 1
    s_barrier
    """)
    kv_rest(p, "a")
    p(f"""
    s_cmp_ge_u32 s26, 28
    s_cbranch_scc1 L_idle
    s_setprio {VAR.get('prio_s', 3)}
    s_mul_i32 s30, s26, 9363
    s_lshr_b32 s30, s30, 16                ; j/7
    s_mul_i32 s31, s30, 7
    s_sub_u32 s31, s26, s31                ; fb = j%7
    s_lshl_b32 s32, s25, 2
    s_add_u32 s30, s30, s32                ; tb
    s_lshl_b32 s33, s31, 19
    s_add_u32 s33, s33, {Z2F}
    s_lshl_b32 s34, s24, 17
    s_add_u32 s33, s33, s34
    s_lshl_b32 s35, s30, 18
    s_lshl_b32 s34, s24, 10
    s_add_u32 s35, s35, s34
    s_lshl_b32 s36, s24, 13
    s_add_u32 s36, s36, {LDS_STG}
    s_add_u32 s37, s36, 4096
    """)
    for i in range(4):
        p(f"s_add_u32 s38, s24, {i}\ns_and_b32 s38, s38, 3\ns_lshl_b32 s38, s38, 10\ns_add_u32 s{52+i}, s33, s38")
        p(f"s_add_u32 s{56+i}, s35, {i*(65536-1024)}")
    p(f"""
    v_lshrrev_b32 v2, 2, v1
    v_lshlrev_b32 v2, 12, v2
    v_lshrrev_b32 v3, 4, v1
    v_xor_b32 v3, v3, v1
    v_and_b32 v3, 3, v3
    v_lshl_add_u32 v{VD}, v3, 4, v2
    """)
    def dma(b):
        out = [I(f"s_mov_b32 m0, s{36 + b%2}"), I("s_nop 0")]
        for k in range(4):
            out.append(I(f"buffer_load_dwordx4 v{VD}, s[16:19], s{56+k} offen offset:{k*1024} lds", tag=f"d{b}"))
            out.append(I(f"s_add_u32 s{56+k}, s{56+k}, 64"))
        return out
    def zload(n):
        i = n % 4
        return [I(f"buffer_load_dwordx4 {vr(ZR + (n%NZF)*4, 4)}, v{VL}, s[12:15], s{52+i} offen", tag=f"z{n}"),
                I(f"s_add_u32 s{52+i}, s{52+i}, 4096")]
    p.add(dma(0))
    for n in range(8): p.add(zload(n))
    p.add(dma(1))
    for n in range(8, 16): p.add(zload(n))
    p(f"s_setprio 3\nv_and_b32 v2, 31, v1")
    bitswap23(p, 2, 2, 3)
    p(f"""
    v_lshrrev_b32 v3, 2, v2
    v_lshrrev_b32 v{VW}, 5, v1
    v_xor_b32 v3, v3, v{VW}
    v_and_b32 v3, 3, v3
    v_lshlrev_b32 v3, 4, v3
    v_lshl_add_u32 v{VW}, v2, 6, v3
    v_add_u32 v{VW}, s36, v{VW}
    v_xor_b32 v{VW+1}, 32, v{VW}
    """)
    p(f"s_setprio {VAR['prio_g']}")
    st(p, 1)
    NB = 16
    def wread(b):
        return [I(f"ds_read_b128 {vr(WR + ((b%2)*4+u*2+tt)*4, 4)}, v{VW+u} offset:{(b%2)*4096 + tt*2048}", tag=f"w{b}", needs=[f"d{b}"]) for u in range(2) for tt in range(2)]
    def block(b, first=False, dma_on=True, z_on=True, w_on=True):
        o = [W(lg=f"w{b}")]
        if dma_on: o += dma(b+2)
        for u in range(2):
            s = 2*b+u
            o.append(W(vm=[f"z{4*s+3}"] + ([f"d{b+1}"] if (u == 1 and w_on) else [])))
            for i in range(4):
                n = 4*s+i
                for tt in range(2):
                    c = "0" if (first and u == 0) else vr(acc(i,tt),16)
                    o.append(mfma32(vr(acc(i,tt),16), vr(ZR+(n%NZF)*4,4), vr(WR+((b%2)*4+u*2+tt)*4,4), c))
                if u == 1 and i == 0 and w_on: o += wread(b+1)
            if z_on:
                for i in range(4): o += zload(4*s+i+NZF)
        return o
    p.wait(vm="d0"); p(f"ds_write_b32 v{G+1}, v{G+3} offset:48"); p.add(wread(0))
    p.add(block(0, first=True)); p.add(block(1))
    p("s_mov_b32 s60, 0")
    p.label("L_g_loop")
    p.add(block(2)); p.add(block(3))
    p("s_add_u32 s60, s60, 1\ns_cmp_lt_u32 s60, 6\ns_cbranch_scc1 L_g_loop")
    p.add(block(4, dma_on=False, z_on=False)); p.add(block(5, dma_on=False, z_on=False, w_on=False))
    st(p, 2)
    p(f"s_setprio {VAR.get('prio_e', 3)}")
    p(f"""
    s_lshl_b32 s38, s30, 1
    s_mul_i32 s39, s38, {56*1024}
    s_lshl_b32 s40, s31, 2
    s_add_u32 s40, s40, s24
    s_lshl_b32 s41, s40, 11
    s_add_u32 s39, s39, s41
    s_add_u32 s39, s39, {Z1F}
    s_add_u32 s42, s39, {56*1024}
    s_mul_i32 s43, s38, {88*1024}
    s_add_u32 s43, s43, s41
    s_add_u32 s43, s43, {A3 + 32*1024}
    s_add_u32 s44, s43, {88*1024}
    s_lshl_b32 s45, s30, 7
    v_lshlrev_b32 v2, 1, v2
    """)
    Z = ZR
    if VAR['fuse3']:
        p(f"s_and_b32 s48, s26, 7\ns_lshl_b32 s48, s48, 7\ns_add_u32 s48, s48, {WFL}\nv_lshlrev_b32 v{G+6}, 2, v1\nv_and_b32 v{G+6}, 60, v{G+6}")
        p(f"buffer_load_dword v{G+5}, v{G+6}, s[12:15], s48 offen sc1", tag="z1")
    p(f"buffer_load_dwordx4 {vr(Z,4)}, v{VL}, s[12:15], s39 offen", tag="z1")
    p(f"buffer_load_dwordx4 {vr(Z+4,4)}, v{VL}, s[12:15], s39 offen offset:1024", tag="z1")
    p(f"buffer_load_dwordx4 {vr(Z+8,4)}, v{VL}, s[12:15], s42 offen", tag="z1")
    p(f"buffer_load_dwordx4 {vr(Z+12,4)}, v{VL}, s[12:15], s42 offen offset:1024", tag="z1")
    p(f"buffer_load_ushort v{Z+16}, v2, s[20:23], s45 offen", tag="z1")
    p(f"buffer_load_ushort v{Z+17}, v2, s[20:23], s45 offen offset:64", tag="z1")
    p(f"""
    v_add_u32 v{G}, s36, v{VL}
    """)
    for r in range(1, 4):
        if r > 1:
            p(f"s_add_u32 s47, s24, {r-1}\ns_and_b32 s47, s47, 3\ns_lshl_b32 s47, s47, 2\ns_add_u32 s47, s47, {LDS_FLAG}\nv_mov_b32 v{G+2}, s47")
            spin1(p, f"L_g_ack{r}", G+2, 32, r-1, G+3)
        for k in range(8):
            p(f"ds_write_b128 v{G}, {vr(acc(r,0)+4*k, 4)} offset:{k*1024}")
        p(f"v_mov_b32 v{G+3}, {r}\ns_waitcnt lgkmcnt(0)\nds_write_b32 v{G+1}, v{G+3} offset:16")
        p(f"s_add_u32 s47, s24, {4-r}\ns_and_b32 s47, s47, 3\ns_lshl_b32 s48, s47, 2\ns_add_u32 s48, s48, {LDS_FLAG}\nv_mov_b32 v{G+2}, s48\ns_lshl_b32 s47, s47, 13\ns_add_u32 s47, s47, {LDS_STG}\nv_add_u32 v{G+4}, s47, v{VL}")
        spin1(p, f"L_g_dat{r}", G+2, 16, r, G+3)
        T = acc(r, 0)
        for k in range(8):
            p(f"ds_read_b128 {vr(T+4*k,4)}, v{G+4} offset:{k*1024}", tag=f"r{k}")
        for k in range(8):
            p.wait(lg=f"r{k}")
            for e in range(4): p(f"v_add_f32 v{acc(0,0)+4*k+e}, v{acc(0,0)+4*k+e}, v{T+4*k+e}")
        if r < 3:
            p(f"v_mov_b32 v{G+3}, {r}\nds_write_b32 v{G+1}, v{G+3} offset:32")
    p.wait(vm="z1")
    T = acc(1, 0)
    p(f"v_lshlrev_b32 v{Z+16}, 16, v{Z+16}\nv_lshlrev_b32 v{Z+17}, 16, v{Z+17}")
    for tt in range(2):
        a = acc(0, tt)
        for r in range(16): p(f"v_add_f32 v{a+r}, v{a+r}, v{Z+16+tt}")
        for d in range(8):
            z = Z + tt*8 + d
            p(f"v_lshlrev_b32 v{T}, 16, v{z}\nv_and_b32 v{T+1}, 0xffff0000, v{z}")
            p(f"v_mul_f32 v{a+2*d}, v{a+2*d}, v{T}\nv_mul_f32 v{a+2*d+1}, v{a+2*d+1}, v{T+1}")
            p(f"v_cvt_pk_bf16_f32 v{T+8+tt*8+d}, v{a+2*d}, v{a+2*d+1}")
        so = 43 + tt
        p(f"buffer_store_dwordx4 {vr(T+8+tt*8,4)}, v{VL}, s[12:15], s{so} offen")
        p(f"buffer_store_dwordx4 {vr(T+12+tt*8,4)}, v{VL}, s[12:15], s{so} offen offset:1024")
    if VAR.get('pf3'):
        p(f"s_lshl_b32 s38, s26, 2\ns_add_u32 s38, s38, s24\ns_mul_i32 s38, s38, 16384\ns_add_u32 s38, s38, {W3F}\nv_lshlrev_b32 v2, 7, v1")
        p(f"buffer_load_dword v3, v2, s[12:15], s38 offen\ns_add_u32 s38, s38, 8192\nbuffer_load_dword v3, v2, s[12:15], s38 offen")
    st(p, 3)
    if VAR['fuse3']:
        p(f"""
        s_lshl_b32 s33, s30, 7
        s_lshl_b32 s34, s40, 2
        s_add_u32 s33, s33, s34
        s_add_u32 s49, s33, {UFL}
        s_mov_b32 s64, s43
        s_mov_b32 s65, s44
        v_cmp_eq_u32 vcc, 0, v{G+5}
        s_cbranch_vccz L_g2
        s_branch L_g2w
        """)
    else: p("s_endpgm")
    p.label("L_idle")
    p(f"""
    s_load_dwordx2 s[36:37], s[0:1], {KA_WO}
    s_load_dwordx2 s[38:39], s[0:1], {KA_WOUT}
    s_lshl_b32 s34, s25, 2
    s_add_u32 s34, s34, s26
    s_sub_u32 s34, s34, 28                      ; L
    s_mov_b32 s54, {896*1024}
    s_waitcnt vmcnt(0) lgkmcnt(0)
    ds_write_b32 v{G+1}, v{G+3} offset:48
    s_cmp_lt_u32 s34, 16
    s_cselect_b32 s52, s36, s38
    s_cselect_b32 s53, s37, s39
    s_cselect_b32 s54, {512*1024}, s54
    s_cselect_b32 s35, 8, 14
    s_cselect_b32 s67, 0, {32*1024}
    s_mov_b32 s55, 0x20000
    s_and_b32 s34, s34, 15
    s_mul_i32 s68, s24, s35
    s_lshl_b32 s69, s68, 14
    s_lshl_b32 s60, s34, 6
    s_add_u32 s69, s69, s60
    s_mul_i32 s60, s34, {88*1024}
    s_lshl_b32 s68, s68, 10
    s_add_u32 s60, s60, s68
    s_add_u32 s60, s60, s67
    s_add_u32 s60, s60, {W3F}
    v_lshrrev_b32 v2, 2, v1
    v_and_b32 v3, 3, v1
    v_lshlrev_b32 v3, 4, v3
    v_lshl_add_u32 v2, v2, 10, v3
    s_lshl_b32 s61, s24, 13
    s_add_u32 s61, s61, {LDS_STG}
    v_lshrrev_b32 v4, 5, v1
    v_lshlrev_b32 v3, 9, v4
    v_bfe_u32 v4, v1, 2, 2
    v_lshl_add_u32 v3, v4, 6, v3
    v_bfe_u32 v4, v1, 4, 1
    v_lshl_add_u32 v3, v4, 5, v3
    v_and_b32 v4, 1, v1
    v_lshl_add_u32 v3, v4, 4, v3
    v_bfe_u32 v4, v1, 1, 1
    v_lshl_add_u32 v3, v4, 3, v3
    v_add_u32 v3, s61, v3
    s_mov_b32 m0, s61
    s_mov_b32 s62, 0
    """)
    p.label("L_w3a")
    p("buffer_load_dwordx4 v2, s[52:55], s69 offen lds\ns_add_u32 s69, s69, 16384\ns_add_u32 s62, s62, 1\ns_waitcnt vmcnt(0)")
    p(f"ds_read_b64_tr_b16 v[8:9], v3\nds_read_b64_tr_b16 v[10:11], v3 offset:256\ns_waitcnt lgkmcnt(0)")
    p(f"buffer_store_dwordx4 v[8:11], v{VL}, s[12:15], s60 offen\ns_add_u32 s60, s60, 1024\ns_cmp_lt_u32 s62, s35\ns_cbranch_scc1 L_w3a")
    if not VAR['fuse3']:
        p("s_endpgm"); return
    p(f"""
    s_lshr_b32 s33, s34, 1
    s_lshl_b32 s33, s33, 7                      ; (nt>>1)*128
    s_and_b32 s34, s34, 1
    s_lshl_b32 s34, s34, 4
    s_add_u32 s33, s33, s34
    s_lshr_b32 s34, s67, 10                     ; 0 or 32
    s_add_u32 s33, s33, s34
    s_lshl_b32 s34, s24, 2
    s_add_u32 s33, s33, s34
    s_add_u32 s33, s33, {WFL}
    v_mov_b32 v{G+3}, 1
    s_waitcnt vmcnt(0)
    buffer_store_dword v{G+3}, off, s[12:15], s33 sc1
    s_mov_b32 s49, 0x7fffff00
    s_mov_b32 s64, s49
    s_mov_b32 s65, s49
    s_and_b32 s48, s26, 7
    s_lshl_b32 s48, s48, 7
    s_add_u32 s48, s48, {WFL}
    v_lshlrev_b32 v{G+6}, 2, v1
    v_and_b32 v{G+6}, 60, v{G+6}
    """)
    p.label("L_g2w")
    poll(p, "L_p0", 48, G+6, None, G+5)
    gen_g2(p, st)


FA = 4
FW = 68
FX = 132
FR = 180
FO_ = 180
FL_ = 244; FO = 245; FT = 246
def poll(p, name, soff, voff, mask_hi_lo, tmp):
    p(f"s_mov_b32 s47, 0")
    p.label(name)
    p(f"buffer_load_dword v{tmp}, v{voff}, s[12:15], s{soff} offen sc1\ns_add_u32 s47, s47, 1\ns_waitcnt vmcnt(0)")
    p(f"v_cmp_eq_u32 vcc, 0, v{tmp}\ns_cbranch_vccz {name}_ok\ns_cmp_gt_u32 s47, 0x80000\ns_cbranch_scc1 {name}_ok\ns_sleep {VAR.get('psleep', 4)}\ns_branch {name}")
    p.label(name + "_ok")
def gen_g2(p, st):
    p.label("L_g2")
    p(f"""
    v_mov_b32 v{FL_}, v{VL}
    s_load_dwordx2 s[6:7], s[0:1], {KA_X}
    s_load_dwordx2 s[8:9], s[0:1], {KA_OUT}
    s_setprio 3
    s_lshr_b32 s27, s26, 3
    s_lshl_b32 s28, s25, 2
    s_add_u32 s27, s27, s28                ; tb
    s_and_b32 s28, s26, 7                  ; nb
    s_and_b32 s29, s24, 1
    s_lshr_b32 s30, s24, 1
    s_lshl_b32 s32, s27, 1
    s_add_u32 s33, s32, s29
    s_xor_b32 s34, s33, 1
    s_lshl_b32 s32, s28, 1
    s_add_u32 s35, s32, s30
    s_xor_b32 s36, s35, 1
    s_mul_i32 s40, s33, {88*1024}
    s_mul_i32 s41, s34, {88*1024}
    s_mul_i32 s42, s35, {88*1024}
    s_mul_i32 s43, s36, {88*1024}
    s_add_u32 s40, s40, {A3}
    s_add_u32 s41, s41, {A3}
    s_add_u32 s42, s42, {W3F}
    s_add_u32 s43, s43, {W3F}
    s_mul_i32 s31, s24, {14*1024}
    s_add_u32 s31, s31, {32*1024}
    s_lshl_b32 s32, s24, 13
    s_lshl_b32 s44, s33, 15
    s_lshl_b32 s45, s35, 6
    s_add_u32 s44, s44, s45
    s_lshl_b32 s45, s27, 7
    s_mul_i32 s46, s24, 28
    s_add_u32 s46, s46, s45
    s_add_u32 s46, s46, {UFL}
    s_lshl_b32 s48, s24, 5
    s_add_u32 s45, s45, s48
    s_add_u32 s45, s45, {OFL}
    """)
    for i in range(4):
        p(f"s_add_u32 s{52+i}, s{40+i}, s31\ns_add_u32 s{56+i}, s{40+i}, s32")
    for s_ in range(14):
        if s_ and s_ % 4 == 0: p("s_add_u32 s54, s54, 4096\ns_add_u32 s55, s55, 4096")
        for i in range(2):
            p(f"buffer_load_dwordx4 {vr(FW+(s_*2+i)*4,4)}, v{FL_}, s[12:15], s{54+i} offen offset:{(s_%4)*1024} sc1")
    p(f"v_mov_b32 v{FT}, 1\ns_waitcnt vmcnt(28)\nbuffer_store_dword v{FT}, off, s[12:15], s49 sc1")
    st(p, 8)
    for k in range(4 if VAR.get('rb', 0) else 0):
        p(f"buffer_load_dwordx4 {vr(FR+4*k,4)}, v{FL_}, s[12:15], s{64+k//2} offen offset:{(k%2)*1024} sc1")
    p(f"""
    v_lshlrev_b32 v{FT+1}, 2, v1
    v_cmp_gt_u32 vcc, 7, v1
    v_cndmask_b32 v{FT+2}, 0, v{FT+1}, vcc
    v_and_b32 v{FT+1}, 28, v{FT+1}
    v_and_b32 v2, 31, v1
    """)
    bitswap23(p, 2, 2, 3)
    p(f"v_lshrrev_b32 v3, 5, v1\nv_lshlrev_b32 v3, 4, v3\nv_lshl_add_u32 v{FO}, v2, 10, v3\ns_waitcnt lgkmcnt(0)")
    srd(p, 16, 6, 2048*1024); srd(p, 20, 8, 2048*1024)
    if VAR.get('w0'): p("s_waitcnt vmcnt(0)"); st(p, 9)
    else: st(p, 9)
    poll(p, "L_p1", 46, FT+2, None, FT+4)
    st(p, 4)
    p(f"s_setprio {VAR.get('prio_u', 0)}")
    NR = 8
    def ld(s):
        o = []
        if s and s % 4 == 0: o += [I(f"s_add_u32 s{52+i}, s{52+i}, 4096") for i in range(2)]
        for i in range(2):
            o.append(I(f"buffer_load_dwordx4 {vr(FR+((s%NR)*2+i)*4,4)}, v{FL_}, s[12:15], s{52+i} offen offset:{(s%4)*1024} sc1", tag=f"g{s}"))
        return o
    for s_ in range(NR): p.add(ld(s_))
    for s_ in range(14):
        p.wait(vm=f"g{s_}")
        for (a, b) in ((0,0), (0,1), (1,0), (1,1)):
            d = vr(FA + (a*2+b)*16, 16)
            p.add([mfma32(d, vr(FW+(s_*2+a)*4,4), vr(FR+((s_%NR)*2+b)*4,4), "0" if s_ == 0 else d)])
        if s_+NR < 14: p.add(ld(s_+NR))
        if s_ >= 6:
            k = s_-6
            for i in range(2):
                p(f"s_add_u32 s47, s{58+i}, {(k//4)*4096}")
                p(f"buffer_load_dwordx4 {vr(FW+(k*2+i)*4,4)}, v{FL_}, s[12:15], s47 offen offset:{(k%4)*1024} sc1", tag="wo")
    p(f"buffer_load_dwordx4 {vr(FX,4)}, v{FO}, s[16:19], s44 offen", tag="x")
    p(f"buffer_load_dwordx4 {vr(FX+4,4)}, v{FO}, s[16:19], s44 offen offset:32", tag="x")
    p("s_setprio 3")
    p.wait(vm="x")
    for d_ in range(7, -1, -1):
        p(f"v_and_b32 v{FX+8+2*d_+1}, 0xffff0000, v{FX+d_}\nv_lshlrev_b32 v{FX+8+2*d_}, 16, v{FX+d_}")
    poll(p, "L_p2", 45, FT+1, None, FT+4)
    st(p, 5)
    p("s_barrier")
    p("s_add_u32 s58, s56, 4096\ns_add_u32 s59, s57, 4096\ns_mov_b32 s47, 0")
    p.label("L_p3")
    for s_ in range(8):
        for i in range(2):
            p(f"buffer_load_dwordx4 {vr(FO_+(s_*2+i)*4,4)}, v{FL_}, s[12:15], s{56+i+2*(s_//4)} offen offset:{(s_%4)*1024} sc1", tag=f"o{s_}")
    p(f"v_mov_b32 v{FT+4}, 0\ns_add_u32 s47, s47, 1")
    for s_ in range(8):
        p.wait(vm=f"o{s_}")
        for k in range(0, 8, 2): p(f"v_max3_u32 v{FT+4}, v{FT+4}, v{FO_+8*s_+k}, v{FO_+8*s_+k+1}")
    p(f"v_cmp_eq_u32 vcc, -1, v{FT+4}\ns_cbranch_vccz L_p3_ok\ns_sleep {VAR.get('p3sleep', 2)}\ns_cmp_lt_u32 s47, 0x40000\ns_cbranch_scc1 L_p3")
    p.label("L_p3_ok")
    st(p, 6)
    for i in range(1, 4):
        p(f"s_xor_b32 s46, s24, {i}\ns_mul_i32 s46, s46, 12288\ns_add_u32 s46, s46, {(i-1)*4096}\nv_add_u32 v{FT+i}, s46, v{FL_}")
    p(f"s_mul_i32 s46, s24, 12288\nv_add_u32 v{FT}, s46, v{FL_}")
    for s_ in range(8):
        order = ((0,0), (0,1), (1,0), (1,1)) if s_ < 7 else ((0,1), (1,0), (1,1), (0,0))
        for (a, b) in order:
            d = vr(FA + (a*2+b)*16, 16)
            p.add([mfma32(d, vr(FW+(s_*2+a)*4,4), vr(FO_+(s_*2+b)*4,4), d)])
    for i in range(1, 4):
        for k in range(4): p(f"ds_write_b128 v{FT+i}, {vr(FA+i*16+4*k,4)} offset:{k*1024}")
    for r in range(16): p(f"v_add_f32 v{FA+r}, v{FA+r}, v{FX+8+r}")
    p("s_waitcnt lgkmcnt(0)\ns_barrier")
    for k in range(12): p(f"ds_read_b128 {vr(FA+16+4*k,4)}, v{FT} offset:{k*1024}", tag=f"r{k}")
    for k in range(12):
        p.wait(lg=f"r{k}")
        for e in range(4): p(f"v_add_f32 v{FA+(4*k+e)%16}, v{FA+(4*k+e)%16}, v{FA+16+4*k+e}")
    for d in range(8): p(f"v_cvt_pk_bf16_f32 v{FX+d}, v{FA+2*d}, v{FA+2*d+1}")
    p(f"buffer_store_dwordx4 {vr(FX,4)}, v{FO}, s[20:23], s44 offen")
    p(f"buffer_store_dwordx4 {vr(FX+4,4)}, v{FO}, s[20:23], s44 offen offset:32")
    st(p, 7)
    p("s_endpgm")

def gen_k2(with_gemm=True, with_att=True, stamp=False):
    p = Prog()
    entry_stamp(p, stamp)
    p(f"""
    s_cmp_ge_u32 s2, 256
    s_cbranch_scc1 L_end
    s_load_dwordx2 s[4:5], s[0:1], {KA_WS}
    s_load_dwordx4 s[8:11], s[0:1], {KA_WSP}
    v_and_b32 v1, 63, v0
    v_lshrrev_b32 v2, 6, v0
    v_readfirstlane_b32 s24, v2
    s_and_b32 s25, s2, 7
    s_lshr_b32 s26, s2, 3
    s_lshr_b32 s27, s26, 3
    s_lshl_b32 s28, s25, 2
    s_add_u32 s27, s27, s28                ; head
    s_and_b32 s28, s26, 7                  ; qb
    v_mov_b32 v2, 0
    v_lshlrev_b32 v3, 2, v1
    v_add_u32 v3, {LDS_FLAG}, v3
    ds_write_b32 v3, v2
    s_mov_b32 s50, s24
    s_waitcnt lgkmcnt(0)
    """)
    srd(p, 12, 4, WS_USED); srd(p, 16, 8, 2048*2048*2); srd(p, 20, 10, 4096)
    st0 = (Stamper(stamp and not SOLO, 50, 252, kid=1) if not SOLO else Stamper(stamp, 50, 252))
    st0(p, 0); entry_store(p, st0)
    p("s_cmp_ge_u32 s24, 4\ns_cbranch_scc1 L_gemm")
    if with_att: gen_attention(p, (Stamper(stamp and not SOLO, 50, 252, kid=1) if not SOLO else Stamper(stamp, 50, 252)))
    else: p("s_endpgm")
    p.label("L_gemm")
    if with_gemm: gen_gemm(p, (Stamper(stamp and not SOLO, 50, 252, kid=1) if not SOLO else Stamper(stamp, 50, 252)))
    p.label("L_end")
    p("s_endpgm")
    return p

def k2_paths(l):
    lab = {x.op: i for i, x in enumerate(l) if x.kind == "label"}
    g = lab["L_gemm"]
    att = l[:g]
    end_att = next(i for i, x in enumerate(att) if x.kind == "misc" and x.base == "s_endpgm")
    head_end = next(i for i, x in enumerate(l) if x.kind == "branch" and x.target == "L_gemm")
    idle = lab["L_idle"]
    g2 = lab.get("L_g2", len(l))
    return [linearize(att[:end_att+1], {"L_att_loop": 3}), linearize(l[:head_end] + l[g:idle] + l[g2:], {"L_g_loop": 3}), l[idle:]]

K2_DESC = dict(name="k2_kernel", vgpr=256, sgpr=102, accum=256, grid=256, block=512, lds=K2_LDS)
if __name__ == "__main__":
    p = gen_k2()
    l, errs = finalize("k2", p, paths=k2_paths, verbose=True)
```

```python
from common import *
SOLO = True
import struct
def float_hex(f): return hex(struct.unpack("<I", struct.pack("<f", f))[0])

LDS_FLAG = 130048
LDS_STG = 131072
K2_LDS = 163840
VAR = dict(margin=100.0, U=8, prio_att=1, prio_g=0, fuse3=True, cdelay=2)

QA, QB = 4, 8
CA, CB = 16, 32
OA, OB = 48, 64
SA, SB = 80, 96
PA, PB = 112, 120
KR = [128, 132, 136, 140]
V0R = [144, 148, 152, 156]
V1R = [160, 164, 168, 172]
AK, AV0, AV1 = 176, 177, 178
GK, GV0, GV1 = 179, 180, 181
MA, MB = 182, 183
TM = 184
FL = 188
PF, PFA = 190, 191
STT = 192

def max16(p, S, M, first):
    if first:
        p(f"v_max3_f32 v{M}, v{S}, v{S+1}, v{S+2}")
        p(f"v_max_f32 v{M}, v{M}, v{S+3}")
        r = range(4, 16, 2)
    else: r = range(0, 16, 2)
    for k in r: p(f"v_max3_f32 v{M}, v{M}, v{S+k}, v{S+k+1}")

def flag_wait(p, name, addr_v, off, val, tmpq, sleep=1):
    p.label(name)
    p(f"ds_read_b128 {vr(tmpq,4)}, v{addr_v} offset:{off}")
    p("s_waitcnt lgkmcnt(0)")
    p(f"v_min_u32 v{tmpq}, v{tmpq}, v{tmpq+1}\nv_min3_u32 v{tmpq}, v{tmpq}, v{tmpq+2}, v{tmpq+3}")
    p(f"v_cmp_gt_u32 vcc, {val}, v{tmpq}")
    p(f"s_cbranch_vccz {name}_ok\ns_sleep {sleep}\ns_branch {name}")
    p.label(name + "_ok")

def spin1(p, name, addr_v, off, val, tmp):
    p.label(name)
    p(f"ds_read_b32 v{tmp}, v{addr_v} offset:{off}")
    p("s_waitcnt lgkmcnt(0)")
    p(f"v_cmp_gt_u32 vcc, {val}, v{tmp}")
    p(f"s_cbranch_vccz {name}_ok\ns_sleep 1\ns_branch {name}")
    p.label(name + "_ok")

def att_loop_body(U):
    out = []
    def blk(S, P, So, Po, Mqk, Mpv1, Mpv0, extra):
        e = lambda k: I(f"v_exp_f32 v{S+k}, v{S+k}")
        c = lambda k: I(f"v_cvt_pk_bf16_f32 v{P+k}, v{S+2*k}, v{S+2*k+1}")
        co = lambda k: I(f"v_cvt_pk_bf16_f32 v{Po+k}, v{So+2*k}, v{So+2*k+1}")
        o = []
        pq, p1, p0 = VAR.get('pos', (2, 6, 12))
        cs = VAR.get('cs', {0: [-6], 1: [-7], 3: [0], 5: [1], 7: [2], 9: [3], 11: [4], 13: [5]})
        if VAR.get('perm'):
            c = lambda k: I(f"v_perm_b32 v{P+k}, v{S+2*k+1}, v{S+2*k}, s45")
            co = lambda k: I(f"v_perm_b32 v{Po+k}, v{So+2*k+1}, v{So+2*k}, s45")
        for k in range(16):
            o.append(e(k))
            for j in cs.get(k, []):
                if j < 0: o.append(co(-j))
            if k == pq and not VAR.get('nom'): o.append(Mqk)
            if k == p1 and not VAR.get('nom'): o.append(Mpv1)
            if k == p0 and not VAR.get('nom'): o.append(Mpv0)
            o += extra.get(k, [])
            for j in cs.get(k, []):
                if j >= 0: o.append(c(j))
        return o
    for u in range(U):
        s0 = u % 4; s1 = (u+1) % 4; sm = (u-1) % 4
        exA = {}; exB = {}
        if u % 2 == 0:
            rd = []
            for d in (2, 3):
                o_ = (u+d-1)*KVT
                rd += [I(f"ds_read_b128 {vr(KR[(u+d)%4],4)}, v{AK} offset:{o_}"),
                       I(f"ds_read_b128 {vr(V0R[(u+d)%4],4)}, v{AV0} offset:{o_}"),
                       I(f"ds_read_b128 {vr(V1R[(u+d)%4],4)}, v{AV1} offset:{o_}")]
            exA = {6: rd}
            if VAR.get('nods'): exA = {}
        if u == U-1:
            exB = {2: [I("s_add_u32 s41, s41, 1")], 3: [I(f"s_cmp_eq_u32 s41, {12//U}")], 4: [I("s_cbranch_scc1 L_att_sync2"), I("L_att_sync2_ret:")],
                   6: [I(f"v_add_u32 v{AK}, {U*KVT}, v{AK}")], 8: [I(f"v_add_u32 v{AV0}, {U*KVT}, v{AV0}")], 10: [I(f"v_add_u32 v{AV1}, {U*KVT}, v{AV1}")],
                   14: [I(f"s_cmp_lt_u32 s41, {64//U}")]}
        if u % 2 == 1: exB[0] = [I("s_waitcnt lgkmcnt(0)")]
        out += blk(SA, PA, SB, PB, mfma32(vr(SB,16), vr(KR[s0],4), vr(QB,4), vr(CB,16)),
                   mfma32(vr(OB,16), vr(V1R[sm],4), vr(PB+4,4), vr(OB,16)),
                   mfma32(vr(OA,16), vr(V0R[s0],4), vr(PA,4), vr(OA,16)), exA)
        out += blk(SB, PB, SA, PA, mfma32(vr(SA,16), vr(KR[s1],4), vr(QA,4), vr(CA,16)),
                   mfma32(vr(OA,16), vr(V1R[s0],4), vr(PA+4,4), vr(OA,16)),
                   mfma32(vr(OB,16), vr(V0R[s0],4), vr(PB,4), vr(OB,16)), exB)
    return out

def gen_attention(p, st):
    U = VAR['U']
    p(f"s_setprio {VAR['prio_att']}")
    p(f"""
    s_mul_i32 s30, s27, {KVH}
    s_add_u32 s30, s30, {KV}
    s_lshl_b32 s31, s27, 16
    s_lshl_b32 s32, s28, 3
    s_lshl_b32 s33, s24, 1
    s_add_u32 s32, s32, s33
    s_lshl_b32 s33, s32, 10
    s_add_u32 s31, s31, s33
    v_lshlrev_b32 v{GK}, 4, v1
    """)
    p(f"buffer_load_dwordx4 {vr(QA,4)}, v{GK}, s[12:15], s31 offen")
    p(f"buffer_load_dwordx4 {vr(QB,4)}, v{GK}, s[12:15], s31 offen offset:1024")
    p(f"buffer_load_dwordx4 {vr(KR[0],4)}, v{GK}, s[12:15], s30 offen")
    p(f"buffer_load_dwordx4 {vr(KR[1],4)}, v{GK}, s[12:15], s30 offen offset:{KVT}")
    p(f"""
    v_and_b32 v{TM}, 31, v1
    v_lshrrev_b32 v{TM+1}, 5, v1
    v_lshlrev_b32 v{TM+1}, 8, v{TM+1}
    v_lshl_add_u32 v{TM+1}, v{TM}, 4, v{TM+1}
    v_and_b32 v{TM+2}, 27, v{TM}
    v_cmp_eq_u32 vcc, 16, v{TM+2}
    v_mov_b32 v{TM+2}, 2064
    v_mov_b32 v{TM+3}, 2048
    v_cndmask_b32 v{TM+2}, v{TM+2}, v{TM+3}, vcc
    v_cmp_gt_u32 vcc, 16, v{TM}
    v_add_u32 v{GV0}, 1024, v{TM+1}
    v_add_u32 v{GV1}, 1536, v{TM+1}
    v_cndmask_b32 v{GV0}, v{TM+2}, v{GV0}, vcc
    v_cndmask_b32 v{GV1}, v{TM+2}, v{GV1}, vcc
    """)
    for t in range(2):
        p(f"buffer_load_dwordx4 {vr(V0R[t],4)}, v{GV0}, s[12:15], s30 offen offset:{t*KVT}")
        p(f"buffer_load_dwordx4 {vr(V1R[t],4)}, v{GV1}, s[12:15], s30 offen offset:{t*KVT}")
    p(f"""
    s_lshl_b32 s37, s24, 12
    s_add_u32 s38, s30, {KVT+1024}
    s_add_u32 s38, s38, s37
    """)
    for i in range(2):
        p("s_mov_b32 m0, s37")
        p("s_add_u32 s37, s37, 16384")
        for k in range(4):
            p(f"buffer_load_dwordx4 v{GK}, s[12:15], s38 offen offset:{k*1024} lds")
        p("s_add_u32 s38, s38, 16384")
    p("s_barrier")
    if VAR['fuse3']:
        p(f"""
        s_mul_i32 s33, s32, {88*1024}
        s_lshl_b32 s34, s27, 10
        s_add_u32 s33, s33, s34
        s_add_u32 s33, s33, {A3}
        s_add_u32 s35, s33, {88*1024}
        v_mov_b32 v{PA}, -1
        v_mov_b32 v{PA+1}, -1
        v_mov_b32 v{PA+2}, -1
        v_mov_b32 v{PA+3}, -1
        buffer_store_dwordx4 {vr(PA,4)}, v{GK}, s[12:15], s33 offen sc1
        buffer_store_dwordx4 {vr(PA,4)}, v{GK}, s[12:15], s35 offen sc1
        s_lshl_b32 s35, s32, 6
        s_lshl_b32 s34, s27, 2
        s_add_u32 s35, s35, s34
        s_add_u32 s35, s35, {OFL}
        """)
    p(f"""
    v_mov_b32 v{FL}, {LDS_FLAG}
    s_lshl_b32 s37, s24, 2
    v_add_u32 v{FL+1}, s37, v{FL}
    v_subrev_u32 v{AK}, 1024, v{GK}
    v_subrev_u32 v{AV0}, 1024, v{GV0}
    v_subrev_u32 v{AV1}, 1024, v{GV1}
    """)
    for r in list(range(OA, OA+32)) + list(range(PB+4, PB+6)) + list(range(V1R[3], V1R[3]+4)):
        p(f"v_mov_b32 v{r}, 0")
    p(f"s_waitcnt vmcnt({14 if VAR['fuse3'] else 12})")
    p.add([mfma32(vr(SA,16), vr(KR[0],4), vr(QA,4), "0"), mfma32(vr(SB,16), vr(KR[0],4), vr(QB,4), "0"),
           mfma32(vr(CA,16), vr(KR[1],4), vr(QA,4), "0"), mfma32(vr(CB,16), vr(KR[1],4), vr(QB,4), "0")])
    max16(p, SA, MA, True); max16(p, SB, MB, True); max16(p, CA, MA, False); max16(p, CB, MB, False)
    p(f"""
    s_mov_b32 s40, {float_hex(VAR['margin'])}
    v_mov_b32 v{TM}, v{MA}
    v_mov_b32 v{TM+1}, v{MB}
    v_permlane32_swap_b32 v{TM}, v{MA}
    v_permlane32_swap_b32 v{TM+1}, v{MB}
    v_max_f32 v{MA}, v{MA}, v{TM}
    v_max_f32 v{MB}, v{MB}, v{TM+1}
    v_add_f32 v{MA}, s40, v{MA}
    v_add_f32 v{MB}, s40, v{MB}
    """)
    for r in range(16): p(f"v_sub_f32 v{CA+r}, 0, v{MA}")
    for r in range(12, 16): p(f"v_mov_b32 v{SB+r}, 0")
    p.add([mfma32(vr(SA,16), vr(KR[0],4), vr(QA,4), vr(CA,16))])
    for r in range(16): p(f"v_sub_f32 v{CB+r}, 0, v{MB}")
    p(f"s_waitcnt vmcnt({2 if VAR['fuse3'] else 0})")
    p(f"v_mov_b32 v{TM}, 1\nds_write_b32 v{FL+1}, v{TM}")
    flag_wait(p, "L_att_f1", FL, 0, 1, TM)
    if VAR.get('wpf', 0):
        p(f"s_lshl_b32 s37, s25, 20\ns_lshl_b32 s38, s26, 2\ns_add_u32 s38, s38, s24\ns_lshl_b32 s38, s38, 13\ns_add_u32 s37, s37, s38")
        for k in range(8):
            if k == 4: p("s_add_u32 s37, s37, 4096")
            p(f"buffer_load_dwordx4 {vr(STT,4)}, v{GK}, s[16:19], s37 offen offset:{(k%4)*1024}")
    st(p, 1)
    p("s_mov_b32 s41, 0\ns_mov_b32 s45, 0x07060302")
    p(".p2align 6")
    p.label("L_att_loop")
    p.add(att_loop_body(U))
    p("s_cbranch_scc1 L_att_loop")
    st(p, 2)
    p(f"v_cvt_pk_bf16_f32 v{PB+6}, v{SB+12}, v{SB+13}\nv_cvt_pk_bf16_f32 v{PB+7}, v{SB+14}, v{SB+15}")
    p(f"""
    s_mul_i32 s33, s32, {88*1024}
    s_lshl_b32 s34, s27, 10
    s_add_u32 s33, s33, s34
    s_add_u32 s33, s33, {A3}
    """)
    p.add([mfma32(vr(OB,16), vr(V1R[3],4), vr(PB+4,4), vr(OB,16))])
    p("s_waitcnt lgkmcnt(0)")
    p("s_mov_b32 s36, 0")
    p.label("L_att_chk")
    p(f"v_mul_f32 v{TM}, 0, v{OA+8}")
    for r in range(8): p(f"v_fmac_f32 v{TM}, 0, v{OA+r}")
    p(f"v_cmp_u_f32 vcc, v{TM}, v{TM}")
    p("s_cbranch_vccnz L_att_slow")
    p.label("L_att_fin")
    p(f"v_rcp_f32 v{MA}, v{OA+8}")
    p("s_cmp_lg_u32 s36, 0")
    for r in range(8): p(f"v_mul_f32 v{OA+r}, v{OA+r}, v{MA}")
    for k in range(4): p(f"v_cvt_pk_bf16_f32 v{PA+k}, v{OA+2*k}, v{OA+2*k+1}")
    for k in range(4): p(f"v_min_u32 v{PA+k}, -2, v{PA+k}")
    p(f"buffer_store_dwordx4 {vr(PA,4)}, v{GK}, s[12:15], s33 offen")
    p("s_cbranch_scc1 L_att_done")
    p(f"s_mov_b32 s36, 1\ns_add_u32 s33, s33, {88*1024}")
    for r in range(9): p(f"v_mov_b32 v{OA+r}, v{OB+r}")
    for r in range(4): p(f"v_mov_b32 v{QA+r}, v{QB+r}")
    p("s_branch L_att_chk")
    p.label("L_att_done")
    st(p, 3)
    p("s_endpgm")
    p.label("L_att_sync2")
    if VAR['fuse3']:
        p(f"v_mov_b32 v{TM}, 1\ns_waitcnt vmcnt(0)\nbuffer_store_dword v{TM}, off, s[12:15], s35 sc1")
    if VAR.get('zpf'):
        p(f"s_lshl_b32 s37, s26, 2\ns_add_u32 s37, s37, s24\ns_mul_i32 s37, s37, {28*1024}\ns_add_u32 s37, s37, {Z2F}\nv_lshlrev_b32 v{PFA}, 7, v1")
        for k in range(4):
            if k == 3: p("s_mov_b32 exec_hi, 0")
            p(f"buffer_load_dword v{PF}, v{PFA}, s[12:15], s37 offen")
            if k < 3: p("s_add_u32 s37, s37, 8192")
        p("s_mov_b64 exec, -1")
    flag_wait(p, "L_att_f2", FL, 48, 1, TM)
    p("s_branch L_att_sync2_ret")
    p.label("L_att_slow")
    p(f"v_mov_b32 v{MA}, 0xff800000\ns_mov_b32 s41, 0\ns_mov_b32 s37, s30")
    p.label("L_att_sl1")
    p(f"buffer_load_dwordx4 {vr(KR[0],4)}, v{GK}, s[12:15], s37 offen")
    p("s_waitcnt vmcnt(0)")
    p.add([mfma32(vr(SA,16), vr(KR[0],4), vr(QA,4), "0")])
    max16(p, SA, MA, False)
    p(f"s_add_u32 s37, s37, {KVT}\ns_add_u32 s41, s41, 1\ns_cmp_lt_u32 s41, 64\ns_cbranch_scc1 L_att_sl1")
    p(f"v_mov_b32 v{TM}, v{MA}\nv_permlane32_swap_b32 v{TM}, v{MA}\nv_max_f32 v{MA}, v{MA}, v{TM}")
    for r in range(16): p(f"v_sub_f32 v{CA+r}, 0, v{MA}\nv_mov_b32 v{OA+r}, 0")
    p("s_mov_b32 s41, 0\ns_mov_b32 s37, s30")
    p.label("L_att_sl2")
    p(f"buffer_load_dwordx4 {vr(KR[0],4)}, v{GK}, s[12:15], s37 offen")
    p(f"buffer_load_dwordx4 {vr(V0R[0],4)}, v{GV0}, s[12:15], s37 offen")
    p(f"buffer_load_dwordx4 {vr(V1R[0],4)}, v{GV1}, s[12:15], s37 offen")
    p("s_waitcnt vmcnt(0)")
    p.add([mfma32(vr(SA,16), vr(KR[0],4), vr(QA,4), vr(CA,16))])
    for k in range(16): p(f"v_exp_f32 v{SA+k}, v{SA+k}")
    for k in range(8): p(f"v_cvt_pk_bf16_f32 v{PA+k}, v{SA+2*k}, v{SA+2*k+1}")
    p.add([mfma32(vr(OA,16), vr(V0R[0],4), vr(PA,4), vr(OA,16)), mfma32(vr(OA,16), vr(V1R[0],4), vr(PA+4,4), vr(OA,16))])
    p(f"s_add_u32 s37, s37, {KVT}\ns_add_u32 s41, s41, 1\ns_cmp_lt_u32 s41, 64\ns_cbranch_scc1 L_att_sl2")
    p("s_nop 15\ns_branch L_att_fin")

ACC = 4
NZF = 16
ZR = 132
WR = 196
VL = 228; VD = 229; VW = 230
G = 232
def acc(i, tt): return ACC + (i*2+tt)*16

def kv_rest(p, uniq):
    for i in range(6):
        p("s_mov_b32 m0, s62")
        if i < 5: p("s_add_u32 s62, s62, 16384")
        else: p("s_cmp_eq_u32 s24, 3")
        for k in range(4):
            if i == 5 and k == 3: p(f"s_cbranch_scc1 L_g_kvdone{uniq}")
            p(f"buffer_load_dwordx4 v{VL}, s[12:15], s63 offen offset:{k*1024} lds")
        if i < 5: p("s_add_u32 s63, s63, 16384")
    p.label(f"L_g_kvdone{uniq}")

def flag_addr(p):
    p(f"""
    s_lshr_b32 s48, s26, 3
    s_lshl_b32 s47, s25, 2
    s_add_u32 s48, s48, s47
    s_lshl_b32 s48, s48, 7                 ; tb'*128
    s_lshl_b32 s47, s24, 5
    s_add_u32 s46, s48, s47
    s_mul_i32 s47, s24, 28
    s_add_u32 s48, s48, s47
    s_add_u32 s48, s48, {UFL-OFL}          ; u flags
    s_and_b32 s47, s26, 7
    s_lshl_b32 s47, s47, 7
    s_add_u32 s47, s47, {WFL-OFL}          ; W flags
    v_lshlrev_b32 v{G+5}, 2, v1
    v_mov_b32 v{G+6}, s48
    v_add_u32 v{G+7}, s48, v{G+5}
    v_cmp_gt_u32 vcc, 7, v1
    v_cndmask_b32 v{G+6}, v{G+6}, v{G+7}, vcc
    v_subrev_u32 v{G+5}, 128, v{G+5}
    v_add_u32 v{G+7}, s47, v{G+5}
    v_cmp_gt_u32 vcc, 64, v{G+5}
    v_cndmask_b32 v{G+6}, v{G+6}, v{G+7}, vcc
    v_subrev_u32 v{G+5}, 64, v{G+5}
    v_add_u32 v{G+7}, s46, v{G+5}
    v_cmp_gt_u32 vcc, 32, v{G+5}
    v_cndmask_b32 v{G+6}, v{G+6}, v{G+7}, vcc
    s_mov_b32 s48, {OFL}
    """)
def gen_gemm(p, st):
    p(f"""
    s_sub_u32 s24, s24, 4                  ; q = K quarter
    v_lshlrev_b32 v{VL}, 4, v1
    s_mul_i32 s63, s27, {KVH}
    s_lshl_b32 s62, s24, 12
    s_add_u32 s62, s62, 32768
    s_add_u32 s63, s63, s62
    s_add_u32 s63, s63, {KV + KVT + 1024}
    s_lshl_b32 s46, s24, 2
    s_add_u32 s46, s46, {LDS_FLAG}
    v_mov_b32 v{G+1}, s46
    v_mov_b32 v{G+3}, 1
    s_barrier
    """)
    kv_rest(p, "a")
    p(f"""
    s_cmp_ge_u32 s26, 28
    s_cbranch_scc1 L_idle
    s_setprio {VAR.get('prio_s', 3)}
    s_mul_i32 s30, s26, 9363
    s_lshr_b32 s30, s30, 16                ; j/7
    s_mul_i32 s31, s30, 7
    s_sub_u32 s31, s26, s31                ; fb = j%7
    s_lshl_b32 s32, s25, 2
    s_add_u32 s30, s30, s32                ; tb
    s_lshl_b32 s33, s31, 19
    s_add_u32 s33, s33, {Z2F}
    s_lshl_b32 s34, s24, 17
    s_add_u32 s33, s33, s34
    s_lshl_b32 s35, s30, 18
    s_lshl_b32 s34, s24, 10
    s_add_u32 s35, s35, s34
    s_lshl_b32 s36, s24, 13
    s_add_u32 s36, s36, {LDS_STG}
    s_add_u32 s37, s36, 4096
    """)
    for i in range(4):
        p(f"s_add_u32 s38, s24, {i}\ns_and_b32 s38, s38, 3\ns_lshl_b32 s38, s38, 10\ns_add_u32 s{52+i}, s33, s38")
        p(f"s_add_u32 s{56+i}, s35, {i*(65536-1024)}")
    p(f"""
    v_lshrrev_b32 v2, 2, v1
    v_lshlrev_b32 v2, 12, v2
    v_lshrrev_b32 v3, 4, v1
    v_xor_b32 v3, v3, v1
    v_and_b32 v3, 3, v3
    v_lshl_add_u32 v{VD}, v3, 4, v2
    """)
    def dma(b):
        out = [I(f"s_mov_b32 m0, s{36 + b%2}"), I("s_nop 0")]
        for k in range(4):
            out.append(I(f"buffer_load_dwordx4 v{VD}, s[16:19], s{56+k} offen offset:{k*1024} lds", tag=f"d{b}"))
            out.append(I(f"s_add_u32 s{56+k}, s{56+k}, 64"))
        return out
    def zload(n):
        i = n % 4
        return [I(f"buffer_load_dwordx4 {vr(ZR + (n%NZF)*4, 4)}, v{VL}, s[12:15], s{52+i} offen", tag=f"z{n}"),
                I(f"s_add_u32 s{52+i}, s{52+i}, 4096")]
    if VAR['fuse3']:
        p(f"""
        s_lshl_b32 s38, s30, 1
        s_mul_i32 s64, s38, {88*1024}
        s_lshl_b32 s40, s31, 2
        s_add_u32 s40, s40, s24
        s_lshl_b32 s41, s40, 11
        s_add_u32 s64, s64, s41
        s_add_u32 s64, s64, {A3 + 32*1024}
        s_add_u32 s65, s64, {88*1024}
        s_lshl_b32 s49, s30, 7
        s_lshl_b32 s41, s40, 2
        s_add_u32 s49, s49, s41
        s_add_u32 s49, s49, {UFL}
        v_mov_b32 v4, -1
        v_mov_b32 v5, -1
        v_mov_b32 v6, -1
        v_mov_b32 v7, -1
        """)
        for k in range(4): p(f"buffer_store_dwordx4 v[4:7], v{VL}, s[12:15], s{64+k//2} offen offset:{(k%2)*1024} sc1")
    p.add(dma(0))
    for n in range(8): p.add(zload(n))
    p.add(dma(1))
    for n in range(8, 16): p.add(zload(n))
    p(f"s_setprio 3\nv_and_b32 v2, 31, v1")
    bitswap23(p, 2, 2, 3)
    p(f"""
    v_lshrrev_b32 v3, 2, v2
    v_lshrrev_b32 v{VW}, 5, v1
    v_xor_b32 v3, v3, v{VW}
    v_and_b32 v3, 3, v3
    v_lshlrev_b32 v3, 4, v3
    v_lshl_add_u32 v{VW}, v2, 6, v3
    v_add_u32 v{VW}, s36, v{VW}
    v_xor_b32 v{VW+1}, 32, v{VW}
    """)
    p(f"s_setprio {VAR['prio_g']}")
    st(p, 1)
    NB = 16
    def wread(b):
        return [I(f"ds_read_b128 {vr(WR + ((b%2)*4+u*2+tt)*4, 4)}, v{VW+u} offset:{(b%2)*4096 + tt*2048}", tag=f"w{b}", needs=[f"d{b}"]) for u in range(2) for tt in range(2)]
    def block(b, first=False, dma_on=True, z_on=True, w_on=True):
        o = [W(lg=f"w{b}")]
        if dma_on: o += dma(b+2)
        for u in range(2):
            s = 2*b+u
            o.append(W(vm=[f"z{4*s+3}"] + ([f"d{b+1}"] if (u == 1 and w_on) else [])))
            for i in range(4):
                n = 4*s+i
                for tt in range(2):
                    c = "0" if (first and u == 0) else vr(acc(i,tt),16)
                    o.append(mfma32(vr(acc(i,tt),16), vr(ZR+(n%NZF)*4,4), vr(WR+((b%2)*4+u*2+tt)*4,4), c))
                if u == 1 and i == 0 and w_on: o += wread(b+1)
            if z_on:
                for i in range(4): o += zload(4*s+i+NZF)
        return o
    p.wait(vm="d0"); p(f"ds_write_b32 v{G+1}, v{G+3} offset:48"); p.add(wread(0))
    if VAR['fuse3']: p(f"buffer_store_dword v{G+3}, off, s[12:15], s49 sc1")
    p.add(block(0, first=True)); p.add(block(1))
    p("s_mov_b32 s60, 0")
    p.label("L_g_loop")
    p.add(block(2)); p.add(block(3))
    p("s_add_u32 s60, s60, 1\ns_cmp_lt_u32 s60, 6\ns_cbranch_scc1 L_g_loop")
    p.add(block(4, dma_on=False, z_on=False)); p.add(block(5, dma_on=False, z_on=False, w_on=False))
    st(p, 2)
    p(f"s_setprio {VAR.get('prio_e', 3)}")
    p(f"""
    s_lshl_b32 s38, s30, 1
    s_mul_i32 s39, s38, {56*1024}
    s_lshl_b32 s40, s31, 2
    s_add_u32 s40, s40, s24
    s_lshl_b32 s41, s40, 11
    s_add_u32 s39, s39, s41
    s_add_u32 s39, s39, {Z1F}
    s_add_u32 s42, s39, {56*1024}
    s_mul_i32 s43, s38, {88*1024}
    s_add_u32 s43, s43, s41
    s_add_u32 s43, s43, {A3 + 32*1024}
    s_add_u32 s44, s43, {88*1024}
    s_lshl_b32 s45, s30, 7
    v_lshlrev_b32 v2, 1, v2
    """)
    Z = ZR
    if VAR['fuse3']:
        flag_addr(p)
        p(f"buffer_load_dword v{G+5}, v{G+6}, s[12:15], s48 offen sc1", tag="z1")
    p(f"buffer_load_dwordx4 {vr(Z,4)}, v{VL}, s[12:15], s39 offen", tag="z1")
    p(f"buffer_load_dwordx4 {vr(Z+4,4)}, v{VL}, s[12:15], s39 offen offset:1024", tag="z1")
    p(f"buffer_load_dwordx4 {vr(Z+8,4)}, v{VL}, s[12:15], s42 offen", tag="z1")
    p(f"buffer_load_dwordx4 {vr(Z+12,4)}, v{VL}, s[12:15], s42 offen offset:1024", tag="z1")
    p(f"buffer_load_ushort v{Z+16}, v2, s[20:23], s45 offen", tag="z1")
    p(f"buffer_load_ushort v{Z+17}, v2, s[20:23], s45 offen offset:64", tag="z1")
    p(f"""
    v_add_u32 v{G}, s36, v{VL}
    """)
    for r in range(1, 4):
        if r > 1:
            p(f"s_add_u32 s47, s24, {r-1}\ns_and_b32 s47, s47, 3\ns_lshl_b32 s47, s47, 2\ns_add_u32 s47, s47, {LDS_FLAG}\nv_mov_b32 v{G+2}, s47")
            spin1(p, f"L_g_ack{r}", G+2, 32, r-1, G+3)
        for k in range(8):
            p(f"ds_write_b128 v{G}, {vr(acc(r,0)+4*k, 4)} offset:{k*1024}")
        p(f"v_mov_b32 v{G+3}, {r}\ns_waitcnt lgkmcnt(0)\nds_write_b32 v{G+1}, v{G+3} offset:16")
        p(f"s_add_u32 s47, s24, {4-r}\ns_and_b32 s47, s47, 3\ns_lshl_b32 s48, s47, 2\ns_add_u32 s48, s48, {LDS_FLAG}\nv_mov_b32 v{G+2}, s48\ns_lshl_b32 s47, s47, 13\ns_add_u32 s47, s47, {LDS_STG}\nv_add_u32 v{G+4}, s47, v{VL}")
        spin1(p, f"L_g_dat{r}", G+2, 16, r, G+3)
        T = acc(r, 0)
        for k in range(8):
            p(f"ds_read_b128 {vr(T+4*k,4)}, v{G+4} offset:{k*1024}", tag=f"r{k}")
        for k in range(8):
            p.wait(lg=f"r{k}")
            for e in range(4): p(f"v_add_f32 v{acc(0,0)+4*k+e}, v{acc(0,0)+4*k+e}, v{T+4*k+e}")
        if r < 3:
            p(f"v_mov_b32 v{G+3}, {r}\nds_write_b32 v{G+1}, v{G+3} offset:32")
    p.wait(vm="z1")
    T = acc(1, 0)
    p(f"v_lshlrev_b32 v{Z+16}, 16, v{Z+16}\nv_lshlrev_b32 v{Z+17}, 16, v{Z+17}")
    for tt in range(2):
        a = acc(0, tt)
        for r in range(16): p(f"v_add_f32 v{a+r}, v{a+r}, v{Z+16+tt}")
        for d in range(8):
            z = Z + tt*8 + d
            p(f"v_lshlrev_b32 v{T}, 16, v{z}\nv_and_b32 v{T+1}, 0xffff0000, v{z}")
            p(f"v_mul_f32 v{a+2*d}, v{a+2*d}, v{T}\nv_mul_f32 v{a+2*d+1}, v{a+2*d+1}, v{T+1}")
            p(f"v_cvt_pk_bf16_f32 v{T+8+tt*8+d}, v{a+2*d}, v{a+2*d+1}")
        for d in range(8): p(f"v_min_u32 v{T+8+tt*8+d}, -2, v{T+8+tt*8+d}")
        so = 43 + tt
        p(f"buffer_store_dwordx4 {vr(T+8+tt*8,4)}, v{VL}, s[12:15], s{so} offen")
        p(f"buffer_store_dwordx4 {vr(T+12+tt*8,4)}, v{VL}, s[12:15], s{so} offen offset:1024")
    if VAR.get('pf3'):
        p(f"s_lshl_b32 s38, s26, 2\ns_add_u32 s38, s38, s24\ns_mul_i32 s38, s38, 16384\ns_add_u32 s38, s38, {W3F}\nv_lshlrev_b32 v2, 7, v1")
        p(f"buffer_load_dword v3, v2, s[12:15], s38 offen\ns_add_u32 s38, s38, 8192\nbuffer_load_dword v3, v2, s[12:15], s38 offen")
    st(p, 3)
    if VAR['fuse3']:
        p(f"v_cmp_eq_u32 vcc, 0, v{G+5}\ns_cbranch_vccz L_g2\ns_branch L_g2w")
    else: p("s_endpgm")
    p.label("L_idle")
    p(f"""
    s_load_dwordx2 s[36:37], s[0:1], {KA_WO}
    s_load_dwordx2 s[38:39], s[0:1], {KA_WOUT}
    s_lshl_b32 s34, s25, 2
    s_add_u32 s34, s34, s26
    s_sub_u32 s34, s34, 28                      ; L
    s_mov_b32 s54, {896*1024}
    s_waitcnt vmcnt(0) lgkmcnt(0)
    ds_write_b32 v{G+1}, v{G+3} offset:48
    s_cmp_lt_u32 s34, 16
    s_cselect_b32 s52, s36, s38
    s_cselect_b32 s53, s37, s39
    s_cselect_b32 s54, {512*1024}, s54
    s_cselect_b32 s35, 8, 14
    s_cselect_b32 s67, 0, {32*1024}
    s_mov_b32 s55, 0x20000
    s_and_b32 s34, s34, 15
    s_mul_i32 s68, s24, s35
    s_lshl_b32 s69, s68, 14
    s_lshl_b32 s60, s34, 6
    s_add_u32 s69, s69, s60
    s_mul_i32 s60, s34, {88*1024}
    s_lshl_b32 s68, s68, 10
    s_add_u32 s60, s60, s68
    s_add_u32 s60, s60, s67
    s_add_u32 s60, s60, {W3F}
    v_lshrrev_b32 v2, 2, v1
    v_and_b32 v3, 3, v1
    v_lshlrev_b32 v3, 4, v3
    v_lshl_add_u32 v2, v2, 10, v3
    s_lshl_b32 s61, s24, 13
    s_add_u32 s61, s61, {LDS_STG}
    v_lshrrev_b32 v4, 5, v1
    v_lshlrev_b32 v3, 9, v4
    v_bfe_u32 v4, v1, 2, 2
    v_lshl_add_u32 v3, v4, 6, v3
    v_bfe_u32 v4, v1, 4, 1
    v_lshl_add_u32 v3, v4, 5, v3
    v_and_b32 v4, 1, v1
    v_lshl_add_u32 v3, v4, 4, v3
    v_bfe_u32 v4, v1, 1, 1
    v_lshl_add_u32 v3, v4, 3, v3
    v_add_u32 v3, s61, v3
    s_mov_b32 m0, s61
    s_mov_b32 s62, 0
    """)
    p.label("L_w3a")
    p("buffer_load_dwordx4 v2, s[52:55], s69 offen lds\ns_add_u32 s69, s69, 16384\ns_add_u32 s62, s62, 1\ns_waitcnt vmcnt(0)")
    p(f"ds_read_b64_tr_b16 v[8:9], v3\nds_read_b64_tr_b16 v[10:11], v3 offset:256\ns_waitcnt lgkmcnt(0)")
    p(f"buffer_store_dwordx4 v[8:11], v{VL}, s[12:15], s60 offen\ns_add_u32 s60, s60, 1024\ns_cmp_lt_u32 s62, s35\ns_cbranch_scc1 L_w3a")
    if not VAR['fuse3']:
        p("s_endpgm"); return
    p(f"""
    s_lshr_b32 s33, s34, 1
    s_lshl_b32 s33, s33, 7                      ; (nt>>1)*128
    s_and_b32 s34, s34, 1
    s_lshl_b32 s34, s34, 4
    s_add_u32 s33, s33, s34
    s_lshr_b32 s34, s67, 10                     ; 0 or 32
    s_add_u32 s33, s33, s34
    s_lshl_b32 s34, s24, 2
    s_add_u32 s33, s33, s34
    s_add_u32 s33, s33, {WFL}
    v_mov_b32 v{G+3}, 1
    s_waitcnt vmcnt(0)
    buffer_store_dword v{G+3}, off, s[12:15], s33 sc1
    """)
    flag_addr(p)
    p.label("L_g2w")
    poll(p, "L_p0", 48, G+6, None, G+5, sleep=32)
    gen_g2(p, st)


FA = 4
FW = 68
FX = 132
FR = 180
FO_ = 180
FL_ = 244; FO = 245; FT = 246
def poll(p, name, soff, voff, mask_hi_lo, tmp, bad=0, sleep=None):
    p(f"s_mov_b32 s47, 0")
    p.label(name)
    p(f"buffer_load_dword v{tmp}, v{voff}, s[12:15], s{soff} offen sc1\ns_add_u32 s47, s47, 1\ns_waitcnt vmcnt(0)")
    p(f"v_cmp_eq_u32 vcc, {bad}, v{tmp}\ns_cbranch_vccz {name}_ok\ns_cmp_gt_u32 s47, 0x40000\ns_cbranch_scc1 {name}_ok\ns_sleep {sleep or VAR.get('psleep', 16)}\ns_branch {name}")
    p.label(name + "_ok")
def gen_g2(p, st):
    p.label("L_g2")
    p(f"""
    v_mov_b32 v{FL_}, v{VL}
    s_load_dwordx2 s[6:7], s[0:1], {KA_X}
    s_load_dwordx2 s[8:9], s[0:1], {KA_OUT}
    s_setprio 3
    s_lshr_b32 s27, s26, 3
    s_lshl_b32 s28, s25, 2
    s_add_u32 s27, s27, s28                ; tb
    s_and_b32 s28, s26, 7                  ; nb
    s_and_b32 s29, s24, 1
    s_lshr_b32 s30, s24, 1
    s_lshl_b32 s32, s27, 1
    s_add_u32 s33, s32, s29
    s_xor_b32 s34, s33, 1
    s_lshl_b32 s32, s28, 1
    s_add_u32 s35, s32, s30
    s_xor_b32 s36, s35, 1
    s_mul_i32 s40, s33, {88*1024}
    s_mul_i32 s41, s34, {88*1024}
    s_mul_i32 s42, s35, {88*1024}
    s_mul_i32 s43, s36, {88*1024}
    s_add_u32 s40, s40, {A3}
    s_add_u32 s41, s41, {A3}
    s_add_u32 s42, s42, {W3F}
    s_add_u32 s43, s43, {W3F}
    s_mul_i32 s31, s24, {14*1024}
    s_add_u32 s31, s31, {32*1024}
    s_lshl_b32 s32, s24, 13
    s_lshl_b32 s44, s33, 15
    s_lshl_b32 s45, s35, 6
    s_add_u32 s44, s44, s45
    s_mov_b32 s49, 0
    """)
    p.label("L_g2_redo")
    for i in range(4):
        p(f"s_add_u32 s{52+i}, s{40+i}, s31\ns_add_u32 s{56+i}, s{40+i}, s32")
    for s_ in range(14):
        if s_ and s_ % 4 == 0: p("s_add_u32 s54, s54, 4096\ns_add_u32 s55, s55, 4096")
        for i in range(2):
            p(f"buffer_load_dwordx4 {vr(FW+(s_*2+i)*4,4)}, v{FL_}, s[12:15], s{54+i} offen offset:{(s_%4)*1024} sc1")
    st(p, 8)
    p(f"""
    s_min_u32 s46, s52, s53
    s_min_u32 s45, s56, s57
    v_lshrrev_b32 v2, 1, v1
    v_min_u32 v{FT+2}, 13, v2
    v_min_u32 v{FT+1}, 7, v2
    v_and_b32 v3, 1, v1
    v_mul_u32_u24 v3, {88*1024}, v3
    v_add_u32 v3, 1020, v3
    v_lshl_add_u32 v{FT+2}, v{FT+2}, 10, v3
    v_lshl_add_u32 v{FT+1}, v{FT+1}, 10, v3
    v_and_b32 v2, 31, v1
    """)
    bitswap23(p, 2, 2, 3)
    p(f"v_lshrrev_b32 v3, 5, v1\nv_lshlrev_b32 v3, 4, v3\nv_lshl_add_u32 v{FO}, v2, 10, v3\nv_mov_b32 v{FT+5}, 0\ns_waitcnt lgkmcnt(0)")
    srd(p, 16, 6, 2048*1024); srd(p, 20, 8, 2048*1024)
    st(p, 9)
    poll(p, "L_p1", 46, FT+2, None, FT+4, bad=-1)
    st(p, 4)
    p(f"s_setprio {VAR.get('prio_u', 3)}")
    NR = 8
    def ld(s):
        o = []
        if s and s % 4 == 0: o += [I(f"s_add_u32 s{52+i}, s{52+i}, 4096") for i in range(2)]
        for i in range(2):
            o.append(I(f"buffer_load_dwordx4 {vr(FR+((s%NR)*2+i)*4,4)}, v{FL_}, s[12:15], s{52+i} offen offset:{(s%4)*1024} sc1", tag=f"g{s}"))
        return o
    for s_ in range(NR): p.add(ld(s_))
    for s_ in range(14):
        p.wait(vm=f"g{s_}")
        for n_, (a, b) in enumerate(((0,0), (0,1), (1,0), (1,1))):
            d = vr(FA + (a*2+b)*16, 16)
            p.add([mfma32(d, vr(FW+(s_*2+a)*4,4), vr(FR+((s_%NR)*2+b)*4,4), "0" if s_ == 0 else d)])
            r0 = FR+(s_%NR)*8+2*n_
            p(f"v_max3_u32 v{FT+5}, v{FT+5}, v{r0}, v{r0+1}")
        if s_+NR < 14: p.add(ld(s_+NR))
        if s_ >= 6:
            k = s_-6
            for i in range(2):
                p(f"s_add_u32 s47, s{58+i}, {(k//4)*4096}")
                p(f"buffer_load_dwordx4 {vr(FW+(k*2+i)*4,4)}, v{FL_}, s[12:15], s47 offen offset:{(k%4)*1024} sc1", tag="wo")
    p(f"buffer_load_dwordx4 {vr(FX,4)}, v{FO}, s[16:19], s44 offen", tag="x")
    p(f"buffer_load_dwordx4 {vr(FX+4,4)}, v{FO}, s[16:19], s44 offen offset:32", tag="x")
    p(f"s_setprio 3\nv_cmp_eq_u32 vcc, -1, v{FT+5}\ns_cbranch_vccnz L_g2_again")
    p.label("L_g2_go")
    p.wait(vm="x")
    for d_ in range(7, -1, -1):
        p(f"v_and_b32 v{FX+8+2*d_+1}, 0xffff0000, v{FX+d_}\nv_lshlrev_b32 v{FX+8+2*d_}, 16, v{FX+d_}")
    st(p, 5)
    p("s_barrier")
    p("s_add_u32 s58, s56, 4096\ns_add_u32 s59, s57, 4096\ns_mov_b32 s49, 0")
    p.label("L_p3")
    poll(p, "L_p2", 45, FT+1, None, FT+4, bad=-1, sleep=VAR.get('p3sleep', 4))
    for s_ in range(8):
        for i in range(2):
            p(f"buffer_load_dwordx4 {vr(FO_+(s_*2+i)*4,4)}, v{FL_}, s[12:15], s{56+i+2*(s_//4)} offen offset:{(s_%4)*1024} sc1", tag=f"o{s_}")
    p(f"v_mov_b32 v{FT+4}, 0\ns_add_u32 s49, s49, 1")
    for s_ in range(8):
        p.wait(vm=f"o{s_}")
        for k in range(0, 8, 2): p(f"v_max3_u32 v{FT+4}, v{FT+4}, v{FO_+8*s_+k}, v{FO_+8*s_+k+1}")
    p(f"v_cmp_eq_u32 vcc, -1, v{FT+4}\ns_cbranch_vccz L_p3_ok\ns_cmp_lt_u32 s49, 64\ns_cbranch_scc1 L_p3")
    p.label("L_p3_ok")
    st(p, 6)
    for i in range(1, 4):
        p(f"s_xor_b32 s46, s24, {i}\ns_mul_i32 s46, s46, 12288\ns_add_u32 s46, s46, {(i-1)*4096}\nv_add_u32 v{FT+i}, s46, v{FL_}")
    p(f"s_mul_i32 s46, s24, 12288\nv_add_u32 v{FT}, s46, v{FL_}")
    for s_ in range(8):
        order = ((0,0), (0,1), (1,0), (1,1)) if s_ < 7 else ((0,1), (1,0), (1,1), (0,0))
        for (a, b) in order:
            d = vr(FA + (a*2+b)*16, 16)
            p.add([mfma32(d, vr(FW+(s_*2+a)*4,4), vr(FO_+(s_*2+b)*4,4), d)])
    for i in range(1, 4):
        for k in range(4): p(f"ds_write_b128 v{FT+i}, {vr(FA+i*16+4*k,4)} offset:{k*1024}")
    for r in range(16): p(f"v_add_f32 v{FA+r}, v{FA+r}, v{FX+8+r}")
    p("s_waitcnt lgkmcnt(0)\ns_barrier")
    for k in range(12): p(f"ds_read_b128 {vr(FA+16+4*k,4)}, v{FT} offset:{k*1024}", tag=f"r{k}")
    for k in range(12):
        p.wait(lg=f"r{k}")
        for e in range(4): p(f"v_add_f32 v{FA+(4*k+e)%16}, v{FA+(4*k+e)%16}, v{FA+16+4*k+e}")
    for d in range(8): p(f"v_cvt_pk_bf16_f32 v{FX+d}, v{FA+2*d}, v{FA+2*d+1}")
    p(f"buffer_store_dwordx4 {vr(FX,4)}, v{FO}, s[20:23], s44 offen")
    p(f"buffer_store_dwordx4 {vr(FX+4,4)}, v{FO}, s[20:23], s44 offen offset:32")
    st(p, 7)
    p("s_endpgm")
    p.label("L_g2_again")
    p("s_add_u32 s49, s49, 1\ns_cmp_gt_u32 s49, 64\ns_cbranch_scc1 L_g2_go\ns_waitcnt vmcnt(0)\ns_branch L_g2_redo")

def gen_k2(with_gemm=True, with_att=True, stamp=False):
    p = Prog()
    entry_stamp(p, stamp)
    p(f"""
    s_cmp_ge_u32 s2, 256
    s_cbranch_scc1 L_end
    s_load_dwordx2 s[4:5], s[0:1], {KA_WS}
    s_load_dwordx4 s[8:11], s[0:1], {KA_WSP}
    v_and_b32 v1, 63, v0
    v_lshrrev_b32 v2, 6, v0
    v_readfirstlane_b32 s24, v2
    s_and_b32 s25, s2, 7
    s_lshr_b32 s26, s2, 3
    s_lshr_b32 s27, s26, 3
    s_lshl_b32 s28, s25, 2
    s_add_u32 s27, s27, s28                ; head
    s_and_b32 s28, s26, 7                  ; qb
    v_mov_b32 v2, 0
    v_lshlrev_b32 v3, 2, v1
    v_add_u32 v3, {LDS_FLAG}, v3
    ds_write_b32 v3, v2
    s_mov_b32 s50, s24
    s_waitcnt lgkmcnt(0)
    """)
    srd(p, 12, 4, WS_USED); srd(p, 16, 8, 2048*2048*2); srd(p, 20, 10, 4096)
    st0 = (Stamper(stamp and not SOLO, 50, 252, kid=1) if not SOLO else Stamper(stamp, 50, 252))
    st0(p, 0); entry_store(p, st0)
    p("s_cmp_ge_u32 s24, 4\ns_cbranch_scc1 L_gemm")
    if with_att: gen_attention(p, (Stamper(stamp and not SOLO, 50, 252, kid=1) if not SOLO else Stamper(stamp, 50, 252)))
    else: p("s_endpgm")
    p.label("L_gemm")
    if with_gemm: gen_gemm(p, (Stamper(stamp and not SOLO, 50, 252, kid=1) if not SOLO else Stamper(stamp, 50, 252)))
    p.label("L_end")
    p("s_endpgm")
    return p

def k2_paths(l):
    lab = {x.op: i for i, x in enumerate(l) if x.kind == "label"}
    g = lab["L_gemm"]
    att = l[:g]
    end_att = next(i for i, x in enumerate(att) if x.kind == "misc" and x.base == "s_endpgm")
    head_end = next(i for i, x in enumerate(l) if x.kind == "branch" and x.target == "L_gemm")
    idle = lab["L_idle"]
    g2 = lab.get("L_g2", len(l))
    return [linearize(att[:end_att+1], {"L_att_loop": 3}), linearize(l[:head_end] + l[g:idle] + l[g2:], {"L_g_loop": 3}), l[idle:]]

K2_DESC = dict(name="k2_kernel", vgpr=256, sgpr=102, accum=256, grid=256, block=512, lds=K2_LDS)
if __name__ == "__main__":
    p = gen_k2()
    l, errs = finalize("k2", p, paths=k2_paths, verbose=True)
```

```python
from common import *
import struct, math
def fh(f): return hex(struct.unpack("<I", struct.pack("<f", f))[0])
K1_LDS = 163840
RING = 65536
BIAS = 3072
CNT = 3072
C0 = -2.0*math.sqrt(2.0/math.pi)*1.4426950408889634
A0, A1, A2, A3_ = 4, 20, 36, 52
LA = 2
WB = 68
CSF = 92
CSA = 100
T = 68
WC = 92; STQ = 96
SEL = 108; XC = 112
R1, RI, C0R, C1R = 116, 117, 118, 119
VXD = 116
VXR = 112
VL, VPI, VQ, VB = 120, 121, 122, 123
VA = 124
RR = 52
SX, Q0, Q1 = 52, 56, 60
VAR = dict(prio=True, per=1, rot=True, cpf=40960)
WI, WQ, XS = "s[16:19]", "s[20:23]", "s[24:27]"
SXE, SIE, SQE = 60, 64, 96

def dma1(lds_s, lds_c, sr, vo, sb, se, c, tag):
    return [I(f"s_add_u32 m0, s{lds_s}, {lds_c}"), I(f"s_add_u32 s69, s{sb}, s{se}"),
            I(f"buffer_load_dwordx4 v{vo}, {sr}, s69 offen offset:{c} lds" if False else f"s_add_u32 s69, s69, {c}"),
            I(f"buffer_load_dwordx4 v{vo}, {sr}, s69 offen lds", tag=tag)]
def E_addr(ks): return RING + ((ks//8)*24 + (ks%8)*3)*1024
def Z_addr(ks): return RING + ks*2048
def Q_addr(ks):
    if ks < 16: return RING + 65536 + ks*2048
    r = ks-16; return (r//4)*16384 + 8192 + (r%4)*2048
def dma_E(e):
    b = RING + e*24*1024
    return [dma1(58, b, WI, VPI, 80, SIE+e, 1792, f"E{e}"), dma1(58, b+1024, WI, VPI, 80, SIE+e, 1792+8*3584, f"E{e}"),
            dma1(58, b+2048, WQ, VQ, 81, SQE+e, 2048, f"E{e}")]
def dma_Z(e):
    b = RING + e*16384
    return [dma1(55, b, WI, VPI, 80, SIE+e, 0, f"Z{e}"), dma1(55, b+1024, WI, VPI, 80, SIE+e, 8*3584, f"Z{e}")]
def dma_Q(e):
    ls, b = (55, RING + 65536 + e*16384) if e < 2 else (54, (e-2)*32768 + 8192)
    return [dma1(ls, b, WQ, VQ, 82, SQE+e, 0, "Q"), dma1(ls, b+1024, WQ, VQ, 82, SQE+e, 8*3072, "Q")]
def x_dma(e):
    return [[I(f"s_add_u32 m0, s59, {(2*e % 4)*4096 + i*1024}"), I(f"s_add_u32 s69, s56, s{SXE+e}"),
             I(f"buffer_load_dwordx4 v{VXD+i}, {XS}, s69 offen lds", tag=f"X{e}")] for i in range(4)]
def flat(x): return sum(x, [])
def x_read(ks):
    return [I(f"ds_read_b128 {ar(4*ks,4)}, v{VXR+ks%4} offset:{((ks//4)%4)*4096}", tag=f"xr{ks}")]
class Addr:
    def __init__(self, base): self.base = base
    def off(self, addr, out, span=2048+1024+6*1024*2):
        if not (0 <= addr - self.base and addr - self.base + 1024 <= 65535):
            nb = addr if addr < self.base else addr
            d = (nb - self.base) & 0xffffffff
            out += [I(f"v_add_u32 v{VA+k}, {d:#x}, v{VA+k}") for k in range(4)]
            self.base = nb
        return addr - self.base
def tr_read(dst, areg, off, e2, tag):
    return [I(f"ds_read_b64_tr_b16 {vr(dst+2*e,2)}, v{areg} offset:{off+e2*e}", tag=tag) for e in range(2)]
def m16(d, b, first): return I(f"v_mfma_f32_16x16x32_bf16 {vr(d,4)}, {vr(SEL,4)}, {b}, {'0' if first else vr(d,4)}")
def stats_mfma(ks):
    x = 4*ks; z = ks == 0
    return [m16(SX, ar(x,4), z),
            I(f"v_mfma_f32_4x4x4_16b_bf16 {vr(Q0,4)}, {ar(x,2)}, {ar(x,2)}, {'0' if z else vr(Q0,4)}"),
            I(f"v_mfma_f32_4x4x4_16b_bf16 {vr(Q1,4)}, {ar(x+2,2)}, {ar(x+2,2)}, {'0' if z else vr(Q1,4)}")]
def wb(ks, ti): return WB + ((ks % (LA+1))*2 + ti)*4
def stl(st, k):
    q = Prog(); st(q, k); return q.l

def gemm_pass(accs, addr_of, base0, nori, tagp, e2, hooks=None, cs_tiles=None, stats=False):
    nt = len(accs)
    am = Addr(base0)
    def rd(ks, dst, regs, tag):
        o = []
        off = am.off(addr_of(ks), o)
        for ti in range(nt): o += tr_read(dst(ti), regs+ti, off, e2, tag)
        return o
    o = []
    for ks in range(LA): o += rd(ks, lambda ti: wb(ks,ti), VA, f"{tagp}{ks}")
    for ks in range(32):
        pre = W(lg=[f"{tagp}{ks}", f"xr{ks}"])
        mf = []
        for ti in range(nt):
            w = vr(wb(ks,ti),4); x = ar(4*ks,4); d = vr(accs[ti],16)
            mf.append(mfma32(d, x, w, "0" if ks == 0 else d) if nori else mfma32(d, w, x, "0" if ks == 0 else d))
        h0, h1, h2 = hooks(ks) if hooks else ([], [], [])
        post = list(h0)
        tail = []
        if ks % 4 == 0 and cs_tiles:
            post += rd(ks, lambda ti: CSF+4*ti, VA+2, f"c{tagp}{ks}")
        if ks+LA < 32: post += rd(ks+LA, lambda ti: wb(ks+LA,ti), VA, f"{tagp}{ks+LA}")
        post += h1
        if ks % 4 == 1 and cs_tiles:
            pre.lg.append(f"c{tagp}{ks-1}")
            for ti in range(nt): tail.append(m16(CSA+4*ti, vr(CSF+4*ti,4), ks == 1))
        if ks == 30 and cs_tiles:
            tail.append(I(f"v_lshl_add_u32 v3, v1, 2, s57"))
            for ti in range(nt): tail.append(I(f"ds_write_b32 v3, v{CSA+4*ti} offset:{cs_tiles[ti]*256}"))
        if stats: tail += stats_mfma(ks)
        tail += h2
        o += [pre] + mf[:1] + post + mf[1:] + tail
    return o

def phase1_hooks(st):
    sched = {}
    def spread(pcs, first, per):
        pcs = list(pcs); k = first
        while pcs:
            for _ in range(per):
                if pcs: sched.setdefault(k, []).append(pcs.pop(0))
            k += 1
    spread(dma_E(2) + dma_E(3), 0, 1)
    spread(x_dma(2) + dma_Z(0), 8-LA, VAR['per'])
    spread(x_dma(3) + dma_Z(1) + dma_Z(2), 16-LA, VAR['per'])
    spread(dma_Z(3), 24-LA, VAR['per'])
    def hooks(ks):
        e, r8 = divmod(ks, 8)
        h0 = []; h1 = []
        if r8 == 8-LA and e < 3:
            h0 = [W(vm=[f"X{e+1}", f"E{e+1}"], lg0=True), I("s_barrier")] + stl(st, 2+e)
        if r8 >= 8-LA and e < 3:
            k0 = 8*(e+1) + 2*(r8-(8-LA)); h1 += x_read(k0) + x_read(k0+1)
        if r8 < 4: h1 += x_read(8*e+4+r8)
        return h0, h1, flat(sched.get(ks, []))
    return hooks

def set_va(p, pair, base, mstride):
    sh = 7 if pair else 6
    p(f"""
    v_lshrrev_b32 v2, 5, v1
    v_lshlrev_b32 v{VA}, {sh+3}, v2
    v_bfe_u32 v3, v1, 2, 2
    v_lshl_add_u32 v{VA}, v3, {sh}, v{VA}
    v_bfe_u32 v3, v1, 4, 1
    v_lshl_add_u32 v{VA}, v3, 5, v{VA}
    v_and_b32 v3, 1, v1
    v_lshl_add_u32 v{VA}, v3, 4, v{VA}
    v_bfe_u32 v3, v1, 1, 1
    v_lshl_add_u32 v{VA}, v3, 3, v{VA}
    """)
    if pair: p(f"v_bfe_u32 v3, v1, 3, 1\nv_lshl_add_u32 v{VA}, v3, 6, v{VA}")
    p(f"""
    v_add_u32 v{VA}, {base}, v{VA}
    s_mul_i32 s34, s29, {mstride}
    v_xor_b32 v{VA+1}, 64, v{VA}
    v_add_u32 v{VA+2}, s34, v{VA}
    v_add_u32 v{VA+3}, s34, v{VA+1}
    """)

def corr_from(b, d, nori):
    o = [I(f"v_sub_f32 v{b}, 0, v{b}"),
         I(f"v_cvt_pk_bf16_f32 v{WC+1}, v{b}, 0"),
         I(f"v_lshlrev_b32 v{b+1}, 16, v{WC+1}"),
         I(f"v_sub_f32 v{b+1}, v{b}, v{b+1}"),
         I(f"v_cvt_pk_bf16_f32 v{WC}, v{b}, v{b+1}")]
    a_, b_ = (vr(XC,4), vr(WC,4)) if nori else (vr(WC,4), vr(XC,4))
    o.append(mfma32(vr(d,16), a_, b_, vr(d,16)))
    return o
def cs_reads(tiles, tag):
    o = [I(f"v_lshlrev_b32 v2, 2, v1")]
    for k, tl in enumerate(tiles):
        for w in range(4): o.append(I(f"ds_read_b32 v{T+4*k+w}, v2 offset:{w*16384 + tl*256}", tag=tag))
    return o
def cs_corr(accs, nori, tag):
    o = [I(f"v_mov_b32 v{WC+2}, 0"), I(f"v_mov_b32 v{WC+3}, 0"), W(lg=tag)]
    for k, d in enumerate(accs):
        b = T+4*k
        o += [I(f"v_add_f32 v{b}, v{b}, v{b+1}"), I(f"v_add_f32 v{b+2}, v{b+2}, v{b+3}"), I(f"v_add_f32 v{b}, v{b}, v{b+2}")]
        o += corr_from(b, d, nori)
    return o

def ln1_final(g, S, Q):
    o = Prog()
    o(f"""
    v_mul_f32 v{S}, {fh(1/512)}, v{S}
    v_cndmask_b32 v{S+1}, v{S}, 0, s[74:75]
    v_mul_f32 v{S+2}, v{S}, v{S}
    v_cvt_pk_bf16_f32 v{XC}, v{S+1}, v{S+1}
    v_fma_f32 v{Q}, v{Q}, s76, -v{S+2}
    v_and_b32 v{S+3}, 0xffff0000, v{XC}
    v_max_f32 v{Q}, 0, v{Q}
    v_sub_f32 v{S+3}, v{S+1}, v{S+3}
    v_add_f32 v{Q}, {fh(1e-5)}, v{Q}
    v_cvt_pk_bf16_f32 v{XC+1}, v{S+3}, 0
    v_rsq_f32 v{R1}, v{Q}
    v_mov_b32 v{XC+2}, 0
    v_mov_b32 v{XC+3}, 0
    """)
    rr = RR if g == 0 else A1
    tb = 4096 + 512*g
    o(f"""
    v_lshl_add_u32 v3, v{VB}, 2, s57
    ds_write_b32 v3, v{R1} offset:{tb}
    v_lshrrev_b32 v3, 5, v1
    v_lshl_add_u32 v3, v3, 5, s57
    s_waitcnt lgkmcnt(0)
    """)
    for k in range(4): o(f"ds_read_b128 {vr(rr+4*k,4)}, v3 offset:{tb + (k//2)*64 + (k%2)*16}", tag="rr")
    if g == 0:
        o(f"v_mov_b32 v{C0R}, {fh(C0)}")
    else:
        o(f"""
        v_sqrt_f32 v{RI}, v{Q}
        v_mul_f32 v{C0R}, {fh(C0)}, v{R1}
        v_mul_f32 v{C1R}, v{R1}, v{R1}
        v_mul_f32 v{C1R}, v{C1R}, v{C0R}
        v_mul_f32 v{C1R}, {fh(0.044715)}, v{C1R}
        """)
    return o.l

def gelu_T(a, P0):
    o = []
    for g in range(0, 16, 4):
        rs = range(g, g+4); tt = lambda r: T + (r % 4)
        o += [I(f"v_mul_f32 v{tt(r)}, v{a+r}, v{a+r}") for r in rs]
        o += [I(f"v_fma_f32 v{tt(r)}, v{tt(r)}, v{C1R}, v{C0R}") for r in rs]
        o += [I(f"v_mul_f32 v{tt(r)}, v{tt(r)}, v{a+r}") for r in rs]
        o += [I(f"v_exp_f32 v{tt(r)}, v{tt(r)}") for r in rs]
        o += [I(f"v_fma_f32 v{tt(r)}, v{tt(r)}, v{RI}, v{RI}") for r in rs]
        o += [I(f"v_rcp_f32 v{tt(r)}, v{tt(r)}") for r in rs]
        o += [I(f"v_mul_f32 v{a+r}, v{a+r}, v{tt(r)}") for r in rs]
        o += [I(f"v_cvt_pk_bf16_f32 v{P0+r//2}, v{a+r}, v{a+r+1}") for r in (g, g+2)]
    return o
def gelu_N(a):
    o = []
    for g in range(0, 16, 4):
        rs = range(g, g+4); tt = lambda r: T + (r % 4)
        o += [I(f"v_mul_f32 v{a+r}, v{a+r}, v{RR+r}") for r in rs]
        o += [I(f"v_mul_f32 v{tt(r)}, v{a+r}, v{a+r}") for r in rs]
        o += [I(f"v_fma_f32 v{tt(r)}, v{tt(r)}, s77, v{C0R}") for r in rs]
        o += [I(f"v_mul_f32 v{tt(r)}, v{tt(r)}, v{a+r}") for r in rs]
        o += [I(f"v_exp_f32 v{tt(r)}, v{tt(r)}") for r in rs]
        o += [I(f"v_add_f32 v{tt(r)}, 1.0, v{tt(r)}") for r in rs]
        o += [I(f"v_rcp_f32 v{tt(r)}, v{tt(r)}") for r in rs]
        o += [I(f"v_mul_f32 v{a+r}, v{a+r}, v{tt(r)}") for r in rs]
    return o

def z2_stats():
    o = []
    a0, a1 = A0, A1
    for hf in range(2):
        S1 = lambda r: T + 4 + r
        S2 = lambda r: T + 12 + r
        for r in range(8):
            R = hf*8 + r
            o.append(I(f"v_mul_f32 v{S2(r)}, v{a0+R}, v{a0+R}"))
            o.append(I(f"v_add_f32 v{S1(r)}, v{a0+R}, v{a1+R}"))
        for r in range(8): o.append(I(f"v_fmac_f32 v{S2(r)}, v{a1+hf*8+r}, v{a1+hf*8+r}"))
        for S in (S1, S2):
            for r in range(4): o.append(I(f"v_permlane16_swap_b32 v{S(r)}, v{S(r+4)}"))
        for S in (S1, S2):
            for r in range(4): o.append(I(f"v_add_f32 v{S(r)}, v{S(r)}, v{S(r+4)}"))
        for S in (S1, S2):
            for r in range(2): o.append(I(f"v_add_f32_dpp v{S(r+4)}, v{S(r)}, v{S(r)} row_ror:8 row_mask:0xf bank_mask:0x3"))
        for S in (S1, S2):
            for r in range(2): o.append(I(f"v_add_f32_dpp v{S(r+4)}, v{S(r+2)}, v{S(r+2)} row_ror:8 row_mask:0xf bank_mask:0xc"))
        for S in (S1, S2): o.append(I(f"v_add_f32_dpp v{S(0)}, v{S(4)}, v{S(4)} row_half_mirror row_mask:0xf bank_mask:0x5"))
        for S in (S1, S2): o.append(I(f"v_add_f32_dpp v{S(0)}, v{S(5)}, v{S(5)} row_half_mirror row_mask:0xf bank_mask:0xa"))
        for S in (S1, S2): o.append(I(f"v_add_f32_dpp v{S(0)}, v{S(0)}, v{S(0)} quad_perm:[1,0,3,2] row_mask:0xf bank_mask:0xf"))
        for k, S in enumerate((S1, S2)): o.append(I(f"v_add_f32_dpp v{STQ+2*hf+k}, v{S(0)}, v{S(0)} quad_perm:[2,3,0,1] row_mask:0xf bank_mask:0xf"))
    return o

def prio(p, n):
    if VAR['prio']: p(f"s_setprio {n}")

def gen_k1(stamp=False):
    p = Prog()
    st = Stamper(stamp, 28, 0)
    entry_stamp(p, stamp)
    p(f"""
    s_cmp_ge_u32 s2, 256
    s_cbranch_scc1 L_end
    s_load_dwordx4 s[4:7], s[0:1], {KA_X}
    s_load_dwordx2 s[8:9], s[0:1], {KA_WIN}
    s_load_dwordx2 s[50:51], s[0:1], {KA_WS}
    v_and_b32 v1, 63, v0
    v_lshrrev_b32 v2, 6, v0
    v_readfirstlane_b32 s28, v2                 ; wave 0..7
    s_and_b32 s29, s2, 7
    s_lshr_b32 s30, s2, 3
    s_and_b32 s31, s29, 1
    s_lshl_b32 s31, s31, 3
    s_and_b32 s32, s30, 7
    s_add_u32 s31, s31, s32                     ; rb
    s_lshr_b32 s32, s29, 1
    s_lshl_b32 s32, s32, 2
    s_lshr_b32 s33, s30, 3
    s_add_u32 s32, s32, s33                     ; cg
    v_lshrrev_b32 v2, 3, v1
    v_lshrrev_b32 v3, 4, v1
    v_xor_b32 v{VXD}, v3, v1
    v_and_b32 v{VXD}, 7, v{VXD}
    v_lshlrev_b32 v{VXD}, 4, v{VXD}
    v_lshl_add_u32 v{VXD}, v2, 10, v{VXD}
    v_and_b32 v3, 1, v3
    v_lshlrev_b32 v3, 2, v3
    v_xor_b32 v3, v3, v1
    v_and_b32 v3, 7, v3
    v_lshlrev_b32 v{VB}, 4, v3
    v_mul_u32_u24 v{VPI}, 3584, v2
    v_add_u32 v{VPI}, v{VPI}, v{VB}
    v_lshrrev_b32 v2, 2, v1
    v_and_b32 v3, 3, v1
    v_lshlrev_b32 v3, 4, v3
    v_mul_u32_u24 v{VQ}, 3072, v2
    v_add_u32 v{VQ}, v{VQ}, v3
    s_and_b32 s29, s28, 3                       ; m tile
    s_lshr_b32 s30, s28, 2                      ; group
    s_lshl_b32 s33, s31, 2
    s_add_u32 s33, s33, s29                     ; tt
    s_lshl_b32 s56, s33, 15
    s_lshl_b32 s34, s30, 7
    s_add_u32 s56, s56, s34
    s_lshl_b32 s57, s29, 14
    s_lshl_b32 s34, s30, 12
    s_add_u32 s59, s57, s34
    s_mul_i32 s58, s28, 3072
    s_lshl_b32 s55, s28, 11
    s_lshl_b32 s54, s30, 14
    s_lshl_b32 s34, s29, 11
    s_add_u32 s54, s54, s34
    v_xor_b32 v{VXD+1}, 64, v{VXD}
    v_add_u32 v{VXD+2}, 16384, v{VXD}
    v_add_u32 v{VXD+1}, 8192, v{VXD+1}
    v_add_u32 v{VXD+3}, 16384, v{VXD+1}
    s_mul_i32 s80, s28, {16*3584}
    s_lshl_b32 s35, s32, 7
    s_add_u32 s80, s80, s35
    s_mul_i32 s81, s28, {16*3072}
    s_lshl_b32 s35, s32, 6
    s_and_b32 s34, s32, 1
    s_mul_i32 s34, s34, {1024-64}
    s_add_u32 s82, s81, s34
    s_add_u32 s81, s81, s35
    s_add_u32 s82, s82, s35
    {"s_add_u32 s35, s31, s32" if VAR['rot'] else "s_mov_b32 s35, 0"}
    """)
    for e in range(4):
        p(f"s_add_u32 s34, s35, {e}\ns_and_b32 s34, s34, 3\ns_lshl_b32 s{SXE+e}, s34, 8\ns_mul_i32 s{SIE+e}, s34, {128*3584}\ns_mul_i32 s{SQE+e}, s34, {128*3072}")
    p(f"""
    s_cmp_lt_u32 s32, 14
    s_cselect_b32 s18, {512*3584}, 0
    s_cselect_b32 s42, {WS_USED}, 0
    s_mov_b32 s19, 0x20000
    s_mov_b32 s43, 0x20000
    s_waitcnt lgkmcnt(0)
    s_mov_b32 s16, s8
    s_mov_b32 s17, s9
    """)
    srd(p, 24, 4, 2048*1024); srd(p, 20, 6, 512*3072)
    p.add(flat(x_dma(0))); p.add(flat(dma_E(0)))
    srd(p, 12, 50, WS_USED)
    p("s_mov_b32 s40, s50\ns_mov_b32 s41, s51")
    st(p, 0); entry_store(p, st)
    p(f"v_and_b32 v{VB}, 31, v1")
    bitswap23(p, VB, VB, 3)
    p(f"""
    v_lshrrev_b32 v3, 1, v{VB}
    v_lshrrev_b32 v2, 5, v1
    v_xor_b32 v3, v3, v2
    v_and_b32 v3, 7, v3
    v_lshlrev_b32 v3, 4, v3
    v_lshl_add_u32 v{VXR}, v{VB}, 7, v3
    v_add_u32 v{VXR}, s57, v{VXR}
    v_xor_b32 v{VXR+1}, 32, v{VXR}
    v_xor_b32 v{VXR+2}, 64, v{VXR}
    v_xor_b32 v{VXR+3}, 96, v{VXR}
    """)
    if VAR.get('b00', False): p("s_barrier")
    p.add(flat(x_dma(1))); p.add(flat(dma_E(1)))
    if VAR.get('cpf'): code_prefetch(p, 28, 3, "a127", 36, "L_cpf")
    p(f"s_lshl_b32 s34, s2, 7\ns_add_u32 s34, s34, {OFL}\ns_lshl_b32 s35, s28, 8\ns_add_u32 s35, s35, s2\ns_cmp_lt_u32 s35, 72\ns_cselect_b32 s34, s34, 0x7fffff00")
    p(f"v_and_b32 v3, 31, v1\nv_lshlrev_b32 v3, 2, v3\nv_mov_b32 v2, 0\nbuffer_store_dword v2, v3, s[12:15], s34 offen")
    p(f"s_lshl_b32 s79, s31, 7\ns_add_u32 s79, s79, {FLG}")
    p(f"buffer_load_dword v0, off, s[12:15], s79 sc1", tag="old")
    p(f"""
    v_lshlrev_b32 v{VL}, 4, v1
    v_and_b32 v3, 3, v1
    v_cmp_eq_u32 vcc, 0, v3
    v_lshrrev_b32 v3, 2, v1
    v_lshrrev_b32 v2, 4, v1
    v_xor_b32 v3, v3, v2
    v_and_b32 v3, 1, v3
    v_cmp_eq_u32 s[34:35], 0, v3
    s_and_b64 vcc, vcc, s[34:35]
    v_mov_b32 v3, 0x3f803f80
    v_cndmask_b32 v{SEL}, 0, v3, vcc
    v_mov_b32 v{SEL+1}, v{SEL}
    v_mov_b32 v{SEL+2}, v{SEL}
    v_mov_b32 v{SEL+3}, v{SEL}
    v_cmp_lt_u32 s[74:75], 31, v1
    s_mov_b32 s76, {fh(1/512)}
    s_cmp_eq_u32 s30, 1
    s_cbranch_scc1 L_g1
    """)
    def start(p):
        if VAR.get('fine'):
            st(p, 10); p.wait(vm="X0"); st(p, 11); p.wait(vm="E0"); st(p, 12)
        p.wait(vm=["X0", "E0"]); p("s_barrier"); st(p, 1)
        for ks in range(4): p.add(x_read(ks))
    def qdma(p):
        p(f"""
        v_lshrrev_b32 v2, 3, v1
        v_mul_u32_u24 v{VQ}, 512, v2
        v_sub_u32 v{VQ}, v{VPI}, v{VQ}
        """)
        for e in range(4): p.add(flat(dma_Q(e)))
    set_va(p, True, RING, 3072)
    p(f"""
    s_mov_b32 s77, {fh(C0*0.044715)}
    s_lshr_b32 s34, s32, 1
    s_lshl_b32 s83, s34, 19
    s_lshl_b32 s35, s33, 13
    s_add_u32 s83, s83, s35
    s_and_b32 s35, s32, 1
    s_lshl_b32 s35, s35, 11
    s_add_u32 s83, s83, s35
    s_add_u32 s83, s83, {Z2F}
    s_add_u32 s84, s83, 4096
    s_lshl_b32 s87, s33, 13
    s_add_u32 s87, s87, {STAT}
    s_lshl_b32 s35, s32, 9
    s_add_u32 s88, s87, s35
    s_lshl_b32 s85, s34, 18
    s_lshl_b32 s35, s33, 10
    s_add_u32 s85, s85, s35
    s_mul_i32 s86, s34, {4*KVH}
    s_mul_i32 s35, s33, {KVT}
    s_add_u32 s86, s86, s35
    s_add_u32 s86, s86, {KV}
    s_bitcmp1_b32 s32, 0
    s_cselect_b32 s85, s86, s85
    s_mov_b32 s86, {KVH}
    s_cselect_b32 s86, s86, 0x10000
    s_mov_b32 s78, {fh(0.25*1.4426950408889634)}
    s_cselect_b32 s78, 1.0, s78                  ; scale
    """)
    prio(p, 1)
    start(p)
    p.add(gemm_pass([A0, A1], E_addr, RING, True, "w", 512, hooks=phase1_hooks(st), cs_tiles=[0, 1]))
    p.wait(vm=["Z0","Z1","Z2","Z3"], lg0=True)
    p("s_barrier")
    st(p, 5)
    prio(p, 0)
    p(f"v_lshl_add_u32 v3, v1, 2, s57")
    p(f"ds_read_b32 v{T+16}, v3 offset:2048", tag="raw"); p(f"ds_read_b32 v{T+20}, v3 offset:2304", tag="raw")
    p.add(cs_reads([0, 1], "cs0"))
    qdma(p)
    p.wait(lg="raw")
    p.add(ln1_final(0, T+16, T+20))
    p.add(cs_corr([A0, A1], True, "cs0"))
    p.wait(lg="rr")
    if VAR.get('lpf', 0): p("s_cmp_ge_u32 s32, 14\ns_cbranch_scc1 L_lpf")
    p.add(gelu_N(A0)); p.add(gelu_N(A1)); p.add(z2_stats())
    p(f"""
    v_and_b32 v3, 1, v1
    v_cmp_eq_u32 vcc, 1, v3
    v_bfe_u32 v2, v1, 2, 1
    v_lshl_add_u32 v2, v3, 4, v2
    v_bfe_u32 v3, v1, 3, 1
    v_lshl_add_u32 v2, v3, 1, v2
    v_bfe_u32 v3, v1, 4, 2
    v_lshl_add_u32 v2, v3, 2, v2                ; row = 16*(l&1) + 8h + 4b4 + 2b3 + b2
    v_lshlrev_b32 v2, 4, v2
    v_add_u32 v0, 1, v0
    v_cndmask_b32 v{STQ}, v{STQ}, v{STQ+2}, vcc
    v_cndmask_b32 v{STQ+2}, v{STQ+1}, v{STQ+3}, vcc
    v_mov_b32 v{STQ+1}, v0
    v_mov_b32 v{STQ+3}, v0
    buffer_store_dwordx4 {vr(STQ,4)}, v2, s[40:43], s88 offen sc1
    """)
    p.label("L_lpf_ret")
    set_va(p, True, RING+65536, 2048)
    st(p, 6)
    p.wait(vm=["Q"], lg0=True)
    p("s_barrier")
    prio(p, 1)
    st(p, 7)
    PS = VAR.get('pstep', 24)
    def part_loads():
        o = [I("v_and_b32 v2, 31, v1"), I("v_lshlrev_b32 v2, 4, v2"), I("v_lshrrev_b32 v3, 5, v1"), I("v_mul_u32_u24 v3, 3584, v3"), I("v_add_u32 v2, v2, v3")]
        for k in range(7):
            o.append(I(f"buffer_load_dwordx4 {ar(4*k,4)}, v2, s[40:43], s87 offen offset:{k*512} sc1", tag="part"))
        return o
    pl = part_loads()
    def qhooks(ks):
        if ks == PS: return [], [], pl[:8]
        if ks == PS+1: return [], [], pl[8:10]
        if ks == PS+2: return [], [], pl[10:]
        return [], [], []
    p.add(gemm_pass([A2, A3_], Q_addr, RING+65536, False, "q", 512, hooks=qhooks, cs_tiles=None if VAR.get('csq', False) else [5, 6]))
    p("s_waitcnt lgkmcnt(0)\ns_barrier")
    st(p, 8)
    p.add(cs_reads([5, 6], "cs3"))
    p.add(cs_corr([A2, A3_], False, "cs3"))
    p(f"v_mul_f32 v{R1}, s78, v{R1}")
    for a in (A2, A3_):
        for r in range(16): p(f"v_mul_f32 v{a+r}, v{a+r}, v{R1}")
        for d in range(8): p(f"v_cvt_pk_bf16_f32 v{a+d}, v{a+2*d}, v{a+2*d+1}")
        p(f"buffer_store_dwordx4 {vr(a,4)}, v{VL}, s[12:15], s85 offen\ns_add_u32 s85, s85, s86")
        p(f"buffer_store_dwordx4 {vr(a+4,4)}, v{VL}, s[12:15], s85 offen\ns_add_u32 s85, s85, s86")
    p("s_cmp_ge_u32 s32, 14\ns_cbranch_scc1 L_end")
    p(f"s_mov_b32 s34, 0\ns_mov_b32 s35, {fh(1/896)}")
    p.wait(vm="part")
    p.label("L_chk")
    b = T+8
    p(f"v_accvgpr_read_b32 v{b}, a0\nv_accvgpr_read_b32 v{b+1}, a2\nv_accvgpr_read_b32 v{b+2}, a1\nv_accvgpr_read_b32 v{b+3}, a3")
    p(f"v_xor_b32 v{b+2}, v{b+2}, v0\nv_xor_b32 v{b+3}, v{b+3}, v0\nv_or_b32 v{b+2}, v{b+2}, v{b+3}")
    for k in range(1, 7):
        for e in range(4): p(f"v_accvgpr_read_b32 v{b+4+e}, a{4*k+e}")
        p(f"v_add_f32 v{b}, v{b}, v{b+4}\nv_add_f32 v{b+1}, v{b+1}, v{b+6}")
        p(f"v_xor_b32 v{b+5}, v{b+5}, v0\nv_xor_b32 v{b+7}, v{b+7}, v0\nv_or3_b32 v{b+2}, v{b+2}, v{b+5}, v{b+7}")
    p(f"v_cmp_ne_u32 vcc, 0, v{b+2}\ns_cbranch_vccnz L_retry")
    p.label("L_chk_ok")
    p(f"""
    v_mov_b32 v{b+2}, v{b}
    v_mov_b32 v{b+3}, v{b+1}
    v_and_b32 v2, 31, v1
    v_permlane32_swap_b32 v{b}, v{b+2}
    v_permlane32_swap_b32 v{b+1}, v{b+3}
    v_lshl_add_u32 v2, v2, 2, s57
    v_add_f32 v{b}, v{b}, v{b+2}
    v_add_f32 v{b+1}, v{b+1}, v{b+3}
    v_mul_f32 v{b}, s35, v{b}
    v_mul_f32 v{b+2}, v{b}, v{b}
    v_fma_f32 v{b+1}, v{b+1}, s35, -v{b+2}
    v_max_f32 v{b+1}, 0, v{b+1}
    v_add_f32 v{b+1}, {fh(1e-5)}, v{b+1}
    v_rsq_f32 v{b+1}, v{b+1}
    v_lshrrev_b32 v3, 5, v1
    v_lshl_add_u32 v3, v3, 5, s57
    v_mul_f32_e64 v{b}, -v{b}, v{b+1}
    ds_write_b32 v2, v{b+1} offset:4096
    ds_write_b32 v2, v{b} offset:4224
    s_or_b32 s34, s32, s28
    s_cmp_eq_u32 s34, 0
    s_cselect_b32 s79, s79, 0x7fffff00
    s_waitcnt lgkmcnt(0)
    """)
    R2 = A2+8; NM = T+8
    R2 = CSF
    for k in range(4): p(f"ds_read_b128 {vr(R2+4*k,4)}, v3 offset:{4096 + (k//2)*64 + (k%2)*16}", tag="r2")
    for k in range(4): p(f"ds_read_b128 {vr(NM+4*k,4)}, v3 offset:{4096 + 128 + (k//2)*64 + (k%2)*16}", tag="r2")
    p.wait(lg="r2")
    for t in range(2):
        a = A0 + 16*t
        for r in range(16): p(f"v_fma_f32 v{a+r}, v{a+r}, v{R2+r}, v{NM+r}")
        for d in range(8): p(f"v_cvt_pk_bf16_f32 v{a+d}, v{a+2*d}, v{a+2*d+1}")
        p(f"buffer_store_dwordx4 {vr(a,4)}, v{VL}, s[12:15], s83 offen offset:{t*1024}")
        p(f"buffer_store_dwordx4 {vr(a+4,4)}, v{VL}, s[12:15], s84 offen offset:{t*1024}")
    p("buffer_store_dword v0, off, s[12:15], s79 sc1")
    st(p, 9)
    p("s_endpgm")
    if VAR.get('lpf', 0):
        p.label("L_lpf")
        p(f"""
        s_load_dwordx2 s[36:37], s[0:1], {KA_WSP}
        s_lshl_b32 s34, s31, 1
        s_add_u32 s34, s34, s32
        s_sub_u32 s34, s34, 14
        s_lshl_b32 s34, s34, 2
        s_add_u32 s34, s34, s29
        s_lshl_b32 s34, s34, 16
        """)
        if VAR.get('lpf', 0) == 1:
            p("v_lshl_add_u32 v3, v1, 7, s34\ns_waitcnt lgkmcnt(0)")
            for k in range(8):
                p(f"global_load_dword v2, v3, s[36:37]")
                if k < 7: p("v_add_u32 v3, 0x2000, v3")
        else:
            p(f"v_add_u32 v3, s34, v{VL}\ns_waitcnt lgkmcnt(0)\ns_mov_b32 s35, 0")
            p.label("L_lpf2")
            for k in range(4): p(f"global_load_dwordx4 {vr(T,4)}, v3, s[36:37] offset:{k*1024}")
            p("v_add_u32 v3, 0x1000, v3\ns_add_u32 s35, s35, 1\ns_waitcnt vmcnt(40)\ns_cmp_lt_u32 s35, 16\ns_cbranch_scc1 L_lpf2")
        p("s_waitcnt vmcnt(0)\ns_branch L_lpf_ret")
    p.label("L_retry")
    p("s_add_u32 s34, s34, 1\ns_cmp_gt_u32 s34, 0x40000\ns_cbranch_scc1 L_chk_ok")
    p.add(part_loads())
    p("s_waitcnt vmcnt(0)\ns_branch L_chk")
    p.label("L_g1")
    set_va(p, False, RING+2048, 3072)
    p(f"""
    s_load_dwordx2 s[36:37], s[0:1], {KA_WSP}
    v_and_b32 v3, 1, v1
    v_cmp_eq_u32 s[70:71], 1, v3
    v_and_b32 v3, 2, v1
    v_cmp_eq_u32 s[72:73], 2, v3
    s_mul_i32 s83, s33, {56*1024}
    s_lshl_b32 s34, s32, 12
    s_add_u32 s83, s83, s34
    s_add_u32 s83, s83, {Z1F}
    s_mul_i32 s85, s32, {2*KVH}
    s_mul_i32 s34, s33, {KVT}
    s_add_u32 s85, s85, s34
    s_add_u32 s85, s85, {KV}
    s_waitcnt lgkmcnt(0)
    """)
    prio(p, 1)
    start(p)
    p.add(gemm_pass([A0], lambda ks: E_addr(ks)+2048, RING+2048, True, "w", 256, hooks=phase1_hooks(st), cs_tiles=[2], stats=True))
    p(f"""
    v_add_f32 v{Q0}, v{Q0}, v{Q1}
    v_add_f32 v{Q0+1}, v{Q0+1}, v{Q1+1}
    v_add_f32 v{Q0+2}, v{Q0+2}, v{Q1+2}
    v_add_f32 v{Q0+3}, v{Q0+3}, v{Q1+3}
    v_cndmask_b32 v{Q0}, v{Q0}, v{Q0+1}, s[70:71]
    v_cndmask_b32 v{Q0+2}, v{Q0+2}, v{Q0+3}, s[70:71]
    ds_write_b32 v3, v{SX} offset:2048
    v_cndmask_b32 v{Q0}, v{Q0}, v{Q0+2}, s[72:73]
    v_mov_b32 v{Q1}, v{Q0}
    v_permlane32_swap_b32 v{Q0}, v{Q1}
    v_add_f32 v{Q0}, v{Q0}, v{Q1}
    ds_write_b32 v3, v{Q0} offset:2304
    """)
    p.wait(vm=["Z0","Z1","Z2","Z3"], lg0=True)
    p("s_barrier")
    st(p, 5)
    p.add(cs_reads([2], "cs1"))
    p.add(ln1_final(1, SX, Q0))
    p.add(cs_corr([A0], True, "cs1"))
    set_va(p, True, RING, 2048)
    qd = Prog(); qdma(qd)
    zp = gemm_pass([A2, A3_], Z_addr, RING, False, "z", 512, cs_tiles=[3, 4])
    e = Prog()
    e(f"""
    s_mov_b32 s77, {KVH}
    v_bfe_u32 v3, v1, 4, 1
    v_mul_lo_u32 v{VB}, v3, s77
    v_and_b32 v3, 15, v1
    v_lshl_add_u32 v{VB}, v3, 4, v{VB}
    v_lshrrev_b32 v3, 5, v1
    v_lshl_add_u32 v{VB}, v3, 8, v{VB}
    """)
    e.wait(lg="rr")
    for r in range(16): e(f"v_mul_f32 v{A0+r}, v{A0+r}, v{A1+r}")
    for d in range(8): e(f"v_cvt_pk_bf16_f32 v{A0+d}, v{A0+2*d}, v{A0+2*d+1}")
    e(f"buffer_store_dwordx4 {vr(A0,4)}, v{VB}, s[12:15], s85 offen offset:1024")
    e(f"buffer_store_dwordx4 {vr(A0+4,4)}, v{VB}, s[12:15], s85 offen offset:1536")
    for r in range(4): e(f"v_mov_b32 v{A1+r}, 0x3f803f80\nv_mov_b32 v{A1+4+r}, 0")
    if VAR.get('wpf', 0):
        e(f"""
        s_and_b32 s34, s2, 7
        s_lshl_b32 s34, s34, 20
        s_lshr_b32 s35, s2, 3
        s_lshl_b32 s35, s35, 2
        s_add_u32 s35, s35, s29
        s_lshl_b32 s35, s35, 13
        s_add_u32 s34, s34, s35
        """)
        if VAR.get('wpf', 0) == 1:
            e("v_lshl_add_u32 v3, v1, 7, s34\nglobal_load_dword a0, v3, s[36:37]")
        else:
            e(f"v_add_u32 v3, s34, v{VL}")
            for k in range(8):
                if k == 4: e("v_add_u32 v3, 0x1000, v3")
                e(f"global_load_dwordx4 a[0:3], v3, s[36:37] offset:{(k%4)*1024}")
    p.add(interleave(zp, qd.l + e.l, per_gap=2, start=1))
    p(f"s_mov_b64 exec, 0x10001\nbuffer_store_dwordx4 {vr(A1,4)}, v{VB}, s[12:15], s85 offen offset:2048\nbuffer_store_dwordx4 {vr(A1+4,4)}, v{VB}, s[12:15], s85 offen offset:2064\ns_mov_b64 exec, -1")
    st(p, 6)
    p.wait(vm=["Q"], lg0=True)
    p("s_barrier")
    prio(p, 0)
    st(p, 7)
    if VAR.get('csq', False):
        set_va(p, True, RING+65536, 2048)
        am = Addr(RING+65536)
        def rdq(j):
            o = []; off = am.off(Q_addr(4*j), o)
            for ti in range(2): o += tr_read(WB+((j%3)*2+ti)*4, VA+2+ti, off, 512, f"cq{j}")
            return o
        p.add(rdq(0)); p.add(rdq(1))
        for j in range(8):
            if j+2 < 8: p.add(rdq(j+2))
            p.wait(lg=f"cq{j}")
            for ti in range(2): p.add([m16(CSA+4*ti, vr(WB+((j%3)*2+ti)*4,4), j == 0)])
        p(f"v_lshl_add_u32 v3, v1, 2, s57")
        for ti in range(2): p(f"ds_write_b32 v3, v{CSA+4*ti} offset:{(5+ti)*256}")
        p("s_waitcnt lgkmcnt(0)")
    p("s_cmp_ge_u32 s32, 14\ns_cbranch_scc1 L_g1_end")
    p.add(cs_reads([3, 4], "cs2"))
    p.add(cs_corr([A2, A3_], False, "cs2"))
    st(p, 8)
    for k, a in enumerate((A2, A3_)):
        p.add(gelu_T(a, T+4+8*k))
        p(f"buffer_store_dwordx4 {vr(T+4+8*k,4)}, v{VL}, s[40:43], s83 offen offset:{k*2048}")
        p(f"buffer_store_dwordx4 {vr(T+8+8*k,4)}, v{VL}, s[40:43], s83 offen offset:{k*2048+1024}")
    st(p, 9)
    p.label("L_g1_end")
    if VAR.get('epf', 0):
        p(f"""
        s_and_b32 s34, s2, 7
        s_lshl_b32 s34, s34, 20
        s_lshr_b32 s35, s2, 3
        s_lshl_b32 s35, s35, 2
        s_add_u32 s35, s35, s29
        s_lshl_b32 s35, s35, 13
        s_add_u32 s34, s34, s35
        """)
        if VAR.get('epf', 0) == 1:
            p("v_lshl_add_u32 v3, v1, 7, s34\nglobal_load_dword v2, v3, s[36:37]")
        else:
            p(f"v_add_u32 v3, s34, v{VL}")
            for k in range(8):
                if k == 4: p("v_add_u32 v3, 0x1000, v3")
                p(f"global_load_dwordx4 a[0:3], v3, s[36:37] offset:{(k%4)*1024}")
        p("s_barrier")
    p.label("L_end")
    p("s_endpgm")
    return p

def split_groups(l):
    lab = {x.op: i for i, x in enumerate(l) if getattr(x, 'kind', '') == "label"}
    b = next(i for i, x in enumerate(l) if getattr(x, 'kind', '') == "branch" and x.target == "L_g1")
    return b, lab["L_g1"]
def k1_paths(l):
    b, g1 = split_groups(l)
    return [l[:g1], l[:b] + l[g1:]]
def finalize_k1(p, verbose=False):
    l = p.l
    b, g1 = split_groups(l)
    head = l[:b+1]
    r0 = resolve_waits(l[:g1])
    r1 = resolve_waits(head + l[g1:])
    nh = len(resolve_waits(head))
    p2 = Prog(); p2.l = r0 + r1[nh:]
    return finalize("k1", p2, paths=k1_paths, verbose=verbose)
K1_DESC = dict(name="k1_kernel", vgpr=256, sgpr=102, accum=128, grid=256, block=512, lds=K1_LDS)
if __name__ == "__main__":
    import sys
    from build import build
    vars_ = eval(sys.argv[2]) if len(sys.argv) > 2 else {"k1": {}}
    base = dict(VAR)
    for nm, kw in vars_.items():
        VAR.clear(); VAR.update(base); VAR.update(kw)
        p = gen_k1(stamp=len(sys.argv)>1)
        l, errs = finalize_k1(p, verbose=len(sys.argv) < 2)
        build([dict(K1_DESC, l=l)], f"out_{nm}.s")
```

```python
from common import *
SOLO = True
import struct
def float_hex(f): return hex(struct.unpack("<I", struct.pack("<f", f))[0])

LDS_FLAG = 130048
LDS_STG = 131072
K2_LDS = 163840
VAR = dict(margin=100.0, U=8, prio_att=1, prio_g=0, fuse3=True, cdelay=2)

QA, QB = 4, 8
CA, CB = 16, 32
OA, OB = 48, 64
SA, SB = 80, 96
PA, PB = 112, 120
KR = [128, 132, 136, 140]
V0R = [144, 148, 152, 156]
V1R = [160, 164, 168, 172]
AK, AV0, AV1 = 176, 177, 178
GK, GV0, GV1 = 179, 180, 181
MA, MB = 182, 183
TM = 184
FL = 188
PF, PFA = 190, 191
STT = 192

def max16(p, S, M, first):
    if first:
        p(f"v_max3_f32 v{M}, v{S}, v{S+1}, v{S+2}")
        p(f"v_max_f32 v{M}, v{M}, v{S+3}")
        r = range(4, 16, 2)
    else: r = range(0, 16, 2)
    for k in r: p(f"v_max3_f32 v{M}, v{M}, v{S+k}, v{S+k+1}")

def flag_wait(p, name, addr_v, off, val, tmpq, sleep=1):
    p.label(name)
    p(f"ds_read_b128 {vr(tmpq,4)}, v{addr_v} offset:{off}")
    p("s_waitcnt lgkmcnt(0)")
    p(f"v_min_u32 v{tmpq}, v{tmpq}, v{tmpq+1}\nv_min3_u32 v{tmpq}, v{tmpq}, v{tmpq+2}, v{tmpq+3}")
    p(f"v_cmp_gt_u32 vcc, {val}, v{tmpq}")
    p(f"s_cbranch_vccz {name}_ok\ns_sleep {sleep}\ns_branch {name}")
    p.label(name + "_ok")

def spin1(p, name, addr_v, off, val, tmp):
    p.label(name)
    p(f"ds_read_b32 v{tmp}, v{addr_v} offset:{off}")
    p("s_waitcnt lgkmcnt(0)")
    p(f"v_cmp_gt_u32 vcc, {val}, v{tmp}")
    p(f"s_cbranch_vccz {name}_ok\ns_sleep 1\ns_branch {name}")
    p.label(name + "_ok")

def att_loop_body(U):
    out = []
    def blk(S, P, So, Po, Mqk, Mpv1, Mpv0, extra):
        e = lambda k: I(f"v_exp_f32 v{S+k}, v{S+k}")
        c = lambda k: I(f"v_cvt_pk_bf16_f32 v{P+k}, v{S+2*k}, v{S+2*k+1}")
        co = lambda k: I(f"v_cvt_pk_bf16_f32 v{Po+k}, v{So+2*k}, v{So+2*k+1}")
        o = []
        pq, p1, p0 = VAR.get('pos', (2, 6, 12))
        cs = VAR.get('cs', {0: [-6], 1: [-7], 3: [0], 5: [1], 7: [2], 9: [3], 11: [4], 13: [5]})
        if VAR.get('perm'):
            c = lambda k: I(f"v_perm_b32 v{P+k}, v{S+2*k+1}, v{S+2*k}, s45")
            co = lambda k: I(f"v_perm_b32 v{Po+k}, v{So+2*k+1}, v{So+2*k}, s45")
        for k in range(16):
            o.append(e(k))
            for j in cs.get(k, []):
                if j < 0: o.append(co(-j))
            if k == pq and not VAR.get('nom'): o.append(Mqk)
            if k == p1 and not VAR.get('nom'): o.append(Mpv1)
            if k == p0 and not VAR.get('nom'): o.append(Mpv0)
            o += extra.get(k, [])
            for j in cs.get(k, []):
                if j >= 0: o.append(c(j))
        return o
    for u in range(U):
        s0 = u % 4; s1 = (u+1) % 4; sm = (u-1) % 4
        exA = {}; exB = {}
        if u % 2 == 0:
            rd = []
            for d in (2, 3):
                o_ = (u+d-1)*KVT
                rd += [I(f"ds_read_b128 {vr(KR[(u+d)%4],4)}, v{AK} offset:{o_}"),
                       I(f"ds_read_b128 {vr(V0R[(u+d)%4],4)}, v{AV0} offset:{o_}"),
                       I(f"ds_read_b128 {vr(V1R[(u+d)%4],4)}, v{AV1} offset:{o_}")]
            exA = {6: rd}
            if VAR.get('nods'): exA = {}
        if u == U-1:
            exB = {2: [I("s_add_u32 s41, s41, 1")], 3: [I(f"s_cmp_lt_u32 s41, 3")], 4: [I("s_cbranch_scc1 L_att_sync2"), I("L_att_sync2_ret:")],
                   6: [I(f"v_add_u32 v{AK}, {U*KVT}, v{AK}")], 8: [I(f"v_add_u32 v{AV0}, {U*KVT}, v{AV0}")], 10: [I(f"v_add_u32 v{AV1}, {U*KVT}, v{AV1}")],
                   14: [I(f"s_cmp_lt_u32 s41, {64//U}")]}
        if u % 2 == 1: exB[0] = [I("s_waitcnt lgkmcnt(0)")]
        out += blk(SA, PA, SB, PB, mfma32(vr(SB,16), vr(KR[s0],4), vr(QB,4), vr(CB,16)),
                   mfma32(vr(OB,16), vr(V1R[sm],4), vr(PB+4,4), vr(OB,16)),
                   mfma32(vr(OA,16), vr(V0R[s0],4), vr(PA,4), vr(OA,16)), exA)
        out += blk(SB, PB, SA, PA, mfma32(vr(SA,16), vr(KR[s1],4), vr(QA,4), vr(CA,16)),
                   mfma32(vr(OA,16), vr(V1R[s0],4), vr(PA+4,4), vr(OA,16)),
                   mfma32(vr(OB,16), vr(V0R[s0],4), vr(PB,4), vr(OB,16)), exB)
    return out

def gen_attention(p, st):
    U = VAR['U']
    p(f"s_setprio {VAR['prio_att']}")
    p(f"""
    s_mul_i32 s30, s27, {KVH}
    s_add_u32 s30, s30, {KV}
    s_lshl_b32 s31, s27, 16
    s_lshl_b32 s32, s28, 3
    s_lshl_b32 s33, s24, 1
    s_add_u32 s32, s32, s33
    s_lshl_b32 s33, s32, 10
    s_add_u32 s31, s31, s33
    v_lshlrev_b32 v{GK}, 4, v1
    """)
    p(f"buffer_load_dwordx4 {vr(QA,4)}, v{GK}, s[12:15], s31 offen")
    p(f"buffer_load_dwordx4 {vr(QB,4)}, v{GK}, s[12:15], s31 offen offset:1024")
    p(f"buffer_load_dwordx4 {vr(KR[0],4)}, v{GK}, s[12:15], s30 offen")
    p(f"buffer_load_dwordx4 {vr(KR[1],4)}, v{GK}, s[12:15], s30 offen offset:{KVT}")
    p(f"""
    v_and_b32 v{TM}, 31, v1
    v_lshrrev_b32 v{TM+1}, 5, v1
    v_lshlrev_b32 v{TM+1}, 8, v{TM+1}
    v_lshl_add_u32 v{TM+1}, v{TM}, 4, v{TM+1}
    v_and_b32 v{TM+2}, 27, v{TM}
    v_cmp_eq_u32 vcc, 16, v{TM+2}
    v_mov_b32 v{TM+2}, 2064
    v_mov_b32 v{TM+3}, 2048
    v_cndmask_b32 v{TM+2}, v{TM+2}, v{TM+3}, vcc
    v_cmp_gt_u32 vcc, 16, v{TM}
    v_add_u32 v{GV0}, 1024, v{TM+1}
    v_add_u32 v{GV1}, 1536, v{TM+1}
    v_cndmask_b32 v{GV0}, v{TM+2}, v{GV0}, vcc
    v_cndmask_b32 v{GV1}, v{TM+2}, v{GV1}, vcc
    """)
    for t in range(2):
        p(f"buffer_load_dwordx4 {vr(V0R[t],4)}, v{GV0}, s[12:15], s30 offen offset:{t*KVT}")
        p(f"buffer_load_dwordx4 {vr(V1R[t],4)}, v{GV1}, s[12:15], s30 offen offset:{t*KVT}")
    p(f"""
    s_lshl_b32 s37, s24, 12
    s_add_u32 s38, s30, {KVT+1024}
    s_add_u32 s38, s38, s37
    """)
    for i in range(2):
        p("s_mov_b32 m0, s37")
        p("s_add_u32 s37, s37, 16384")
        for k in range(4):
            p(f"buffer_load_dwordx4 v{GK}, s[12:15], s38 offen offset:{k*1024} lds")
        p("s_add_u32 s38, s38, 16384")
    p("s_barrier")
    if VAR['fuse3']:
        p(f"""
        s_mul_i32 s33, s32, {88*1024}
        s_lshl_b32 s34, s27, 10
        s_add_u32 s33, s33, s34
        s_add_u32 s33, s33, {A3}
        s_add_u32 s39, s33, {88*1024}
        s_lshl_b32 s35, s32, 6
        s_lshl_b32 s34, s27, 2
        s_add_u32 s35, s35, s34
        s_add_u32 s35, s35, {OFL}
        s_mul_i32 s42, s26, 9363
        s_lshr_b32 s42, s42, 16                ; j/7
        s_mul_i32 s43, s42, 7
        s_sub_u32 s43, s26, s43                ; fb
        s_lshl_b32 s44, s25, 2
        s_add_u32 s42, s42, s44
        s_lshl_b32 s43, s43, 2
        s_add_u32 s43, s43, s24                ; ft
        s_mul_i32 s46, s42, {2*88*1024}
        s_lshl_b32 s44, s43, 11
        s_add_u32 s46, s46, s44
        s_add_u32 s46, s46, {A3 + 32*1024}
        s_lshl_b32 s42, s42, 7
        s_lshl_b32 s43, s43, 2
        s_add_u32 s42, s42, s43
        s_add_u32 s42, s42, {UFL}
        s_cmp_lt_u32 s26, 28
        s_cselect_b32 s46, s46, 0x7ff00000
        s_cselect_b32 s42, s42, 0x7ff00000
        s_add_u32 s47, s46, {88*1024}
        """)
    p(f"""
    v_mov_b32 v{FL}, {LDS_FLAG}
    s_lshl_b32 s37, s24, 2
    v_add_u32 v{FL+1}, s37, v{FL}
    v_subrev_u32 v{AK}, 1024, v{GK}
    v_subrev_u32 v{AV0}, 1024, v{GV0}
    v_subrev_u32 v{AV1}, 1024, v{GV1}
    """)
    for r in list(range(OA, OA+32)) + list(range(PB+4, PB+6)) + list(range(V1R[3], V1R[3]+4)):
        p(f"v_mov_b32 v{r}, 0")
    p(f"s_waitcnt vmcnt(12)")
    p.add([mfma32(vr(SA,16), vr(KR[0],4), vr(QA,4), "0"), mfma32(vr(SB,16), vr(KR[0],4), vr(QB,4), "0"),
           mfma32(vr(CA,16), vr(KR[1],4), vr(QA,4), "0"), mfma32(vr(CB,16), vr(KR[1],4), vr(QB,4), "0")])
    max16(p, SA, MA, True); max16(p, SB, MB, True); max16(p, CA, MA, False); max16(p, CB, MB, False)
    p(f"""
    s_mov_b32 s40, {float_hex(VAR['margin'])}
    v_mov_b32 v{TM}, v{MA}
    v_mov_b32 v{TM+1}, v{MB}
    v_permlane32_swap_b32 v{TM}, v{MA}
    v_permlane32_swap_b32 v{TM+1}, v{MB}
    v_max_f32 v{MA}, v{MA}, v{TM}
    v_max_f32 v{MB}, v{MB}, v{TM+1}
    v_add_f32 v{MA}, s40, v{MA}
    v_add_f32 v{MB}, s40, v{MB}
    """)
    for r in range(16): p(f"v_sub_f32 v{CA+r}, 0, v{MA}")
    for r in range(12, 16): p(f"v_mov_b32 v{SB+r}, 0")
    p.add([mfma32(vr(SA,16), vr(KR[0],4), vr(QA,4), vr(CA,16))])
    for r in range(16): p(f"v_sub_f32 v{CB+r}, 0, v{MB}")
    p(f"s_waitcnt vmcnt(0)")
    p(f"v_mov_b32 v{TM}, 1\nds_write_b32 v{FL+1}, v{TM}")
    flag_wait(p, "L_att_f1", FL, 0, 1, TM)
    if VAR.get('wpf', 0):
        p(f"s_lshl_b32 s37, s25, 20\ns_lshl_b32 s38, s26, 2\ns_add_u32 s38, s38, s24\ns_lshl_b32 s38, s38, 13\ns_add_u32 s37, s37, s38")
        for k in range(8):
            if k == 4: p("s_add_u32 s37, s37, 4096")
            p(f"buffer_load_dwordx4 {vr(STT,4)}, v{GK}, s[16:19], s37 offen offset:{(k%4)*1024}")
    st(p, 1)
    p("s_mov_b32 s41, 0\ns_mov_b32 s45, 0x07060302")
    p(".p2align 6")
    p.label("L_att_loop")
    p.add(att_loop_body(U))
    p("s_cbranch_scc1 L_att_loop")
    st(p, 2)
    p(f"v_cvt_pk_bf16_f32 v{PB+6}, v{SB+12}, v{SB+13}\nv_cvt_pk_bf16_f32 v{PB+7}, v{SB+14}, v{SB+15}")
    p(f"""
    s_mul_i32 s33, s32, {88*1024}
    s_lshl_b32 s34, s27, 10
    s_add_u32 s33, s33, s34
    s_add_u32 s33, s33, {A3}
    """)
    p.add([mfma32(vr(OB,16), vr(V1R[3],4), vr(PB+4,4), vr(OB,16))])
    p("s_waitcnt lgkmcnt(0)")
    p("s_mov_b32 s36, 0")
    p.label("L_att_chk")
    p(f"v_mul_f32 v{TM}, 0, v{OA+8}")
    for r in range(8): p(f"v_fmac_f32 v{TM}, 0, v{OA+r}")
    p(f"v_cmp_u_f32 vcc, v{TM}, v{TM}")
    p("s_cbranch_vccnz L_att_slow")
    p.label("L_att_fin")
    p(f"v_rcp_f32 v{MA}, v{OA+8}")
    p("s_cmp_lg_u32 s36, 0")
    for r in range(8): p(f"v_mul_f32 v{OA+r}, v{OA+r}, v{MA}")
    for k in range(4): p(f"v_cvt_pk_bf16_f32 v{PA+k}, v{OA+2*k}, v{OA+2*k+1}")
    for k in range(4): p(f"v_min_u32 v{PA+k}, -2, v{PA+k}")
    p(f"buffer_store_dwordx4 {vr(PA,4)}, v{GK}, s[12:15], s33 offen")
    p("s_cbranch_scc1 L_att_done")
    p(f"s_mov_b32 s36, 1\ns_add_u32 s33, s33, {88*1024}")
    for r in range(9): p(f"v_mov_b32 v{OA+r}, v{OB+r}")
    for r in range(4): p(f"v_mov_b32 v{QA+r}, v{QB+r}")
    p("s_branch L_att_chk")
    p.label("L_att_done")
    st(p, 3)
    p("s_endpgm")
    p.label("L_att_sync2")
    p("s_cmp_eq_u32 s41, 2\ns_cbranch_scc1 L_att_sync3")
    if VAR['fuse3']:
        for r in range(4): p(f"v_mov_b32 v{STT+r}, -1")
        p(f"buffer_store_dwordx4 {vr(STT,4)}, v{GK}, s[12:15], s33 offen sc1\nbuffer_store_dwordx4 {vr(STT,4)}, v{GK}, s[12:15], s39 offen sc1")
        for k in range(4): p(f"buffer_store_dwordx4 {vr(STT,4)}, v{GK}, s[12:15], s{46+k//2} offen offset:{(k%2)*1024} sc1")
    if VAR.get('zpf'):
        p(f"s_lshl_b32 s37, s26, 2\ns_add_u32 s37, s37, s24\ns_mul_i32 s37, s37, {28*1024}\ns_add_u32 s37, s37, {Z2F}\nv_lshlrev_b32 v{PFA}, 7, v1")
        for k in range(4):
            if k == 3: p("s_mov_b32 exec_hi, 0")
            p(f"buffer_load_dword v{PF}, v{PFA}, s[12:15], s37 offen")
            if k < 3: p("s_add_u32 s37, s37, 8192")
        p("s_mov_b64 exec, -1")
    flag_wait(p, "L_att_f2", FL, 48, 1, TM)
    p("s_branch L_att_sync2_ret")
    p.label("L_att_sync3")
    if VAR['fuse3']:
        p(f"v_mov_b32 v{TM}, 1\ns_waitcnt vmcnt(0)\nbuffer_store_dword v{TM}, off, s[12:15], s35 sc1\nbuffer_store_dword v{TM}, off, s[12:15], s42 sc1\nds_write_b32 v{FL+1}, v{TM} offset:64")
    p("s_branch L_att_sync2_ret")
    p.label("L_att_slow")
    p(f"v_mov_b32 v{MA}, 0xff800000\ns_mov_b32 s41, 0\ns_mov_b32 s37, s30")
    p.label("L_att_sl1")
    p(f"buffer_load_dwordx4 {vr(KR[0],4)}, v{GK}, s[12:15], s37 offen")
    p("s_waitcnt vmcnt(0)")
    p.add([mfma32(vr(SA,16), vr(KR[0],4), vr(QA,4), "0")])
    max16(p, SA, MA, False)
    p(f"s_add_u32 s37, s37, {KVT}\ns_add_u32 s41, s41, 1\ns_cmp_lt_u32 s41, 64\ns_cbranch_scc1 L_att_sl1")
    p(f"v_mov_b32 v{TM}, v{MA}\nv_permlane32_swap_b32 v{TM}, v{MA}\nv_max_f32 v{MA}, v{MA}, v{TM}")
    for r in range(16): p(f"v_sub_f32 v{CA+r}, 0, v{MA}\nv_mov_b32 v{OA+r}, 0")
    p("s_mov_b32 s41, 0\ns_mov_b32 s37, s30")
    p.label("L_att_sl2")
    p(f"buffer_load_dwordx4 {vr(KR[0],4)}, v{GK}, s[12:15], s37 offen")
    p(f"buffer_load_dwordx4 {vr(V0R[0],4)}, v{GV0}, s[12:15], s37 offen")
    p(f"buffer_load_dwordx4 {vr(V1R[0],4)}, v{GV1}, s[12:15], s37 offen")
    p("s_waitcnt vmcnt(0)")
    p.add([mfma32(vr(SA,16), vr(KR[0],4), vr(QA,4), vr(CA,16))])
    for k in range(16): p(f"v_exp_f32 v{SA+k}, v{SA+k}")
    for k in range(8): p(f"v_cvt_pk_bf16_f32 v{PA+k}, v{SA+2*k}, v{SA+2*k+1}")
    p.add([mfma32(vr(OA,16), vr(V0R[0],4), vr(PA,4), vr(OA,16)), mfma32(vr(OA,16), vr(V1R[0],4), vr(PA+4,4), vr(OA,16))])
    p(f"s_add_u32 s37, s37, {KVT}\ns_add_u32 s41, s41, 1\ns_cmp_lt_u32 s41, 64\ns_cbranch_scc1 L_att_sl2")
    p("s_nop 15\ns_branch L_att_fin")

ACC = 4
NZF = 16
ZR = 132
WR = 196
VL = 228; VD = 229; VW = 230
G = 232
def acc(i, tt): return ACC + (i*2+tt)*16

def kv_rest(p, uniq):
    for i in range(6):
        p("s_mov_b32 m0, s62")
        if i < 5: p("s_add_u32 s62, s62, 16384")
        else: p("s_cmp_eq_u32 s24, 3")
        for k in range(4):
            if i == 5 and k == 3: p(f"s_cbranch_scc1 L_g_kvdone{uniq}")
            p(f"buffer_load_dwordx4 v{VL}, s[12:15], s63 offen offset:{k*1024} lds", tag="kv")
        if i < 5: p("s_add_u32 s63, s63, 16384")
    p.label(f"L_g_kvdone{uniq}")

def flag_addr(p):
    p(f"""
    s_lshr_b32 s48, s26, 3
    s_lshl_b32 s47, s25, 2
    s_add_u32 s48, s48, s47
    s_lshl_b32 s48, s48, 7                 ; tb'*128
    s_lshl_b32 s47, s24, 5
    s_add_u32 s46, s48, s47
    s_mul_i32 s47, s24, 28
    s_add_u32 s48, s48, s47
    s_add_u32 s48, s48, {UFL-OFL}          ; u flags
    s_and_b32 s47, s26, 7
    s_lshl_b32 s47, s47, 7
    s_add_u32 s47, s47, {WFL-OFL}          ; W flags
    v_lshlrev_b32 v{G+5}, 2, v1
    v_mov_b32 v{G+6}, s48
    v_add_u32 v{G+7}, s48, v{G+5}
    v_cmp_gt_u32 vcc, 7, v1
    v_cndmask_b32 v{G+6}, v{G+6}, v{G+7}, vcc
    v_subrev_u32 v{G+5}, 128, v{G+5}
    v_add_u32 v{G+7}, s47, v{G+5}
    v_cmp_gt_u32 vcc, 64, v{G+5}
    v_cndmask_b32 v{G+6}, v{G+6}, v{G+7}, vcc
    v_subrev_u32 v{G+5}, 64, v{G+5}
    v_add_u32 v{G+7}, s46, v{G+5}
    v_cmp_gt_u32 vcc, 32, v{G+5}
    v_cndmask_b32 v{G+6}, v{G+6}, v{G+7}, vcc
    s_mov_b32 s48, {OFL}
    """)
def gen_gemm(p, st):
    p(f"""
    s_sub_u32 s24, s24, 4                  ; q = K quarter
    v_lshlrev_b32 v{VL}, 4, v1
    s_mul_i32 s63, s27, {KVH}
    s_lshl_b32 s62, s24, 12
    s_add_u32 s62, s62, 32768
    s_add_u32 s63, s63, s62
    s_add_u32 s63, s63, {KV + KVT + 1024}
    s_lshl_b32 s46, s24, 2
    s_add_u32 s46, s46, {LDS_FLAG}
    v_mov_b32 v{G+1}, s46
    v_mov_b32 v{G+3}, 1
    s_barrier
    """)
    kv_rest(p, "a")
    p(f"""
    s_cmp_ge_u32 s26, 28
    s_cbranch_scc1 L_idle
    s_setprio {VAR.get('prio_s', 3)}
    s_mul_i32 s30, s26, 9363
    s_lshr_b32 s30, s30, 16                ; j/7
    s_mul_i32 s31, s30, 7
    s_sub_u32 s31, s26, s31                ; fb = j%7
    s_lshl_b32 s32, s25, 2
    s_add_u32 s30, s30, s32                ; tb
    s_lshl_b32 s33, s31, 19
    s_add_u32 s33, s33, {Z2F}
    {"s_lshr_b32 s39, s24, 1" if VAR.get('pairk', 1) else "s_mov_b32 s39, s24"}
    s_lshl_b32 s34, s39, {18 if VAR.get('pairk', 1) else 17}
    s_add_u32 s33, s33, s34
    s_lshl_b32 s35, s30, 18
    s_lshl_b32 s34, s39, {11 if VAR.get('pairk', 1) else 10}
    s_add_u32 s35, s35, s34
    {"s_and_b32 s39, s24, 1" if VAR.get('pairk', 1) else "s_mov_b32 s39, 0"}
    s_lshl_b32 s34, s39, 13
    s_add_u32 s33, s33, s34
    s_lshl_b32 s34, s39, 6
    s_add_u32 s35, s35, s34
    {"s_add_u32 s61, s30, s31" if VAR.get('grot', 0) else "s_mov_b32 s61, 0"}
    s_and_b32 s61, s61, 3
    s_lshl_b32 s34, s61, 15
    s_add_u32 s33, s33, s34
    s_lshl_b32 s34, s61, 8
    s_add_u32 s35, s35, s34
    s_lshl_b32 s61, s61, 1
    s_sub_u32 s61, 6, s61
    s_lshl_b32 s36, s24, 13
    s_add_u32 s36, s36, {LDS_STG}
    s_add_u32 s37, s36, 4096
    """)
    for i in range(4):
        p(f"s_add_u32 s38, s24, {i}\ns_and_b32 s38, s38, 3\ns_lshl_b32 s38, s38, 10\ns_add_u32 s{52+i}, s33, s38")
        p(f"s_add_u32 s{56+i}, s35, {i*(65536-1024)}")
    p(f"""
    v_lshrrev_b32 v2, 2, v1
    v_lshlrev_b32 v2, 12, v2
    v_lshrrev_b32 v3, 4, v1
    v_xor_b32 v3, v3, v1
    v_and_b32 v3, 3, v3
    v_lshl_add_u32 v{VD}, v3, 4, v2
    """)
    def dma(b):
        out = [I(f"s_mov_b32 m0, s{36 + b%2}"), I("s_nop 0")]
        for k in range(4):
            out.append(I(f"buffer_load_dwordx4 v{VD}, s[16:19], s{56+k} offen offset:{k*1024} lds", tag=f"d{b}"))
            out.append(I(f"s_add_u32 s{56+k}, s{56+k}, {128 if VAR.get('pairk', 1) else 64}"))
        return out
    def zload(n):
        i = n % 4
        return [I(f"buffer_load_dwordx4 {vr(ZR + (n%NZF)*4, 4)}, v{VL}, s[12:15], s{52+i} offen", tag=f"z{n}"),
                I(f"s_add_u32 s{52+i}, s{52+i}, {12288 if (VAR.get('pairk', 1) and (n//4) % 2 == 1) else 4096}")]
    p.add(dma(0))
    for n in range(8): p.add(zload(n))
    if VAR.get('kvearly', 1):
        p.wait(vm="kv"); p(f"ds_write_b32 v{G+1}, v{G+3} offset:48")
    p.add(dma(1))
    for n in range(8, 16): p.add(zload(n))
    if VAR.get('gpf'):
        p(f"s_lshl_b32 s38, s26, 2\ns_add_u32 s38, s38, s24\ns_mul_i32 s38, s38, 9472\ns_lshl_b32 s39, s25, 20\ns_add_u32 s38, s38, s39")
        for k in range(10):
            if k in (4, 8): p("s_add_u32 s38, s38, 4096")
            p(f"buffer_load_dwordx4 {vr(244,4)}, v{VL}, s[16:19], s38 offen offset:{(k%4)*1024}")
    p(f"s_setprio 3\nv_and_b32 v2, 31, v1")
    bitswap23(p, 2, 2, 3)
    p(f"""
    v_lshrrev_b32 v3, 2, v2
    v_lshrrev_b32 v{VW}, 5, v1
    v_xor_b32 v3, v3, v{VW}
    v_and_b32 v3, 3, v3
    v_lshlrev_b32 v3, 4, v3
    v_lshl_add_u32 v{VW}, v2, 6, v3
    v_add_u32 v{VW}, s36, v{VW}
    v_xor_b32 v{VW+1}, 32, v{VW}
    """)
    p(f"s_setprio {VAR['prio_g']}")
    st(p, 1)
    NB = 16
    def wread(b):
        return [I(f"ds_read_b128 {vr(WR + ((b%2)*4+u*2+tt)*4, 4)}, v{VW+u} offset:{(b%2)*4096 + tt*2048}", tag=f"w{b}", needs=[f"d{b}"]) for u in range(2) for tt in range(2)]
    def block(b, first=False, dma_on=True, z_on=True, w_on=True):
        o = [W(lg=f"w{b}")]
        if dma_on: o += dma(b+2)
        for u in range(2):
            s = 2*b+u
            o.append(W(vm=[f"z{4*s+3}"] + ([f"d{b+1}"] if (u == 1 and w_on) else [])))
            for i in range(4):
                n = 4*s+i
                for tt in range(2):
                    c = "0" if (first and u == 0) else vr(acc(i,tt),16)
                    o.append(mfma32(vr(acc(i,tt),16), vr(ZR+(n%NZF)*4,4), vr(WR+((b%2)*4+u*2+tt)*4,4), c))
                if u == 1 and i == 0 and w_on: o += wread(b+1)
            if z_on:
                for i in range(4): o += zload(4*s+i+NZF)
        return o
    p.wait(vm="kv"); p(f"ds_write_b32 v{G+1}, v{G+3} offset:48")
    p.wait(vm="d0"); p.add(wread(0))
    p.add(block(0, first=True)); p.add(block(1))
    p("s_mov_b32 s60, 0")
    p.label("L_g_loop")
    if VAR.get('grot', 0):
        p("s_cmp_eq_u32 s60, s61\ns_cselect_b32 s66, 0x20000, 0\ns_cselect_b32 s67, 0x400, 0")
        for i in range(4): p(f"s_sub_u32 s{52+i}, s{52+i}, s66\ns_sub_u32 s{56+i}, s{56+i}, s67")
    p.add(block(2)); p.add(block(3))
    p("s_add_u32 s60, s60, 1\ns_cmp_lt_u32 s60, 6\ns_cbranch_scc1 L_g_loop")
    p.add(block(4, dma_on=False, z_on=False)); p.add(block(5, dma_on=False, z_on=False, w_on=False))
    st(p, 2)
    p(f"s_setprio {VAR.get('prio_e', 3)}")
    p(f"""
    s_lshl_b32 s38, s30, 1
    s_mul_i32 s39, s38, {56*1024}
    s_lshl_b32 s40, s31, 2
    s_add_u32 s40, s40, s24
    s_lshl_b32 s41, s40, 11
    s_add_u32 s39, s39, s41
    s_add_u32 s39, s39, {Z1F}
    s_add_u32 s42, s39, {56*1024}
    s_mul_i32 s43, s38, {88*1024}
    s_add_u32 s43, s43, s41
    s_add_u32 s43, s43, {A3 + 32*1024}
    s_add_u32 s44, s43, {88*1024}
    s_lshl_b32 s45, s30, 7
    v_lshlrev_b32 v2, 1, v2
    """)
    Z = ZR
    if VAR['fuse3']:
        flag_addr(p)
        p(f"buffer_load_dword v{G+5}, v{G+6}, s[12:15], s48 offen sc1", tag="z1")
    p(f"buffer_load_dwordx4 {vr(Z,4)}, v{VL}, s[12:15], s39 offen", tag="z1")
    p(f"buffer_load_dwordx4 {vr(Z+4,4)}, v{VL}, s[12:15], s39 offen offset:1024", tag="z1")
    p(f"buffer_load_dwordx4 {vr(Z+8,4)}, v{VL}, s[12:15], s42 offen", tag="z1")
    p(f"buffer_load_dwordx4 {vr(Z+12,4)}, v{VL}, s[12:15], s42 offen offset:1024", tag="z1")
    p(f"buffer_load_ushort v{Z+16}, v2, s[20:23], s45 offen", tag="z1")
    p(f"buffer_load_ushort v{Z+17}, v2, s[20:23], s45 offen offset:64", tag="z1")
    p(f"""
    v_add_u32 v{G}, s36, v{VL}
    """)
    for r in range(1, 4):
        if r > 1:
            p(f"s_add_u32 s47, s24, {r-1}\ns_and_b32 s47, s47, 3\ns_lshl_b32 s47, s47, 2\ns_add_u32 s47, s47, {LDS_FLAG}\nv_mov_b32 v{G+2}, s47")
            spin1(p, f"L_g_ack{r}", G+2, 32, r-1, G+3)
        for k in range(8):
            p(f"ds_write_b128 v{G}, {vr(acc(r,0)+4*k, 4)} offset:{k*1024}")
        p(f"v_mov_b32 v{G+3}, {r}\ns_waitcnt lgkmcnt(0)\nds_write_b32 v{G+1}, v{G+3} offset:16")
        p(f"s_add_u32 s47, s24, {4-r}\ns_and_b32 s47, s47, 3\ns_lshl_b32 s48, s47, 2\ns_add_u32 s48, s48, {LDS_FLAG}\nv_mov_b32 v{G+2}, s48\ns_lshl_b32 s47, s47, 13\ns_add_u32 s47, s47, {LDS_STG}\nv_add_u32 v{G+4}, s47, v{VL}")
        spin1(p, f"L_g_dat{r}", G+2, 16, r, G+3)
        T = acc(r, 0)
        for k in range(8):
            p(f"ds_read_b128 {vr(T+4*k,4)}, v{G+4} offset:{k*1024}", tag=f"r{k}")
        for k in range(8):
            p.wait(lg=f"r{k}")
            for e in range(4): p(f"v_add_f32 v{acc(0,0)+4*k+e}, v{acc(0,0)+4*k+e}, v{T+4*k+e}")
        if r < 3:
            p(f"v_mov_b32 v{G+3}, {r}\nds_write_b32 v{G+1}, v{G+3} offset:32")
    if VAR['fuse3']: spin1(p, "L_g_pf", G+1, 64, 1, G+3)
    p.wait(vm="z1")
    T = acc(1, 0)
    p(f"v_lshlrev_b32 v{Z+16}, 16, v{Z+16}\nv_lshlrev_b32 v{Z+17}, 16, v{Z+17}")
    for tt in range(2):
        a = acc(0, tt)
        for r in range(16): p(f"v_add_f32 v{a+r}, v{a+r}, v{Z+16+tt}")
        for d in range(8):
            z = Z + tt*8 + d
            p(f"v_lshlrev_b32 v{T}, 16, v{z}\nv_and_b32 v{T+1}, 0xffff0000, v{z}")
            p(f"v_mul_f32 v{a+2*d}, v{a+2*d}, v{T}\nv_mul_f32 v{a+2*d+1}, v{a+2*d+1}, v{T+1}")
            p(f"v_cvt_pk_bf16_f32 v{T+8+tt*8+d}, v{a+2*d}, v{a+2*d+1}")
        for d in range(8): p(f"v_min_u32 v{T+8+tt*8+d}, -2, v{T+8+tt*8+d}")
        so = 43 + tt
        p(f"buffer_store_dwordx4 {vr(T+8+tt*8,4)}, v{VL}, s[12:15], s{so} offen")
        p(f"buffer_store_dwordx4 {vr(T+12+tt*8,4)}, v{VL}, s[12:15], s{so} offen offset:1024")
    if VAR.get('pf3'):
        p(f"s_lshl_b32 s38, s26, 2\ns_add_u32 s38, s38, s24\ns_mul_i32 s38, s38, 16384\ns_add_u32 s38, s38, {W3F}\nv_lshlrev_b32 v2, 7, v1")
        p(f"buffer_load_dword v3, v2, s[12:15], s38 offen\ns_add_u32 s38, s38, 8192\nbuffer_load_dword v3, v2, s[12:15], s38 offen")
    st(p, 3)
    if VAR['fuse3']:
        p(f"v_cmp_eq_u32 vcc, 0, v{G+5}\ns_cbranch_vccz L_g2\ns_branch L_g2w")
    else: p("s_endpgm")
    p.label("L_idle")
    if VAR.get('ipf', 1):
        if VAR.get('ipf', 1) == 2: p(f"s_waitcnt vmcnt(0)\nds_write_b32 v{G+1}, v{G+3} offset:48")
        p(f"""
        s_sub_u32 s34, s26, 28
        s_lshl_b32 s34, s34, 2
        s_add_u32 s34, s34, s24                 ; wave16
        v_lshlrev_b32 v2, 7, v1
        v_lshlrev_b32 v3, 12, v1
        s_lshl_b32 s56, s25, 20
        s_and_b32 s35, s34, 3
        s_lshl_b32 s35, s35, 18
        s_add_u32 s56, s56, s35
        s_lshr_b32 s35, s34, 2
        s_lshl_b32 s35, s35, 10
        s_add_u32 s56, s56, s35
        """)
        for g in range(8):
            p(f"buffer_load_dword v4, v3, s[16:19], s56 offen offset:{g*128}")
    p(f"""
    s_load_dwordx2 s[36:37], s[0:1], {KA_WO}
    s_load_dwordx2 s[38:39], s[0:1], {KA_WOUT}
    s_lshl_b32 s34, s25, 2
    s_add_u32 s34, s34, s26
    s_sub_u32 s34, s34, 28                      ; L
    s_mov_b32 s54, {896*1024}
    s_waitcnt vmcnt({8 if VAR.get('ipf', 1) else 0}) lgkmcnt(0)
    ds_write_b32 v{G+1}, v{G+3} offset:48
    s_waitcnt vmcnt(0)
    s_cmp_lt_u32 s34, 16
    s_cselect_b32 s52, s36, s38
    s_cselect_b32 s53, s37, s39
    s_cselect_b32 s54, {512*1024}, s54
    s_cselect_b32 s35, 8, 14
    s_cselect_b32 s67, 0, {32*1024}
    s_mov_b32 s55, 0x20000
    s_and_b32 s34, s34, 15
    s_mul_i32 s68, s24, s35
    s_lshl_b32 s69, s68, 14
    s_lshl_b32 s60, s34, 6
    s_add_u32 s69, s69, s60
    s_mul_i32 s60, s34, {88*1024}
    s_lshl_b32 s68, s68, 10
    s_add_u32 s60, s60, s68
    s_add_u32 s60, s60, s67
    s_add_u32 s60, s60, {W3F}
    v_lshrrev_b32 v2, 2, v1
    v_and_b32 v3, 3, v1
    v_lshlrev_b32 v3, 4, v3
    v_lshl_add_u32 v2, v2, 10, v3
    s_lshl_b32 s61, s24, 13
    s_add_u32 s61, s61, {LDS_STG}
    v_lshrrev_b32 v4, 5, v1
    v_lshlrev_b32 v3, 9, v4
    v_bfe_u32 v4, v1, 2, 2
    v_lshl_add_u32 v3, v4, 6, v3
    v_bfe_u32 v4, v1, 4, 1
    v_lshl_add_u32 v3, v4, 5, v3
    v_and_b32 v4, 1, v1
    v_lshl_add_u32 v3, v4, 4, v3
    v_bfe_u32 v4, v1, 1, 1
    v_lshl_add_u32 v3, v4, 3, v3
    v_add_u32 v3, s61, v3
    s_mov_b32 m0, s61
    s_mov_b32 s62, 0
    """)
    p.label("L_w3a")
    p("buffer_load_dwordx4 v2, s[52:55], s69 offen lds\ns_add_u32 s69, s69, 16384\ns_add_u32 s62, s62, 1\ns_waitcnt vmcnt(0)")
    p(f"ds_read_b64_tr_b16 v[8:9], v3\nds_read_b64_tr_b16 v[10:11], v3 offset:256\ns_waitcnt lgkmcnt(0)")
    p(f"buffer_store_dwordx4 v[8:11], v{VL}, s[12:15], s60 offen\ns_add_u32 s60, s60, 1024\ns_cmp_lt_u32 s62, s35\ns_cbranch_scc1 L_w3a")
    if not VAR['fuse3']:
        p("s_endpgm"); return
    p(f"""
    s_lshr_b32 s33, s34, 1
    s_lshl_b32 s33, s33, 7                      ; (nt>>1)*128
    s_and_b32 s34, s34, 1
    s_lshl_b32 s34, s34, 4
    s_add_u32 s33, s33, s34
    s_lshr_b32 s34, s67, 10                     ; 0 or 32
    s_add_u32 s33, s33, s34
    s_lshl_b32 s34, s24, 2
    s_add_u32 s33, s33, s34
    s_add_u32 s33, s33, {WFL}
    v_mov_b32 v{G+3}, 1
    s_waitcnt vmcnt(0)
    buffer_store_dword v{G+3}, off, s[12:15], s33 sc1
    """)
    flag_addr(p)
    p.label("L_g2w")
    p(f"s_mov_b32 s48, {OFL}")
    poll(p, "L_p0", 48, G+6, None, G+5, sleep=32)
    gen_g2(p, st)


FA = 4
FW = 68
FX = 132
FR = 180
FO_ = 180
FL_ = 244; FO = 245; FT = 246
def poll(p, name, soff, voff, mask_hi_lo, tmp, bad=0, sleep=None):
    p(f"s_mov_b32 s47, 0")
    p.label(name)
    p(f"buffer_load_dword v{tmp}, v{voff}, s[12:15], s{soff} offen sc1\ns_add_u32 s47, s47, 1\ns_waitcnt vmcnt(0)")
    p(f"v_cmp_eq_u32 vcc, {bad}, v{tmp}\ns_cbranch_vccz {name}_ok\ns_cmp_gt_u32 s47, 0x40000\ns_cbranch_scc1 {name}_ok\ns_sleep {sleep or VAR.get('psleep', 16)}\ns_branch {name}")
    p.label(name + "_ok")
def gen_g2(p, st):
    p.label("L_g2")
    p(f"""
    v_mov_b32 v{FL_}, v{VL}
    s_load_dwordx2 s[6:7], s[0:1], {KA_X}
    s_load_dwordx2 s[8:9], s[0:1], {KA_OUT}
    s_setprio 3
    s_lshr_b32 s27, s26, 3
    s_lshl_b32 s28, s25, 2
    s_add_u32 s27, s27, s28                ; tb
    s_and_b32 s28, s26, 7                  ; nb
    s_and_b32 s29, s24, 1
    s_lshr_b32 s30, s24, 1
    s_lshl_b32 s32, s27, 1
    s_add_u32 s33, s32, s29
    s_xor_b32 s34, s33, 1
    s_lshl_b32 s32, s28, 1
    s_add_u32 s35, s32, s30
    s_xor_b32 s36, s35, 1
    s_mul_i32 s40, s33, {88*1024}
    s_mul_i32 s41, s34, {88*1024}
    s_mul_i32 s42, s35, {88*1024}
    s_mul_i32 s43, s36, {88*1024}
    s_add_u32 s40, s40, {A3}
    s_add_u32 s41, s41, {A3}
    s_add_u32 s42, s42, {W3F}
    s_add_u32 s43, s43, {W3F}
    s_mul_i32 s31, s24, {14*1024}
    s_add_u32 s31, s31, {32*1024}
    s_lshl_b32 s32, s24, 13
    s_lshl_b32 s44, s33, 15
    s_lshl_b32 s45, s35, 6
    s_add_u32 s44, s44, s45
    s_mov_b32 s49, 0
    """)
    p.label("L_g2_redo")
    for i in range(4):
        p(f"s_add_u32 s{52+i}, s{40+i}, s31\ns_add_u32 s{56+i}, s{40+i}, s32")
    for s_ in range(14):
        if s_ and s_ % 4 == 0: p("s_add_u32 s54, s54, 4096\ns_add_u32 s55, s55, 4096")
        for i in range(2):
            p(f"buffer_load_dwordx4 {vr(FW+(s_*2+i)*4,4)}, v{FL_}, s[12:15], s{54+i} offen offset:{(s_%4)*1024} sc1")
    st(p, 8)
    p(f"""
    s_min_u32 s46, s52, s53
    s_min_u32 s45, s56, s57
    v_lshrrev_b32 v2, 1, v1
    v_min_u32 v{FT+2}, 13, v2
    v_min_u32 v{FT+1}, 7, v2
    v_and_b32 v3, 1, v1
    v_mul_u32_u24 v3, {88*1024}, v3
    v_add_u32 v3, 1020, v3
    v_lshl_add_u32 v{FT+2}, v{FT+2}, 10, v3
    v_lshl_add_u32 v{FT+1}, v{FT+1}, 10, v3
    v_and_b32 v2, 31, v1
    """)
    bitswap23(p, 2, 2, 3)
    p(f"v_lshrrev_b32 v3, 5, v1\nv_lshlrev_b32 v3, 4, v3\nv_lshl_add_u32 v{FO}, v2, 10, v3\nv_mov_b32 v{FT+5}, 0\ns_waitcnt lgkmcnt(0)")
    srd(p, 16, 6, 2048*1024); srd(p, 20, 8, 2048*1024)
    st(p, 9)
    poll(p, "L_p1", 46, FT+2, None, FT+4, bad=-1)
    st(p, 4)
    p(f"s_setprio {VAR.get('prio_u', 3)}")
    NR = 8
    def ld(s):
        o = []
        if s and s % 4 == 0: o += [I(f"s_add_u32 s{52+i}, s{52+i}, 4096") for i in range(2)]
        for i in range(2):
            o.append(I(f"buffer_load_dwordx4 {vr(FR+((s%NR)*2+i)*4,4)}, v{FL_}, s[12:15], s{52+i} offen offset:{(s%4)*1024} sc1", tag=f"g{s}"))
        return o
    for s_ in range(NR): p.add(ld(s_))
    for s_ in range(14):
        p.wait(vm=f"g{s_}")
        for n_, (a, b) in enumerate(((0,0), (0,1), (1,0), (1,1))):
            d = vr(FA + (a*2+b)*16, 16)
            p.add([mfma32(d, vr(FW+(s_*2+a)*4,4), vr(FR+((s_%NR)*2+b)*4,4), "0" if s_ == 0 else d)])
            r0 = FR+(s_%NR)*8+2*n_
            p(f"v_max3_u32 v{FT+5}, v{FT+5}, v{r0}, v{r0+1}")
        if s_+NR < 14: p.add(ld(s_+NR))
        if s_ >= 6:
            k = s_-6
            for i in range(2):
                p(f"s_add_u32 s47, s{58+i}, {(k//4)*4096}")
                p(f"buffer_load_dwordx4 {vr(FW+(k*2+i)*4,4)}, v{FL_}, s[12:15], s47 offen offset:{(k%4)*1024} sc1", tag="wo")
    p(f"buffer_load_dwordx4 {vr(FX,4)}, v{FO}, s[16:19], s44 offen", tag="x")
    p(f"buffer_load_dwordx4 {vr(FX+4,4)}, v{FO}, s[16:19], s44 offen offset:32", tag="x")
    p(f"s_setprio 3\nv_cmp_eq_u32 vcc, -1, v{FT+5}\ns_cbranch_vccnz L_g2_again")
    p.label("L_g2_go")
    p.wait(vm="x")
    for d_ in range(7, -1, -1):
        p(f"v_and_b32 v{FX+8+2*d_+1}, 0xffff0000, v{FX+d_}\nv_lshlrev_b32 v{FX+8+2*d_}, 16, v{FX+d_}")
    st(p, 5)
    p("s_barrier")
    p("s_add_u32 s58, s56, 4096\ns_add_u32 s59, s57, 4096\ns_mov_b32 s49, 0")
    p.label("L_p3")
    poll(p, "L_p2", 45, FT+1, None, FT+4, bad=-1, sleep=VAR.get('p3sleep', 4))
    for s_ in range(8):
        for i in range(2):
            p(f"buffer_load_dwordx4 {vr(FO_+(s_*2+i)*4,4)}, v{FL_}, s[12:15], s{56+i+2*(s_//4)} offen offset:{(s_%4)*1024} sc1", tag=f"o{s_}")
    p(f"v_mov_b32 v{FT+4}, 0\ns_add_u32 s49, s49, 1")
    for s_ in range(8):
        p.wait(vm=f"o{s_}")
        for k in range(0, 8, 2): p(f"v_max3_u32 v{FT+4}, v{FT+4}, v{FO_+8*s_+k}, v{FO_+8*s_+k+1}")
    p(f"v_cmp_eq_u32 vcc, -1, v{FT+4}\ns_cbranch_vccz L_p3_ok\ns_cmp_lt_u32 s49, 64\ns_cbranch_scc1 L_p3")
    p.label("L_p3_ok")
    st(p, 6)
    for i in range(1, 4):
        p(f"s_xor_b32 s46, s24, {i}\ns_mul_i32 s46, s46, 12288\ns_add_u32 s46, s46, {(i-1)*4096}\nv_add_u32 v{FT+i}, s46, v{FL_}")
    p(f"s_mul_i32 s46, s24, 12288\nv_add_u32 v{FT}, s46, v{FL_}")
    for s_ in range(8):
        order = ((0,0), (0,1), (1,0), (1,1)) if s_ < 7 else ((0,1), (1,0), (1,1), (0,0))
        for (a, b) in order:
            d = vr(FA + (a*2+b)*16, 16)
            p.add([mfma32(d, vr(FW+(s_*2+a)*4,4), vr(FO_+(s_*2+b)*4,4), d)])
    for i in range(1, 4):
        for k in range(4): p(f"ds_write_b128 v{FT+i}, {vr(FA+i*16+4*k,4)} offset:{k*1024}")
    for r in range(16): p(f"v_add_f32 v{FA+r}, v{FA+r}, v{FX+8+r}")
    p("s_waitcnt lgkmcnt(0)\ns_barrier")
    for k in range(12): p(f"ds_read_b128 {vr(FA+16+4*k,4)}, v{FT} offset:{k*1024}", tag=f"r{k}")
    for k in range(12):
        p.wait(lg=f"r{k}")
        for e in range(4): p(f"v_add_f32 v{FA+(4*k+e)%16}, v{FA+(4*k+e)%16}, v{FA+16+4*k+e}")
    for d in range(8): p(f"v_cvt_pk_bf16_f32 v{FX+d}, v{FA+2*d}, v{FA+2*d+1}")
    p(f"buffer_store_dwordx4 {vr(FX,4)}, v{FO}, s[20:23], s44 offen")
    p(f"buffer_store_dwordx4 {vr(FX+4,4)}, v{FO}, s[20:23], s44 offen offset:32")
    st(p, 7)
    p("s_endpgm")
    p.label("L_g2_again")
    p("s_add_u32 s49, s49, 1\ns_cmp_gt_u32 s49, 64\ns_cbranch_scc1 L_g2_go\ns_waitcnt vmcnt(0)\ns_branch L_g2_redo")

def gen_k2(with_gemm=True, with_att=True, stamp=False):
    p = Prog()
    entry_stamp(p, stamp)
    p(f"""
    s_cmp_ge_u32 s2, 256
    s_cbranch_scc1 L_end
    s_load_dwordx2 s[4:5], s[0:1], {KA_WS}
    s_load_dwordx4 s[8:11], s[0:1], {KA_WSP}
    v_and_b32 v1, 63, v0
    v_lshrrev_b32 v2, 6, v0
    v_readfirstlane_b32 s24, v2
    s_and_b32 s25, s2, 7
    s_lshr_b32 s26, s2, 3
    s_lshr_b32 s27, s26, 3
    s_lshl_b32 s28, s25, 2
    s_add_u32 s27, s27, s28                ; head
    s_and_b32 s28, s26, 7                  ; qb
    v_mov_b32 v2, 0
    v_lshlrev_b32 v3, 2, v1
    v_add_u32 v3, {LDS_FLAG}, v3
    ds_write_b32 v3, v2
    s_mov_b32 s50, s24
    s_waitcnt lgkmcnt(0)
    """)
    srd(p, 12, 4, WS_USED); srd(p, 16, 8, 2048*2048*2); srd(p, 20, 10, 4096)
    st0 = (Stamper(stamp and not SOLO, 50, 252, kid=1) if not SOLO else Stamper(stamp, 50, 252))
    st0(p, 0); entry_store(p, st0)
    p("s_cmp_ge_u32 s24, 4\ns_cbranch_scc1 L_gemm")
    if with_att: gen_attention(p, (Stamper(stamp and not SOLO, 50, 252, kid=1) if not SOLO else Stamper(stamp, 50, 252)))
    else: p("s_endpgm")
    p.label("L_gemm")
    if with_gemm: gen_gemm(p, (Stamper(stamp and not SOLO, 50, 252, kid=1) if not SOLO else Stamper(stamp, 50, 252)))
    p.label("L_end")
    p("s_endpgm")
    return p

def k2_paths(l):
    lab = {x.op: i for i, x in enumerate(l) if x.kind == "label"}
    g = lab["L_gemm"]
    att = l[:g]
    end_att = next(i for i, x in enumerate(att) if x.kind == "misc" and x.base == "s_endpgm")
    head_end = next(i for i, x in enumerate(l) if x.kind == "branch" and x.target == "L_gemm")
    idle = lab["L_idle"]
    g2 = lab.get("L_g2", len(l))
    return [linearize(att[:end_att+1], {"L_att_loop": 3}), linearize(l[:head_end] + l[g:idle] + l[g2:], {"L_g_loop": 3}), l[idle:]]

K2_DESC = dict(name="k2_kernel", vgpr=256, sgpr=102, accum=256, grid=256, block=512, lds=K2_LDS)
if __name__ == "__main__":
    p = gen_k2()
    l, errs = finalize("k2", p, paths=k2_paths, verbose=True)
```

```python
from common import *
SOLO = True
import struct
def float_hex(f): return hex(struct.unpack("<I", struct.pack("<f", f))[0])

LDS_FLAG = 130048
LDS_STG = 131072
K2_LDS = 163840
VAR = dict(margin=100.0, U=8, prio_att=1, prio_g=0, fuse3=True, cdelay=2)

QA, QB = 4, 8
CA, CB = 16, 32
OA, OB = 48, 64
SA, SB = 80, 96
PA, PB = 112, 120
KR = [128, 132, 136, 140]
V0R = [144, 148, 152, 156]
V1R = [160, 164, 168, 172]
AK, AV0, AV1 = 176, 177, 178
GK, GV0, GV1 = 179, 180, 181
MA, MB = 182, 183
TM = 184
FL = 188
PF, PFA = 190, 191
STT = 192

def max16(p, S, M, first):
    if first:
        p(f"v_max3_f32 v{M}, v{S}, v{S+1}, v{S+2}")
        p(f"v_max_f32 v{M}, v{M}, v{S+3}")
        r = range(4, 16, 2)
    else: r = range(0, 16, 2)
    for k in r: p(f"v_max3_f32 v{M}, v{M}, v{S+k}, v{S+k+1}")

def flag_wait(p, name, addr_v, off, val, tmpq, sleep=1):
    p.label(name)
    p(f"ds_read_b128 {vr(tmpq,4)}, v{addr_v} offset:{off}")
    p("s_waitcnt lgkmcnt(0)")
    p(f"v_min_u32 v{tmpq}, v{tmpq}, v{tmpq+1}\nv_min3_u32 v{tmpq}, v{tmpq}, v{tmpq+2}, v{tmpq+3}")
    p(f"v_cmp_gt_u32 vcc, {val}, v{tmpq}")
    p(f"s_cbranch_vccz {name}_ok\ns_sleep {sleep}\ns_branch {name}")
    p.label(name + "_ok")

def spin1(p, name, addr_v, off, val, tmp):
    p.label(name)
    p(f"ds_read_b32 v{tmp}, v{addr_v} offset:{off}")
    p("s_waitcnt lgkmcnt(0)")
    p(f"v_cmp_gt_u32 vcc, {val}, v{tmp}")
    p(f"s_cbranch_vccz {name}_ok\ns_sleep 1\ns_branch {name}")
    p.label(name + "_ok")

def att_loop_body(U):
    out = []
    def blk(S, P, So, Po, Mqk, Mpv1, Mpv0, extra):
        e = lambda k: I(f"v_exp_f32 v{S+k}, v{S+k}")
        c = lambda k: I(f"v_cvt_pk_bf16_f32 v{P+k}, v{S+2*k}, v{S+2*k+1}")
        co = lambda k: I(f"v_cvt_pk_bf16_f32 v{Po+k}, v{So+2*k}, v{So+2*k+1}")
        o = []
        pq, p1, p0 = VAR.get('pos', (2, 6, 12))
        cs = VAR.get('cs', {0: [-6], 1: [-7], 3: [0], 5: [1], 7: [2], 9: [3], 11: [4], 13: [5]})
        if VAR.get('perm'):
            c = lambda k: I(f"v_perm_b32 v{P+k}, v{S+2*k+1}, v{S+2*k}, s45")
            co = lambda k: I(f"v_perm_b32 v{Po+k}, v{So+2*k+1}, v{So+2*k}, s45")
        for k in range(16):
            o.append(e(k))
            for j in cs.get(k, []):
                if j < 0: o.append(co(-j))
            if k == pq and not VAR.get('nom'): o.append(Mqk)
            if k == p1 and not VAR.get('nom'): o.append(Mpv1)
            if k == p0 and not VAR.get('nom'): o.append(Mpv0)
            o += extra.get(k, [])
            for j in cs.get(k, []):
                if j >= 0: o.append(c(j))
        return o
    for u in range(U):
        s0 = u % 4; s1 = (u+1) % 4; sm = (u-1) % 4
        exA = {}; exB = {}
        if u % 2 == 0:
            rd = []
            for d in (2, 3):
                o_ = (u+d-1)*KVT
                rd += [I(f"ds_read_b128 {vr(KR[(u+d)%4],4)}, v{AK} offset:{o_}"),
                       I(f"ds_read_b128 {vr(V0R[(u+d)%4],4)}, v{AV0} offset:{o_}"),
                       I(f"ds_read_b128 {vr(V1R[(u+d)%4],4)}, v{AV1} offset:{o_}")]
            exA = {6: rd}
            if VAR.get('nods'): exA = {}
        if u == U-1:
            exB = {2: [I("s_add_u32 s41, s41, 1")], 3: [I(f"s_cmp_lt_u32 s41, 3")], 4: [I("s_cbranch_scc1 L_att_sync2"), I("L_att_sync2_ret:")],
                   6: [I(f"v_add_u32 v{AK}, {U*KVT}, v{AK}")], 8: [I(f"v_add_u32 v{AV0}, {U*KVT}, v{AV0}")], 10: [I(f"v_add_u32 v{AV1}, {U*KVT}, v{AV1}")],
                   14: [I(f"s_cmp_lt_u32 s41, {64//U}")]}
        if u % 2 == 1: exB[0] = [I("s_waitcnt lgkmcnt(0)")]
        out += blk(SA, PA, SB, PB, mfma32(vr(SB,16), vr(KR[s0],4), vr(QB,4), vr(CB,16)),
                   mfma32(vr(OB,16), vr(V1R[sm],4), vr(PB+4,4), vr(OB,16)),
                   mfma32(vr(OA,16), vr(V0R[s0],4), vr(PA,4), vr(OA,16)), exA)
        out += blk(SB, PB, SA, PA, mfma32(vr(SA,16), vr(KR[s1],4), vr(QA,4), vr(CA,16)),
                   mfma32(vr(OA,16), vr(V1R[s0],4), vr(PA+4,4), vr(OA,16)),
                   mfma32(vr(OB,16), vr(V0R[s0],4), vr(PB,4), vr(OB,16)), exB)
    return out

def gen_attention(p, st):
    U = VAR['U']
    p(f"s_setprio {VAR['prio_att']}")
    p(f"""
    s_mul_i32 s30, s27, {KVH}
    s_add_u32 s30, s30, {KV}
    s_lshl_b32 s31, s27, 16
    s_lshl_b32 s32, s28, 3
    s_lshl_b32 s33, s24, 1
    s_add_u32 s32, s32, s33
    s_lshl_b32 s33, s32, 10
    s_add_u32 s31, s31, s33
    v_lshlrev_b32 v{GK}, 4, v1
    """)
    p(f"buffer_load_dwordx4 {vr(QA,4)}, v{GK}, s[12:15], s31 offen")
    p(f"buffer_load_dwordx4 {vr(QB,4)}, v{GK}, s[12:15], s31 offen offset:1024")
    p(f"buffer_load_dwordx4 {vr(KR[0],4)}, v{GK}, s[12:15], s30 offen")
    p(f"buffer_load_dwordx4 {vr(KR[1],4)}, v{GK}, s[12:15], s30 offen offset:{KVT}")
    p(f"""
    v_and_b32 v{TM}, 31, v1
    v_lshrrev_b32 v{TM+1}, 5, v1
    v_lshlrev_b32 v{TM+1}, 8, v{TM+1}
    v_lshl_add_u32 v{TM+1}, v{TM}, 4, v{TM+1}
    v_and_b32 v{TM+2}, 27, v{TM}
    v_cmp_eq_u32 vcc, 16, v{TM+2}
    v_mov_b32 v{TM+2}, 2064
    v_mov_b32 v{TM+3}, 2048
    v_cndmask_b32 v{TM+2}, v{TM+2}, v{TM+3}, vcc
    v_cmp_gt_u32 vcc, 16, v{TM}
    v_add_u32 v{GV0}, 1024, v{TM+1}
    v_add_u32 v{GV1}, 1536, v{TM+1}
    v_cndmask_b32 v{GV0}, v{TM+2}, v{GV0}, vcc
    v_cndmask_b32 v{GV1}, v{TM+2}, v{GV1}, vcc
    """)
    for t in range(2):
        p(f"buffer_load_dwordx4 {vr(V0R[t],4)}, v{GV0}, s[12:15], s30 offen offset:{t*KVT}")
        p(f"buffer_load_dwordx4 {vr(V1R[t],4)}, v{GV1}, s[12:15], s30 offen offset:{t*KVT}")
    p(f"""
    s_lshl_b32 s37, s24, 12
    s_add_u32 s38, s30, {KVT+1024}
    s_add_u32 s38, s38, s37
    """)
    for i in range(2):
        p("s_mov_b32 m0, s37")
        p("s_add_u32 s37, s37, 16384")
        for k in range(4):
            p(f"buffer_load_dwordx4 v{GK}, s[12:15], s38 offen offset:{k*1024} lds")
        p("s_add_u32 s38, s38, 16384")
    p("s_barrier")
    if VAR['fuse3']:
        p(f"""
        s_mul_i32 s33, s32, {88*1024}
        s_lshl_b32 s34, s27, 10
        s_add_u32 s33, s33, s34
        s_add_u32 s33, s33, {A3}
        s_add_u32 s39, s33, {88*1024}
        s_lshl_b32 s35, s32, 6
        s_lshl_b32 s34, s27, 2
        s_add_u32 s35, s35, s34
        s_add_u32 s35, s35, {OFL}
        s_mul_i32 s42, s26, 9363
        s_lshr_b32 s42, s42, 16                ; j/7
        s_mul_i32 s43, s42, 7
        s_sub_u32 s43, s26, s43                ; fb
        s_lshl_b32 s44, s25, 2
        s_add_u32 s42, s42, s44
        s_lshl_b32 s43, s43, 2
        s_add_u32 s43, s43, s24                ; ft
        s_mul_i32 s46, s42, {2*88*1024}
        s_lshl_b32 s44, s43, 11
        s_add_u32 s46, s46, s44
        s_add_u32 s46, s46, {A3 + 32*1024}
        s_lshl_b32 s42, s42, 7
        s_lshl_b32 s43, s43, 2
        s_add_u32 s42, s42, s43
        s_add_u32 s42, s42, {UFL}
        s_cmp_lt_u32 s26, 28
        s_cselect_b32 s46, s46, 0x7ff00000
        s_cselect_b32 s42, s42, 0x7ff00000
        s_add_u32 s47, s46, {88*1024}
        """)
    p(f"""
    v_mov_b32 v{FL}, {LDS_FLAG}
    s_lshl_b32 s37, s24, 2
    v_add_u32 v{FL+1}, s37, v{FL}
    v_subrev_u32 v{AK}, 1024, v{GK}
    v_subrev_u32 v{AV0}, 1024, v{GV0}
    v_subrev_u32 v{AV1}, 1024, v{GV1}
    """)
    for r in list(range(OA, OA+32)) + list(range(PB+4, PB+6)) + list(range(V1R[3], V1R[3]+4)):
        p(f"v_mov_b32 v{r}, 0")
    p(f"s_waitcnt vmcnt(12)")
    p.add([mfma32(vr(SA,16), vr(KR[0],4), vr(QA,4), "0"), mfma32(vr(SB,16), vr(KR[0],4), vr(QB,4), "0"),
           mfma32(vr(CA,16), vr(KR[1],4), vr(QA,4), "0"), mfma32(vr(CB,16), vr(KR[1],4), vr(QB,4), "0")])
    max16(p, SA, MA, True); max16(p, SB, MB, True); max16(p, CA, MA, False); max16(p, CB, MB, False)
    p(f"""
    s_mov_b32 s40, {float_hex(VAR['margin'])}
    v_mov_b32 v{TM}, v{MA}
    v_mov_b32 v{TM+1}, v{MB}
    v_permlane32_swap_b32 v{TM}, v{MA}
    v_permlane32_swap_b32 v{TM+1}, v{MB}
    v_max_f32 v{MA}, v{MA}, v{TM}
    v_max_f32 v{MB}, v{MB}, v{TM+1}
    v_add_f32 v{MA}, s40, v{MA}
    v_add_f32 v{MB}, s40, v{MB}
    """)
    for r in range(16): p(f"v_sub_f32 v{CA+r}, 0, v{MA}")
    for r in range(12, 16): p(f"v_mov_b32 v{SB+r}, 0")
    p.add([mfma32(vr(SA,16), vr(KR[0],4), vr(QA,4), vr(CA,16))])
    for r in range(16): p(f"v_sub_f32 v{CB+r}, 0, v{MB}")
    p(f"s_waitcnt vmcnt(0)")
    p(f"v_mov_b32 v{TM}, 1\nds_write_b32 v{FL+1}, v{TM}")
    flag_wait(p, "L_att_f1", FL, 0, 1, TM)
    if VAR.get('wpf', 0):
        p(f"s_lshl_b32 s37, s25, 20\ns_lshl_b32 s38, s26, 2\ns_add_u32 s38, s38, s24\ns_lshl_b32 s38, s38, 13\ns_add_u32 s37, s37, s38")
        for k in range(8):
            if k == 4: p("s_add_u32 s37, s37, 4096")
            p(f"buffer_load_dwordx4 {vr(STT,4)}, v{GK}, s[16:19], s37 offen offset:{(k%4)*1024}")
    st(p, 1)
    p("s_mov_b32 s41, 0\ns_mov_b32 s45, 0x07060302")
    p(".p2align 6")
    p.label("L_att_loop")
    p.add(att_loop_body(U))
    p("s_cbranch_scc1 L_att_loop")
    st(p, 2)
    p(f"v_cvt_pk_bf16_f32 v{PB+6}, v{SB+12}, v{SB+13}\nv_cvt_pk_bf16_f32 v{PB+7}, v{SB+14}, v{SB+15}")
    p(f"""
    s_mul_i32 s33, s32, {88*1024}
    s_lshl_b32 s34, s27, 10
    s_add_u32 s33, s33, s34
    s_add_u32 s33, s33, {A3}
    """)
    p.add([mfma32(vr(OB,16), vr(V1R[3],4), vr(PB+4,4), vr(OB,16))])
    p("s_waitcnt lgkmcnt(0)")
    p("s_mov_b32 s36, 0")
    p.label("L_att_chk")
    p(f"v_mul_f32 v{TM}, 0, v{OA+8}")
    for r in range(8): p(f"v_fmac_f32 v{TM}, 0, v{OA+r}")
    p(f"v_cmp_u_f32 vcc, v{TM}, v{TM}")
    p("s_cbranch_vccnz L_att_slow")
    p.label("L_att_fin")
    p(f"v_rcp_f32 v{MA}, v{OA+8}")
    p("s_cmp_lg_u32 s36, 0")
    for r in range(8): p(f"v_mul_f32 v{OA+r}, v{OA+r}, v{MA}")
    for k in range(4): p(f"v_cvt_pk_bf16_f32 v{PA+k}, v{OA+2*k}, v{OA+2*k+1}")
    for k in range(4): p(f"v_min_u32 v{PA+k}, -2, v{PA+k}")
    p(f"buffer_store_dwordx4 {vr(PA,4)}, v{GK}, s[12:15], s33 offen")
    p("s_cbranch_scc1 L_att_done")
    p(f"s_mov_b32 s36, 1\ns_add_u32 s33, s33, {88*1024}")
    for r in range(9): p(f"v_mov_b32 v{OA+r}, v{OB+r}")
    for r in range(4): p(f"v_mov_b32 v{QA+r}, v{QB+r}")
    p("s_branch L_att_chk")
    p.label("L_att_done")
    st(p, 3)
    p("s_endpgm")
    p.label("L_att_sync2")
    p("s_cmp_eq_u32 s41, 2\ns_cbranch_scc1 L_att_sync3")
    if VAR['fuse3']:
        for r in range(4): p(f"v_mov_b32 v{STT+r}, -1")
        p(f"buffer_store_dwordx4 {vr(STT,4)}, v{GK}, s[12:15], s33 offen sc1\nbuffer_store_dwordx4 {vr(STT,4)}, v{GK}, s[12:15], s39 offen sc1")
        for k in range(4): p(f"buffer_store_dwordx4 {vr(STT,4)}, v{GK}, s[12:15], s{46+k//2} offen offset:{(k%2)*1024} sc1")
    if VAR.get('zpf'):
        p(f"s_lshl_b32 s37, s26, 2\ns_add_u32 s37, s37, s24\ns_mul_i32 s37, s37, {28*1024}\ns_add_u32 s37, s37, {Z2F}\nv_lshlrev_b32 v{PFA}, 7, v1")
        for k in range(4):
            if k == 3: p("s_mov_b32 exec_hi, 0")
            p(f"buffer_load_dword v{PF}, v{PFA}, s[12:15], s37 offen")
            if k < 3: p("s_add_u32 s37, s37, 8192")
        p("s_mov_b64 exec, -1")
    flag_wait(p, "L_att_f2", FL, 48, 1, TM)
    p("s_branch L_att_sync2_ret")
    p.label("L_att_sync3")
    if VAR['fuse3']:
        p(f"v_mov_b32 v{TM}, 1\ns_waitcnt vmcnt(0)\nbuffer_store_dword v{TM}, off, s[12:15], s35 sc1\nbuffer_store_dword v{TM}, off, s[12:15], s42 sc1\nds_write_b32 v{FL+1}, v{TM} offset:64")
    p("s_branch L_att_sync2_ret")
    p.label("L_att_slow")
    p(f"v_mov_b32 v{MA}, 0xff800000\ns_mov_b32 s41, 0\ns_mov_b32 s37, s30")
    p.label("L_att_sl1")
    p(f"buffer_load_dwordx4 {vr(KR[0],4)}, v{GK}, s[12:15], s37 offen")
    p("s_waitcnt vmcnt(0)")
    p.add([mfma32(vr(SA,16), vr(KR[0],4), vr(QA,4), "0")])
    max16(p, SA, MA, False)
    p(f"s_add_u32 s37, s37, {KVT}\ns_add_u32 s41, s41, 1\ns_cmp_lt_u32 s41, 64\ns_cbranch_scc1 L_att_sl1")
    p(f"v_mov_b32 v{TM}, v{MA}\nv_permlane32_swap_b32 v{TM}, v{MA}\nv_max_f32 v{MA}, v{MA}, v{TM}")
    for r in range(16): p(f"v_sub_f32 v{CA+r}, 0, v{MA}\nv_mov_b32 v{OA+r}, 0")
    p("s_mov_b32 s41, 0\ns_mov_b32 s37, s30")
    p.label("L_att_sl2")
    p(f"buffer_load_dwordx4 {vr(KR[0],4)}, v{GK}, s[12:15], s37 offen")
    p(f"buffer_load_dwordx4 {vr(V0R[0],4)}, v{GV0}, s[12:15], s37 offen")
    p(f"buffer_load_dwordx4 {vr(V1R[0],4)}, v{GV1}, s[12:15], s37 offen")
    p("s_waitcnt vmcnt(0)")
    p.add([mfma32(vr(SA,16), vr(KR[0],4), vr(QA,4), vr(CA,16))])
    for k in range(16): p(f"v_exp_f32 v{SA+k}, v{SA+k}")
    for k in range(8): p(f"v_cvt_pk_bf16_f32 v{PA+k}, v{SA+2*k}, v{SA+2*k+1}")
    p.add([mfma32(vr(OA,16), vr(V0R[0],4), vr(PA,4), vr(OA,16)), mfma32(vr(OA,16), vr(V1R[0],4), vr(PA+4,4), vr(OA,16))])
    p(f"s_add_u32 s37, s37, {KVT}\ns_add_u32 s41, s41, 1\ns_cmp_lt_u32 s41, 64\ns_cbranch_scc1 L_att_sl2")
    p("s_nop 15\ns_branch L_att_fin")

ACC = 4
NZF = 16
ZR = 132
WR = 196
VL = 228; VD = 229; VW = 230
G = 232
def acc(i, tt): return ACC + (i*2+tt)*16

def kv_rest(p, uniq):
    for i in range(6):
        p("s_mov_b32 m0, s62")
        if i < 5: p("s_add_u32 s62, s62, 16384")
        else: p("s_cmp_eq_u32 s24, 3")
        for k in range(4):
            if i == 5 and k == 3: p(f"s_cbranch_scc1 L_g_kvdone{uniq}")
            p(f"buffer_load_dwordx4 v{VL}, s[12:15], s63 offen offset:{k*1024} lds", tag="kv")
        if i < 5: p("s_add_u32 s63, s63, 16384")
    p.label(f"L_g_kvdone{uniq}")

def flag_addr(p):
    p(f"""
    s_lshr_b32 s48, s26, 3
    s_lshl_b32 s47, s25, 2
    s_add_u32 s48, s48, s47
    s_lshl_b32 s48, s48, 7                 ; tb'*128
    s_lshl_b32 s47, s24, 5
    s_add_u32 s46, s48, s47
    s_mul_i32 s47, s24, 28
    s_add_u32 s48, s48, s47
    s_add_u32 s48, s48, {UFL-OFL}          ; u flags
    s_and_b32 s47, s26, 7
    s_lshl_b32 s47, s47, 7
    s_add_u32 s47, s47, {WFL-OFL}          ; W flags
    v_lshlrev_b32 v{G+5}, 2, v1
    v_mov_b32 v{G+6}, s48
    v_add_u32 v{G+7}, s48, v{G+5}
    v_cmp_gt_u32 vcc, 7, v1
    v_cndmask_b32 v{G+6}, v{G+6}, v{G+7}, vcc
    v_subrev_u32 v{G+5}, 128, v{G+5}
    v_add_u32 v{G+7}, s47, v{G+5}
    v_cmp_gt_u32 vcc, 64, v{G+5}
    v_cndmask_b32 v{G+6}, v{G+6}, v{G+7}, vcc
    v_subrev_u32 v{G+5}, 64, v{G+5}
    v_add_u32 v{G+7}, s46, v{G+5}
    v_cmp_gt_u32 vcc, 32, v{G+5}
    v_cndmask_b32 v{G+6}, v{G+6}, v{G+7}, vcc
    s_mov_b32 s48, {OFL}
    """)
def gen_gemm(p, st):
    p(f"""
    s_sub_u32 s24, s24, 4                  ; q = K quarter
    v_lshlrev_b32 v{VL}, 4, v1
    s_mul_i32 s63, s27, {KVH}
    s_lshl_b32 s62, s24, 12
    s_add_u32 s62, s62, 32768
    s_add_u32 s63, s63, s62
    s_add_u32 s63, s63, {KV + KVT + 1024}
    s_lshl_b32 s46, s24, 2
    s_add_u32 s46, s46, {LDS_FLAG}
    v_mov_b32 v{G+1}, s46
    v_mov_b32 v{G+3}, 1
    s_barrier
    """)
    kv_rest(p, "a")
    p(f"""
    s_cmp_ge_u32 s26, 28
    s_cbranch_scc1 L_idle
    s_setprio {VAR.get('prio_s', 3)}
    s_mul_i32 s30, s26, 9363
    s_lshr_b32 s30, s30, 16                ; j/7
    s_mul_i32 s31, s30, 7
    s_sub_u32 s31, s26, s31                ; fb = j%7
    s_lshl_b32 s32, s25, 2
    s_add_u32 s30, s30, s32                ; tb
    s_lshl_b32 s33, s31, 19
    s_add_u32 s33, s33, {Z2F}
    {"s_lshr_b32 s39, s24, 1" if VAR.get('pairk', 1) else "s_mov_b32 s39, s24"}
    s_lshl_b32 s34, s39, {18 if VAR.get('pairk', 1) else 17}
    s_add_u32 s33, s33, s34
    s_lshl_b32 s35, s30, 18
    s_lshl_b32 s34, s39, {11 if VAR.get('pairk', 1) else 10}
    s_add_u32 s35, s35, s34
    {"s_and_b32 s39, s24, 1" if VAR.get('pairk', 1) else "s_mov_b32 s39, 0"}
    s_lshl_b32 s34, s39, 13
    s_add_u32 s33, s33, s34
    s_lshl_b32 s34, s39, 6
    s_add_u32 s35, s35, s34
    {"s_add_u32 s61, s30, s31" if VAR.get('grot', 0) else "s_mov_b32 s61, 0"}
    s_and_b32 s61, s61, 3
    s_lshl_b32 s34, s61, 15
    s_add_u32 s33, s33, s34
    s_lshl_b32 s34, s61, 8
    s_add_u32 s35, s35, s34
    s_lshl_b32 s61, s61, 1
    s_sub_u32 s61, 6, s61
    s_lshl_b32 s36, s24, 13
    s_add_u32 s36, s36, {LDS_STG}
    s_add_u32 s37, s36, 4096
    """)
    for i in range(4):
        p(f"s_add_u32 s38, s24, {i}\ns_and_b32 s38, s38, 3\ns_lshl_b32 s38, s38, 10\ns_add_u32 s{52+i}, s33, s38")
        p(f"s_add_u32 s{56+i}, s35, {i*(65536-1024)}")
    p(f"""
    v_lshrrev_b32 v2, 2, v1
    v_lshlrev_b32 v2, 12, v2
    v_lshrrev_b32 v3, 4, v1
    v_xor_b32 v3, v3, v1
    v_and_b32 v3, 3, v3
    v_lshl_add_u32 v{VD}, v3, 4, v2
    """)
    def dma(b):
        out = [I(f"s_mov_b32 m0, s{36 + b%2}"), I("s_nop 0")]
        for k in range(4):
            out.append(I(f"buffer_load_dwordx4 v{VD}, s[16:19], s{56+k} offen offset:{k*1024} lds", tag=f"d{b}"))
            out.append(I(f"s_add_u32 s{56+k}, s{56+k}, {128 if VAR.get('pairk', 1) else 64}"))
        return out
    def zload(n):
        i = n % 4
        return [I(f"buffer_load_dwordx4 {vr(ZR + (n%NZF)*4, 4)}, v{VL}, s[12:15], s{52+i} offen", tag=f"z{n}"),
                I(f"s_add_u32 s{52+i}, s{52+i}, {12288 if (VAR.get('pairk', 1) and (n//4) % 2 == 1) else 4096}")]
    p.add(dma(0))
    for n in range(8): p.add(zload(n))
    if VAR.get('kvearly', 1):
        p.wait(vm="kv"); p(f"ds_write_b32 v{G+1}, v{G+3} offset:48")
    p.add(dma(1))
    for n in range(8, 16): p.add(zload(n))
    if VAR.get('gpf'):
        p(f"s_lshl_b32 s38, s26, 2\ns_add_u32 s38, s38, s24\ns_mul_i32 s38, s38, 9472\ns_lshl_b32 s39, s25, 20\ns_add_u32 s38, s38, s39")
        for k in range(10):
            if k in (4, 8): p("s_add_u32 s38, s38, 4096")
            p(f"buffer_load_dwordx4 {vr(244,4)}, v{VL}, s[16:19], s38 offen offset:{(k%4)*1024}")
    p(f"s_setprio 3\nv_and_b32 v2, 31, v1")
    bitswap23(p, 2, 2, 3)
    p(f"""
    v_lshrrev_b32 v3, 2, v2
    v_lshrrev_b32 v{VW}, 5, v1
    v_xor_b32 v3, v3, v{VW}
    v_and_b32 v3, 3, v3
    v_lshlrev_b32 v3, 4, v3
    v_lshl_add_u32 v{VW}, v2, 6, v3
    v_add_u32 v{VW}, s36, v{VW}
    v_xor_b32 v{VW+1}, 32, v{VW}
    """)
    p(f"s_setprio {VAR['prio_g']}")
    st(p, 1)
    NB = 16
    def wread(b):
        return [I(f"ds_read_b128 {vr(WR + ((b%2)*4+u*2+tt)*4, 4)}, v{VW+u} offset:{(b%2)*4096 + tt*2048}", tag=f"w{b}", needs=[f"d{b}"]) for u in range(2) for tt in range(2)]
    def block(b, first=False, dma_on=True, z_on=True, w_on=True):
        o = [W(lg=f"w{b}")]
        if dma_on: o += dma(b+2)
        for u in range(2):
            s = 2*b+u
            o.append(W(vm=[f"z{4*s+3}"] + ([f"d{b+1}"] if (u == 1 and w_on) else [])))
            for i in range(4):
                n = 4*s+i
                for tt in range(2):
                    c = "0" if (first and u == 0) else vr(acc(i,tt),16)
                    o.append(mfma32(vr(acc(i,tt),16), vr(ZR+(n%NZF)*4,4), vr(WR+((b%2)*4+u*2+tt)*4,4), c))
                if u == 1 and i == 0 and w_on: o += wread(b+1)
            if z_on:
                for i in range(4): o += zload(4*s+i+NZF)
        return o
    p.wait(vm="kv"); p(f"ds_write_b32 v{G+1}, v{G+3} offset:48")
    p.wait(vm="d0"); p.add(wread(0))
    p.add(block(0, first=True)); p.add(block(1))
    p("s_mov_b32 s60, 0")
    p.label("L_g_loop")
    if VAR.get('grot', 0):
        p("s_cmp_eq_u32 s60, s61\ns_cselect_b32 s66, 0x20000, 0\ns_cselect_b32 s67, 0x400, 0")
        for i in range(4): p(f"s_sub_u32 s{52+i}, s{52+i}, s66\ns_sub_u32 s{56+i}, s{56+i}, s67")
    p.add(block(2)); p.add(block(3))
    p("s_add_u32 s60, s60, 1\ns_cmp_lt_u32 s60, 6\ns_cbranch_scc1 L_g_loop")
    p.add(block(4, dma_on=False, z_on=False)); p.add(block(5, dma_on=False, z_on=False, w_on=False))
    st(p, 2)
    p(f"s_setprio {VAR.get('prio_e', 3)}")
    p(f"""
    s_lshl_b32 s38, s30, 1
    s_mul_i32 s39, s38, {56*1024}
    s_lshl_b32 s40, s31, 2
    s_add_u32 s40, s40, s24
    s_lshl_b32 s41, s40, 11
    s_add_u32 s39, s39, s41
    s_add_u32 s39, s39, {Z1F}
    s_add_u32 s42, s39, {56*1024}
    s_mul_i32 s43, s38, {88*1024}
    s_add_u32 s43, s43, s41
    s_add_u32 s43, s43, {A3 + 32*1024}
    s_add_u32 s44, s43, {88*1024}
    s_lshl_b32 s45, s30, 7
    v_lshlrev_b32 v2, 1, v2
    """)
    Z = ZR
    if VAR['fuse3']:
        flag_addr(p)
        p(f"buffer_load_dword v{G+5}, v{G+6}, s[12:15], s48 offen sc1", tag="z1")
    p(f"buffer_load_dwordx4 {vr(Z,4)}, v{VL}, s[12:15], s39 offen", tag="z1")
    p(f"buffer_load_dwordx4 {vr(Z+4,4)}, v{VL}, s[12:15], s39 offen offset:1024", tag="z1")
    p(f"buffer_load_dwordx4 {vr(Z+8,4)}, v{VL}, s[12:15], s42 offen", tag="z1")
    p(f"buffer_load_dwordx4 {vr(Z+12,4)}, v{VL}, s[12:15], s42 offen offset:1024", tag="z1")
    p(f"buffer_load_ushort v{Z+16}, v2, s[20:23], s45 offen", tag="z1")
    p(f"buffer_load_ushort v{Z+17}, v2, s[20:23], s45 offen offset:64", tag="z1")
    p(f"""
    v_add_u32 v{G}, s36, v{VL}
    """)
    for r in range(1, 4):
        if r > 1:
            p(f"s_add_u32 s47, s24, {r-1}\ns_and_b32 s47, s47, 3\ns_lshl_b32 s47, s47, 2\ns_add_u32 s47, s47, {LDS_FLAG}\nv_mov_b32 v{G+2}, s47")
            spin1(p, f"L_g_ack{r}", G+2, 32, r-1, G+3)
        for k in range(8):
            p(f"ds_write_b128 v{G}, {vr(acc(r,0)+4*k, 4)} offset:{k*1024}")
        p(f"v_mov_b32 v{G+3}, {r}\ns_waitcnt lgkmcnt(0)\nds_write_b32 v{G+1}, v{G+3} offset:16")
        p(f"s_add_u32 s47, s24, {4-r}\ns_and_b32 s47, s47, 3\ns_lshl_b32 s48, s47, 2\ns_add_u32 s48, s48, {LDS_FLAG}\nv_mov_b32 v{G+2}, s48\ns_lshl_b32 s47, s47, 13\ns_add_u32 s47, s47, {LDS_STG}\nv_add_u32 v{G+4}, s47, v{VL}")
        spin1(p, f"L_g_dat{r}", G+2, 16, r, G+3)
        T = acc(r, 0)
        for k in range(8):
            p(f"ds_read_b128 {vr(T+4*k,4)}, v{G+4} offset:{k*1024}", tag=f"r{k}")
        for k in range(8):
            p.wait(lg=f"r{k}")
            for e in range(4): p(f"v_add_f32 v{acc(0,0)+4*k+e}, v{acc(0,0)+4*k+e}, v{T+4*k+e}")
        if r < 3:
            p(f"v_mov_b32 v{G+3}, {r}\nds_write_b32 v{G+1}, v{G+3} offset:32")
    if VAR['fuse3']: spin1(p, "L_g_pf", G+1, 64, 1, G+3)
    p.wait(vm="z1")
    T = acc(1, 0)
    p(f"v_lshlrev_b32 v{Z+16}, 16, v{Z+16}\nv_lshlrev_b32 v{Z+17}, 16, v{Z+17}")
    for tt in range(2):
        a = acc(0, tt)
        for r in range(16): p(f"v_add_f32 v{a+r}, v{a+r}, v{Z+16+tt}")
        for d in range(8):
            z = Z + tt*8 + d
            p(f"v_lshlrev_b32 v{T}, 16, v{z}\nv_and_b32 v{T+1}, 0xffff0000, v{z}")
            p(f"v_mul_f32 v{a+2*d}, v{a+2*d}, v{T}\nv_mul_f32 v{a+2*d+1}, v{a+2*d+1}, v{T+1}")
            p(f"v_cvt_pk_bf16_f32 v{T+8+tt*8+d}, v{a+2*d}, v{a+2*d+1}")
        for d in range(8): p(f"v_min_u32 v{T+8+tt*8+d}, -2, v{T+8+tt*8+d}")
        so = 43 + tt
        p(f"buffer_store_dwordx4 {vr(T+8+tt*8,4)}, v{VL}, s[12:15], s{so} offen")
        p(f"buffer_store_dwordx4 {vr(T+12+tt*8,4)}, v{VL}, s[12:15], s{so} offen offset:1024")
    if VAR.get('pf3'):
        p(f"s_lshl_b32 s38, s26, 2\ns_add_u32 s38, s38, s24\ns_mul_i32 s38, s38, 16384\ns_add_u32 s38, s38, {W3F}\nv_lshlrev_b32 v2, 7, v1")
        p(f"buffer_load_dword v3, v2, s[12:15], s38 offen\ns_add_u32 s38, s38, 8192\nbuffer_load_dword v3, v2, s[12:15], s38 offen")
    st(p, 3)
    if VAR['fuse3']:
        p(f"v_cmp_eq_u32 vcc, 0, v{G+5}\ns_cbranch_vccz L_g2\ns_branch L_g2w")
    else: p("s_endpgm")
    p.label("L_idle")
    if VAR.get('ipf', 1):
        if VAR.get('ipf', 1) == 2: p(f"s_waitcnt vmcnt(0)\nds_write_b32 v{G+1}, v{G+3} offset:48")
        p(f"""
        s_sub_u32 s34, s26, 28
        s_lshl_b32 s34, s34, 2
        s_add_u32 s34, s34, s24                 ; wave16
        v_lshlrev_b32 v2, 7, v1
        v_lshlrev_b32 v3, 12, v1
        s_lshl_b32 s56, s25, 20
        s_and_b32 s35, s34, 3
        s_lshl_b32 s35, s35, 18
        s_add_u32 s56, s56, s35
        s_lshr_b32 s35, s34, 2
        s_lshl_b32 s35, s35, 10
        s_add_u32 s56, s56, s35
        """)
        for g in range(8):
            p(f"buffer_load_dword v4, v3, s[16:19], s56 offen offset:{g*128}")
    p(f"""
    s_load_dwordx2 s[36:37], s[0:1], {KA_WO}
    s_load_dwordx2 s[38:39], s[0:1], {KA_WOUT}
    s_lshl_b32 s34, s25, 2
    s_add_u32 s34, s34, s26
    s_sub_u32 s34, s34, 28                      ; L
    s_mov_b32 s54, {896*1024}
    s_waitcnt vmcnt({8 if VAR.get('ipf', 1) else 0}) lgkmcnt(0)
    ds_write_b32 v{G+1}, v{G+3} offset:48
    s_waitcnt vmcnt(0)
    s_cmp_lt_u32 s34, 16
    s_cselect_b32 s52, s36, s38
    s_cselect_b32 s53, s37, s39
    s_cselect_b32 s54, {512*1024}, s54
    s_cselect_b32 s35, 8, 14
    s_cselect_b32 s67, 0, {32*1024}
    s_mov_b32 s55, 0x20000
    s_and_b32 s34, s34, 15
    s_mul_i32 s68, s24, s35
    s_lshl_b32 s69, s68, 14
    s_lshl_b32 s60, s34, 6
    s_add_u32 s69, s69, s60
    s_mul_i32 s60, s34, {88*1024}
    s_lshl_b32 s68, s68, 10
    s_add_u32 s60, s60, s68
    s_add_u32 s60, s60, s67
    s_add_u32 s60, s60, {W3F}
    v_lshrrev_b32 v2, 2, v1
    v_and_b32 v3, 3, v1
    v_lshlrev_b32 v3, 4, v3
    v_lshl_add_u32 v2, v2, 10, v3
    s_lshl_b32 s61, s24, 13
    s_add_u32 s61, s61, {LDS_STG}
    v_lshrrev_b32 v4, 5, v1
    v_lshlrev_b32 v3, 9, v4
    v_bfe_u32 v4, v1, 2, 2
    v_lshl_add_u32 v3, v4, 6, v3
    v_bfe_u32 v4, v1, 4, 1
    v_lshl_add_u32 v3, v4, 5, v3
    v_and_b32 v4, 1, v1
    v_lshl_add_u32 v3, v4, 4, v3
    v_bfe_u32 v4, v1, 1, 1
    v_lshl_add_u32 v3, v4, 3, v3
    v_add_u32 v3, s61, v3
    s_mov_b32 m0, s61
    s_mov_b32 s62, 0
    """)
    p.label("L_w3a")
    p("buffer_load_dwordx4 v2, s[52:55], s69 offen lds\ns_add_u32 s69, s69, 16384\ns_add_u32 s62, s62, 1\ns_waitcnt vmcnt(0)")
    p(f"ds_read_b64_tr_b16 v[8:9], v3\nds_read_b64_tr_b16 v[10:11], v3 offset:256\ns_waitcnt lgkmcnt(0)")
    p(f"buffer_store_dwordx4 v[8:11], v{VL}, s[12:15], s60 offen\ns_add_u32 s60, s60, 1024\ns_cmp_lt_u32 s62, s35\ns_cbranch_scc1 L_w3a")
    if not VAR['fuse3']:
        p("s_endpgm"); return
    p(f"""
    s_lshr_b32 s33, s34, 1
    s_lshl_b32 s33, s33, 7                      ; (nt>>1)*128
    s_and_b32 s34, s34, 1
    s_lshl_b32 s34, s34, 4
    s_add_u32 s33, s33, s34
    s_lshr_b32 s34, s67, 10                     ; 0 or 32
    s_add_u32 s33, s33, s34
    s_lshl_b32 s34, s24, 2
    s_add_u32 s33, s33, s34
    s_add_u32 s33, s33, {WFL}
    v_mov_b32 v{G+3}, 1
    s_waitcnt vmcnt(0)
    buffer_store_dword v{G+3}, off, s[12:15], s33 sc1
    """)
    flag_addr(p)
    p.label("L_g2w")
    p(f"s_mov_b32 s48, {OFL}")
    poll(p, "L_p0", 48, G+6, None, G+5, sleep=32)
    gen_g2(p, st)


FA = 4
FW = 68
FX = 132
FR = 180
FO_ = 180
FL_ = 244; FO = 245; FT = 246
def poll(p, name, soff, voff, mask_hi_lo, tmp, bad=0, sleep=None):
    p(f"s_mov_b32 s47, 0")
    p.label(name)
    p(f"buffer_load_dword v{tmp}, v{voff}, s[12:15], s{soff} offen sc1\ns_add_u32 s47, s47, 1\ns_waitcnt vmcnt(0)")
    p(f"v_cmp_eq_u32 vcc, {bad}, v{tmp}\ns_cbranch_vccz {name}_ok\ns_cmp_gt_u32 s47, 0x40000\ns_cbranch_scc1 {name}_ok\ns_sleep {sleep or VAR.get('psleep', 16)}\ns_branch {name}")
    p.label(name + "_ok")
def gen_g2(p, st):
    p.label("L_g2")
    p(f"""
    v_mov_b32 v{FL_}, v{VL}
    s_load_dwordx2 s[6:7], s[0:1], {KA_X}
    s_load_dwordx2 s[8:9], s[0:1], {KA_OUT}
    s_setprio 3
    s_lshr_b32 s27, s26, 3
    s_lshl_b32 s28, s25, 2
    s_add_u32 s27, s27, s28                ; tb
    s_and_b32 s28, s26, 7                  ; nb
    s_and_b32 s29, s24, 1
    s_lshr_b32 s30, s24, 1
    s_lshl_b32 s32, s27, 1
    s_add_u32 s33, s32, s29
    s_xor_b32 s34, s33, 1
    s_lshl_b32 s32, s28, 1
    s_add_u32 s35, s32, s30
    s_xor_b32 s36, s35, 1
    s_mul_i32 s40, s33, {88*1024}
    s_mul_i32 s41, s34, {88*1024}
    s_mul_i32 s42, s35, {88*1024}
    s_mul_i32 s43, s36, {88*1024}
    s_add_u32 s40, s40, {A3}
    s_add_u32 s41, s41, {A3}
    s_add_u32 s42, s42, {W3F}
    s_add_u32 s43, s43, {W3F}
    s_mul_i32 s31, s24, {14*1024}
    s_add_u32 s31, s31, {32*1024}
    s_lshl_b32 s32, s24, 13
    s_lshl_b32 s44, s33, 15
    s_lshl_b32 s45, s35, 6
    s_add_u32 s44, s44, s45
    s_mov_b32 s49, 0
    """)
    p.label("L_g2_redo")
    for i in range(4):
        p(f"s_add_u32 s{52+i}, s{40+i}, s31\ns_add_u32 s{56+i}, s{40+i}, s32")
    for s_ in range(14):
        if s_ and s_ % 4 == 0: p("s_add_u32 s54, s54, 4096\ns_add_u32 s55, s55, 4096")
        for i in range(2):
            p(f"buffer_load_dwordx4 {vr(FW+(s_*2+i)*4,4)}, v{FL_}, s[12:15], s{54+i} offen offset:{(s_%4)*1024} sc1")
    st(p, 8)
    p(f"""
    s_min_u32 s46, s52, s53
    s_min_u32 s45, s56, s57
    v_lshrrev_b32 v2, 1, v1
    v_min_u32 v{FT+2}, 13, v2
    v_min_u32 v{FT+1}, 7, v2
    v_and_b32 v3, 1, v1
    v_mul_u32_u24 v3, {88*1024}, v3
    v_add_u32 v3, 1020, v3
    v_lshl_add_u32 v{FT+2}, v{FT+2}, 10, v3
    v_lshl_add_u32 v{FT+1}, v{FT+1}, 10, v3
    v_and_b32 v2, 31, v1
    """)
    bitswap23(p, 2, 2, 3)
    p(f"v_lshrrev_b32 v3, 5, v1\nv_lshlrev_b32 v3, 4, v3\nv_lshl_add_u32 v{FO}, v2, 10, v3\nv_mov_b32 v{FT+5}, 0\ns_waitcnt lgkmcnt(0)")
    srd(p, 16, 6, 2048*1024); srd(p, 20, 8, 2048*1024)
    st(p, 9)
    poll(p, "L_p1", 46, FT+2, None, FT+4, bad=-1)
    st(p, 4)
    p(f"s_setprio {VAR.get('prio_u', 3)}")
    NR = 8
    def ld(s):
        o = []
        if s and s % 4 == 0: o += [I(f"s_add_u32 s{52+i}, s{52+i}, 4096") for i in range(2)]
        for i in range(2):
            o.append(I(f"buffer_load_dwordx4 {vr(FR+((s%NR)*2+i)*4,4)}, v{FL_}, s[12:15], s{52+i} offen offset:{(s%4)*1024} sc1", tag=f"g{s}"))
        return o
    for s_ in range(NR): p.add(ld(s_))
    for s_ in range(14):
        p.wait(vm=f"g{s_}")
        for n_, (a, b) in enumerate(((0,0), (0,1), (1,0), (1,1))):
            d = vr(FA + (a*2+b)*16, 16)
            p.add([mfma32(d, vr(FW+(s_*2+a)*4,4), vr(FR+((s_%NR)*2+b)*4,4), "0" if s_ == 0 else d)])
            r0 = FR+(s_%NR)*8+2*n_
            p(f"v_max3_u32 v{FT+5}, v{FT+5}, v{r0}, v{r0+1}")
        if s_+NR < 14: p.add(ld(s_+NR))
        if s_ >= 6:
            k = s_-6
            for i in range(2):
                p(f"s_add_u32 s47, s{58+i}, {(k//4)*4096}")
                p(f"buffer_load_dwordx4 {vr(FW+(k*2+i)*4,4)}, v{FL_}, s[12:15], s47 offen offset:{(k%4)*1024} sc1", tag="wo")
    p(f"buffer_load_dwordx4 {vr(FX,4)}, v{FO}, s[16:19], s44 offen", tag="x")
    p(f"buffer_load_dwordx4 {vr(FX+4,4)}, v{FO}, s[16:19], s44 offen offset:32", tag="x")
    p(f"s_setprio 3\nv_cmp_eq_u32 vcc, -1, v{FT+5}\ns_cbranch_vccnz L_g2_again")
    p.label("L_g2_go")
    p.wait(vm="x")
    for d_ in range(7, -1, -1):
        p(f"v_and_b32 v{FX+8+2*d_+1}, 0xffff0000, v{FX+d_}\nv_lshlrev_b32 v{FX+8+2*d_}, 16, v{FX+d_}")
    st(p, 5)
    p("s_barrier")
    p("s_add_u32 s58, s56, 4096\ns_add_u32 s59, s57, 4096\ns_mov_b32 s49, 0")
    p.label("L_p3")
    poll(p, "L_p2", 45, FT+1, None, FT+4, bad=-1, sleep=VAR.get('p3sleep', 4))
    for s_ in range(8):
        for i in range(2):
            p(f"buffer_load_dwordx4 {vr(FO_+(s_*2+i)*4,4)}, v{FL_}, s[12:15], s{56+i+2*(s_//4)} offen offset:{(s_%4)*1024} sc1", tag=f"o{s_}")
    p(f"v_mov_b32 v{FT+4}, 0\ns_add_u32 s49, s49, 1")
    for s_ in range(8):
        p.wait(vm=f"o{s_}")
        for k in range(0, 8, 2): p(f"v_max3_u32 v{FT+4}, v{FT+4}, v{FO_+8*s_+k}, v{FO_+8*s_+k+1}")
    p(f"v_cmp_eq_u32 vcc, -1, v{FT+4}\ns_cbranch_vccz L_p3_ok\ns_cmp_lt_u32 s49, 64\ns_cbranch_scc1 L_p3")
    p.label("L_p3_ok")
    st(p, 6)
    for i in range(1, 4):
        p(f"s_xor_b32 s46, s24, {i}\ns_mul_i32 s46, s46, 12288\ns_add_u32 s46, s46, {(i-1)*4096}\nv_add_u32 v{FT+i}, s46, v{FL_}")
    p(f"s_mul_i32 s46, s24, 12288\nv_add_u32 v{FT}, s46, v{FL_}")
    for s_ in range(8):
        order = ((0,0), (0,1), (1,0), (1,1)) if s_ < 7 else ((0,1), (1,0), (1,1), (0,0))
        for (a, b) in order:
            d = vr(FA + (a*2+b)*16, 16)
            p.add([mfma32(d, vr(FW+(s_*2+a)*4,4), vr(FO_+(s_*2+b)*4,4), d)])
    for i in range(1, 4):
        for k in range(4): p(f"ds_write_b128 v{FT+i}, {vr(FA+i*16+4*k,4)} offset:{k*1024}")
    for r in range(16): p(f"v_add_f32 v{FA+r}, v{FA+r}, v{FX+8+r}")
    p("s_waitcnt lgkmcnt(0)\ns_barrier")
    for k in range(12): p(f"ds_read_b128 {vr(FA+16+4*k,4)}, v{FT} offset:{k*1024}", tag=f"r{k}")
    for k in range(12):
        p.wait(lg=f"r{k}")
        for e in range(4): p(f"v_add_f32 v{FA+(4*k+e)%16}, v{FA+(4*k+e)%16}, v{FA+16+4*k+e}")
    for d in range(8): p(f"v_cvt_pk_bf16_f32 v{FX+d}, v{FA+2*d}, v{FA+2*d+1}")
    p(f"buffer_store_dwordx4 {vr(FX,4)}, v{FO}, s[20:23], s44 offen")
    p(f"buffer_store_dwordx4 {vr(FX+4,4)}, v{FO}, s[20:23], s44 offen offset:32")
    st(p, 7)
    if st.on and VAR.get('dbg') is not None:
        D = VAR['dbg']
        p(f"s_cmp_lg_u32 s2, {D}\ns_cbranch_scc1 L_end\ns_cmp_lg_u32 s24, 0\ns_cbranch_scc1 L_end")
        p(f"s_load_dwordx2 s[6:7], s[0:1], {KA_DBG}\ns_waitcnt vmcnt(0)")
        sel = [(0,0,15),(0,0,1),(0,0,5),(0,0,7),(0,0,9),(1,0,15),(1,0,1),(1,0,2),(1,0,3),(1,4,1),(1,4,2),(1,4,3),(1,4,4),(1,4,5),(1,4,6),(1,4,7)]
        for i, (k, w, sl) in enumerate(sel):
            off = STAMP + k*0x80000 + (D*16 + w)*128 + sl*8 + 4
            p(f"v_mov_b32 v3, {off:#x}\nbuffer_load_dword v{100+i}, v3, s[12:15], 0 offen sc1")
        p("s_waitcnt vmcnt(0) lgkmcnt(0)")
        srd(p, 16, 6, 256)
        for i in range(16):
            p(f"v_sub_u32 v2, v{100+i}, v100\nbuffer_store_dword v2, off, s[16:19], 0 offset:{4*i}")
    p("s_endpgm")
    p.label("L_g2_again")
    p("s_add_u32 s49, s49, 1\ns_cmp_gt_u32 s49, 64\ns_cbranch_scc1 L_g2_go\ns_waitcnt vmcnt(0)\ns_branch L_g2_redo")

def gen_k2(with_gemm=True, with_att=True, stamp=False):
    p = Prog()
    entry_stamp(p, stamp)
    p(f"""
    s_cmp_ge_u32 s2, 256
    s_cbranch_scc1 L_end
    s_load_dwordx2 s[4:5], s[0:1], {KA_WS}
    s_load_dwordx4 s[8:11], s[0:1], {KA_WSP}
    v_and_b32 v1, 63, v0
    v_lshrrev_b32 v2, 6, v0
    v_readfirstlane_b32 s24, v2
    s_and_b32 s25, s2, 7
    s_lshr_b32 s26, s2, 3
    s_lshr_b32 s27, s26, 3
    s_lshl_b32 s28, s25, 2
    s_add_u32 s27, s27, s28                ; head
    s_and_b32 s28, s26, 7                  ; qb
    v_mov_b32 v2, 0
    v_lshlrev_b32 v3, 2, v1
    v_add_u32 v3, {LDS_FLAG}, v3
    ds_write_b32 v3, v2
    s_mov_b32 s50, s24
    s_waitcnt lgkmcnt(0)
    """)
    srd(p, 12, 4, WS_USED); srd(p, 16, 8, 2048*2048*2); srd(p, 20, 10, 4096)
    st0 = (Stamper(stamp and not SOLO, 50, 252, kid=1) if not SOLO else Stamper(stamp, 50, 252))
    st0(p, 0); entry_store(p, st0)
    p("s_cmp_ge_u32 s24, 4\ns_cbranch_scc1 L_gemm")
    if with_att: gen_attention(p, (Stamper(stamp and not SOLO, 50, 252, kid=1) if not SOLO else Stamper(stamp, 50, 252)))
    else: p("s_endpgm")
    p.label("L_gemm")
    if with_gemm: gen_gemm(p, (Stamper(stamp and not SOLO, 50, 252, kid=1) if not SOLO else Stamper(stamp, 50, 252)))
    p.label("L_end")
    p("s_endpgm")
    return p

def k2_paths(l):
    lab = {x.op: i for i, x in enumerate(l) if x.kind == "label"}
    g = lab["L_gemm"]
    att = l[:g]
    end_att = next(i for i, x in enumerate(att) if x.kind == "misc" and x.base == "s_endpgm")
    head_end = next(i for i, x in enumerate(l) if x.kind == "branch" and x.target == "L_gemm")
    idle = lab["L_idle"]
    g2 = lab.get("L_g2", len(l))
    return [linearize(att[:end_att+1], {"L_att_loop": 3}), linearize(l[:head_end] + l[g:idle] + l[g2:], {"L_g_loop": 3}), l[idle:]]

K2_DESC = dict(name="k2_kernel", vgpr=256, sgpr=102, accum=256, grid=256, block=512, lds=K2_LDS)
if __name__ == "__main__":
    p = gen_k2()
    l, errs = finalize("k2", p, paths=k2_paths, verbose=True)
```

```python
import re

TRANS = ("v_exp_f32","v_log_f32","v_rcp_f32","v_rsq_f32","v_sqrt_f32","v_sin_f32","v_cos_f32","v_exp_f16","v_rcp_iflag_f32")
MFMA_PASSES = {"v_mfma_f32_32x32x16_bf16":8, "v_mfma_f32_16x16x32_bf16":4, "v_mfma_f32_4x4x4_16b_bf16":2}

def regs_of(tok):
    tok = tok.strip()
    tok = re.sub(r"^-", "", tok)
    m = re.match(r"^abs\((.*)\)$", tok) or re.match(r"^\|(.*)\|$", tok)
    if m: tok = m.group(1)
    m = re.match(r"^([vas])\[(\d+):(\d+)\]$", tok)
    if m: return [f"{m.group(1)}{i}" for i in range(int(m.group(2)), int(m.group(3))+1)]
    m = re.match(r"^([vas])(\d+)$", tok)
    if m: return [tok]
    if tok in ("vcc","exec"): return [tok+"_lo", tok+"_hi"]
    if tok in ("vcc_lo","vcc_hi","exec_lo","exec_hi","m0"): return [tok]
    return []

class I:
    def __init__(self, text, tag=None, needs=None, comment=None):
        self.text = text.strip()
        self.tag = tag
        self.needs = needs or []
        self.comment = comment
        self.kind = None
        self.rd = set(); self.wr = set()
        self.parse()
    def parse(self):
        t = self.text
        if t.endswith(":") : self.kind = "label"; self.op = t[:-1]; return
        if t.startswith("."): self.kind = "dir"; self.op = t; return
        parts = t.split(None, 1)
        op = parts[0]; self.op = op
        rest = parts[1] if len(parts) > 1 else ""
        ops = []; depth = 0; cur = ""
        for ch in rest:
            if ch in "[(": depth += 1
            if ch in "])": depth -= 1
            if ch == "," and depth == 0: ops.append(cur); cur = ""
            else: cur += ch
        if cur.strip(): ops.append(cur)
        mods = ""
        if ops:
            last = ops[-1].strip()
            sp = re.split(r"\s+", last, 1) if not last.startswith("abs(") else [last]
            ops[-1] = sp[0]
            if len(sp) > 1: mods = sp[1]
        ops = [o.strip() for o in ops]
        self.ops = ops; self.mods = mods
        R = lambda i: regs_of(ops[i]) if i < len(ops) else []
        base = re.sub(r"_(e32|e64|dpp|sdwa)$", "", op)
        self.base = base
        self.dpp = op.endswith("_dpp") or "row_" in mods or "quad_perm" in mods
        if base.startswith("v_mfma"):
            self.kind = "mfma"; self.passes = MFMA_PASSES[base]
            self.D = R(0); self.A = R(1); self.B = R(2); self.C = R(3)
            self.wr = set(self.D); self.rd = set(self.A + self.B + self.C)
        elif base.startswith("v_"):
            self.kind = "valu"
            self.trans = base in TRANS
            if base.startswith("v_cmp"):
                self.wr = set(R(0)); self.rd = set(sum([R(i) for i in range(1, len(ops))], []))
            elif base in ("v_readfirstlane_b32", "v_readlane_b32"):
                self.wr = set(R(0)); self.rd = set(sum([R(i) for i in range(1, len(ops))], []))
            elif (base.startswith("v_permlane") and "swap" in base) or base == "v_swap_b32":
                self.wr = set(R(0)+R(1)); self.rd = set(R(0)+R(1))
            elif base in ("v_add_co_u32","v_sub_co_u32","v_addc_co_u32","v_subb_co_u32"):
                self.wr = set(R(0)+R(1)); self.rd = set(sum([R(i) for i in range(2, len(ops))], []))
            else:
                self.wr = set(R(0)); self.rd = set(sum([R(i) for i in range(1, len(ops))], []))
                if base in ("v_fmac_f32","v_dot2c_f32_bf16","v_writelane_b32") or "UNUSED_PRESERVE" in mods or self.dpp:
                    self.rd |= set(R(0))
                if base == "v_cndmask_b32" and len(ops) == 3: self.rd |= {"vcc_lo","vcc_hi"}
        elif base.startswith("ds_"):
            self.kind = "ds"
            if base.startswith("ds_write2"): ops_ = ops
            if base.startswith("ds_read") or base.startswith("ds_bpermute") or base.startswith("ds_swizzle") or "_rtn" in base:
                self.wr = set(R(0)); self.rd = set(sum([R(i) for i in range(1, len(ops))], []))
            else:
                self.rd = set(sum([R(i) for i in range(len(ops))], []))
        elif base.startswith("buffer_") or base.startswith("global_"):
            self.kind = "vmem"
            allm = " " + mods + " "
            self.lds = " lds " in allm or "load_lds" in base
            if base in ("buffer_inv","buffer_wbl2"):
                pass
            elif "load" in base and not self.lds:
                self.wr = set(R(0)); self.rd = set(sum([R(i) for i in range(1, len(ops))], []))
            elif "atomic" in base and " sc0 " in allm:
                self.wr = set(R(0)); self.rd = set(sum([R(i) for i in range(len(ops))], []))
            else:
                self.rd = set(sum([R(i) for i in range(len(ops))], []))
                if self.lds: self.rd |= {"m0"}
            self.store = "store" in base
            self.wide = self.store and ("x4" in base or "x3" in base)
            if self.store:
                self.data = set(R(0)) if base.startswith("buffer_") else set(R(1))
        elif base.startswith("s_load") or base.startswith("s_memtime") or base.startswith("s_memrealtime") or base.startswith("s_buffer_load"):
            self.kind = "smem"
            self.wr = set(R(0)); self.rd = set(sum([R(i) for i in range(1, len(ops))], []))
        elif base == "s_waitcnt":
            self.kind = "wait"
            self.vm = self.lg = None
            m = re.search(r"vmcnt\((\d+)\)", t);  self.vm = int(m.group(1)) if m else None
            m = re.search(r"lgkmcnt\((\d+)\)", t); self.lg = int(m.group(1)) if m else None
        elif base == "s_nop":
            self.kind = "nop"; self.n = int(ops[0]) + 1
        elif base.startswith("s_cbranch") or base == "s_branch":
            self.kind = "branch"; self.target = ops[0]
        elif base in ("s_barrier","s_endpgm","s_setprio","s_sleep"):
            self.kind = "misc"
        elif base.startswith("s_"):
            self.kind = "salu"
            if base.startswith("s_cmp") or base.startswith("s_bitcmp"):
                self.rd = set(sum([R(i) for i in range(len(ops))], []))
            else:
                self.wr = set(R(0)); self.rd = set(sum([R(i) for i in range(1, len(ops))], []))
                if "saveexec" in base: self.wr |= {"exec_lo","exec_hi"}; self.rd |= {"exec_lo", "exec_hi"}
                if base in ("s_addk_i32","s_mulk_i32"): self.rd |= set(R(0))
        else:
            raise ValueError("unknown instr " + t)
    def states(self):
        if self.kind in ("label","dir"): return 0
        if self.kind == "nop": return self.n
        return 1
    def __repr__(self): return self.text

class W:
    def __init__(self, vm=(), lg=(), vm0=False, lg0=False):
        self.vm = [vm] if isinstance(vm, str) else list(vm)
        self.lg = [lg] if isinstance(lg, str) else list(lg)
        self.vm0 = vm0; self.lg0 = lg0
        self.kind = "symwait"

def need_states(p, c):
    n = 0
    if p.kind == "valu":
        vw = {r for r in p.wr if r[0] in "va" and not r.startswith("vcc")}
        sw = {r for r in p.wr if r[0] == "s" or r.startswith("vcc")}
        if c.kind == "mfma" and vw & c.rd: n = max(n, 2)
        if c.kind == "valu":
            if p.trans and not c.trans and (vw & c.rd): n = max(n, 1)
            if p.trans and c.trans and (vw & c.rd): n = max(n, 1)
            if c.base.startswith("v_permlane") and vw & c.rd: n = max(n, 2)
            if c.dpp and vw & c.rd: n = max(n, 2)
            if c.base in ("v_readfirstlane_b32","v_readlane_b32") and vw & c.rd: n = max(n, 1)
            if sw & c.rd: n = max(n, 4 if c.base in ("v_readlane_b32","v_writelane_b32") else 2)
            if ("sdwa" in p.op or "op_sel" in p.mods and not p.base.startswith("v_pk")) and vw & (c.rd | c.wr): n = max(n, 1)
        if c.kind == "vmem" and sw & c.rd: n = max(n, 5)
        if c.kind in ("salu","smem","branch") and sw & c.rd: n = max(n, 1)
    if p.kind == "mfma":
        P = p.passes
        D = set(p.D)
        big = {2:5, 4:8, 8:12}[P]
        if c.kind == "mfma":
            if D & (set(c.A) | set(c.B)): n = max(n, big)
            if D & set(c.C):
                if c.C == p.D and c.passes == P: n = max(n, 2 if P == 2 else 0)
                else: n = max(n, {2:4, 4:6, 8:10}[P])
            elif D & set(c.D):
                n = max(n, big)
        elif c.kind in ("valu","vmem","ds"):
            if D & (c.rd | c.wr): n = max(n, big)
        if c.kind == "valu" and set(p.C) & c.wr: n = max(n, {2:1, 4:3, 8:7}[P])
        if c.kind in ("ds","vmem") and set(p.C) & c.wr: n = max(n, {2:1, 4:3, 8:7}[P])
    if p.kind == "salu" and "m0" in p.wr and c.kind == "vmem" and getattr(c, "lds", False): n = max(n, 1)
    if p.kind == "vmem" and getattr(p, "wide", False):
        if p.data & c.wr: n = max(n, 2 if c.kind == "valu" else 1)
    if p.kind == "ds" and p.base in ("ds_write_b128","ds_write_b96"):
        pass
    return n

class Prog:
    def __init__(self):
        self.l = []
    def __call__(self, text, **kw):
        for line in text.strip().split("\n"):
            line = line.split(";")[0].strip()
            if line: self.l.append(I(line, **kw))
        return self
    def add(self, items):
        for x in items:
            if isinstance(x, str): self(x)
            else: self.l.append(x)
        return self
    def wait(self, **kw): self.l.append(W(**kw)); return self
    def label(self, n): self.l.append(I(n + ":")); return self

def vclass(x):
    if getattr(x, "store", False) or "atomic" in x.base: return "st"
    if " sc1" in x.text or " sc0" in x.text: return "sc"
    if "x4" not in x.base: return "small"
    return "ld"
def younger_same(q, i):
    c = vclass(q[i]); return sum(1 for y in q[i+1:] if vclass(y) == c and not getattr(y, "maybe", False))
def retire(q, n):
    return [x for i, x in enumerate(q) if younger_same(q, i) < n]

class Skips:
    def __init__(self, l):
        pos = {x.op: i for i, x in enumerate(l) if getattr(x, "kind", "") == "label"}
        self.l = l; self.snap = {}; self.tgt = {}
        for i, x in enumerate(l):
            if getattr(x, "kind", "") == "branch" and x.base != "s_branch" and pos.get(x.target, -1) > i:
                j = pos[x.target]
                ends = any(getattr(y, "kind", "") == "misc" and y.base == "s_endpgm" for y in l[i:j])
                pv = l[j-1]
                if getattr(pv, "kind", "") == "branch" and pv.base == "s_branch": ends = True
                nx = next((y for y in l[j:] if getattr(y, "kind", "") not in ("label", "dir")), None)
                if nx is None or (nx.kind == "misc" and nx.base == "s_endpgm"): ends = True
                if not ends:
                    self.tgt[i] = x.target
                    for y in l[i:j]:
                        if getattr(y, "kind", "") in ("vmem", "ds", "smem"): y.maybe = True
    def step(self, i, x, vmq, lgq):
        if i in self.tgt: self.snap.setdefault(self.tgt[i], []).append((list(vmq), list(lgq)))
        if getattr(x, "kind", "") == "label" and x.op in self.snap:
            for sv, sl in self.snap.pop(x.op):
                vmq = [y for y in sv if y not in vmq] + vmq
                lgq = [y for y in sl if y not in lgq] + lgq
        return vmq, lgq
def lg_younger(q, i): return sum(1 for y in q[i+1:] if not getattr(y, "maybe", False))
def lg_retire(q, n): return [x for i, x in enumerate(q) if lg_younger(q, i) < n]

def resolve_waits(l, reset_labels=()):
    vmq = []; lgq = []
    out = []
    sk = Skips(l)
    for i_, x in enumerate(l):
        vmq, lgq = sk.step(i_, x, vmq, lgq)
        if x.kind == "symwait":
            parts = []
            vm = None; lg = None
            if x.vm0: vm = 0
            for t in x.vm:
                idx = [i for i, q in enumerate(vmq) if q.tag == t]
                if idx:
                    n = min(younger_same(vmq, i) for i in idx)
                    vm = n if vm is None else min(vm, n)
            if x.lg0: lg = 0
            for t in x.lg:
                idx = [i for i, q in enumerate(lgq) if q.tag == t]
                if idx:
                    n = min(lg_younger(lgq, i) for i in idx)
                    if any(q.kind == "smem" for q in lgq): n = 0
                    lg = n if lg is None else min(lg, n)
            if vm is not None and vm >= len(vmq) and not x.vm0: vm = None
            if vm is not None:
                vm = min(vm, 63); parts.append(f"vmcnt({vm})"); vmq = retire(vmq, vm)
            if lg is not None:
                lg = min(lg, 15); parts.append(f"lgkmcnt({lg})"); lgq = lg_retire(lgq, lg)
            if parts: out.append(I("s_waitcnt " + " ".join(parts)))
            continue
        if x.kind == "wait":
            if x.vm is not None: vmq = retire(vmq, x.vm)
            if x.lg is not None: lgq = lg_retire(lgq, x.lg)
        if x.kind == "vmem": vmq.append(x)
        if x.kind in ("ds","smem"):
            cnt = sum(2 if q.kind == "smem" else 1 for q in lgq) + (2 if x.kind == "smem" else 1)
            if cnt > 14:
                if any(q.kind == "smem" for q in lgq): out.append(I("s_waitcnt lgkmcnt(0)")); lgq = []
                else: out.append(I("s_waitcnt lgkmcnt(12)")); lgq = lgq[len(lgq)-12:]
            lgq.append(x)
        out.append(x)
    return out

def pad_hazards(l, verbose=False):
    out = []
    WIN = 24
    npad = 0
    for c in l:
        if c.kind in ("label","dir"): out.append(c); continue
        need = 0; dist = 0
        for p in reversed(out):
            if dist > WIN: break
            if p.kind in ("label","dir"): continue
            if p.kind == "branch" and p.base == "s_branch": break
            if p.kind == "misc" and p.base == "s_endpgm": break
            n = need_states(p, c)
            if n > dist: need = max(need, n - dist)
            dist += p.states()
        if need:
            npad += need
            if verbose: print("pad", need, "before", c.text)
            while need > 0:
                k = min(need, 16); out.append(I(f"s_nop {k-1}")); need -= k
        out.append(c)
    return out, npad

def check_branch_hazards(l):
    labels = {x.op: i for i, x in enumerate(l) if x.kind == "label"}
    errs = []
    for i, b in enumerate(l):
        if b.kind != "branch" or b.target not in labels: continue
        before = [x for x in l[max(0, i-40):i+1] if x.kind not in ("label","dir")]
        after = []
        for x in l[labels[b.target]:labels[b.target]+60]:
            if x.kind in ("label","dir"): continue
            after.append(x)
            if x.kind == "branch" and x.base == "s_branch": break
        d_after = 0
        for c in after:
            dist = d_after
            for p in reversed(before):
                if dist > 24: break
                n = need_states(p, c)
                if n > dist: errs.append(f"branch hazard via {b.text}: {p.text} -> {c.text} need {n} have {dist}")
                dist += p.states()
            d_after += c.states()
            if d_after > 24: break
    return errs

def check_waits(seq):
    vmq = []; lgq = []; errs = []
    sk = Skips(seq)
    for i_, x in enumerate(seq):
        vmq, lgq = sk.step(i_, x, vmq, lgq)
        if x.kind in ("label","dir"): continue
        if x.kind == "wait":
            if x.vm is not None: vmq = retire(vmq, x.vm)
            if x.lg is not None:
                if any(q.kind == "smem" for q in lgq):
                    if x.lg == 0: lgq = []
                else: lgq = lg_retire(lgq, x.lg)
            continue
        touched = x.rd | x.wr
        for q in vmq + lgq:
            if q.wr & touched and not (q.kind == x.kind and not (q.wr & x.rd) and x.kind in ("vmem","ds")):
                errs.append(f"unwaited: {q.text}  -> {x.text}")
        for t in x.needs:
            if any(q.tag == t for q in vmq + lgq): errs.append(f"needs {t} outstanding at {x.text}")
        if x.kind == "vmem":
            vmq.append(x)
            if len(vmq) > 63 and not any(vclass(y) == "st" for y in vmq): errs.append("vmcnt overflow at " + x.text)
        if x.kind in ("ds","smem"):
            lgq.append(x)
            if sum(2 if q.kind == "smem" else 1 for q in lgq) > 15: errs.append("lgkmcnt overflow at " + x.text)
    return errs

def linearize(l, loops):
    out = []; i = 0
    labels = {x.op: k for k, x in enumerate(l) if x.kind == "label"}
    while i < len(l):
        x = l[i]
        if x.kind == "label" and x.op in loops:
            j = next(k for k in range(i, len(l)) if l[k].kind == "branch" and l[k].target == x.op)
            body = l[i:j+1]
            for _ in range(loops[x.op]): out += body
            i = j + 1
        else:
            out.append(x); i += 1
    return out

def interleave(main, fill, per_gap=None, start=0, is_anchor=lambda x: getattr(x, "kind", "") == "mfma" and x.passes == 8, budget=None):
    out = []; fi = 0; k = 0
    def cost(x):
        if getattr(x, "kind", "") == "valu" and x.trans: return 2
        if getattr(x, "kind", "") in ("symwait",): return 1
        return 1
    for x in main:
        out.append(x)
        if is_anchor(x):
            if k >= start:
                b = per_gap(k) if callable(per_gap) else per_gap
                while fi < len(fill) and b - cost(fill[fi]) >= 0:
                    b -= cost(fill[fi]); out.append(fill[fi]); fi += 1
            k += 1
    out += fill[fi:]
    return out

def render(l):
    s = []
    for x in l:
        if x.kind == "label": s.append(x.text)
        elif x.kind == "dir": s.append(x.text)
        else: s.append("    " + x.text)
    return "\n".join(s) + "\n"

def finalize(name, prog, loops=None, verbose=False, paths=None):
    l = resolve_waits(prog.l)
    l, npad = pad_hazards(l, verbose)
    errs = check_branch_hazards(l)
    seqs = paths(l) if paths else [linearize(l, loops or {})]
    for s in seqs: errs += check_waits(s)
    n_ins = sum(1 for x in l if x.kind not in ("label","dir"))
    print(f"[{name}] instrs={n_ins} nops_padded={npad} errs={len(errs)}")
    for e in errs[:30]: print("   ERR", e)
    return l, errs

def kernel_text(name, l, vgpr, sgpr, accum):
    s = f".globl {name}\n.p2align 8\n.type {name},@function\n{name}:\n" + render(l)
    return s

def descriptor(name, vgpr, sgpr, accum):
    return f""".p2align 6
.amdhsa_kernel {name}
  .amdhsa_next_free_vgpr {vgpr}
  .amdhsa_next_free_sgpr {sgpr}
  .amdhsa_accum_offset {accum}
  .amdhsa_group_segment_fixed_size 0
  .amdhsa_kernarg_size 88
  .amdhsa_user_sgpr_count 2
  .amdhsa_user_sgpr_kernarg_segment_ptr 1
  .amdhsa_system_sgpr_workgroup_id_x 1
  .amdhsa_float_denorm_mode_32 3
.end_amdhsa_kernel
"""
```

```python
from common import *
import struct, math
def fh(f): return hex(struct.unpack("<I", struct.pack("<f", f))[0])
K1_LDS = 163840
RING = 65536
BIAS = 3072
CNT = 3072
C0 = -2.0*math.sqrt(2.0/math.pi)*1.4426950408889634
A0, A1, A2, A3_ = 4, 20, 36, 52
LA = 2
WB = 68
CSF = 92
CSA = 100
T = 68
WC = 92; STQ = 96
SEL = 108; XC = 112
R1, RI, C0R, C1R = 116, 117, 118, 119
VXD = 116
VXR = 112
VL, VPI, VQ, VB = 120, 121, 122, 123
VA = 124
RR = 52
SX, Q0, Q1 = 52, 56, 60
VAR = dict(prio=True, per=1, rot=True, cpf=40960)
WI, WQ, XS = "s[16:19]", "s[20:23]", "s[24:27]"
SXE, SIE, SQE = 60, 64, 96

def dma1(lds_s, lds_c, sr, vo, sb, se, c, tag):
    return [I(f"s_add_u32 m0, s{lds_s}, {lds_c}"), I(f"s_add_u32 s69, s{sb}, s{se}"),
            I(f"buffer_load_dwordx4 v{vo}, {sr}, s69 offen offset:{c} lds" if False else f"s_add_u32 s69, s69, {c}"),
            I(f"buffer_load_dwordx4 v{vo}, {sr}, s69 offen lds", tag=tag)]
def E_addr(ks): return RING + ((ks//8)*24 + (ks%8)*3)*1024
def Z_addr(ks): return RING + ks*2048
def Q_addr(ks):
    if ks < 16: return RING + 65536 + ks*2048
    r = ks-16; return (r//4)*16384 + 8192 + (r%4)*2048
def dma_E(e):
    b = RING + e*24*1024
    return [dma1(58, b, WI, VPI, 80, SIE+e, 1792, f"E{e}"), dma1(58, b+1024, WI, VPI, 80, SIE+e, 1792+8*3584, f"E{e}"),
            dma1(58, b+2048, WQ, VQ, 81, SQE+e, 2048, f"E{e}")]
def dma_Z(e):
    b = RING + e*16384
    return [dma1(55, b, WI, VPI, 80, SIE+e, 0, f"Z{e}"), dma1(55, b+1024, WI, VPI, 80, SIE+e, 8*3584, f"Z{e}")]
def dma_Q(e):
    ls, b = (55, RING + 65536 + e*16384) if e < 2 else (54, (e-2)*32768 + 8192)
    return [dma1(ls, b, WQ, VQ, 82, SQE+e, 0, "Q"), dma1(ls, b+1024, WQ, VQ, 82, SQE+e, 8*3072, "Q")]
def x_dma(e):
    return [[I(f"s_add_u32 m0, s59, {(2*e % 4)*4096 + i*1024}"), I(f"s_add_u32 s69, s56, s{SXE+e}"),
             I(f"buffer_load_dwordx4 v{VXD+i}, {XS}, s69 offen lds", tag=f"X{e}")] for i in range(4)]
def flat(x): return sum(x, [])
def x_read(ks):
    return [I(f"ds_read_b128 {ar(4*ks,4)}, v{VXR+ks%4} offset:{((ks//4)%4)*4096}", tag=f"xr{ks}")]
class Addr:
    def __init__(self, base): self.base = base
    def off(self, addr, out, span=2048+1024+6*1024*2):
        if not (0 <= addr - self.base and addr - self.base + 1024 <= 65535):
            nb = addr if addr < self.base else addr
            d = (nb - self.base) & 0xffffffff
            out += [I(f"v_add_u32 v{VA+k}, {d:#x}, v{VA+k}") for k in range(4)]
            self.base = nb
        return addr - self.base
def tr_read(dst, areg, off, e2, tag):
    return [I(f"ds_read_b64_tr_b16 {vr(dst+2*e,2)}, v{areg} offset:{off+e2*e}", tag=tag) for e in range(2)]
def m16(d, b, first): return I(f"v_mfma_f32_16x16x32_bf16 {vr(d,4)}, {vr(SEL,4)}, {b}, {'0' if first else vr(d,4)}")
def stats_mfma(ks):
    x = 4*ks; z = ks == 0
    return [m16(SX, ar(x,4), z),
            I(f"v_mfma_f32_4x4x4_16b_bf16 {vr(Q0,4)}, {ar(x,2)}, {ar(x,2)}, {'0' if z else vr(Q0,4)}"),
            I(f"v_mfma_f32_4x4x4_16b_bf16 {vr(Q1,4)}, {ar(x+2,2)}, {ar(x+2,2)}, {'0' if z else vr(Q1,4)}")]
def wb(ks, ti): return WB + ((ks % (LA+1))*2 + ti)*4
def stl(st, k):
    q = Prog(); st(q, k); return q.l

def gemm_pass(accs, addr_of, base0, nori, tagp, e2, hooks=None, cs_tiles=None, stats=False):
    nt = len(accs)
    am = Addr(base0)
    def rd(ks, dst, regs, tag):
        o = []
        off = am.off(addr_of(ks), o)
        for ti in range(nt): o += tr_read(dst(ti), regs+ti, off, e2, tag)
        return o
    o = []
    for ks in range(LA): o += rd(ks, lambda ti: wb(ks,ti), VA, f"{tagp}{ks}")
    for ks in range(32):
        pre = W(lg=[f"{tagp}{ks}", f"xr{ks}"])
        mf = []
        for ti in range(nt):
            w = vr(wb(ks,ti),4); x = ar(4*ks,4); d = vr(accs[ti],16)
            mf.append(mfma32(d, x, w, "0" if ks == 0 else d) if nori else mfma32(d, w, x, "0" if ks == 0 else d))
        h0, h1, h2 = hooks(ks) if hooks else ([], [], [])
        post = list(h0)
        tail = []
        if ks % 4 == 0 and cs_tiles:
            post += rd(ks, lambda ti: CSF+4*ti, VA+2, f"c{tagp}{ks}")
        if ks+LA < 32: post += rd(ks+LA, lambda ti: wb(ks+LA,ti), VA, f"{tagp}{ks+LA}")
        post += h1
        if ks % 4 == 1 and cs_tiles:
            pre.lg.append(f"c{tagp}{ks-1}")
            for ti in range(nt): tail.append(m16(CSA+4*ti, vr(CSF+4*ti,4), ks == 1))
        if ks == 30 and cs_tiles:
            tail.append(I(f"v_lshl_add_u32 v3, v1, 2, s57"))
            for ti in range(nt): tail.append(I(f"ds_write_b32 v3, v{CSA+4*ti} offset:{cs_tiles[ti]*256}"))
        if stats: tail += stats_mfma(ks)
        tail += h2
        o += [pre] + mf[:1] + post + mf[1:] + tail
    return o

def phase1_hooks(st):
    sched = {}
    def spread(pcs, first, per):
        pcs = list(pcs); k = first
        while pcs:
            for _ in range(per):
                if pcs: sched.setdefault(k, []).append(pcs.pop(0))
            k += 1
    spread(dma_E(2) + dma_E(3), 0, 1)
    spread(x_dma(2) + dma_Z(0), 8-LA, VAR['per'])
    spread(x_dma(3) + dma_Z(1) + dma_Z(2), 16-LA, VAR['per'])
    spread(dma_Z(3), 24-LA, VAR['per'])
    def hooks(ks):
        e, r8 = divmod(ks, 8)
        h0 = []; h1 = []
        if r8 == 8-LA and e < 3:
            h0 = [W(vm=[f"X{e+1}", f"E{e+1}"], lg0=True), I("s_barrier")] + stl(st, 2+e)
        if r8 >= 8-LA and e < 3:
            k0 = 8*(e+1) + 2*(r8-(8-LA)); h1 += x_read(k0) + x_read(k0+1)
        if r8 < 4: h1 += x_read(8*e+4+r8)
        return h0, h1, flat(sched.get(ks, []))
    return hooks

def set_va(p, pair, base, mstride):
    sh = 7 if pair else 6
    p(f"""
    v_lshrrev_b32 v2, 5, v1
    v_lshlrev_b32 v{VA}, {sh+3}, v2
    v_bfe_u32 v3, v1, 2, 2
    v_lshl_add_u32 v{VA}, v3, {sh}, v{VA}
    v_bfe_u32 v3, v1, 4, 1
    v_lshl_add_u32 v{VA}, v3, 5, v{VA}
    v_and_b32 v3, 1, v1
    v_lshl_add_u32 v{VA}, v3, 4, v{VA}
    v_bfe_u32 v3, v1, 1, 1
    v_lshl_add_u32 v{VA}, v3, 3, v{VA}
    """)
    if pair: p(f"v_bfe_u32 v3, v1, 3, 1\nv_lshl_add_u32 v{VA}, v3, 6, v{VA}")
    p(f"""
    v_add_u32 v{VA}, {base}, v{VA}
    s_mul_i32 s34, s29, {mstride}
    v_xor_b32 v{VA+1}, 64, v{VA}
    v_add_u32 v{VA+2}, s34, v{VA}
    v_add_u32 v{VA+3}, s34, v{VA+1}
    """)

def corr_from(b, d, nori):
    o = [I(f"v_sub_f32 v{b}, 0, v{b}"),
         I(f"v_cvt_pk_bf16_f32 v{WC+1}, v{b}, 0"),
         I(f"v_lshlrev_b32 v{b+1}, 16, v{WC+1}"),
         I(f"v_sub_f32 v{b+1}, v{b}, v{b+1}"),
         I(f"v_cvt_pk_bf16_f32 v{WC}, v{b}, v{b+1}")]
    a_, b_ = (vr(XC,4), vr(WC,4)) if nori else (vr(WC,4), vr(XC,4))
    o.append(mfma32(vr(d,16), a_, b_, vr(d,16)))
    return o
def cs_reads(tiles, tag):
    o = [I(f"v_lshlrev_b32 v2, 2, v1")]
    for k, tl in enumerate(tiles):
        for w in range(4): o.append(I(f"ds_read_b32 v{T+4*k+w}, v2 offset:{w*16384 + tl*256}", tag=tag))
    return o
def cs_corr(accs, nori, tag):
    o = [I(f"v_mov_b32 v{WC+2}, 0"), I(f"v_mov_b32 v{WC+3}, 0"), W(lg=tag)]
    for k, d in enumerate(accs):
        b = T+4*k
        o += [I(f"v_add_f32 v{b}, v{b}, v{b+1}"), I(f"v_add_f32 v{b+2}, v{b+2}, v{b+3}"), I(f"v_add_f32 v{b}, v{b}, v{b+2}")]
        o += corr_from(b, d, nori)
    return o

def ln1_final(g, S, Q):
    o = Prog()
    o(f"""
    v_mul_f32 v{S}, {fh(1/512)}, v{S}
    v_cndmask_b32 v{S+1}, v{S}, 0, s[74:75]
    v_mul_f32 v{S+2}, v{S}, v{S}
    v_cvt_pk_bf16_f32 v{XC}, v{S+1}, v{S+1}
    v_fma_f32 v{Q}, v{Q}, s76, -v{S+2}
    v_and_b32 v{S+3}, 0xffff0000, v{XC}
    v_max_f32 v{Q}, 0, v{Q}
    v_sub_f32 v{S+3}, v{S+1}, v{S+3}
    v_add_f32 v{Q}, {fh(1e-5)}, v{Q}
    v_cvt_pk_bf16_f32 v{XC+1}, v{S+3}, 0
    v_rsq_f32 v{R1}, v{Q}
    v_mov_b32 v{XC+2}, 0
    v_mov_b32 v{XC+3}, 0
    """)
    rr = RR if g == 0 else A1
    tb = 4096 + 512*g
    o(f"""
    v_lshl_add_u32 v3, v{VB}, 2, s57
    ds_write_b32 v3, v{R1} offset:{tb}
    v_lshrrev_b32 v3, 5, v1
    v_lshl_add_u32 v3, v3, 5, s57
    s_waitcnt lgkmcnt(0)
    """)
    for k in range(4): o(f"ds_read_b128 {vr(rr+4*k,4)}, v3 offset:{tb + (k//2)*64 + (k%2)*16}", tag="rr")
    if g == 0:
        o(f"v_mov_b32 v{C0R}, {fh(C0)}")
    else:
        o(f"""
        v_sqrt_f32 v{RI}, v{Q}
        v_mul_f32 v{C0R}, {fh(C0)}, v{R1}
        v_mul_f32 v{C1R}, v{R1}, v{R1}
        v_mul_f32 v{C1R}, v{C1R}, v{C0R}
        v_mul_f32 v{C1R}, {fh(0.044715)}, v{C1R}
        """)
    return o.l

def gelu_T(a, P0):
    o = []
    for g in range(0, 16, 4):
        rs = range(g, g+4); tt = lambda r: T + (r % 4)
        o += [I(f"v_mul_f32 v{tt(r)}, v{a+r}, v{a+r}") for r in rs]
        o += [I(f"v_fma_f32 v{tt(r)}, v{tt(r)}, v{C1R}, v{C0R}") for r in rs]
        o += [I(f"v_mul_f32 v{tt(r)}, v{tt(r)}, v{a+r}") for r in rs]
        o += [I(f"v_exp_f32 v{tt(r)}, v{tt(r)}") for r in rs]
        o += [I(f"v_fma_f32 v{tt(r)}, v{tt(r)}, v{RI}, v{RI}") for r in rs]
        o += [I(f"v_rcp_f32 v{tt(r)}, v{tt(r)}") for r in rs]
        o += [I(f"v_mul_f32 v{a+r}, v{a+r}, v{tt(r)}") for r in rs]
        o += [I(f"v_cvt_pk_bf16_f32 v{P0+r//2}, v{a+r}, v{a+r+1}") for r in (g, g+2)]
    return o
def gelu_N(a):
    o = []
    for g in range(0, 16, 4):
        rs = range(g, g+4); tt = lambda r: T + (r % 4)
        o += [I(f"v_mul_f32 v{a+r}, v{a+r}, v{RR+r}") for r in rs]
        o += [I(f"v_mul_f32 v{tt(r)}, v{a+r}, v{a+r}") for r in rs]
        o += [I(f"v_fma_f32 v{tt(r)}, v{tt(r)}, s77, v{C0R}") for r in rs]
        o += [I(f"v_mul_f32 v{tt(r)}, v{tt(r)}, v{a+r}") for r in rs]
        o += [I(f"v_exp_f32 v{tt(r)}, v{tt(r)}") for r in rs]
        o += [I(f"v_add_f32 v{tt(r)}, 1.0, v{tt(r)}") for r in rs]
        o += [I(f"v_rcp_f32 v{tt(r)}, v{tt(r)}") for r in rs]
        o += [I(f"v_mul_f32 v{a+r}, v{a+r}, v{tt(r)}") for r in rs]
    return o

def z2_stats():
    o = []
    a0, a1 = A0, A1
    for hf in range(2):
        S1 = lambda r: T + 4 + r
        S2 = lambda r: T + 12 + r
        for r in range(8):
            R = hf*8 + r
            o.append(I(f"v_mul_f32 v{S2(r)}, v{a0+R}, v{a0+R}"))
            o.append(I(f"v_add_f32 v{S1(r)}, v{a0+R}, v{a1+R}"))
        for r in range(8): o.append(I(f"v_fmac_f32 v{S2(r)}, v{a1+hf*8+r}, v{a1+hf*8+r}"))
        for S in (S1, S2):
            for r in range(4): o.append(I(f"v_permlane16_swap_b32 v{S(r)}, v{S(r+4)}"))
        for S in (S1, S2):
            for r in range(4): o.append(I(f"v_add_f32 v{S(r)}, v{S(r)}, v{S(r+4)}"))
        for S in (S1, S2):
            for r in range(2): o.append(I(f"v_add_f32_dpp v{S(r+4)}, v{S(r)}, v{S(r)} row_ror:8 row_mask:0xf bank_mask:0x3"))
        for S in (S1, S2):
            for r in range(2): o.append(I(f"v_add_f32_dpp v{S(r+4)}, v{S(r+2)}, v{S(r+2)} row_ror:8 row_mask:0xf bank_mask:0xc"))
        for S in (S1, S2): o.append(I(f"v_add_f32_dpp v{S(0)}, v{S(4)}, v{S(4)} row_half_mirror row_mask:0xf bank_mask:0x5"))
        for S in (S1, S2): o.append(I(f"v_add_f32_dpp v{S(0)}, v{S(5)}, v{S(5)} row_half_mirror row_mask:0xf bank_mask:0xa"))
        for S in (S1, S2): o.append(I(f"v_add_f32_dpp v{S(0)}, v{S(0)}, v{S(0)} quad_perm:[1,0,3,2] row_mask:0xf bank_mask:0xf"))
        for k, S in enumerate((S1, S2)): o.append(I(f"v_add_f32_dpp v{STQ+2*hf+k}, v{S(0)}, v{S(0)} quad_perm:[2,3,0,1] row_mask:0xf bank_mask:0xf"))
    return o

def prio(p, n):
    if VAR['prio']: p(f"s_setprio {n}")

def gen_k1(stamp=False):
    p = Prog()
    st = Stamper(stamp, 28, 0)
    entry_stamp(p, stamp)
    p(f"""
    s_cmp_ge_u32 s2, 256
    s_cbranch_scc1 L_end
    s_load_dwordx4 s[4:7], s[0:1], {KA_X}
    s_load_dwordx2 s[8:9], s[0:1], {KA_WIN}
    s_load_dwordx2 s[50:51], s[0:1], {KA_WS}
    v_and_b32 v1, 63, v0
    v_lshrrev_b32 v2, 6, v0
    v_readfirstlane_b32 s28, v2                 ; wave 0..7
    s_and_b32 s29, s2, 7
    s_lshr_b32 s30, s2, 3
    s_and_b32 s31, s29, 1
    s_lshl_b32 s31, s31, 3
    s_and_b32 s32, s30, 7
    s_add_u32 s31, s31, s32                     ; rb
    s_lshr_b32 s32, s29, 1
    s_lshl_b32 s32, s32, 2
    s_lshr_b32 s33, s30, 3
    s_add_u32 s32, s32, s33                     ; cg
    v_lshrrev_b32 v2, 3, v1
    v_lshrrev_b32 v3, 4, v1
    v_xor_b32 v{VXD}, v3, v1
    v_and_b32 v{VXD}, 7, v{VXD}
    v_lshlrev_b32 v{VXD}, 4, v{VXD}
    v_lshl_add_u32 v{VXD}, v2, 10, v{VXD}
    v_and_b32 v3, 1, v3
    v_lshlrev_b32 v3, 2, v3
    v_xor_b32 v3, v3, v1
    v_and_b32 v3, 7, v3
    v_lshlrev_b32 v{VB}, 4, v3
    v_mul_u32_u24 v{VPI}, 3584, v2
    v_add_u32 v{VPI}, v{VPI}, v{VB}
    v_lshrrev_b32 v2, 2, v1
    v_and_b32 v3, 3, v1
    v_lshlrev_b32 v3, 4, v3
    v_mul_u32_u24 v{VQ}, 3072, v2
    v_add_u32 v{VQ}, v{VQ}, v3
    s_and_b32 s29, s28, 3                       ; m tile
    s_lshr_b32 s30, s28, 2                      ; group
    s_lshl_b32 s33, s31, 2
    s_add_u32 s33, s33, s29                     ; tt
    s_lshl_b32 s56, s33, 15
    s_lshl_b32 s34, s30, 7
    s_add_u32 s56, s56, s34
    s_lshl_b32 s57, s29, 14
    s_lshl_b32 s34, s30, 12
    s_add_u32 s59, s57, s34
    s_mul_i32 s58, s28, 3072
    s_lshl_b32 s55, s28, 11
    s_lshl_b32 s54, s30, 14
    s_lshl_b32 s34, s29, 11
    s_add_u32 s54, s54, s34
    v_xor_b32 v{VXD+1}, 64, v{VXD}
    v_add_u32 v{VXD+2}, 16384, v{VXD}
    v_add_u32 v{VXD+1}, 8192, v{VXD+1}
    v_add_u32 v{VXD+3}, 16384, v{VXD+1}
    s_mul_i32 s80, s28, {16*3584}
    s_lshl_b32 s35, s32, 7
    s_add_u32 s80, s80, s35
    s_mul_i32 s81, s28, {16*3072}
    s_lshl_b32 s35, s32, 6
    s_and_b32 s34, s32, 1
    s_mul_i32 s34, s34, {1024-64}
    s_add_u32 s82, s81, s34
    s_add_u32 s81, s81, s35
    s_add_u32 s82, s82, s35
    {"s_add_u32 s35, s31, s32" if VAR['rot'] else "s_mov_b32 s35, 0"}
    """)
    for e in range(4):
        p(f"s_add_u32 s34, s35, {e}\ns_and_b32 s34, s34, 3\ns_lshl_b32 s{SXE+e}, s34, 8\ns_mul_i32 s{SIE+e}, s34, {128*3584}\ns_mul_i32 s{SQE+e}, s34, {128*3072}")
    p(f"""
    s_cmp_lt_u32 s32, 14
    s_cselect_b32 s18, {512*3584}, 0
    s_cselect_b32 s42, {WS_USED}, 0
    s_mov_b32 s19, 0x20000
    s_mov_b32 s43, 0x20000
    s_waitcnt lgkmcnt(0)
    s_mov_b32 s16, s8
    s_mov_b32 s17, s9
    """)
    srd(p, 24, 4, 2048*1024); srd(p, 20, 6, 512*3072)
    p.add(flat(x_dma(0))); p.add(flat(dma_E(0)))
    srd(p, 12, 50, WS_USED)
    p("s_mov_b32 s40, s50\ns_mov_b32 s41, s51")
    st(p, 0); entry_store(p, st)
    p(f"v_and_b32 v{VB}, 31, v1")
    bitswap23(p, VB, VB, 3)
    p(f"""
    v_lshrrev_b32 v3, 1, v{VB}
    v_lshrrev_b32 v2, 5, v1
    v_xor_b32 v3, v3, v2
    v_and_b32 v3, 7, v3
    v_lshlrev_b32 v3, 4, v3
    v_lshl_add_u32 v{VXR}, v{VB}, 7, v3
    v_add_u32 v{VXR}, s57, v{VXR}
    v_xor_b32 v{VXR+1}, 32, v{VXR}
    v_xor_b32 v{VXR+2}, 64, v{VXR}
    v_xor_b32 v{VXR+3}, 96, v{VXR}
    """)
    if VAR.get('b00', False): p("s_barrier")
    p.add(flat(x_dma(1))); p.add(flat(dma_E(1)))
    if VAR.get('cpf'): code_prefetch(p, 28, 3, f"v{A2}", 36, "L_cpf")
    p(f"s_lshl_b32 s34, s2, 7\ns_add_u32 s34, s34, {OFL}\ns_lshl_b32 s35, s28, 8\ns_add_u32 s35, s35, s2\ns_cmp_lt_u32 s35, 72\ns_cselect_b32 s34, s34, 0x7fffff00")
    p(f"v_and_b32 v3, 31, v1\nv_lshlrev_b32 v3, 2, v3\nv_mov_b32 v2, 0\nbuffer_store_dword v2, v3, s[12:15], s34 offen")
    p(f"s_lshl_b32 s79, s31, 7\ns_add_u32 s79, s79, {FLG}")
    p(f"buffer_load_dword v0, off, s[12:15], s79 sc1", tag="old")
    p(f"""
    v_lshlrev_b32 v{VL}, 4, v1
    v_and_b32 v3, 3, v1
    v_cmp_eq_u32 vcc, 0, v3
    v_lshrrev_b32 v3, 2, v1
    v_lshrrev_b32 v2, 4, v1
    v_xor_b32 v3, v3, v2
    v_and_b32 v3, 1, v3
    v_cmp_eq_u32 s[34:35], 0, v3
    s_and_b64 vcc, vcc, s[34:35]
    v_mov_b32 v3, 0x3f803f80
    v_cndmask_b32 v{SEL}, 0, v3, vcc
    v_mov_b32 v{SEL+1}, v{SEL}
    v_mov_b32 v{SEL+2}, v{SEL}
    v_mov_b32 v{SEL+3}, v{SEL}
    v_cmp_lt_u32 s[74:75], 31, v1
    s_mov_b32 s76, {fh(1/512)}
    s_cmp_eq_u32 s30, 1
    s_cbranch_scc1 L_g1
    """)
    def start(p):
        if VAR.get('fine'):
            st(p, 10); p.wait(vm="X0"); st(p, 11); p.wait(vm="E0"); st(p, 12)
        p.wait(vm=["X0", "E0"]); p("s_barrier"); st(p, 1)
        for ks in range(4): p.add(x_read(ks))
    def qdma(p):
        p(f"""
        v_lshrrev_b32 v2, 3, v1
        v_mul_u32_u24 v{VQ}, 512, v2
        v_sub_u32 v{VQ}, v{VPI}, v{VQ}
        """)
        for e in range(4): p.add(flat(dma_Q(e)))
    set_va(p, True, RING, 3072)
    p(f"""
    s_mov_b32 s77, {fh(C0*0.044715)}
    s_lshr_b32 s34, s32, 1
    s_lshl_b32 s83, s34, 19
    s_lshl_b32 s35, s33, 13
    s_add_u32 s83, s83, s35
    s_and_b32 s35, s32, 1
    s_lshl_b32 s35, s35, 11
    s_add_u32 s83, s83, s35
    s_add_u32 s83, s83, {Z2F}
    s_add_u32 s84, s83, 4096
    s_lshl_b32 s87, s33, 13
    s_add_u32 s87, s87, {STAT}
    s_lshl_b32 s35, s32, 9
    s_add_u32 s88, s87, s35
    s_lshl_b32 s85, s34, 18
    s_lshl_b32 s35, s33, 10
    s_add_u32 s85, s85, s35
    s_mul_i32 s86, s34, {4*KVH}
    s_mul_i32 s35, s33, {KVT}
    s_add_u32 s86, s86, s35
    s_add_u32 s86, s86, {KV}
    s_bitcmp1_b32 s32, 0
    s_cselect_b32 s85, s86, s85
    s_mov_b32 s86, {KVH}
    s_cselect_b32 s86, s86, 0x10000
    s_mov_b32 s78, {fh(0.25*1.4426950408889634)}
    s_cselect_b32 s78, 1.0, s78                  ; scale
    """)
    prio(p, 1)
    start(p)
    p.add(gemm_pass([A0, A1], E_addr, RING, True, "w", 512, hooks=phase1_hooks(st), cs_tiles=[0, 1]))
    p.wait(vm=["Z0","Z1","Z2","Z3"], lg0=True)
    p("s_barrier")
    st(p, 5)
    prio(p, 0)
    p(f"v_lshl_add_u32 v3, v1, 2, s57")
    p(f"ds_read_b32 v{T+16}, v3 offset:2048", tag="raw"); p(f"ds_read_b32 v{T+20}, v3 offset:2304", tag="raw")
    p.add(cs_reads([0, 1], "cs0"))
    qdma(p)
    p.wait(lg="raw")
    p.add(ln1_final(0, T+16, T+20))
    p.add(cs_corr([A0, A1], True, "cs0"))
    p.wait(lg="rr")

    p.add(gelu_N(A0)); p.add(gelu_N(A1)); p.add(z2_stats())
    p.wait(vm=["Q"])
    p(f"""
    v_and_b32 v3, 1, v1
    v_cmp_eq_u32 vcc, 1, v3
    v_bfe_u32 v2, v1, 2, 1
    v_lshl_add_u32 v2, v3, 4, v2
    v_bfe_u32 v3, v1, 3, 1
    v_lshl_add_u32 v2, v3, 1, v2
    v_bfe_u32 v3, v1, 4, 2
    v_lshl_add_u32 v2, v3, 2, v2                ; row = 16*(l&1) + 8h + 4b4 + 2b3 + b2
    v_lshlrev_b32 v2, 4, v2
    v_add_u32 v0, 1, v0
    v_cndmask_b32 v{STQ}, v{STQ}, v{STQ+2}, vcc
    v_cndmask_b32 v{STQ+2}, v{STQ+1}, v{STQ+3}, vcc
    v_mov_b32 v{STQ+1}, v0
    v_mov_b32 v{STQ+3}, v0
    buffer_store_dwordx4 {vr(STQ,4)}, v2, s[40:43], s88 offen sc1
    """)
    p.label("L_lpf_ret")
    set_va(p, True, RING+65536, 2048)
    st(p, 6)
    p.wait(vm=["Q"], lg0=True)
    p("s_barrier")
    prio(p, 1)
    st(p, 7)
    PS = VAR.get('pstep', 24)
    def part_loads():
        o = [I("v_and_b32 v2, 31, v1"), I("v_lshlrev_b32 v2, 4, v2"), I("v_lshrrev_b32 v3, 5, v1"), I("v_mul_u32_u24 v3, 3584, v3"), I("v_add_u32 v2, v2, v3")]
        for k in range(7):
            o.append(I(f"buffer_load_dwordx4 {ar(4*k,4)}, v2, s[40:43], s87 offen offset:{k*512} sc1", tag="part"))
        return o
    pl = part_loads()
    def qhooks(ks):
        if ks == PS: return [], [], pl[:8]
        if ks == PS+1: return [], [], pl[8:10]
        if ks == PS+2: return [], [], pl[10:]
        return [], [], []
    p.add(gemm_pass([A2, A3_], Q_addr, RING+65536, False, "q", 512, hooks=qhooks, cs_tiles=None if VAR.get('csq', False) else [5, 6]))
    p("s_waitcnt lgkmcnt(0)\ns_barrier")
    st(p, 8)
    p.add(cs_reads([5, 6], "cs3"))
    p.add(cs_corr([A2, A3_], False, "cs3"))
    p("s_cmp_ge_u32 s32, 14\ns_cbranch_scc1 L_qk")
    p(f"s_mov_b32 s34, 0\ns_mov_b32 s35, {fh(1/896)}")
    p.wait(vm="part")
    p.label("L_chk")
    b = T+8
    p(f"v_accvgpr_read_b32 v{b}, a0\nv_accvgpr_read_b32 v{b+1}, a2\nv_accvgpr_read_b32 v{b+2}, a1\nv_accvgpr_read_b32 v{b+3}, a3")
    p(f"v_xor_b32 v{b+2}, v{b+2}, v0\nv_xor_b32 v{b+3}, v{b+3}, v0\nv_or_b32 v{b+2}, v{b+2}, v{b+3}")
    for k in range(1, 7):
        for e in range(4): p(f"v_accvgpr_read_b32 v{b+4+e}, a{4*k+e}")
        p(f"v_add_f32 v{b}, v{b}, v{b+4}\nv_add_f32 v{b+1}, v{b+1}, v{b+6}")
        p(f"v_xor_b32 v{b+5}, v{b+5}, v0\nv_xor_b32 v{b+7}, v{b+7}, v0\nv_or3_b32 v{b+2}, v{b+2}, v{b+5}, v{b+7}")
    p(f"v_cmp_ne_u32 vcc, 0, v{b+2}\ns_cbranch_vccnz L_retry")
    p.label("L_chk_ok")
    p(f"""
    v_mov_b32 v{b+2}, v{b}
    v_mov_b32 v{b+3}, v{b+1}
    v_and_b32 v2, 31, v1
    v_permlane32_swap_b32 v{b}, v{b+2}
    v_permlane32_swap_b32 v{b+1}, v{b+3}
    v_lshl_add_u32 v2, v2, 2, s57
    v_add_f32 v{b}, v{b}, v{b+2}
    v_add_f32 v{b+1}, v{b+1}, v{b+3}
    v_mul_f32 v{b}, s35, v{b}
    v_mul_f32 v{b+2}, v{b}, v{b}
    v_fma_f32 v{b+1}, v{b+1}, s35, -v{b+2}
    v_max_f32 v{b+1}, 0, v{b+1}
    v_add_f32 v{b+1}, {fh(1e-5)}, v{b+1}
    v_rsq_f32 v{b+1}, v{b+1}
    v_lshrrev_b32 v3, 5, v1
    v_lshl_add_u32 v3, v3, 5, s57
    v_mul_f32_e64 v{b}, -v{b}, v{b+1}
    ds_write_b32 v2, v{b+1} offset:4096
    ds_write_b32 v2, v{b} offset:4224
    s_or_b32 s34, s32, s28
    s_cmp_eq_u32 s34, 0
    s_cselect_b32 s79, s79, 0x7fffff00
    s_waitcnt lgkmcnt(0)
    """)
    R2 = A2+8; NM = T+8
    R2 = CSF
    for k in range(4): p(f"ds_read_b128 {vr(R2+4*k,4)}, v3 offset:{4096 + (k//2)*64 + (k%2)*16}", tag="r2")
    for k in range(4): p(f"ds_read_b128 {vr(NM+4*k,4)}, v3 offset:{4096 + 128 + (k//2)*64 + (k%2)*16}", tag="r2")
    p.label("L_qk")
    p(f"v_mul_f32 v{R1}, s78, v{R1}")
    for a in (A2, A3_):
        for r in range(16): p(f"v_mul_f32 v{a+r}, v{a+r}, v{R1}")
        for d in range(8): p(f"v_cvt_pk_bf16_f32 v{a+d}, v{a+2*d}, v{a+2*d+1}")
        p(f"buffer_store_dwordx4 {vr(a,4)}, v{VL}, s[12:15], s85 offen\ns_add_u32 s85, s85, s86")
        p(f"buffer_store_dwordx4 {vr(a+4,4)}, v{VL}, s[12:15], s85 offen\ns_add_u32 s85, s85, s86")
    p("s_cmp_ge_u32 s32, 14\ns_cbranch_scc1 L_end")
    p.wait(lg="r2")
    for t in range(2):
        a = A0 + 16*t
        for r in range(16): p(f"v_fma_f32 v{a+r}, v{a+r}, v{R2+r}, v{NM+r}")
        for d in range(8): p(f"v_cvt_pk_bf16_f32 v{a+d}, v{a+2*d}, v{a+2*d+1}")
        p(f"buffer_store_dwordx4 {vr(a,4)}, v{VL}, s[12:15], s83 offen offset:{t*1024}")
        p(f"buffer_store_dwordx4 {vr(a+4,4)}, v{VL}, s[12:15], s84 offen offset:{t*1024}")
    p("buffer_store_dword v0, off, s[12:15], s79 sc1")
    st(p, 9)
    p("s_endpgm")
    p.label("L_retry")
    p("s_add_u32 s34, s34, 1\ns_cmp_gt_u32 s34, 0x40000\ns_cbranch_scc1 L_chk_ok")
    p.add(part_loads())
    p("s_waitcnt vmcnt(0)\ns_branch L_chk")
    p.label("L_g1")
    set_va(p, False, RING+2048, 3072)
    p(f"""
    s_load_dwordx2 s[36:37], s[0:1], {KA_WSP}
    v_and_b32 v3, 1, v1
    v_cmp_eq_u32 s[70:71], 1, v3
    v_and_b32 v3, 2, v1
    v_cmp_eq_u32 s[72:73], 2, v3
    s_mul_i32 s83, s33, {56*1024}
    s_lshl_b32 s34, s32, 12
    s_add_u32 s83, s83, s34
    s_add_u32 s83, s83, {Z1F}
    s_mul_i32 s85, s32, {2*KVH}
    s_mul_i32 s34, s33, {KVT}
    s_add_u32 s85, s85, s34
    s_add_u32 s85, s85, {KV}
    s_waitcnt lgkmcnt(0)
    """)
    prio(p, 1)
    start(p)
    p.add(gemm_pass([A0], lambda ks: E_addr(ks)+2048, RING+2048, True, "w", 256, hooks=phase1_hooks(st), cs_tiles=[2], stats=True))
    p(f"""
    v_add_f32 v{Q0}, v{Q0}, v{Q1}
    v_add_f32 v{Q0+1}, v{Q0+1}, v{Q1+1}
    v_add_f32 v{Q0+2}, v{Q0+2}, v{Q1+2}
    v_add_f32 v{Q0+3}, v{Q0+3}, v{Q1+3}
    v_cndmask_b32 v{Q0}, v{Q0}, v{Q0+1}, s[70:71]
    v_cndmask_b32 v{Q0+2}, v{Q0+2}, v{Q0+3}, s[70:71]
    ds_write_b32 v3, v{SX} offset:2048
    v_cndmask_b32 v{Q0}, v{Q0}, v{Q0+2}, s[72:73]
    v_mov_b32 v{Q1}, v{Q0}
    v_permlane32_swap_b32 v{Q0}, v{Q1}
    v_add_f32 v{Q0}, v{Q0}, v{Q1}
    ds_write_b32 v3, v{Q0} offset:2304
    """)
    p.wait(vm=["Z0","Z1","Z2","Z3"], lg0=True)
    p("s_barrier")
    st(p, 5)
    p.add(cs_reads([2], "cs1"))
    p.add(ln1_final(1, SX, Q0))
    p.add(cs_corr([A0], True, "cs1"))
    set_va(p, True, RING, 2048)
    qd = Prog(); qdma(qd)
    zp = gemm_pass([A2, A3_], Z_addr, RING, False, "z", 512, cs_tiles=[3, 4])
    e = Prog()
    e(f"""
    s_mov_b32 s77, {KVH}
    v_bfe_u32 v3, v1, 4, 1
    v_mul_lo_u32 v{VB}, v3, s77
    v_and_b32 v3, 15, v1
    v_lshl_add_u32 v{VB}, v3, 4, v{VB}
    v_lshrrev_b32 v3, 5, v1
    v_lshl_add_u32 v{VB}, v3, 8, v{VB}
    """)
    e.wait(lg="rr")
    for r in range(16): e(f"v_mul_f32 v{A0+r}, v{A0+r}, v{A1+r}")
    for d in range(8): e(f"v_cvt_pk_bf16_f32 v{A0+d}, v{A0+2*d}, v{A0+2*d+1}")
    for r in range(4): e(f"v_mov_b32 v{A1+r}, 0x3f803f80\nv_mov_b32 v{A1+4+r}, 0")
    if VAR.get('wpf', 0):
        e(f"""
        s_and_b32 s34, s2, 7
        s_lshl_b32 s34, s34, 20
        s_lshr_b32 s35, s2, 3
        s_lshl_b32 s35, s35, 2
        s_add_u32 s35, s35, s29
        s_lshl_b32 s35, s35, 13
        s_add_u32 s34, s34, s35
        """)
        if VAR.get('wpf', 0) == 1:
            e("v_lshl_add_u32 v3, v1, 7, s34\nglobal_load_dword a0, v3, s[36:37]")
        else:
            e(f"v_add_u32 v3, s34, v{VL}")
            for k in range(8):
                if k == 4: e("v_add_u32 v3, 0x1000, v3")
                e(f"global_load_dwordx4 a[0:3], v3, s[36:37] offset:{(k%4)*1024}")
    p.add(interleave(zp, qd.l + e.l, per_gap=2, start=1))
    p.wait(vm=["Q"])
    p(f"buffer_store_dwordx4 {vr(A0,4)}, v{VB}, s[12:15], s85 offen offset:1024")
    p(f"buffer_store_dwordx4 {vr(A0+4,4)}, v{VB}, s[12:15], s85 offen offset:1536")
    p(f"s_mov_b64 exec, 0x10001\nbuffer_store_dwordx4 {vr(A1,4)}, v{VB}, s[12:15], s85 offen offset:2048\nbuffer_store_dwordx4 {vr(A1+4,4)}, v{VB}, s[12:15], s85 offen offset:2064\ns_mov_b64 exec, -1")
    st(p, 6)
    p.wait(vm=["Q"], lg0=True)
    p("s_barrier")
    prio(p, 0)
    st(p, 7)
    if VAR.get('csq', False):
        set_va(p, True, RING+65536, 2048)
        am = Addr(RING+65536)
        def rdq(j):
            o = []; off = am.off(Q_addr(4*j), o)
            for ti in range(2): o += tr_read(WB+((j%3)*2+ti)*4, VA+2+ti, off, 512, f"cq{j}")
            return o
        p.add(rdq(0)); p.add(rdq(1))
        for j in range(8):
            if j+2 < 8: p.add(rdq(j+2))
            p.wait(lg=f"cq{j}")
            for ti in range(2): p.add([m16(CSA+4*ti, vr(WB+((j%3)*2+ti)*4,4), j == 0)])
        p(f"v_lshl_add_u32 v3, v1, 2, s57")
        for ti in range(2): p(f"ds_write_b32 v3, v{CSA+4*ti} offset:{(5+ti)*256}")
        p("s_waitcnt lgkmcnt(0)")
    p("s_cmp_ge_u32 s32, 14\ns_cbranch_scc1 L_g1_end")
    p.add(cs_reads([3, 4], "cs2"))
    p.add(cs_corr([A2, A3_], False, "cs2"))
    st(p, 8)
    for k, a in enumerate((A2, A3_)):
        p.add(gelu_T(a, T+4+8*k))
        p(f"buffer_store_dwordx4 {vr(T+4+8*k,4)}, v{VL}, s[40:43], s83 offen offset:{k*2048}")
        p(f"buffer_store_dwordx4 {vr(T+8+8*k,4)}, v{VL}, s[40:43], s83 offen offset:{k*2048+1024}")
    st(p, 9)
    p.label("L_g1_end")
    if VAR.get('epf', 0):
        p(f"""
        s_and_b32 s34, s2, 7
        s_lshl_b32 s34, s34, 20
        s_lshr_b32 s35, s2, 3
        s_lshl_b32 s35, s35, 2
        s_add_u32 s35, s35, s29
        s_lshl_b32 s35, s35, 13
        s_add_u32 s34, s34, s35
        """)
        if VAR.get('epf', 0) == 1:
            p("v_lshl_add_u32 v3, v1, 7, s34\nglobal_load_dword v2, v3, s[36:37]")
        else:
            p(f"v_add_u32 v3, s34, v{VL}")
            for k in range(8):
                if k == 4: p("v_add_u32 v3, 0x1000, v3")
                p(f"global_load_dwordx4 a[0:3], v3, s[36:37] offset:{(k%4)*1024}")
        p("s_barrier")
    p.label("L_end")
    p("s_endpgm")
    return p

def split_groups(l):
    lab = {x.op: i for i, x in enumerate(l) if getattr(x, 'kind', '') == "label"}
    b = next(i for i, x in enumerate(l) if getattr(x, 'kind', '') == "branch" and x.target == "L_g1")
    return b, lab["L_g1"]
def k1_paths(l):
    b, g1 = split_groups(l)
    return [l[:g1], l[:b] + l[g1:]]
def finalize_k1(p, verbose=False):
    l = p.l
    b, g1 = split_groups(l)
    head = l[:b+1]
    r0 = resolve_waits(l[:g1])
    r1 = resolve_waits(head + l[g1:])
    nh = len(resolve_waits(head))
    p2 = Prog(); p2.l = r0 + r1[nh:]
    return finalize("k1", p2, paths=k1_paths, verbose=verbose)
K1_DESC = dict(name="k1_kernel", vgpr=256, sgpr=102, accum=128, grid=256, block=512, lds=K1_LDS)
if __name__ == "__main__":
    import sys
    from build import build
    vars_ = eval(sys.argv[2]) if len(sys.argv) > 2 else {"k1": {}}
    base = dict(VAR)
    for nm, kw in vars_.items():
        VAR.clear(); VAR.update(base); VAR.update(kw)
        p = gen_k1(stamp=len(sys.argv)>1)
        l, errs = finalize_k1(p, verbose=len(sys.argv) < 2)
        build([dict(K1_DESC, l=l)], f"out_{nm}.s")
```

```python
from common import *
SOLO = True
import struct
def float_hex(f): return hex(struct.unpack("<I", struct.pack("<f", f))[0])

LDS_FLAG = 130048
LDS_STG = 131072
K2_LDS = 163840
VAR = dict(margin=100.0, U=8, prio_att=1, prio_g=0, fuse3=True, cdelay=2)

QA, QB = 4, 8
CA, CB = 16, 32
OA, OB = 48, 64
SA, SB = 80, 96
PA, PB = 112, 120
KR = [128, 132, 136, 140]
V0R = [144, 148, 152, 156]
V1R = [160, 164, 168, 172]
AK, AV0, AV1 = 176, 177, 178
GK, GV0, GV1 = 179, 180, 181
MA, MB = 182, 183
TM = 184
FL = 188
PF, PFA = 190, 191
STT = 192

def max16(p, S, M, first):
    if first:
        p(f"v_max3_f32 v{M}, v{S}, v{S+1}, v{S+2}")
        p(f"v_max_f32 v{M}, v{M}, v{S+3}")
        r = range(4, 16, 2)
    else: r = range(0, 16, 2)
    for k in r: p(f"v_max3_f32 v{M}, v{M}, v{S+k}, v{S+k+1}")

def flag_wait(p, name, addr_v, off, val, tmpq, sleep=1):
    p.label(name)
    p(f"ds_read_b128 {vr(tmpq,4)}, v{addr_v} offset:{off}")
    p("s_waitcnt lgkmcnt(0)")
    p(f"v_min_u32 v{tmpq}, v{tmpq}, v{tmpq+1}\nv_min3_u32 v{tmpq}, v{tmpq}, v{tmpq+2}, v{tmpq+3}")
    p(f"v_cmp_gt_u32 vcc, {val}, v{tmpq}")
    p(f"s_cbranch_vccz {name}_ok\ns_sleep {sleep}\ns_branch {name}")
    p.label(name + "_ok")

def spin1(p, name, addr_v, off, val, tmp):
    p.label(name)
    p(f"ds_read_b32 v{tmp}, v{addr_v} offset:{off}")
    p("s_waitcnt lgkmcnt(0)")
    p(f"v_cmp_gt_u32 vcc, {val}, v{tmp}")
    p(f"s_cbranch_vccz {name}_ok\ns_sleep 1\ns_branch {name}")
    p.label(name + "_ok")

def att_loop_body(U):
    out = []
    def blk(S, P, So, Po, Mqk, Mpv1, Mpv0, extra):
        e = lambda k: I(f"v_exp_f32 v{S+k}, v{S+k}")
        c = lambda k: I(f"v_cvt_pk_bf16_f32 v{P+k}, v{S+2*k}, v{S+2*k+1}")
        co = lambda k: I(f"v_cvt_pk_bf16_f32 v{Po+k}, v{So+2*k}, v{So+2*k+1}")
        o = []
        pq, p1, p0 = VAR.get('pos', (2, 6, 12))
        cs = VAR.get('cs', {0: [-6], 1: [-7], 3: [0], 5: [1], 7: [2], 9: [3], 11: [4], 13: [5]})
        if VAR.get('perm'):
            c = lambda k: I(f"v_perm_b32 v{P+k}, v{S+2*k+1}, v{S+2*k}, s45")
            co = lambda k: I(f"v_perm_b32 v{Po+k}, v{So+2*k+1}, v{So+2*k}, s45")
        for k in range(16):
            o.append(e(k))
            for j in cs.get(k, []):
                if j < 0: o.append(co(-j))
            if k == pq and not VAR.get('nom'): o.append(Mqk)
            if k == p1 and not VAR.get('nom'): o.append(Mpv1)
            if k == p0 and not VAR.get('nom'): o.append(Mpv0)
            o += extra.get(k, [])
            for j in cs.get(k, []):
                if j >= 0: o.append(c(j))
        return o
    for u in range(U):
        s0 = u % 4; s1 = (u+1) % 4; sm = (u-1) % 4
        exA = {}; exB = {}
        if u % 2 == 0:
            rd = []
            for d in (2, 3):
                o_ = (u+d-1)*KVT
                rd += [I(f"ds_read_b128 {vr(KR[(u+d)%4],4)}, v{AK} offset:{o_}"),
                       I(f"ds_read_b128 {vr(V0R[(u+d)%4],4)}, v{AV0} offset:{o_}"),
                       I(f"ds_read_b128 {vr(V1R[(u+d)%4],4)}, v{AV1} offset:{o_}")]
            exA = {6: rd}
            if VAR.get('nods'): exA = {}
        if u == U-1:
            exB = {2: [I("s_add_u32 s41, s41, 1")], 3: [I(f"s_bitcmp1_b32 s45, s41")], 4: [I("s_cbranch_scc1 L_att_sync2"), I("L_att_sync2_ret:")],
                   5: [I(f"v_mov_b32 v{TM}, s41")], 7: [I(f"ds_write_b32 v{FL+1}, v{TM} offset:80")],
                   6: [I(f"v_add_u32 v{AK}, {U*KVT}, v{AK}")], 8: [I(f"v_add_u32 v{AV0}, {U*KVT}, v{AV0}")], 10: [I(f"v_add_u32 v{AV1}, {U*KVT}, v{AV1}")],
                   14: [I(f"s_cmp_lt_u32 s41, {64//U}")]}
        if u % 2 == 1: exB[0] = [I("s_waitcnt lgkmcnt(0)")]
        out += blk(SA, PA, SB, PB, mfma32(vr(SB,16), vr(KR[s0],4), vr(QB,4), vr(CB,16)),
                   mfma32(vr(OB,16), vr(V1R[sm],4), vr(PB+4,4), vr(OB,16)),
                   mfma32(vr(OA,16), vr(V0R[s0],4), vr(PA,4), vr(OA,16)), exA)
        out += blk(SB, PB, SA, PA, mfma32(vr(SA,16), vr(KR[s1],4), vr(QA,4), vr(CA,16)),
                   mfma32(vr(OA,16), vr(V1R[s0],4), vr(PA+4,4), vr(OA,16)),
                   mfma32(vr(OB,16), vr(V0R[s0],4), vr(PB,4), vr(OB,16)), exB)
    return out

def gen_attention(p, st):
    U = VAR['U']
    p(f"s_setprio {VAR['prio_att']}")
    p(f"""
    s_mul_i32 s30, s27, {KVH}
    s_add_u32 s30, s30, {KV}
    s_lshl_b32 s31, s27, 16
    s_lshl_b32 s32, s28, 3
    s_lshl_b32 s33, s24, 1
    s_add_u32 s32, s32, s33
    s_lshl_b32 s33, s32, 10
    s_add_u32 s31, s31, s33
    v_lshlrev_b32 v{GK}, 4, v1
    """)
    p(f"buffer_load_dwordx4 {vr(QA,4)}, v{GK}, s[12:15], s31 offen")
    p(f"buffer_load_dwordx4 {vr(QB,4)}, v{GK}, s[12:15], s31 offen offset:1024")
    p(f"buffer_load_dwordx4 {vr(KR[0],4)}, v{GK}, s[12:15], s30 offen")
    p(f"buffer_load_dwordx4 {vr(KR[1],4)}, v{GK}, s[12:15], s30 offen offset:{KVT}")
    p(f"""
    v_and_b32 v{TM}, 31, v1
    v_lshrrev_b32 v{TM+1}, 5, v1
    v_lshlrev_b32 v{TM+1}, 8, v{TM+1}
    v_lshl_add_u32 v{TM+1}, v{TM}, 4, v{TM+1}
    v_and_b32 v{TM+2}, 27, v{TM}
    v_cmp_eq_u32 vcc, 16, v{TM+2}
    v_mov_b32 v{TM+2}, 2064
    v_mov_b32 v{TM+3}, 2048
    v_cndmask_b32 v{TM+2}, v{TM+2}, v{TM+3}, vcc
    v_cmp_gt_u32 vcc, 16, v{TM}
    v_add_u32 v{GV0}, 1024, v{TM+1}
    v_add_u32 v{GV1}, 1536, v{TM+1}
    v_cndmask_b32 v{GV0}, v{TM+2}, v{GV0}, vcc
    v_cndmask_b32 v{GV1}, v{TM+2}, v{GV1}, vcc
    """)
    for t in range(2):
        p(f"buffer_load_dwordx4 {vr(V0R[t],4)}, v{GV0}, s[12:15], s30 offen offset:{t*KVT}")
        p(f"buffer_load_dwordx4 {vr(V1R[t],4)}, v{GV1}, s[12:15], s30 offen offset:{t*KVT}")
    p(f"""
    s_lshl_b32 s37, s24, 12
    s_add_u32 s38, s30, {KVT+1024}
    s_add_u32 s38, s38, s37
    """)
    for i in range(2):
        p("s_mov_b32 m0, s37")
        p("s_add_u32 s37, s37, 16384")
        for k in range(4):
            p(f"buffer_load_dwordx4 v{GK}, s[12:15], s38 offen offset:{k*1024} lds")
        p("s_add_u32 s38, s38, 16384")
    p("s_barrier")
    if VAR['fuse3']:
        p(f"""
        s_mul_i32 s33, s32, {88*1024}
        s_lshl_b32 s34, s27, 10
        s_add_u32 s33, s33, s34
        s_add_u32 s33, s33, {A3}
        s_add_u32 s39, s33, {88*1024}
        s_lshl_b32 s35, s32, 6
        s_lshl_b32 s34, s27, 2
        s_add_u32 s35, s35, s34
        s_add_u32 s35, s35, {OFL}
        s_mul_i32 s42, s26, 9363
        s_lshr_b32 s42, s42, 16                ; j/7
        s_mul_i32 s43, s42, 7
        s_sub_u32 s43, s26, s43                ; fb
        s_lshl_b32 s44, s25, 2
        s_add_u32 s42, s42, s44
        s_lshl_b32 s43, s43, 2
        s_add_u32 s43, s43, s24                ; ft
        s_mul_i32 s46, s42, {2*88*1024}
        s_lshl_b32 s44, s43, 11
        s_add_u32 s46, s46, s44
        s_add_u32 s46, s46, {A3 + 32*1024}
        s_lshl_b32 s42, s42, 7
        s_lshl_b32 s43, s43, 2
        s_add_u32 s42, s42, s43
        s_add_u32 s42, s42, {UFL}
        s_add_u32 s47, s46, {88*1024}
        s_mov_b32 s45, {2 + (1 << VAR.get('s3it', 2))}
        s_mov_b32 s44, 0
        s_cmp_lt_u32 s26, 28
        s_cbranch_scc1 L_att_nopre
        """)
        for r in range(4): p(f"v_mov_b32 v{STT+r}, -1")
        p(f"buffer_store_dwordx4 {vr(STT,4)}, v{GK}, s[12:15], s33 offen sc1\nbuffer_store_dwordx4 {vr(STT,4)}, v{GK}, s[12:15], s39 offen sc1")
        p(f"v_mov_b32 v{STT}, 1\ns_waitcnt vmcnt(0)\nbuffer_store_dword v{STT}, off, s[12:15], s35 sc1\ns_mov_b32 s45, 2\ns_mov_b32 s44, 1")
        p.label("L_att_nopre")
    p(f"""
    v_mov_b32 v{FL}, {LDS_FLAG}
    s_lshl_b32 s37, s24, 2
    v_add_u32 v{FL+1}, s37, v{FL}
    v_subrev_u32 v{AK}, 1024, v{GK}
    v_subrev_u32 v{AV0}, 1024, v{GV0}
    v_subrev_u32 v{AV1}, 1024, v{GV1}
    """)
    for r in list(range(OA, OA+32)) + list(range(PB+4, PB+6)) + list(range(V1R[3], V1R[3]+4)):
        p(f"v_mov_b32 v{r}, 0")
    p(f"s_waitcnt vmcnt(12)")
    p.add([mfma32(vr(SA,16), vr(KR[0],4), vr(QA,4), "0"), mfma32(vr(SB,16), vr(KR[0],4), vr(QB,4), "0"),
           mfma32(vr(CA,16), vr(KR[1],4), vr(QA,4), "0"), mfma32(vr(CB,16), vr(KR[1],4), vr(QB,4), "0")])
    max16(p, SA, MA, True); max16(p, SB, MB, True); max16(p, CA, MA, False); max16(p, CB, MB, False)
    p(f"""
    s_mov_b32 s40, {float_hex(VAR['margin'])}
    v_mov_b32 v{TM}, v{MA}
    v_mov_b32 v{TM+1}, v{MB}
    v_permlane32_swap_b32 v{TM}, v{MA}
    v_permlane32_swap_b32 v{TM+1}, v{MB}
    v_max_f32 v{MA}, v{MA}, v{TM}
    v_max_f32 v{MB}, v{MB}, v{TM+1}
    v_add_f32 v{MA}, s40, v{MA}
    v_add_f32 v{MB}, s40, v{MB}
    """)
    for r in range(16): p(f"v_sub_f32 v{CA+r}, 0, v{MA}")
    for r in range(12, 16): p(f"v_mov_b32 v{SB+r}, 0")
    p.add([mfma32(vr(SA,16), vr(KR[0],4), vr(QA,4), vr(CA,16))])
    for r in range(16): p(f"v_sub_f32 v{CB+r}, 0, v{MB}")
    p(f"s_waitcnt vmcnt(0)")
    p(f"v_mov_b32 v{TM}, 1\nds_write_b32 v{FL+1}, v{TM}")
    flag_wait(p, "L_att_f1", FL, 0, 1, TM)
    if VAR.get('wpf', 0):
        p(f"s_lshl_b32 s37, s25, 20\ns_lshl_b32 s38, s26, 2\ns_add_u32 s38, s38, s24\ns_lshl_b32 s38, s38, 13\ns_add_u32 s37, s37, s38")
        for k in range(8):
            if k == 4: p("s_add_u32 s37, s37, 4096")
            p(f"buffer_load_dwordx4 {vr(STT,4)}, v{GK}, s[16:19], s37 offen offset:{(k%4)*1024}")
    st(p, 1)
    p("s_mov_b32 s41, 0" + ("" if VAR['fuse3'] else "\ns_mov_b32 s45, 2"))
    p(".p2align 6")
    p.label("L_att_loop")
    p.add(att_loop_body(U))
    p("s_cbranch_scc1 L_att_loop")
    st(p, 2)
    if VAR.get('endprio'): p("s_setprio 3")
    p(f"v_cvt_pk_bf16_f32 v{PB+6}, v{SB+12}, v{SB+13}\nv_cvt_pk_bf16_f32 v{PB+7}, v{SB+14}, v{SB+15}")
    p(f"""
    s_mul_i32 s33, s32, {88*1024}
    s_lshl_b32 s34, s27, 10
    s_add_u32 s33, s33, s34
    s_add_u32 s33, s33, {A3}
    """)
    p.add([mfma32(vr(OB,16), vr(V1R[3],4), vr(PB+4,4), vr(OB,16))])
    p("s_waitcnt lgkmcnt(0)")
    p("s_mov_b32 s36, 0")
    p.label("L_att_chk")
    p(f"v_mul_f32 v{TM}, 0, v{OA+8}")
    for r in range(8): p(f"v_fmac_f32 v{TM}, 0, v{OA+r}")
    p(f"v_cmp_u_f32 vcc, v{TM}, v{TM}")
    p("s_cbranch_vccnz L_att_slow")
    p.label("L_att_fin")
    p(f"v_rcp_f32 v{MA}, v{OA+8}")
    p("s_cmp_lg_u32 s36, 0")
    for r in range(8): p(f"v_mul_f32 v{OA+r}, v{OA+r}, v{MA}")
    for k in range(4): p(f"v_cvt_pk_bf16_f32 v{PA+k}, v{OA+2*k}, v{OA+2*k+1}")
    for k in range(4): p(f"v_min_u32 v{PA+k}, -2, v{PA+k}")
    p(f"buffer_store_dwordx4 {vr(PA,4)}, v{GK}, s[12:15], s33 offen")
    p("s_cbranch_scc1 L_att_done")
    p(f"s_mov_b32 s36, 1\ns_add_u32 s33, s33, {88*1024}")
    for r in range(9): p(f"v_mov_b32 v{OA+r}, v{OB+r}")
    for r in range(4): p(f"v_mov_b32 v{QA+r}, v{QB+r}")
    p("s_branch L_att_chk")
    p.label("L_att_done")
    st(p, 3)
    p("s_endpgm")
    p.label("L_att_sync2")
    p("s_cmp_lg_u32 s41, 1\ns_cbranch_scc1 L_att_sync3")
    if VAR['fuse3']:
        p("s_cmp_lg_u32 s44, 0\ns_cbranch_scc1 L_att_f2")
        for r in range(4): p(f"v_mov_b32 v{STT+r}, -1")
        p(f"buffer_store_dwordx4 {vr(STT,4)}, v{GK}, s[12:15], s33 offen sc1\nbuffer_store_dwordx4 {vr(STT,4)}, v{GK}, s[12:15], s39 offen sc1")
        for k in range(4): p(f"buffer_store_dwordx4 {vr(STT,4)}, v{GK}, s[12:15], s{46+k//2} offen offset:{(k%2)*1024} sc1")
    if VAR.get('zpf'):
        p(f"s_lshl_b32 s37, s26, 2\ns_add_u32 s37, s37, s24\ns_mul_i32 s37, s37, {28*1024}\ns_add_u32 s37, s37, {Z2F}\nv_lshlrev_b32 v{PFA}, 7, v1")
        for k in range(4):
            if k == 3: p("s_mov_b32 exec_hi, 0")
            p(f"buffer_load_dword v{PF}, v{PFA}, s[12:15], s37 offen")
            if k < 3: p("s_add_u32 s37, s37, 8192")
        p("s_mov_b64 exec, -1")
    flag_wait(p, "L_att_f2", FL, 48, 1, TM)
    p("s_branch L_att_sync2_ret")
    p.label("L_att_sync3")
    if VAR['fuse3']:
        p(f"v_mov_b32 v{TM}, 1\ns_waitcnt vmcnt(0)\nbuffer_store_dword v{TM}, off, s[12:15], s35 sc1\nbuffer_store_dword v{TM}, off, s[12:15], s42 sc1\nds_write_b32 v{FL+1}, v{TM} offset:64")
    p("s_branch L_att_sync2_ret")
    p.label("L_att_slow")
    p(f"v_mov_b32 v{MA}, 0xff800000\ns_mov_b32 s41, 0\ns_mov_b32 s37, s30")
    p.label("L_att_sl1")
    p(f"buffer_load_dwordx4 {vr(KR[0],4)}, v{GK}, s[12:15], s37 offen")
    p("s_waitcnt vmcnt(0)")
    p.add([mfma32(vr(SA,16), vr(KR[0],4), vr(QA,4), "0")])
    max16(p, SA, MA, False)
    p(f"s_add_u32 s37, s37, {KVT}\ns_add_u32 s41, s41, 1\ns_cmp_lt_u32 s41, 64\ns_cbranch_scc1 L_att_sl1")
    p(f"v_mov_b32 v{TM}, v{MA}\nv_permlane32_swap_b32 v{TM}, v{MA}\nv_max_f32 v{MA}, v{MA}, v{TM}")
    for r in range(16): p(f"v_sub_f32 v{CA+r}, 0, v{MA}\nv_mov_b32 v{OA+r}, 0")
    p("s_mov_b32 s41, 0\ns_mov_b32 s37, s30")
    p.label("L_att_sl2")
    p(f"buffer_load_dwordx4 {vr(KR[0],4)}, v{GK}, s[12:15], s37 offen")
    p(f"buffer_load_dwordx4 {vr(V0R[0],4)}, v{GV0}, s[12:15], s37 offen")
    p(f"buffer_load_dwordx4 {vr(V1R[0],4)}, v{GV1}, s[12:15], s37 offen")
    p("s_waitcnt vmcnt(0)")
    p.add([mfma32(vr(SA,16), vr(KR[0],4), vr(QA,4), vr(CA,16))])
    for k in range(16): p(f"v_exp_f32 v{SA+k}, v{SA+k}")
    for k in range(8): p(f"v_cvt_pk_bf16_f32 v{PA+k}, v{SA+2*k}, v{SA+2*k+1}")
    p.add([mfma32(vr(OA,16), vr(V0R[0],4), vr(PA,4), vr(OA,16)), mfma32(vr(OA,16), vr(V1R[0],4), vr(PA+4,4), vr(OA,16))])
    p(f"s_add_u32 s37, s37, {KVT}\ns_add_u32 s41, s41, 1\ns_cmp_lt_u32 s41, 64\ns_cbranch_scc1 L_att_sl2")
    p("s_nop 15\ns_branch L_att_fin")

ACC = 4
NZF = 16
ZR = 132
WR = 196
VL = 244; VD = 245; VW = 247
GF = 251
G = 232
def acc(i, tt): return ACC + (i*2+tt)*16

def kv_rest(p, uniq):
    for i in range(6):
        p("s_mov_b32 m0, s62")
        if i < 5: p("s_add_u32 s62, s62, 16384")
        else: p("s_cmp_eq_u32 s24, 3")
        for k in range(4):
            if i == 5 and k == 3: p(f"s_cbranch_scc1 L_g_kvdone{uniq}")
            p(f"buffer_load_dwordx4 v{VL}, s[12:15], s63 offen offset:{k*1024} lds", tag="kv")
        if i < 5: p("s_add_u32 s63, s63, 16384")
    p.label(f"L_g_kvdone{uniq}")

def flag_addr(p):
    p(f"""
    s_lshr_b32 s48, s26, 3
    s_lshl_b32 s47, s25, 2
    s_add_u32 s48, s48, s47
    s_lshl_b32 s48, s48, 7                 ; tb'*128
    s_lshl_b32 s47, s24, 5
    s_add_u32 s46, s48, s47
    s_mul_i32 s47, s24, 28
    s_add_u32 s48, s48, s47
    s_add_u32 s48, s48, {UFL-OFL}          ; u flags
    s_and_b32 s47, s26, 7
    s_lshl_b32 s47, s47, 7
    s_add_u32 s47, s47, {WFL-OFL}          ; W flags
    v_lshlrev_b32 v{G+5}, 2, v1
    v_mov_b32 v{G+6}, s48
    v_add_u32 v{G+7}, s48, v{G+5}
    v_cmp_gt_u32 vcc, 7, v1
    v_cndmask_b32 v{G+6}, v{G+6}, v{G+7}, vcc
    v_subrev_u32 v{G+5}, 128, v{G+5}
    v_add_u32 v{G+7}, s47, v{G+5}
    v_cmp_gt_u32 vcc, 64, v{G+5}
    v_cndmask_b32 v{G+6}, v{G+6}, v{G+7}, vcc
    v_subrev_u32 v{G+5}, 64, v{G+5}
    v_add_u32 v{G+7}, s46, v{G+5}
    v_cmp_gt_u32 vcc, 32, v{G+5}
    v_cndmask_b32 v{G+6}, v{G+6}, v{G+7}, vcc
    s_mov_b32 s48, {OFL}
    """)
def gen_gemm(p, st):
    p(f"""
    s_sub_u32 s24, s24, 4                  ; q = K quarter
    v_lshlrev_b32 v{VL}, 4, v1
    s_mul_i32 s63, s27, {KVH}
    s_lshl_b32 s62, s24, 12
    s_add_u32 s62, s62, 32768
    s_add_u32 s63, s63, s62
    s_add_u32 s63, s63, {KV + KVT + 1024}
    s_lshl_b32 s46, s24, 2
    s_add_u32 s46, s46, {LDS_FLAG}
    v_mov_b32 v{GF}, s46
    v_mov_b32 v0, 1
    s_barrier
    """)
    kv_rest(p, "a")
    p(f"""
    s_cmp_ge_u32 s26, 28
    s_cbranch_scc1 L_idle
    s_setprio 3
    s_mul_i32 s30, s26, 9363
    s_lshr_b32 s30, s30, 16                ; j/7
    s_mul_i32 s31, s30, 7
    s_sub_u32 s31, s26, s31                ; fb = j%7
    s_lshl_b32 s32, s25, 2
    s_add_u32 s30, s30, s32                ; tb
    s_lshl_b32 s33, s31, 19
    s_add_u32 s33, s33, {Z2F}
    s_lshl_b32 s34, s24, 17
    s_add_u32 s33, s33, s34
    s_lshl_b32 s56, s30, 18
    s_lshl_b32 s34, s24, 10
    s_add_u32 s56, s56, s34
    s_lshl_b32 s36, s24, 13
    s_add_u32 s36, s36, {LDS_STG}
    s_add_u32 s37, s36, 4096
    v_lshrrev_b32 v2, 3, v1
    v_lshrrev_b32 v3, 4, v1
    v_xor_b32 v3, v3, v1
    v_and_b32 v3, 7, v3
    v_lshlrev_b32 v3, 4, v3
    v_lshl_add_u32 v{VD}, v2, 12, v3
    v_xor_b32 v{VD+1}, 64, v{VD}
    v_add_u32 v{VD+1}, {8*4096-1024}, v{VD+1}
    """)
    for i in range(4):
        p(f"s_add_u32 s38, s24, {i}\ns_and_b32 s38, s38, 3\ns_lshl_b32 s38, s38, 10\ns_add_u32 s{52+i}, s33, s38")
    def dma(b):
        out = []
        for i in range(8):
            if i % 4 == 0: out.append(I(f"s_mov_b32 m0, s{(66 if (b % 3 == 2 and b > 2) else 36) + i//4}"))
            if i % 2 == 0: out.append(I(f"s_add_u32 s57, s56, {(i//2)*16*4096 - (i%4)*1024}"))
            out.append(I(f"buffer_load_dwordx4 v{VD + i%2}, s[16:19], s57 offen offset:{(i%4)*1024} lds", tag=f"d{b}"))
        out.append(I("s_add_u32 s56, s56, 128"))
        return out
    def zload(n):
        i = n % 4
        return [I(f"buffer_load_dwordx4 {vr(ZR + (n%NZF)*4, 4)}, v{VL}, s[12:15], s{52+i} offen", tag=f"z{n}"),
                I(f"s_add_u32 s{52+i}, s{52+i}, 4096")]
    p.add(dma(0))
    for n in range(16): p.add(zload(n))
    p(f"v_and_b32 v2, 31, v1")
    bitswap23(p, 2, 2, 3)
    p(f"""
    v_lshrrev_b32 v3, 1, v2
    v_lshrrev_b32 v{VW}, 5, v1
    v_xor_b32 v3, v3, v{VW}
    v_and_b32 v3, 7, v3
    v_lshlrev_b32 v3, 4, v3
    v_lshl_add_u32 v{VW}, v2, 7, v3
    v_add_u32 v{VW}, s36, v{VW}
    v_xor_b32 v{VW+1}, 32, v{VW}
    v_xor_b32 v{VW+2}, 64, v{VW}
    v_xor_b32 v{VW+3}, 96, v{VW}
    """)
    if VAR['fuse3']:
        flag_addr(p); p(f"v_mov_b32 v3, v{G+6}")
    p(f"s_setprio {VAR['prio_g']}")
    st(p, 1)
    wr = lambda g, tt: WR + ((g % 6)*2 + tt)*4
    def wread(b):
        return [I(f"ds_read_b128 {vr(wr(4*b+u, tt), 4)}, v{VW+u} offset:{tt*4096}", tag=f"w{b}", needs=[f"d{b}"]) for u in range(4) for tt in range(2)]
    def block(b, first=False, dma_on=True, z_on=True, w_on=True):
        o = []
        for u in range(4):
            g = 4*b+u
            o.append(W(vm=[f"z{4*g+3}"]))
            for i in range(4):
                n = 4*g+i
                for tt in range(2):
                    c = "0" if (first and u == 0) else vr(acc(i,tt),16)
                    o.append(mfma32(vr(acc(i,tt),16), vr(ZR+(n%NZF)*4,4), vr(wr(g,tt),4), c))
                if u == 2 and i == 1 and w_on:
                    o.append(W(lg=f"w{b+1}"))
                    if dma_on: o += dma(b+2)
            if u == 1 and w_on: o += [W(vm=f"d{b+1}")] + wread(b+1)
            if z_on:
                for i in range(4): o += zload(4*g+i+NZF)
        return o
    p.wait(vm="kv"); p(f"ds_write_b32 v{GF}, v0 offset:48")
    p.wait(vm="d0"); p.add(wread(0)); p.wait(lg="w0"); p.add(dma(1))
    p.add(block(0, first=True))
    p("s_mov_b32 s60, 0")
    hist = dma(0) + sum([zload(n) for n in range(16)], []) + dma(1) + block(0) + block(1) + block(2) + block(3) + [I("L_mark:")] + block(4) + block(5) + block(6)
    full = resolve_waits(hist)
    lb = full[next(i for i, x in enumerate(full) if x.kind == "label" and x.op == "L_mark")+1:]
    first_pass = resolve_waits(dma(0) + sum([zload(n) for n in range(16)], []) + dma(1) + block(0) + [I("L_mark:")] + block(1) + block(2) + block(3))
    fp = first_pass[next(i for i, x in enumerate(first_pass) if x.kind == "label" and x.op == "L_mark")+1:]
    assert len(fp) == len(lb)
    merged = []
    for x, y in zip(fp, lb):
        if x.kind == "wait":
            vm = min(v for v in (x.vm, y.vm) if v is not None) if (x.vm is not None or y.vm is not None) else None
            lg = min(v for v in (x.lg, y.lg) if v is not None) if (x.lg is not None or y.lg is not None) else None
            merged.append(I("s_waitcnt " + " ".join(([f"vmcnt({vm})"] if vm is not None else []) + ([f"lgkmcnt({lg})"] if lg is not None else []))))
        else:
            assert x.text == y.text, (x.text, y.text)
            merged.append(y)
    p.label("L_g_loop")
    p("s_cmp_eq_u32 s60, 1\ns_cselect_b32 s66, 0x30000, s36\ns_cselect_b32 s67, 0x30000, s37")
    p.add(merged)
    p("s_add_u32 s60, s60, 1\ns_cmp_lt_u32 s60, 2\ns_cbranch_scc1 L_g_loop")
    if VAR['fuse3']: p(f"s_mov_b32 s48, {OFL}"); p(f"buffer_load_dword v0, v3, s[12:15], s48 offen sc1", tag="fl")
    p.add(block(7, dma_on=False, z_on=False, w_on=False))
    st(p, 2)
    p(f"s_setprio {VAR.get('prio_e', 3)}")
    p(f"""
    s_lshl_b32 s38, s30, 1
    s_mul_i32 s39, s38, {56*1024}
    s_lshl_b32 s40, s31, 2
    s_add_u32 s40, s40, s24
    s_lshl_b32 s41, s40, 11
    s_add_u32 s39, s39, s41
    s_add_u32 s39, s39, {Z1F}
    s_add_u32 s42, s39, {56*1024}
    s_mul_i32 s64, s38, {88*1024}
    s_add_u32 s64, s64, s41
    s_add_u32 s64, s64, {A3 + 32*1024}
    s_add_u32 s65, s64, {88*1024}
    s_lshl_b32 s45, s30, 7
    v_lshlrev_b32 v2, 1, v2
    """)
    Z = ZR
    p(f"v_mov_b32 v{G+1}, v{GF}")
    p(f"buffer_load_dwordx4 {vr(Z,4)}, v{VL}, s[12:15], s39 offen", tag="z1")
    p(f"buffer_load_dwordx4 {vr(Z+4,4)}, v{VL}, s[12:15], s39 offen offset:1024", tag="z1")
    p(f"buffer_load_dwordx4 {vr(Z+8,4)}, v{VL}, s[12:15], s42 offen", tag="z1")
    p(f"buffer_load_dwordx4 {vr(Z+12,4)}, v{VL}, s[12:15], s42 offen offset:1024", tag="z1")
    p(f"buffer_load_ushort v{Z+16}, v2, s[20:23], s45 offen", tag="z1")
    p(f"buffer_load_ushort v{Z+17}, v2, s[20:23], s45 offen offset:64", tag="z1")
    if VAR['fuse3']:
        p.wait(vm="fl")
        p("v_cmp_eq_u32 vcc, 0, v0\ns_cbranch_vccz L_g_fl")
        poll(p, "L_p00", 48, 3, None, 0, sleep=8)
        p.label("L_g_fl")
        g2_scalars(p)
        w_loads(p, 0, 10)
    p(f"v_add_u32 v{G}, s36, v{VL}\nv_mov_b32 v{G+2}, {LDS_FLAG}\ns_lshl_b32 s47, s24, 14\nv_add_u32 v{G+3}, s47, v{VL}")
    for k in range(8): p(f"ds_write_b128 v{G}, {vr(acc(1,0)+4*k, 4)} offset:{k*1024}")
    flag_wait(p, "L_g_prog", G+2, 80, 4, G+4)
    for r in (2, 3):
        for k in range(8): p(f"ds_write_b128 v{G+3}, {vr(acc(r,0)+4*k, 4)} offset:{(r-2)*8192 + k*1024}")
    for r in range(1, 4):
        p(f"s_add_u32 s47, s24, {4-r}\ns_and_b32 s47, s47, 3")
        if r == 1: p(f"s_lshl_b32 s47, s47, 13\ns_add_u32 s47, s47, {LDS_STG}\nv_add_u32 v{G}, s47, v{VL}")
        else: p(f"s_lshl_b32 s47, s47, 14\ns_add_u32 s47, s47, {(r-2)*8192}\nv_add_u32 v{2 if r == 2 else 3}, s47, v{VL}")
    p(f"v_mov_b32 v{G+3}, 1\ns_waitcnt lgkmcnt(0)\nds_write_b32 v{G+1}, v{G+3} offset:16")
    flag_wait(p, "L_g_dat", G+2, 16, 1, G+4, sleep=0)
    for r in range(1, 4):
        for k in range(8):
            p(f"ds_read_b128 {vr(acc(r,0)+4*k,4)}, v{(G, 2, 3)[r-1]} offset:{k*1024}", tag=f"r{r}_{k}")
        if r > 1:
            for k in range(8):
                p.wait(lg=f"r{r-1}_{k}")
                for e in range(4): p(f"v_add_f32 v{acc(0,0)+4*k+e}, v{acc(0,0)+4*k+e}, v{acc(r-1,0)+4*k+e}")
    for k in range(8):
        p.wait(lg=f"r3_{k}")
        for e in range(4): p(f"v_add_f32 v{acc(0,0)+4*k+e}, v{acc(0,0)+4*k+e}, v{acc(3,0)+4*k+e}")
    if VAR['fuse3']: spin1(p, "L_g_pf", G+1, 64, 1, G+3)
    p.wait(vm="z1")
    T = acc(1, 0)
    p(f"v_lshlrev_b32 v{Z+16}, 16, v{Z+16}\nv_lshlrev_b32 v{Z+17}, 16, v{Z+17}")
    for tt in range(2):
        a = acc(0, tt)
        for r in range(16): p(f"v_add_f32 v{a+r}, v{a+r}, v{Z+16+tt}")
        for d in range(8):
            z = Z + tt*8 + d
            p(f"v_lshlrev_b32 v{T}, 16, v{z}\nv_and_b32 v{T+1}, 0xffff0000, v{z}")
            p(f"v_mul_f32 v{a+2*d}, v{a+2*d}, v{T}\nv_mul_f32 v{a+2*d+1}, v{a+2*d+1}, v{T+1}")
            p(f"v_cvt_pk_bf16_f32 v{T+8+tt*8+d}, v{a+2*d}, v{a+2*d+1}")
        for d in range(8): p(f"v_min_u32 v{T+8+tt*8+d}, -2, v{T+8+tt*8+d}")
        so = 64 + tt
        p(f"buffer_store_dwordx4 {vr(T+8+tt*8,4)}, v{VL}, s[12:15], s{so} offen")
        p(f"buffer_store_dwordx4 {vr(T+12+tt*8,4)}, v{VL}, s[12:15], s{so} offen offset:1024")
    if VAR.get('pf3'):
        p(f"s_lshl_b32 s38, s26, 2\ns_add_u32 s38, s38, s24\ns_mul_i32 s38, s38, 16384\ns_add_u32 s38, s38, {W3F}\nv_lshlrev_b32 v2, 7, v1")
        p(f"buffer_load_dword v3, v2, s[12:15], s38 offen\ns_add_u32 s38, s38, 8192\nbuffer_load_dword v3, v2, s[12:15], s38 offen")
    st(p, 3)
    if VAR['fuse3']:
        w_loads(p, 10, 14)
        p("s_branch L_g2")
    else: p("s_endpgm")
    p.label("L_idle")
    p(f"""
    s_load_dwordx2 s[36:37], s[0:1], {KA_WO}
    s_load_dwordx2 s[38:39], s[0:1], {KA_WOUT}
    s_lshl_b32 s34, s25, 2
    s_add_u32 s34, s34, s26
    s_sub_u32 s34, s34, 28                      ; L
    s_mov_b32 s54, {896*1024}
    v_lshrrev_b32 v2, 2, v1
    v_and_b32 v3, 3, v1
    v_lshlrev_b32 v3, 4, v3
    v_lshl_add_u32 v2, v2, 10, v3
    s_waitcnt lgkmcnt(0)
    s_cmp_lt_u32 s34, 16
    s_cselect_b32 s52, s36, s38
    s_cselect_b32 s53, s37, s39
    s_cselect_b32 s54, {512*1024}, s54
    s_cselect_b32 s35, 8, 14
    s_cselect_b32 s67, 0, {32*1024}
    s_mov_b32 s55, 0x20000
    s_and_b32 s34, s34, 15
    s_mul_i32 s68, s24, s35
    s_lshl_b32 s69, s68, 14
    s_lshl_b32 s60, s34, 6
    s_add_u32 s69, s69, s60
    s_mul_i32 s60, s34, {88*1024}
    s_lshl_b32 s68, s68, 10
    s_add_u32 s60, s60, s68
    s_add_u32 s60, s60, s67
    s_add_u32 s60, s60, {W3F}
    s_lshl_b32 s61, s24, 13
    s_add_u32 s61, s61, {LDS_STG}
    """)
    def w3_dma(n):
        for k in range(n):
            p(f"s_add_u32 m0, s61, {k*1024}\ns_nop 0\nbuffer_load_dwordx4 v2, s[52:55], s69 offen lds\ns_add_u32 s69, s69, 16384")
    def w3_out(n):
        for k in range(n):
            p(f"ds_read_b64_tr_b16 v[{8+4*k}:{9+4*k}], v3 offset:{k*1024}\nds_read_b64_tr_b16 v[{10+4*k}:{11+4*k}], v3 offset:{k*1024+256}")
            if k % 4 == 3: p("s_waitcnt lgkmcnt(0)")
        p("s_waitcnt lgkmcnt(0)")
        for k in range(n):
            p(f"buffer_store_dwordx4 v[{8+4*k}:{11+4*k}], v{VL}, s[12:15], s60 offen\ns_add_u32 s60, s60, 1024")
    p(f"s_waitcnt vmcnt(0)\nds_write_b32 v{GF}, v0 offset:48")
    w3_dma(8)
    NP = 8 if VAR.get('ipf', 1) else 0
    if NP:
        p(f"""
        s_sub_u32 s36, s26, 28
        s_lshl_b32 s36, s36, 2
        s_add_u32 s36, s36, s24                 ; wave16
        v_lshlrev_b32 v5, 12, v1
        s_lshl_b32 s56, s25, 20
        s_and_b32 s37, s36, 3
        s_lshl_b32 s37, s37, 18
        s_add_u32 s56, s56, s37
        s_lshr_b32 s37, s36, 2
        s_lshl_b32 s37, s37, 10
        s_add_u32 s56, s56, s37
        """)
        for g in range(8): p(f"buffer_load_dword v6, v5, s[16:19], s56 offen offset:{g*128}")
    p(f"""
    v_lshrrev_b32 v4, 5, v1
    v_lshlrev_b32 v3, 9, v4
    v_bfe_u32 v4, v1, 2, 2
    v_lshl_add_u32 v3, v4, 6, v3
    v_bfe_u32 v4, v1, 4, 1
    v_lshl_add_u32 v3, v4, 5, v3
    v_and_b32 v4, 1, v1
    v_lshl_add_u32 v3, v4, 4, v3
    v_bfe_u32 v4, v1, 1, 1
    v_lshl_add_u32 v3, v4, 3, v3
    v_add_u32 v3, s61, v3
    s_waitcnt vmcnt({NP})
    """)
    w3_out(8)
    p("s_cmp_eq_u32 s35, 8\ns_cbranch_scc1 L_w3done")
    w3_dma(6)
    p("s_waitcnt vmcnt(0)")
    w3_out(6)
    p.label("L_w3done")
    if not VAR['fuse3']:
        p("s_endpgm"); return
    p(f"""
    s_lshr_b32 s33, s34, 1
    s_lshl_b32 s33, s33, 7                      ; (nt>>1)*128
    s_and_b32 s34, s34, 1
    s_lshl_b32 s34, s34, 4
    s_add_u32 s33, s33, s34
    s_lshr_b32 s34, s67, 10                     ; 0 or 32
    s_add_u32 s33, s33, s34
    s_lshl_b32 s34, s24, 2
    s_add_u32 s33, s33, s34
    s_add_u32 s33, s33, {WFL}
    s_waitcnt vmcnt(0)
    buffer_store_dword v0, off, s[12:15], s33 sc1
    """)
    flag_addr(p)
    p.label("L_g2w")
    p(f"s_mov_b32 s48, {OFL}")
    poll(p, "L_p0", 48, G+6, None, G+5, sleep=32)
    gen_g2(p, st)


FA = 4
def FWr(k): return 152 + 4*k if k < 20 else 68 + 4*(k-20)
def FRr(k): return 100 + 4*k if k < 13 else 232 + 4*(k-13)
FX = 68
FXU = 216
FL_ = 244; FO = 245; FT = 246
def poll(p, name, soff, voff, mask_hi_lo, tmp, bad=0, sleep=None):
    p(f"s_mov_b32 s47, 0")
    p.label(name)
    p(f"buffer_load_dword v{tmp}, v{voff}, s[12:15], s{soff} offen sc1\ns_add_u32 s47, s47, 1\ns_waitcnt vmcnt(0)")
    p(f"v_cmp_eq_u32 vcc, {bad}, v{tmp}\ns_cbranch_vccz {name}_ok\ns_cmp_gt_u32 s47, 0x40000\ns_cbranch_scc1 {name}_ok\ns_sleep {sleep or VAR.get('psleep', 16)}\ns_branch {name}")
    p.label(name + "_ok")
def g2_scalars(p):
    p(f"""
    s_load_dwordx2 s[6:7], s[0:1], {KA_X}
    s_load_dwordx2 s[8:9], s[0:1], {KA_OUT}
    s_lshr_b32 s27, s26, 3
    s_lshl_b32 s28, s25, 2
    s_add_u32 s27, s27, s28                ; tb
    s_and_b32 s28, s26, 7                  ; nb
    s_and_b32 s29, s24, 1
    s_lshr_b32 s30, s24, 1
    s_lshl_b32 s32, s27, 1
    s_add_u32 s33, s32, s29
    s_xor_b32 s34, s33, 1
    s_lshl_b32 s32, s28, 1
    s_add_u32 s35, s32, s30
    s_xor_b32 s37, s35, 1
    s_mul_i32 s40, s33, {88*1024}
    s_mul_i32 s41, s34, {88*1024}
    s_mul_i32 s42, s35, {88*1024}
    s_mul_i32 s43, s37, {88*1024}
    s_add_u32 s40, s40, {A3}
    s_add_u32 s41, s41, {A3}
    s_add_u32 s42, s42, {W3F}
    s_add_u32 s43, s43, {W3F}
    s_mul_i32 s31, s24, {14*1024}
    s_add_u32 s31, s31, {32*1024}
    s_lshl_b32 s32, s24, 13
    s_lshl_b32 s44, s33, 15
    s_lshl_b32 s45, s35, 6
    s_add_u32 s44, s44, s45
    s_mov_b32 s49, 0
    s_waitcnt lgkmcnt(0)
    """)
def w_loads(p, s0, s1):
    for s_ in range(s0, s1):
        for i in range(2):
            if s_ == s0 or s_ % 4 == 0: p(f"s_add_u32 s{54+i}, s{42+i}, s31\ns_add_u32 s{54+i}, s{54+i}, {(s_//4)*4096}")
            p(f"buffer_load_dwordx4 {vr(FWr(s_*2+i),4)}, v{FL_}, s[12:15], s{54+i} offen offset:{(s_%4)*1024} sc1")
def gen_g2(p, st):
    p("s_setprio 3")
    g2_scalars(p)
    p.label("L_g2_redo")
    w_loads(p, 0, 14)
    p.label("L_g2")
    for i in range(2): p(f"s_add_u32 s{52+i}, s{40+i}, s31")
    for i in range(4): p(f"s_add_u32 s{56+i}, s{40+i}, s32")
    st(p, 8)
    p(f"""
    s_min_u32 s46, s52, s53
    s_min_u32 s45, s56, s57
    v_lshrrev_b32 v2, 1, v1
    v_min_u32 v{FT+2}, 13, v2
    v_min_u32 v{FT+1}, 7, v2
    v_and_b32 v3, 1, v1
    v_mul_u32_u24 v3, {88*1024}, v3
    v_add_u32 v3, 1020, v3
    v_lshl_add_u32 v{FT+2}, v{FT+2}, 10, v3
    v_lshl_add_u32 v{FT+1}, v{FT+1}, 10, v3
    v_and_b32 v2, 31, v1
    """)
    bitswap23(p, 2, 2, 3)
    p(f"v_lshrrev_b32 v3, 5, v1\nv_lshlrev_b32 v3, 4, v3\nv_lshl_add_u32 v{FO}, v2, 10, v3\nv_mov_b32 v{FT+5}, 0")
    srd(p, 16, 6, 2048*1024); srd(p, 20, 8, 2048*1024)
    st(p, 9)
    poll(p, "L_p1", 46, FT+2, None, FT+4, bad=-1)
    st(p, 4)
    p(f"s_setprio {VAR.get('prio_u', 0)}")
    NR = 8
    def ld(s):
        o = []
        if s and s % 4 == 0: o += [I(f"s_add_u32 s{52+i}, s{52+i}, 4096") for i in range(2)]
        for i in range(2):
            o.append(I(f"buffer_load_dwordx4 {vr(FRr((s%NR)*2+i),4)}, v{FL_}, s[12:15], s{52+i} offen offset:{(s%4)*1024} sc1", tag=f"g{s}"))
        return o
    for s_ in range(NR): p.add(ld(s_))
    for s_ in range(14):
        p.wait(vm=f"g{s_}")
        for n_, (a, b) in enumerate(((0,0), (0,1), (1,0), (1,1))):
            d = vr(FA + (a*2+b)*16, 16)
            p.add([mfma32(d, vr(FWr(s_*2+a),4), vr(FRr((s_%NR)*2+b),4), "0" if s_ == 0 else d)])
            r0 = FRr((s_%NR)*2 + n_//2) + 2*(n_%2)
            p(f"v_max3_u32 v{FT+5}, v{FT+5}, v{r0}, v{r0+1}")
        if s_+NR < 14: p.add(ld(s_+NR))
        if s_ >= 6:
            k = s_-6
            for i in range(2):
                p(f"s_add_u32 s47, s{58+i}, {(k//4)*4096}")
                p(f"buffer_load_dwordx4 {vr(FWr(k*2+i),4)}, v{FL_}, s[12:15], s47 offen offset:{(k%4)*1024} sc1", tag="wo")
    p(f"buffer_load_dwordx4 {vr(FX,4)}, v{FO}, s[16:19], s44 offen", tag="x")
    p(f"buffer_load_dwordx4 {vr(FX+4,4)}, v{FO}, s[16:19], s44 offen offset:32", tag="x")
    p(f"s_setprio 3\nv_cmp_eq_u32 vcc, -1, v{FT+5}\ns_cbranch_vccnz L_g2_again")
    p.label("L_g2_go")
    p.wait(vm="x")
    for d_ in range(7, -1, -1):
        p(f"v_and_b32 v{FXU+2*d_+1}, 0xffff0000, v{FX+d_}\nv_lshlrev_b32 v{FXU+2*d_}, 16, v{FX+d_}")
    st(p, 5)
    p("s_barrier")
    p("s_add_u32 s58, s56, 4096\ns_add_u32 s59, s57, 4096\ns_mov_b32 s49, 0")
    p.label("L_p3")
    poll(p, "L_p2", 45, FT+1, None, FT+4, bad=-1, sleep=VAR.get('p3sleep', 4))
    for s_ in range(8):
        for i in range(2):
            p(f"buffer_load_dwordx4 {vr(FRr(s_*2+i),4)}, v{FL_}, s[12:15], s{56+i+2*(s_//4)} offen offset:{(s_%4)*1024} sc1", tag=f"o{s_}")
    p(f"v_mov_b32 v{FT+4}, 0\ns_add_u32 s49, s49, 1")
    for s_ in range(8):
        p.wait(vm=f"o{s_}")
        for k in range(0, 8, 2): p(f"v_max3_u32 v{FT+4}, v{FT+4}, v{FRr(2*s_+k//4)+k%4}, v{FRr(2*s_+k//4)+k%4+1}")
    p(f"v_cmp_eq_u32 vcc, -1, v{FT+4}\ns_cbranch_vccz L_p3_ok\ns_cmp_lt_u32 s49, 64\ns_cbranch_scc1 L_p3")
    p.label("L_p3_ok")
    st(p, 6)
    for i in range(1, 4):
        p(f"s_xor_b32 s46, s24, {i}\ns_mul_i32 s46, s46, 12288\ns_add_u32 s46, s46, {(i-1)*4096}\nv_add_u32 v{FT+i}, s46, v{FL_}")
    p(f"s_mul_i32 s46, s24, 12288\nv_add_u32 v{FT}, s46, v{FL_}")
    for s_ in range(8):
        order = ((0,0), (0,1), (1,0), (1,1)) if s_ < 7 else ((0,1), (1,0), (1,1), (0,0))
        for (a, b) in order:
            d = vr(FA + (a*2+b)*16, 16)
            p.add([mfma32(d, vr(FWr(s_*2+a),4), vr(FRr(s_*2+b),4), d)])
    for i in range(1, 4):
        for k in range(4): p(f"ds_write_b128 v{FT+i}, {vr(FA+i*16+4*k,4)} offset:{k*1024}")
    for r in range(16): p(f"v_add_f32 v{FA+r}, v{FA+r}, v{FXU+r}")
    p("s_waitcnt lgkmcnt(0)\ns_barrier")
    for k in range(12): p(f"ds_read_b128 {vr(FA+16+4*k,4)}, v{FT} offset:{k*1024}", tag=f"r{k}")
    for k in range(12):
        p.wait(lg=f"r{k}")
        for e in range(4): p(f"v_add_f32 v{FA+(4*k+e)%16}, v{FA+(4*k+e)%16}, v{FA+16+4*k+e}")
    for d in range(8): p(f"v_cvt_pk_bf16_f32 v{FX+d}, v{FA+2*d}, v{FA+2*d+1}")
    p(f"buffer_store_dwordx4 {vr(FX,4)}, v{FO}, s[20:23], s44 offen")
    p(f"buffer_store_dwordx4 {vr(FX+4,4)}, v{FO}, s[20:23], s44 offen offset:32")
    st(p, 7)
    if st.on and VAR.get('dbg') is not None:
        D = VAR['dbg']
        p(f"s_cmp_lg_u32 s2, {D}\ns_cbranch_scc1 L_end\ns_cmp_lg_u32 s24, 0\ns_cbranch_scc1 L_end")
        p(f"s_load_dwordx2 s[6:7], s[0:1], {KA_DBG}\ns_waitcnt vmcnt(0)")
        sel = [(0,0,15),(0,0,1),(0,0,5),(0,0,7),(0,0,9),(1,0,15),(1,0,1),(1,0,2),(1,0,3),(1,4,1),(1,4,2),(1,4,3),(1,4,4),(1,4,5),(1,4,6),(1,4,7)]
        for i, (k, w, sl) in enumerate(sel):
            off = STAMP + k*0x80000 + (D*16 + w)*128 + sl*8 + 4
            p(f"v_mov_b32 v3, {off:#x}\nbuffer_load_dword v{100+i}, v3, s[12:15], 0 offen sc1")
        p("s_waitcnt vmcnt(0) lgkmcnt(0)")
        srd(p, 16, 6, 256)
        for i in range(16):
            p(f"v_sub_u32 v2, v{100+i}, v100\nbuffer_store_dword v2, off, s[16:19], 0 offset:{4*i}")
    p("s_endpgm")
    p.label("L_g2_again")
    p("s_add_u32 s49, s49, 1\ns_cmp_gt_u32 s49, 64\ns_cbranch_scc1 L_g2_go\ns_waitcnt vmcnt(0)\ns_branch L_g2_redo")

def gen_k2(with_gemm=True, with_att=True, stamp=False):
    p = Prog()
    entry_stamp(p, stamp)
    p(f"""
    s_cmp_ge_u32 s2, 256
    s_cbranch_scc1 L_end
    s_load_dwordx2 s[4:5], s[0:1], {KA_WS}
    s_load_dwordx4 s[8:11], s[0:1], {KA_WSP}
    v_and_b32 v1, 63, v0
    v_lshrrev_b32 v2, 6, v0
    v_readfirstlane_b32 s24, v2
    s_and_b32 s25, s2, 7
    s_lshr_b32 s26, s2, 3
    s_lshr_b32 s27, s26, 3
    s_lshl_b32 s28, s25, 2
    s_add_u32 s27, s27, s28                ; head
    s_and_b32 s28, s26, 7                  ; qb
    v_mov_b32 v2, 0
    v_lshlrev_b32 v3, 2, v1
    v_add_u32 v3, {LDS_FLAG}, v3
    ds_write_b32 v3, v2
    s_mov_b32 s50, s24
    s_waitcnt lgkmcnt(0)
    """)
    srd(p, 12, 4, WS_USED); srd(p, 16, 8, 2048*2048*2); srd(p, 20, 10, 4096)
    st0 = (Stamper(stamp and not SOLO, 50, 252, kid=1) if not SOLO else Stamper(stamp, 50, 252))
    st0(p, 0); entry_store(p, st0)
    p("s_cmp_ge_u32 s24, 4\ns_cbranch_scc1 L_gemm")
    if with_att: gen_attention(p, (Stamper(stamp and not SOLO, 50, 252, kid=1) if not SOLO else Stamper(stamp, 50, 252)))
    else: p("s_endpgm")
    p.label("L_gemm")
    if with_gemm: gen_gemm(p, (Stamper(stamp and not SOLO, 50, 252, kid=1) if not SOLO else Stamper(stamp, 50, 252)))
    p.label("L_end")
    p("s_endpgm")
    return p

def k2_paths(l):
    lab = {x.op: i for i, x in enumerate(l) if x.kind == "label"}
    g = lab["L_gemm"]
    att = l[:g]
    end_att = next(i for i, x in enumerate(att) if x.kind == "misc" and x.base == "s_endpgm")
    head_end = next(i for i, x in enumerate(l) if x.kind == "branch" and x.target == "L_gemm")
    idle = lab["L_idle"]
    g2 = lab.get("L_g2", len(l))
    return [linearize(att[:end_att+1], {"L_att_loop": 3}), linearize(l[:head_end] + l[g:idle] + l[g2:], {"L_g_loop": 2}), l[idle:]]

K2_DESC = dict(name="k2_kernel", vgpr=256, sgpr=102, accum=256, grid=256, block=512, lds=K2_LDS)
if __name__ == "__main__":
    p = gen_k2()
    l, errs = finalize("k2", p, paths=k2_paths, verbose=True)
```

```python
import re

TRANS = ("v_exp_f32","v_log_f32","v_rcp_f32","v_rsq_f32","v_sqrt_f32","v_sin_f32","v_cos_f32","v_exp_f16","v_rcp_iflag_f32")
MFMA_PASSES = {"v_mfma_f32_32x32x16_bf16":8, "v_mfma_f32_16x16x32_bf16":4, "v_mfma_f32_4x4x4_16b_bf16":2}

def regs_of(tok):
    tok = tok.strip()
    tok = re.sub(r"^-", "", tok)
    m = re.match(r"^abs\((.*)\)$", tok) or re.match(r"^\|(.*)\|$", tok)
    if m: tok = m.group(1)
    m = re.match(r"^([vas])\[(\d+):(\d+)\]$", tok)
    if m: return [f"{m.group(1)}{i}" for i in range(int(m.group(2)), int(m.group(3))+1)]
    m = re.match(r"^([vas])(\d+)$", tok)
    if m: return [tok]
    if tok in ("vcc","exec"): return [tok+"_lo", tok+"_hi"]
    if tok in ("vcc_lo","vcc_hi","exec_lo","exec_hi","m0"): return [tok]
    return []

class I:
    def __init__(self, text, tag=None, needs=None, comment=None):
        self.text = text.strip()
        self.tag = tag
        self.needs = needs or []
        self.comment = comment
        self.kind = None
        self.rd = set(); self.wr = set()
        self.parse()
    def parse(self):
        t = self.text
        if t.endswith(":") : self.kind = "label"; self.op = t[:-1]; return
        if t.startswith("."): self.kind = "dir"; self.op = t; return
        parts = t.split(None, 1)
        op = parts[0]; self.op = op
        rest = parts[1] if len(parts) > 1 else ""
        ops = []; depth = 0; cur = ""
        for ch in rest:
            if ch in "[(": depth += 1
            if ch in "])": depth -= 1
            if ch == "," and depth == 0: ops.append(cur); cur = ""
            else: cur += ch
        if cur.strip(): ops.append(cur)
        mods = ""
        if ops:
            last = ops[-1].strip()
            sp = re.split(r"\s+", last, 1) if not last.startswith("abs(") else [last]
            ops[-1] = sp[0]
            if len(sp) > 1: mods = sp[1]
        ops = [o.strip() for o in ops]
        self.ops = ops; self.mods = mods
        R = lambda i: regs_of(ops[i]) if i < len(ops) else []
        base = re.sub(r"_(e32|e64|dpp|sdwa)$", "", op)
        self.base = base
        self.dpp = op.endswith("_dpp") or "row_" in mods or "quad_perm" in mods
        if base.startswith("v_mfma"):
            self.kind = "mfma"; self.passes = MFMA_PASSES[base]
            self.D = R(0); self.A = R(1); self.B = R(2); self.C = R(3)
            self.wr = set(self.D); self.rd = set(self.A + self.B + self.C)
        elif base.startswith("v_"):
            self.kind = "valu"
            self.trans = base in TRANS
            if base.startswith("v_cmp"):
                self.wr = set(R(0)); self.rd = set(sum([R(i) for i in range(1, len(ops))], []))
            elif base in ("v_readfirstlane_b32", "v_readlane_b32"):
                self.wr = set(R(0)); self.rd = set(sum([R(i) for i in range(1, len(ops))], []))
            elif (base.startswith("v_permlane") and "swap" in base) or base == "v_swap_b32":
                self.wr = set(R(0)+R(1)); self.rd = set(R(0)+R(1))
            elif base in ("v_add_co_u32","v_sub_co_u32","v_addc_co_u32","v_subb_co_u32"):
                self.wr = set(R(0)+R(1)); self.rd = set(sum([R(i) for i in range(2, len(ops))], []))
            else:
                self.wr = set(R(0)); self.rd = set(sum([R(i) for i in range(1, len(ops))], []))
                if base in ("v_fmac_f32","v_dot2c_f32_bf16","v_writelane_b32") or "UNUSED_PRESERVE" in mods or self.dpp:
                    self.rd |= set(R(0))
                if base == "v_cndmask_b32" and len(ops) == 3: self.rd |= {"vcc_lo","vcc_hi"}
        elif base.startswith("ds_"):
            self.kind = "ds"
            if base.startswith("ds_write2"): ops_ = ops
            if base.startswith("ds_read") or base.startswith("ds_bpermute") or base.startswith("ds_swizzle") or "_rtn" in base:
                self.wr = set(R(0)); self.rd = set(sum([R(i) for i in range(1, len(ops))], []))
            else:
                self.rd = set(sum([R(i) for i in range(len(ops))], []))
        elif base.startswith("buffer_") or base.startswith("global_"):
            self.kind = "vmem"
            allm = " " + mods + " "
            self.lds = " lds " in allm or "load_lds" in base
            if base in ("buffer_inv","buffer_wbl2"):
                pass
            elif "load" in base and not self.lds:
                self.wr = set(R(0)); self.rd = set(sum([R(i) for i in range(1, len(ops))], []))
            elif "atomic" in base and " sc0 " in allm:
                self.wr = set(R(0)); self.rd = set(sum([R(i) for i in range(len(ops))], []))
            else:
                self.rd = set(sum([R(i) for i in range(len(ops))], []))
                if self.lds: self.rd |= {"m0"}
            self.store = "store" in base
            self.wide = self.store and ("x4" in base or "x3" in base)
            if self.store:
                self.data = set(R(0)) if base.startswith("buffer_") else set(R(1))
        elif base.startswith("s_load") or base.startswith("s_memtime") or base.startswith("s_memrealtime") or base.startswith("s_buffer_load"):
            self.kind = "smem"
            self.wr = set(R(0)); self.rd = set(sum([R(i) for i in range(1, len(ops))], []))
        elif base == "s_waitcnt":
            self.kind = "wait"
            self.vm = self.lg = None
            m = re.search(r"vmcnt\((\d+)\)", t);  self.vm = int(m.group(1)) if m else None
            m = re.search(r"lgkmcnt\((\d+)\)", t); self.lg = int(m.group(1)) if m else None
        elif base == "s_nop":
            self.kind = "nop"; self.n = int(ops[0]) + 1
        elif base.startswith("s_cbranch") or base == "s_branch":
            self.kind = "branch"; self.target = ops[0]
        elif base in ("s_barrier","s_endpgm","s_setprio","s_sleep"):
            self.kind = "misc"
        elif base.startswith("s_"):
            self.kind = "salu"
            if base.startswith("s_cmp") or base.startswith("s_bitcmp"):
                self.rd = set(sum([R(i) for i in range(len(ops))], []))
            else:
                self.wr = set(R(0)); self.rd = set(sum([R(i) for i in range(1, len(ops))], []))
                if "saveexec" in base: self.wr |= {"exec_lo","exec_hi"}; self.rd |= {"exec_lo", "exec_hi"}
                if base in ("s_addk_i32","s_mulk_i32"): self.rd |= set(R(0))
        else:
            raise ValueError("unknown instr " + t)
    def states(self):
        if self.kind in ("label","dir"): return 0
        if self.kind == "nop": return self.n
        return 1
    def __repr__(self): return self.text

class W:
    def __init__(self, vm=(), lg=(), vm0=False, lg0=False):
        self.vm = [vm] if isinstance(vm, str) else list(vm)
        self.lg = [lg] if isinstance(lg, str) else list(lg)
        self.vm0 = vm0; self.lg0 = lg0
        self.kind = "symwait"

def need_states(p, c):
    n = 0
    if p.kind == "valu":
        vw = {r for r in p.wr if r[0] in "va" and not r.startswith("vcc")}
        sw = {r for r in p.wr if r[0] == "s" or r.startswith("vcc")}
        if c.kind == "mfma" and vw & c.rd: n = max(n, 2)
        if c.kind == "valu":
            if p.trans and not c.trans and (vw & c.rd): n = max(n, 1)
            if p.trans and c.trans and (vw & c.rd): n = max(n, 1)
            if c.base.startswith("v_permlane") and vw & c.rd: n = max(n, 2)
            if c.dpp and vw & c.rd: n = max(n, 2)
            if c.base in ("v_readfirstlane_b32","v_readlane_b32") and vw & c.rd: n = max(n, 1)
            if sw & c.rd: n = max(n, 4 if c.base in ("v_readlane_b32","v_writelane_b32") else 2)
            if ("sdwa" in p.op or "op_sel" in p.mods and not p.base.startswith("v_pk")) and vw & (c.rd | c.wr): n = max(n, 1)
        if c.kind == "vmem" and sw & c.rd: n = max(n, 5)
        if c.kind in ("salu","smem","branch") and sw & c.rd: n = max(n, 1)
    if p.kind == "mfma":
        P = p.passes
        D = set(p.D)
        big = {2:5, 4:8, 8:12}[P]
        if c.kind == "mfma":
            if D & (set(c.A) | set(c.B)): n = max(n, big)
            if D & set(c.C):
                if c.C == p.D and c.passes == P: n = max(n, 2 if P == 2 else 0)
                else: n = max(n, {2:4, 4:6, 8:10}[P])
            elif D & set(c.D):
                n = max(n, big)
        elif c.kind in ("valu","vmem","ds"):
            if D & (c.rd | c.wr): n = max(n, big)
        if c.kind == "valu" and set(p.C) & c.wr: n = max(n, {2:1, 4:3, 8:7}[P])
        if c.kind in ("ds","vmem") and set(p.C) & c.wr: n = max(n, {2:1, 4:3, 8:7}[P])
    if p.kind == "salu" and "m0" in p.wr and c.kind == "vmem" and getattr(c, "lds", False): n = max(n, 1)
    if p.kind == "vmem" and getattr(p, "wide", False):
        if p.data & c.wr: n = max(n, 2 if c.kind == "valu" else 1)
    if p.kind == "ds" and p.base in ("ds_write_b128","ds_write_b96"):
        pass
    return n

class Prog:
    def __init__(self):
        self.l = []
    def __call__(self, text, **kw):
        for line in text.strip().split("\n"):
            line = line.split(";")[0].strip()
            if line: self.l.append(I(line, **kw))
        return self
    def add(self, items):
        for x in items:
            if isinstance(x, str): self(x)
            else: self.l.append(x)
        return self
    def wait(self, **kw): self.l.append(W(**kw)); return self
    def label(self, n): self.l.append(I(n + ":")); return self

def vclass(x):
    if getattr(x, "store", False) or "atomic" in x.base: return "st"
    if " sc1" in x.text or " sc0" in x.text: return "sc"
    if "x4" not in x.base: return "small"
    return "ld"
def younger_same(q, i):
    c = vclass(q[i]); return sum(1 for y in q[i+1:] if vclass(y) == c and not getattr(y, "maybe", False))
def retire(q, n):
    return [x for i, x in enumerate(q) if younger_same(q, i) < n]

class Skips:
    def __init__(self, l):
        pos = {x.op: i for i, x in enumerate(l) if getattr(x, "kind", "") == "label"}
        self.l = l; self.snap = {}; self.tgt = {}
        for y in l:
            if hasattr(y, "maybe"): y.maybe = False
        for i, x in enumerate(l):
            if getattr(x, "kind", "") == "branch" and x.base != "s_branch" and pos.get(x.target, -1) > i:
                j = pos[x.target]
                ends = any(getattr(y, "kind", "") == "misc" and y.base == "s_endpgm" for y in l[i:j])
                pv = l[j-1]
                if getattr(pv, "kind", "") == "branch" and pv.base == "s_branch": ends = True
                nx = next((y for y in l[j:] if getattr(y, "kind", "") not in ("label", "dir")), None)
                if nx is None or (nx.kind == "misc" and nx.base == "s_endpgm"): ends = True
                if not ends:
                    self.tgt[i] = x.target
    def step(self, i, x, vmq, lgq):
        if i in self.tgt: self.snap.setdefault(self.tgt[i], []).append((list(vmq), list(lgq)))
        if getattr(x, "kind", "") == "label" and x.op in self.snap:
            for sv, sl in self.snap.pop(x.op):
                for y in vmq + lgq:
                    if y not in sv and y not in sl: y.maybe = True
                vmq = [y for y in sv if y not in vmq] + vmq
                lgq = [y for y in sl if y not in lgq] + lgq
        return vmq, lgq
def lg_younger(q, i): return sum(1 for y in q[i+1:] if not getattr(y, "maybe", False))
def lg_retire(q, n): return [x for i, x in enumerate(q) if lg_younger(q, i) < n]

def resolve_waits(l, reset_labels=()):
    vmq = []; lgq = []
    out = []
    sk = Skips(l)
    for i_, x in enumerate(l):
        vmq, lgq = sk.step(i_, x, vmq, lgq)
        if x.kind == "symwait":
            parts = []
            vm = None; lg = None
            if x.vm0: vm = 0
            for t in x.vm:
                idx = [i for i, q in enumerate(vmq) if q.tag == t]
                if idx:
                    n = min(younger_same(vmq, i) for i in idx)
                    vm = n if vm is None else min(vm, n)
            if x.lg0: lg = 0
            for t in x.lg:
                idx = [i for i, q in enumerate(lgq) if q.tag == t]
                if idx:
                    n = min(lg_younger(lgq, i) for i in idx)
                    if any(q.kind == "smem" for q in lgq): n = 0
                    lg = n if lg is None else min(lg, n)
            if vm is not None and vm >= len(vmq) and not x.vm0: vm = None
            if vm is not None:
                vm = min(vm, 63); parts.append(f"vmcnt({vm})"); vmq = retire(vmq, vm)
            if lg is not None:
                lg = min(lg, 15); parts.append(f"lgkmcnt({lg})"); lgq = lg_retire(lgq, lg)
            if parts: out.append(I("s_waitcnt " + " ".join(parts)))
            continue
        if x.kind == "wait":
            if x.vm is not None: vmq = retire(vmq, x.vm)
            if x.lg is not None: lgq = lg_retire(lgq, x.lg)
        if x.kind == "vmem": vmq.append(x)
        if x.kind in ("ds","smem"):
            cnt = sum(2 if q.kind == "smem" else 1 for q in lgq) + (2 if x.kind == "smem" else 1)
            if cnt > 14:
                if any(q.kind == "smem" for q in lgq): out.append(I("s_waitcnt lgkmcnt(0)")); lgq = []
                else: out.append(I("s_waitcnt lgkmcnt(12)")); lgq = lgq[len(lgq)-12:]
            lgq.append(x)
        out.append(x)
    return out

def pad_hazards(l, verbose=False):
    out = []
    WIN = 24
    npad = 0
    for c in l:
        if c.kind in ("label","dir"): out.append(c); continue
        need = 0; dist = 0
        for p in reversed(out):
            if dist > WIN: break
            if p.kind in ("label","dir"): continue
            if p.kind == "branch" and p.base == "s_branch": break
            if p.kind == "misc" and p.base == "s_endpgm": break
            n = need_states(p, c)
            if n > dist: need = max(need, n - dist)
            dist += p.states()
        if need:
            npad += need
            if verbose: print("pad", need, "before", c.text)
            while need > 0:
                k = min(need, 16); out.append(I(f"s_nop {k-1}")); need -= k
        out.append(c)
    return out, npad

def check_branch_hazards(l):
    labels = {x.op: i for i, x in enumerate(l) if x.kind == "label"}
    errs = []
    for i, b in enumerate(l):
        if b.kind != "branch" or b.target not in labels: continue
        before = [x for x in l[max(0, i-40):i+1] if x.kind not in ("label","dir")]
        after = []
        for x in l[labels[b.target]:labels[b.target]+60]:
            if x.kind in ("label","dir"): continue
            after.append(x)
            if x.kind == "branch" and x.base == "s_branch": break
        d_after = 0
        for c in after:
            dist = d_after
            for p in reversed(before):
                if dist > 24: break
                n = need_states(p, c)
                if n > dist: errs.append(f"branch hazard via {b.text}: {p.text} -> {c.text} need {n} have {dist}")
                dist += p.states()
            d_after += c.states()
            if d_after > 24: break
    return errs

def check_waits(seq):
    vmq = []; lgq = []; errs = []
    sk = Skips(seq)
    for i_, x in enumerate(seq):
        vmq, lgq = sk.step(i_, x, vmq, lgq)
        if x.kind in ("label","dir"): continue
        if x.kind == "wait":
            if x.vm is not None: vmq = retire(vmq, x.vm)
            if x.lg is not None:
                if any(q.kind == "smem" for q in lgq):
                    if x.lg == 0: lgq = []
                else: lgq = lg_retire(lgq, x.lg)
            continue
        touched = x.rd | x.wr
        for q in vmq + lgq:
            if q.wr & touched and not (q.kind == x.kind and not (q.wr & x.rd) and x.kind in ("vmem","ds")):
                errs.append(f"unwaited: {q.text}  -> {x.text}")
        for t in x.needs:
            if any(q.tag == t for q in vmq + lgq): errs.append(f"needs {t} outstanding at {x.text}")
        if x.kind == "vmem":
            vmq.append(x)
            if len(vmq) > 63 and not any(vclass(y) == "st" for y in vmq): errs.append("vmcnt overflow at " + x.text)
        if x.kind in ("ds","smem"):
            lgq.append(x)
            if sum(2 if q.kind == "smem" else 1 for q in lgq) > 15: errs.append("lgkmcnt overflow at " + x.text)
    return errs

def linearize(l, loops):
    out = []; i = 0
    labels = {x.op: k for k, x in enumerate(l) if x.kind == "label"}
    while i < len(l):
        x = l[i]
        if x.kind == "label" and x.op in loops:
            j = next(k for k in range(i, len(l)) if l[k].kind == "branch" and l[k].target == x.op)
            body = l[i:j+1]
            for _ in range(loops[x.op]): out += body
            i = j + 1
        else:
            out.append(x); i += 1
    return out

def interleave(main, fill, per_gap=None, start=0, is_anchor=lambda x: getattr(x, "kind", "") == "mfma" and x.passes == 8, budget=None):
    out = []; fi = 0; k = 0
    def cost(x):
        if getattr(x, "kind", "") == "valu" and x.trans: return 2
        if getattr(x, "kind", "") in ("symwait",): return 1
        return 1
    for x in main:
        out.append(x)
        if is_anchor(x):
            if k >= start:
                b = per_gap(k) if callable(per_gap) else per_gap
                while fi < len(fill) and b - cost(fill[fi]) >= 0:
                    b -= cost(fill[fi]); out.append(fill[fi]); fi += 1
            k += 1
    out += fill[fi:]
    return out

def render(l):
    s = []
    for x in l:
        if x.kind == "label": s.append(x.text)
        elif x.kind == "dir": s.append(x.text)
        else: s.append("    " + x.text)
    return "\n".join(s) + "\n"

def finalize(name, prog, loops=None, verbose=False, paths=None):
    l = resolve_waits(prog.l)
    l, npad = pad_hazards(l, verbose)
    errs = check_branch_hazards(l)
    seqs = paths(l) if paths else [linearize(l, loops or {})]
    for s in seqs: errs += check_waits(s)
    n_ins = sum(1 for x in l if x.kind not in ("label","dir"))
    print(f"[{name}] instrs={n_ins} nops_padded={npad} errs={len(errs)}")
    for e in errs[:30]: print("   ERR", e)
    return l, errs

def kernel_text(name, l, vgpr, sgpr, accum):
    s = f".globl {name}\n.p2align 8\n.type {name},@function\n{name}:\n" + render(l)
    return s

def descriptor(name, vgpr, sgpr, accum):
    return f""".p2align 6
.amdhsa_kernel {name}
  .amdhsa_next_free_vgpr {vgpr}
  .amdhsa_next_free_sgpr {sgpr}
  .amdhsa_accum_offset {accum}
  .amdhsa_group_segment_fixed_size 0
  .amdhsa_kernarg_size 88
  .amdhsa_user_sgpr_count 2
  .amdhsa_user_sgpr_kernarg_segment_ptr 1
  .amdhsa_system_sgpr_workgroup_id_x 1
  .amdhsa_float_denorm_mode_32 3
.end_amdhsa_kernel
"""
```

```python
import sys
from common import *
HDR = open("parallel_sum__mha_block__mixer_gmlp__prompt.s.ref").read().split("; Override launch")[0]
def build(kernels, path):
    s = HDR
    single = len(kernels) == 1 and kernels[0]['name'].startswith('parallel')
    for k in kernels:
        if single:
            s += f"; @launch grid=({k['grid']},1,1) block=({k['block']},1,1) lds={k['lds']}\n"; continue
        s += f"; @launch kernel={k['name']} grid=({k['grid']},1,1) block=({k['block']},1,1) lds={k['lds']}\n"
    s += '.amdgcn_target "amdgcn-amd-amdhsa--gfx950"\n.text\n'
    seen = []
    for k in kernels:
        if k['name'] in seen: continue
        seen.append(k['name'])
        txt = kernel_text(k['name'], k['l'], k['vgpr'], k['sgpr'], k['accum'])
        import re
        txt = re.sub(r"\bL_(\w+)", lambda m: f"L_{k['name'][:2]}_{m.group(1)}", txt)
        s += txt
    s += 'CODE_END:\n    s_endpgm\n.section .rodata,"a"\n'
    seen = []
    for k in kernels:
        if k['name'] in seen: continue
        seen.append(k['name'])
        s += descriptor(k['name'], k['vgpr'], k['sgpr'], k['accum'])
    open(path, "w").write(s)
    return s
```

```python
from common import *
import f2
def ar(b, n): return vr(128+b, n)
import struct, math
def fh(f): return hex(struct.unpack("<I", struct.pack("<f", f))[0])
K1_LDS = 163840
RING = 65536
BIAS = 3072
CNT = 3072
C0 = -2.0*math.sqrt(2.0/math.pi)*1.4426950408889634
A0, A1, A2, A3_ = 4, 20, 36, 52
LA = 2
WB = 68
CSF = 92
CSA = 100
T = 68
WC = 92; STQ = 96
SEL = 108; XC = 112
R1, RI, C0R, C1R = 116, 117, 118, 119
VXD = 116
VXR = 112
VL, VPI, VQ, VB = 120, 121, 122, 123
VA = 124
RR = 52
SX, Q0, Q1 = 52, 56, 60
VAR = dict(prio=True, per=1, rot=6, cpf=40960)
WI, WQ, XS = "s[16:19]", "s[20:23]", "s[24:27]"
SXE, SIE, SQE = 60, 64, 96

def dma1(lds_s, lds_c, sr, vo, sb, se, c, tag):
    return [I(f"s_add_u32 m0, s{lds_s}, {lds_c}"), I(f"s_add_u32 s69, s{sb}, s{se}"),
            I(f"buffer_load_dwordx4 v{vo}, {sr}, s69 offen offset:{c} lds" if False else f"s_add_u32 s69, s69, {c}"),
            I(f"buffer_load_dwordx4 v{vo}, {sr}, s69 offen lds", tag=tag)]
def E_addr(ks): return RING + ((ks//8)*24 + (ks%8)*3)*1024
def Q_addr(ks): return RING + ks*2048
def Z_addr(ks): return (131072 + ks*2048) if ks < 16 else (98304 + (ks-16)*2048)
CSO = 1024; RAW = 3072
SCR2 = 65536
VQP = 0
def dma_E(e):
    b = RING + e*24*1024
    return [dma1(58, b, WI, VPI, 80, SIE+e, 1792, f"E{e}"), dma1(58, b+1024, WI, VPI, 80, SIE+e, 1792+8*3584, f"E{e}"),
            dma1(58, b+2048, WQ, VQ, 81, SQE+e, 2048, f"E{e}")]
def dma_Q(e):
    b = RING + e*16384
    return [dma1(55, b, WQ, VQP, 82, SQE+e, 0, f"Q{e}"), dma1(55, b+1024, WQ, VQP, 82, SQE+e, 8*3072, f"Q{e}")]
def dma_Z(e):
    b = 131072 + e*16384
    return [dma1(55, b, WI, VPI, 80, SIE+e, 0, "Za"), dma1(55, b+1024, WI, VPI, 80, SIE+e, 8*3584, "Za")]
def dma_Zlate():
    return [[I(f"s_add_u32 m0, s54, {98304 + k*1024}"), I(f"s_add_u32 s69, s53, {k*8*3584}"),
             I(f"buffer_load_dwordx4 v{VPI}, {WI}, s69 offen lds", tag="Zb")] for k in range(8)]
def x_dma(e):
    return [[I(f"s_add_u32 m0, s59, {(2*e % 4)*4096 + i*1024}"), I(f"s_add_u32 s69, s56, s{SXE+e}"),
             I(f"buffer_load_dwordx4 v{VXD+i}, {XS}, s69 offen lds", tag=f"X{e}")] for i in range(4)]
def flat(x): return sum(x, [])
def x_read(ks):
    return [I(f"ds_read_b128 {ar(4*ks,4)}, v{VXR+ks%4} offset:{((ks//4)%4)*4096}", tag=f"xr{ks}")]
class Addr:
    def __init__(self, base): self.base = base
    def off(self, addr, out, span=2048+1024+6*1024*2):
        if not (0 <= addr - self.base and addr - self.base + 1024 <= 65535):
            nb = addr if addr < self.base else addr
            d = (nb - self.base) & 0xffffffff
            out += [I(f"v_add_u32 v{VA+k}, {d:#x}, v{VA+k}") for k in range(4)]
            self.base = nb
        return addr - self.base
def tr_read(dst, areg, off, e2, tag):
    return [I(f"ds_read_b64_tr_b16 {vr(dst+2*e,2)}, v{areg} offset:{off+e2*e}", tag=tag) for e in range(2)]
def m16(d, b, first): return I(f"v_mfma_f32_16x16x32_bf16 {vr(d,4)}, {vr(SEL,4)}, {b}, {'0' if first else vr(d,4)}")
def stats_mfma(ks):
    x = 4*ks; z = ks == 0
    return [m16(SX, ar(x,4), z),
            I(f"v_mfma_f32_4x4x4_16b_bf16 {vr(Q0,4)}, {ar(x,2)}, {ar(x,2)}, {'0' if z else vr(Q0,4)}"),
            I(f"v_mfma_f32_4x4x4_16b_bf16 {vr(Q1,4)}, {ar(x+2,2)}, {ar(x+2,2)}, {'0' if z else vr(Q1,4)}")]
def wb(ks, ti): return WB + ((ks % (LA+1))*2 + ti)*4
def stl(st, k):
    q = Prog(); st(q, k); return q.l

def gemm_pass(accs, addr_of, base0, nori, tagp, e2, hooks=None, cs_tiles=None, stats=False, cs_s=57, cs_o=CSO):
    nt = len(accs)
    am = Addr(base0)
    def rd(ks, dst, regs, tag):
        o = []
        off = am.off(addr_of(ks), o)
        for ti in range(nt): o += tr_read(dst(ti), regs+ti, off, e2, tag)
        return o
    o = []
    for ks in range(LA): o += rd(ks, lambda ti: wb(ks,ti), VA, f"{tagp}{ks}")
    for ks in range(32):
        pre = W(lg=[f"{tagp}{ks}", f"xr{ks}"])
        mf = []
        for ti in range(nt):
            w = vr(wb(ks,ti),4); x = ar(4*ks,4); d = vr(accs[ti],16)
            mf.append(mfma32(d, x, w, "0" if ks == 0 else d) if nori else mfma32(d, w, x, "0" if ks == 0 else d))
        h0, h1, h2 = hooks(ks) if hooks else ([], [], [])
        post = list(h0)
        tail = []
        if ks % 4 == 0 and cs_tiles:
            post += rd(ks, lambda ti: CSF+4*ti, VA+2, f"c{tagp}{ks}")
        if ks+LA < 32: post += rd(ks+LA, lambda ti: wb(ks+LA,ti), VA, f"{tagp}{ks+LA}")
        post += h1
        if ks % 4 == 1 and cs_tiles:
            pre.lg.append(f"c{tagp}{ks-1}")
            for ti in range(nt): tail.append(m16(CSA+4*ti, vr(CSF+4*ti,4), ks == 1))
        if ks == 30 and cs_tiles:
            tail.append(I(f"v_lshl_add_u32 v3, v1, 2, s{cs_s}"))
            for ti in range(nt): tail.append(I(f"ds_write_b32 v3, v{CSA+4*ti} offset:{cs_o + cs_tiles[ti]*256}"))
        if stats:
            if VAR.get('stfirst'): mf += stats_mfma(ks); mf_all = True
            else: tail += stats_mfma(ks)
        tail += h2
        if stats and VAR.get('stfirst'): o += [pre] + mf + post + tail
        else: o += [pre] + mf[:1] + post + mf[1:] + tail
    return o

def phase1_hooks(st):
    sched = {}
    def spread(pcs, first, per):
        pcs = list(pcs); k = first
        while pcs:
            for _ in range(per):
                if pcs: sched.setdefault(k, []).append(pcs.pop(0))
            k += 1
    spread(dma_E(2) + dma_E(3), 0, 1)
    spread(x_dma(2) + dma_Q(0), 8-LA, VAR['per'])
    spread(x_dma(3) + dma_Q(1) + dma_Q(2), 16-LA, VAR['per'])
    spread(dma_Q(3), 24-LA, VAR['per'])
    def hooks(ks):
        e, r8 = divmod(ks, 8)
        h0 = []; h1 = []
        if r8 == 8-LA and e < 3:
            h0 = [W(vm=[f"X{e+1}", f"E{e+1}"], lg0=True), I("s_barrier")] + stl(st, 2+e)
        if r8 >= 8-LA and e < 3:
            k0 = 8*(e+1) + 2*(r8-(8-LA)); h1 += x_read(k0) + x_read(k0+1)
        if r8 < 4: h1 += x_read(8*e+4+r8)
        h2 = flat(sched.get(ks, []))
        if ks == 26: h2 = h2 + [I(f"buffer_load_dword v{A2+1}, off, s[44:47], 0 sc1", tag="tag")]
        return h0, h1, h2
    return hooks

def set_va(p, pair, base, mstride):
    sh = 7 if pair else 6
    p(f"""
    v_lshrrev_b32 v2, 5, v1
    v_lshlrev_b32 v{VA}, {sh+3}, v2
    v_bfe_u32 v3, v1, 2, 2
    v_lshl_add_u32 v{VA}, v3, {sh}, v{VA}
    v_bfe_u32 v3, v1, 4, 1
    v_lshl_add_u32 v{VA}, v3, 5, v{VA}
    v_and_b32 v3, 1, v1
    v_lshl_add_u32 v{VA}, v3, 4, v{VA}
    v_bfe_u32 v3, v1, 1, 1
    v_lshl_add_u32 v{VA}, v3, 3, v{VA}
    """)
    if pair: p(f"v_bfe_u32 v3, v1, 3, 1\nv_lshl_add_u32 v{VA}, v3, 6, v{VA}")
    p(f"""
    v_add_u32 v{VA}, {base}, v{VA}
    s_mul_i32 s34, s29, {mstride}
    v_xor_b32 v{VA+1}, 64, v{VA}
    v_add_u32 v{VA+2}, s34, v{VA}
    v_add_u32 v{VA+3}, s34, v{VA+1}
    """)

def corr_from(b, d, nori):
    o = [I(f"v_sub_f32 v{b}, 0, v{b}"),
         I(f"v_cvt_pk_bf16_f32 v{WC+1}, v{b}, 0"),
         I(f"v_lshlrev_b32 v{b+1}, 16, v{WC+1}"),
         I(f"v_sub_f32 v{b+1}, v{b}, v{b+1}"),
         I(f"v_cvt_pk_bf16_f32 v{WC}, v{b}, v{b+1}")]
    a_, b_ = (vr(XC,4), vr(WC,4)) if nori else (vr(WC,4), vr(XC,4))
    o.append(mfma32(vr(d,16), a_, b_, vr(d,16)))
    return o
def cs_reads(tiles, tag, base=0, stride=16384, off=CSO):
    o = [I(f"v_lshlrev_b32 v2, 2, v1")]
    if base: o.append(I(f"v_add_u32 v2, {base}, v2"))
    for k, tl in enumerate(tiles):
        for w in range(4): o.append(I(f"ds_read_b32 v{T+4*k+w}, v2 offset:{w*stride + off + tl*256}", tag=tag))
    return o
def cs_corr(accs, nori, tag):
    o = [I(f"v_mov_b32 v{WC+2}, 0"), I(f"v_mov_b32 v{WC+3}, 0"), W(lg=tag)]
    for k, d in enumerate(accs):
        b = T+4*k
        o += [I(f"v_add_f32 v{b}, v{b}, v{b+1}"), I(f"v_add_f32 v{b+2}, v{b+2}, v{b+3}"), I(f"v_add_f32 v{b}, v{b}, v{b+2}")]
        o += corr_from(b, d, nori)
    return o

def ln1_final(g, S, Q):
    o = Prog()
    o(f"""
    v_mul_f32 v{S}, {fh(1/512)}, v{S}
    v_cndmask_b32 v{S+1}, v{S}, 0, s[74:75]
    v_mul_f32 v{S+2}, v{S}, v{S}
    v_cvt_pk_bf16_f32 v{XC}, v{S+1}, v{S+1}
    v_fma_f32 v{Q}, v{Q}, s76, -v{S+2}
    v_and_b32 v{S+3}, 0xffff0000, v{XC}
    v_max_f32 v{Q}, 0, v{Q}
    v_sub_f32 v{S+3}, v{S+1}, v{S+3}
    v_add_f32 v{Q}, {fh(1e-5)}, v{Q}
    v_cvt_pk_bf16_f32 v{XC+1}, v{S+3}, 0
    v_rsq_f32 v{R1}, v{Q}
    v_mov_b32 v{XC+2}, 0
    v_mov_b32 v{XC+3}, 0
    """)
    rr = RR if g == 0 else A1
    tb = 4096 + 512*g
    o(f"""
    v_lshl_add_u32 v3, v{VB}, 2, s57
    ds_write_b32 v3, v{R1} offset:{tb}
    v_lshrrev_b32 v3, 5, v1
    v_lshl_add_u32 v3, v3, 5, s57
    s_waitcnt lgkmcnt(0)
    """)
    for k in range(4): o(f"ds_read_b128 {vr(rr+4*k,4)}, v3 offset:{tb + (k//2)*64 + (k%2)*16}", tag="rr")
    if g == 0:
        o(f"v_mov_b32 v{C0R}, {fh(C0)}")
    else:
        o(f"""
        v_sqrt_f32 v{RI}, v{Q}
        v_mul_f32 v{C0R}, {fh(C0)}, v{R1}
        v_mul_f32 v{C1R}, v{R1}, v{R1}
        v_mul_f32 v{C1R}, v{C1R}, v{C0R}
        v_mul_f32 v{C1R}, {fh(0.044715)}, v{C1R}
        """)
    return o.l

def gelu_T(a, P0):
    o = []
    for g in range(0, 16, 4):
        rs = range(g, g+4); tt = lambda r: T + (r % 4)
        o += [I(f"v_mul_f32 v{tt(r)}, v{a+r}, v{a+r}") for r in rs]
        o += [I(f"v_fma_f32 v{tt(r)}, v{tt(r)}, v{C1R}, v{C0R}") for r in rs]
        o += [I(f"v_mul_f32 v{tt(r)}, v{tt(r)}, v{a+r}") for r in rs]
        o += [I(f"v_exp_f32 v{tt(r)}, v{tt(r)}") for r in rs]
        o += [I(f"v_fma_f32 v{tt(r)}, v{tt(r)}, v{RI}, v{RI}") for r in rs]
        o += [I(f"v_rcp_f32 v{tt(r)}, v{tt(r)}") for r in rs]
        o += [I(f"v_mul_f32 v{a+r}, v{a+r}, v{tt(r)}") for r in rs]
        o += [I(f"v_cvt_pk_bf16_f32 v{P0+r//2}, v{a+r}, v{a+r+1}") for r in (g, g+2)]
    return o
def gelu_N(a):
    o = []
    for g in range(0, 16, 4):
        rs = range(g, g+4); tt = lambda r: T + (r % 4)
        o += [I(f"v_mul_f32 v{a+r}, v{a+r}, v{RR+r}") for r in rs]
        o += [I(f"v_mul_f32 v{tt(r)}, v{a+r}, v{a+r}") for r in rs]
        o += [I(f"v_fma_f32 v{tt(r)}, v{tt(r)}, s77, v{C0R}") for r in rs]
        o += [I(f"v_mul_f32 v{tt(r)}, v{tt(r)}, v{a+r}") for r in rs]
        o += [I(f"v_exp_f32 v{tt(r)}, v{tt(r)}") for r in rs]
        o += [I(f"v_add_f32 v{tt(r)}, 1.0, v{tt(r)}") for r in rs]
        o += [I(f"v_rcp_f32 v{tt(r)}, v{tt(r)}") for r in rs]
        o += [I(f"v_mul_f32 v{a+r}, v{a+r}, v{tt(r)}") for r in rs]
    return o

def z2_stats():
    o = []
    a0, a1 = A0, A1
    for hf in range(2):
        S1 = lambda r: T + 4 + r
        S2 = lambda r: T + 12 + r
        for r in range(8):
            R = hf*8 + r
            o.append(I(f"v_mul_f32 v{S2(r)}, v{a0+R}, v{a0+R}"))
            o.append(I(f"v_add_f32 v{S1(r)}, v{a0+R}, v{a1+R}"))
        for r in range(8): o.append(I(f"v_fmac_f32 v{S2(r)}, v{a1+hf*8+r}, v{a1+hf*8+r}"))
        for S in (S1, S2):
            for r in range(4): o.append(I(f"v_permlane16_swap_b32 v{S(r)}, v{S(r+4)}"))
        for S in (S1, S2):
            for r in range(4): o.append(I(f"v_add_f32 v{S(r)}, v{S(r)}, v{S(r+4)}"))
        for S in (S1, S2):
            for r in range(2): o.append(I(f"v_add_f32_dpp v{S(r+4)}, v{S(r)}, v{S(r)} row_ror:8 row_mask:0xf bank_mask:0x3"))
        for S in (S1, S2):
            for r in range(2): o.append(I(f"v_add_f32_dpp v{S(r+4)}, v{S(r+2)}, v{S(r+2)} row_ror:8 row_mask:0xf bank_mask:0xc"))
        for S in (S1, S2): o.append(I(f"v_add_f32_dpp v{S(0)}, v{S(4)}, v{S(4)} row_half_mirror row_mask:0xf bank_mask:0x5"))
        for S in (S1, S2): o.append(I(f"v_add_f32_dpp v{S(0)}, v{S(5)}, v{S(5)} row_half_mirror row_mask:0xf bank_mask:0xa"))
        for S in (S1, S2): o.append(I(f"v_add_f32_dpp v{S(0)}, v{S(0)}, v{S(0)} quad_perm:[1,0,3,2] row_mask:0xf bank_mask:0xf"))
        for k, S in enumerate((S1, S2)): o.append(I(f"v_add_f32_dpp v{STQ+2*hf+k}, v{S(0)}, v{S(0)} quad_perm:[2,3,0,1] row_mask:0xf bank_mask:0xf"))
    return o

def prio(p, n):
    if VAR['prio']: p(f"s_setprio {n}")

def gen_kf(stamp=False):
    p = Prog()
    st = Stamper(stamp, 10, 0)
    st2 = Stamper(stamp, 10, 252, kid=1)
    entry_stamp(p, stamp)
    p(f"""
    s_cmp_ge_u32 s2, 256
    s_cbranch_scc1 L_end
    s_load_dwordx4 s[4:7], s[0:1], {KA_X}
    s_load_dwordx2 s[8:9], s[0:1], {KA_WIN}
    s_load_dwordx4 s[48:51], s[0:1], {KA_DBG}
    v_and_b32 v1, 63, v0
    v_lshrrev_b32 v2, 6, v0
    v_readfirstlane_b32 s28, v2                 ; wave 0..7
    s_mov_b32 s10, s28
    s_and_b32 s29, s2, 7
    s_lshr_b32 s30, s2, 3
    s_and_b32 s31, s29, 1
    s_lshl_b32 s31, s31, 3
    s_and_b32 s32, s30, 7
    s_add_u32 s31, s31, s32                     ; rb
    s_lshr_b32 s32, s29, 1
    s_lshl_b32 s32, s32, 2
    s_lshr_b32 s33, s30, 3
    s_add_u32 s32, s32, s33                     ; cg
    v_lshrrev_b32 v2, 3, v1
    v_lshrrev_b32 v3, 4, v1
    v_xor_b32 v{VXD}, v3, v1
    v_and_b32 v{VXD}, 7, v{VXD}
    v_lshlrev_b32 v{VXD}, 4, v{VXD}
    v_lshl_add_u32 v{VXD}, v2, 10, v{VXD}
    v_and_b32 v3, 1, v3
    v_lshlrev_b32 v3, 2, v3
    v_xor_b32 v3, v3, v1
    v_and_b32 v3, 7, v3
    v_lshlrev_b32 v{VB}, 4, v3
    v_mul_u32_u24 v{VPI}, 3584, v2
    v_add_u32 v{VPI}, v{VPI}, v{VB}
    v_mul_u32_u24 v{VQP}, 3072, v2
    v_add_u32 v{VQP}, v{VQP}, v{VB}
    v_lshrrev_b32 v2, 2, v1
    v_and_b32 v3, 3, v1
    v_lshlrev_b32 v3, 4, v3
    v_mul_u32_u24 v{VQ}, 3072, v2
    v_add_u32 v{VQ}, v{VQ}, v3
    s_and_b32 s29, s28, 3                       ; m tile
    s_lshr_b32 s30, s28, 2                      ; group
    s_lshl_b32 s33, s31, 2
    s_add_u32 s33, s33, s29                     ; tt
    s_lshl_b32 s56, s33, 15
    s_lshl_b32 s34, s30, 7
    s_add_u32 s56, s56, s34
    s_lshl_b32 s57, s29, 14
    s_lshl_b32 s34, s30, 12
    s_add_u32 s59, s57, s34
    s_mul_i32 s58, s28, 3072
    s_lshl_b32 s55, s28, 11
    s_lshl_b32 s54, s29, 13
    v_xor_b32 v{VXD+1}, 64, v{VXD}
    v_add_u32 v{VXD+2}, 16384, v{VXD}
    v_add_u32 v{VXD+1}, 8192, v{VXD+1}
    v_add_u32 v{VXD+3}, 16384, v{VXD+1}
    s_mul_i32 s80, s28, {16*3584}
    s_lshl_b32 s35, s32, 7
    s_add_u32 s80, s80, s35
    s_mul_i32 s81, s28, {16*3072}
    s_lshl_b32 s35, s32, 6
    s_and_b32 s34, s32, 1
    s_mul_i32 s34, s34, {1024-64}
    s_add_u32 s82, s81, s34
    s_add_u32 s81, s81, s35
    s_add_u32 s82, s82, s35
    {["s_mov_b32 s35, 0", "s_add_u32 s35, s31, s32", "s_bfe_u32 s35, s2, 0x20001", "s_and_b32 s35, s2, 3", "s_lshl_b32 s35, s31, 1", "s_mov_b32 s35, s32", "s_mov_b32 s35, s31"][int(VAR['rot'])]}
    """)
    for e in range(4):
        p(f"s_add_u32 s34, s35, {e}\ns_and_b32 s34, s34, 3\ns_lshl_b32 s{SXE+e}, s34, 8\ns_mul_i32 s{SIE+e}, s34, {128*3584}\ns_mul_i32 s{SQE+e}, s34, {128*3072}")
    p(f"""
    s_cmp_lt_u32 s32, 14
    s_cselect_b32 s18, {512*3584}, 0
    s_cselect_b32 s42, {WS_USED}, 0
    s_mov_b32 s19, 0x20000
    s_mov_b32 s43, 0x20000
    s_waitcnt lgkmcnt(0)
    s_mov_b32 s16, s8
    s_mov_b32 s17, s9
    """)
    srd(p, 24, 4, 2048*1024); srd(p, 20, 6, 512*3072)
    p.add(flat(x_dma(0))); p.add(flat(dma_E(0)))
    srd(p, 12, 50, WS_USED); srd(p, 44, 48, 256)
    p("s_mov_b32 s40, s50\ns_mov_b32 s41, s51")
    st(p, 0); entry_store(p, st)
    p(f"v_and_b32 v{VB}, 31, v1")
    bitswap23(p, VB, VB, 3)
    p(f"""
    v_lshrrev_b32 v3, 1, v{VB}
    v_lshrrev_b32 v2, 5, v1
    v_xor_b32 v3, v3, v2
    v_and_b32 v3, 7, v3
    v_lshlrev_b32 v3, 4, v3
    v_lshl_add_u32 v{VXR}, v{VB}, 7, v3
    v_add_u32 v{VXR}, s57, v{VXR}
    v_xor_b32 v{VXR+1}, 32, v{VXR}
    v_xor_b32 v{VXR+2}, 64, v{VXR}
    v_xor_b32 v{VXR+3}, 96, v{VXR}
    """)
    if VAR.get('b00', False): p("s_barrier")
    p.add(flat(x_dma(1))); p.add(flat(dma_E(1)))
    if VAR.get('cpf'): code_prefetch(p, 28, 3, f"v{A2}", 36, "L_cpf")
    p("s_or_b32 s34, s2, s28\ns_cmp_lg_u32 s34, 0\ns_cbranch_scc1 L_notag")
    p(f"s_mov_b32 s34, {EPO}\nbuffer_load_dword v2, off, s[12:15], s34 sc1\ns_waitcnt vmcnt(0)\nv_add_u32 v2, 1, v2\nv_max_u32 v2, 1, v2")
    p("buffer_store_dword v2, off, s[44:47], 0 sc1\nbuffer_store_dword v2, off, s[12:15], s34 sc1")
    p.label("L_notag")
    p(f"""
    v_lshlrev_b32 v{VL}, 4, v1
    v_and_b32 v3, 3, v1
    v_cmp_eq_u32 vcc, 0, v3
    v_lshrrev_b32 v3, 2, v1
    v_lshrrev_b32 v2, 4, v1
    v_xor_b32 v3, v3, v2
    v_and_b32 v3, 1, v3
    v_cmp_eq_u32 s[34:35], 0, v3
    s_and_b64 vcc, vcc, s[34:35]
    v_mov_b32 v3, 0x3f803f80
    v_cndmask_b32 v{SEL}, 0, v3, vcc
    v_mov_b32 v{SEL+1}, v{SEL}
    v_mov_b32 v{SEL+2}, v{SEL}
    v_mov_b32 v{SEL+3}, v{SEL}
    v_cmp_lt_u32 s[74:75], 31, v1
    s_mov_b32 s76, {fh(1/512)}
    s_cmp_eq_u32 s30, 0
    s_cbranch_scc1 L_g1
    """)
    def start(p):
        if VAR.get('fine'):
            st(p, 10); p.wait(vm="X0"); st(p, 11); p.wait(vm="E0"); st(p, 12)
        p.wait(vm=["X0", "E0"]); p("s_barrier"); st(p, 1)
        for ks in range(4): p.add(x_read(ks))
    def get_tag(p, u):
        p.wait(vm="tag")
        p(f"v_readfirstlane_b32 s11, v{A2+1}\ns_cmp_lg_u32 s11, 0\ns_cbranch_scc1 L_tag{u}\ns_mov_b32 s34, 0")
        p.label(f"L_tagp{u}")
        p(f"buffer_load_dword v2, off, s[44:47], 0 sc1\ns_add_u32 s34, s34, 1\ns_waitcnt vmcnt(0)\nv_readfirstlane_b32 s11, v2\ns_cmp_gt_u32 s34, 0x40000\ns_cbranch_scc1 L_tag{u}\ns_cmp_eq_u32 s11, 0\ns_cbranch_scc1 L_tagp{u}")
        p.label(f"L_tag{u}")
    set_va(p, True, RING, 3072)
    p(f"""
    s_mov_b32 s77, {fh(C0*0.044715)}
    s_lshr_b32 s34, s32, 1
    s_lshl_b32 s83, s34, 19
    s_lshl_b32 s35, s33, 13
    s_add_u32 s83, s83, s35
    s_and_b32 s35, s32, 1
    s_lshl_b32 s35, s35, 11
    s_add_u32 s83, s83, s35
    s_add_u32 s83, s83, {Z2F}
    s_add_u32 s84, s83, 4096
    s_lshl_b32 s87, s33, 13
    s_add_u32 s87, s87, {STAT}
    s_lshl_b32 s35, s32, 9
    s_add_u32 s88, s87, s35
    s_mul_i32 s85, s33, {56*1024}
    s_lshl_b32 s34, s32, 12
    s_add_u32 s85, s85, s34
    s_add_u32 s85, s85, {Z1F}
    s_lshl_b32 s86, s32, 11
    s_lshl_b32 s34, s31, 7
    s_add_u32 s86, s86, s34
    s_add_u32 s86, s86, {PFL+4}
    s_cmp_lt_u32 s29, 2
    s_cselect_b32 s53, s{SIE+2}, s{SIE+3}
    s_and_b32 s34, s29, 1
    s_mul_i32 s34, s34, {64*3584}
    s_add_u32 s53, s53, s34
    s_lshl_b32 s34, s32, 7
    s_add_u32 s53, s53, s34
    s_lshl_b32 s52, s29, 11
    s_add_u32 s52, s52, {SCR2}
    """)
    prio(p, 1)
    start(p)
    p.add(gemm_pass([A0, A1], E_addr, RING, True, "w", 512, hooks=phase1_hooks(st), cs_tiles=[0, 1]))
    p(f"v_mov_b32 v2, 0\nv_lshlrev_b32 v3, 2, v1\nds_write_b32 v3, v2")
    p.wait(vm=["Q0","Q1","Q2","Q3"], lg0=True)
    p("s_barrier")
    st(p, 5)
    prio(p, 0)
    p(f"v_lshl_add_u32 v3, v1, 2, s57")
    p(f"ds_read_b32 v{T+16}, v3 offset:{RAW}", tag="raw"); p(f"ds_read_b32 v{T+20}, v3 offset:{RAW+256}", tag="raw")
    p.add(cs_reads([0, 1], "cs0"))
    get_tag(p, "b")
    p.add(flat(dma_Z(0) + dma_Z(1)))
    p.wait(lg="raw")
    p(f"v_mov_b32 v{VQ}, v{T+20}")
    p.add(ln1_final(0, T+16, VQ))
    p.add(cs_corr([A0, A1], True, "cs0"))
    p.wait(lg="rr")
    p.add(gelu_N(A0)); p.add(gelu_N(A1)); p.add(z2_stats())
    p.wait(vm=["Za"])
    p(f"""
    v_and_b32 v3, 1, v1
    v_cmp_eq_u32 vcc, 1, v3
    v_bfe_u32 v2, v1, 2, 1
    v_lshl_add_u32 v2, v3, 4, v2
    v_bfe_u32 v3, v1, 3, 1
    v_lshl_add_u32 v2, v3, 1, v2
    v_bfe_u32 v3, v1, 4, 2
    v_lshl_add_u32 v2, v3, 2, v2                ; row = 16*(l&1) + 8h + 4b4 + 2b3 + b2
    v_lshlrev_b32 v2, 4, v2
    v_cndmask_b32 v{STQ}, v{STQ}, v{STQ+2}, vcc
    v_cndmask_b32 v{STQ+2}, v{STQ+1}, v{STQ+3}, vcc
    v_mov_b32 v{STQ+1}, s11
    v_mov_b32 v{STQ+3}, s11
    buffer_store_dwordx4 {vr(STQ,4)}, v2, s[40:43], s88 offen sc1
    v_sqrt_f32 v{RI}, v{VQ}
    v_mul_f32 v{C0R}, {fh(C0)}, v{R1}
    v_mul_f32 v{C1R}, v{R1}, v{R1}
    v_mul_f32 v{C1R}, v{C1R}, v{C0R}
    v_mul_f32 v{C1R}, {fh(0.044715)}, v{C1R}
    s_lshl_b32 s34, s29, 2
    v_mov_b32 v{VB}, s34
    """)
    set_va(p, True, 131072, 2048)
    st(p, 6)
    p.wait(lg0=True)
    p("s_barrier")
    prio(p, VAR.get('pz1', 2))
    st(p, 7)
    p("s_mov_b32 s89, 0x7ff00000\ns_cmp_ge_u32 s32, 14\ns_cbranch_scc1 L_b_done")
    PS = VAR.get('pstep', 8); FS = VAR.get('fstep', 16)
    X = 128
    def part_loads():
        o = [I("v_and_b32 v2, 31, v1"), I("v_lshlrev_b32 v2, 4, v2"), I("v_lshrrev_b32 v3, 5, v1"), I("v_mul_u32_u24 v3, 3584, v3"), I("v_add_u32 v2, v2, v3")]
        for k in range(7):
            o.append(I(f"buffer_load_dwordx4 {ar(4*k,4)}, v2, s[12:15], s87 offen offset:{k*512} sc1", tag="part"))
        return o
    def z2_final():
        q = Prog()
        b = X+28
        q(f"s_mov_b32 s34, 0\ns_mov_b32 s35, {fh(1/896)}")
        q.wait(vm="part")
        q.label("L_chk")
        q(f"v_xor_b32 v{b+2}, s11, v{X+1}\nv_xor_b32 v{b+3}, s11, v{X+3}\nv_or_b32 v{b+2}, v{b+2}, v{b+3}\nv_mov_b32 v{b}, v{X}\nv_mov_b32 v{b+1}, v{X+2}")
        for k in range(1, 7):
            q(f"v_add_f32 v{b}, v{b}, v{X+4*k}\nv_add_f32 v{b+1}, v{b+1}, v{X+4*k+2}")
            q(f"v_xor_b32 v{X+4*k+1}, s11, v{X+4*k+1}\nv_xor_b32 v{X+4*k+3}, s11, v{X+4*k+3}\nv_or3_b32 v{b+2}, v{b+2}, v{X+4*k+1}, v{X+4*k+3}")
        q(f"v_cmp_ne_u32 vcc, 0, v{b+2}\ns_cbranch_vccnz L_retry")
        q.label("L_chk_ok")
        q(f"""
        v_mov_b32 v{b+2}, v{b}
        v_mov_b32 v{b+3}, v{b+1}
        v_and_b32 v2, 31, v1
        v_permlane32_swap_b32 v{b}, v{b+2}
        v_permlane32_swap_b32 v{b+1}, v{b+3}
        v_lshl_add_u32 v2, v2, 2, s52
        v_add_f32 v{b}, v{b}, v{b+2}
        v_add_f32 v{b+1}, v{b+1}, v{b+3}
        v_mul_f32 v{b}, s35, v{b}
        v_mul_f32 v{b+2}, v{b}, v{b}
        v_fma_f32 v{b+1}, v{b+1}, s35, -v{b+2}
        v_max_f32 v{b+1}, 0, v{b+1}
        v_add_f32 v{b+1}, {fh(1e-5)}, v{b+1}
        v_rsq_f32 v{b+1}, v{b+1}
        v_lshrrev_b32 v3, 5, v1
        v_lshl_add_u32 v3, v3, 5, s52
        v_mul_f32_e64 v{b}, -v{b}, v{b+1}
        ds_write_b32 v2, v{b+1} offset:1024
        ds_write_b32 v2, v{b} offset:1152
        s_waitcnt lgkmcnt(0)
        """)
        R2 = X+32; NM = X+48
        for k in range(4): q(f"ds_read_b128 {vr(R2+4*k,4)}, v3 offset:{1024 + (k//2)*64 + (k%2)*16}", tag="r2")
        for k in range(4): q(f"ds_read_b128 {vr(NM+4*k,4)}, v3 offset:{1152 + (k//2)*64 + (k%2)*16}", tag="r2")
        q2 = Prog()
        q2.wait(lg="r2")
        for t_ in range(2):
            a = A0 + 16*t_
            for r in range(16): q2(f"v_fma_f32 v{a+r}, v{a+r}, v{R2+r}, v{NM+r}")
            for d in range(8): q2(f"v_cvt_pk_bf16_f32 v{a+d}, v{a+2*d}, v{a+2*d+1}")
            q2(f"buffer_store_dwordx4 {vr(a,4)}, v{VL}, s[12:15], s83 offen offset:{t_*1024}")
            q2(f"buffer_store_dwordx4 {vr(a+4,4)}, v{VL}, s[12:15], s84 offen offset:{t_*1024}")
        return q.l, q2.l
    pl = part_loads(); zl = dma_Zlate(); zf1, zf2 = z2_final()
    n2 = (len(zf2) + 3)//4
    def zhooks(ks):
        t_ = []
        if ks < 4: t_ += flat(zl[2*ks:2*ks+2])
        h0 = []
        if ks == 16-LA-2: t_ += [W(vm="Zb"), I("v_mov_b32 v2, 1"), I(f"ds_write_b32 v{VB}, v2 offset:144")]
        if ks == 16-LA:
            q = Prog(); q("v_mov_b32 v2, 0"); f2.flag_wait(q, "L_zb", 2, 144, 1, A0 if False else X+28, sleep=0)
            h0 = q.l
        if ks == PS: t_ += pl[:8]
        if ks == PS+1: t_ += pl[8:10]
        if ks == PS+2: t_ += pl[10:]
        if ks == FS: t_ += zf1
        if FS < ks <= FS+4: t_ += zf2[(ks-FS-1)*n2:(ks-FS)*n2]
        return h0, [], t_
    p.add(gemm_pass([A2, A3_], Z_addr, 131072, False, "z", 512, hooks=zhooks, cs_tiles=[0, 1], cs_s=52, cs_o=0))
    p(f"v_mov_b32 v2, 1\ns_waitcnt vmcnt(0) lgkmcnt(0)\nds_write_b32 v{VB}, v2 offset:128")
    st(p, 8)
    prio(p, VAR.get('pz2', 2))
    p("v_mov_b32 v2, 0")
    f2.flag_wait(p, "L_csz", 2, 128, 1, STQ, sleep=0)
    p("s_cmp_eq_u32 s29, 0\ns_cselect_b32 s34, s86, 0x7ff00000\nv_mov_b32 v3, s11\nbuffer_store_dword v3, off, s[12:15], s34 sc1")
    p.add(cs_reads([0, 1], "cs2", base=SCR2, stride=2048, off=0))
    p.add(cs_corr([A2, A3_], False, "cs2"))
    def z1_tile(p, k):
        a = (A2, A3_)[k]
        p.add(gelu_T(a, T+4+8*k))
        p(f"buffer_store_dwordx4 {vr(T+4+8*k,4)}, v{VL}, s[12:15], s85 offen offset:{k*2048}")
        p(f"buffer_store_dwordx4 {vr(T+8+8*k,4)}, v{VL}, s[12:15], s85 offen offset:{k*2048+1024}")
    z1_tile(p, 0)
    def mid(p):
        p("s_cmp_ge_u32 s32, 14\ns_cbranch_scc1 L_b_mid")
        z1_tile(p, 1)
        p.label("L_b_mid")
        st(p, 9)
    p("s_lshl_b32 s34, s29, 2\ns_add_u32 s86, s86, s34\ns_add_u32 s86, s86, 4\ns_mov_b32 s89, s86")
    p.label("L_b_done")
    st2(p, 0)
    f2.gen_gemm(p, st2, mid)
    p.label("L_retry")
    p("s_add_u32 s34, s34, 1\ns_cmp_gt_u32 s34, 0x40000\ns_cbranch_scc1 L_chk_ok")
    p.add(part_loads())
    p("s_waitcnt vmcnt(0)\ns_branch L_chk")
    p.label("L_g1")
    set_va(p, False, RING+2048, 3072)
    p(f"""
    v_and_b32 v3, 1, v1
    v_cmp_eq_u32 s[70:71], 1, v3
    v_and_b32 v3, 2, v1
    v_cmp_eq_u32 s[72:73], 2, v3
    s_mul_i32 s87, s32, {2*KVH}
    s_mul_i32 s34, s33, {KVT}
    s_add_u32 s87, s87, s34
    s_add_u32 s87, s87, {KV}
    s_lshr_b32 s34, s32, 1
    s_lshl_b32 s85, s34, 18
    s_lshl_b32 s35, s33, 10
    s_add_u32 s85, s85, s35
    s_mul_i32 s86, s34, {4*KVH}
    s_mul_i32 s35, s33, {KVT}
    s_add_u32 s86, s86, s35
    s_add_u32 s86, s86, {KV}
    s_bitcmp1_b32 s32, 0
    s_cselect_b32 s85, s86, s85
    s_mov_b32 s86, {KVH}
    s_cselect_b32 s86, s86, 0x10000
    s_mov_b32 s78, {fh(0.25*1.4426950408889634)}
    s_cselect_b32 s78, 1.0, s78                  ; scale
    s_lshl_b32 s83, s32, 11
    s_lshl_b32 s34, s31, 7
    s_add_u32 s83, s83, s34
    s_add_u32 s83, s83, {PFL}
    """)
    prio(p, 1)
    start(p)
    p.add(gemm_pass([A0], lambda ks: E_addr(ks)+2048, RING+2048, True, "w", 256, hooks=phase1_hooks(st), cs_tiles=[2], stats=True))
    p(f"""
    v_add_f32 v{Q0}, v{Q0}, v{Q1}
    v_add_f32 v{Q0+1}, v{Q0+1}, v{Q1+1}
    v_add_f32 v{Q0+2}, v{Q0+2}, v{Q1+2}
    v_add_f32 v{Q0+3}, v{Q0+3}, v{Q1+3}
    v_cndmask_b32 v{Q0}, v{Q0}, v{Q0+1}, s[70:71]
    v_cndmask_b32 v{Q0+2}, v{Q0+2}, v{Q0+3}, s[70:71]
    ds_write_b32 v3, v{SX} offset:{RAW}
    v_cndmask_b32 v{Q0}, v{Q0}, v{Q0+2}, s[72:73]
    v_mov_b32 v{Q1}, v{Q0}
    v_permlane32_swap_b32 v{Q0}, v{Q1}
    v_add_f32 v{Q0}, v{Q0}, v{Q1}
    ds_write_b32 v3, v{Q0} offset:{RAW+256}
    """)
    p.wait(vm=["Q0","Q1","Q2","Q3"], lg0=True)
    p("s_barrier")
    st(p, 5)
    p.add(cs_reads([2], "cs1"))
    get_tag(p, "a")
    p.add(ln1_final(1, SX, Q0))
    p.add(cs_corr([A0], True, "cs1"))
    set_va(p, True, RING, 2048)
    zp = gemm_pass([A2, A3_], Q_addr, RING, False, "q", 512, cs_tiles=[5, 6])
    e = Prog()
    e.add(flat(dma_Z(0) + dma_Z(1)))
    e(f"""
    s_mov_b32 s77, {KVH}
    v_bfe_u32 v3, v1, 4, 1
    v_mul_lo_u32 v{VB}, v3, s77
    v_and_b32 v3, 15, v1
    v_lshl_add_u32 v{VB}, v3, 4, v{VB}
    v_lshrrev_b32 v3, 5, v1
    v_lshl_add_u32 v{VB}, v3, 8, v{VB}
    """)
    e.wait(lg="rr")
    for r in range(16): e(f"v_mul_f32 v{A0+r}, v{A0+r}, v{A1+r}")
    for d in range(8): e(f"v_cvt_pk_bf16_f32 v{A0+d}, v{A0+2*d}, v{A0+2*d+1}")
    for r in range(4): e(f"v_mov_b32 v{A1+r}, 0x3f803f80\nv_mov_b32 v{A1+4+r}, 0")
    e(f"v_mul_f32 v{R1}, s78, v{R1}")
    e.wait(vm=["Za"])
    e(f"buffer_store_dwordx4 {vr(A0,4)}, v{VB}, s[12:15], s87 offen offset:1024")
    e(f"buffer_store_dwordx4 {vr(A0+4,4)}, v{VB}, s[12:15], s87 offen offset:1536")
    p.add(interleave(zp, e.l, per_gap=VAR.get('egap', 2), start=1))
    p(f"s_mov_b64 exec, 0x10001\nbuffer_store_dwordx4 {vr(A1,4)}, v{VB}, s[12:15], s87 offen offset:2048\nbuffer_store_dwordx4 {vr(A1+4,4)}, v{VB}, s[12:15], s87 offen offset:2064\ns_mov_b64 exec, -1")
    st(p, 6)
    p.wait(lg0=True)
    p("s_barrier")
    prio(p, 2)
    st(p, 7)
    p.add(cs_reads([5, 6], "cs3"))
    p.add(cs_corr([A2, A3_], False, "cs3"))
    for a in (A2, A3_):
        for r in range(16): p(f"v_mul_f32 v{a+r}, v{a+r}, v{R1}")
        for d in range(8): p(f"v_cvt_pk_bf16_f32 v{a+d}, v{a+2*d}, v{a+2*d+1}")
        p(f"buffer_store_dwordx4 {vr(a,4)}, v{VL}, s[12:15], s85 offen\ns_add_u32 s85, s85, s86")
        p(f"buffer_store_dwordx4 {vr(a+4,4)}, v{VL}, s[12:15], s85 offen\ns_add_u32 s85, s85, s86")
    st(p, 8); st(p, 9)
    st2(p, 0)
    f2.gen_attention(p, st2)
    p.label("L_end")
    p("s_endpgm")
    return p

def split_groups(l):
    lab = {x.op: i for i, x in enumerate(l) if getattr(x, 'kind', '') == "label"}
    b = next(i for i, x in enumerate(l) if getattr(x, 'kind', '') == "branch" and x.target == "L_g1")
    return b, lab["L_g1"]
def kf_paths(l):
    b, g1 = split_groups(l)
    lab = {x.op: i for i, x in enumerate(l) if x.kind == "label"}
    B = l[:lab["L_idle"]] + l[lab["L_g2"]:lab["L_retry"]]
    A = l[:b] + l[g1:]
    e = next(i for i, x in enumerate(A) if x.kind == "misc" and x.base == "s_endpgm")
    return [linearize(B, {"L_g_loop": 2}), l[lab["L_idle"]:lab["L_retry"]], linearize(A[:e+1], {"L_att_loop": 3})]
def finalize_kf(p, verbose=False):
    l = p.l
    b, g1 = split_groups(l)
    head = l[:b+1]
    r0 = resolve_waits(l[:g1])
    r1 = resolve_waits(head + l[g1:])
    nh = len(resolve_waits(head))
    p2 = Prog(); p2.l = r0 + r1[nh:]
    return finalize("kf", p2, paths=kf_paths, verbose=verbose)
KF_DESC = dict(name="kf_kernel", vgpr=256, sgpr=102, accum=256, grid=256, block=512, lds=K1_LDS)
```

```python
from common import *
SOLO = True
import struct
def float_hex(f): return hex(struct.unpack("<I", struct.pack("<f", f))[0])

IMG = 1024
LDS_FLAG = 0
LDS_STG = 131072
K2_LDS = 163840
VAR = dict(margin=100.0, U=8, prio_att=1, prio_g=0, fuse3=True, cdelay=2)

QA, QB = 4, 8
CA, CB = 16, 32
OA, OB = 48, 64
SA, SB = 80, 96
PA, PB = 112, 120
KR = [128, 132, 136, 140]
V0R = [144, 148, 152, 156]
V1R = [160, 164, 168, 172]
AK, AV0, AV1 = 176, 177, 178
GK, GV0, GV1 = 179, 180, 181
MA, MB = 182, 183
TM = 184
FL = 188
PF, PFA = 190, 191
STT = 192

def max16(p, S, M, first):
    if first:
        p(f"v_max3_f32 v{M}, v{S}, v{S+1}, v{S+2}")
        p(f"v_max_f32 v{M}, v{M}, v{S+3}")
        r = range(4, 16, 2)
    else: r = range(0, 16, 2)
    for k in r: p(f"v_max3_f32 v{M}, v{M}, v{S+k}, v{S+k+1}")

def flag_wait(p, name, addr_v, off, val, tmpq, sleep=1):
    p.label(name)
    p(f"ds_read_b128 {vr(tmpq,4)}, v{addr_v} offset:{off}")
    p("s_waitcnt lgkmcnt(0)")
    p(f"v_min_u32 v{tmpq}, v{tmpq}, v{tmpq+1}\nv_min3_u32 v{tmpq}, v{tmpq}, v{tmpq+2}, v{tmpq+3}")
    p(f"v_cmp_gt_u32 vcc, {val}, v{tmpq}")
    p(f"s_cbranch_vccz {name}_ok\ns_sleep {sleep}\ns_branch {name}")
    p.label(name + "_ok")

def spin1(p, name, addr_v, off, val, tmp):
    p.label(name)
    p(f"ds_read_b32 v{tmp}, v{addr_v} offset:{off}")
    p("s_waitcnt lgkmcnt(0)")
    p(f"v_cmp_gt_u32 vcc, {val}, v{tmp}")
    p(f"s_cbranch_vccz {name}_ok\ns_sleep 1\ns_branch {name}")
    p.label(name + "_ok")

def att_loop_body(U):
    out = []
    def blk(S, P, So, Po, Mqk, Mpv1, Mpv0, extra):
        e = lambda k: I(f"v_exp_f32 v{S+k}, v{S+k}")
        c = lambda k: I(f"v_cvt_pk_bf16_f32 v{P+k}, v{S+2*k}, v{S+2*k+1}")
        co = lambda k: I(f"v_cvt_pk_bf16_f32 v{Po+k}, v{So+2*k}, v{So+2*k+1}")
        o = []
        pq, p1, p0 = VAR.get('pos', (2, 6, 12))
        cs = VAR.get('cs', {0: [-6], 1: [-7], 3: [0], 5: [1], 7: [2], 9: [3], 11: [4], 13: [5]})
        if VAR.get('perm'):
            c = lambda k: I(f"v_perm_b32 v{P+k}, v{S+2*k+1}, v{S+2*k}, s45")
            co = lambda k: I(f"v_perm_b32 v{Po+k}, v{So+2*k+1}, v{So+2*k}, s45")
        for k in range(16):
            o.append(e(k))
            for j in cs.get(k, []):
                if j < 0: o.append(co(-j))
            if k == pq and not VAR.get('nom'): o.append(Mqk)
            if k == p1 and not VAR.get('nom'): o.append(Mpv1)
            if k == p0 and not VAR.get('nom'): o.append(Mpv0)
            o += extra.get(k, [])
            for j in cs.get(k, []):
                if j >= 0: o.append(c(j))
        return o
    for u in range(U):
        s0 = u % 4; s1 = (u+1) % 4; sm = (u-1) % 4
        exA = {}; exB = {}
        if u % 2 == 0:
            rd = []
            for d in (2, 3):
                o_ = (u+d-1)*KVT
                rd += [I(f"ds_read_b128 {vr(KR[(u+d)%4],4)}, v{AK} offset:{o_}"),
                       I(f"ds_read_b128 {vr(V0R[(u+d)%4],4)}, v{AV0} offset:{o_}"),
                       I(f"ds_read_b128 {vr(V1R[(u+d)%4],4)}, v{AV1} offset:{o_}")]
            exA = {6: rd}
            if VAR.get('nods'): exA = {}
        if u == U-1:
            exB = {2: [I("s_add_u32 s41, s41, 1")], 3: [I(f"s_bitcmp1_b32 s45, s41")], 4: [I("s_cbranch_scc1 L_att_sync2"), I("L_att_sync2_ret:")],
                   5: [I(f"v_mov_b32 v{TM}, s41")], 7: [I(f"ds_write_b32 v{FL+1}, v{TM} offset:80")],
                   6: [I(f"v_add_u32 v{AK}, {U*KVT}, v{AK}")], 8: [I(f"v_add_u32 v{AV0}, {U*KVT}, v{AV0}")], 10: [I(f"v_add_u32 v{AV1}, {U*KVT}, v{AV1}")],
                   14: [I(f"s_cmp_lt_u32 s41, {64//U}")]}
        if u % 2 == 1: exB[0] = [I("s_waitcnt lgkmcnt(0)")]
        out += blk(SA, PA, SB, PB, mfma32(vr(SB,16), vr(KR[s0],4), vr(QB,4), vr(CB,16)),
                   mfma32(vr(OB,16), vr(V1R[sm],4), vr(PB+4,4), vr(OB,16)),
                   mfma32(vr(OA,16), vr(V0R[s0],4), vr(PA,4), vr(OA,16)), exA)
        out += blk(SB, PB, SA, PA, mfma32(vr(SA,16), vr(KR[s1],4), vr(QA,4), vr(CA,16)),
                   mfma32(vr(OA,16), vr(V1R[s0],4), vr(PA+4,4), vr(OA,16)),
                   mfma32(vr(OB,16), vr(V0R[s0],4), vr(PB,4), vr(OB,16)), exB)
    return out

def k2_ids(p):
    p(f"""
    s_mov_b32 s24, s10
    s_and_b32 s25, s2, 7
    s_lshr_b32 s26, s2, 3
    s_lshr_b32 s27, s26, 3
    s_lshl_b32 s28, s25, 2
    s_add_u32 s27, s27, s28                ; head
    s_and_b32 s28, s26, 7                  ; qb
    """)
def gen_attention(p, st):
    U = VAR['U']
    k2_ids(p)
    p(f"""
    s_mul_i32 s30, s27, {KVH}
    s_add_u32 s30, s30, {KV}
    s_lshl_b32 s31, s27, 16
    s_lshl_b32 s32, s28, 3
    s_lshl_b32 s33, s24, 1
    s_add_u32 s32, s32, s33
    s_lshl_b32 s33, s32, 10
    s_add_u32 s31, s31, s33
    v_lshlrev_b32 v{GK}, 4, v1
    v_mov_b32 v{FL}, {LDS_FLAG}
    s_lshl_b32 s37, s24, 2
    v_add_u32 v{FL+1}, s37, v{FL}
    v_mov_b32 v{TM+1}, 1
    s_waitcnt vmcnt(0)
    ds_write_b32 v{FL+1}, v{TM+1} offset:112
    """)
    st(p, 8)
    p(f"""
    v_and_b32 v{TM}, 31, v1
    v_lshrrev_b32 v{TM+1}, 5, v1
    v_lshlrev_b32 v{TM+1}, 8, v{TM+1}
    v_lshl_add_u32 v{TM+1}, v{TM}, 4, v{TM+1}
    v_and_b32 v{TM+2}, 27, v{TM}
    v_cmp_eq_u32 vcc, 16, v{TM+2}
    v_mov_b32 v{TM+2}, 2064
    v_mov_b32 v{TM+3}, 2048
    v_cndmask_b32 v{TM+2}, v{TM+2}, v{TM+3}, vcc
    v_cmp_gt_u32 vcc, 16, v{TM}
    v_add_u32 v{GV0}, 1024, v{TM+1}
    v_add_u32 v{GV1}, 1536, v{TM+1}
    v_cndmask_b32 v{GV0}, v{TM+2}, v{GV0}, vcc
    v_cndmask_b32 v{GV1}, v{TM+2}, v{GV1}, vcc
    """)
    p("s_cmp_lg_u32 s24, 0\ns_cbranch_scc1 L_att_go")
    flag_wait(p, "L_att_ad", FL, 112, 1, TM, sleep=0)
    p(f"""
    v_mov_b32 v{TM}, s11
    buffer_store_dword v{TM}, off, s[12:15], s83 sc1
    s_lshr_b32 s34, s27, 2
    s_lshl_b32 s34, s34, 12
    s_add_u32 s34, s34, {PFL}
    v_and_b32 v{MA}, 31, v1
    v_lshlrev_b32 v{MA}, 7, v{MA}
    s_sleep {VAR.get('q0', 8)}
    """)
    poll(p, "L_att_p", 34, MA, None, TM, sleep=VAR.get('qsleep', 4))
    p(f"v_mov_b32 v{TM}, 1\nds_write_b32 v{FL}, v{TM} offset:96")
    p.label("L_att_go")
    spin1(p, "L_att_gw", FL, 96, 1, TM)
    st(p, 9)
    p(f"buffer_load_dwordx4 {vr(QA,4)}, v{GK}, s[12:15], s31 offen sc1")
    p(f"buffer_load_dwordx4 {vr(QB,4)}, v{GK}, s[12:15], s31 offen offset:1024 sc1")
    p(f"buffer_load_dwordx4 {vr(KR[0],4)}, v{GK}, s[12:15], s30 offen sc1")
    p(f"buffer_load_dwordx4 {vr(KR[1],4)}, v{GK}, s[12:15], s30 offen offset:{KVT} sc1")
    for t in range(2):
        p(f"buffer_load_dwordx4 {vr(V0R[t],4)}, v{GV0}, s[12:15], s30 offen offset:{t*KVT} sc1")
        p(f"buffer_load_dwordx4 {vr(V1R[t],4)}, v{GV1}, s[12:15], s30 offen offset:{t*KVT} sc1")
    p(f"""
    s_lshl_b32 s37, s24, 12
    s_add_u32 s38, s30, {KVT+1024}
    s_add_u32 s38, s38, s37
    s_add_u32 s37, s37, {IMG}
    """)
    for i in range(2):
        p("s_mov_b32 m0, s37")
        p("s_add_u32 s37, s37, 16384")
        for k in range(4):
            p(f"buffer_load_dwordx4 v{GK}, s[12:15], s38 offen offset:{k*1024} sc1 lds")
        p("s_add_u32 s38, s38, 16384")
    p(f"s_setprio {VAR['prio_att']}")
    if VAR['fuse3']:
        p(f"""
        s_mul_i32 s33, s32, {88*1024}
        s_lshl_b32 s34, s27, 10
        s_add_u32 s33, s33, s34
        s_add_u32 s33, s33, {A3}
        s_add_u32 s39, s33, {88*1024}
        s_lshl_b32 s35, s32, 6
        s_lshl_b32 s34, s27, 2
        s_add_u32 s35, s35, s34
        s_add_u32 s35, s35, {OFL}
        s_mul_i32 s42, s26, 9363
        s_lshr_b32 s42, s42, 16                ; j/7
        s_mul_i32 s43, s42, 7
        s_sub_u32 s43, s26, s43                ; fb
        s_lshl_b32 s44, s25, 2
        s_add_u32 s42, s42, s44
        s_lshl_b32 s43, s43, 2
        s_add_u32 s43, s43, s24                ; ft
        s_mul_i32 s46, s42, {2*88*1024}
        s_lshl_b32 s44, s43, 11
        s_add_u32 s46, s46, s44
        s_add_u32 s46, s46, {A3 + 32*1024}
        s_lshl_b32 s42, s42, 7
        s_lshl_b32 s43, s43, 2
        s_add_u32 s42, s42, s43
        s_add_u32 s42, s42, {UFL}
        s_add_u32 s47, s46, {88*1024}
        s_mov_b32 s45, {2 + (1 << VAR.get('s3it', 2))}
        s_mov_b32 s44, 0
        s_cmp_lt_u32 s26, 28
        s_cbranch_scc1 L_att_nopre
        """)
        for r in range(4): p(f"v_mov_b32 v{STT+r}, -1")
        p(f"buffer_store_dwordx4 {vr(STT,4)}, v{GK}, s[12:15], s33 offen sc1\nbuffer_store_dwordx4 {vr(STT,4)}, v{GK}, s[12:15], s39 offen sc1")
        p(f"v_mov_b32 v{STT}, s11\ns_waitcnt vmcnt(0)\nbuffer_store_dword v{STT}, off, s[12:15], s35 sc1\ns_mov_b32 s45, 2\ns_mov_b32 s44, 1")
        p.label("L_att_nopre")
    p(f"v_mov_b32 v{TM}, 1\nds_write_b32 v{FL+1}, v{TM} offset:176")
    p(f"""
    v_mov_b32 v{AK}, v{GK}
    v_mov_b32 v{AV0}, v{GV0}
    v_mov_b32 v{AV1}, v{GV1}
    """)
    for r in list(range(OA, OA+32)) + list(range(PB+4, PB+6)) + list(range(V1R[3], V1R[3]+4)):
        p(f"v_mov_b32 v{r}, 0")
    p(f"s_waitcnt vmcnt(12)")
    p.add([mfma32(vr(SA,16), vr(KR[0],4), vr(QA,4), "0"), mfma32(vr(SB,16), vr(KR[0],4), vr(QB,4), "0"),
           mfma32(vr(CA,16), vr(KR[1],4), vr(QA,4), "0"), mfma32(vr(CB,16), vr(KR[1],4), vr(QB,4), "0")])
    max16(p, SA, MA, True); max16(p, SB, MB, True); max16(p, CA, MA, False); max16(p, CB, MB, False)
    p(f"""
    s_mov_b32 s40, {float_hex(VAR['margin'])}
    v_mov_b32 v{TM}, v{MA}
    v_mov_b32 v{TM+1}, v{MB}
    v_permlane32_swap_b32 v{TM}, v{MA}
    v_permlane32_swap_b32 v{TM+1}, v{MB}
    v_max_f32 v{MA}, v{MA}, v{TM}
    v_max_f32 v{MB}, v{MB}, v{TM+1}
    v_add_f32 v{MA}, s40, v{MA}
    v_add_f32 v{MB}, s40, v{MB}
    """)
    for r in range(16): p(f"v_sub_f32 v{CA+r}, 0, v{MA}")
    for r in range(12, 16): p(f"v_mov_b32 v{SB+r}, 0")
    p.add([mfma32(vr(SA,16), vr(KR[0],4), vr(QA,4), vr(CA,16))])
    for r in range(16): p(f"v_sub_f32 v{CB+r}, 0, v{MB}")
    p(f"s_waitcnt vmcnt(0)")
    p(f"v_mov_b32 v{TM}, 1\nds_write_b32 v{FL+1}, v{TM}")
    flag_wait(p, "L_att_f1", FL, 0, 1, TM)
    st(p, 1)
    p("s_mov_b32 s41, 0" + ("" if VAR['fuse3'] else "\ns_mov_b32 s45, 2"))
    p(".p2align 6")
    p.label("L_att_loop")
    p.add(att_loop_body(U))
    p("s_cbranch_scc1 L_att_loop")
    st(p, 2)
    if VAR.get('endprio'): p("s_setprio 3")
    p(f"v_cvt_pk_bf16_f32 v{PB+6}, v{SB+12}, v{SB+13}\nv_cvt_pk_bf16_f32 v{PB+7}, v{SB+14}, v{SB+15}")
    p(f"""
    s_mul_i32 s33, s32, {88*1024}
    s_lshl_b32 s34, s27, 10
    s_add_u32 s33, s33, s34
    s_add_u32 s33, s33, {A3}
    """)
    p.add([mfma32(vr(OB,16), vr(V1R[3],4), vr(PB+4,4), vr(OB,16))])
    p("s_waitcnt lgkmcnt(0)")
    p("s_mov_b32 s36, 0")
    p.label("L_att_chk")
    p(f"v_mul_f32 v{TM}, 0, v{OA+8}")
    for r in range(8): p(f"v_fmac_f32 v{TM}, 0, v{OA+r}")
    p(f"v_cmp_u_f32 vcc, v{TM}, v{TM}")
    p("s_cbranch_vccnz L_att_slow")
    p.label("L_att_fin")
    p(f"v_rcp_f32 v{MA}, v{OA+8}")
    p("s_cmp_lg_u32 s36, 0")
    for r in range(8): p(f"v_mul_f32 v{OA+r}, v{OA+r}, v{MA}")
    for k in range(4): p(f"v_cvt_pk_bf16_f32 v{PA+k}, v{OA+2*k}, v{OA+2*k+1}")
    for k in range(4): p(f"v_min_u32 v{PA+k}, -2, v{PA+k}")
    p(f"buffer_store_dwordx4 {vr(PA,4)}, v{GK}, s[12:15], s33 offen")
    p("s_cbranch_scc1 L_att_done")
    p(f"s_mov_b32 s36, 1\ns_add_u32 s33, s33, {88*1024}")
    for r in range(9): p(f"v_mov_b32 v{OA+r}, v{OB+r}")
    for r in range(4): p(f"v_mov_b32 v{QA+r}, v{QB+r}")
    p("s_branch L_att_chk")
    p.label("L_att_done")
    st(p, 3)
    p("s_endpgm")
    p.label("L_att_sync2")
    p("s_cmp_lg_u32 s41, 1\ns_cbranch_scc1 L_att_sync3")
    if VAR['fuse3']:
        p("s_cmp_lg_u32 s44, 0\ns_cbranch_scc1 L_att_f2")
        for r in range(4): p(f"v_mov_b32 v{STT+r}, -1")
        p(f"buffer_store_dwordx4 {vr(STT,4)}, v{GK}, s[12:15], s33 offen sc1\nbuffer_store_dwordx4 {vr(STT,4)}, v{GK}, s[12:15], s39 offen sc1")
        for k in range(4): p(f"buffer_store_dwordx4 {vr(STT,4)}, v{GK}, s[12:15], s{46+k//2} offen offset:{(k%2)*1024} sc1")
    flag_wait(p, "L_att_f2", FL, 48, 1, TM)
    p("s_branch L_att_sync2_ret")
    p.label("L_att_sync3")
    if VAR['fuse3']:
        p(f"v_mov_b32 v{TM}, s11\nv_mov_b32 v{TM+1}, 1\ns_waitcnt vmcnt(0)\nbuffer_store_dword v{TM}, off, s[12:15], s35 sc1\nbuffer_store_dword v{TM}, off, s[12:15], s42 sc1\nds_write_b32 v{FL+1}, v{TM+1} offset:64")
    p("s_branch L_att_sync2_ret")
    p.label("L_att_slow")
    p(f"v_mov_b32 v{MA}, 0xff800000\ns_mov_b32 s41, 0\ns_mov_b32 s37, s30")
    p.label("L_att_sl1")
    p(f"buffer_load_dwordx4 {vr(KR[0],4)}, v{GK}, s[12:15], s37 offen sc1")
    p("s_waitcnt vmcnt(0)")
    p.add([mfma32(vr(SA,16), vr(KR[0],4), vr(QA,4), "0")])
    max16(p, SA, MA, False)
    p(f"s_add_u32 s37, s37, {KVT}\ns_add_u32 s41, s41, 1\ns_cmp_lt_u32 s41, 64\ns_cbranch_scc1 L_att_sl1")
    p(f"v_mov_b32 v{TM}, v{MA}\nv_permlane32_swap_b32 v{TM}, v{MA}\nv_max_f32 v{MA}, v{MA}, v{TM}")
    for r in range(16): p(f"v_sub_f32 v{CA+r}, 0, v{MA}\nv_mov_b32 v{OA+r}, 0")
    p("s_mov_b32 s41, 0\ns_mov_b32 s37, s30")
    p.label("L_att_sl2")
    p(f"buffer_load_dwordx4 {vr(KR[0],4)}, v{GK}, s[12:15], s37 offen sc1")
    p(f"buffer_load_dwordx4 {vr(V0R[0],4)}, v{GV0}, s[12:15], s37 offen sc1")
    p(f"buffer_load_dwordx4 {vr(V1R[0],4)}, v{GV1}, s[12:15], s37 offen sc1")
    p("s_waitcnt vmcnt(0)")
    p.add([mfma32(vr(SA,16), vr(KR[0],4), vr(QA,4), vr(CA,16))])
    for k in range(16): p(f"v_exp_f32 v{SA+k}, v{SA+k}")
    for k in range(8): p(f"v_cvt_pk_bf16_f32 v{PA+k}, v{SA+2*k}, v{SA+2*k+1}")
    p.add([mfma32(vr(OA,16), vr(V0R[0],4), vr(PA,4), vr(OA,16)), mfma32(vr(OA,16), vr(V1R[0],4), vr(PA+4,4), vr(OA,16))])
    p(f"s_add_u32 s37, s37, {KVT}\ns_add_u32 s41, s41, 1\ns_cmp_lt_u32 s41, 64\ns_cbranch_scc1 L_att_sl2")
    p("s_nop 15\ns_branch L_att_fin")

ACC = 4
NZF = 16
ZR = 132
WR = 196
VL = 244; VD = 245; VW = 247
GF = 251
G = 232
def acc(i, tt): return ACC + (i*2+tt)*16

def kv_rest(p, uniq):
    for i in range(6):
        p("s_mov_b32 m0, s62")
        if i < 5: p("s_add_u32 s62, s62, 16384")
        else: p("s_cmp_eq_u32 s24, 3")
        for k in range(4):
            if i == 5 and k == 3: p(f"s_cbranch_scc1 L_g_kvdone{uniq}")
            p(f"buffer_load_dwordx4 v{VL}, s[12:15], s63 offen offset:{k*1024} sc1 lds", tag="kv")
        if i < 5: p("s_add_u32 s63, s63, 16384")
    p.label(f"L_g_kvdone{uniq}")

def flag_addr(p):
    p(f"""
    s_lshr_b32 s48, s26, 3
    s_lshl_b32 s47, s25, 2
    s_add_u32 s48, s48, s47
    s_lshl_b32 s48, s48, 7                 ; tb'*128
    s_lshl_b32 s47, s24, 5
    s_add_u32 s46, s48, s47
    s_mul_i32 s47, s24, 28
    s_add_u32 s48, s48, s47
    s_add_u32 s48, s48, {UFL-OFL}          ; u flags
    s_and_b32 s47, s26, 7
    s_lshl_b32 s47, s47, 7
    s_add_u32 s47, s47, {WFL-OFL}          ; W flags
    v_lshlrev_b32 v{G+5}, 2, v1
    v_mov_b32 v{G+6}, s48
    v_add_u32 v{G+7}, s48, v{G+5}
    v_cmp_gt_u32 vcc, 7, v1
    v_cndmask_b32 v{G+6}, v{G+6}, v{G+7}, vcc
    v_subrev_u32 v{G+5}, 128, v{G+5}
    v_add_u32 v{G+7}, s47, v{G+5}
    v_cmp_gt_u32 vcc, 64, v{G+5}
    v_cndmask_b32 v{G+6}, v{G+6}, v{G+7}, vcc
    v_subrev_u32 v{G+5}, 64, v{G+5}
    v_add_u32 v{G+7}, s46, v{G+5}
    v_cmp_gt_u32 vcc, 32, v{G+5}
    v_cndmask_b32 v{G+6}, v{G+6}, v{G+7}, vcc
    v_subrev_u32 v{G+5}, 32, v{G+5}
    v_add_u32 v{G+7}, s49, v{G+5}
    v_cmp_gt_u32 vcc, 8, v{G+5}
    v_cndmask_b32 v{G+6}, v{G+6}, v{G+7}, vcc
    s_mov_b32 s48, {OFL}
    """)
def gen_gemm(p, st, mid=None):
    k2_ids(p)
    p(f"""
    s_load_dwordx4 s[4:7], s[0:1], {KA_WSP}
    s_sub_u32 s24, s24, 4                  ; q = K quarter
    v_lshlrev_b32 v{VL}, 4, v1
    s_mul_i32 s63, s27, {KVH}
    s_lshl_b32 s62, s24, 12
    s_add_u32 s62, s62, 32768
    s_add_u32 s63, s63, s62
    s_add_u32 s63, s63, {KV + KVT + 1024}
    s_add_u32 s62, s62, {IMG}
    s_lshl_b32 s46, s24, 2
    s_add_u32 s46, s46, {LDS_FLAG}
    v_mov_b32 v{GF}, s46
    v_mov_b32 v0, 1
    v_mov_b32 v2, {LDS_FLAG}
    s_waitcnt lgkmcnt(0)
    ds_write_b32 v{GF}, v0 offset:160
    """)
    srd(p, 16, 4, 2048*2048*2); srd(p, 20, 6, 4096)
    flag_wait(p, "L_g_bd", 2, 160, 1, 4)
    flag_wait(p, "L_g_go", 2, 176, 1, 4, sleep=2)
    kv_rest(p, "a")
    if mid: mid(p)
    p(f"""
    s_cmp_ge_u32 s26, 28
    s_cbranch_scc1 L_idle
    s_setprio 3
    s_mul_i32 s30, s26, 9363
    s_lshr_b32 s30, s30, 16                ; j/7
    s_mul_i32 s31, s30, 7
    s_sub_u32 s31, s26, s31                ; fb = j%7
    s_lshl_b32 s32, s25, 2
    s_add_u32 s30, s30, s32                ; tb
    s_lshl_b32 s33, s31, 19
    s_add_u32 s33, s33, {Z2F}
    s_lshl_b32 s34, s24, 17
    s_add_u32 s33, s33, s34
    s_lshl_b32 s56, s30, 18
    s_lshl_b32 s34, s24, 10
    s_add_u32 s56, s56, s34
    s_lshl_b32 s36, s24, 13
    s_add_u32 s36, s36, {LDS_STG}
    s_add_u32 s37, s36, 4096
    v_lshrrev_b32 v2, 3, v1
    v_lshrrev_b32 v3, 4, v1
    v_xor_b32 v3, v3, v1
    v_and_b32 v3, 7, v3
    v_lshlrev_b32 v3, 4, v3
    v_lshl_add_u32 v{VD}, v2, 12, v3
    v_xor_b32 v{VD+1}, 64, v{VD}
    v_add_u32 v{VD+1}, {8*4096-1024}, v{VD+1}
    """)
    for i in range(4):
        p(f"s_add_u32 s38, s24, {i}\ns_and_b32 s38, s38, 3\ns_lshl_b32 s38, s38, 10\ns_add_u32 s{52+i}, s33, s38")
    p(f"""
    s_lshl_b32 s38, s31, 12                ; (2fb)*16*128
    s_lshl_b32 s39, s24, 9
    s_add_u32 s39, s39, s38
    s_add_u32 s39, s39, {PFL+4}
    s_lshr_b32 s49, s24, 1
    s_lshl_b32 s49, s49, 11
    s_add_u32 s49, s49, s38
    s_lshr_b32 s38, s30, 1
    s_lshl_b32 s38, s38, 7
    s_add_u32 s49, s49, s38
    s_and_b32 s38, s30, 1
    s_lshl_b32 s38, s38, 3
    s_add_u32 s49, s49, s38
    s_add_u32 s49, s49, {PFL+8-OFL}
    v_and_b32 v4, 3, v1
    v_bfe_u32 v5, v1, 2, 1
    v_lshlrev_b32 v5, 11, v5
    v_lshl_add_u32 v4, v4, 7, v5
    """)
    def dma(b):
        out = []
        for i in range(8):
            if i % 4 == 0: out.append(I(f"s_mov_b32 m0, s{(66 if (b % 3 == 2 and b > 2) else 36) + i//4}"))
            if i % 2 == 0: out.append(I(f"s_add_u32 s57, s56, {(i//2)*16*4096 - (i%4)*1024}"))
            out.append(I(f"buffer_load_dwordx4 v{VD + i%2}, s[16:19], s57 offen offset:{(i%4)*1024} sc1 lds", tag=f"d{b}"))
        out.append(I("s_add_u32 s56, s56, 128"))
        return out
    def zload(n):
        i = n % 4
        return [I(f"buffer_load_dwordx4 {vr(ZR + (n%NZF)*4, 4)}, v{VL}, s[12:15], s{52+i} offen sc1", tag=f"z{n}"),
                I(f"s_add_u32 s{52+i}, s{52+i}, 4096")]
    p.add(dma(0))
    p.wait(vm="kv"); p(f"ds_write_b32 v{GF}, v0 offset:48")
    poll(p, "L_pz", 39, 4, None, 5, sleep=VAR.get('zsleep', 4))
    p(f"v_mov_b32 v5, s11\nbuffer_store_dword v5, off, s[12:15], s89 sc1")
    st(p, 9)
    for n in range(16): p.add(zload(n))
    p(f"v_and_b32 v2, 31, v1")
    bitswap23(p, 2, 2, 3)
    p(f"""
    v_lshrrev_b32 v3, 1, v2
    v_lshrrev_b32 v{VW}, 5, v1
    v_xor_b32 v3, v3, v{VW}
    v_and_b32 v3, 7, v3
    v_lshlrev_b32 v3, 4, v3
    v_lshl_add_u32 v{VW}, v2, 7, v3
    v_add_u32 v{VW}, s36, v{VW}
    v_xor_b32 v{VW+1}, 32, v{VW}
    v_xor_b32 v{VW+2}, 64, v{VW}
    v_xor_b32 v{VW+3}, 96, v{VW}
    """)
    if VAR['fuse3']:
        flag_addr(p); p(f"v_mov_b32 v3, v{G+6}")
    p(f"s_setprio {VAR['prio_g']}")
    st(p, 1)
    wr = lambda g, tt: WR + ((g % 6)*2 + tt)*4
    def wread(b):
        return [I(f"ds_read_b128 {vr(wr(4*b+u, tt), 4)}, v{VW+u} offset:{tt*4096}", tag=f"w{b}", needs=[f"d{b}"]) for u in range(4) for tt in range(2)]
    def block(b, first=False, dma_on=True, z_on=True, w_on=True):
        o = []
        for u in range(4):
            g = 4*b+u
            o.append(W(vm=[f"z{4*g+3}"]))
            for i in range(4):
                n = 4*g+i
                for tt in range(2):
                    c = "0" if (first and u == 0) else vr(acc(i,tt),16)
                    o.append(mfma32(vr(acc(i,tt),16), vr(ZR+(n%NZF)*4,4), vr(wr(g,tt),4), c))
                if u == 2 and i == 1 and w_on:
                    o.append(W(lg=f"w{b+1}"))
                    if dma_on: o += dma(b+2)
            if u == 1 and w_on: o += [W(vm=f"d{b+1}")] + wread(b+1)
            if z_on:
                for i in range(4): o += zload(4*g+i+NZF)
        return o
    p.wait(vm="d0"); p.add(wread(0)); p.wait(lg="w0"); p.add(dma(1))
    p.add(block(0, first=True))
    p("s_mov_b32 s60, 0")
    hist = dma(0) + sum([zload(n) for n in range(16)], []) + dma(1) + block(0) + block(1) + block(2) + block(3) + [I("L_mark:")] + block(4) + block(5) + block(6)
    full = resolve_waits(hist)
    lb = full[next(i for i, x in enumerate(full) if x.kind == "label" and x.op == "L_mark")+1:]
    first_pass = resolve_waits(dma(0) + sum([zload(n) for n in range(16)], []) + dma(1) + block(0) + [I("L_mark:")] + block(1) + block(2) + block(3))
    fp = first_pass[next(i for i, x in enumerate(first_pass) if x.kind == "label" and x.op == "L_mark")+1:]
    assert len(fp) == len(lb)
    merged = []
    for x, y in zip(fp, lb):
        if x.kind == "wait":
            vm = min(v for v in (x.vm, y.vm) if v is not None) if (x.vm is not None or y.vm is not None) else None
            lg = min(v for v in (x.lg, y.lg) if v is not None) if (x.lg is not None or y.lg is not None) else None
            merged.append(I("s_waitcnt " + " ".join(([f"vmcnt({vm})"] if vm is not None else []) + ([f"lgkmcnt({lg})"] if lg is not None else []))))
        else:
            assert x.text == y.text, (x.text, y.text)
            merged.append(y)
    p.label("L_g_loop")
    p("s_cmp_eq_u32 s60, 1\ns_cselect_b32 s66, 0x30000, s36\ns_cselect_b32 s67, 0x30000, s37")
    p.add(merged)
    p("s_add_u32 s60, s60, 1\ns_cmp_lt_u32 s60, 2\ns_cbranch_scc1 L_g_loop")
    if VAR['fuse3']: p(f"s_mov_b32 s48, {OFL}"); p(f"buffer_load_dword v0, v3, s[12:15], s48 offen sc1", tag="fl")
    p.add(block(7, dma_on=False, z_on=False, w_on=False))
    st(p, 2)
    p(f"s_setprio {VAR.get('prio_e', 3)}")
    p(f"""
    s_lshl_b32 s38, s30, 1
    s_mul_i32 s39, s38, {56*1024}
    s_lshl_b32 s40, s31, 2
    s_add_u32 s40, s40, s24
    s_lshl_b32 s41, s40, 11
    s_add_u32 s39, s39, s41
    s_add_u32 s39, s39, {Z1F}
    s_add_u32 s42, s39, {56*1024}
    s_mul_i32 s64, s38, {88*1024}
    s_add_u32 s64, s64, s41
    s_add_u32 s64, s64, {A3 + 32*1024}
    s_add_u32 s65, s64, {88*1024}
    s_lshl_b32 s45, s30, 7
    v_lshlrev_b32 v2, 1, v2
    """)
    Z = ZR
    p(f"v_mov_b32 v{G+1}, v{GF}")
    if VAR['fuse3']:
        p.wait(vm="fl")
        p("v_cmp_ne_u32 vcc, s11, v0\ns_cbranch_vccz L_g_fl")
        poll(p, "L_p00", 48, 3, None, 0, sleep=8)
        p.label("L_g_fl")
    p(f"buffer_load_dwordx4 {vr(Z,4)}, v{VL}, s[12:15], s39 offen sc1", tag="z1")
    p(f"buffer_load_dwordx4 {vr(Z+4,4)}, v{VL}, s[12:15], s39 offen offset:1024 sc1", tag="z1")
    p(f"buffer_load_dwordx4 {vr(Z+8,4)}, v{VL}, s[12:15], s42 offen sc1", tag="z1")
    p(f"buffer_load_dwordx4 {vr(Z+12,4)}, v{VL}, s[12:15], s42 offen offset:1024 sc1", tag="z1")
    p(f"buffer_load_ushort v{Z+16}, v2, s[20:23], s45 offen", tag="z1")
    p(f"buffer_load_ushort v{Z+17}, v2, s[20:23], s45 offen offset:64", tag="z1")
    if VAR['fuse3']:
        g2_scalars(p)
        w_loads(p, 0, 10)
    p(f"v_add_u32 v{G}, s36, v{VL}\nv_mov_b32 v{G+2}, {LDS_FLAG}\ns_lshl_b32 s47, s24, 14\ns_add_u32 s47, s47, {IMG}\nv_add_u32 v{G+3}, s47, v{VL}")
    for k in range(8): p(f"ds_write_b128 v{G}, {vr(acc(1,0)+4*k, 4)} offset:{k*1024}")
    flag_wait(p, "L_g_prog", G+2, 80, 4, G+4)
    for r in (2, 3):
        for k in range(8): p(f"ds_write_b128 v{G+3}, {vr(acc(r,0)+4*k, 4)} offset:{(r-2)*8192 + k*1024}")
    for r in range(1, 4):
        p(f"s_add_u32 s47, s24, {4-r}\ns_and_b32 s47, s47, 3")
        if r == 1: p(f"s_lshl_b32 s47, s47, 13\ns_add_u32 s47, s47, {LDS_STG}\nv_add_u32 v{G}, s47, v{VL}")
        else: p(f"s_lshl_b32 s47, s47, 14\ns_add_u32 s47, s47, {(r-2)*8192 + IMG}\nv_add_u32 v{2 if r == 2 else 3}, s47, v{VL}")
    p(f"v_mov_b32 v{G+3}, 1\ns_waitcnt lgkmcnt(0)\nds_write_b32 v{G+1}, v{G+3} offset:16")
    flag_wait(p, "L_g_dat", G+2, 16, 1, G+4, sleep=0)
    for r in range(1, 4):
        for k in range(8):
            p(f"ds_read_b128 {vr(acc(r,0)+4*k,4)}, v{(G, 2, 3)[r-1]} offset:{k*1024}", tag=f"r{r}_{k}")
        if r > 1:
            for k in range(8):
                p.wait(lg=f"r{r-1}_{k}")
                for e in range(4): p(f"v_add_f32 v{acc(0,0)+4*k+e}, v{acc(0,0)+4*k+e}, v{acc(r-1,0)+4*k+e}")
    for k in range(8):
        p.wait(lg=f"r3_{k}")
        for e in range(4): p(f"v_add_f32 v{acc(0,0)+4*k+e}, v{acc(0,0)+4*k+e}, v{acc(3,0)+4*k+e}")
    if VAR['fuse3']: spin1(p, "L_g_pf", G+1, 64, 1, G+3)
    p.wait(vm="z1")
    T = acc(1, 0)
    p(f"v_lshlrev_b32 v{Z+16}, 16, v{Z+16}\nv_lshlrev_b32 v{Z+17}, 16, v{Z+17}")
    for tt in range(2):
        a = acc(0, tt)
        for r in range(16): p(f"v_add_f32 v{a+r}, v{a+r}, v{Z+16+tt}")
        for d in range(8):
            z = Z + tt*8 + d
            p(f"v_lshlrev_b32 v{T}, 16, v{z}\nv_and_b32 v{T+1}, 0xffff0000, v{z}")
            p(f"v_mul_f32 v{a+2*d}, v{a+2*d}, v{T}\nv_mul_f32 v{a+2*d+1}, v{a+2*d+1}, v{T+1}")
            p(f"v_cvt_pk_bf16_f32 v{T+8+tt*8+d}, v{a+2*d}, v{a+2*d+1}")
        for d in range(8): p(f"v_min_u32 v{T+8+tt*8+d}, -2, v{T+8+tt*8+d}")
        so = 64 + tt
        p(f"buffer_store_dwordx4 {vr(T+8+tt*8,4)}, v{VL}, s[12:15], s{so} offen")
        p(f"buffer_store_dwordx4 {vr(T+12+tt*8,4)}, v{VL}, s[12:15], s{so} offen offset:1024")
    if VAR.get('pf3'):
        p(f"s_lshl_b32 s38, s26, 2\ns_add_u32 s38, s38, s24\ns_mul_i32 s38, s38, 16384\ns_add_u32 s38, s38, {W3F}\nv_lshlrev_b32 v2, 7, v1")
        p(f"buffer_load_dword v3, v2, s[12:15], s38 offen\ns_add_u32 s38, s38, 8192\nbuffer_load_dword v3, v2, s[12:15], s38 offen")
    st(p, 3)
    if VAR['fuse3']:
        w_loads(p, 10, 14)
        p("s_branch L_g2")
    else: p("s_endpgm")
    p.label("L_idle")
    p(f"""
    s_load_dwordx2 s[36:37], s[0:1], {KA_WO}
    s_load_dwordx2 s[38:39], s[0:1], {KA_WOUT}
    s_lshl_b32 s34, s25, 2
    s_add_u32 s34, s34, s26
    s_sub_u32 s34, s34, 28                      ; L
    s_mov_b32 s54, {896*1024}
    v_lshrrev_b32 v2, 2, v1
    v_and_b32 v3, 3, v1
    v_lshlrev_b32 v3, 4, v3
    v_lshl_add_u32 v2, v2, 10, v3
    s_waitcnt lgkmcnt(0)
    s_cmp_lt_u32 s34, 16
    s_cselect_b32 s52, s36, s38
    s_cselect_b32 s53, s37, s39
    s_cselect_b32 s54, {512*1024}, s54
    s_cselect_b32 s35, 8, 14
    s_cselect_b32 s67, 0, {32*1024}
    s_mov_b32 s55, 0x20000
    s_and_b32 s34, s34, 15
    s_mul_i32 s68, s24, s35
    s_lshl_b32 s69, s68, 14
    s_lshl_b32 s60, s34, 6
    s_add_u32 s69, s69, s60
    s_mul_i32 s60, s34, {88*1024}
    s_lshl_b32 s68, s68, 10
    s_add_u32 s60, s60, s68
    s_add_u32 s60, s60, s67
    s_add_u32 s60, s60, {W3F}
    s_lshl_b32 s61, s24, 13
    s_add_u32 s61, s61, {LDS_STG}
    """)
    def w3_dma(n):
        for k in range(n):
            p(f"s_add_u32 m0, s61, {k*1024}\ns_nop 0\nbuffer_load_dwordx4 v2, s[52:55], s69 offen lds\ns_add_u32 s69, s69, 16384")
    def w3_out(n):
        for k in range(n):
            p(f"ds_read_b64_tr_b16 v[{8+4*k}:{9+4*k}], v3 offset:{k*1024}\nds_read_b64_tr_b16 v[{10+4*k}:{11+4*k}], v3 offset:{k*1024+256}")
            if k % 4 == 3: p("s_waitcnt lgkmcnt(0)")
        p("s_waitcnt lgkmcnt(0)")
        for k in range(n):
            p(f"buffer_store_dwordx4 v[{8+4*k}:{11+4*k}], v{VL}, s[12:15], s60 offen\ns_add_u32 s60, s60, 1024")
    p(f"v_mov_b32 v5, s11\ns_waitcnt vmcnt(0)\nds_write_b32 v{GF}, v0 offset:48\nbuffer_store_dword v5, off, s[12:15], s89 sc1")
    w3_dma(8)
    NP = 8 if VAR.get('ipf', 1) else 0
    if NP:
        p(f"""
        s_sub_u32 s36, s26, 28
        s_lshl_b32 s36, s36, 2
        s_add_u32 s36, s36, s24                 ; wave16
        v_lshlrev_b32 v5, 12, v1
        s_lshl_b32 s56, s25, 20
        s_and_b32 s37, s36, 3
        s_lshl_b32 s37, s37, 18
        s_add_u32 s56, s56, s37
        s_lshr_b32 s37, s36, 2
        s_lshl_b32 s37, s37, 10
        s_add_u32 s56, s56, s37
        """)
        for g in range(8): p(f"buffer_load_dword v6, v5, s[16:19], s56 offen offset:{g*128}")
    p(f"""
    v_lshrrev_b32 v4, 5, v1
    v_lshlrev_b32 v3, 9, v4
    v_bfe_u32 v4, v1, 2, 2
    v_lshl_add_u32 v3, v4, 6, v3
    v_bfe_u32 v4, v1, 4, 1
    v_lshl_add_u32 v3, v4, 5, v3
    v_and_b32 v4, 1, v1
    v_lshl_add_u32 v3, v4, 4, v3
    v_bfe_u32 v4, v1, 1, 1
    v_lshl_add_u32 v3, v4, 3, v3
    v_add_u32 v3, s61, v3
    s_waitcnt vmcnt({NP})
    """)
    w3_out(8)
    p("s_cmp_eq_u32 s35, 8\ns_cbranch_scc1 L_w3done")
    w3_dma(6)
    p("s_waitcnt vmcnt(0)")
    w3_out(6)
    p.label("L_w3done")
    if not VAR['fuse3']:
        p("s_endpgm"); return
    p(f"""
    s_lshr_b32 s33, s34, 1
    s_lshl_b32 s33, s33, 7                      ; (nt>>1)*128
    s_and_b32 s34, s34, 1
    s_lshl_b32 s34, s34, 4
    s_add_u32 s33, s33, s34
    s_lshr_b32 s34, s67, 10                     ; 0 or 32
    s_add_u32 s33, s33, s34
    s_lshl_b32 s34, s24, 2
    s_add_u32 s33, s33, s34
    s_add_u32 s33, s33, {WFL}
    v_mov_b32 v0, s11
    s_waitcnt vmcnt(0)
    buffer_store_dword v0, off, s[12:15], s33 sc1
    s_add_u32 s49, s33, {-OFL & 0xffffffff:#x}
    s_and_b32 s49, s49, -64
    """)
    flag_addr(p)
    p.label("L_g2w")
    p(f"s_mov_b32 s48, {OFL}")
    poll(p, "L_p0", 48, G+6, None, G+5, sleep=32)
    gen_g2(p, st)


FA = 4
def FWr(k): return 152 + 4*k if k < 20 else 68 + 4*(k-20)
def FRr(k): return 100 + 4*k if k < 13 else 232 + 4*(k-13)
FX = 68
FXU = 216
FL_ = 244; FO = 245; FT = 246
def poll(p, name, soff, voff, mask_hi_lo, tmp, bad=0, sleep=None):
    p(f"s_mov_b32 s47, 0")
    p.label(name)
    p(f"buffer_load_dword v{tmp}, v{voff}, s[12:15], s{soff} offen sc1\ns_add_u32 s47, s47, 1\ns_waitcnt vmcnt(0)")
    p(f"{'v_cmp_eq_u32 vcc, -1' if bad == -1 else 'v_cmp_ne_u32 vcc, s11'}, v{tmp}\ns_cbranch_vccz {name}_ok\ns_cmp_gt_u32 s47, 0x40000\ns_cbranch_scc1 {name}_ok\ns_sleep {sleep or VAR.get('psleep', 16)}\ns_branch {name}")
    p.label(name + "_ok")
def g2_scalars(p):
    p(f"""
    s_load_dwordx2 s[6:7], s[0:1], {KA_X}
    s_load_dwordx2 s[8:9], s[0:1], {KA_OUT}
    s_lshr_b32 s27, s26, 3
    s_lshl_b32 s28, s25, 2
    s_add_u32 s27, s27, s28                ; tb
    s_and_b32 s28, s26, 7                  ; nb
    s_and_b32 s29, s24, 1
    s_lshr_b32 s30, s24, 1
    s_lshl_b32 s32, s27, 1
    s_add_u32 s33, s32, s29
    s_xor_b32 s34, s33, 1
    s_lshl_b32 s32, s28, 1
    s_add_u32 s35, s32, s30
    s_xor_b32 s37, s35, 1
    s_mul_i32 s40, s33, {88*1024}
    s_mul_i32 s41, s34, {88*1024}
    s_mul_i32 s42, s35, {88*1024}
    s_mul_i32 s43, s37, {88*1024}
    s_add_u32 s40, s40, {A3}
    s_add_u32 s41, s41, {A3}
    s_add_u32 s42, s42, {W3F}
    s_add_u32 s43, s43, {W3F}
    s_mul_i32 s31, s24, {14*1024}
    s_add_u32 s31, s31, {32*1024}
    s_lshl_b32 s32, s24, 13
    s_lshl_b32 s44, s33, 15
    s_lshl_b32 s45, s35, 6
    s_add_u32 s44, s44, s45
    s_mov_b32 s49, 0
    s_waitcnt lgkmcnt(0)
    """)
def w_loads(p, s0, s1):
    for s_ in range(s0, s1):
        for i in range(2):
            if s_ == s0 or s_ % 4 == 0: p(f"s_add_u32 s{54+i}, s{42+i}, s31\ns_add_u32 s{54+i}, s{54+i}, {(s_//4)*4096}")
            p(f"buffer_load_dwordx4 {vr(FWr(s_*2+i),4)}, v{FL_}, s[12:15], s{54+i} offen offset:{(s_%4)*1024} sc1")
def gen_g2(p, st):
    p("s_setprio 3")
    g2_scalars(p)
    p.label("L_g2_redo")
    w_loads(p, 0, 14)
    p.label("L_g2")
    for i in range(2): p(f"s_add_u32 s{52+i}, s{40+i}, s31")
    for i in range(4): p(f"s_add_u32 s{56+i}, s{40+i}, s32")
    p(f"""
    s_min_u32 s46, s52, s53
    s_min_u32 s45, s56, s57
    v_lshrrev_b32 v2, 1, v1
    v_min_u32 v{FT+2}, 13, v2
    v_min_u32 v{FT+1}, 7, v2
    v_and_b32 v3, 1, v1
    v_mul_u32_u24 v3, {88*1024}, v3
    v_add_u32 v3, 1020, v3
    v_lshl_add_u32 v{FT+2}, v{FT+2}, 10, v3
    v_lshl_add_u32 v{FT+1}, v{FT+1}, 10, v3
    v_and_b32 v2, 31, v1
    """)
    bitswap23(p, 2, 2, 3)
    p(f"v_lshrrev_b32 v3, 5, v1\nv_lshlrev_b32 v3, 4, v3\nv_lshl_add_u32 v{FO}, v2, 10, v3\nv_mov_b32 v{FT+5}, 0")
    srd(p, 16, 6, 2048*1024); srd(p, 20, 8, 2048*1024)
    poll(p, "L_p1", 46, FT+2, None, FT+4, bad=-1)
    st(p, 4)
    p(f"s_setprio {VAR.get('prio_u', 3)}")
    NR = 8
    def ld(s):
        o = []
        if s and s % 4 == 0: o += [I(f"s_add_u32 s{52+i}, s{52+i}, 4096") for i in range(2)]
        for i in range(2):
            o.append(I(f"buffer_load_dwordx4 {vr(FRr((s%NR)*2+i),4)}, v{FL_}, s[12:15], s{52+i} offen offset:{(s%4)*1024} sc1", tag=f"g{s}"))
        return o
    for s_ in range(NR): p.add(ld(s_))
    for s_ in range(14):
        p.wait(vm=f"g{s_}")
        for n_, (a, b) in enumerate(((0,0), (0,1), (1,0), (1,1))):
            d = vr(FA + (a*2+b)*16, 16)
            p.add([mfma32(d, vr(FWr(s_*2+a),4), vr(FRr((s_%NR)*2+b),4), "0" if s_ == 0 else d)])
            r0 = FRr((s_%NR)*2 + n_//2) + 2*(n_%2)
            p(f"v_max3_u32 v{FT+5}, v{FT+5}, v{r0}, v{r0+1}")
        if s_+NR < 14: p.add(ld(s_+NR))
        if s_ >= 6:
            k = s_-6
            for i in range(2):
                p(f"s_add_u32 s47, s{58+i}, {(k//4)*4096}")
                p(f"buffer_load_dwordx4 {vr(FWr(k*2+i),4)}, v{FL_}, s[12:15], s47 offen offset:{(k%4)*1024} sc1", tag="wo")
    p(f"buffer_load_dwordx4 {vr(FX,4)}, v{FO}, s[16:19], s44 offen", tag="x")
    p(f"buffer_load_dwordx4 {vr(FX+4,4)}, v{FO}, s[16:19], s44 offen offset:32", tag="x")
    p(f"s_setprio 3\nv_cmp_eq_u32 vcc, -1, v{FT+5}\ns_cbranch_vccnz L_g2_again")
    p.label("L_g2_go")
    p.wait(vm="x")
    for d_ in range(7, -1, -1):
        p(f"v_and_b32 v{FXU+2*d_+1}, 0xffff0000, v{FX+d_}\nv_lshlrev_b32 v{FXU+2*d_}, 16, v{FX+d_}")
    st(p, 5)
    p("s_barrier")
    p("s_add_u32 s58, s56, 4096\ns_add_u32 s59, s57, 4096\ns_mov_b32 s49, 0")
    p.label("L_p3")
    poll(p, "L_p2", 45, FT+1, None, FT+4, bad=-1, sleep=VAR.get('p3sleep', 4))
    for s_ in range(8):
        for i in range(2):
            p(f"buffer_load_dwordx4 {vr(FRr(s_*2+i),4)}, v{FL_}, s[12:15], s{56+i+2*(s_//4)} offen offset:{(s_%4)*1024} sc1", tag=f"o{s_}")
    p(f"v_mov_b32 v{FT+4}, 0\ns_add_u32 s49, s49, 1")
    for s_ in range(8):
        p.wait(vm=f"o{s_}")
        for k in range(0, 8, 2): p(f"v_max3_u32 v{FT+4}, v{FT+4}, v{FRr(2*s_+k//4)+k%4}, v{FRr(2*s_+k//4)+k%4+1}")
    p(f"v_cmp_eq_u32 vcc, -1, v{FT+4}\ns_cbranch_vccz L_p3_ok\ns_cmp_lt_u32 s49, 64\ns_cbranch_scc1 L_p3")
    p.label("L_p3_ok")
    st(p, 6)
    for i in range(1, 4):
        p(f"s_xor_b32 s46, s24, {i}\ns_mul_i32 s46, s46, 12288\ns_add_u32 s46, s46, {(i-1)*4096 + IMG}\nv_add_u32 v{FT+i}, s46, v{FL_}")
    p(f"s_mul_i32 s46, s24, 12288\ns_add_u32 s46, s46, {IMG}\nv_add_u32 v{FT}, s46, v{FL_}")
    for s_ in range(8):
        order = ((0,0), (0,1), (1,0), (1,1)) if s_ < 7 else ((0,1), (1,0), (1,1), (0,0))
        for (a, b) in order:
            d = vr(FA + (a*2+b)*16, 16)
            p.add([mfma32(d, vr(FWr(s_*2+a),4), vr(FRr(s_*2+b),4), d)])
    for i in range(1, 4):
        for k in range(4): p(f"ds_write_b128 v{FT+i}, {vr(FA+i*16+4*k,4)} offset:{k*1024}")
    for r in range(16): p(f"v_add_f32 v{FA+r}, v{FA+r}, v{FXU+r}")
    p("s_waitcnt lgkmcnt(0)\ns_barrier")
    for k in range(12): p(f"ds_read_b128 {vr(FA+16+4*k,4)}, v{FT} offset:{k*1024}", tag=f"r{k}")
    for k in range(12):
        p.wait(lg=f"r{k}")
        for e in range(4): p(f"v_add_f32 v{FA+(4*k+e)%16}, v{FA+(4*k+e)%16}, v{FA+16+4*k+e}")
    for d in range(8): p(f"v_cvt_pk_bf16_f32 v{FX+d}, v{FA+2*d}, v{FA+2*d+1}")
    p(f"buffer_store_dwordx4 {vr(FX,4)}, v{FO}, s[20:23], s44 offen")
    p(f"buffer_store_dwordx4 {vr(FX+4,4)}, v{FO}, s[20:23], s44 offen offset:32")
    st(p, 7)
    if st.on and VAR.get('dbg') is not None:
        D = VAR['dbg']
        p(f"s_cmp_lg_u32 s2, {D}\ns_cbranch_scc1 L_end\ns_cmp_lg_u32 s24, 0\ns_cbranch_scc1 L_end")
        p(f"s_load_dwordx2 s[6:7], s[0:1], {KA_DBG}\ns_waitcnt vmcnt(0)")
        sel = [(0,0,15),(0,0,1),(0,0,5),(0,0,7),(0,0,9),(1,0,15),(1,0,1),(1,0,2),(1,0,3),(1,4,1),(1,4,2),(1,4,3),(1,4,4),(1,4,5),(1,4,6),(1,4,7)]
        for i, (k, w, sl) in enumerate(sel):
            off = STAMP + k*0x80000 + (D*16 + w)*128 + sl*8 + 4
            p(f"v_mov_b32 v3, {off:#x}\nbuffer_load_dword v{100+i}, v3, s[12:15], 0 offen sc1")
        p("s_waitcnt vmcnt(0) lgkmcnt(0)")
        srd(p, 16, 6, 256)
        for i in range(16):
            p(f"v_sub_u32 v2, v{100+i}, v100\nbuffer_store_dword v2, off, s[16:19], 0 offset:{4*i}")
    p("s_endpgm")
    p.label("L_g2_again")
    p("s_add_u32 s49, s49, 1\ns_cmp_gt_u32 s49, 64\ns_cbranch_scc1 L_g2_go\ns_waitcnt vmcnt(0)\ns_branch L_g2_redo")
```

```python
import sys
from build import build
from asmlib import I
import f1, f2
stamp = 'st' in sys.argv
out = [a for a in sys.argv[1:] if a.endswith('.s')][0]
for a in sys.argv:
    if a.startswith('v1:'): f1.VAR.update(eval(a[3:]))
    if a.startswith('v2:'): f2.VAR.update(eval(a[3:]))
l, e = f1.finalize_kf(f1.gen_kf(stamp=stamp), verbose='vb' in sys.argv)
assert not e
l = [I(x.text + ' sc1') if (x.kind == 'vmem' and x.base == 'buffer_store_dwordx4' and 'sc1' not in x.text and not ('outsc1' not in sys.argv and 's[20:23]' in x.text)) else x for x in l]
if 'outnt' in sys.argv: l = [I(x.text.replace(' sc1', ' nt')) if (x.kind == 'vmem' and x.base == 'buffer_store_dwordx4' and 's[20:23]' in x.text) else x for x in l]
if 'qplain' in sys.argv:
    g1 = next(i for i, x in enumerate(l) if x.kind == 'label' and x.op == 'L_g1')
    l = [I(x.text.replace(' sc1', '')) if (i > g1 and x.kind == 'vmem' and 'store' in x.base and (' s85 ' in x.text or ' s87 ' in x.text or ' s83 ' in x.text)) else x for i, x in enumerate(l)]
d = dict(f1.KF_DESC, l=l)
if 'final' in sys.argv: d['name'] = 'parallel_sum__mha_block__mixer_gmlp__prompt_kernel'
build([d], out)
```

```python
from common import *
import f2
def ar(b, n): return vr(128+b, n)
import struct, math
def fh(f): return hex(struct.unpack("<I", struct.pack("<f", f))[0])
K1_LDS = 163840
RING = 65536
BIAS = 3072
CNT = 3072
C0 = -2.0*math.sqrt(2.0/math.pi)*1.4426950408889634
A0, A1, A2, A3_ = 4, 20, 36, 52
LA = 2
WB = 68
CSF = 92
CSA = 100
T = 68
WC = 92; STQ = 96
SEL = 108; XC = 112
R1, RI, C0R, C1R = 116, 117, 118, 119
VXD = 116
VXR = 112
VL, VPI, VQ, VB = 120, 121, 122, 123
VA = 124
RR = 52
SX, Q0, Q1 = 52, 56, 60
VAR = dict(prio=True, per=1, rot=6, cpf=40960)
WI, WQ, XS = "s[16:19]", "s[20:23]", "s[24:27]"
SXE, SIE, SQE = 60, 64, 96

def dma1(lds_s, lds_c, sr, vo, sb, se, c, tag):
    return [I(f"s_add_u32 m0, s{lds_s}, {lds_c}"), I(f"s_add_u32 s69, s{sb}, s{se}"),
            I(f"buffer_load_dwordx4 v{vo}, {sr}, s69 offen offset:{c} lds" if False else f"s_add_u32 s69, s69, {c}"),
            I(f"buffer_load_dwordx4 v{vo}, {sr}, s69 offen lds", tag=tag)]
def E_addr(ks): return RING + ((ks//8)*24 + (ks%8)*3)*1024
def Q_addr(ks): return RING + ks*2048
def Z_addr(ks): return (131072 + ks*2048) if ks < 16 else (32768 + (ks-16)*2048)
CSO = 256; RAW = 2048; TBL = 2560
SCR2 = 65536
VQP = 0
def dma_E(e):
    b = RING + e*24*1024
    return [dma1(58, b, WI, VPI, 80, SIE+e, 1792, f"E{e}"), dma1(58, b+1024, WI, VPI, 80, SIE+e, 1792+8*3584, f"E{e}"),
            dma1(58, b+2048, WQ, VQ, 81, SQE+e, 2048, f"E{e}")]
def dma_Q(e):
    b = RING + e*16384
    return [dma1(55, b, WQ, VQP, 82, SQE+e, 0, f"Q{e}"), dma1(55, b+1024, WQ, VQP, 82, SQE+e, 8*3072, f"Q{e}")]
def dma_Z(e):
    b = (131072 + e*16384) if e < 2 else (32768 + (e-2)*16384)
    return [dma1(55, b, WI, VPI, 80, SIE+e, 0, "Za"), dma1(55, b+1024, WI, VPI, 80, SIE+e, 8*3584, "Za")]
def x_dma(e):
    return [[I(f"s_add_u32 m0, s59, {(2*e % 4)*4096 + i*1024}"), I(f"s_add_u32 s69, s56, s{SXE+e}"),
             I(f"buffer_load_dwordx4 v{VXD+i}, {XS}, s69 offen lds", tag=f"X{e}")] for i in range(4)]
def flat(x): return sum(x, [])
def x_read(ks):
    return [I(f"ds_read_b128 {ar(4*ks,4)}, v{VXR+ks%4} offset:{((ks//4)%4)*4096}", tag=f"xr{ks}")]
class Addr:
    def __init__(self, base): self.base = base
    def off(self, addr, out, span=2048+1024+6*1024*2):
        if not (0 <= addr - self.base and addr - self.base + 1024 <= 65535):
            nb = addr if addr < self.base else addr
            d = (nb - self.base) & 0xffffffff
            out += [I(f"v_add_u32 v{VA+k}, {d:#x}, v{VA+k}") for k in range(4)]
            self.base = nb
        return addr - self.base
def tr_read(dst, areg, off, e2, tag):
    return [I(f"ds_read_b64_tr_b16 {vr(dst+2*e,2)}, v{areg} offset:{off+e2*e}", tag=tag) for e in range(2)]
def m16(d, b, first): return I(f"v_mfma_f32_16x16x32_bf16 {vr(d,4)}, {vr(SEL,4)}, {b}, {'0' if first else vr(d,4)}")
def stats_mfma(ks):
    x = 4*ks; z = ks == 0
    return [m16(SX, ar(x,4), z),
            I(f"v_mfma_f32_4x4x4_16b_bf16 {vr(Q0,4)}, {ar(x,2)}, {ar(x,2)}, {'0' if z else vr(Q0,4)}"),
            I(f"v_mfma_f32_4x4x4_16b_bf16 {vr(Q1,4)}, {ar(x+2,2)}, {ar(x+2,2)}, {'0' if z else vr(Q1,4)}")]
def wb(ks, ti): return WB + ((ks % (LA+1))*2 + ti)*4
def stl(st, k):
    q = Prog(); st(q, k); return q.l

def gemm_pass(accs, addr_of, base0, nori, tagp, e2, hooks=None, cs_tiles=None, stats=False, cs_s=9, cs_o=CSO):
    nt = len(accs)
    am = Addr(base0)
    def rd(ks, dst, regs, tag):
        o = []
        off = am.off(addr_of(ks), o)
        for ti in range(nt): o += tr_read(dst(ti), regs+ti, off, e2, tag)
        return o
    o = []
    for ks in range(LA): o += rd(ks, lambda ti: wb(ks,ti), VA, f"{tagp}{ks}")
    for ks in range(32):
        pre = W(lg=[f"{tagp}{ks}", f"xr{ks}"])
        mf = []
        for ti in range(nt):
            w = vr(wb(ks,ti),4); x = ar(4*ks,4); d = vr(accs[ti],16)
            mf.append(mfma32(d, x, w, "0" if ks == 0 else d) if nori else mfma32(d, w, x, "0" if ks == 0 else d))
        h0, h1, h2 = hooks(ks) if hooks else ([], [], [])
        post = list(h0)
        tail = []
        if ks % 4 == 0 and cs_tiles:
            post += rd(ks, lambda ti: CSF+4*ti, VA+2, f"c{tagp}{ks}")
        if ks+LA < 32: post += rd(ks+LA, lambda ti: wb(ks+LA,ti), VA, f"{tagp}{ks+LA}")
        post += h1
        if ks % 4 == 1 and cs_tiles:
            pre.lg.append(f"c{tagp}{ks-1}")
            for ti in range(nt): tail.append(m16(CSA+4*ti, vr(CSF+4*ti,4), ks == 1))
        if ks == 30 and cs_tiles:
            tail.append(I(f"v_lshl_add_u32 v3, v1, 2, s{cs_s}"))
            for ti in range(nt): tail.append(I(f"ds_write_b32 v3, v{CSA+4*ti} offset:{cs_o + cs_tiles[ti]*256}"))
        if stats:
            if VAR.get('stfirst'): mf += stats_mfma(ks); mf_all = True
            else: tail += stats_mfma(ks)
        tail += h2
        if stats and VAR.get('stfirst'): o += [pre] + mf + post + tail
        else: o += [pre] + mf[:1] + post + mf[1:] + tail
    return o

def phase1_hooks(st):
    sched = {}
    def spread(pcs, first, per):
        pcs = list(pcs); k = first
        while pcs:
            for _ in range(per):
                if pcs: sched.setdefault(k, []).append(pcs.pop(0))
            k += 1
    spread(dma_E(2) + dma_E(3), 0, 1)
    spread(x_dma(2) + dma_Q(0), 8-LA, VAR['per'])
    spread(x_dma(3) + dma_Q(1) + dma_Q(2), 16-LA, VAR['per'])
    spread(dma_Q(3), 24-LA, VAR['per'])
    def hooks(ks):
        e, r8 = divmod(ks, 8)
        h0 = []; h1 = []
        if r8 == 8-LA and e < 3:
            h0 = [W(vm=[f"X{e+1}", f"E{e+1}"], lg0=True), I("s_barrier")] + stl(st, 2+e)
        if r8 >= 8-LA and e < 3:
            k0 = 8*(e+1) + 2*(r8-(8-LA)); h1 += x_read(k0) + x_read(k0+1)
        if r8 < 4: h1 += x_read(8*e+4+r8)
        h2 = flat(sched.get(ks, []))
        if ks == 26: h2 = h2 + [I(f"buffer_load_dword v{A2+1}, off, s[44:47], 0 sc1", tag="tag")]
        return h0, h1, h2
    return hooks

def set_va(p, pair, base, mstride):
    sh = 7 if pair else 6
    p(f"""
    v_lshrrev_b32 v2, 5, v1
    v_lshlrev_b32 v{VA}, {sh+3}, v2
    v_bfe_u32 v3, v1, 2, 2
    v_lshl_add_u32 v{VA}, v3, {sh}, v{VA}
    v_bfe_u32 v3, v1, 4, 1
    v_lshl_add_u32 v{VA}, v3, 5, v{VA}
    v_and_b32 v3, 1, v1
    v_lshl_add_u32 v{VA}, v3, 4, v{VA}
    v_bfe_u32 v3, v1, 1, 1
    v_lshl_add_u32 v{VA}, v3, 3, v{VA}
    """)
    if pair: p(f"v_bfe_u32 v3, v1, 3, 1\nv_lshl_add_u32 v{VA}, v3, 6, v{VA}")
    p(f"""
    v_add_u32 v{VA}, {base}, v{VA}
    s_mul_i32 s34, s29, {mstride}
    v_xor_b32 v{VA+1}, 64, v{VA}
    v_add_u32 v{VA+2}, s34, v{VA}
    v_add_u32 v{VA+3}, s34, v{VA+1}
    """)

def corr_from(b, d, nori):
    o = [I(f"v_sub_f32 v{b}, 0, v{b}"),
         I(f"v_cvt_pk_bf16_f32 v{WC+1}, v{b}, 0"),
         I(f"v_lshlrev_b32 v{b+1}, 16, v{WC+1}"),
         I(f"v_sub_f32 v{b+1}, v{b}, v{b+1}"),
         I(f"v_cvt_pk_bf16_f32 v{WC}, v{b}, v{b+1}")]
    a_, b_ = (vr(XC,4), vr(WC,4)) if nori else (vr(WC,4), vr(XC,4))
    o.append(mfma32(vr(d,16), a_, b_, vr(d,16)))
    return o
def cs_reads(tiles, tag, base=0, stride=None, off=CSO):
    o = [I(f"v_lshlrev_b32 v2, 2, v1")]
    if base: o.append(I(f"v_add_u32 v2, {base}, v2"))
    for k, tl in enumerate(tiles):
        for w in range(4): o.append(I(f"ds_read_b32 v{T+4*k+w}, v2 offset:{(w*stride if stride else (w>>1)*16384 + (w&1)*4096) + off + tl*256}", tag=tag))
    return o
def cs_corr(accs, nori, tag):
    o = [I(f"v_mov_b32 v{WC+2}, 0"), I(f"v_mov_b32 v{WC+3}, 0"), W(lg=tag)]
    for k, d in enumerate(accs):
        b = T+4*k
        o += [I(f"v_add_f32 v{b}, v{b}, v{b+1}"), I(f"v_add_f32 v{b+2}, v{b+2}, v{b+3}"), I(f"v_add_f32 v{b}, v{b}, v{b+2}")]
        o += corr_from(b, d, nori)
    return o

def ln1_final(g, S, Q):
    o = Prog()
    o(f"""
    v_mul_f32 v{S}, {fh(1/512)}, v{S}
    v_cndmask_b32 v{S+1}, v{S}, 0, s[74:75]
    v_mul_f32 v{S+2}, v{S}, v{S}
    v_cvt_pk_bf16_f32 v{XC}, v{S+1}, v{S+1}
    v_fma_f32 v{Q}, v{Q}, s76, -v{S+2}
    v_and_b32 v{S+3}, 0xffff0000, v{XC}
    v_max_f32 v{Q}, 0, v{Q}
    v_sub_f32 v{S+3}, v{S+1}, v{S+3}
    v_add_f32 v{Q}, {fh(1e-5)}, v{Q}
    v_cvt_pk_bf16_f32 v{XC+1}, v{S+3}, 0
    v_rsq_f32 v{R1}, v{Q}
    v_mov_b32 v{XC+2}, 0
    v_mov_b32 v{XC+3}, 0
    """)
    rr = RR if g == 0 else A1
    tb = TBL + 256*g
    o(f"""
    v_lshl_add_u32 v3, v{VB}, 2, s9
    ds_write_b32 v3, v{R1} offset:{tb}
    v_lshrrev_b32 v3, 5, v1
    v_lshl_add_u32 v3, v3, 5, s9
    s_waitcnt lgkmcnt(0)
    """)
    for k in range(4): o(f"ds_read_b128 {vr(rr+4*k,4)}, v3 offset:{tb + (k//2)*64 + (k%2)*16}", tag="rr")
    if g == 0:
        o(f"v_mov_b32 v{C0R}, {fh(C0)}")
    else:
        o(f"""
        v_sqrt_f32 v{RI}, v{Q}
        v_mul_f32 v{C0R}, {fh(C0)}, v{R1}
        v_mul_f32 v{C1R}, v{R1}, v{R1}
        v_mul_f32 v{C1R}, v{C1R}, v{C0R}
        v_mul_f32 v{C1R}, {fh(0.044715)}, v{C1R}
        """)
    return o.l

def gelu_T(a, P0):
    o = []
    for g in range(0, 16, 4):
        rs = range(g, g+4); tt = lambda r: T + (r % 4)
        o += [I(f"v_mul_f32 v{tt(r)}, v{a+r}, v{a+r}") for r in rs]
        o += [I(f"v_fma_f32 v{tt(r)}, v{tt(r)}, v{C1R}, v{C0R}") for r in rs]
        o += [I(f"v_mul_f32 v{tt(r)}, v{tt(r)}, v{a+r}") for r in rs]
        o += [I(f"v_exp_f32 v{tt(r)}, v{tt(r)}") for r in rs]
        o += [I(f"v_fma_f32 v{tt(r)}, v{tt(r)}, v{RI}, v{RI}") for r in rs]
        o += [I(f"v_rcp_f32 v{tt(r)}, v{tt(r)}") for r in rs]
        o += [I(f"v_mul_f32 v{a+r}, v{a+r}, v{tt(r)}") for r in rs]
        o += [I(f"v_cvt_pk_bf16_f32 v{P0+r//2}, v{a+r}, v{a+r+1}") for r in (g, g+2)]
    return o
def gelu_N(a):
    o = []
    for g in range(0, 16, 4):
        rs = range(g, g+4); tt = lambda r: T + (r % 4)
        o += [I(f"v_mul_f32 v{a+r}, v{a+r}, v{RR+r}") for r in rs]
        o += [I(f"v_mul_f32 v{tt(r)}, v{a+r}, v{a+r}") for r in rs]
        o += [I(f"v_fma_f32 v{tt(r)}, v{tt(r)}, s77, v{C0R}") for r in rs]
        o += [I(f"v_mul_f32 v{tt(r)}, v{tt(r)}, v{a+r}") for r in rs]
        o += [I(f"v_exp_f32 v{tt(r)}, v{tt(r)}") for r in rs]
        o += [I(f"v_add_f32 v{tt(r)}, 1.0, v{tt(r)}") for r in rs]
        o += [I(f"v_rcp_f32 v{tt(r)}, v{tt(r)}") for r in rs]
        o += [I(f"v_mul_f32 v{a+r}, v{a+r}, v{tt(r)}") for r in rs]
    return o

def z2_stats():
    o = []
    a0, a1 = A0, A1
    for hf in range(2):
        S1 = lambda r: T + 4 + r
        S2 = lambda r: T + 12 + r
        for r in range(8):
            R = hf*8 + r
            o.append(I(f"v_mul_f32 v{S2(r)}, v{a0+R}, v{a0+R}"))
            o.append(I(f"v_add_f32 v{S1(r)}, v{a0+R}, v{a1+R}"))
        for r in range(8): o.append(I(f"v_fmac_f32 v{S2(r)}, v{a1+hf*8+r}, v{a1+hf*8+r}"))
        for S in (S1, S2):
            for r in range(4): o.append(I(f"v_permlane16_swap_b32 v{S(r)}, v{S(r+4)}"))
        for S in (S1, S2):
            for r in range(4): o.append(I(f"v_add_f32 v{S(r)}, v{S(r)}, v{S(r+4)}"))
        for S in (S1, S2):
            for r in range(2): o.append(I(f"v_add_f32_dpp v{S(r+4)}, v{S(r)}, v{S(r)} row_ror:8 row_mask:0xf bank_mask:0x3"))
        for S in (S1, S2):
            for r in range(2): o.append(I(f"v_add_f32_dpp v{S(r+4)}, v{S(r+2)}, v{S(r+2)} row_ror:8 row_mask:0xf bank_mask:0xc"))
        for S in (S1, S2): o.append(I(f"v_add_f32_dpp v{S(0)}, v{S(4)}, v{S(4)} row_half_mirror row_mask:0xf bank_mask:0x5"))
        for S in (S1, S2): o.append(I(f"v_add_f32_dpp v{S(0)}, v{S(5)}, v{S(5)} row_half_mirror row_mask:0xf bank_mask:0xa"))
        for S in (S1, S2): o.append(I(f"v_add_f32_dpp v{S(0)}, v{S(0)}, v{S(0)} quad_perm:[1,0,3,2] row_mask:0xf bank_mask:0xf"))
        for k, S in enumerate((S1, S2)): o.append(I(f"v_add_f32_dpp v{STQ+2*hf+k}, v{S(0)}, v{S(0)} quad_perm:[2,3,0,1] row_mask:0xf bank_mask:0xf"))
    return o

def prio(p, n):
    if VAR['prio']: p(f"s_setprio {n}")

def gen_kf(stamp=False):
    p = Prog()
    st = Stamper(stamp, 10, 0)
    st2 = Stamper(stamp, 10, 252, kid=1)
    entry_stamp(p, stamp)
    p(f"""
    s_cmp_ge_u32 s2, 256
    s_cbranch_scc1 L_end
    s_load_dwordx4 s[4:7], s[0:1], {KA_X}
    s_load_dwordx2 s[8:9], s[0:1], {KA_WIN}
    s_load_dwordx4 s[48:51], s[0:1], {KA_DBG}
    v_and_b32 v1, 63, v0
    v_lshrrev_b32 v2, 6, v0
    v_readfirstlane_b32 s28, v2                 ; wave 0..7
    s_mov_b32 s10, s28
    s_and_b32 s29, s2, 7
    s_lshr_b32 s30, s2, 3
    s_and_b32 s31, s29, 1
    s_lshl_b32 s31, s31, 3
    s_and_b32 s32, s30, 7
    s_add_u32 s31, s31, s32                     ; rb
    s_lshr_b32 s32, s29, 1
    s_lshl_b32 s32, s32, 2
    s_lshr_b32 s33, s30, 3
    s_add_u32 s32, s32, s33                     ; cg
    v_lshrrev_b32 v2, 3, v1
    v_lshrrev_b32 v3, 4, v1
    v_xor_b32 v{VXD}, v3, v1
    v_and_b32 v{VXD}, 7, v{VXD}
    v_lshlrev_b32 v{VXD}, 4, v{VXD}
    v_lshl_add_u32 v{VXD}, v2, 10, v{VXD}
    v_and_b32 v3, 1, v3
    v_lshlrev_b32 v3, 2, v3
    v_xor_b32 v3, v3, v1
    v_and_b32 v3, 7, v3
    v_lshlrev_b32 v{VB}, 4, v3
    v_mul_u32_u24 v{VPI}, 3584, v2
    v_add_u32 v{VPI}, v{VPI}, v{VB}
    v_mul_u32_u24 v{VQP}, 3072, v2
    v_add_u32 v{VQP}, v{VQP}, v{VB}
    v_lshrrev_b32 v2, 2, v1
    v_and_b32 v3, 3, v1
    v_lshlrev_b32 v3, 4, v3
    v_mul_u32_u24 v{VQ}, 3072, v2
    v_add_u32 v{VQ}, v{VQ}, v3
    s_and_b32 s29, s28, 3                       ; m tile
    s_lshr_b32 s30, s28, 2                      ; group
    s_lshl_b32 s33, s31, 2
    s_add_u32 s33, s33, s29                     ; tt
    s_lshl_b32 s56, s33, 15
    s_lshl_b32 s34, s30, 7
    s_add_u32 s56, s56, s34
    s_lshl_b32 s57, s29, 14
    s_lshl_b32 s34, s30, 12
    s_add_u32 s59, s57, s34
    s_mul_i32 s58, s28, 3072
    s_lshl_b32 s55, s28, 11
    v_xor_b32 v{VXD+1}, 64, v{VXD}
    v_add_u32 v{VXD+2}, 16384, v{VXD}
    v_add_u32 v{VXD+1}, 8192, v{VXD+1}
    v_add_u32 v{VXD+3}, 16384, v{VXD+1}
    s_mul_i32 s80, s28, {16*3584}
    s_lshl_b32 s35, s32, 7
    s_add_u32 s80, s80, s35
    s_mul_i32 s81, s28, {16*3072}
    s_lshl_b32 s35, s32, 6
    s_and_b32 s34, s32, 1
    s_mul_i32 s34, s34, {1024-64}
    s_add_u32 s82, s81, s34
    s_add_u32 s81, s81, s35
    s_add_u32 s82, s82, s35
    {["s_mov_b32 s35, 0", "s_add_u32 s35, s31, s32", "s_bfe_u32 s35, s2, 0x20001", "s_and_b32 s35, s2, 3", "s_lshl_b32 s35, s31, 1", "s_mov_b32 s35, s32", "s_mov_b32 s35, s31"][int(VAR['rot'])]}
    """)
    for e in range(4):
        p(f"s_add_u32 s34, s35, {e}\ns_and_b32 s34, s34, 3\ns_lshl_b32 s{SXE+e}, s34, 8\ns_mul_i32 s{SIE+e}, s34, {128*3584}\ns_mul_i32 s{SQE+e}, s34, {128*3072}")
    p(f"""
    s_cmp_lt_u32 s32, 14
    s_cselect_b32 s18, {512*3584}, 0
    s_cselect_b32 s42, {WS_USED}, 0
    s_mov_b32 s19, 0x20000
    s_mov_b32 s43, 0x20000
    s_waitcnt lgkmcnt(0)
    s_mov_b32 s16, s8
    s_mov_b32 s17, s9
    s_lshr_b32 s9, s29, 1
    s_lshl_b32 s9, s9, 14
    s_and_b32 s8, s29, 1
    s_lshl_b32 s8, s8, 12
    s_add_u32 s9, s9, s8
    """)
    srd(p, 24, 4, 2048*1024); srd(p, 20, 6, 512*3072)
    p.add(flat(x_dma(0))); p.add(flat(dma_E(0)))
    srd(p, 12, 50, WS_USED); srd(p, 44, 48, 256)
    p("s_mov_b32 s40, s50\ns_mov_b32 s41, s51")
    st(p, 0); entry_store(p, st)
    p(f"v_and_b32 v{VB}, 31, v1")
    bitswap23(p, VB, VB, 3)
    p(f"""
    v_lshrrev_b32 v3, 1, v{VB}
    v_lshrrev_b32 v2, 5, v1
    v_xor_b32 v3, v3, v2
    v_and_b32 v3, 7, v3
    v_lshlrev_b32 v3, 4, v3
    v_lshl_add_u32 v{VXR}, v{VB}, 7, v3
    v_add_u32 v{VXR}, s57, v{VXR}
    v_xor_b32 v{VXR+1}, 32, v{VXR}
    v_xor_b32 v{VXR+2}, 64, v{VXR}
    v_xor_b32 v{VXR+3}, 96, v{VXR}
    """)
    if VAR.get('b00', False): p("s_barrier")
    p.add(flat(x_dma(1))); p.add(flat(dma_E(1)))
    if VAR.get('cpf'): code_prefetch(p, 28, 3, f"v{A2}", 36, "L_cpf")
    p("s_or_b32 s34, s2, s28\ns_cmp_lg_u32 s34, 0\ns_cbranch_scc1 L_notag")
    p(f"s_mov_b32 s34, {EPO}\nbuffer_load_dword v2, off, s[12:15], s34 sc1\ns_waitcnt vmcnt(0)\nv_add_u32 v2, 1, v2\nv_max_u32 v2, 1, v2")
    p("buffer_store_dword v2, off, s[44:47], 0 sc1\nbuffer_store_dword v2, off, s[12:15], s34 sc1")
    p.label("L_notag")
    p(f"""
    v_lshlrev_b32 v{VL}, 4, v1
    v_and_b32 v3, 3, v1
    v_cmp_eq_u32 vcc, 0, v3
    v_lshrrev_b32 v3, 2, v1
    v_lshrrev_b32 v2, 4, v1
    v_xor_b32 v3, v3, v2
    v_and_b32 v3, 1, v3
    v_cmp_eq_u32 s[34:35], 0, v3
    s_and_b64 vcc, vcc, s[34:35]
    v_mov_b32 v3, 0x3f803f80
    v_cndmask_b32 v{SEL}, 0, v3, vcc
    v_mov_b32 v{SEL+1}, v{SEL}
    v_mov_b32 v{SEL+2}, v{SEL}
    v_mov_b32 v{SEL+3}, v{SEL}
    v_cmp_lt_u32 s[74:75], 31, v1
    s_mov_b32 s76, {fh(1/512)}
    s_cmp_eq_u32 s30, 0
    s_cbranch_scc1 L_g1
    """)
    def start(p):
        if VAR.get('fine'):
            st(p, 10); p.wait(vm="X0"); st(p, 11); p.wait(vm="E0"); st(p, 12)
        p.wait(vm=["X0", "E0"]); p("s_barrier"); st(p, 1)
        for ks in range(4): p.add(x_read(ks))
    def get_tag(p, u):
        p.wait(vm="tag")
        p(f"v_readfirstlane_b32 s11, v{A2+1}\ns_cmp_lg_u32 s11, 0\ns_cbranch_scc1 L_tag{u}\ns_mov_b32 s34, 0")
        p.label(f"L_tagp{u}")
        p(f"buffer_load_dword v2, off, s[44:47], 0 sc1\ns_add_u32 s34, s34, 1\ns_waitcnt vmcnt(0)\nv_readfirstlane_b32 s11, v2\ns_cmp_gt_u32 s34, 0x40000\ns_cbranch_scc1 L_tag{u}\ns_cmp_eq_u32 s11, 0\ns_cbranch_scc1 L_tagp{u}")
        p.label(f"L_tag{u}")
    set_va(p, True, RING, 3072)
    p(f"""
    s_mov_b32 s77, {fh(C0*0.044715)}
    s_lshr_b32 s34, s32, 1
    s_lshl_b32 s83, s34, 19
    s_lshl_b32 s35, s33, 13
    s_add_u32 s83, s83, s35
    s_and_b32 s35, s32, 1
    s_lshl_b32 s35, s35, 11
    s_add_u32 s83, s83, s35
    s_add_u32 s83, s83, {Z2F}
    s_add_u32 s84, s83, 4096
    s_lshl_b32 s87, s33, 13
    s_add_u32 s87, s87, {STAT}
    s_lshl_b32 s35, s32, 9
    s_add_u32 s88, s87, s35
    s_mul_i32 s85, s33, {56*1024}
    s_lshl_b32 s34, s32, 12
    s_add_u32 s85, s85, s34
    s_add_u32 s85, s85, {Z1F}
    s_lshl_b32 s86, s32, 11
    s_lshl_b32 s34, s31, 7
    s_add_u32 s86, s86, s34
    s_lshl_b32 s34, s29, 2
    s_add_u32 s86, s86, s34
    s_add_u32 s86, s86, {PFL+16}
    s_lshl_b32 s52, s29, 11
    s_add_u32 s52, s52, {SCR2}
    """)
    prio(p, 1)
    start(p)
    p.add(gemm_pass([A0, A1], E_addr, RING, True, "w", 512, hooks=phase1_hooks(st), cs_tiles=[0, 1]))
    p(f"v_mov_b32 v2, 0\nv_lshlrev_b32 v3, 2, v1\nds_write_b32 v3, v2")
    p.wait(vm=["Q0","Q1","Q2","Q3"], lg0=True)
    p("s_barrier")
    st(p, 5)
    prio(p, 0)
    p(f"v_lshl_add_u32 v3, v1, 2, s9")
    p(f"ds_read_b32 v{T+16}, v3 offset:{RAW}", tag="raw"); p(f"ds_read_b32 v{T+20}, v3 offset:{RAW+256}", tag="raw")
    p.add(cs_reads([0, 1], "cs0"))
    get_tag(p, "b")
    p.add(flat(dma_Z(0) + dma_Z(1) + dma_Z(2) + dma_Z(3)))
    p.wait(lg="raw")
    p(f"v_mov_b32 v{VQ}, v{T+20}")
    p.add(ln1_final(0, T+16, VQ))
    p.add(cs_corr([A0, A1], True, "cs0"))
    p.wait(lg="rr")
    p.add(gelu_N(A0)); p.add(gelu_N(A1)); p.add(z2_stats())
    p.wait(vm=["Za"])
    p(f"""
    v_and_b32 v3, 1, v1
    v_cmp_eq_u32 vcc, 1, v3
    v_bfe_u32 v2, v1, 2, 1
    v_lshl_add_u32 v2, v3, 4, v2
    v_bfe_u32 v3, v1, 3, 1
    v_lshl_add_u32 v2, v3, 1, v2
    v_bfe_u32 v3, v1, 4, 2
    v_lshl_add_u32 v2, v3, 2, v2                ; row = 16*(l&1) + 8h + 4b4 + 2b3 + b2
    v_lshlrev_b32 v2, 4, v2
    v_cndmask_b32 v{STQ}, v{STQ}, v{STQ+2}, vcc
    v_cndmask_b32 v{STQ+2}, v{STQ+1}, v{STQ+3}, vcc
    v_mov_b32 v{STQ+1}, s11
    v_mov_b32 v{STQ+3}, s11
    buffer_store_dwordx4 {vr(STQ,4)}, v2, s[40:43], s88 offen sc1
    v_sqrt_f32 v{RI}, v{VQ}
    v_mul_f32 v{C0R}, {fh(C0)}, v{R1}
    v_mul_f32 v{C1R}, v{R1}, v{R1}
    v_mul_f32 v{C1R}, v{C1R}, v{C0R}
    v_mul_f32 v{C1R}, {fh(0.044715)}, v{C1R}
    s_lshl_b32 s34, s29, 2
    v_mov_b32 v{VB}, s34
    """)
    set_va(p, True, 131072, 2048)
    st(p, 6)
    p.wait(lg0=True)
    p("s_barrier")
    prio(p, VAR.get('pz1', 2))
    st(p, 7)
    p("s_mov_b32 s88, s32\ns_mov_b32 s89, 0x7ff00000\ns_cmp_ge_u32 s32, 14\ns_cbranch_scc1 L_b_done")
    PS = VAR.get('pstep', 8); FS = VAR.get('fstep', 13)
    X = 128
    def part_loads():
        o = [I("v_and_b32 v2, 31, v1"), I("v_lshlrev_b32 v2, 4, v2"), I("v_lshrrev_b32 v3, 5, v1"), I("v_mul_u32_u24 v3, 3584, v3"), I("v_add_u32 v2, v2, v3")]
        for k in range(7):
            o.append(I(f"buffer_load_dwordx4 {ar(4*k,4)}, v2, s[12:15], s87 offen offset:{k*512} sc1", tag="part"))
        return o
    def z2_final():
        q = Prog()
        b = X+28
        q(f"s_mov_b32 s34, 0\ns_mov_b32 s35, {fh(1/896)}")
        q.wait(vm="part")
        q.label("L_chk")
        q(f"v_xor_b32 v{b+2}, s11, v{X+1}\nv_xor_b32 v{b+3}, s11, v{X+3}\nv_or_b32 v{b+2}, v{b+2}, v{b+3}\nv_mov_b32 v{b}, v{X}\nv_mov_b32 v{b+1}, v{X+2}")
        for k in range(1, 7):
            q(f"v_add_f32 v{b}, v{b}, v{X+4*k}\nv_add_f32 v{b+1}, v{b+1}, v{X+4*k+2}")
            q(f"v_xor_b32 v{X+4*k+1}, s11, v{X+4*k+1}\nv_xor_b32 v{X+4*k+3}, s11, v{X+4*k+3}\nv_or3_b32 v{b+2}, v{b+2}, v{X+4*k+1}, v{X+4*k+3}")
        q(f"v_cmp_ne_u32 vcc, 0, v{b+2}\ns_cbranch_vccnz L_retry")
        q.label("L_chk_ok")
        q(f"""
        v_mov_b32 v{b+2}, v{b}
        v_mov_b32 v{b+3}, v{b+1}
        v_and_b32 v2, 31, v1
        v_permlane32_swap_b32 v{b}, v{b+2}
        v_permlane32_swap_b32 v{b+1}, v{b+3}
        v_lshl_add_u32 v2, v2, 2, s52
        v_add_f32 v{b}, v{b}, v{b+2}
        v_add_f32 v{b+1}, v{b+1}, v{b+3}
        v_mul_f32 v{b}, s35, v{b}
        v_mul_f32 v{b+2}, v{b}, v{b}
        v_fma_f32 v{b+1}, v{b+1}, s35, -v{b+2}
        v_max_f32 v{b+1}, 0, v{b+1}
        v_add_f32 v{b+1}, {fh(1e-5)}, v{b+1}
        v_rsq_f32 v{b+1}, v{b+1}
        v_lshrrev_b32 v3, 5, v1
        v_lshl_add_u32 v3, v3, 5, s52
        v_mul_f32_e64 v{b}, -v{b}, v{b+1}
        ds_write_b32 v2, v{b+1} offset:1024
        ds_write_b32 v2, v{b} offset:1152
        s_waitcnt lgkmcnt(0)
        """)
        R2 = X; NM = X+16
        for k in range(4): q(f"ds_read_b128 {vr(R2+4*k,4)}, v3 offset:{1024 + (k//2)*64 + (k%2)*16}", tag="r2")
        for k in range(4): q(f"ds_read_b128 {vr(NM+4*k,4)}, v3 offset:{1152 + (k//2)*64 + (k%2)*16}", tag="r2")
        q2 = Prog()
        q2.wait(lg="r2")
        for t_ in range(2):
            a = A0 + 16*t_
            for r in range(16): q2(f"v_fma_f32 v{a+r}, v{a+r}, v{R2+r}, v{NM+r}")
            for d in range(8): q2(f"v_cvt_pk_bf16_f32 v{a+d}, v{a+2*d}, v{a+2*d+1}")
            q2(f"buffer_store_dwordx4 {vr(a,4)}, v{VL}, s[12:15], s83 offen offset:{t_*1024}")
            q2(f"buffer_store_dwordx4 {vr(a+4,4)}, v{VL}, s[12:15], s84 offen offset:{t_*1024}")
        return q.l, q2.l
    pl = part_loads(); zf1, zf2 = z2_final()
    n2 = (len(zf2) + 3)//4
    def zhooks(ks):
        t_ = []
        h0 = []
        if ks == PS: t_ += pl[:8]
        if ks == PS+1: t_ += pl[8:10]
        if ks == PS+2: t_ += pl[10:]
        if ks == FS: t_ += zf1
        if FS < ks <= FS+4: t_ += zf2[(ks-FS-1)*n2:(ks-FS)*n2]
        if ks == VAR.get('zfl', 26): t_ += [I("v_mov_b32 v2, s11"), I("s_waitcnt vmcnt(0)"), I("buffer_store_dword v2, off, s[12:15], s86 sc1")]
        return h0, [], t_
    p.add(gemm_pass([A2, A3_], Z_addr, 131072, False, "z", 512, hooks=zhooks, cs_tiles=[0, 1], cs_s=52, cs_o=0))
    p(f"v_mov_b32 v2, 1\ns_waitcnt lgkmcnt(0)\nds_write_b32 v{VB}, v2 offset:128")
    st(p, 8)
    prio(p, VAR.get('pz2', 2))
    p("v_mov_b32 v2, 0")
    f2.flag_wait(p, "L_csz", 2, 128, 1, STQ, sleep=0)
    p.add(cs_reads([0, 1], "cs2", base=SCR2, stride=2048, off=0))
    p.add(cs_corr([A2, A3_], False, "cs2"))
    def z1_tile(p, k, ins=None):
        a = (A2, A3_)[k]
        gl = gelu_T(a, T+4+8*k)
        if ins: c_ = VAR.get('kvcut', 60); gl = gl[:c_] + ins + gl[c_:]
        p.add(gl)
        p(f"buffer_store_dwordx4 {vr(T+4+8*k,4)}, v{VL}, s[12:15], s85 offen offset:{k*2048}")
        p(f"buffer_store_dwordx4 {vr(T+8+8*k,4)}, v{VL}, s[12:15], s85 offen offset:{k*2048+1024}")
    z1_tile(p, 0)
    def mid(p, u, ins=None):
        p("s_cmp_ge_u32 s88, 14\ns_cbranch_scc1 L_b_mid" + u)
        z1_tile(p, 1, ins)
        p.label("L_b_mid" + u)
        st(p, 9)
    p("s_add_u32 s89, s86, 16")
    p.label("L_b_done")
    st2(p, 0)
    f2.gen_gemm(p, st2, mid)
    p.label("L_retry")
    p("s_add_u32 s34, s34, 1\ns_cmp_gt_u32 s34, 0x40000\ns_cbranch_scc1 L_chk_ok")
    p.add(part_loads())
    p("s_waitcnt vmcnt(0)\ns_branch L_chk")
    p.label("L_g1")
    set_va(p, False, RING+2048, 3072)
    p(f"""
    v_and_b32 v3, 1, v1
    v_cmp_eq_u32 s[70:71], 1, v3
    v_and_b32 v3, 2, v1
    v_cmp_eq_u32 s[72:73], 2, v3
    s_mul_i32 s87, s32, {2*KVH}
    s_mul_i32 s34, s33, {KVT}
    s_add_u32 s87, s87, s34
    s_add_u32 s87, s87, {KV}
    s_lshr_b32 s34, s32, 1
    s_lshl_b32 s85, s34, 18
    s_lshl_b32 s35, s33, 10
    s_add_u32 s85, s85, s35
    s_mul_i32 s86, s34, {4*KVH}
    s_mul_i32 s35, s33, {KVT}
    s_add_u32 s86, s86, s35
    s_add_u32 s86, s86, {KV}
    s_bitcmp1_b32 s32, 0
    s_cselect_b32 s85, s86, s85
    s_mov_b32 s86, {KVH}
    s_cselect_b32 s86, s86, 0x10000
    s_mov_b32 s78, {fh(0.25*1.4426950408889634)}
    s_cselect_b32 s78, 1.0, s78                  ; scale
    s_lshl_b32 s83, s32, 11
    s_lshl_b32 s34, s31, 7
    s_add_u32 s83, s83, s34
    s_add_u32 s83, s83, {PFL}
    """)
    prio(p, 1)
    start(p)
    p.add(gemm_pass([A0], lambda ks: E_addr(ks)+2048, RING+2048, True, "w", 256, hooks=phase1_hooks(st), cs_tiles=[2], stats=True))
    p(f"""
    v_add_f32 v{Q0}, v{Q0}, v{Q1}
    v_add_f32 v{Q0+1}, v{Q0+1}, v{Q1+1}
    v_add_f32 v{Q0+2}, v{Q0+2}, v{Q1+2}
    v_add_f32 v{Q0+3}, v{Q0+3}, v{Q1+3}
    v_cndmask_b32 v{Q0}, v{Q0}, v{Q0+1}, s[70:71]
    v_cndmask_b32 v{Q0+2}, v{Q0+2}, v{Q0+3}, s[70:71]
    ds_write_b32 v3, v{SX} offset:{RAW}
    v_cndmask_b32 v{Q0}, v{Q0}, v{Q0+2}, s[72:73]
    v_mov_b32 v{Q1}, v{Q0}
    v_permlane32_swap_b32 v{Q0}, v{Q1}
    v_add_f32 v{Q0}, v{Q0}, v{Q1}
    ds_write_b32 v3, v{Q0} offset:{RAW+256}
    """)
    p.wait(vm=["Q0","Q1","Q2","Q3"], lg0=True)
    p("s_barrier")
    st(p, 5)
    p.add(cs_reads([2], "cs1"))
    get_tag(p, "a")
    p.add(ln1_final(1, SX, Q0))
    p.add(cs_corr([A0], True, "cs1"))
    set_va(p, True, RING, 2048)
    zp = gemm_pass([A2, A3_], Q_addr, RING, False, "q", 512, cs_tiles=[5, 6])
    e = Prog()
    e.add(flat(dma_Z(0) + dma_Z(1) + dma_Z(2) + dma_Z(3)))
    e(f"""
    s_mov_b32 s77, {KVH}
    v_bfe_u32 v3, v1, 4, 1
    v_mul_lo_u32 v{VB}, v3, s77
    v_and_b32 v3, 15, v1
    v_lshl_add_u32 v{VB}, v3, 4, v{VB}
    v_lshrrev_b32 v3, 5, v1
    v_lshl_add_u32 v{VB}, v3, 8, v{VB}
    """)
    e.wait(lg="rr")
    for r in range(16): e(f"v_mul_f32 v{A0+r}, v{A0+r}, v{A1+r}")
    for d in range(8): e(f"v_cvt_pk_bf16_f32 v{A0+d}, v{A0+2*d}, v{A0+2*d+1}")
    for r in range(4): e(f"v_mov_b32 v{A1+r}, 0x3f803f80\nv_mov_b32 v{A1+4+r}, 0")
    e(f"v_mul_f32 v{R1}, s78, v{R1}")
    e.wait(vm=["Za"])
    e(f"buffer_store_dwordx4 {vr(A0,4)}, v{VB}, s[12:15], s87 offen offset:1024")
    e(f"buffer_store_dwordx4 {vr(A0+4,4)}, v{VB}, s[12:15], s87 offen offset:1536")
    p.add(interleave(zp, e.l, per_gap=VAR.get('egap', 2), start=1))
    p(f"s_mov_b64 exec, 0x10001\nbuffer_store_dwordx4 {vr(A1,4)}, v{VB}, s[12:15], s87 offen offset:2048\nbuffer_store_dwordx4 {vr(A1+4,4)}, v{VB}, s[12:15], s87 offen offset:2064\ns_mov_b64 exec, -1")
    st(p, 6)
    p.wait(lg0=True)
    p("s_barrier")
    prio(p, 2)
    st(p, 7)
    p.add(cs_reads([5, 6], "cs3"))
    p.add(cs_corr([A2, A3_], False, "cs3"))
    for a in (A2, A3_):
        for r in range(16): p(f"v_mul_f32 v{a+r}, v{a+r}, v{R1}")
        for d in range(8): p(f"v_cvt_pk_bf16_f32 v{a+d}, v{a+2*d}, v{a+2*d+1}")
        p(f"buffer_store_dwordx4 {vr(a,4)}, v{VL}, s[12:15], s85 offen\ns_add_u32 s85, s85, s86")
        p(f"buffer_store_dwordx4 {vr(a+4,4)}, v{VL}, s[12:15], s85 offen\ns_add_u32 s85, s85, s86")
    st(p, 8); st(p, 9)
    st2(p, 0)
    f2.gen_attention(p, st2)
    p.label("L_end")
    p("s_endpgm")
    return p

def split_groups(l):
    lab = {x.op: i for i, x in enumerate(l) if getattr(x, 'kind', '') == "label"}
    b = next(i for i, x in enumerate(l) if getattr(x, 'kind', '') == "branch" and x.target == "L_g1")
    return b, lab["L_g1"]
def kf_paths(l):
    b, g1 = split_groups(l)
    lab = {x.op: i for i, x in enumerate(l) if x.kind == "label"}
    B = l[:lab["L_idle"]] + l[lab["L_g2"]:lab["L_retry"]]
    A = l[:b] + l[g1:]
    e = next(i for i, x in enumerate(A) if x.kind == "misc" and x.base == "s_endpgm")
    return [linearize(B, {"L_g_loop": 2}), l[lab["L_idle"]:lab["L_retry"]], linearize(A[:e+1], {"L_att_loop": 3})]
def finalize_kf(p, verbose=False):
    l = p.l
    b, g1 = split_groups(l)
    head = l[:b+1]
    r0 = resolve_waits(l[:g1])
    r1 = resolve_waits(head + l[g1:])
    nh = len(resolve_waits(head))
    p2 = Prog(); p2.l = r0 + r1[nh:]
    return finalize("kf", p2, paths=kf_paths, verbose=verbose)
KF_DESC = dict(name="kf_kernel", vgpr=256, sgpr=102, accum=256, grid=256, block=512, lds=K1_LDS)
```

```python
from common import *
SOLO = True
import struct
def float_hex(f): return hex(struct.unpack("<I", struct.pack("<f", f))[0])

IMG = 1024
LDS_FLAG = 0
LDS_STG = 131072
K2_LDS = 163840
VAR = dict(margin=72.0, U=8, prio_att=1, prio_g=0, fuse3=True, cdelay=2)

QA, QB = 4, 8
CA, CB = 16, 32
OA, OB = 48, 64
SA, SB = 80, 96
PA, PB = 112, 120
KR = [128, 132, 136, 140]
V0R = [144, 148, 152, 156]
V1R = [160, 164, 168, 172]
AK, AV0, AV1 = 176, 177, 178
GK, GV0, GV1 = 179, 180, 181
MA, MB = 182, 183
TM = 184
FL = 188
PF, PFA = 190, 191
STT = 192

def max16(p, S, M, first):
    if first:
        p(f"v_max3_f32 v{M}, v{S}, v{S+1}, v{S+2}")
        p(f"v_max_f32 v{M}, v{M}, v{S+3}")
        r = range(4, 16, 2)
    else: r = range(0, 16, 2)
    for k in r: p(f"v_max3_f32 v{M}, v{M}, v{S+k}, v{S+k+1}")

def flag_wait(p, name, addr_v, off, val, tmpq, sleep=1):
    p.label(name)
    p(f"ds_read_b128 {vr(tmpq,4)}, v{addr_v} offset:{off}")
    p("s_waitcnt lgkmcnt(0)")
    p(f"v_min_u32 v{tmpq}, v{tmpq}, v{tmpq+1}\nv_min3_u32 v{tmpq}, v{tmpq}, v{tmpq+2}, v{tmpq+3}")
    p(f"v_cmp_gt_u32 vcc, {val}, v{tmpq}")
    p(f"s_cbranch_vccz {name}_ok\ns_sleep {sleep}\ns_branch {name}")
    p.label(name + "_ok")

def spin1(p, name, addr_v, off, val, tmp):
    p.label(name)
    p(f"ds_read_b32 v{tmp}, v{addr_v} offset:{off}")
    p("s_waitcnt lgkmcnt(0)")
    p(f"v_cmp_gt_u32 vcc, {val}, v{tmp}")
    p(f"s_cbranch_vccz {name}_ok\ns_sleep 1\ns_branch {name}")
    p.label(name + "_ok")

def att_loop_body(U):
    out = []
    def blk(S, P, So, Po, Mqk, Mpv1, Mpv0, extra):
        e = lambda k: I(f"v_exp_f32 v{S+k}, v{S+k}")
        c = lambda k: I(f"v_cvt_pk_bf16_f32 v{P+k}, v{S+2*k}, v{S+2*k+1}")
        co = lambda k: I(f"v_cvt_pk_bf16_f32 v{Po+k}, v{So+2*k}, v{So+2*k+1}")
        o = []
        pq, p1, p0 = VAR.get('pos', (2, 6, 12))
        cs = VAR.get('cs', {0: [-6], 1: [-7], 3: [0], 5: [1], 7: [2], 9: [3], 11: [4], 13: [5]})
        if VAR.get('perm'):
            c = lambda k: I(f"v_perm_b32 v{P+k}, v{S+2*k+1}, v{S+2*k}, s45")
            co = lambda k: I(f"v_perm_b32 v{Po+k}, v{So+2*k+1}, v{So+2*k}, s45")
        for k in range(16):
            o.append(e(k))
            for j in cs.get(k, []):
                if j < 0: o.append(co(-j))
            if k == pq and not VAR.get('nom'): o.append(Mqk)
            if k == p1 and not VAR.get('nom'): o.append(Mpv1)
            if k == p0 and not VAR.get('nom'): o.append(Mpv0)
            o += extra.get(k, [])
            for j in cs.get(k, []):
                if j >= 0: o.append(c(j))
        return o
    for u in range(U):
        s0 = u % 4; s1 = (u+1) % 4; sm = (u-1) % 4
        exA = {}; exB = {}
        if u % 2 == 0:
            rd = []
            for d in (2, 3):
                o_ = (u+d-1)*KVT
                rd += [I(f"ds_read_b128 {vr(KR[(u+d)%4],4)}, v{AK} offset:{o_}"),
                       I(f"ds_read_b128 {vr(V0R[(u+d)%4],4)}, v{AV0} offset:{o_}"),
                       I(f"ds_read_b128 {vr(V1R[(u+d)%4],4)}, v{AV1} offset:{o_}")]
            exA = {6: rd}
            if VAR.get('nods'): exA = {}
        if u == U-1:
            exB = {2: [I("s_add_u32 s41, s41, 1")], 3: [I(f"s_bitcmp1_b32 s45, s41")], 4: [I("s_cbranch_scc1 L_att_sync2"), I("L_att_sync2_ret:")],
                   5: [I(f"v_mov_b32 v{TM}, s41")], 7: [I(f"ds_write_b32 v{FL+1}, v{TM} offset:80")],
                   6: [I(f"v_add_u32 v{AK}, {U*KVT}, v{AK}")], 8: [I(f"v_add_u32 v{AV0}, {U*KVT}, v{AV0}")], 10: [I(f"v_add_u32 v{AV1}, {U*KVT}, v{AV1}")],
                   14: [I(f"s_cmp_lt_u32 s41, {64//U}")]}
        if u % 2 == 1: exB[0] = [I("s_waitcnt lgkmcnt(0)")]
        out += blk(SA, PA, SB, PB, mfma32(vr(SB,16), vr(KR[s0],4), vr(QB,4), vr(CB,16)),
                   mfma32(vr(OB,16), vr(V1R[sm],4), vr(PB+4,4), vr(OB,16)),
                   mfma32(vr(OA,16), vr(V0R[s0],4), vr(PA,4), vr(OA,16)), exA)
        out += blk(SB, PB, SA, PA, mfma32(vr(SA,16), vr(KR[s1],4), vr(QA,4), vr(CA,16)),
                   mfma32(vr(OA,16), vr(V1R[s0],4), vr(PA+4,4), vr(OA,16)),
                   mfma32(vr(OB,16), vr(V0R[s0],4), vr(PB,4), vr(OB,16)), exB)
    return out

def k2_ids(p):
    p(f"""
    s_mov_b32 s24, s10
    s_and_b32 s25, s2, 7
    s_lshr_b32 s26, s2, 3
    s_lshr_b32 s27, s26, 3
    s_lshl_b32 s28, s25, 2
    s_add_u32 s27, s27, s28                ; head
    s_and_b32 s28, s26, 7                  ; qb
    """)
def gen_attention(p, st):
    U = VAR['U']
    k2_ids(p)
    p(f"""
    s_mul_i32 s30, s27, {KVH}
    s_add_u32 s30, s30, {KV}
    s_lshl_b32 s31, s27, 16
    s_lshl_b32 s32, s28, 3
    s_lshl_b32 s33, s24, 1
    s_add_u32 s32, s32, s33
    s_lshl_b32 s33, s32, 10
    s_add_u32 s31, s31, s33
    v_lshlrev_b32 v{GK}, 4, v1
    v_mov_b32 v{FL}, {LDS_FLAG}
    s_lshl_b32 s37, s24, 2
    v_add_u32 v{FL+1}, s37, v{FL}
    v_mov_b32 v{TM+1}, 1
    s_waitcnt vmcnt(0)
    ds_write_b32 v{FL+1}, v{TM+1} offset:112
    """)
    st(p, 8)
    p(f"""
    v_and_b32 v{TM}, 31, v1
    v_lshrrev_b32 v{TM+1}, 5, v1
    v_lshlrev_b32 v{TM+1}, 8, v{TM+1}
    v_lshl_add_u32 v{TM+1}, v{TM}, 4, v{TM+1}
    v_and_b32 v{TM+2}, 27, v{TM}
    v_cmp_eq_u32 vcc, 16, v{TM+2}
    v_mov_b32 v{TM+2}, 2064
    v_mov_b32 v{TM+3}, 2048
    v_cndmask_b32 v{TM+2}, v{TM+2}, v{TM+3}, vcc
    v_cmp_gt_u32 vcc, 16, v{TM}
    v_add_u32 v{GV0}, 1024, v{TM+1}
    v_add_u32 v{GV1}, 1536, v{TM+1}
    v_cndmask_b32 v{GV0}, v{TM+2}, v{GV0}, vcc
    v_cndmask_b32 v{GV1}, v{TM+2}, v{GV1}, vcc
    """)
    p("s_cmp_lg_u32 s24, 0\ns_cbranch_scc1 L_att_go")
    flag_wait(p, "L_att_ad", FL, 112, 1, TM, sleep=0)
    p(f"""
    v_mov_b32 v{TM}, s11
    buffer_store_dword v{TM}, off, s[12:15], s83 sc1
    s_lshr_b32 s34, s27, 2
    s_lshl_b32 s34, s34, 12
    s_add_u32 s34, s34, {PFL}
    v_and_b32 v{MA}, 31, v1
    v_lshlrev_b32 v{MA}, 7, v{MA}
    s_sleep {VAR.get('q0', 8)}
    """)
    poll(p, "L_att_p", 34, MA, None, TM, sleep=VAR.get('qsleep', 4))
    p(f"v_mov_b32 v{TM}, 1\nds_write_b32 v{FL}, v{TM} offset:96")
    p.label("L_att_go")
    spin1(p, "L_att_gw", FL, 96, 1, TM)
    st(p, 9)
    p(f"buffer_load_dwordx4 {vr(QA,4)}, v{GK}, s[12:15], s31 offen sc1")
    p(f"buffer_load_dwordx4 {vr(QB,4)}, v{GK}, s[12:15], s31 offen offset:1024 sc1")
    p(f"buffer_load_dwordx4 {vr(KR[0],4)}, v{GK}, s[12:15], s30 offen sc1")
    p(f"buffer_load_dwordx4 {vr(KR[1],4)}, v{GK}, s[12:15], s30 offen offset:{KVT} sc1")
    for t in range(2):
        p(f"buffer_load_dwordx4 {vr(V0R[t],4)}, v{GV0}, s[12:15], s30 offen offset:{t*KVT} sc1")
        p(f"buffer_load_dwordx4 {vr(V1R[t],4)}, v{GV1}, s[12:15], s30 offen offset:{t*KVT} sc1")
    p(f"""
    s_lshl_b32 s37, s24, 12
    s_add_u32 s38, s30, {KVT+1024}
    s_add_u32 s38, s38, s37
    s_add_u32 s37, s37, {IMG}
    """)
    for i in range(2):
        p("s_mov_b32 m0, s37")
        p("s_add_u32 s37, s37, 16384")
        for k in range(4 if i == 0 else 3):
            p(f"buffer_load_dwordx4 v{GK}, s[12:15], s38 offen offset:{k*1024} sc1 lds")
        p("s_add_u32 s38, s38, 16384")
    p(f"s_setprio {VAR['prio_att']}")
    if VAR['fuse3']:
        p(f"""
        s_mul_i32 s33, s32, {88*1024}
        s_lshl_b32 s34, s27, 10
        s_add_u32 s33, s33, s34
        s_add_u32 s33, s33, {A3}
        s_add_u32 s39, s33, {88*1024}
        s_lshl_b32 s35, s32, 6
        s_lshl_b32 s34, s27, 2
        s_add_u32 s35, s35, s34
        s_add_u32 s35, s35, {OFL}
        s_mul_i32 s42, s26, 9363
        s_lshr_b32 s42, s42, 16                ; j/7
        s_mul_i32 s43, s42, 7
        s_sub_u32 s43, s26, s43                ; fb
        s_lshl_b32 s44, s25, 2
        s_add_u32 s42, s42, s44
        s_lshl_b32 s43, s43, 2
        s_add_u32 s43, s43, s24                ; ft
        s_mul_i32 s46, s42, {2*88*1024}
        s_lshl_b32 s44, s43, 11
        s_add_u32 s46, s46, s44
        s_add_u32 s46, s46, {A3 + 32*1024}
        s_lshl_b32 s42, s42, 7
        s_lshl_b32 s43, s43, 2
        s_add_u32 s42, s42, s43
        s_add_u32 s42, s42, {UFL}
        s_add_u32 s47, s46, {88*1024}
        s_mov_b32 s45, {2 + (1 << VAR.get('s3it', 2))}
        s_mov_b32 s44, 0
        s_cmp_lt_u32 s26, 28
        s_cbranch_scc1 L_att_nopre
        """)
        for r in range(4): p(f"v_mov_b32 v{STT+r}, -1")
        p(f"buffer_store_dwordx4 {vr(STT,4)}, v{GK}, s[12:15], s33 offen sc1\nbuffer_store_dwordx4 {vr(STT,4)}, v{GK}, s[12:15], s39 offen sc1")
        p(f"v_mov_b32 v{STT}, s11\ns_waitcnt vmcnt(0)\nbuffer_store_dword v{STT}, off, s[12:15], s35 sc1\ns_mov_b32 s45, 2\ns_mov_b32 s44, 1")
        p.label("L_att_nopre")
    p(f"v_mov_b32 v{TM}, 1\nds_write_b32 v{FL+1}, v{TM} offset:176")
    p(f"""
    v_mov_b32 v{AK}, v{GK}
    v_mov_b32 v{AV0}, v{GV0}
    v_mov_b32 v{AV1}, v{GV1}
    """)
    for r in list(range(OA, OA+32)) + list(range(PB+4, PB+6)) + list(range(V1R[3], V1R[3]+4)):
        p(f"v_mov_b32 v{r}, 0")
    p(f"s_waitcnt vmcnt(11)")
    p.add([mfma32(vr(SA,16), vr(KR[0],4), vr(QA,4), "0"), mfma32(vr(SB,16), vr(KR[0],4), vr(QB,4), "0"),
           mfma32(vr(CA,16), vr(KR[1],4), vr(QA,4), "0"), mfma32(vr(CB,16), vr(KR[1],4), vr(QB,4), "0")])
    max16(p, SA, MA, True); max16(p, SB, MB, True); max16(p, CA, MA, False); max16(p, CB, MB, False)
    p(f"""
    s_mov_b32 s40, {float_hex(VAR['margin'])}
    v_mov_b32 v{TM}, v{MA}
    v_mov_b32 v{TM+1}, v{MB}
    v_permlane32_swap_b32 v{TM}, v{MA}
    v_permlane32_swap_b32 v{TM+1}, v{MB}
    v_max_f32 v{MA}, v{MA}, v{TM}
    v_max_f32 v{MB}, v{MB}, v{TM+1}
    v_add_f32 v{MA}, s40, v{MA}
    v_add_f32 v{MB}, s40, v{MB}
    """)
    for r in range(16): p(f"v_sub_f32 v{CA+r}, 0, v{MA}")
    for r in range(12, 16): p(f"v_mov_b32 v{SB+r}, 0")
    p.add([mfma32(vr(SA,16), vr(KR[0],4), vr(QA,4), vr(CA,16))])
    for r in range(16): p(f"v_sub_f32 v{CB+r}, 0, v{MB}")
    p(f"s_waitcnt vmcnt(0)")
    p(f"v_mov_b32 v{TM}, 1\nds_write_b32 v{FL+1}, v{TM}")
    flag_wait(p, "L_att_f1", FL, 0, 1, TM)
    st(p, 1)
    p("s_mov_b32 s41, 0" + ("" if VAR['fuse3'] else "\ns_mov_b32 s45, 2"))
    p(".p2align 6")
    p.label("L_att_loop")
    p.add(att_loop_body(U))
    p("s_cbranch_scc1 L_att_loop")
    st(p, 2)
    if VAR.get('endprio'): p("s_setprio 3")
    p(f"v_cvt_pk_bf16_f32 v{PB+6}, v{SB+12}, v{SB+13}\nv_cvt_pk_bf16_f32 v{PB+7}, v{SB+14}, v{SB+15}")
    p(f"""
    s_mul_i32 s33, s32, {88*1024}
    s_lshl_b32 s34, s27, 10
    s_add_u32 s33, s33, s34
    s_add_u32 s33, s33, {A3}
    """)
    p.add([mfma32(vr(OB,16), vr(V1R[3],4), vr(PB+4,4), vr(OB,16))])
    p("s_waitcnt lgkmcnt(0)")
    p("s_mov_b32 s36, 0")
    p.label("L_att_chk")
    p(f"v_mul_f32 v{TM}, 0, v{OA+8}")
    for r in range(8): p(f"v_fmac_f32 v{TM}, 0, v{OA+r}")
    p(f"v_cmp_u_f32 vcc, v{TM}, v{TM}")
    p("s_cbranch_vccnz L_att_slow")
    p.label("L_att_fin")
    p(f"v_rcp_f32 v{MA}, v{OA+8}")
    p("s_cmp_lg_u32 s36, 0")
    for r in range(8): p(f"v_mul_f32 v{OA+r}, v{OA+r}, v{MA}")
    for k in range(4): p(f"v_cvt_pk_bf16_f32 v{PA+k}, v{OA+2*k}, v{OA+2*k+1}")
    for k in range(4): p(f"v_min_u32 v{PA+k}, -2, v{PA+k}")
    p(f"buffer_store_dwordx4 {vr(PA,4)}, v{GK}, s[12:15], s33 offen")
    p("s_cbranch_scc1 L_att_done")
    p(f"s_mov_b32 s36, 1\ns_add_u32 s33, s33, {88*1024}")
    for r in range(9): p(f"v_mov_b32 v{OA+r}, v{OB+r}")
    for r in range(4): p(f"v_mov_b32 v{QA+r}, v{QB+r}")
    p("s_branch L_att_chk")
    p.label("L_att_done")
    st(p, 3)
    p("s_endpgm")
    p.label("L_att_sync2")
    p("s_cmp_lg_u32 s41, 1\ns_cbranch_scc1 L_att_sync3")
    if VAR['fuse3']:
        p("s_cmp_lg_u32 s44, 0\ns_cbranch_scc1 L_att_f2")
        for r in range(4): p(f"v_mov_b32 v{STT+r}, -1")
        p(f"buffer_store_dwordx4 {vr(STT,4)}, v{GK}, s[12:15], s33 offen sc1\nbuffer_store_dwordx4 {vr(STT,4)}, v{GK}, s[12:15], s39 offen sc1")
        for k in range(4): p(f"buffer_store_dwordx4 {vr(STT,4)}, v{GK}, s[12:15], s{46+k//2} offen offset:{(k%2)*1024} sc1")
    flag_wait(p, "L_att_f2", FL, 48, 1, TM)
    p("s_branch L_att_sync2_ret")
    p.label("L_att_sync3")
    if VAR['fuse3']:
        p(f"v_mov_b32 v{TM}, s11\nv_mov_b32 v{TM+1}, 1\ns_waitcnt vmcnt(0)\nbuffer_store_dword v{TM}, off, s[12:15], s35 sc1\nbuffer_store_dword v{TM}, off, s[12:15], s42 sc1\nds_write_b32 v{FL+1}, v{TM+1} offset:64")
    p("s_branch L_att_sync2_ret")
    p.label("L_att_slow")
    p(f"v_mov_b32 v{MA}, 0xff800000\ns_mov_b32 s41, 0\ns_mov_b32 s37, s30")
    p.label("L_att_sl1")
    p(f"buffer_load_dwordx4 {vr(KR[0],4)}, v{GK}, s[12:15], s37 offen sc1")
    p("s_waitcnt vmcnt(0)")
    p.add([mfma32(vr(SA,16), vr(KR[0],4), vr(QA,4), "0")])
    max16(p, SA, MA, False)
    p(f"s_add_u32 s37, s37, {KVT}\ns_add_u32 s41, s41, 1\ns_cmp_lt_u32 s41, 64\ns_cbranch_scc1 L_att_sl1")
    p(f"v_mov_b32 v{TM}, v{MA}\nv_permlane32_swap_b32 v{TM}, v{MA}\nv_max_f32 v{MA}, v{MA}, v{TM}")
    for r in range(16): p(f"v_sub_f32 v{CA+r}, 0, v{MA}\nv_mov_b32 v{OA+r}, 0")
    p("s_mov_b32 s41, 0\ns_mov_b32 s37, s30")
    p.label("L_att_sl2")
    p(f"buffer_load_dwordx4 {vr(KR[0],4)}, v{GK}, s[12:15], s37 offen sc1")
    p(f"buffer_load_dwordx4 {vr(V0R[0],4)}, v{GV0}, s[12:15], s37 offen sc1")
    p(f"buffer_load_dwordx4 {vr(V1R[0],4)}, v{GV1}, s[12:15], s37 offen sc1")
    p("s_waitcnt vmcnt(0)")
    p.add([mfma32(vr(SA,16), vr(KR[0],4), vr(QA,4), vr(CA,16))])
    for k in range(16): p(f"v_exp_f32 v{SA+k}, v{SA+k}")
    for k in range(8): p(f"v_cvt_pk_bf16_f32 v{PA+k}, v{SA+2*k}, v{SA+2*k+1}")
    p.add([mfma32(vr(OA,16), vr(V0R[0],4), vr(PA,4), vr(OA,16)), mfma32(vr(OA,16), vr(V1R[0],4), vr(PA+4,4), vr(OA,16))])
    p(f"s_add_u32 s37, s37, {KVT}\ns_add_u32 s41, s41, 1\ns_cmp_lt_u32 s41, 64\ns_cbranch_scc1 L_att_sl2")
    p("s_nop 15\ns_branch L_att_fin")

ACC = 4
NZF = 16
ZR = 132
WR = 196
VL = 244; VD = 245; VW = 247
GF = 251
G = 232
def acc(i, tt): return ACC + (i*2+tt)*16

def kv_rest(p, uniq):
    p(f"s_sub_u32 m0, s62, {16384-3072}\ns_sub_u32 s61, s63, {16384-3072}")
    p(f"buffer_load_dwordx4 v{VL}, s[12:15], s61 offen sc1 lds", tag="kv")
    for i in range(6):
        p("s_mov_b32 m0, s62")
        if i < 5: p("s_add_u32 s62, s62, 16384")
        else: p("s_cmp_eq_u32 s24, 3")
        for k in range(4):
            if i == 5 and k == 3: p(f"s_cbranch_scc1 L_g_kvdone{uniq}")
            p(f"buffer_load_dwordx4 v{VL}, s[12:15], s63 offen offset:{k*1024} sc1 lds", tag="kv")
        if i < 5: p("s_add_u32 s63, s63, 16384")
    p.label(f"L_g_kvdone{uniq}")

def flag_addr(p):
    p(f"""
    s_lshr_b32 s48, s26, 3
    s_lshl_b32 s47, s25, 2
    s_add_u32 s48, s48, s47
    s_lshl_b32 s48, s48, 7                 ; tb'*128
    s_lshl_b32 s47, s24, 5
    s_add_u32 s46, s48, s47
    s_mul_i32 s47, s24, 28
    s_add_u32 s48, s48, s47
    s_add_u32 s48, s48, {UFL-OFL}          ; u flags
    s_and_b32 s47, s26, 7
    s_lshl_b32 s47, s47, 7
    s_add_u32 s47, s47, {WFL-OFL}          ; W flags
    v_lshlrev_b32 v{G+5}, 2, v1
    v_mov_b32 v{G+6}, s48
    v_add_u32 v{G+7}, s48, v{G+5}
    v_cmp_gt_u32 vcc, 7, v1
    v_cndmask_b32 v{G+6}, v{G+6}, v{G+7}, vcc
    v_subrev_u32 v{G+5}, 128, v{G+5}
    v_add_u32 v{G+7}, s47, v{G+5}
    v_cmp_gt_u32 vcc, 64, v{G+5}
    v_cndmask_b32 v{G+6}, v{G+6}, v{G+7}, vcc
    v_subrev_u32 v{G+5}, 64, v{G+5}
    v_add_u32 v{G+7}, s46, v{G+5}
    v_cmp_gt_u32 vcc, 32, v{G+5}
    v_cndmask_b32 v{G+6}, v{G+6}, v{G+7}, vcc
    v_subrev_u32 v{G+5}, 32, v{G+5}
    v_add_u32 v{G+7}, s49, v{G+5}
    v_cmp_gt_u32 vcc, 8, v{G+5}
    v_cndmask_b32 v{G+6}, v{G+6}, v{G+7}, vcc
    s_mov_b32 s48, {OFL}
    """)
def gen_gemm(p, st, mid=None):
    k2_ids(p)
    p(f"""
    s_load_dwordx4 s[4:7], s[0:1], {KA_WSP}
    s_sub_u32 s24, s24, 4                  ; q = K quarter
    v_lshlrev_b32 v{VL}, 4, v1
    s_mul_i32 s63, s27, {KVH}
    s_lshl_b32 s62, s24, 12
    s_add_u32 s62, s62, 32768
    s_add_u32 s63, s63, s62
    s_add_u32 s63, s63, {KV + KVT + 1024}
    s_add_u32 s62, s62, {IMG}
    s_lshl_b32 s46, s24, 2
    s_add_u32 s46, s46, {LDS_FLAG}
    v_mov_b32 v{GF}, s46
    v_mov_b32 v0, 1
    v_mov_b32 v2, {LDS_FLAG}
    s_waitcnt lgkmcnt(0)
    ds_write_b32 v{GF}, v0 offset:160
    """)
    srd(p, 16, 4, 2048*2048*2); srd(p, 20, 6, 4096)
    flag_wait(p, "L_g_bd", 2, 160, 1, 4)
    flag_wait(p, "L_g_go", 2, 176, 1, 4, sleep=2)
    kv_rest(p, "a")
    p(f"""
    s_cmp_ge_u32 s26, 28
    s_cbranch_scc1 L_idle
    s_setprio 3
    s_mul_i32 s30, s26, 9363
    s_lshr_b32 s30, s30, 16                ; j/7
    s_mul_i32 s31, s30, 7
    s_sub_u32 s31, s26, s31                ; fb = j%7
    s_lshl_b32 s32, s25, 2
    s_add_u32 s30, s30, s32                ; tb
    s_lshl_b32 s33, s31, 19
    s_add_u32 s33, s33, {Z2F}
    s_lshl_b32 s34, s24, 17
    s_add_u32 s33, s33, s34
    s_lshl_b32 s56, s30, 18
    s_lshl_b32 s34, s24, 10
    s_add_u32 s56, s56, s34
    s_lshl_b32 s36, s24, 13
    s_add_u32 s36, s36, {LDS_STG}
    s_add_u32 s37, s36, 4096
    v_lshrrev_b32 v2, 3, v1
    v_lshrrev_b32 v3, 4, v1
    v_xor_b32 v3, v3, v1
    v_and_b32 v3, 7, v3
    v_lshlrev_b32 v3, 4, v3
    v_lshl_add_u32 v{VD}, v2, 12, v3
    v_xor_b32 v{VD+1}, 64, v{VD}
    v_add_u32 v{VD+1}, {8*4096-1024}, v{VD+1}
    """)
    for i in range(4):
        p(f"s_add_u32 s38, s24, {i}\ns_and_b32 s38, s38, 3\ns_lshl_b32 s38, s38, 10\ns_add_u32 s{52+i}, s33, s38")
    p(f"""
    s_lshl_b32 s38, s31, 12                ; (2fb)*16*128
    s_lshl_b32 s39, s24, 9
    s_add_u32 s39, s39, s38
    s_add_u32 s39, s39, {PFL+16}
    s_lshr_b32 s49, s24, 1
    s_lshl_b32 s49, s49, 11
    s_add_u32 s49, s49, s38
    s_lshr_b32 s38, s30, 1
    s_lshl_b32 s38, s38, 7
    s_add_u32 s49, s49, s38
    s_and_b32 s38, s30, 1
    s_lshl_b32 s38, s38, 3
    s_add_u32 s49, s49, s38
    s_add_u32 s49, s49, {PFL+32-OFL}
    v_and_b32 v4, 3, v1
    v_bfe_u32 v5, v1, 2, 1
    v_lshlrev_b32 v5, 11, v5
    v_lshl_add_u32 v4, v4, 7, v5
    v_bfe_u32 v5, v1, 3, 2
    v_lshl_add_u32 v4, v5, 2, v4
    """)
    def dma(b):
        out = []
        for i in range(8):
            if i % 4 == 0: out.append(I(f"s_mov_b32 m0, s{(66 if (b % 3 == 2 and b > 2) else 36) + i//4}"))
            if i % 2 == 0: out.append(I(f"s_add_u32 s57, s56, {(i//2)*16*4096 - (i%4)*1024}"))
            out.append(I(f"buffer_load_dwordx4 v{VD + i%2}, s[16:19], s57 offen offset:{(i%4)*1024} sc1 lds", tag=f"d{b}"))
        out.append(I("s_add_u32 s56, s56, 128"))
        return out
    def zload(n):
        i = n % 4
        return [I(f"buffer_load_dwordx4 {vr(ZR + (n%NZF)*4, 4)}, v{VL}, s[12:15], s{52+i} offen sc1", tag=f"z{n}"),
                I(f"s_add_u32 s{52+i}, s{52+i}, 4096")]
    p.add(dma(0))
    if VAR.get('ordb'):
        p.wait(vm="kv"); p(f"ds_write_b32 v{GF}, v0 offset:48")
        poll(p, "L_pz", 39, 4, None, 5, sleep=VAR.get('zsleep', 4))
        st(p, 9)
        for n in range(16): p.add(zload(n))
        mid(p, "a")
    else:
        mid(p, "a", [W(vm="kv"), I(f"ds_write_b32 v{GF}, v0 offset:48")])
        p.wait(vm="kv"); p(f"ds_write_b32 v{GF}, v0 offset:48")
        poll(p, "L_pz", 39, 4, None, 5, sleep=VAR.get('zsleep', 4))
        p(f"v_mov_b32 v0, s11\nbuffer_store_dword v0, off, s[12:15], s89 sc1")
        st(p, 9)
        for n in range(16): p.add(zload(n))
    p(f"v_and_b32 v2, 31, v1")
    bitswap23(p, 2, 2, 3)
    p(f"""
    v_lshrrev_b32 v3, 1, v2
    v_lshrrev_b32 v{VW}, 5, v1
    v_xor_b32 v3, v3, v{VW}
    v_and_b32 v3, 7, v3
    v_lshlrev_b32 v3, 4, v3
    v_lshl_add_u32 v{VW}, v2, 7, v3
    v_add_u32 v{VW}, s36, v{VW}
    v_xor_b32 v{VW+1}, 32, v{VW}
    v_xor_b32 v{VW+2}, 64, v{VW}
    v_xor_b32 v{VW+3}, 96, v{VW}
    """)
    if VAR['fuse3']:
        flag_addr(p); p(f"v_mov_b32 v3, v{G+6}")
    p(f"s_setprio {VAR['prio_g']}")
    st(p, 1)
    wr = lambda g, tt: WR + ((g % 6)*2 + tt)*4
    def wread(b):
        return [I(f"ds_read_b128 {vr(wr(4*b+u, tt), 4)}, v{VW+u} offset:{tt*4096}", tag=f"w{b}", needs=[f"d{b}"]) for u in range(4) for tt in range(2)]
    def block(b, first=False, dma_on=True, z_on=True, w_on=True):
        o = []
        for u in range(4):
            g = 4*b+u
            o.append(W(vm=[f"z{4*g+3}"]))
            for i in range(4):
                n = 4*g+i
                for tt in range(2):
                    c = "0" if (first and u == 0) else vr(acc(i,tt),16)
                    o.append(mfma32(vr(acc(i,tt),16), vr(ZR+(n%NZF)*4,4), vr(wr(g,tt),4), c))
                if u == 2 and i == 1 and w_on:
                    o.append(W(lg=f"w{b+1}"))
                    if dma_on: o += dma(b+2)
            if u == 1 and w_on: o += [W(vm=f"d{b+1}")] + wread(b+1)
            if z_on:
                for i in range(4): o += zload(4*g+i+NZF)
        return o
    if VAR.get('ordb'): p(f"v_mov_b32 v0, s11\ns_waitcnt vmcnt(0)\nbuffer_store_dword v0, off, s[12:15], s89 sc1")
    p.add(wread(0)); p.wait(lg="w0"); p.add(dma(1))
    p.add(block(0, first=True))
    p("s_mov_b32 s60, 0")
    hist = dma(0) + sum([zload(n) for n in range(16)], []) + dma(1) + block(0) + block(1) + block(2) + block(3) + [I("L_mark:")] + block(4) + block(5) + block(6)
    full = resolve_waits(hist)
    lb = full[next(i for i, x in enumerate(full) if x.kind == "label" and x.op == "L_mark")+1:]
    first_pass = resolve_waits(dma(0) + sum([zload(n) for n in range(16)], []) + dma(1) + block(0) + [I("L_mark:")] + block(1) + block(2) + block(3))
    fp = first_pass[next(i for i, x in enumerate(first_pass) if x.kind == "label" and x.op == "L_mark")+1:]
    assert len(fp) == len(lb)
    merged = []
    for x, y in zip(fp, lb):
        if x.kind == "wait":
            vm = min(v for v in (x.vm, y.vm) if v is not None) if (x.vm is not None or y.vm is not None) else None
            lg = min(v for v in (x.lg, y.lg) if v is not None) if (x.lg is not None or y.lg is not None) else None
            merged.append(I("s_waitcnt " + " ".join(([f"vmcnt({vm})"] if vm is not None else []) + ([f"lgkmcnt({lg})"] if lg is not None else []))))
        else:
            assert x.text == y.text, (x.text, y.text)
            merged.append(y)
    p.label("L_g_loop")
    p("s_cmp_eq_u32 s60, 1\ns_cselect_b32 s66, 0x30000, s36\ns_cselect_b32 s67, 0x30000, s37")
    p.add(merged)
    p("s_add_u32 s60, s60, 1\ns_cmp_lt_u32 s60, 2\ns_cbranch_scc1 L_g_loop")
    if VAR['fuse3']: p(f"s_mov_b32 s48, {OFL}"); p(f"buffer_load_dword v0, v3, s[12:15], s48 offen sc1", tag="fl")
    p.add(block(7, dma_on=False, z_on=False, w_on=False))
    st(p, 2)
    p(f"s_setprio {VAR.get('prio_e', 3)}")
    p(f"""
    s_lshl_b32 s38, s30, 1
    s_mul_i32 s39, s38, {56*1024}
    s_lshl_b32 s40, s31, 2
    s_add_u32 s40, s40, s24
    s_lshl_b32 s41, s40, 11
    s_add_u32 s39, s39, s41
    s_add_u32 s39, s39, {Z1F}
    s_add_u32 s42, s39, {56*1024}
    s_mul_i32 s64, s38, {88*1024}
    s_add_u32 s64, s64, s41
    s_add_u32 s64, s64, {A3 + 32*1024}
    s_add_u32 s65, s64, {88*1024}
    s_lshl_b32 s45, s30, 7
    v_lshlrev_b32 v2, 1, v2
    """)
    Z = ZR
    p(f"v_mov_b32 v{G+1}, v{GF}")
    if VAR['fuse3']:
        p.wait(vm="fl")
        p("v_cmp_ne_u32 vcc, s11, v0\ns_cbranch_vccz L_g_fl")
        poll(p, "L_p00", 48, 3, None, 0, sleep=8)
        p.label("L_g_fl")
    p(f"buffer_load_dwordx4 {vr(Z,4)}, v{VL}, s[12:15], s39 offen sc1", tag="z1")
    p(f"buffer_load_dwordx4 {vr(Z+4,4)}, v{VL}, s[12:15], s39 offen offset:1024 sc1", tag="z1")
    p(f"buffer_load_dwordx4 {vr(Z+8,4)}, v{VL}, s[12:15], s42 offen sc1", tag="z1")
    p(f"buffer_load_dwordx4 {vr(Z+12,4)}, v{VL}, s[12:15], s42 offen offset:1024 sc1", tag="z1")
    p(f"buffer_load_ushort v{Z+16}, v2, s[20:23], s45 offen sc1", tag="z1")
    p(f"buffer_load_ushort v{Z+17}, v2, s[20:23], s45 offen offset:64 sc1", tag="z1")
    if VAR['fuse3']:
        g2_scalars(p)
        w_loads(p, 0, 10)
    p(f"v_add_u32 v{G}, s36, v{VL}\nv_mov_b32 v{G+2}, {LDS_FLAG}\ns_lshl_b32 s47, s24, 14\ns_add_u32 s47, s47, {IMG}\nv_add_u32 v{G+3}, s47, v{VL}")
    for k in range(8): p(f"ds_write_b128 v{G}, {vr(acc(1,0)+4*k, 4)} offset:{k*1024}")
    flag_wait(p, "L_g_prog", G+2, 80, 4, G+4)
    for r in (2, 3):
        for k in range(8): p(f"ds_write_b128 v{G+3}, {vr(acc(r,0)+4*k, 4)} offset:{(r-2)*8192 + k*1024}")
    for r in range(1, 4):
        p(f"s_add_u32 s47, s24, {4-r}\ns_and_b32 s47, s47, 3")
        if r == 1: p(f"s_lshl_b32 s47, s47, 13\ns_add_u32 s47, s47, {LDS_STG}\nv_add_u32 v{G}, s47, v{VL}")
        else: p(f"s_lshl_b32 s47, s47, 14\ns_add_u32 s47, s47, {(r-2)*8192 + IMG}\nv_add_u32 v{2 if r == 2 else 3}, s47, v{VL}")
    p(f"v_mov_b32 v{G+3}, 1\ns_waitcnt lgkmcnt(0)\nds_write_b32 v{G+1}, v{G+3} offset:16")
    flag_wait(p, "L_g_dat", G+2, 16, 1, G+4, sleep=0)
    for r in range(1, 4):
        for k in range(8):
            p(f"ds_read_b128 {vr(acc(r,0)+4*k,4)}, v{(G, 2, 3)[r-1]} offset:{k*1024}", tag=f"r{r}_{k}")
        if r > 1:
            for k in range(8):
                p.wait(lg=f"r{r-1}_{k}")
                for e in range(4): p(f"v_add_f32 v{acc(0,0)+4*k+e}, v{acc(0,0)+4*k+e}, v{acc(r-1,0)+4*k+e}")
    for k in range(8):
        p.wait(lg=f"r3_{k}")
        for e in range(4): p(f"v_add_f32 v{acc(0,0)+4*k+e}, v{acc(0,0)+4*k+e}, v{acc(3,0)+4*k+e}")
    if VAR['fuse3']: spin1(p, "L_g_pf", G+1, 64, 1, G+3)
    p.wait(vm="z1")
    T = acc(1, 0)
    p(f"v_lshlrev_b32 v{Z+16}, 16, v{Z+16}\nv_lshlrev_b32 v{Z+17}, 16, v{Z+17}")
    for tt in range(2):
        a = acc(0, tt)
        for r in range(16): p(f"v_add_f32 v{a+r}, v{a+r}, v{Z+16+tt}")
        for d in range(8):
            z = Z + tt*8 + d
            p(f"v_lshlrev_b32 v{T}, 16, v{z}\nv_and_b32 v{T+1}, 0xffff0000, v{z}")
            p(f"v_mul_f32 v{a+2*d}, v{a+2*d}, v{T}\nv_mul_f32 v{a+2*d+1}, v{a+2*d+1}, v{T+1}")
            p(f"v_cvt_pk_bf16_f32 v{T+8+tt*8+d}, v{a+2*d}, v{a+2*d+1}")
        for d in range(8): p(f"v_min_u32 v{T+8+tt*8+d}, -2, v{T+8+tt*8+d}")
        so = 64 + tt
        p(f"buffer_store_dwordx4 {vr(T+8+tt*8,4)}, v{VL}, s[12:15], s{so} offen")
        p(f"buffer_store_dwordx4 {vr(T+12+tt*8,4)}, v{VL}, s[12:15], s{so} offen offset:1024")
    if VAR.get('pf3'):
        p(f"s_lshl_b32 s38, s26, 2\ns_add_u32 s38, s38, s24\ns_mul_i32 s38, s38, 16384\ns_add_u32 s38, s38, {W3F}\nv_lshlrev_b32 v2, 7, v1")
        p(f"buffer_load_dword v3, v2, s[12:15], s38 offen\ns_add_u32 s38, s38, 8192\nbuffer_load_dword v3, v2, s[12:15], s38 offen")
    st(p, 3)
    if VAR['fuse3']:
        p("s_branch L_g2")
    else: p("s_endpgm")
    p.label("L_idle")
    p.wait(vm="kv"); p(f"s_waitcnt vmcnt(0)\nds_write_b32 v{GF}, v0 offset:48")
    mid(p, "b")
    p(f"""
    s_load_dwordx2 s[36:37], s[0:1], {KA_WO}
    s_load_dwordx2 s[38:39], s[0:1], {KA_WOUT}
    s_lshl_b32 s34, s25, 2
    s_add_u32 s34, s34, s26
    s_sub_u32 s34, s34, 28                      ; L
    s_mov_b32 s54, {896*1024}
    v_lshrrev_b32 v2, 2, v1
    v_and_b32 v3, 3, v1
    v_lshlrev_b32 v3, 4, v3
    v_lshl_add_u32 v2, v2, 10, v3
    s_waitcnt lgkmcnt(0)
    s_cmp_lt_u32 s34, 16
    s_cselect_b32 s52, s36, s38
    s_cselect_b32 s53, s37, s39
    s_cselect_b32 s54, {512*1024}, s54
    s_cselect_b32 s35, 8, 14
    s_cselect_b32 s67, 0, {32*1024}
    s_mov_b32 s55, 0x20000
    s_and_b32 s34, s34, 15
    s_mul_i32 s68, s24, s35
    s_lshl_b32 s69, s68, 14
    s_lshl_b32 s60, s34, 6
    s_add_u32 s69, s69, s60
    s_mul_i32 s60, s34, {88*1024}
    s_lshl_b32 s68, s68, 10
    s_add_u32 s60, s60, s68
    s_add_u32 s60, s60, s67
    s_add_u32 s60, s60, {W3F}
    s_lshl_b32 s61, s24, 13
    s_add_u32 s61, s61, {LDS_STG}
    """)
    def w3_dma(n):
        for k in range(n):
            p(f"s_add_u32 m0, s61, {k*1024}\ns_nop 0\nbuffer_load_dwordx4 v2, s[52:55], s69 offen lds\ns_add_u32 s69, s69, 16384")
    def w3_out(n):
        for k in range(n):
            p(f"ds_read_b64_tr_b16 v[{8+4*k}:{9+4*k}], v3 offset:{k*1024}\nds_read_b64_tr_b16 v[{10+4*k}:{11+4*k}], v3 offset:{k*1024+256}")
            if k % 4 == 3: p("s_waitcnt lgkmcnt(0)")
        p("s_waitcnt lgkmcnt(0)")
        for k in range(n):
            p(f"buffer_store_dwordx4 v[{8+4*k}:{11+4*k}], v{VL}, s[12:15], s60 offen\ns_add_u32 s60, s60, 1024")
    p(f"v_mov_b32 v5, s11\ns_waitcnt vmcnt(0)\nbuffer_store_dword v5, off, s[12:15], s89 sc1")
    w3_dma(8)
    NP = 8 if VAR.get('ipf', 1) else 0
    if NP:
        p(f"""
        s_sub_u32 s36, s26, 28
        s_lshl_b32 s36, s36, 2
        s_add_u32 s36, s36, s24                 ; wave16
        v_lshlrev_b32 v5, 12, v1
        s_lshl_b32 s56, s25, 20
        s_and_b32 s37, s36, 3
        s_lshl_b32 s37, s37, 18
        s_add_u32 s56, s56, s37
        s_lshr_b32 s37, s36, 2
        s_lshl_b32 s37, s37, 10
        s_add_u32 s56, s56, s37
        """)
        for g in range(8): p(f"buffer_load_dword v6, v5, s[16:19], s56 offen offset:{g*128}")
    p(f"""
    v_lshrrev_b32 v4, 5, v1
    v_lshlrev_b32 v3, 9, v4
    v_bfe_u32 v4, v1, 2, 2
    v_lshl_add_u32 v3, v4, 6, v3
    v_bfe_u32 v4, v1, 4, 1
    v_lshl_add_u32 v3, v4, 5, v3
    v_and_b32 v4, 1, v1
    v_lshl_add_u32 v3, v4, 4, v3
    v_bfe_u32 v4, v1, 1, 1
    v_lshl_add_u32 v3, v4, 3, v3
    v_add_u32 v3, s61, v3
    s_waitcnt vmcnt({NP})
    """)
    w3_out(8)
    p("s_cmp_eq_u32 s35, 8\ns_cbranch_scc1 L_w3done")
    w3_dma(6)
    p("s_waitcnt vmcnt(0)")
    w3_out(6)
    p.label("L_w3done")
    if not VAR['fuse3']:
        p("s_endpgm"); return
    p(f"""
    s_lshr_b32 s33, s34, 1
    s_lshl_b32 s33, s33, 7                      ; (nt>>1)*128
    s_and_b32 s34, s34, 1
    s_lshl_b32 s34, s34, 4
    s_add_u32 s33, s33, s34
    s_lshr_b32 s34, s67, 10                     ; 0 or 32
    s_add_u32 s33, s33, s34
    s_lshl_b32 s34, s24, 2
    s_add_u32 s33, s33, s34
    s_add_u32 s33, s33, {WFL}
    v_mov_b32 v0, s11
    s_waitcnt vmcnt(0)
    buffer_store_dword v0, off, s[12:15], s33 sc1
    s_add_u32 s49, s33, {-OFL & 0xffffffff:#x}
    s_and_b32 s49, s49, -64
    """)
    flag_addr(p)
    p.label("L_g2w")
    p(f"s_mov_b32 s48, {OFL}")
    poll(p, "L_p0", 48, G+6, None, G+5, sleep=32)
    gen_g2(p, st)


FA = 4
def FWr(k): return 152 + 4*k if k < 20 else 68 + 4*(k-20)
def FRr(k): return 100 + 4*k if k < 13 else 232 + 4*(k-13)
FX = 84
FXU = 152
FL_ = 244; FO = 245; FT = 246
def poll(p, name, soff, voff, mask_hi_lo, tmp, bad=0, sleep=None):
    p(f"s_mov_b32 s47, 0")
    p.label(name)
    p(f"buffer_load_dword v{tmp}, v{voff}, s[12:15], s{soff} offen sc1\ns_add_u32 s47, s47, 1\ns_waitcnt vmcnt(0)")
    p(f"{'v_cmp_eq_u32 vcc, -1' if bad == -1 else 'v_cmp_ne_u32 vcc, s11'}, v{tmp}\ns_cbranch_vccz {name}_ok\ns_cmp_gt_u32 s47, 0x40000\ns_cbranch_scc1 {name}_ok\ns_sleep {sleep or VAR.get('psleep', 16)}\ns_branch {name}")
    p.label(name + "_ok")
def g2_scalars(p):
    p(f"""
    s_load_dwordx2 s[6:7], s[0:1], {KA_X}
    s_load_dwordx2 s[8:9], s[0:1], {KA_OUT}
    s_lshr_b32 s27, s26, 3
    s_lshl_b32 s28, s25, 2
    s_add_u32 s27, s27, s28                ; tb
    s_and_b32 s28, s26, 7                  ; nb
    s_and_b32 s29, s24, 1
    s_lshr_b32 s30, s24, 1
    s_lshl_b32 s32, s27, 1
    s_add_u32 s33, s32, s29
    s_xor_b32 s34, s33, 1
    s_lshl_b32 s32, s28, 1
    s_add_u32 s35, s32, s30
    s_xor_b32 s37, s35, 1
    s_mul_i32 s40, s33, {88*1024}
    s_mul_i32 s41, s34, {88*1024}
    s_mul_i32 s42, s35, {88*1024}
    s_mul_i32 s43, s37, {88*1024}
    s_add_u32 s40, s40, {A3}
    s_add_u32 s41, s41, {A3}
    s_add_u32 s42, s42, {W3F}
    s_add_u32 s43, s43, {W3F}
    s_mul_i32 s31, s24, {14*1024}
    s_add_u32 s31, s31, {32*1024}
    s_lshl_b32 s32, s24, 13
    s_lshl_b32 s44, s33, 15
    s_lshl_b32 s45, s35, 6
    s_add_u32 s44, s44, s45
    s_mov_b32 s49, 0
    s_waitcnt lgkmcnt(0)
    """)
def Wu(s_, i): return 152 + 4*(((s_ if s_ < 10 else s_-10))*2 + i)
def Wo(k, i): return (152 + 4*((k+4)*2 + i)) if k < 6 else (68 + 4*((k-6)*2 + i))
def Ur(s_, i):
    n = (s_ % 12)*2 + i
    return FRr(n) if n < 16 else 68 + 4*(n-16)
def w_loads(p, s0, s1, tag=None):
    for s_ in range(s0, s1):
        for i in range(2):
            if s_ == s0 or s_ % 4 == 0: p(f"s_add_u32 s{54+i}, s{42+i}, s31\ns_add_u32 s{54+i}, s{54+i}, {(s_//4)*4096}")
            p(f"buffer_load_dwordx4 {vr(Wu(s_, i),4)}, v{FL_}, s[12:15], s{54+i} offen offset:{(s_%4)*1024} sc1", tag=tag)
def gen_g2(p, st):
    p("s_setprio 3")
    g2_scalars(p)
    p.label("L_g2_redo")
    w_loads(p, 0, 10)
    p.label("L_g2")
    for i in range(2): p(f"s_add_u32 s{52+i}, s{40+i}, s31")
    for i in range(4): p(f"s_add_u32 s{56+i}, s{40+i}, s32")
    p(f"""
    s_min_u32 s46, s52, s53
    s_min_u32 s45, s56, s57
    v_lshrrev_b32 v2, 1, v1
    v_min_u32 v{FT+2}, 13, v2
    v_min_u32 v{FT+1}, 7, v2
    v_and_b32 v3, 1, v1
    v_mul_u32_u24 v3, {88*1024}, v3
    v_add_u32 v3, 1020, v3
    v_lshl_add_u32 v{FT+2}, v{FT+2}, 10, v3
    v_lshl_add_u32 v{FT+1}, v{FT+1}, 10, v3
    v_and_b32 v2, 31, v1
    """)
    bitswap23(p, 2, 2, 3)
    p(f"v_lshrrev_b32 v3, 5, v1\nv_lshlrev_b32 v3, 4, v3\nv_lshl_add_u32 v{FO}, v2, 10, v3\nv_mov_b32 v{FT+5}, 0")
    srd(p, 16, 6, 2048*1024); srd(p, 20, 8, 2048*1024)
    poll(p, "L_p1", 46, FT+2, None, FT+4, bad=-1)
    st(p, 4)
    p(f"s_setprio {VAR.get('prio_u', 3)}")
    NR = VAR.get('nr', 8)
    def ld(s):
        o = []
        if s and s % 4 == 0: o += [I(f"s_add_u32 s{52+i}, s{52+i}, 4096") for i in range(2)]
        for i in range(2):
            o.append(I(f"buffer_load_dwordx4 {vr(Ur(s, i),4)}, v{FL_}, s[12:15], s{52+i} offen offset:{(s%4)*1024} sc1", tag=f"g{s}"))
        return o
    def wo_ld(k):
        for i in range(2):
            p(f"s_add_u32 s47, s{58+i}, {(k//4)*4096}")
            p(f"buffer_load_dwordx4 {vr(Wo(k, i),4)}, v{FL_}, s[12:15], s47 offen offset:{(k%4)*1024} sc1", tag="wo")
    for s_ in range(NR): p.add(ld(s_))
    for s_ in range(14):
        p.wait(vm=[f"g{s_}", f"wu{s_}"])
        for n_, (a, b) in enumerate(((0,0), (0,1), (1,0), (1,1))):
            d = vr(FA + (a*2+b)*16, 16)
            p.add([mfma32(d, vr(Wu(s_, a),4), vr(Ur(s_, b),4), "0" if s_ == 0 else d)])
            r0 = Ur(s_, n_//2) + 2*(n_%2)
            p(f"v_max3_u32 v{FT+5}, v{FT+5}, v{r0}, v{r0+1}")
        if s_+NR < 14: p.add(ld(s_+NR))
        if s_ < 4: w_loads(p, 10+s_, 11+s_, tag=f"wu{10+s_}")
        elif s_ < 12: wo_ld(s_-4)
    p(f"buffer_load_dwordx4 {vr(FX,4)}, v{FO}, s[16:19], s44 offen", tag="x")
    p(f"buffer_load_dwordx4 {vr(FX+4,4)}, v{FO}, s[16:19], s44 offen offset:32", tag="x")
    p(f"s_setprio 3\nv_cmp_eq_u32 vcc, -1, v{FT+5}\ns_cbranch_vccnz L_g2_again")
    p.label("L_g2_go")
    p.wait(vm="x")
    for d_ in range(7, -1, -1):
        p(f"v_and_b32 v{FXU+2*d_+1}, 0xffff0000, v{FX+d_}\nv_lshlrev_b32 v{FXU+2*d_}, 16, v{FX+d_}")
    st(p, 5)
    p("s_barrier")
    p("s_add_u32 s58, s56, 4096\ns_add_u32 s59, s57, 4096\ns_mov_b32 s49, 0")
    if VAR.get('direct', 0): p("s_branch L_p3b")
    p.label("L_p3")
    poll(p, "L_p2", 45, FT+1, None, FT+4, bad=-1, sleep=VAR.get('p3sleep', 4))
    p.label("L_p3b")
    for s_ in range(8):
        for i in range(2):
            p(f"buffer_load_dwordx4 {vr(FRr(s_*2+i),4)}, v{FL_}, s[12:15], s{56+i+2*(s_//4)} offen offset:{(s_%4)*1024} sc1", tag=f"o{s_}")
    p(f"v_mov_b32 v{FT+4}, 0\ns_add_u32 s49, s49, 1")
    for s_ in range(8):
        p.wait(vm=f"o{s_}")
        for k in range(0, 8, 2): p(f"v_max3_u32 v{FT+4}, v{FT+4}, v{FRr(2*s_+k//4)+k%4}, v{FRr(2*s_+k//4)+k%4+1}")
    p(f"v_cmp_eq_u32 vcc, -1, v{FT+4}\ns_cbranch_vccz L_p3_ok\ns_cmp_lt_u32 s49, 64\ns_cbranch_scc1 L_p3")
    p.label("L_p3_ok")
    st(p, 6)
    for i in range(1, 4):
        p(f"s_xor_b32 s46, s24, {i}\ns_mul_i32 s46, s46, 12288\ns_add_u32 s46, s46, {(i-1)*4096 + IMG}\nv_add_u32 v{FT+i}, s46, v{FL_}")
    p(f"s_mul_i32 s46, s24, 12288\ns_add_u32 s46, s46, {IMG}\nv_add_u32 v{FT}, s46, v{FL_}")
    for s_ in range(8):
        order = ((0,0), (0,1), (1,0), (1,1)) if s_ < 7 else ((0,1), (1,0), (1,1), (0,0))
        for (a, b) in order:
            d = vr(FA + (a*2+b)*16, 16)
            p.add([mfma32(d, vr(Wo(s_, a),4), vr(FRr(s_*2+b),4), d)])
    for i in range(1, 4):
        for k in range(4): p(f"ds_write_b128 v{FT+i}, {vr(FA+i*16+4*k,4)} offset:{k*1024}")
    for r in range(16): p(f"v_add_f32 v{FA+r}, v{FA+r}, v{FXU+r}")
    p("s_waitcnt lgkmcnt(0)\ns_barrier")
    for k in range(12): p(f"ds_read_b128 {vr(FA+16+4*k,4)}, v{FT} offset:{k*1024}", tag=f"r{k}")
    for k in range(12):
        p.wait(lg=f"r{k}")
        for e in range(4): p(f"v_add_f32 v{FA+(4*k+e)%16}, v{FA+(4*k+e)%16}, v{FA+16+4*k+e}")
    for d in range(8): p(f"v_cvt_pk_bf16_f32 v{FX+d}, v{FA+2*d}, v{FA+2*d+1}")
    p(f"buffer_store_dwordx4 {vr(FX,4)}, v{FO}, s[20:23], s44 offen")
    p(f"buffer_store_dwordx4 {vr(FX+4,4)}, v{FO}, s[20:23], s44 offen offset:32")
    st(p, 7)
    if st.on and VAR.get('dbg') is not None:
        D = VAR['dbg']
        p(f"s_cmp_lg_u32 s2, {D}\ns_cbranch_scc1 L_end\ns_cmp_lg_u32 s24, 0\ns_cbranch_scc1 L_end")
        p(f"s_load_dwordx2 s[6:7], s[0:1], {KA_DBG}\ns_waitcnt vmcnt(0)")
        sel = [(0,0,15),(0,0,1),(0,0,5),(0,0,7),(0,0,9),(1,0,15),(1,0,1),(1,0,2),(1,0,3),(1,4,1),(1,4,2),(1,4,3),(1,4,4),(1,4,5),(1,4,6),(1,4,7)]
        for i, (k, w, sl) in enumerate(sel):
            off = STAMP + k*0x80000 + (D*16 + w)*128 + sl*8 + 4
            p(f"v_mov_b32 v3, {off:#x}\nbuffer_load_dword v{100+i}, v3, s[12:15], 0 offen sc1")
        p("s_waitcnt vmcnt(0) lgkmcnt(0)")
        srd(p, 16, 6, 256)
        for i in range(16):
            p(f"v_sub_u32 v2, v{100+i}, v100\nbuffer_store_dword v2, off, s[16:19], 0 offset:{4*i}")
    p("s_endpgm")
    p.label("L_g2_again")
    p("s_add_u32 s49, s49, 1\ns_cmp_gt_u32 s49, 64\ns_cbranch_scc1 L_g2_go\ns_waitcnt vmcnt(0)\ns_branch L_g2_redo")
```

```python
from common import *
import f2
def ar(b, n): return vr(128+b, n)
import struct, math
def fh(f): return hex(struct.unpack("<I", struct.pack("<f", f))[0])
K1_LDS = 163840
RING = 65536
BIAS = 3072
CNT = 3072
C0 = -2.0*math.sqrt(2.0/math.pi)*1.4426950408889634
A0, A1, A2, A3_ = 4, 20, 36, 52
LA = 2
WB = 68
CSF = 92
CSA = 100
T = 68
WC = 92; STQ = 96
SEL = 108; XC = 112
R1, RI, C0R, C1R = 116, 117, 118, 119
VXD = 116
VXR = 112
VL, VPI, VQ, VB = 120, 121, 122, 123
VA = 124
RR = 52
SX, Q0, Q1 = 52, 56, 60
VAR = dict(prio=True, per=1, rot=6, cpf=40960)
WI, WQ, XS = "s[16:19]", "s[20:23]", "s[24:27]"
SXE, SIE, SQE = 60, 64, 96

def dma1(lds_s, lds_c, sr, vo, sb, se, c, tag):
    return [I(f"s_add_u32 m0, s{lds_s}, {lds_c}"), I(f"s_add_u32 s69, s{sb}, s{se}"),
            I(f"buffer_load_dwordx4 v{vo}, {sr}, s69 offen offset:{c} lds" if False else f"s_add_u32 s69, s69, {c}"),
            I(f"buffer_load_dwordx4 v{vo}, {sr}, s69 offen lds", tag=tag)]
def E_addr(ks): return RING + ((ks//8)*24 + (ks%8)*3)*1024
def Q_addr(ks): return RING + ks*2048
def Z_addr(ks): return (131072 + ks*2048) if ks < 16 else (32768 + (ks-16)*2048)
CSO = 256; RAW = 2048; TBL = 2560
SCR2 = 65536
VQP = 0
def dma_E(e):
    b = RING + e*24*1024
    return [dma1(58, b, WI, VPI, 80, SIE+e, 1792, f"E{e}"), dma1(58, b+1024, WI, VPI, 80, SIE+e, 1792+8*3584, f"E{e}"),
            dma1(58, b+2048, WQ, VQ, 81, SQE+e, 2048, f"E{e}")]
def dma_Q(e):
    b = RING + e*16384
    return [dma1(55, b, WQ, VQP, 82, SQE+e, 0, f"Q{e}"), dma1(55, b+1024, WQ, VQP, 82, SQE+e, 8*3072, f"Q{e}")]
def dma_Z(e):
    b = (131072 + e*16384) if e < 2 else (32768 + (e-2)*16384)
    return [dma1(55, b, WI, VPI, 80, SIE+e, 0, "Za"), dma1(55, b+1024, WI, VPI, 80, SIE+e, 8*3584, "Za")]
def x_dma(e):
    return [[I(f"s_add_u32 m0, s59, {(2*e % 4)*4096 + i*1024}"), I(f"s_add_u32 s69, s56, s{SXE+e}"),
             I(f"buffer_load_dwordx4 v{VXD+i}, {XS}, s69 offen lds", tag=f"X{e}")] for i in range(4)]
def flat(x): return sum(x, [])
def x_read(ks):
    return [I(f"ds_read_b128 {ar(4*ks,4)}, v{VXR+ks%4} offset:{((ks//4)%4)*4096}", tag=f"xr{ks}")]
class Addr:
    def __init__(self, base): self.base = base
    def off(self, addr, out, span=2048+1024+6*1024*2):
        if not (0 <= addr - self.base and addr - self.base + 1024 <= 65535):
            nb = addr if addr < self.base else addr
            d = (nb - self.base) & 0xffffffff
            out += [I(f"v_add_u32 v{VA+k}, {d:#x}, v{VA+k}") for k in range(4)]
            self.base = nb
        return addr - self.base
def tr_read(dst, areg, off, e2, tag):
    return [I(f"ds_read_b64_tr_b16 {vr(dst+2*e,2)}, v{areg} offset:{off+e2*e}", tag=tag) for e in range(2)]
def m16(d, b, first): return I(f"v_mfma_f32_16x16x32_bf16 {vr(d,4)}, {vr(SEL,4)}, {b}, {'0' if first else vr(d,4)}")
def stats_mfma(ks):
    x = 4*ks; z = ks == 0
    return [m16(SX, ar(x,4), z),
            I(f"v_mfma_f32_4x4x4_16b_bf16 {vr(Q0,4)}, {ar(x,2)}, {ar(x,2)}, {'0' if z else vr(Q0,4)}"),
            I(f"v_mfma_f32_4x4x4_16b_bf16 {vr(Q1,4)}, {ar(x+2,2)}, {ar(x+2,2)}, {'0' if z else vr(Q1,4)}")]
def wb(ks, ti): return WB + ((ks % (LA+1))*2 + ti)*4
def stl(st, k):
    q = Prog(); st(q, k); return q.l

def gemm_pass(accs, addr_of, base0, nori, tagp, e2, hooks=None, cs_tiles=None, stats=False, cs_s=9, cs_o=CSO):
    nt = len(accs)
    am = Addr(base0)
    def rd(ks, dst, regs, tag):
        o = []
        off = am.off(addr_of(ks), o)
        for ti in range(nt): o += tr_read(dst(ti), regs+ti, off, e2, tag)
        return o
    o = []
    for ks in range(LA): o += rd(ks, lambda ti: wb(ks,ti), VA, f"{tagp}{ks}")
    for ks in range(32):
        pre = W(lg=[f"{tagp}{ks}", f"xr{ks}"])
        mf = []
        for ti in range(nt):
            w = vr(wb(ks,ti),4); x = ar(4*ks,4); d = vr(accs[ti],16)
            mf.append(mfma32(d, x, w, "0" if ks == 0 else d) if nori else mfma32(d, w, x, "0" if ks == 0 else d))
        h0, h1, h2 = hooks(ks) if hooks else ([], [], [])
        post = list(h0)
        tail = []
        if ks % 4 == 0 and cs_tiles:
            post += rd(ks, lambda ti: CSF+4*ti, VA+2, f"c{tagp}{ks}")
        if ks+LA < 32: post += rd(ks+LA, lambda ti: wb(ks+LA,ti), VA, f"{tagp}{ks+LA}")
        post += h1
        if ks % 4 == 1 and cs_tiles:
            pre.lg.append(f"c{tagp}{ks-1}")
            for ti in range(nt): tail.append(m16(CSA+4*ti, vr(CSF+4*ti,4), ks == 1))
        if ks == 30 and cs_tiles:
            tail.append(I(f"v_lshl_add_u32 v3, v1, 2, s{cs_s}"))
            for ti in range(nt): tail.append(I(f"ds_write_b32 v3, v{CSA+4*ti} offset:{cs_o + cs_tiles[ti]*256}"))
        if stats:
            if VAR.get('stfirst'): mf += stats_mfma(ks); mf_all = True
            else: tail += stats_mfma(ks)
        tail += h2
        if stats and VAR.get('stfirst'): o += [pre] + mf + post + tail
        else: o += [pre] + mf[:1] + post + mf[1:] + tail
    return o

def phase1_hooks(st):
    sched = {}
    def spread(pcs, first, per):
        pcs = list(pcs); k = first
        while pcs:
            for _ in range(per):
                if pcs: sched.setdefault(k, []).append(pcs.pop(0))
            k += 1
    spread(dma_E(2) + dma_E(3), 0, 1)
    spread(x_dma(2) + dma_Q(0), 8-LA, VAR['per'])
    spread(x_dma(3) + dma_Q(1) + dma_Q(2), 16-LA, VAR['per'])
    spread(dma_Q(3), 24-LA, VAR['per'])
    def hooks(ks):
        e, r8 = divmod(ks, 8)
        h0 = []; h1 = []
        if r8 == 8-LA and e < 3:
            h0 = [W(vm=[f"X{e+1}", f"E{e+1}"], lg0=True), I("s_barrier")] + stl(st, 2+e)
        if r8 >= 8-LA and e < 3:
            k0 = 8*(e+1) + 2*(r8-(8-LA)); h1 += x_read(k0) + x_read(k0+1)
        if r8 < 4: h1 += x_read(8*e+4+r8)
        h2 = flat(sched.get(ks, []))
        if ks == 26: h2 = h2 + [I(f"buffer_load_dword v{A2+1}, off, s[44:47], 0 sc1", tag="tag")]
        return h0, h1, h2
    return hooks

def set_va(p, pair, base, mstride):
    sh = 7 if pair else 6
    p(f"""
    v_lshrrev_b32 v2, 5, v1
    v_lshlrev_b32 v{VA}, {sh+3}, v2
    v_bfe_u32 v3, v1, 2, 2
    v_lshl_add_u32 v{VA}, v3, {sh}, v{VA}
    v_bfe_u32 v3, v1, 4, 1
    v_lshl_add_u32 v{VA}, v3, 5, v{VA}
    v_and_b32 v3, 1, v1
    v_lshl_add_u32 v{VA}, v3, 4, v{VA}
    v_bfe_u32 v3, v1, 1, 1
    v_lshl_add_u32 v{VA}, v3, 3, v{VA}
    """)
    if pair: p(f"v_bfe_u32 v3, v1, 3, 1\nv_lshl_add_u32 v{VA}, v3, 6, v{VA}")
    p(f"""
    v_add_u32 v{VA}, {base}, v{VA}
    s_mul_i32 s34, s29, {mstride}
    v_xor_b32 v{VA+1}, 64, v{VA}
    v_add_u32 v{VA+2}, s34, v{VA}
    v_add_u32 v{VA+3}, s34, v{VA+1}
    """)

def corr_from(b, d, nori):
    o = [I(f"v_sub_f32 v{b}, 0, v{b}"),
         I(f"v_cvt_pk_bf16_f32 v{WC+1}, v{b}, 0"),
         I(f"v_lshlrev_b32 v{b+1}, 16, v{WC+1}"),
         I(f"v_sub_f32 v{b+1}, v{b}, v{b+1}"),
         I(f"v_cvt_pk_bf16_f32 v{WC}, v{b}, v{b+1}")]
    a_, b_ = (vr(XC,4), vr(WC,4)) if nori else (vr(WC,4), vr(XC,4))
    o.append(mfma32(vr(d,16), a_, b_, vr(d,16)))
    return o
def cs_reads(tiles, tag, base=0, stride=None, off=CSO):
    o = [I(f"v_lshlrev_b32 v2, 2, v1")]
    if base: o.append(I(f"v_add_u32 v2, {base}, v2"))
    for k, tl in enumerate(tiles):
        for w in range(4): o.append(I(f"ds_read_b32 v{T+4*k+w}, v2 offset:{(w*stride if stride else (w>>1)*16384 + (w&1)*4096) + off + tl*256}", tag=tag))
    return o
def cs_corr(accs, nori, tag):
    o = [I(f"v_mov_b32 v{WC+2}, 0"), I(f"v_mov_b32 v{WC+3}, 0"), W(lg=tag)]
    for k, d in enumerate(accs):
        b = T+4*k
        o += [I(f"v_add_f32 v{b}, v{b}, v{b+1}"), I(f"v_add_f32 v{b+2}, v{b+2}, v{b+3}"), I(f"v_add_f32 v{b}, v{b}, v{b+2}")]
        o += corr_from(b, d, nori)
    return o

def ln1_final(g, S, Q):
    o = Prog()
    o(f"""
    v_mul_f32 v{S}, {fh(1/512)}, v{S}
    v_cndmask_b32 v{S+1}, v{S}, 0, s[74:75]
    v_mul_f32 v{S+2}, v{S}, v{S}
    v_cvt_pk_bf16_f32 v{XC}, v{S+1}, v{S+1}
    v_fma_f32 v{Q}, v{Q}, s76, -v{S+2}
    v_and_b32 v{S+3}, 0xffff0000, v{XC}
    v_max_f32 v{Q}, 0, v{Q}
    v_sub_f32 v{S+3}, v{S+1}, v{S+3}
    v_add_f32 v{Q}, {fh(1e-5)}, v{Q}
    v_cvt_pk_bf16_f32 v{XC+1}, v{S+3}, 0
    v_rsq_f32 v{R1}, v{Q}
    v_mov_b32 v{XC+2}, 0
    v_mov_b32 v{XC+3}, 0
    """)
    rr = RR if g == 0 else A1
    tb = TBL + 256*g
    o(f"""
    v_lshl_add_u32 v3, v{VB}, 2, s9
    ds_write_b32 v3, v{R1} offset:{tb}
    v_lshrrev_b32 v3, 5, v1
    v_lshl_add_u32 v3, v3, 5, s9
    s_waitcnt lgkmcnt(0)
    """)
    for k in range(4): o(f"ds_read_b128 {vr(rr+4*k,4)}, v3 offset:{tb + (k//2)*64 + (k%2)*16}", tag="rr")
    if g == 0:
        o(f"v_mov_b32 v{C0R}, {fh(C0)}")
    else:
        o(f"""
        v_sqrt_f32 v{RI}, v{Q}
        v_mul_f32 v{C0R}, {fh(C0)}, v{R1}
        v_mul_f32 v{C1R}, v{R1}, v{R1}
        v_mul_f32 v{C1R}, v{C1R}, v{C0R}
        v_mul_f32 v{C1R}, {fh(0.044715)}, v{C1R}
        """)
    return o.l

def gelu_T(a, P0):
    o = []
    for g in range(0, 16, 4):
        rs = range(g, g+4); tt = lambda r: T + (r % 4)
        o += [I(f"v_mul_f32 v{tt(r)}, v{a+r}, v{a+r}") for r in rs]
        o += [I(f"v_fma_f32 v{tt(r)}, v{tt(r)}, v{C1R}, v{C0R}") for r in rs]
        o += [I(f"v_mul_f32 v{tt(r)}, v{tt(r)}, v{a+r}") for r in rs]
        o += [I(f"v_exp_f32 v{tt(r)}, v{tt(r)}") for r in rs]
        o += [I(f"v_fma_f32 v{tt(r)}, v{tt(r)}, v{RI}, v{RI}") for r in rs]
        o += [I(f"v_rcp_f32 v{tt(r)}, v{tt(r)}") for r in rs]
        o += [I(f"v_mul_f32 v{a+r}, v{a+r}, v{tt(r)}") for r in rs]
        o += [I(f"v_cvt_pk_bf16_f32 v{P0+r//2}, v{a+r}, v{a+r+1}") for r in (g, g+2)]
    return o
def gelu_N(a):
    o = []
    for g in range(0, 16, 4):
        rs = range(g, g+4); tt = lambda r: T + (r % 4)
        o += [I(f"v_mul_f32 v{a+r}, v{a+r}, v{RR+r}") for r in rs]
        o += [I(f"v_mul_f32 v{tt(r)}, v{a+r}, v{a+r}") for r in rs]
        o += [I(f"v_fma_f32 v{tt(r)}, v{tt(r)}, s77, v{C0R}") for r in rs]
        o += [I(f"v_mul_f32 v{tt(r)}, v{tt(r)}, v{a+r}") for r in rs]
        o += [I(f"v_exp_f32 v{tt(r)}, v{tt(r)}") for r in rs]
        o += [I(f"v_add_f32 v{tt(r)}, 1.0, v{tt(r)}") for r in rs]
        o += [I(f"v_rcp_f32 v{tt(r)}, v{tt(r)}") for r in rs]
        o += [I(f"v_mul_f32 v{a+r}, v{a+r}, v{tt(r)}") for r in rs]
    return o

def z2_stats():
    o = []
    a0, a1 = A0, A1
    for hf in range(2):
        S1 = lambda r: T + 4 + r
        S2 = lambda r: T + 12 + r
        for r in range(8):
            R = hf*8 + r
            o.append(I(f"v_mul_f32 v{S2(r)}, v{a0+R}, v{a0+R}"))
            o.append(I(f"v_add_f32 v{S1(r)}, v{a0+R}, v{a1+R}"))
        for r in range(8): o.append(I(f"v_fmac_f32 v{S2(r)}, v{a1+hf*8+r}, v{a1+hf*8+r}"))
        for S in (S1, S2):
            for r in range(4): o.append(I(f"v_permlane16_swap_b32 v{S(r)}, v{S(r+4)}"))
        for S in (S1, S2):
            for r in range(4): o.append(I(f"v_add_f32 v{S(r)}, v{S(r)}, v{S(r+4)}"))
        for S in (S1, S2):
            for r in range(2): o.append(I(f"v_add_f32_dpp v{S(r+4)}, v{S(r)}, v{S(r)} row_ror:8 row_mask:0xf bank_mask:0x3"))
        for S in (S1, S2):
            for r in range(2): o.append(I(f"v_add_f32_dpp v{S(r+4)}, v{S(r+2)}, v{S(r+2)} row_ror:8 row_mask:0xf bank_mask:0xc"))
        for S in (S1, S2): o.append(I(f"v_add_f32_dpp v{S(0)}, v{S(4)}, v{S(4)} row_half_mirror row_mask:0xf bank_mask:0x5"))
        for S in (S1, S2): o.append(I(f"v_add_f32_dpp v{S(0)}, v{S(5)}, v{S(5)} row_half_mirror row_mask:0xf bank_mask:0xa"))
        for S in (S1, S2): o.append(I(f"v_add_f32_dpp v{S(0)}, v{S(0)}, v{S(0)} quad_perm:[1,0,3,2] row_mask:0xf bank_mask:0xf"))
        for k, S in enumerate((S1, S2)): o.append(I(f"v_add_f32_dpp v{STQ+2*hf+k}, v{S(0)}, v{S(0)} quad_perm:[2,3,0,1] row_mask:0xf bank_mask:0xf"))
    return o

def prio(p, n):
    if VAR['prio']: p(f"s_setprio {n}")

def gen_kf(stamp=False):
    p = Prog()
    st = Stamper(stamp, 10, 0)
    st2 = Stamper(stamp, 10, 252, kid=1)
    entry_stamp(p, stamp)
    p(f"""
    s_cmp_ge_u32 s2, 256
    s_cbranch_scc1 L_end
    s_load_dwordx4 s[4:7], s[0:1], {KA_X}
    s_load_dwordx2 s[8:9], s[0:1], {KA_WIN}
    s_load_dwordx4 s[48:51], s[0:1], {KA_DBG}
    v_and_b32 v1, 63, v0
    v_lshrrev_b32 v2, 6, v0
    v_readfirstlane_b32 s28, v2                 ; wave 0..7
    s_mov_b32 s10, s28
    s_and_b32 s29, s2, 7
    s_lshr_b32 s30, s2, 3
    s_and_b32 s31, s29, 1
    s_lshl_b32 s31, s31, 3
    s_and_b32 s32, s30, 7
    s_add_u32 s31, s31, s32                     ; rb
    s_lshr_b32 s32, s29, 1
    s_lshl_b32 s32, s32, 2
    s_lshr_b32 s33, s30, 3
    s_add_u32 s32, s32, s33                     ; cg
    v_lshrrev_b32 v2, 3, v1
    v_lshrrev_b32 v3, 4, v1
    v_xor_b32 v{VXD}, v3, v1
    v_and_b32 v{VXD}, 7, v{VXD}
    v_lshlrev_b32 v{VXD}, 4, v{VXD}
    v_lshl_add_u32 v{VXD}, v2, 10, v{VXD}
    v_and_b32 v3, 1, v3
    v_lshlrev_b32 v3, 2, v3
    v_xor_b32 v3, v3, v1
    v_and_b32 v3, 7, v3
    v_lshlrev_b32 v{VB}, 4, v3
    v_mul_u32_u24 v{VPI}, 3584, v2
    v_add_u32 v{VPI}, v{VPI}, v{VB}
    v_mul_u32_u24 v{VQP}, 3072, v2
    v_add_u32 v{VQP}, v{VQP}, v{VB}
    v_lshrrev_b32 v2, 2, v1
    v_and_b32 v3, 3, v1
    v_lshlrev_b32 v3, 4, v3
    v_mul_u32_u24 v{VQ}, 3072, v2
    v_add_u32 v{VQ}, v{VQ}, v3
    s_and_b32 s29, s28, 3                       ; m tile
    s_lshr_b32 s30, s28, 2                      ; group
    s_lshl_b32 s33, s31, 2
    s_add_u32 s33, s33, s29                     ; tt
    s_lshl_b32 s56, s33, 15
    s_lshl_b32 s34, s30, 7
    s_add_u32 s56, s56, s34
    s_lshl_b32 s57, s29, 14
    s_lshl_b32 s34, s30, 12
    s_add_u32 s59, s57, s34
    s_mul_i32 s58, s28, 3072
    s_lshl_b32 s55, s28, 11
    v_xor_b32 v{VXD+1}, 64, v{VXD}
    v_add_u32 v{VXD+2}, 16384, v{VXD}
    v_add_u32 v{VXD+1}, 8192, v{VXD+1}
    v_add_u32 v{VXD+3}, 16384, v{VXD+1}
    s_mul_i32 s80, s28, {16*3584}
    s_lshl_b32 s35, s32, 7
    s_add_u32 s80, s80, s35
    s_mul_i32 s81, s28, {16*3072}
    s_lshl_b32 s35, s32, 6
    s_and_b32 s34, s32, 1
    s_mul_i32 s34, s34, {1024-64}
    s_add_u32 s82, s81, s34
    s_add_u32 s81, s81, s35
    s_add_u32 s82, s82, s35
    {["s_mov_b32 s35, 0", "s_add_u32 s35, s31, s32", "s_bfe_u32 s35, s2, 0x20001", "s_and_b32 s35, s2, 3", "s_lshl_b32 s35, s31, 1", "s_mov_b32 s35, s32", "s_mov_b32 s35, s31"][int(VAR['rot'])]}
    """)
    for e in range(4):
        p(f"s_add_u32 s34, s35, {e}\ns_and_b32 s34, s34, 3\ns_lshl_b32 s{SXE+e}, s34, 8\ns_mul_i32 s{SIE+e}, s34, {128*3584}\ns_mul_i32 s{SQE+e}, s34, {128*3072}")
    p(f"""
    s_cmp_lt_u32 s32, 14
    s_cselect_b32 s18, {512*3584}, 0
    s_cselect_b32 s42, {WS_USED}, 0
    s_mov_b32 s19, 0x20000
    s_mov_b32 s43, 0x20000
    s_waitcnt lgkmcnt(0)
    s_mov_b32 s16, s8
    s_mov_b32 s17, s9
    s_lshr_b32 s9, s29, 1
    s_lshl_b32 s9, s9, 14
    s_and_b32 s8, s29, 1
    s_lshl_b32 s8, s8, 12
    s_add_u32 s9, s9, s8
    """)
    srd(p, 24, 4, 2048*1024); srd(p, 20, 6, 512*3072)
    p.add(flat(x_dma(0))); p.add(flat(dma_E(0)))
    srd(p, 12, 50, WS_USED); srd(p, 44, 48, 256)
    p("s_mov_b32 s40, s50\ns_mov_b32 s41, s51")
    st(p, 0); entry_store(p, st)
    p(f"v_and_b32 v{VB}, 31, v1")
    bitswap23(p, VB, VB, 3)
    p(f"""
    v_lshrrev_b32 v3, 1, v{VB}
    v_lshrrev_b32 v2, 5, v1
    v_xor_b32 v3, v3, v2
    v_and_b32 v3, 7, v3
    v_lshlrev_b32 v3, 4, v3
    v_lshl_add_u32 v{VXR}, v{VB}, 7, v3
    v_add_u32 v{VXR}, s57, v{VXR}
    v_xor_b32 v{VXR+1}, 32, v{VXR}
    v_xor_b32 v{VXR+2}, 64, v{VXR}
    v_xor_b32 v{VXR+3}, 96, v{VXR}
    """)
    if VAR.get('b00', False): p("s_barrier")
    p.add(flat(x_dma(1))); p.add(flat(dma_E(1)))
    if VAR.get('cpf'): code_prefetch(p, 28, 3, f"v{A2}", 36, "L_cpf")
    p("s_or_b32 s34, s2, s28\ns_cmp_lg_u32 s34, 0\ns_cbranch_scc1 L_notag")
    p(f"s_mov_b32 s34, {EPO}\nbuffer_load_dword v2, off, s[12:15], s34 sc1\ns_waitcnt vmcnt(0)\nv_add_u32 v2, 1, v2\nv_max_u32 v2, 1, v2")
    p("buffer_store_dword v2, off, s[44:47], 0 sc1\nbuffer_store_dword v2, off, s[12:15], s34 sc1")
    p.label("L_notag")
    p(f"""
    v_lshlrev_b32 v{VL}, 4, v1
    v_and_b32 v3, 3, v1
    v_cmp_eq_u32 vcc, 0, v3
    v_lshrrev_b32 v3, 2, v1
    v_lshrrev_b32 v2, 4, v1
    v_xor_b32 v3, v3, v2
    v_and_b32 v3, 1, v3
    v_cmp_eq_u32 s[34:35], 0, v3
    s_and_b64 vcc, vcc, s[34:35]
    v_mov_b32 v3, 0x3f803f80
    v_cndmask_b32 v{SEL}, 0, v3, vcc
    v_mov_b32 v{SEL+1}, v{SEL}
    v_mov_b32 v{SEL+2}, v{SEL}
    v_mov_b32 v{SEL+3}, v{SEL}
    v_cmp_lt_u32 s[74:75], 31, v1
    s_mov_b32 s76, {fh(1/512)}
    s_cmp_eq_u32 s30, 0
    s_cbranch_scc1 L_g1
    """)
    def start(p):
        if VAR.get('fine'):
            st(p, 10); p.wait(vm="X0"); st(p, 11); p.wait(vm="E0"); st(p, 12)
        p.wait(vm=["X0", "E0"]); p("s_barrier"); st(p, 1)
        for ks in range(4): p.add(x_read(ks))
    def get_tag(p, u):
        p.wait(vm="tag")
        p(f"v_readfirstlane_b32 s11, v{A2+1}\ns_cmp_lg_u32 s11, 0\ns_cbranch_scc1 L_tag{u}\ns_mov_b32 s34, 0")
        p.label(f"L_tagp{u}")
        p(f"buffer_load_dword v2, off, s[44:47], 0 sc1\ns_add_u32 s34, s34, 1\ns_waitcnt vmcnt(0)\nv_readfirstlane_b32 s11, v2\ns_cmp_gt_u32 s34, 0x40000\ns_cbranch_scc1 L_tag{u}\ns_cmp_eq_u32 s11, 0\ns_cbranch_scc1 L_tagp{u}")
        p.label(f"L_tag{u}")
    set_va(p, True, RING, 3072)
    p(f"""
    s_mov_b32 s77, {fh(C0*0.044715)}
    s_lshr_b32 s34, s32, 1
    s_lshl_b32 s83, s34, 19
    s_lshl_b32 s35, s33, 13
    s_add_u32 s83, s83, s35
    s_and_b32 s35, s32, 1
    s_lshl_b32 s35, s35, 11
    s_add_u32 s83, s83, s35
    s_add_u32 s83, s83, {Z2F}
    s_add_u32 s84, s83, 4096
    s_lshl_b32 s87, s33, 13
    s_add_u32 s87, s87, {STAT}
    s_lshl_b32 s35, s32, 9
    s_add_u32 s88, s87, s35
    s_mul_i32 s85, s33, {56*1024}
    s_lshl_b32 s34, s32, 12
    s_add_u32 s85, s85, s34
    s_add_u32 s85, s85, {Z1F}
    s_lshl_b32 s86, s32, 11
    s_lshl_b32 s34, s31, 7
    s_add_u32 s86, s86, s34
    s_lshl_b32 s34, s29, 2
    s_add_u32 s86, s86, s34
    s_add_u32 s86, s86, {PFL+16}
    s_lshl_b32 s52, s29, 11
    s_add_u32 s52, s52, {SCR2}
    """)
    f2.placeholder_addrs(p, 29)
    for r in range(4): p(f"v_mov_b32 v{A2+4+r}, -1")
    ph = [I(f"buffer_store_dwordx4 {vr(A2+4,4)}, v{VL}, s[12:15], s{so} offen offset:{o_} sc1") for so, o_ in ((36,0),(37,0),(38,0),(38,1024),(39,0),(39,1024))]
    h1_ = phase1_hooks(st); PH = VAR.get('phstep', 24)
    def hooksB(ks):
        x0, x1, x2 = h1_(ks)
        if PH >= 0 and PH <= ks < PH+6:
            if VAR.get('phmask'): x2 = x2 + [I(f"s_mov_b32 exec_lo, {VAR['phmask']:#x}"), I(f"s_mov_b32 exec_hi, {VAR['phmask']:#x}"), ph[ks-PH], I("s_mov_b64 exec, -1")]
            else: x2 = x2 + [ph[ks-PH]]
        return x0, x1, x2
    if PH < 0: p.add(ph)
    prio(p, 1)
    start(p)
    p.add(gemm_pass([A0, A1], E_addr, RING, True, "w", 512, hooks=hooksB, cs_tiles=[0, 1]))
    p(f"v_mov_b32 v2, 0\nv_lshlrev_b32 v3, 2, v1\nds_write_b32 v3, v2")
    p.wait(vm=["Q0","Q1","Q2","Q3"], lg0=True)
    p("s_barrier")
    st(p, 5)
    prio(p, 0)
    p(f"v_lshl_add_u32 v3, v1, 2, s9")
    p(f"ds_read_b32 v{T+16}, v3 offset:{RAW}", tag="raw"); p(f"ds_read_b32 v{T+20}, v3 offset:{RAW+256}", tag="raw")
    p.add(cs_reads([0, 1], "cs0"))
    get_tag(p, "b")
    p.add(flat(dma_Z(0) + dma_Z(1) + dma_Z(2) + dma_Z(3)))
    p.wait(lg="raw")
    p(f"v_mov_b32 v{VQ}, v{T+20}")
    p.add(ln1_final(0, T+16, VQ))
    p.add(cs_corr([A0, A1], True, "cs0"))
    p.wait(lg="rr")
    p.add(gelu_N(A0)); p.add(gelu_N(A1)); p.add(z2_stats())
    p("s_waitcnt vmcnt(0)")
    p(f"""
    v_and_b32 v3, 1, v1
    v_cmp_eq_u32 vcc, 1, v3
    v_bfe_u32 v2, v1, 2, 1
    v_lshl_add_u32 v2, v3, 4, v2
    v_bfe_u32 v3, v1, 3, 1
    v_lshl_add_u32 v2, v3, 1, v2
    v_bfe_u32 v3, v1, 4, 2
    v_lshl_add_u32 v2, v3, 2, v2                ; row = 16*(l&1) + 8h + 4b4 + 2b3 + b2
    v_lshlrev_b32 v2, 4, v2
    v_cndmask_b32 v{STQ}, v{STQ}, v{STQ+2}, vcc
    v_cndmask_b32 v{STQ+2}, v{STQ+1}, v{STQ+3}, vcc
    v_mov_b32 v{STQ+1}, s11
    v_mov_b32 v{STQ+3}, s11
    buffer_store_dwordx4 {vr(STQ,4)}, v2, s[40:43], s88 offen sc1
    buffer_store_dword v{STQ+1}, off, s[12:15], s53 sc1
    buffer_store_dword v{STQ+1}, off, s[12:15], s54 sc1
    v_sqrt_f32 v{RI}, v{VQ}
    v_mul_f32 v{C0R}, {fh(C0)}, v{R1}
    v_mul_f32 v{C1R}, v{R1}, v{R1}
    v_mul_f32 v{C1R}, v{C1R}, v{C0R}
    v_mul_f32 v{C1R}, {fh(0.044715)}, v{C1R}
    s_lshl_b32 s34, s29, 2
    v_mov_b32 v{VB}, s34
    """)
    set_va(p, True, 131072, 2048)
    st(p, 6)
    p.wait(lg0=True)
    p("s_barrier")
    prio(p, VAR.get('pz1', 2))
    st(p, 7)
    p("s_mov_b32 s88, s32\ns_mov_b32 s89, 0x7ff00000\ns_cmp_ge_u32 s32, 14\ns_cbranch_scc1 L_b_done")
    PS = VAR.get('pstep', 8); FS = VAR.get('fstep', 13)
    X = 128
    def part_loads():
        o = [I("v_and_b32 v2, 31, v1"), I("v_lshlrev_b32 v2, 4, v2"), I("v_lshrrev_b32 v3, 5, v1"), I("v_mul_u32_u24 v3, 3584, v3"), I("v_add_u32 v2, v2, v3")]
        for k in range(7):
            o.append(I(f"buffer_load_dwordx4 {ar(4*k,4)}, v2, s[12:15], s87 offen offset:{k*512} sc1", tag="part"))
        return o
    def z2_final():
        q = Prog()
        b = X+28
        q(f"s_mov_b32 s34, 0\ns_mov_b32 s35, {fh(1/896)}")
        q.wait(vm="part")
        q.label("L_chk")
        q(f"v_xor_b32 v{b+2}, s11, v{X+1}\nv_xor_b32 v{b+3}, s11, v{X+3}\nv_or_b32 v{b+2}, v{b+2}, v{b+3}\nv_mov_b32 v{b}, v{X}\nv_mov_b32 v{b+1}, v{X+2}")
        for k in range(1, 7):
            q(f"v_add_f32 v{b}, v{b}, v{X+4*k}\nv_add_f32 v{b+1}, v{b+1}, v{X+4*k+2}")
            q(f"v_xor_b32 v{X+4*k+1}, s11, v{X+4*k+1}\nv_xor_b32 v{X+4*k+3}, s11, v{X+4*k+3}\nv_or3_b32 v{b+2}, v{b+2}, v{X+4*k+1}, v{X+4*k+3}")
        q(f"v_cmp_ne_u32 vcc, 0, v{b+2}\ns_cbranch_vccnz L_retry")
        q.label("L_chk_ok")
        q(f"""
        v_mov_b32 v{b+2}, v{b}
        v_mov_b32 v{b+3}, v{b+1}
        v_and_b32 v2, 31, v1
        v_permlane32_swap_b32 v{b}, v{b+2}
        v_permlane32_swap_b32 v{b+1}, v{b+3}
        v_lshl_add_u32 v2, v2, 2, s52
        v_add_f32 v{b}, v{b}, v{b+2}
        v_add_f32 v{b+1}, v{b+1}, v{b+3}
        v_mul_f32 v{b}, s35, v{b}
        v_mul_f32 v{b+2}, v{b}, v{b}
        v_fma_f32 v{b+1}, v{b+1}, s35, -v{b+2}
        v_max_f32 v{b+1}, 0, v{b+1}
        v_add_f32 v{b+1}, {fh(1e-5)}, v{b+1}
        v_rsq_f32 v{b+1}, v{b+1}
        v_lshrrev_b32 v3, 5, v1
        v_lshl_add_u32 v3, v3, 5, s52
        v_mul_f32_e64 v{b}, -v{b}, v{b+1}
        ds_write_b32 v2, v{b+1} offset:1024
        ds_write_b32 v2, v{b} offset:1152
        s_waitcnt lgkmcnt(0)
        """)
        R2 = X; NM = X+16
        for k in range(4): q(f"ds_read_b128 {vr(R2+4*k,4)}, v3 offset:{1024 + (k//2)*64 + (k%2)*16}", tag="r2")
        for k in range(4): q(f"ds_read_b128 {vr(NM+4*k,4)}, v3 offset:{1152 + (k//2)*64 + (k%2)*16}", tag="r2")
        q2 = Prog()
        q2.wait(lg="r2")
        for t_ in range(2):
            a = A0 + 16*t_
            for r in range(16): q2(f"v_fma_f32 v{a+r}, v{a+r}, v{R2+r}, v{NM+r}")
            for d in range(8): q2(f"v_cvt_pk_bf16_f32 v{a+d}, v{a+2*d}, v{a+2*d+1}")
            q2(f"buffer_store_dwordx4 {vr(a,4)}, v{VL}, s[12:15], s83 offen offset:{t_*1024}")
            q2(f"buffer_store_dwordx4 {vr(a+4,4)}, v{VL}, s[12:15], s84 offen offset:{t_*1024}")
        return q.l, q2.l
    pl = part_loads(); zf1, zf2 = z2_final()
    n2 = (len(zf2) + 3)//4
    def zhooks(ks):
        t_ = []
        h0 = []
        if ks == PS: t_ += pl[:8]
        if ks == PS+1: t_ += pl[8:10]
        if ks == PS+2: t_ += pl[10:]
        if ks == FS: t_ += zf1
        if FS < ks <= FS+4: t_ += zf2[(ks-FS-1)*n2:(ks-FS)*n2]
        if ks == VAR.get('zfl', 26): t_ += [I("v_mov_b32 v2, s11"), I("s_waitcnt vmcnt(0)"), I("buffer_store_dword v2, off, s[12:15], s86 sc1")]
        return h0, [], t_
    p.add(gemm_pass([A2, A3_], Z_addr, 131072, False, "z", 512, hooks=zhooks, cs_tiles=[0, 1], cs_s=52, cs_o=0))
    p(f"v_mov_b32 v2, 1\ns_waitcnt lgkmcnt(0)\nds_write_b32 v{VB}, v2 offset:128")
    st(p, 8)
    prio(p, VAR.get('pz2', 2))
    p("v_mov_b32 v2, 0")
    f2.flag_wait(p, "L_csz", 2, 128, 1, STQ, sleep=0)
    p.add(cs_reads([0, 1], "cs2", base=SCR2, stride=2048, off=0))
    p.add(cs_corr([A2, A3_], False, "cs2"))
    def z1_tile(p, k, ins=None):
        a = (A2, A3_)[k]
        gl = gelu_T(a, T+4+8*k)
        if ins: c_ = VAR.get('kvcut', 60); gl = gl[:c_] + ins + gl[c_:]
        p.add(gl)
        p(f"buffer_store_dwordx4 {vr(T+4+8*k,4)}, v{VL}, s[12:15], s85 offen offset:{k*2048}")
        p(f"buffer_store_dwordx4 {vr(T+8+8*k,4)}, v{VL}, s[12:15], s85 offen offset:{k*2048+1024}")
    z1_tile(p, 0)
    def mid(p, u, ins=None):
        p("s_cmp_ge_u32 s88, 14\ns_cbranch_scc1 L_b_mid" + u)
        z1_tile(p, 1, ins)
        p.label("L_b_mid" + u)
        st(p, 9)
    p("s_add_u32 s89, s86, 16")
    p.label("L_b_done")
    st2(p, 0)
    f2.gen_gemm(p, st2, mid)
    p.label("L_retry")
    p("s_add_u32 s34, s34, 1\ns_cmp_gt_u32 s34, 0x40000\ns_cbranch_scc1 L_chk_ok")
    p.add(part_loads())
    p("s_waitcnt vmcnt(0)\ns_branch L_chk")
    p.label("L_g1")
    set_va(p, False, RING+2048, 3072)
    p(f"""
    v_and_b32 v3, 1, v1
    v_cmp_eq_u32 s[70:71], 1, v3
    v_and_b32 v3, 2, v1
    v_cmp_eq_u32 s[72:73], 2, v3
    s_mul_i32 s87, s32, {2*KVH}
    s_mul_i32 s34, s33, {KVT}
    s_add_u32 s87, s87, s34
    s_add_u32 s87, s87, {KV}
    s_lshr_b32 s34, s32, 1
    s_lshl_b32 s85, s34, 18
    s_lshl_b32 s35, s33, 10
    s_add_u32 s85, s85, s35
    s_mul_i32 s86, s34, {4*KVH}
    s_mul_i32 s35, s33, {KVT}
    s_add_u32 s86, s86, s35
    s_add_u32 s86, s86, {KV}
    s_bitcmp1_b32 s32, 0
    s_cselect_b32 s85, s86, s85
    s_mov_b32 s86, {KVH}
    s_cselect_b32 s86, s86, 0x10000
    s_mov_b32 s78, {fh(0.25*1.4426950408889634)}
    s_cselect_b32 s78, 1.0, s78                  ; scale
    s_lshl_b32 s83, s32, 11
    s_lshl_b32 s34, s31, 7
    s_add_u32 s83, s83, s34
    s_add_u32 s83, s83, {PFL}
    """)
    prio(p, 1)
    start(p)
    p.add(gemm_pass([A0], lambda ks: E_addr(ks)+2048, RING+2048, True, "w", 256, hooks=phase1_hooks(st), cs_tiles=[2], stats=True))
    p(f"""
    v_add_f32 v{Q0}, v{Q0}, v{Q1}
    v_add_f32 v{Q0+1}, v{Q0+1}, v{Q1+1}
    v_add_f32 v{Q0+2}, v{Q0+2}, v{Q1+2}
    v_add_f32 v{Q0+3}, v{Q0+3}, v{Q1+3}
    v_cndmask_b32 v{Q0}, v{Q0}, v{Q0+1}, s[70:71]
    v_cndmask_b32 v{Q0+2}, v{Q0+2}, v{Q0+3}, s[70:71]
    ds_write_b32 v3, v{SX} offset:{RAW}
    v_cndmask_b32 v{Q0}, v{Q0}, v{Q0+2}, s[72:73]
    v_mov_b32 v{Q1}, v{Q0}
    v_permlane32_swap_b32 v{Q0}, v{Q1}
    v_add_f32 v{Q0}, v{Q0}, v{Q1}
    ds_write_b32 v3, v{Q0} offset:{RAW+256}
    """)
    p.wait(vm=["Q0","Q1","Q2","Q3"], lg0=True)
    p("s_barrier")
    st(p, 5)
    p.add(cs_reads([2], "cs1"))
    get_tag(p, "a")
    p.add(ln1_final(1, SX, Q0))
    p.add(cs_corr([A0], True, "cs1"))
    set_va(p, True, RING, 2048)
    zp = gemm_pass([A2, A3_], Q_addr, RING, False, "q", 512, cs_tiles=[5, 6])
    e = Prog()
    e.add(flat(dma_Z(0) + dma_Z(1) + dma_Z(2) + dma_Z(3)))
    e(f"""
    s_mov_b32 s77, {KVH}
    v_bfe_u32 v3, v1, 4, 1
    v_mul_lo_u32 v{VB}, v3, s77
    v_and_b32 v3, 15, v1
    v_lshl_add_u32 v{VB}, v3, 4, v{VB}
    v_lshrrev_b32 v3, 5, v1
    v_lshl_add_u32 v{VB}, v3, 8, v{VB}
    """)
    e.wait(lg="rr")
    for r in range(16): e(f"v_mul_f32 v{A0+r}, v{A0+r}, v{A1+r}")
    for d in range(8): e(f"v_cvt_pk_bf16_f32 v{A0+d}, v{A0+2*d}, v{A0+2*d+1}")
    for r in range(4): e(f"v_mov_b32 v{A1+r}, 0x3f803f80\nv_mov_b32 v{A1+4+r}, 0")
    e(f"v_mul_f32 v{R1}, s78, v{R1}")
    e.wait(vm=["Za"])
    e(f"buffer_store_dwordx4 {vr(A0,4)}, v{VB}, s[12:15], s87 offen offset:1024")
    e(f"buffer_store_dwordx4 {vr(A0+4,4)}, v{VB}, s[12:15], s87 offen offset:1536")
    p.add(interleave(zp, e.l, per_gap=VAR.get('egap', 2), start=1))
    p(f"s_mov_b64 exec, 0x10001\nbuffer_store_dwordx4 {vr(A1,4)}, v{VB}, s[12:15], s87 offen offset:2048\nbuffer_store_dwordx4 {vr(A1+4,4)}, v{VB}, s[12:15], s87 offen offset:2064\ns_mov_b64 exec, -1")
    st(p, 6)
    p.wait(lg0=True)
    p("s_barrier")
    prio(p, 2)
    st(p, 7)
    p.add(cs_reads([5, 6], "cs3"))
    p.add(cs_corr([A2, A3_], False, "cs3"))
    for a in (A2, A3_):
        for r in range(16): p(f"v_mul_f32 v{a+r}, v{a+r}, v{R1}")
        for d in range(8): p(f"v_cvt_pk_bf16_f32 v{a+d}, v{a+2*d}, v{a+2*d+1}")
        p(f"buffer_store_dwordx4 {vr(a,4)}, v{VL}, s[12:15], s85 offen\ns_add_u32 s85, s85, s86")
        p(f"buffer_store_dwordx4 {vr(a+4,4)}, v{VL}, s[12:15], s85 offen\ns_add_u32 s85, s85, s86")
    st(p, 8); st(p, 9)
    st2(p, 0)
    f2.gen_attention(p, st2)
    p.label("L_end")
    p("s_endpgm")
    return p

def split_groups(l):
    lab = {x.op: i for i, x in enumerate(l) if getattr(x, 'kind', '') == "label"}
    b = next(i for i, x in enumerate(l) if getattr(x, 'kind', '') == "branch" and x.target == "L_g1")
    return b, lab["L_g1"]
def kf_paths(l):
    b, g1 = split_groups(l)
    lab = {x.op: i for i, x in enumerate(l) if x.kind == "label"}
    B = l[:lab["L_idle"]] + l[lab["L_g2"]:lab["L_retry"]]
    A = l[:b] + l[g1:]
    e = next(i for i, x in enumerate(A) if x.kind == "misc" and x.base == "s_endpgm")
    return [linearize(B, {"L_g_loop": 2}), l[lab["L_idle"]:lab["L_retry"]], linearize(A[:e+1], {"L_att_loop": 3})]
def finalize_kf(p, verbose=False):
    l = p.l
    b, g1 = split_groups(l)
    head = l[:b+1]
    r0 = resolve_waits(l[:g1])
    r1 = resolve_waits(head + l[g1:])
    nh = len(resolve_waits(head))
    p2 = Prog(); p2.l = r0 + r1[nh:]
    return finalize("kf", p2, paths=kf_paths, verbose=verbose)
KF_DESC = dict(name="kf_kernel", vgpr=256, sgpr=102, accum=256, grid=256, block=512, lds=K1_LDS)
```

```python
from common import *
SOLO = True
import struct
def float_hex(f): return hex(struct.unpack("<I", struct.pack("<f", f))[0])

IMG = 1024
LDS_FLAG = 0
LDS_STG = 131072
K2_LDS = 163840
VAR = dict(margin=72.0, U=8, prio_att=1, prio_g=0, fuse3=True, cdelay=2)

QA, QB = 4, 8
CA, CB = 16, 32
OA, OB = 48, 64
SA, SB = 80, 96
PA, PB = 112, 120
KR = [128, 132, 136, 140]
V0R = [144, 148, 152, 156]
V1R = [160, 164, 168, 172]
AK, AV0, AV1 = 176, 177, 178
GK, GV0, GV1 = 179, 180, 181
MA, MB = 182, 183
TM = 184
FL = 188
PF, PFA = 190, 191
STT = 192

def max16(p, S, M, first):
    if first:
        p(f"v_max3_f32 v{M}, v{S}, v{S+1}, v{S+2}")
        p(f"v_max_f32 v{M}, v{M}, v{S+3}")
        r = range(4, 16, 2)
    else: r = range(0, 16, 2)
    for k in r: p(f"v_max3_f32 v{M}, v{M}, v{S+k}, v{S+k+1}")

def flag_wait(p, name, addr_v, off, val, tmpq, sleep=1):
    p.label(name)
    p(f"ds_read_b128 {vr(tmpq,4)}, v{addr_v} offset:{off}")
    p("s_waitcnt lgkmcnt(0)")
    p(f"v_min_u32 v{tmpq}, v{tmpq}, v{tmpq+1}\nv_min3_u32 v{tmpq}, v{tmpq}, v{tmpq+2}, v{tmpq+3}")
    p(f"v_cmp_gt_u32 vcc, {val}, v{tmpq}")
    p(f"s_cbranch_vccz {name}_ok\ns_sleep {sleep}\ns_branch {name}")
    p.label(name + "_ok")

def spin1(p, name, addr_v, off, val, tmp):
    p.label(name)
    p(f"ds_read_b32 v{tmp}, v{addr_v} offset:{off}")
    p("s_waitcnt lgkmcnt(0)")
    p(f"v_cmp_gt_u32 vcc, {val}, v{tmp}")
    p(f"s_cbranch_vccz {name}_ok\ns_sleep 1\ns_branch {name}")
    p.label(name + "_ok")

def att_loop_body(U):
    out = []
    def blk(S, P, So, Po, Mqk, Mpv1, Mpv0, extra):
        e = lambda k: I(f"v_exp_f32 v{S+k}, v{S+k}")
        c = lambda k: I(f"v_cvt_pk_bf16_f32 v{P+k}, v{S+2*k}, v{S+2*k+1}")
        co = lambda k: I(f"v_cvt_pk_bf16_f32 v{Po+k}, v{So+2*k}, v{So+2*k+1}")
        o = []
        pq, p1, p0 = VAR.get('pos', (2, 6, 12))
        cs = VAR.get('cs', {0: [-6], 1: [-7], 3: [0], 5: [1], 7: [2], 9: [3], 11: [4], 13: [5]})
        if VAR.get('perm'):
            c = lambda k: I(f"v_perm_b32 v{P+k}, v{S+2*k+1}, v{S+2*k}, s45")
            co = lambda k: I(f"v_perm_b32 v{Po+k}, v{So+2*k+1}, v{So+2*k}, s45")
        for k in range(16):
            o.append(e(k))
            for j in cs.get(k, []):
                if j < 0: o.append(co(-j))
            if k == pq and not VAR.get('nom'): o.append(Mqk)
            if k == p1 and not VAR.get('nom'): o.append(Mpv1)
            if k == p0 and not VAR.get('nom'): o.append(Mpv0)
            o += extra.get(k, [])
            for j in cs.get(k, []):
                if j >= 0: o.append(c(j))
        return o
    for u in range(U):
        s0 = u % 4; s1 = (u+1) % 4; sm = (u-1) % 4
        exA = {}; exB = {}
        if u % 2 == 0:
            rd = []
            for d in (2, 3):
                o_ = (u+d-1)*KVT
                rd += [I(f"ds_read_b128 {vr(KR[(u+d)%4],4)}, v{AK} offset:{o_}"),
                       I(f"ds_read_b128 {vr(V0R[(u+d)%4],4)}, v{AV0} offset:{o_}"),
                       I(f"ds_read_b128 {vr(V1R[(u+d)%4],4)}, v{AV1} offset:{o_}")]
            exA = {VAR.get('rdpos', 6): rd}
            if VAR.get('nods'): exA = {}
        if u == U-1:
            exB = {2: [I("s_add_u32 s41, s41, 1")], 3: [I(f"s_cmp_eq_u32 s41, 1")], 4: [I("s_cbranch_scc1 L_att_sync2"), I("L_att_sync2_ret:")],
                   5: [I(f"v_mov_b32 v{TM}, s41")], 7: [I(f"ds_write_b32 v{FL+1}, v{TM} offset:80")],
                   6: [I(f"v_add_u32 v{AK}, {U*KVT}, v{AK}")], 8: [I(f"v_add_u32 v{AV0}, {U*KVT}, v{AV0}")], 10: [I(f"v_add_u32 v{AV1}, {U*KVT}, v{AV1}")],
                   14: [I(f"s_cmp_lt_u32 s41, {64//U}")]}
        if u % 2 == 1: exB[0] = [I("s_waitcnt lgkmcnt(0)")]
        out += blk(SA, PA, SB, PB, mfma32(vr(SB,16), vr(KR[s0],4), vr(QB,4), vr(CB,16)),
                   mfma32(vr(OB,16), vr(V1R[sm],4), vr(PB+4,4), vr(OB,16)),
                   mfma32(vr(OA,16), vr(V0R[s0],4), vr(PA,4), vr(OA,16)), exA)
        out += blk(SB, PB, SA, PA, mfma32(vr(SA,16), vr(KR[s1],4), vr(QA,4), vr(CA,16)),
                   mfma32(vr(OA,16), vr(V1R[s0],4), vr(PA+4,4), vr(OA,16)),
                   mfma32(vr(OB,16), vr(V0R[s0],4), vr(PB,4), vr(OB,16)), exB)
    return out

def k2_ids(p):
    p(f"""
    s_mov_b32 s24, s10
    s_and_b32 s25, s2, 7
    s_lshr_b32 s26, s2, 3
    s_lshr_b32 s27, s26, 3
    s_lshl_b32 s28, s25, 2
    s_add_u32 s27, s27, s28                ; head
    s_and_b32 s28, s26, 7                  ; qb
    """)
def gen_attention(p, st):
    U = VAR['U']
    k2_ids(p)
    p(f"""
    s_mul_i32 s30, s27, {KVH}
    s_add_u32 s30, s30, {KV}
    s_lshl_b32 s31, s27, 16
    s_lshl_b32 s32, s28, 3
    s_lshl_b32 s33, s24, 1
    s_add_u32 s32, s32, s33
    s_lshl_b32 s33, s32, 10
    s_add_u32 s31, s31, s33
    v_lshlrev_b32 v{GK}, 4, v1
    v_mov_b32 v{FL}, {LDS_FLAG}
    s_lshl_b32 s37, s24, 2
    v_add_u32 v{FL+1}, s37, v{FL}
    v_mov_b32 v{TM+1}, 1
    s_waitcnt vmcnt(0)
    ds_write_b32 v{FL+1}, v{TM+1} offset:112
    """)
    st(p, 8)
    p(f"""
    v_and_b32 v{TM}, 31, v1
    v_lshrrev_b32 v{TM+1}, 5, v1
    v_lshlrev_b32 v{TM+1}, 8, v{TM+1}
    v_lshl_add_u32 v{TM+1}, v{TM}, 4, v{TM+1}
    v_and_b32 v{TM+2}, 27, v{TM}
    v_cmp_eq_u32 vcc, 16, v{TM+2}
    v_mov_b32 v{TM+2}, 2064
    v_mov_b32 v{TM+3}, 2048
    v_cndmask_b32 v{TM+2}, v{TM+2}, v{TM+3}, vcc
    v_cmp_gt_u32 vcc, 16, v{TM}
    v_add_u32 v{GV0}, 1024, v{TM+1}
    v_add_u32 v{GV1}, 1536, v{TM+1}
    v_cndmask_b32 v{GV0}, v{TM+2}, v{GV0}, vcc
    v_cndmask_b32 v{GV1}, v{TM+2}, v{GV1}, vcc
    """)
    p("s_cmp_lg_u32 s24, 0\ns_cbranch_scc1 L_att_go")
    flag_wait(p, "L_att_ad", FL, 112, 1, TM, sleep=0)
    p(f"""
    v_mov_b32 v{TM}, s11
    buffer_store_dword v{TM}, off, s[12:15], s83 sc1
    s_lshr_b32 s34, s27, 2
    s_lshl_b32 s34, s34, 12
    s_add_u32 s34, s34, {PFL}
    v_and_b32 v{MA}, 31, v1
    v_lshlrev_b32 v{MA}, 7, v{MA}
    s_sleep {VAR.get('q0', 8)}
    """)
    poll(p, "L_att_p", 34, MA, None, TM, sleep=VAR.get('qsleep', 4))
    p(f"v_mov_b32 v{TM}, 1\nds_write_b32 v{FL}, v{TM} offset:96")
    p.label("L_att_go")
    spin1(p, "L_att_gw", FL, 96, 1, TM)
    st(p, 9)
    p(f"buffer_load_dwordx4 {vr(QA,4)}, v{GK}, s[12:15], s31 offen sc1")
    p(f"buffer_load_dwordx4 {vr(QB,4)}, v{GK}, s[12:15], s31 offen offset:1024 sc1")
    p(f"buffer_load_dwordx4 {vr(KR[0],4)}, v{GK}, s[12:15], s30 offen sc1")
    p(f"buffer_load_dwordx4 {vr(KR[1],4)}, v{GK}, s[12:15], s30 offen offset:{KVT} sc1")
    for t in range(2):
        p(f"buffer_load_dwordx4 {vr(V0R[t],4)}, v{GV0}, s[12:15], s30 offen offset:{t*KVT} sc1")
        p(f"buffer_load_dwordx4 {vr(V1R[t],4)}, v{GV1}, s[12:15], s30 offen offset:{t*KVT} sc1")
    p(f"""
    s_lshl_b32 s37, s24, 12
    s_add_u32 s38, s30, {KVT+1024}
    s_add_u32 s38, s38, s37
    s_add_u32 s37, s37, {IMG}
    """)
    for i in range(2):
        p("s_mov_b32 m0, s37")
        p("s_add_u32 s37, s37, 16384")
        for k in range(4 if i == 0 else 3):
            p(f"buffer_load_dwordx4 v{GK}, s[12:15], s38 offen offset:{k*1024} sc1 lds")
        p("s_add_u32 s38, s38, 16384")
    p(f"s_setprio {VAR['prio_att']}")
    p(f"v_mov_b32 v{TM}, 1\nds_write_b32 v{FL+1}, v{TM} offset:176")
    p(f"""
    v_mov_b32 v{AK}, v{GK}
    v_mov_b32 v{AV0}, v{GV0}
    v_mov_b32 v{AV1}, v{GV1}
    """)
    for r in list(range(OA, OA+32)) + list(range(PB+4, PB+6)) + list(range(V1R[3], V1R[3]+4)):
        p(f"v_mov_b32 v{r}, 0")
    p(f"s_waitcnt vmcnt(11)")
    p.add([mfma32(vr(SA,16), vr(KR[0],4), vr(QA,4), "0"), mfma32(vr(SB,16), vr(KR[0],4), vr(QB,4), "0"),
           mfma32(vr(CA,16), vr(KR[1],4), vr(QA,4), "0"), mfma32(vr(CB,16), vr(KR[1],4), vr(QB,4), "0")])
    max16(p, SA, MA, True); max16(p, SB, MB, True); max16(p, CA, MA, False); max16(p, CB, MB, False)
    p(f"""
    s_mov_b32 s40, {float_hex(VAR['margin'])}
    v_mov_b32 v{TM}, v{MA}
    v_mov_b32 v{TM+1}, v{MB}
    v_permlane32_swap_b32 v{TM}, v{MA}
    v_permlane32_swap_b32 v{TM+1}, v{MB}
    v_max_f32 v{MA}, v{MA}, v{TM}
    v_max_f32 v{MB}, v{MB}, v{TM+1}
    v_add_f32 v{MA}, s40, v{MA}
    v_add_f32 v{MB}, s40, v{MB}
    """)
    for r in range(16): p(f"v_sub_f32 v{CA+r}, 0, v{MA}")
    for r in range(12, 16): p(f"v_mov_b32 v{SB+r}, 0")
    p.add([mfma32(vr(SA,16), vr(KR[0],4), vr(QA,4), vr(CA,16))])
    for r in range(16): p(f"v_sub_f32 v{CB+r}, 0, v{MB}")
    p(f"s_waitcnt vmcnt(0)")
    p(f"v_mov_b32 v{TM}, 1\nds_write_b32 v{FL+1}, v{TM}")
    flag_wait(p, "L_att_f1", FL, 0, 1, TM)
    st(p, 1)
    p("s_mov_b32 s41, 0")
    p(".p2align 6")
    p.label("L_att_loop")
    p.add(att_loop_body(U))
    p("s_cbranch_scc1 L_att_loop")
    st(p, 2)
    if VAR.get('endprio'): p("s_setprio 3")
    p(f"v_cvt_pk_bf16_f32 v{PB+6}, v{SB+12}, v{SB+13}\nv_cvt_pk_bf16_f32 v{PB+7}, v{SB+14}, v{SB+15}")
    p(f"""
    s_mul_i32 s33, s32, {88*1024}
    s_lshl_b32 s34, s27, 10
    s_add_u32 s33, s33, s34
    s_add_u32 s33, s33, {A3}
    """)
    p.add([mfma32(vr(OB,16), vr(V1R[3],4), vr(PB+4,4), vr(OB,16))])
    p("s_waitcnt lgkmcnt(0)")
    p("s_mov_b32 s36, 0")
    p.label("L_att_chk")
    p(f"v_mul_f32 v{TM}, 0, v{OA+8}")
    for r in range(8): p(f"v_fmac_f32 v{TM}, 0, v{OA+r}")
    p(f"v_cmp_u_f32 vcc, v{TM}, v{TM}")
    p("s_cbranch_vccnz L_att_slow")
    p.label("L_att_fin")
    p(f"v_rcp_f32 v{MA}, v{OA+8}")
    p("s_cmp_lg_u32 s36, 0")
    for r in range(8): p(f"v_mul_f32 v{OA+r}, v{OA+r}, v{MA}")
    for k in range(4): p(f"v_cvt_pk_bf16_f32 v{PA+k}, v{OA+2*k}, v{OA+2*k+1}")
    for k in range(4): p(f"v_min_u32 v{PA+k}, -2, v{PA+k}")
    p(f"buffer_store_dwordx4 {vr(PA,4)}, v{GK}, s[12:15], s33 offen")
    p("s_cbranch_scc1 L_att_done")
    p(f"s_mov_b32 s36, 1\ns_add_u32 s33, s33, {88*1024}")
    for r in range(9): p(f"v_mov_b32 v{OA+r}, v{OB+r}")
    for r in range(4): p(f"v_mov_b32 v{QA+r}, v{QB+r}")
    p("s_branch L_att_chk")
    p.label("L_att_done")
    st(p, 3)
    p("s_endpgm")
    p.label("L_att_sync2")
    flag_wait(p, "L_att_f2", FL, 48, 1, TM)
    p("s_branch L_att_sync2_ret")
    p.label("L_att_slow")
    p(f"v_mov_b32 v{MA}, 0xff800000\ns_mov_b32 s41, 0\ns_mov_b32 s37, s30")
    p.label("L_att_sl1")
    p(f"buffer_load_dwordx4 {vr(KR[0],4)}, v{GK}, s[12:15], s37 offen sc1")
    p("s_waitcnt vmcnt(0)")
    p.add([mfma32(vr(SA,16), vr(KR[0],4), vr(QA,4), "0")])
    max16(p, SA, MA, False)
    p(f"s_add_u32 s37, s37, {KVT}\ns_add_u32 s41, s41, 1\ns_cmp_lt_u32 s41, 64\ns_cbranch_scc1 L_att_sl1")
    p(f"v_mov_b32 v{TM}, v{MA}\nv_permlane32_swap_b32 v{TM}, v{MA}\nv_max_f32 v{MA}, v{MA}, v{TM}")
    for r in range(16): p(f"v_sub_f32 v{CA+r}, 0, v{MA}\nv_mov_b32 v{OA+r}, 0")
    p("s_mov_b32 s41, 0\ns_mov_b32 s37, s30")
    p.label("L_att_sl2")
    p(f"buffer_load_dwordx4 {vr(KR[0],4)}, v{GK}, s[12:15], s37 offen sc1")
    p(f"buffer_load_dwordx4 {vr(V0R[0],4)}, v{GV0}, s[12:15], s37 offen sc1")
    p(f"buffer_load_dwordx4 {vr(V1R[0],4)}, v{GV1}, s[12:15], s37 offen sc1")
    p("s_waitcnt vmcnt(0)")
    p.add([mfma32(vr(SA,16), vr(KR[0],4), vr(QA,4), vr(CA,16))])
    for k in range(16): p(f"v_exp_f32 v{SA+k}, v{SA+k}")
    for k in range(8): p(f"v_cvt_pk_bf16_f32 v{PA+k}, v{SA+2*k}, v{SA+2*k+1}")
    p.add([mfma32(vr(OA,16), vr(V0R[0],4), vr(PA,4), vr(OA,16)), mfma32(vr(OA,16), vr(V1R[0],4), vr(PA+4,4), vr(OA,16))])
    p(f"s_add_u32 s37, s37, {KVT}\ns_add_u32 s41, s41, 1\ns_cmp_lt_u32 s41, 64\ns_cbranch_scc1 L_att_sl2")
    p("s_nop 15\ns_branch L_att_fin")

ACC = 4
NZF = 16
ZR = 132
WR = 196
VL = 244; VD = 245; VW = 247
GF = 251
G = 232
def acc(i, tt): return ACC + (i*2+tt)*16

def kv_rest(p, uniq):
    p(f"s_sub_u32 m0, s62, {16384-3072}\ns_sub_u32 s61, s63, {16384-3072}")
    p(f"buffer_load_dwordx4 v{VL}, s[12:15], s61 offen sc1 lds", tag="kv")
    for i in range(6):
        p("s_mov_b32 m0, s62")
        if i < 5: p("s_add_u32 s62, s62, 16384")
        else: p("s_cmp_eq_u32 s24, 3")
        for k in range(4):
            if i == 5 and k == 3: p(f"s_cbranch_scc1 L_g_kvdone{uniq}")
            p(f"buffer_load_dwordx4 v{VL}, s[12:15], s63 offen offset:{k*1024} sc1 lds", tag="kv")
        if i < 5: p("s_add_u32 s63, s63, 16384")
    p.label(f"L_g_kvdone{uniq}")

def flag_addr(p):
    p(f"""
    s_lshr_b32 s48, s26, 3
    s_lshl_b32 s47, s25, 2
    s_add_u32 s48, s48, s47
    s_lshl_b32 s48, s48, 7                 ; tb'*128
    s_lshl_b32 s47, s24, 5
    s_add_u32 s46, s48, s47
    s_mul_i32 s47, s24, 28
    s_add_u32 s48, s48, s47
    s_add_u32 s48, s48, {UFL-OFL}          ; u flags
    s_and_b32 s47, s26, 7
    s_lshl_b32 s47, s47, 7
    s_add_u32 s47, s47, {WFL-OFL}          ; W flags
    v_lshlrev_b32 v{G+5}, 2, v1
    v_mov_b32 v{G+6}, s48
    v_add_u32 v{G+7}, s48, v{G+5}
    v_cmp_gt_u32 vcc, 7, v1
    v_cndmask_b32 v{G+6}, v{G+6}, v{G+7}, vcc
    v_subrev_u32 v{G+5}, 128, v{G+5}
    v_add_u32 v{G+7}, s47, v{G+5}
    v_cmp_gt_u32 vcc, 64, v{G+5}
    v_cndmask_b32 v{G+6}, v{G+6}, v{G+7}, vcc
    v_subrev_u32 v{G+5}, 64, v{G+5}
    v_add_u32 v{G+7}, s46, v{G+5}
    v_cmp_gt_u32 vcc, 32, v{G+5}
    v_cndmask_b32 v{G+6}, v{G+6}, v{G+7}, vcc
    v_subrev_u32 v{G+5}, 32, v{G+5}
    v_add_u32 v{G+7}, s49, v{G+5}
    v_cmp_gt_u32 vcc, 8, v{G+5}
    v_cndmask_b32 v{G+6}, v{G+6}, v{G+7}, vcc
    s_mov_b32 s48, {OFL}
    """)
def gen_gemm(p, st, mid=None):
    k2_ids(p)
    p(f"""
    s_load_dwordx4 s[4:7], s[0:1], {KA_WSP}
    s_sub_u32 s24, s24, 4                  ; q = K quarter
    v_lshlrev_b32 v{VL}, 4, v1
    s_mul_i32 s63, s27, {KVH}
    s_lshl_b32 s62, s24, 12
    s_add_u32 s62, s62, 32768
    s_add_u32 s63, s63, s62
    s_add_u32 s63, s63, {KV + KVT + 1024}
    s_add_u32 s62, s62, {IMG}
    s_lshl_b32 s46, s24, 2
    s_add_u32 s46, s46, {LDS_FLAG}
    v_mov_b32 v{GF}, s46
    v_mov_b32 v0, 1
    v_mov_b32 v2, {LDS_FLAG}
    s_waitcnt lgkmcnt(0)
    ds_write_b32 v{GF}, v0 offset:160
    """)
    srd(p, 16, 4, 2048*2048*2); srd(p, 20, 6, 4096)
    flag_wait(p, "L_g_bd", 2, 160, 1, 4)
    flag_wait(p, "L_g_go", 2, 176, 1, 4, sleep=2)
    kv_rest(p, "a")
    p(f"""
    s_cmp_ge_u32 s26, 28
    s_cbranch_scc1 L_idle
    s_setprio 3
    s_mul_i32 s30, s26, 9363
    s_lshr_b32 s30, s30, 16                ; j/7
    s_mul_i32 s31, s30, 7
    s_sub_u32 s31, s26, s31                ; fb = j%7
    s_lshl_b32 s32, s25, 2
    s_add_u32 s30, s30, s32                ; tb
    s_lshl_b32 s33, s31, 19
    s_add_u32 s33, s33, {Z2F}
    s_lshl_b32 s34, s24, 17
    s_add_u32 s33, s33, s34
    s_lshl_b32 s56, s30, 18
    s_lshl_b32 s34, s24, 10
    s_add_u32 s56, s56, s34
    s_lshl_b32 s36, s24, 13
    s_add_u32 s36, s36, {LDS_STG}
    s_add_u32 s37, s36, 4096
    v_lshrrev_b32 v2, 3, v1
    v_lshrrev_b32 v3, 4, v1
    v_xor_b32 v3, v3, v1
    v_and_b32 v3, 7, v3
    v_lshlrev_b32 v3, 4, v3
    v_lshl_add_u32 v{VD}, v2, 12, v3
    v_xor_b32 v{VD+1}, 64, v{VD}
    v_add_u32 v{VD+1}, {8*4096-1024}, v{VD+1}
    """)
    for i in range(4):
        p(f"s_add_u32 s38, s24, {i}\ns_and_b32 s38, s38, 3\ns_lshl_b32 s38, s38, 10\ns_add_u32 s{52+i}, s33, s38")
    p(f"""
    s_lshl_b32 s38, s31, 12                ; (2fb)*16*128
    s_lshl_b32 s39, s24, 9
    s_add_u32 s39, s39, s38
    s_add_u32 s39, s39, {PFL+16}
    s_lshr_b32 s49, s24, 1
    s_lshl_b32 s49, s49, 11
    s_add_u32 s49, s49, s38
    s_lshr_b32 s38, s30, 1
    s_lshl_b32 s38, s38, 7
    s_add_u32 s49, s49, s38
    s_and_b32 s38, s30, 1
    s_lshl_b32 s38, s38, 3
    s_add_u32 s49, s49, s38
    s_add_u32 s49, s49, {PFL+32-OFL}
    v_and_b32 v4, 3, v1
    v_bfe_u32 v5, v1, 2, 1
    v_lshlrev_b32 v5, 11, v5
    v_lshl_add_u32 v4, v4, 7, v5
    v_bfe_u32 v5, v1, 3, 2
    v_lshl_add_u32 v4, v5, 2, v4
    """)
    def dma(b):
        out = []
        for i in range(8):
            if i % 4 == 0: out.append(I(f"s_mov_b32 m0, s{(66 if (b % 3 == 2 and b > 2) else 36) + i//4}"))
            if i % 2 == 0: out.append(I(f"s_add_u32 s57, s56, {(i//2)*16*4096 - (i%4)*1024}"))
            out.append(I(f"buffer_load_dwordx4 v{VD + i%2}, s[16:19], s57 offen offset:{(i%4)*1024} sc1 lds", tag=f"d{b}"))
        out.append(I("s_add_u32 s56, s56, 128"))
        return out
    def zload(n):
        i = n % 4
        return [I(f"buffer_load_dwordx4 {vr(ZR + (n%NZF)*4, 4)}, v{VL}, s[12:15], s{52+i} offen sc1", tag=f"z{n}"),
                I(f"s_add_u32 s{52+i}, s{52+i}, 4096")]
    p.add(dma(0))
    if VAR.get('ordb'):
        p.wait(vm="kv"); p(f"ds_write_b32 v{GF}, v0 offset:48")
        poll(p, "L_pz", 39, 4, None, 5, sleep=VAR.get('zsleep', 4))
        st(p, 9)
        if VAR.get('stop') == 1: p("s_endpgm")
        for n in range(16): p.add(zload(n))
        mid(p, "a")
    else:
        mid(p, "a", [W(vm="kv"), I(f"ds_write_b32 v{GF}, v0 offset:48")])
        p.wait(vm="kv"); p(f"ds_write_b32 v{GF}, v0 offset:48")
        poll(p, "L_pz", 39, 4, None, 5, sleep=VAR.get('zsleep', 4))
        p(f"v_mov_b32 v0, s11\nbuffer_store_dword v0, off, s[12:15], s89 sc1")
        st(p, 9)
        if VAR.get('stop') == 1: p("s_endpgm")
        for n in range(16): p.add(zload(n))
    p(f"v_and_b32 v2, 31, v1")
    bitswap23(p, 2, 2, 3)
    p(f"""
    v_lshrrev_b32 v3, 1, v2
    v_lshrrev_b32 v{VW}, 5, v1
    v_xor_b32 v3, v3, v{VW}
    v_and_b32 v3, 7, v3
    v_lshlrev_b32 v3, 4, v3
    v_lshl_add_u32 v{VW}, v2, 7, v3
    v_add_u32 v{VW}, s36, v{VW}
    v_xor_b32 v{VW+1}, 32, v{VW}
    v_xor_b32 v{VW+2}, 64, v{VW}
    v_xor_b32 v{VW+3}, 96, v{VW}
    """)
    if VAR['fuse3']:
        flag_addr(p); p(f"v_mov_b32 v3, v{G+6}")
    p(f"s_setprio {VAR['prio_g']}")
    st(p, 1)
    wr = lambda g, tt: WR + ((g % 6)*2 + tt)*4
    def wread(b):
        return [I(f"ds_read_b128 {vr(wr(4*b+u, tt), 4)}, v{VW+u} offset:{tt*4096}", tag=f"w{b}", needs=[f"d{b}"]) for u in range(4) for tt in range(2)]
    def block_burst(b, first=False, dma_on=True, z_on=True, w_on=True):
        o = []
        for u in range(4):
            g = 4*b+u
            o.append(W(vm=[f"z{4*g+3}"]))
            for i in range(4):
                n = 4*g+i
                for tt in range(2):
                    c = "0" if (first and u == 0) else vr(acc(i,tt),16)
                    o.append(mfma32(vr(acc(i,tt),16), vr(ZR+(n%NZF)*4,4), vr(wr(g,tt),4), c))
                if u == 2 and i == 1 and w_on:
                    o.append(W(lg=f"w{b+1}"))
                    if dma_on: o += dma(b+2)
            if u == 1 and w_on: o += [W(vm=f"d{b+1}")] + wread(b+1)
            if z_on:
                for i in range(4): o += zload(4*g+i+NZF)
        return o
    def block(b, first=False, dma_on=True, z_on=True, w_on=True):
        if VAR.get('burst'): return block_burst(b, first, dma_on, z_on, w_on)
        o = []
        dm = []
        if w_on and dma_on:
            cur = []
            for x in dma(b+2):
                cur.append(x)
                if x.kind == "vmem": dm.append(cur); cur = []
            dm[-1] += cur
        wrd = wread(b+1) if w_on else []
        for u in range(4):
            g = 4*b+u
            for i in range(4):
                n = 4*g+i
                for tt in range(2):
                    if tt == 0: o.append(W(vm=[f"z{n}"]))
                    c = "0" if (first and u == 0) else vr(acc(i,tt),16)
                    o.append(mfma32(vr(acc(i,tt),16), vr(ZR+(n%NZF)*4,4), vr(wr(g,tt),4), c))
                    if VAR.get('pace'): o.append(I(f"s_nop {VAR['pace']}"))
                    if tt == 1 and z_on: o += zload(n+NZF)
                    if tt == 0:
                        if u == 2 and w_on:
                            if i == 0: o.append(W(vm=f"d{b+1}"))
                            o += wrd[2*i:2*i+2]
                        if u == 3 and dm:
                            if i == 0: o.append(W(lg=f"w{b+1}"))
                            o += dm.pop(0) + dm.pop(0)
                        elif u == 3 and i == 0 and w_on: o.append(W(lg=f"w{b+1}"))
        return o
    p.add(wread(0)); p.wait(lg="w0"); p.add(dma(1))
    p.add(block(0, first=True))
    p("s_mov_b32 s60, 0")
    hist = dma(0) + sum([zload(n) for n in range(16)], []) + dma(1) + block(0) + block(1) + block(2) + block(3) + [I("L_mark:")] + block(4) + block(5) + block(6)
    full = resolve_waits(hist)
    lb = full[next(i for i, x in enumerate(full) if x.kind == "label" and x.op == "L_mark")+1:]
    first_pass = resolve_waits(dma(0) + sum([zload(n) for n in range(16)], []) + dma(1) + block(0) + [I("L_mark:")] + block(1) + block(2) + block(3))
    fp = first_pass[next(i for i, x in enumerate(first_pass) if x.kind == "label" and x.op == "L_mark")+1:]
    assert len(fp) == len(lb)
    merged = []
    for x, y in zip(fp, lb):
        if x.kind == "wait":
            vm = min(v for v in (x.vm, y.vm) if v is not None) if (x.vm is not None or y.vm is not None) else None
            lg = min(v for v in (x.lg, y.lg) if v is not None) if (x.lg is not None or y.lg is not None) else None
            merged.append(I("s_waitcnt " + " ".join(([f"vmcnt({vm})"] if vm is not None else []) + ([f"lgkmcnt({lg})"] if lg is not None else []))))
        else:
            assert x.text == y.text, (x.text, y.text)
            merged.append(y)
    p.label("L_g_loop")
    p("s_cmp_eq_u32 s60, 1\ns_cselect_b32 s66, 0x30000, s36\ns_cselect_b32 s67, 0x30000, s37")
    p.add(merged)
    p("s_add_u32 s60, s60, 1\ns_cmp_lt_u32 s60, 2\ns_cbranch_scc1 L_g_loop")
    if VAR['fuse3']: p(f"s_mov_b32 s48, {OFL}"); p(f"buffer_load_dword v0, v3, s[12:15], s48 offen sc1", tag="fl")
    p.add(block(7, dma_on=False, z_on=False, w_on=False))
    st(p, 2)
    if VAR.get('stop') == 2: p("s_endpgm")
    p(f"s_setprio {VAR.get('prio_e', 3)}")
    p(f"""
    s_lshl_b32 s38, s30, 1
    s_mul_i32 s39, s38, {56*1024}
    s_lshl_b32 s40, s31, 2
    s_add_u32 s40, s40, s24
    s_lshl_b32 s41, s40, 11
    s_add_u32 s39, s39, s41
    s_add_u32 s39, s39, {Z1F}
    s_add_u32 s42, s39, {56*1024}
    s_mul_i32 s64, s38, {88*1024}
    s_add_u32 s64, s64, s41
    s_add_u32 s64, s64, {A3 + 32*1024}
    s_add_u32 s65, s64, {88*1024}
    s_lshl_b32 s45, s30, 7
    v_lshlrev_b32 v2, 1, v2
    """)
    Z = ZR
    p(f"v_mov_b32 v{G+1}, v{GF}")
    if VAR['fuse3']:
        p.wait(vm="fl")
        p("v_cmp_ne_u32 vcc, s11, v0\ns_cbranch_vccz L_g_fl")
        poll(p, "L_p00", 48, 3, None, 0, sleep=8)
        p.label("L_g_fl")
    p(f"buffer_load_dwordx4 {vr(Z,4)}, v{VL}, s[12:15], s39 offen sc1", tag="z1")
    p(f"buffer_load_dwordx4 {vr(Z+4,4)}, v{VL}, s[12:15], s39 offen offset:1024 sc1", tag="z1")
    p(f"buffer_load_dwordx4 {vr(Z+8,4)}, v{VL}, s[12:15], s42 offen sc1", tag="z1")
    p(f"buffer_load_dwordx4 {vr(Z+12,4)}, v{VL}, s[12:15], s42 offen offset:1024 sc1", tag="z1")
    p(f"buffer_load_ushort v{Z+16}, v2, s[20:23], s45 offen sc1", tag="z1")
    p(f"buffer_load_ushort v{Z+17}, v2, s[20:23], s45 offen offset:64 sc1", tag="z1")
    if VAR['fuse3']:
        g2_scalars(p)
        w_loads(p, 0, 10)
    p(f"v_add_u32 v{G}, s36, v{VL}\nv_mov_b32 v{G+2}, {LDS_FLAG}\ns_lshl_b32 s47, s24, 14\ns_add_u32 s47, s47, {IMG}\nv_add_u32 v{G+3}, s47, v{VL}")
    for k in range(8): p(f"ds_write_b128 v{G}, {vr(acc(1,0)+4*k, 4)} offset:{k*1024}")
    flag_wait(p, "L_g_prog", G+2, 80, 4, G+4)
    for r in (2, 3):
        for k in range(8): p(f"ds_write_b128 v{G+3}, {vr(acc(r,0)+4*k, 4)} offset:{(r-2)*8192 + k*1024}")
    for r in range(1, 4):
        p(f"s_add_u32 s47, s24, {4-r}\ns_and_b32 s47, s47, 3")
        if r == 1: p(f"s_lshl_b32 s47, s47, 13\ns_add_u32 s47, s47, {LDS_STG}\nv_add_u32 v{G}, s47, v{VL}")
        else: p(f"s_lshl_b32 s47, s47, 14\ns_add_u32 s47, s47, {(r-2)*8192 + IMG}\nv_add_u32 v{2 if r == 2 else 3}, s47, v{VL}")
    p(f"v_mov_b32 v{G+3}, 1\ns_waitcnt lgkmcnt(0)\nds_write_b32 v{G+1}, v{G+3} offset:16")
    flag_wait(p, "L_g_dat", G+2, 16, 1, G+4, sleep=0)
    for r in range(1, 4):
        for k in range(8):
            p(f"ds_read_b128 {vr(acc(r,0)+4*k,4)}, v{(G, 2, 3)[r-1]} offset:{k*1024}", tag=f"r{r}_{k}")
        if r > 1:
            for k in range(8):
                p.wait(lg=f"r{r-1}_{k}")
                for e in range(4): p(f"v_add_f32 v{acc(0,0)+4*k+e}, v{acc(0,0)+4*k+e}, v{acc(r-1,0)+4*k+e}")
    for k in range(8):
        p.wait(lg=f"r3_{k}")
        for e in range(4): p(f"v_add_f32 v{acc(0,0)+4*k+e}, v{acc(0,0)+4*k+e}, v{acc(3,0)+4*k+e}")
    p.wait(vm="z1")
    T = acc(1, 0)
    p(f"v_lshlrev_b32 v{Z+16}, 16, v{Z+16}\nv_lshlrev_b32 v{Z+17}, 16, v{Z+17}")
    for tt in range(2):
        a = acc(0, tt)
        for r in range(16): p(f"v_add_f32 v{a+r}, v{a+r}, v{Z+16+tt}")
        for d in range(8):
            z = Z + tt*8 + d
            p(f"v_lshlrev_b32 v{T}, 16, v{z}\nv_and_b32 v{T+1}, 0xffff0000, v{z}")
            p(f"v_mul_f32 v{a+2*d}, v{a+2*d}, v{T}\nv_mul_f32 v{a+2*d+1}, v{a+2*d+1}, v{T+1}")
            p(f"v_cvt_pk_bf16_f32 v{T+8+tt*8+d}, v{a+2*d}, v{a+2*d+1}")
        for d in (range(8) if VAR.get('fullver', 1) else (0, 4)): p(f"v_min_u32 v{T+8+tt*8+d}, -2, v{T+8+tt*8+d}")
        so = 64 + tt
        p(f"buffer_store_dwordx4 {vr(T+8+tt*8,4)}, v{VL}, s[12:15], s{so} offen")
        p(f"buffer_store_dwordx4 {vr(T+12+tt*8,4)}, v{VL}, s[12:15], s{so} offen offset:1024")
    if VAR.get('pf3'):
        p(f"s_lshl_b32 s38, s26, 2\ns_add_u32 s38, s38, s24\ns_mul_i32 s38, s38, 16384\ns_add_u32 s38, s38, {W3F}\nv_lshlrev_b32 v2, 7, v1")
        p(f"buffer_load_dword v3, v2, s[12:15], s38 offen\ns_add_u32 s38, s38, 8192\nbuffer_load_dword v3, v2, s[12:15], s38 offen")
    st(p, 3)
    if VAR['fuse3']:
        if VAR.get('stop') == 3: p("s_endpgm")
        p("s_branch L_g2")
    else: p("s_endpgm")
    p.label("L_idle")
    p.wait(vm="kv"); p(f"s_waitcnt vmcnt(0)\nds_write_b32 v{GF}, v0 offset:48")
    mid(p, "b")
    p(f"""
    s_load_dwordx2 s[36:37], s[0:1], {KA_WO}
    s_load_dwordx2 s[38:39], s[0:1], {KA_WOUT}
    s_lshl_b32 s34, s25, 2
    s_add_u32 s34, s34, s26
    s_sub_u32 s34, s34, 28                      ; L
    s_mov_b32 s54, {896*1024}
    v_lshrrev_b32 v2, 2, v1
    v_and_b32 v3, 3, v1
    v_lshlrev_b32 v3, 4, v3
    v_lshl_add_u32 v2, v2, 10, v3
    s_waitcnt lgkmcnt(0)
    s_cmp_lt_u32 s34, 16
    s_cselect_b32 s52, s36, s38
    s_cselect_b32 s53, s37, s39
    s_cselect_b32 s54, {512*1024}, s54
    s_cselect_b32 s35, 8, 14
    s_cselect_b32 s67, 0, {32*1024}
    s_mov_b32 s55, 0x20000
    s_and_b32 s34, s34, 15
    s_mul_i32 s68, s24, s35
    s_lshl_b32 s69, s68, 14
    s_lshl_b32 s60, s34, 6
    s_add_u32 s69, s69, s60
    s_mul_i32 s60, s34, {88*1024}
    s_lshl_b32 s68, s68, 10
    s_add_u32 s60, s60, s68
    s_add_u32 s60, s60, s67
    s_add_u32 s60, s60, {W3F}
    s_lshl_b32 s61, s24, 13
    s_add_u32 s61, s61, {LDS_STG}
    """)
    def w3_dma(n):
        for k in range(n):
            p(f"s_add_u32 m0, s61, {k*1024}\ns_nop 0\nbuffer_load_dwordx4 v2, s[52:55], s69 offen lds\ns_add_u32 s69, s69, 16384")
    def w3_out(n):
        for k in range(n):
            p(f"ds_read_b64_tr_b16 v[{8+4*k}:{9+4*k}], v3 offset:{k*1024}\nds_read_b64_tr_b16 v[{10+4*k}:{11+4*k}], v3 offset:{k*1024+256}")
            if k % 4 == 3: p("s_waitcnt lgkmcnt(0)")
        p("s_waitcnt lgkmcnt(0)")
        for k in range(n):
            p(f"buffer_store_dwordx4 v[{8+4*k}:{11+4*k}], v{VL}, s[12:15], s60 offen\ns_add_u32 s60, s60, 1024")
    p(f"v_mov_b32 v5, s11\ns_waitcnt vmcnt(0)\nbuffer_store_dword v5, off, s[12:15], s89 sc1")
    w3_dma(8)
    NP = 8 if VAR.get('ipf', 1) else 0
    if NP:
        p(f"""
        s_sub_u32 s36, s26, 28
        s_lshl_b32 s36, s36, 2
        s_add_u32 s36, s36, s24                 ; wave16
        v_lshlrev_b32 v5, 12, v1
        s_lshl_b32 s56, s25, 20
        s_and_b32 s37, s36, 3
        s_lshl_b32 s37, s37, 18
        s_add_u32 s56, s56, s37
        s_lshr_b32 s37, s36, 2
        s_lshl_b32 s37, s37, 10
        s_add_u32 s56, s56, s37
        """)
        for g in range(8): p(f"buffer_load_dword v6, v5, s[16:19], s56 offen offset:{g*128}")
    p(f"""
    v_lshrrev_b32 v4, 5, v1
    v_lshlrev_b32 v3, 9, v4
    v_bfe_u32 v4, v1, 2, 2
    v_lshl_add_u32 v3, v4, 6, v3
    v_bfe_u32 v4, v1, 4, 1
    v_lshl_add_u32 v3, v4, 5, v3
    v_and_b32 v4, 1, v1
    v_lshl_add_u32 v3, v4, 4, v3
    v_bfe_u32 v4, v1, 1, 1
    v_lshl_add_u32 v3, v4, 3, v3
    v_add_u32 v3, s61, v3
    s_waitcnt vmcnt({NP})
    """)
    w3_out(8)
    p("s_cmp_eq_u32 s35, 8\ns_cbranch_scc1 L_w3done")
    w3_dma(6)
    p("s_waitcnt vmcnt(0)")
    w3_out(6)
    p.label("L_w3done")
    if not VAR['fuse3']:
        p("s_endpgm"); return
    p(f"""
    s_lshr_b32 s33, s34, 1
    s_lshl_b32 s33, s33, 7                      ; (nt>>1)*128
    s_and_b32 s34, s34, 1
    s_lshl_b32 s34, s34, 4
    s_add_u32 s33, s33, s34
    s_lshr_b32 s34, s67, 10                     ; 0 or 32
    s_add_u32 s33, s33, s34
    s_lshl_b32 s34, s24, 2
    s_add_u32 s33, s33, s34
    s_add_u32 s33, s33, {WFL}
    v_mov_b32 v0, s11
    s_waitcnt vmcnt(0)
    buffer_store_dword v0, off, s[12:15], s33 sc1
    s_add_u32 s49, s33, {-OFL & 0xffffffff:#x}
    s_and_b32 s49, s49, -64
    """)
    flag_addr(p)
    if VAR.get('stop'): p("s_endpgm")
    p.label("L_g2w")
    p(f"s_mov_b32 s48, {OFL}")
    poll(p, "L_p0", 48, G+6, None, G+5, sleep=32)
    gen_g2(p, st)


FA = 4
def FWr(k): return 152 + 4*k if k < 20 else 68 + 4*(k-20)
def FRr(k): return 100 + 4*k if k < 13 else 232 + 4*(k-13)
FX = 84
FXU = 152
FL_ = 244; FO = 245; FT = 246
def poll(p, name, soff, voff, mask_hi_lo, tmp, bad=0, sleep=None):
    p(f"s_mov_b32 s47, 0")
    p.label(name)
    p(f"buffer_load_dword v{tmp}, v{voff}, s[12:15], s{soff} offen sc1\ns_add_u32 s47, s47, 1\ns_waitcnt vmcnt(0)")
    p(f"{'v_cmp_eq_u32 vcc, -1' if bad == -1 else 'v_cmp_ne_u32 vcc, s11'}, v{tmp}\ns_cbranch_vccz {name}_ok\ns_cmp_gt_u32 s47, 0x40000\ns_cbranch_scc1 {name}_ok\ns_sleep {sleep or VAR.get('psleep', 16)}\ns_branch {name}")
    p.label(name + "_ok")
def g2_scalars(p):
    p(f"""
    s_load_dwordx2 s[6:7], s[0:1], {KA_X}
    s_load_dwordx2 s[8:9], s[0:1], {KA_OUT}
    s_lshr_b32 s27, s26, 3
    s_lshl_b32 s28, s25, 2
    s_add_u32 s27, s27, s28                ; tb
    s_and_b32 s28, s26, 7                  ; nb
    s_and_b32 s29, s24, 1
    s_lshr_b32 s30, s24, 1
    s_lshl_b32 s32, s27, 1
    s_add_u32 s33, s32, s29
    s_xor_b32 s34, s33, 1
    s_lshl_b32 s32, s28, 1
    s_add_u32 s35, s32, s30
    s_xor_b32 s37, s35, 1
    s_mul_i32 s40, s33, {88*1024}
    s_mul_i32 s41, s34, {88*1024}
    s_mul_i32 s42, s35, {88*1024}
    s_mul_i32 s43, s37, {88*1024}
    s_add_u32 s40, s40, {A3}
    s_add_u32 s41, s41, {A3}
    s_add_u32 s42, s42, {W3F}
    s_add_u32 s43, s43, {W3F}
    s_mul_i32 s31, s24, {14*1024}
    s_add_u32 s31, s31, {32*1024}
    s_lshl_b32 s32, s24, 13
    s_lshl_b32 s44, s33, 15
    s_lshl_b32 s45, s35, 6
    s_add_u32 s44, s44, s45
    s_mov_b32 s49, 0
    s_waitcnt lgkmcnt(0)
    """)
def Wu(s_, i): return 152 + 4*(((s_ if s_ < 10 else s_-10))*2 + i)
def Wo(k, i): return (152 + 4*((k+4)*2 + i)) if k < 6 else (68 + 4*((k-6)*2 + i))
def Ur(s_, i):
    n = (s_ % 12)*2 + i
    return FRr(n) if n < 16 else 68 + 4*(n-16)
def w_loads(p, s0, s1, tag=None):
    for s_ in range(s0, s1):
        for i in range(2):
            if s_ == s0 or s_ % 4 == 0: p(f"s_add_u32 s{54+i}, s{42+i}, s31\ns_add_u32 s{54+i}, s{54+i}, {(s_//4)*4096}")
            p(f"buffer_load_dwordx4 {vr(Wu(s_, i),4)}, v{FL_}, s[12:15], s{54+i} offen offset:{(s_%4)*1024} sc1", tag=tag)
def gen_g2(p, st):
    p("s_setprio 3")
    g2_scalars(p)
    p.label("L_g2_redo")
    w_loads(p, 0, 10)
    p.label("L_g2")
    for i in range(2): p(f"s_add_u32 s{52+i}, s{40+i}, s31")
    for i in range(4): p(f"s_add_u32 s{56+i}, s{40+i}, s32")
    p(f"""
    s_min_u32 s46, s52, s53
    s_min_u32 s45, s56, s57
    v_lshrrev_b32 v2, 1, v1
    v_min_u32 v{FT+2}, 13, v2
    v_min_u32 v{FT+1}, 7, v2
    v_and_b32 v3, 1, v1
    v_mul_u32_u24 v3, {88*1024}, v3
    v_add_u32 v3, 1008, v3
    v_lshl_add_u32 v{FT+2}, v{FT+2}, 10, v3
    v_lshl_add_u32 v{FT+1}, v{FT+1}, 10, v3
    v_and_b32 v2, 31, v1
    """)
    bitswap23(p, 2, 2, 3)
    p(f"v_lshrrev_b32 v3, 5, v1\nv_lshlrev_b32 v3, 4, v3\nv_lshl_add_u32 v{FO}, v2, 10, v3\nv_mov_b32 v{FT+5}, 0")
    srd(p, 16, 6, 2048*1024); srd(p, 20, 8, 2048*1024)
    poll(p, "L_p1", 46, FT+2, None, FT+4, bad=-1)
    st(p, 4)
    p(f"s_setprio {VAR.get('prio_u', 3)}")
    NR = VAR.get('nr', 8)
    def ld(s):
        o = []
        if s and s % 4 == 0: o += [I(f"s_add_u32 s{52+i}, s{52+i}, 4096") for i in range(2)]
        for i in range(2):
            o.append(I(f"buffer_load_dwordx4 {vr(Ur(s, i),4)}, v{FL_}, s[12:15], s{52+i} offen offset:{(s%4)*1024} sc1", tag=f"g{s}"))
        return o
    def wo_ld(k):
        for i in range(2):
            p(f"s_add_u32 s47, s{58+i}, {(k//4)*4096}")
            p(f"buffer_load_dwordx4 {vr(Wo(k, i),4)}, v{FL_}, s[12:15], s47 offen offset:{(k%4)*1024} sc1", tag="wo")
    for s_ in range(NR): p.add(ld(s_))
    for s_ in range(14):
        p.wait(vm=[f"g{s_}", f"wu{s_}"])
        for n_, (a, b) in enumerate(((0,0), (0,1), (1,0), (1,1))):
            d = vr(FA + (a*2+b)*16, 16)
            p.add([mfma32(d, vr(Wu(s_, a),4), vr(Ur(s_, b),4), "0" if s_ == 0 else d)])
            r0 = Ur(s_, n_//2) + 2*(n_%2)
            if VAR.get('fullver', 1): p(f"v_max3_u32 v{FT+5}, v{FT+5}, v{r0}, v{r0+1}")
            elif n_ == 0: p(f"v_max3_u32 v{FT+5}, v{FT+5}, v{Ur(s_,0)}, v{Ur(s_,1)}")
        if s_+NR < 14: p.add(ld(s_+NR))
        if s_ < 4: w_loads(p, 10+s_, 11+s_, tag=f"wu{10+s_}")
        elif s_ < 12: wo_ld(s_-4)
    p(f"buffer_load_dwordx4 {vr(FX,4)}, v{FO}, s[16:19], s44 offen", tag="x")
    p(f"buffer_load_dwordx4 {vr(FX+4,4)}, v{FO}, s[16:19], s44 offen offset:32", tag="x")
    p(f"s_setprio 3\nv_cmp_eq_u32 vcc, -1, v{FT+5}\ns_cbranch_vccnz L_g2_again")
    p.label("L_g2_go")
    p.wait(vm="x")
    for d_ in range(7, -1, -1):
        p(f"v_and_b32 v{FXU+2*d_+1}, 0xffff0000, v{FX+d_}\nv_lshlrev_b32 v{FXU+2*d_}, 16, v{FX+d_}")
    st(p, 5)
    p("s_barrier")
    p("s_add_u32 s58, s56, 4096\ns_add_u32 s59, s57, 4096\ns_mov_b32 s49, 0")
    if VAR.get('direct', 0): p("s_branch L_p3b")
    p.label("L_p3")
    poll(p, "L_p2", 45, FT+1, None, FT+4, bad=-1, sleep=VAR.get('p3sleep', 4))
    p.label("L_p3b")
    for s_ in range(8):
        for i in range(2):
            p(f"buffer_load_dwordx4 {vr(FRr(s_*2+i),4)}, v{FL_}, s[12:15], s{56+i+2*(s_//4)} offen offset:{(s_%4)*1024} sc1", tag=f"o{s_}")
    p(f"v_mov_b32 v{FT+4}, 0\ns_add_u32 s49, s49, 1")
    for s_ in range(8):
        p.wait(vm=f"o{s_}")
        for k in range(0, 8, 2): p(f"v_max3_u32 v{FT+4}, v{FT+4}, v{FRr(2*s_+k//4)+k%4}, v{FRr(2*s_+k//4)+k%4+1}")
    p(f"v_cmp_eq_u32 vcc, -1, v{FT+4}\ns_cbranch_vccz L_p3_ok\ns_cmp_lt_u32 s49, 64\ns_cbranch_scc1 L_p3")
    p.label("L_p3_ok")
    st(p, 6)
    for i in range(1, 4):
        p(f"s_xor_b32 s46, s24, {i}\ns_mul_i32 s46, s46, 12288\ns_add_u32 s46, s46, {(i-1)*4096 + IMG}\nv_add_u32 v{FT+i}, s46, v{FL_}")
    p(f"s_mul_i32 s46, s24, 12288\ns_add_u32 s46, s46, {IMG}\nv_add_u32 v{FT}, s46, v{FL_}")
    for s_ in range(8):
        order = ((0,0), (0,1), (1,0), (1,1)) if s_ < 7 else ((0,1), (1,0), (1,1), (0,0))
        for (a, b) in order:
            d = vr(FA + (a*2+b)*16, 16)
            p.add([mfma32(d, vr(Wo(s_, a),4), vr(FRr(s_*2+b),4), d)])
    for i in range(1, 4):
        for k in range(4): p(f"ds_write_b128 v{FT+i}, {vr(FA+i*16+4*k,4)} offset:{k*1024}")
    for r in range(16): p(f"v_add_f32 v{FA+r}, v{FA+r}, v{FXU+r}")
    p("s_waitcnt lgkmcnt(0)\ns_barrier")
    for k in range(12): p(f"ds_read_b128 {vr(FA+16+4*k,4)}, v{FT} offset:{k*1024}", tag=f"r{k}")
    for k in range(12):
        p.wait(lg=f"r{k}")
        for e in range(4): p(f"v_add_f32 v{FA+(4*k+e)%16}, v{FA+(4*k+e)%16}, v{FA+16+4*k+e}")
    for d in range(8): p(f"v_cvt_pk_bf16_f32 v{FX+d}, v{FA+2*d}, v{FA+2*d+1}")
    p(f"buffer_store_dwordx4 {vr(FX,4)}, v{FO}, s[20:23], s44 offen")
    p(f"buffer_store_dwordx4 {vr(FX+4,4)}, v{FO}, s[20:23], s44 offen offset:32")
    st(p, 7)
    if st.on and VAR.get('dbg') is not None:
        D = VAR['dbg']
        p(f"s_cmp_lg_u32 s2, {D}\ns_cbranch_scc1 L_end\ns_cmp_lg_u32 s24, 0\ns_cbranch_scc1 L_end")
        p(f"s_load_dwordx2 s[6:7], s[0:1], {KA_DBG}\ns_waitcnt vmcnt(0)")
        sel = [(0,0,15),(0,0,1),(0,0,5),(0,0,7),(0,0,9),(1,0,15),(1,0,1),(1,0,2),(1,0,3),(1,4,1),(1,4,2),(1,4,3),(1,4,4),(1,4,5),(1,4,6),(1,4,7)]
        for i, (k, w, sl) in enumerate(sel):
            off = STAMP + k*0x80000 + (D*16 + w)*128 + sl*8 + 4
            p(f"v_mov_b32 v3, {off:#x}\nbuffer_load_dword v{100+i}, v3, s[12:15], 0 offen sc1")
        p("s_waitcnt vmcnt(0) lgkmcnt(0)")
        srd(p, 16, 6, 256)
        for i in range(16):
            p(f"v_sub_u32 v2, v{100+i}, v100\nbuffer_store_dword v2, off, s[16:19], 0 offset:{4*i}")
    p("s_endpgm")
    p.label("L_g2_again")
    p("s_add_u32 s49, s49, 1\ns_cmp_gt_u32 s49, 64\ns_cbranch_scc1 L_g2_go\ns_waitcnt vmcnt(0)\ns_branch L_g2_redo")


def placeholder_addrs(p, m):
    p(f"""
    s_and_b32 s34, s2, 7                   ; xcd
    s_lshr_b32 s35, s2, 3                  ; j
    s_lshr_b32 s53, s35, 3
    s_lshl_b32 s54, s34, 2
    s_add_u32 s53, s53, s54                ; head
    s_and_b32 s36, s35, 7
    s_lshl_b32 s36, s36, 2
    s_add_u32 s36, s36, s{m}
    s_lshl_b32 s37, s36, 7
    s_mul_i32 s36, s36, {2*88*1024}
    s_lshl_b32 s38, s53, 10
    s_add_u32 s36, s36, s38
    s_add_u32 s36, s36, {A3}
    s_lshl_b32 s53, s53, 2
    s_add_u32 s53, s53, s37
    s_add_u32 s53, s53, {OFL}
    s_add_u32 s37, s36, {88*1024}
    s_mul_i32 s38, s35, 9363
    s_lshr_b32 s38, s38, 16                ; j/7
    s_mul_i32 s39, s38, 7
    s_sub_u32 s39, s35, s39                ; fb
    s_add_u32 s38, s38, s54
    s_lshl_b32 s39, s39, 2
    s_add_u32 s39, s39, s{m}               ; ft
    s_lshl_b32 s54, s38, 7
    s_lshl_b32 s34, s39, 2
    s_add_u32 s54, s54, s34
    s_add_u32 s54, s54, {UFL}
    s_mul_i32 s38, s38, {2*88*1024}
    s_lshl_b32 s39, s39, 11
    s_add_u32 s38, s38, s39
    s_add_u32 s38, s38, {A3 + 32*1024}
    s_cmp_lt_u32 s35, 28
    s_cselect_b32 s38, s38, 0x7ff00000
    s_cselect_b32 s54, s54, 0x7ff00000
    s_add_u32 s39, s38, {88*1024}
    """)
```

```python
from common import *
import f2
def ar(b, n): return vr(128+b, n)
import struct, math
def fh(f): return hex(struct.unpack("<I", struct.pack("<f", f))[0])
K1_LDS = 163840
RING = 65536
BIAS = 3072
CNT = 3072
C0 = -2.0*math.sqrt(2.0/math.pi)*1.4426950408889634
A0, A1, A2, A3_ = 4, 20, 36, 52
LA = 2
WB = 68
CSF = 92
CSA = 100
T = 68
WC = 92; STQ = 96
SEL = 108; XC = 112
R1, RI, C0R, C1R = 116, 117, 118, 119
VXD = 116
VXR = 112
VL, VPI, VQ, VB = 120, 121, 122, 123
VA = 124
RR = 52
SX, Q0, Q1 = 52, 56, 60
VAR = dict(prio=True, per=1, rot=6, cpf=40960)
WI, WQ, XS = "s[16:19]", "s[20:23]", "s[24:27]"
SXE, SIE, SQE = 60, 64, 96

def dma1(lds_s, lds_c, sr, vo, sb, se, c, tag):
    return [I(f"s_add_u32 m0, s{lds_s}, {lds_c}"), I(f"s_add_u32 s69, s{sb}, s{se}"),
            I(f"buffer_load_dwordx4 v{vo}, {sr}, s69 offen offset:{c} lds" if False else f"s_add_u32 s69, s69, {c}"),
            I(f"buffer_load_dwordx4 v{vo}, {sr}, s69 offen lds", tag=tag)]
def E_addr(ks): return RING + ((ks//8)*24 + (ks%8)*3)*1024
def Q_addr(ks): return RING + ks*2048
def Z_addr(ks): return (131072 + ks*2048) if ks < 16 else (32768 + (ks-16)*2048)
CSO = 256; RAW = 2048; TBL = 2560
SCR2 = 65536
VQP = 0
def dma_E(e):
    b = RING + e*24*1024
    return [dma1(58, b, WI, VPI, 80, SIE+e, 1792, f"E{e}"), dma1(58, b+1024, WI, VPI, 80, SIE+e, 1792+8*3584, f"E{e}"),
            dma1(58, b+2048, WQ, VQ, 81, SQE+e, 2048, f"E{e}")]
def dma_Q(e):
    b = RING + e*16384
    return [dma1(55, b, WQ, VQP, 82, SQE+e, 0, f"Q{e}"), dma1(55, b+1024, WQ, VQP, 82, SQE+e, 8*3072, f"Q{e}")]
def dma_Z(e):
    b = (131072 + e*16384) if e < 2 else (32768 + (e-2)*16384)
    return [dma1(55, b, WI, VPI, 80, SIE+e, 0, "Za"), dma1(55, b+1024, WI, VPI, 80, SIE+e, 8*3584, "Za")]
def x_dma(e):
    return [[I(f"s_add_u32 m0, s59, {(2*e % 4)*4096 + i*1024}"), I(f"s_add_u32 s69, s56, s{SXE+e}"),
             I(f"buffer_load_dwordx4 v{VXD+i}, {XS}, s69 offen lds", tag=f"X{e}")] for i in range(4)]
def flat(x): return sum(x, [])
def x_read(ks):
    return [I(f"ds_read_b128 {ar(4*ks,4)}, v{VXR+ks%4} offset:{((ks//4)%4)*4096}", tag=f"xr{ks}")]
class Addr:
    def __init__(self, base): self.base = base
    def off(self, addr, out, span=2048+1024+6*1024*2):
        if not (0 <= addr - self.base and addr - self.base + 1024 <= 65535):
            nb = addr if addr < self.base else addr
            d = (nb - self.base) & 0xffffffff
            out += [I(f"v_add_u32 v{VA+k}, {d:#x}, v{VA+k}") for k in range(4)]
            self.base = nb
        return addr - self.base
def tr_read(dst, areg, off, e2, tag):
    return [I(f"ds_read_b64_tr_b16 {vr(dst+2*e,2)}, v{areg} offset:{off+e2*e}", tag=tag) for e in range(2)]
def m16(d, b, first): return I(f"v_mfma_f32_16x16x32_bf16 {vr(d,4)}, {vr(SEL,4)}, {b}, {'0' if first else vr(d,4)}")
def stats_mfma(ks):
    x = 4*ks; z = ks == 0
    return [m16(SX, ar(x,4), z),
            I(f"v_mfma_f32_4x4x4_16b_bf16 {vr(Q0,4)}, {ar(x,2)}, {ar(x,2)}, {'0' if z else vr(Q0,4)}"),
            I(f"v_mfma_f32_4x4x4_16b_bf16 {vr(Q1,4)}, {ar(x+2,2)}, {ar(x+2,2)}, {'0' if z else vr(Q1,4)}")]
def wb(ks, ti): return WB + ((ks % (LA+1))*2 + ti)*4
def stl(st, k):
    q = Prog(); st(q, k); return q.l

def gemm_pass(accs, addr_of, base0, nori, tagp, e2, hooks=None, cs_tiles=None, stats=False, cs_s=9, cs_o=CSO):
    nt = len(accs)
    am = Addr(base0)
    def rd(ks, dst, regs, tag):
        o = []
        off = am.off(addr_of(ks), o)
        for ti in range(nt): o += tr_read(dst(ti), regs+ti, off, e2, tag)
        return o
    o = []
    for ks in range(LA): o += rd(ks, lambda ti: wb(ks,ti), VA, f"{tagp}{ks}")
    for ks in range(32):
        pre = W(lg=[f"{tagp}{ks}", f"xr{ks}"])
        mf = []
        for ti in range(nt):
            w = vr(wb(ks,ti),4); x = ar(4*ks,4); d = vr(accs[ti],16)
            mf.append(mfma32(d, x, w, "0" if ks == 0 else d) if nori else mfma32(d, w, x, "0" if ks == 0 else d))
        h0, h1, h2 = hooks(ks) if hooks else ([], [], [])
        post = list(h0)
        tail = []
        if ks % 4 == 0 and cs_tiles:
            post += rd(ks, lambda ti: CSF+4*ti, VA+2, f"c{tagp}{ks}")
        if ks+LA < 32: post += rd(ks+LA, lambda ti: wb(ks+LA,ti), VA, f"{tagp}{ks+LA}")
        post += h1
        if ks % 4 == 1 and cs_tiles:
            pre.lg.append(f"c{tagp}{ks-1}")
            for ti in range(nt): tail.append(m16(CSA+4*ti, vr(CSF+4*ti,4), ks == 1))
        if ks == 30 and cs_tiles:
            tail.append(I(f"v_lshl_add_u32 v3, v1, 2, s{cs_s}"))
            for ti in range(nt): tail.append(I(f"ds_write_b32 v3, v{CSA+4*ti} offset:{cs_o + cs_tiles[ti]*256}"))
        if stats:
            if VAR.get('stfirst'): mf += stats_mfma(ks); mf_all = True
            else: tail += stats_mfma(ks)
        tail += h2
        if stats and VAR.get('stfirst'): o += [pre] + mf + post + tail
        else: o += [pre] + mf[:1] + post + mf[1:] + tail
    return o

def phase1_hooks(st):
    sched = {}
    def spread(pcs, first, per):
        pcs = list(pcs); k = first
        while pcs:
            for _ in range(per):
                if pcs: sched.setdefault(k, []).append(pcs.pop(0))
            k += 1
    spread(dma_E(2) + dma_E(3), 0, 1)
    spread(x_dma(2) + dma_Q(0), 8-LA, VAR['per'])
    spread(x_dma(3) + dma_Q(1) + dma_Q(2), 16-LA, VAR['per'])
    spread(dma_Q(3), 24-LA, VAR['per'])
    def hooks(ks):
        e, r8 = divmod(ks, 8)
        h0 = []; h1 = []
        if r8 == 8-LA and e < 3:
            h0 = [W(vm=[f"X{e+1}", f"E{e+1}"], lg0=True), I("s_barrier")] + stl(st, 2+e)
        if r8 >= 8-LA and e < 3:
            k0 = 8*(e+1) + 2*(r8-(8-LA)); h1 += x_read(k0) + x_read(k0+1)
        if r8 < 4: h1 += x_read(8*e+4+r8)
        h2 = flat(sched.get(ks, []))
        if ks == 26: h2 = h2 + [I(f"buffer_load_dword v{A2+1}, off, s[44:47], 0 sc1", tag="tag")]
        return h0, h1, h2
    return hooks

def set_va(p, pair, base, mstride):
    sh = 7 if pair else 6
    p(f"""
    v_lshrrev_b32 v2, 5, v1
    v_lshlrev_b32 v{VA}, {sh+3}, v2
    v_bfe_u32 v3, v1, 2, 2
    v_lshl_add_u32 v{VA}, v3, {sh}, v{VA}
    v_bfe_u32 v3, v1, 4, 1
    v_lshl_add_u32 v{VA}, v3, 5, v{VA}
    v_and_b32 v3, 1, v1
    v_lshl_add_u32 v{VA}, v3, 4, v{VA}
    v_bfe_u32 v3, v1, 1, 1
    v_lshl_add_u32 v{VA}, v3, 3, v{VA}
    """)
    if pair: p(f"v_bfe_u32 v3, v1, 3, 1\nv_lshl_add_u32 v{VA}, v3, 6, v{VA}")
    p(f"""
    v_add_u32 v{VA}, {base}, v{VA}
    s_mul_i32 s34, s29, {mstride}
    v_xor_b32 v{VA+1}, 64, v{VA}
    v_add_u32 v{VA+2}, s34, v{VA}
    v_add_u32 v{VA+3}, s34, v{VA+1}
    """)

def corr_from(b, d, nori):
    o = [I(f"v_sub_f32 v{b}, 0, v{b}"),
         I(f"v_cvt_pk_bf16_f32 v{WC+1}, v{b}, 0"),
         I(f"v_lshlrev_b32 v{b+1}, 16, v{WC+1}"),
         I(f"v_sub_f32 v{b+1}, v{b}, v{b+1}"),
         I(f"v_cvt_pk_bf16_f32 v{WC}, v{b}, v{b+1}")]
    a_, b_ = (vr(XC,4), vr(WC,4)) if nori else (vr(WC,4), vr(XC,4))
    o.append(mfma32(vr(d,16), a_, b_, vr(d,16)))
    return o
def cs_reads(tiles, tag, base=0, stride=None, off=CSO):
    o = [I(f"v_lshlrev_b32 v2, 2, v1")]
    if base: o.append(I(f"v_add_u32 v2, {base}, v2"))
    for k, tl in enumerate(tiles):
        for w in range(4): o.append(I(f"ds_read_b32 v{T+4*k+w}, v2 offset:{(w*stride if stride else (w>>1)*16384 + (w&1)*4096) + off + tl*256}", tag=tag))
    return o
def cs_corr(accs, nori, tag):
    o = [I(f"v_mov_b32 v{WC+2}, 0"), I(f"v_mov_b32 v{WC+3}, 0"), W(lg=tag)]
    for k, d in enumerate(accs):
        b = T+4*k
        o += [I(f"v_add_f32 v{b}, v{b}, v{b+1}"), I(f"v_add_f32 v{b+2}, v{b+2}, v{b+3}"), I(f"v_add_f32 v{b}, v{b}, v{b+2}")]
        o += corr_from(b, d, nori)
    return o

def ln1_final(g, S, Q):
    o = Prog()
    o(f"""
    v_mul_f32 v{S}, {fh(1/512)}, v{S}
    v_cndmask_b32 v{S+1}, v{S}, 0, s[74:75]
    v_mul_f32 v{S+2}, v{S}, v{S}
    v_cvt_pk_bf16_f32 v{XC}, v{S+1}, v{S+1}
    v_fma_f32 v{Q}, v{Q}, s76, -v{S+2}
    v_and_b32 v{S+3}, 0xffff0000, v{XC}
    v_max_f32 v{Q}, 0, v{Q}
    v_sub_f32 v{S+3}, v{S+1}, v{S+3}
    v_add_f32 v{Q}, {fh(1e-5)}, v{Q}
    v_cvt_pk_bf16_f32 v{XC+1}, v{S+3}, 0
    v_rsq_f32 v{R1}, v{Q}
    v_mov_b32 v{XC+2}, 0
    v_mov_b32 v{XC+3}, 0
    """)
    rr = RR if g == 0 else A1
    tb = TBL + 256*g
    o(f"""
    v_lshl_add_u32 v3, v{VB}, 2, s9
    ds_write_b32 v3, v{R1} offset:{tb}
    v_lshrrev_b32 v3, 5, v1
    v_lshl_add_u32 v3, v3, 5, s9
    s_waitcnt lgkmcnt(0)
    """)
    for k in range(4): o(f"ds_read_b128 {vr(rr+4*k,4)}, v3 offset:{tb + (k//2)*64 + (k%2)*16}", tag="rr")
    if g == 0:
        o(f"v_mov_b32 v{C0R}, {fh(C0)}")
    else:
        o(f"""
        v_sqrt_f32 v{RI}, v{Q}
        v_mul_f32 v{C0R}, {fh(C0)}, v{R1}
        v_mul_f32 v{C1R}, v{R1}, v{R1}
        v_mul_f32 v{C1R}, v{C1R}, v{C0R}
        v_mul_f32 v{C1R}, {fh(0.044715)}, v{C1R}
        """)
    return o.l

def gelu_T(a, P0):
    o = []
    for g in range(0, 16, 4):
        rs = range(g, g+4); tt = lambda r: T + (r % 4)
        o += [I(f"v_mul_f32 v{tt(r)}, v{a+r}, v{a+r}") for r in rs]
        o += [I(f"v_fma_f32 v{tt(r)}, v{tt(r)}, v{C1R}, v{C0R}") for r in rs]
        o += [I(f"v_mul_f32 v{tt(r)}, v{tt(r)}, v{a+r}") for r in rs]
        o += [I(f"v_exp_f32 v{tt(r)}, v{tt(r)}") for r in rs]
        o += [I(f"v_fma_f32 v{tt(r)}, v{tt(r)}, v{RI}, v{RI}") for r in rs]
        o += [I(f"v_rcp_f32 v{tt(r)}, v{tt(r)}") for r in rs]
        o += [I(f"v_mul_f32 v{a+r}, v{a+r}, v{tt(r)}") for r in rs]
        o += [I(f"v_cvt_pk_bf16_f32 v{P0+r//2}, v{a+r}, v{a+r+1}") for r in (g, g+2)]
    return o
def gelu_N(a):
    o = []
    for g in range(0, 16, 4):
        rs = range(g, g+4); tt = lambda r: T + (r % 4)
        o += [I(f"v_mul_f32 v{a+r}, v{a+r}, v{RR+r}") for r in rs]
        o += [I(f"v_mul_f32 v{tt(r)}, v{a+r}, v{a+r}") for r in rs]
        o += [I(f"v_fma_f32 v{tt(r)}, v{tt(r)}, s77, v{C0R}") for r in rs]
        o += [I(f"v_mul_f32 v{tt(r)}, v{tt(r)}, v{a+r}") for r in rs]
        o += [I(f"v_exp_f32 v{tt(r)}, v{tt(r)}") for r in rs]
        o += [I(f"v_add_f32 v{tt(r)}, 1.0, v{tt(r)}") for r in rs]
        o += [I(f"v_rcp_f32 v{tt(r)}, v{tt(r)}") for r in rs]
        o += [I(f"v_mul_f32 v{a+r}, v{a+r}, v{tt(r)}") for r in rs]
    return o

def z2_stats():
    o = []
    a0, a1 = A0, A1
    for hf in range(2):
        S1 = lambda r: T + 4 + r
        S2 = lambda r: T + 12 + r
        for r in range(8):
            R = hf*8 + r
            o.append(I(f"v_mul_f32 v{S2(r)}, v{a0+R}, v{a0+R}"))
            o.append(I(f"v_add_f32 v{S1(r)}, v{a0+R}, v{a1+R}"))
        for r in range(8): o.append(I(f"v_fmac_f32 v{S2(r)}, v{a1+hf*8+r}, v{a1+hf*8+r}"))
        for S in (S1, S2):
            for r in range(4): o.append(I(f"v_permlane16_swap_b32 v{S(r)}, v{S(r+4)}"))
        for S in (S1, S2):
            for r in range(4): o.append(I(f"v_add_f32 v{S(r)}, v{S(r)}, v{S(r+4)}"))
        for S in (S1, S2):
            for r in range(2): o.append(I(f"v_add_f32_dpp v{S(r+4)}, v{S(r)}, v{S(r)} row_ror:8 row_mask:0xf bank_mask:0x3"))
        for S in (S1, S2):
            for r in range(2): o.append(I(f"v_add_f32_dpp v{S(r+4)}, v{S(r+2)}, v{S(r+2)} row_ror:8 row_mask:0xf bank_mask:0xc"))
        for S in (S1, S2): o.append(I(f"v_add_f32_dpp v{S(0)}, v{S(4)}, v{S(4)} row_half_mirror row_mask:0xf bank_mask:0x5"))
        for S in (S1, S2): o.append(I(f"v_add_f32_dpp v{S(0)}, v{S(5)}, v{S(5)} row_half_mirror row_mask:0xf bank_mask:0xa"))
        for S in (S1, S2): o.append(I(f"v_add_f32_dpp v{S(0)}, v{S(0)}, v{S(0)} quad_perm:[1,0,3,2] row_mask:0xf bank_mask:0xf"))
        for k, S in enumerate((S1, S2)): o.append(I(f"v_add_f32_dpp v{STQ+2*hf+k}, v{S(0)}, v{S(0)} quad_perm:[2,3,0,1] row_mask:0xf bank_mask:0xf"))
    return o

def prio(p, n):
    if VAR['prio']: p(f"s_setprio {n}")

def gen_kf(stamp=False):
    p = Prog()
    st = Stamper(stamp, 10, 0)
    st2 = Stamper(stamp, 10, 252, kid=1)
    entry_stamp(p, stamp)
    p(f"""
    s_cmp_ge_u32 s2, 256
    s_cbranch_scc1 L_end
    s_load_dwordx4 s[4:7], s[0:1], {KA_X}
    s_load_dwordx2 s[8:9], s[0:1], {KA_WIN}
    s_load_dwordx4 s[48:51], s[0:1], {KA_DBG}
    v_and_b32 v1, 63, v0
    v_lshrrev_b32 v2, 6, v0
    v_readfirstlane_b32 s28, v2                 ; wave 0..7
    s_mov_b32 s10, s28
    s_and_b32 s29, s2, 7
    s_lshr_b32 s30, s2, 3
    s_and_b32 s31, s29, 1
    s_lshl_b32 s31, s31, 3
    s_and_b32 s32, s30, 7
    s_add_u32 s31, s31, s32                     ; rb
    s_lshr_b32 s32, s29, 1
    s_lshl_b32 s32, s32, 2
    s_lshr_b32 s33, s30, 3
    s_add_u32 s32, s32, s33                     ; cg
    v_lshrrev_b32 v2, 3, v1
    v_lshrrev_b32 v3, 4, v1
    v_xor_b32 v{VXD}, v3, v1
    v_and_b32 v{VXD}, 7, v{VXD}
    v_lshlrev_b32 v{VXD}, 4, v{VXD}
    v_lshl_add_u32 v{VXD}, v2, 10, v{VXD}
    v_and_b32 v3, 1, v3
    v_lshlrev_b32 v3, 2, v3
    v_xor_b32 v3, v3, v1
    v_and_b32 v3, 7, v3
    v_lshlrev_b32 v{VB}, 4, v3
    v_mul_u32_u24 v{VPI}, 3584, v2
    v_add_u32 v{VPI}, v{VPI}, v{VB}
    v_mul_u32_u24 v{VQP}, 3072, v2
    v_add_u32 v{VQP}, v{VQP}, v{VB}
    v_lshrrev_b32 v2, 2, v1
    v_and_b32 v3, 3, v1
    v_lshlrev_b32 v3, 4, v3
    v_mul_u32_u24 v{VQ}, 3072, v2
    v_add_u32 v{VQ}, v{VQ}, v3
    s_and_b32 s29, s28, 3                       ; m tile
    s_lshr_b32 s30, s28, 2                      ; group
    s_lshl_b32 s33, s31, 2
    s_add_u32 s33, s33, s29                     ; tt
    s_lshl_b32 s56, s33, 15
    s_lshl_b32 s34, s30, 7
    s_add_u32 s56, s56, s34
    s_lshl_b32 s57, s29, 14
    s_lshl_b32 s34, s30, 12
    s_add_u32 s59, s57, s34
    s_mul_i32 s58, s28, 3072
    s_lshl_b32 s55, s28, 11
    v_xor_b32 v{VXD+1}, 64, v{VXD}
    v_add_u32 v{VXD+2}, 16384, v{VXD}
    v_add_u32 v{VXD+1}, 8192, v{VXD+1}
    v_add_u32 v{VXD+3}, 16384, v{VXD+1}
    s_mul_i32 s80, s28, {16*3584}
    s_lshl_b32 s35, s32, 7
    s_add_u32 s80, s80, s35
    s_mul_i32 s81, s28, {16*3072}
    s_lshl_b32 s35, s32, 6
    s_and_b32 s34, s32, 1
    s_mul_i32 s34, s34, {1024-64}
    s_add_u32 s82, s81, s34
    s_add_u32 s81, s81, s35
    s_add_u32 s82, s82, s35
    {["s_mov_b32 s35, 0", "s_add_u32 s35, s31, s32", "s_bfe_u32 s35, s2, 0x20001", "s_and_b32 s35, s2, 3", "s_lshl_b32 s35, s31, 1", "s_mov_b32 s35, s32", "s_mov_b32 s35, s31"][int(VAR['rot'])]}
    """)
    for e in range(4):
        p(f"s_add_u32 s34, s35, {e}\ns_and_b32 s34, s34, 3\ns_lshl_b32 s{SXE+e}, s34, 8\ns_mul_i32 s{SIE+e}, s34, {128*3584}\ns_mul_i32 s{SQE+e}, s34, {128*3072}")
    p(f"""
    s_cmp_lt_u32 s32, 14
    s_cselect_b32 s18, {512*3584}, 0
    s_cselect_b32 s42, {WS_USED}, 0
    s_mov_b32 s19, 0x20000
    s_mov_b32 s43, 0x20000
    s_waitcnt lgkmcnt(0)
    s_mov_b32 s16, s8
    s_mov_b32 s17, s9
    s_lshr_b32 s9, s29, 1
    s_lshl_b32 s9, s9, 14
    s_and_b32 s8, s29, 1
    s_lshl_b32 s8, s8, 12
    s_add_u32 s9, s9, s8
    """)
    srd(p, 24, 4, 2048*1024); srd(p, 20, 6, 512*3072)
    p.add(flat(x_dma(0))); p.add(flat(dma_E(0)))
    srd(p, 12, 50, WS_USED); srd(p, 44, 48, 256)
    p("s_mov_b32 s40, s50\ns_mov_b32 s41, s51")
    st(p, 0); entry_store(p, st)
    p(f"v_and_b32 v{VB}, 31, v1")
    bitswap23(p, VB, VB, 3)
    p(f"""
    v_lshrrev_b32 v3, 1, v{VB}
    v_lshrrev_b32 v2, 5, v1
    v_xor_b32 v3, v3, v2
    v_and_b32 v3, 7, v3
    v_lshlrev_b32 v3, 4, v3
    v_lshl_add_u32 v{VXR}, v{VB}, 7, v3
    v_add_u32 v{VXR}, s57, v{VXR}
    v_xor_b32 v{VXR+1}, 32, v{VXR}
    v_xor_b32 v{VXR+2}, 64, v{VXR}
    v_xor_b32 v{VXR+3}, 96, v{VXR}
    """)
    if VAR.get('b00', False): p("s_barrier")
    p.add(flat(x_dma(1))); p.add(flat(dma_E(1)))
    if VAR.get('cpf'): code_prefetch(p, 28, 3, f"v{A2}", 36, "L_cpf")
    p("s_or_b32 s34, s2, s28\ns_cmp_lg_u32 s34, 0\ns_cbranch_scc1 L_notag")
    p(f"s_mov_b32 s34, {EPO}\nbuffer_load_dword v2, off, s[12:15], s34 sc1\ns_waitcnt vmcnt(0)\nv_add_u32 v2, 1, v2\nv_max_u32 v2, 1, v2")
    p("buffer_store_dword v2, off, s[44:47], 0 sc1\nbuffer_store_dword v2, off, s[12:15], s34 sc1")
    p.label("L_notag")
    p(f"""
    v_lshlrev_b32 v{VL}, 4, v1
    v_and_b32 v3, 3, v1
    v_cmp_eq_u32 vcc, 0, v3
    v_lshrrev_b32 v3, 2, v1
    v_lshrrev_b32 v2, 4, v1
    v_xor_b32 v3, v3, v2
    v_and_b32 v3, 1, v3
    v_cmp_eq_u32 s[34:35], 0, v3
    s_and_b64 vcc, vcc, s[34:35]
    v_mov_b32 v3, 0x3f803f80
    v_cndmask_b32 v{SEL}, 0, v3, vcc
    v_mov_b32 v{SEL+1}, v{SEL}
    v_mov_b32 v{SEL+2}, v{SEL}
    v_mov_b32 v{SEL+3}, v{SEL}
    v_cmp_lt_u32 s[74:75], 31, v1
    s_mov_b32 s76, {fh(1/512)}
    s_cmp_eq_u32 s30, 0
    s_cbranch_scc1 L_g1
    """)
    def start(p):
        if VAR.get('fine'):
            st(p, 10); p.wait(vm="X0"); st(p, 11); p.wait(vm="E0"); st(p, 12)
        p.wait(vm=["X0", "E0"]); p("s_barrier"); st(p, 1)
        for ks in range(4): p.add(x_read(ks))
    def get_tag(p, u):
        p.wait(vm="tag")
        p(f"v_readfirstlane_b32 s11, v{A2+1}\ns_cmp_lg_u32 s11, 0\ns_cbranch_scc1 L_tag{u}\ns_mov_b32 s34, 0")
        p.label(f"L_tagp{u}")
        p(f"buffer_load_dword v2, off, s[44:47], 0 sc1\ns_add_u32 s34, s34, 1\ns_waitcnt vmcnt(0)\nv_readfirstlane_b32 s11, v2\ns_cmp_gt_u32 s34, 0x10000\ns_cbranch_scc1 L_tag{u}\ns_cmp_eq_u32 s11, 0\ns_cbranch_scc1 L_tagp{u}")
        p.label(f"L_tag{u}")
    set_va(p, True, RING, 3072)
    p(f"""
    s_mov_b32 s77, {fh(C0*0.044715)}
    s_lshr_b32 s34, s32, 1
    s_lshl_b32 s83, s34, 19
    s_lshl_b32 s35, s33, 13
    s_add_u32 s83, s83, s35
    s_and_b32 s35, s32, 1
    s_lshl_b32 s35, s35, 11
    s_add_u32 s83, s83, s35
    s_add_u32 s83, s83, {Z2F}
    s_add_u32 s84, s83, 4096
    s_lshl_b32 s87, s33, 13
    s_add_u32 s87, s87, {STAT}
    s_lshl_b32 s35, s32, 9
    s_add_u32 s88, s87, s35
    s_mul_i32 s85, s33, {56*1024}
    s_lshl_b32 s34, s32, 12
    s_add_u32 s85, s85, s34
    s_add_u32 s85, s85, {Z1F}
    s_lshl_b32 s86, s32, 11
    s_lshl_b32 s34, s31, 7
    s_add_u32 s86, s86, s34
    s_lshl_b32 s34, s29, 2
    s_add_u32 s86, s86, s34
    s_add_u32 s86, s86, {PFL+16}
    s_lshl_b32 s52, s29, 11
    s_add_u32 s52, s52, {SCR2}
    """)
    if not f2.VAR['sentA']: f2.placeholder_addrs(p, 29)
    for r in range(0 if f2.VAR['sentA'] else 4): p(f"v_mov_b32 v{A2+4+r}, -1")
    ph = [I(f"buffer_store_dwordx4 {vr(A2+4,4)}, v{VL}, s[12:15], s{so} offen offset:{o_} sc1") for so, o_ in ((36,0),(37,0),(38,0),(38,1024),(39,0),(39,1024))]
    h1_ = phase1_hooks(st); PH = 99 if f2.VAR['sentA'] else VAR.get('phstep', 24)
    def hooksB(ks):
        x0, x1, x2 = h1_(ks)
        if PH >= 0 and PH <= ks < PH+6:
            if VAR.get('phmask'): x2 = x2 + [I(f"s_mov_b32 exec_lo, {VAR['phmask']:#x}"), I(f"s_mov_b32 exec_hi, {VAR['phmask']:#x}"), ph[ks-PH], I("s_mov_b64 exec, -1")]
            else: x2 = x2 + [ph[ks-PH]]
        return x0, x1, x2
    if PH < 0: p.add(ph)
    prio(p, 1)
    start(p)
    p.add(gemm_pass([A0, A1], E_addr, RING, True, "w", 512, hooks=hooksB, cs_tiles=[0, 1]))
    p(f"v_mov_b32 v2, 0\nv_lshlrev_b32 v3, 2, v1\nds_write_b32 v3, v2")
    p.wait(vm=["Q0","Q1","Q2","Q3"], lg0=True)
    p("s_barrier")
    st(p, 5)
    prio(p, 0)
    p(f"v_lshl_add_u32 v3, v1, 2, s9")
    p(f"ds_read_b32 v{T+16}, v3 offset:{RAW}", tag="raw"); p(f"ds_read_b32 v{T+20}, v3 offset:{RAW+256}", tag="raw")
    p.add(cs_reads([0, 1], "cs0"))
    get_tag(p, "b")
    p.add(flat(dma_Z(0) + dma_Z(1) + dma_Z(2) + dma_Z(3)))
    p.wait(lg="raw")
    p(f"v_mov_b32 v{VQ}, v{T+20}")
    p.add(ln1_final(0, T+16, VQ))
    p.add(cs_corr([A0, A1], True, "cs0"))
    p.wait(lg="rr")
    p.add(gelu_N(A0)); p.add(gelu_N(A1)); p.add(z2_stats())
    p.wait(vm=["Za"])
    p(f"""
    v_and_b32 v3, 1, v1
    v_cmp_eq_u32 vcc, 1, v3
    v_bfe_u32 v2, v1, 2, 1
    v_lshl_add_u32 v2, v3, 4, v2
    v_bfe_u32 v3, v1, 3, 1
    v_lshl_add_u32 v2, v3, 1, v2
    v_bfe_u32 v3, v1, 4, 2
    v_lshl_add_u32 v2, v3, 2, v2                ; row = 16*(l&1) + 8h + 4b4 + 2b3 + b2
    v_lshlrev_b32 v2, 4, v2
    v_cndmask_b32 v{STQ}, v{STQ}, v{STQ+2}, vcc
    v_cndmask_b32 v{STQ+2}, v{STQ+1}, v{STQ+3}, vcc
    v_mov_b32 v{STQ+1}, s11
    v_mov_b32 v{STQ+3}, s11
    buffer_store_dwordx4 {vr(STQ,4)}, v2, s[40:43], s88 offen sc1
    {"" if f2.VAR['sentA'] else "buffer_store_dword v%d, off, s[12:15], s53 sc1" % (STQ+1)}
    {"" if f2.VAR['sentA'] else "buffer_store_dword v%d, off, s[12:15], s54 sc1" % (STQ+1)}
    v_sqrt_f32 v{RI}, v{VQ}
    v_mul_f32 v{C0R}, {fh(C0)}, v{R1}
    v_mul_f32 v{C1R}, v{R1}, v{R1}
    v_mul_f32 v{C1R}, v{C1R}, v{C0R}
    v_mul_f32 v{C1R}, {fh(0.044715)}, v{C1R}
    s_lshl_b32 s34, s29, 2
    v_mov_b32 v{VB}, s34
    """)
    set_va(p, True, 131072, 2048)
    st(p, 6)
    p.wait(lg0=True)
    p("s_barrier")
    prio(p, VAR.get('pz1', 2))
    st(p, 7)
    p("s_mov_b32 s88, s32\ns_mov_b32 s89, 0x7ff00000\ns_cmp_ge_u32 s32, 14\ns_cbranch_scc1 L_b_done")
    PS = VAR.get('pstep', 8); FS = VAR.get('fstep', 16)
    X = 128
    def part_loads():
        o = [I("v_and_b32 v2, 31, v1"), I("v_lshlrev_b32 v2, 4, v2"), I("v_lshrrev_b32 v3, 5, v1"), I("v_mul_u32_u24 v3, 3584, v3"), I("v_add_u32 v2, v2, v3")]
        for k in range(7):
            o.append(I(f"buffer_load_dwordx4 {ar(4*k,4)}, v2, s[12:15], s87 offen offset:{k*512} sc1", tag="part"))
        return o
    def z2_final():
        q = Prog()
        b = X+28
        q(f"s_mov_b32 s34, 0\ns_mov_b32 s35, {fh(1/896)}")
        q.wait(vm="part")
        q.label("L_chk")
        q(f"v_xor_b32 v{b+2}, s11, v{X+1}\nv_xor_b32 v{b+3}, s11, v{X+3}\nv_or_b32 v{b+2}, v{b+2}, v{b+3}\nv_mov_b32 v{b}, v{X}\nv_mov_b32 v{b+1}, v{X+2}")
        for k in range(1, 7):
            q(f"v_add_f32 v{b}, v{b}, v{X+4*k}\nv_add_f32 v{b+1}, v{b+1}, v{X+4*k+2}")
            q(f"v_xor_b32 v{X+4*k+1}, s11, v{X+4*k+1}\nv_xor_b32 v{X+4*k+3}, s11, v{X+4*k+3}\nv_or3_b32 v{b+2}, v{b+2}, v{X+4*k+1}, v{X+4*k+3}")
        q(f"v_cmp_ne_u32 vcc, 0, v{b+2}\ns_cbranch_vccnz L_retry")
        q.label("L_chk_ok")
        q(f"""
        v_mov_b32 v{b+2}, v{b}
        v_mov_b32 v{b+3}, v{b+1}
        v_and_b32 v2, 31, v1
        v_permlane32_swap_b32 v{b}, v{b+2}
        v_permlane32_swap_b32 v{b+1}, v{b+3}
        v_lshl_add_u32 v2, v2, 2, s52
        v_add_f32 v{b}, v{b}, v{b+2}
        v_add_f32 v{b+1}, v{b+1}, v{b+3}
        v_mul_f32 v{b}, s35, v{b}
        v_mul_f32 v{b+2}, v{b}, v{b}
        v_fma_f32 v{b+1}, v{b+1}, s35, -v{b+2}
        v_max_f32 v{b+1}, 0, v{b+1}
        v_add_f32 v{b+1}, {fh(1e-5)}, v{b+1}
        v_rsq_f32 v{b+1}, v{b+1}
        v_lshrrev_b32 v3, 5, v1
        v_lshl_add_u32 v3, v3, 5, s52
        v_mul_f32_e64 v{b}, -v{b}, v{b+1}
        ds_write_b32 v2, v{b+1} offset:1024
        ds_write_b32 v2, v{b} offset:1152
        s_waitcnt lgkmcnt(0)
        """)
        R2 = X; NM = X+16
        for k in range(4): q(f"ds_read_b128 {vr(R2+4*k,4)}, v3 offset:{1024 + (k//2)*64 + (k%2)*16}", tag="r2")
        for k in range(4): q(f"ds_read_b128 {vr(NM+4*k,4)}, v3 offset:{1152 + (k//2)*64 + (k%2)*16}", tag="r2")
        q2 = Prog()
        q2.wait(lg="r2")
        for t_ in range(2):
            a = A0 + 16*t_
            for r in range(16): q2(f"v_fma_f32 v{a+r}, v{a+r}, v{R2+r}, v{NM+r}")
            for d in range(8): q2(f"v_cvt_pk_bf16_f32 v{a+d}, v{a+2*d}, v{a+2*d+1}")
            q2(f"buffer_store_dwordx4 {vr(a,4)}, v{VL}, s[12:15], s83 offen offset:{t_*1024}")
            q2(f"buffer_store_dwordx4 {vr(a+4,4)}, v{VL}, s[12:15], s84 offen offset:{t_*1024}")
        return q.l, q2.l
    pl = part_loads(); zf1, zf2 = z2_final()
    n2 = (len(zf2) + 3)//4
    def zhooks(ks):
        t_ = []
        h0 = []
        if ks == PS: t_ += pl[:8]
        if ks == PS+1: t_ += pl[8:10]
        if ks == PS+2: t_ += pl[10:]
        if ks == FS: t_ += zf1
        if FS < ks <= FS+4: t_ += zf2[(ks-FS-1)*n2:(ks-FS)*n2]
        if ks == VAR.get('zfl', 28): t_ += [I("v_mov_b32 v2, s11"), I("s_waitcnt vmcnt(0)"), I("buffer_store_dword v2, off, s[12:15], s86 sc1")]
        return h0, [], t_
    p.add(gemm_pass([A2, A3_], Z_addr, 131072, False, "z", 512, hooks=zhooks, cs_tiles=[0, 1], cs_s=52, cs_o=0))
    p(f"v_mov_b32 v2, 1\ns_waitcnt lgkmcnt(0)\nds_write_b32 v{VB}, v2 offset:128")
    st(p, 8)
    prio(p, VAR.get('pz2', 2))
    p("v_mov_b32 v2, 0")
    f2.flag_wait(p, "L_csz", 2, 128, 1, STQ, sleep=0)
    p.add(cs_reads([0, 1], "cs2", base=SCR2, stride=2048, off=0))
    p.add(cs_corr([A2, A3_], False, "cs2"))
    def z1_tile(p, k, ins=None):
        a = (A2, A3_)[k]
        gl = gelu_T(a, T+4+8*k)
        if ins: c_ = VAR.get('kvcut', 60); gl = gl[:c_] + ins + gl[c_:]
        p.add(gl)
        p(f"buffer_store_dwordx4 {vr(T+4+8*k,4)}, v{VL}, s[12:15], s85 offen offset:{k*2048}")
        p(f"buffer_store_dwordx4 {vr(T+8+8*k,4)}, v{VL}, s[12:15], s85 offen offset:{k*2048+1024}")
    z1_tile(p, 0)
    def mid(p, u, ins=None):
        p("s_cmp_ge_u32 s88, 14\ns_cbranch_scc1 L_b_mid" + u)
        z1_tile(p, 1, ins)
        p.label("L_b_mid" + u)
        st(p, 9)
    p("s_add_u32 s89, s86, 16")
    p.label("L_b_done")
    st2(p, 0)
    f2.gen_gemm(p, st2, mid)
    p.label("L_retry")
    p("s_add_u32 s34, s34, 1\ns_cmp_gt_u32 s34, 0x10000\ns_cbranch_scc1 L_chk_ok")
    p.add(part_loads())
    p("s_waitcnt vmcnt(0)\ns_branch L_chk")
    p.label("L_g1")
    set_va(p, False, RING+2048, 3072)
    p(f"""
    v_and_b32 v3, 1, v1
    v_cmp_eq_u32 s[70:71], 1, v3
    v_and_b32 v3, 2, v1
    v_cmp_eq_u32 s[72:73], 2, v3
    s_mul_i32 s87, s32, {2*KVH}
    s_mul_i32 s34, s33, {KVT}
    s_add_u32 s87, s87, s34
    s_add_u32 s87, s87, {KV}
    s_lshr_b32 s34, s32, 1
    s_lshl_b32 s85, s34, 18
    s_lshl_b32 s35, s33, 10
    s_add_u32 s85, s85, s35
    s_mul_i32 s86, s34, {4*KVH}
    s_mul_i32 s35, s33, {KVT}
    s_add_u32 s86, s86, s35
    s_add_u32 s86, s86, {KV}
    s_bitcmp1_b32 s32, 0
    s_cselect_b32 s85, s86, s85
    s_mov_b32 s86, {KVH}
    s_cselect_b32 s86, s86, 0x10000
    s_mov_b32 s78, {fh(0.25*1.4426950408889634)}
    s_cselect_b32 s78, 1.0, s78                  ; scale
    s_lshl_b32 s83, s32, 11
    s_lshl_b32 s34, s31, 7
    s_add_u32 s83, s83, s34
    s_add_u32 s83, s83, {PFL}
    """)
    prio(p, 1)
    start(p)
    p.add(gemm_pass([A0], lambda ks: E_addr(ks)+2048, RING+2048, True, "w", 256, hooks=phase1_hooks(st), cs_tiles=[2], stats=True))
    p(f"""
    v_add_f32 v{Q0}, v{Q0}, v{Q1}
    v_add_f32 v{Q0+1}, v{Q0+1}, v{Q1+1}
    v_add_f32 v{Q0+2}, v{Q0+2}, v{Q1+2}
    v_add_f32 v{Q0+3}, v{Q0+3}, v{Q1+3}
    v_cndmask_b32 v{Q0}, v{Q0}, v{Q0+1}, s[70:71]
    v_cndmask_b32 v{Q0+2}, v{Q0+2}, v{Q0+3}, s[70:71]
    ds_write_b32 v3, v{SX} offset:{RAW}
    v_cndmask_b32 v{Q0}, v{Q0}, v{Q0+2}, s[72:73]
    v_mov_b32 v{Q1}, v{Q0}
    v_permlane32_swap_b32 v{Q0}, v{Q1}
    v_add_f32 v{Q0}, v{Q0}, v{Q1}
    ds_write_b32 v3, v{Q0} offset:{RAW+256}
    """)
    p.wait(vm=["Q0","Q1","Q2","Q3"], lg0=True)
    p("s_barrier")
    st(p, 5)
    p.add(cs_reads([2], "cs1"))
    get_tag(p, "a")
    p.add(ln1_final(1, SX, Q0))
    p.add(cs_corr([A0], True, "cs1"))
    set_va(p, True, RING, 2048)
    zp = gemm_pass([A2, A3_], Q_addr, RING, False, "q", 512, cs_tiles=[5, 6])
    e = Prog()
    e.add(flat(dma_Z(0) + dma_Z(1) + dma_Z(2) + dma_Z(3)))
    e(f"""
    s_mov_b32 s77, {KVH}
    v_bfe_u32 v3, v1, 4, 1
    v_mul_lo_u32 v{VB}, v3, s77
    v_and_b32 v3, 15, v1
    v_lshl_add_u32 v{VB}, v3, 4, v{VB}
    v_lshrrev_b32 v3, 5, v1
    v_lshl_add_u32 v{VB}, v3, 8, v{VB}
    """)
    e.wait(lg="rr")
    for r in range(16): e(f"v_mul_f32 v{A0+r}, v{A0+r}, v{A1+r}")
    for d in range(8): e(f"v_cvt_pk_bf16_f32 v{A0+d}, v{A0+2*d}, v{A0+2*d+1}")
    for r in range(4): e(f"v_mov_b32 v{A1+r}, 0x3f803f80\nv_mov_b32 v{A1+4+r}, 0")
    e(f"v_mul_f32 v{R1}, s78, v{R1}")
    e.wait(vm=["Za"])
    e(f"buffer_store_dwordx4 {vr(A0,4)}, v{VB}, s[12:15], s87 offen offset:1024")
    e(f"buffer_store_dwordx4 {vr(A0+4,4)}, v{VB}, s[12:15], s87 offen offset:1536")
    p.add(interleave(zp, e.l, per_gap=VAR.get('egap', 2), start=1))
    p(f"s_mov_b64 exec, 0x10001\nbuffer_store_dwordx4 {vr(A1,4)}, v{VB}, s[12:15], s87 offen offset:2048\nbuffer_store_dwordx4 {vr(A1+4,4)}, v{VB}, s[12:15], s87 offen offset:2064\ns_mov_b64 exec, -1")
    st(p, 6)
    p.wait(lg0=True)
    p("s_barrier")
    prio(p, 2)
    st(p, 7)
    p.add(cs_reads([5, 6], "cs3"))
    p.add(cs_corr([A2, A3_], False, "cs3"))
    for a in (A2, A3_):
        for r in range(16): p(f"v_mul_f32 v{a+r}, v{a+r}, v{R1}")
        for d in range(8): p(f"v_cvt_pk_bf16_f32 v{a+d}, v{a+2*d}, v{a+2*d+1}")
        p(f"buffer_store_dwordx4 {vr(a,4)}, v{VL}, s[12:15], s85 offen\ns_add_u32 s85, s85, s86")
        p(f"buffer_store_dwordx4 {vr(a+4,4)}, v{VL}, s[12:15], s85 offen\ns_add_u32 s85, s85, s86")
    st(p, 8); st(p, 9)
    st2(p, 0)
    f2.gen_attention(p, st2)
    p.label("L_end")
    p("s_endpgm")
    return p

def split_groups(l):
    lab = {x.op: i for i, x in enumerate(l) if getattr(x, 'kind', '') == "label"}
    b = next(i for i, x in enumerate(l) if getattr(x, 'kind', '') == "branch" and x.target == "L_g1")
    return b, lab["L_g1"]
def kf_paths(l):
    b, g1 = split_groups(l)
    lab = {x.op: i for i, x in enumerate(l) if x.kind == "label"}
    B = l[:lab["L_idle"]] + l[lab["L_g2"]:lab["L_retry"]]
    A = l[:b] + l[g1:]
    e = next(i for i, x in enumerate(A) if x.kind == "misc" and x.base == "s_endpgm")
    return [linearize(B, {"L_g_loop": 2}), l[lab["L_idle"]:lab["L_retry"]], linearize(A[:e+1], {"L_att_loop": 3})]
def finalize_kf(p, verbose=False):
    l = p.l
    b, g1 = split_groups(l)
    head = l[:b+1]
    r0 = resolve_waits(l[:g1])
    r1 = resolve_waits(head + l[g1:])
    nh = len(resolve_waits(head))
    p2 = Prog(); p2.l = r0 + r1[nh:]
    return finalize("kf", p2, paths=kf_paths, verbose=verbose)
KF_DESC = dict(name="kf_kernel", vgpr=256, sgpr=102, accum=256, grid=256, block=512, lds=K1_LDS)
```

```python
from common import *
SOLO = True
import struct
def float_hex(f): return hex(struct.unpack("<I", struct.pack("<f", f))[0])

IMG = 1024
LDS_FLAG = 0
LDS_STG = 131072
K2_LDS = 163840
VAR = dict(margin=72.0, U=8, prio_att=1, prio_g=0, fuse3=True, sentA=True, cdelay=2)

QA, QB = 4, 8
CA, CB = 16, 32
OA, OB = 48, 64
SA, SB = 80, 96
PA, PB = 112, 120
KR = [128, 132, 136, 140]
V0R = [144, 148, 152, 156]
V1R = [160, 164, 168, 172]
AK, AV0, AV1 = 176, 177, 178
GK, GV0, GV1 = 179, 180, 181
MA, MB = 182, 183
TM = 184
FL = 188
PF, PFA = 190, 191
STT = 192

def max16(p, S, M, first):
    if first:
        p(f"v_max3_f32 v{M}, v{S}, v{S+1}, v{S+2}")
        p(f"v_max_f32 v{M}, v{M}, v{S+3}")
        r = range(4, 16, 2)
    else: r = range(0, 16, 2)
    for k in r: p(f"v_max3_f32 v{M}, v{M}, v{S+k}, v{S+k+1}")

def flag_wait(p, name, addr_v, off, val, tmpq, sleep=1):
    p.label(name)
    p(f"ds_read_b128 {vr(tmpq,4)}, v{addr_v} offset:{off}")
    p("s_waitcnt lgkmcnt(0)")
    p(f"v_min_u32 v{tmpq}, v{tmpq}, v{tmpq+1}\nv_min3_u32 v{tmpq}, v{tmpq}, v{tmpq+2}, v{tmpq+3}")
    p(f"v_cmp_gt_u32 vcc, {val}, v{tmpq}")
    p(f"s_cbranch_vccz {name}_ok\ns_sleep {sleep}\ns_branch {name}")
    p.label(name + "_ok")

def spin1(p, name, addr_v, off, val, tmp):
    p.label(name)
    p(f"ds_read_b32 v{tmp}, v{addr_v} offset:{off}")
    p("s_waitcnt lgkmcnt(0)")
    p(f"v_cmp_gt_u32 vcc, {val}, v{tmp}")
    p(f"s_cbranch_vccz {name}_ok\ns_sleep 1\ns_branch {name}")
    p.label(name + "_ok")

def att_loop_body(U):
    out = []
    def blk(S, P, So, Po, Mqk, Mpv1, Mpv0, extra):
        e = lambda k: I(f"v_exp_f32 v{S+k}, v{S+k}")
        c = lambda k: I(f"v_cvt_pk_bf16_f32 v{P+k}, v{S+2*k}, v{S+2*k+1}")
        co = lambda k: I(f"v_cvt_pk_bf16_f32 v{Po+k}, v{So+2*k}, v{So+2*k+1}")
        o = []
        pq, p1, p0 = VAR.get('pos', (2, 6, 12))
        cs = VAR.get('cs', {0: [-6], 1: [-7], 3: [0], 5: [1], 7: [2], 9: [3], 11: [4], 13: [5]})
        if VAR.get('perm'):
            c = lambda k: I(f"v_perm_b32 v{P+k}, v{S+2*k+1}, v{S+2*k}, s45")
            co = lambda k: I(f"v_perm_b32 v{Po+k}, v{So+2*k+1}, v{So+2*k}, s45")
        for k in range(16):
            o.append(e(k))
            for j in cs.get(k, []):
                if j < 0: o.append(co(-j))
            if k == pq and not VAR.get('nom'): o.append(Mqk)
            if k == p1 and not VAR.get('nom'): o.append(Mpv1)
            if k == p0 and not VAR.get('nom'): o.append(Mpv0)
            o += extra.get(k, [])
            for j in cs.get(k, []):
                if j >= 0: o.append(c(j))
        return o
    for u in range(U):
        s0 = u % 4; s1 = (u+1) % 4; sm = (u-1) % 4
        exA = {}; exB = {}
        if u % 2 == 0:
            rd = []
            for d in (2, 3):
                o_ = (u+d-1)*KVT
                rd += [I(f"ds_read_b128 {vr(KR[(u+d)%4],4)}, v{AK} offset:{o_}"),
                       I(f"ds_read_b128 {vr(V0R[(u+d)%4],4)}, v{AV0} offset:{o_}"),
                       I(f"ds_read_b128 {vr(V1R[(u+d)%4],4)}, v{AV1} offset:{o_}")]
            exA = {VAR.get('rdpos', 6): rd}
            if VAR.get('nods'): exA = {}
        if u == U-1:
            exB = {2: [I("s_add_u32 s41, s41, 1")], 3: [I("s_bitcmp1_b32 s45, s41" if VAR['sentA'] else "s_cmp_eq_u32 s41, 1")], 4: [I("s_cbranch_scc1 L_att_sync2"), I("L_att_sync2_ret:")],
                   5: [I(f"v_mov_b32 v{TM}, s41")], 7: [I(f"ds_write_b32 v{FL+1}, v{TM} offset:80")],
                   6: [I(f"v_add_u32 v{AK}, {U*KVT}, v{AK}")], 8: [I(f"v_add_u32 v{AV0}, {U*KVT}, v{AV0}")], 10: [I(f"v_add_u32 v{AV1}, {U*KVT}, v{AV1}")],
                   14: [I(f"s_cmp_lt_u32 s41, {64//U}")]}
        if u % 2 == 1: exB[0] = [I("s_waitcnt lgkmcnt(0)")]
        out += blk(SA, PA, SB, PB, mfma32(vr(SB,16), vr(KR[s0],4), vr(QB,4), vr(CB,16)),
                   mfma32(vr(OB,16), vr(V1R[sm],4), vr(PB+4,4), vr(OB,16)),
                   mfma32(vr(OA,16), vr(V0R[s0],4), vr(PA,4), vr(OA,16)), exA)
        out += blk(SB, PB, SA, PA, mfma32(vr(SA,16), vr(KR[s1],4), vr(QA,4), vr(CA,16)),
                   mfma32(vr(OA,16), vr(V1R[s0],4), vr(PA+4,4), vr(OA,16)),
                   mfma32(vr(OB,16), vr(V0R[s0],4), vr(PB,4), vr(OB,16)), exB)
    return out

def k2_ids(p):
    p(f"""
    s_mov_b32 s24, s10
    s_and_b32 s25, s2, 7
    s_lshr_b32 s26, s2, 3
    s_lshr_b32 s27, s26, 3
    s_lshl_b32 s28, s25, 2
    s_add_u32 s27, s27, s28                ; head
    s_and_b32 s28, s26, 7                  ; qb
    """)
def gen_attention(p, st):
    U = VAR['U']
    k2_ids(p)
    p(f"""
    s_mul_i32 s30, s27, {KVH}
    s_add_u32 s30, s30, {KV}
    s_lshl_b32 s31, s27, 16
    s_lshl_b32 s32, s28, 3
    s_lshl_b32 s33, s24, 1
    s_add_u32 s32, s32, s33
    s_lshl_b32 s33, s32, 10
    s_add_u32 s31, s31, s33
    v_lshlrev_b32 v{GK}, 4, v1
    v_mov_b32 v{FL}, {LDS_FLAG}
    s_lshl_b32 s37, s24, 2
    v_add_u32 v{FL+1}, s37, v{FL}
    v_mov_b32 v{TM+1}, 1
    s_waitcnt vmcnt(0)
    ds_write_b32 v{FL+1}, v{TM+1} offset:112
    """)
    st(p, 8)
    p(f"""
    v_and_b32 v{TM}, 31, v1
    v_lshrrev_b32 v{TM+1}, 5, v1
    v_lshlrev_b32 v{TM+1}, 8, v{TM+1}
    v_lshl_add_u32 v{TM+1}, v{TM}, 4, v{TM+1}
    v_and_b32 v{TM+2}, 27, v{TM}
    v_cmp_eq_u32 vcc, 16, v{TM+2}
    v_mov_b32 v{TM+2}, 2064
    v_mov_b32 v{TM+3}, 2048
    v_cndmask_b32 v{TM+2}, v{TM+2}, v{TM+3}, vcc
    v_cmp_gt_u32 vcc, 16, v{TM}
    v_add_u32 v{GV0}, 1024, v{TM+1}
    v_add_u32 v{GV1}, 1536, v{TM+1}
    v_cndmask_b32 v{GV0}, v{TM+2}, v{GV0}, vcc
    v_cndmask_b32 v{GV1}, v{TM+2}, v{GV1}, vcc
    """)
    p("s_cmp_lg_u32 s24, 0\ns_cbranch_scc1 L_att_go")
    flag_wait(p, "L_att_ad", FL, 112, 1, TM, sleep=0)
    p(f"""
    v_mov_b32 v{TM}, s11
    buffer_store_dword v{TM}, off, s[12:15], s83 sc1
    s_lshr_b32 s34, s27, 2
    s_lshl_b32 s34, s34, 12
    s_add_u32 s34, s34, {PFL}
    v_and_b32 v{MA}, 31, v1
    v_lshlrev_b32 v{MA}, 7, v{MA}
    s_sleep {VAR.get('q0', 8)}
    """)
    poll(p, "L_att_p", 34, MA, None, TM, sleep=VAR.get('qsleep', 4))
    p(f"v_mov_b32 v{TM}, 1\nds_write_b32 v{FL}, v{TM} offset:96")
    p.label("L_att_go")
    spin1(p, "L_att_gw", FL, 96, 1, TM)
    st(p, 9)
    p(f"buffer_load_dwordx4 {vr(QA,4)}, v{GK}, s[12:15], s31 offen sc1")
    p(f"buffer_load_dwordx4 {vr(QB,4)}, v{GK}, s[12:15], s31 offen offset:1024 sc1")
    p(f"buffer_load_dwordx4 {vr(KR[0],4)}, v{GK}, s[12:15], s30 offen sc1")
    p(f"buffer_load_dwordx4 {vr(KR[1],4)}, v{GK}, s[12:15], s30 offen offset:{KVT} sc1")
    for t in range(2):
        p(f"buffer_load_dwordx4 {vr(V0R[t],4)}, v{GV0}, s[12:15], s30 offen offset:{t*KVT} sc1")
        p(f"buffer_load_dwordx4 {vr(V1R[t],4)}, v{GV1}, s[12:15], s30 offen offset:{t*KVT} sc1")
    p(f"""
    s_lshl_b32 s37, s24, 12
    s_add_u32 s38, s30, {KVT+1024}
    s_add_u32 s38, s38, s37
    s_add_u32 s37, s37, {IMG}
    """)
    for i in range(2):
        p("s_mov_b32 m0, s37")
        p("s_add_u32 s37, s37, 16384")
        for k in range(4 if i == 0 else 3):
            p(f"buffer_load_dwordx4 v{GK}, s[12:15], s38 offen offset:{k*1024} sc1 lds")
        p("s_add_u32 s38, s38, 16384")
    p(f"s_setprio {VAR['prio_att']}")
    if VAR['sentA']:
        p(f"""
        s_mul_i32 s33, s32, {88*1024}
        s_lshl_b32 s34, s27, 10
        s_add_u32 s33, s33, s34
        s_add_u32 s33, s33, {A3}
        s_add_u32 s39, s33, {88*1024}
        s_lshl_b32 s35, s32, 6
        s_lshl_b32 s34, s27, 2
        s_add_u32 s35, s35, s34
        s_add_u32 s35, s35, {OFL}
        s_mul_i32 s42, s26, 9363
        s_lshr_b32 s42, s42, 16                ; j/7
        s_mul_i32 s43, s42, 7
        s_sub_u32 s43, s26, s43                ; fb
        s_lshl_b32 s44, s25, 2
        s_add_u32 s42, s42, s44
        s_lshl_b32 s43, s43, 2
        s_add_u32 s43, s43, s24                ; ft
        s_mul_i32 s46, s42, {2*88*1024}
        s_lshl_b32 s44, s43, 11
        s_add_u32 s46, s46, s44
        s_add_u32 s46, s46, {A3 + 32*1024}
        s_lshl_b32 s42, s42, 7
        s_lshl_b32 s43, s43, 2
        s_add_u32 s42, s42, s43
        s_add_u32 s42, s42, {UFL}
        s_add_u32 s47, s46, {88*1024}
        s_mov_b32 s45, {2 + (1 << VAR.get('s3it', 2))}
        s_mov_b32 s44, 0
        s_cmp_lt_u32 s26, 28
        s_cbranch_scc1 L_att_nopre
        """)
        for r in range(4): p(f"v_mov_b32 v{STT+r}, -1")
        p(f"buffer_store_dwordx4 {vr(STT,4)}, v{GK}, s[12:15], s33 offen sc1\nbuffer_store_dwordx4 {vr(STT,4)}, v{GK}, s[12:15], s39 offen sc1")
        p(f"v_mov_b32 v{STT}, s11\ns_waitcnt vmcnt(0)\nbuffer_store_dword v{STT}, off, s[12:15], s35 sc1\ns_mov_b32 s45, 2\ns_mov_b32 s44, 1")
        p.label("L_att_nopre")
    p(f"v_mov_b32 v{TM}, 1\nds_write_b32 v{FL+1}, v{TM} offset:176")
    p(f"""
    v_mov_b32 v{AK}, v{GK}
    v_mov_b32 v{AV0}, v{GV0}
    v_mov_b32 v{AV1}, v{GV1}
    """)
    for r in list(range(OA, OA+32)) + list(range(PB+4, PB+6)) + list(range(V1R[3], V1R[3]+4)):
        p(f"v_mov_b32 v{r}, 0")
    p(f"s_waitcnt vmcnt(11)")
    p.add([mfma32(vr(SA,16), vr(KR[0],4), vr(QA,4), "0"), mfma32(vr(SB,16), vr(KR[0],4), vr(QB,4), "0"),
           mfma32(vr(CA,16), vr(KR[1],4), vr(QA,4), "0"), mfma32(vr(CB,16), vr(KR[1],4), vr(QB,4), "0")])
    max16(p, SA, MA, True); max16(p, SB, MB, True); max16(p, CA, MA, False); max16(p, CB, MB, False)
    p(f"""
    s_mov_b32 s40, {float_hex(VAR['margin'])}
    v_mov_b32 v{TM}, v{MA}
    v_mov_b32 v{TM+1}, v{MB}
    v_permlane32_swap_b32 v{TM}, v{MA}
    v_permlane32_swap_b32 v{TM+1}, v{MB}
    v_max_f32 v{MA}, v{MA}, v{TM}
    v_max_f32 v{MB}, v{MB}, v{TM+1}
    v_add_f32 v{MA}, s40, v{MA}
    v_add_f32 v{MB}, s40, v{MB}
    """)
    for r in range(16): p(f"v_sub_f32 v{CA+r}, 0, v{MA}")
    for r in range(12, 16): p(f"v_mov_b32 v{SB+r}, 0")
    p.add([mfma32(vr(SA,16), vr(KR[0],4), vr(QA,4), vr(CA,16))])
    for r in range(16): p(f"v_sub_f32 v{CB+r}, 0, v{MB}")
    p(f"s_waitcnt vmcnt(0)")
    p(f"v_mov_b32 v{TM}, 1\nds_write_b32 v{FL+1}, v{TM}")
    flag_wait(p, "L_att_f1", FL, 0, 1, TM)
    st(p, 1)
    p("s_mov_b32 s41, 0")
    p(".p2align 6")
    p.label("L_att_loop")
    p.add(att_loop_body(U))
    p("s_cbranch_scc1 L_att_loop")
    st(p, 2)
    if VAR.get('endprio'): p("s_setprio 3")
    p(f"v_cvt_pk_bf16_f32 v{PB+6}, v{SB+12}, v{SB+13}\nv_cvt_pk_bf16_f32 v{PB+7}, v{SB+14}, v{SB+15}")
    p(f"""
    s_mul_i32 s33, s32, {88*1024}
    s_lshl_b32 s34, s27, 10
    s_add_u32 s33, s33, s34
    s_add_u32 s33, s33, {A3}
    """)
    p.add([mfma32(vr(OB,16), vr(V1R[3],4), vr(PB+4,4), vr(OB,16))])
    p("s_waitcnt lgkmcnt(0)")
    p("s_mov_b32 s36, 0")
    p.label("L_att_chk")
    p(f"v_mul_f32 v{TM}, 0, v{OA+8}")
    for r in range(8): p(f"v_fmac_f32 v{TM}, 0, v{OA+r}")
    p(f"v_cmp_u_f32 vcc, v{TM}, v{TM}")
    p("s_cbranch_vccnz L_att_slow")
    p.label("L_att_fin")
    p(f"v_rcp_f32 v{MA}, v{OA+8}")
    p("s_cmp_lg_u32 s36, 0")
    for r in range(8): p(f"v_mul_f32 v{OA+r}, v{OA+r}, v{MA}")
    for k in range(4): p(f"v_cvt_pk_bf16_f32 v{PA+k}, v{OA+2*k}, v{OA+2*k+1}")
    for k in range(4): p(f"v_min_u32 v{PA+k}, -2, v{PA+k}")
    p(f"buffer_store_dwordx4 {vr(PA,4)}, v{GK}, s[12:15], s33 offen")
    p("s_cbranch_scc1 L_att_done")
    p(f"s_mov_b32 s36, 1\ns_add_u32 s33, s33, {88*1024}")
    for r in range(9): p(f"v_mov_b32 v{OA+r}, v{OB+r}")
    for r in range(4): p(f"v_mov_b32 v{QA+r}, v{QB+r}")
    p("s_branch L_att_chk")
    p.label("L_att_done")
    st(p, 3)
    p("s_endpgm")
    p.label("L_att_sync2")
    if VAR['sentA']: p("s_cmp_lg_u32 s41, 1\ns_cbranch_scc1 L_att_sync3")
    if VAR['sentA']:
        p("s_cmp_lg_u32 s44, 0\ns_cbranch_scc1 L_att_f2")
        for r in range(4): p(f"v_mov_b32 v{STT+r}, -1")
        p(f"buffer_store_dwordx4 {vr(STT,4)}, v{GK}, s[12:15], s33 offen sc1\nbuffer_store_dwordx4 {vr(STT,4)}, v{GK}, s[12:15], s39 offen sc1")
        for k in range(4): p(f"buffer_store_dwordx4 {vr(STT,4)}, v{GK}, s[12:15], s{46+k//2} offen offset:{(k%2)*1024} sc1")
    flag_wait(p, "L_att_f2", FL, 48, 1, TM)
    p("s_branch L_att_sync2_ret")
    p.label("L_att_sync3")
    if VAR['sentA']:
        p(f"v_mov_b32 v{TM}, s11\nv_mov_b32 v{TM+1}, 1\ns_waitcnt vmcnt(0)\nbuffer_store_dword v{TM}, off, s[12:15], s35 sc1\nbuffer_store_dword v{TM}, off, s[12:15], s42 sc1\nds_write_b32 v{FL+1}, v{TM+1} offset:64")
    p("s_branch L_att_sync2_ret")
    p.label("L_att_slow")
    p(f"v_mov_b32 v{MA}, 0xff800000\ns_mov_b32 s41, 0\ns_mov_b32 s37, s30")
    p.label("L_att_sl1")
    p(f"buffer_load_dwordx4 {vr(KR[0],4)}, v{GK}, s[12:15], s37 offen sc1")
    p("s_waitcnt vmcnt(0)")
    p.add([mfma32(vr(SA,16), vr(KR[0],4), vr(QA,4), "0")])
    max16(p, SA, MA, False)
    p(f"s_add_u32 s37, s37, {KVT}\ns_add_u32 s41, s41, 1\ns_cmp_lt_u32 s41, 64\ns_cbranch_scc1 L_att_sl1")
    p(f"v_mov_b32 v{TM}, v{MA}\nv_permlane32_swap_b32 v{TM}, v{MA}\nv_max_f32 v{MA}, v{MA}, v{TM}")
    for r in range(16): p(f"v_sub_f32 v{CA+r}, 0, v{MA}\nv_mov_b32 v{OA+r}, 0")
    p("s_mov_b32 s41, 0\ns_mov_b32 s37, s30")
    p.label("L_att_sl2")
    p(f"buffer_load_dwordx4 {vr(KR[0],4)}, v{GK}, s[12:15], s37 offen sc1")
    p(f"buffer_load_dwordx4 {vr(V0R[0],4)}, v{GV0}, s[12:15], s37 offen sc1")
    p(f"buffer_load_dwordx4 {vr(V1R[0],4)}, v{GV1}, s[12:15], s37 offen sc1")
    p("s_waitcnt vmcnt(0)")
    p.add([mfma32(vr(SA,16), vr(KR[0],4), vr(QA,4), vr(CA,16))])
    for k in range(16): p(f"v_exp_f32 v{SA+k}, v{SA+k}")
    for k in range(8): p(f"v_cvt_pk_bf16_f32 v{PA+k}, v{SA+2*k}, v{SA+2*k+1}")
    p.add([mfma32(vr(OA,16), vr(V0R[0],4), vr(PA,4), vr(OA,16)), mfma32(vr(OA,16), vr(V1R[0],4), vr(PA+4,4), vr(OA,16))])
    p(f"s_add_u32 s37, s37, {KVT}\ns_add_u32 s41, s41, 1\ns_cmp_lt_u32 s41, 64\ns_cbranch_scc1 L_att_sl2")
    p("s_nop 15\ns_branch L_att_fin")

ACC = 4
NZF = 16
ZR = 132
WR = 196
VL = 244; VD = 245; VW = 247
GF = 251
G = 232
def acc(i, tt): return ACC + (i*2+tt)*16

def kv_rest(p, uniq):
    p(f"s_sub_u32 m0, s62, {16384-3072}\ns_sub_u32 s61, s63, {16384-3072}")
    p(f"buffer_load_dwordx4 v{VL}, s[12:15], s61 offen sc1 lds", tag="kv")
    for i in range(6):
        p("s_mov_b32 m0, s62")
        if i < 5: p("s_add_u32 s62, s62, 16384")
        else: p("s_cmp_eq_u32 s24, 3")
        for k in range(4):
            if i == 5 and k == 3: p(f"s_cbranch_scc1 L_g_kvdone{uniq}")
            p(f"buffer_load_dwordx4 v{VL}, s[12:15], s63 offen offset:{k*1024} sc1 lds", tag="kv")
        if i < 5: p("s_add_u32 s63, s63, 16384")
    p.label(f"L_g_kvdone{uniq}")

def flag_addr(p):
    p(f"""
    s_lshr_b32 s48, s26, 3
    s_lshl_b32 s47, s25, 2
    s_add_u32 s48, s48, s47
    s_lshl_b32 s48, s48, 7                 ; tb'*128
    s_lshl_b32 s47, s24, 5
    s_add_u32 s46, s48, s47
    s_mul_i32 s47, s24, 28
    s_add_u32 s48, s48, s47
    s_add_u32 s48, s48, {UFL-OFL}          ; u flags
    s_and_b32 s47, s26, 7
    s_lshl_b32 s47, s47, 7
    s_add_u32 s47, s47, {WFL-OFL}          ; W flags
    v_lshlrev_b32 v{G+5}, 2, v1
    v_mov_b32 v{G+6}, s48
    v_add_u32 v{G+7}, s48, v{G+5}
    v_cmp_gt_u32 vcc, 7, v1
    v_cndmask_b32 v{G+6}, v{G+6}, v{G+7}, vcc
    v_subrev_u32 v{G+5}, 128, v{G+5}
    v_add_u32 v{G+7}, s47, v{G+5}
    v_cmp_gt_u32 vcc, 64, v{G+5}
    v_cndmask_b32 v{G+6}, v{G+6}, v{G+7}, vcc
    v_subrev_u32 v{G+5}, 64, v{G+5}
    v_add_u32 v{G+7}, s46, v{G+5}
    v_cmp_gt_u32 vcc, 32, v{G+5}
    v_cndmask_b32 v{G+6}, v{G+6}, v{G+7}, vcc
    v_subrev_u32 v{G+5}, 32, v{G+5}
    v_add_u32 v{G+7}, s49, v{G+5}
    v_cmp_gt_u32 vcc, 8, v{G+5}
    v_cndmask_b32 v{G+6}, v{G+6}, v{G+7}, vcc
    s_mov_b32 s48, {OFL}
    """)
def gen_gemm(p, st, mid=None):
    k2_ids(p)
    p(f"""
    s_load_dwordx4 s[4:7], s[0:1], {KA_WSP}
    s_sub_u32 s24, s24, 4                  ; q = K quarter
    v_lshlrev_b32 v{VL}, 4, v1
    s_mul_i32 s63, s27, {KVH}
    s_lshl_b32 s62, s24, 12
    s_add_u32 s62, s62, 32768
    s_add_u32 s63, s63, s62
    s_add_u32 s63, s63, {KV + KVT + 1024}
    s_add_u32 s62, s62, {IMG}
    s_lshl_b32 s46, s24, 2
    s_add_u32 s46, s46, {LDS_FLAG}
    v_mov_b32 v{GF}, s46
    v_mov_b32 v0, 1
    v_mov_b32 v2, {LDS_FLAG}
    s_waitcnt lgkmcnt(0)
    ds_write_b32 v{GF}, v0 offset:160
    """)
    srd(p, 16, 4, 2048*2048*2); srd(p, 20, 6, 4096)
    flag_wait(p, "L_g_bd", 2, 160, 1, 4)
    flag_wait(p, "L_g_go", 2, 176, 1, 4, sleep=2)
    kv_rest(p, "a")
    p(f"""
    s_cmp_ge_u32 s26, 28
    s_cbranch_scc1 L_idle
    s_setprio 3
    s_mul_i32 s30, s26, 9363
    s_lshr_b32 s30, s30, 16                ; j/7
    s_mul_i32 s31, s30, 7
    s_sub_u32 s31, s26, s31                ; fb = j%7
    s_lshl_b32 s32, s25, 2
    s_add_u32 s30, s30, s32                ; tb
    s_lshl_b32 s33, s31, 19
    s_add_u32 s33, s33, {Z2F}
    s_lshl_b32 s34, s24, 17
    s_add_u32 s33, s33, s34
    s_lshl_b32 s56, s30, 18
    s_lshl_b32 s34, s24, 10
    s_add_u32 s56, s56, s34
    s_lshl_b32 s36, s24, 13
    s_add_u32 s36, s36, {LDS_STG}
    s_add_u32 s37, s36, 4096
    v_lshrrev_b32 v2, 3, v1
    v_lshrrev_b32 v3, 4, v1
    v_xor_b32 v3, v3, v1
    v_and_b32 v3, 7, v3
    v_lshlrev_b32 v3, 4, v3
    v_lshl_add_u32 v{VD}, v2, 12, v3
    v_xor_b32 v{VD+1}, 64, v{VD}
    v_add_u32 v{VD+1}, {8*4096-1024}, v{VD+1}
    """)
    for i in range(4):
        p(f"s_add_u32 s38, s24, {i}\ns_and_b32 s38, s38, 3\ns_lshl_b32 s38, s38, 10\ns_add_u32 s{52+i}, s33, s38")
    p(f"""
    s_lshl_b32 s38, s31, 12                ; (2fb)*16*128
    s_lshl_b32 s39, s24, 9
    s_add_u32 s39, s39, s38
    s_add_u32 s39, s39, {PFL+16}
    s_lshr_b32 s49, s24, 1
    s_lshl_b32 s49, s49, 11
    s_add_u32 s49, s49, s38
    s_lshr_b32 s38, s30, 1
    s_lshl_b32 s38, s38, 7
    s_add_u32 s49, s49, s38
    s_and_b32 s38, s30, 1
    s_lshl_b32 s38, s38, 3
    s_add_u32 s49, s49, s38
    s_add_u32 s49, s49, {PFL+32-OFL}
    v_and_b32 v4, 3, v1
    v_bfe_u32 v5, v1, 2, 1
    v_lshlrev_b32 v5, 11, v5
    v_lshl_add_u32 v4, v4, 7, v5
    v_bfe_u32 v5, v1, 3, 2
    v_lshl_add_u32 v4, v5, 2, v4
    """)
    def dma(b):
        out = []
        for i in range(8):
            if i % 4 == 0: out.append(I(f"s_mov_b32 m0, s{(66 if (b % 3 == 2 and b > 2) else 36) + i//4}"))
            if i % 2 == 0: out.append(I(f"s_add_u32 s57, s56, {(i//2)*16*4096 - (i%4)*1024}"))
            out.append(I(f"buffer_load_dwordx4 v{VD + i%2}, s[16:19], s57 offen offset:{(i%4)*1024} sc1 lds", tag=f"d{b}"))
        out.append(I("s_add_u32 s56, s56, 128"))
        return out
    def zload(n):
        i = n % 4
        return [I(f"buffer_load_dwordx4 {vr(ZR + (n%NZF)*4, 4)}, v{VL}, s[12:15], s{52+i} offen sc1", tag=f"z{n}"),
                I(f"s_add_u32 s{52+i}, s{52+i}, 4096")]
    p.add(dma(0))
    if VAR.get('ordb'):
        p.wait(vm="kv"); p(f"ds_write_b32 v{GF}, v0 offset:48")
        poll(p, "L_pz", 39, 4, None, 5, sleep=VAR.get('zsleep', 4))
        st(p, 9)
        if VAR.get('stop') == 1: p("s_endpgm")
        for n in range(16): p.add(zload(n))
        mid(p, "a")
    else:
        mid(p, "a", [W(vm="kv"), I(f"ds_write_b32 v{GF}, v0 offset:48")])
        p.wait(vm="kv"); p(f"ds_write_b32 v{GF}, v0 offset:48")
        poll(p, "L_pz", 39, 4, None, 5, sleep=VAR.get('zsleep', 4))
        p(f"v_mov_b32 v0, s11\nbuffer_store_dword v0, off, s[12:15], s89 sc1")
        st(p, 9)
        if VAR.get('stop') == 1: p("s_endpgm")
        for n in range(16): p.add(zload(n))
    p(f"v_and_b32 v2, 31, v1")
    bitswap23(p, 2, 2, 3)
    p(f"""
    v_lshrrev_b32 v3, 1, v2
    v_lshrrev_b32 v{VW}, 5, v1
    v_xor_b32 v3, v3, v{VW}
    v_and_b32 v3, 7, v3
    v_lshlrev_b32 v3, 4, v3
    v_lshl_add_u32 v{VW}, v2, 7, v3
    v_add_u32 v{VW}, s36, v{VW}
    v_xor_b32 v{VW+1}, 32, v{VW}
    v_xor_b32 v{VW+2}, 64, v{VW}
    v_xor_b32 v{VW+3}, 96, v{VW}
    """)
    if VAR['fuse3']:
        flag_addr(p); p(f"v_mov_b32 v3, v{G+6}")
    p(f"s_setprio {VAR['prio_g']}")
    st(p, 1)
    wr = lambda g, tt: WR + ((g % 6)*2 + tt)*4
    def wread(b):
        return [I(f"ds_read_b128 {vr(wr(4*b+u, tt), 4)}, v{VW+u} offset:{tt*4096}", tag=f"w{b}", needs=[f"d{b}"]) for u in range(4) for tt in range(2)]
    def block_burst(b, first=False, dma_on=True, z_on=True, w_on=True):
        o = []
        for u in range(4):
            g = 4*b+u
            o.append(W(vm=[f"z{4*g+3}"]))
            for i in range(4):
                n = 4*g+i
                for tt in range(2):
                    c = "0" if (first and u == 0) else vr(acc(i,tt),16)
                    o.append(mfma32(vr(acc(i,tt),16), vr(ZR+(n%NZF)*4,4), vr(wr(g,tt),4), c))
                if u == 2 and i == 1 and w_on:
                    o.append(W(lg=f"w{b+1}"))
                    if dma_on: o += dma(b+2)
            if u == 1 and w_on: o += [W(vm=f"d{b+1}")] + wread(b+1)
            if z_on:
                for i in range(4): o += zload(4*g+i+NZF)
        return o
    def block(b, first=False, dma_on=True, z_on=True, w_on=True):
        if VAR.get('burst'): return block_burst(b, first, dma_on, z_on, w_on)
        o = []
        dm = []
        if w_on and dma_on:
            cur = []
            for x in dma(b+2):
                cur.append(x)
                if x.kind == "vmem": dm.append(cur); cur = []
            dm[-1] += cur
        wrd = wread(b+1) if w_on else []
        for u in range(4):
            g = 4*b+u
            for i in range(4):
                n = 4*g+i
                for tt in range(2):
                    if tt == 0: o.append(W(vm=[f"z{n}"]))
                    c = "0" if (first and u == 0) else vr(acc(i,tt),16)
                    o.append(mfma32(vr(acc(i,tt),16), vr(ZR+(n%NZF)*4,4), vr(wr(g,tt),4), c))
                    if VAR.get('pace'): o.append(I(f"s_nop {VAR['pace']}"))
                    if tt == 1 and z_on: o += zload(n+NZF)
                    if tt == 0:
                        if u == 2 and w_on:
                            if i == 0: o.append(W(vm=f"d{b+1}"))
                            o += wrd[2*i:2*i+2]
                        if u == 3 and dm:
                            if i == 0: o.append(W(lg=f"w{b+1}"))
                            o += dm.pop(0) + dm.pop(0)
                        elif u == 3 and i == 0 and w_on: o.append(W(lg=f"w{b+1}"))
        return o
    p.add(wread(0)); p.wait(lg="w0"); p.add(dma(1))
    p.add(block(0, first=True))
    p("s_mov_b32 s60, 0")
    hist = dma(0) + sum([zload(n) for n in range(16)], []) + dma(1) + block(0) + block(1) + block(2) + block(3) + [I("L_mark:")] + block(4) + block(5) + block(6)
    full = resolve_waits(hist)
    lb = full[next(i for i, x in enumerate(full) if x.kind == "label" and x.op == "L_mark")+1:]
    first_pass = resolve_waits(dma(0) + sum([zload(n) for n in range(16)], []) + dma(1) + block(0) + [I("L_mark:")] + block(1) + block(2) + block(3))
    fp = first_pass[next(i for i, x in enumerate(first_pass) if x.kind == "label" and x.op == "L_mark")+1:]
    assert len(fp) == len(lb)
    merged = []
    for x, y in zip(fp, lb):
        if x.kind == "wait":
            vm = min(v for v in (x.vm, y.vm) if v is not None) if (x.vm is not None or y.vm is not None) else None
            lg = min(v for v in (x.lg, y.lg) if v is not None) if (x.lg is not None or y.lg is not None) else None
            merged.append(I("s_waitcnt " + " ".join(([f"vmcnt({vm})"] if vm is not None else []) + ([f"lgkmcnt({lg})"] if lg is not None else []))))
        else:
            assert x.text == y.text, (x.text, y.text)
            merged.append(y)
    p.label("L_g_loop")
    p("s_cmp_eq_u32 s60, 1\ns_cselect_b32 s66, 0x30000, s36\ns_cselect_b32 s67, 0x30000, s37")
    p.add(merged)
    p("s_add_u32 s60, s60, 1\ns_cmp_lt_u32 s60, 2\ns_cbranch_scc1 L_g_loop")
    if VAR['fuse3']: p(f"s_mov_b32 s48, {OFL}"); p(f"buffer_load_dword v0, v3, s[12:15], s48 offen sc1", tag="fl")
    p.add(block(7, dma_on=False, z_on=False, w_on=False))
    st(p, 2)
    if VAR.get('stop') == 2: p("s_endpgm")
    p(f"s_setprio {VAR.get('prio_e', 3)}")
    p(f"""
    s_lshl_b32 s38, s30, 1
    s_mul_i32 s39, s38, {56*1024}
    s_lshl_b32 s40, s31, 2
    s_add_u32 s40, s40, s24
    s_lshl_b32 s41, s40, 11
    s_add_u32 s39, s39, s41
    s_add_u32 s39, s39, {Z1F}
    s_add_u32 s42, s39, {56*1024}
    s_mul_i32 s64, s38, {88*1024}
    s_add_u32 s64, s64, s41
    s_add_u32 s64, s64, {A3 + 32*1024}
    s_add_u32 s65, s64, {88*1024}
    s_lshl_b32 s45, s30, 7
    v_lshlrev_b32 v2, 1, v2
    """)
    Z = ZR
    p(f"v_mov_b32 v{G+1}, v{GF}")
    if VAR['fuse3']:
        p.wait(vm="fl")
        p("v_cmp_ne_u32 vcc, s11, v0\ns_cbranch_vccz L_g_fl")
        poll(p, "L_p00", 48, 3, None, 0, sleep=8)
        p.label("L_g_fl")
    p(f"buffer_load_dwordx4 {vr(Z,4)}, v{VL}, s[12:15], s39 offen sc1", tag="z1")
    p(f"buffer_load_dwordx4 {vr(Z+4,4)}, v{VL}, s[12:15], s39 offen offset:1024 sc1", tag="z1")
    p(f"buffer_load_dwordx4 {vr(Z+8,4)}, v{VL}, s[12:15], s42 offen sc1", tag="z1")
    p(f"buffer_load_dwordx4 {vr(Z+12,4)}, v{VL}, s[12:15], s42 offen offset:1024 sc1", tag="z1")
    p(f"buffer_load_ushort v{Z+16}, v2, s[20:23], s45 offen sc1", tag="z1")
    p(f"buffer_load_ushort v{Z+17}, v2, s[20:23], s45 offen offset:64 sc1", tag="z1")
    if VAR['fuse3']:
        g2_scalars(p)
        w_loads(p, 0, 10)
    p(f"v_add_u32 v{G}, s36, v{VL}\nv_mov_b32 v{G+2}, {LDS_FLAG}\ns_lshl_b32 s47, s24, 14\ns_add_u32 s47, s47, {IMG}\nv_add_u32 v{G+3}, s47, v{VL}")
    for k in range(8): p(f"ds_write_b128 v{G}, {vr(acc(1,0)+4*k, 4)} offset:{k*1024}")
    flag_wait(p, "L_g_prog", G+2, 80, 4, G+4)
    for r in (2, 3):
        for k in range(8): p(f"ds_write_b128 v{G+3}, {vr(acc(r,0)+4*k, 4)} offset:{(r-2)*8192 + k*1024}")
    for r in range(1, 4):
        p(f"s_add_u32 s47, s24, {4-r}\ns_and_b32 s47, s47, 3")
        if r == 1: p(f"s_lshl_b32 s47, s47, 13\ns_add_u32 s47, s47, {LDS_STG}\nv_add_u32 v{G}, s47, v{VL}")
        else: p(f"s_lshl_b32 s47, s47, 14\ns_add_u32 s47, s47, {(r-2)*8192 + IMG}\nv_add_u32 v{2 if r == 2 else 3}, s47, v{VL}")
    p(f"v_mov_b32 v{G+3}, 1\ns_waitcnt lgkmcnt(0)\nds_write_b32 v{G+1}, v{G+3} offset:16")
    flag_wait(p, "L_g_dat", G+2, 16, 1, G+4, sleep=0)
    for r in range(1, 4):
        for k in range(8):
            p(f"ds_read_b128 {vr(acc(r,0)+4*k,4)}, v{(G, 2, 3)[r-1]} offset:{k*1024}", tag=f"r{r}_{k}")
        if r > 1:
            for k in range(8):
                p.wait(lg=f"r{r-1}_{k}")
                for e in range(4): p(f"v_add_f32 v{acc(0,0)+4*k+e}, v{acc(0,0)+4*k+e}, v{acc(r-1,0)+4*k+e}")
    for k in range(8):
        p.wait(lg=f"r3_{k}")
        for e in range(4): p(f"v_add_f32 v{acc(0,0)+4*k+e}, v{acc(0,0)+4*k+e}, v{acc(3,0)+4*k+e}")
    if VAR['sentA']: spin1(p, "L_g_pf", G+1, 64, 1, G+3)
    p.wait(vm="z1")
    T = acc(1, 0)
    p(f"v_lshlrev_b32 v{Z+16}, 16, v{Z+16}\nv_lshlrev_b32 v{Z+17}, 16, v{Z+17}")
    for tt in range(2):
        a = acc(0, tt)
        for r in range(16): p(f"v_add_f32 v{a+r}, v{a+r}, v{Z+16+tt}")
        for d in range(8):
            z = Z + tt*8 + d
            p(f"v_lshlrev_b32 v{T}, 16, v{z}\nv_and_b32 v{T+1}, 0xffff0000, v{z}")
            p(f"v_mul_f32 v{a+2*d}, v{a+2*d}, v{T}\nv_mul_f32 v{a+2*d+1}, v{a+2*d+1}, v{T+1}")
            p(f"v_cvt_pk_bf16_f32 v{T+8+tt*8+d}, v{a+2*d}, v{a+2*d+1}")
        for d in (range(8) if VAR.get('fullver', 1) else (0, 4)): p(f"v_min_u32 v{T+8+tt*8+d}, -2, v{T+8+tt*8+d}")
        so = 64 + tt
        p(f"buffer_store_dwordx4 {vr(T+8+tt*8,4)}, v{VL}, s[12:15], s{so} offen")
        p(f"buffer_store_dwordx4 {vr(T+12+tt*8,4)}, v{VL}, s[12:15], s{so} offen offset:1024")
    if VAR.get('pf3'):
        p(f"s_lshl_b32 s38, s26, 2\ns_add_u32 s38, s38, s24\ns_mul_i32 s38, s38, 16384\ns_add_u32 s38, s38, {W3F}\nv_lshlrev_b32 v2, 7, v1")
        p(f"buffer_load_dword v3, v2, s[12:15], s38 offen\ns_add_u32 s38, s38, 8192\nbuffer_load_dword v3, v2, s[12:15], s38 offen")
    st(p, 3)
    if VAR['fuse3']:
        if VAR.get('stop') == 3: p("s_endpgm")
        p("s_branch L_g2")
    else: p("s_endpgm")
    p.label("L_idle")
    p.wait(vm="kv"); p(f"s_waitcnt vmcnt(0)\nds_write_b32 v{GF}, v0 offset:48")
    mid(p, "b")
    p(f"""
    s_load_dwordx2 s[36:37], s[0:1], {KA_WO}
    s_load_dwordx2 s[38:39], s[0:1], {KA_WOUT}
    s_lshl_b32 s34, s25, 2
    s_add_u32 s34, s34, s26
    s_sub_u32 s34, s34, 28                      ; L
    s_mov_b32 s54, {896*1024}
    v_lshrrev_b32 v2, 2, v1
    v_and_b32 v3, 3, v1
    v_lshlrev_b32 v3, 4, v3
    v_lshl_add_u32 v2, v2, 10, v3
    s_waitcnt lgkmcnt(0)
    s_cmp_lt_u32 s34, 16
    s_cselect_b32 s52, s36, s38
    s_cselect_b32 s53, s37, s39
    s_cselect_b32 s54, {512*1024}, s54
    s_cselect_b32 s35, 8, 14
    s_cselect_b32 s67, 0, {32*1024}
    s_mov_b32 s55, 0x20000
    s_and_b32 s34, s34, 15
    s_mul_i32 s68, s24, s35
    s_lshl_b32 s69, s68, 14
    s_lshl_b32 s60, s34, 6
    s_add_u32 s69, s69, s60
    s_mul_i32 s60, s34, {88*1024}
    s_lshl_b32 s68, s68, 10
    s_add_u32 s60, s60, s68
    s_add_u32 s60, s60, s67
    s_add_u32 s60, s60, {W3F}
    s_lshl_b32 s61, s24, 13
    s_add_u32 s61, s61, {LDS_STG}
    """)
    def w3_dma(n):
        for k in range(n):
            p(f"s_add_u32 m0, s61, {k*1024}\ns_nop 0\nbuffer_load_dwordx4 v2, s[52:55], s69 offen lds\ns_add_u32 s69, s69, 16384")
    def w3_out(n):
        for k in range(n):
            p(f"ds_read_b64_tr_b16 v[{8+4*k}:{9+4*k}], v3 offset:{k*1024}\nds_read_b64_tr_b16 v[{10+4*k}:{11+4*k}], v3 offset:{k*1024+256}")
            if k % 4 == 3: p("s_waitcnt lgkmcnt(0)")
        p("s_waitcnt lgkmcnt(0)")
        for k in range(n):
            p(f"buffer_store_dwordx4 v[{8+4*k}:{11+4*k}], v{VL}, s[12:15], s60 offen\ns_add_u32 s60, s60, 1024")
    p(f"v_mov_b32 v5, s11\ns_waitcnt vmcnt(0)\nbuffer_store_dword v5, off, s[12:15], s89 sc1")
    w3_dma(8)
    NP = 8 if VAR.get('ipf', 1) else 0
    if NP:
        p(f"""
        s_sub_u32 s36, s26, 28
        s_lshl_b32 s36, s36, 2
        s_add_u32 s36, s36, s24                 ; wave16
        v_lshlrev_b32 v5, 12, v1
        s_lshl_b32 s56, s25, 20
        s_and_b32 s37, s36, 3
        s_lshl_b32 s37, s37, 18
        s_add_u32 s56, s56, s37
        s_lshr_b32 s37, s36, 2
        s_lshl_b32 s37, s37, 10
        s_add_u32 s56, s56, s37
        """)
        for g in range(8): p(f"buffer_load_dword v6, v5, s[16:19], s56 offen offset:{g*128}")
    p(f"""
    v_lshrrev_b32 v4, 5, v1
    v_lshlrev_b32 v3, 9, v4
    v_bfe_u32 v4, v1, 2, 2
    v_lshl_add_u32 v3, v4, 6, v3
    v_bfe_u32 v4, v1, 4, 1
    v_lshl_add_u32 v3, v4, 5, v3
    v_and_b32 v4, 1, v1
    v_lshl_add_u32 v3, v4, 4, v3
    v_bfe_u32 v4, v1, 1, 1
    v_lshl_add_u32 v3, v4, 3, v3
    v_add_u32 v3, s61, v3
    s_waitcnt vmcnt({NP})
    """)
    w3_out(8)
    p("s_cmp_eq_u32 s35, 8\ns_cbranch_scc1 L_w3done")
    w3_dma(6)
    p("s_waitcnt vmcnt(0)")
    w3_out(6)
    p.label("L_w3done")
    if not VAR['fuse3']:
        p("s_endpgm"); return
    p(f"""
    s_lshr_b32 s33, s34, 1
    s_lshl_b32 s33, s33, 7                      ; (nt>>1)*128
    s_and_b32 s34, s34, 1
    s_lshl_b32 s34, s34, 4
    s_add_u32 s33, s33, s34
    s_lshr_b32 s34, s67, 10                     ; 0 or 32
    s_add_u32 s33, s33, s34
    s_lshl_b32 s34, s24, 2
    s_add_u32 s33, s33, s34
    s_add_u32 s33, s33, {WFL}
    v_mov_b32 v0, s11
    s_waitcnt vmcnt(0)
    buffer_store_dword v0, off, s[12:15], s33 sc1
    s_add_u32 s49, s33, {-OFL & 0xffffffff:#x}
    s_and_b32 s49, s49, -64
    """)
    flag_addr(p)
    if VAR.get('stop'): p("s_endpgm")
    p.label("L_g2w")
    p(f"s_mov_b32 s48, {OFL}")
    poll(p, "L_p0", 48, G+6, None, G+5, sleep=32)
    gen_g2(p, st)


FA = 4
def FWr(k): return 152 + 4*k if k < 20 else 68 + 4*(k-20)
def FRr(k): return 100 + 4*k if k < 13 else 232 + 4*(k-13)
FX = 84
FXU = 152
FL_ = 244; FO = 245; FT = 246
def poll(p, name, soff, voff, mask_hi_lo, tmp, bad=0, sleep=None):
    p(f"s_mov_b32 s47, 0")
    p.label(name)
    p(f"buffer_load_dword v{tmp}, v{voff}, s[12:15], s{soff} offen sc1\ns_add_u32 s47, s47, 1\ns_waitcnt vmcnt(0)")
    p(f"{'v_cmp_eq_u32 vcc, -1' if bad == -1 else 'v_cmp_ne_u32 vcc, s11'}, v{tmp}\ns_cbranch_vccz {name}_ok\ns_cmp_gt_u32 s47, 0x40000\ns_cbranch_scc1 {name}_ok\ns_sleep {sleep or VAR.get('psleep', 16)}\ns_branch {name}")
    p.label(name + "_ok")
def g2_scalars(p):
    p(f"""
    s_load_dwordx2 s[6:7], s[0:1], {KA_X}
    s_load_dwordx2 s[8:9], s[0:1], {KA_OUT}
    s_lshr_b32 s27, s26, 3
    s_lshl_b32 s28, s25, 2
    s_add_u32 s27, s27, s28                ; tb
    s_and_b32 s28, s26, 7                  ; nb
    s_and_b32 s29, s24, 1
    s_lshr_b32 s30, s24, 1
    s_lshl_b32 s32, s27, 1
    s_add_u32 s33, s32, s29
    s_xor_b32 s34, s33, 1
    s_lshl_b32 s32, s28, 1
    s_add_u32 s35, s32, s30
    s_xor_b32 s37, s35, 1
    s_mul_i32 s40, s33, {88*1024}
    s_mul_i32 s41, s34, {88*1024}
    s_mul_i32 s42, s35, {88*1024}
    s_mul_i32 s43, s37, {88*1024}
    s_add_u32 s40, s40, {A3}
    s_add_u32 s41, s41, {A3}
    s_add_u32 s42, s42, {W3F}
    s_add_u32 s43, s43, {W3F}
    s_mul_i32 s31, s24, {14*1024}
    s_add_u32 s31, s31, {32*1024}
    s_lshl_b32 s32, s24, 13
    s_lshl_b32 s44, s33, 15
    s_lshl_b32 s45, s35, 6
    s_add_u32 s44, s44, s45
    s_mov_b32 s49, 0
    s_waitcnt lgkmcnt(0)
    """)
def Wu(s_, i): return 152 + 4*(((s_ if s_ < 10 else s_-10))*2 + i)
def Wo(k, i): return (152 + 4*((k+4)*2 + i)) if k < 6 else (68 + 4*((k-6)*2 + i))
def Ur(s_, i):
    n = (s_ % 12)*2 + i
    return FRr(n) if n < 16 else 68 + 4*(n-16)
def w_loads(p, s0, s1, tag=None):
    for s_ in range(s0, s1):
        for i in range(2):
            if s_ == s0 or s_ % 4 == 0: p(f"s_add_u32 s{54+i}, s{42+i}, s31\ns_add_u32 s{54+i}, s{54+i}, {(s_//4)*4096}")
            p(f"buffer_load_dwordx4 {vr(Wu(s_, i),4)}, v{FL_}, s[12:15], s{54+i} offen offset:{(s_%4)*1024} sc1", tag=tag)
def gen_g2(p, st):
    p("s_setprio 3")
    g2_scalars(p)
    p.label("L_g2_redo")
    w_loads(p, 0, 10)
    p.label("L_g2")
    for i in range(2): p(f"s_add_u32 s{52+i}, s{40+i}, s31")
    for i in range(4): p(f"s_add_u32 s{56+i}, s{40+i}, s32")
    p(f"""
    s_min_u32 s46, s52, s53
    s_min_u32 s45, s56, s57
    v_lshrrev_b32 v2, 1, v1
    v_min_u32 v{FT+2}, 13, v2
    v_min_u32 v{FT+1}, 7, v2
    v_and_b32 v3, 1, v1
    v_mul_u32_u24 v3, {88*1024}, v3
    v_add_u32 v3, 1008, v3
    v_lshl_add_u32 v{FT+2}, v{FT+2}, 10, v3
    v_lshl_add_u32 v{FT+1}, v{FT+1}, 10, v3
    v_and_b32 v2, 31, v1
    """)
    bitswap23(p, 2, 2, 3)
    p(f"v_lshrrev_b32 v3, 5, v1\nv_lshlrev_b32 v3, 4, v3\nv_lshl_add_u32 v{FO}, v2, 10, v3\nv_mov_b32 v{FT+5}, 0")
    srd(p, 16, 6, 2048*1024); srd(p, 20, 8, 2048*1024)
    poll(p, "L_p1", 46, FT+2, None, FT+4, bad=-1)
    st(p, 4)
    p(f"s_setprio {VAR.get('prio_u', 3)}")
    NR = VAR.get('nr', 8)
    def ld(s):
        o = []
        if s and s % 4 == 0: o += [I(f"s_add_u32 s{52+i}, s{52+i}, 4096") for i in range(2)]
        for i in range(2):
            o.append(I(f"buffer_load_dwordx4 {vr(Ur(s, i),4)}, v{FL_}, s[12:15], s{52+i} offen offset:{(s%4)*1024} sc1", tag=f"g{s}"))
        return o
    def wo_ld(k):
        for i in range(2):
            p(f"s_add_u32 s47, s{58+i}, {(k//4)*4096}")
            p(f"buffer_load_dwordx4 {vr(Wo(k, i),4)}, v{FL_}, s[12:15], s47 offen offset:{(k%4)*1024} sc1", tag="wo")
    for s_ in range(NR): p.add(ld(s_))
    for s_ in range(14):
        p.wait(vm=[f"g{s_}", f"wu{s_}"])
        for n_, (a, b) in enumerate(((0,0), (0,1), (1,0), (1,1))):
            d = vr(FA + (a*2+b)*16, 16)
            p.add([mfma32(d, vr(Wu(s_, a),4), vr(Ur(s_, b),4), "0" if s_ == 0 else d)])
            r0 = Ur(s_, n_//2) + 2*(n_%2)
            if VAR.get('fullver', 1): p(f"v_max3_u32 v{FT+5}, v{FT+5}, v{r0}, v{r0+1}")
            elif n_ == 0: p(f"v_max3_u32 v{FT+5}, v{FT+5}, v{Ur(s_,0)}, v{Ur(s_,1)}")
        if s_+NR < 14: p.add(ld(s_+NR))
        if s_ < 4: w_loads(p, 10+s_, 11+s_, tag=f"wu{10+s_}")
        elif s_ < 12: wo_ld(s_-4)
    p(f"buffer_load_dwordx4 {vr(FX,4)}, v{FO}, s[16:19], s44 offen", tag="x")
    p(f"buffer_load_dwordx4 {vr(FX+4,4)}, v{FO}, s[16:19], s44 offen offset:32", tag="x")
    p(f"s_setprio 3\nv_cmp_eq_u32 vcc, -1, v{FT+5}\ns_cbranch_vccnz L_g2_again")
    p.label("L_g2_go")
    p.wait(vm="x")
    for d_ in range(7, -1, -1):
        p(f"v_and_b32 v{FXU+2*d_+1}, 0xffff0000, v{FX+d_}\nv_lshlrev_b32 v{FXU+2*d_}, 16, v{FX+d_}")
    st(p, 5)
    p("s_barrier")
    p("s_add_u32 s58, s56, 4096\ns_add_u32 s59, s57, 4096\ns_mov_b32 s49, 0")
    if VAR.get('direct', 0): p("s_branch L_p3b")
    p.label("L_p3")
    poll(p, "L_p2", 45, FT+1, None, FT+4, bad=-1, sleep=VAR.get('p3sleep', 4))
    p.label("L_p3b")
    for s_ in range(8):
        for i in range(2):
            p(f"buffer_load_dwordx4 {vr(FRr(s_*2+i),4)}, v{FL_}, s[12:15], s{56+i+2*(s_//4)} offen offset:{(s_%4)*1024} sc1", tag=f"o{s_}")
    p(f"v_mov_b32 v{FT+4}, 0\ns_add_u32 s49, s49, 1")
    for s_ in range(8):
        p.wait(vm=f"o{s_}")
        for k in range(0, 8, 2): p(f"v_max3_u32 v{FT+4}, v{FT+4}, v{FRr(2*s_+k//4)+k%4}, v{FRr(2*s_+k//4)+k%4+1}")
    p(f"v_cmp_eq_u32 vcc, -1, v{FT+4}\ns_cbranch_vccz L_p3_ok\ns_cmp_lt_u32 s49, 64\ns_cbranch_scc1 L_p3")
    p.label("L_p3_ok")
    st(p, 6)
    for i in range(1, 4):
        p(f"s_xor_b32 s46, s24, {i}\ns_mul_i32 s46, s46, 12288\ns_add_u32 s46, s46, {(i-1)*4096 + IMG}\nv_add_u32 v{FT+i}, s46, v{FL_}")
    p(f"s_mul_i32 s46, s24, 12288\ns_add_u32 s46, s46, {IMG}\nv_add_u32 v{FT}, s46, v{FL_}")
    for s_ in range(8):
        order = ((0,0), (0,1), (1,0), (1,1)) if s_ < 7 else ((0,1), (1,0), (1,1), (0,0))
        for (a, b) in order:
            d = vr(FA + (a*2+b)*16, 16)
            p.add([mfma32(d, vr(Wo(s_, a),4), vr(FRr(s_*2+b),4), d)])
    for i in range(1, 4):
        for k in range(4): p(f"ds_write_b128 v{FT+i}, {vr(FA+i*16+4*k,4)} offset:{k*1024}")
    for r in range(16): p(f"v_add_f32 v{FA+r}, v{FA+r}, v{FXU+r}")
    p("s_waitcnt lgkmcnt(0)\ns_barrier")
    for k in range(12): p(f"ds_read_b128 {vr(FA+16+4*k,4)}, v{FT} offset:{k*1024}", tag=f"r{k}")
    for k in range(12):
        p.wait(lg=f"r{k}")
        for e in range(4): p(f"v_add_f32 v{FA+(4*k+e)%16}, v{FA+(4*k+e)%16}, v{FA+16+4*k+e}")
    for d in range(8): p(f"v_cvt_pk_bf16_f32 v{FX+d}, v{FA+2*d}, v{FA+2*d+1}")
    p(f"buffer_store_dwordx4 {vr(FX,4)}, v{FO}, s[20:23], s44 offen")
    p(f"buffer_store_dwordx4 {vr(FX+4,4)}, v{FO}, s[20:23], s44 offen offset:32")
    st(p, 7)
    if st.on and VAR.get('dbg') is not None:
        D = VAR['dbg']
        p(f"s_cmp_lg_u32 s2, {D}\ns_cbranch_scc1 L_end\ns_cmp_lg_u32 s24, 0\ns_cbranch_scc1 L_end")
        p(f"s_load_dwordx2 s[6:7], s[0:1], {KA_DBG}\ns_waitcnt vmcnt(0)")
        sel = [(0,0,15),(0,0,1),(0,0,5),(0,0,7),(0,0,9),(1,0,15),(1,0,1),(1,0,2),(1,0,3),(1,4,1),(1,4,2),(1,4,3),(1,4,4),(1,4,5),(1,4,6),(1,4,7)]
        for i, (k, w, sl) in enumerate(sel):
            off = STAMP + k*0x80000 + (D*16 + w)*128 + sl*8 + 4
            p(f"v_mov_b32 v3, {off:#x}\nbuffer_load_dword v{100+i}, v3, s[12:15], 0 offen sc1")
        p("s_waitcnt vmcnt(0) lgkmcnt(0)")
        srd(p, 16, 6, 256)
        for i in range(16):
            p(f"v_sub_u32 v2, v{100+i}, v100\nbuffer_store_dword v2, off, s[16:19], 0 offset:{4*i}")
    p("s_endpgm")
    p.label("L_g2_again")
    p("s_add_u32 s49, s49, 1\ns_cmp_gt_u32 s49, 64\ns_cbranch_scc1 L_g2_go\ns_waitcnt vmcnt(0)\ns_branch L_g2_redo")


def placeholder_addrs(p, m):
    p(f"""
    s_and_b32 s34, s2, 7                   ; xcd
    s_lshr_b32 s35, s2, 3                  ; j
    s_lshr_b32 s53, s35, 3
    s_lshl_b32 s54, s34, 2
    s_add_u32 s53, s53, s54                ; head
    s_and_b32 s36, s35, 7
    s_lshl_b32 s36, s36, 2
    s_add_u32 s36, s36, s{m}
    s_lshl_b32 s37, s36, 7
    s_mul_i32 s36, s36, {2*88*1024}
    s_lshl_b32 s38, s53, 10
    s_add_u32 s36, s36, s38
    s_add_u32 s36, s36, {A3}
    s_lshl_b32 s53, s53, 2
    s_add_u32 s53, s53, s37
    s_add_u32 s53, s53, {OFL}
    s_add_u32 s37, s36, {88*1024}
    s_mul_i32 s38, s35, 9363
    s_lshr_b32 s38, s38, 16                ; j/7
    s_mul_i32 s39, s38, 7
    s_sub_u32 s39, s35, s39                ; fb
    s_add_u32 s38, s38, s54
    s_lshl_b32 s39, s39, 2
    s_add_u32 s39, s39, s{m}               ; ft
    s_lshl_b32 s54, s38, 7
    s_lshl_b32 s34, s39, 2
    s_add_u32 s54, s54, s34
    s_add_u32 s54, s54, {UFL}
    s_mul_i32 s38, s38, {2*88*1024}
    s_lshl_b32 s39, s39, 11
    s_add_u32 s38, s38, s39
    s_add_u32 s38, s38, {A3 + 32*1024}
    s_cmp_lt_u32 s35, 28
    s_cselect_b32 s38, s38, 0x7ff00000
    s_cselect_b32 s54, s54, 0x7ff00000
    s_add_u32 s39, s38, {88*1024}
    """)
```

```python
from common import *
SOLO = True
import struct
def float_hex(f): return hex(struct.unpack("<I", struct.pack("<f", f))[0])

IMG = 1024
LDS_FLAG = 0
LDS_STG = 131072
K2_LDS = 163840
VAR = dict(margin=72.0, U=8, prio_att=1, prio_g=0, fuse3=True, sentA=True, cdelay=2)

QA, QB = 4, 8
CA, CB = 16, 32
OA, OB = 48, 64
SA, SB = 80, 96
PA, PB = 112, 120
KR = [128, 132, 136, 140]
V0R = [144, 148, 152, 156]
V1R = [160, 164, 168, 172]
AK, AV0, AV1 = 176, 177, 178
GK, GV0, GV1 = 179, 180, 181
MA, MB = 182, 183
TM = 184
FL = 188
PF, PFA = 190, 191
STT = 192

def max16(p, S, M, first):
    if first:
        p(f"v_max3_f32 v{M}, v{S}, v{S+1}, v{S+2}")
        p(f"v_max_f32 v{M}, v{M}, v{S+3}")
        r = range(4, 16, 2)
    else: r = range(0, 16, 2)
    for k in r: p(f"v_max3_f32 v{M}, v{M}, v{S+k}, v{S+k+1}")

def flag_wait(p, name, addr_v, off, val, tmpq, sleep=1):
    p.label(name)
    p(f"ds_read_b128 {vr(tmpq,4)}, v{addr_v} offset:{off}")
    p("s_waitcnt lgkmcnt(0)")
    p(f"v_min_u32 v{tmpq}, v{tmpq}, v{tmpq+1}\nv_min3_u32 v{tmpq}, v{tmpq}, v{tmpq+2}, v{tmpq+3}")
    p(f"v_cmp_gt_u32 vcc, {val}, v{tmpq}")
    p(f"s_cbranch_vccz {name}_ok\ns_sleep {sleep}\ns_branch {name}")
    p.label(name + "_ok")

def spin1(p, name, addr_v, off, val, tmp):
    p.label(name)
    p(f"ds_read_b32 v{tmp}, v{addr_v} offset:{off}")
    p("s_waitcnt lgkmcnt(0)")
    p(f"v_cmp_gt_u32 vcc, {val}, v{tmp}")
    p(f"s_cbranch_vccz {name}_ok\ns_sleep 1\ns_branch {name}")
    p.label(name + "_ok")

def att_loop_body(U):
    out = []
    def blk(S, P, So, Po, Mqk, Mpv1, Mpv0, extra):
        e = lambda k: I(f"v_exp_f32 v{S+k}, v{S+k}")
        c = lambda k: I(f"v_cvt_pk_bf16_f32 v{P+k}, v{S+2*k}, v{S+2*k+1}")
        co = lambda k: I(f"v_cvt_pk_bf16_f32 v{Po+k}, v{So+2*k}, v{So+2*k+1}")
        o = []
        pq, p1, p0 = VAR.get('pos', (2, 6, 12))
        cs = VAR.get('cs', {0: [-6], 1: [-7], 3: [0], 5: [1], 7: [2], 9: [3], 11: [4], 13: [5]})
        if VAR.get('perm'):
            c = lambda k: I(f"v_perm_b32 v{P+k}, v{S+2*k+1}, v{S+2*k}, s45")
            co = lambda k: I(f"v_perm_b32 v{Po+k}, v{So+2*k+1}, v{So+2*k}, s45")
        for k in range(16):
            o.append(e(k))
            for j in cs.get(k, []):
                if j < 0: o.append(co(-j))
            if k == pq and not VAR.get('nom'): o.append(Mqk)
            if k == p1 and not VAR.get('nom'): o.append(Mpv1)
            if k == p0 and not VAR.get('nom'): o.append(Mpv0)
            o += extra.get(k, [])
            for j in cs.get(k, []):
                if j >= 0: o.append(c(j))
        return o
    for u in range(U):
        s0 = u % 4; s1 = (u+1) % 4; sm = (u-1) % 4
        exA = {}; exB = {}
        if u % 2 == 0:
            rd = []
            for d in (2, 3):
                o_ = (u+d-1)*KVT
                rd += [I(f"ds_read_b128 {vr(KR[(u+d)%4],4)}, v{AK} offset:{o_}"),
                       I(f"ds_read_b128 {vr(V0R[(u+d)%4],4)}, v{AV0} offset:{o_}"),
                       I(f"ds_read_b128 {vr(V1R[(u+d)%4],4)}, v{AV1} offset:{o_}")]
            exA = {VAR.get('rdpos', 6): rd}
            if VAR.get('nods'): exA = {}
        if u == U-1:
            exB = {2: [I("s_add_u32 s41, s41, 1")], 3: [I("s_bitcmp1_b32 s45, s41" if VAR['sentA'] else "s_cmp_eq_u32 s41, 1")], 4: [I("s_cbranch_scc1 L_att_sync2"), I("L_att_sync2_ret:")],
                   5: [I(f"v_mov_b32 v{TM}, s41")], 7: [I(f"ds_write_b32 v{FL+1}, v{TM} offset:80")],
                   6: [I(f"v_add_u32 v{AK}, {U*KVT}, v{AK}")], 8: [I(f"v_add_u32 v{AV0}, {U*KVT}, v{AV0}")], 10: [I(f"v_add_u32 v{AV1}, {U*KVT}, v{AV1}")],
                   14: [I(f"s_cmp_lt_u32 s41, {64//U}")]}
        if u % 2 == 1: exB[0] = [I("s_waitcnt lgkmcnt(0)")]
        out += blk(SA, PA, SB, PB, mfma32(vr(SB,16), vr(KR[s0],4), vr(QB,4), vr(CB,16)),
                   mfma32(vr(OB,16), vr(V1R[sm],4), vr(PB+4,4), vr(OB,16)),
                   mfma32(vr(OA,16), vr(V0R[s0],4), vr(PA,4), vr(OA,16)), exA)
        out += blk(SB, PB, SA, PA, mfma32(vr(SA,16), vr(KR[s1],4), vr(QA,4), vr(CA,16)),
                   mfma32(vr(OA,16), vr(V1R[s0],4), vr(PA+4,4), vr(OA,16)),
                   mfma32(vr(OB,16), vr(V0R[s0],4), vr(PB,4), vr(OB,16)), exB)
    return out

def k2_ids(p):
    p(f"""
    s_mov_b32 s24, s10
    s_and_b32 s25, s2, 7
    s_lshr_b32 s26, s2, 3
    s_lshr_b32 s27, s26, 3
    s_lshl_b32 s28, s25, 2
    s_add_u32 s27, s27, s28                ; head
    s_and_b32 s28, s26, 7                  ; qb
    """)
def gen_attention(p, st):
    U = VAR['U']
    k2_ids(p)
    p(f"""
    s_mul_i32 s30, s27, {KVH}
    s_add_u32 s30, s30, {KV}
    s_lshl_b32 s31, s27, 16
    s_lshl_b32 s32, s28, 3
    s_lshl_b32 s33, s24, 1
    s_add_u32 s32, s32, s33
    s_lshl_b32 s33, s32, 10
    s_add_u32 s31, s31, s33
    v_lshlrev_b32 v{GK}, 4, v1
    v_mov_b32 v{FL}, {LDS_FLAG}
    s_lshl_b32 s37, s24, 2
    v_add_u32 v{FL+1}, s37, v{FL}
    v_mov_b32 v{TM+1}, 1
    s_waitcnt vmcnt(0)
    ds_write_b32 v{FL+1}, v{TM+1} offset:112
    """)
    st(p, 8)
    p(f"""
    v_and_b32 v{TM}, 31, v1
    v_lshrrev_b32 v{TM+1}, 5, v1
    v_lshlrev_b32 v{TM+1}, 8, v{TM+1}
    v_lshl_add_u32 v{TM+1}, v{TM}, 4, v{TM+1}
    v_and_b32 v{TM+2}, 27, v{TM}
    v_cmp_eq_u32 vcc, 16, v{TM+2}
    v_mov_b32 v{TM+2}, 2064
    v_mov_b32 v{TM+3}, 2048
    v_cndmask_b32 v{TM+2}, v{TM+2}, v{TM+3}, vcc
    v_cmp_gt_u32 vcc, 16, v{TM}
    v_add_u32 v{GV0}, 1024, v{TM+1}
    v_add_u32 v{GV1}, 1536, v{TM+1}
    v_cndmask_b32 v{GV0}, v{TM+2}, v{GV0}, vcc
    v_cndmask_b32 v{GV1}, v{TM+2}, v{GV1}, vcc
    """)
    p("s_cmp_lg_u32 s24, 0\ns_cbranch_scc1 L_att_go")
    flag_wait(p, "L_att_ad", FL, 112, 1, TM, sleep=0)
    p(f"""
    v_mov_b32 v{TM}, s11
    buffer_store_dword v{TM}, off, s[12:15], s83 sc1
    s_lshr_b32 s34, s27, 2
    s_lshl_b32 s34, s34, 12
    s_add_u32 s34, s34, {PFL}
    v_and_b32 v{MA}, 31, v1
    v_lshlrev_b32 v{MA}, 7, v{MA}
    s_sleep {VAR.get('q0', 8)}
    """)
    poll(p, "L_att_p", 34, MA, None, TM, sleep=VAR.get('qsleep', 4))
    p(f"v_mov_b32 v{TM}, 1\nds_write_b32 v{FL}, v{TM} offset:96")
    p.label("L_att_go")
    spin1(p, "L_att_gw", FL, 96, 1, TM)
    st(p, 9)
    p(f"buffer_load_dwordx4 {vr(QA,4)}, v{GK}, s[12:15], s31 offen sc1")
    p(f"buffer_load_dwordx4 {vr(QB,4)}, v{GK}, s[12:15], s31 offen offset:1024 sc1")
    p(f"buffer_load_dwordx4 {vr(KR[0],4)}, v{GK}, s[12:15], s30 offen sc1")
    p(f"buffer_load_dwordx4 {vr(KR[1],4)}, v{GK}, s[12:15], s30 offen offset:{KVT} sc1")
    for t in range(2):
        p(f"buffer_load_dwordx4 {vr(V0R[t],4)}, v{GV0}, s[12:15], s30 offen offset:{t*KVT} sc1")
        p(f"buffer_load_dwordx4 {vr(V1R[t],4)}, v{GV1}, s[12:15], s30 offen offset:{t*KVT} sc1")
    p(f"""
    s_lshl_b32 s37, s24, 12
    s_add_u32 s38, s30, {KVT+1024}
    s_add_u32 s38, s38, s37
    s_add_u32 s37, s37, {IMG}
    """)
    for i in range(2):
        p("s_mov_b32 m0, s37")
        p("s_add_u32 s37, s37, 16384")
        for k in range(4 if i == 0 else 3):
            p(f"buffer_load_dwordx4 v{GK}, s[12:15], s38 offen offset:{k*1024} sc1 lds")
        p("s_add_u32 s38, s38, 16384")
    p(f"s_setprio {VAR['prio_att']}")
    if VAR['sentA']:
        p(f"""
        s_mul_i32 s33, s32, {88*1024}
        s_lshl_b32 s34, s27, 10
        s_add_u32 s33, s33, s34
        s_add_u32 s33, s33, {A3}
        s_add_u32 s39, s33, {88*1024}
        s_lshl_b32 s35, s32, 6
        s_lshl_b32 s34, s27, 2
        s_add_u32 s35, s35, s34
        s_add_u32 s35, s35, {OFL}
        s_mul_i32 s42, s26, 9363
        s_lshr_b32 s42, s42, 16                ; j/7
        s_mul_i32 s43, s42, 7
        s_sub_u32 s43, s26, s43                ; fb
        s_lshl_b32 s44, s25, 2
        s_add_u32 s42, s42, s44
        s_lshl_b32 s43, s43, 2
        s_add_u32 s43, s43, s24                ; ft
        s_mul_i32 s46, s42, {2*88*1024}
        s_lshl_b32 s44, s43, 11
        s_add_u32 s46, s46, s44
        s_add_u32 s46, s46, {A3 + 32*1024}
        s_lshl_b32 s42, s42, 7
        s_lshl_b32 s43, s43, 2
        s_add_u32 s42, s42, s43
        s_add_u32 s42, s42, {UFL}
        s_add_u32 s47, s46, {88*1024}
        s_mov_b32 s45, {2 + (1 << VAR.get('s3it', 2))}
        s_mov_b32 s44, 0
        s_cmp_lt_u32 s26, 28
        s_cbranch_scc1 L_att_nopre
        """)
        for r in range(4): p(f"v_mov_b32 v{STT+r}, -1")
        p(f"buffer_store_dwordx4 {vr(STT,4)}, v{GK}, s[12:15], s33 offen sc1\nbuffer_store_dwordx4 {vr(STT,4)}, v{GK}, s[12:15], s39 offen sc1")
        p(f"v_mov_b32 v{STT}, s11\ns_waitcnt vmcnt(0)\nbuffer_store_dword v{STT}, off, s[12:15], s35 sc1\ns_mov_b32 s45, 2\ns_mov_b32 s44, 1")
        p.label("L_att_nopre")
    p(f"v_mov_b32 v{TM}, 1\nds_write_b32 v{FL+1}, v{TM} offset:176")
    p(f"""
    v_mov_b32 v{AK}, v{GK}
    v_mov_b32 v{AV0}, v{GV0}
    v_mov_b32 v{AV1}, v{GV1}
    """)
    for r in list(range(OA, OA+32)) + list(range(PB+4, PB+6)) + list(range(V1R[3], V1R[3]+4)):
        p(f"v_mov_b32 v{r}, 0")
    p(f"s_waitcnt vmcnt(11)")
    p.add([mfma32(vr(SA,16), vr(KR[0],4), vr(QA,4), "0"), mfma32(vr(SB,16), vr(KR[0],4), vr(QB,4), "0"),
           mfma32(vr(CA,16), vr(KR[1],4), vr(QA,4), "0"), mfma32(vr(CB,16), vr(KR[1],4), vr(QB,4), "0")])
    max16(p, SA, MA, True); max16(p, SB, MB, True); max16(p, CA, MA, False); max16(p, CB, MB, False)
    p(f"""
    s_mov_b32 s40, {float_hex(VAR['margin'])}
    v_mov_b32 v{TM}, v{MA}
    v_mov_b32 v{TM+1}, v{MB}
    v_permlane32_swap_b32 v{TM}, v{MA}
    v_permlane32_swap_b32 v{TM+1}, v{MB}
    v_max_f32 v{MA}, v{MA}, v{TM}
    v_max_f32 v{MB}, v{MB}, v{TM+1}
    v_add_f32 v{MA}, s40, v{MA}
    v_add_f32 v{MB}, s40, v{MB}
    """)
    for r in range(16): p(f"v_sub_f32 v{CA+r}, 0, v{MA}")
    for r in range(12, 16): p(f"v_mov_b32 v{SB+r}, 0")
    p.add([mfma32(vr(SA,16), vr(KR[0],4), vr(QA,4), vr(CA,16))])
    for r in range(16): p(f"v_sub_f32 v{CB+r}, 0, v{MB}")
    p(f"s_waitcnt vmcnt(0)")
    p(f"v_mov_b32 v{TM}, 1\nds_write_b32 v{FL+1}, v{TM}")
    flag_wait(p, "L_att_f1", FL, 0, 1, TM)
    st(p, 1)
    p("s_mov_b32 s41, 0")
    p(".p2align 6")
    p.label("L_att_loop")
    p.add(att_loop_body(U))
    p("s_cbranch_scc1 L_att_loop")
    st(p, 2)
    if VAR.get('endprio'): p("s_setprio 3")
    p(f"v_cvt_pk_bf16_f32 v{PB+6}, v{SB+12}, v{SB+13}\nv_cvt_pk_bf16_f32 v{PB+7}, v{SB+14}, v{SB+15}")
    p(f"""
    s_mul_i32 s33, s32, {88*1024}
    s_lshl_b32 s34, s27, 10
    s_add_u32 s33, s33, s34
    s_add_u32 s33, s33, {A3}
    """)
    p.add([mfma32(vr(OB,16), vr(V1R[3],4), vr(PB+4,4), vr(OB,16))])
    p("s_waitcnt lgkmcnt(0)")
    p("s_mov_b32 s36, 0")
    p.label("L_att_chk")
    p(f"v_mul_f32 v{TM}, 0, v{OA+8}")
    for r in range(8): p(f"v_fmac_f32 v{TM}, 0, v{OA+r}")
    p(f"v_cmp_u_f32 vcc, v{TM}, v{TM}")
    p("s_cbranch_vccnz L_att_slow")
    p.label("L_att_fin")
    p(f"v_rcp_f32 v{MA}, v{OA+8}")
    p("s_cmp_lg_u32 s36, 0")
    for r in range(8): p(f"v_mul_f32 v{OA+r}, v{OA+r}, v{MA}")
    for k in range(4): p(f"v_cvt_pk_bf16_f32 v{PA+k}, v{OA+2*k}, v{OA+2*k+1}")
    for k in range(4): p(f"v_min_u32 v{PA+k}, -2, v{PA+k}")
    p(f"buffer_store_dwordx4 {vr(PA,4)}, v{GK}, s[12:15], s33 offen")
    p("s_cbranch_scc1 L_att_done")
    p(f"s_mov_b32 s36, 1\ns_add_u32 s33, s33, {88*1024}")
    for r in range(9): p(f"v_mov_b32 v{OA+r}, v{OB+r}")
    for r in range(4): p(f"v_mov_b32 v{QA+r}, v{QB+r}")
    p("s_branch L_att_chk")
    p.label("L_att_done")
    st(p, 3)
    p("s_endpgm")
    p.label("L_att_sync2")
    if VAR['sentA']: p("s_cmp_lg_u32 s41, 1\ns_cbranch_scc1 L_att_sync3")
    if VAR['sentA']:
        p("s_cmp_lg_u32 s44, 0\ns_cbranch_scc1 L_att_f2")
        for r in range(4): p(f"v_mov_b32 v{STT+r}, -1")
        p(f"buffer_store_dwordx4 {vr(STT,4)}, v{GK}, s[12:15], s33 offen sc1\nbuffer_store_dwordx4 {vr(STT,4)}, v{GK}, s[12:15], s39 offen sc1")
        for k in range(4): p(f"buffer_store_dwordx4 {vr(STT,4)}, v{GK}, s[12:15], s{46+k//2} offen offset:{(k%2)*1024} sc1")
    flag_wait(p, "L_att_f2", FL, 48, 1, TM)
    p("s_branch L_att_sync2_ret")
    p.label("L_att_sync3")
    if VAR['sentA']:
        p(f"v_mov_b32 v{TM}, s11\nv_mov_b32 v{TM+1}, 1\ns_waitcnt vmcnt(0)\nbuffer_store_dword v{TM}, off, s[12:15], s35 sc1\nbuffer_store_dword v{TM}, off, s[12:15], s42 sc1\nds_write_b32 v{FL+1}, v{TM+1} offset:64")
    p("s_branch L_att_sync2_ret")
    p.label("L_att_slow")
    p(f"v_mov_b32 v{MA}, 0xff800000\ns_mov_b32 s41, 0\ns_mov_b32 s37, s30")
    p.label("L_att_sl1")
    p(f"buffer_load_dwordx4 {vr(KR[0],4)}, v{GK}, s[12:15], s37 offen sc1")
    p("s_waitcnt vmcnt(0)")
    p.add([mfma32(vr(SA,16), vr(KR[0],4), vr(QA,4), "0")])
    max16(p, SA, MA, False)
    p(f"s_add_u32 s37, s37, {KVT}\ns_add_u32 s41, s41, 1\ns_cmp_lt_u32 s41, 64\ns_cbranch_scc1 L_att_sl1")
    p(f"v_mov_b32 v{TM}, v{MA}\nv_permlane32_swap_b32 v{TM}, v{MA}\nv_max_f32 v{MA}, v{MA}, v{TM}")
    for r in range(16): p(f"v_sub_f32 v{CA+r}, 0, v{MA}\nv_mov_b32 v{OA+r}, 0")
    p("s_mov_b32 s41, 0\ns_mov_b32 s37, s30")
    p.label("L_att_sl2")
    p(f"buffer_load_dwordx4 {vr(KR[0],4)}, v{GK}, s[12:15], s37 offen sc1")
    p(f"buffer_load_dwordx4 {vr(V0R[0],4)}, v{GV0}, s[12:15], s37 offen sc1")
    p(f"buffer_load_dwordx4 {vr(V1R[0],4)}, v{GV1}, s[12:15], s37 offen sc1")
    p("s_waitcnt vmcnt(0)")
    p.add([mfma32(vr(SA,16), vr(KR[0],4), vr(QA,4), vr(CA,16))])
    for k in range(16): p(f"v_exp_f32 v{SA+k}, v{SA+k}")
    for k in range(8): p(f"v_cvt_pk_bf16_f32 v{PA+k}, v{SA+2*k}, v{SA+2*k+1}")
    p.add([mfma32(vr(OA,16), vr(V0R[0],4), vr(PA,4), vr(OA,16)), mfma32(vr(OA,16), vr(V1R[0],4), vr(PA+4,4), vr(OA,16))])
    p(f"s_add_u32 s37, s37, {KVT}\ns_add_u32 s41, s41, 1\ns_cmp_lt_u32 s41, 64\ns_cbranch_scc1 L_att_sl2")
    p("s_nop 15\ns_branch L_att_fin")

ACC = 4
NZF = 16
ZR = 132
WR = 196
VL = 244; VD = 245; VW = 247
GF = 251
G = 232
def acc(i, tt): return ACC + (i*2+tt)*16

def kv_rest(p, uniq):
    p(f"s_sub_u32 m0, s62, {16384-3072}\ns_sub_u32 s61, s63, {16384-3072}")
    p(f"buffer_load_dwordx4 v{VL}, s[12:15], s61 offen sc1 lds", tag="kv")
    for i in range(6):
        p("s_mov_b32 m0, s62")
        if i < 5: p("s_add_u32 s62, s62, 16384")
        else: p("s_cmp_eq_u32 s24, 3")
        for k in range(4):
            if i == 5 and k == 3: p(f"s_cbranch_scc1 L_g_kvdone{uniq}")
            p(f"buffer_load_dwordx4 v{VL}, s[12:15], s63 offen offset:{k*1024} sc1 lds", tag="kv")
        if i < 5: p("s_add_u32 s63, s63, 16384")
    p.label(f"L_g_kvdone{uniq}")

def flag_addr(p):
    p(f"""
    s_lshr_b32 s48, s26, 3
    s_lshl_b32 s47, s25, 2
    s_add_u32 s48, s48, s47
    s_lshl_b32 s48, s48, 7                 ; tb'*128
    s_lshl_b32 s47, s24, 5
    s_add_u32 s46, s48, s47
    s_mul_i32 s47, s24, 28
    s_add_u32 s48, s48, s47
    s_add_u32 s48, s48, {UFL-OFL}          ; u flags
    s_and_b32 s47, s26, 7
    s_lshl_b32 s47, s47, 7
    s_add_u32 s47, s47, {WFL-OFL}          ; W flags
    v_lshlrev_b32 v{G+5}, 2, v1
    v_mov_b32 v{G+6}, s48
    v_add_u32 v{G+7}, s48, v{G+5}
    v_cmp_gt_u32 vcc, 7, v1
    v_cndmask_b32 v{G+6}, v{G+6}, v{G+7}, vcc
    v_subrev_u32 v{G+5}, 128, v{G+5}
    v_add_u32 v{G+7}, s47, v{G+5}
    v_cmp_gt_u32 vcc, 64, v{G+5}
    v_cndmask_b32 v{G+6}, v{G+6}, v{G+7}, vcc
    v_subrev_u32 v{G+5}, 64, v{G+5}
    v_add_u32 v{G+7}, s46, v{G+5}
    v_cmp_gt_u32 vcc, 32, v{G+5}
    v_cndmask_b32 v{G+6}, v{G+6}, v{G+7}, vcc
    v_subrev_u32 v{G+5}, 32, v{G+5}
    v_add_u32 v{G+7}, s49, v{G+5}
    v_cmp_gt_u32 vcc, 8, v{G+5}
    v_cndmask_b32 v{G+6}, v{G+6}, v{G+7}, vcc
    s_mov_b32 s48, {OFL}
    """)
def gen_gemm(p, st, mid=None):
    k2_ids(p)
    p(f"""
    s_load_dwordx4 s[4:7], s[0:1], {KA_WSP}
    s_sub_u32 s24, s24, 4                  ; q = K quarter
    v_lshlrev_b32 v{VL}, 4, v1
    s_mul_i32 s63, s27, {KVH}
    s_lshl_b32 s62, s24, 12
    s_add_u32 s62, s62, 32768
    s_add_u32 s63, s63, s62
    s_add_u32 s63, s63, {KV + KVT + 1024}
    s_add_u32 s62, s62, {IMG}
    s_lshl_b32 s46, s24, 2
    s_add_u32 s46, s46, {LDS_FLAG}
    v_mov_b32 v{GF}, s46
    v_mov_b32 v0, 1
    v_mov_b32 v2, {LDS_FLAG}
    s_waitcnt lgkmcnt(0)
    ds_write_b32 v{GF}, v0 offset:160
    """)
    srd(p, 16, 4, 2048*2048*2); srd(p, 20, 6, 4096)
    flag_wait(p, "L_g_bd", 2, 160, 1, 4)
    flag_wait(p, "L_g_go", 2, 176, 1, 4, sleep=2)
    kv_rest(p, "a")
    p(f"""
    s_cmp_ge_u32 s26, 28
    s_cbranch_scc1 L_idle
    s_setprio 3
    s_mul_i32 s30, s26, 9363
    s_lshr_b32 s30, s30, 16                ; j/7
    s_mul_i32 s31, s30, 7
    s_sub_u32 s31, s26, s31                ; fb = j%7
    s_lshl_b32 s32, s25, 2
    s_add_u32 s30, s30, s32                ; tb
    s_lshl_b32 s33, s31, 19
    s_add_u32 s33, s33, {Z2F}
    s_lshl_b32 s34, s24, 17
    s_add_u32 s33, s33, s34
    s_lshl_b32 s56, s30, 18
    s_lshl_b32 s34, s24, 10
    s_add_u32 s56, s56, s34
    s_lshl_b32 s36, s24, 13
    s_add_u32 s36, s36, {LDS_STG}
    s_add_u32 s37, s36, 4096
    v_lshrrev_b32 v2, 3, v1
    v_lshrrev_b32 v3, 4, v1
    v_xor_b32 v3, v3, v1
    v_and_b32 v3, 7, v3
    v_lshlrev_b32 v3, 4, v3
    v_lshl_add_u32 v{VD}, v2, 12, v3
    v_xor_b32 v{VD+1}, 64, v{VD}
    v_add_u32 v{VD+1}, {8*4096-1024}, v{VD+1}
    """)
    for i in range(4):
        p(f"s_add_u32 s38, s24, {i}\ns_and_b32 s38, s38, 3\ns_lshl_b32 s38, s38, 10\ns_add_u32 s{52+i}, s33, s38")
    p(f"""
    s_lshl_b32 s38, s31, 12                ; (2fb)*16*128
    s_lshl_b32 s39, s24, 9
    s_add_u32 s39, s39, s38
    s_add_u32 s39, s39, {PFL+16}
    s_lshr_b32 s49, s24, 1
    s_lshl_b32 s49, s49, 11
    s_add_u32 s49, s49, s38
    s_lshr_b32 s38, s30, 1
    s_lshl_b32 s38, s38, 7
    s_add_u32 s49, s49, s38
    s_and_b32 s38, s30, 1
    s_lshl_b32 s38, s38, 3
    s_add_u32 s49, s49, s38
    s_add_u32 s49, s49, {PFL+32-OFL}
    v_and_b32 v4, 3, v1
    v_bfe_u32 v5, v1, 2, 1
    v_lshlrev_b32 v5, 11, v5
    v_lshl_add_u32 v4, v4, 7, v5
    v_bfe_u32 v5, v1, 3, 2
    v_lshl_add_u32 v4, v5, 2, v4
    """)
    def dma(b):
        out = []
        for i in range(8):
            if i % 4 == 0: out.append(I(f"s_mov_b32 m0, s{(66 if (b % 3 == 2 and b > 2) else 36) + i//4}"))
            if i % 2 == 0: out.append(I(f"s_add_u32 s57, s56, {(i//2)*16*4096 - (i%4)*1024}"))
            out.append(I(f"buffer_load_dwordx4 v{VD + i%2}, s[16:19], s57 offen offset:{(i%4)*1024} sc1 lds", tag=f"d{b}"))
        out.append(I("s_add_u32 s56, s56, 128"))
        return out
    def zload(n):
        i = n % 4
        return [I(f"buffer_load_dwordx4 {vr(ZR + (n%NZF)*4, 4)}, v{VL}, s[12:15], s{52+i} offen sc1", tag=f"z{n}"),
                I(f"s_add_u32 s{52+i}, s{52+i}, 4096")]
    p.add(dma(0))
    if VAR.get('ordb'):
        p.wait(vm="kv"); p(f"ds_write_b32 v{GF}, v0 offset:48")
        poll(p, "L_pz", 39, 4, None, 5, sleep=VAR.get('zsleep', 4))
        st(p, 9)
        if VAR.get('stop') == 1: p("s_endpgm")
        for n in range(16): p.add(zload(n))
        mid(p, "a")
    else:
        mid(p, "a", [W(vm="kv"), I(f"ds_write_b32 v{GF}, v0 offset:48")])
        p.wait(vm="kv"); p(f"ds_write_b32 v{GF}, v0 offset:48")
        poll(p, "L_pz", 39, 4, None, 5, sleep=VAR.get('zsleep', 4))
        p(f"v_mov_b32 v0, s11\nbuffer_store_dword v0, off, s[12:15], s89 sc1")
        st(p, 9)
        if VAR.get('stop') == 1: p("s_endpgm")
        for n in range(16): p.add(zload(n))
    p(f"v_and_b32 v2, 31, v1")
    bitswap23(p, 2, 2, 3)
    p(f"""
    v_lshrrev_b32 v3, 1, v2
    v_lshrrev_b32 v{VW}, 5, v1
    v_xor_b32 v3, v3, v{VW}
    v_and_b32 v3, 7, v3
    v_lshlrev_b32 v3, 4, v3
    v_lshl_add_u32 v{VW}, v2, 7, v3
    v_add_u32 v{VW}, s36, v{VW}
    v_xor_b32 v{VW+1}, 32, v{VW}
    v_xor_b32 v{VW+2}, 64, v{VW}
    v_xor_b32 v{VW+3}, 96, v{VW}
    """)
    if VAR['fuse3']:
        flag_addr(p); p(f"v_mov_b32 v3, v{G+6}")
    p(f"s_setprio {VAR['prio_g']}")
    st(p, 1)
    wr = lambda g, tt: WR + ((g % 6)*2 + tt)*4
    def wread(b):
        return [I(f"ds_read_b128 {vr(wr(4*b+u, tt), 4)}, v{VW+u} offset:{tt*4096}", tag=f"w{b}", needs=[f"d{b}"]) for u in range(4) for tt in range(2)]
    def block_burst(b, first=False, dma_on=True, z_on=True, w_on=True):
        o = []
        for u in range(4):
            g = 4*b+u
            o.append(W(vm=[f"z{4*g+3}"]))
            for i in range(4):
                n = 4*g+i
                for tt in range(2):
                    c = "0" if (first and u == 0) else vr(acc(i,tt),16)
                    o.append(mfma32(vr(acc(i,tt),16), vr(ZR+(n%NZF)*4,4), vr(wr(g,tt),4), c))
                if u == 2 and i == 1 and w_on:
                    o.append(W(lg=f"w{b+1}"))
                    if dma_on: o += dma(b+2)
            if u == 1 and w_on: o += [W(vm=f"d{b+1}")] + wread(b+1)
            if z_on:
                for i in range(4): o += zload(4*g+i+NZF)
        return o
    def block(b, first=False, dma_on=True, z_on=True, w_on=True):
        if VAR.get('burst', 1): return block_burst(b, first, dma_on, z_on, w_on)
        o = []
        dm = []
        if w_on and dma_on:
            cur = []
            for x in dma(b+2):
                cur.append(x)
                if x.kind == "vmem": dm.append(cur); cur = []
            dm[-1] += cur
        wrd = wread(b+1) if w_on else []
        for u in range(4):
            g = 4*b+u
            for i in range(4):
                n = 4*g+i
                for tt in range(2):
                    if tt == 0: o.append(W(vm=[f"z{n}"]))
                    c = "0" if (first and u == 0) else vr(acc(i,tt),16)
                    o.append(mfma32(vr(acc(i,tt),16), vr(ZR+(n%NZF)*4,4), vr(wr(g,tt),4), c))
                    if VAR.get('pace'): o.append(I(f"s_nop {VAR['pace']}"))
                    if tt == 1 and z_on: o += zload(n+NZF)
                    if tt == 0:
                        if u == 2 and w_on:
                            if i == 0: o.append(W(vm=f"d{b+1}"))
                            o += wrd[2*i:2*i+2]
                        if u == 3 and dm:
                            if i == 0: o.append(W(lg=f"w{b+1}"))
                            o += dm.pop(0) + dm.pop(0)
                        elif u == 3 and i == 0 and w_on: o.append(W(lg=f"w{b+1}"))
        return o
    p.add(wread(0)); p.wait(lg="w0"); p.add(dma(1))
    p.add(block(0, first=True))
    p("s_mov_b32 s60, 0")
    hist = dma(0) + sum([zload(n) for n in range(16)], []) + dma(1) + block(0) + block(1) + block(2) + block(3) + [I("L_mark:")] + block(4) + block(5) + block(6)
    full = resolve_waits(hist)
    lb = full[next(i for i, x in enumerate(full) if x.kind == "label" and x.op == "L_mark")+1:]
    first_pass = resolve_waits(dma(0) + sum([zload(n) for n in range(16)], []) + dma(1) + block(0) + [I("L_mark:")] + block(1) + block(2) + block(3))
    fp = first_pass[next(i for i, x in enumerate(first_pass) if x.kind == "label" and x.op == "L_mark")+1:]
    assert len(fp) == len(lb)
    merged = []
    for x, y in zip(fp, lb):
        if x.kind == "wait":
            vm = min(v for v in (x.vm, y.vm) if v is not None) if (x.vm is not None or y.vm is not None) else None
            lg = min(v for v in (x.lg, y.lg) if v is not None) if (x.lg is not None or y.lg is not None) else None
            merged.append(I("s_waitcnt " + " ".join(([f"vmcnt({vm})"] if vm is not None else []) + ([f"lgkmcnt({lg})"] if lg is not None else []))))
        else:
            assert x.text == y.text, (x.text, y.text)
            merged.append(y)
    p.label("L_g_loop")
    p("s_cmp_eq_u32 s60, 1\ns_cselect_b32 s66, 0x30000, s36\ns_cselect_b32 s67, 0x30000, s37")
    p.add(merged)
    p("s_add_u32 s60, s60, 1\ns_cmp_lt_u32 s60, 2\ns_cbranch_scc1 L_g_loop")
    if VAR['fuse3']: p(f"s_mov_b32 s48, {OFL}"); p(f"buffer_load_dword v0, v3, s[12:15], s48 offen sc1", tag="fl")
    p.add(block(7, dma_on=False, z_on=False, w_on=False))
    st(p, 2)
    if VAR.get('stop') == 2: p("s_endpgm")
    p(f"s_setprio {VAR.get('prio_e', 3)}")
    p(f"""
    s_lshl_b32 s38, s30, 1
    s_mul_i32 s39, s38, {56*1024}
    s_lshl_b32 s40, s31, 2
    s_add_u32 s40, s40, s24
    s_lshl_b32 s41, s40, 11
    s_add_u32 s39, s39, s41
    s_add_u32 s39, s39, {Z1F}
    s_add_u32 s42, s39, {56*1024}
    s_mul_i32 s64, s38, {88*1024}
    s_add_u32 s64, s64, s41
    s_add_u32 s64, s64, {A3 + 32*1024}
    s_add_u32 s65, s64, {88*1024}
    s_lshl_b32 s45, s30, 7
    v_lshlrev_b32 v2, 1, v2
    """)
    Z = ZR
    p(f"v_mov_b32 v{G+1}, v{GF}")
    if VAR['fuse3']:
        p.wait(vm="fl")
        p("v_cmp_ne_u32 vcc, s11, v0\ns_cbranch_vccz L_g_fl")
        poll(p, "L_p00", 48, 3, None, 0, sleep=8)
        p.label("L_g_fl")
    p(f"buffer_load_dwordx4 {vr(Z,4)}, v{VL}, s[12:15], s39 offen sc1", tag="z1")
    p(f"buffer_load_dwordx4 {vr(Z+4,4)}, v{VL}, s[12:15], s39 offen offset:1024 sc1", tag="z1")
    p(f"buffer_load_dwordx4 {vr(Z+8,4)}, v{VL}, s[12:15], s42 offen sc1", tag="z1")
    p(f"buffer_load_dwordx4 {vr(Z+12,4)}, v{VL}, s[12:15], s42 offen offset:1024 sc1", tag="z1")
    p(f"buffer_load_ushort v{Z+16}, v2, s[20:23], s45 offen sc1", tag="z1")
    p(f"buffer_load_ushort v{Z+17}, v2, s[20:23], s45 offen offset:64 sc1", tag="z1")
    if VAR['fuse3']:
        g2_scalars(p)
        w_loads(p, 0, 10)
    p(f"v_add_u32 v{G}, s36, v{VL}\nv_mov_b32 v{G+2}, {LDS_FLAG}\ns_lshl_b32 s47, s24, 14\ns_add_u32 s47, s47, {IMG}\nv_add_u32 v{G+3}, s47, v{VL}")
    for k in range(8): p(f"ds_write_b128 v{G}, {vr(acc(1,0)+4*k, 4)} offset:{k*1024}")
    flag_wait(p, "L_g_prog", G+2, 80, 4, G+4)
    for r in (2, 3):
        for k in range(8): p(f"ds_write_b128 v{G+3}, {vr(acc(r,0)+4*k, 4)} offset:{(r-2)*8192 + k*1024}")
    for r in range(1, 4):
        p(f"s_add_u32 s47, s24, {4-r}\ns_and_b32 s47, s47, 3")
        if r == 1: p(f"s_lshl_b32 s47, s47, 13\ns_add_u32 s47, s47, {LDS_STG}\nv_add_u32 v{G}, s47, v{VL}")
        else: p(f"s_lshl_b32 s47, s47, 14\ns_add_u32 s47, s47, {(r-2)*8192 + IMG}\nv_add_u32 v{2 if r == 2 else 3}, s47, v{VL}")
    p(f"v_mov_b32 v{G+3}, 1\ns_waitcnt lgkmcnt(0)\nds_write_b32 v{G+1}, v{G+3} offset:16")
    flag_wait(p, "L_g_dat", G+2, 16, 1, G+4, sleep=0)
    for r in range(1, 4):
        for k in range(8):
            p(f"ds_read_b128 {vr(acc(r,0)+4*k,4)}, v{(G, 2, 3)[r-1]} offset:{k*1024}", tag=f"r{r}_{k}")
        if r > 1:
            for k in range(8):
                p.wait(lg=f"r{r-1}_{k}")
                for e in range(4): p(f"v_add_f32 v{acc(0,0)+4*k+e}, v{acc(0,0)+4*k+e}, v{acc(r-1,0)+4*k+e}")
    for k in range(8):
        p.wait(lg=f"r3_{k}")
        for e in range(4): p(f"v_add_f32 v{acc(0,0)+4*k+e}, v{acc(0,0)+4*k+e}, v{acc(3,0)+4*k+e}")
    if VAR['sentA']: spin1(p, "L_g_pf", G+1, 64, 1, G+3)
    p.wait(vm="z1")
    T = acc(1, 0)
    p(f"v_lshlrev_b32 v{Z+16}, 16, v{Z+16}\nv_lshlrev_b32 v{Z+17}, 16, v{Z+17}")
    for tt in range(2):
        a = acc(0, tt)
        for r in range(16): p(f"v_add_f32 v{a+r}, v{a+r}, v{Z+16+tt}")
        for d in range(8):
            z = Z + tt*8 + d
            p(f"v_lshlrev_b32 v{T}, 16, v{z}\nv_and_b32 v{T+1}, 0xffff0000, v{z}")
            p(f"v_mul_f32 v{a+2*d}, v{a+2*d}, v{T}\nv_mul_f32 v{a+2*d+1}, v{a+2*d+1}, v{T+1}")
            p(f"v_cvt_pk_bf16_f32 v{T+8+tt*8+d}, v{a+2*d}, v{a+2*d+1}")
        for d in (range(8) if VAR.get('fullver', 1) else (0, 4)): p(f"v_min_u32 v{T+8+tt*8+d}, -2, v{T+8+tt*8+d}")
        so = 64 + tt
        p(f"buffer_store_dwordx4 {vr(T+8+tt*8,4)}, v{VL}, s[12:15], s{so} offen")
        p(f"buffer_store_dwordx4 {vr(T+12+tt*8,4)}, v{VL}, s[12:15], s{so} offen offset:1024")
    if VAR.get('pf3'):
        p(f"s_lshl_b32 s38, s26, 2\ns_add_u32 s38, s38, s24\ns_mul_i32 s38, s38, 16384\ns_add_u32 s38, s38, {W3F}\nv_lshlrev_b32 v2, 7, v1")
        p(f"buffer_load_dword v3, v2, s[12:15], s38 offen\ns_add_u32 s38, s38, 8192\nbuffer_load_dword v3, v2, s[12:15], s38 offen")
    st(p, 3)
    if VAR['fuse3']:
        if VAR.get('stop') == 3: p("s_endpgm")
        p("s_branch L_g2")
    else: p("s_endpgm")
    p.label("L_idle")
    p.wait(vm="kv"); p(f"s_waitcnt vmcnt(0)\nds_write_b32 v{GF}, v0 offset:48")
    mid(p, "b")
    p(f"""
    s_load_dwordx2 s[36:37], s[0:1], {KA_WO}
    s_load_dwordx2 s[38:39], s[0:1], {KA_WOUT}
    s_lshl_b32 s34, s25, 2
    s_add_u32 s34, s34, s26
    s_sub_u32 s34, s34, 28                      ; L
    s_mov_b32 s54, {896*1024}
    v_lshrrev_b32 v2, 2, v1
    v_and_b32 v3, 3, v1
    v_lshlrev_b32 v3, 4, v3
    v_lshl_add_u32 v2, v2, 10, v3
    s_waitcnt lgkmcnt(0)
    s_cmp_lt_u32 s34, 16
    s_cselect_b32 s52, s36, s38
    s_cselect_b32 s53, s37, s39
    s_cselect_b32 s54, {512*1024}, s54
    s_cselect_b32 s35, 8, 14
    s_cselect_b32 s67, 0, {32*1024}
    s_mov_b32 s55, 0x20000
    s_and_b32 s34, s34, 15
    s_mul_i32 s68, s24, s35
    s_lshl_b32 s69, s68, 14
    s_lshl_b32 s60, s34, 6
    s_add_u32 s69, s69, s60
    s_mul_i32 s60, s34, {88*1024}
    s_lshl_b32 s68, s68, 10
    s_add_u32 s60, s60, s68
    s_add_u32 s60, s60, s67
    s_add_u32 s60, s60, {W3F}
    s_lshl_b32 s61, s24, 13
    s_add_u32 s61, s61, {LDS_STG}
    """)
    def w3_dma(n):
        for k in range(n):
            p(f"s_add_u32 m0, s61, {k*1024}\ns_nop 0\nbuffer_load_dwordx4 v2, s[52:55], s69 offen lds\ns_add_u32 s69, s69, 16384")
    def w3_out(n):
        for k in range(n):
            p(f"ds_read_b64_tr_b16 v[{8+4*k}:{9+4*k}], v3 offset:{k*1024}\nds_read_b64_tr_b16 v[{10+4*k}:{11+4*k}], v3 offset:{k*1024+256}")
            if k % 4 == 3: p("s_waitcnt lgkmcnt(0)")
        p("s_waitcnt lgkmcnt(0)")
        for k in range(n):
            p(f"buffer_store_dwordx4 v[{8+4*k}:{11+4*k}], v{VL}, s[12:15], s60 offen\ns_add_u32 s60, s60, 1024")
    p(f"v_mov_b32 v5, s11\ns_waitcnt vmcnt(0)\nbuffer_store_dword v5, off, s[12:15], s89 sc1")
    G0 = VAR.get('ipf0', 0); GB = VAR.get('ipfb', 0)
    NP = (8 - G0 - GB) if VAR.get('ipf', 1) else 0
    if VAR.get('ipf', 1):
        p(f"""
        s_sub_u32 s36, s26, 28
        s_lshl_b32 s36, s36, 2
        s_add_u32 s36, s36, s24                 ; wave16
        v_lshlrev_b32 v5, 12, v1
        s_lshl_b32 s56, s25, 20
        s_and_b32 s37, s36, 3
        s_lshl_b32 s37, s37, 18
        s_add_u32 s56, s56, s37
        s_lshr_b32 s37, s36, 2
        s_lshl_b32 s37, s37, 10
        s_add_u32 s56, s56, s37
        """)
        for g in range(G0, G0+GB): p(f"buffer_load_dword v6, v5, s[16:19], s56 offen offset:{g*128}")
    w3_dma(8)
    if VAR.get('ipf', 1):
        for g in range(G0+GB, 8): p(f"buffer_load_dword v6, v5, s[16:19], s56 offen offset:{g*128}")
    p(f"""
    v_lshrrev_b32 v4, 5, v1
    v_lshlrev_b32 v3, 9, v4
    v_bfe_u32 v4, v1, 2, 2
    v_lshl_add_u32 v3, v4, 6, v3
    v_bfe_u32 v4, v1, 4, 1
    v_lshl_add_u32 v3, v4, 5, v3
    v_and_b32 v4, 1, v1
    v_lshl_add_u32 v3, v4, 4, v3
    v_bfe_u32 v4, v1, 1, 1
    v_lshl_add_u32 v3, v4, 3, v3
    v_add_u32 v3, s61, v3
    s_waitcnt vmcnt({NP if GB == 0 else 0})
    """)
    w3_out(8)
    p("s_cmp_eq_u32 s35, 8\ns_cbranch_scc1 L_w3done")
    w3_dma(6)
    p("s_waitcnt vmcnt(0)")
    w3_out(6)
    p.label("L_w3done")
    if not VAR['fuse3']:
        p("s_endpgm"); return
    p(f"""
    s_lshr_b32 s33, s34, 1
    s_lshl_b32 s33, s33, 7                      ; (nt>>1)*128
    s_and_b32 s34, s34, 1
    s_lshl_b32 s34, s34, 4
    s_add_u32 s33, s33, s34
    s_lshr_b32 s34, s67, 10                     ; 0 or 32
    s_add_u32 s33, s33, s34
    s_lshl_b32 s34, s24, 2
    s_add_u32 s33, s33, s34
    s_add_u32 s33, s33, {WFL}
    v_mov_b32 v0, s11
    s_waitcnt vmcnt(0)
    buffer_store_dword v0, off, s[12:15], s33 sc1
    s_add_u32 s49, s33, {-OFL & 0xffffffff:#x}
    s_and_b32 s49, s49, -64
    """)
    flag_addr(p)
    if VAR.get('stop'): p("s_endpgm")
    p.label("L_g2w")
    p(f"s_mov_b32 s48, {OFL}")
    poll(p, "L_p0", 48, G+6, None, G+5, sleep=32)
    gen_g2(p, st)


FA = 4
def FWr(k): return 152 + 4*k if k < 20 else 68 + 4*(k-20)
def FRr(k): return 100 + 4*k if k < 13 else 232 + 4*(k-13)
FX = 84
FXU = 152
FL_ = 244; FO = 245; FT = 246
def poll(p, name, soff, voff, mask_hi_lo, tmp, bad=0, sleep=None):
    p(f"s_mov_b32 s47, 0")
    p.label(name)
    p(f"buffer_load_dword v{tmp}, v{voff}, s[12:15], s{soff} offen sc1\ns_add_u32 s47, s47, 1\ns_waitcnt vmcnt(0)")
    p(f"{'v_cmp_eq_u32 vcc, -1' if bad == -1 else 'v_cmp_ne_u32 vcc, s11'}, v{tmp}\ns_cbranch_vccz {name}_ok\ns_cmp_gt_u32 s47, 0x40000\ns_cbranch_scc1 {name}_ok\ns_sleep {sleep or VAR.get('psleep', 16)}\ns_branch {name}")
    p.label(name + "_ok")
def g2_scalars(p):
    p(f"""
    s_load_dwordx2 s[6:7], s[0:1], {KA_X}
    s_load_dwordx2 s[8:9], s[0:1], {KA_OUT}
    s_lshr_b32 s27, s26, 3
    s_lshl_b32 s28, s25, 2
    s_add_u32 s27, s27, s28                ; tb
    s_and_b32 s28, s26, 7                  ; nb
    s_and_b32 s29, s24, 1
    s_lshr_b32 s30, s24, 1
    s_lshl_b32 s32, s27, 1
    s_add_u32 s33, s32, s29
    s_xor_b32 s34, s33, 1
    s_lshl_b32 s32, s28, 1
    s_add_u32 s35, s32, s30
    s_xor_b32 s37, s35, 1
    s_mul_i32 s40, s33, {88*1024}
    s_mul_i32 s41, s34, {88*1024}
    s_mul_i32 s42, s35, {88*1024}
    s_mul_i32 s43, s37, {88*1024}
    s_add_u32 s40, s40, {A3}
    s_add_u32 s41, s41, {A3}
    s_add_u32 s42, s42, {W3F}
    s_add_u32 s43, s43, {W3F}
    s_mul_i32 s31, s24, {14*1024}
    s_add_u32 s31, s31, {32*1024}
    s_lshl_b32 s32, s24, 13
    s_lshl_b32 s44, s33, 15
    s_lshl_b32 s45, s35, 6
    s_add_u32 s44, s44, s45
    s_mov_b32 s49, 0
    s_waitcnt lgkmcnt(0)
    """)
def Wu(s_, i): return 152 + 4*(((s_ if s_ < 10 else s_-10))*2 + i)
def Wo(k, i): return (152 + 4*((k+4)*2 + i)) if k < 6 else (68 + 4*((k-6)*2 + i))
def Ur(s_, i):
    n = (s_ % 12)*2 + i
    return FRr(n) if n < 16 else 68 + 4*(n-16)
def w_loads(p, s0, s1, tag=None):
    for s_ in range(s0, s1):
        for i in range(2):
            if s_ == s0 or s_ % 4 == 0: p(f"s_add_u32 s{54+i}, s{42+i}, s31\ns_add_u32 s{54+i}, s{54+i}, {(s_//4)*4096}")
            p(f"buffer_load_dwordx4 {vr(Wu(s_, i),4)}, v{FL_}, s[12:15], s{54+i} offen offset:{(s_%4)*1024} sc1", tag=tag)
def gen_g2(p, st):
    p("s_setprio 3")
    g2_scalars(p)
    p.label("L_g2_redo")
    w_loads(p, 0, 10)
    p.label("L_g2")
    for i in range(2): p(f"s_add_u32 s{52+i}, s{40+i}, s31")
    for i in range(4): p(f"s_add_u32 s{56+i}, s{40+i}, s32")
    p(f"""
    s_min_u32 s46, s52, s53
    s_min_u32 s45, s56, s57
    v_lshrrev_b32 v2, 1, v1
    v_min_u32 v{FT+2}, 13, v2
    v_min_u32 v{FT+1}, 7, v2
    v_and_b32 v3, 1, v1
    v_mul_u32_u24 v3, {88*1024}, v3
    v_add_u32 v3, 1008, v3
    v_lshl_add_u32 v{FT+2}, v{FT+2}, 10, v3
    v_lshl_add_u32 v{FT+1}, v{FT+1}, 10, v3
    v_and_b32 v2, 31, v1
    """)
    bitswap23(p, 2, 2, 3)
    p(f"v_lshrrev_b32 v3, 5, v1\nv_lshlrev_b32 v3, 4, v3\nv_lshl_add_u32 v{FO}, v2, 10, v3\nv_mov_b32 v{FT+5}, 0")
    srd(p, 16, 6, 2048*1024); srd(p, 20, 8, 2048*1024)
    poll(p, "L_p1", 46, FT+2, None, FT+4, bad=-1)
    st(p, 4)
    p(f"s_setprio {VAR.get('prio_u', 3)}")
    NR = VAR.get('nr', 8)
    def ld(s):
        o = []
        if s and s % 4 == 0: o += [I(f"s_add_u32 s{52+i}, s{52+i}, 4096") for i in range(2)]
        for i in range(2):
            o.append(I(f"buffer_load_dwordx4 {vr(Ur(s, i),4)}, v{FL_}, s[12:15], s{52+i} offen offset:{(s%4)*1024} sc1", tag=f"g{s}"))
        return o
    def wo_ld(k):
        for i in range(2):
            p(f"s_add_u32 s47, s{58+i}, {(k//4)*4096}")
            p(f"buffer_load_dwordx4 {vr(Wo(k, i),4)}, v{FL_}, s[12:15], s47 offen offset:{(k%4)*1024} sc1", tag="wo")
    for s_ in range(NR): p.add(ld(s_))
    for s_ in range(14):
        p.wait(vm=[f"g{s_}", f"wu{s_}"])
        for n_, (a, b) in enumerate(((0,0), (0,1), (1,0), (1,1))):
            d = vr(FA + (a*2+b)*16, 16)
            p.add([mfma32(d, vr(Wu(s_, a),4), vr(Ur(s_, b),4), "0" if s_ == 0 else d)])
            r0 = Ur(s_, n_//2) + 2*(n_%2)
            if VAR.get('fullver', 1): p(f"v_max3_u32 v{FT+5}, v{FT+5}, v{r0}, v{r0+1}")
            elif n_ == 0: p(f"v_max3_u32 v{FT+5}, v{FT+5}, v{Ur(s_,0)}, v{Ur(s_,1)}")
        if s_+NR < 14: p.add(ld(s_+NR))
        if s_ < 4: w_loads(p, 10+s_, 11+s_, tag=f"wu{10+s_}")
        elif s_ < 12: wo_ld(s_-4)
    p(f"buffer_load_dwordx4 {vr(FX,4)}, v{FO}, s[16:19], s44 offen", tag="x")
    p(f"buffer_load_dwordx4 {vr(FX+4,4)}, v{FO}, s[16:19], s44 offen offset:32", tag="x")
    p(f"s_setprio 3\nv_cmp_eq_u32 vcc, -1, v{FT+5}\ns_cbranch_vccnz L_g2_again")
    p.label("L_g2_go")
    p.wait(vm="x")
    for d_ in range(7, -1, -1):
        p(f"v_and_b32 v{FXU+2*d_+1}, 0xffff0000, v{FX+d_}\nv_lshlrev_b32 v{FXU+2*d_}, 16, v{FX+d_}")
    st(p, 5)
    p("s_barrier")
    p("s_add_u32 s58, s56, 4096\ns_add_u32 s59, s57, 4096\ns_mov_b32 s49, 0")
    if VAR.get('direct', 0): p("s_branch L_p3b")
    p.label("L_p3")
    poll(p, "L_p2", 45, FT+1, None, FT+4, bad=-1, sleep=VAR.get('p3sleep', 4))
    p.label("L_p3b")
    for s_ in range(8):
        for i in range(2):
            p(f"buffer_load_dwordx4 {vr(FRr(s_*2+i),4)}, v{FL_}, s[12:15], s{56+i+2*(s_//4)} offen offset:{(s_%4)*1024} sc1", tag=f"o{s_}")
    p(f"v_mov_b32 v{FT+4}, 0\ns_add_u32 s49, s49, 1")
    for s_ in range(8):
        p.wait(vm=f"o{s_}")
        for k in range(0, 8, 2): p(f"v_max3_u32 v{FT+4}, v{FT+4}, v{FRr(2*s_+k//4)+k%4}, v{FRr(2*s_+k//4)+k%4+1}")
    p(f"v_cmp_eq_u32 vcc, -1, v{FT+4}\ns_cbranch_vccz L_p3_ok\ns_cmp_lt_u32 s49, 64\ns_cbranch_scc1 L_p3")
    p.label("L_p3_ok")
    st(p, 6)
    for i in range(1, 4):
        p(f"s_xor_b32 s46, s24, {i}\ns_mul_i32 s46, s46, 12288\ns_add_u32 s46, s46, {(i-1)*4096 + IMG}\nv_add_u32 v{FT+i}, s46, v{FL_}")
    p(f"s_mul_i32 s46, s24, 12288\ns_add_u32 s46, s46, {IMG}\nv_add_u32 v{FT}, s46, v{FL_}")
    for s_ in range(8):
        order = ((0,0), (0,1), (1,0), (1,1)) if s_ < 7 else ((0,1), (1,0), (1,1), (0,0))
        for (a, b) in order:
            d = vr(FA + (a*2+b)*16, 16)
            p.add([mfma32(d, vr(Wo(s_, a),4), vr(FRr(s_*2+b),4), d)])
    for i in range(1, 4):
        for k in range(4): p(f"ds_write_b128 v{FT+i}, {vr(FA+i*16+4*k,4)} offset:{k*1024}")
    for r in range(16): p(f"v_add_f32 v{FA+r}, v{FA+r}, v{FXU+r}")
    p("s_waitcnt lgkmcnt(0)\ns_barrier")
    for k in range(12): p(f"ds_read_b128 {vr(FA+16+4*k,4)}, v{FT} offset:{k*1024}", tag=f"r{k}")
    for k in range(12):
        p.wait(lg=f"r{k}")
        for e in range(4): p(f"v_add_f32 v{FA+(4*k+e)%16}, v{FA+(4*k+e)%16}, v{FA+16+4*k+e}")
    for d in range(8): p(f"v_cvt_pk_bf16_f32 v{FX+d}, v{FA+2*d}, v{FA+2*d+1}")
    p(f"buffer_store_dwordx4 {vr(FX,4)}, v{FO}, s[20:23], s44 offen")
    p(f"buffer_store_dwordx4 {vr(FX+4,4)}, v{FO}, s[20:23], s44 offen offset:32")
    st(p, 7)
    if st.on and VAR.get('dbg') is not None:
        D = VAR['dbg']
        p(f"s_cmp_lg_u32 s2, {D}\ns_cbranch_scc1 L_end\ns_cmp_lg_u32 s24, 0\ns_cbranch_scc1 L_end")
        p(f"s_load_dwordx2 s[6:7], s[0:1], {KA_DBG}\ns_waitcnt vmcnt(0)")
        sel = [(0,0,15),(0,0,1),(0,0,5),(0,0,7),(0,0,9),(1,0,15),(1,0,1),(1,0,2),(1,0,3),(1,4,1),(1,4,2),(1,4,3),(1,4,4),(1,4,5),(1,4,6),(1,4,7)]
        for i, (k, w, sl) in enumerate(sel):
            off = STAMP + k*0x80000 + (D*16 + w)*128 + sl*8 + 4
            p(f"v_mov_b32 v3, {off:#x}\nbuffer_load_dword v{100+i}, v3, s[12:15], 0 offen sc1")
        p("s_waitcnt vmcnt(0) lgkmcnt(0)")
        srd(p, 16, 6, 256)
        for i in range(16):
            p(f"v_sub_u32 v2, v{100+i}, v100\nbuffer_store_dword v2, off, s[16:19], 0 offset:{4*i}")
    p("s_endpgm")
    p.label("L_g2_again")
    p("s_add_u32 s49, s49, 1\ns_cmp_gt_u32 s49, 64\ns_cbranch_scc1 L_g2_go\ns_waitcnt vmcnt(0)\ns_branch L_g2_redo")


def placeholder_addrs(p, m):
    p(f"""
    s_and_b32 s34, s2, 7                   ; xcd
    s_lshr_b32 s35, s2, 3                  ; j
    s_lshr_b32 s53, s35, 3
    s_lshl_b32 s54, s34, 2
    s_add_u32 s53, s53, s54                ; head
    s_and_b32 s36, s35, 7
    s_lshl_b32 s36, s36, 2
    s_add_u32 s36, s36, s{m}
    s_lshl_b32 s37, s36, 7
    s_mul_i32 s36, s36, {2*88*1024}
    s_lshl_b32 s38, s53, 10
    s_add_u32 s36, s36, s38
    s_add_u32 s36, s36, {A3}
    s_lshl_b32 s53, s53, 2
    s_add_u32 s53, s53, s37
    s_add_u32 s53, s53, {OFL}
    s_add_u32 s37, s36, {88*1024}
    s_mul_i32 s38, s35, 9363
    s_lshr_b32 s38, s38, 16                ; j/7
    s_mul_i32 s39, s38, 7
    s_sub_u32 s39, s35, s39                ; fb
    s_add_u32 s38, s38, s54
    s_lshl_b32 s39, s39, 2
    s_add_u32 s39, s39, s{m}               ; ft
    s_lshl_b32 s54, s38, 7
    s_lshl_b32 s34, s39, 2
    s_add_u32 s54, s54, s34
    s_add_u32 s54, s54, {UFL}
    s_mul_i32 s38, s38, {2*88*1024}
    s_lshl_b32 s39, s39, 11
    s_add_u32 s38, s38, s39
    s_add_u32 s38, s38, {A3 + 32*1024}
    s_cmp_lt_u32 s35, 28
    s_cselect_b32 s38, s38, 0x7ff00000
    s_cselect_b32 s54, s54, 0x7ff00000
    s_add_u32 s39, s38, {88*1024}
    """)
```

```python
from common import *
SOLO = True
import struct
def float_hex(f): return hex(struct.unpack("<I", struct.pack("<f", f))[0])

IMG = 1024
LDS_FLAG = 0
LDS_STG = 131072
K2_LDS = 163840
VAR = dict(margin=100.0, U=8, prio_att=1, prio_g=0, fuse3=True, sentA=True, cdelay=2)

QA, QB = 4, 8
CA, CB = 16, 32
OA, OB = 48, 64
SA, SB = 80, 96
PA, PB = 112, 120
KR = [128, 132, 136, 140]
V0R = [144, 148, 152, 156]
V1R = [160, 164, 168, 172]
AK, AV0, AV1 = 176, 177, 178
GK, GV0, GV1 = 179, 180, 181
MA, MB = 182, 183
TM = 184
FL = 188
PF, PFA = 190, 191
STT = 192

def max16(p, S, M, first):
    if first:
        p(f"v_max3_f32 v{M}, v{S}, v{S+1}, v{S+2}")
        p(f"v_max_f32 v{M}, v{M}, v{S+3}")
        r = range(4, 16, 2)
    else: r = range(0, 16, 2)
    for k in r: p(f"v_max3_f32 v{M}, v{M}, v{S+k}, v{S+k+1}")

def flag_wait(p, name, addr_v, off, val, tmpq, sleep=1):
    p.label(name)
    p(f"ds_read_b128 {vr(tmpq,4)}, v{addr_v} offset:{off}")
    p("s_waitcnt lgkmcnt(0)")
    p(f"v_min_u32 v{tmpq}, v{tmpq}, v{tmpq+1}\nv_min3_u32 v{tmpq}, v{tmpq}, v{tmpq+2}, v{tmpq+3}")
    p(f"v_cmp_gt_u32 vcc, {val}, v{tmpq}")
    p(f"s_cbranch_vccz {name}_ok\ns_sleep {sleep}\ns_branch {name}")
    p.label(name + "_ok")

def spin1(p, name, addr_v, off, val, tmp):
    p.label(name)
    p(f"ds_read_b32 v{tmp}, v{addr_v} offset:{off}")
    p("s_waitcnt lgkmcnt(0)")
    p(f"v_cmp_gt_u32 vcc, {val}, v{tmp}")
    p(f"s_cbranch_vccz {name}_ok\ns_sleep 1\ns_branch {name}")
    p.label(name + "_ok")

def att_loop_body(U):
    out = []
    def blk(S, P, So, Po, Mqk, Mpv1, Mpv0, extra):
        e = lambda k: I(f"v_exp_f32 v{S+k}, v{S+k}")
        c = lambda k: I(f"v_cvt_pk_bf16_f32 v{P+k}, v{S+2*k}, v{S+2*k+1}")
        co = lambda k: I(f"v_cvt_pk_bf16_f32 v{Po+k}, v{So+2*k}, v{So+2*k+1}")
        o = []
        pq, p1, p0 = VAR.get('pos', (2, 6, 12))
        cs = VAR.get('cs', {0: [-6], 1: [-7], 3: [0], 5: [1], 7: [2], 9: [3], 11: [4], 13: [5]})
        if VAR.get('perm'):
            c = lambda k: I(f"v_perm_b32 v{P+k}, v{S+2*k+1}, v{S+2*k}, s45")
            co = lambda k: I(f"v_perm_b32 v{Po+k}, v{So+2*k+1}, v{So+2*k}, s45")
        for k in range(16):
            o.append(e(k))
            for j in cs.get(k, []):
                if j < 0: o.append(co(-j))
            if k == pq and not VAR.get('nom'): o.append(Mqk)
            if k == p1 and not VAR.get('nom'): o.append(Mpv1)
            if k == p0 and not VAR.get('nom'): o.append(Mpv0)
            o += extra.get(k, [])
            for j in cs.get(k, []):
                if j >= 0: o.append(c(j))
        return o
    for u in range(U):
        s0 = u % 4; s1 = (u+1) % 4; sm = (u-1) % 4
        exA = {}; exB = {}
        if u % 2 == 0:
            rd = []
            for d in (2, 3):
                o_ = (u+d-1)*KVT
                rd += [I(f"ds_read_b128 {vr(KR[(u+d)%4],4)}, v{AK} offset:{o_}"),
                       I(f"ds_read_b128 {vr(V0R[(u+d)%4],4)}, v{AV0} offset:{o_}"),
                       I(f"ds_read_b128 {vr(V1R[(u+d)%4],4)}, v{AV1} offset:{o_}")]
            exA = {VAR.get('rdpos', 6): rd}
            if VAR.get('nods'): exA = {}
        if u == U-1:
            exB = {2: [I("s_add_u32 s41, s41, 1")], 3: [I("s_bitcmp1_b32 s45, s41" if VAR['sentA'] else "s_cmp_eq_u32 s41, 1")], 4: [I("s_cbranch_scc1 L_att_sync2"), I("L_att_sync2_ret:")],
                   5: [I(f"v_mov_b32 v{TM}, s41")], 7: [I(f"ds_write_b32 v{FL+1}, v{TM} offset:80")],
                   6: [I(f"v_add_u32 v{AK}, {U*KVT}, v{AK}")], 8: [I(f"v_add_u32 v{AV0}, {U*KVT}, v{AV0}")], 10: [I(f"v_add_u32 v{AV1}, {U*KVT}, v{AV1}")],
                   14: [I(f"s_cmp_lt_u32 s41, {64//U}")]}
        if u % 2 == 1: exB[0] = [I("s_waitcnt lgkmcnt(0)")]
        out += blk(SA, PA, SB, PB, mfma32(vr(SB,16), vr(KR[s0],4), vr(QB,4), vr(CB,16)),
                   mfma32(vr(OB,16), vr(V1R[sm],4), vr(PB+4,4), vr(OB,16)),
                   mfma32(vr(OA,16), vr(V0R[s0],4), vr(PA,4), vr(OA,16)), exA)
        out += blk(SB, PB, SA, PA, mfma32(vr(SA,16), vr(KR[s1],4), vr(QA,4), vr(CA,16)),
                   mfma32(vr(OA,16), vr(V1R[s0],4), vr(PA+4,4), vr(OA,16)),
                   mfma32(vr(OB,16), vr(V0R[s0],4), vr(PB,4), vr(OB,16)), exB)
    return out

def k2_ids(p):
    p(f"""
    s_mov_b32 s24, s10
    s_and_b32 s25, s2, 7
    s_lshr_b32 s26, s2, 3
    s_lshr_b32 s27, s26, 3
    s_lshl_b32 s28, s25, 2
    s_add_u32 s27, s27, s28                ; head
    s_and_b32 s28, s26, 7                  ; qb
    """)
def gen_attention(p, st):
    U = VAR['U']
    k2_ids(p)
    p(f"""
    s_mul_i32 s30, s27, {KVH}
    s_add_u32 s30, s30, {KV}
    s_lshl_b32 s31, s27, 16
    s_lshl_b32 s32, s28, 3
    s_lshl_b32 s33, s24, 1
    s_add_u32 s32, s32, s33
    s_lshl_b32 s33, s32, 10
    s_add_u32 s31, s31, s33
    v_lshlrev_b32 v{GK}, 4, v1
    v_mov_b32 v{FL}, {LDS_FLAG}
    s_lshl_b32 s37, s24, 2
    v_add_u32 v{FL+1}, s37, v{FL}
    v_mov_b32 v{TM+1}, 1
    s_waitcnt vmcnt(0)
    ds_write_b32 v{FL+1}, v{TM+1} offset:112
    """)
    st(p, 8)
    p(f"""
    v_and_b32 v{TM}, 31, v1
    v_lshrrev_b32 v{TM+1}, 5, v1
    v_lshlrev_b32 v{TM+1}, 8, v{TM+1}
    v_lshl_add_u32 v{TM+1}, v{TM}, 4, v{TM+1}
    v_and_b32 v{TM+2}, 27, v{TM}
    v_cmp_eq_u32 vcc, 16, v{TM+2}
    v_mov_b32 v{TM+2}, 2064
    v_mov_b32 v{TM+3}, 2048
    v_cndmask_b32 v{TM+2}, v{TM+2}, v{TM+3}, vcc
    v_cmp_gt_u32 vcc, 16, v{TM}
    v_add_u32 v{GV0}, 1024, v{TM+1}
    v_add_u32 v{GV1}, 1536, v{TM+1}
    v_cndmask_b32 v{GV0}, v{TM+2}, v{GV0}, vcc
    v_cndmask_b32 v{GV1}, v{TM+2}, v{GV1}, vcc
    """)
    p("s_cmp_lg_u32 s24, 0\ns_cbranch_scc1 L_att_go")
    flag_wait(p, "L_att_ad", FL, 112, 1, TM, sleep=0)
    p(f"""
    v_mov_b32 v{TM}, s11
    buffer_store_dword v{TM}, off, s[12:15], s83 sc1
    s_lshr_b32 s34, s27, 2
    s_lshl_b32 s34, s34, 12
    s_add_u32 s34, s34, {PFL}
    v_and_b32 v{MA}, 31, v1
    v_lshlrev_b32 v{MA}, 7, v{MA}
    s_sleep {VAR.get('q0', 8)}
    """)
    poll(p, "L_att_p", 34, MA, None, TM, sleep=VAR.get('qsleep', 4))
    p(f"v_mov_b32 v{TM}, 1\nds_write_b32 v{FL}, v{TM} offset:96")
    p.label("L_att_go")
    spin1(p, "L_att_gw", FL, 96, 1, TM)
    st(p, 9)
    p(f"buffer_load_dwordx4 {vr(QA,4)}, v{GK}, s[12:15], s31 offen sc1")
    p(f"buffer_load_dwordx4 {vr(QB,4)}, v{GK}, s[12:15], s31 offen offset:1024 sc1")
    p(f"buffer_load_dwordx4 {vr(KR[0],4)}, v{GK}, s[12:15], s30 offen sc1")
    p(f"buffer_load_dwordx4 {vr(KR[1],4)}, v{GK}, s[12:15], s30 offen offset:{KVT} sc1")
    for t in range(2):
        p(f"buffer_load_dwordx4 {vr(V0R[t],4)}, v{GV0}, s[12:15], s30 offen offset:{t*KVT} sc1")
        p(f"buffer_load_dwordx4 {vr(V1R[t],4)}, v{GV1}, s[12:15], s30 offen offset:{t*KVT} sc1")
    p(f"""
    s_lshl_b32 s37, s24, 12
    s_add_u32 s38, s30, {KVT+1024}
    s_add_u32 s38, s38, s37
    s_add_u32 s37, s37, {IMG}
    """)
    for i in range(2):
        p("s_mov_b32 m0, s37")
        p("s_add_u32 s37, s37, 16384")
        for k in range(4 if i == 0 else 3):
            p(f"buffer_load_dwordx4 v{GK}, s[12:15], s38 offen offset:{k*1024} sc1 lds")
        p("s_add_u32 s38, s38, 16384")
    p(f"s_setprio {VAR['prio_att']}")
    if VAR['sentA']:
        p(f"""
        s_mul_i32 s33, s32, {88*1024}
        s_lshl_b32 s34, s27, 10
        s_add_u32 s33, s33, s34
        s_add_u32 s33, s33, {A3}
        s_add_u32 s39, s33, {88*1024}
        s_lshl_b32 s35, s32, 6
        s_lshl_b32 s34, s27, 2
        s_add_u32 s35, s35, s34
        s_add_u32 s35, s35, {OFL}
        s_mul_i32 s42, s26, 9363
        s_lshr_b32 s42, s42, 16                ; j/7
        s_mul_i32 s43, s42, 7
        s_sub_u32 s43, s26, s43                ; fb
        s_lshl_b32 s44, s25, 2
        s_add_u32 s42, s42, s44
        s_lshl_b32 s43, s43, 2
        s_add_u32 s43, s43, s24                ; ft
        s_mul_i32 s46, s42, {2*88*1024}
        s_lshl_b32 s44, s43, 11
        s_add_u32 s46, s46, s44
        s_add_u32 s46, s46, {A3 + 32*1024}
        s_lshl_b32 s42, s42, 7
        s_lshl_b32 s43, s43, 2
        s_add_u32 s42, s42, s43
        s_add_u32 s42, s42, {UFL}
        s_add_u32 s47, s46, {88*1024}
        s_mov_b32 s45, {2 + (1 << VAR.get('s3it', 2))}
        s_mov_b32 s44, 0
        s_cmp_lt_u32 s26, 28
        s_cbranch_scc1 L_att_nopre
        """)
        for r in range(4): p(f"v_mov_b32 v{STT+r}, -1")
        p(f"buffer_store_dwordx4 {vr(STT,4)}, v{GK}, s[12:15], s33 offen sc1\nbuffer_store_dwordx4 {vr(STT,4)}, v{GK}, s[12:15], s39 offen sc1")
        p(f"v_mov_b32 v{STT}, s11\ns_waitcnt vmcnt(0)\nbuffer_store_dword v{STT}, off, s[12:15], s35 sc1\ns_mov_b32 s45, 2\ns_mov_b32 s44, 1")
        p.label("L_att_nopre")
    p(f"v_mov_b32 v{TM}, 1\nds_write_b32 v{FL+1}, v{TM} offset:176")
    p(f"""
    v_mov_b32 v{AK}, v{GK}
    v_mov_b32 v{AV0}, v{GV0}
    v_mov_b32 v{AV1}, v{GV1}
    """)
    for r in list(range(OA, OA+32)) + list(range(PB+4, PB+6)) + list(range(V1R[3], V1R[3]+4)):
        p(f"v_mov_b32 v{r}, 0")
    p(f"s_waitcnt vmcnt(11)")
    p.add([mfma32(vr(SA,16), vr(KR[0],4), vr(QA,4), "0"), mfma32(vr(SB,16), vr(KR[0],4), vr(QB,4), "0"),
           mfma32(vr(CA,16), vr(KR[1],4), vr(QA,4), "0"), mfma32(vr(CB,16), vr(KR[1],4), vr(QB,4), "0")])
    max16(p, SA, MA, True); max16(p, SB, MB, True); max16(p, CA, MA, False); max16(p, CB, MB, False)
    p(f"""
    s_mov_b32 s40, {float_hex(VAR['margin'])}
    v_mov_b32 v{TM}, v{MA}
    v_mov_b32 v{TM+1}, v{MB}
    v_permlane32_swap_b32 v{TM}, v{MA}
    v_permlane32_swap_b32 v{TM+1}, v{MB}
    v_max_f32 v{MA}, v{MA}, v{TM}
    v_max_f32 v{MB}, v{MB}, v{TM+1}
    v_add_f32 v{MA}, s40, v{MA}
    v_add_f32 v{MB}, s40, v{MB}
    """)
    for r in range(16): p(f"v_sub_f32 v{CA+r}, 0, v{MA}")
    for r in range(12, 16): p(f"v_mov_b32 v{SB+r}, 0")
    p.add([mfma32(vr(SA,16), vr(KR[0],4), vr(QA,4), vr(CA,16))])
    for r in range(16): p(f"v_sub_f32 v{CB+r}, 0, v{MB}")
    p(f"s_waitcnt vmcnt(0)")
    p(f"v_mov_b32 v{TM}, 1\nds_write_b32 v{FL+1}, v{TM}")
    flag_wait(p, "L_att_f1", FL, 0, 1, TM)
    st(p, 1)
    p("s_mov_b32 s41, 0")
    p(".p2align 6")
    p.label("L_att_loop")
    p.add(att_loop_body(U))
    p("s_cbranch_scc1 L_att_loop")
    st(p, 2)
    if VAR.get('endprio'): p("s_setprio 3")
    p(f"v_cvt_pk_bf16_f32 v{PB+6}, v{SB+12}, v{SB+13}\nv_cvt_pk_bf16_f32 v{PB+7}, v{SB+14}, v{SB+15}")
    p(f"""
    s_mul_i32 s33, s32, {88*1024}
    s_lshl_b32 s34, s27, 10
    s_add_u32 s33, s33, s34
    s_add_u32 s33, s33, {A3}
    """)
    p.add([mfma32(vr(OB,16), vr(V1R[3],4), vr(PB+4,4), vr(OB,16))])
    p("s_waitcnt lgkmcnt(0)")
    p(f"s_mov_b32 s36, 0\ns_mov_b32 s40, {float_hex(2.0**-112)}")
    p.label("L_att_chk")
    p(f"v_mul_f32 v{TM}, 0, v{OA+8}")
    for r in range(8): p(f"v_fmac_f32 v{TM}, 0, v{OA+r}")
    p(f"v_max3_f32 v{TM+1}, |v{OA}|, |v{OA+1}|, |v{OA+2}|\nv_max3_f32 v{TM+1}, v{TM+1}, |v{OA+3}|, |v{OA+4}|\nv_max3_f32 v{TM+1}, v{TM+1}, |v{OA+5}|, |v{OA+6}|\nv_max_f32_e64 v{TM+1}, v{TM+1}, |v{OA+7}|")
    p(f"v_mov_b32 v{TM+2}, v{TM+1}\nv_permlane32_swap_b32 v{TM+1}, v{TM+2}\nv_max_f32 v{TM+1}, v{TM+1}, v{TM+2}")
    p(f"v_cmp_u_f32 vcc, v{TM}, v{TM}\nv_cmp_gt_f32 s[38:39], s40, v{TM+1}\ns_or_b64 vcc, vcc, s[38:39]")
    p("s_cbranch_vccnz L_att_slow")
    p.label("L_att_fin")
    p(f"v_rcp_f32 v{MA}, v{OA+8}")
    p("s_cmp_lg_u32 s36, 0")
    for r in range(8): p(f"v_mul_f32 v{OA+r}, v{OA+r}, v{MA}")
    for k in range(4): p(f"v_cvt_pk_bf16_f32 v{PA+k}, v{OA+2*k}, v{OA+2*k+1}")
    for k in range(4): p(f"v_min_u32 v{PA+k}, -2, v{PA+k}")
    p(f"buffer_store_dwordx4 {vr(PA,4)}, v{GK}, s[12:15], s33 offen")
    p("s_cbranch_scc1 L_att_done")
    p(f"s_mov_b32 s36, 1\ns_add_u32 s33, s33, {88*1024}")
    for r in range(9): p(f"v_mov_b32 v{OA+r}, v{OB+r}")
    for r in range(4): p(f"v_mov_b32 v{QA+r}, v{QB+r}")
    p("s_branch L_att_chk")
    p.label("L_att_done")
    st(p, 3)
    p("s_endpgm")
    p.label("L_att_sync2")
    if VAR['sentA']: p("s_cmp_lg_u32 s41, 1\ns_cbranch_scc1 L_att_sync3")
    if VAR['sentA']:
        p("s_cmp_lg_u32 s44, 0\ns_cbranch_scc1 L_att_f2")
        for r in range(4): p(f"v_mov_b32 v{STT+r}, -1")
        p(f"buffer_store_dwordx4 {vr(STT,4)}, v{GK}, s[12:15], s33 offen sc1\nbuffer_store_dwordx4 {vr(STT,4)}, v{GK}, s[12:15], s39 offen sc1")
        for k in range(4): p(f"buffer_store_dwordx4 {vr(STT,4)}, v{GK}, s[12:15], s{46+k//2} offen offset:{(k%2)*1024} sc1")
    flag_wait(p, "L_att_f2", FL, 48, 1, TM)
    p("s_branch L_att_sync2_ret")
    p.label("L_att_sync3")
    if VAR['sentA']:
        p(f"v_mov_b32 v{TM}, s11\nv_mov_b32 v{TM+1}, 1\ns_waitcnt vmcnt(0)\nbuffer_store_dword v{TM}, off, s[12:15], s35 sc1\nbuffer_store_dword v{TM}, off, s[12:15], s42 sc1\nds_write_b32 v{FL+1}, v{TM+1} offset:64")
    p("s_branch L_att_sync2_ret")
    p.label("L_att_slow")
    p(f"v_mov_b32 v{MA}, 0xff800000\ns_mov_b32 s41, 0\ns_mov_b32 s37, s30")
    p.label("L_att_sl1")
    p(f"buffer_load_dwordx4 {vr(KR[0],4)}, v{GK}, s[12:15], s37 offen sc1")
    p("s_waitcnt vmcnt(0)")
    p.add([mfma32(vr(SA,16), vr(KR[0],4), vr(QA,4), "0")])
    max16(p, SA, MA, False)
    p(f"s_add_u32 s37, s37, {KVT}\ns_add_u32 s41, s41, 1\ns_cmp_lt_u32 s41, 64\ns_cbranch_scc1 L_att_sl1")
    p(f"v_mov_b32 v{TM}, v{MA}\nv_permlane32_swap_b32 v{TM}, v{MA}\nv_max_f32 v{MA}, v{MA}, v{TM}")
    for r in range(16): p(f"v_sub_f32 v{CA+r}, 0, v{MA}\nv_mov_b32 v{OA+r}, 0")
    p("s_mov_b32 s41, 0\ns_mov_b32 s37, s30")
    p.label("L_att_sl2")
    p(f"buffer_load_dwordx4 {vr(KR[0],4)}, v{GK}, s[12:15], s37 offen sc1")
    p(f"buffer_load_dwordx4 {vr(V0R[0],4)}, v{GV0}, s[12:15], s37 offen sc1")
    p(f"buffer_load_dwordx4 {vr(V1R[0],4)}, v{GV1}, s[12:15], s37 offen sc1")
    p("s_waitcnt vmcnt(0)")
    p.add([mfma32(vr(SA,16), vr(KR[0],4), vr(QA,4), vr(CA,16))])
    for k in range(16): p(f"v_exp_f32 v{SA+k}, v{SA+k}")
    for k in range(8): p(f"v_cvt_pk_bf16_f32 v{PA+k}, v{SA+2*k}, v{SA+2*k+1}")
    p.add([mfma32(vr(OA,16), vr(V0R[0],4), vr(PA,4), vr(OA,16)), mfma32(vr(OA,16), vr(V1R[0],4), vr(PA+4,4), vr(OA,16))])
    p(f"s_add_u32 s37, s37, {KVT}\ns_add_u32 s41, s41, 1\ns_cmp_lt_u32 s41, 64\ns_cbranch_scc1 L_att_sl2")
    p("s_nop 15\ns_branch L_att_fin")

ACC = 4
NZF = 16
ZR = 132
WR = 196
VL = 244; VD = 245; VW = 247
GF = 251
G = 232
def acc(i, tt): return ACC + (i*2+tt)*16

def kv_rest(p, uniq):
    p(f"s_sub_u32 m0, s62, {16384-3072}\ns_sub_u32 s61, s63, {16384-3072}")
    p(f"buffer_load_dwordx4 v{VL}, s[12:15], s61 offen sc1 lds", tag="kv")
    for i in range(6):
        p("s_mov_b32 m0, s62")
        if i < 5: p("s_add_u32 s62, s62, 16384")
        else: p("s_cmp_eq_u32 s24, 3")
        for k in range(4):
            if i == 5 and k == 3: p(f"s_cbranch_scc1 L_g_kvdone{uniq}")
            p(f"buffer_load_dwordx4 v{VL}, s[12:15], s63 offen offset:{k*1024} sc1 lds", tag="kv")
        if i < 5: p("s_add_u32 s63, s63, 16384")
    p.label(f"L_g_kvdone{uniq}")

def flag_addr(p):
    p(f"""
    s_lshr_b32 s48, s26, 3
    s_lshl_b32 s47, s25, 2
    s_add_u32 s48, s48, s47
    s_lshl_b32 s48, s48, 7                 ; tb'*128
    s_lshl_b32 s47, s24, 5
    s_add_u32 s46, s48, s47
    s_mul_i32 s47, s24, 28
    s_add_u32 s48, s48, s47
    s_add_u32 s48, s48, {UFL-OFL}          ; u flags
    s_and_b32 s47, s26, 7
    s_lshl_b32 s47, s47, 7
    s_add_u32 s47, s47, {WFL-OFL}          ; W flags
    v_lshlrev_b32 v{G+5}, 2, v1
    v_mov_b32 v{G+6}, s48
    v_add_u32 v{G+7}, s48, v{G+5}
    v_cmp_gt_u32 vcc, 7, v1
    v_cndmask_b32 v{G+6}, v{G+6}, v{G+7}, vcc
    v_subrev_u32 v{G+5}, 128, v{G+5}
    v_add_u32 v{G+7}, s47, v{G+5}
    v_cmp_gt_u32 vcc, 64, v{G+5}
    v_cndmask_b32 v{G+6}, v{G+6}, v{G+7}, vcc
    v_subrev_u32 v{G+5}, 64, v{G+5}
    v_add_u32 v{G+7}, s46, v{G+5}
    v_cmp_gt_u32 vcc, 32, v{G+5}
    v_cndmask_b32 v{G+6}, v{G+6}, v{G+7}, vcc
    v_subrev_u32 v{G+5}, 32, v{G+5}
    v_add_u32 v{G+7}, s49, v{G+5}
    v_cmp_gt_u32 vcc, 8, v{G+5}
    v_cndmask_b32 v{G+6}, v{G+6}, v{G+7}, vcc
    s_mov_b32 s48, {OFL}
    """)
def gen_gemm(p, st, mid=None):
    k2_ids(p)
    p(f"""
    s_load_dwordx4 s[4:7], s[0:1], {KA_WSP}
    s_sub_u32 s24, s24, 4                  ; q = K quarter
    v_lshlrev_b32 v{VL}, 4, v1
    s_mul_i32 s63, s27, {KVH}
    s_lshl_b32 s62, s24, 12
    s_add_u32 s62, s62, 32768
    s_add_u32 s63, s63, s62
    s_add_u32 s63, s63, {KV + KVT + 1024}
    s_add_u32 s62, s62, {IMG}
    s_lshl_b32 s46, s24, 2
    s_add_u32 s46, s46, {LDS_FLAG}
    v_mov_b32 v{GF}, s46
    v_mov_b32 v0, 1
    v_mov_b32 v2, {LDS_FLAG}
    s_waitcnt lgkmcnt(0)
    ds_write_b32 v{GF}, v0 offset:160
    """)
    srd(p, 16, 4, 2048*2048*2); srd(p, 20, 6, 4096)
    flag_wait(p, "L_g_bd", 2, 160, 1, 4)
    flag_wait(p, "L_g_go", 2, 176, 1, 4, sleep=2)
    kv_rest(p, "a")
    p(f"""
    s_cmp_ge_u32 s26, 28
    s_cbranch_scc1 L_idle
    s_setprio 3
    s_mul_i32 s30, s26, 9363
    s_lshr_b32 s30, s30, 16                ; j/7
    s_mul_i32 s31, s30, 7
    s_sub_u32 s31, s26, s31                ; fb = j%7
    s_lshl_b32 s32, s25, 2
    s_add_u32 s30, s30, s32                ; tb
    s_lshl_b32 s33, s31, 19
    s_add_u32 s33, s33, {Z2F}
    s_lshl_b32 s34, s24, 17
    s_add_u32 s33, s33, s34
    s_lshl_b32 s56, s30, 18
    s_lshl_b32 s34, s24, 10
    s_add_u32 s56, s56, s34
    s_lshl_b32 s36, s24, 13
    s_add_u32 s36, s36, {LDS_STG}
    s_add_u32 s37, s36, 4096
    v_lshrrev_b32 v2, 3, v1
    v_lshrrev_b32 v3, 4, v1
    v_xor_b32 v3, v3, v1
    v_and_b32 v3, 7, v3
    v_lshlrev_b32 v3, 4, v3
    v_lshl_add_u32 v{VD}, v2, 12, v3
    v_xor_b32 v{VD+1}, 64, v{VD}
    v_add_u32 v{VD+1}, {8*4096-1024}, v{VD+1}
    """)
    for i in range(4):
        p(f"s_add_u32 s38, s24, {i}\ns_and_b32 s38, s38, 3\ns_lshl_b32 s38, s38, 10\ns_add_u32 s{52+i}, s33, s38")
    p(f"""
    s_lshl_b32 s38, s31, 12                ; (2fb)*16*128
    s_lshl_b32 s39, s24, 9
    s_add_u32 s39, s39, s38
    s_add_u32 s39, s39, {PFL+16}
    s_lshr_b32 s49, s24, 1
    s_lshl_b32 s49, s49, 11
    s_add_u32 s49, s49, s38
    s_lshr_b32 s38, s30, 1
    s_lshl_b32 s38, s38, 7
    s_add_u32 s49, s49, s38
    s_and_b32 s38, s30, 1
    s_lshl_b32 s38, s38, 3
    s_add_u32 s49, s49, s38
    s_add_u32 s49, s49, {PFL+32-OFL}
    v_and_b32 v4, 3, v1
    v_bfe_u32 v5, v1, 2, 1
    v_lshlrev_b32 v5, 11, v5
    v_lshl_add_u32 v4, v4, 7, v5
    v_bfe_u32 v5, v1, 3, 2
    v_lshl_add_u32 v4, v5, 2, v4
    """)
    def dma(b):
        out = []
        for i in range(8):
            if i % 4 == 0: out.append(I(f"s_mov_b32 m0, s{(66 if (b % 3 == 2 and b > 2) else 36) + i//4}"))
            if i % 2 == 0: out.append(I(f"s_add_u32 s57, s56, {(i//2)*16*4096 - (i%4)*1024}"))
            out.append(I(f"buffer_load_dwordx4 v{VD + i%2}, s[16:19], s57 offen offset:{(i%4)*1024} sc1 lds", tag=f"d{b}"))
        out.append(I("s_add_u32 s56, s56, 128"))
        return out
    def zload(n):
        i = n % 4
        return [I(f"buffer_load_dwordx4 {vr(ZR + (n%NZF)*4, 4)}, v{VL}, s[12:15], s{52+i} offen sc1", tag=f"z{n}"),
                I(f"s_add_u32 s{52+i}, s{52+i}, 4096")]
    p.add(dma(0))
    if VAR.get('ordb'):
        p.wait(vm="kv"); p(f"ds_write_b32 v{GF}, v0 offset:48")
        poll(p, "L_pz", 39, 4, None, 5, sleep=VAR.get('zsleep', 4))
        st(p, 9)
        if VAR.get('stop') == 1: p("s_endpgm")
        for n in range(16): p.add(zload(n))
        mid(p, "a")
    else:
        mid(p, "a", [W(vm="kv"), I(f"ds_write_b32 v{GF}, v0 offset:48")])
        p.wait(vm="kv"); p(f"ds_write_b32 v{GF}, v0 offset:48")
        poll(p, "L_pz", 39, 4, None, 5, sleep=VAR.get('zsleep', 4))
        p(f"v_mov_b32 v0, s11\nbuffer_store_dword v0, off, s[12:15], s89 sc1")
        st(p, 9)
        if VAR.get('stop') == 1: p("s_endpgm")
        for n in range(16): p.add(zload(n))
    p(f"v_and_b32 v2, 31, v1")
    bitswap23(p, 2, 2, 3)
    p(f"""
    v_lshrrev_b32 v3, 1, v2
    v_lshrrev_b32 v{VW}, 5, v1
    v_xor_b32 v3, v3, v{VW}
    v_and_b32 v3, 7, v3
    v_lshlrev_b32 v3, 4, v3
    v_lshl_add_u32 v{VW}, v2, 7, v3
    v_add_u32 v{VW}, s36, v{VW}
    v_xor_b32 v{VW+1}, 32, v{VW}
    v_xor_b32 v{VW+2}, 64, v{VW}
    v_xor_b32 v{VW+3}, 96, v{VW}
    """)
    if VAR['fuse3']:
        flag_addr(p); p(f"v_mov_b32 v3, v{G+6}")
    p(f"s_setprio {VAR['prio_g']}")
    st(p, 1)
    wr = lambda g, tt: WR + ((g % 6)*2 + tt)*4
    def wread(b):
        return [I(f"ds_read_b128 {vr(wr(4*b+u, tt), 4)}, v{VW+u} offset:{tt*4096}", tag=f"w{b}", needs=[f"d{b}"]) for u in range(4) for tt in range(2)]
    def block_burst(b, first=False, dma_on=True, z_on=True, w_on=True):
        o = []
        for u in range(4):
            g = 4*b+u
            o.append(W(vm=[f"z{4*g+3}"]))
            for i in range(4):
                n = 4*g+i
                for tt in range(2):
                    c = "0" if (first and u == 0) else vr(acc(i,tt),16)
                    o.append(mfma32(vr(acc(i,tt),16), vr(ZR+(n%NZF)*4,4), vr(wr(g,tt),4), c))
                if u == 2 and i == 1 and w_on:
                    o.append(W(lg=f"w{b+1}"))
                    if dma_on: o += dma(b+2)
            if u == 1 and w_on: o += [W(vm=f"d{b+1}")] + wread(b+1)
            if z_on:
                for i in range(4): o += zload(4*g+i+NZF)
        return o
    def block(b, first=False, dma_on=True, z_on=True, w_on=True):
        if VAR.get('burst', 1): return block_burst(b, first, dma_on, z_on, w_on)
        o = []
        dm = []
        if w_on and dma_on:
            cur = []
            for x in dma(b+2):
                cur.append(x)
                if x.kind == "vmem": dm.append(cur); cur = []
            dm[-1] += cur
        wrd = wread(b+1) if w_on else []
        for u in range(4):
            g = 4*b+u
            for i in range(4):
                n = 4*g+i
                for tt in range(2):
                    if tt == 0: o.append(W(vm=[f"z{n}"]))
                    c = "0" if (first and u == 0) else vr(acc(i,tt),16)
                    o.append(mfma32(vr(acc(i,tt),16), vr(ZR+(n%NZF)*4,4), vr(wr(g,tt),4), c))
                    if VAR.get('pace'): o.append(I(f"s_nop {VAR['pace']}"))
                    if tt == 1 and z_on: o += zload(n+NZF)
                    if tt == 0:
                        if u == 2 and w_on:
                            if i == 0: o.append(W(vm=f"d{b+1}"))
                            o += wrd[2*i:2*i+2]
                        if u == 3 and dm:
                            if i == 0: o.append(W(lg=f"w{b+1}"))
                            o += dm.pop(0) + dm.pop(0)
                        elif u == 3 and i == 0 and w_on: o.append(W(lg=f"w{b+1}"))
        return o
    p.add(wread(0)); p.wait(lg="w0"); p.add(dma(1))
    p.add(block(0, first=True))
    p("s_mov_b32 s60, 0")
    hist = dma(0) + sum([zload(n) for n in range(16)], []) + dma(1) + block(0) + block(1) + block(2) + block(3) + [I("L_mark:")] + block(4) + block(5) + block(6)
    full = resolve_waits(hist)
    lb = full[next(i for i, x in enumerate(full) if x.kind == "label" and x.op == "L_mark")+1:]
    first_pass = resolve_waits(dma(0) + sum([zload(n) for n in range(16)], []) + dma(1) + block(0) + [I("L_mark:")] + block(1) + block(2) + block(3))
    fp = first_pass[next(i for i, x in enumerate(first_pass) if x.kind == "label" and x.op == "L_mark")+1:]
    assert len(fp) == len(lb)
    merged = []
    for x, y in zip(fp, lb):
        if x.kind == "wait":
            vm = min(v for v in (x.vm, y.vm) if v is not None) if (x.vm is not None or y.vm is not None) else None
            lg = min(v for v in (x.lg, y.lg) if v is not None) if (x.lg is not None or y.lg is not None) else None
            merged.append(I("s_waitcnt " + " ".join(([f"vmcnt({vm})"] if vm is not None else []) + ([f"lgkmcnt({lg})"] if lg is not None else []))))
        else:
            assert x.text == y.text, (x.text, y.text)
            merged.append(y)
    p.label("L_g_loop")
    p("s_cmp_eq_u32 s60, 1\ns_cselect_b32 s66, 0x30000, s36\ns_cselect_b32 s67, 0x30000, s37")
    p.add(merged)
    p("s_add_u32 s60, s60, 1\ns_cmp_lt_u32 s60, 2\ns_cbranch_scc1 L_g_loop")
    if VAR['fuse3']: p(f"s_mov_b32 s48, {OFL}"); p(f"buffer_load_dword v0, v3, s[12:15], s48 offen sc1", tag="fl")
    p.add(block(7, dma_on=False, z_on=False, w_on=False))
    st(p, 2)
    if VAR.get('stop') == 2: p("s_endpgm")
    p(f"s_setprio {VAR.get('prio_e', 3)}")
    p(f"""
    s_lshl_b32 s38, s30, 1
    s_mul_i32 s39, s38, {56*1024}
    s_lshl_b32 s40, s31, 2
    s_add_u32 s40, s40, s24
    s_lshl_b32 s41, s40, 11
    s_add_u32 s39, s39, s41
    s_add_u32 s39, s39, {Z1F}
    s_add_u32 s42, s39, {56*1024}
    s_mul_i32 s64, s38, {88*1024}
    s_add_u32 s64, s64, s41
    s_add_u32 s64, s64, {A3 + 32*1024}
    s_add_u32 s65, s64, {88*1024}
    s_lshl_b32 s45, s30, 7
    v_lshlrev_b32 v2, 1, v2
    """)
    Z = ZR
    p(f"v_mov_b32 v{G+1}, v{GF}")
    if VAR['fuse3']:
        p.wait(vm="fl")
        p("v_cmp_ne_u32 vcc, s11, v0\ns_cbranch_vccz L_g_fl")
        poll(p, "L_p00", 48, 3, None, 0, sleep=8)
        p.label("L_g_fl")
    p(f"buffer_load_dwordx4 {vr(Z,4)}, v{VL}, s[12:15], s39 offen sc1", tag="z1")
    p(f"buffer_load_dwordx4 {vr(Z+4,4)}, v{VL}, s[12:15], s39 offen offset:1024 sc1", tag="z1")
    p(f"buffer_load_dwordx4 {vr(Z+8,4)}, v{VL}, s[12:15], s42 offen sc1", tag="z1")
    p(f"buffer_load_dwordx4 {vr(Z+12,4)}, v{VL}, s[12:15], s42 offen offset:1024 sc1", tag="z1")
    p(f"buffer_load_ushort v{Z+16}, v2, s[20:23], s45 offen sc1", tag="z1")
    p(f"buffer_load_ushort v{Z+17}, v2, s[20:23], s45 offen offset:64 sc1", tag="z1")
    if VAR['fuse3']:
        g2_scalars(p)
        w_loads(p, 0, 10)
    p(f"v_add_u32 v{G}, s36, v{VL}\nv_mov_b32 v{G+2}, {LDS_FLAG}\ns_lshl_b32 s47, s24, 14\ns_add_u32 s47, s47, {IMG}\nv_add_u32 v{G+3}, s47, v{VL}")
    for k in range(8): p(f"ds_write_b128 v{G}, {vr(acc(1,0)+4*k, 4)} offset:{k*1024}")
    flag_wait(p, "L_g_prog", G+2, 80, 4, G+4)
    for r in (2, 3):
        for k in range(8): p(f"ds_write_b128 v{G+3}, {vr(acc(r,0)+4*k, 4)} offset:{(r-2)*8192 + k*1024}")
    for r in range(1, 4):
        p(f"s_add_u32 s47, s24, {4-r}\ns_and_b32 s47, s47, 3")
        if r == 1: p(f"s_lshl_b32 s47, s47, 13\ns_add_u32 s47, s47, {LDS_STG}\nv_add_u32 v{G}, s47, v{VL}")
        else: p(f"s_lshl_b32 s47, s47, 14\ns_add_u32 s47, s47, {(r-2)*8192 + IMG}\nv_add_u32 v{2 if r == 2 else 3}, s47, v{VL}")
    p(f"v_mov_b32 v{G+3}, 1\ns_waitcnt lgkmcnt(0)\nds_write_b32 v{G+1}, v{G+3} offset:16")
    flag_wait(p, "L_g_dat", G+2, 16, 1, G+4, sleep=0)
    for r in range(1, 4):
        for k in range(8):
            p(f"ds_read_b128 {vr(acc(r,0)+4*k,4)}, v{(G, 2, 3)[r-1]} offset:{k*1024}", tag=f"r{r}_{k}")
        if r > 1:
            for k in range(8):
                p.wait(lg=f"r{r-1}_{k}")
                for e in range(4): p(f"v_add_f32 v{acc(0,0)+4*k+e}, v{acc(0,0)+4*k+e}, v{acc(r-1,0)+4*k+e}")
    for k in range(8):
        p.wait(lg=f"r3_{k}")
        for e in range(4): p(f"v_add_f32 v{acc(0,0)+4*k+e}, v{acc(0,0)+4*k+e}, v{acc(3,0)+4*k+e}")
    if VAR['sentA']: spin1(p, "L_g_pf", G+1, 64, 1, G+3)
    p.wait(vm="z1")
    T = acc(1, 0)
    p(f"v_lshlrev_b32 v{Z+16}, 16, v{Z+16}\nv_lshlrev_b32 v{Z+17}, 16, v{Z+17}")
    for tt in range(2):
        a = acc(0, tt)
        for r in range(16): p(f"v_add_f32 v{a+r}, v{a+r}, v{Z+16+tt}")
        for d in range(8):
            z = Z + tt*8 + d
            p(f"v_lshlrev_b32 v{T}, 16, v{z}\nv_and_b32 v{T+1}, 0xffff0000, v{z}")
            p(f"v_mul_f32 v{a+2*d}, v{a+2*d}, v{T}\nv_mul_f32 v{a+2*d+1}, v{a+2*d+1}, v{T+1}")
            p(f"v_cvt_pk_bf16_f32 v{T+8+tt*8+d}, v{a+2*d}, v{a+2*d+1}")
        for d in (range(8) if VAR.get('fullver', 1) else (0, 4)): p(f"v_min_u32 v{T+8+tt*8+d}, -2, v{T+8+tt*8+d}")
        so = 64 + tt
        p(f"buffer_store_dwordx4 {vr(T+8+tt*8,4)}, v{VL}, s[12:15], s{so} offen")
        p(f"buffer_store_dwordx4 {vr(T+12+tt*8,4)}, v{VL}, s[12:15], s{so} offen offset:1024")
    if VAR.get('pf3'):
        p(f"s_lshl_b32 s38, s26, 2\ns_add_u32 s38, s38, s24\ns_mul_i32 s38, s38, 16384\ns_add_u32 s38, s38, {W3F}\nv_lshlrev_b32 v2, 7, v1")
        p(f"buffer_load_dword v3, v2, s[12:15], s38 offen\ns_add_u32 s38, s38, 8192\nbuffer_load_dword v3, v2, s[12:15], s38 offen")
    st(p, 3)
    if VAR['fuse3']:
        if VAR.get('stop') == 3: p("s_endpgm")
        p("s_branch L_g2")
    else: p("s_endpgm")
    p.label("L_idle")
    p.wait(vm="kv"); p(f"s_waitcnt vmcnt(0)\nds_write_b32 v{GF}, v0 offset:48")
    mid(p, "b")
    p(f"""
    s_load_dwordx2 s[36:37], s[0:1], {KA_WO}
    s_load_dwordx2 s[38:39], s[0:1], {KA_WOUT}
    s_lshl_b32 s34, s25, 2
    s_add_u32 s34, s34, s26
    s_sub_u32 s34, s34, 28                      ; L
    s_mov_b32 s54, {896*1024}
    v_lshrrev_b32 v2, 2, v1
    v_and_b32 v3, 3, v1
    v_lshlrev_b32 v3, 4, v3
    v_lshl_add_u32 v2, v2, 10, v3
    s_waitcnt lgkmcnt(0)
    s_cmp_lt_u32 s34, 16
    s_cselect_b32 s52, s36, s38
    s_cselect_b32 s53, s37, s39
    s_cselect_b32 s54, {512*1024}, s54
    s_cselect_b32 s35, 8, 14
    s_cselect_b32 s67, 0, {32*1024}
    s_mov_b32 s55, 0x20000
    s_and_b32 s34, s34, 15
    s_mul_i32 s68, s24, s35
    s_lshl_b32 s69, s68, 14
    s_lshl_b32 s60, s34, 6
    s_add_u32 s69, s69, s60
    s_mul_i32 s60, s34, {88*1024}
    s_lshl_b32 s68, s68, 10
    s_add_u32 s60, s60, s68
    s_add_u32 s60, s60, s67
    s_add_u32 s60, s60, {W3F}
    s_lshl_b32 s61, s24, 13
    s_add_u32 s61, s61, {LDS_STG}
    """)
    def w3_dma(n):
        for k in range(n):
            p(f"s_add_u32 m0, s61, {k*1024}\ns_nop 0\nbuffer_load_dwordx4 v2, s[52:55], s69 offen lds\ns_add_u32 s69, s69, 16384")
    def w3_out(n):
        for k in range(n):
            p(f"ds_read_b64_tr_b16 v[{8+4*k}:{9+4*k}], v3 offset:{k*1024}\nds_read_b64_tr_b16 v[{10+4*k}:{11+4*k}], v3 offset:{k*1024+256}")
            if k % 4 == 3: p("s_waitcnt lgkmcnt(0)")
        p("s_waitcnt lgkmcnt(0)")
        for k in range(n):
            p(f"buffer_store_dwordx4 v[{8+4*k}:{11+4*k}], v{VL}, s[12:15], s60 offen\ns_add_u32 s60, s60, 1024")
    p(f"v_mov_b32 v5, s11\ns_waitcnt vmcnt(0)\nbuffer_store_dword v5, off, s[12:15], s89 sc1")
    G0 = VAR.get('ipf0', 0); GB = VAR.get('ipfb', 0)
    NP = (8 - G0 - GB) if VAR.get('ipf', 1) else 0
    if VAR.get('ipf', 1):
        p(f"""
        s_sub_u32 s36, s26, 28
        s_lshl_b32 s36, s36, 2
        s_add_u32 s36, s36, s24                 ; wave16
        v_lshlrev_b32 v5, 12, v1
        s_lshl_b32 s56, s25, 20
        s_and_b32 s37, s36, 3
        s_lshl_b32 s37, s37, 18
        s_add_u32 s56, s56, s37
        s_lshr_b32 s37, s36, 2
        s_lshl_b32 s37, s37, 10
        s_add_u32 s56, s56, s37
        """)
        for g in range(G0, G0+GB): p(f"buffer_load_dword v6, v5, s[16:19], s56 offen offset:{g*128}")
    w3_dma(8)
    if VAR.get('ipf', 1):
        for g in range(G0+GB, 8): p(f"buffer_load_dword v6, v5, s[16:19], s56 offen offset:{g*128}")
    p(f"""
    v_lshrrev_b32 v4, 5, v1
    v_lshlrev_b32 v3, 9, v4
    v_bfe_u32 v4, v1, 2, 2
    v_lshl_add_u32 v3, v4, 6, v3
    v_bfe_u32 v4, v1, 4, 1
    v_lshl_add_u32 v3, v4, 5, v3
    v_and_b32 v4, 1, v1
    v_lshl_add_u32 v3, v4, 4, v3
    v_bfe_u32 v4, v1, 1, 1
    v_lshl_add_u32 v3, v4, 3, v3
    v_add_u32 v3, s61, v3
    s_waitcnt vmcnt({NP if GB == 0 else 0})
    """)
    w3_out(8)
    p("s_cmp_eq_u32 s35, 8\ns_cbranch_scc1 L_w3done")
    w3_dma(6)
    p("s_waitcnt vmcnt(0)")
    w3_out(6)
    p.label("L_w3done")
    if not VAR['fuse3']:
        p("s_endpgm"); return
    p(f"""
    s_lshr_b32 s33, s34, 1
    s_lshl_b32 s33, s33, 7                      ; (nt>>1)*128
    s_and_b32 s34, s34, 1
    s_lshl_b32 s34, s34, 4
    s_add_u32 s33, s33, s34
    s_lshr_b32 s34, s67, 10                     ; 0 or 32
    s_add_u32 s33, s33, s34
    s_lshl_b32 s34, s24, 2
    s_add_u32 s33, s33, s34
    s_add_u32 s33, s33, {WFL}
    v_mov_b32 v0, s11
    s_waitcnt vmcnt(0)
    buffer_store_dword v0, off, s[12:15], s33 sc1
    s_add_u32 s49, s33, {-OFL & 0xffffffff:#x}
    s_and_b32 s49, s49, -64
    """)
    flag_addr(p)
    if VAR.get('stop'): p("s_endpgm")
    p.label("L_g2w")
    p(f"s_mov_b32 s48, {OFL}")
    poll(p, "L_p0", 48, G+6, None, G+5, sleep=32)
    gen_g2(p, st)


FA = 4
def FWr(k): return 152 + 4*k if k < 20 else 68 + 4*(k-20)
def FRr(k): return 100 + 4*k if k < 13 else 232 + 4*(k-13)
FX = 84
FXU = 152
FL_ = 244; FO = 245; FT = 246
def poll(p, name, soff, voff, mask_hi_lo, tmp, bad=0, sleep=None):
    p(f"s_mov_b32 s47, 0")
    p.label(name)
    p(f"buffer_load_dword v{tmp}, v{voff}, s[12:15], s{soff} offen sc1\ns_add_u32 s47, s47, 1\ns_waitcnt vmcnt(0)")
    p(f"{'v_cmp_eq_u32 vcc, -1' if bad == -1 else 'v_cmp_ne_u32 vcc, s11'}, v{tmp}\ns_cbranch_vccz {name}_ok\ns_cmp_gt_u32 s47, 0x40000\ns_cbranch_scc1 {name}_ok\ns_sleep {sleep or VAR.get('psleep', 16)}\ns_branch {name}")
    p.label(name + "_ok")
def g2_scalars(p):
    p(f"""
    s_load_dwordx2 s[6:7], s[0:1], {KA_X}
    s_load_dwordx2 s[8:9], s[0:1], {KA_OUT}
    s_lshr_b32 s27, s26, 3
    s_lshl_b32 s28, s25, 2
    s_add_u32 s27, s27, s28                ; tb
    s_and_b32 s28, s26, 7                  ; nb
    s_and_b32 s29, s24, 1
    s_lshr_b32 s30, s24, 1
    s_lshl_b32 s32, s27, 1
    s_add_u32 s33, s32, s29
    s_xor_b32 s34, s33, 1
    s_lshl_b32 s32, s28, 1
    s_add_u32 s35, s32, s30
    s_xor_b32 s37, s35, 1
    s_mul_i32 s40, s33, {88*1024}
    s_mul_i32 s41, s34, {88*1024}
    s_mul_i32 s42, s35, {88*1024}
    s_mul_i32 s43, s37, {88*1024}
    s_add_u32 s40, s40, {A3}
    s_add_u32 s41, s41, {A3}
    s_add_u32 s42, s42, {W3F}
    s_add_u32 s43, s43, {W3F}
    s_mul_i32 s31, s24, {14*1024}
    s_add_u32 s31, s31, {32*1024}
    s_lshl_b32 s32, s24, 13
    s_lshl_b32 s44, s33, 15
    s_lshl_b32 s45, s35, 6
    s_add_u32 s44, s44, s45
    s_mov_b32 s49, 0
    s_waitcnt lgkmcnt(0)
    """)
def Wu(s_, i): return 152 + 4*(((s_ if s_ < 10 else s_-10))*2 + i)
def Wo(k, i): return (152 + 4*((k+4)*2 + i)) if k < 6 else (68 + 4*((k-6)*2 + i))
def Ur(s_, i):
    n = (s_ % 12)*2 + i
    return FRr(n) if n < 16 else 68 + 4*(n-16)
def w_loads(p, s0, s1, tag=None):
    for s_ in range(s0, s1):
        for i in range(2):
            if s_ == s0 or s_ % 4 == 0: p(f"s_add_u32 s{54+i}, s{42+i}, s31\ns_add_u32 s{54+i}, s{54+i}, {(s_//4)*4096}")
            p(f"buffer_load_dwordx4 {vr(Wu(s_, i),4)}, v{FL_}, s[12:15], s{54+i} offen offset:{(s_%4)*1024} sc1", tag=tag)
def gen_g2(p, st):
    p("s_setprio 3")
    g2_scalars(p)
    p.label("L_g2_redo")
    w_loads(p, 0, 10)
    p.label("L_g2")
    for i in range(2): p(f"s_add_u32 s{52+i}, s{40+i}, s31")
    for i in range(4): p(f"s_add_u32 s{56+i}, s{40+i}, s32")
    p(f"""
    s_min_u32 s46, s52, s53
    s_min_u32 s45, s56, s57
    v_lshrrev_b32 v2, 1, v1
    v_min_u32 v{FT+2}, 13, v2
    v_min_u32 v{FT+1}, 7, v2
    v_and_b32 v3, 1, v1
    v_mul_u32_u24 v3, {88*1024}, v3
    v_add_u32 v3, 1008, v3
    v_lshl_add_u32 v{FT+2}, v{FT+2}, 10, v3
    v_lshl_add_u32 v{FT+1}, v{FT+1}, 10, v3
    v_and_b32 v2, 31, v1
    """)
    bitswap23(p, 2, 2, 3)
    p(f"v_lshrrev_b32 v3, 5, v1\nv_lshlrev_b32 v3, 4, v3\nv_lshl_add_u32 v{FO}, v2, 10, v3\nv_mov_b32 v{FT+5}, 0")
    srd(p, 16, 6, 2048*1024); srd(p, 20, 8, 2048*1024)
    poll(p, "L_p1", 46, FT+2, None, FT+4, bad=-1)
    st(p, 4)
    p(f"s_setprio {VAR.get('prio_u', 3)}")
    NR = VAR.get('nr', 8)
    def ld(s):
        o = []
        if s and s % 4 == 0: o += [I(f"s_add_u32 s{52+i}, s{52+i}, 4096") for i in range(2)]
        for i in range(2):
            o.append(I(f"buffer_load_dwordx4 {vr(Ur(s, i),4)}, v{FL_}, s[12:15], s{52+i} offen offset:{(s%4)*1024} sc1", tag=f"g{s}"))
        return o
    def wo_ld(k):
        for i in range(2):
            p(f"s_add_u32 s47, s{58+i}, {(k//4)*4096}")
            p(f"buffer_load_dwordx4 {vr(Wo(k, i),4)}, v{FL_}, s[12:15], s47 offen offset:{(k%4)*1024} sc1", tag="wo")
    for s_ in range(NR): p.add(ld(s_))
    for s_ in range(14):
        p.wait(vm=[f"g{s_}", f"wu{s_}"])
        for n_, (a, b) in enumerate(((0,0), (0,1), (1,0), (1,1))):
            d = vr(FA + (a*2+b)*16, 16)
            p.add([mfma32(d, vr(Wu(s_, a),4), vr(Ur(s_, b),4), "0" if s_ == 0 else d)])
            r0 = Ur(s_, n_//2) + 2*(n_%2)
            if VAR.get('fullver', 1): p(f"v_max3_u32 v{FT+5}, v{FT+5}, v{r0}, v{r0+1}")
            elif n_ == 0: p(f"v_max3_u32 v{FT+5}, v{FT+5}, v{Ur(s_,0)}, v{Ur(s_,1)}")
        if s_+NR < 14: p.add(ld(s_+NR))
        if s_ < 4: w_loads(p, 10+s_, 11+s_, tag=f"wu{10+s_}")
        elif s_ < 12: wo_ld(s_-4)
    p(f"buffer_load_dwordx4 {vr(FX,4)}, v{FO}, s[16:19], s44 offen", tag="x")
    p(f"buffer_load_dwordx4 {vr(FX+4,4)}, v{FO}, s[16:19], s44 offen offset:32", tag="x")
    p(f"s_setprio 3\nv_cmp_eq_u32 vcc, -1, v{FT+5}\ns_cbranch_vccnz L_g2_again")
    p.label("L_g2_go")
    p.wait(vm="x")
    for d_ in range(7, -1, -1):
        p(f"v_and_b32 v{FXU+2*d_+1}, 0xffff0000, v{FX+d_}\nv_lshlrev_b32 v{FXU+2*d_}, 16, v{FX+d_}")
    st(p, 5)
    p("s_barrier")
    p("s_add_u32 s58, s56, 4096\ns_add_u32 s59, s57, 4096\ns_mov_b32 s49, 0")
    if VAR.get('direct', 0): p("s_branch L_p3b")
    p.label("L_p3")
    poll(p, "L_p2", 45, FT+1, None, FT+4, bad=-1, sleep=VAR.get('p3sleep', 4))
    p.label("L_p3b")
    for s_ in range(8):
        for i in range(2):
            p(f"buffer_load_dwordx4 {vr(FRr(s_*2+i),4)}, v{FL_}, s[12:15], s{56+i+2*(s_//4)} offen offset:{(s_%4)*1024} sc1", tag=f"o{s_}")
    p(f"v_mov_b32 v{FT+4}, 0\ns_add_u32 s49, s49, 1")
    for s_ in range(8):
        p.wait(vm=f"o{s_}")
        for k in range(0, 8, 2): p(f"v_max3_u32 v{FT+4}, v{FT+4}, v{FRr(2*s_+k//4)+k%4}, v{FRr(2*s_+k//4)+k%4+1}")
    p(f"v_cmp_eq_u32 vcc, -1, v{FT+4}\ns_cbranch_vccz L_p3_ok\ns_cmp_lt_u32 s49, 64\ns_cbranch_scc1 L_p3")
    p.label("L_p3_ok")
    st(p, 6)
    for i in range(1, 4):
        p(f"s_xor_b32 s46, s24, {i}\ns_mul_i32 s46, s46, 12288\ns_add_u32 s46, s46, {(i-1)*4096 + IMG}\nv_add_u32 v{FT+i}, s46, v{FL_}")
    p(f"s_mul_i32 s46, s24, 12288\ns_add_u32 s46, s46, {IMG}\nv_add_u32 v{FT}, s46, v{FL_}")
    for s_ in range(8):
        order = ((0,0), (0,1), (1,0), (1,1)) if s_ < 7 else ((0,1), (1,0), (1,1), (0,0))
        for (a, b) in order:
            d = vr(FA + (a*2+b)*16, 16)
            p.add([mfma32(d, vr(Wo(s_, a),4), vr(FRr(s_*2+b),4), d)])
    for i in range(1, 4):
        for k in range(4): p(f"ds_write_b128 v{FT+i}, {vr(FA+i*16+4*k,4)} offset:{k*1024}")
    for r in range(16): p(f"v_add_f32 v{FA+r}, v{FA+r}, v{FXU+r}")
    p("s_waitcnt lgkmcnt(0)\ns_barrier")
    for k in range(12): p(f"ds_read_b128 {vr(FA+16+4*k,4)}, v{FT} offset:{k*1024}", tag=f"r{k}")
    for k in range(12):
        p.wait(lg=f"r{k}")
        for e in range(4): p(f"v_add_f32 v{FA+(4*k+e)%16}, v{FA+(4*k+e)%16}, v{FA+16+4*k+e}")
    for d in range(8): p(f"v_cvt_pk_bf16_f32 v{FX+d}, v{FA+2*d}, v{FA+2*d+1}")
    p(f"buffer_store_dwordx4 {vr(FX,4)}, v{FO}, s[20:23], s44 offen")
    p(f"buffer_store_dwordx4 {vr(FX+4,4)}, v{FO}, s[20:23], s44 offen offset:32")
    st(p, 7)
    if st.on and VAR.get('dbg') is not None:
        D = VAR['dbg']
        p(f"s_cmp_lg_u32 s2, {D}\ns_cbranch_scc1 L_end\ns_cmp_lg_u32 s24, 0\ns_cbranch_scc1 L_end")
        p(f"s_load_dwordx2 s[6:7], s[0:1], {KA_DBG}\ns_waitcnt vmcnt(0)")
        sel = [(0,0,15),(0,0,1),(0,0,5),(0,0,7),(0,0,9),(1,0,15),(1,0,1),(1,0,2),(1,0,3),(1,4,1),(1,4,2),(1,4,3),(1,4,4),(1,4,5),(1,4,6),(1,4,7)]
        for i, (k, w, sl) in enumerate(sel):
            off = STAMP + k*0x80000 + (D*16 + w)*128 + sl*8 + 4
            p(f"v_mov_b32 v3, {off:#x}\nbuffer_load_dword v{100+i}, v3, s[12:15], 0 offen sc1")
        p("s_waitcnt vmcnt(0) lgkmcnt(0)")
        srd(p, 16, 6, 256)
        for i in range(16):
            p(f"v_sub_u32 v2, v{100+i}, v100\nbuffer_store_dword v2, off, s[16:19], 0 offset:{4*i}")
    p("s_endpgm")
    p.label("L_g2_again")
    p("s_add_u32 s49, s49, 1\ns_cmp_gt_u32 s49, 64\ns_cbranch_scc1 L_g2_go\ns_waitcnt vmcnt(0)\ns_branch L_g2_redo")


def placeholder_addrs(p, m):
    p(f"""
    s_and_b32 s34, s2, 7                   ; xcd
    s_lshr_b32 s35, s2, 3                  ; j
    s_lshr_b32 s53, s35, 3
    s_lshl_b32 s54, s34, 2
    s_add_u32 s53, s53, s54                ; head
    s_and_b32 s36, s35, 7
    s_lshl_b32 s36, s36, 2
    s_add_u32 s36, s36, s{m}
    s_lshl_b32 s37, s36, 7
    s_mul_i32 s36, s36, {2*88*1024}
    s_lshl_b32 s38, s53, 10
    s_add_u32 s36, s36, s38
    s_add_u32 s36, s36, {A3}
    s_lshl_b32 s53, s53, 2
    s_add_u32 s53, s53, s37
    s_add_u32 s53, s53, {OFL}
    s_add_u32 s37, s36, {88*1024}
    s_mul_i32 s38, s35, 9363
    s_lshr_b32 s38, s38, 16                ; j/7
    s_mul_i32 s39, s38, 7
    s_sub_u32 s39, s35, s39                ; fb
    s_add_u32 s38, s38, s54
    s_lshl_b32 s39, s39, 2
    s_add_u32 s39, s39, s{m}               ; ft
    s_lshl_b32 s54, s38, 7
    s_lshl_b32 s34, s39, 2
    s_add_u32 s54, s54, s34
    s_add_u32 s54, s54, {UFL}
    s_mul_i32 s38, s38, {2*88*1024}
    s_lshl_b32 s39, s39, 11
    s_add_u32 s38, s38, s39
    s_add_u32 s38, s38, {A3 + 32*1024}
    s_cmp_lt_u32 s35, 28
    s_cselect_b32 s38, s38, 0x7ff00000
    s_cselect_b32 s54, s54, 0x7ff00000
    s_add_u32 s39, s38, {88*1024}
    """)
```

```python
from common import *
SOLO = True
import struct
def float_hex(f): return hex(struct.unpack("<I", struct.pack("<f", f))[0])

IMG = 1024
LDS_FLAG = 0
LDS_STG = 131072
K2_LDS = 163840
VAR = dict(margin=100.0, U=8, prio_att=1, prio_g=0, fuse3=True, sentA=True, cdelay=2)

QA, QB = 4, 8
CA, CB = 16, 32
OA, OB = 48, 64
SA, SB = 80, 96
PA, PB = 112, 120
KR = [128, 132, 136, 140]
V0R = [144, 148, 152, 156]
V1R = [160, 164, 168, 172]
AK, AV0, AV1 = 176, 177, 178
GK, GV0, GV1 = 179, 180, 181
MA, MB = 182, 183
TM = 184
FL = 188
PF, PFA = 190, 191
STT = 192

def max16(p, S, M, first):
    if first:
        p(f"v_max3_f32 v{M}, v{S}, v{S+1}, v{S+2}")
        p(f"v_max_f32 v{M}, v{M}, v{S+3}")
        r = range(4, 16, 2)
    else: r = range(0, 16, 2)
    for k in r: p(f"v_max3_f32 v{M}, v{M}, v{S+k}, v{S+k+1}")

def flag_wait(p, name, addr_v, off, val, tmpq, sleep=1):
    p.label(name)
    p(f"ds_read_b128 {vr(tmpq,4)}, v{addr_v} offset:{off}")
    p("s_waitcnt lgkmcnt(0)")
    p(f"v_min_u32 v{tmpq}, v{tmpq}, v{tmpq+1}\nv_min3_u32 v{tmpq}, v{tmpq}, v{tmpq+2}, v{tmpq+3}")
    p(f"v_cmp_gt_u32 vcc, {val}, v{tmpq}")
    p(f"s_cbranch_vccz {name}_ok\ns_sleep {sleep}\ns_branch {name}")
    p.label(name + "_ok")

def spin1(p, name, addr_v, off, val, tmp):
    p.label(name)
    p(f"ds_read_b32 v{tmp}, v{addr_v} offset:{off}")
    p("s_waitcnt lgkmcnt(0)")
    p(f"v_cmp_gt_u32 vcc, {val}, v{tmp}")
    p(f"s_cbranch_vccz {name}_ok\ns_sleep 1\ns_branch {name}")
    p.label(name + "_ok")

def att_loop_body(U):
    out = []
    def blk(S, P, So, Po, Mqk, Mpv1, Mpv0, extra):
        e = lambda k: I(f"v_exp_f32 v{S+k}, v{S+k}")
        c = lambda k: I(f"v_cvt_pk_bf16_f32 v{P+k}, v{S+2*k}, v{S+2*k+1}")
        co = lambda k: I(f"v_cvt_pk_bf16_f32 v{Po+k}, v{So+2*k}, v{So+2*k+1}")
        o = []
        pq, p1, p0 = VAR.get('pos', (2, 6, 12))
        cs = VAR.get('cs', {0: [-6], 1: [-7], 3: [0], 5: [1], 7: [2], 9: [3], 11: [4], 13: [5]})
        if VAR.get('perm'):
            c = lambda k: I(f"v_perm_b32 v{P+k}, v{S+2*k+1}, v{S+2*k}, s45")
            co = lambda k: I(f"v_perm_b32 v{Po+k}, v{So+2*k+1}, v{So+2*k}, s45")
        for k in range(16):
            o.append(e(k))
            for j in cs.get(k, []):
                if j < 0: o.append(co(-j))
            if k == pq and not VAR.get('nom'): o.append(Mqk)
            if k == p1 and not VAR.get('nom'): o.append(Mpv1)
            if k == p0 and not VAR.get('nom'): o.append(Mpv0)
            o += extra.get(k, [])
            for j in cs.get(k, []):
                if j >= 0: o.append(c(j))
        return o
    for u in range(U):
        s0 = u % 4; s1 = (u+1) % 4; sm = (u-1) % 4
        exA = {}; exB = {}
        if u % 2 == 0:
            rd = []
            for d in (2, 3):
                o_ = (u+d-1)*KVT
                rd += [I(f"ds_read_b128 {vr(KR[(u+d)%4],4)}, v{AK} offset:{o_}"),
                       I(f"ds_read_b128 {vr(V0R[(u+d)%4],4)}, v{AV0} offset:{o_}"),
                       I(f"ds_read_b128 {vr(V1R[(u+d)%4],4)}, v{AV1} offset:{o_}")]
            exA = {VAR.get('rdpos', 6): rd}
            if VAR.get('nods'): exA = {}
        if u == U-1:
            exB = {2: [I("s_add_u32 s41, s41, 1")], 3: [I("s_bitcmp1_b32 s45, s41" if VAR['sentA'] else "s_cmp_eq_u32 s41, 1")], 4: [I("s_cbranch_scc1 L_att_sync2"), I("L_att_sync2_ret:")],
                   5: [I(f"v_mov_b32 v{TM}, s41")], 7: [I(f"ds_write_b32 v{FL+1}, v{TM} offset:80")],
                   6: [I(f"v_add_u32 v{AK}, {U*KVT}, v{AK}")], 8: [I(f"v_add_u32 v{AV0}, {U*KVT}, v{AV0}")], 10: [I(f"v_add_u32 v{AV1}, {U*KVT}, v{AV1}")],
                   14: [I(f"s_cmp_lt_u32 s41, {64//U}")]}
        if u % 2 == 1: exB[0] = [I("s_waitcnt lgkmcnt(0)")]
        out += blk(SA, PA, SB, PB, mfma32(vr(SB,16), vr(KR[s0],4), vr(QB,4), vr(CB,16)),
                   mfma32(vr(OB,16), vr(V1R[sm],4), vr(PB+4,4), vr(OB,16)),
                   mfma32(vr(OA,16), vr(V0R[s0],4), vr(PA,4), vr(OA,16)), exA)
        out += blk(SB, PB, SA, PA, mfma32(vr(SA,16), vr(KR[s1],4), vr(QA,4), vr(CA,16)),
                   mfma32(vr(OA,16), vr(V1R[s0],4), vr(PA+4,4), vr(OA,16)),
                   mfma32(vr(OB,16), vr(V0R[s0],4), vr(PB,4), vr(OB,16)), exB)
    return out

def k2_ids(p):
    p(f"""
    s_mov_b32 s24, s10
    s_and_b32 s25, s2, 7
    s_lshr_b32 s26, s2, 3
    s_lshr_b32 s27, s26, 3
    s_lshl_b32 s28, s25, 2
    s_add_u32 s27, s27, s28                ; head
    s_and_b32 s28, s26, 7                  ; qb
    """)
def gen_attention(p, st):
    U = VAR['U']
    k2_ids(p)
    p(f"""
    s_mul_i32 s30, s27, {KVH}
    s_add_u32 s30, s30, {KV}
    s_lshl_b32 s31, s27, 16
    s_lshl_b32 s32, s28, 3
    s_lshl_b32 s33, s24, 1
    s_add_u32 s32, s32, s33
    s_lshl_b32 s33, s32, 10
    s_add_u32 s31, s31, s33
    v_lshlrev_b32 v{GK}, 4, v1
    v_mov_b32 v{FL}, {LDS_FLAG}
    s_lshl_b32 s37, s24, 2
    v_add_u32 v{FL+1}, s37, v{FL}
    v_mov_b32 v{TM+1}, 1
    s_waitcnt vmcnt(0)
    ds_write_b32 v{FL+1}, v{TM+1} offset:112
    """)
    st(p, 8)
    p(f"""
    v_and_b32 v{TM}, 31, v1
    v_lshrrev_b32 v{TM+1}, 5, v1
    v_lshlrev_b32 v{TM+1}, 8, v{TM+1}
    v_lshl_add_u32 v{TM+1}, v{TM}, 4, v{TM+1}
    v_and_b32 v{TM+2}, 27, v{TM}
    v_cmp_eq_u32 vcc, 16, v{TM+2}
    v_mov_b32 v{TM+2}, 2064
    v_mov_b32 v{TM+3}, 2048
    v_cndmask_b32 v{TM+2}, v{TM+2}, v{TM+3}, vcc
    v_cmp_gt_u32 vcc, 16, v{TM}
    v_add_u32 v{GV0}, 1024, v{TM+1}
    v_add_u32 v{GV1}, 1536, v{TM+1}
    v_cndmask_b32 v{GV0}, v{TM+2}, v{GV0}, vcc
    v_cndmask_b32 v{GV1}, v{TM+2}, v{GV1}, vcc
    """)
    p("s_cmp_lg_u32 s24, 0\ns_cbranch_scc1 L_att_go")
    flag_wait(p, "L_att_ad", FL, 112, 1, TM, sleep=0)
    p(f"""
    v_mov_b32 v{TM}, s11
    buffer_store_dword v{TM}, off, s[12:15], s83 sc1
    s_lshr_b32 s34, s27, 2
    s_lshl_b32 s34, s34, 12
    s_add_u32 s34, s34, {PFL}
    v_and_b32 v{MA}, 31, v1
    v_lshlrev_b32 v{MA}, 7, v{MA}
    """)
    poll(p, "L_att_p", 34, MA, None, TM, sleep=VAR.get('qsleep', 4))
    p(f"v_mov_b32 v{TM}, 1\nds_write_b32 v{FL}, v{TM} offset:96")
    p.label("L_att_go")
    spin1(p, "L_att_gw", FL, 96, 1, TM)
    st(p, 9)
    p(f"buffer_load_dwordx4 {vr(QA,4)}, v{GK}, s[12:15], s31 offen sc1")
    p(f"buffer_load_dwordx4 {vr(QB,4)}, v{GK}, s[12:15], s31 offen offset:1024 sc1")
    p(f"buffer_load_dwordx4 {vr(KR[0],4)}, v{GK}, s[12:15], s30 offen sc1")
    p(f"buffer_load_dwordx4 {vr(KR[1],4)}, v{GK}, s[12:15], s30 offen offset:{KVT} sc1")
    for t in range(2):
        p(f"buffer_load_dwordx4 {vr(V0R[t],4)}, v{GV0}, s[12:15], s30 offen offset:{t*KVT} sc1")
        p(f"buffer_load_dwordx4 {vr(V1R[t],4)}, v{GV1}, s[12:15], s30 offen offset:{t*KVT} sc1")
    p(f"""
    s_lshl_b32 s37, s24, 12
    s_add_u32 s38, s30, {KVT+1024}
    s_add_u32 s38, s38, s37
    s_add_u32 s37, s37, {IMG}
    """)
    for i in range(2):
        p("s_mov_b32 m0, s37")
        p("s_add_u32 s37, s37, 16384")
        for k in range(4 if i == 0 else 3):
            p(f"buffer_load_dwordx4 v{GK}, s[12:15], s38 offen offset:{k*1024} sc1 lds")
        p("s_add_u32 s38, s38, 16384")
    p(f"s_setprio {VAR['prio_att']}")
    if VAR['sentA']:
        p(f"""
        s_mul_i32 s33, s32, {88*1024}
        s_lshl_b32 s34, s27, 10
        s_add_u32 s33, s33, s34
        s_add_u32 s33, s33, {A3}
        s_add_u32 s39, s33, {88*1024}
        s_lshl_b32 s35, s32, 6
        s_lshl_b32 s34, s27, 2
        s_add_u32 s35, s35, s34
        s_add_u32 s35, s35, {OFL}
        s_mul_i32 s42, s26, 9363
        s_lshr_b32 s42, s42, 16                ; j/7
        s_mul_i32 s43, s42, 7
        s_sub_u32 s43, s26, s43                ; fb
        s_lshl_b32 s44, s25, 2
        s_add_u32 s42, s42, s44
        s_lshl_b32 s43, s43, 2
        s_add_u32 s43, s43, s24                ; ft
        s_mul_i32 s46, s42, {2*88*1024}
        s_lshl_b32 s44, s43, 11
        s_add_u32 s46, s46, s44
        s_add_u32 s46, s46, {A3 + 32*1024}
        s_lshl_b32 s42, s42, 7
        s_lshl_b32 s43, s43, 2
        s_add_u32 s42, s42, s43
        s_add_u32 s42, s42, {UFL}
        s_add_u32 s47, s46, {88*1024}
        s_mov_b32 s45, {2 + (1 << VAR.get('s3it', 2))}
        s_mov_b32 s44, 0
        s_cmp_lt_u32 s26, 28
        s_cbranch_scc1 L_att_nopre
        """)
        for r in range(4): p(f"v_mov_b32 v{STT+r}, -1")
        p(f"buffer_store_dwordx4 {vr(STT,4)}, v{GK}, s[12:15], s33 offen sc1\nbuffer_store_dwordx4 {vr(STT,4)}, v{GK}, s[12:15], s39 offen sc1")
        p(f"v_mov_b32 v{STT}, s11\ns_waitcnt vmcnt(0)\nbuffer_store_dword v{STT}, off, s[12:15], s35 sc1\ns_mov_b32 s45, 2\ns_mov_b32 s44, 1")
        p.label("L_att_nopre")
    p(f"v_mov_b32 v{TM}, 1\nds_write_b32 v{FL+1}, v{TM} offset:176")
    p(f"""
    v_mov_b32 v{AK}, v{GK}
    v_mov_b32 v{AV0}, v{GV0}
    v_mov_b32 v{AV1}, v{GV1}
    """)
    for r in list(range(OA, OA+32)) + list(range(PB+4, PB+6)) + list(range(V1R[3], V1R[3]+4)):
        p(f"v_mov_b32 v{r}, 0")
    p(f"s_waitcnt vmcnt(11)")
    p.add([mfma32(vr(SA,16), vr(KR[0],4), vr(QA,4), "0"), mfma32(vr(SB,16), vr(KR[0],4), vr(QB,4), "0"),
           mfma32(vr(CA,16), vr(KR[1],4), vr(QA,4), "0"), mfma32(vr(CB,16), vr(KR[1],4), vr(QB,4), "0")])
    max16(p, SA, MA, True); max16(p, SB, MB, True); max16(p, CA, MA, False); max16(p, CB, MB, False)
    p(f"""
    s_mov_b32 s40, {float_hex(VAR['margin'])}
    v_mov_b32 v{TM}, v{MA}
    v_mov_b32 v{TM+1}, v{MB}
    v_permlane32_swap_b32 v{TM}, v{MA}
    v_permlane32_swap_b32 v{TM+1}, v{MB}
    v_max_f32 v{MA}, v{MA}, v{TM}
    v_max_f32 v{MB}, v{MB}, v{TM+1}
    v_add_f32 v{MA}, s40, v{MA}
    v_add_f32 v{MB}, s40, v{MB}
    """)
    for r in range(16): p(f"v_sub_f32 v{CA+r}, 0, v{MA}")
    for r in range(12, 16): p(f"v_mov_b32 v{SB+r}, 0")
    p.add([mfma32(vr(SA,16), vr(KR[0],4), vr(QA,4), vr(CA,16))])
    for r in range(16): p(f"v_sub_f32 v{CB+r}, 0, v{MB}")
    p(f"s_waitcnt vmcnt(0)")
    p(f"v_mov_b32 v{TM}, 1\nds_write_b32 v{FL+1}, v{TM}")
    flag_wait(p, "L_att_f1", FL, 0, 1, TM)
    st(p, 1)
    p("s_mov_b32 s41, 0")
    p(".p2align 6")
    p.label("L_att_loop")
    p.add(att_loop_body(U))
    p("s_cbranch_scc1 L_att_loop")
    st(p, 2)
    if VAR.get('endprio'): p("s_setprio 3")
    p(f"v_cvt_pk_bf16_f32 v{PB+6}, v{SB+12}, v{SB+13}\nv_cvt_pk_bf16_f32 v{PB+7}, v{SB+14}, v{SB+15}")
    p(f"""
    s_mul_i32 s33, s32, {88*1024}
    s_lshl_b32 s34, s27, 10
    s_add_u32 s33, s33, s34
    s_add_u32 s33, s33, {A3}
    """)
    p.add([mfma32(vr(OB,16), vr(V1R[3],4), vr(PB+4,4), vr(OB,16))])
    p("s_waitcnt lgkmcnt(0)")
    p(f"s_mov_b32 s36, 0\ns_mov_b32 s40, {float_hex(2.0**-112)}")
    p.label("L_att_chk")
    p(f"v_mul_f32 v{TM}, 0, v{OA+8}")
    for r in range(8): p(f"v_fmac_f32 v{TM}, 0, v{OA+r}")
    p(f"v_max3_f32 v{TM+1}, |v{OA}|, |v{OA+1}|, |v{OA+2}|\nv_max3_f32 v{TM+1}, v{TM+1}, |v{OA+3}|, |v{OA+4}|\nv_max3_f32 v{TM+1}, v{TM+1}, |v{OA+5}|, |v{OA+6}|\nv_max_f32_e64 v{TM+1}, v{TM+1}, |v{OA+7}|")
    p(f"v_mov_b32 v{TM+2}, v{TM+1}\nv_permlane32_swap_b32 v{TM+1}, v{TM+2}\nv_max_f32 v{TM+1}, v{TM+1}, v{TM+2}")
    p(f"v_cmp_u_f32 vcc, v{TM}, v{TM}\nv_cmp_gt_f32 s[38:39], s40, v{TM+1}\ns_or_b64 vcc, vcc, s[38:39]")
    p("s_cbranch_vccnz L_att_slow")
    p.label("L_att_fin")
    p(f"v_rcp_f32 v{MA}, v{OA+8}")
    p("s_cmp_lg_u32 s36, 0")
    for r in range(8): p(f"v_mul_f32 v{OA+r}, v{OA+r}, v{MA}")
    for k in range(4): p(f"v_cvt_pk_bf16_f32 v{PA+k}, v{OA+2*k}, v{OA+2*k+1}")
    for k in range(4): p(f"v_min_u32 v{PA+k}, -2, v{PA+k}")
    p(f"buffer_store_dwordx4 {vr(PA,4)}, v{GK}, s[12:15], s33 offen")
    p("s_cbranch_scc1 L_att_done")
    p(f"s_mov_b32 s36, 1\ns_add_u32 s33, s33, {88*1024}")
    for r in range(9): p(f"v_mov_b32 v{OA+r}, v{OB+r}")
    for r in range(4): p(f"v_mov_b32 v{QA+r}, v{QB+r}")
    p("s_branch L_att_chk")
    p.label("L_att_done")
    st(p, 3)
    p("s_endpgm")
    p.label("L_att_sync2")
    if VAR['sentA']: p("s_cmp_lg_u32 s41, 1\ns_cbranch_scc1 L_att_sync3")
    if VAR['sentA']:
        p("s_cmp_lg_u32 s44, 0\ns_cbranch_scc1 L_att_f2")
        for r in range(4): p(f"v_mov_b32 v{STT+r}, -1")
        p(f"buffer_store_dwordx4 {vr(STT,4)}, v{GK}, s[12:15], s33 offen sc1\nbuffer_store_dwordx4 {vr(STT,4)}, v{GK}, s[12:15], s39 offen sc1")
        for k in range(4): p(f"buffer_store_dwordx4 {vr(STT,4)}, v{GK}, s[12:15], s{46+k//2} offen offset:{(k%2)*1024} sc1")
    flag_wait(p, "L_att_f2", FL, 48, 1, TM)
    p("s_branch L_att_sync2_ret")
    p.label("L_att_sync3")
    if VAR['sentA']:
        p(f"v_mov_b32 v{TM}, s11\nv_mov_b32 v{TM+1}, 1\ns_waitcnt vmcnt(0)\nbuffer_store_dword v{TM}, off, s[12:15], s35 sc1\nbuffer_store_dword v{TM}, off, s[12:15], s42 sc1\nds_write_b32 v{FL+1}, v{TM+1} offset:64")
    p("s_branch L_att_sync2_ret")
    p.label("L_att_slow")
    p(f"v_mov_b32 v{MA}, 0xff800000\ns_mov_b32 s41, 0\ns_mov_b32 s37, s30")
    p.label("L_att_sl1")
    p(f"buffer_load_dwordx4 {vr(KR[0],4)}, v{GK}, s[12:15], s37 offen sc1")
    p("s_waitcnt vmcnt(0)")
    p.add([mfma32(vr(SA,16), vr(KR[0],4), vr(QA,4), "0")])
    max16(p, SA, MA, False)
    p(f"s_add_u32 s37, s37, {KVT}\ns_add_u32 s41, s41, 1\ns_cmp_lt_u32 s41, 64\ns_cbranch_scc1 L_att_sl1")
    p(f"v_mov_b32 v{TM}, v{MA}\nv_permlane32_swap_b32 v{TM}, v{MA}\nv_max_f32 v{MA}, v{MA}, v{TM}")
    for r in range(16): p(f"v_sub_f32 v{CA+r}, 0, v{MA}\nv_mov_b32 v{OA+r}, 0")
    p("s_mov_b32 s41, 0\ns_mov_b32 s37, s30")
    p.label("L_att_sl2")
    p(f"buffer_load_dwordx4 {vr(KR[0],4)}, v{GK}, s[12:15], s37 offen sc1")
    p(f"buffer_load_dwordx4 {vr(V0R[0],4)}, v{GV0}, s[12:15], s37 offen sc1")
    p(f"buffer_load_dwordx4 {vr(V1R[0],4)}, v{GV1}, s[12:15], s37 offen sc1")
    p("s_waitcnt vmcnt(0)")
    p.add([mfma32(vr(SA,16), vr(KR[0],4), vr(QA,4), vr(CA,16))])
    for k in range(16): p(f"v_exp_f32 v{SA+k}, v{SA+k}")
    for k in range(8): p(f"v_cvt_pk_bf16_f32 v{PA+k}, v{SA+2*k}, v{SA+2*k+1}")
    p.add([mfma32(vr(OA,16), vr(V0R[0],4), vr(PA,4), vr(OA,16)), mfma32(vr(OA,16), vr(V1R[0],4), vr(PA+4,4), vr(OA,16))])
    p(f"s_add_u32 s37, s37, {KVT}\ns_add_u32 s41, s41, 1\ns_cmp_lt_u32 s41, 64\ns_cbranch_scc1 L_att_sl2")
    p("s_nop 15\ns_branch L_att_fin")

ACC = 4
NZF = 16
ZR = 132
WR = 196
VL = 244; VD = 245; VW = 247
GF = 251
G = 232
def acc(i, tt): return ACC + (i*2+tt)*16

def kv_rest(p, uniq):
    p(f"s_sub_u32 m0, s62, {16384-3072}\ns_sub_u32 s61, s63, {16384-3072}")
    p(f"buffer_load_dwordx4 v{VL}, s[12:15], s61 offen sc1 lds", tag="kv")
    for i in range(6):
        p("s_mov_b32 m0, s62")
        if i < 5: p("s_add_u32 s62, s62, 16384")
        else: p("s_cmp_eq_u32 s24, 3")
        for k in range(4):
            if i == 5 and k == 3: p(f"s_cbranch_scc1 L_g_kvdone{uniq}")
            p(f"buffer_load_dwordx4 v{VL}, s[12:15], s63 offen offset:{k*1024} sc1 lds", tag="kv")
        if i < 5: p("s_add_u32 s63, s63, 16384")
    p.label(f"L_g_kvdone{uniq}")

def flag_addr(p):
    p(f"""
    s_lshr_b32 s48, s26, 3
    s_lshl_b32 s47, s25, 2
    s_add_u32 s48, s48, s47
    s_lshl_b32 s48, s48, 7                 ; tb'*128
    s_lshl_b32 s47, s24, 5
    s_add_u32 s46, s48, s47
    s_mul_i32 s47, s24, 28
    s_add_u32 s48, s48, s47
    s_add_u32 s48, s48, {UFL-OFL}          ; u flags
    s_and_b32 s47, s26, 7
    s_lshl_b32 s47, s47, 7
    s_add_u32 s47, s47, {WFL-OFL}          ; W flags
    v_lshlrev_b32 v{G+5}, 2, v1
    v_mov_b32 v{G+6}, s48
    v_add_u32 v{G+7}, s48, v{G+5}
    v_cmp_gt_u32 vcc, 7, v1
    v_cndmask_b32 v{G+6}, v{G+6}, v{G+7}, vcc
    v_subrev_u32 v{G+5}, 128, v{G+5}
    v_add_u32 v{G+7}, s47, v{G+5}
    v_cmp_gt_u32 vcc, 64, v{G+5}
    v_cndmask_b32 v{G+6}, v{G+6}, v{G+7}, vcc
    v_subrev_u32 v{G+5}, 64, v{G+5}
    v_add_u32 v{G+7}, s46, v{G+5}
    v_cmp_gt_u32 vcc, 32, v{G+5}
    v_cndmask_b32 v{G+6}, v{G+6}, v{G+7}, vcc
    v_subrev_u32 v{G+5}, 32, v{G+5}
    v_add_u32 v{G+7}, s49, v{G+5}
    v_cmp_gt_u32 vcc, 8, v{G+5}
    v_cndmask_b32 v{G+6}, v{G+6}, v{G+7}, vcc
    s_mov_b32 s48, {OFL}
    """)
def gen_gemm(p, st, mid=None):
    k2_ids(p)
    p(f"""
    s_load_dwordx4 s[4:7], s[0:1], {KA_WSP}
    s_sub_u32 s24, s24, 4                  ; q = K quarter
    v_lshlrev_b32 v{VL}, 4, v1
    s_mul_i32 s63, s27, {KVH}
    s_lshl_b32 s62, s24, 12
    s_add_u32 s62, s62, 32768
    s_add_u32 s63, s63, s62
    s_add_u32 s63, s63, {KV + KVT + 1024}
    s_add_u32 s62, s62, {IMG}
    s_lshl_b32 s46, s24, 2
    s_add_u32 s46, s46, {LDS_FLAG}
    v_mov_b32 v{GF}, s46
    v_mov_b32 v0, 1
    v_mov_b32 v2, {LDS_FLAG}
    s_waitcnt lgkmcnt(0)
    ds_write_b32 v{GF}, v0 offset:160
    """)
    srd(p, 16, 4, 2048*2048*2); srd(p, 20, 6, 4096)
    flag_wait(p, "L_g_bd", 2, 160, 1, 4)
    flag_wait(p, "L_g_go", 2, 176, 1, 4, sleep=2)
    kv_rest(p, "a")
    p(f"""
    s_cmp_ge_u32 s26, 28
    s_cbranch_scc1 L_idle
    s_setprio 3
    s_mul_i32 s30, s26, 9363
    s_lshr_b32 s30, s30, 16                ; j/7
    s_mul_i32 s31, s30, 7
    s_sub_u32 s31, s26, s31                ; fb = j%7
    s_lshl_b32 s32, s25, 2
    s_add_u32 s30, s30, s32                ; tb
    s_lshl_b32 s33, s31, 19
    s_add_u32 s33, s33, {Z2F}
    s_lshl_b32 s34, s24, 17
    s_add_u32 s33, s33, s34
    s_lshl_b32 s56, s30, 18
    s_lshl_b32 s34, s24, 10
    s_add_u32 s56, s56, s34
    s_lshl_b32 s36, s24, 13
    s_add_u32 s36, s36, {LDS_STG}
    s_add_u32 s37, s36, 4096
    v_lshrrev_b32 v2, 3, v1
    v_lshrrev_b32 v3, 4, v1
    v_xor_b32 v3, v3, v1
    v_and_b32 v3, 7, v3
    v_lshlrev_b32 v3, 4, v3
    v_lshl_add_u32 v{VD}, v2, 12, v3
    v_xor_b32 v{VD+1}, 64, v{VD}
    v_add_u32 v{VD+1}, {8*4096-1024}, v{VD+1}
    """)
    for i in range(4):
        p(f"s_add_u32 s38, s24, {i}\ns_and_b32 s38, s38, 3\ns_lshl_b32 s38, s38, 10\ns_add_u32 s{52+i}, s33, s38")
    p(f"""
    s_lshl_b32 s38, s31, 12                ; (2fb)*16*128
    s_lshl_b32 s39, s24, 9
    s_add_u32 s39, s39, s38
    s_add_u32 s39, s39, {PFL+16}
    s_lshr_b32 s49, s24, 1
    s_lshl_b32 s49, s49, 11
    s_add_u32 s49, s49, s38
    s_lshr_b32 s38, s30, 1
    s_lshl_b32 s38, s38, 7
    s_add_u32 s49, s49, s38
    s_and_b32 s38, s30, 1
    s_lshl_b32 s38, s38, 3
    s_add_u32 s49, s49, s38
    s_add_u32 s49, s49, {PFL+32-OFL}
    v_and_b32 v4, 3, v1
    v_bfe_u32 v5, v1, 2, 1
    v_lshlrev_b32 v5, 11, v5
    v_lshl_add_u32 v4, v4, 7, v5
    v_bfe_u32 v5, v1, 3, 2
    v_lshl_add_u32 v4, v5, 2, v4
    """)
    def dma(b):
        out = []
        for i in range(8):
            if i % 4 == 0: out.append(I(f"s_mov_b32 m0, s{(66 if (b % 3 == 2 and b > 2) else 36) + i//4}"))
            if i % 2 == 0: out.append(I(f"s_add_u32 s57, s56, {(i//2)*16*4096 - (i%4)*1024}"))
            out.append(I(f"buffer_load_dwordx4 v{VD + i%2}, s[16:19], s57 offen offset:{(i%4)*1024} sc1 lds", tag=f"d{b}"))
        out.append(I("s_add_u32 s56, s56, 128"))
        return out
    def zload(n):
        i = n % 4
        return [I(f"buffer_load_dwordx4 {vr(ZR + (n%NZF)*4, 4)}, v{VL}, s[12:15], s{52+i} offen sc1", tag=f"z{n}"),
                I(f"s_add_u32 s{52+i}, s{52+i}, 4096")]
    p.add(dma(0))
    if VAR.get('ordb'):
        p.wait(vm="kv"); p(f"ds_write_b32 v{GF}, v0 offset:48")
        poll(p, "L_pz", 39, 4, None, 5, sleep=VAR.get('zsleep', 4))
        st(p, 9)
        if VAR.get('stop') == 1: p("s_endpgm")
        for n in range(16): p.add(zload(n))
        mid(p, "a")
    else:
        mid(p, "a", [W(vm="kv"), I(f"ds_write_b32 v{GF}, v0 offset:48")])
        p.wait(vm="kv"); p(f"ds_write_b32 v{GF}, v0 offset:48")
        poll(p, "L_pz", 39, 4, None, 5, sleep=VAR.get('zsleep', 4))
        p(f"v_mov_b32 v0, s11\nbuffer_store_dword v0, off, s[12:15], s89 sc1")
        st(p, 9)
        if VAR.get('stop') == 1: p("s_endpgm")
        for n in range(16): p.add(zload(n))
    p(f"v_and_b32 v2, 31, v1")
    bitswap23(p, 2, 2, 3)
    p(f"""
    v_lshrrev_b32 v3, 1, v2
    v_lshrrev_b32 v{VW}, 5, v1
    v_xor_b32 v3, v3, v{VW}
    v_and_b32 v3, 7, v3
    v_lshlrev_b32 v3, 4, v3
    v_lshl_add_u32 v{VW}, v2, 7, v3
    v_add_u32 v{VW}, s36, v{VW}
    v_xor_b32 v{VW+1}, 32, v{VW}
    v_xor_b32 v{VW+2}, 64, v{VW}
    v_xor_b32 v{VW+3}, 96, v{VW}
    """)
    if VAR['fuse3']:
        flag_addr(p); p(f"v_mov_b32 v3, v{G+6}")
    p(f"s_setprio {VAR['prio_g']}")
    st(p, 1)
    wr = lambda g, tt: WR + ((g % 6)*2 + tt)*4
    def wread(b):
        return [I(f"ds_read_b128 {vr(wr(4*b+u, tt), 4)}, v{VW+u} offset:{tt*4096}", tag=f"w{b}", needs=[f"d{b}"]) for u in range(4) for tt in range(2)]
    def block_burst(b, first=False, dma_on=True, z_on=True, w_on=True):
        o = []
        for u in range(4):
            g = 4*b+u
            o.append(W(vm=[f"z{4*g+3}"]))
            for i in range(4):
                n = 4*g+i
                for tt in range(2):
                    c = "0" if (first and u == 0) else vr(acc(i,tt),16)
                    o.append(mfma32(vr(acc(i,tt),16), vr(ZR+(n%NZF)*4,4), vr(wr(g,tt),4), c))
                if u == 2 and i == 1 and w_on:
                    o.append(W(lg=f"w{b+1}"))
                    if dma_on: o += dma(b+2)
            if u == 1 and w_on: o += [W(vm=f"d{b+1}")] + wread(b+1)
            if z_on:
                for i in range(4): o += zload(4*g+i+NZF)
        return o
    def block(b, first=False, dma_on=True, z_on=True, w_on=True):
        if VAR.get('burst', 1): return block_burst(b, first, dma_on, z_on, w_on)
        o = []
        dm = []
        if w_on and dma_on:
            cur = []
            for x in dma(b+2):
                cur.append(x)
                if x.kind == "vmem": dm.append(cur); cur = []
            dm[-1] += cur
        wrd = wread(b+1) if w_on else []
        for u in range(4):
            g = 4*b+u
            for i in range(4):
                n = 4*g+i
                for tt in range(2):
                    if tt == 0: o.append(W(vm=[f"z{n}"]))
                    c = "0" if (first and u == 0) else vr(acc(i,tt),16)
                    o.append(mfma32(vr(acc(i,tt),16), vr(ZR+(n%NZF)*4,4), vr(wr(g,tt),4), c))
                    if VAR.get('pace'): o.append(I(f"s_nop {VAR['pace']}"))
                    if tt == 1 and z_on: o += zload(n+NZF)
                    if tt == 0:
                        if u == 2 and w_on:
                            if i == 0: o.append(W(vm=f"d{b+1}"))
                            o += wrd[2*i:2*i+2]
                        if u == 3 and dm:
                            if i == 0: o.append(W(lg=f"w{b+1}"))
                            o += dm.pop(0) + dm.pop(0)
                        elif u == 3 and i == 0 and w_on: o.append(W(lg=f"w{b+1}"))
        return o
    p.add(wread(0)); p.wait(lg="w0"); p.add(dma(1))
    p.add(block(0, first=True))
    p("s_mov_b32 s60, 0")
    hist = dma(0) + sum([zload(n) for n in range(16)], []) + dma(1) + block(0) + block(1) + block(2) + block(3) + [I("L_mark:")] + block(4) + block(5) + block(6)
    full = resolve_waits(hist)
    lb = full[next(i for i, x in enumerate(full) if x.kind == "label" and x.op == "L_mark")+1:]
    first_pass = resolve_waits(dma(0) + sum([zload(n) for n in range(16)], []) + dma(1) + block(0) + [I("L_mark:")] + block(1) + block(2) + block(3))
    fp = first_pass[next(i for i, x in enumerate(first_pass) if x.kind == "label" and x.op == "L_mark")+1:]
    assert len(fp) == len(lb)
    merged = []
    for x, y in zip(fp, lb):
        if x.kind == "wait":
            vm = min(v for v in (x.vm, y.vm) if v is not None) if (x.vm is not None or y.vm is not None) else None
            lg = min(v for v in (x.lg, y.lg) if v is not None) if (x.lg is not None or y.lg is not None) else None
            merged.append(I("s_waitcnt " + " ".join(([f"vmcnt({vm})"] if vm is not None else []) + ([f"lgkmcnt({lg})"] if lg is not None else []))))
        else:
            assert x.text == y.text, (x.text, y.text)
            merged.append(y)
    p.label("L_g_loop")
    p("s_cmp_eq_u32 s60, 1\ns_cselect_b32 s66, 0x30000, s36\ns_cselect_b32 s67, 0x30000, s37")
    p.add(merged)
    p("s_add_u32 s60, s60, 1\ns_cmp_lt_u32 s60, 2\ns_cbranch_scc1 L_g_loop")
    if VAR['fuse3']: p(f"s_mov_b32 s48, {OFL}"); p(f"buffer_load_dword v0, v3, s[12:15], s48 offen sc1", tag="fl")
    p.add(block(7, dma_on=False, z_on=False, w_on=False))
    st(p, 2)
    if VAR.get('stop') == 2: p("s_endpgm")
    p(f"s_setprio {VAR.get('prio_e', 3)}")
    p(f"""
    s_lshl_b32 s38, s30, 1
    s_mul_i32 s39, s38, {56*1024}
    s_lshl_b32 s40, s31, 2
    s_add_u32 s40, s40, s24
    s_lshl_b32 s41, s40, 11
    s_add_u32 s39, s39, s41
    s_add_u32 s39, s39, {Z1F}
    s_add_u32 s42, s39, {56*1024}
    s_mul_i32 s64, s38, {88*1024}
    s_add_u32 s64, s64, s41
    s_add_u32 s64, s64, {A3 + 32*1024}
    s_add_u32 s65, s64, {88*1024}
    s_lshl_b32 s45, s30, 7
    v_lshlrev_b32 v2, 1, v2
    """)
    Z = ZR
    p(f"v_mov_b32 v{G+1}, v{GF}")
    if VAR['fuse3']:
        p.wait(vm="fl")
        p("v_cmp_ne_u32 vcc, s11, v0\ns_cbranch_vccz L_g_fl")
        poll(p, "L_p00", 48, 3, None, 0, sleep=8)
        p.label("L_g_fl")
    p(f"buffer_load_dwordx4 {vr(Z,4)}, v{VL}, s[12:15], s39 offen sc1", tag="z1")
    p(f"buffer_load_dwordx4 {vr(Z+4,4)}, v{VL}, s[12:15], s39 offen offset:1024 sc1", tag="z1")
    p(f"buffer_load_dwordx4 {vr(Z+8,4)}, v{VL}, s[12:15], s42 offen sc1", tag="z1")
    p(f"buffer_load_dwordx4 {vr(Z+12,4)}, v{VL}, s[12:15], s42 offen offset:1024 sc1", tag="z1")
    p(f"buffer_load_ushort v{Z+16}, v2, s[20:23], s45 offen sc1", tag="z1")
    p(f"buffer_load_ushort v{Z+17}, v2, s[20:23], s45 offen offset:64 sc1", tag="z1")
    if VAR['fuse3']:
        g2_scalars(p)
        w_loads(p, 0, 10)
    p(f"v_add_u32 v{G}, s36, v{VL}\nv_mov_b32 v{G+2}, {LDS_FLAG}\ns_lshl_b32 s47, s24, 14\ns_add_u32 s47, s47, {IMG}\nv_add_u32 v{G+3}, s47, v{VL}")
    for k in range(8): p(f"ds_write_b128 v{G}, {vr(acc(1,0)+4*k, 4)} offset:{k*1024}")
    flag_wait(p, "L_g_prog", G+2, 80, 4, G+4)
    for r in (2, 3):
        for k in range(8): p(f"ds_write_b128 v{G+3}, {vr(acc(r,0)+4*k, 4)} offset:{(r-2)*8192 + k*1024}")
    for r in range(1, 4):
        p(f"s_add_u32 s47, s24, {4-r}\ns_and_b32 s47, s47, 3")
        if r == 1: p(f"s_lshl_b32 s47, s47, 13\ns_add_u32 s47, s47, {LDS_STG}\nv_add_u32 v{G}, s47, v{VL}")
        else: p(f"s_lshl_b32 s47, s47, 14\ns_add_u32 s47, s47, {(r-2)*8192 + IMG}\nv_add_u32 v{2 if r == 2 else 3}, s47, v{VL}")
    p(f"v_mov_b32 v{G+3}, 1\ns_waitcnt lgkmcnt(0)\nds_write_b32 v{G+1}, v{G+3} offset:16")
    flag_wait(p, "L_g_dat", G+2, 16, 1, G+4, sleep=0)
    for r in range(1, 4):
        for k in range(8):
            p(f"ds_read_b128 {vr(acc(r,0)+4*k,4)}, v{(G, 2, 3)[r-1]} offset:{k*1024}", tag=f"r{r}_{k}")
        if r > 1:
            for k in range(8):
                p.wait(lg=f"r{r-1}_{k}")
                for e in range(4): p(f"v_add_f32 v{acc(0,0)+4*k+e}, v{acc(0,0)+4*k+e}, v{acc(r-1,0)+4*k+e}")
    for k in range(8):
        p.wait(lg=f"r3_{k}")
        for e in range(4): p(f"v_add_f32 v{acc(0,0)+4*k+e}, v{acc(0,0)+4*k+e}, v{acc(3,0)+4*k+e}")
    if VAR['sentA']: spin1(p, "L_g_pf", G+1, 64, 1, G+3)
    p.wait(vm="z1")
    T = acc(1, 0)
    p(f"v_lshlrev_b32 v{Z+16}, 16, v{Z+16}\nv_lshlrev_b32 v{Z+17}, 16, v{Z+17}")
    for tt in range(2):
        a = acc(0, tt)
        for r in range(16): p(f"v_add_f32 v{a+r}, v{a+r}, v{Z+16+tt}")
        for d in range(8):
            z = Z + tt*8 + d
            p(f"v_lshlrev_b32 v{T}, 16, v{z}\nv_and_b32 v{T+1}, 0xffff0000, v{z}")
            p(f"v_mul_f32 v{a+2*d}, v{a+2*d}, v{T}\nv_mul_f32 v{a+2*d+1}, v{a+2*d+1}, v{T+1}")
            p(f"v_cvt_pk_bf16_f32 v{T+8+tt*8+d}, v{a+2*d}, v{a+2*d+1}")
        for d in (range(8) if VAR.get('fullver', 1) else (0, 4)): p(f"v_min_u32 v{T+8+tt*8+d}, -2, v{T+8+tt*8+d}")
        so = 64 + tt
        p(f"buffer_store_dwordx4 {vr(T+8+tt*8,4)}, v{VL}, s[12:15], s{so} offen")
        p(f"buffer_store_dwordx4 {vr(T+12+tt*8,4)}, v{VL}, s[12:15], s{so} offen offset:1024")
    if VAR.get('pf3'):
        p(f"s_lshl_b32 s38, s26, 2\ns_add_u32 s38, s38, s24\ns_mul_i32 s38, s38, 16384\ns_add_u32 s38, s38, {W3F}\nv_lshlrev_b32 v2, 7, v1")
        p(f"buffer_load_dword v3, v2, s[12:15], s38 offen\ns_add_u32 s38, s38, 8192\nbuffer_load_dword v3, v2, s[12:15], s38 offen")
    st(p, 3)
    if VAR['fuse3']:
        if VAR.get('stop') == 3: p("s_endpgm")
        p("s_branch L_g2")
    else: p("s_endpgm")
    p.label("L_idle")
    p.wait(vm="kv"); p(f"s_waitcnt vmcnt(0)\nds_write_b32 v{GF}, v0 offset:48")
    mid(p, "b")
    p(f"""
    s_load_dwordx2 s[36:37], s[0:1], {KA_WO}
    s_load_dwordx2 s[38:39], s[0:1], {KA_WOUT}
    s_lshl_b32 s34, s25, 2
    s_add_u32 s34, s34, s26
    s_sub_u32 s34, s34, 28                      ; L
    s_mov_b32 s54, {896*1024}
    v_lshrrev_b32 v2, 2, v1
    v_and_b32 v3, 3, v1
    v_lshlrev_b32 v3, 4, v3
    v_lshl_add_u32 v2, v2, 10, v3
    s_waitcnt lgkmcnt(0)
    s_cmp_lt_u32 s34, 16
    s_cselect_b32 s52, s36, s38
    s_cselect_b32 s53, s37, s39
    s_cselect_b32 s54, {512*1024}, s54
    s_cselect_b32 s35, 8, 14
    s_cselect_b32 s67, 0, {32*1024}
    s_mov_b32 s55, 0x20000
    s_and_b32 s34, s34, 15
    s_mul_i32 s68, s24, s35
    s_lshl_b32 s69, s68, 14
    s_lshl_b32 s60, s34, 6
    s_add_u32 s69, s69, s60
    s_mul_i32 s60, s34, {88*1024}
    s_lshl_b32 s68, s68, 10
    s_add_u32 s60, s60, s68
    s_add_u32 s60, s60, s67
    s_add_u32 s60, s60, {W3F}
    s_lshl_b32 s61, s24, 13
    s_add_u32 s61, s61, {LDS_STG}
    """)
    def w3_dma(n):
        for k in range(n):
            p(f"s_add_u32 m0, s61, {k*1024}\ns_nop 0\nbuffer_load_dwordx4 v2, s[52:55], s69 offen lds\ns_add_u32 s69, s69, 16384")
    def w3_out(n):
        for k in range(n):
            p(f"ds_read_b64_tr_b16 v[{8+4*k}:{9+4*k}], v3 offset:{k*1024}\nds_read_b64_tr_b16 v[{10+4*k}:{11+4*k}], v3 offset:{k*1024+256}")
            if k % 4 == 3: p("s_waitcnt lgkmcnt(0)")
        p("s_waitcnt lgkmcnt(0)")
        for k in range(n):
            p(f"buffer_store_dwordx4 v[{8+4*k}:{11+4*k}], v{VL}, s[12:15], s60 offen\ns_add_u32 s60, s60, 1024")
    p(f"v_mov_b32 v5, s11\ns_waitcnt vmcnt(0)\nbuffer_store_dword v5, off, s[12:15], s89 sc1")
    G0 = VAR.get('ipf0', 0); GB = VAR.get('ipfb', 0)
    NP = (8 - G0 - GB) if VAR.get('ipf', 1) else 0
    if VAR.get('ipf', 1):
        p(f"""
        s_sub_u32 s36, s26, 28
        s_lshl_b32 s36, s36, 2
        s_add_u32 s36, s36, s24                 ; wave16
        v_lshlrev_b32 v5, 12, v1
        s_lshl_b32 s56, s25, 20
        s_and_b32 s37, s36, 3
        s_lshl_b32 s37, s37, 18
        s_add_u32 s56, s56, s37
        s_lshr_b32 s37, s36, 2
        s_lshl_b32 s37, s37, 10
        s_add_u32 s56, s56, s37
        """)
        for g in range(G0, G0+GB): p(f"buffer_load_dword v6, v5, s[16:19], s56 offen offset:{g*128}")
    w3_dma(8)
    if VAR.get('ipf', 1):
        for g in range(G0+GB, 8): p(f"buffer_load_dword v6, v5, s[16:19], s56 offen offset:{g*128}")
    p(f"""
    v_lshrrev_b32 v4, 5, v1
    v_lshlrev_b32 v3, 9, v4
    v_bfe_u32 v4, v1, 2, 2
    v_lshl_add_u32 v3, v4, 6, v3
    v_bfe_u32 v4, v1, 4, 1
    v_lshl_add_u32 v3, v4, 5, v3
    v_and_b32 v4, 1, v1
    v_lshl_add_u32 v3, v4, 4, v3
    v_bfe_u32 v4, v1, 1, 1
    v_lshl_add_u32 v3, v4, 3, v3
    v_add_u32 v3, s61, v3
    s_waitcnt vmcnt({NP if GB == 0 else 0})
    """)
    w3_out(8)
    p("s_cmp_eq_u32 s35, 8\ns_cbranch_scc1 L_w3done")
    w3_dma(6)
    p("s_waitcnt vmcnt(0)")
    w3_out(6)
    p.label("L_w3done")
    if not VAR['fuse3']:
        p("s_endpgm"); return
    p(f"""
    s_lshr_b32 s33, s34, 1
    s_lshl_b32 s33, s33, 7                      ; (nt>>1)*128
    s_and_b32 s34, s34, 1
    s_lshl_b32 s34, s34, 4
    s_add_u32 s33, s33, s34
    s_lshr_b32 s34, s67, 10                     ; 0 or 32
    s_add_u32 s33, s33, s34
    s_lshl_b32 s34, s24, 2
    s_add_u32 s33, s33, s34
    s_add_u32 s33, s33, {WFL}
    v_mov_b32 v0, s11
    s_waitcnt vmcnt(0)
    buffer_store_dword v0, off, s[12:15], s33 sc1
    s_add_u32 s49, s33, {-OFL & 0xffffffff:#x}
    s_and_b32 s49, s49, -64
    """)
    flag_addr(p)
    if VAR.get('stop'): p("s_endpgm")
    p.label("L_g2w")
    p(f"s_mov_b32 s48, {OFL}")
    poll(p, "L_p0", 48, G+6, None, G+5, sleep=32)
    gen_g2(p, st)


FA = 4
def FWr(k): return 152 + 4*k if k < 20 else 68 + 4*(k-20)
def FRr(k): return 100 + 4*k if k < 13 else 232 + 4*(k-13)
FX = 84
FXU = 152
FL_ = 244; FO = 245; FT = 246
def poll(p, name, soff, voff, mask_hi_lo, tmp, bad=0, sleep=None):
    p(f"s_mov_b32 s47, 0")
    p.label(name)
    p(f"buffer_load_dword v{tmp}, v{voff}, s[12:15], s{soff} offen sc1\ns_add_u32 s47, s47, 1\ns_waitcnt vmcnt(0)")
    p(f"{'v_cmp_eq_u32 vcc, -1' if bad == -1 else 'v_cmp_ne_u32 vcc, s11'}, v{tmp}\ns_cbranch_vccz {name}_ok\ns_cmp_gt_u32 s47, 0x10000\ns_cbranch_scc1 {name}_ok\ns_sleep {sleep or VAR.get('psleep', 16)}\ns_branch {name}")
    p.label(name + "_ok")
def g2_scalars(p):
    p(f"""
    s_load_dwordx2 s[6:7], s[0:1], {KA_X}
    s_load_dwordx2 s[8:9], s[0:1], {KA_OUT}
    s_lshr_b32 s27, s26, 3
    s_lshl_b32 s28, s25, 2
    s_add_u32 s27, s27, s28                ; tb
    s_and_b32 s28, s26, 7                  ; nb
    s_and_b32 s29, s24, 1
    s_lshr_b32 s30, s24, 1
    s_lshl_b32 s32, s27, 1
    s_add_u32 s33, s32, s29
    s_xor_b32 s34, s33, 1
    s_lshl_b32 s32, s28, 1
    s_add_u32 s35, s32, s30
    s_xor_b32 s37, s35, 1
    s_mul_i32 s40, s33, {88*1024}
    s_mul_i32 s41, s34, {88*1024}
    s_mul_i32 s42, s35, {88*1024}
    s_mul_i32 s43, s37, {88*1024}
    s_add_u32 s40, s40, {A3}
    s_add_u32 s41, s41, {A3}
    s_add_u32 s42, s42, {W3F}
    s_add_u32 s43, s43, {W3F}
    s_mul_i32 s31, s24, {14*1024}
    s_add_u32 s31, s31, {32*1024}
    s_lshl_b32 s32, s24, 13
    s_lshl_b32 s44, s33, 15
    s_lshl_b32 s45, s35, 6
    s_add_u32 s44, s44, s45
    s_mov_b32 s49, 0
    s_waitcnt lgkmcnt(0)
    """)
def Wu(s_, i): return 152 + 4*(((s_ if s_ < 10 else s_-10))*2 + i)
def Wo(k, i): return (152 + 4*((k+4)*2 + i)) if k < 6 else (68 + 4*((k-6)*2 + i))
def Ur(s_, i):
    n = (s_ % 12)*2 + i
    return FRr(n) if n < 16 else 68 + 4*(n-16)
def w_loads(p, s0, s1, tag=None):
    for s_ in range(s0, s1):
        for i in range(2):
            if s_ == s0 or s_ % 4 == 0: p(f"s_add_u32 s{54+i}, s{42+i}, s31\ns_add_u32 s{54+i}, s{54+i}, {(s_//4)*4096}")
            p(f"buffer_load_dwordx4 {vr(Wu(s_, i),4)}, v{FL_}, s[12:15], s{54+i} offen offset:{(s_%4)*1024} sc1", tag=tag)
def gen_g2(p, st):
    p("s_setprio 3")
    g2_scalars(p)
    p.label("L_g2_redo")
    w_loads(p, 0, 10)
    p.label("L_g2")
    for i in range(2): p(f"s_add_u32 s{52+i}, s{40+i}, s31")
    for i in range(4): p(f"s_add_u32 s{56+i}, s{40+i}, s32")
    p(f"""
    s_min_u32 s46, s52, s53
    s_min_u32 s45, s56, s57
    v_lshrrev_b32 v2, 1, v1
    v_min_u32 v{FT+2}, 13, v2
    v_min_u32 v{FT+1}, 7, v2
    v_and_b32 v3, 1, v1
    v_mul_u32_u24 v3, {88*1024}, v3
    v_add_u32 v3, 1008, v3
    v_lshl_add_u32 v{FT+2}, v{FT+2}, 10, v3
    v_lshl_add_u32 v{FT+1}, v{FT+1}, 10, v3
    v_and_b32 v2, 31, v1
    """)
    bitswap23(p, 2, 2, 3)
    p(f"v_lshrrev_b32 v3, 5, v1\nv_lshlrev_b32 v3, 4, v3\nv_lshl_add_u32 v{FO}, v2, 10, v3\nv_mov_b32 v{FT+5}, 0")
    srd(p, 16, 6, 2048*1024); srd(p, 20, 8, 2048*1024)
    poll(p, "L_p1", 46, FT+2, None, FT+4, bad=-1)
    st(p, 4)
    p(f"s_setprio {VAR.get('prio_u', 3)}")
    NR = VAR.get('nr', 8)
    def ld(s):
        o = []
        if s and s % 4 == 0: o += [I(f"s_add_u32 s{52+i}, s{52+i}, 4096") for i in range(2)]
        for i in range(2):
            o.append(I(f"buffer_load_dwordx4 {vr(Ur(s, i),4)}, v{FL_}, s[12:15], s{52+i} offen offset:{(s%4)*1024} sc1", tag=f"g{s}"))
        return o
    def wo_ld(k):
        for i in range(2):
            p(f"s_add_u32 s47, s{58+i}, {(k//4)*4096}")
            p(f"buffer_load_dwordx4 {vr(Wo(k, i),4)}, v{FL_}, s[12:15], s47 offen offset:{(k%4)*1024} sc1", tag="wo")
    for s_ in range(NR): p.add(ld(s_))
    for s_ in range(14):
        p.wait(vm=[f"g{s_}", f"wu{s_}"])
        for n_, (a, b) in enumerate(((0,0), (0,1), (1,0), (1,1))):
            d = vr(FA + (a*2+b)*16, 16)
            p.add([mfma32(d, vr(Wu(s_, a),4), vr(Ur(s_, b),4), "0" if s_ == 0 else d)])
            r0 = Ur(s_, n_//2) + 2*(n_%2)
            if VAR.get('fullver', 1): p(f"v_max3_u32 v{FT+5}, v{FT+5}, v{r0}, v{r0+1}")
            elif n_ == 0: p(f"v_max3_u32 v{FT+5}, v{FT+5}, v{Ur(s_,0)}, v{Ur(s_,1)}")
        if s_+NR < 14: p.add(ld(s_+NR))
        if s_ < 4: w_loads(p, 10+s_, 11+s_, tag=f"wu{10+s_}")
        elif s_ < 12: wo_ld(s_-4)
    p(f"buffer_load_dwordx4 {vr(FX,4)}, v{FO}, s[16:19], s44 offen", tag="x")
    p(f"buffer_load_dwordx4 {vr(FX+4,4)}, v{FO}, s[16:19], s44 offen offset:32", tag="x")
    p(f"s_setprio 3\nv_cmp_eq_u32 vcc, -1, v{FT+5}\ns_cbranch_vccnz L_g2_again")
    p.label("L_g2_go")
    p.wait(vm="x")
    for d_ in range(7, -1, -1):
        p(f"v_and_b32 v{FXU+2*d_+1}, 0xffff0000, v{FX+d_}\nv_lshlrev_b32 v{FXU+2*d_}, 16, v{FX+d_}")
    st(p, 5)
    p("s_barrier")
    p("s_add_u32 s58, s56, 4096\ns_add_u32 s59, s57, 4096\ns_mov_b32 s49, 0")
    if VAR.get('direct', 0): p("s_branch L_p3b")
    p.label("L_p3")
    poll(p, "L_p2", 45, FT+1, None, FT+4, bad=-1, sleep=VAR.get('p3sleep', 4))
    p.label("L_p3b")
    for s_ in range(8):
        for i in range(2):
            p(f"buffer_load_dwordx4 {vr(FRr(s_*2+i),4)}, v{FL_}, s[12:15], s{56+i+2*(s_//4)} offen offset:{(s_%4)*1024} sc1", tag=f"o{s_}")
    p(f"v_mov_b32 v{FT+4}, 0\ns_add_u32 s49, s49, 1")
    for s_ in range(8):
        p.wait(vm=f"o{s_}")
        for k in range(0, 8, 2): p(f"v_max3_u32 v{FT+4}, v{FT+4}, v{FRr(2*s_+k//4)+k%4}, v{FRr(2*s_+k//4)+k%4+1}")
    p(f"v_cmp_eq_u32 vcc, -1, v{FT+4}\ns_cbranch_vccz L_p3_ok\ns_cmp_lt_u32 s49, 8\ns_cbranch_scc1 L_p3")
    p.label("L_p3_ok")
    st(p, 6)
    for i in range(1, 4):
        p(f"s_xor_b32 s46, s24, {i}\ns_mul_i32 s46, s46, 12288\ns_add_u32 s46, s46, {(i-1)*4096 + IMG}\nv_add_u32 v{FT+i}, s46, v{FL_}")
    p(f"s_mul_i32 s46, s24, 12288\ns_add_u32 s46, s46, {IMG}\nv_add_u32 v{FT}, s46, v{FL_}")
    for s_ in range(8):
        order = ((0,0), (0,1), (1,0), (1,1)) if s_ < 7 else ((0,1), (1,0), (1,1), (0,0))
        for (a, b) in order:
            d = vr(FA + (a*2+b)*16, 16)
            p.add([mfma32(d, vr(Wo(s_, a),4), vr(FRr(s_*2+b),4), d)])
    for i in range(1, 4):
        for k in range(4): p(f"ds_write_b128 v{FT+i}, {vr(FA+i*16+4*k,4)} offset:{k*1024}")
    for r in range(16): p(f"v_add_f32 v{FA+r}, v{FA+r}, v{FXU+r}")
    p("s_waitcnt lgkmcnt(0)\ns_barrier")
    for k in range(12): p(f"ds_read_b128 {vr(FA+16+4*k,4)}, v{FT} offset:{k*1024}", tag=f"r{k}")
    for k in range(12):
        p.wait(lg=f"r{k}")
        for e in range(4): p(f"v_add_f32 v{FA+(4*k+e)%16}, v{FA+(4*k+e)%16}, v{FA+16+4*k+e}")
    for d in range(8): p(f"v_cvt_pk_bf16_f32 v{FX+d}, v{FA+2*d}, v{FA+2*d+1}")
    p(f"buffer_store_dwordx4 {vr(FX,4)}, v{FO}, s[20:23], s44 offen")
    p(f"buffer_store_dwordx4 {vr(FX+4,4)}, v{FO}, s[20:23], s44 offen offset:32")
    st(p, 7)
    if st.on and VAR.get('dbg') is not None:
        D = VAR['dbg']
        p(f"s_cmp_lg_u32 s2, {D}\ns_cbranch_scc1 L_end\ns_cmp_lg_u32 s24, 0\ns_cbranch_scc1 L_end")
        p(f"s_load_dwordx2 s[6:7], s[0:1], {KA_DBG}\ns_waitcnt vmcnt(0)")
        sel = [(0,0,15),(0,0,1),(0,0,5),(0,0,7),(0,0,9),(1,0,15),(1,0,1),(1,0,2),(1,0,3),(1,4,1),(1,4,2),(1,4,3),(1,4,4),(1,4,5),(1,4,6),(1,4,7)]
        for i, (k, w, sl) in enumerate(sel):
            off = STAMP + k*0x80000 + (D*16 + w)*128 + sl*8 + 4
            p(f"v_mov_b32 v3, {off:#x}\nbuffer_load_dword v{100+i}, v3, s[12:15], 0 offen sc1")
        p("s_waitcnt vmcnt(0) lgkmcnt(0)")
        srd(p, 16, 6, 256)
        for i in range(16):
            p(f"v_sub_u32 v2, v{100+i}, v100\nbuffer_store_dword v2, off, s[16:19], 0 offset:{4*i}")
    p("s_endpgm")
    p.label("L_g2_again")
    p("s_add_u32 s49, s49, 1\ns_cmp_gt_u32 s49, 8\ns_cbranch_scc1 L_g2_go\ns_waitcnt vmcnt(0)\ns_branch L_g2_redo")


def placeholder_addrs(p, m):
    p(f"""
    s_and_b32 s34, s2, 7                   ; xcd
    s_lshr_b32 s35, s2, 3                  ; j
    s_lshr_b32 s53, s35, 3
    s_lshl_b32 s54, s34, 2
    s_add_u32 s53, s53, s54                ; head
    s_and_b32 s36, s35, 7
    s_lshl_b32 s36, s36, 2
    s_add_u32 s36, s36, s{m}
    s_lshl_b32 s37, s36, 7
    s_mul_i32 s36, s36, {2*88*1024}
    s_lshl_b32 s38, s53, 10
    s_add_u32 s36, s36, s38
    s_add_u32 s36, s36, {A3}
    s_lshl_b32 s53, s53, 2
    s_add_u32 s53, s53, s37
    s_add_u32 s53, s53, {OFL}
    s_add_u32 s37, s36, {88*1024}
    s_mul_i32 s38, s35, 9363
    s_lshr_b32 s38, s38, 16                ; j/7
    s_mul_i32 s39, s38, 7
    s_sub_u32 s39, s35, s39                ; fb
    s_add_u32 s38, s38, s54
    s_lshl_b32 s39, s39, 2
    s_add_u32 s39, s39, s{m}               ; ft
    s_lshl_b32 s54, s38, 7
    s_lshl_b32 s34, s39, 2
    s_add_u32 s54, s54, s34
    s_add_u32 s54, s54, {UFL}
    s_mul_i32 s38, s38, {2*88*1024}
    s_lshl_b32 s39, s39, 11
    s_add_u32 s38, s38, s39
    s_add_u32 s38, s38, {A3 + 32*1024}
    s_cmp_lt_u32 s35, 28
    s_cselect_b32 s38, s38, 0x7ff00000
    s_cselect_b32 s54, s54, 0x7ff00000
    s_add_u32 s39, s38, {88*1024}
    """)
```

```python
from common import *
import f2
def ar(b, n): return vr(128+b, n)
import struct, math
def fh(f): return hex(struct.unpack("<I", struct.pack("<f", f))[0])
K1_LDS = 163840
RING = 65536
BIAS = 3072
CNT = 3072
C0 = -2.0*math.sqrt(2.0/math.pi)*1.4426950408889634
A0, A1, A2, A3_ = 4, 20, 36, 52
LA = 2
WB = 68
CSF = 92
CSA = 100
T = 68
WC = 92; STQ = 96
SEL = 108; XC = 112
R1, RI, C0R, C1R = 116, 117, 118, 119
VXD = 116
VXR = 112
VL, VPI, VQ, VB = 120, 121, 122, 123
VA = 124
RR = 52
SX, Q0, Q1 = 52, 56, 60
VAR = dict(prio=True, per=1, rot=6, cpf=40960)
WI, WQ, XS = "s[16:19]", "s[20:23]", "s[24:27]"
SXE, SIE, SQE = 60, 64, 96

def dma1(lds_s, lds_c, sr, vo, sb, se, c, tag):
    return [I(f"s_add_u32 m0, s{lds_s}, {lds_c}"), I(f"s_add_u32 s69, s{sb}, s{se}"),
            I(f"buffer_load_dwordx4 v{vo}, {sr}, s69 offen offset:{c} lds" if False else f"s_add_u32 s69, s69, {c}"),
            I(f"buffer_load_dwordx4 v{vo}, {sr}, s69 offen lds", tag=tag)]
def E_addr(ks): return RING + ((ks//8)*24 + (ks%8)*3)*1024
def Q_addr(ks): return RING + ks*2048
def Z_addr(ks): return (131072 + ks*2048) if ks < 16 else (32768 + (ks-16)*2048)
CSO = 256; RAW = 2048; TBL = 2560
SCR2 = 65536
VQP = 0
def dma_E(e):
    b = RING + e*24*1024
    return [dma1(58, b, WI, VPI, 80, SIE+e, 1792, f"E{e}"), dma1(58, b+1024, WI, VPI, 80, SIE+e, 1792+8*3584, f"E{e}"),
            dma1(58, b+2048, WQ, VQ, 81, SQE+e, 2048, f"E{e}")]
def dma_Q(e):
    b = RING + e*16384
    return [dma1(55, b, WQ, VQP, 82, SQE+e, 0, f"Q{e}"), dma1(55, b+1024, WQ, VQP, 82, SQE+e, 8*3072, f"Q{e}")]
def dma_Z(e):
    b = (131072 + e*16384) if e < 2 else (32768 + (e-2)*16384)
    return [dma1(55, b, WI, VPI, 80, SIE+e, 0, "Za"), dma1(55, b+1024, WI, VPI, 80, SIE+e, 8*3584, "Za")]
def x_dma(e):
    return [[I(f"s_add_u32 m0, s59, {(2*e % 4)*4096 + i*1024}"), I(f"s_add_u32 s69, s56, s{SXE+e}"),
             I(f"buffer_load_dwordx4 v{VXD+i}, {XS}, s69 offen lds", tag=f"X{e}")] for i in range(4)]
def flat(x): return sum(x, [])
def x_read(ks):
    return [I(f"ds_read_b128 {ar(4*ks,4)}, v{VXR+ks%4} offset:{((ks//4)%4)*4096}", tag=f"xr{ks}")]
class Addr:
    def __init__(self, base): self.base = base
    def off(self, addr, out, span=2048+1024+6*1024*2):
        if not (0 <= addr - self.base and addr - self.base + 1024 <= 65535):
            nb = addr if addr < self.base else addr
            d = (nb - self.base) & 0xffffffff
            out += [I(f"v_add_u32 v{VA+k}, {d:#x}, v{VA+k}") for k in range(4)]
            self.base = nb
        return addr - self.base
def tr_read(dst, areg, off, e2, tag):
    return [I(f"ds_read_b64_tr_b16 {vr(dst+2*e,2)}, v{areg} offset:{off+e2*e}", tag=tag) for e in range(2)]
def m16(d, b, first): return I(f"v_mfma_f32_16x16x32_bf16 {vr(d,4)}, {vr(SEL,4)}, {b}, {'0' if first else vr(d,4)}")
def stats_mfma(ks):
    x = 4*ks; z = ks == 0
    return [m16(SX, ar(x,4), z),
            I(f"v_mfma_f32_4x4x4_16b_bf16 {vr(Q0,4)}, {ar(x,2)}, {ar(x,2)}, {'0' if z else vr(Q0,4)}"),
            I(f"v_mfma_f32_4x4x4_16b_bf16 {vr(Q1,4)}, {ar(x+2,2)}, {ar(x+2,2)}, {'0' if z else vr(Q1,4)}")]
def wb(ks, ti): return WB + ((ks % (LA+1))*2 + ti)*4
def stl(st, k):
    q = Prog(); st(q, k); return q.l

def gemm_pass(accs, addr_of, base0, nori, tagp, e2, hooks=None, cs_tiles=None, stats=False, cs_s=9, cs_o=CSO):
    nt = len(accs)
    am = Addr(base0)
    def rd(ks, dst, regs, tag):
        o = []
        off = am.off(addr_of(ks), o)
        for ti in range(nt): o += tr_read(dst(ti), regs+ti, off, e2, tag)
        return o
    o = []
    for ks in range(LA): o += rd(ks, lambda ti: wb(ks,ti), VA, f"{tagp}{ks}")
    for ks in range(32):
        pre = W(lg=[f"{tagp}{ks}", f"xr{ks}"])
        mf = []
        for ti in range(nt):
            w = vr(wb(ks,ti),4); x = ar(4*ks,4); d = vr(accs[ti],16)
            mf.append(mfma32(d, x, w, "0" if ks == 0 else d) if nori else mfma32(d, w, x, "0" if ks == 0 else d))
        h0, h1, h2 = hooks(ks) if hooks else ([], [], [])
        post = list(h0)
        tail = []
        if ks % 4 == 0 and cs_tiles:
            post += rd(ks, lambda ti: CSF+4*ti, VA+2, f"c{tagp}{ks}")
        if ks+LA < 32: post += rd(ks+LA, lambda ti: wb(ks+LA,ti), VA, f"{tagp}{ks+LA}")
        post += h1
        if ks % 4 == 1 and cs_tiles:
            pre.lg.append(f"c{tagp}{ks-1}")
            for ti in range(nt): tail.append(m16(CSA+4*ti, vr(CSF+4*ti,4), ks == 1))
        if ks == 30 and cs_tiles:
            tail.append(I(f"v_lshl_add_u32 v3, v1, 2, s{cs_s}"))
            for ti in range(nt): tail.append(I(f"ds_write_b32 v3, v{CSA+4*ti} offset:{cs_o + cs_tiles[ti]*256}"))
        if stats:
            if VAR.get('stfirst'): mf += stats_mfma(ks); mf_all = True
            else: tail += stats_mfma(ks)
        tail += h2
        if stats and VAR.get('stfirst'): o += [pre] + mf + post + tail
        else: o += [pre] + mf[:1] + post + mf[1:] + tail
    return o

def phase1_hooks(st, early=False):
    sched = {}
    def spread(pcs, first, per):
        pcs = list(pcs); k = first
        while pcs:
            for _ in range(per):
                if pcs: sched.setdefault(k, []).append(pcs.pop(0))
            k += 1
    if not early: spread(dma_E(2) + dma_E(3), 0, 1)
    spread(x_dma(2) + dma_Q(0), 8-LA, VAR['per'])
    spread(x_dma(3) + dma_Q(1) + dma_Q(2), 16-LA, VAR['per'])
    spread(dma_Q(3), 24-LA, VAR['per'])
    def hooks(ks):
        e, r8 = divmod(ks, 8)
        h0 = []; h1 = []
        if r8 == 8-LA and e < 3:
            h0 = [W(vm=[f"X{e+1}", f"E{e+1}"], lg0=True), I("s_barrier")] + stl(st, 2+e)
        if r8 >= 8-LA and e < 3:
            k0 = 8*(e+1) + 2*(r8-(8-LA)); h1 += x_read(k0) + x_read(k0+1)
        if r8 < 4: h1 += x_read(8*e+4+r8)
        h2 = flat(sched.get(ks, []))
        if ks == 26: h2 = h2 + [I(f"buffer_load_dword v{A2+1}, off, s[44:47], 0 sc1", tag="tag")]
        return h0, h1, h2
    return hooks

def set_va(p, pair, base, mstride):
    sh = 7 if pair else 6
    p(f"""
    v_lshrrev_b32 v2, 5, v1
    v_lshlrev_b32 v{VA}, {sh+3}, v2
    v_bfe_u32 v3, v1, 2, 2
    v_lshl_add_u32 v{VA}, v3, {sh}, v{VA}
    v_bfe_u32 v3, v1, 4, 1
    v_lshl_add_u32 v{VA}, v3, 5, v{VA}
    v_and_b32 v3, 1, v1
    v_lshl_add_u32 v{VA}, v3, 4, v{VA}
    v_bfe_u32 v3, v1, 1, 1
    v_lshl_add_u32 v{VA}, v3, 3, v{VA}
    """)
    if pair: p(f"v_bfe_u32 v3, v1, 3, 1\nv_lshl_add_u32 v{VA}, v3, 6, v{VA}")
    p(f"""
    v_add_u32 v{VA}, {base}, v{VA}
    s_mul_i32 s34, s29, {mstride}
    v_xor_b32 v{VA+1}, 64, v{VA}
    v_add_u32 v{VA+2}, s34, v{VA}
    v_add_u32 v{VA+3}, s34, v{VA+1}
    """)

def corr_from(b, d, nori):
    o = [I(f"v_sub_f32 v{b}, 0, v{b}"),
         I(f"v_cvt_pk_bf16_f32 v{WC+1}, v{b}, 0"),
         I(f"v_lshlrev_b32 v{b+1}, 16, v{WC+1}"),
         I(f"v_sub_f32 v{b+1}, v{b}, v{b+1}"),
         I(f"v_cvt_pk_bf16_f32 v{WC}, v{b}, v{b+1}")]
    a_, b_ = (vr(XC,4), vr(WC,4)) if nori else (vr(WC,4), vr(XC,4))
    o.append(mfma32(vr(d,16), a_, b_, vr(d,16)))
    return o
def cs_reads(tiles, tag, base=0, stride=None, off=CSO):
    o = [I(f"v_lshlrev_b32 v2, 2, v1")]
    if base: o.append(I(f"v_add_u32 v2, {base}, v2"))
    for k, tl in enumerate(tiles):
        for w in range(4): o.append(I(f"ds_read_b32 v{T+4*k+w}, v2 offset:{(w*stride if stride else (w>>1)*16384 + (w&1)*4096) + off + tl*256}", tag=tag))
    return o
def cs_corr(accs, nori, tag):
    o = [I(f"v_mov_b32 v{WC+2}, 0"), I(f"v_mov_b32 v{WC+3}, 0"), W(lg=tag)]
    for k, d in enumerate(accs):
        b = T+4*k
        o += [I(f"v_add_f32 v{b}, v{b}, v{b+1}"), I(f"v_add_f32 v{b+2}, v{b+2}, v{b+3}"), I(f"v_add_f32 v{b}, v{b}, v{b+2}")]
        o += corr_from(b, d, nori)
    return o

def ln1_final(g, S, Q):
    o = Prog()
    o(f"""
    v_mul_f32 v{S}, {fh(1/512)}, v{S}
    v_cndmask_b32 v{S+1}, v{S}, 0, s[74:75]
    v_mul_f32 v{S+2}, v{S}, v{S}
    v_cvt_pk_bf16_f32 v{XC}, v{S+1}, v{S+1}
    v_fma_f32 v{Q}, v{Q}, s76, -v{S+2}
    v_and_b32 v{S+3}, 0xffff0000, v{XC}
    v_max_f32 v{Q}, 0, v{Q}
    v_sub_f32 v{S+3}, v{S+1}, v{S+3}
    v_add_f32 v{Q}, {fh(1e-5)}, v{Q}
    v_cvt_pk_bf16_f32 v{XC+1}, v{S+3}, 0
    v_rsq_f32 v{R1}, v{Q}
    v_mov_b32 v{XC+2}, 0
    v_mov_b32 v{XC+3}, 0
    """)
    rr = RR if g == 0 else A1
    tb = TBL + 256*g
    o(f"""
    v_lshl_add_u32 v3, v{VB}, 2, s9
    ds_write_b32 v3, v{R1} offset:{tb}
    v_lshrrev_b32 v3, 5, v1
    v_lshl_add_u32 v3, v3, 5, s9
    s_waitcnt lgkmcnt(0)
    """)
    for k in range(4): o(f"ds_read_b128 {vr(rr+4*k,4)}, v3 offset:{tb + (k//2)*64 + (k%2)*16}", tag="rr")
    if g == 0:
        o(f"v_mov_b32 v{C0R}, {fh(C0)}")
    else:
        o(f"""
        v_sqrt_f32 v{RI}, v{Q}
        v_mul_f32 v{C0R}, {fh(C0)}, v{R1}
        v_mul_f32 v{C1R}, v{R1}, v{R1}
        v_mul_f32 v{C1R}, v{C1R}, v{C0R}
        v_mul_f32 v{C1R}, {fh(0.044715)}, v{C1R}
        """)
    return o.l

def gelu_T(a, P0):
    o = []
    for g in range(0, 16, 4):
        rs = range(g, g+4); tt = lambda r: T + (r % 4)
        o += [I(f"v_mul_f32 v{tt(r)}, v{a+r}, v{a+r}") for r in rs]
        o += [I(f"v_fma_f32 v{tt(r)}, v{tt(r)}, v{C1R}, v{C0R}") for r in rs]
        o += [I(f"v_mul_f32 v{tt(r)}, v{tt(r)}, v{a+r}") for r in rs]
        o += [I(f"v_exp_f32 v{tt(r)}, v{tt(r)}") for r in rs]
        o += [I(f"v_fma_f32 v{tt(r)}, v{tt(r)}, v{RI}, v{RI}") for r in rs]
        o += [I(f"v_rcp_f32 v{tt(r)}, v{tt(r)}") for r in rs]
        o += [I(f"v_mul_f32 v{a+r}, v{a+r}, v{tt(r)}") for r in rs]
        o += [I(f"v_cvt_pk_bf16_f32 v{P0+r//2}, v{a+r}, v{a+r+1}") for r in (g, g+2)]
    return o
def gelu_N(a):
    o = []
    for g in range(0, 16, 4):
        rs = range(g, g+4); tt = lambda r: T + (r % 4)
        o += [I(f"v_mul_f32 v{a+r}, v{a+r}, v{RR+r}") for r in rs]
        o += [I(f"v_mul_f32 v{tt(r)}, v{a+r}, v{a+r}") for r in rs]
        o += [I(f"v_fma_f32 v{tt(r)}, v{tt(r)}, s77, v{C0R}") for r in rs]
        o += [I(f"v_mul_f32 v{tt(r)}, v{tt(r)}, v{a+r}") for r in rs]
        o += [I(f"v_exp_f32 v{tt(r)}, v{tt(r)}") for r in rs]
        o += [I(f"v_add_f32 v{tt(r)}, 1.0, v{tt(r)}") for r in rs]
        o += [I(f"v_rcp_f32 v{tt(r)}, v{tt(r)}") for r in rs]
        o += [I(f"v_mul_f32 v{a+r}, v{a+r}, v{tt(r)}") for r in rs]
    return o

def z2_stats():
    o = []
    a0, a1 = A0, A1
    for hf in range(2):
        S1 = lambda r: T + 4 + r
        S2 = lambda r: T + 12 + r
        for r in range(8):
            R = hf*8 + r
            o.append(I(f"v_mul_f32 v{S2(r)}, v{a0+R}, v{a0+R}"))
            o.append(I(f"v_add_f32 v{S1(r)}, v{a0+R}, v{a1+R}"))
        for r in range(8): o.append(I(f"v_fmac_f32 v{S2(r)}, v{a1+hf*8+r}, v{a1+hf*8+r}"))
        for S in (S1, S2):
            for r in range(4): o.append(I(f"v_permlane16_swap_b32 v{S(r)}, v{S(r+4)}"))
        for S in (S1, S2):
            for r in range(4): o.append(I(f"v_add_f32 v{S(r)}, v{S(r)}, v{S(r+4)}"))
        for S in (S1, S2):
            for r in range(2): o.append(I(f"v_add_f32_dpp v{S(r+4)}, v{S(r)}, v{S(r)} row_ror:8 row_mask:0xf bank_mask:0x3"))
        for S in (S1, S2):
            for r in range(2): o.append(I(f"v_add_f32_dpp v{S(r+4)}, v{S(r+2)}, v{S(r+2)} row_ror:8 row_mask:0xf bank_mask:0xc"))
        for S in (S1, S2): o.append(I(f"v_add_f32_dpp v{S(0)}, v{S(4)}, v{S(4)} row_half_mirror row_mask:0xf bank_mask:0x5"))
        for S in (S1, S2): o.append(I(f"v_add_f32_dpp v{S(0)}, v{S(5)}, v{S(5)} row_half_mirror row_mask:0xf bank_mask:0xa"))
        for S in (S1, S2): o.append(I(f"v_add_f32_dpp v{S(0)}, v{S(0)}, v{S(0)} quad_perm:[1,0,3,2] row_mask:0xf bank_mask:0xf"))
        for k, S in enumerate((S1, S2)): o.append(I(f"v_add_f32_dpp v{STQ+2*hf+k}, v{S(0)}, v{S(0)} quad_perm:[2,3,0,1] row_mask:0xf bank_mask:0xf"))
    return o

def prio(p, n):
    if VAR['prio']: p(f"s_setprio {n}")

def gen_kf(stamp=False):
    p = Prog()
    st = Stamper(stamp, 10, 0)
    st2 = Stamper(stamp, 10, 252, kid=1)
    entry_stamp(p, stamp)
    p(f"""
    s_cmp_ge_u32 s2, 256
    s_cbranch_scc1 L_end
    s_load_dwordx4 s[4:7], s[0:1], {KA_X}
    s_load_dwordx2 s[8:9], s[0:1], {KA_WIN}
    s_load_dwordx4 s[48:51], s[0:1], {KA_DBG}
    v_and_b32 v1, 63, v0
    v_lshrrev_b32 v2, 6, v0
    v_readfirstlane_b32 s28, v2                 ; wave 0..7
    s_mov_b32 s10, s28
    s_and_b32 s29, s2, 7
    s_lshr_b32 s30, s2, 3
    s_and_b32 s31, s29, 1
    s_lshl_b32 s31, s31, 3
    s_and_b32 s32, s30, 7
    s_add_u32 s31, s31, s32                     ; rb
    s_lshr_b32 s32, s29, 1
    s_lshl_b32 s32, s32, 2
    s_lshr_b32 s33, s30, 3
    s_add_u32 s32, s32, s33                     ; cg
    v_lshrrev_b32 v2, 3, v1
    v_lshrrev_b32 v3, 4, v1
    v_xor_b32 v{VXD}, v3, v1
    v_and_b32 v{VXD}, 7, v{VXD}
    v_lshlrev_b32 v{VXD}, 4, v{VXD}
    v_lshl_add_u32 v{VXD}, v2, 10, v{VXD}
    v_and_b32 v3, 1, v3
    v_lshlrev_b32 v3, 2, v3
    v_xor_b32 v3, v3, v1
    v_and_b32 v3, 7, v3
    v_lshlrev_b32 v{VB}, 4, v3
    v_mul_u32_u24 v{VPI}, 3584, v2
    v_add_u32 v{VPI}, v{VPI}, v{VB}
    v_mul_u32_u24 v{VQP}, 3072, v2
    v_add_u32 v{VQP}, v{VQP}, v{VB}
    v_lshrrev_b32 v2, 2, v1
    v_and_b32 v3, 3, v1
    v_lshlrev_b32 v3, 4, v3
    v_mul_u32_u24 v{VQ}, 3072, v2
    v_add_u32 v{VQ}, v{VQ}, v3
    s_and_b32 s29, s28, 3                       ; m tile
    s_lshr_b32 s30, s28, 2                      ; group
    s_lshl_b32 s33, s31, 2
    s_add_u32 s33, s33, s29                     ; tt
    s_lshl_b32 s56, s33, 15
    s_lshl_b32 s34, s30, 7
    s_add_u32 s56, s56, s34
    s_lshl_b32 s57, s29, 14
    s_lshl_b32 s34, s30, 12
    s_add_u32 s59, s57, s34
    s_mul_i32 s58, s28, 3072
    s_lshl_b32 s55, s28, 11
    v_xor_b32 v{VXD+1}, 64, v{VXD}
    v_add_u32 v{VXD+2}, 16384, v{VXD}
    v_add_u32 v{VXD+1}, 8192, v{VXD+1}
    v_add_u32 v{VXD+3}, 16384, v{VXD+1}
    s_mul_i32 s80, s28, {16*3584}
    s_lshl_b32 s35, s32, 7
    s_add_u32 s80, s80, s35
    s_mul_i32 s81, s28, {16*3072}
    s_lshl_b32 s35, s32, 6
    s_and_b32 s34, s32, 1
    s_mul_i32 s34, s34, {1024-64}
    s_add_u32 s82, s81, s34
    s_add_u32 s81, s81, s35
    s_add_u32 s82, s82, s35
    {["s_mov_b32 s35, 0", "s_add_u32 s35, s31, s32", "s_bfe_u32 s35, s2, 0x20001", "s_and_b32 s35, s2, 3", "s_lshl_b32 s35, s31, 1", "s_mov_b32 s35, s32", "s_mov_b32 s35, s31"][int(VAR['rot'])]}
    """)
    for e in range(4):
        p(f"s_add_u32 s34, s35, {e}\ns_and_b32 s34, s34, 3\ns_lshl_b32 s{SXE+e}, s34, 8\ns_mul_i32 s{SIE+e}, s34, {128*3584}\ns_mul_i32 s{SQE+e}, s34, {128*3072}")
    p(f"""
    s_cmp_lt_u32 s32, 14
    s_cselect_b32 s18, {512*3584}, 0
    s_cselect_b32 s42, {WS_USED}, 0
    s_mov_b32 s19, 0x20000
    s_mov_b32 s43, 0x20000
    s_waitcnt lgkmcnt(0)
    s_mov_b32 s16, s8
    s_mov_b32 s17, s9
    s_lshr_b32 s9, s29, 1
    s_lshl_b32 s9, s9, 14
    s_and_b32 s8, s29, 1
    s_lshl_b32 s8, s8, 12
    s_add_u32 s9, s9, s8
    """)
    srd(p, 24, 4, 2048*1024); srd(p, 20, 6, 512*3072)
    p.add(flat(x_dma(0))); p.add(flat(dma_E(0)))
    srd(p, 12, 50, WS_USED); srd(p, 44, 48, 256)
    p("s_mov_b32 s40, s50\ns_mov_b32 s41, s51")
    st(p, 0); entry_store(p, st)
    p(f"v_and_b32 v{VB}, 31, v1")
    bitswap23(p, VB, VB, 3)
    p(f"""
    v_lshrrev_b32 v3, 1, v{VB}
    v_lshrrev_b32 v2, 5, v1
    v_xor_b32 v3, v3, v2
    v_and_b32 v3, 7, v3
    v_lshlrev_b32 v3, 4, v3
    v_lshl_add_u32 v{VXR}, v{VB}, 7, v3
    v_add_u32 v{VXR}, s57, v{VXR}
    v_xor_b32 v{VXR+1}, 32, v{VXR}
    v_xor_b32 v{VXR+2}, 64, v{VXR}
    v_xor_b32 v{VXR+3}, 96, v{VXR}
    """)
    if VAR.get('b00', False): p("s_barrier")
    p.add(flat(x_dma(1))); p.add(flat(dma_E(1)))
    if VAR.get('cpf'): code_prefetch(p, 28, 3, f"v{A2}", 36, "L_cpf")
    p("s_or_b32 s34, s2, s28\ns_cmp_lg_u32 s34, 0\ns_cbranch_scc1 L_notag")
    p(f"s_mov_b32 s34, {EPO}\nbuffer_load_dword v2, off, s[12:15], s34 sc1\ns_waitcnt vmcnt(0)\nv_add_u32 v2, 1, v2\nv_max_u32 v2, 1, v2")
    p("buffer_store_dword v2, off, s[44:47], 0 sc1\nbuffer_store_dword v2, off, s[12:15], s34 sc1")
    p.label("L_notag")
    p(f"""
    v_lshlrev_b32 v{VL}, 4, v1
    v_and_b32 v3, 3, v1
    v_cmp_eq_u32 vcc, 0, v3
    v_lshrrev_b32 v3, 2, v1
    v_lshrrev_b32 v2, 4, v1
    v_xor_b32 v3, v3, v2
    v_and_b32 v3, 1, v3
    v_cmp_eq_u32 s[34:35], 0, v3
    s_and_b64 vcc, vcc, s[34:35]
    v_mov_b32 v3, 0x3f803f80
    v_cndmask_b32 v{SEL}, 0, v3, vcc
    v_mov_b32 v{SEL+1}, v{SEL}
    v_mov_b32 v{SEL+2}, v{SEL}
    v_mov_b32 v{SEL+3}, v{SEL}
    v_cmp_lt_u32 s[74:75], 31, v1
    s_mov_b32 s76, {fh(1/512)}
    s_cmp_eq_u32 s30, 0
    s_cbranch_scc1 L_g1
    """)
    def start(p):
        if VAR.get('fine'):
            st(p, 10); p.wait(vm="X0"); st(p, 11); p.wait(vm="E0"); st(p, 12)
        p.wait(vm=["X0", "E0"]); p("s_barrier"); st(p, 1)
        for ks in range(4): p.add(x_read(ks))
    def get_tag(p, u):
        p.wait(vm="tag")
        p(f"v_readfirstlane_b32 s11, v{A2+1}\ns_cmp_lg_u32 s11, 0\ns_cbranch_scc1 L_tag{u}\ns_mov_b32 s34, 0")
        p.label(f"L_tagp{u}")
        p(f"buffer_load_dword v2, off, s[44:47], 0 sc1\ns_add_u32 s34, s34, 1\ns_waitcnt vmcnt(0)\nv_readfirstlane_b32 s11, v2\ns_cmp_gt_u32 s34, 0x10000\ns_cbranch_scc1 L_tag{u}\ns_cmp_eq_u32 s11, 0\ns_cbranch_scc1 L_tagp{u}")
        p.label(f"L_tag{u}")
    set_va(p, True, RING, 3072)
    p(f"""
    s_mov_b32 s77, {fh(C0*0.044715)}
    s_lshr_b32 s34, s32, 1
    s_lshl_b32 s83, s34, 19
    s_lshl_b32 s35, s33, 13
    s_add_u32 s83, s83, s35
    s_and_b32 s35, s32, 1
    s_lshl_b32 s35, s35, 11
    s_add_u32 s83, s83, s35
    s_add_u32 s83, s83, {Z2F}
    s_add_u32 s84, s83, 4096
    s_lshl_b32 s87, s33, 13
    s_add_u32 s87, s87, {STAT}
    s_lshl_b32 s35, s32, 9
    s_add_u32 s88, s87, s35
    s_mul_i32 s85, s33, {56*1024}
    s_lshl_b32 s34, s32, 12
    s_add_u32 s85, s85, s34
    s_add_u32 s85, s85, {Z1F}
    s_lshl_b32 s86, s32, 11
    s_lshl_b32 s34, s31, 7
    s_add_u32 s86, s86, s34
    s_lshl_b32 s34, s29, 2
    s_add_u32 s86, s86, s34
    s_add_u32 s86, s86, {PFL+16}
    s_lshl_b32 s52, s29, 11
    s_add_u32 s52, s52, {SCR2}
    """)
    if not (f2.VAR['sentA'] or f2.VAR.get('sentW')): f2.placeholder_addrs(p, 29)
    for r in range(0 if (f2.VAR['sentA'] or f2.VAR.get('sentW')) else 4): p(f"v_mov_b32 v{A2+4+r}, -1")
    ph = [I(f"buffer_store_dwordx4 {vr(A2+4,4)}, v{VL}, s[12:15], s{so} offen offset:{o_} sc1") for so, o_ in ((36,0),(37,0),(38,0),(38,1024),(39,0),(39,1024))]
    h1_ = phase1_hooks(st); PH = 99 if (f2.VAR['sentA'] or f2.VAR.get('sentW')) else VAR.get('phstep', 24)
    def hooksB(ks):
        x0, x1, x2 = h1_(ks)
        if PH >= 0 and PH <= ks < PH+6:
            if VAR.get('phmask'): x2 = x2 + [I(f"s_mov_b32 exec_lo, {VAR['phmask']:#x}"), I(f"s_mov_b32 exec_hi, {VAR['phmask']:#x}"), ph[ks-PH], I("s_mov_b64 exec, -1")]
            else: x2 = x2 + [ph[ks-PH]]
        return x0, x1, x2
    if PH < 0: p.add(ph)
    prio(p, 1)
    start(p)
    p.add(gemm_pass([A0, A1], E_addr, RING, True, "w", 512, hooks=hooksB, cs_tiles=[0, 1]))
    p(f"v_mov_b32 v2, 0\nv_lshlrev_b32 v3, 2, v1\nds_write_b32 v3, v2")
    p.wait(vm=["Q0","Q1","Q2","Q3"], lg0=True)
    p("s_barrier")
    st(p, 5)
    prio(p, 0)
    p(f"v_lshl_add_u32 v3, v1, 2, s9")
    p(f"ds_read_b32 v{T+16}, v3 offset:{RAW}", tag="raw"); p(f"ds_read_b32 v{T+20}, v3 offset:{RAW+256}", tag="raw")
    p.add(cs_reads([0, 1], "cs0"))
    get_tag(p, "b")
    p.add(flat(dma_Z(0) + dma_Z(1) + dma_Z(2) + dma_Z(3)))
    p.wait(lg="raw")
    p(f"v_mov_b32 v{VQ}, v{T+20}")
    p.add(ln1_final(0, T+16, VQ))
    p.add(cs_corr([A0, A1], True, "cs0"))
    p.wait(lg="rr")
    p.add(gelu_N(A0)); p.add(gelu_N(A1)); p.add(z2_stats())
    p.wait(vm=["Za"])
    p(f"""
    v_and_b32 v3, 1, v1
    v_cmp_eq_u32 vcc, 1, v3
    v_bfe_u32 v2, v1, 2, 1
    v_lshl_add_u32 v2, v3, 4, v2
    v_bfe_u32 v3, v1, 3, 1
    v_lshl_add_u32 v2, v3, 1, v2
    v_bfe_u32 v3, v1, 4, 2
    v_lshl_add_u32 v2, v3, 2, v2                ; row = 16*(l&1) + 8h + 4b4 + 2b3 + b2
    v_lshlrev_b32 v2, 4, v2
    v_cndmask_b32 v{STQ}, v{STQ}, v{STQ+2}, vcc
    v_cndmask_b32 v{STQ+2}, v{STQ+1}, v{STQ+3}, vcc
    v_mov_b32 v{STQ+1}, s11
    v_mov_b32 v{STQ+3}, s11
    buffer_store_dwordx4 {vr(STQ,4)}, v2, s[40:43], s88 offen sc1
    {"" if (f2.VAR['sentA'] or f2.VAR.get('sentW')) else "buffer_store_dword v%d, off, s[12:15], s53 sc1" % (STQ+1)}
    {"" if (f2.VAR['sentA'] or f2.VAR.get('sentW')) else "buffer_store_dword v%d, off, s[12:15], s54 sc1" % (STQ+1)}
    v_sqrt_f32 v{RI}, v{VQ}
    v_mul_f32 v{C0R}, {fh(C0)}, v{R1}
    v_mul_f32 v{C1R}, v{R1}, v{R1}
    v_mul_f32 v{C1R}, v{C1R}, v{C0R}
    v_mul_f32 v{C1R}, {fh(0.044715)}, v{C1R}
    s_lshl_b32 s34, s29, 2
    v_mov_b32 v{VB}, s34
    """)
    set_va(p, True, 131072, 2048)
    st(p, 6)
    p.wait(lg0=True)
    p("s_barrier")
    prio(p, VAR.get('pz1', 2))
    st(p, 7)
    p("s_mov_b32 s88, s32\ns_mov_b32 s89, 0x7ff00000\ns_cmp_ge_u32 s32, 14\ns_cbranch_scc1 L_b_done")
    PS = VAR.get('pstep', 8); FS = VAR.get('fstep', 16)
    X = 128
    def part_loads():
        o = [I("v_and_b32 v2, 31, v1"), I("v_lshlrev_b32 v2, 4, v2"), I("v_lshrrev_b32 v3, 5, v1"), I("v_mul_u32_u24 v3, 3584, v3"), I("v_add_u32 v2, v2, v3")]
        for k in range(7):
            o.append(I(f"buffer_load_dwordx4 {ar(4*k,4)}, v2, s[12:15], s87 offen offset:{k*512} sc1", tag="part"))
        return o
    def z2_final():
        q = Prog()
        b = X+28
        q(f"s_mov_b32 s34, 0\ns_mov_b32 s35, {fh(1/896)}")
        q.wait(vm="part")
        q.label("L_chk")
        q(f"v_xor_b32 v{b+2}, s11, v{X+1}\nv_xor_b32 v{b+3}, s11, v{X+3}\nv_or_b32 v{b+2}, v{b+2}, v{b+3}\nv_mov_b32 v{b}, v{X}\nv_mov_b32 v{b+1}, v{X+2}")
        for k in range(1, 7):
            q(f"v_add_f32 v{b}, v{b}, v{X+4*k}\nv_add_f32 v{b+1}, v{b+1}, v{X+4*k+2}")
            q(f"v_xor_b32 v{X+4*k+1}, s11, v{X+4*k+1}\nv_xor_b32 v{X+4*k+3}, s11, v{X+4*k+3}\nv_or3_b32 v{b+2}, v{b+2}, v{X+4*k+1}, v{X+4*k+3}")
        q(f"v_cmp_ne_u32 vcc, 0, v{b+2}\ns_cbranch_vccnz L_retry")
        q.label("L_chk_ok")
        q(f"""
        v_mov_b32 v{b+2}, v{b}
        v_mov_b32 v{b+3}, v{b+1}
        v_and_b32 v2, 31, v1
        v_permlane32_swap_b32 v{b}, v{b+2}
        v_permlane32_swap_b32 v{b+1}, v{b+3}
        v_lshl_add_u32 v2, v2, 2, s52
        v_add_f32 v{b}, v{b}, v{b+2}
        v_add_f32 v{b+1}, v{b+1}, v{b+3}
        v_mul_f32 v{b}, s35, v{b}
        v_mul_f32 v{b+2}, v{b}, v{b}
        v_fma_f32 v{b+1}, v{b+1}, s35, -v{b+2}
        v_max_f32 v{b+1}, 0, v{b+1}
        v_add_f32 v{b+1}, {fh(1e-5)}, v{b+1}
        v_rsq_f32 v{b+1}, v{b+1}
        v_lshrrev_b32 v3, 5, v1
        v_lshl_add_u32 v3, v3, 5, s52
        v_mul_f32_e64 v{b}, -v{b}, v{b+1}
        ds_write_b32 v2, v{b+1} offset:1024
        ds_write_b32 v2, v{b} offset:1152
        s_waitcnt lgkmcnt(0)
        """)
        R2 = X; NM = X+16
        for k in range(4): q(f"ds_read_b128 {vr(R2+4*k,4)}, v3 offset:{1024 + (k//2)*64 + (k%2)*16}", tag="r2")
        for k in range(4): q(f"ds_read_b128 {vr(NM+4*k,4)}, v3 offset:{1152 + (k//2)*64 + (k%2)*16}", tag="r2")
        q2 = Prog()
        q2.wait(lg="r2")
        for t_ in range(2):
            a = A0 + 16*t_
            for r in range(16): q2(f"v_fma_f32 v{a+r}, v{a+r}, v{R2+r}, v{NM+r}")
            for d in range(8): q2(f"v_cvt_pk_bf16_f32 v{a+d}, v{a+2*d}, v{a+2*d+1}")
            q2(f"buffer_store_dwordx4 {vr(a,4)}, v{VL}, s[12:15], s83 offen offset:{t_*1024}")
            q2(f"buffer_store_dwordx4 {vr(a+4,4)}, v{VL}, s[12:15], s84 offen offset:{t_*1024}")
        return q.l, q2.l
    pl = part_loads(); zf1, zf2 = z2_final()
    n2 = (len(zf2) + 3)//4
    def zhooks(ks):
        t_ = []
        h0 = []
        if ks == PS: t_ += pl[:8]
        if ks == PS+1: t_ += pl[8:10]
        if ks == PS+2: t_ += pl[10:]
        if ks == FS: t_ += zf1
        if FS < ks <= FS+4: t_ += zf2[(ks-FS-1)*n2:(ks-FS)*n2]
        if ks == VAR.get('zfl', 28): t_ += [I("v_mov_b32 v2, s11"), I("s_waitcnt vmcnt(0)"), I("buffer_store_dword v2, off, s[12:15], s86 sc1")]
        return h0, [], t_
    p.add(gemm_pass([A2, A3_], Z_addr, 131072, False, "z", 512, hooks=zhooks, cs_tiles=[0, 1], cs_s=52, cs_o=0))
    p(f"v_mov_b32 v2, 1\ns_waitcnt lgkmcnt(0)\nds_write_b32 v{VB}, v2 offset:128")
    st(p, 8)
    prio(p, VAR.get('pz2', 2))
    p("v_mov_b32 v2, 0")
    f2.flag_wait(p, "L_csz", 2, 128, 1, STQ, sleep=0)
    p.add(cs_reads([0, 1], "cs2", base=SCR2, stride=2048, off=0))
    p.add(cs_corr([A2, A3_], False, "cs2"))
    def z1_tile(p, k, ins=None):
        a = (A2, A3_)[k]
        gl = gelu_T(a, T+4+8*k)
        if ins: c_ = VAR.get('kvcut', 60); gl = gl[:c_] + ins + gl[c_:]
        p.add(gl)
        p(f"buffer_store_dwordx4 {vr(T+4+8*k,4)}, v{VL}, s[12:15], s85 offen offset:{k*2048}")
        p(f"buffer_store_dwordx4 {vr(T+8+8*k,4)}, v{VL}, s[12:15], s85 offen offset:{k*2048+1024}")
    z1_tile(p, 0)
    def mid(p, u, ins=None):
        p("s_cmp_ge_u32 s88, 14\ns_cbranch_scc1 L_b_mid" + u)
        z1_tile(p, 1, ins)
        p.label("L_b_mid" + u)
        st(p, 9)
    p("s_add_u32 s89, s86, 16")
    p.label("L_b_done")
    st2(p, 0)
    f2.gen_gemm(p, st2, mid)
    p.label("L_retry")
    p("s_add_u32 s34, s34, 1\ns_cmp_gt_u32 s34, 0x10000\ns_cbranch_scc1 L_chk_ok")
    p.add(part_loads())
    p("s_waitcnt vmcnt(0)\ns_branch L_chk")
    p.label("L_g1")
    set_va(p, False, RING+2048, 3072)
    p(f"""
    v_and_b32 v3, 1, v1
    v_cmp_eq_u32 s[70:71], 1, v3
    v_and_b32 v3, 2, v1
    v_cmp_eq_u32 s[72:73], 2, v3
    s_mul_i32 s87, s32, {2*KVH}
    s_mul_i32 s34, s33, {KVT}
    s_add_u32 s87, s87, s34
    s_add_u32 s87, s87, {KV}
    s_lshr_b32 s34, s32, 1
    s_lshl_b32 s85, s34, 18
    s_lshl_b32 s35, s33, 10
    s_add_u32 s85, s85, s35
    s_mul_i32 s86, s34, {4*KVH}
    s_mul_i32 s35, s33, {KVT}
    s_add_u32 s86, s86, s35
    s_add_u32 s86, s86, {KV}
    s_bitcmp1_b32 s32, 0
    s_cselect_b32 s85, s86, s85
    s_mov_b32 s86, {KVH}
    s_cselect_b32 s86, s86, 0x10000
    s_mov_b32 s78, {fh(0.25*1.4426950408889634)}
    s_cselect_b32 s78, 1.0, s78                  ; scale
    s_lshl_b32 s83, s32, 11
    s_lshl_b32 s34, s31, 7
    s_add_u32 s83, s83, s34
    s_add_u32 s83, s83, {PFL}
    """)
    EA = VAR.get('ea', 0)
    if EA & 1: p.add(flat(dma_E(2) + dma_E(3)))
    if EA & 2:
        p(f"""
        s_and_b32 s34, s32, 3
        s_lshl_b32 s34, s34, 2
        s_add_u32 s34, s34, s29
        s_lshl_b32 s34, s34, 13
        s_lshl_b32 s35, s31, 17
        s_add_u32 s34, s34, s35
        v_lshrrev_b32 v2, 4, v1
        v_and_b32 v3, 15, v1
        v_lshlrev_b32 v3, 4, v3
        v_lshl_add_u32 v2, v2, 10, v3               ; 4 rows x 256B
        """)
        for e in (2, 3):
            for hf in range(2):
                p(f"s_add_u32 s35, s34, s{SXE+e}\ns_add_u32 s35, s35, {hf*4096}\nbuffer_load_dwordx4 {vr(A2+8,4)}, v2, {XS}, s35 offen")
    if EA & 4:
        p(f"""
        s_and_b32 s34, s31, 7
        s_lshl_b32 s34, s34, 2
        s_add_u32 s34, s34, s29
        s_mul_i32 s34, s34, {16*3072}
        s_mul_i32 s35, s28, {16*3072}
        s_sub_u32 s35, s82, s35
        s_add_u32 s34, s34, s35
        buffer_load_dwordx4 {vr(A2+8,4)}, v{VQP}, {WQ}, s34 offen
        s_add_u32 s34, s34, {8*3072}
        buffer_load_dwordx4 {vr(A2+8,4)}, v{VQP}, {WQ}, s34 offen
        """)
    prio(p, 1)
    start(p)
    p.add(gemm_pass([A0], lambda ks: E_addr(ks)+2048, RING+2048, True, "w", 256, hooks=phase1_hooks(st, early=bool(EA & 1)), cs_tiles=[2], stats=True))
    p(f"""
    v_add_f32 v{Q0}, v{Q0}, v{Q1}
    v_add_f32 v{Q0+1}, v{Q0+1}, v{Q1+1}
    v_add_f32 v{Q0+2}, v{Q0+2}, v{Q1+2}
    v_add_f32 v{Q0+3}, v{Q0+3}, v{Q1+3}
    v_cndmask_b32 v{Q0}, v{Q0}, v{Q0+1}, s[70:71]
    v_cndmask_b32 v{Q0+2}, v{Q0+2}, v{Q0+3}, s[70:71]
    ds_write_b32 v3, v{SX} offset:{RAW}
    v_cndmask_b32 v{Q0}, v{Q0}, v{Q0+2}, s[72:73]
    v_mov_b32 v{Q1}, v{Q0}
    v_permlane32_swap_b32 v{Q0}, v{Q1}
    v_add_f32 v{Q0}, v{Q0}, v{Q1}
    ds_write_b32 v3, v{Q0} offset:{RAW+256}
    """)
    p.wait(vm=["Q0","Q1","Q2","Q3"], lg0=True)
    p("s_barrier")
    st(p, 5)
    p.add(cs_reads([2], "cs1"))
    get_tag(p, "a")
    p.add(ln1_final(1, SX, Q0))
    p.add(cs_corr([A0], True, "cs1"))
    set_va(p, True, RING, 2048)
    zp = gemm_pass([A2, A3_], Q_addr, RING, False, "q", 512, cs_tiles=[5, 6])
    e = Prog()
    e.add(flat(dma_Z(0) + dma_Z(1) + dma_Z(2) + dma_Z(3)))
    e(f"""
    s_mov_b32 s77, {KVH}
    v_bfe_u32 v3, v1, 4, 1
    v_mul_lo_u32 v{VB}, v3, s77
    v_and_b32 v3, 15, v1
    v_lshl_add_u32 v{VB}, v3, 4, v{VB}
    v_lshrrev_b32 v3, 5, v1
    v_lshl_add_u32 v{VB}, v3, 8, v{VB}
    """)
    e.wait(lg="rr")
    for r in range(16): e(f"v_mul_f32 v{A0+r}, v{A0+r}, v{A1+r}")
    for d in range(8): e(f"v_cvt_pk_bf16_f32 v{A0+d}, v{A0+2*d}, v{A0+2*d+1}")
    for r in range(4): e(f"v_mov_b32 v{A1+r}, 0x3f803f80\nv_mov_b32 v{A1+4+r}, 0")
    e(f"v_mul_f32 v{R1}, s78, v{R1}")
    e.wait(vm=["Za"])
    e(f"buffer_store_dwordx4 {vr(A0,4)}, v{VB}, s[12:15], s87 offen offset:1024")
    e(f"buffer_store_dwordx4 {vr(A0+4,4)}, v{VB}, s[12:15], s87 offen offset:1536")
    p.add(interleave(zp, e.l, per_gap=VAR.get('egap', 2), start=1))
    p(f"s_mov_b64 exec, 0x10001\nbuffer_store_dwordx4 {vr(A1,4)}, v{VB}, s[12:15], s87 offen offset:2048\nbuffer_store_dwordx4 {vr(A1+4,4)}, v{VB}, s[12:15], s87 offen offset:2064\ns_mov_b64 exec, -1")
    st(p, 6)
    p.wait(lg0=True)
    p("s_barrier")
    prio(p, 2)
    st(p, 7)
    p.add(cs_reads([5, 6], "cs3"))
    p.add(cs_corr([A2, A3_], False, "cs3"))
    for a in (A2, A3_):
        for r in range(16): p(f"v_mul_f32 v{a+r}, v{a+r}, v{R1}")
        for d in range(8): p(f"v_cvt_pk_bf16_f32 v{a+d}, v{a+2*d}, v{a+2*d+1}")
        p(f"buffer_store_dwordx4 {vr(a,4)}, v{VL}, s[12:15], s85 offen\ns_add_u32 s85, s85, s86")
        p(f"buffer_store_dwordx4 {vr(a+4,4)}, v{VL}, s[12:15], s85 offen\ns_add_u32 s85, s85, s86")
    st(p, 8); st(p, 9)
    st2(p, 0)
    f2.gen_attention(p, st2)
    p.label("L_end")
    p("s_endpgm")
    return p

def split_groups(l):
    lab = {x.op: i for i, x in enumerate(l) if getattr(x, 'kind', '') == "label"}
    b = next(i for i, x in enumerate(l) if getattr(x, 'kind', '') == "branch" and x.target == "L_g1")
    return b, lab["L_g1"]
def kf_paths(l):
    b, g1 = split_groups(l)
    lab = {x.op: i for i, x in enumerate(l) if x.kind == "label"}
    B = l[:lab["L_idle"]] + l[lab["L_g2"]:lab["L_retry"]]
    A = l[:b] + l[g1:]
    e = next(i for i, x in enumerate(A) if x.kind == "misc" and x.base == "s_endpgm")
    return [linearize(B, {"L_g_loop": 2}), l[lab["L_idle"]:lab["L_retry"]], linearize(A[:e+1], {"L_att_loop": 3})]
def finalize_kf(p, verbose=False):
    l = p.l
    b, g1 = split_groups(l)
    head = l[:b+1]
    r0 = resolve_waits(l[:g1])
    r1 = resolve_waits(head + l[g1:])
    nh = len(resolve_waits(head))
    p2 = Prog(); p2.l = r0 + r1[nh:]
    return finalize("kf", p2, paths=kf_paths, verbose=verbose)
KF_DESC = dict(name="kf_kernel", vgpr=256, sgpr=102, accum=256, grid=256, block=512, lds=K1_LDS)
```

```python
from common import *
SOLO = True
import struct
def float_hex(f): return hex(struct.unpack("<I", struct.pack("<f", f))[0])

IMG = 1024
LDS_FLAG = 0
LDS_STG = 131072
K2_LDS = 163840
VAR = dict(margin=100.0, U=8, prio_att=1, prio_g=0, fuse3=True, sentA=True, cdelay=2)

QA, QB = 4, 8
CA, CB = 16, 32
OA, OB = 48, 64
SA, SB = 80, 96
PA, PB = 112, 120
KR = [128, 132, 136, 140]
V0R = [144, 148, 152, 156]
V1R = [160, 164, 168, 172]
AK, AV0, AV1 = 176, 177, 178
GK, GV0, GV1 = 179, 180, 181
MA, MB = 182, 183
TM = 184
FL = 188
PF, PFA = 190, 191
STT = 192

def max16(p, S, M, first):
    if first:
        p(f"v_max3_f32 v{M}, v{S}, v{S+1}, v{S+2}")
        p(f"v_max_f32 v{M}, v{M}, v{S+3}")
        r = range(4, 16, 2)
    else: r = range(0, 16, 2)
    for k in r: p(f"v_max3_f32 v{M}, v{M}, v{S+k}, v{S+k+1}")

def flag_wait(p, name, addr_v, off, val, tmpq, sleep=1):
    p.label(name)
    p(f"ds_read_b128 {vr(tmpq,4)}, v{addr_v} offset:{off}")
    p("s_waitcnt lgkmcnt(0)")
    p(f"v_min_u32 v{tmpq}, v{tmpq}, v{tmpq+1}\nv_min3_u32 v{tmpq}, v{tmpq}, v{tmpq+2}, v{tmpq+3}")
    p(f"v_cmp_gt_u32 vcc, {val}, v{tmpq}")
    p(f"s_cbranch_vccz {name}_ok\ns_sleep {sleep}\ns_branch {name}")
    p.label(name + "_ok")

def spin1(p, name, addr_v, off, val, tmp):
    p.label(name)
    p(f"ds_read_b32 v{tmp}, v{addr_v} offset:{off}")
    p("s_waitcnt lgkmcnt(0)")
    p(f"v_cmp_gt_u32 vcc, {val}, v{tmp}")
    p(f"s_cbranch_vccz {name}_ok\ns_sleep 1\ns_branch {name}")
    p.label(name + "_ok")

def att_loop_body(U):
    out = []
    def blk(S, P, So, Po, Mqk, Mpv1, Mpv0, extra):
        e = lambda k: I(f"v_exp_f32 v{S+k}, v{S+k}")
        c = lambda k: I(f"v_cvt_pk_bf16_f32 v{P+k}, v{S+2*k}, v{S+2*k+1}")
        co = lambda k: I(f"v_cvt_pk_bf16_f32 v{Po+k}, v{So+2*k}, v{So+2*k+1}")
        o = []
        pq, p1, p0 = VAR.get('pos', (2, 6, 12))
        cs = VAR.get('cs', {0: [-6], 1: [-7], 3: [0], 5: [1], 7: [2], 9: [3], 11: [4], 13: [5]})
        if VAR.get('perm'):
            c = lambda k: I(f"v_perm_b32 v{P+k}, v{S+2*k+1}, v{S+2*k}, s45")
            co = lambda k: I(f"v_perm_b32 v{Po+k}, v{So+2*k+1}, v{So+2*k}, s45")
        for k in range(16):
            o.append(e(k))
            for j in cs.get(k, []):
                if j < 0: o.append(co(-j))
            if k == pq and not VAR.get('nom'): o.append(Mqk)
            if k == p1 and not VAR.get('nom'): o.append(Mpv1)
            if k == p0 and not VAR.get('nom'): o.append(Mpv0)
            o += extra.get(k, [])
            for j in cs.get(k, []):
                if j >= 0: o.append(c(j))
        return o
    for u in range(U):
        s0 = u % 4; s1 = (u+1) % 4; sm = (u-1) % 4
        exA = {}; exB = {}
        if u % 2 == 0:
            rd = []
            for d in (2, 3):
                o_ = (u+d-1)*KVT
                rd += [I(f"ds_read_b128 {vr(KR[(u+d)%4],4)}, v{AK} offset:{o_}"),
                       I(f"ds_read_b128 {vr(V0R[(u+d)%4],4)}, v{AV0} offset:{o_}"),
                       I(f"ds_read_b128 {vr(V1R[(u+d)%4],4)}, v{AV1} offset:{o_}")]
            exA = {VAR.get('rdpos', 6): rd}
            if VAR.get('nods'): exA = {}
        if u == U-1:
            exB = {2: [I("s_add_u32 s41, s41, 1")], 3: [I("s_bitcmp1_b32 s45, s41" if VAR['sentA'] else "s_cmp_eq_u32 s41, 1")], 4: [I("s_cbranch_scc1 L_att_sync2"), I("L_att_sync2_ret:")],
                   5: [I(f"v_mov_b32 v{TM}, s41")], 7: [I(f"ds_write_b32 v{FL+1}, v{TM} offset:80")],
                   6: [I(f"v_add_u32 v{AK}, {U*KVT}, v{AK}")], 8: [I(f"v_add_u32 v{AV0}, {U*KVT}, v{AV0}")], 10: [I(f"v_add_u32 v{AV1}, {U*KVT}, v{AV1}")],
                   14: [I(f"s_cmp_lt_u32 s41, {64//U}")]}
        if u % 2 == 1: exB[0] = [I("s_waitcnt lgkmcnt(0)")]
        out += blk(SA, PA, SB, PB, mfma32(vr(SB,16), vr(KR[s0],4), vr(QB,4), vr(CB,16)),
                   mfma32(vr(OB,16), vr(V1R[sm],4), vr(PB+4,4), vr(OB,16)),
                   mfma32(vr(OA,16), vr(V0R[s0],4), vr(PA,4), vr(OA,16)), exA)
        out += blk(SB, PB, SA, PA, mfma32(vr(SA,16), vr(KR[s1],4), vr(QA,4), vr(CA,16)),
                   mfma32(vr(OA,16), vr(V1R[s0],4), vr(PA+4,4), vr(OA,16)),
                   mfma32(vr(OB,16), vr(V0R[s0],4), vr(PB,4), vr(OB,16)), exB)
    return out

def k2_ids(p):
    p(f"""
    s_mov_b32 s24, s10
    s_and_b32 s25, s2, 7
    s_lshr_b32 s26, s2, 3
    s_lshr_b32 s27, s26, 3
    s_lshl_b32 s28, s25, 2
    s_add_u32 s27, s27, s28                ; head
    s_and_b32 s28, s26, 7                  ; qb
    """)
def gen_attention(p, st):
    U = VAR['U']
    k2_ids(p)
    p(f"""
    s_mul_i32 s30, s27, {KVH}
    s_add_u32 s30, s30, {KV}
    s_lshl_b32 s31, s27, 16
    s_lshl_b32 s32, s28, 3
    s_lshl_b32 s33, s24, 1
    s_add_u32 s32, s32, s33
    s_lshl_b32 s33, s32, 10
    s_add_u32 s31, s31, s33
    v_lshlrev_b32 v{GK}, 4, v1
    v_mov_b32 v{FL}, {LDS_FLAG}
    s_lshl_b32 s37, s24, 2
    v_add_u32 v{FL+1}, s37, v{FL}
    v_mov_b32 v{TM+1}, 1
    s_waitcnt vmcnt(0)
    ds_write_b32 v{FL+1}, v{TM+1} offset:112
    """)
    st(p, 8)
    p(f"""
    v_and_b32 v{TM}, 31, v1
    v_lshrrev_b32 v{TM+1}, 5, v1
    v_lshlrev_b32 v{TM+1}, 8, v{TM+1}
    v_lshl_add_u32 v{TM+1}, v{TM}, 4, v{TM+1}
    v_and_b32 v{TM+2}, 27, v{TM}
    v_cmp_eq_u32 vcc, 16, v{TM+2}
    v_mov_b32 v{TM+2}, 2064
    v_mov_b32 v{TM+3}, 2048
    v_cndmask_b32 v{TM+2}, v{TM+2}, v{TM+3}, vcc
    v_cmp_gt_u32 vcc, 16, v{TM}
    v_add_u32 v{GV0}, 1024, v{TM+1}
    v_add_u32 v{GV1}, 1536, v{TM+1}
    v_cndmask_b32 v{GV0}, v{TM+2}, v{GV0}, vcc
    v_cndmask_b32 v{GV1}, v{TM+2}, v{GV1}, vcc
    """)
    if VAR.get('sentW'):
        p(f"""
        s_mul_i32 s33, s32, {88*1024}
        s_lshl_b32 s34, s27, 10
        s_add_u32 s33, s33, s34
        s_add_u32 s33, s33, {A3}
        s_add_u32 s39, s33, {88*1024}
        s_lshl_b32 s35, s32, 6
        s_lshl_b32 s34, s27, 2
        s_add_u32 s35, s35, s34
        s_add_u32 s35, s35, {OFL}
        s_mul_i32 s42, s26, 9363
        s_lshr_b32 s42, s42, 16                ; j/7
        s_mul_i32 s43, s42, 7
        s_sub_u32 s43, s26, s43                ; fb
        s_lshl_b32 s44, s25, 2
        s_add_u32 s42, s42, s44
        s_lshl_b32 s43, s43, 2
        s_add_u32 s43, s43, s24                ; ft
        s_mul_i32 s46, s42, {2*88*1024}
        s_lshl_b32 s44, s43, 11
        s_add_u32 s46, s46, s44
        s_add_u32 s46, s46, {A3 + 32*1024}
        s_lshl_b32 s42, s42, 7
        s_lshl_b32 s43, s43, 2
        s_add_u32 s42, s42, s43
        s_add_u32 s42, s42, {UFL}
        s_add_u32 s47, s46, {88*1024}
        s_cmp_lt_u32 s26, 28
        s_cselect_b32 s46, s46, 0x7ff00000
        s_cselect_b32 s47, s47, 0x7ff00000
        s_cselect_b32 s42, s42, 0x7ff00000
        s_mov_b32 s43, s47
        """)
        for r in range(4): p(f"v_mov_b32 v{STT+r}, -1")
        def ph_stores():
            p(f"buffer_store_dwordx4 {vr(STT,4)}, v{GK}, s[12:15], s33 offen sc1\nbuffer_store_dwordx4 {vr(STT,4)}, v{GK}, s[12:15], s39 offen sc1")
            for k in range(4): p(f"buffer_store_dwordx4 {vr(STT,4)}, v{GK}, s[12:15], s{(46, 43)[k//2]} offen offset:{(k%2)*1024} sc1")
        def ph_flags():
            p(f"v_mov_b32 v{STT+4}, s11\nv_mov_b32 v{STT+5}, 1\ns_waitcnt vmcnt(0)\nbuffer_store_dword v{STT+4}, off, s[12:15], s35 sc1\nbuffer_store_dword v{STT+4}, off, s[12:15], s42 sc1\nds_write_b32 v{FL+1}, v{STT+5} offset:64")
    p("s_cmp_lg_u32 s24, 0\ns_cbranch_scc1 " + ("L_att_ph" if VAR.get('sentW') else "L_att_go"))
    flag_wait(p, "L_att_ad", FL, 112, 1, TM, sleep=0)
    p(f"""
    v_mov_b32 v{TM}, s11
    buffer_store_dword v{TM}, off, s[12:15], s83 sc1
    s_lshr_b32 s34, s27, 2
    s_lshl_b32 s34, s34, 12
    s_add_u32 s34, s34, {PFL}
    v_and_b32 v{MA}, 31, v1
    v_lshlrev_b32 v{MA}, 7, v{MA}
    """)
    if VAR.get('pp', 0):
        p("s_mov_b32 s47, 0")
        for k in range(2): p(f"buffer_load_dword v{200+k}, v{MA}, s[12:15], s34 offen sc1\ns_sleep {VAR.get('ppsleep', 3)}")
        p.label("L_att_p")
        for k in range(3):
            p(f"buffer_load_dword v{200+(k+2)%3}, v{MA}, s[12:15], s34 offen sc1\ns_waitcnt vmcnt(2)\nv_cmp_ne_u32 vcc, s11, v{200+k}\ns_cbranch_vccz L_att_p_ok\ns_sleep {VAR.get('ppsleep', 3)}")
        p("s_add_u32 s47, s47, 1\ns_cmp_lt_u32 s47, 0x8000\ns_cbranch_scc1 L_att_p")
        p.label("L_att_p_ok")
    else:
        if VAR.get('sentW'): ph_stores(); ph_flags()
        if VAR.get('q0'): p(f"s_sleep {VAR['q0']}")
        poll(p, "L_att_p", 34, MA, None, TM, sleep=VAR.get('qsleep', 4))
    p(f"v_mov_b32 v{TM}, 1\nds_write_b32 v{FL}, v{TM} offset:96")
    if VAR.get('sentW'):
        p("s_branch L_att_go")
        p.label("L_att_ph")
        ph_stores(); ph_flags()
    p.label("L_att_go")
    spin1(p, "L_att_gw", FL, 96, 1, TM)
    st(p, 9)
    p(f"buffer_load_dwordx4 {vr(QA,4)}, v{GK}, s[12:15], s31 offen sc1")
    p(f"buffer_load_dwordx4 {vr(QB,4)}, v{GK}, s[12:15], s31 offen offset:1024 sc1")
    p(f"buffer_load_dwordx4 {vr(KR[0],4)}, v{GK}, s[12:15], s30 offen sc1")
    p(f"buffer_load_dwordx4 {vr(KR[1],4)}, v{GK}, s[12:15], s30 offen offset:{KVT} sc1")
    for t in range(2):
        p(f"buffer_load_dwordx4 {vr(V0R[t],4)}, v{GV0}, s[12:15], s30 offen offset:{t*KVT} sc1")
        p(f"buffer_load_dwordx4 {vr(V1R[t],4)}, v{GV1}, s[12:15], s30 offen offset:{t*KVT} sc1")
    p(f"""
    s_lshl_b32 s37, s24, 12
    s_add_u32 s38, s30, {KVT+1024}
    s_add_u32 s38, s38, s37
    s_add_u32 s37, s37, {IMG}
    """)
    for i in range(2):
        p("s_mov_b32 m0, s37")
        p("s_add_u32 s37, s37, 16384")
        for k in range(4 if i == 0 else 3):
            p(f"buffer_load_dwordx4 v{GK}, s[12:15], s38 offen offset:{k*1024} sc1 lds")
        p("s_add_u32 s38, s38, 16384")
    p(f"s_setprio {VAR['prio_att']}")
    if VAR['sentA']:
        p(f"""
        s_mul_i32 s33, s32, {88*1024}
        s_lshl_b32 s34, s27, 10
        s_add_u32 s33, s33, s34
        s_add_u32 s33, s33, {A3}
        s_add_u32 s39, s33, {88*1024}
        s_lshl_b32 s35, s32, 6
        s_lshl_b32 s34, s27, 2
        s_add_u32 s35, s35, s34
        s_add_u32 s35, s35, {OFL}
        s_mul_i32 s42, s26, 9363
        s_lshr_b32 s42, s42, 16                ; j/7
        s_mul_i32 s43, s42, 7
        s_sub_u32 s43, s26, s43                ; fb
        s_lshl_b32 s44, s25, 2
        s_add_u32 s42, s42, s44
        s_lshl_b32 s43, s43, 2
        s_add_u32 s43, s43, s24                ; ft
        s_mul_i32 s46, s42, {2*88*1024}
        s_lshl_b32 s44, s43, 11
        s_add_u32 s46, s46, s44
        s_add_u32 s46, s46, {A3 + 32*1024}
        s_lshl_b32 s42, s42, 7
        s_lshl_b32 s43, s43, 2
        s_add_u32 s42, s42, s43
        s_add_u32 s42, s42, {UFL}
        s_add_u32 s47, s46, {88*1024}
        s_mov_b32 s45, {2 + (1 << VAR.get('s3it', 2))}
        s_mov_b32 s44, 0
        s_cmp_lt_u32 s26, 28
        s_cbranch_scc1 L_att_nopre
        """)
        for r in range(4): p(f"v_mov_b32 v{STT+r}, -1")
        p(f"buffer_store_dwordx4 {vr(STT,4)}, v{GK}, s[12:15], s33 offen sc1\nbuffer_store_dwordx4 {vr(STT,4)}, v{GK}, s[12:15], s39 offen sc1")
        p(f"v_mov_b32 v{STT}, s11\ns_waitcnt vmcnt(0)\nbuffer_store_dword v{STT}, off, s[12:15], s35 sc1\ns_mov_b32 s45, 2\ns_mov_b32 s44, 1")
        p.label("L_att_nopre")
    p(f"v_mov_b32 v{TM}, 1\nds_write_b32 v{FL+1}, v{TM} offset:176")
    p(f"""
    v_mov_b32 v{AK}, v{GK}
    v_mov_b32 v{AV0}, v{GV0}
    v_mov_b32 v{AV1}, v{GV1}
    """)
    for r in list(range(OA, OA+32)) + list(range(PB+4, PB+6)) + list(range(V1R[3], V1R[3]+4)):
        p(f"v_mov_b32 v{r}, 0")
    p(f"s_waitcnt vmcnt(11)")
    p.add([mfma32(vr(SA,16), vr(KR[0],4), vr(QA,4), "0"), mfma32(vr(SB,16), vr(KR[0],4), vr(QB,4), "0"),
           mfma32(vr(CA,16), vr(KR[1],4), vr(QA,4), "0"), mfma32(vr(CB,16), vr(KR[1],4), vr(QB,4), "0")])
    max16(p, SA, MA, True); max16(p, SB, MB, True); max16(p, CA, MA, False); max16(p, CB, MB, False)
    p(f"""
    s_mov_b32 s40, {float_hex(VAR['margin'])}
    v_mov_b32 v{TM}, v{MA}
    v_mov_b32 v{TM+1}, v{MB}
    v_permlane32_swap_b32 v{TM}, v{MA}
    v_permlane32_swap_b32 v{TM+1}, v{MB}
    v_max_f32 v{MA}, v{MA}, v{TM}
    v_max_f32 v{MB}, v{MB}, v{TM+1}
    v_add_f32 v{MA}, s40, v{MA}
    v_add_f32 v{MB}, s40, v{MB}
    """)
    for r in range(16): p(f"v_sub_f32 v{CA+r}, 0, v{MA}")
    for r in range(12, 16): p(f"v_mov_b32 v{SB+r}, 0")
    p.add([mfma32(vr(SA,16), vr(KR[0],4), vr(QA,4), vr(CA,16))])
    for r in range(16): p(f"v_sub_f32 v{CB+r}, 0, v{MB}")
    p(f"s_waitcnt vmcnt(0)")
    p(f"v_mov_b32 v{TM}, 1\nds_write_b32 v{FL+1}, v{TM}")
    flag_wait(p, "L_att_f1", FL, 0, 1, TM)
    st(p, 1)
    p("s_mov_b32 s41, 0")
    p(".p2align 6")
    p.label("L_att_loop")
    p.add(att_loop_body(U))
    p("s_cbranch_scc1 L_att_loop")
    st(p, 2)
    if VAR.get('endprio'): p("s_setprio 3")
    p(f"v_cvt_pk_bf16_f32 v{PB+6}, v{SB+12}, v{SB+13}\nv_cvt_pk_bf16_f32 v{PB+7}, v{SB+14}, v{SB+15}")
    p(f"""
    s_mul_i32 s33, s32, {88*1024}
    s_lshl_b32 s34, s27, 10
    s_add_u32 s33, s33, s34
    s_add_u32 s33, s33, {A3}
    """)
    p.add([mfma32(vr(OB,16), vr(V1R[3],4), vr(PB+4,4), vr(OB,16))])
    p("s_waitcnt lgkmcnt(0)")
    p(f"s_mov_b32 s36, 0\ns_mov_b32 s40, {float_hex(2.0**-112)}")
    p.label("L_att_chk")
    p(f"v_mul_f32 v{TM}, 0, v{OA+8}")
    for r in range(8): p(f"v_fmac_f32 v{TM}, 0, v{OA+r}")
    p(f"v_max3_f32 v{TM+1}, |v{OA}|, |v{OA+1}|, |v{OA+2}|\nv_max3_f32 v{TM+1}, v{TM+1}, |v{OA+3}|, |v{OA+4}|\nv_max3_f32 v{TM+1}, v{TM+1}, |v{OA+5}|, |v{OA+6}|\nv_max_f32_e64 v{TM+1}, v{TM+1}, |v{OA+7}|")
    p(f"v_mov_b32 v{TM+2}, v{TM+1}\nv_permlane32_swap_b32 v{TM+1}, v{TM+2}\nv_max_f32 v{TM+1}, v{TM+1}, v{TM+2}")
    p(f"v_cmp_u_f32 vcc, v{TM}, v{TM}\nv_cmp_gt_f32 s[38:39], s40, v{TM+1}\ns_or_b64 vcc, vcc, s[38:39]")
    p("s_cbranch_vccnz L_att_slow")
    p.label("L_att_fin")
    p(f"v_rcp_f32 v{MA}, v{OA+8}")
    p("s_cmp_lg_u32 s36, 0")
    for r in range(8): p(f"v_mul_f32 v{OA+r}, v{OA+r}, v{MA}")
    for k in range(4): p(f"v_cvt_pk_bf16_f32 v{PA+k}, v{OA+2*k}, v{OA+2*k+1}")
    for k in range(4): p(f"v_min_u32 v{PA+k}, -2, v{PA+k}")
    p(f"buffer_store_dwordx4 {vr(PA,4)}, v{GK}, s[12:15], s33 offen")
    p("s_cbranch_scc1 L_att_done")
    p(f"s_mov_b32 s36, 1\ns_add_u32 s33, s33, {88*1024}")
    for r in range(9): p(f"v_mov_b32 v{OA+r}, v{OB+r}")
    for r in range(4): p(f"v_mov_b32 v{QA+r}, v{QB+r}")
    p("s_branch L_att_chk")
    p.label("L_att_done")
    st(p, 3)
    p("s_endpgm")
    p.label("L_att_sync2")
    if VAR['sentA']: p("s_cmp_lg_u32 s41, 1\ns_cbranch_scc1 L_att_sync3")
    if VAR['sentA']:
        p("s_cmp_lg_u32 s44, 0\ns_cbranch_scc1 L_att_f2")
        for r in range(4): p(f"v_mov_b32 v{STT+r}, -1")
        p(f"buffer_store_dwordx4 {vr(STT,4)}, v{GK}, s[12:15], s33 offen sc1\nbuffer_store_dwordx4 {vr(STT,4)}, v{GK}, s[12:15], s39 offen sc1")
        for k in range(4): p(f"buffer_store_dwordx4 {vr(STT,4)}, v{GK}, s[12:15], s{46+k//2} offen offset:{(k%2)*1024} sc1")
    flag_wait(p, "L_att_f2", FL, 48, 1, TM)
    p("s_branch L_att_sync2_ret")
    p.label("L_att_sync3")
    if VAR['sentA']:
        p(f"v_mov_b32 v{TM}, s11\nv_mov_b32 v{TM+1}, 1\ns_waitcnt vmcnt(0)\nbuffer_store_dword v{TM}, off, s[12:15], s35 sc1\nbuffer_store_dword v{TM}, off, s[12:15], s42 sc1\nds_write_b32 v{FL+1}, v{TM+1} offset:64")
    p("s_branch L_att_sync2_ret")
    p.label("L_att_slow")
    p(f"v_mov_b32 v{MA}, 0xff800000\ns_mov_b32 s41, 0\ns_mov_b32 s37, s30")
    p.label("L_att_sl1")
    p(f"buffer_load_dwordx4 {vr(KR[0],4)}, v{GK}, s[12:15], s37 offen sc1")
    p("s_waitcnt vmcnt(0)")
    p.add([mfma32(vr(SA,16), vr(KR[0],4), vr(QA,4), "0")])
    max16(p, SA, MA, False)
    p(f"s_add_u32 s37, s37, {KVT}\ns_add_u32 s41, s41, 1\ns_cmp_lt_u32 s41, 64\ns_cbranch_scc1 L_att_sl1")
    p(f"v_mov_b32 v{TM}, v{MA}\nv_permlane32_swap_b32 v{TM}, v{MA}\nv_max_f32 v{MA}, v{MA}, v{TM}")
    for r in range(16): p(f"v_sub_f32 v{CA+r}, 0, v{MA}\nv_mov_b32 v{OA+r}, 0")
    p("s_mov_b32 s41, 0\ns_mov_b32 s37, s30")
    p.label("L_att_sl2")
    p(f"buffer_load_dwordx4 {vr(KR[0],4)}, v{GK}, s[12:15], s37 offen sc1")
    p(f"buffer_load_dwordx4 {vr(V0R[0],4)}, v{GV0}, s[12:15], s37 offen sc1")
    p(f"buffer_load_dwordx4 {vr(V1R[0],4)}, v{GV1}, s[12:15], s37 offen sc1")
    p("s_waitcnt vmcnt(0)")
    p.add([mfma32(vr(SA,16), vr(KR[0],4), vr(QA,4), vr(CA,16))])
    for k in range(16): p(f"v_exp_f32 v{SA+k}, v{SA+k}")
    for k in range(8): p(f"v_cvt_pk_bf16_f32 v{PA+k}, v{SA+2*k}, v{SA+2*k+1}")
    p.add([mfma32(vr(OA,16), vr(V0R[0],4), vr(PA,4), vr(OA,16)), mfma32(vr(OA,16), vr(V1R[0],4), vr(PA+4,4), vr(OA,16))])
    p(f"s_add_u32 s37, s37, {KVT}\ns_add_u32 s41, s41, 1\ns_cmp_lt_u32 s41, 64\ns_cbranch_scc1 L_att_sl2")
    p("s_nop 15\ns_branch L_att_fin")

ACC = 4
NZF = 16
ZR = 132
WR = 196
VL = 244; VD = 245; VW = 247
GF = 251
G = 232
def acc(i, tt): return ACC + (i*2+tt)*16

def kv_rest(p, uniq):
    p(f"s_sub_u32 m0, s62, {16384-3072}\ns_sub_u32 s61, s63, {16384-3072}")
    p(f"buffer_load_dwordx4 v{VL}, s[12:15], s61 offen sc1 lds", tag="kv")
    for i in range(6):
        p("s_mov_b32 m0, s62")
        if i < 5: p("s_add_u32 s62, s62, 16384")
        else: p("s_cmp_eq_u32 s24, 3")
        for k in range(4):
            if i == 5 and k == 3: p(f"s_cbranch_scc1 L_g_kvdone{uniq}")
            p(f"buffer_load_dwordx4 v{VL}, s[12:15], s63 offen offset:{k*1024} sc1 lds", tag="kv")
        if i < 5: p("s_add_u32 s63, s63, 16384")
    p.label(f"L_g_kvdone{uniq}")

def flag_addr(p):
    p(f"""
    s_lshr_b32 s48, s26, 3
    s_lshl_b32 s47, s25, 2
    s_add_u32 s48, s48, s47
    s_lshl_b32 s48, s48, 7                 ; tb'*128
    s_lshl_b32 s47, s24, 5
    s_add_u32 s46, s48, s47
    s_mul_i32 s47, s24, 28
    s_add_u32 s48, s48, s47
    s_add_u32 s48, s48, {UFL-OFL}          ; u flags
    s_and_b32 s47, s26, 7
    s_lshl_b32 s47, s47, 7
    s_add_u32 s47, s47, {WFL-OFL}          ; W flags
    v_lshlrev_b32 v{G+5}, 2, v1
    v_mov_b32 v{G+6}, s48
    v_add_u32 v{G+7}, s48, v{G+5}
    v_cmp_gt_u32 vcc, 7, v1
    v_cndmask_b32 v{G+6}, v{G+6}, v{G+7}, vcc
    v_subrev_u32 v{G+5}, 128, v{G+5}
    v_add_u32 v{G+7}, s47, v{G+5}
    v_cmp_gt_u32 vcc, 64, v{G+5}
    v_cndmask_b32 v{G+6}, v{G+6}, v{G+7}, vcc
    v_subrev_u32 v{G+5}, 64, v{G+5}
    v_add_u32 v{G+7}, s46, v{G+5}
    v_cmp_gt_u32 vcc, 32, v{G+5}
    v_cndmask_b32 v{G+6}, v{G+6}, v{G+7}, vcc
    v_subrev_u32 v{G+5}, 32, v{G+5}
    v_add_u32 v{G+7}, s49, v{G+5}
    v_cmp_gt_u32 vcc, 8, v{G+5}
    v_cndmask_b32 v{G+6}, v{G+6}, v{G+7}, vcc
    s_mov_b32 s48, {OFL}
    """)
def gen_gemm(p, st, mid=None):
    k2_ids(p)
    p(f"""
    s_load_dwordx4 s[4:7], s[0:1], {KA_WSP}
    s_sub_u32 s24, s24, 4                  ; q = K quarter
    v_lshlrev_b32 v{VL}, 4, v1
    s_mul_i32 s63, s27, {KVH}
    s_lshl_b32 s62, s24, 12
    s_add_u32 s62, s62, 32768
    s_add_u32 s63, s63, s62
    s_add_u32 s63, s63, {KV + KVT + 1024}
    s_add_u32 s62, s62, {IMG}
    s_lshl_b32 s46, s24, 2
    s_add_u32 s46, s46, {LDS_FLAG}
    v_mov_b32 v{GF}, s46
    v_mov_b32 v0, 1
    v_mov_b32 v2, {LDS_FLAG}
    s_waitcnt lgkmcnt(0)
    ds_write_b32 v{GF}, v0 offset:160
    """)
    srd(p, 16, 4, 2048*2048*2); srd(p, 20, 6, 4096)
    flag_wait(p, "L_g_bd", 2, 160, 1, 4)
    flag_wait(p, "L_g_go", 2, 176, 1, 4, sleep=2)
    kv_rest(p, "a")
    p(f"""
    s_cmp_ge_u32 s26, 28
    s_cbranch_scc1 L_idle
    s_setprio 3
    s_mul_i32 s30, s26, 9363
    s_lshr_b32 s30, s30, 16                ; j/7
    s_mul_i32 s31, s30, 7
    s_sub_u32 s31, s26, s31                ; fb = j%7
    s_lshl_b32 s32, s25, 2
    s_add_u32 s30, s30, s32                ; tb
    s_lshl_b32 s33, s31, 19
    s_add_u32 s33, s33, {Z2F}
    s_lshl_b32 s34, s24, 17
    s_add_u32 s33, s33, s34
    s_lshl_b32 s56, s30, 18
    s_lshl_b32 s34, s24, 10
    s_add_u32 s56, s56, s34
    s_lshl_b32 s36, s24, 13
    s_add_u32 s36, s36, {LDS_STG}
    s_add_u32 s37, s36, 4096
    v_lshrrev_b32 v2, 3, v1
    v_lshrrev_b32 v3, 4, v1
    v_xor_b32 v3, v3, v1
    v_and_b32 v3, 7, v3
    v_lshlrev_b32 v3, 4, v3
    v_lshl_add_u32 v{VD}, v2, 12, v3
    v_xor_b32 v{VD+1}, 64, v{VD}
    v_add_u32 v{VD+1}, {8*4096-1024}, v{VD+1}
    """)
    for i in range(4):
        p(f"s_add_u32 s38, s24, {i}\ns_and_b32 s38, s38, 3\ns_lshl_b32 s38, s38, 10\ns_add_u32 s{52+i}, s33, s38")
    p(f"""
    s_lshl_b32 s38, s31, 12                ; (2fb)*16*128
    s_lshl_b32 s39, s24, 9
    s_add_u32 s39, s39, s38
    s_add_u32 s39, s39, {PFL+16}
    s_lshr_b32 s49, s24, 1
    s_lshl_b32 s49, s49, 11
    s_add_u32 s49, s49, s38
    s_lshr_b32 s38, s30, 1
    s_lshl_b32 s38, s38, 7
    s_add_u32 s49, s49, s38
    s_and_b32 s38, s30, 1
    s_lshl_b32 s38, s38, 3
    s_add_u32 s49, s49, s38
    s_add_u32 s49, s49, {PFL+32-OFL}
    v_and_b32 v4, 3, v1
    v_bfe_u32 v5, v1, 2, 1
    v_lshlrev_b32 v5, 11, v5
    v_lshl_add_u32 v4, v4, 7, v5
    v_bfe_u32 v5, v1, 3, 2
    v_lshl_add_u32 v4, v5, 2, v4
    """)
    def dma(b):
        out = []
        for i in range(8):
            if i % 4 == 0: out.append(I(f"s_mov_b32 m0, s{(66 if (b % 3 == 2 and b > 2) else 36) + i//4}"))
            if i % 2 == 0: out.append(I(f"s_add_u32 s57, s56, {(i//2)*16*4096 - (i%4)*1024}"))
            out.append(I(f"buffer_load_dwordx4 v{VD + i%2}, s[16:19], s57 offen offset:{(i%4)*1024} sc1 lds", tag=f"d{b}"))
        out.append(I("s_add_u32 s56, s56, 128"))
        return out
    def zload(n):
        i = n % 4
        return [I(f"buffer_load_dwordx4 {vr(ZR + (n%NZF)*4, 4)}, v{VL}, s[12:15], s{52+i} offen sc1", tag=f"z{n}"),
                I(f"s_add_u32 s{52+i}, s{52+i}, 4096")]
    p.add(dma(0))
    if VAR.get('ordb'):
        p.wait(vm="kv"); p(f"ds_write_b32 v{GF}, v0 offset:48")
        poll(p, "L_pz", 39, 4, None, 5, sleep=VAR.get('zsleep', 4))
        st(p, 9)
        if VAR.get('stop') == 1: p("s_endpgm")
        for n in range(16): p.add(zload(n))
        mid(p, "a")
    else:
        mid(p, "a", [W(vm="kv"), I(f"ds_write_b32 v{GF}, v0 offset:48")])
        p.wait(vm="kv"); p(f"ds_write_b32 v{GF}, v0 offset:48")
        poll(p, "L_pz", 39, 4, None, 5, sleep=VAR.get('zsleep', 4))
        p(f"v_mov_b32 v0, s11\nbuffer_store_dword v0, off, s[12:15], s89 sc1")
        st(p, 9)
        if VAR.get('stop') == 1: p("s_endpgm")
        for n in range(16): p.add(zload(n))
    p(f"v_and_b32 v2, 31, v1")
    bitswap23(p, 2, 2, 3)
    p(f"""
    v_lshrrev_b32 v3, 1, v2
    v_lshrrev_b32 v{VW}, 5, v1
    v_xor_b32 v3, v3, v{VW}
    v_and_b32 v3, 7, v3
    v_lshlrev_b32 v3, 4, v3
    v_lshl_add_u32 v{VW}, v2, 7, v3
    v_add_u32 v{VW}, s36, v{VW}
    v_xor_b32 v{VW+1}, 32, v{VW}
    v_xor_b32 v{VW+2}, 64, v{VW}
    v_xor_b32 v{VW+3}, 96, v{VW}
    """)
    if VAR['fuse3']:
        flag_addr(p); p(f"v_mov_b32 v3, v{G+6}")
    p(f"s_setprio {VAR['prio_g']}")
    st(p, 1)
    wr = lambda g, tt: WR + ((g % 6)*2 + tt)*4
    def wread(b):
        return [I(f"ds_read_b128 {vr(wr(4*b+u, tt), 4)}, v{VW+u} offset:{tt*4096}", tag=f"w{b}", needs=[f"d{b}"]) for u in range(4) for tt in range(2)]
    def block_burst(b, first=False, dma_on=True, z_on=True, w_on=True):
        o = []
        for u in range(4):
            g = 4*b+u
            o.append(W(vm=[f"z{4*g+3}"]))
            for i in range(4):
                n = 4*g+i
                for tt in ((1, 0) if (VAR.get('snake') == 1 and i % 2) else (0, 1)):
                    c = "0" if (first and u == 0) else vr(acc(i,tt),16)
                    o.append(mfma32(vr(acc(i,tt),16), vr(ZR+(n%NZF)*4,4), vr(wr(g,tt),4), c))
                if VAR.get('snake') == 2 and i == 3:
                    ms = o[-8:] if not any(x.kind != "mfma" for x in o[-8:]) else None
                    if ms: o[-8:] = ms[0::2] + ms[7::-2]
                if u == 2 and i == 1 and w_on:
                    o.append(W(lg=f"w{b+1}"))
                    if dma_on: o += dma(b+2)
            if u == 1 and w_on: o += [W(vm=f"d{b+1}")] + wread(b+1)
            if z_on:
                for i in range(4): o += zload(4*g+i+NZF)
        return o
    def block(b, first=False, dma_on=True, z_on=True, w_on=True):
        if VAR.get('burst', 1): return block_burst(b, first, dma_on, z_on, w_on)
        o = []
        dm = []
        if w_on and dma_on:
            cur = []
            for x in dma(b+2):
                cur.append(x)
                if x.kind == "vmem": dm.append(cur); cur = []
            dm[-1] += cur
        wrd = wread(b+1) if w_on else []
        for u in range(4):
            g = 4*b+u
            for i in range(4):
                n = 4*g+i
                for tt in range(2):
                    if tt == 0: o.append(W(vm=[f"z{n}"]))
                    c = "0" if (first and u == 0) else vr(acc(i,tt),16)
                    o.append(mfma32(vr(acc(i,tt),16), vr(ZR+(n%NZF)*4,4), vr(wr(g,tt),4), c))
                    if VAR.get('pace'): o.append(I(f"s_nop {VAR['pace']}"))
                    if tt == 1 and z_on: o += zload(n+NZF)
                    if tt == 0:
                        if u == 2 and w_on:
                            if i == 0: o.append(W(vm=f"d{b+1}"))
                            o += wrd[2*i:2*i+2]
                        if u == 3 and dm:
                            if i == 0: o.append(W(lg=f"w{b+1}"))
                            o += dm.pop(0) + dm.pop(0)
                        elif u == 3 and i == 0 and w_on: o.append(W(lg=f"w{b+1}"))
        return o
    p.add(wread(0)); p.wait(lg="w0"); p.add(dma(1))
    p.add(block(0, first=True))
    p("s_mov_b32 s60, 0")
    hist = dma(0) + sum([zload(n) for n in range(16)], []) + dma(1) + block(0) + block(1) + block(2) + block(3) + [I("L_mark:")] + block(4) + block(5) + block(6)
    full = resolve_waits(hist)
    lb = full[next(i for i, x in enumerate(full) if x.kind == "label" and x.op == "L_mark")+1:]
    first_pass = resolve_waits(dma(0) + sum([zload(n) for n in range(16)], []) + dma(1) + block(0) + [I("L_mark:")] + block(1) + block(2) + block(3))
    fp = first_pass[next(i for i, x in enumerate(first_pass) if x.kind == "label" and x.op == "L_mark")+1:]
    assert len(fp) == len(lb)
    merged = []
    for x, y in zip(fp, lb):
        if x.kind == "wait":
            vm = min(v for v in (x.vm, y.vm) if v is not None) if (x.vm is not None or y.vm is not None) else None
            lg = min(v for v in (x.lg, y.lg) if v is not None) if (x.lg is not None or y.lg is not None) else None
            merged.append(I("s_waitcnt " + " ".join(([f"vmcnt({vm})"] if vm is not None else []) + ([f"lgkmcnt({lg})"] if lg is not None else []))))
        else:
            assert x.text == y.text, (x.text, y.text)
            merged.append(y)
    p.label("L_g_loop")
    p("s_cmp_eq_u32 s60, 1\ns_cselect_b32 s66, 0x30000, s36\ns_cselect_b32 s67, 0x30000, s37")
    p.add(merged)
    p("s_add_u32 s60, s60, 1\ns_cmp_lt_u32 s60, 2\ns_cbranch_scc1 L_g_loop")
    if VAR['fuse3']: p(f"s_mov_b32 s48, {OFL}"); p(f"buffer_load_dword v0, v3, s[12:15], s48 offen sc1", tag="fl")
    p.add(block(7, dma_on=False, z_on=False, w_on=False))
    st(p, 2)
    if VAR.get('stop') == 2: p("s_endpgm")
    p(f"s_setprio {VAR.get('prio_e', 3)}")
    p(f"""
    s_lshl_b32 s38, s30, 1
    s_mul_i32 s39, s38, {56*1024}
    s_lshl_b32 s40, s31, 2
    s_add_u32 s40, s40, s24
    s_lshl_b32 s41, s40, 11
    s_add_u32 s39, s39, s41
    s_add_u32 s39, s39, {Z1F}
    s_add_u32 s42, s39, {56*1024}
    s_mul_i32 s64, s38, {88*1024}
    s_add_u32 s64, s64, s41
    s_add_u32 s64, s64, {A3 + 32*1024}
    s_add_u32 s65, s64, {88*1024}
    s_lshl_b32 s45, s30, 7
    v_lshlrev_b32 v2, 1, v2
    """)
    Z = ZR
    p(f"v_mov_b32 v{G+1}, v{GF}")
    if VAR['fuse3']:
        p.wait(vm="fl")
        p("v_cmp_ne_u32 vcc, s11, v0\ns_cbranch_vccz L_g_fl")
        poll(p, "L_p00", 48, 3, None, 0, sleep=8)
        p.label("L_g_fl")
    p(f"buffer_load_dwordx4 {vr(Z,4)}, v{VL}, s[12:15], s39 offen sc1", tag="z1")
    p(f"buffer_load_dwordx4 {vr(Z+4,4)}, v{VL}, s[12:15], s39 offen offset:1024 sc1", tag="z1")
    p(f"buffer_load_dwordx4 {vr(Z+8,4)}, v{VL}, s[12:15], s42 offen sc1", tag="z1")
    p(f"buffer_load_dwordx4 {vr(Z+12,4)}, v{VL}, s[12:15], s42 offen offset:1024 sc1", tag="z1")
    p(f"buffer_load_ushort v{Z+16}, v2, s[20:23], s45 offen sc1", tag="z1")
    p(f"buffer_load_ushort v{Z+17}, v2, s[20:23], s45 offen offset:64 sc1", tag="z1")
    if VAR['fuse3']:
        g2_scalars(p)
        w_loads(p, 0, 10)
    p(f"v_add_u32 v{G}, s36, v{VL}\nv_mov_b32 v{G+2}, {LDS_FLAG}\ns_lshl_b32 s47, s24, 14\ns_add_u32 s47, s47, {IMG}\nv_add_u32 v{G+3}, s47, v{VL}")
    for k in range(8): p(f"ds_write_b128 v{G}, {vr(acc(1,0)+4*k, 4)} offset:{k*1024}")
    flag_wait(p, "L_g_prog", G+2, 80, 4, G+4)
    for r in (2, 3):
        for k in range(8): p(f"ds_write_b128 v{G+3}, {vr(acc(r,0)+4*k, 4)} offset:{(r-2)*8192 + k*1024}")
    for r in range(1, 4):
        p(f"s_add_u32 s47, s24, {4-r}\ns_and_b32 s47, s47, 3")
        if r == 1: p(f"s_lshl_b32 s47, s47, 13\ns_add_u32 s47, s47, {LDS_STG}\nv_add_u32 v{G}, s47, v{VL}")
        else: p(f"s_lshl_b32 s47, s47, 14\ns_add_u32 s47, s47, {(r-2)*8192 + IMG}\nv_add_u32 v{2 if r == 2 else 3}, s47, v{VL}")
    p(f"v_mov_b32 v{G+3}, 1\ns_waitcnt lgkmcnt(0)\nds_write_b32 v{G+1}, v{G+3} offset:16")
    flag_wait(p, "L_g_dat", G+2, 16, 1, G+4, sleep=0)
    for r in range(1, 4):
        for k in range(8):
            p(f"ds_read_b128 {vr(acc(r,0)+4*k,4)}, v{(G, 2, 3)[r-1]} offset:{k*1024}", tag=f"r{r}_{k}")
        if r > 1:
            for k in range(8):
                p.wait(lg=f"r{r-1}_{k}")
                for e in range(4): p(f"v_add_f32 v{acc(0,0)+4*k+e}, v{acc(0,0)+4*k+e}, v{acc(r-1,0)+4*k+e}")
    for k in range(8):
        p.wait(lg=f"r3_{k}")
        for e in range(4): p(f"v_add_f32 v{acc(0,0)+4*k+e}, v{acc(0,0)+4*k+e}, v{acc(3,0)+4*k+e}")
    if VAR['sentA'] or VAR.get('sentW'): spin1(p, "L_g_pf", G+1, 64, 1, G+3)
    p.wait(vm="z1")
    T = acc(1, 0)
    p(f"v_lshlrev_b32 v{Z+16}, 16, v{Z+16}\nv_lshlrev_b32 v{Z+17}, 16, v{Z+17}")
    for tt in range(2):
        a = acc(0, tt)
        for r in range(16): p(f"v_add_f32 v{a+r}, v{a+r}, v{Z+16+tt}")
        for d in range(8):
            z = Z + tt*8 + d
            p(f"v_lshlrev_b32 v{T}, 16, v{z}\nv_and_b32 v{T+1}, 0xffff0000, v{z}")
            p(f"v_mul_f32 v{a+2*d}, v{a+2*d}, v{T}\nv_mul_f32 v{a+2*d+1}, v{a+2*d+1}, v{T+1}")
            p(f"v_cvt_pk_bf16_f32 v{T+8+tt*8+d}, v{a+2*d}, v{a+2*d+1}")
        for d in (range(8) if VAR.get('fullver', 1) else (0, 4)): p(f"v_min_u32 v{T+8+tt*8+d}, -2, v{T+8+tt*8+d}")
        so = 64 + tt
        p(f"buffer_store_dwordx4 {vr(T+8+tt*8,4)}, v{VL}, s[12:15], s{so} offen")
        p(f"buffer_store_dwordx4 {vr(T+12+tt*8,4)}, v{VL}, s[12:15], s{so} offen offset:1024")
    if VAR.get('pf3'):
        p(f"s_lshl_b32 s38, s26, 2\ns_add_u32 s38, s38, s24\ns_mul_i32 s38, s38, 16384\ns_add_u32 s38, s38, {W3F}\nv_lshlrev_b32 v2, 7, v1")
        p(f"buffer_load_dword v3, v2, s[12:15], s38 offen\ns_add_u32 s38, s38, 8192\nbuffer_load_dword v3, v2, s[12:15], s38 offen")
    st(p, 3)
    if VAR['fuse3']:
        if VAR.get('stop') == 3: p("s_endpgm")
        p("s_branch L_g2")
    else: p("s_endpgm")
    p.label("L_idle")
    p.wait(vm="kv"); p(f"s_waitcnt vmcnt(0)\nds_write_b32 v{GF}, v0 offset:48")
    mid(p, "b")
    p(f"""
    s_load_dwordx2 s[36:37], s[0:1], {KA_WO}
    s_load_dwordx2 s[38:39], s[0:1], {KA_WOUT}
    s_lshl_b32 s34, s25, 2
    s_add_u32 s34, s34, s26
    s_sub_u32 s34, s34, 28                      ; L
    s_mov_b32 s54, {896*1024}
    v_lshrrev_b32 v2, 2, v1
    v_and_b32 v3, 3, v1
    v_lshlrev_b32 v3, 4, v3
    v_lshl_add_u32 v2, v2, 10, v3
    s_waitcnt lgkmcnt(0)
    s_cmp_lt_u32 s34, 16
    s_cselect_b32 s52, s36, s38
    s_cselect_b32 s53, s37, s39
    s_cselect_b32 s54, {512*1024}, s54
    s_cselect_b32 s35, 8, 14
    s_cselect_b32 s67, 0, {32*1024}
    s_mov_b32 s55, 0x20000
    s_and_b32 s34, s34, 15
    s_mul_i32 s68, s24, s35
    s_lshl_b32 s69, s68, 14
    s_lshl_b32 s60, s34, 6
    s_add_u32 s69, s69, s60
    s_mul_i32 s60, s34, {88*1024}
    s_lshl_b32 s68, s68, 10
    s_add_u32 s60, s60, s68
    s_add_u32 s60, s60, s67
    s_add_u32 s60, s60, {W3F}
    s_lshl_b32 s61, s24, 13
    s_add_u32 s61, s61, {LDS_STG}
    """)
    def w3_dma(n):
        for k in range(n):
            p(f"s_add_u32 m0, s61, {k*1024}\ns_nop 0\nbuffer_load_dwordx4 v2, s[52:55], s69 offen lds\ns_add_u32 s69, s69, 16384")
    def w3_out(n):
        for k in range(n):
            p(f"ds_read_b64_tr_b16 v[{8+4*k}:{9+4*k}], v3 offset:{k*1024}\nds_read_b64_tr_b16 v[{10+4*k}:{11+4*k}], v3 offset:{k*1024+256}")
            if k % 4 == 3: p("s_waitcnt lgkmcnt(0)")
        p("s_waitcnt lgkmcnt(0)")
        for k in range(n):
            p(f"buffer_store_dwordx4 v[{8+4*k}:{11+4*k}], v{VL}, s[12:15], s60 offen\ns_add_u32 s60, s60, 1024")
    p(f"v_mov_b32 v5, s11\ns_waitcnt vmcnt(0)\nbuffer_store_dword v5, off, s[12:15], s89 sc1")
    G0 = VAR.get('ipf0', 0); GB = VAR.get('ipfb', 0)
    NP = (8 - G0 - GB) if VAR.get('ipf', 1) else 0
    if VAR.get('ipf', 1):
        p(f"""
        s_sub_u32 s36, s26, 28
        s_lshl_b32 s36, s36, 2
        s_add_u32 s36, s36, s24                 ; wave16
        v_lshlrev_b32 v5, 12, v1
        s_lshl_b32 s56, s25, 20
        s_and_b32 s37, s36, 3
        s_lshl_b32 s37, s37, 18
        s_add_u32 s56, s56, s37
        s_lshr_b32 s37, s36, 2
        s_lshl_b32 s37, s37, 10
        s_add_u32 s56, s56, s37
        """)
        for g in range(G0, G0+GB): p(f"buffer_load_dword v6, v5, s[16:19], s56 offen offset:{g*128}")
    w3_dma(8)
    if VAR.get('ipf', 1):
        for g in range(G0+GB, 8): p(f"buffer_load_dword v6, v5, s[16:19], s56 offen offset:{g*128}")
    p(f"""
    v_lshrrev_b32 v4, 5, v1
    v_lshlrev_b32 v3, 9, v4
    v_bfe_u32 v4, v1, 2, 2
    v_lshl_add_u32 v3, v4, 6, v3
    v_bfe_u32 v4, v1, 4, 1
    v_lshl_add_u32 v3, v4, 5, v3
    v_and_b32 v4, 1, v1
    v_lshl_add_u32 v3, v4, 4, v3
    v_bfe_u32 v4, v1, 1, 1
    v_lshl_add_u32 v3, v4, 3, v3
    v_add_u32 v3, s61, v3
    s_waitcnt vmcnt({NP if GB == 0 else 0})
    """)
    w3_out(8)
    p("s_cmp_eq_u32 s35, 8\ns_cbranch_scc1 L_w3done")
    w3_dma(6)
    p("s_waitcnt vmcnt(0)")
    w3_out(6)
    p.label("L_w3done")
    if not VAR['fuse3']:
        p("s_endpgm"); return
    p(f"""
    s_lshr_b32 s33, s34, 1
    s_lshl_b32 s33, s33, 7                      ; (nt>>1)*128
    s_and_b32 s34, s34, 1
    s_lshl_b32 s34, s34, 4
    s_add_u32 s33, s33, s34
    s_lshr_b32 s34, s67, 10                     ; 0 or 32
    s_add_u32 s33, s33, s34
    s_lshl_b32 s34, s24, 2
    s_add_u32 s33, s33, s34
    s_add_u32 s33, s33, {WFL}
    v_mov_b32 v0, s11
    s_waitcnt vmcnt(0)
    buffer_store_dword v0, off, s[12:15], s33 sc1
    s_add_u32 s49, s33, {-OFL & 0xffffffff:#x}
    s_and_b32 s49, s49, -64
    """)
    flag_addr(p)
    if VAR.get('stop'): p("s_endpgm")
    p.label("L_g2w")
    p(f"s_mov_b32 s48, {OFL}")
    poll(p, "L_p0", 48, G+6, None, G+5, sleep=32)
    gen_g2(p, st)


FA = 4
def FWr(k): return 152 + 4*k if k < 20 else 68 + 4*(k-20)
def FRr(k): return 100 + 4*k if k < 13 else 232 + 4*(k-13)
FX = 84
FXU = 152
FL_ = 244; FO = 245; FT = 246
def poll(p, name, soff, voff, mask_hi_lo, tmp, bad=0, sleep=None):
    p(f"s_mov_b32 s47, 0")
    p.label(name)
    p(f"buffer_load_dword v{tmp}, v{voff}, s[12:15], s{soff} offen sc1\ns_add_u32 s47, s47, 1\ns_waitcnt vmcnt(0)")
    p(f"{'v_cmp_eq_u32 vcc, -1' if bad == -1 else 'v_cmp_ne_u32 vcc, s11'}, v{tmp}\ns_cbranch_vccz {name}_ok\ns_cmp_gt_u32 s47, 0x10000\ns_cbranch_scc1 {name}_ok\ns_sleep {sleep or VAR.get('psleep', 16)}\ns_branch {name}")
    p.label(name + "_ok")
def g2_scalars(p):
    p(f"""
    s_load_dwordx2 s[6:7], s[0:1], {KA_X}
    s_load_dwordx2 s[8:9], s[0:1], {KA_OUT}
    s_lshr_b32 s27, s26, 3
    s_lshl_b32 s28, s25, 2
    s_add_u32 s27, s27, s28                ; tb
    s_and_b32 s28, s26, 7                  ; nb
    s_and_b32 s29, s24, 1
    s_lshr_b32 s30, s24, 1
    s_lshl_b32 s32, s27, 1
    s_add_u32 s33, s32, s29
    s_xor_b32 s34, s33, 1
    s_lshl_b32 s32, s28, 1
    s_add_u32 s35, s32, s30
    s_xor_b32 s37, s35, 1
    s_mul_i32 s40, s33, {88*1024}
    s_mul_i32 s41, s34, {88*1024}
    s_mul_i32 s42, s35, {88*1024}
    s_mul_i32 s43, s37, {88*1024}
    s_add_u32 s40, s40, {A3}
    s_add_u32 s41, s41, {A3}
    s_add_u32 s42, s42, {W3F}
    s_add_u32 s43, s43, {W3F}
    s_mul_i32 s31, s24, {14*1024}
    s_add_u32 s31, s31, {32*1024}
    s_lshl_b32 s32, s24, 13
    s_lshl_b32 s44, s33, 15
    s_lshl_b32 s45, s35, 6
    s_add_u32 s44, s44, s45
    s_mov_b32 s49, 0
    s_waitcnt lgkmcnt(0)
    """)
def Wu(s_, i): return 152 + 4*(((s_ if s_ < 10 else s_-10))*2 + i)
def Wo(k, i): return (152 + 4*((k+4)*2 + i)) if k < 6 else (68 + 4*((k-6)*2 + i))
def Ur(s_, i):
    n = (s_ % 12)*2 + i
    return FRr(n) if n < 16 else 68 + 4*(n-16)
def w_loads(p, s0, s1, tag=None):
    for s_ in range(s0, s1):
        for i in range(2):
            if s_ == s0 or s_ % 4 == 0: p(f"s_add_u32 s{54+i}, s{42+i}, s31\ns_add_u32 s{54+i}, s{54+i}, {(s_//4)*4096}")
            p(f"buffer_load_dwordx4 {vr(Wu(s_, i),4)}, v{FL_}, s[12:15], s{54+i} offen offset:{(s_%4)*1024} sc1", tag=tag)
def gen_g2(p, st):
    p("s_setprio 3")
    g2_scalars(p)
    p.label("L_g2_redo")
    w_loads(p, 0, 10)
    p.label("L_g2")
    for i in range(2): p(f"s_add_u32 s{52+i}, s{40+i}, s31")
    for i in range(4): p(f"s_add_u32 s{56+i}, s{40+i}, s32")
    p(f"""
    s_min_u32 s46, s52, s53
    s_min_u32 s45, s56, s57
    v_lshrrev_b32 v2, 1, v1
    v_min_u32 v{FT+2}, 13, v2
    v_min_u32 v{FT+1}, 7, v2
    v_and_b32 v3, 1, v1
    v_mul_u32_u24 v3, {88*1024}, v3
    v_add_u32 v3, 1008, v3
    v_lshl_add_u32 v{FT+2}, v{FT+2}, 10, v3
    v_lshl_add_u32 v{FT+1}, v{FT+1}, 10, v3
    v_and_b32 v2, 31, v1
    """)
    bitswap23(p, 2, 2, 3)
    p(f"v_lshrrev_b32 v3, 5, v1\nv_lshlrev_b32 v3, 4, v3\nv_lshl_add_u32 v{FO}, v2, 10, v3\nv_mov_b32 v{FT+5}, 0")
    srd(p, 16, 6, 2048*1024); srd(p, 20, 8, 2048*1024)
    poll(p, "L_p1", 46, FT+2, None, FT+4, bad=-1)
    st(p, 4)
    p(f"s_setprio {VAR.get('prio_u', 3)}")
    NR = VAR.get('nr', 8)
    def ld(s):
        o = []
        if s and s % 4 == 0: o += [I(f"s_add_u32 s{52+i}, s{52+i}, 4096") for i in range(2)]
        for i in range(2):
            o.append(I(f"buffer_load_dwordx4 {vr(Ur(s, i),4)}, v{FL_}, s[12:15], s{52+i} offen offset:{(s%4)*1024} sc1", tag=f"g{s}"))
        return o
    def wo_ld(k):
        for i in range(2):
            p(f"s_add_u32 s47, s{58+i}, {(k//4)*4096}")
            p(f"buffer_load_dwordx4 {vr(Wo(k, i),4)}, v{FL_}, s[12:15], s47 offen offset:{(k%4)*1024} sc1", tag="wo")
    for s_ in range(NR): p.add(ld(s_))
    for s_ in range(14):
        p.wait(vm=[f"g{s_}", f"wu{s_}"])
        for n_, (a, b) in enumerate(((0,0), (0,1), (1,0), (1,1))):
            d = vr(FA + (a*2+b)*16, 16)
            p.add([mfma32(d, vr(Wu(s_, a),4), vr(Ur(s_, b),4), "0" if s_ == 0 else d)])
            r0 = Ur(s_, n_//2) + 2*(n_%2)
            if VAR.get('fullver', 1): p(f"v_max3_u32 v{FT+5}, v{FT+5}, v{r0}, v{r0+1}")
            elif n_ == 0: p(f"v_max3_u32 v{FT+5}, v{FT+5}, v{Ur(s_,0)}, v{Ur(s_,1)}")
        if s_+NR < 14: p.add(ld(s_+NR))
        if s_ < 4: w_loads(p, 10+s_, 11+s_, tag=f"wu{10+s_}")
        elif s_ < 12: wo_ld(s_-4)
    p(f"buffer_load_dwordx4 {vr(FX,4)}, v{FO}, s[16:19], s44 offen", tag="x")
    p(f"buffer_load_dwordx4 {vr(FX+4,4)}, v{FO}, s[16:19], s44 offen offset:32", tag="x")
    p(f"s_setprio 3\nv_cmp_eq_u32 vcc, -1, v{FT+5}\ns_cbranch_vccnz L_g2_again")
    p.label("L_g2_go")
    p.wait(vm="x")
    for d_ in range(7, -1, -1):
        p(f"v_and_b32 v{FXU+2*d_+1}, 0xffff0000, v{FX+d_}\nv_lshlrev_b32 v{FXU+2*d_}, 16, v{FX+d_}")
    st(p, 5)
    p("s_barrier")
    p("s_add_u32 s58, s56, 4096\ns_add_u32 s59, s57, 4096\ns_mov_b32 s49, 0")
    if VAR.get('direct', 0): p("s_branch L_p3b")
    p.label("L_p3")
    poll(p, "L_p2", 45, FT+1, None, FT+4, bad=-1, sleep=VAR.get('p3sleep', 4))
    p.label("L_p3b")
    for s_ in range(8):
        for i in range(2):
            p(f"buffer_load_dwordx4 {vr(FRr(s_*2+i),4)}, v{FL_}, s[12:15], s{56+i+2*(s_//4)} offen offset:{(s_%4)*1024} sc1", tag=f"o{s_}")
    p(f"v_mov_b32 v{FT+4}, 0\ns_add_u32 s49, s49, 1")
    for s_ in range(8):
        p.wait(vm=f"o{s_}")
        for k in range(0, 8, 2): p(f"v_max3_u32 v{FT+4}, v{FT+4}, v{FRr(2*s_+k//4)+k%4}, v{FRr(2*s_+k//4)+k%4+1}")
    p(f"v_cmp_eq_u32 vcc, -1, v{FT+4}\ns_cbranch_vccz L_p3_ok\ns_cmp_lt_u32 s49, 8\ns_cbranch_scc1 L_p3")
    p.label("L_p3_ok")
    st(p, 6)
    for i in range(1, 4):
        p(f"s_xor_b32 s46, s24, {i}\ns_mul_i32 s46, s46, 12288\ns_add_u32 s46, s46, {(i-1)*4096 + IMG}\nv_add_u32 v{FT+i}, s46, v{FL_}")
    p(f"s_mul_i32 s46, s24, 12288\ns_add_u32 s46, s46, {IMG}\nv_add_u32 v{FT}, s46, v{FL_}")
    for s_ in range(8):
        order = ((0,0), (0,1), (1,0), (1,1)) if s_ < 7 else ((0,1), (1,0), (1,1), (0,0))
        for (a, b) in order:
            d = vr(FA + (a*2+b)*16, 16)
            p.add([mfma32(d, vr(Wo(s_, a),4), vr(FRr(s_*2+b),4), d)])
    for i in range(1, 4):
        for k in range(4): p(f"ds_write_b128 v{FT+i}, {vr(FA+i*16+4*k,4)} offset:{k*1024}")
    for r in range(16): p(f"v_add_f32 v{FA+r}, v{FA+r}, v{FXU+r}")
    p("s_waitcnt lgkmcnt(0)\ns_barrier")
    for k in range(12): p(f"ds_read_b128 {vr(FA+16+4*k,4)}, v{FT} offset:{k*1024}", tag=f"r{k}")
    for k in range(12):
        p.wait(lg=f"r{k}")
        for e in range(4): p(f"v_add_f32 v{FA+(4*k+e)%16}, v{FA+(4*k+e)%16}, v{FA+16+4*k+e}")
    for d in range(8): p(f"v_cvt_pk_bf16_f32 v{FX+d}, v{FA+2*d}, v{FA+2*d+1}")
    p(f"buffer_store_dwordx4 {vr(FX,4)}, v{FO}, s[20:23], s44 offen")
    p(f"buffer_store_dwordx4 {vr(FX+4,4)}, v{FO}, s[20:23], s44 offen offset:32")
    st(p, 7)
    if st.on and VAR.get('dbg') is not None:
        D = VAR['dbg']
        p(f"s_cmp_lg_u32 s2, {D}\ns_cbranch_scc1 L_end\ns_cmp_lg_u32 s24, 0\ns_cbranch_scc1 L_end")
        p(f"s_load_dwordx2 s[6:7], s[0:1], {KA_DBG}\ns_waitcnt vmcnt(0)")
        sel = [(0,0,15),(0,0,1),(0,0,5),(0,0,7),(0,0,9),(1,0,15),(1,0,1),(1,0,2),(1,0,3),(1,4,1),(1,4,2),(1,4,3),(1,4,4),(1,4,5),(1,4,6),(1,4,7)]
        for i, (k, w, sl) in enumerate(sel):
            off = STAMP + k*0x80000 + (D*16 + w)*128 + sl*8 + 4
            p(f"v_mov_b32 v3, {off:#x}\nbuffer_load_dword v{100+i}, v3, s[12:15], 0 offen sc1")
        p("s_waitcnt vmcnt(0) lgkmcnt(0)")
        srd(p, 16, 6, 256)
        for i in range(16):
            p(f"v_sub_u32 v2, v{100+i}, v100\nbuffer_store_dword v2, off, s[16:19], 0 offset:{4*i}")
    p("s_endpgm")
    p.label("L_g2_again")
    p("s_add_u32 s49, s49, 1\ns_cmp_gt_u32 s49, 8\ns_cbranch_scc1 L_g2_go\ns_waitcnt vmcnt(0)\ns_branch L_g2_redo")


def placeholder_addrs(p, m):
    p(f"""
    s_and_b32 s34, s2, 7                   ; xcd
    s_lshr_b32 s35, s2, 3                  ; j
    s_lshr_b32 s53, s35, 3
    s_lshl_b32 s54, s34, 2
    s_add_u32 s53, s53, s54                ; head
    s_and_b32 s36, s35, 7
    s_lshl_b32 s36, s36, 2
    s_add_u32 s36, s36, s{m}
    s_lshl_b32 s37, s36, 7
    s_mul_i32 s36, s36, {2*88*1024}
    s_lshl_b32 s38, s53, 10
    s_add_u32 s36, s36, s38
    s_add_u32 s36, s36, {A3}
    s_lshl_b32 s53, s53, 2
    s_add_u32 s53, s53, s37
    s_add_u32 s53, s53, {OFL}
    s_add_u32 s37, s36, {88*1024}
    s_mul_i32 s38, s35, 9363
    s_lshr_b32 s38, s38, 16                ; j/7
    s_mul_i32 s39, s38, 7
    s_sub_u32 s39, s35, s39                ; fb
    s_add_u32 s38, s38, s54
    s_lshl_b32 s39, s39, 2
    s_add_u32 s39, s39, s{m}               ; ft
    s_lshl_b32 s54, s38, 7
    s_lshl_b32 s34, s39, 2
    s_add_u32 s54, s54, s34
    s_add_u32 s54, s54, {UFL}
    s_mul_i32 s38, s38, {2*88*1024}
    s_lshl_b32 s39, s39, 11
    s_add_u32 s38, s38, s39
    s_add_u32 s38, s38, {A3 + 32*1024}
    s_cmp_lt_u32 s35, 28
    s_cselect_b32 s38, s38, 0x7ff00000
    s_cselect_b32 s54, s54, 0x7ff00000
    s_add_u32 s39, s38, {88*1024}
    """)
```

```python
from common import *
import f2
def ar(b, n): return vr(128+b, n)
import struct, math
def fh(f): return hex(struct.unpack("<I", struct.pack("<f", f))[0])
K1_LDS = 163840
RING = 65536
BIAS = 3072
CNT = 3072
C0 = -2.0*math.sqrt(2.0/math.pi)*1.4426950408889634
A0, A1, A2, A3_ = 4, 20, 36, 52
LA = 2
WB = 68
CSF = 92
CSA = 100
T = 68
WC = 92; STQ = 96
SEL = 108; XC = 112
R1, RI, C0R, C1R = 116, 117, 118, 119
VXD = 116
VXR = 112
VL, VPI, VQ, VB = 120, 121, 122, 123
VA = 124
RR = 52
SX, Q0, Q1 = 52, 56, 60
VAR = dict(prio=True, per=1, rot=6, cpf=40960)
WI, WQ, XS = "s[16:19]", "s[20:23]", "s[24:27]"
SXE, SIE, SQE = 60, 64, 96

def dma1(lds_s, lds_c, sr, vo, sb, se, c, tag):
    return [I(f"s_add_u32 m0, s{lds_s}, {lds_c}"), I(f"s_add_u32 s69, s{sb}, s{se}"),
            I(f"buffer_load_dwordx4 v{vo}, {sr}, s69 offen offset:{c} lds" if False else f"s_add_u32 s69, s69, {c}"),
            I(f"buffer_load_dwordx4 v{vo}, {sr}, s69 offen lds", tag=tag)]
def E_addr(ks): return RING + ((ks//8)*24 + (ks%8)*3)*1024
def Q_addr(ks): return RING + ks*2048
def Z_addr(ks): return (131072 + ks*2048) if ks < 16 else (32768 + (ks-16)*2048)
CSO = 256; RAW = 2048; TBL = 2560
SCR2 = 65536
VQP = 0
def dma_E(e):
    b = RING + e*24*1024
    return [dma1(58, b, WI, VPI, 80, SIE+e, 1792, f"E{e}"), dma1(58, b+1024, WI, VPI, 80, SIE+e, 1792+8*3584, f"E{e}"),
            dma1(58, b+2048, WQ, VQ, 81, SQE+e, 2048, f"E{e}")]
def dma_Q(e):
    b = RING + e*16384
    return [dma1(55, b, WQ, VQP, 82, SQE+e, 0, f"Q{e}"), dma1(55, b+1024, WQ, VQP, 82, SQE+e, 8*3072, f"Q{e}")]
def dma_Z(e):
    b = (131072 + e*16384) if e < 2 else (32768 + (e-2)*16384)
    return [dma1(55, b, WI, VPI, 80, SIE+e, 0, "Za"), dma1(55, b+1024, WI, VPI, 80, SIE+e, 8*3584, "Za")]
def x_dma(e):
    return [[I(f"s_add_u32 m0, s59, {(2*e % 4)*4096 + i*1024}"), I(f"s_add_u32 s69, s56, s{SXE+e}"),
             I(f"buffer_load_dwordx4 v{VXD+i}, {XS}, s69 offen lds", tag=f"X{e}")] for i in range(4)]
def flat(x): return sum(x, [])
def x_read(ks):
    return [I(f"ds_read_b128 {ar(4*ks,4)}, v{VXR+ks%4} offset:{((ks//4)%4)*4096}", tag=f"xr{ks}")]
class Addr:
    def __init__(self, base): self.base = base
    def off(self, addr, out, span=2048+1024+6*1024*2):
        if not (0 <= addr - self.base and addr - self.base + 1024 <= 65535):
            nb = addr if addr < self.base else addr
            d = (nb - self.base) & 0xffffffff
            out += [I(f"v_add_u32 v{VA+k}, {d:#x}, v{VA+k}") for k in range(4)]
            self.base = nb
        return addr - self.base
def tr_read(dst, areg, off, e2, tag):
    return [I(f"ds_read_b64_tr_b16 {vr(dst+2*e,2)}, v{areg} offset:{off+e2*e}", tag=tag) for e in range(2)]
def m16(d, b, first): return I(f"v_mfma_f32_16x16x32_bf16 {vr(d,4)}, {vr(SEL,4)}, {b}, {'0' if first else vr(d,4)}")
def stats_mfma(ks):
    x = 4*ks; z = ks == 0
    return [m16(SX, ar(x,4), z),
            I(f"v_mfma_f32_4x4x4_16b_bf16 {vr(Q0,4)}, {ar(x,2)}, {ar(x,2)}, {'0' if z else vr(Q0,4)}"),
            I(f"v_mfma_f32_4x4x4_16b_bf16 {vr(Q1,4)}, {ar(x+2,2)}, {ar(x+2,2)}, {'0' if z else vr(Q1,4)}")]
def wb(ks, ti): return WB + ((ks % (LA+1))*2 + ti)*4
def stl(st, k):
    q = Prog(); st(q, k); return q.l

def gemm_pass(accs, addr_of, base0, nori, tagp, e2, hooks=None, cs_tiles=None, stats=False, cs_s=9, cs_o=CSO):
    nt = len(accs)
    am = Addr(base0)
    def rd(ks, dst, regs, tag):
        o = []
        off = am.off(addr_of(ks), o)
        for ti in range(nt): o += tr_read(dst(ti), regs+ti, off, e2, tag)
        return o
    o = []
    for ks in range(LA): o += rd(ks, lambda ti: wb(ks,ti), VA, f"{tagp}{ks}")
    for ks in range(32):
        pre = W(lg=[f"{tagp}{ks}", f"xr{ks}"])
        mf = []
        for ti in range(nt):
            w = vr(wb(ks,ti),4); x = ar(4*ks,4); d = vr(accs[ti],16)
            mf.append(mfma32(d, x, w, "0" if ks == 0 else d) if nori else mfma32(d, w, x, "0" if ks == 0 else d))
        h0, h1, h2 = hooks(ks) if hooks else ([], [], [])
        post = list(h0)
        tail = []
        if ks % 4 == 0 and cs_tiles:
            post += rd(ks, lambda ti: CSF+4*ti, VA+2, f"c{tagp}{ks}")
        if ks+LA < 32: post += rd(ks+LA, lambda ti: wb(ks+LA,ti), VA, f"{tagp}{ks+LA}")
        post += h1
        if ks % 4 == 1 and cs_tiles:
            pre.lg.append(f"c{tagp}{ks-1}")
            for ti in range(nt): tail.append(m16(CSA+4*ti, vr(CSF+4*ti,4), ks == 1))
        if ks == 30 and cs_tiles:
            tail.append(I(f"v_lshl_add_u32 v3, v1, 2, s{cs_s}"))
            for ti in range(nt): tail.append(I(f"ds_write_b32 v3, v{CSA+4*ti} offset:{cs_o + cs_tiles[ti]*256}"))
        if stats:
            if VAR.get('stfirst'): mf += stats_mfma(ks); mf_all = True
            else: tail += stats_mfma(ks)
        tail += h2
        if stats and VAR.get('stfirst'): o += [pre] + mf + post + tail
        else: o += [pre] + mf[:1] + post + mf[1:] + tail
    return o

def phase1_hooks(st, early=False):
    sched = {}
    def spread(pcs, first, per):
        pcs = list(pcs); k = first
        while pcs:
            for _ in range(per):
                if pcs: sched.setdefault(k, []).append(pcs.pop(0))
            k += 1
    if not early: spread(dma_E(2) + dma_E(3), 0, 1)
    spread(x_dma(2) + dma_Q(0), 8-LA, VAR['per'])
    spread(x_dma(3) + dma_Q(1) + dma_Q(2), 16-LA, VAR['per'])
    spread(dma_Q(3), 24-LA, VAR['per'])
    def hooks(ks):
        e, r8 = divmod(ks, 8)
        h0 = []; h1 = []
        if r8 == 8-LA and e < 3:
            h0 = [W(vm=[f"X{e+1}", f"E{e+1}"], lg0=True), I("s_barrier")] + stl(st, 2+e)
        if r8 >= 8-LA and e < 3:
            k0 = 8*(e+1) + 2*(r8-(8-LA)); h1 += x_read(k0) + x_read(k0+1)
        if r8 < 4: h1 += x_read(8*e+4+r8)
        h2 = flat(sched.get(ks, []))
        if ks == 26: h2 = h2 + [I(f"buffer_load_dword v{A2+1}, off, s[44:47], 0 sc1", tag="tag")]
        return h0, h1, h2
    return hooks

def set_va(p, pair, base, mstride):
    sh = 7 if pair else 6
    p(f"""
    v_lshrrev_b32 v2, 5, v1
    v_lshlrev_b32 v{VA}, {sh+3}, v2
    v_bfe_u32 v3, v1, 2, 2
    v_lshl_add_u32 v{VA}, v3, {sh}, v{VA}
    v_bfe_u32 v3, v1, 4, 1
    v_lshl_add_u32 v{VA}, v3, 5, v{VA}
    v_and_b32 v3, 1, v1
    v_lshl_add_u32 v{VA}, v3, 4, v{VA}
    v_bfe_u32 v3, v1, 1, 1
    v_lshl_add_u32 v{VA}, v3, 3, v{VA}
    """)
    if pair: p(f"v_bfe_u32 v3, v1, 3, 1\nv_lshl_add_u32 v{VA}, v3, 6, v{VA}")
    p(f"""
    v_add_u32 v{VA}, {base}, v{VA}
    s_mul_i32 s34, s29, {mstride}
    v_xor_b32 v{VA+1}, 64, v{VA}
    v_add_u32 v{VA+2}, s34, v{VA}
    v_add_u32 v{VA+3}, s34, v{VA+1}
    """)

def corr_from(b, d, nori):
    o = [I(f"v_sub_f32 v{b}, 0, v{b}"),
         I(f"v_cvt_pk_bf16_f32 v{WC+1}, v{b}, 0"),
         I(f"v_lshlrev_b32 v{b+1}, 16, v{WC+1}"),
         I(f"v_sub_f32 v{b+1}, v{b}, v{b+1}"),
         I(f"v_cvt_pk_bf16_f32 v{WC}, v{b}, v{b+1}")]
    a_, b_ = (vr(XC,4), vr(WC,4)) if nori else (vr(WC,4), vr(XC,4))
    o.append(mfma32(vr(d,16), a_, b_, vr(d,16)))
    return o
def cs_reads(tiles, tag, base=0, stride=None, off=CSO):
    o = [I(f"v_lshlrev_b32 v2, 2, v1")]
    if base: o.append(I(f"v_add_u32 v2, {base}, v2"))
    for k, tl in enumerate(tiles):
        for w in range(4): o.append(I(f"ds_read_b32 v{T+4*k+w}, v2 offset:{(w*stride if stride else (w>>1)*16384 + (w&1)*4096) + off + tl*256}", tag=tag))
    return o
def cs_corr(accs, nori, tag):
    o = [I(f"v_mov_b32 v{WC+2}, 0"), I(f"v_mov_b32 v{WC+3}, 0"), W(lg=tag)]
    for k, d in enumerate(accs):
        b = T+4*k
        o += [I(f"v_add_f32 v{b}, v{b}, v{b+1}"), I(f"v_add_f32 v{b+2}, v{b+2}, v{b+3}"), I(f"v_add_f32 v{b}, v{b}, v{b+2}")]
        o += corr_from(b, d, nori)
    return o

def ln1_final(g, S, Q):
    o = Prog()
    o(f"""
    v_mul_f32 v{S}, {fh(1/512)}, v{S}
    v_cndmask_b32 v{S+1}, v{S}, 0, s[74:75]
    v_mul_f32 v{S+2}, v{S}, v{S}
    v_cvt_pk_bf16_f32 v{XC}, v{S+1}, v{S+1}
    v_fma_f32 v{Q}, v{Q}, s76, -v{S+2}
    v_and_b32 v{S+3}, 0xffff0000, v{XC}
    v_max_f32 v{Q}, 0, v{Q}
    v_sub_f32 v{S+3}, v{S+1}, v{S+3}
    v_add_f32 v{Q}, {fh(1e-5)}, v{Q}
    v_cvt_pk_bf16_f32 v{XC+1}, v{S+3}, 0
    v_rsq_f32 v{R1}, v{Q}
    v_mov_b32 v{XC+2}, 0
    v_mov_b32 v{XC+3}, 0
    """)
    rr = RR if g == 0 else A1
    tb = TBL + 256*g
    o(f"""
    v_lshl_add_u32 v3, v{VB}, 2, s9
    ds_write_b32 v3, v{R1} offset:{tb}
    v_lshrrev_b32 v3, 5, v1
    v_lshl_add_u32 v3, v3, 5, s9
    s_waitcnt lgkmcnt(0)
    """)
    for k in range(4): o(f"ds_read_b128 {vr(rr+4*k,4)}, v3 offset:{tb + (k//2)*64 + (k%2)*16}", tag="rr")
    if g == 0:
        o(f"v_mov_b32 v{C0R}, {fh(C0)}")
    else:
        o(f"""
        v_sqrt_f32 v{RI}, v{Q}
        v_mul_f32 v{C0R}, {fh(C0)}, v{R1}
        v_mul_f32 v{C1R}, v{R1}, v{R1}
        v_mul_f32 v{C1R}, v{C1R}, v{C0R}
        v_mul_f32 v{C1R}, {fh(0.044715)}, v{C1R}
        """)
    return o.l

def gelu_T(a, P0):
    o = []
    for g in range(0, 16, 4):
        rs = range(g, g+4); tt = lambda r: T + (r % 4)
        o += [I(f"v_mul_f32 v{tt(r)}, v{a+r}, v{a+r}") for r in rs]
        o += [I(f"v_fma_f32 v{tt(r)}, v{tt(r)}, v{C1R}, v{C0R}") for r in rs]
        o += [I(f"v_mul_f32 v{tt(r)}, v{tt(r)}, v{a+r}") for r in rs]
        o += [I(f"v_exp_f32 v{tt(r)}, v{tt(r)}") for r in rs]
        o += [I(f"v_fma_f32 v{tt(r)}, v{tt(r)}, v{RI}, v{RI}") for r in rs]
        o += [I(f"v_rcp_f32 v{tt(r)}, v{tt(r)}") for r in rs]
        o += [I(f"v_mul_f32 v{a+r}, v{a+r}, v{tt(r)}") for r in rs]
        o += [I(f"v_cvt_pk_bf16_f32 v{P0+r//2}, v{a+r}, v{a+r+1}") for r in (g, g+2)]
    return o
def gelu_N(a):
    o = []
    for g in range(0, 16, 4):
        rs = range(g, g+4); tt = lambda r: T + (r % 4)
        o += [I(f"v_mul_f32 v{a+r}, v{a+r}, v{RR+r}") for r in rs]
        o += [I(f"v_mul_f32 v{tt(r)}, v{a+r}, v{a+r}") for r in rs]
        o += [I(f"v_fma_f32 v{tt(r)}, v{tt(r)}, s77, v{C0R}") for r in rs]
        o += [I(f"v_mul_f32 v{tt(r)}, v{tt(r)}, v{a+r}") for r in rs]
        o += [I(f"v_exp_f32 v{tt(r)}, v{tt(r)}") for r in rs]
        o += [I(f"v_add_f32 v{tt(r)}, 1.0, v{tt(r)}") for r in rs]
        o += [I(f"v_rcp_f32 v{tt(r)}, v{tt(r)}") for r in rs]
        o += [I(f"v_mul_f32 v{a+r}, v{a+r}, v{tt(r)}") for r in rs]
    return o

def z2_stats():
    o = []
    a0, a1 = A0, A1
    for hf in range(2):
        S1 = lambda r: T + 4 + r
        S2 = lambda r: T + 12 + r
        for r in range(8):
            R = hf*8 + r
            o.append(I(f"v_mul_f32 v{S2(r)}, v{a0+R}, v{a0+R}"))
            o.append(I(f"v_add_f32 v{S1(r)}, v{a0+R}, v{a1+R}"))
        for r in range(8): o.append(I(f"v_fmac_f32 v{S2(r)}, v{a1+hf*8+r}, v{a1+hf*8+r}"))
        for S in (S1, S2):
            for r in range(4): o.append(I(f"v_permlane16_swap_b32 v{S(r)}, v{S(r+4)}"))
        for S in (S1, S2):
            for r in range(4): o.append(I(f"v_add_f32 v{S(r)}, v{S(r)}, v{S(r+4)}"))
        for S in (S1, S2):
            for r in range(2): o.append(I(f"v_add_f32_dpp v{S(r+4)}, v{S(r)}, v{S(r)} row_ror:8 row_mask:0xf bank_mask:0x3"))
        for S in (S1, S2):
            for r in range(2): o.append(I(f"v_add_f32_dpp v{S(r+4)}, v{S(r+2)}, v{S(r+2)} row_ror:8 row_mask:0xf bank_mask:0xc"))
        for S in (S1, S2): o.append(I(f"v_add_f32_dpp v{S(0)}, v{S(4)}, v{S(4)} row_half_mirror row_mask:0xf bank_mask:0x5"))
        for S in (S1, S2): o.append(I(f"v_add_f32_dpp v{S(0)}, v{S(5)}, v{S(5)} row_half_mirror row_mask:0xf bank_mask:0xa"))
        for S in (S1, S2): o.append(I(f"v_add_f32_dpp v{S(0)}, v{S(0)}, v{S(0)} quad_perm:[1,0,3,2] row_mask:0xf bank_mask:0xf"))
        for k, S in enumerate((S1, S2)): o.append(I(f"v_add_f32_dpp v{STQ+2*hf+k}, v{S(0)}, v{S(0)} quad_perm:[2,3,0,1] row_mask:0xf bank_mask:0xf"))
    return o

def prio(p, n):
    if VAR['prio']: p(f"s_setprio {n}")

def gen_kf(stamp=False):
    p = Prog()
    st = Stamper(stamp, 10, 0)
    st2 = Stamper(stamp, 10, 252, kid=1)
    entry_stamp(p, stamp)
    p(f"""
    s_cmp_ge_u32 s2, 256
    s_cbranch_scc1 L_end
    s_load_dwordx4 s[4:7], s[0:1], {KA_X}
    s_load_dwordx2 s[8:9], s[0:1], {KA_WIN}
    s_load_dwordx4 s[48:51], s[0:1], {KA_DBG}
    v_and_b32 v1, 63, v0
    v_lshrrev_b32 v2, 6, v0
    v_readfirstlane_b32 s28, v2                 ; wave 0..7
    s_mov_b32 s10, s28
    s_and_b32 s29, s2, 7
    s_lshr_b32 s30, s2, 3
    s_and_b32 s31, s29, 1
    s_lshl_b32 s31, s31, 3
    s_and_b32 s32, s30, 7
    s_add_u32 s31, s31, s32                     ; rb
    s_lshr_b32 s32, s29, 1
    s_lshl_b32 s32, s32, 2
    s_lshr_b32 s33, s30, 3
    s_add_u32 s32, s32, s33                     ; cg
    v_lshrrev_b32 v2, 3, v1
    v_lshrrev_b32 v3, 4, v1
    v_xor_b32 v{VXD}, v3, v1
    v_and_b32 v{VXD}, 7, v{VXD}
    v_lshlrev_b32 v{VXD}, 4, v{VXD}
    v_lshl_add_u32 v{VXD}, v2, 10, v{VXD}
    v_and_b32 v3, 1, v3
    v_lshlrev_b32 v3, 2, v3
    v_xor_b32 v3, v3, v1
    v_and_b32 v3, 7, v3
    v_lshlrev_b32 v{VB}, 4, v3
    v_mul_u32_u24 v{VPI}, 3584, v2
    v_add_u32 v{VPI}, v{VPI}, v{VB}
    v_mul_u32_u24 v{VQP}, 3072, v2
    v_add_u32 v{VQP}, v{VQP}, v{VB}
    v_lshrrev_b32 v2, 2, v1
    v_and_b32 v3, 3, v1
    v_lshlrev_b32 v3, 4, v3
    v_mul_u32_u24 v{VQ}, 3072, v2
    v_add_u32 v{VQ}, v{VQ}, v3
    s_and_b32 s29, s28, 3                       ; m tile
    s_lshr_b32 s30, s28, 2                      ; group
    s_lshl_b32 s33, s31, 2
    s_add_u32 s33, s33, s29                     ; tt
    s_lshl_b32 s56, s33, 15
    s_lshl_b32 s34, s30, 7
    s_add_u32 s56, s56, s34
    s_lshl_b32 s57, s29, 14
    s_lshl_b32 s34, s30, 12
    s_add_u32 s59, s57, s34
    s_mul_i32 s58, s28, 3072
    s_lshl_b32 s55, s28, 11
    v_xor_b32 v{VXD+1}, 64, v{VXD}
    v_add_u32 v{VXD+2}, 16384, v{VXD}
    v_add_u32 v{VXD+1}, 8192, v{VXD+1}
    v_add_u32 v{VXD+3}, 16384, v{VXD+1}
    s_mul_i32 s80, s28, {16*3584}
    s_lshl_b32 s35, s32, 7
    s_add_u32 s80, s80, s35
    s_mul_i32 s81, s28, {16*3072}
    s_lshl_b32 s35, s32, 6
    s_and_b32 s34, s32, 1
    s_mul_i32 s34, s34, {1024-64}
    s_add_u32 s82, s81, s34
    s_add_u32 s81, s81, s35
    s_add_u32 s82, s82, s35
    {["s_mov_b32 s35, 0", "s_add_u32 s35, s31, s32", "s_bfe_u32 s35, s2, 0x20001", "s_and_b32 s35, s2, 3", "s_lshl_b32 s35, s31, 1", "s_mov_b32 s35, s32", "s_mov_b32 s35, s31"][int(VAR['rot'])]}
    """)
    for e in range(4):
        p(f"s_add_u32 s34, s35, {e}\ns_and_b32 s34, s34, 3\ns_lshl_b32 s{SXE+e}, s34, 8\ns_mul_i32 s{SIE+e}, s34, {128*3584}\ns_mul_i32 s{SQE+e}, s34, {128*3072}")
    p(f"""
    s_cmp_lt_u32 s32, 14
    s_cselect_b32 s18, {512*3584}, 0
    s_cselect_b32 s42, {WS_USED}, 0
    s_mov_b32 s19, 0x20000
    s_mov_b32 s43, 0x20000
    s_waitcnt lgkmcnt(0)
    s_mov_b32 s16, s8
    s_mov_b32 s17, s9
    s_lshr_b32 s9, s29, 1
    s_lshl_b32 s9, s9, 14
    s_and_b32 s8, s29, 1
    s_lshl_b32 s8, s8, 12
    s_add_u32 s9, s9, s8
    """)
    srd(p, 24, 4, 2048*1024); srd(p, 20, 6, 512*3072)
    p.add(flat(x_dma(0))); p.add(flat(dma_E(0)))
    srd(p, 12, 50, WS_USED); srd(p, 44, 48, 256)
    p("s_mov_b32 s40, s50\ns_mov_b32 s41, s51")
    st(p, 0); entry_store(p, st)
    p(f"v_and_b32 v{VB}, 31, v1")
    bitswap23(p, VB, VB, 3)
    p(f"""
    v_lshrrev_b32 v3, 1, v{VB}
    v_lshrrev_b32 v2, 5, v1
    v_xor_b32 v3, v3, v2
    v_and_b32 v3, 7, v3
    v_lshlrev_b32 v3, 4, v3
    v_lshl_add_u32 v{VXR}, v{VB}, 7, v3
    v_add_u32 v{VXR}, s57, v{VXR}
    v_xor_b32 v{VXR+1}, 32, v{VXR}
    v_xor_b32 v{VXR+2}, 64, v{VXR}
    v_xor_b32 v{VXR+3}, 96, v{VXR}
    """)
    if VAR.get('b00', False): p("s_barrier")
    p.add(flat(x_dma(1))); p.add(flat(dma_E(1)))
    if VAR.get('cpf'): code_prefetch(p, 28, 3, f"v{A2}", 36, "L_cpf")
    p("s_or_b32 s34, s2, s28\ns_cmp_lg_u32 s34, 0\ns_cbranch_scc1 L_notag")
    p(f"s_mov_b32 s34, {EPO}\nbuffer_load_dword v2, off, s[12:15], s34 sc1\ns_waitcnt vmcnt(0)\nv_add_u32 v2, 1, v2\nv_max_u32 v2, 1, v2")
    p("buffer_store_dword v2, off, s[44:47], 0 sc1\nbuffer_store_dword v2, off, s[12:15], s34 sc1")
    p.label("L_notag")
    p(f"""
    v_lshlrev_b32 v{VL}, 4, v1
    v_and_b32 v3, 3, v1
    v_cmp_eq_u32 vcc, 0, v3
    v_lshrrev_b32 v3, 2, v1
    v_lshrrev_b32 v2, 4, v1
    v_xor_b32 v3, v3, v2
    v_and_b32 v3, 1, v3
    v_cmp_eq_u32 s[34:35], 0, v3
    s_and_b64 vcc, vcc, s[34:35]
    v_mov_b32 v3, 0x3f803f80
    v_cndmask_b32 v{SEL}, 0, v3, vcc
    v_mov_b32 v{SEL+1}, v{SEL}
    v_mov_b32 v{SEL+2}, v{SEL}
    v_mov_b32 v{SEL+3}, v{SEL}
    v_cmp_lt_u32 s[74:75], 31, v1
    s_mov_b32 s76, {fh(1/512)}
    s_cmp_eq_u32 s30, 0
    s_cbranch_scc1 L_g1
    """)
    def start(p):
        if VAR.get('fine'):
            st(p, 10); p.wait(vm="X0"); st(p, 11); p.wait(vm="E0"); st(p, 12)
        p.wait(vm=["X0", "E0"]); p("s_barrier"); st(p, 1)
        for ks in range(4): p.add(x_read(ks))
    def get_tag(p, u):
        p.wait(vm="tag")
        p(f"v_readfirstlane_b32 s11, v{A2+1}\ns_cmp_lg_u32 s11, 0\ns_cbranch_scc1 L_tag{u}\ns_mov_b32 s34, 0")
        p.label(f"L_tagp{u}")
        p(f"buffer_load_dword v2, off, s[44:47], 0 sc1\ns_add_u32 s34, s34, 1\ns_waitcnt vmcnt(0)\nv_readfirstlane_b32 s11, v2\ns_cmp_gt_u32 s34, 0x10000\ns_cbranch_scc1 L_tag{u}\ns_cmp_eq_u32 s11, 0\ns_cbranch_scc1 L_tagp{u}")
        p.label(f"L_tag{u}")
    set_va(p, True, RING, 3072)
    p(f"""
    s_mov_b32 s77, {fh(C0*0.044715)}
    s_lshr_b32 s34, s32, 1
    s_lshl_b32 s83, s34, 19
    s_lshl_b32 s35, s33, 13
    s_add_u32 s83, s83, s35
    s_and_b32 s35, s32, 1
    s_lshl_b32 s35, s35, 11
    s_add_u32 s83, s83, s35
    s_add_u32 s83, s83, {Z2F}
    s_add_u32 s84, s83, 4096
    s_lshl_b32 s87, s33, 13
    s_add_u32 s87, s87, {STAT}
    s_lshl_b32 s35, s32, 9
    s_add_u32 s88, s87, s35
    s_mul_i32 s85, s33, {56*1024}
    s_lshl_b32 s34, s32, 12
    s_add_u32 s85, s85, s34
    s_add_u32 s85, s85, {Z1F}
    s_lshl_b32 s86, s32, 11
    s_lshl_b32 s34, s31, 7
    s_add_u32 s86, s86, s34
    s_lshl_b32 s34, s29, 2
    s_add_u32 s86, s86, s34
    s_add_u32 s86, s86, {PFL+16}
    s_lshl_b32 s52, s29, 11
    s_add_u32 s52, s52, {SCR2}
    """)
    if not (f2.VAR['sentA'] or f2.VAR.get('sentW')): f2.placeholder_addrs(p, 29)
    for r in range(0 if (f2.VAR['sentA'] or f2.VAR.get('sentW')) else 4): p(f"v_mov_b32 v{A2+4+r}, -1")
    ph = [I(f"buffer_store_dwordx4 {vr(A2+4,4)}, v{VL}, s[12:15], s{so} offen offset:{o_} sc1") for so, o_ in ((36,0),(37,0),(38,0),(38,1024),(39,0),(39,1024))]
    h1_ = phase1_hooks(st); PH = 99 if (f2.VAR['sentA'] or f2.VAR.get('sentW')) else VAR.get('phstep', 24)
    def hooksB(ks):
        x0, x1, x2 = h1_(ks)
        if PH >= 0 and PH <= ks < PH+6:
            if VAR.get('phmask'): x2 = x2 + [I(f"s_mov_b32 exec_lo, {VAR['phmask']:#x}"), I(f"s_mov_b32 exec_hi, {VAR['phmask']:#x}"), ph[ks-PH], I("s_mov_b64 exec, -1")]
            else: x2 = x2 + [ph[ks-PH]]
        return x0, x1, x2
    if PH < 0: p.add(ph)
    prio(p, 1)
    start(p)
    p.add(gemm_pass([A0, A1], E_addr, RING, True, "w", 512, hooks=hooksB, cs_tiles=[0, 1]))
    p(f"v_mov_b32 v2, 0\nv_lshlrev_b32 v3, 2, v1\nds_write_b32 v3, v2")
    p.wait(vm=["Q0","Q1","Q2","Q3"], lg0=True)
    p("s_barrier")
    st(p, 5)
    prio(p, 0)
    p(f"v_lshl_add_u32 v3, v1, 2, s9")
    p(f"ds_read_b32 v{T+16}, v3 offset:{RAW}", tag="raw"); p(f"ds_read_b32 v{T+20}, v3 offset:{RAW+256}", tag="raw")
    p.add(cs_reads([0, 1], "cs0"))
    get_tag(p, "b")
    p.add(flat(dma_Z(0) + dma_Z(1) + dma_Z(2) + dma_Z(3)))
    p.wait(lg="raw")
    p(f"v_mov_b32 v{VQ}, v{T+20}")
    p.add(ln1_final(0, T+16, VQ))
    p.add(cs_corr([A0, A1], True, "cs0"))
    p.wait(lg="rr")
    p.add(gelu_N(A0)); p.add(gelu_N(A1)); p.add(z2_stats())
    p.wait(vm=["Za"])
    p(f"""
    v_and_b32 v3, 1, v1
    v_cmp_eq_u32 vcc, 1, v3
    v_bfe_u32 v2, v1, 2, 1
    v_lshl_add_u32 v2, v3, 4, v2
    v_bfe_u32 v3, v1, 3, 1
    v_lshl_add_u32 v2, v3, 1, v2
    v_bfe_u32 v3, v1, 4, 2
    v_lshl_add_u32 v2, v3, 2, v2                ; row = 16*(l&1) + 8h + 4b4 + 2b3 + b2
    v_lshlrev_b32 v2, 4, v2
    v_cndmask_b32 v{STQ}, v{STQ}, v{STQ+2}, vcc
    v_cndmask_b32 v{STQ+2}, v{STQ+1}, v{STQ+3}, vcc
    v_mov_b32 v{STQ+1}, s11
    v_mov_b32 v{STQ+3}, s11
    buffer_store_dwordx4 {vr(STQ,4)}, v2, s[40:43], s88 offen sc1
    {"" if (f2.VAR['sentA'] or f2.VAR.get('sentW')) else "buffer_store_dword v%d, off, s[12:15], s53 sc1" % (STQ+1)}
    {"" if (f2.VAR['sentA'] or f2.VAR.get('sentW')) else "buffer_store_dword v%d, off, s[12:15], s54 sc1" % (STQ+1)}
    v_sqrt_f32 v{RI}, v{VQ}
    v_mul_f32 v{C0R}, {fh(C0)}, v{R1}
    v_mul_f32 v{C1R}, v{R1}, v{R1}
    v_mul_f32 v{C1R}, v{C1R}, v{C0R}
    v_mul_f32 v{C1R}, {fh(0.044715)}, v{C1R}
    s_lshl_b32 s34, s29, 2
    v_mov_b32 v{VB}, s34
    """)
    set_va(p, True, 131072, 2048)
    st(p, 6)
    p.wait(lg0=True)
    p("s_barrier")
    prio(p, VAR.get('pz1', 2))
    st(p, 7)
    p("s_mov_b32 s88, s32\ns_mov_b32 s89, 0x7ff00000\ns_cmp_ge_u32 s32, 14\ns_cbranch_scc1 L_b_done")
    PS = VAR.get('pstep', 8); FS = VAR.get('fstep', 16)
    X = 128
    def part_loads():
        o = [I("v_and_b32 v2, 31, v1"), I("v_lshlrev_b32 v2, 4, v2"), I("v_lshrrev_b32 v3, 5, v1"), I("v_mul_u32_u24 v3, 3584, v3"), I("v_add_u32 v2, v2, v3")]
        for k in range(7):
            o.append(I(f"buffer_load_dwordx4 {ar(4*k,4)}, v2, s[12:15], s87 offen offset:{k*512} sc1", tag="part"))
        return o
    def z2_final():
        q = Prog()
        b = X+28
        q(f"s_mov_b32 s34, 0\ns_mov_b32 s35, {fh(1/896)}")
        q.wait(vm="part")
        q.label("L_chk")
        q(f"v_xor_b32 v{b+2}, s11, v{X+1}\nv_xor_b32 v{b+3}, s11, v{X+3}\nv_or_b32 v{b+2}, v{b+2}, v{b+3}\nv_mov_b32 v{b}, v{X}\nv_mov_b32 v{b+1}, v{X+2}")
        for k in range(1, 7):
            q(f"v_add_f32 v{b}, v{b}, v{X+4*k}\nv_add_f32 v{b+1}, v{b+1}, v{X+4*k+2}")
            q(f"v_xor_b32 v{X+4*k+1}, s11, v{X+4*k+1}\nv_xor_b32 v{X+4*k+3}, s11, v{X+4*k+3}\nv_or3_b32 v{b+2}, v{b+2}, v{X+4*k+1}, v{X+4*k+3}")
        q(f"v_cmp_ne_u32 vcc, 0, v{b+2}\ns_cbranch_vccnz L_retry")
        q.label("L_chk_ok")
        q(f"""
        v_mov_b32 v{b+2}, v{b}
        v_mov_b32 v{b+3}, v{b+1}
        v_and_b32 v2, 31, v1
        v_permlane32_swap_b32 v{b}, v{b+2}
        v_permlane32_swap_b32 v{b+1}, v{b+3}
        v_lshl_add_u32 v2, v2, 2, s52
        v_add_f32 v{b}, v{b}, v{b+2}
        v_add_f32 v{b+1}, v{b+1}, v{b+3}
        v_mul_f32 v{b}, s35, v{b}
        v_mul_f32 v{b+2}, v{b}, v{b}
        v_fma_f32 v{b+1}, v{b+1}, s35, -v{b+2}
        v_max_f32 v{b+1}, 0, v{b+1}
        v_add_f32 v{b+1}, {fh(1e-5)}, v{b+1}
        v_rsq_f32 v{b+1}, v{b+1}
        v_lshrrev_b32 v3, 5, v1
        v_lshl_add_u32 v3, v3, 5, s52
        v_mul_f32_e64 v{b}, -v{b}, v{b+1}
        ds_write_b32 v2, v{b+1} offset:1024
        ds_write_b32 v2, v{b} offset:1152
        s_waitcnt lgkmcnt(0)
        """)
        R2 = X; NM = X+16
        for k in range(4): q(f"ds_read_b128 {vr(R2+4*k,4)}, v3 offset:{1024 + (k//2)*64 + (k%2)*16}", tag="r2")
        for k in range(4): q(f"ds_read_b128 {vr(NM+4*k,4)}, v3 offset:{1152 + (k//2)*64 + (k%2)*16}", tag="r2")
        q2 = Prog()
        q2.wait(lg="r2")
        for t_ in range(2):
            a = A0 + 16*t_
            for r in range(16): q2(f"v_fma_f32 v{a+r}, v{a+r}, v{R2+r}, v{NM+r}")
            for d in range(8): q2(f"v_cvt_pk_bf16_f32 v{a+d}, v{a+2*d}, v{a+2*d+1}")
            q2(f"buffer_store_dwordx4 {vr(a,4)}, v{VL}, s[12:15], s83 offen offset:{t_*1024}")
            q2(f"buffer_store_dwordx4 {vr(a+4,4)}, v{VL}, s[12:15], s84 offen offset:{t_*1024}")
        return q.l, q2.l
    pl = part_loads(); zf1, zf2 = z2_final()
    n2 = (len(zf2) + 3)//4
    def zhooks(ks):
        t_ = []
        h0 = []
        if ks == PS: t_ += pl[:8]
        if ks == PS+1: t_ += pl[8:10]
        if ks == PS+2: t_ += pl[10:]
        if ks == FS: t_ += zf1
        if FS < ks <= FS+4: t_ += zf2[(ks-FS-1)*n2:(ks-FS)*n2]
        if ks == VAR.get('zfl', 28): t_ += [I("v_mov_b32 v2, s11"), I("s_waitcnt vmcnt(0)"), I("buffer_store_dword v2, off, s[12:15], s86 sc1")]
        return h0, [], t_
    p.add(gemm_pass([A2, A3_], Z_addr, 131072, False, "z", 512, hooks=zhooks, cs_tiles=[0, 1], cs_s=52, cs_o=0))
    p(f"v_mov_b32 v2, 1\ns_waitcnt lgkmcnt(0)\nds_write_b32 v{VB}, v2 offset:128")
    st(p, 8)
    prio(p, VAR.get('pz2', 2))
    p("v_mov_b32 v2, 0")
    f2.flag_wait(p, "L_csz", 2, 128, 1, STQ, sleep=0)
    p.add(cs_reads([0, 1], "cs2", base=SCR2, stride=2048, off=0))
    p.add(cs_corr([A2, A3_], False, "cs2"))
    def z1_tile(p, k, ins=None):
        a = (A2, A3_)[k]
        gl = gelu_T(a, T+4+8*k)
        if ins: c_ = VAR.get('kvcut', 60); gl = gl[:c_] + ins + gl[c_:]
        p.add(gl)
        p(f"buffer_store_dwordx4 {vr(T+4+8*k,4)}, v{VL}, s[12:15], s85 offen offset:{k*2048}")
        p(f"buffer_store_dwordx4 {vr(T+8+8*k,4)}, v{VL}, s[12:15], s85 offen offset:{k*2048+1024}")
    z1_tile(p, 0)
    def mid(p, u, ins=None):
        p("s_cmp_ge_u32 s88, 14\ns_cbranch_scc1 L_b_mid" + u)
        z1_tile(p, 1, ins)
        p.label("L_b_mid" + u)
        st(p, 9)
    p("s_add_u32 s89, s86, 16")
    p.label("L_b_done")
    st2(p, 0)
    f2.gen_gemm(p, st2, mid)
    p.label("L_retry")
    p("s_add_u32 s34, s34, 1\ns_cmp_gt_u32 s34, 0x10000\ns_cbranch_scc1 L_chk_ok")
    p.add(part_loads())
    p("s_waitcnt vmcnt(0)\ns_branch L_chk")
    p.label("L_g1")
    set_va(p, False, RING+2048, 3072)
    p(f"""
    v_and_b32 v3, 1, v1
    v_cmp_eq_u32 s[70:71], 1, v3
    v_and_b32 v3, 2, v1
    v_cmp_eq_u32 s[72:73], 2, v3
    s_mul_i32 s87, s32, {2*KVH}
    s_mul_i32 s34, s33, {KVG}
    s_add_u32 s87, s87, s34
    s_add_u32 s87, s87, {KV}
    s_lshr_b32 s34, s32, 1
    s_lshl_b32 s85, s34, 18
    s_lshl_b32 s35, s33, 10
    s_add_u32 s85, s85, s35
    s_mul_i32 s86, s34, {4*KVH}
    s_mul_i32 s35, s33, {KVG}
    s_add_u32 s86, s86, s35
    s_add_u32 s86, s86, {KV}
    s_bitcmp1_b32 s32, 0
    s_cselect_b32 s85, s86, s85
    s_mov_b32 s86, {KVH}
    s_cselect_b32 s86, s86, 0x10000
    s_mov_b32 s78, {fh(0.25*1.4426950408889634)}
    s_cselect_b32 s78, 1.0, s78                  ; scale
    s_lshl_b32 s83, s32, 11
    s_lshl_b32 s34, s31, 7
    s_add_u32 s83, s83, s34
    s_add_u32 s83, s83, {PFL}
    """)
    EA = VAR.get('ea', 0)
    if EA & 1: p.add(flat(dma_E(2) + dma_E(3)))
    if EA & 2:
        p(f"""
        s_and_b32 s34, s32, 3
        s_lshl_b32 s34, s34, 2
        s_add_u32 s34, s34, s29
        s_lshl_b32 s34, s34, 13
        s_lshl_b32 s35, s31, 17
        s_add_u32 s34, s34, s35
        v_lshrrev_b32 v2, 4, v1
        v_and_b32 v3, 15, v1
        v_lshlrev_b32 v3, 4, v3
        v_lshl_add_u32 v2, v2, 10, v3               ; 4 rows x 256B
        """)
        for e in (2, 3):
            for hf in range(2):
                p(f"s_add_u32 s35, s34, s{SXE+e}\ns_add_u32 s35, s35, {hf*4096}\nbuffer_load_dwordx4 {vr(A2+8,4)}, v2, {XS}, s35 offen")
    if EA & 4:
        p(f"""
        s_and_b32 s34, s31, 7
        s_lshl_b32 s34, s34, 2
        s_add_u32 s34, s34, s29
        s_mul_i32 s34, s34, {16*3072}
        s_mul_i32 s35, s28, {16*3072}
        s_sub_u32 s35, s82, s35
        s_add_u32 s34, s34, s35
        buffer_load_dwordx4 {vr(A2+8,4)}, v{VQP}, {WQ}, s34 offen
        s_add_u32 s34, s34, {8*3072}
        buffer_load_dwordx4 {vr(A2+8,4)}, v{VQP}, {WQ}, s34 offen
        """)
    prio(p, 1)
    start(p)
    p.add(gemm_pass([A0], lambda ks: E_addr(ks)+2048, RING+2048, True, "w", 256, hooks=phase1_hooks(st, early=bool(EA & 1)), cs_tiles=[2], stats=True))
    p(f"""
    v_add_f32 v{Q0}, v{Q0}, v{Q1}
    v_add_f32 v{Q0+1}, v{Q0+1}, v{Q1+1}
    v_add_f32 v{Q0+2}, v{Q0+2}, v{Q1+2}
    v_add_f32 v{Q0+3}, v{Q0+3}, v{Q1+3}
    v_cndmask_b32 v{Q0}, v{Q0}, v{Q0+1}, s[70:71]
    v_cndmask_b32 v{Q0+2}, v{Q0+2}, v{Q0+3}, s[70:71]
    ds_write_b32 v3, v{SX} offset:{RAW}
    v_cndmask_b32 v{Q0}, v{Q0}, v{Q0+2}, s[72:73]
    v_mov_b32 v{Q1}, v{Q0}
    v_permlane32_swap_b32 v{Q0}, v{Q1}
    v_add_f32 v{Q0}, v{Q0}, v{Q1}
    ds_write_b32 v3, v{Q0} offset:{RAW+256}
    """)
    p.wait(vm=["Q0","Q1","Q2","Q3"], lg0=True)
    p("s_barrier")
    st(p, 5)
    p.add(cs_reads([2], "cs1"))
    get_tag(p, "a")
    p.add(ln1_final(1, SX, Q0))
    p.add(cs_corr([A0], True, "cs1"))
    set_va(p, True, RING, 2048)
    zp = gemm_pass([A2, A3_], Q_addr, RING, False, "q", 512, cs_tiles=[5, 6])
    e = Prog()
    e.add(flat(dma_Z(0) + dma_Z(1) + dma_Z(2) + dma_Z(3)))
    e(f"""
    s_mov_b32 s77, {KVH}
    v_bfe_u32 v3, v1, 4, 1
    v_mul_lo_u32 v{VB}, v3, s77
    v_and_b32 v3, 15, v1
    v_lshl_add_u32 v{VB}, v3, 4, v{VB}
    v_lshrrev_b32 v3, 5, v1
    v_lshl_add_u32 v{VB}, v3, 8, v{VB}
    """)
    e.wait(lg="rr")
    for r in range(16): e(f"v_mul_f32 v{A0+r}, v{A0+r}, v{A1+r}")
    for d in range(8): e(f"v_cvt_pk_bf16_f32 v{A0+d}, v{A0+2*d}, v{A0+2*d+1}")
    e(f"v_mul_f32 v{R1}, s78, v{R1}")
    e.wait(vm=["Za"])
    e(f"buffer_store_dwordx4 {vr(A0,4)}, v{VB}, s[12:15], s87 offen offset:1024")
    e(f"buffer_store_dwordx4 {vr(A0+4,4)}, v{VB}, s[12:15], s87 offen offset:1536")
    p.add(interleave(zp, e.l, per_gap=VAR.get('egap', 2), start=1))
    st(p, 6)
    p.wait(lg0=True)
    p("s_barrier")
    prio(p, 2)
    st(p, 7)
    p.add(cs_reads([5, 6], "cs3"))
    p.add(cs_corr([A2, A3_], False, "cs3"))
    for a in (A2, A3_):
        for r in range(16): p(f"v_mul_f32 v{a+r}, v{a+r}, v{R1}")
        for d in range(8): p(f"v_cvt_pk_bf16_f32 v{a+d}, v{a+2*d}, v{a+2*d+1}")
        p(f"buffer_store_dwordx4 {vr(a,4)}, v{VL}, s[12:15], s85 offen\ns_add_u32 s85, s85, s86")
        p(f"buffer_store_dwordx4 {vr(a+4,4)}, v{VL}, s[12:15], s85 offen\ns_add_u32 s85, s85, s86")
    st(p, 8); st(p, 9)
    st2(p, 0)
    f2.gen_attention(p, st2)
    p.label("L_end")
    p("s_endpgm")
    return p

def split_groups(l):
    lab = {x.op: i for i, x in enumerate(l) if getattr(x, 'kind', '') == "label"}
    b = next(i for i, x in enumerate(l) if getattr(x, 'kind', '') == "branch" and x.target == "L_g1")
    return b, lab["L_g1"]
def kf_paths(l):
    b, g1 = split_groups(l)
    lab = {x.op: i for i, x in enumerate(l) if x.kind == "label"}
    B = l[:lab["L_idle"]] + l[lab["L_g2"]:lab["L_retry"]]
    A = l[:b] + l[g1:]
    e = next(i for i, x in enumerate(A) if x.kind == "misc" and x.base == "s_endpgm")
    return [linearize(B, {"L_g_loop": 2}), l[lab["L_idle"]:lab["L_retry"]], linearize(A[:e+1], {"L_att_loop": 3})]
def finalize_kf(p, verbose=False):
    l = p.l
    b, g1 = split_groups(l)
    head = l[:b+1]
    r0 = resolve_waits(l[:g1])
    r1 = resolve_waits(head + l[g1:])
    nh = len(resolve_waits(head))
    p2 = Prog(); p2.l = r0 + r1[nh:]
    return finalize("kf", p2, paths=kf_paths, verbose=verbose)
KF_DESC = dict(name="kf_kernel", vgpr=256, sgpr=102, accum=256, grid=256, block=512, lds=K1_LDS)
```

```python
from common import *
SOLO = True
import struct
def float_hex(f): return hex(struct.unpack("<I", struct.pack("<f", f))[0])

IMG = 1024
LDS_FLAG = 0
LDS_STG = 131072
K2_LDS = 163840
VAR = dict(margin=100.0, U=8, prio_att=1, prio_g=0, fuse3=True, sentA=True, sentW=0, cdelay=2)

QA, QB = 4, 8
CA, CB = 16, 32
OA, OB = 48, 64
SA, SB = 80, 96
PA, PB = 112, 120
KR = [128, 132, 136, 140]
V0R = [144, 148, 152, 156]
V1R = [160, 164, 168, 172]
AK, AV0, AV1 = 176, 177, 178
GK, GV0, GV1 = 179, 180, 181
MA, MB = 182, 183
TM = 184
FL = 188
PF, PFA = 190, 191
STT = 192

def max16(p, S, M, first):
    if first:
        p(f"v_max3_f32 v{M}, v{S}, v{S+1}, v{S+2}")
        p(f"v_max_f32 v{M}, v{M}, v{S+3}")
        r = range(4, 16, 2)
    else: r = range(0, 16, 2)
    for k in r: p(f"v_max3_f32 v{M}, v{M}, v{S+k}, v{S+k+1}")

def flag_wait(p, name, addr_v, off, val, tmpq, sleep=1):
    p.label(name)
    p(f"ds_read_b128 {vr(tmpq,4)}, v{addr_v} offset:{off}")
    p("s_waitcnt lgkmcnt(0)")
    p(f"v_min_u32 v{tmpq}, v{tmpq}, v{tmpq+1}\nv_min3_u32 v{tmpq}, v{tmpq}, v{tmpq+2}, v{tmpq+3}")
    p(f"v_cmp_gt_u32 vcc, {val}, v{tmpq}")
    p(f"s_cbranch_vccz {name}_ok\ns_sleep {sleep}\ns_branch {name}")
    p.label(name + "_ok")

def spin1(p, name, addr_v, off, val, tmp):
    p.label(name)
    p(f"ds_read_b32 v{tmp}, v{addr_v} offset:{off}")
    p("s_waitcnt lgkmcnt(0)")
    p(f"v_cmp_gt_u32 vcc, {val}, v{tmp}")
    p(f"s_cbranch_vccz {name}_ok\ns_sleep 1\ns_branch {name}")
    p.label(name + "_ok")

def att_loop_body(U):
    out = []
    def blk(S, P, So, Po, Mqk, Mpv1, Mpv0, extra):
        e = lambda k: I(f"v_exp_f32 v{S+k}, v{S+k}")
        c = lambda k: I(f"v_cvt_pk_bf16_f32 v{P+k}, v{S+2*k}, v{S+2*k+1}")
        co = lambda k: I(f"v_cvt_pk_bf16_f32 v{Po+k}, v{So+2*k}, v{So+2*k+1}")
        o = []
        pq, p1, p0 = VAR.get('pos', (2, 6, 12))
        cs = VAR.get('cs', {0: [-6], 1: [-7], 3: [0], 5: [1], 7: [2], 9: [3], 11: [4], 13: [5]})
        if VAR.get('perm'):
            c = lambda k: I(f"v_perm_b32 v{P+k}, v{S+2*k+1}, v{S+2*k}, s45")
            co = lambda k: I(f"v_perm_b32 v{Po+k}, v{So+2*k+1}, v{So+2*k}, s45")
        for k in range(16):
            o.append(e(k))
            for j in cs.get(k, []):
                if j < 0: o.append(co(-j))
            if k == pq and not VAR.get('nom'): o.append(Mqk)
            if k == p1 and not VAR.get('nom'): o.append(Mpv1)
            if k == p0 and not VAR.get('nom'): o.append(Mpv0)
            o += extra.get(k, [])
            for j in cs.get(k, []):
                if j >= 0: o.append(c(j))
        return o
    for u in range(U):
        s0 = u % 4; s1 = (u+1) % 4; sm = (u-1) % 4
        exA = {}; exB = {}
        if u % 2 == 0:
            rd = []
            for d in (2, 3):
                o_ = (u+d-1)*KVT
                rd += [I(f"ds_read_b128 {vr(KR[(u+d)%4],4)}, v{AK} offset:{o_}"),
                       I(f"ds_read_b128 {vr(V0R[(u+d)%4],4)}, v{AV0} offset:{o_}"),
                       I(f"ds_read_b128 {vr(V1R[(u+d)%4],4)}, v{AV1} offset:{o_}")]
            exA = {VAR.get('rdpos', 6): rd}
            if VAR.get('nods'): exA = {}
        if u == U-1:
            exB = {2: [I("s_add_u32 s41, s41, 1")], 3: [I("s_bitcmp1_b32 s45, s41" if VAR['sentA'] else "s_cmp_eq_u32 s41, 1")], 4: [I("s_cbranch_scc1 L_att_sync2"), I("L_att_sync2_ret:")],
                   5: [I(f"v_mov_b32 v{TM}, s41")], 7: [I(f"ds_write_b32 v{FL+1}, v{TM} offset:80")],
                   6: [I(f"v_add_u32 v{AK}, {U*KVT}, v{AK}")], 8: [I(f"v_add_u32 v{AV0}, {U*KVT}, v{AV0}")], 10: [I(f"v_add_u32 v{AV1}, {U*KVT}, v{AV1}")],
                   14: [I(f"s_cmp_lt_u32 s41, {64//U}")]}
        if u % 2 == 1: exB[0] = [I("s_waitcnt lgkmcnt(0)")]
        out += blk(SA, PA, SB, PB, mfma32(vr(SB,16), vr(KR[s0],4), vr(QB,4), vr(CB,16)),
                   mfma32(vr(OB,16), vr(V1R[sm],4), vr(PB+4,4), vr(OB,16)),
                   mfma32(vr(OA,16), vr(V0R[s0],4), vr(PA,4), vr(OA,16)), exA)
        out += blk(SB, PB, SA, PA, mfma32(vr(SA,16), vr(KR[s1],4), vr(QA,4), vr(CA,16)),
                   mfma32(vr(OA,16), vr(V1R[s0],4), vr(PA+4,4), vr(OA,16)),
                   mfma32(vr(OB,16), vr(V0R[s0],4), vr(PB,4), vr(OB,16)), exB)
    return out

def k2_ids(p):
    p(f"""
    s_mov_b32 s24, s10
    s_and_b32 s25, s2, 7
    s_lshr_b32 s26, s2, 3
    s_lshr_b32 s27, s26, 3
    s_lshl_b32 s28, s25, 2
    s_add_u32 s27, s27, s28                ; head
    s_and_b32 s28, s26, 7                  ; qb
    """)
def gen_attention(p, st):
    U = VAR['U']
    k2_ids(p)
    p(f"""
    s_mul_i32 s30, s27, {KVH}
    s_add_u32 s30, s30, {KV}
    s_lshl_b32 s31, s27, 16
    s_lshl_b32 s32, s28, 3
    s_lshl_b32 s33, s24, 1
    s_add_u32 s32, s32, s33
    s_lshl_b32 s33, s32, 10
    s_add_u32 s31, s31, s33
    v_lshlrev_b32 v{GK}, 4, v1
    v_mov_b32 v{FL}, {LDS_FLAG}
    s_lshl_b32 s37, s24, 2
    v_add_u32 v{FL+1}, s37, v{FL}
    v_mov_b32 v{TM+1}, 1
    s_waitcnt vmcnt(0)
    ds_write_b32 v{FL+1}, v{TM+1} offset:112
    """)
    st(p, 8)
    p(f"""
    v_and_b32 v{TM}, 31, v1
    v_lshrrev_b32 v{TM+1}, 5, v1
    v_lshlrev_b32 v{TM+1}, 8, v{TM+1}
    v_lshl_add_u32 v{TM+1}, v{TM}, 4, v{TM+1}
    v_and_b32 v{TM+2}, 27, v{TM}
    v_cmp_eq_u32 vcc, 16, v{TM+2}
    v_mov_b32 v{TM+2}, 2064
    v_mov_b32 v{TM+3}, 2048
    v_cndmask_b32 v{TM+2}, v{TM+2}, v{TM+3}, vcc
    v_mov_b32 v{TM+3}, 0x3f803f80
    v_cndmask_b32 v{PF}, 0, v{TM+3}, vcc
    v_cmp_gt_u32 vcc, 16, v{TM}
    v_add_u32 v{GV0}, 1024, v{TM+1}
    v_add_u32 v{GV1}, 1536, v{TM+1}
    v_cndmask_b32 v{AV0}, v{TM+2}, v{GV0}, vcc
    v_cndmask_b32 v{AV1}, v{TM+2}, v{GV1}, vcc
    s_mov_b32 s48, 0xffff
    s_mov_b32 s49, 0xffff
    """)
    for r in V0R[:2] + V1R[:2]:
        for e in range(4): p(f"v_mov_b32 v{r+e}, v{PF}")
    ones_zeros(p, 0, 12, MA, STT+8)
    if VAR.get('sentW'):
        p(f"""
        s_mul_i32 s33, s32, {88*1024}
        s_lshl_b32 s34, s27, 10
        s_add_u32 s33, s33, s34
        s_add_u32 s33, s33, {A3}
        s_add_u32 s39, s33, {88*1024}
        s_lshl_b32 s35, s32, 6
        s_lshl_b32 s34, s27, 2
        s_add_u32 s35, s35, s34
        s_add_u32 s35, s35, {OFL}
        s_mul_i32 s42, s26, 9363
        s_lshr_b32 s42, s42, 16                ; j/7
        s_mul_i32 s43, s42, 7
        s_sub_u32 s43, s26, s43                ; fb
        s_lshl_b32 s44, s25, 2
        s_add_u32 s42, s42, s44
        s_lshl_b32 s43, s43, 2
        s_add_u32 s43, s43, s24                ; ft
        s_mul_i32 s46, s42, {2*88*1024}
        s_lshl_b32 s44, s43, 11
        s_add_u32 s46, s46, s44
        s_add_u32 s46, s46, {A3 + 32*1024}
        s_lshl_b32 s42, s42, 7
        s_lshl_b32 s43, s43, 2
        s_add_u32 s42, s42, s43
        s_add_u32 s42, s42, {UFL}
        s_add_u32 s47, s46, {88*1024}
        s_cmp_lt_u32 s26, 28
        s_cselect_b32 s46, s46, 0x7ff00000
        s_cselect_b32 s47, s47, 0x7ff00000
        s_cselect_b32 s42, s42, 0x7ff00000
        s_mov_b32 s43, s47
        """)
        for r in range(4): p(f"v_mov_b32 v{STT+r}, -1")
        def ph_stores():
            p(f"buffer_store_dwordx4 {vr(STT,4)}, v{GK}, s[12:15], s33 offen sc1\nbuffer_store_dwordx4 {vr(STT,4)}, v{GK}, s[12:15], s39 offen sc1")
            for k in range(4): p(f"buffer_store_dwordx4 {vr(STT,4)}, v{GK}, s[12:15], s{(46, 43)[k//2]} offen offset:{(k%2)*1024} sc1")
        def ph_flags():
            p(f"v_mov_b32 v{STT+4}, s11\nv_mov_b32 v{STT+5}, 1\ns_waitcnt vmcnt(0)\nbuffer_store_dword v{STT+4}, off, s[12:15], s35 sc1\nbuffer_store_dword v{STT+4}, off, s[12:15], s42 sc1\nds_write_b32 v{FL+1}, v{STT+5} offset:64")
    p("s_cmp_lg_u32 s24, 0\ns_cbranch_scc1 " + ("L_att_ph" if VAR.get('sentW') else "L_att_go"))
    flag_wait(p, "L_att_ad", FL, 112, 1, TM, sleep=0)
    p(f"""
    v_mov_b32 v{TM}, s11
    buffer_store_dword v{TM}, off, s[12:15], s83 sc1
    s_lshr_b32 s34, s27, 2
    s_lshl_b32 s34, s34, 12
    s_add_u32 s34, s34, {PFL}
    v_and_b32 v{MA}, 31, v1
    v_lshlrev_b32 v{MA}, 7, v{MA}
    """)
    if VAR.get('pp', 0):
        p("s_mov_b32 s47, 0")
        for k in range(2): p(f"buffer_load_dword v{200+k}, v{MA}, s[12:15], s34 offen sc1\ns_sleep {VAR.get('ppsleep', 3)}")
        p.label("L_att_p")
        for k in range(3):
            p(f"buffer_load_dword v{200+(k+2)%3}, v{MA}, s[12:15], s34 offen sc1\ns_waitcnt vmcnt(2)\nv_cmp_ne_u32 vcc, s11, v{200+k}\ns_cbranch_vccz L_att_p_ok\ns_sleep {VAR.get('ppsleep', 3)}")
        p("s_add_u32 s47, s47, 1\ns_cmp_lt_u32 s47, 0x8000\ns_cbranch_scc1 L_att_p")
        p.label("L_att_p_ok")
    else:
        if VAR.get('sentW'): ph_stores(); ph_flags()
        if VAR.get('q0'): p(f"s_sleep {VAR['q0']}")
        poll(p, "L_att_p", 34, MA, None, TM, sleep=VAR.get('qsleep', 4))
    p(f"v_mov_b32 v{TM}, 1\nds_write_b32 v{FL}, v{TM} offset:96")
    if VAR.get('sentW'):
        p("s_branch L_att_go")
        p.label("L_att_ph")
        ph_stores(); ph_flags()
    p.label("L_att_go")
    spin1(p, "L_att_gw", FL, 96, 1, TM)
    st(p, 9)
    p(f"buffer_load_dwordx4 {vr(QA,4)}, v{GK}, s[12:15], s31 offen sc1")
    p(f"buffer_load_dwordx4 {vr(QB,4)}, v{GK}, s[12:15], s31 offen offset:1024 sc1")
    p(f"buffer_load_dwordx4 {vr(KR[0],4)}, v{GK}, s[12:15], s30 offen sc1")
    p(f"buffer_load_dwordx4 {vr(KR[1],4)}, v{GK}, s[12:15], s30 offen offset:{KVG} sc1")
    p("s_mov_b64 exec, s[48:49]")
    for t in range(2):
        p(f"buffer_load_dwordx4 {vr(V0R[t],4)}, v{GV0}, s[12:15], s30 offen offset:{t*KVG} sc1")
        p(f"buffer_load_dwordx4 {vr(V1R[t],4)}, v{GV1}, s[12:15], s30 offen offset:{t*KVG} sc1")
    p(f"""
    s_mov_b64 exec, -1
    s_lshl_b32 s38, s24, 11
    s_add_u32 s38, s38, s30
    s_mul_i32 s37, s24, {KVT}
    """)
    for i in range(3):
        p(f"s_add_u32 m0, s37, {(1+4*i)*KVT}\ns_add_u32 s36, s38, {(2+4*i)*KVG}")
        for k in range(2): p(f"buffer_load_dwordx4 v{GK}, s[12:15], s36 offen offset:{k*1024} sc1 lds")
    oz_write(p, 0, 12, MA, STT+8)
    p(f"s_setprio {VAR['prio_att']}")
    if VAR['sentA']:
        p(f"""
        s_mul_i32 s33, s32, {88*1024}
        s_lshl_b32 s34, s27, 10
        s_add_u32 s33, s33, s34
        s_add_u32 s33, s33, {A3}
        s_add_u32 s39, s33, {88*1024}
        s_lshl_b32 s35, s32, 6
        s_lshl_b32 s34, s27, 2
        s_add_u32 s35, s35, s34
        s_add_u32 s35, s35, {OFL}
        s_mul_i32 s42, s26, 9363
        s_lshr_b32 s42, s42, 16                ; j/7
        s_mul_i32 s43, s42, 7
        s_sub_u32 s43, s26, s43                ; fb
        s_lshl_b32 s44, s25, 2
        s_add_u32 s42, s42, s44
        s_lshl_b32 s43, s43, 2
        s_add_u32 s43, s43, s24                ; ft
        s_mul_i32 s46, s42, {2*88*1024}
        s_lshl_b32 s44, s43, 11
        s_add_u32 s46, s46, s44
        s_add_u32 s46, s46, {A3 + 32*1024}
        s_lshl_b32 s42, s42, 7
        s_lshl_b32 s43, s43, 2
        s_add_u32 s42, s42, s43
        s_add_u32 s42, s42, {UFL}
        s_add_u32 s47, s46, {88*1024}
        s_mov_b32 s45, {2 + (1 << VAR.get('s3it', 2))}
        s_mov_b32 s44, 0
        s_cmp_lt_u32 s26, 28
        s_cbranch_scc1 L_att_nopre
        """)
        for r in range(4): p(f"v_mov_b32 v{STT+r}, -1")
        p(f"buffer_store_dwordx4 {vr(STT,4)}, v{GK}, s[12:15], s33 offen sc1\nbuffer_store_dwordx4 {vr(STT,4)}, v{GK}, s[12:15], s39 offen sc1")
        p(f"v_mov_b32 v{STT}, s11\ns_waitcnt vmcnt(0)\nbuffer_store_dword v{STT}, off, s[12:15], s35 sc1\ns_mov_b32 s45, 2\ns_mov_b32 s44, 1")
        p.label("L_att_nopre")
    p(f"v_mov_b32 v{TM}, 1\nds_write_b32 v{FL+1}, v{TM} offset:176")
    p(f"""
    v_mov_b32 v{AK}, v{GK}
    """)
    for r in list(range(OA, OA+32)) + list(range(PB+4, PB+6)) + list(range(V1R[3], V1R[3]+4)):
        p(f"v_mov_b32 v{r}, 0")
    p(f"s_waitcnt vmcnt(10)")
    p.add([mfma32(vr(SA,16), vr(KR[0],4), vr(QA,4), "0"), mfma32(vr(SB,16), vr(KR[0],4), vr(QB,4), "0"),
           mfma32(vr(CA,16), vr(KR[1],4), vr(QA,4), "0"), mfma32(vr(CB,16), vr(KR[1],4), vr(QB,4), "0")])
    max16(p, SA, MA, True); max16(p, SB, MB, True); max16(p, CA, MA, False); max16(p, CB, MB, False)
    p(f"""
    s_mov_b32 s40, {float_hex(VAR['margin'])}
    v_mov_b32 v{TM}, v{MA}
    v_mov_b32 v{TM+1}, v{MB}
    v_permlane32_swap_b32 v{TM}, v{MA}
    v_permlane32_swap_b32 v{TM+1}, v{MB}
    v_max_f32 v{MA}, v{MA}, v{TM}
    v_max_f32 v{MB}, v{MB}, v{TM+1}
    v_add_f32 v{MA}, s40, v{MA}
    v_add_f32 v{MB}, s40, v{MB}
    """)
    for r in range(16): p(f"v_sub_f32 v{CA+r}, 0, v{MA}")
    for r in range(12, 16): p(f"v_mov_b32 v{SB+r}, 0")
    p.add([mfma32(vr(SA,16), vr(KR[0],4), vr(QA,4), vr(CA,16))])
    for r in range(16): p(f"v_sub_f32 v{CB+r}, 0, v{MB}")
    p(f"s_waitcnt vmcnt(0) lgkmcnt(0)")
    p(f"v_mov_b32 v{TM}, 1\nds_write_b32 v{FL+1}, v{TM}")
    flag_wait(p, "L_att_f1", FL, 0, 1, TM)
    st(p, 1)
    p("s_mov_b32 s41, 0")
    p(".p2align 6")
    p.label("L_att_loop")
    p.add(att_loop_body(U))
    p("s_cbranch_scc1 L_att_loop")
    st(p, 2)
    if VAR.get('endprio'): p("s_setprio 3")
    p(f"v_cvt_pk_bf16_f32 v{PB+6}, v{SB+12}, v{SB+13}\nv_cvt_pk_bf16_f32 v{PB+7}, v{SB+14}, v{SB+15}")
    p(f"""
    s_mul_i32 s33, s32, {88*1024}
    s_lshl_b32 s34, s27, 10
    s_add_u32 s33, s33, s34
    s_add_u32 s33, s33, {A3}
    """)
    p.add([mfma32(vr(OB,16), vr(V1R[3],4), vr(PB+4,4), vr(OB,16))])
    p("s_waitcnt lgkmcnt(0)")
    p(f"s_mov_b32 s36, 0\ns_mov_b32 s40, {float_hex(2.0**-112)}")
    p.label("L_att_chk")
    p(f"v_mul_f32 v{TM}, 0, v{OA+8}")
    for r in range(8): p(f"v_fmac_f32 v{TM}, 0, v{OA+r}")
    p(f"v_max3_f32 v{TM+1}, |v{OA}|, |v{OA+1}|, |v{OA+2}|\nv_max3_f32 v{TM+1}, v{TM+1}, |v{OA+3}|, |v{OA+4}|\nv_max3_f32 v{TM+1}, v{TM+1}, |v{OA+5}|, |v{OA+6}|\nv_max_f32_e64 v{TM+1}, v{TM+1}, |v{OA+7}|")
    p(f"v_mov_b32 v{TM+2}, v{TM+1}\nv_permlane32_swap_b32 v{TM+1}, v{TM+2}\nv_max_f32 v{TM+1}, v{TM+1}, v{TM+2}")
    p(f"v_cmp_u_f32 vcc, v{TM}, v{TM}\nv_cmp_gt_f32 s[38:39], s40, v{TM+1}\ns_or_b64 vcc, vcc, s[38:39]")
    p("s_cbranch_vccnz L_att_slow")
    p.label("L_att_fin")
    p(f"v_rcp_f32 v{MA}, v{OA+8}")
    p("s_cmp_lg_u32 s36, 0")
    for r in range(8): p(f"v_mul_f32 v{OA+r}, v{OA+r}, v{MA}")
    for k in range(4): p(f"v_cvt_pk_bf16_f32 v{PA+k}, v{OA+2*k}, v{OA+2*k+1}")
    for k in range(4): p(f"v_min_u32 v{PA+k}, -2, v{PA+k}")
    p(f"buffer_store_dwordx4 {vr(PA,4)}, v{GK}, s[12:15], s33 offen")
    p("s_cbranch_scc1 L_att_done")
    p(f"s_mov_b32 s36, 1\ns_add_u32 s33, s33, {88*1024}")
    for r in range(9): p(f"v_mov_b32 v{OA+r}, v{OB+r}")
    for r in range(4): p(f"v_mov_b32 v{QA+r}, v{QB+r}")
    p("s_branch L_att_chk")
    p.label("L_att_done")
    st(p, 3)
    p("s_endpgm")
    p.label("L_att_sync2")
    if VAR['sentA']: p("s_cmp_lg_u32 s41, 1\ns_cbranch_scc1 L_att_sync3")
    if VAR['sentA']:
        p("s_cmp_lg_u32 s44, 0\ns_cbranch_scc1 L_att_f2")
        for r in range(4): p(f"v_mov_b32 v{STT+r}, -1")
        p(f"buffer_store_dwordx4 {vr(STT,4)}, v{GK}, s[12:15], s33 offen sc1\nbuffer_store_dwordx4 {vr(STT,4)}, v{GK}, s[12:15], s39 offen sc1")
        for k in range(4): p(f"buffer_store_dwordx4 {vr(STT,4)}, v{GK}, s[12:15], s{46+k//2} offen offset:{(k%2)*1024} sc1")
    flag_wait(p, "L_att_f2", FL, 48, 1, TM)
    p("s_branch L_att_sync2_ret")
    p.label("L_att_sync3")
    if VAR['sentA']:
        p(f"v_mov_b32 v{TM}, s11\nv_mov_b32 v{TM+1}, 1\ns_waitcnt vmcnt(0)\nbuffer_store_dword v{TM}, off, s[12:15], s35 sc1\nbuffer_store_dword v{TM}, off, s[12:15], s42 sc1\nds_write_b32 v{FL+1}, v{TM+1} offset:64")
    p("s_branch L_att_sync2_ret")
    p.label("L_att_slow")
    p(f"v_mov_b32 v{MA}, 0xff800000\ns_mov_b32 s41, 0\ns_mov_b32 s37, s30")
    p.label("L_att_sl1")
    p(f"buffer_load_dwordx4 {vr(KR[0],4)}, v{GK}, s[12:15], s37 offen sc1")
    p("s_waitcnt vmcnt(0)")
    p.add([mfma32(vr(SA,16), vr(KR[0],4), vr(QA,4), "0")])
    max16(p, SA, MA, False)
    p(f"s_add_u32 s37, s37, {KVG}\ns_add_u32 s41, s41, 1\ns_cmp_lt_u32 s41, 64\ns_cbranch_scc1 L_att_sl1")
    p(f"v_mov_b32 v{TM}, v{MA}\nv_permlane32_swap_b32 v{TM}, v{MA}\nv_max_f32 v{MA}, v{MA}, v{TM}")
    for r in range(16): p(f"v_sub_f32 v{CA+r}, 0, v{MA}\nv_mov_b32 v{OA+r}, 0")
    for e in range(4): p(f"v_mov_b32 v{V0R[0]+e}, v{PF}\nv_mov_b32 v{V1R[0]+e}, v{PF}")
    p("s_mov_b32 s41, 0\ns_mov_b32 s37, s30")
    p.label("L_att_sl2")
    p(f"buffer_load_dwordx4 {vr(KR[0],4)}, v{GK}, s[12:15], s37 offen sc1")
    p("s_mov_b64 exec, s[48:49]")
    p(f"buffer_load_dwordx4 {vr(V0R[0],4)}, v{GV0}, s[12:15], s37 offen sc1")
    p(f"buffer_load_dwordx4 {vr(V1R[0],4)}, v{GV1}, s[12:15], s37 offen sc1")
    p("s_mov_b64 exec, -1")
    p("s_waitcnt vmcnt(0)")
    p.add([mfma32(vr(SA,16), vr(KR[0],4), vr(QA,4), vr(CA,16))])
    for k in range(16): p(f"v_exp_f32 v{SA+k}, v{SA+k}")
    for k in range(8): p(f"v_cvt_pk_bf16_f32 v{PA+k}, v{SA+2*k}, v{SA+2*k+1}")
    p.add([mfma32(vr(OA,16), vr(V0R[0],4), vr(PA,4), vr(OA,16)), mfma32(vr(OA,16), vr(V1R[0],4), vr(PA+4,4), vr(OA,16))])
    p(f"s_add_u32 s37, s37, {KVG}\ns_add_u32 s41, s41, 1\ns_cmp_lt_u32 s41, 64\ns_cbranch_scc1 L_att_sl2")
    p("s_nop 15\ns_branch L_att_fin")

ACC = 4
NZF = 16
ZR = 132
WR = 196
VL = 244; VD = 245; VW = 247
GF = 251
G = 232
def acc(i, tt): return ACC + (i*2+tt)*16

def ones_zeros(p, l0, l1, va, vd):
    p(f"v_mul_u32_u24 v{va+1 if False else vd+8}, {KVT}, v1")
    for e in range(4): p(f"v_mov_b32 v{vd+e}, 0x3f803f80\nv_mov_b32 v{vd+4+e}, 0")
def oz_write(p, l0, l1, va, vd):
    m = ((1 << l1) - 1) ^ ((1 << l0) - 1)
    p(f"s_mov_b32 exec_lo, {m & 0xffffffff:#x}\ns_mov_b32 exec_hi, {m >> 32:#x}")
    p(f"ds_write_b128 v{vd+8}, {vr(vd,4)} offset:{KVT+2048}\nds_write_b128 v{vd+8}, {vr(vd+4,4)} offset:{KVT+2064}")
    p("s_mov_b64 exec, -1")
def kv_rest(p, uniq):
    ones_zeros(p, 12, 62, 0, 8)
    oz_write(p, 12, 62, 0, 8)
    for i in range(13):
        if i == 12: p(f"s_add_u32 s62, s62, {(13+4*i)*KVT}\ns_add_u32 s61, s63, {(14+4*i)*KVG}\ns_cmp_ge_u32 s24, 2\ns_cselect_b32 m0, 0x30000, s62")
        else: p(f"s_add_u32 m0, s62, {(13+4*i)*KVT}\ns_add_u32 s61, s63, {(14+4*i)*KVG}")
        for k in range(2): p(f"buffer_load_dwordx4 v{VL}, s[12:15], s61 offen offset:{k*1024} sc1 lds", tag="kv")

def flag_addr(p):
    p(f"""
    s_lshr_b32 s48, s26, 3
    s_lshl_b32 s47, s25, 2
    s_add_u32 s48, s48, s47
    s_lshl_b32 s48, s48, 7                 ; tb'*128
    s_lshl_b32 s47, s24, 5
    s_add_u32 s46, s48, s47
    s_mul_i32 s47, s24, 28
    s_add_u32 s48, s48, s47
    s_add_u32 s48, s48, {UFL-OFL}          ; u flags
    s_and_b32 s47, s26, 7
    s_lshl_b32 s47, s47, 7
    s_add_u32 s47, s47, {WFL-OFL}          ; W flags
    v_lshlrev_b32 v{G+5}, 2, v1
    v_mov_b32 v{G+6}, s48
    v_add_u32 v{G+7}, s48, v{G+5}
    v_cmp_gt_u32 vcc, 7, v1
    v_cndmask_b32 v{G+6}, v{G+6}, v{G+7}, vcc
    v_subrev_u32 v{G+5}, 128, v{G+5}
    v_add_u32 v{G+7}, s47, v{G+5}
    v_cmp_gt_u32 vcc, 64, v{G+5}
    v_cndmask_b32 v{G+6}, v{G+6}, v{G+7}, vcc
    v_subrev_u32 v{G+5}, 64, v{G+5}
    v_add_u32 v{G+7}, s46, v{G+5}
    v_cmp_gt_u32 vcc, 32, v{G+5}
    v_cndmask_b32 v{G+6}, v{G+6}, v{G+7}, vcc
    v_subrev_u32 v{G+5}, 32, v{G+5}
    v_add_u32 v{G+7}, s49, v{G+5}
    v_cmp_gt_u32 vcc, 8, v{G+5}
    v_cndmask_b32 v{G+6}, v{G+6}, v{G+7}, vcc
    s_mov_b32 s48, {OFL}
    """)
def gen_gemm(p, st, mid=None):
    k2_ids(p)
    p(f"""
    s_load_dwordx4 s[4:7], s[0:1], {KA_WSP}
    s_sub_u32 s24, s24, 4                  ; q = K quarter
    v_lshlrev_b32 v{VL}, 4, v1
    s_mul_i32 s63, s27, {KVH}
    s_lshl_b32 s62, s24, 11
    s_add_u32 s63, s63, s62
    s_add_u32 s63, s63, {KV}
    s_mul_i32 s62, s24, {KVT}
    s_lshl_b32 s46, s24, 2
    s_add_u32 s46, s46, {LDS_FLAG}
    v_mov_b32 v{GF}, s46
    v_mov_b32 v0, 1
    v_mov_b32 v2, {LDS_FLAG}
    s_waitcnt lgkmcnt(0)
    ds_write_b32 v{GF}, v0 offset:160
    """)
    srd(p, 16, 4, 2048*2048*2); srd(p, 20, 6, 4096)
    flag_wait(p, "L_g_bd", 2, 160, 1, 4)
    flag_wait(p, "L_g_go", 2, 176, 1, 4, sleep=2)
    kv_rest(p, "a")
    p(f"""
    s_cmp_ge_u32 s26, 28
    s_cbranch_scc1 L_idle
    s_setprio 3
    s_mul_i32 s30, s26, 9363
    s_lshr_b32 s30, s30, 16                ; j/7
    s_mul_i32 s31, s30, 7
    s_sub_u32 s31, s26, s31                ; fb = j%7
    s_lshl_b32 s32, s25, 2
    s_add_u32 s30, s30, s32                ; tb
    s_lshl_b32 s33, s31, 19
    s_add_u32 s33, s33, {Z2F}
    s_lshl_b32 s34, s24, 17
    s_add_u32 s33, s33, s34
    s_lshl_b32 s56, s30, 18
    s_lshl_b32 s34, s24, 10
    s_add_u32 s56, s56, s34
    s_lshl_b32 s36, s24, 13
    s_add_u32 s36, s36, {LDS_STG}
    s_add_u32 s37, s36, 4096
    v_lshrrev_b32 v2, 3, v1
    v_lshrrev_b32 v3, 4, v1
    v_xor_b32 v3, v3, v1
    v_and_b32 v3, 7, v3
    v_lshlrev_b32 v3, 4, v3
    v_lshl_add_u32 v{VD}, v2, 12, v3
    v_xor_b32 v{VD+1}, 64, v{VD}
    v_add_u32 v{VD+1}, {8*4096-1024}, v{VD+1}
    """)
    for i in range(4):
        p(f"s_add_u32 s38, s24, {i}\ns_and_b32 s38, s38, 3\ns_lshl_b32 s38, s38, 10\ns_add_u32 s{52+i}, s33, s38")
    p(f"""
    s_lshl_b32 s38, s31, 12                ; (2fb)*16*128
    s_lshl_b32 s39, s24, 9
    s_add_u32 s39, s39, s38
    s_add_u32 s39, s39, {PFL+16}
    s_lshr_b32 s49, s24, 1
    s_lshl_b32 s49, s49, 11
    s_add_u32 s49, s49, s38
    s_lshr_b32 s38, s30, 1
    s_lshl_b32 s38, s38, 7
    s_add_u32 s49, s49, s38
    s_and_b32 s38, s30, 1
    s_lshl_b32 s38, s38, 3
    s_add_u32 s49, s49, s38
    s_add_u32 s49, s49, {PFL+32-OFL}
    v_and_b32 v4, 3, v1
    v_bfe_u32 v5, v1, 2, 1
    v_lshlrev_b32 v5, 11, v5
    v_lshl_add_u32 v4, v4, 7, v5
    v_bfe_u32 v5, v1, 3, 2
    v_lshl_add_u32 v4, v5, 2, v4
    """)
    def dma(b):
        out = []
        for i in range(8):
            if i % 4 == 0: out.append(I(f"s_mov_b32 m0, s{(66 if (b % 3 == 2 and b > 2) else 36) + i//4}"))
            if i % 2 == 0: out.append(I(f"s_add_u32 s57, s56, {(i//2)*16*4096 - (i%4)*1024}"))
            out.append(I(f"buffer_load_dwordx4 v{VD + i%2}, s[16:19], s57 offen offset:{(i%4)*1024} sc1 lds", tag=f"d{b}"))
        out.append(I("s_add_u32 s56, s56, 128"))
        return out
    def zload(n):
        i = n % 4
        return [I(f"buffer_load_dwordx4 {vr(ZR + (n%NZF)*4, 4)}, v{VL}, s[12:15], s{52+i} offen sc1", tag=f"z{n}"),
                I(f"s_add_u32 s{52+i}, s{52+i}, 4096")]
    p.add(dma(0))
    if VAR.get('ordb'):
        p.wait(vm="kv", lg0=True); p(f"ds_write_b32 v{GF}, v0 offset:48")
        poll(p, "L_pz", 39, 4, None, 5, sleep=VAR.get('zsleep', 4))
        st(p, 9)
        if VAR.get('stop') == 1: p("s_endpgm")
        for n in range(16): p.add(zload(n))
        mid(p, "a")
    else:
        mid(p, "a", [W(vm="kv", lg0=True), I(f"ds_write_b32 v{GF}, v0 offset:48")])
        p.wait(vm="kv", lg0=True); p(f"ds_write_b32 v{GF}, v0 offset:48")
        poll(p, "L_pz", 39, 4, None, 5, sleep=VAR.get('zsleep', 4))
        p(f"v_mov_b32 v0, s11\nbuffer_store_dword v0, off, s[12:15], s89 sc1")
        st(p, 9)
        if VAR.get('stop') == 1: p("s_endpgm")
        for n in range(16): p.add(zload(n))
    p(f"v_and_b32 v2, 31, v1")
    bitswap23(p, 2, 2, 3)
    p(f"""
    v_lshrrev_b32 v3, 1, v2
    v_lshrrev_b32 v{VW}, 5, v1
    v_xor_b32 v3, v3, v{VW}
    v_and_b32 v3, 7, v3
    v_lshlrev_b32 v3, 4, v3
    v_lshl_add_u32 v{VW}, v2, 7, v3
    v_add_u32 v{VW}, s36, v{VW}
    v_xor_b32 v{VW+1}, 32, v{VW}
    v_xor_b32 v{VW+2}, 64, v{VW}
    v_xor_b32 v{VW+3}, 96, v{VW}
    """)
    if VAR['fuse3']:
        flag_addr(p); p(f"v_mov_b32 v3, v{G+6}")
    p(f"s_setprio {VAR['prio_g']}")
    st(p, 1)
    wr = lambda g, tt: WR + ((g % 6)*2 + tt)*4
    def wread(b):
        return [I(f"ds_read_b128 {vr(wr(4*b+u, tt), 4)}, v{VW+u} offset:{tt*4096}", tag=f"w{b}", needs=[f"d{b}"]) for u in range(4) for tt in range(2)]
    def block_burst(b, first=False, dma_on=True, z_on=True, w_on=True):
        o = []
        for u in range(4):
            g = 4*b+u
            o.append(W(vm=[f"z{4*g+3}"]))
            for i in range(4):
                n = 4*g+i
                for tt in ((1, 0) if (VAR.get('snake') == 1 and i % 2) else (0, 1)):
                    c = "0" if (first and u == 0) else vr(acc(i,tt),16)
                    o.append(mfma32(vr(acc(i,tt),16), vr(ZR+(n%NZF)*4,4), vr(wr(g,tt),4), c))
                if VAR.get('snake') == 2 and i == 3:
                    ms = o[-8:] if not any(x.kind != "mfma" for x in o[-8:]) else None
                    if ms: o[-8:] = ms[0::2] + ms[7::-2]
                if u == 2 and i == 1 and w_on:
                    o.append(W(lg=f"w{b+1}"))
                    if dma_on: o += dma(b+2)
            if u == 1 and w_on: o += [W(vm=f"d{b+1}")] + wread(b+1)
            if z_on:
                for i in range(4): o += zload(4*g+i+NZF)
        return o
    def block(b, first=False, dma_on=True, z_on=True, w_on=True):
        if VAR.get('burst', 1): return block_burst(b, first, dma_on, z_on, w_on)
        o = []
        dm = []
        if w_on and dma_on:
            cur = []
            for x in dma(b+2):
                cur.append(x)
                if x.kind == "vmem": dm.append(cur); cur = []
            dm[-1] += cur
        wrd = wread(b+1) if w_on else []
        for u in range(4):
            g = 4*b+u
            for i in range(4):
                n = 4*g+i
                for tt in range(2):
                    if tt == 0: o.append(W(vm=[f"z{n}"]))
                    c = "0" if (first and u == 0) else vr(acc(i,tt),16)
                    o.append(mfma32(vr(acc(i,tt),16), vr(ZR+(n%NZF)*4,4), vr(wr(g,tt),4), c))
                    if VAR.get('pace'): o.append(I(f"s_nop {VAR['pace']}"))
                    if tt == 1 and z_on: o += zload(n+NZF)
                    if tt == 0:
                        if u == 2 and w_on:
                            if i == 0: o.append(W(vm=f"d{b+1}"))
                            o += wrd[2*i:2*i+2]
                        if u == 3 and dm:
                            if i == 0: o.append(W(lg=f"w{b+1}"))
                            o += dm.pop(0) + dm.pop(0)
                        elif u == 3 and i == 0 and w_on: o.append(W(lg=f"w{b+1}"))
        return o
    p.add(wread(0)); p.wait(lg="w0"); p.add(dma(1))
    p.add(block(0, first=True))
    p("s_mov_b32 s60, 0")
    hist = dma(0) + sum([zload(n) for n in range(16)], []) + dma(1) + block(0) + block(1) + block(2) + block(3) + [I("L_mark:")] + block(4) + block(5) + block(6)
    full = resolve_waits(hist)
    lb = full[next(i for i, x in enumerate(full) if x.kind == "label" and x.op == "L_mark")+1:]
    first_pass = resolve_waits(dma(0) + sum([zload(n) for n in range(16)], []) + dma(1) + block(0) + [I("L_mark:")] + block(1) + block(2) + block(3))
    fp = first_pass[next(i for i, x in enumerate(first_pass) if x.kind == "label" and x.op == "L_mark")+1:]
    assert len(fp) == len(lb)
    merged = []
    for x, y in zip(fp, lb):
        if x.kind == "wait":
            vm = min(v for v in (x.vm, y.vm) if v is not None) if (x.vm is not None or y.vm is not None) else None
            lg = min(v for v in (x.lg, y.lg) if v is not None) if (x.lg is not None or y.lg is not None) else None
            merged.append(I("s_waitcnt " + " ".join(([f"vmcnt({vm})"] if vm is not None else []) + ([f"lgkmcnt({lg})"] if lg is not None else []))))
        else:
            assert x.text == y.text, (x.text, y.text)
            merged.append(y)
    p.label("L_g_loop")
    p("s_cmp_eq_u32 s60, 1\ns_cselect_b32 s66, 0x30000, s36\ns_cselect_b32 s67, 0x30000, s37")
    p.add(merged)
    p("s_add_u32 s60, s60, 1\ns_cmp_lt_u32 s60, 2\ns_cbranch_scc1 L_g_loop")
    if VAR['fuse3']: p(f"s_mov_b32 s48, {OFL}"); p(f"buffer_load_dword v0, v3, s[12:15], s48 offen sc1", tag="fl")
    p.add(block(7, dma_on=False, z_on=False, w_on=False))
    st(p, 2)
    if VAR.get('stop') == 2: p("s_endpgm")
    p(f"s_setprio {VAR.get('prio_e', 3)}")
    p(f"""
    s_lshl_b32 s38, s30, 1
    s_mul_i32 s39, s38, {56*1024}
    s_lshl_b32 s40, s31, 2
    s_add_u32 s40, s40, s24
    s_lshl_b32 s41, s40, 11
    s_add_u32 s39, s39, s41
    s_add_u32 s39, s39, {Z1F}
    s_add_u32 s42, s39, {56*1024}
    s_mul_i32 s64, s38, {88*1024}
    s_add_u32 s64, s64, s41
    s_add_u32 s64, s64, {A3 + 32*1024}
    s_add_u32 s65, s64, {88*1024}
    s_lshl_b32 s45, s30, 7
    v_lshlrev_b32 v2, 1, v2
    """)
    Z = ZR
    p(f"v_mov_b32 v{G+1}, v{GF}")
    if VAR['fuse3']:
        p.wait(vm="fl")
        p("v_cmp_ne_u32 vcc, s11, v0\ns_cbranch_vccz L_g_fl")
        poll(p, "L_p00", 48, 3, None, 0, sleep=8)
        p.label("L_g_fl")
    p(f"buffer_load_dwordx4 {vr(Z,4)}, v{VL}, s[12:15], s39 offen sc1", tag="z1")
    p(f"buffer_load_dwordx4 {vr(Z+4,4)}, v{VL}, s[12:15], s39 offen offset:1024 sc1", tag="z1")
    p(f"buffer_load_dwordx4 {vr(Z+8,4)}, v{VL}, s[12:15], s42 offen sc1", tag="z1")
    p(f"buffer_load_dwordx4 {vr(Z+12,4)}, v{VL}, s[12:15], s42 offen offset:1024 sc1", tag="z1")
    p(f"buffer_load_ushort v{Z+16}, v2, s[20:23], s45 offen sc1", tag="z1")
    p(f"buffer_load_ushort v{Z+17}, v2, s[20:23], s45 offen offset:64 sc1", tag="z1")
    if VAR['fuse3']:
        g2_scalars(p)
        w_loads(p, 0, 10)
    p(f"v_add_u32 v{G}, s36, v{VL}\nv_mov_b32 v{G+2}, {LDS_FLAG}\ns_lshl_b32 s47, s24, 14\ns_add_u32 s47, s47, {IMG}\nv_add_u32 v{G+3}, s47, v{VL}")
    for k in range(8): p(f"ds_write_b128 v{G}, {vr(acc(1,0)+4*k, 4)} offset:{k*1024}")
    flag_wait(p, "L_g_prog", G+2, 80, 4, G+4)
    for r in (2, 3):
        for k in range(8): p(f"ds_write_b128 v{G+3}, {vr(acc(r,0)+4*k, 4)} offset:{(r-2)*8192 + k*1024}")
    for r in range(1, 4):
        p(f"s_add_u32 s47, s24, {4-r}\ns_and_b32 s47, s47, 3")
        if r == 1: p(f"s_lshl_b32 s47, s47, 13\ns_add_u32 s47, s47, {LDS_STG}\nv_add_u32 v{G}, s47, v{VL}")
        else: p(f"s_lshl_b32 s47, s47, 14\ns_add_u32 s47, s47, {(r-2)*8192 + IMG}\nv_add_u32 v{2 if r == 2 else 3}, s47, v{VL}")
    p(f"v_mov_b32 v{G+3}, 1\ns_waitcnt lgkmcnt(0)\nds_write_b32 v{G+1}, v{G+3} offset:16")
    flag_wait(p, "L_g_dat", G+2, 16, 1, G+4, sleep=0)
    for r in range(1, 4):
        for k in range(8):
            p(f"ds_read_b128 {vr(acc(r,0)+4*k,4)}, v{(G, 2, 3)[r-1]} offset:{k*1024}", tag=f"r{r}_{k}")
        if r > 1:
            for k in range(8):
                p.wait(lg=f"r{r-1}_{k}")
                for e in range(4): p(f"v_add_f32 v{acc(0,0)+4*k+e}, v{acc(0,0)+4*k+e}, v{acc(r-1,0)+4*k+e}")
    for k in range(8):
        p.wait(lg=f"r3_{k}")
        for e in range(4): p(f"v_add_f32 v{acc(0,0)+4*k+e}, v{acc(0,0)+4*k+e}, v{acc(3,0)+4*k+e}")
    if VAR['sentA'] or VAR.get('sentW'): spin1(p, "L_g_pf", G+1, 64, 1, G+3)
    p.wait(vm="z1")
    T = acc(1, 0)
    p(f"v_lshlrev_b32 v{Z+16}, 16, v{Z+16}\nv_lshlrev_b32 v{Z+17}, 16, v{Z+17}")
    for tt in range(2):
        a = acc(0, tt)
        for r in range(16): p(f"v_add_f32 v{a+r}, v{a+r}, v{Z+16+tt}")
        for d in range(8):
            z = Z + tt*8 + d
            p(f"v_lshlrev_b32 v{T}, 16, v{z}\nv_and_b32 v{T+1}, 0xffff0000, v{z}")
            p(f"v_mul_f32 v{a+2*d}, v{a+2*d}, v{T}\nv_mul_f32 v{a+2*d+1}, v{a+2*d+1}, v{T+1}")
            p(f"v_cvt_pk_bf16_f32 v{T+8+tt*8+d}, v{a+2*d}, v{a+2*d+1}")
        for d in (range(8) if VAR.get('fullver', 1) else (0, 4)): p(f"v_min_u32 v{T+8+tt*8+d}, -2, v{T+8+tt*8+d}")
        so = 64 + tt
        p(f"buffer_store_dwordx4 {vr(T+8+tt*8,4)}, v{VL}, s[12:15], s{so} offen")
        p(f"buffer_store_dwordx4 {vr(T+12+tt*8,4)}, v{VL}, s[12:15], s{so} offen offset:1024")
    if VAR.get('pf3'):
        p(f"s_lshl_b32 s38, s26, 2\ns_add_u32 s38, s38, s24\ns_mul_i32 s38, s38, 16384\ns_add_u32 s38, s38, {W3F}\nv_lshlrev_b32 v2, 7, v1")
        p(f"buffer_load_dword v3, v2, s[12:15], s38 offen\ns_add_u32 s38, s38, 8192\nbuffer_load_dword v3, v2, s[12:15], s38 offen")
    st(p, 3)
    if VAR['fuse3']:
        if VAR.get('stop') == 3: p("s_endpgm")
        p("s_branch L_g2")
    else: p("s_endpgm")
    p.label("L_idle")
    p.wait(vm="kv"); p(f"s_waitcnt vmcnt(0) lgkmcnt(0)\nds_write_b32 v{GF}, v0 offset:48")
    mid(p, "b")
    p(f"""
    s_load_dwordx2 s[36:37], s[0:1], {KA_WO}
    s_load_dwordx2 s[38:39], s[0:1], {KA_WOUT}
    s_lshl_b32 s34, s25, 2
    s_add_u32 s34, s34, s26
    s_sub_u32 s34, s34, 28                      ; L
    s_mov_b32 s54, {896*1024}
    v_lshrrev_b32 v2, 2, v1
    v_and_b32 v3, 3, v1
    v_lshlrev_b32 v3, 4, v3
    v_lshl_add_u32 v2, v2, 10, v3
    s_waitcnt lgkmcnt(0)
    s_cmp_lt_u32 s34, 16
    s_cselect_b32 s52, s36, s38
    s_cselect_b32 s53, s37, s39
    s_cselect_b32 s54, {512*1024}, s54
    s_cselect_b32 s35, 8, 14
    s_cselect_b32 s67, 0, {32*1024}
    s_mov_b32 s55, 0x20000
    s_and_b32 s34, s34, 15
    s_mul_i32 s68, s24, s35
    s_lshl_b32 s69, s68, 14
    s_lshl_b32 s60, s34, 6
    s_add_u32 s69, s69, s60
    s_mul_i32 s60, s34, {88*1024}
    s_lshl_b32 s68, s68, 10
    s_add_u32 s60, s60, s68
    s_add_u32 s60, s60, s67
    s_add_u32 s60, s60, {W3F}
    s_lshl_b32 s61, s24, 13
    s_add_u32 s61, s61, {LDS_STG}
    """)
    def w3_dma(n):
        for k in range(n):
            p(f"s_add_u32 m0, s61, {k*1024}\ns_nop 0\nbuffer_load_dwordx4 v2, s[52:55], s69 offen lds\ns_add_u32 s69, s69, 16384")
    def w3_out(n):
        for k in range(n):
            p(f"ds_read_b64_tr_b16 v[{8+4*k}:{9+4*k}], v3 offset:{k*1024}\nds_read_b64_tr_b16 v[{10+4*k}:{11+4*k}], v3 offset:{k*1024+256}")
            if k % 4 == 3: p("s_waitcnt lgkmcnt(0)")
        p("s_waitcnt lgkmcnt(0)")
        for k in range(n):
            p(f"buffer_store_dwordx4 v[{8+4*k}:{11+4*k}], v{VL}, s[12:15], s60 offen\ns_add_u32 s60, s60, 1024")
    p(f"v_mov_b32 v5, s11\ns_waitcnt vmcnt(0)\nbuffer_store_dword v5, off, s[12:15], s89 sc1")
    G0 = VAR.get('ipf0', 0); GB = VAR.get('ipfb', 0)
    NP = (8 - G0 - GB) if VAR.get('ipf', 1) else 0
    if VAR.get('ipf', 1):
        p(f"""
        s_sub_u32 s36, s26, 28
        s_lshl_b32 s36, s36, 2
        s_add_u32 s36, s36, s24                 ; wave16
        v_lshlrev_b32 v5, 12, v1
        s_lshl_b32 s56, s25, 20
        s_and_b32 s37, s36, 3
        s_lshl_b32 s37, s37, 18
        s_add_u32 s56, s56, s37
        s_lshr_b32 s37, s36, 2
        s_lshl_b32 s37, s37, 10
        s_add_u32 s56, s56, s37
        """)
        for g in range(G0, G0+GB): p(f"buffer_load_dword v6, v5, s[16:19], s56 offen offset:{g*128}")
    w3_dma(8)
    if VAR.get('ipf', 1):
        for g in range(G0+GB, 8): p(f"buffer_load_dword v6, v5, s[16:19], s56 offen offset:{g*128}")
    p(f"""
    v_lshrrev_b32 v4, 5, v1
    v_lshlrev_b32 v3, 9, v4
    v_bfe_u32 v4, v1, 2, 2
    v_lshl_add_u32 v3, v4, 6, v3
    v_bfe_u32 v4, v1, 4, 1
    v_lshl_add_u32 v3, v4, 5, v3
    v_and_b32 v4, 1, v1
    v_lshl_add_u32 v3, v4, 4, v3
    v_bfe_u32 v4, v1, 1, 1
    v_lshl_add_u32 v3, v4, 3, v3
    v_add_u32 v3, s61, v3
    s_waitcnt vmcnt({NP if GB == 0 else 0})
    """)
    w3_out(8)
    p("s_cmp_eq_u32 s35, 8\ns_cbranch_scc1 L_w3done")
    w3_dma(6)
    p("s_waitcnt vmcnt(0)")
    w3_out(6)
    p.label("L_w3done")
    if not VAR['fuse3']:
        p("s_endpgm"); return
    p(f"""
    s_lshr_b32 s33, s34, 1
    s_lshl_b32 s33, s33, 7                      ; (nt>>1)*128
    s_and_b32 s34, s34, 1
    s_lshl_b32 s34, s34, 4
    s_add_u32 s33, s33, s34
    s_lshr_b32 s34, s67, 10                     ; 0 or 32
    s_add_u32 s33, s33, s34
    s_lshl_b32 s34, s24, 2
    s_add_u32 s33, s33, s34
    s_add_u32 s33, s33, {WFL}
    v_mov_b32 v0, s11
    s_waitcnt vmcnt(0)
    buffer_store_dword v0, off, s[12:15], s33 sc1
    s_add_u32 s49, s33, {-OFL & 0xffffffff:#x}
    s_and_b32 s49, s49, -64
    """)
    flag_addr(p)
    if VAR.get('stop'): p("s_endpgm")
    p.label("L_g2w")
    p(f"s_mov_b32 s48, {OFL}")
    poll(p, "L_p0", 48, G+6, None, G+5, sleep=32)
    gen_g2(p, st)


FA = 4
def FWr(k): return 152 + 4*k if k < 20 else 68 + 4*(k-20)
def FRr(k): return 100 + 4*k if k < 13 else 232 + 4*(k-13)
FX = 84
FXU = 152
FL_ = 244; FO = 245; FT = 246
def poll(p, name, soff, voff, mask_hi_lo, tmp, bad=0, sleep=None):
    p(f"s_mov_b32 s47, 0")
    p.label(name)
    p(f"buffer_load_dword v{tmp}, v{voff}, s[12:15], s{soff} offen sc1\ns_add_u32 s47, s47, 1\ns_waitcnt vmcnt(0)")
    p(f"{'v_cmp_eq_u32 vcc, -1' if bad == -1 else 'v_cmp_ne_u32 vcc, s11'}, v{tmp}\ns_cbranch_vccz {name}_ok\ns_cmp_gt_u32 s47, 0x10000\ns_cbranch_scc1 {name}_ok\ns_sleep {sleep or VAR.get('psleep', 16)}\ns_branch {name}")
    p.label(name + "_ok")
def g2_scalars(p):
    p(f"""
    s_load_dwordx2 s[6:7], s[0:1], {KA_X}
    s_load_dwordx2 s[8:9], s[0:1], {KA_OUT}
    s_lshr_b32 s27, s26, 3
    s_lshl_b32 s28, s25, 2
    s_add_u32 s27, s27, s28                ; tb
    s_and_b32 s28, s26, 7                  ; nb
    s_and_b32 s29, s24, 1
    s_lshr_b32 s30, s24, 1
    s_lshl_b32 s32, s27, 1
    s_add_u32 s33, s32, s29
    s_xor_b32 s34, s33, 1
    s_lshl_b32 s32, s28, 1
    s_add_u32 s35, s32, s30
    s_xor_b32 s37, s35, 1
    s_mul_i32 s40, s33, {88*1024}
    s_mul_i32 s41, s34, {88*1024}
    s_mul_i32 s42, s35, {88*1024}
    s_mul_i32 s43, s37, {88*1024}
    s_add_u32 s40, s40, {A3}
    s_add_u32 s41, s41, {A3}
    s_add_u32 s42, s42, {W3F}
    s_add_u32 s43, s43, {W3F}
    s_mul_i32 s31, s24, {14*1024}
    s_add_u32 s31, s31, {32*1024}
    s_lshl_b32 s32, s24, 13
    s_lshl_b32 s44, s33, 15
    s_lshl_b32 s45, s35, 6
    s_add_u32 s44, s44, s45
    s_mov_b32 s49, 0
    s_waitcnt lgkmcnt(0)
    """)
def Wu(s_, i): return 152 + 4*(((s_ if s_ < 10 else s_-10))*2 + i)
def Wo(k, i): return (152 + 4*((k+4)*2 + i)) if k < 6 else (68 + 4*((k-6)*2 + i))
def Ur(s_, i):
    n = (s_ % 12)*2 + i
    return FRr(n) if n < 16 else 68 + 4*(n-16)
def w_loads(p, s0, s1, tag=None):
    for s_ in range(s0, s1):
        for i in range(2):
            if s_ == s0 or s_ % 4 == 0: p(f"s_add_u32 s{54+i}, s{42+i}, s31\ns_add_u32 s{54+i}, s{54+i}, {(s_//4)*4096}")
            p(f"buffer_load_dwordx4 {vr(Wu(s_, i),4)}, v{FL_}, s[12:15], s{54+i} offen offset:{(s_%4)*1024} sc1", tag=tag)
def gen_g2(p, st):
    p("s_setprio 3")
    g2_scalars(p)
    p.label("L_g2_redo")
    w_loads(p, 0, 10)
    p.label("L_g2")
    for i in range(2): p(f"s_add_u32 s{52+i}, s{40+i}, s31")
    for i in range(4): p(f"s_add_u32 s{56+i}, s{40+i}, s32")
    p(f"""
    s_min_u32 s46, s52, s53
    s_min_u32 s45, s56, s57
    v_lshrrev_b32 v2, 1, v1
    v_min_u32 v{FT+2}, 13, v2
    v_min_u32 v{FT+1}, 7, v2
    v_and_b32 v3, 1, v1
    v_mul_u32_u24 v3, {88*1024}, v3
    v_add_u32 v3, 1008, v3
    v_lshl_add_u32 v{FT+2}, v{FT+2}, 10, v3
    v_lshl_add_u32 v{FT+1}, v{FT+1}, 10, v3
    v_and_b32 v2, 31, v1
    """)
    bitswap23(p, 2, 2, 3)
    p(f"v_lshrrev_b32 v3, 5, v1\nv_lshlrev_b32 v3, 4, v3\nv_lshl_add_u32 v{FO}, v2, 10, v3\nv_mov_b32 v{FT+5}, 0")
    srd(p, 16, 6, 2048*1024); srd(p, 20, 8, 2048*1024)
    poll(p, "L_p1", 46, FT+2, None, FT+4, bad=-1)
    st(p, 4)
    p(f"s_setprio {VAR.get('prio_u', 0)}")
    NR = VAR.get('nr', 8)
    def ld(s):
        o = []
        if s and s % 4 == 0: o += [I(f"s_add_u32 s{52+i}, s{52+i}, 4096") for i in range(2)]
        for i in range(2):
            o.append(I(f"buffer_load_dwordx4 {vr(Ur(s, i),4)}, v{FL_}, s[12:15], s{52+i} offen offset:{(s%4)*1024} sc1", tag=f"g{s}"))
        return o
    def wo_ld(k):
        for i in range(2):
            p(f"s_add_u32 s47, s{58+i}, {(k//4)*4096}")
            p(f"buffer_load_dwordx4 {vr(Wo(k, i),4)}, v{FL_}, s[12:15], s47 offen offset:{(k%4)*1024} sc1", tag="wo")
    for s_ in range(NR): p.add(ld(s_))
    for s_ in range(14):
        p.wait(vm=[f"g{s_}", f"wu{s_}"])
        for n_, (a, b) in enumerate(((0,0), (0,1), (1,0), (1,1))):
            d = vr(FA + (a*2+b)*16, 16)
            p.add([mfma32(d, vr(Wu(s_, a),4), vr(Ur(s_, b),4), "0" if s_ == 0 else d)])
            r0 = Ur(s_, n_//2) + 2*(n_%2)
            if VAR.get('fullver', 1): p(f"v_max3_u32 v{FT+5}, v{FT+5}, v{r0}, v{r0+1}")
            elif n_ == 0: p(f"v_max3_u32 v{FT+5}, v{FT+5}, v{Ur(s_,0)}, v{Ur(s_,1)}")
        if s_+NR < 14: p.add(ld(s_+NR))
        if s_ < 4: w_loads(p, 10+s_, 11+s_, tag=f"wu{10+s_}")
        elif s_ < 12: wo_ld(s_-4)
    p(f"buffer_load_dwordx4 {vr(FX,4)}, v{FO}, s[16:19], s44 offen", tag="x")
    p(f"buffer_load_dwordx4 {vr(FX+4,4)}, v{FO}, s[16:19], s44 offen offset:32", tag="x")
    p(f"s_setprio 3\nv_cmp_eq_u32 vcc, -1, v{FT+5}\ns_cbranch_vccnz L_g2_again")
    p.label("L_g2_go")
    p.wait(vm="x")
    for d_ in range(7, -1, -1):
        p(f"v_and_b32 v{FXU+2*d_+1}, 0xffff0000, v{FX+d_}\nv_lshlrev_b32 v{FXU+2*d_}, 16, v{FX+d_}")
    st(p, 5)
    p("s_barrier")
    p("s_add_u32 s58, s56, 4096\ns_add_u32 s59, s57, 4096\ns_mov_b32 s49, 0")
    if VAR.get('direct', 0): p("s_branch L_p3b")
    p.label("L_p3")
    poll(p, "L_p2", 45, FT+1, None, FT+4, bad=-1, sleep=VAR.get('p3sleep', 4))
    p.label("L_p3b")
    for s_ in range(8):
        for i in range(2):
            p(f"buffer_load_dwordx4 {vr(FRr(s_*2+i),4)}, v{FL_}, s[12:15], s{56+i+2*(s_//4)} offen offset:{(s_%4)*1024} sc1", tag=f"o{s_}")
    p(f"v_mov_b32 v{FT+4}, 0\ns_add_u32 s49, s49, 1")
    for s_ in range(8):
        p.wait(vm=f"o{s_}")
        for k in range(0, 8, 2): p(f"v_max3_u32 v{FT+4}, v{FT+4}, v{FRr(2*s_+k//4)+k%4}, v{FRr(2*s_+k//4)+k%4+1}")
    p(f"v_cmp_eq_u32 vcc, -1, v{FT+4}\ns_cbranch_vccz L_p3_ok\ns_cmp_lt_u32 s49, 8\ns_cbranch_scc1 L_p3")
    p.label("L_p3_ok")
    st(p, 6)
    for i in range(1, 4):
        p(f"s_xor_b32 s46, s24, {i}\ns_mul_i32 s46, s46, 12288\ns_add_u32 s46, s46, {(i-1)*4096 + IMG}\nv_add_u32 v{FT+i}, s46, v{FL_}")
    p(f"s_mul_i32 s46, s24, 12288\ns_add_u32 s46, s46, {IMG}\nv_add_u32 v{FT}, s46, v{FL_}")
    for s_ in range(8):
        order = ((0,0), (0,1), (1,0), (1,1)) if s_ < 7 else ((0,1), (1,0), (1,1), (0,0))
        for (a, b) in order:
            d = vr(FA + (a*2+b)*16, 16)
            p.add([mfma32(d, vr(Wo(s_, a),4), vr(FRr(s_*2+b),4), d)])
    for i in range(1, 4):
        for k in range(4): p(f"ds_write_b128 v{FT+i}, {vr(FA+i*16+4*k,4)} offset:{k*1024}")
    for r in range(16): p(f"v_add_f32 v{FA+r}, v{FA+r}, v{FXU+r}")
    p("s_waitcnt lgkmcnt(0)\ns_barrier")
    for k in range(12): p(f"ds_read_b128 {vr(FA+16+4*k,4)}, v{FT} offset:{k*1024}", tag=f"r{k}")
    for k in range(12):
        p.wait(lg=f"r{k}")
        for e in range(4): p(f"v_add_f32 v{FA+(4*k+e)%16}, v{FA+(4*k+e)%16}, v{FA+16+4*k+e}")
    for d in range(8): p(f"v_cvt_pk_bf16_f32 v{FX+d}, v{FA+2*d}, v{FA+2*d+1}")
    p(f"buffer_store_dwordx4 {vr(FX,4)}, v{FO}, s[20:23], s44 offen")
    p(f"buffer_store_dwordx4 {vr(FX+4,4)}, v{FO}, s[20:23], s44 offen offset:32")
    st(p, 7)
    if st.on and VAR.get('dbg') is not None:
        D = VAR['dbg']
        p(f"s_cmp_lg_u32 s2, {D}\ns_cbranch_scc1 L_end\ns_cmp_lg_u32 s24, 0\ns_cbranch_scc1 L_end")
        p(f"s_load_dwordx2 s[6:7], s[0:1], {KA_DBG}\ns_waitcnt vmcnt(0)")
        sel = [(0,0,15),(0,0,1),(0,0,5),(0,0,7),(0,0,9),(1,0,15),(1,0,1),(1,0,2),(1,0,3),(1,4,1),(1,4,2),(1,4,3),(1,4,4),(1,4,5),(1,4,6),(1,4,7)]
        for i, (k, w, sl) in enumerate(sel):
            off = STAMP + k*0x80000 + (D*16 + w)*128 + sl*8 + 4
            p(f"v_mov_b32 v3, {off:#x}\nbuffer_load_dword v{100+i}, v3, s[12:15], 0 offen sc1")
        p("s_waitcnt vmcnt(0) lgkmcnt(0)")
        srd(p, 16, 6, 256)
        for i in range(16):
            p(f"v_sub_u32 v2, v{100+i}, v100\nbuffer_store_dword v2, off, s[16:19], 0 offset:{4*i}")
    p("s_endpgm")
    p.label("L_g2_again")
    p("s_add_u32 s49, s49, 1\ns_cmp_gt_u32 s49, 8\ns_cbranch_scc1 L_g2_go\ns_waitcnt vmcnt(0)\ns_branch L_g2_redo")


def placeholder_addrs(p, m):
    p(f"""
    s_and_b32 s34, s2, 7                   ; xcd
    s_lshr_b32 s35, s2, 3                  ; j
    s_lshr_b32 s53, s35, 3
    s_lshl_b32 s54, s34, 2
    s_add_u32 s53, s53, s54                ; head
    s_and_b32 s36, s35, 7
    s_lshl_b32 s36, s36, 2
    s_add_u32 s36, s36, s{m}
    s_lshl_b32 s37, s36, 7
    s_mul_i32 s36, s36, {2*88*1024}
    s_lshl_b32 s38, s53, 10
    s_add_u32 s36, s36, s38
    s_add_u32 s36, s36, {A3}
    s_lshl_b32 s53, s53, 2
    s_add_u32 s53, s53, s37
    s_add_u32 s53, s53, {OFL}
    s_add_u32 s37, s36, {88*1024}
    s_mul_i32 s38, s35, 9363
    s_lshr_b32 s38, s38, 16                ; j/7
    s_mul_i32 s39, s38, 7
    s_sub_u32 s39, s35, s39                ; fb
    s_add_u32 s38, s38, s54
    s_lshl_b32 s39, s39, 2
    s_add_u32 s39, s39, s{m}               ; ft
    s_lshl_b32 s54, s38, 7
    s_lshl_b32 s34, s39, 2
    s_add_u32 s54, s54, s34
    s_add_u32 s54, s54, {UFL}
    s_mul_i32 s38, s38, {2*88*1024}
    s_lshl_b32 s39, s39, 11
    s_add_u32 s38, s38, s39
    s_add_u32 s38, s38, {A3 + 32*1024}
    s_cmp_lt_u32 s35, 28
    s_cselect_b32 s38, s38, 0x7ff00000
    s_cselect_b32 s54, s54, 0x7ff00000
    s_add_u32 s39, s38, {88*1024}
    """)
```

```python
import sys
from common import *
HDR = open("parallel_sum__mha_block__mixer_gmlp__prompt.s.ref").read().split("; Override launch")[0]
NOTES = """; Generated by the author's own Python emitter (register allocation, waits and wait states computed there).
;     the bottom of the fp32 range) sends the block to L_pa_att_slow, which redoes it with the true row maximum.
"""
def build(kernels, path):
    s = HDR
    single = len(kernels) == 1 and kernels[0]['name'].startswith('parallel')
    for k in kernels:
        if single:
            s += f"; @launch grid=({k['grid']},1,1) block=({k['block']},1,1) lds={k['lds']}\n"; continue
        s += f"; @launch kernel={k['name']} grid=({k['grid']},1,1) block=({k['block']},1,1) lds={k['lds']}\n"
    if single: s += NOTES
    s += '.amdgcn_target "amdgcn-amd-amdhsa--gfx950"\n.text\n'
    seen = []
    for k in kernels:
        if k['name'] in seen: continue
        seen.append(k['name'])
        txt = kernel_text(k['name'], k['l'], k['vgpr'], k['sgpr'], k['accum'])
        import re
        txt = re.sub(r"\bL_(\w+)", lambda m: f"L_{k['name'][:2]}_{m.group(1)}", txt)
        s += txt
    s += 'CODE_END:\n    s_endpgm\n.section .rodata,"a"\n'
    seen = []
    for k in kernels:
        if k['name'] in seen: continue
        seen.append(k['name'])
        s += descriptor(k['name'], k['vgpr'], k['sgpr'], k['accum'])
    open(path, "w").write(s)
    return s
```

```python
from common import *
import f2
def ar(b, n): return vr(128+b, n)
import struct, math
def fh(f): return hex(struct.unpack("<I", struct.pack("<f", f))[0])
K1_LDS = 163840
RING = 65536
BIAS = 3072
CNT = 3072
C0 = -2.0*math.sqrt(2.0/math.pi)*1.4426950408889634
A0, A1, A2, A3_ = 4, 20, 36, 52
LA = 2
WB = 68
CSF = 92
CSA = 100
T = 68
WC = 92; STQ = 96
SEL = 108; XC = 112
R1, RI, C0R, C1R = 116, 117, 118, 119
VXD = 116
VXR = 112
VL, VPI, VQ, VB = 120, 121, 122, 123
VA = 124
RR = 52
SX, Q0, Q1 = 52, 56, 60
VAR = dict(prio=True, per=1, rot=6, cpf=40960)
WI, WQ, XS = "s[16:19]", "s[20:23]", "s[24:27]"
SXE, SIE, SQE = 60, 64, 96

def dma1(lds_s, lds_c, sr, vo, sb, se, c, tag):
    return [I(f"s_add_u32 m0, s{lds_s}, {lds_c}"), I(f"s_add_u32 s69, s{sb}, s{se}"),
            I(f"buffer_load_dwordx4 v{vo}, {sr}, s69 offen offset:{c} lds" if False else f"s_add_u32 s69, s69, {c}"),
            I(f"buffer_load_dwordx4 v{vo}, {sr}, s69 offen lds", tag=tag)]
def E_addr(ks): return RING + ((ks//8)*24 + (ks%8)*3)*1024
def Q_addr(ks): return RING + ks*2048
def Z_addr(ks): return (131072 + ks*2048) if ks < 16 else (32768 + (ks-16)*2048)
CSO = 256; RAW = 2048; TBL = 2560
SCR2 = 65536
VQP = 0
def dma_E(e):
    b = RING + e*24*1024
    return [dma1(58, b, WI, VPI, 80, SIE+e, 1792, f"E{e}"), dma1(58, b+1024, WI, VPI, 80, SIE+e, 1792+8*3584, f"E{e}"),
            dma1(58, b+2048, WQ, VQ, 81, SQE+e, 2048, f"E{e}")]
def dma_Q(e):
    b = RING + e*16384
    return [dma1(55, b, WQ, VQP, 82, SQE+e, 0, f"Q{e}"), dma1(55, b+1024, WQ, VQP, 82, SQE+e, 8*3072, f"Q{e}")]
def dma_Z(e):
    b = (131072 + e*16384) if e < 2 else (32768 + (e-2)*16384)
    return [dma1(55, b, WI, VPI, 80, SIE+e, 0, "Za"), dma1(55, b+1024, WI, VPI, 80, SIE+e, 8*3584, "Za")]
def x_dma(e):
    return [[I(f"s_add_u32 m0, s59, {(2*e % 4)*4096 + i*1024}"), I(f"s_add_u32 s69, s56, s{SXE+e}"),
             I(f"buffer_load_dwordx4 v{VXD+i}, {XS}, s69 offen lds", tag=f"X{e}")] for i in range(4)]
def flat(x): return sum(x, [])
def x_read(ks):
    return [I(f"ds_read_b128 {ar(4*ks,4)}, v{VXR+ks%4} offset:{((ks//4)%4)*4096}", tag=f"xr{ks}")]
class Addr:
    def __init__(self, base): self.base = base
    def off(self, addr, out, span=2048+1024+6*1024*2):
        if not (0 <= addr - self.base and addr - self.base + 1024 <= 65535):
            nb = addr if addr < self.base else addr
            d = (nb - self.base) & 0xffffffff
            out += [I(f"v_add_u32 v{VA+k}, {d:#x}, v{VA+k}") for k in range(4)]
            self.base = nb
        return addr - self.base
def tr_read(dst, areg, off, e2, tag):
    return [I(f"ds_read_b64_tr_b16 {vr(dst+2*e,2)}, v{areg} offset:{off+e2*e}", tag=tag) for e in range(2)]
def m16(d, b, first): return I(f"v_mfma_f32_16x16x32_bf16 {vr(d,4)}, {vr(SEL,4)}, {b}, {'0' if first else vr(d,4)}")
def stats_mfma(ks):
    x = 4*ks; z = ks == 0
    return [m16(SX, ar(x,4), z),
            I(f"v_mfma_f32_4x4x4_16b_bf16 {vr(Q0,4)}, {ar(x,2)}, {ar(x,2)}, {'0' if z else vr(Q0,4)}"),
            I(f"v_mfma_f32_4x4x4_16b_bf16 {vr(Q1,4)}, {ar(x+2,2)}, {ar(x+2,2)}, {'0' if z else vr(Q1,4)}")]
def wb(ks, ti): return WB + ((ks % (LA+1))*2 + ti)*4
def stl(st, k):
    q = Prog(); st(q, k); return q.l

def gemm_pass(accs, addr_of, base0, nori, tagp, e2, hooks=None, cs_tiles=None, stats=False, cs_s=9, cs_o=CSO):
    nt = len(accs)
    am = Addr(base0)
    def rd(ks, dst, regs, tag):
        o = []
        off = am.off(addr_of(ks), o)
        for ti in range(nt): o += tr_read(dst(ti), regs+ti, off, e2, tag)
        return o
    o = []
    for ks in range(LA): o += rd(ks, lambda ti: wb(ks,ti), VA, f"{tagp}{ks}")
    for ks in range(32):
        pre = W(lg=[f"{tagp}{ks}", f"xr{ks}"])
        mf = []
        for ti in range(nt):
            w = vr(wb(ks,ti),4); x = ar(4*ks,4); d = vr(accs[ti],16)
            mf.append(mfma32(d, x, w, "0" if ks == 0 else d) if nori else mfma32(d, w, x, "0" if ks == 0 else d))
        h0, h1, h2 = hooks(ks) if hooks else ([], [], [])
        post = list(h0)
        tail = []
        if ks % 4 == 0 and cs_tiles:
            post += rd(ks, lambda ti: CSF+4*ti, VA+2, f"c{tagp}{ks}")
        if ks+LA < 32: post += rd(ks+LA, lambda ti: wb(ks+LA,ti), VA, f"{tagp}{ks+LA}")
        post += h1
        if ks % 4 == 1 and cs_tiles:
            pre.lg.append(f"c{tagp}{ks-1}")
            for ti in range(nt): tail.append(m16(CSA+4*ti, vr(CSF+4*ti,4), ks == 1))
        if ks == 30 and cs_tiles:
            tail.append(I(f"v_lshl_add_u32 v3, v1, 2, s{cs_s}"))
            for ti in range(nt): tail.append(I(f"ds_write_b32 v3, v{CSA+4*ti} offset:{cs_o + cs_tiles[ti]*256}"))
        if stats:
            if VAR.get('stfirst'): mf += stats_mfma(ks); mf_all = True
            else: tail += stats_mfma(ks)
        tail += h2
        if stats and VAR.get('stfirst'): o += [pre] + mf + post + tail
        else: o += [pre] + mf[:1] + post + mf[1:] + tail
    return o

def phase1_hooks(st, early=False):
    sched = {}
    def spread(pcs, first, per):
        pcs = list(pcs); k = first
        while pcs:
            for _ in range(per):
                if pcs: sched.setdefault(k, []).append(pcs.pop(0))
            k += 1
    if not early: spread(dma_E(2) + dma_E(3), 0, 1)
    spread(x_dma(2) + dma_Q(0), 8-LA, VAR['per'])
    spread(x_dma(3) + dma_Q(1) + dma_Q(2), 16-LA, VAR['per'])
    spread(dma_Q(3), 24-LA, VAR['per'])
    def hooks(ks):
        e, r8 = divmod(ks, 8)
        h0 = []; h1 = []
        if r8 == 8-LA and e < 3:
            h0 = [W(vm=[f"X{e+1}", f"E{e+1}"], lg0=True), I("s_barrier")] + stl(st, 2+e)
        if r8 >= 8-LA and e < 3:
            k0 = 8*(e+1) + 2*(r8-(8-LA)); h1 += x_read(k0) + x_read(k0+1)
        if r8 < 4: h1 += x_read(8*e+4+r8)
        h2 = flat(sched.get(ks, []))
        if ks == 26: h2 = h2 + [I(f"buffer_load_dword v{A2+1}, off, s[44:47], 0 sc1", tag="tag")]
        return h0, h1, h2
    return hooks

def set_va(p, pair, base, mstride):
    sh = 7 if pair else 6
    p(f"""
    v_lshrrev_b32 v2, 5, v1
    v_lshlrev_b32 v{VA}, {sh+3}, v2
    v_bfe_u32 v3, v1, 2, 2
    v_lshl_add_u32 v{VA}, v3, {sh}, v{VA}
    v_bfe_u32 v3, v1, 4, 1
    v_lshl_add_u32 v{VA}, v3, 5, v{VA}
    v_and_b32 v3, 1, v1
    v_lshl_add_u32 v{VA}, v3, 4, v{VA}
    v_bfe_u32 v3, v1, 1, 1
    v_lshl_add_u32 v{VA}, v3, 3, v{VA}
    """)
    if pair: p(f"v_bfe_u32 v3, v1, 3, 1\nv_lshl_add_u32 v{VA}, v3, 6, v{VA}")
    p(f"""
    v_add_u32 v{VA}, {base}, v{VA}
    s_mul_i32 s34, s29, {mstride}
    v_xor_b32 v{VA+1}, 64, v{VA}
    v_add_u32 v{VA+2}, s34, v{VA}
    v_add_u32 v{VA+3}, s34, v{VA+1}
    """)

def corr_from(b, d, nori):
    o = [I(f"v_sub_f32 v{b}, 0, v{b}"),
         I(f"v_cvt_pk_bf16_f32 v{WC+1}, v{b}, 0"),
         I(f"v_lshlrev_b32 v{b+1}, 16, v{WC+1}"),
         I(f"v_sub_f32 v{b+1}, v{b}, v{b+1}"),
         I(f"v_cvt_pk_bf16_f32 v{WC}, v{b}, v{b+1}")]
    a_, b_ = (vr(XC,4), vr(WC,4)) if nori else (vr(WC,4), vr(XC,4))
    o.append(mfma32(vr(d,16), a_, b_, vr(d,16)))
    return o
def cs_reads(tiles, tag, base=0, stride=None, off=CSO):
    o = [I(f"v_lshlrev_b32 v2, 2, v1")]
    if base: o.append(I(f"v_add_u32 v2, {base}, v2"))
    for k, tl in enumerate(tiles):
        for w in range(4): o.append(I(f"ds_read_b32 v{T+4*k+w}, v2 offset:{(w*stride if stride else (w>>1)*16384 + (w&1)*4096) + off + tl*256}", tag=tag))
    return o
def cs_corr(accs, nori, tag):
    o = [I(f"v_mov_b32 v{WC+2}, 0"), I(f"v_mov_b32 v{WC+3}, 0"), W(lg=tag)]
    for k, d in enumerate(accs):
        b = T+4*k
        o += [I(f"v_add_f32 v{b}, v{b}, v{b+1}"), I(f"v_add_f32 v{b+2}, v{b+2}, v{b+3}"), I(f"v_add_f32 v{b}, v{b}, v{b+2}")]
        o += corr_from(b, d, nori)
    return o

def ln1_final(g, S, Q):
    o = Prog()
    o(f"""
    v_mul_f32 v{S}, {fh(1/512)}, v{S}
    v_cndmask_b32 v{S+1}, v{S}, 0, s[74:75]
    v_mul_f32 v{S+2}, v{S}, v{S}
    v_cvt_pk_bf16_f32 v{XC}, v{S+1}, v{S+1}
    v_fma_f32 v{Q}, v{Q}, s76, -v{S+2}
    v_and_b32 v{S+3}, 0xffff0000, v{XC}
    v_max_f32 v{Q}, 0, v{Q}
    v_sub_f32 v{S+3}, v{S+1}, v{S+3}
    v_add_f32 v{Q}, {fh(1e-5)}, v{Q}
    v_cvt_pk_bf16_f32 v{XC+1}, v{S+3}, 0
    v_rsq_f32 v{R1}, v{Q}
    v_mov_b32 v{XC+2}, 0
    v_mov_b32 v{XC+3}, 0
    """)
    rr = RR if g == 0 else A1
    tb = TBL + 256*g
    o(f"""
    v_lshl_add_u32 v3, v{VB}, 2, s9
    ds_write_b32 v3, v{R1} offset:{tb}
    v_lshrrev_b32 v3, 5, v1
    v_lshl_add_u32 v3, v3, 5, s9
    s_waitcnt lgkmcnt(0)
    """)
    for k in range(4): o(f"ds_read_b128 {vr(rr+4*k,4)}, v3 offset:{tb + (k//2)*64 + (k%2)*16}", tag="rr")
    if g == 0:
        o(f"v_mov_b32 v{C0R}, {fh(C0)}")
    else:
        o(f"""
        v_sqrt_f32 v{RI}, v{Q}
        v_mul_f32 v{C0R}, {fh(C0)}, v{R1}
        v_mul_f32 v{C1R}, v{R1}, v{R1}
        v_mul_f32 v{C1R}, v{C1R}, v{C0R}
        v_mul_f32 v{C1R}, {fh(0.044715)}, v{C1R}
        """)
    return o.l

def gelu_T(a, P0):
    o = []
    for g in range(0, 16, 4):
        rs = range(g, g+4); tt = lambda r: T + (r % 4)
        o += [I(f"v_mul_f32 v{tt(r)}, v{a+r}, v{a+r}") for r in rs]
        o += [I(f"v_fma_f32 v{tt(r)}, v{tt(r)}, v{C1R}, v{C0R}") for r in rs]
        o += [I(f"v_mul_f32 v{tt(r)}, v{tt(r)}, v{a+r}") for r in rs]
        o += [I(f"v_exp_f32 v{tt(r)}, v{tt(r)}") for r in rs]
        o += [I(f"v_fma_f32 v{tt(r)}, v{tt(r)}, v{RI}, v{RI}") for r in rs]
        o += [I(f"v_rcp_f32 v{tt(r)}, v{tt(r)}") for r in rs]
        o += [I(f"v_mul_f32 v{a+r}, v{a+r}, v{tt(r)}") for r in rs]
        o += [I(f"v_cvt_pk_bf16_f32 v{P0+r//2}, v{a+r}, v{a+r+1}") for r in (g, g+2)]
    return o
def gelu_N(a):
    o = []
    for g in range(0, 16, 4):
        rs = range(g, g+4); tt = lambda r: T + (r % 4)
        o += [I(f"v_mul_f32 v{a+r}, v{a+r}, v{RR+r}") for r in rs]
        o += [I(f"v_mul_f32 v{tt(r)}, v{a+r}, v{a+r}") for r in rs]
        o += [I(f"v_fma_f32 v{tt(r)}, v{tt(r)}, s77, v{C0R}") for r in rs]
        o += [I(f"v_mul_f32 v{tt(r)}, v{tt(r)}, v{a+r}") for r in rs]
        o += [I(f"v_exp_f32 v{tt(r)}, v{tt(r)}") for r in rs]
        o += [I(f"v_add_f32 v{tt(r)}, 1.0, v{tt(r)}") for r in rs]
        o += [I(f"v_rcp_f32 v{tt(r)}, v{tt(r)}") for r in rs]
        o += [I(f"v_mul_f32 v{a+r}, v{a+r}, v{tt(r)}") for r in rs]
    return o

def z2_stats():
    o = []
    a0, a1 = A0, A1
    for hf in range(2):
        S1 = lambda r: T + 4 + r
        S2 = lambda r: T + 12 + r
        for r in range(8):
            R = hf*8 + r
            o.append(I(f"v_mul_f32 v{S2(r)}, v{a0+R}, v{a0+R}"))
            o.append(I(f"v_add_f32 v{S1(r)}, v{a0+R}, v{a1+R}"))
        for r in range(8): o.append(I(f"v_fmac_f32 v{S2(r)}, v{a1+hf*8+r}, v{a1+hf*8+r}"))
        for S in (S1, S2):
            for r in range(4): o.append(I(f"v_permlane16_swap_b32 v{S(r)}, v{S(r+4)}"))
        for S in (S1, S2):
            for r in range(4): o.append(I(f"v_add_f32 v{S(r)}, v{S(r)}, v{S(r+4)}"))
        for S in (S1, S2):
            for r in range(2): o.append(I(f"v_add_f32_dpp v{S(r+4)}, v{S(r)}, v{S(r)} row_ror:8 row_mask:0xf bank_mask:0x3"))
        for S in (S1, S2):
            for r in range(2): o.append(I(f"v_add_f32_dpp v{S(r+4)}, v{S(r+2)}, v{S(r+2)} row_ror:8 row_mask:0xf bank_mask:0xc"))
        for S in (S1, S2): o.append(I(f"v_add_f32_dpp v{S(0)}, v{S(4)}, v{S(4)} row_half_mirror row_mask:0xf bank_mask:0x5"))
        for S in (S1, S2): o.append(I(f"v_add_f32_dpp v{S(0)}, v{S(5)}, v{S(5)} row_half_mirror row_mask:0xf bank_mask:0xa"))
        for S in (S1, S2): o.append(I(f"v_add_f32_dpp v{S(0)}, v{S(0)}, v{S(0)} quad_perm:[1,0,3,2] row_mask:0xf bank_mask:0xf"))
        for k, S in enumerate((S1, S2)): o.append(I(f"v_add_f32_dpp v{STQ+2*hf+k}, v{S(0)}, v{S(0)} quad_perm:[2,3,0,1] row_mask:0xf bank_mask:0xf"))
    return o

def prio(p, n):
    if VAR['prio']: p(f"s_setprio {n}")

def gen_kf(stamp=False):
    p = Prog()
    st = Stamper(stamp, 10, 0)
    st2 = Stamper(stamp, 10, 252, kid=1)
    entry_stamp(p, stamp)
    p(f"""
    s_cmp_ge_u32 s2, 256
    s_cbranch_scc1 L_end
    s_load_dwordx4 s[4:7], s[0:1], {KA_X}
    s_load_dwordx2 s[8:9], s[0:1], {KA_WIN}
    s_load_dwordx4 s[48:51], s[0:1], {KA_DBG}
    v_and_b32 v1, 63, v0
    v_lshrrev_b32 v2, 6, v0
    v_readfirstlane_b32 s28, v2                 ; wave 0..7
    s_mov_b32 s10, s28
    s_and_b32 s29, s2, 7
    s_lshr_b32 s30, s2, 3
    s_and_b32 s31, s29, 1
    s_lshl_b32 s31, s31, 3
    s_and_b32 s32, s30, 7
    s_add_u32 s31, s31, s32                     ; rb
    s_lshr_b32 s32, s29, 1
    s_lshl_b32 s32, s32, 2
    s_lshr_b32 s33, s30, 3
    s_add_u32 s32, s32, s33                     ; cg
    {"s_lshr_b32 s31, s30, 1" if VAR.get('xmap') else ""}
    {"s_and_b32 s33, s30, 1" if VAR.get('xmap') else ""}
    {"s_lshl_b32 s32, s29, 1" if VAR.get('xmap') else ""}
    {"s_add_u32 s32, s32, s33" if VAR.get('xmap') else ""}
    v_lshrrev_b32 v2, 3, v1
    v_lshrrev_b32 v3, 4, v1
    v_xor_b32 v{VXD}, v3, v1
    v_and_b32 v{VXD}, 7, v{VXD}
    v_lshlrev_b32 v{VXD}, 4, v{VXD}
    v_lshl_add_u32 v{VXD}, v2, 10, v{VXD}
    v_and_b32 v3, 1, v3
    v_lshlrev_b32 v3, 2, v3
    v_xor_b32 v3, v3, v1
    v_and_b32 v3, 7, v3
    v_lshlrev_b32 v{VB}, 4, v3
    v_mul_u32_u24 v{VPI}, 3584, v2
    v_add_u32 v{VPI}, v{VPI}, v{VB}
    v_mul_u32_u24 v{VQP}, 3072, v2
    v_add_u32 v{VQP}, v{VQP}, v{VB}
    v_lshrrev_b32 v2, 2, v1
    v_and_b32 v3, 3, v1
    v_lshlrev_b32 v3, 4, v3
    v_mul_u32_u24 v{VQ}, 3072, v2
    v_add_u32 v{VQ}, v{VQ}, v3
    s_and_b32 s29, s28, 3                       ; m tile
    s_lshr_b32 s30, s28, 2                      ; group
    s_lshl_b32 s33, s31, 2
    s_add_u32 s33, s33, s29                     ; tt
    s_lshl_b32 s56, s33, 15
    s_lshl_b32 s34, s30, 7
    s_add_u32 s56, s56, s34
    s_lshl_b32 s57, s29, 14
    s_lshl_b32 s34, s30, 12
    s_add_u32 s59, s57, s34
    s_mul_i32 s58, s28, 3072
    s_lshl_b32 s55, s28, 11
    v_xor_b32 v{VXD+1}, 64, v{VXD}
    v_add_u32 v{VXD+2}, 16384, v{VXD}
    v_add_u32 v{VXD+1}, 8192, v{VXD+1}
    v_add_u32 v{VXD+3}, 16384, v{VXD+1}
    s_mul_i32 s80, s28, {16*3584}
    s_lshl_b32 s35, s32, 7
    s_add_u32 s80, s80, s35
    s_mul_i32 s81, s28, {16*3072}
    s_lshl_b32 s35, s32, 6
    s_and_b32 s34, s32, 1
    s_mul_i32 s34, s34, {1024-64}
    s_add_u32 s82, s81, s34
    s_add_u32 s81, s81, s35
    s_add_u32 s82, s82, s35
    {["s_mov_b32 s35, 0", "s_add_u32 s35, s31, s32", "s_bfe_u32 s35, s2, 0x20001", "s_and_b32 s35, s2, 3", "s_lshl_b32 s35, s31, 1", "s_mov_b32 s35, s32", "s_mov_b32 s35, s31"][int(VAR['rot'])]}
    """)
    for e in range(4):
        p(f"s_add_u32 s34, s35, {e}\ns_and_b32 s34, s34, 3\ns_lshl_b32 s{SXE+e}, s34, 8\ns_mul_i32 s{SIE+e}, s34, {128*3584}\ns_mul_i32 s{SQE+e}, s34, {128*3072}")
    p(f"""
    s_cmp_lt_u32 s32, 14
    s_cselect_b32 s18, {512*3584}, 0
    s_cselect_b32 s42, {WS_USED}, 0
    s_mov_b32 s19, 0x20000
    s_mov_b32 s43, 0x20000
    s_waitcnt lgkmcnt(0)
    s_mov_b32 s16, s8
    s_mov_b32 s17, s9
    s_lshr_b32 s9, s29, 1
    s_lshl_b32 s9, s9, 14
    s_and_b32 s8, s29, 1
    s_lshl_b32 s8, s8, 12
    s_add_u32 s9, s9, s8
    """)
    srd(p, 24, 4, 2048*1024); srd(p, 20, 6, 512*3072)
    p.add(flat(x_dma(0))); p.add(flat(dma_E(0)))
    if VAR.get('wsoff'): p(f"s_add_u32 s50, s50, {VAR['wsoff']:#x}\ns_addc_u32 s51, s51, 0")
    srd(p, 12, 50, WS_USED); srd(p, 44, 48, 256)
    p("s_mov_b32 s40, s50\ns_mov_b32 s41, s51")
    st(p, 0); entry_store(p, st)
    p(f"v_and_b32 v{VB}, 31, v1")
    bitswap23(p, VB, VB, 3)
    p(f"""
    v_lshrrev_b32 v3, 1, v{VB}
    v_lshrrev_b32 v2, 5, v1
    v_xor_b32 v3, v3, v2
    v_and_b32 v3, 7, v3
    v_lshlrev_b32 v3, 4, v3
    v_lshl_add_u32 v{VXR}, v{VB}, 7, v3
    v_add_u32 v{VXR}, s57, v{VXR}
    v_xor_b32 v{VXR+1}, 32, v{VXR}
    v_xor_b32 v{VXR+2}, 64, v{VXR}
    v_xor_b32 v{VXR+3}, 96, v{VXR}
    """)
    if VAR.get('b00', False): p("s_barrier")
    p.add(flat(x_dma(1))); p.add(flat(dma_E(1)))
    if VAR.get('cpf'): code_prefetch(p, 28, 3, f"v{A2}", 36, "L_cpf")
    p("s_or_b32 s34, s2, s28\ns_cmp_lg_u32 s34, 0\ns_cbranch_scc1 L_notag")
    p(f"s_mov_b32 s34, {EPO}\nbuffer_load_dword v2, off, s[12:15], s34 sc1\ns_waitcnt vmcnt(0)\nv_add_u32 v2, 1, v2\nv_max_u32 v2, 1, v2")
    p("buffer_store_dword v2, off, s[44:47], 0 sc1\nbuffer_store_dword v2, off, s[12:15], s34 sc1")
    p.label("L_notag")
    p(f"""
    v_lshlrev_b32 v{VL}, 4, v1
    v_and_b32 v3, 3, v1
    v_cmp_eq_u32 vcc, 0, v3
    v_lshrrev_b32 v3, 2, v1
    v_lshrrev_b32 v2, 4, v1
    v_xor_b32 v3, v3, v2
    v_and_b32 v3, 1, v3
    v_cmp_eq_u32 s[34:35], 0, v3
    s_and_b64 vcc, vcc, s[34:35]
    v_mov_b32 v3, 0x3f803f80
    v_cndmask_b32 v{SEL}, 0, v3, vcc
    v_mov_b32 v{SEL+1}, v{SEL}
    v_mov_b32 v{SEL+2}, v{SEL}
    v_mov_b32 v{SEL+3}, v{SEL}
    v_cmp_lt_u32 s[74:75], 31, v1
    s_mov_b32 s76, {fh(1/512)}
    s_cmp_eq_u32 s30, 0
    s_cbranch_scc1 L_g1
    """)
    def start(p):
        if VAR.get('fine'):
            st(p, 10); p.wait(vm="X0"); st(p, 11); p.wait(vm="E0"); st(p, 12)
        p.wait(vm=["X0", "E0"]); p("s_barrier"); st(p, 1)
        for ks in range(4): p.add(x_read(ks))
    def get_tag(p, u):
        p.wait(vm="tag")
        p(f"v_readfirstlane_b32 s11, v{A2+1}\ns_cmp_lg_u32 s11, 0\ns_cbranch_scc1 L_tag{u}\ns_mov_b32 s34, 0")
        p.label(f"L_tagp{u}")
        p(f"buffer_load_dword v2, off, s[44:47], 0 sc1\ns_add_u32 s34, s34, 1\ns_waitcnt vmcnt(0)\nv_readfirstlane_b32 s11, v2\ns_cmp_gt_u32 s34, 0x10000\ns_cbranch_scc1 L_tag{u}\ns_cmp_eq_u32 s11, 0\ns_cbranch_scc1 L_tagp{u}")
        p.label(f"L_tag{u}")
    set_va(p, True, RING, 3072)
    p(f"""
    s_mov_b32 s77, {fh(C0*0.044715)}
    s_lshr_b32 s34, s32, 1
    s_lshl_b32 s83, s34, 19
    s_lshl_b32 s35, s33, 13
    s_add_u32 s83, s83, s35
    s_and_b32 s35, s32, 1
    s_lshl_b32 s35, s35, 11
    s_add_u32 s83, s83, s35
    s_add_u32 s83, s83, {Z2F}
    s_add_u32 s84, s83, 4096
    s_lshl_b32 s87, s33, 13
    s_add_u32 s87, s87, {STAT}
    s_lshl_b32 s35, s32, 9
    s_add_u32 s88, s87, s35
    s_mul_i32 s85, s33, {56*1024}
    s_lshl_b32 s34, s32, 12
    s_add_u32 s85, s85, s34
    s_add_u32 s85, s85, {Z1F}
    s_lshl_b32 s86, s32, 11
    s_lshl_b32 s34, s31, 7
    s_add_u32 s86, s86, s34
    s_lshl_b32 s34, s29, 2
    s_add_u32 s86, s86, s34
    s_add_u32 s86, s86, {PFL+16}
    s_lshl_b32 s52, s29, 11
    s_add_u32 s52, s52, {SCR2}
    """)
    if not (f2.VAR['sentA'] or f2.VAR.get('sentW')): f2.placeholder_addrs(p, 29)
    for r in range(0 if (f2.VAR['sentA'] or f2.VAR.get('sentW')) else 4): p(f"v_mov_b32 v{A2+4+r}, -1")
    ph = [I(f"buffer_store_dwordx4 {vr(A2+4,4)}, v{VL}, s[12:15], s{so} offen offset:{o_} sc1") for so, o_ in ((36,0),(37,0),(38,0),(38,1024),(39,0),(39,1024))]
    h1_ = phase1_hooks(st); PH = 99 if (f2.VAR['sentA'] or f2.VAR.get('sentW')) else VAR.get('phstep', 24)
    def hooksB(ks):
        x0, x1, x2 = h1_(ks)
        if PH >= 0 and PH <= ks < PH+6:
            if VAR.get('phmask'): x2 = x2 + [I(f"s_mov_b32 exec_lo, {VAR['phmask']:#x}"), I(f"s_mov_b32 exec_hi, {VAR['phmask']:#x}"), ph[ks-PH], I("s_mov_b64 exec, -1")]
            else: x2 = x2 + [ph[ks-PH]]
        return x0, x1, x2
    if PH < 0: p.add(ph)
    prio(p, 1)
    start(p)
    p.add(gemm_pass([A0, A1], E_addr, RING, True, "w", 512, hooks=hooksB, cs_tiles=[0, 1]))
    p(f"v_mov_b32 v2, 0\nv_lshlrev_b32 v3, 2, v1\nds_write_b32 v3, v2")
    p.wait(vm=["Q0","Q1","Q2","Q3"], lg0=True)
    p("s_barrier")
    st(p, 5)
    prio(p, 0)
    p(f"v_lshl_add_u32 v3, v1, 2, s9")
    p(f"ds_read_b32 v{T+16}, v3 offset:{RAW}", tag="raw"); p(f"ds_read_b32 v{T+20}, v3 offset:{RAW+256}", tag="raw")
    p.add(cs_reads([0, 1], "cs0"))
    get_tag(p, "b")
    p.add(flat(dma_Z(0) + dma_Z(1) + dma_Z(2) + dma_Z(3)))
    p.wait(lg="raw")
    p(f"v_mov_b32 v{VQ}, v{T+20}")
    p.add(ln1_final(0, T+16, VQ))
    p.add(cs_corr([A0, A1], True, "cs0"))
    p.wait(lg="rr")
    p.add(gelu_N(A0)); p.add(gelu_N(A1)); p.add(z2_stats())
    p.wait(vm=["Za"])
    p(f"""
    v_and_b32 v3, 1, v1
    v_cmp_eq_u32 vcc, 1, v3
    v_bfe_u32 v2, v1, 2, 1
    v_lshl_add_u32 v2, v3, 4, v2
    v_bfe_u32 v3, v1, 3, 1
    v_lshl_add_u32 v2, v3, 1, v2
    v_bfe_u32 v3, v1, 4, 2
    v_lshl_add_u32 v2, v3, 2, v2                ; row = 16*(l&1) + 8h + 4b4 + 2b3 + b2
    v_lshlrev_b32 v2, 4, v2
    v_cndmask_b32 v{STQ}, v{STQ}, v{STQ+2}, vcc
    v_cndmask_b32 v{STQ+2}, v{STQ+1}, v{STQ+3}, vcc
    v_mov_b32 v{STQ+1}, s11
    v_mov_b32 v{STQ+3}, s11
    buffer_store_dwordx4 {vr(STQ,4)}, v2, s[40:43], s88 offen sc1
    {"" if (f2.VAR['sentA'] or f2.VAR.get('sentW')) else "buffer_store_dword v%d, off, s[12:15], s53 sc1" % (STQ+1)}
    {"" if (f2.VAR['sentA'] or f2.VAR.get('sentW')) else "buffer_store_dword v%d, off, s[12:15], s54 sc1" % (STQ+1)}
    v_sqrt_f32 v{RI}, v{VQ}
    v_mul_f32 v{C0R}, {fh(C0)}, v{R1}
    v_mul_f32 v{C1R}, v{R1}, v{R1}
    v_mul_f32 v{C1R}, v{C1R}, v{C0R}
    v_mul_f32 v{C1R}, {fh(0.044715)}, v{C1R}
    s_lshl_b32 s34, s29, 2
    v_mov_b32 v{VB}, s34
    """)
    set_va(p, True, 131072, 2048)
    st(p, 6)
    p.wait(lg0=True)
    p("s_barrier")
    prio(p, VAR.get('pz1', 2))
    st(p, 7)
    p("s_mov_b32 s88, s32\ns_mov_b32 s89, 0x7ff00000\ns_cmp_ge_u32 s32, 14\ns_cbranch_scc1 L_b_done")
    PS = VAR.get('pstep', 8); FS = VAR.get('fstep', 16)
    X = 128
    def part_loads():
        o = [I("v_and_b32 v2, 31, v1"), I("v_lshlrev_b32 v2, 4, v2"), I("v_lshrrev_b32 v3, 5, v1"), I("v_mul_u32_u24 v3, 3584, v3"), I("v_add_u32 v2, v2, v3")]
        for k in range(7):
            o.append(I(f"buffer_load_dwordx4 {ar(4*k,4)}, v2, s[12:15], s87 offen offset:{k*512} sc1", tag="part"))
        return o
    def z2_final():
        q = Prog()
        b = X+28
        q(f"s_mov_b32 s34, 0\ns_mov_b32 s35, {fh(1/896)}")
        q.wait(vm="part")
        q.label("L_chk")
        q(f"v_xor_b32 v{b+2}, s11, v{X+1}\nv_xor_b32 v{b+3}, s11, v{X+3}\nv_or_b32 v{b+2}, v{b+2}, v{b+3}\nv_mov_b32 v{b}, v{X}\nv_mov_b32 v{b+1}, v{X+2}")
        for k in range(1, 7):
            q(f"v_add_f32 v{b}, v{b}, v{X+4*k}\nv_add_f32 v{b+1}, v{b+1}, v{X+4*k+2}")
            q(f"v_xor_b32 v{X+4*k+1}, s11, v{X+4*k+1}\nv_xor_b32 v{X+4*k+3}, s11, v{X+4*k+3}\nv_or3_b32 v{b+2}, v{b+2}, v{X+4*k+1}, v{X+4*k+3}")
        q(f"v_cmp_ne_u32 vcc, 0, v{b+2}\ns_cbranch_vccnz L_retry")
        q.label("L_chk_ok")
        q(f"""
        v_mov_b32 v{b+2}, v{b}
        v_mov_b32 v{b+3}, v{b+1}
        v_and_b32 v2, 31, v1
        v_permlane32_swap_b32 v{b}, v{b+2}
        v_permlane32_swap_b32 v{b+1}, v{b+3}
        v_lshl_add_u32 v2, v2, 2, s52
        v_add_f32 v{b}, v{b}, v{b+2}
        v_add_f32 v{b+1}, v{b+1}, v{b+3}
        v_mul_f32 v{b}, s35, v{b}
        v_mul_f32 v{b+2}, v{b}, v{b}
        v_fma_f32 v{b+1}, v{b+1}, s35, -v{b+2}
        v_max_f32 v{b+1}, 0, v{b+1}
        v_add_f32 v{b+1}, {fh(1e-5)}, v{b+1}
        v_rsq_f32 v{b+1}, v{b+1}
        v_lshrrev_b32 v3, 5, v1
        v_lshl_add_u32 v3, v3, 5, s52
        v_mul_f32_e64 v{b}, -v{b}, v{b+1}
        ds_write_b32 v2, v{b+1} offset:1024
        ds_write_b32 v2, v{b} offset:1152
        s_waitcnt lgkmcnt(0)
        """)
        R2 = X; NM = X+16
        for k in range(4): q(f"ds_read_b128 {vr(R2+4*k,4)}, v3 offset:{1024 + (k//2)*64 + (k%2)*16}", tag="r2")
        for k in range(4): q(f"ds_read_b128 {vr(NM+4*k,4)}, v3 offset:{1152 + (k//2)*64 + (k%2)*16}", tag="r2")
        q2 = Prog()
        q2.wait(lg="r2")
        for t_ in range(2):
            a = A0 + 16*t_
            for r in range(16): q2(f"v_fma_f32 v{a+r}, v{a+r}, v{R2+r}, v{NM+r}")
            for d in range(8): q2(f"v_cvt_pk_bf16_f32 v{a+d}, v{a+2*d}, v{a+2*d+1}")
            q2(f"buffer_store_dwordx4 {vr(a,4)}, v{VL}, s[12:15], s83 offen offset:{t_*1024}")
            q2(f"buffer_store_dwordx4 {vr(a+4,4)}, v{VL}, s[12:15], s84 offen offset:{t_*1024}")
        return q.l, q2.l
    pl = part_loads(); zf1, zf2 = z2_final()
    n2 = (len(zf2) + 3)//4
    def zhooks(ks):
        t_ = []
        h0 = []
        if ks == PS: t_ += pl[:8]
        if ks == PS+1: t_ += pl[8:10]
        if ks == PS+2: t_ += pl[10:]
        if ks == FS: t_ += zf1
        if FS < ks <= FS+4: t_ += zf2[(ks-FS-1)*n2:(ks-FS)*n2]
        if ks == VAR.get('zfl', 28): t_ += [I("v_mov_b32 v2, s11"), I("s_waitcnt vmcnt(0)"), I("buffer_store_dword v2, off, s[12:15], s86 sc1")]
        return h0, [], t_
    p.add(gemm_pass([A2, A3_], Z_addr, 131072, False, "z", 512, hooks=zhooks, cs_tiles=[0, 1], cs_s=52, cs_o=0))
    p(f"v_mov_b32 v2, 1\ns_waitcnt lgkmcnt(0)\nds_write_b32 v{VB}, v2 offset:128")
    st(p, 8)
    prio(p, VAR.get('pz2', 2))
    p("v_mov_b32 v2, 0")
    f2.flag_wait(p, "L_csz", 2, 128, 1, STQ, sleep=0)
    p.add(cs_reads([0, 1], "cs2", base=SCR2, stride=2048, off=0))
    p.add(cs_corr([A2, A3_], False, "cs2"))
    def z1_tile(p, k, ins=None):
        a = (A2, A3_)[k]
        gl = gelu_T(a, T+4+8*k)
        if ins: c_ = VAR.get('kvcut', 60); gl = gl[:c_] + ins + gl[c_:]
        p.add(gl)
        p(f"buffer_store_dwordx4 {vr(T+4+8*k,4)}, v{VL}, s[12:15], s85 offen offset:{k*2048}")
        p(f"buffer_store_dwordx4 {vr(T+8+8*k,4)}, v{VL}, s[12:15], s85 offen offset:{k*2048+1024}")
    z1_tile(p, 0)
    def mid(p, u, ins=None):
        p("s_cmp_ge_u32 s88, 14\ns_cbranch_scc1 L_b_mid" + u)
        z1_tile(p, 1, ins)
        p.label("L_b_mid" + u)
        st(p, 9)
    p("s_add_u32 s89, s86, 16")
    p.label("L_b_done")
    st2(p, 0)
    f2.gen_gemm(p, st2, mid)
    p.label("L_retry")
    p("s_add_u32 s34, s34, 1\ns_cmp_gt_u32 s34, 0x10000\ns_cbranch_scc1 L_chk_ok")
    p.add(part_loads())
    p("s_waitcnt vmcnt(0)\ns_branch L_chk")
    p.label("L_g1")
    set_va(p, False, RING+2048, 3072)
    p(f"""
    v_and_b32 v3, 1, v1
    v_cmp_eq_u32 s[70:71], 1, v3
    v_and_b32 v3, 2, v1
    v_cmp_eq_u32 s[72:73], 2, v3
    s_mul_i32 s87, s32, {2*KVH}
    s_mul_i32 s34, s33, {KVG}
    s_add_u32 s87, s87, s34
    s_add_u32 s87, s87, {KV}
    s_lshr_b32 s34, s32, 1
    s_lshl_b32 s85, s34, 18
    s_lshl_b32 s35, s33, 10
    s_add_u32 s85, s85, s35
    s_mul_i32 s86, s34, {4*KVH}
    s_mul_i32 s35, s33, {KVG}
    s_add_u32 s86, s86, s35
    s_add_u32 s86, s86, {KV}
    s_bitcmp1_b32 s32, 0
    s_cselect_b32 s85, s86, s85
    s_mov_b32 s86, {KVH}
    s_cselect_b32 s86, s86, 0x10000
    s_mov_b32 s78, {fh(0.25*1.4426950408889634)}
    s_cselect_b32 s78, 1.0, s78                  ; scale
    s_lshl_b32 s83, s32, 11
    s_lshl_b32 s34, s31, 7
    s_add_u32 s83, s83, s34
    s_add_u32 s83, s83, {PFL}
    """)
    EA = VAR.get('ea', 0)
    if EA & 1: p.add(flat(dma_E(2) + dma_E(3)))
    if EA & 2:
        p(f"""
        s_and_b32 s34, s32, 3
        s_lshl_b32 s34, s34, 2
        s_add_u32 s34, s34, s29
        s_lshl_b32 s34, s34, 13
        s_lshl_b32 s35, s31, 17
        s_add_u32 s34, s34, s35
        v_lshrrev_b32 v2, 4, v1
        v_and_b32 v3, 15, v1
        v_lshlrev_b32 v3, 4, v3
        v_lshl_add_u32 v2, v2, 10, v3               ; 4 rows x 256B
        """)
        for e in (2, 3):
            for hf in range(2):
                p(f"s_add_u32 s35, s34, s{SXE+e}\ns_add_u32 s35, s35, {hf*4096}\nbuffer_load_dwordx4 {vr(A2+8,4)}, v2, {XS}, s35 offen")
    if EA & 4:
        p(f"""
        s_and_b32 s34, s31, 7
        s_lshl_b32 s34, s34, 2
        s_add_u32 s34, s34, s29
        s_mul_i32 s34, s34, {16*3072}
        s_mul_i32 s35, s28, {16*3072}
        s_sub_u32 s35, s82, s35
        s_add_u32 s34, s34, s35
        buffer_load_dwordx4 {vr(A2+8,4)}, v{VQP}, {WQ}, s34 offen
        s_add_u32 s34, s34, {8*3072}
        buffer_load_dwordx4 {vr(A2+8,4)}, v{VQP}, {WQ}, s34 offen
        """)
    prio(p, 1)
    start(p)
    p.add(gemm_pass([A0], lambda ks: E_addr(ks)+2048, RING+2048, True, "w", 256, hooks=phase1_hooks(st, early=bool(EA & 1)), cs_tiles=[2], stats=True))
    p(f"""
    v_add_f32 v{Q0}, v{Q0}, v{Q1}
    v_add_f32 v{Q0+1}, v{Q0+1}, v{Q1+1}
    v_add_f32 v{Q0+2}, v{Q0+2}, v{Q1+2}
    v_add_f32 v{Q0+3}, v{Q0+3}, v{Q1+3}
    v_cndmask_b32 v{Q0}, v{Q0}, v{Q0+1}, s[70:71]
    v_cndmask_b32 v{Q0+2}, v{Q0+2}, v{Q0+3}, s[70:71]
    ds_write_b32 v3, v{SX} offset:{RAW}
    v_cndmask_b32 v{Q0}, v{Q0}, v{Q0+2}, s[72:73]
    v_mov_b32 v{Q1}, v{Q0}
    v_permlane32_swap_b32 v{Q0}, v{Q1}
    v_add_f32 v{Q0}, v{Q0}, v{Q1}
    ds_write_b32 v3, v{Q0} offset:{RAW+256}
    """)
    p.wait(vm=["Q0","Q1","Q2","Q3"], lg0=True)
    p("s_barrier")
    st(p, 5)
    p.add(cs_reads([2], "cs1"))
    get_tag(p, "a")
    p.add(ln1_final(1, SX, Q0))
    p.add(cs_corr([A0], True, "cs1"))
    set_va(p, True, RING, 2048)
    zp = gemm_pass([A2, A3_], Q_addr, RING, False, "q", 512, cs_tiles=[5, 6])
    e = Prog()
    e.add(flat(dma_Z(0) + dma_Z(1) + dma_Z(2) + dma_Z(3)))
    if VAR.get('tlb'):
        e(f"v_min_u32 v3, 27, v1\nv_lshlrev_b32 v3, 20, v3\nv_add_u32 v3, 0xfff80, v3\nbuffer_load_dword v{VQ}, v3, s[12:15], 0 offen")
    e(f"""
    s_mov_b32 s77, {KVH}
    v_bfe_u32 v3, v1, 4, 1
    v_mul_lo_u32 v{VB}, v3, s77
    v_and_b32 v3, 15, v1
    v_lshl_add_u32 v{VB}, v3, 4, v{VB}
    v_lshrrev_b32 v3, 5, v1
    v_lshl_add_u32 v{VB}, v3, 8, v{VB}
    """)
    e.wait(lg="rr")
    for r in range(16): e(f"v_mul_f32 v{A0+r}, v{A0+r}, v{A1+r}")
    for d in range(8): e(f"v_cvt_pk_bf16_f32 v{A0+d}, v{A0+2*d}, v{A0+2*d+1}")
    e(f"v_mul_f32 v{R1}, s78, v{R1}")
    e.wait(vm=["Za"])
    e(f"buffer_store_dwordx4 {vr(A0,4)}, v{VB}, s[12:15], s87 offen offset:1024")
    e(f"buffer_store_dwordx4 {vr(A0+4,4)}, v{VB}, s[12:15], s87 offen offset:1536")
    p.add(interleave(zp, e.l, per_gap=VAR.get('egap', 2), start=1))
    st(p, 6)
    p.wait(lg0=True)
    p("s_barrier")
    prio(p, 2)
    st(p, 7)
    p.add(cs_reads([5, 6], "cs3"))
    p.add(cs_corr([A2, A3_], False, "cs3"))
    for a in (A2, A3_):
        for r in range(16): p(f"v_mul_f32 v{a+r}, v{a+r}, v{R1}")
        for d in range(8): p(f"v_cvt_pk_bf16_f32 v{a+d}, v{a+2*d}, v{a+2*d+1}")
        p(f"buffer_store_dwordx4 {vr(a,4)}, v{VL}, s[12:15], s85 offen\ns_add_u32 s85, s85, s86")
        p(f"buffer_store_dwordx4 {vr(a+4,4)}, v{VL}, s[12:15], s85 offen\ns_add_u32 s85, s85, s86")
    st(p, 8); st(p, 9)
    st2(p, 0)
    f2.gen_attention(p, st2)
    p.label("L_end")
    p("s_endpgm")
    return p

def split_groups(l):
    lab = {x.op: i for i, x in enumerate(l) if getattr(x, 'kind', '') == "label"}
    b = next(i for i, x in enumerate(l) if getattr(x, 'kind', '') == "branch" and x.target == "L_g1")
    return b, lab["L_g1"]
def kf_paths(l):
    b, g1 = split_groups(l)
    lab = {x.op: i for i, x in enumerate(l) if x.kind == "label"}
    B = l[:lab["L_idle"]] + l[lab["L_g2"]:lab["L_retry"]]
    A = l[:b] + l[g1:]
    e = next(i for i, x in enumerate(A) if x.kind == "misc" and x.base == "s_endpgm")
    return [linearize(B, {"L_g_loop": 2}), l[lab["L_idle"]:lab["L_retry"]], linearize(A[:e+1], {"L_att_loop": 3})]
def finalize_kf(p, verbose=False):
    l = p.l
    b, g1 = split_groups(l)
    head = l[:b+1]
    r0 = resolve_waits(l[:g1])
    r1 = resolve_waits(head + l[g1:])
    nh = len(resolve_waits(head))
    p2 = Prog(); p2.l = r0 + r1[nh:]
    return finalize("kf", p2, paths=kf_paths, verbose=verbose)
KF_DESC = dict(name="kf_kernel", vgpr=256, sgpr=102, accum=256, grid=256, block=512, lds=K1_LDS)
```

```python
from common import *
SOLO = True
import struct
def float_hex(f): return hex(struct.unpack("<I", struct.pack("<f", f))[0])

IMG = 1024
LDS_FLAG = 0
LDS_STG = 131072
K2_LDS = 163840
VAR = dict(margin=100.0, U=8, prio_att=1, prio_g=0, fuse3=True, sentA=False, sentW=1, cdelay=2)

QA, QB = 4, 8
CA, CB = 16, 32
OA, OB = 48, 64
SA, SB = 80, 96
PA, PB = 112, 120
KR = [128, 132, 136, 140]
V0R = [144, 148, 152, 156]
V1R = [160, 164, 168, 172]
AK, AV0, AV1 = 176, 177, 178
GK, GV0, GV1 = 179, 180, 181
MA, MB = 182, 183
TM = 184
FL = 188
PF, PFA = 190, 191
STT = 192

def max16(p, S, M, first):
    if first:
        p(f"v_max3_f32 v{M}, v{S}, v{S+1}, v{S+2}")
        p(f"v_max_f32 v{M}, v{M}, v{S+3}")
        r = range(4, 16, 2)
    else: r = range(0, 16, 2)
    for k in r: p(f"v_max3_f32 v{M}, v{M}, v{S+k}, v{S+k+1}")

def flag_wait(p, name, addr_v, off, val, tmpq, sleep=1):
    p.label(name)
    p(f"ds_read_b128 {vr(tmpq,4)}, v{addr_v} offset:{off}")
    p("s_waitcnt lgkmcnt(0)")
    p(f"v_min_u32 v{tmpq}, v{tmpq}, v{tmpq+1}\nv_min3_u32 v{tmpq}, v{tmpq}, v{tmpq+2}, v{tmpq+3}")
    p(f"v_cmp_gt_u32 vcc, {val}, v{tmpq}")
    p(f"s_cbranch_vccz {name}_ok\ns_sleep {sleep}\ns_branch {name}")
    p.label(name + "_ok")

def spin1(p, name, addr_v, off, val, tmp):
    p.label(name)
    p(f"ds_read_b32 v{tmp}, v{addr_v} offset:{off}")
    p("s_waitcnt lgkmcnt(0)")
    p(f"v_cmp_gt_u32 vcc, {val}, v{tmp}")
    p(f"s_cbranch_vccz {name}_ok\ns_sleep 1\ns_branch {name}")
    p.label(name + "_ok")

def att_loop_body(U):
    out = []
    def blk(S, P, So, Po, Mqk, Mpv1, Mpv0, extra):
        e = lambda k: I(f"v_exp_f32 v{S+k}, v{S+k}")
        c = lambda k: I(f"v_cvt_pk_bf16_f32 v{P+k}, v{S+2*k}, v{S+2*k+1}")
        co = lambda k: I(f"v_cvt_pk_bf16_f32 v{Po+k}, v{So+2*k}, v{So+2*k+1}")
        o = []
        pq, p1, p0 = VAR.get('pos', (2, 6, 12))
        cs = VAR.get('cs', {0: [-6], 1: [-7], 3: [0], 5: [1], 7: [2], 9: [3], 11: [4], 13: [5]})
        if VAR.get('perm'):
            c = lambda k: I(f"v_perm_b32 v{P+k}, v{S+2*k+1}, v{S+2*k}, s45")
            co = lambda k: I(f"v_perm_b32 v{Po+k}, v{So+2*k+1}, v{So+2*k}, s45")
        for k in range(16):
            o.append(e(k))
            for j in cs.get(k, []):
                if j < 0: o.append(co(-j))
            if k == pq and not VAR.get('nom'): o.append(Mqk)
            if k == p1 and not VAR.get('nom'): o.append(Mpv1)
            if k == p0 and not VAR.get('nom'): o.append(Mpv0)
            o += extra.get(k, [])
            for j in cs.get(k, []):
                if j >= 0: o.append(c(j))
        return o
    for u in range(U):
        s0 = u % 4; s1 = (u+1) % 4; sm = (u-1) % 4
        exA = {}; exB = {}
        if u % 2 == 0:
            rd = []
            for d in (2, 3):
                o_ = (u+d-1)*KVT
                rd += [I(f"ds_read_b128 {vr(KR[(u+d)%4],4)}, v{AK} offset:{o_}"),
                       I(f"ds_read_b128 {vr(V0R[(u+d)%4],4)}, v{AV0} offset:{o_}"),
                       I(f"ds_read_b128 {vr(V1R[(u+d)%4],4)}, v{AV1} offset:{o_}")]
            exA = {VAR.get('rdpos', 6): rd}
            if VAR.get('nods'): exA = {}
        if u == U-1:
            exB = {2: [I("s_add_u32 s41, s41, 1")], 3: [I("s_bitcmp1_b32 s45, s41" if VAR['sentA'] else "s_cmp_eq_u32 s41, 1")], 4: [I("s_cbranch_scc1 L_att_sync2"), I("L_att_sync2_ret:")],
                   5: [I(f"v_mov_b32 v{TM}, s41")], 7: [I(f"ds_write_b32 v{FL+1}, v{TM} offset:80")],
                   6: [I(f"v_add_u32 v{AK}, {U*KVT}, v{AK}")], 8: [I(f"v_add_u32 v{AV0}, {U*KVT}, v{AV0}")], 10: [I(f"v_add_u32 v{AV1}, {U*KVT}, v{AV1}")],
                   14: [I(f"s_cmp_lt_u32 s41, {64//U}")]}
        if u % 2 == 1: exB[0] = [I("s_waitcnt lgkmcnt(0)")]
        out += blk(SA, PA, SB, PB, mfma32(vr(SB,16), vr(KR[s0],4), vr(QB,4), vr(CB,16)),
                   mfma32(vr(OB,16), vr(V1R[sm],4), vr(PB+4,4), vr(OB,16)),
                   mfma32(vr(OA,16), vr(V0R[s0],4), vr(PA,4), vr(OA,16)), exA)
        out += blk(SB, PB, SA, PA, mfma32(vr(SA,16), vr(KR[s1],4), vr(QA,4), vr(CA,16)),
                   mfma32(vr(OA,16), vr(V1R[s0],4), vr(PA+4,4), vr(OA,16)),
                   mfma32(vr(OB,16), vr(V0R[s0],4), vr(PB,4), vr(OB,16)), exB)
    return out

def k2_ids(p):
    p(f"""
    s_mov_b32 s24, s10
    s_and_b32 s25, s2, 7
    s_lshr_b32 s26, s2, 3
    s_lshr_b32 s27, s26, 3
    s_lshl_b32 s28, s25, 2
    s_add_u32 s27, s27, s28                ; head
    s_and_b32 s28, s26, 7                  ; qb
    """)
def gen_attention(p, st):
    U = VAR['U']
    k2_ids(p)
    p(f"""
    s_mul_i32 s30, s27, {KVH}
    s_add_u32 s30, s30, {KV}
    s_lshl_b32 s31, s27, 16
    s_lshl_b32 s32, s28, 3
    s_lshl_b32 s33, s24, 1
    s_add_u32 s32, s32, s33
    s_lshl_b32 s33, s32, 10
    s_add_u32 s31, s31, s33
    v_lshlrev_b32 v{GK}, 4, v1
    v_mov_b32 v{FL}, {LDS_FLAG}
    s_lshl_b32 s37, s24, 2
    v_add_u32 v{FL+1}, s37, v{FL}
    v_mov_b32 v{TM+1}, 1
    s_waitcnt vmcnt(0)
    ds_write_b32 v{FL+1}, v{TM+1} offset:112
    """)
    st(p, 8)
    p(f"""
    v_and_b32 v{TM}, 31, v1
    v_lshrrev_b32 v{TM+1}, 5, v1
    v_lshlrev_b32 v{TM+1}, 8, v{TM+1}
    v_lshl_add_u32 v{TM+1}, v{TM}, 4, v{TM+1}
    v_and_b32 v{TM+2}, 27, v{TM}
    v_cmp_eq_u32 vcc, 16, v{TM+2}
    v_mov_b32 v{TM+2}, 2064
    v_mov_b32 v{TM+3}, 2048
    v_cndmask_b32 v{TM+2}, v{TM+2}, v{TM+3}, vcc
    v_mov_b32 v{TM+3}, 0x3f803f80
    v_cndmask_b32 v{PF}, 0, v{TM+3}, vcc
    v_cmp_gt_u32 vcc, 16, v{TM}
    v_add_u32 v{GV0}, 1024, v{TM+1}
    v_add_u32 v{GV1}, 1536, v{TM+1}
    v_cndmask_b32 v{AV0}, v{TM+2}, v{GV0}, vcc
    v_cndmask_b32 v{AV1}, v{TM+2}, v{GV1}, vcc
    s_mov_b32 s48, 0xffff
    s_mov_b32 s49, 0xffff
    """)
    for r in V0R[:2] + V1R[:2]:
        for e in range(4): p(f"v_mov_b32 v{r+e}, v{PF}")
    ones_zeros(p, 0, 12, MA, STT+8)
    if VAR.get('sentW'):
        p(f"""
        s_mul_i32 s33, s32, {88*1024}
        s_lshl_b32 s34, s27, 10
        s_add_u32 s33, s33, s34
        s_add_u32 s33, s33, {A3}
        s_add_u32 s39, s33, {88*1024}
        s_lshl_b32 s35, s32, 6
        s_lshl_b32 s34, s27, 2
        s_add_u32 s35, s35, s34
        s_add_u32 s35, s35, {OFL}
        s_mul_i32 s42, s26, 9363
        s_lshr_b32 s42, s42, 16                ; j/7
        s_mul_i32 s43, s42, 7
        s_sub_u32 s43, s26, s43                ; fb
        s_lshl_b32 s44, s25, 2
        s_add_u32 s42, s42, s44
        s_lshl_b32 s43, s43, 2
        s_add_u32 s43, s43, s24                ; ft
        s_mul_i32 s46, s42, {2*88*1024}
        s_lshl_b32 s44, s43, 11
        s_add_u32 s46, s46, s44
        s_add_u32 s46, s46, {A3 + 32*1024}
        s_lshl_b32 s42, s42, 7
        s_lshl_b32 s43, s43, 2
        s_add_u32 s42, s42, s43
        s_add_u32 s42, s42, {UFL}
        s_add_u32 s47, s46, {88*1024}
        s_cmp_lt_u32 s26, 28
        s_cselect_b32 s46, s46, 0x7ff00000
        s_cselect_b32 s47, s47, 0x7ff00000
        s_cselect_b32 s42, s42, 0x7ff00000
        s_mov_b32 s43, s47
        """)
        for r in range(4): p(f"v_mov_b32 v{STT+r}, -1")
        def ph_stores():
            p(f"buffer_store_dwordx4 {vr(STT,4)}, v{GK}, s[12:15], s33 offen sc1\nbuffer_store_dwordx4 {vr(STT,4)}, v{GK}, s[12:15], s39 offen sc1")
            for k in range(4): p(f"buffer_store_dwordx4 {vr(STT,4)}, v{GK}, s[12:15], s{(46, 43)[k//2]} offen offset:{(k%2)*1024} sc1")
        def ph_flags():
            p(f"v_mov_b32 v{STT+4}, s11\nv_mov_b32 v{STT+5}, 1\ns_waitcnt vmcnt(0)\nbuffer_store_dword v{STT+4}, off, s[12:15], s35 sc1\nbuffer_store_dword v{STT+4}, off, s[12:15], s42 sc1\nds_write_b32 v{FL+1}, v{STT+5} offset:64")
    p("s_cmp_lg_u32 s24, 0\ns_cbranch_scc1 " + ("L_att_ph" if VAR.get('sentW') else "L_att_go"))
    flag_wait(p, "L_att_ad", FL, 112, 1, TM, sleep=0)
    p(f"""
    v_mov_b32 v{TM}, s11
    buffer_store_dword v{TM}, off, s[12:15], s83 sc1
    s_lshr_b32 s34, s27, 2
    s_lshl_b32 s34, s34, 12
    s_add_u32 s34, s34, {PFL}
    v_and_b32 v{MA}, 31, v1
    v_lshlrev_b32 v{MA}, 7, v{MA}
    """)
    if VAR.get('pp', 0):
        p("s_mov_b32 s47, 0")
        for k in range(2): p(f"buffer_load_dword v{200+k}, v{MA}, s[12:15], s34 offen sc1\ns_sleep {VAR.get('ppsleep', 3)}")
        p.label("L_att_p")
        for k in range(3):
            p(f"buffer_load_dword v{200+(k+2)%3}, v{MA}, s[12:15], s34 offen sc1\ns_waitcnt vmcnt(2)\nv_cmp_ne_u32 vcc, s11, v{200+k}\ns_cbranch_vccz L_att_p_ok\ns_sleep {VAR.get('ppsleep', 3)}")
        p("s_add_u32 s47, s47, 1\ns_cmp_lt_u32 s47, 0x8000\ns_cbranch_scc1 L_att_p")
        p.label("L_att_p_ok")
    else:
        if VAR.get('sentW'): ph_stores(); ph_flags()
        if VAR.get('q0'): p(f"s_sleep {VAR['q0']}")
        poll(p, "L_att_p", 34, MA, None, TM, sleep=VAR.get('qsleep', 4))
    p(f"v_mov_b32 v{TM}, 1\nds_write_b32 v{FL}, v{TM} offset:96")
    if VAR.get('sentW'):
        p("s_branch L_att_go")
        p.label("L_att_ph")
        ph_stores(); ph_flags()
    p.label("L_att_go")
    spin1(p, "L_att_gw", FL, 96, 1, TM)
    st(p, 9)
    p(f"buffer_load_dwordx4 {vr(QA,4)}, v{GK}, s[12:15], s31 offen sc1")
    p(f"buffer_load_dwordx4 {vr(QB,4)}, v{GK}, s[12:15], s31 offen offset:1024 sc1")
    p(f"buffer_load_dwordx4 {vr(KR[0],4)}, v{GK}, s[12:15], s30 offen sc1")
    p(f"buffer_load_dwordx4 {vr(KR[1],4)}, v{GK}, s[12:15], s30 offen offset:{KVG} sc1")
    p("s_mov_b64 exec, s[48:49]")
    for t in range(2):
        p(f"buffer_load_dwordx4 {vr(V0R[t],4)}, v{GV0}, s[12:15], s30 offen offset:{t*KVG} sc1")
        p(f"buffer_load_dwordx4 {vr(V1R[t],4)}, v{GV1}, s[12:15], s30 offen offset:{t*KVG} sc1")
    p(f"""
    s_mov_b64 exec, -1
    s_lshl_b32 s38, s24, 11
    s_add_u32 s38, s38, s30
    s_mul_i32 s37, s24, {KVT}
    """)
    for i in range(3):
        p(f"s_add_u32 m0, s37, {(1+4*i)*KVT}\ns_add_u32 s36, s38, {(2+4*i)*KVG}")
        for k in range(2): p(f"buffer_load_dwordx4 v{GK}, s[12:15], s36 offen offset:{k*1024} sc1 lds")
    oz_write(p, 0, 12, MA, STT+8)
    p(f"s_setprio {VAR.get('prio_pro', VAR['prio_att'])}")
    if VAR['sentA']:
        p(f"""
        s_mul_i32 s33, s32, {88*1024}
        s_lshl_b32 s34, s27, 10
        s_add_u32 s33, s33, s34
        s_add_u32 s33, s33, {A3}
        s_add_u32 s39, s33, {88*1024}
        s_lshl_b32 s35, s32, 6
        s_lshl_b32 s34, s27, 2
        s_add_u32 s35, s35, s34
        s_add_u32 s35, s35, {OFL}
        s_mul_i32 s42, s26, 9363
        s_lshr_b32 s42, s42, 16                ; j/7
        s_mul_i32 s43, s42, 7
        s_sub_u32 s43, s26, s43                ; fb
        s_lshl_b32 s44, s25, 2
        s_add_u32 s42, s42, s44
        s_lshl_b32 s43, s43, 2
        s_add_u32 s43, s43, s24                ; ft
        s_mul_i32 s46, s42, {2*88*1024}
        s_lshl_b32 s44, s43, 11
        s_add_u32 s46, s46, s44
        s_add_u32 s46, s46, {A3 + 32*1024}
        s_lshl_b32 s42, s42, 7
        s_lshl_b32 s43, s43, 2
        s_add_u32 s42, s42, s43
        s_add_u32 s42, s42, {UFL}
        s_add_u32 s47, s46, {88*1024}
        s_mov_b32 s45, {2 + (1 << VAR.get('s3it', 2))}
        s_mov_b32 s44, 0
        s_cmp_lt_u32 s26, 28
        s_cbranch_scc1 L_att_nopre
        """)
        for r in range(4): p(f"v_mov_b32 v{STT+r}, -1")
        p(f"buffer_store_dwordx4 {vr(STT,4)}, v{GK}, s[12:15], s33 offen sc1\nbuffer_store_dwordx4 {vr(STT,4)}, v{GK}, s[12:15], s39 offen sc1")
        p(f"v_mov_b32 v{STT}, s11\ns_waitcnt vmcnt(0)\nbuffer_store_dword v{STT}, off, s[12:15], s35 sc1\ns_mov_b32 s45, 2\ns_mov_b32 s44, 1")
        p.label("L_att_nopre")
    p(f"v_mov_b32 v{TM}, 1\nds_write_b32 v{FL+1}, v{TM} offset:176")
    p(f"""
    v_mov_b32 v{AK}, v{GK}
    """)
    for r in list(range(OA, OA+32)) + list(range(PB+4, PB+6)) + list(range(V1R[3], V1R[3]+4)):
        p(f"v_mov_b32 v{r}, 0")
    p(f"s_waitcnt vmcnt(10)")
    p.add([mfma32(vr(SA,16), vr(KR[0],4), vr(QA,4), "0"), mfma32(vr(SB,16), vr(KR[0],4), vr(QB,4), "0"),
           mfma32(vr(CA,16), vr(KR[1],4), vr(QA,4), "0"), mfma32(vr(CB,16), vr(KR[1],4), vr(QB,4), "0")])
    max16(p, SA, MA, True); max16(p, SB, MB, True); max16(p, CA, MA, False); max16(p, CB, MB, False)
    p(f"""
    s_mov_b32 s40, {float_hex(VAR['margin'])}
    v_mov_b32 v{TM}, v{MA}
    v_mov_b32 v{TM+1}, v{MB}
    v_permlane32_swap_b32 v{TM}, v{MA}
    v_permlane32_swap_b32 v{TM+1}, v{MB}
    v_max_f32 v{MA}, v{MA}, v{TM}
    v_max_f32 v{MB}, v{MB}, v{TM+1}
    v_add_f32 v{MA}, s40, v{MA}
    v_add_f32 v{MB}, s40, v{MB}
    """)
    for r in range(16): p(f"v_sub_f32 v{CA+r}, 0, v{MA}")
    for r in range(12, 16): p(f"v_mov_b32 v{SB+r}, 0")
    p.add([mfma32(vr(SA,16), vr(KR[0],4), vr(QA,4), vr(CA,16))])
    for r in range(16): p(f"v_sub_f32 v{CB+r}, 0, v{MB}")
    p(f"s_waitcnt vmcnt(0) lgkmcnt(0)")
    p(f"v_mov_b32 v{TM}, 1\nds_write_b32 v{FL+1}, v{TM}")
    flag_wait(p, "L_att_f1", FL, 0, 1, TM)
    st(p, 1)
    if VAR.get('prio_pro'): p(f"s_setprio {VAR['prio_att']}")
    p("s_mov_b32 s41, 0")
    p(".p2align 6")
    p.label("L_att_loop")
    p.add(att_loop_body(U))
    p("s_cbranch_scc1 L_att_loop")
    st(p, 2)
    if VAR.get('endprio'): p("s_setprio 3")
    p(f"v_cvt_pk_bf16_f32 v{PB+6}, v{SB+12}, v{SB+13}\nv_cvt_pk_bf16_f32 v{PB+7}, v{SB+14}, v{SB+15}")
    p(f"""
    s_mul_i32 s33, s32, {88*1024}
    s_lshl_b32 s34, s27, 10
    s_add_u32 s33, s33, s34
    s_add_u32 s33, s33, {A3}
    """)
    p.add([mfma32(vr(OB,16), vr(V1R[3],4), vr(PB+4,4), vr(OB,16))])
    p("s_waitcnt lgkmcnt(0)")
    p(f"s_mov_b32 s36, 0\ns_mov_b32 s40, {float_hex(2.0**-112)}")
    p.label("L_att_chk")
    p(f"v_mul_f32 v{TM}, 0, v{OA+8}")
    for r in range(8): p(f"v_fmac_f32 v{TM}, 0, v{OA+r}")
    p(f"v_max3_f32 v{TM+1}, |v{OA}|, |v{OA+1}|, |v{OA+2}|\nv_max3_f32 v{TM+1}, v{TM+1}, |v{OA+3}|, |v{OA+4}|\nv_max3_f32 v{TM+1}, v{TM+1}, |v{OA+5}|, |v{OA+6}|\nv_max_f32_e64 v{TM+1}, v{TM+1}, |v{OA+7}|")
    p(f"v_mov_b32 v{TM+2}, v{TM+1}\nv_permlane32_swap_b32 v{TM+1}, v{TM+2}\nv_max_f32 v{TM+1}, v{TM+1}, v{TM+2}")
    p(f"v_cmp_u_f32 vcc, v{TM}, v{TM}\nv_cmp_gt_f32 s[38:39], s40, v{TM+1}\ns_or_b64 vcc, vcc, s[38:39]")
    p("s_cbranch_vccnz L_att_slow")
    p.label("L_att_fin")
    p(f"v_rcp_f32 v{MA}, v{OA+8}")
    p("s_cmp_lg_u32 s36, 0")
    for r in range(8): p(f"v_mul_f32 v{OA+r}, v{OA+r}, v{MA}")
    for k in range(4): p(f"v_cvt_pk_bf16_f32 v{PA+k}, v{OA+2*k}, v{OA+2*k+1}")
    for k in range(4): p(f"v_min_u32 v{PA+k}, -2, v{PA+k}")
    p(f"buffer_store_dwordx4 {vr(PA,4)}, v{GK}, s[12:15], s33 offen")
    p("s_cbranch_scc1 L_att_done")
    p(f"s_mov_b32 s36, 1\ns_add_u32 s33, s33, {88*1024}")
    for r in range(9): p(f"v_mov_b32 v{OA+r}, v{OB+r}")
    for r in range(4): p(f"v_mov_b32 v{QA+r}, v{QB+r}")
    p("s_branch L_att_chk")
    p.label("L_att_done")
    st(p, 3)
    p("s_endpgm")
    p.label("L_att_sync2")
    if VAR['sentA']: p("s_cmp_lg_u32 s41, 1\ns_cbranch_scc1 L_att_sync3")
    if VAR['sentA']:
        p("s_cmp_lg_u32 s44, 0\ns_cbranch_scc1 L_att_f2")
        for r in range(4): p(f"v_mov_b32 v{STT+r}, -1")
        p(f"buffer_store_dwordx4 {vr(STT,4)}, v{GK}, s[12:15], s33 offen sc1\nbuffer_store_dwordx4 {vr(STT,4)}, v{GK}, s[12:15], s39 offen sc1")
        for k in range(4): p(f"buffer_store_dwordx4 {vr(STT,4)}, v{GK}, s[12:15], s{46+k//2} offen offset:{(k%2)*1024} sc1")
    flag_wait(p, "L_att_f2", FL, 48, 1, TM)
    p("s_branch L_att_sync2_ret")
    p.label("L_att_sync3")
    if VAR['sentA']:
        p(f"v_mov_b32 v{TM}, s11\nv_mov_b32 v{TM+1}, 1\ns_waitcnt vmcnt(0)\nbuffer_store_dword v{TM}, off, s[12:15], s35 sc1\nbuffer_store_dword v{TM}, off, s[12:15], s42 sc1\nds_write_b32 v{FL+1}, v{TM+1} offset:64")
    p("s_branch L_att_sync2_ret")
    p.label("L_att_slow")
    p(f"v_mov_b32 v{MA}, 0xff800000\ns_mov_b32 s41, 0\ns_mov_b32 s37, s30")
    p.label("L_att_sl1")
    p(f"buffer_load_dwordx4 {vr(KR[0],4)}, v{GK}, s[12:15], s37 offen sc1")
    p("s_waitcnt vmcnt(0)")
    p.add([mfma32(vr(SA,16), vr(KR[0],4), vr(QA,4), "0")])
    max16(p, SA, MA, False)
    p(f"s_add_u32 s37, s37, {KVG}\ns_add_u32 s41, s41, 1\ns_cmp_lt_u32 s41, 64\ns_cbranch_scc1 L_att_sl1")
    p(f"v_mov_b32 v{TM}, v{MA}\nv_permlane32_swap_b32 v{TM}, v{MA}\nv_max_f32 v{MA}, v{MA}, v{TM}")
    for r in range(16): p(f"v_sub_f32 v{CA+r}, 0, v{MA}\nv_mov_b32 v{OA+r}, 0")
    for e in range(4): p(f"v_mov_b32 v{V0R[0]+e}, v{PF}\nv_mov_b32 v{V1R[0]+e}, v{PF}")
    p("s_mov_b32 s41, 0\ns_mov_b32 s37, s30")
    p.label("L_att_sl2")
    p(f"buffer_load_dwordx4 {vr(KR[0],4)}, v{GK}, s[12:15], s37 offen sc1")
    p("s_mov_b64 exec, s[48:49]")
    p(f"buffer_load_dwordx4 {vr(V0R[0],4)}, v{GV0}, s[12:15], s37 offen sc1")
    p(f"buffer_load_dwordx4 {vr(V1R[0],4)}, v{GV1}, s[12:15], s37 offen sc1")
    p("s_mov_b64 exec, -1")
    p("s_waitcnt vmcnt(0)")
    p.add([mfma32(vr(SA,16), vr(KR[0],4), vr(QA,4), vr(CA,16))])
    for k in range(16): p(f"v_exp_f32 v{SA+k}, v{SA+k}")
    for k in range(8): p(f"v_cvt_pk_bf16_f32 v{PA+k}, v{SA+2*k}, v{SA+2*k+1}")
    p.add([mfma32(vr(OA,16), vr(V0R[0],4), vr(PA,4), vr(OA,16)), mfma32(vr(OA,16), vr(V1R[0],4), vr(PA+4,4), vr(OA,16))])
    p(f"s_add_u32 s37, s37, {KVG}\ns_add_u32 s41, s41, 1\ns_cmp_lt_u32 s41, 64\ns_cbranch_scc1 L_att_sl2")
    p("s_nop 15\ns_branch L_att_fin")

ACC = 4
NZF = 16
ZR = 132
WR = 196
VL = 244; VD = 245; VW = 247
GF = 251
G = 232
def acc(i, tt): return ACC + (i*2+tt)*16

def ones_zeros(p, l0, l1, va, vd):
    p(f"v_mul_u32_u24 v{va+1 if False else vd+8}, {KVT}, v1")
    for e in range(4): p(f"v_mov_b32 v{vd+e}, 0x3f803f80\nv_mov_b32 v{vd+4+e}, 0")
def oz_write(p, l0, l1, va, vd):
    m = ((1 << l1) - 1) ^ ((1 << l0) - 1)
    p(f"s_mov_b32 exec_lo, {m & 0xffffffff:#x}\ns_mov_b32 exec_hi, {m >> 32:#x}")
    p(f"ds_write_b128 v{vd+8}, {vr(vd,4)} offset:{KVT+2048}\nds_write_b128 v{vd+8}, {vr(vd+4,4)} offset:{KVT+2064}")
    p("s_mov_b64 exec, -1")
def kv_rest(p, uniq):
    ones_zeros(p, 12, 62, 0, 8)
    oz_write(p, 12, 62, 0, 8)
    for i in range(13):
        if i == 12: p(f"s_add_u32 s62, s62, {(13+4*i)*KVT}\ns_add_u32 s61, s63, {(14+4*i)*KVG}\ns_cmp_ge_u32 s24, 2\ns_cselect_b32 m0, 0x30000, s62")
        else: p(f"s_add_u32 m0, s62, {(13+4*i)*KVT}\ns_add_u32 s61, s63, {(14+4*i)*KVG}")
        for k in range(2): p(f"buffer_load_dwordx4 v{VL}, s[12:15], s61 offen offset:{k*1024} sc1 lds", tag="kv")

def flag_addr(p):
    p(f"""
    s_lshr_b32 s48, s26, 3
    s_lshl_b32 s47, s25, 2
    s_add_u32 s48, s48, s47
    s_lshl_b32 s48, s48, 7                 ; tb'*128
    s_lshl_b32 s47, s24, 5
    s_add_u32 s46, s48, s47
    s_mul_i32 s47, s24, 28
    s_add_u32 s48, s48, s47
    s_add_u32 s48, s48, {UFL-OFL}          ; u flags
    s_and_b32 s47, s26, 7
    s_lshl_b32 s47, s47, 7
    s_add_u32 s47, s47, {WFL-OFL}          ; W flags
    v_lshlrev_b32 v{G+5}, 2, v1
    v_mov_b32 v{G+6}, s48
    v_add_u32 v{G+7}, s48, v{G+5}
    v_cmp_gt_u32 vcc, 7, v1
    v_cndmask_b32 v{G+6}, v{G+6}, v{G+7}, vcc
    v_subrev_u32 v{G+5}, 128, v{G+5}
    v_add_u32 v{G+7}, s47, v{G+5}
    v_cmp_gt_u32 vcc, 64, v{G+5}
    v_cndmask_b32 v{G+6}, v{G+6}, v{G+7}, vcc
    v_subrev_u32 v{G+5}, 64, v{G+5}
    v_add_u32 v{G+7}, s46, v{G+5}
    v_cmp_gt_u32 vcc, 32, v{G+5}
    v_cndmask_b32 v{G+6}, v{G+6}, v{G+7}, vcc
    v_subrev_u32 v{G+5}, 32, v{G+5}
    v_add_u32 v{G+7}, s49, v{G+5}
    v_cmp_gt_u32 vcc, 8, v{G+5}
    v_cndmask_b32 v{G+6}, v{G+6}, v{G+7}, vcc
    s_mov_b32 s48, {OFL}
    """)
def gen_gemm(p, st, mid=None):
    k2_ids(p)
    p(f"""
    s_load_dwordx4 s[4:7], s[0:1], {KA_WSP}
    s_sub_u32 s24, s24, 4                  ; q = K quarter
    v_lshlrev_b32 v{VL}, 4, v1
    s_mul_i32 s63, s27, {KVH}
    s_lshl_b32 s62, s24, 11
    s_add_u32 s63, s63, s62
    s_add_u32 s63, s63, {KV}
    s_mul_i32 s62, s24, {KVT}
    s_lshl_b32 s46, s24, 2
    s_add_u32 s46, s46, {LDS_FLAG}
    v_mov_b32 v{GF}, s46
    v_mov_b32 v0, 1
    v_mov_b32 v2, {LDS_FLAG}
    s_waitcnt lgkmcnt(0)
    ds_write_b32 v{GF}, v0 offset:160
    """)
    srd(p, 16, 4, 2048*2048*2); srd(p, 20, 6, 4096)
    flag_wait(p, "L_g_bd", 2, 160, 1, 4)
    flag_wait(p, "L_g_go", 2, 176, 1, 4, sleep=2)
    kv_rest(p, "a")
    p(f"""
    s_cmp_ge_u32 s26, 28
    s_cbranch_scc1 L_idle
    s_setprio 3
    s_mul_i32 s30, s26, 9363
    s_lshr_b32 s30, s30, 16                ; j/7
    s_mul_i32 s31, s30, 7
    s_sub_u32 s31, s26, s31                ; fb = j%7
    s_lshl_b32 s32, s25, 2
    s_add_u32 s30, s30, s32                ; tb
    s_lshl_b32 s33, s31, 19
    s_add_u32 s33, s33, {Z2F}
    s_lshl_b32 s34, s24, 17
    s_add_u32 s33, s33, s34
    s_lshl_b32 s56, s30, 18
    s_lshl_b32 s34, s24, 10
    s_add_u32 s56, s56, s34
    s_lshl_b32 s36, s24, 13
    s_add_u32 s36, s36, {LDS_STG}
    s_add_u32 s37, s36, 4096
    v_lshrrev_b32 v2, 3, v1
    v_lshrrev_b32 v3, 4, v1
    v_xor_b32 v3, v3, v1
    v_and_b32 v3, 7, v3
    v_lshlrev_b32 v3, 4, v3
    v_lshl_add_u32 v{VD}, v2, 12, v3
    v_xor_b32 v{VD+1}, 64, v{VD}
    v_add_u32 v{VD+1}, {8*4096-1024}, v{VD+1}
    """)
    for i in range(4):
        p(f"s_add_u32 s38, s24, {i}\ns_and_b32 s38, s38, 3\ns_lshl_b32 s38, s38, 10\ns_add_u32 s{52+i}, s33, s38")
    p(f"""
    s_lshl_b32 s38, s31, 12                ; (2fb)*16*128
    s_lshl_b32 s39, s24, 9
    s_add_u32 s39, s39, s38
    s_add_u32 s39, s39, {PFL+16}
    s_lshr_b32 s49, s24, 1
    s_lshl_b32 s49, s49, 11
    s_add_u32 s49, s49, s38
    s_lshr_b32 s38, s30, 1
    s_lshl_b32 s38, s38, 7
    s_add_u32 s49, s49, s38
    s_and_b32 s38, s30, 1
    s_lshl_b32 s38, s38, 3
    s_add_u32 s49, s49, s38
    s_add_u32 s49, s49, {PFL+32-OFL}
    v_and_b32 v4, 3, v1
    v_bfe_u32 v5, v1, 2, 1
    v_lshlrev_b32 v5, 11, v5
    v_lshl_add_u32 v4, v4, 7, v5
    v_bfe_u32 v5, v1, 3, 2
    v_lshl_add_u32 v4, v5, 2, v4
    """)
    def dma(b):
        out = []
        for i in range(8):
            if i % 4 == 0: out.append(I(f"s_mov_b32 m0, s{(66 if (b % 3 == 2 and b > 2) else 36) + i//4}"))
            if i % 2 == 0: out.append(I(f"s_add_u32 s57, s56, {(i//2)*16*4096 - (i%4)*1024}"))
            out.append(I(f"buffer_load_dwordx4 v{VD + i%2}, s[16:19], s57 offen offset:{(i%4)*1024} sc1 lds", tag=f"d{b}"))
        out.append(I("s_add_u32 s56, s56, 128"))
        return out
    def zload(n):
        i = n % 4
        return [I(f"buffer_load_dwordx4 {vr(ZR + (n%NZF)*4, 4)}, v{VL}, s[12:15], s{52+i} offen sc1", tag=f"z{n}"),
                I(f"s_add_u32 s{52+i}, s{52+i}, 4096")]
    p.add(dma(0))
    if VAR.get('ordb'):
        p.wait(vm="kv", lg0=True); p(f"ds_write_b32 v{GF}, v0 offset:48")
        poll(p, "L_pz", 39, 4, None, 5, sleep=VAR.get('zsleep', 4))
        st(p, 9)
        if VAR.get('stop') == 1: p("s_endpgm")
        for n in range(16): p.add(zload(n))
        mid(p, "a")
    else:
        mid(p, "a", [W(vm="kv", lg0=True), I(f"ds_write_b32 v{GF}, v0 offset:48")])
        p.wait(vm="kv", lg0=True); p(f"ds_write_b32 v{GF}, v0 offset:48")
        poll(p, "L_pz", 39, 4, None, 5, sleep=VAR.get('zsleep', 4))
        p(f"v_mov_b32 v0, s11\nbuffer_store_dword v0, off, s[12:15], s89 sc1")
        st(p, 9)
        if VAR.get('stop') == 1: p("s_endpgm")
        for n in range(16): p.add(zload(n))
    p(f"v_and_b32 v2, 31, v1")
    bitswap23(p, 2, 2, 3)
    p(f"""
    v_lshrrev_b32 v3, 1, v2
    v_lshrrev_b32 v{VW}, 5, v1
    v_xor_b32 v3, v3, v{VW}
    v_and_b32 v3, 7, v3
    v_lshlrev_b32 v3, 4, v3
    v_lshl_add_u32 v{VW}, v2, 7, v3
    v_add_u32 v{VW}, s36, v{VW}
    v_xor_b32 v{VW+1}, 32, v{VW}
    v_xor_b32 v{VW+2}, 64, v{VW}
    v_xor_b32 v{VW+3}, 96, v{VW}
    """)
    if VAR['fuse3']:
        flag_addr(p); p(f"v_mov_b32 v3, v{G+6}")
    p(f"s_setprio {VAR['prio_g']}")
    st(p, 1)
    wr = lambda g, tt: WR + ((g % 6)*2 + tt)*4
    def wread(b):
        return [I(f"ds_read_b128 {vr(wr(4*b+u, tt), 4)}, v{VW+u} offset:{tt*4096}", tag=f"w{b}", needs=[f"d{b}"]) for u in range(4) for tt in range(2)]
    def block_burst(b, first=False, dma_on=True, z_on=True, w_on=True):
        o = []
        for u in range(4):
            g = 4*b+u
            o.append(W(vm=[f"z{4*g+3}"]))
            for i in range(4):
                n = 4*g+i
                for tt in ((1, 0) if (VAR.get('snake') == 1 and i % 2) else (0, 1)):
                    c = "0" if (first and u == 0) else vr(acc(i,tt),16)
                    o.append(mfma32(vr(acc(i,tt),16), vr(ZR+(n%NZF)*4,4), vr(wr(g,tt),4), c))
                if VAR.get('snake') == 2 and i == 3:
                    ms = o[-8:] if not any(x.kind != "mfma" for x in o[-8:]) else None
                    if ms: o[-8:] = ms[0::2] + ms[7::-2]
                if u == 2 and i == 1 and w_on:
                    o.append(W(lg=f"w{b+1}"))
                    if dma_on: o += dma(b+2)
            if u == 1 and w_on: o += [W(vm=f"d{b+1}")] + wread(b+1)
            if z_on:
                for i in range(4): o += zload(4*g+i+NZF)
        return o
    def block(b, first=False, dma_on=True, z_on=True, w_on=True):
        if VAR.get('burst', 0): return block_burst(b, first, dma_on, z_on, w_on)
        o = []
        dm = []
        if w_on and dma_on:
            cur = []
            for x in dma(b+2):
                cur.append(x)
                if x.kind == "vmem": dm.append(cur); cur = []
            dm[-1] += cur
        wrd = wread(b+1) if w_on else []
        for u in range(4):
            g = 4*b+u
            for i in range(4):
                n = 4*g+i
                for tt in range(2):
                    if tt == 0: o.append(W(vm=[f"z{n}"]))
                    c = "0" if (first and u == 0) else vr(acc(i,tt),16)
                    o.append(mfma32(vr(acc(i,tt),16), vr(ZR+(n%NZF)*4,4), vr(wr(g,tt),4), c))
                    if VAR.get('pace'): o.append(I(f"s_nop {VAR['pace']}"))
                    if tt == 1 and z_on: o += zload(n+NZF)
                    if tt == 0:
                        if u == 2 and w_on:
                            if i == 0: o.append(W(vm=f"d{b+1}"))
                            o += wrd[2*i:2*i+2]
                        if u == 3 and dm:
                            if i == 0: o.append(W(lg=f"w{b+1}"))
                            o += dm.pop(0) + dm.pop(0)
                        elif u == 3 and i == 0 and w_on: o.append(W(lg=f"w{b+1}"))
        return o
    p.add(wread(0)); p.wait(lg="w0"); p.add(dma(1))
    p.add(block(0, first=True))
    p("s_mov_b32 s60, 0")
    hist = dma(0) + sum([zload(n) for n in range(16)], []) + dma(1) + block(0) + block(1) + block(2) + block(3) + [I("L_mark:")] + block(4) + block(5) + block(6)
    full = resolve_waits(hist)
    lb = full[next(i for i, x in enumerate(full) if x.kind == "label" and x.op == "L_mark")+1:]
    first_pass = resolve_waits(dma(0) + sum([zload(n) for n in range(16)], []) + dma(1) + block(0) + [I("L_mark:")] + block(1) + block(2) + block(3))
    fp = first_pass[next(i for i, x in enumerate(first_pass) if x.kind == "label" and x.op == "L_mark")+1:]
    assert len(fp) == len(lb)
    merged = []
    for x, y in zip(fp, lb):
        if x.kind == "wait":
            vm = min(v for v in (x.vm, y.vm) if v is not None) if (x.vm is not None or y.vm is not None) else None
            lg = min(v for v in (x.lg, y.lg) if v is not None) if (x.lg is not None or y.lg is not None) else None
            merged.append(I("s_waitcnt " + " ".join(([f"vmcnt({vm})"] if vm is not None else []) + ([f"lgkmcnt({lg})"] if lg is not None else []))))
        else:
            assert x.text == y.text, (x.text, y.text)
            merged.append(y)
    p.label("L_g_loop")
    p("s_cmp_eq_u32 s60, 1\ns_cselect_b32 s66, 0x30000, s36\ns_cselect_b32 s67, 0x30000, s37")
    p.add(merged)
    p("s_add_u32 s60, s60, 1\ns_cmp_lt_u32 s60, 2\ns_cbranch_scc1 L_g_loop")
    if VAR['fuse3']: p(f"s_mov_b32 s48, {OFL}"); p(f"buffer_load_dword v0, v3, s[12:15], s48 offen sc1", tag="fl")
    p.add(block(7, dma_on=False, z_on=False, w_on=False))
    st(p, 2)
    if VAR.get('stop') == 2: p("s_endpgm")
    p(f"s_setprio {VAR.get('prio_e', 3)}")
    p(f"""
    s_lshl_b32 s38, s30, 1
    s_mul_i32 s39, s38, {56*1024}
    s_lshl_b32 s40, s31, 2
    s_add_u32 s40, s40, s24
    s_lshl_b32 s41, s40, 11
    s_add_u32 s39, s39, s41
    s_add_u32 s39, s39, {Z1F}
    s_add_u32 s42, s39, {56*1024}
    s_mul_i32 s64, s38, {88*1024}
    s_add_u32 s64, s64, s41
    s_add_u32 s64, s64, {A3 + 32*1024}
    s_add_u32 s65, s64, {88*1024}
    s_lshl_b32 s45, s30, 7
    v_lshlrev_b32 v2, 1, v2
    """)
    Z = ZR
    p(f"v_mov_b32 v{G+1}, v{GF}")
    if VAR['fuse3']:
        p.wait(vm="fl")
        p("v_cmp_ne_u32 vcc, s11, v0\ns_cbranch_vccz L_g_fl")
        poll(p, "L_p00", 48, 3, None, 0, sleep=8)
        p.label("L_g_fl")
    p(f"buffer_load_dwordx4 {vr(Z,4)}, v{VL}, s[12:15], s39 offen sc1", tag="z1")
    p(f"buffer_load_dwordx4 {vr(Z+4,4)}, v{VL}, s[12:15], s39 offen offset:1024 sc1", tag="z1")
    p(f"buffer_load_dwordx4 {vr(Z+8,4)}, v{VL}, s[12:15], s42 offen sc1", tag="z1")
    p(f"buffer_load_dwordx4 {vr(Z+12,4)}, v{VL}, s[12:15], s42 offen offset:1024 sc1", tag="z1")
    p(f"buffer_load_ushort v{Z+16}, v2, s[20:23], s45 offen sc1", tag="z1")
    p(f"buffer_load_ushort v{Z+17}, v2, s[20:23], s45 offen offset:64 sc1", tag="z1")
    if VAR['fuse3']:
        g2_scalars(p)
        w_loads(p, 0, 10)
    p(f"v_add_u32 v{G}, s36, v{VL}\nv_mov_b32 v{G+2}, {LDS_FLAG}\ns_lshl_b32 s47, s24, 14\ns_add_u32 s47, s47, {IMG}\nv_add_u32 v{G+3}, s47, v{VL}")
    for k in range(8): p(f"ds_write_b128 v{G}, {vr(acc(1,0)+4*k, 4)} offset:{k*1024}")
    flag_wait(p, "L_g_prog", G+2, 80, 4, G+4)
    for r in (2, 3):
        for k in range(8): p(f"ds_write_b128 v{G+3}, {vr(acc(r,0)+4*k, 4)} offset:{(r-2)*8192 + k*1024}")
    for r in range(1, 4):
        p(f"s_add_u32 s47, s24, {4-r}\ns_and_b32 s47, s47, 3")
        if r == 1: p(f"s_lshl_b32 s47, s47, 13\ns_add_u32 s47, s47, {LDS_STG}\nv_add_u32 v{G}, s47, v{VL}")
        else: p(f"s_lshl_b32 s47, s47, 14\ns_add_u32 s47, s47, {(r-2)*8192 + IMG}\nv_add_u32 v{2 if r == 2 else 3}, s47, v{VL}")
    p(f"v_mov_b32 v{G+3}, 1\ns_waitcnt lgkmcnt(0)\nds_write_b32 v{G+1}, v{G+3} offset:16")
    flag_wait(p, "L_g_dat", G+2, 16, 1, G+4, sleep=0)
    for r in range(1, 4):
        for k in range(8):
            p(f"ds_read_b128 {vr(acc(r,0)+4*k,4)}, v{(G, 2, 3)[r-1]} offset:{k*1024}", tag=f"r{r}_{k}")
        if r > 1:
            for k in range(8):
                p.wait(lg=f"r{r-1}_{k}")
                for e in range(4): p(f"v_add_f32 v{acc(0,0)+4*k+e}, v{acc(0,0)+4*k+e}, v{acc(r-1,0)+4*k+e}")
    for k in range(8):
        p.wait(lg=f"r3_{k}")
        for e in range(4): p(f"v_add_f32 v{acc(0,0)+4*k+e}, v{acc(0,0)+4*k+e}, v{acc(3,0)+4*k+e}")
    if VAR['sentA'] or VAR.get('sentW'): spin1(p, "L_g_pf", G+1, 64, 1, G+3)
    p.wait(vm="z1")
    T = acc(1, 0)
    p(f"v_lshlrev_b32 v{Z+16}, 16, v{Z+16}\nv_lshlrev_b32 v{Z+17}, 16, v{Z+17}")
    for tt in range(2):
        a = acc(0, tt)
        for r in range(16): p(f"v_add_f32 v{a+r}, v{a+r}, v{Z+16+tt}")
        for d in range(8):
            z = Z + tt*8 + d
            p(f"v_lshlrev_b32 v{T}, 16, v{z}\nv_and_b32 v{T+1}, 0xffff0000, v{z}")
            p(f"v_mul_f32 v{a+2*d}, v{a+2*d}, v{T}\nv_mul_f32 v{a+2*d+1}, v{a+2*d+1}, v{T+1}")
            p(f"v_cvt_pk_bf16_f32 v{T+8+tt*8+d}, v{a+2*d}, v{a+2*d+1}")
        for d in (range(8) if VAR.get('fullver', 1) else (0, 4)): p(f"v_min_u32 v{T+8+tt*8+d}, -2, v{T+8+tt*8+d}")
        so = 64 + tt
        p(f"buffer_store_dwordx4 {vr(T+8+tt*8,4)}, v{VL}, s[12:15], s{so} offen")
        p(f"buffer_store_dwordx4 {vr(T+12+tt*8,4)}, v{VL}, s[12:15], s{so} offen offset:1024")
    if VAR.get('pf3'):
        p(f"s_lshl_b32 s38, s26, 2\ns_add_u32 s38, s38, s24\ns_mul_i32 s38, s38, 16384\ns_add_u32 s38, s38, {W3F}\nv_lshlrev_b32 v2, 7, v1")
        p(f"buffer_load_dword v3, v2, s[12:15], s38 offen\ns_add_u32 s38, s38, 8192\nbuffer_load_dword v3, v2, s[12:15], s38 offen")
    st(p, 3)
    if VAR['fuse3']:
        if VAR.get('stop') == 3: p("s_endpgm")
        p("s_branch L_g2")
    else: p("s_endpgm")
    p.label("L_idle")
    p.wait(vm="kv"); p(f"s_waitcnt vmcnt(0) lgkmcnt(0)\nds_write_b32 v{GF}, v0 offset:48")
    mid(p, "b")
    p(f"""
    s_load_dwordx2 s[36:37], s[0:1], {KA_WO}
    s_load_dwordx2 s[38:39], s[0:1], {KA_WOUT}
    s_lshl_b32 s34, s25, 2
    s_add_u32 s34, s34, s26
    s_sub_u32 s34, s34, 28                      ; L
    s_mov_b32 s54, {896*1024}
    v_lshrrev_b32 v2, 2, v1
    v_and_b32 v3, 3, v1
    v_lshlrev_b32 v3, 4, v3
    v_lshl_add_u32 v2, v2, 10, v3
    s_waitcnt lgkmcnt(0)
    s_cmp_lt_u32 s34, 16
    s_cselect_b32 s52, s36, s38
    s_cselect_b32 s53, s37, s39
    s_cselect_b32 s54, {512*1024}, s54
    s_cselect_b32 s35, 8, 14
    s_cselect_b32 s67, 0, {32*1024}
    s_mov_b32 s55, 0x20000
    s_and_b32 s34, s34, 15
    s_mul_i32 s68, s24, s35
    s_lshl_b32 s69, s68, 14
    s_lshl_b32 s60, s34, 6
    s_add_u32 s69, s69, s60
    s_mul_i32 s60, s34, {88*1024}
    s_lshl_b32 s68, s68, 10
    s_add_u32 s60, s60, s68
    s_add_u32 s60, s60, s67
    s_add_u32 s60, s60, {W3F}
    s_lshl_b32 s61, s24, 13
    s_add_u32 s61, s61, {LDS_STG}
    """)
    def w3_dma(n):
        for k in range(n):
            p(f"s_add_u32 m0, s61, {k*1024}\ns_nop 0\nbuffer_load_dwordx4 v2, s[52:55], s69 offen lds\ns_add_u32 s69, s69, 16384")
    def w3_out(n):
        for k in range(n):
            p(f"ds_read_b64_tr_b16 v[{8+4*k}:{9+4*k}], v3 offset:{k*1024}\nds_read_b64_tr_b16 v[{10+4*k}:{11+4*k}], v3 offset:{k*1024+256}")
            if k % 4 == 3: p("s_waitcnt lgkmcnt(0)")
        p("s_waitcnt lgkmcnt(0)")
        for k in range(n):
            p(f"buffer_store_dwordx4 v[{8+4*k}:{11+4*k}], v{VL}, s[12:15], s60 offen\ns_add_u32 s60, s60, 1024")
    p(f"v_mov_b32 v5, s11\ns_waitcnt vmcnt(0)\nbuffer_store_dword v5, off, s[12:15], s89 sc1")
    G0 = VAR.get('ipf0', 0); GB = VAR.get('ipfb', 0)
    NP = (8 - G0 - GB) if VAR.get('ipf', 1) else 0
    if VAR.get('ipf', 1):
        p(f"""
        s_sub_u32 s36, s26, 28
        s_lshl_b32 s36, s36, 2
        s_add_u32 s36, s36, s24                 ; wave16
        v_lshlrev_b32 v5, 12, v1
        s_lshl_b32 s56, s25, 20
        s_and_b32 s37, s36, 3
        s_lshl_b32 s37, s37, 18
        s_add_u32 s56, s56, s37
        s_lshr_b32 s37, s36, 2
        s_lshl_b32 s37, s37, 10
        s_add_u32 s56, s56, s37
        """)
        for g in range(G0, G0+GB): p(f"buffer_load_dword v6, v5, s[16:19], s56 offen offset:{g*128}")
    w3_dma(8)
    if VAR.get('ipf', 1):
        for g in range(G0+GB, 8): p(f"buffer_load_dword v6, v5, s[16:19], s56 offen offset:{g*128}")
    p(f"""
    v_lshrrev_b32 v4, 5, v1
    v_lshlrev_b32 v3, 9, v4
    v_bfe_u32 v4, v1, 2, 2
    v_lshl_add_u32 v3, v4, 6, v3
    v_bfe_u32 v4, v1, 4, 1
    v_lshl_add_u32 v3, v4, 5, v3
    v_and_b32 v4, 1, v1
    v_lshl_add_u32 v3, v4, 4, v3
    v_bfe_u32 v4, v1, 1, 1
    v_lshl_add_u32 v3, v4, 3, v3
    v_add_u32 v3, s61, v3
    s_waitcnt vmcnt({NP if GB == 0 else 0})
    """)
    w3_out(8)
    p("s_cmp_eq_u32 s35, 8\ns_cbranch_scc1 L_w3done")
    w3_dma(6)
    p("s_waitcnt vmcnt(0)")
    w3_out(6)
    p.label("L_w3done")
    if not VAR['fuse3']:
        p("s_endpgm"); return
    p(f"""
    s_lshr_b32 s33, s34, 1
    s_lshl_b32 s33, s33, 7                      ; (nt>>1)*128
    s_and_b32 s34, s34, 1
    s_lshl_b32 s34, s34, 4
    s_add_u32 s33, s33, s34
    s_lshr_b32 s34, s67, 10                     ; 0 or 32
    s_add_u32 s33, s33, s34
    s_lshl_b32 s34, s24, 2
    s_add_u32 s33, s33, s34
    s_add_u32 s33, s33, {WFL}
    v_mov_b32 v0, s11
    s_waitcnt vmcnt(0)
    buffer_store_dword v0, off, s[12:15], s33 sc1
    s_add_u32 s49, s33, {-OFL & 0xffffffff:#x}
    s_and_b32 s49, s49, -64
    """)
    flag_addr(p)
    if VAR.get('stop'): p("s_endpgm")
    p.label("L_g2w")
    p(f"s_mov_b32 s48, {OFL}")
    poll(p, "L_p0", 48, G+6, None, G+5, sleep=32)
    gen_g2(p, st)


FA = 4
def FWr(k): return 152 + 4*k if k < 20 else 68 + 4*(k-20)
def FRr(k): return 100 + 4*k if k < 13 else 232 + 4*(k-13)
FX = 84
FXU = 152
FL_ = 244; FO = 245; FT = 246
def poll(p, name, soff, voff, mask_hi_lo, tmp, bad=0, sleep=None):
    p(f"s_mov_b32 s47, 0")
    p.label(name)
    p(f"buffer_load_dword v{tmp}, v{voff}, s[12:15], s{soff} offen sc1\ns_add_u32 s47, s47, 1\ns_waitcnt vmcnt(0)")
    p(f"{'v_cmp_eq_u32 vcc, -1' if bad == -1 else 'v_cmp_ne_u32 vcc, s11'}, v{tmp}\ns_cbranch_vccz {name}_ok\ns_cmp_gt_u32 s47, 0x10000\ns_cbranch_scc1 {name}_ok\ns_sleep {sleep or VAR.get('psleep', 16)}\ns_branch {name}")
    p.label(name + "_ok")
def g2_scalars(p):
    p(f"""
    s_load_dwordx2 s[6:7], s[0:1], {KA_X}
    s_load_dwordx2 s[8:9], s[0:1], {KA_OUT}
    s_lshr_b32 s27, s26, 3
    s_lshl_b32 s28, s25, 2
    s_add_u32 s27, s27, s28                ; tb
    s_and_b32 s28, s26, 7                  ; nb
    s_and_b32 s29, s24, 1
    s_lshr_b32 s30, s24, 1
    s_lshl_b32 s32, s27, 1
    s_add_u32 s33, s32, s29
    s_xor_b32 s34, s33, 1
    s_lshl_b32 s32, s28, 1
    s_add_u32 s35, s32, s30
    s_xor_b32 s37, s35, 1
    s_mul_i32 s40, s33, {88*1024}
    s_mul_i32 s41, s34, {88*1024}
    s_mul_i32 s42, s35, {88*1024}
    s_mul_i32 s43, s37, {88*1024}
    s_add_u32 s40, s40, {A3}
    s_add_u32 s41, s41, {A3}
    s_add_u32 s42, s42, {W3F}
    s_add_u32 s43, s43, {W3F}
    s_mul_i32 s31, s24, {14*1024}
    s_add_u32 s31, s31, {32*1024}
    s_lshl_b32 s32, s24, 13
    s_lshl_b32 s44, s33, 15
    s_lshl_b32 s45, s35, 6
    s_add_u32 s44, s44, s45
    s_mov_b32 s49, 0
    s_waitcnt lgkmcnt(0)
    """)
def Wu(s_, i): return 152 + 4*(((s_ if s_ < 10 else s_-10))*2 + i)
def Wo(k, i): return (152 + 4*((k+4)*2 + i)) if k < 6 else (68 + 4*((k-6)*2 + i))
def Ur(s_, i):
    n = (s_ % 12)*2 + i
    return FRr(n) if n < 16 else 68 + 4*(n-16)
def w_loads(p, s0, s1, tag=None):
    for s_ in range(s0, s1):
        for i in range(2):
            if s_ == s0 or s_ % 4 == 0: p(f"s_add_u32 s{54+i}, s{42+i}, s31\ns_add_u32 s{54+i}, s{54+i}, {(s_//4)*4096}")
            p(f"buffer_load_dwordx4 {vr(Wu(s_, i),4)}, v{FL_}, s[12:15], s{54+i} offen offset:{(s_%4)*1024} sc1", tag=tag)
def gen_g2(p, st):
    p("s_setprio 3")
    g2_scalars(p)
    p.label("L_g2_redo")
    w_loads(p, 0, 10)
    p.label("L_g2")
    for i in range(2): p(f"s_add_u32 s{52+i}, s{40+i}, s31")
    for i in range(4): p(f"s_add_u32 s{56+i}, s{40+i}, s32")
    p(f"""
    s_min_u32 s46, s52, s53
    s_min_u32 s45, s56, s57
    v_lshrrev_b32 v2, 1, v1
    v_min_u32 v{FT+2}, 13, v2
    v_min_u32 v{FT+1}, 7, v2
    v_and_b32 v3, 1, v1
    v_mul_u32_u24 v3, {88*1024}, v3
    v_add_u32 v3, 1008, v3
    v_lshl_add_u32 v{FT+2}, v{FT+2}, 10, v3
    v_lshl_add_u32 v{FT+1}, v{FT+1}, 10, v3
    v_and_b32 v2, 31, v1
    """)
    bitswap23(p, 2, 2, 3)
    p(f"v_lshrrev_b32 v3, 5, v1\nv_lshlrev_b32 v3, 4, v3\nv_lshl_add_u32 v{FO}, v2, 10, v3\nv_mov_b32 v{FT+5}, 0")
    srd(p, 16, 6, 2048*1024); srd(p, 20, 8, 2048*1024)
    poll(p, "L_p1", 46, FT+2, None, FT+4, bad=-1)
    st(p, 4)
    p(f"s_setprio {VAR.get('prio_u', 3)}")
    NR = VAR.get('nr', 8)
    def ld(s):
        o = []
        if s and s % 4 == 0: o += [I(f"s_add_u32 s{52+i}, s{52+i}, 4096") for i in range(2)]
        for i in range(2):
            o.append(I(f"buffer_load_dwordx4 {vr(Ur(s, i),4)}, v{FL_}, s[12:15], s{52+i} offen offset:{(s%4)*1024} sc1", tag=f"g{s}"))
        return o
    def wo_ld(k):
        for i in range(2):
            p(f"s_add_u32 s47, s{58+i}, {(k//4)*4096}")
            p(f"buffer_load_dwordx4 {vr(Wo(k, i),4)}, v{FL_}, s[12:15], s47 offen offset:{(k%4)*1024} sc1", tag="wo")
    for s_ in range(NR): p.add(ld(s_))
    for s_ in range(14):
        p.wait(vm=[f"g{s_}", f"wu{s_}"])
        for n_, (a, b) in enumerate(((0,0), (0,1), (1,0), (1,1))):
            d = vr(FA + (a*2+b)*16, 16)
            p.add([mfma32(d, vr(Wu(s_, a),4), vr(Ur(s_, b),4), "0" if s_ == 0 else d)])
            r0 = Ur(s_, n_//2) + 2*(n_%2)
            if VAR.get('fullver', 1): p(f"v_max3_u32 v{FT+5}, v{FT+5}, v{r0}, v{r0+1}")
            elif n_ == 0: p(f"v_max3_u32 v{FT+5}, v{FT+5}, v{Ur(s_,0)}, v{Ur(s_,1)}")
        if s_+NR < 14: p.add(ld(s_+NR))
        if s_ < 4: w_loads(p, 10+s_, 11+s_, tag=f"wu{10+s_}")
        elif s_ < 12: wo_ld(s_-4)
    p(f"buffer_load_dwordx4 {vr(FX,4)}, v{FO}, s[16:19], s44 offen", tag="x")
    p(f"buffer_load_dwordx4 {vr(FX+4,4)}, v{FO}, s[16:19], s44 offen offset:32", tag="x")
    p(f"s_setprio 3\nv_cmp_eq_u32 vcc, -1, v{FT+5}\ns_cbranch_vccnz L_g2_again")
    p.label("L_g2_go")
    p.wait(vm="x")
    for d_ in range(7, -1, -1):
        p(f"v_and_b32 v{FXU+2*d_+1}, 0xffff0000, v{FX+d_}\nv_lshlrev_b32 v{FXU+2*d_}, 16, v{FX+d_}")
    st(p, 5)
    p("s_barrier")
    p("s_add_u32 s58, s56, 4096\ns_add_u32 s59, s57, 4096\ns_mov_b32 s49, 0")
    if VAR.get('direct', 1): p("s_branch L_p3b")
    p.label("L_p3")
    poll(p, "L_p2", 45, FT+1, None, FT+4, bad=-1, sleep=VAR.get('p3sleep', 4))
    p.label("L_p3b")
    for s_ in range(8):
        for i in range(2):
            p(f"buffer_load_dwordx4 {vr(FRr(s_*2+i),4)}, v{FL_}, s[12:15], s{56+i+2*(s_//4)} offen offset:{(s_%4)*1024} sc1", tag=f"o{s_}")
    p(f"v_mov_b32 v{FT+4}, 0\ns_add_u32 s49, s49, 1")
    for s_ in range(8):
        p.wait(vm=f"o{s_}")
        for k in range(0, 8, 2): p(f"v_max3_u32 v{FT+4}, v{FT+4}, v{FRr(2*s_+k//4)+k%4}, v{FRr(2*s_+k//4)+k%4+1}")
    p(f"v_cmp_eq_u32 vcc, -1, v{FT+4}\ns_cbranch_vccz L_p3_ok\ns_cmp_lt_u32 s49, 8\ns_cbranch_scc1 L_p3")
    p.label("L_p3_ok")
    st(p, 6)
    for i in range(1, 4):
        p(f"s_xor_b32 s46, s24, {i}\ns_mul_i32 s46, s46, 12288\ns_add_u32 s46, s46, {(i-1)*4096 + IMG}\nv_add_u32 v{FT+i}, s46, v{FL_}")
    p(f"s_mul_i32 s46, s24, 12288\ns_add_u32 s46, s46, {IMG}\nv_add_u32 v{FT}, s46, v{FL_}")
    for s_ in range(8):
        order = ((0,0), (0,1), (1,0), (1,1)) if s_ < 7 else ((0,1), (1,0), (1,1), (0,0))
        for (a, b) in order:
            d = vr(FA + (a*2+b)*16, 16)
            p.add([mfma32(d, vr(Wo(s_, a),4), vr(FRr(s_*2+b),4), d)])
    for i in range(1, 4):
        for k in range(4): p(f"ds_write_b128 v{FT+i}, {vr(FA+i*16+4*k,4)} offset:{k*1024}")
    for r in range(16): p(f"v_add_f32 v{FA+r}, v{FA+r}, v{FXU+r}")
    p("s_waitcnt lgkmcnt(0)\ns_barrier")
    for k in range(12): p(f"ds_read_b128 {vr(FA+16+4*k,4)}, v{FT} offset:{k*1024}", tag=f"r{k}")
    for k in range(12):
        p.wait(lg=f"r{k}")
        for e in range(4): p(f"v_add_f32 v{FA+(4*k+e)%16}, v{FA+(4*k+e)%16}, v{FA+16+4*k+e}")
    for d in range(8): p(f"v_cvt_pk_bf16_f32 v{FX+d}, v{FA+2*d}, v{FA+2*d+1}")
    p(f"buffer_store_dwordx4 {vr(FX,4)}, v{FO}, s[20:23], s44 offen")
    p(f"buffer_store_dwordx4 {vr(FX+4,4)}, v{FO}, s[20:23], s44 offen offset:32")
    st(p, 7)
    if st.on and VAR.get('dbg') is not None:
        D = VAR['dbg']
        p(f"s_cmp_lg_u32 s2, {D}\ns_cbranch_scc1 L_end\ns_cmp_lg_u32 s24, 0\ns_cbranch_scc1 L_end")
        p(f"s_load_dwordx2 s[6:7], s[0:1], {KA_DBG}\ns_waitcnt vmcnt(0)")
        sel = [(0,0,15),(0,0,1),(0,0,5),(0,0,7),(0,0,9),(1,0,15),(1,0,1),(1,0,2),(1,0,3),(1,4,1),(1,4,2),(1,4,3),(1,4,4),(1,4,5),(1,4,6),(1,4,7)]
        for i, (k, w, sl) in enumerate(sel):
            off = STAMP + k*0x80000 + (D*16 + w)*128 + sl*8 + 4
            p(f"v_mov_b32 v3, {off:#x}\nbuffer_load_dword v{100+i}, v3, s[12:15], 0 offen sc1")
        p("s_waitcnt vmcnt(0) lgkmcnt(0)")
        srd(p, 16, 6, 256)
        for i in range(16):
            p(f"v_sub_u32 v2, v{100+i}, v100\nbuffer_store_dword v2, off, s[16:19], 0 offset:{4*i}")
    p("s_endpgm")
    p.label("L_g2_again")
    p("s_add_u32 s49, s49, 1\ns_cmp_gt_u32 s49, 8\ns_cbranch_scc1 L_g2_go\ns_waitcnt vmcnt(0)\ns_branch L_g2_redo")


def placeholder_addrs(p, m):
    p(f"""
    s_and_b32 s34, s2, 7                   ; xcd
    s_lshr_b32 s35, s2, 3                  ; j
    s_lshr_b32 s53, s35, 3
    s_lshl_b32 s54, s34, 2
    s_add_u32 s53, s53, s54                ; head
    s_and_b32 s36, s35, 7
    s_lshl_b32 s36, s36, 2
    s_add_u32 s36, s36, s{m}
    s_lshl_b32 s37, s36, 7
    s_mul_i32 s36, s36, {2*88*1024}
    s_lshl_b32 s38, s53, 10
    s_add_u32 s36, s36, s38
    s_add_u32 s36, s36, {A3}
    s_lshl_b32 s53, s53, 2
    s_add_u32 s53, s53, s37
    s_add_u32 s53, s53, {OFL}
    s_add_u32 s37, s36, {88*1024}
    s_mul_i32 s38, s35, 9363
    s_lshr_b32 s38, s38, 16                ; j/7
    s_mul_i32 s39, s38, 7
    s_sub_u32 s39, s35, s39                ; fb
    s_add_u32 s38, s38, s54
    s_lshl_b32 s39, s39, 2
    s_add_u32 s39, s39, s{m}               ; ft
    s_lshl_b32 s54, s38, 7
    s_lshl_b32 s34, s39, 2
    s_add_u32 s54, s54, s34
    s_add_u32 s54, s54, {UFL}
    s_mul_i32 s38, s38, {2*88*1024}
    s_lshl_b32 s39, s39, 11
    s_add_u32 s38, s38, s39
    s_add_u32 s38, s38, {A3 + 32*1024}
    s_cmp_lt_u32 s35, 28
    s_cselect_b32 s38, s38, 0x7ff00000
    s_cselect_b32 s54, s54, 0x7ff00000
    s_add_u32 s39, s38, {88*1024}
    """)
```

```python
from common import *
SOLO = True
import struct
def float_hex(f): return hex(struct.unpack("<I", struct.pack("<f", f))[0])

IMG = 1024
LDS_FLAG = 0
LDS_STG = 131072
K2_LDS = 163840
VAR = dict(margin=100.0, U=8, prio_att=1, prio_g=0, fuse3=True, sentA=False, sentW=1, cdelay=2)

QA, QB = 4, 8
CA, CB = 16, 32
OA, OB = 48, 64
SA, SB = 80, 96
PA, PB = 112, 120
KR = [128, 132, 136, 140]
V0R = [144, 148, 152, 156]
V1R = [160, 164, 168, 172]
AK, AV0, AV1 = 176, 177, 178
GK, GV0, GV1 = 179, 180, 181
MA, MB = 182, 183
TM = 184
FL = 188
PF, PFA = 190, 191
STT = 192

def max16(p, S, M, first):
    if first:
        p(f"v_max3_f32 v{M}, v{S}, v{S+1}, v{S+2}")
        p(f"v_max_f32 v{M}, v{M}, v{S+3}")
        r = range(4, 16, 2)
    else: r = range(0, 16, 2)
    for k in r: p(f"v_max3_f32 v{M}, v{M}, v{S+k}, v{S+k+1}")

def flag_wait(p, name, addr_v, off, val, tmpq, sleep=1):
    p.label(name)
    p(f"ds_read_b128 {vr(tmpq,4)}, v{addr_v} offset:{off}")
    p("s_waitcnt lgkmcnt(0)")
    p(f"v_min_u32 v{tmpq}, v{tmpq}, v{tmpq+1}\nv_min3_u32 v{tmpq}, v{tmpq}, v{tmpq+2}, v{tmpq+3}")
    p(f"v_cmp_gt_u32 vcc, {val}, v{tmpq}")
    p(f"s_cbranch_vccz {name}_ok\ns_sleep {sleep}\ns_branch {name}")
    p.label(name + "_ok")

def spin1(p, name, addr_v, off, val, tmp):
    p.label(name)
    p(f"ds_read_b32 v{tmp}, v{addr_v} offset:{off}")
    p("s_waitcnt lgkmcnt(0)")
    p(f"v_cmp_gt_u32 vcc, {val}, v{tmp}")
    p(f"s_cbranch_vccz {name}_ok\ns_sleep 1\ns_branch {name}")
    p.label(name + "_ok")

def att_loop_body(U):
    out = []
    def blk(S, P, So, Po, Mqk, Mpv1, Mpv0, extra):
        e = lambda k: I(f"v_exp_f32 v{S+k}, v{S+k}")
        c = lambda k: I(f"v_cvt_pk_bf16_f32 v{P+k}, v{S+2*k}, v{S+2*k+1}")
        co = lambda k: I(f"v_cvt_pk_bf16_f32 v{Po+k}, v{So+2*k}, v{So+2*k+1}")
        o = []
        pq, p1, p0 = VAR.get('pos', (2, 6, 12))
        cs = VAR.get('cs', {0: [-6], 1: [-7], 3: [0], 5: [1], 7: [2], 9: [3], 11: [4], 13: [5]})
        if VAR.get('perm'):
            c = lambda k: I(f"v_perm_b32 v{P+k}, v{S+2*k+1}, v{S+2*k}, s45")
            co = lambda k: I(f"v_perm_b32 v{Po+k}, v{So+2*k+1}, v{So+2*k}, s45")
        for k in range(16):
            o.append(e(k))
            for j in cs.get(k, []):
                if j < 0: o.append(co(-j))
            if k == pq and not VAR.get('nom'): o.append(Mqk)
            if k == p1 and not VAR.get('nom'): o.append(Mpv1)
            if k == p0 and not VAR.get('nom'): o.append(Mpv0)
            o += extra.get(k, [])
            for j in cs.get(k, []):
                if j >= 0: o.append(c(j))
        return o
    for u in range(U):
        s0 = u % 4; s1 = (u+1) % 4; sm = (u-1) % 4
        exA = {}; exB = {}
        if u % 2 == 0:
            rd = []
            for d in (2, 3):
                o_ = (u+d-1)*KVT
                rd += [I(f"ds_read_b128 {vr(KR[(u+d)%4],4)}, v{AK} offset:{o_}"),
                       I(f"ds_read_b128 {vr(V0R[(u+d)%4],4)}, v{AV0} offset:{o_}"),
                       I(f"ds_read_b128 {vr(V1R[(u+d)%4],4)}, v{AV1} offset:{o_}")]
            exA = {VAR.get('rdpos', 6): rd}
            if VAR.get('nods'): exA = {}
        if u == U-1:
            exB = {2: [I("s_add_u32 s41, s41, 1")], 3: [I("s_bitcmp1_b32 s45, s41" if VAR['sentA'] else "s_cmp_eq_u32 s41, 1")], 4: [I("s_cbranch_scc1 L_att_sync2"), I("L_att_sync2_ret:")],
                   5: [I(f"v_mov_b32 v{TM}, s41")], 7: [I(f"ds_write_b32 v{FL+1}, v{TM} offset:80")],
                   6: [I(f"v_add_u32 v{AK}, {U*KVT}, v{AK}")], 8: [I(f"v_add_u32 v{AV0}, {U*KVT}, v{AV0}")], 10: [I(f"v_add_u32 v{AV1}, {U*KVT}, v{AV1}")],
                   14: [I(f"s_cmp_lt_u32 s41, {64//U}")]}
        if u % 2 == 1: exB[0] = [I("s_waitcnt lgkmcnt(0)")]
        out += blk(SA, PA, SB, PB, mfma32(vr(SB,16), vr(KR[s0],4), vr(QB,4), vr(CB,16)),
                   mfma32(vr(OB,16), vr(V1R[sm],4), vr(PB+4,4), vr(OB,16)),
                   mfma32(vr(OA,16), vr(V0R[s0],4), vr(PA,4), vr(OA,16)), exA)
        out += blk(SB, PB, SA, PA, mfma32(vr(SA,16), vr(KR[s1],4), vr(QA,4), vr(CA,16)),
                   mfma32(vr(OA,16), vr(V1R[s0],4), vr(PA+4,4), vr(OA,16)),
                   mfma32(vr(OB,16), vr(V0R[s0],4), vr(PB,4), vr(OB,16)), exB)
    return out

def k2_ids(p):
    p(f"""
    s_mov_b32 s24, s10
    s_and_b32 s25, s2, 7
    s_lshr_b32 s26, s2, 3
    s_lshr_b32 s27, s26, 3
    s_lshl_b32 s28, s25, 2
    s_add_u32 s27, s27, s28                ; head
    s_and_b32 s28, s26, 7                  ; qb
    """)
def gen_attention(p, st):
    U = VAR['U']
    k2_ids(p)
    p(f"""
    s_mul_i32 s30, s27, {KVH}
    s_add_u32 s30, s30, {KV}
    s_lshl_b32 s31, s27, 16
    s_lshl_b32 s32, s28, 3
    s_lshl_b32 s33, s24, 1
    s_add_u32 s32, s32, s33
    s_lshl_b32 s33, s32, 10
    s_add_u32 s31, s31, s33
    v_lshlrev_b32 v{GK}, 4, v1
    v_mov_b32 v{FL}, {LDS_FLAG}
    s_lshl_b32 s37, s24, 2
    v_add_u32 v{FL+1}, s37, v{FL}
    v_mov_b32 v{TM+1}, 1
    s_waitcnt vmcnt(0)
    ds_write_b32 v{FL+1}, v{TM+1} offset:112
    """)
    st(p, 8)
    p(f"""
    v_and_b32 v{TM}, 31, v1
    v_lshrrev_b32 v{TM+1}, 5, v1
    v_lshlrev_b32 v{TM+1}, 8, v{TM+1}
    v_lshl_add_u32 v{TM+1}, v{TM}, 4, v{TM+1}
    v_and_b32 v{TM+2}, 27, v{TM}
    v_cmp_eq_u32 vcc, 16, v{TM+2}
    v_mov_b32 v{TM+2}, 2064
    v_mov_b32 v{TM+3}, 2048
    v_cndmask_b32 v{TM+2}, v{TM+2}, v{TM+3}, vcc
    v_mov_b32 v{TM+3}, 0x3f803f80
    v_cndmask_b32 v{PF}, 0, v{TM+3}, vcc
    v_cmp_gt_u32 vcc, 16, v{TM}
    v_add_u32 v{GV0}, 1024, v{TM+1}
    v_add_u32 v{GV1}, 1536, v{TM+1}
    v_cndmask_b32 v{AV0}, v{TM+2}, v{GV0}, vcc
    v_cndmask_b32 v{AV1}, v{TM+2}, v{GV1}, vcc
    s_mov_b32 s48, 0xffff
    s_mov_b32 s49, 0xffff
    """)
    for r in V0R[:2] + V1R[:2]:
        for e in range(4): p(f"v_mov_b32 v{r+e}, v{PF}")
    ones_zeros(p, 0, 12, MA, STT+8)
    if VAR.get('sentW') and not VAR.get('oflag', 1):
        p(f"""
        s_mul_i32 s33, s32, {88*1024}
        s_lshl_b32 s34, s27, 10
        s_add_u32 s33, s33, s34
        s_add_u32 s33, s33, {A3}
        s_add_u32 s39, s33, {88*1024}
        s_lshl_b32 s35, s32, 6
        s_lshl_b32 s34, s27, 2
        s_add_u32 s35, s35, s34
        s_add_u32 s35, s35, {OFL}
        s_mul_i32 s42, s26, 9363
        s_lshr_b32 s42, s42, 16                ; j/7
        s_mul_i32 s43, s42, 7
        s_sub_u32 s43, s26, s43                ; fb
        s_lshl_b32 s44, s25, 2
        s_add_u32 s42, s42, s44
        s_lshl_b32 s43, s43, 2
        s_add_u32 s43, s43, s24                ; ft
        s_mul_i32 s46, s42, {2*88*1024}
        s_lshl_b32 s44, s43, 11
        s_add_u32 s46, s46, s44
        s_add_u32 s46, s46, {A3 + 32*1024}
        s_lshl_b32 s42, s42, 7
        s_lshl_b32 s43, s43, 2
        s_add_u32 s42, s42, s43
        s_add_u32 s42, s42, {UFL}
        s_add_u32 s47, s46, {88*1024}
        s_cmp_lt_u32 s26, 28
        s_cselect_b32 s46, s46, 0x7ff00000
        s_cselect_b32 s47, s47, 0x7ff00000
        s_cselect_b32 s42, s42, 0x7ff00000
        s_mov_b32 s43, s47
        """)
        for r in range(4): p(f"v_mov_b32 v{STT+r}, -1")
        def ph_stores():
            p(f"buffer_store_dwordx4 {vr(STT,4)}, v{GK}, s[12:15], s33 offen sc1\nbuffer_store_dwordx4 {vr(STT,4)}, v{GK}, s[12:15], s39 offen sc1")
            for k in range(0 if VAR.get('uflag', 1) else 4): p(f"buffer_store_dwordx4 {vr(STT,4)}, v{GK}, s[12:15], s{(46, 43)[k//2]} offen offset:{(k%2)*1024} sc1")
        def ph_flags():
            p(f"v_mov_b32 v{STT+4}, s11\nv_mov_b32 v{STT+5}, 1\ns_waitcnt vmcnt(0)\nbuffer_store_dword v{STT+4}, off, s[12:15], s35 sc1" + ("" if VAR.get('uflag', 1) else f"\nbuffer_store_dword v{STT+4}, off, s[12:15], s42 sc1\nds_write_b32 v{FL+1}, v{STT+5} offset:64"))
    p("s_cmp_lg_u32 s24, 0\ns_cbranch_scc1 " + ("L_att_ph" if (VAR.get('sentW') and not VAR.get('oflag', 1)) else "L_att_go"))
    flag_wait(p, "L_att_ad", FL, 112, 1, TM, sleep=0)
    p(f"""
    v_mov_b32 v{TM}, s11
    buffer_store_dword v{TM}, off, s[12:15], s83 sc1
    s_lshr_b32 s34, s27, 2
    s_lshl_b32 s34, s34, 12
    s_add_u32 s34, s34, {PFL}
    v_and_b32 v{MA}, 31, v1
    v_lshlrev_b32 v{MA}, 7, v{MA}
    """)
    if VAR.get('pp', 0):
        p("s_mov_b32 s47, 0")
        for k in range(2): p(f"buffer_load_dword v{200+k}, v{MA}, s[12:15], s34 offen sc1\ns_sleep {VAR.get('ppsleep', 3)}")
        p.label("L_att_p")
        for k in range(3):
            p(f"buffer_load_dword v{200+(k+2)%3}, v{MA}, s[12:15], s34 offen sc1\ns_waitcnt vmcnt(2)\nv_cmp_ne_u32 vcc, s11, v{200+k}\ns_cbranch_vccz L_att_p_ok\ns_sleep {VAR.get('ppsleep', 3)}")
        p("s_add_u32 s47, s47, 1\ns_cmp_lt_u32 s47, 0x8000\ns_cbranch_scc1 L_att_p")
        p.label("L_att_p_ok")
    else:
        if VAR.get('sentW') and not VAR.get('oflag', 1): ph_stores(); ph_flags()
        if VAR.get('q0'): p(f"s_sleep {VAR['q0']}")
        poll(p, "L_att_p", 34, MA, None, TM, sleep=VAR.get('qsleep', 4))
    p(f"v_mov_b32 v{TM}, 1\nds_write_b32 v{FL}, v{TM} offset:96")
    if VAR.get('sentW') and not VAR.get('oflag', 1):
        p("s_branch L_att_go")
        p.label("L_att_ph")
        if not VAR.get('oflag', 1): ph_stores(); ph_flags()
    p.label("L_att_go")
    spin1(p, "L_att_gw", FL, 96, 1, TM)
    st(p, 9)
    p(f"buffer_load_dwordx4 {vr(QA,4)}, v{GK}, s[12:15], s31 offen sc1")
    p(f"buffer_load_dwordx4 {vr(QB,4)}, v{GK}, s[12:15], s31 offen offset:1024 sc1")
    p(f"buffer_load_dwordx4 {vr(KR[0],4)}, v{GK}, s[12:15], s30 offen sc1")
    p(f"buffer_load_dwordx4 {vr(KR[1],4)}, v{GK}, s[12:15], s30 offen offset:{KVG} sc1")
    p("s_mov_b64 exec, s[48:49]")
    for t in range(2):
        p(f"buffer_load_dwordx4 {vr(V0R[t],4)}, v{GV0}, s[12:15], s30 offen offset:{t*KVG} sc1")
        p(f"buffer_load_dwordx4 {vr(V1R[t],4)}, v{GV1}, s[12:15], s30 offen offset:{t*KVG} sc1")
    p(f"""
    s_mov_b64 exec, -1
    s_lshl_b32 s38, s24, 11
    s_add_u32 s38, s38, s30
    s_mul_i32 s37, s24, {KVT}
    """)
    for i in range(3):
        p(f"s_add_u32 m0, s37, {(1+4*i)*KVT}\ns_add_u32 s36, s38, {(2+4*i)*KVG}")
        for k in range(2): p(f"buffer_load_dwordx4 v{GK}, s[12:15], s36 offen offset:{k*1024} sc1 lds")
    oz_write(p, 0, 12, MA, STT+8)
    p(f"s_setprio {VAR.get('prio_pro', VAR['prio_att'])}")
    if VAR['sentA']:
        p(f"""
        s_mul_i32 s33, s32, {88*1024}
        s_lshl_b32 s34, s27, 10
        s_add_u32 s33, s33, s34
        s_add_u32 s33, s33, {A3}
        s_add_u32 s39, s33, {88*1024}
        s_lshl_b32 s35, s32, 6
        s_lshl_b32 s34, s27, 2
        s_add_u32 s35, s35, s34
        s_add_u32 s35, s35, {OFL}
        s_mul_i32 s42, s26, 9363
        s_lshr_b32 s42, s42, 16                ; j/7
        s_mul_i32 s43, s42, 7
        s_sub_u32 s43, s26, s43                ; fb
        s_lshl_b32 s44, s25, 2
        s_add_u32 s42, s42, s44
        s_lshl_b32 s43, s43, 2
        s_add_u32 s43, s43, s24                ; ft
        s_mul_i32 s46, s42, {2*88*1024}
        s_lshl_b32 s44, s43, 11
        s_add_u32 s46, s46, s44
        s_add_u32 s46, s46, {A3 + 32*1024}
        s_lshl_b32 s42, s42, 7
        s_lshl_b32 s43, s43, 2
        s_add_u32 s42, s42, s43
        s_add_u32 s42, s42, {UFL}
        s_add_u32 s47, s46, {88*1024}
        s_mov_b32 s45, {2 + (1 << VAR.get('s3it', 2))}
        s_mov_b32 s44, 0
        s_cmp_lt_u32 s26, 28
        s_cbranch_scc1 L_att_nopre
        """)
        for r in range(4): p(f"v_mov_b32 v{STT+r}, -1")
        p(f"buffer_store_dwordx4 {vr(STT,4)}, v{GK}, s[12:15], s33 offen sc1\nbuffer_store_dwordx4 {vr(STT,4)}, v{GK}, s[12:15], s39 offen sc1")
        p(f"v_mov_b32 v{STT}, s11\ns_waitcnt vmcnt(0)\nbuffer_store_dword v{STT}, off, s[12:15], s35 sc1\ns_mov_b32 s45, 2\ns_mov_b32 s44, 1")
        p.label("L_att_nopre")
    p(f"v_mov_b32 v{TM}, 1\nds_write_b32 v{FL+1}, v{TM} offset:176")
    p(f"""
    v_mov_b32 v{AK}, v{GK}
    """)
    for r in list(range(OA, OA+32)) + list(range(PB+4, PB+6)) + list(range(V1R[3], V1R[3]+4)):
        p(f"v_mov_b32 v{r}, 0")
    p(f"s_waitcnt vmcnt(10)")
    p.add([mfma32(vr(SA,16), vr(KR[0],4), vr(QA,4), "0"), mfma32(vr(SB,16), vr(KR[0],4), vr(QB,4), "0"),
           mfma32(vr(CA,16), vr(KR[1],4), vr(QA,4), "0"), mfma32(vr(CB,16), vr(KR[1],4), vr(QB,4), "0")])
    max16(p, SA, MA, True); max16(p, SB, MB, True); max16(p, CA, MA, False); max16(p, CB, MB, False)
    p(f"""
    s_mov_b32 s40, {float_hex(VAR['margin'])}
    v_mov_b32 v{TM}, v{MA}
    v_mov_b32 v{TM+1}, v{MB}
    v_permlane32_swap_b32 v{TM}, v{MA}
    v_permlane32_swap_b32 v{TM+1}, v{MB}
    v_max_f32 v{MA}, v{MA}, v{TM}
    v_max_f32 v{MB}, v{MB}, v{TM+1}
    v_add_f32 v{MA}, s40, v{MA}
    v_add_f32 v{MB}, s40, v{MB}
    """)
    for r in range(16): p(f"v_sub_f32 v{CA+r}, 0, v{MA}")
    for r in range(12, 16): p(f"v_mov_b32 v{SB+r}, 0")
    p.add([mfma32(vr(SA,16), vr(KR[0],4), vr(QA,4), vr(CA,16))])
    for r in range(16): p(f"v_sub_f32 v{CB+r}, 0, v{MB}")
    p(f"s_waitcnt vmcnt(0) lgkmcnt(0)")
    p(f"v_mov_b32 v{TM}, 1\nds_write_b32 v{FL+1}, v{TM}")
    flag_wait(p, "L_att_f1", FL, 0, 1, TM)
    st(p, 1)
    if VAR.get('prio_pro'): p(f"s_setprio {VAR['prio_att']}")
    p("s_mov_b32 s41, 0")
    p(".p2align 6")
    p.label("L_att_loop")
    p.add(att_loop_body(U))
    p("s_cbranch_scc1 L_att_loop")
    st(p, 2)
    if VAR.get('endprio'): p("s_setprio 3")
    p(f"v_cvt_pk_bf16_f32 v{PB+6}, v{SB+12}, v{SB+13}\nv_cvt_pk_bf16_f32 v{PB+7}, v{SB+14}, v{SB+15}")
    p(f"""
    s_mul_i32 s33, s32, {88*1024}
    s_lshl_b32 s34, s27, 10
    s_add_u32 s33, s33, s34
    s_add_u32 s33, s33, {A3}
    """)
    p.add([mfma32(vr(OB,16), vr(V1R[3],4), vr(PB+4,4), vr(OB,16))])
    p("s_waitcnt lgkmcnt(0)")
    p(f"s_mov_b32 s36, 0\ns_mov_b32 s40, {float_hex(2.0**-112)}")
    p.label("L_att_chk")
    p(f"v_mul_f32 v{TM}, 0, v{OA+8}")
    for r in range(8): p(f"v_fmac_f32 v{TM}, 0, v{OA+r}")
    p(f"v_max3_f32 v{TM+1}, |v{OA}|, |v{OA+1}|, |v{OA+2}|\nv_max3_f32 v{TM+1}, v{TM+1}, |v{OA+3}|, |v{OA+4}|\nv_max3_f32 v{TM+1}, v{TM+1}, |v{OA+5}|, |v{OA+6}|\nv_max_f32_e64 v{TM+1}, v{TM+1}, |v{OA+7}|")
    p(f"v_mov_b32 v{TM+2}, v{TM+1}\nv_permlane32_swap_b32 v{TM+1}, v{TM+2}\nv_max_f32 v{TM+1}, v{TM+1}, v{TM+2}")
    p(f"v_cmp_u_f32 vcc, v{TM}, v{TM}\nv_cmp_gt_f32 s[38:39], s40, v{TM+1}\ns_or_b64 vcc, vcc, s[38:39]")
    p("s_cbranch_vccnz L_att_slow")
    p.label("L_att_fin")
    p(f"v_rcp_f32 v{MA}, v{OA+8}")
    p("s_cmp_lg_u32 s36, 0")
    for r in range(8): p(f"v_mul_f32 v{OA+r}, v{OA+r}, v{MA}")
    for k in range(4): p(f"v_cvt_pk_bf16_f32 v{PA+k}, v{OA+2*k}, v{OA+2*k+1}")
    for k in range(0 if VAR.get('oflag', 1) else 4): p(f"v_min_u32 v{PA+k}, -2, v{PA+k}")
    p(f"buffer_store_dwordx4 {vr(PA,4)}, v{GK}, s[12:15], s33 offen")
    p("s_cbranch_scc1 L_att_done")
    p(f"s_mov_b32 s36, 1\ns_add_u32 s33, s33, {88*1024}")
    for r in range(9): p(f"v_mov_b32 v{OA+r}, v{OB+r}")
    for r in range(4): p(f"v_mov_b32 v{QA+r}, v{QB+r}")
    p("s_branch L_att_chk")
    p.label("L_att_done")
    if VAR.get('oflag', 1):
        p(f"s_lshl_b32 s33, s32, 11\ns_lshl_b32 s34, s27, 7\ns_add_u32 s33, s33, s34\ns_add_u32 s33, s33, {OFX}\nv_mov_b32 v{TM}, s11\ns_waitcnt vmcnt(0)\nbuffer_store_dword v{TM}, off, s[12:15], s33 sc1")
    st(p, 3)
    p("s_endpgm")
    p.label("L_att_sync2")
    if VAR['sentA']: p("s_cmp_lg_u32 s41, 1\ns_cbranch_scc1 L_att_sync3")
    if VAR['sentA']:
        p("s_cmp_lg_u32 s44, 0\ns_cbranch_scc1 L_att_f2")
        for r in range(4): p(f"v_mov_b32 v{STT+r}, -1")
        p(f"buffer_store_dwordx4 {vr(STT,4)}, v{GK}, s[12:15], s33 offen sc1\nbuffer_store_dwordx4 {vr(STT,4)}, v{GK}, s[12:15], s39 offen sc1")
        for k in range(4): p(f"buffer_store_dwordx4 {vr(STT,4)}, v{GK}, s[12:15], s{46+k//2} offen offset:{(k%2)*1024} sc1")
    flag_wait(p, "L_att_f2", FL, 48, 1, TM)
    p("s_branch L_att_sync2_ret")
    p.label("L_att_sync3")
    if VAR['sentA']:
        p(f"v_mov_b32 v{TM}, s11\nv_mov_b32 v{TM+1}, 1\ns_waitcnt vmcnt(0)\nbuffer_store_dword v{TM}, off, s[12:15], s35 sc1\nbuffer_store_dword v{TM}, off, s[12:15], s42 sc1\nds_write_b32 v{FL+1}, v{TM+1} offset:64")
    p("s_branch L_att_sync2_ret")
    p.label("L_att_slow")
    p(f"v_mov_b32 v{MA}, 0xff800000\ns_mov_b32 s41, 0\ns_mov_b32 s37, s30")
    p.label("L_att_sl1")
    p(f"buffer_load_dwordx4 {vr(KR[0],4)}, v{GK}, s[12:15], s37 offen sc1")
    p("s_waitcnt vmcnt(0)")
    p.add([mfma32(vr(SA,16), vr(KR[0],4), vr(QA,4), "0")])
    max16(p, SA, MA, False)
    p(f"s_add_u32 s37, s37, {KVG}\ns_add_u32 s41, s41, 1\ns_cmp_lt_u32 s41, 64\ns_cbranch_scc1 L_att_sl1")
    p(f"v_mov_b32 v{TM}, v{MA}\nv_permlane32_swap_b32 v{TM}, v{MA}\nv_max_f32 v{MA}, v{MA}, v{TM}")
    for r in range(16): p(f"v_sub_f32 v{CA+r}, 0, v{MA}\nv_mov_b32 v{OA+r}, 0")
    for e in range(4): p(f"v_mov_b32 v{V0R[0]+e}, v{PF}\nv_mov_b32 v{V1R[0]+e}, v{PF}")
    p("s_mov_b32 s41, 0\ns_mov_b32 s37, s30")
    p.label("L_att_sl2")
    p(f"buffer_load_dwordx4 {vr(KR[0],4)}, v{GK}, s[12:15], s37 offen sc1")
    p("s_mov_b64 exec, s[48:49]")
    p(f"buffer_load_dwordx4 {vr(V0R[0],4)}, v{GV0}, s[12:15], s37 offen sc1")
    p(f"buffer_load_dwordx4 {vr(V1R[0],4)}, v{GV1}, s[12:15], s37 offen sc1")
    p("s_mov_b64 exec, -1")
    p("s_waitcnt vmcnt(0)")
    p.add([mfma32(vr(SA,16), vr(KR[0],4), vr(QA,4), vr(CA,16))])
    for k in range(16): p(f"v_exp_f32 v{SA+k}, v{SA+k}")
    for k in range(8): p(f"v_cvt_pk_bf16_f32 v{PA+k}, v{SA+2*k}, v{SA+2*k+1}")
    p.add([mfma32(vr(OA,16), vr(V0R[0],4), vr(PA,4), vr(OA,16)), mfma32(vr(OA,16), vr(V1R[0],4), vr(PA+4,4), vr(OA,16))])
    p(f"s_add_u32 s37, s37, {KVG}\ns_add_u32 s41, s41, 1\ns_cmp_lt_u32 s41, 64\ns_cbranch_scc1 L_att_sl2")
    p("s_nop 15\ns_branch L_att_fin")

ACC = 4
NZF = 16
ZR = 132
WR = 196
VL = 244; VD = 245; VW = 247
GF = 251
G = 232
def acc(i, tt): return ACC + (i*2+tt)*16

def ones_zeros(p, l0, l1, va, vd):
    p(f"v_mul_u32_u24 v{va+1 if False else vd+8}, {KVT}, v1")
    for e in range(4): p(f"v_mov_b32 v{vd+e}, 0x3f803f80\nv_mov_b32 v{vd+4+e}, 0")
def oz_write(p, l0, l1, va, vd):
    m = ((1 << l1) - 1) ^ ((1 << l0) - 1)
    p(f"s_mov_b32 exec_lo, {m & 0xffffffff:#x}\ns_mov_b32 exec_hi, {m >> 32:#x}")
    p(f"ds_write_b128 v{vd+8}, {vr(vd,4)} offset:{KVT+2048}\nds_write_b128 v{vd+8}, {vr(vd+4,4)} offset:{KVT+2064}")
    p("s_mov_b64 exec, -1")
def kv_rest(p, uniq):
    ones_zeros(p, 12, 62, 0, 8)
    oz_write(p, 12, 62, 0, 8)
    for i in range(13):
        if i == 12: p(f"s_add_u32 s62, s62, {(13+4*i)*KVT}\ns_add_u32 s61, s63, {(14+4*i)*KVG}\ns_cmp_ge_u32 s24, 2\ns_cselect_b32 m0, 0x30000, s62")
        else: p(f"s_add_u32 m0, s62, {(13+4*i)*KVT}\ns_add_u32 s61, s63, {(14+4*i)*KVG}")
        for k in range(2): p(f"buffer_load_dwordx4 v{VL}, s[12:15], s61 offen offset:{k*1024} sc1 lds", tag="kv")

def flag_addr(p):
    p(f"""
    s_lshr_b32 s48, s26, 3
    s_lshl_b32 s47, s25, 2
    s_add_u32 s48, s48, s47
    s_lshl_b32 s48, s48, 7                 ; tb'*128
    s_lshl_b32 s47, s24, 5
    s_add_u32 s46, s48, s47
    s_mul_i32 s47, s24, 28
    s_add_u32 s48, s48, s47
    {"s_mov_b32 s48, s49" if VAR.get('uflag', 1) else "s_add_u32 s48, s48, %d" % (UFL-OFL)}
    s_and_b32 s47, s26, 7
    s_lshl_b32 s47, s47, 7
    s_add_u32 s47, s47, {WFL-OFL}          ; W flags
    v_lshlrev_b32 v{G+5}, 2, v1
    v_mov_b32 v{G+6}, s48
    v_add_u32 v{G+7}, s48, v{G+5}
    v_cmp_gt_u32 vcc, {0 if VAR.get('uflag', 1) else 7}, v1
    v_cndmask_b32 v{G+6}, v{G+6}, v{G+7}, vcc
    v_subrev_u32 v{G+5}, 128, v{G+5}
    v_add_u32 v{G+7}, s47, v{G+5}
    v_cmp_gt_u32 vcc, 64, v{G+5}
    v_cndmask_b32 v{G+6}, v{G+6}, v{G+7}, vcc
    v_subrev_u32 v{G+5}, 64, v{G+5}
    v_add_u32 v{G+7}, s46, v{G+5}
    v_cmp_gt_u32 vcc, {0 if VAR.get('oflag', 1) else 32}, v{G+5}
    v_cndmask_b32 v{G+6}, v{G+6}, v{G+7}, vcc
    v_subrev_u32 v{G+5}, 32, v{G+5}
    v_add_u32 v{G+7}, s49, v{G+5}
    v_cmp_gt_u32 vcc, 8, v{G+5}
    v_cndmask_b32 v{G+6}, v{G+6}, v{G+7}, vcc
    s_mov_b32 s48, {OFL}
    """)
def gen_gemm(p, st, mid=None):
    k2_ids(p)
    p(f"""
    s_load_dwordx4 s[4:7], s[0:1], {KA_WSP}
    s_sub_u32 s24, s24, 4                  ; q = K quarter
    v_lshlrev_b32 v{VL}, 4, v1
    s_mul_i32 s63, s27, {KVH}
    s_lshl_b32 s62, s24, 11
    s_add_u32 s63, s63, s62
    s_add_u32 s63, s63, {KV}
    s_mul_i32 s62, s24, {KVT}
    s_lshl_b32 s46, s24, 2
    s_add_u32 s46, s46, {LDS_FLAG}
    v_mov_b32 v{GF}, s46
    v_mov_b32 v0, 1
    v_mov_b32 v2, {LDS_FLAG}
    s_waitcnt lgkmcnt(0)
    ds_write_b32 v{GF}, v0 offset:160
    """)
    srd(p, 16, 4, 2048*2048*2); srd(p, 20, 6, 4096)
    flag_wait(p, "L_g_bd", 2, 160, 1, 4)
    flag_wait(p, "L_g_go", 2, 176, 1, 4, sleep=2)
    kv_rest(p, "a")
    p(f"""
    s_cmp_ge_u32 s26, 28
    s_cbranch_scc1 L_idle
    s_setprio 3
    s_mul_i32 s30, s26, 9363
    s_lshr_b32 s30, s30, 16                ; j/7
    s_mul_i32 s31, s30, 7
    s_sub_u32 s31, s26, s31                ; fb = j%7
    s_lshl_b32 s32, s25, 2
    s_add_u32 s30, s30, s32                ; tb
    s_lshl_b32 s33, s31, 19
    s_add_u32 s33, s33, {Z2F}
    s_lshl_b32 s34, s24, 17
    s_add_u32 s33, s33, s34
    s_lshl_b32 s56, s30, 18
    s_lshl_b32 s34, s24, 10
    s_add_u32 s56, s56, s34
    s_lshl_b32 s36, s24, 13
    s_add_u32 s36, s36, {LDS_STG}
    s_add_u32 s37, s36, 4096
    v_lshrrev_b32 v2, 3, v1
    v_lshrrev_b32 v3, 4, v1
    v_xor_b32 v3, v3, v1
    v_and_b32 v3, 7, v3
    v_lshlrev_b32 v3, 4, v3
    v_lshl_add_u32 v{VD}, v2, 12, v3
    v_xor_b32 v{VD+1}, 64, v{VD}
    v_add_u32 v{VD+1}, {8*4096-1024}, v{VD+1}
    """)
    for i in range(4):
        p(f"s_add_u32 s38, s24, {i}\ns_and_b32 s38, s38, 3\ns_lshl_b32 s38, s38, 10\ns_add_u32 s{52+i}, s33, s38")
    p(f"""
    s_lshl_b32 s38, s31, 12                ; (2fb)*16*128
    s_lshl_b32 s39, s24, 9
    s_add_u32 s39, s39, s38
    s_add_u32 s39, s39, {PFL+16}
    s_lshr_b32 s49, s24, 1
    s_lshl_b32 s49, s49, 11
    s_add_u32 s49, s49, s38
    s_lshr_b32 s38, s30, 1
    s_lshl_b32 s38, s38, 7
    s_add_u32 s49, s49, s38
    s_and_b32 s38, s30, 1
    s_lshl_b32 s38, s38, 3
    s_add_u32 s49, s49, s38
    s_add_u32 s49, s49, {PFL+32-OFL}
    v_and_b32 v4, 3, v1
    v_bfe_u32 v5, v1, 2, 1
    v_lshlrev_b32 v5, 11, v5
    v_lshl_add_u32 v4, v4, 7, v5
    v_bfe_u32 v5, v1, 3, 2
    v_lshl_add_u32 v4, v5, 2, v4
    """)
    def dma(b):
        out = []
        for i in range(8):
            if i % 4 == 0: out.append(I(f"s_mov_b32 m0, s{(66 if (b % 3 == 2 and b > 2) else 36) + i//4}"))
            if i % 2 == 0: out.append(I(f"s_add_u32 s57, s56, {(i//2)*16*4096 - (i%4)*1024}"))
            out.append(I(f"buffer_load_dwordx4 v{VD + i%2}, s[16:19], s57 offen offset:{(i%4)*1024} sc1 lds", tag=f"d{b}"))
        out.append(I("s_add_u32 s56, s56, 128"))
        return out
    def zload(n):
        i = n % 4
        return [I(f"buffer_load_dwordx4 {vr(ZR + (n%NZF)*4, 4)}, v{VL}, s[12:15], s{52+i} offen sc1", tag=f"z{n}"),
                I(f"s_add_u32 s{52+i}, s{52+i}, 4096")]
    p.add(dma(0))
    if VAR.get('ordb'):
        p.wait(vm="kv", lg0=True); p(f"ds_write_b32 v{GF}, v0 offset:48")
        poll(p, "L_pz", 39, 4, None, 5, sleep=VAR.get('zsleep', 4))
        st(p, 9)
        if VAR.get('stop') == 1: p("s_endpgm")
        for n in range(16): p.add(zload(n))
        mid(p, "a")
    else:
        mid(p, "a", [W(vm="kv", lg0=True), I(f"ds_write_b32 v{GF}, v0 offset:48")])
        p.wait(vm="kv", lg0=True); p(f"ds_write_b32 v{GF}, v0 offset:48")
        poll(p, "L_pz", 39, 4, None, 5, sleep=VAR.get('zsleep', 4))
        p(f"v_mov_b32 v0, s11\nbuffer_store_dword v0, off, s[12:15], s89 sc1")
        st(p, 9)
        if VAR.get('stop') == 1: p("s_endpgm")
        for n in range(16): p.add(zload(n))
    p(f"v_and_b32 v2, 31, v1")
    bitswap23(p, 2, 2, 3)
    p(f"""
    v_lshrrev_b32 v3, 1, v2
    v_lshrrev_b32 v{VW}, 5, v1
    v_xor_b32 v3, v3, v{VW}
    v_and_b32 v3, 7, v3
    v_lshlrev_b32 v3, 4, v3
    v_lshl_add_u32 v{VW}, v2, 7, v3
    v_add_u32 v{VW}, s36, v{VW}
    v_xor_b32 v{VW+1}, 32, v{VW}
    v_xor_b32 v{VW+2}, 64, v{VW}
    v_xor_b32 v{VW+3}, 96, v{VW}
    """)
    if VAR['fuse3']:
        flag_addr(p); p(f"v_mov_b32 v3, v{G+6}")
    p(f"s_setprio {VAR['prio_g']}")
    st(p, 1)
    wr = lambda g, tt: WR + ((g % 6)*2 + tt)*4
    def wread(b):
        return [I(f"ds_read_b128 {vr(wr(4*b+u, tt), 4)}, v{VW+u} offset:{tt*4096}", tag=f"w{b}", needs=[f"d{b}"]) for u in range(4) for tt in range(2)]
    def block_burst(b, first=False, dma_on=True, z_on=True, w_on=True):
        o = []
        for u in range(4):
            g = 4*b+u
            o.append(W(vm=[f"z{4*g+3}"]))
            for i in range(4):
                n = 4*g+i
                for tt in ((1, 0) if (VAR.get('snake') == 1 and i % 2) else (0, 1)):
                    c = "0" if (first and u == 0) else vr(acc(i,tt),16)
                    o.append(mfma32(vr(acc(i,tt),16), vr(ZR+(n%NZF)*4,4), vr(wr(g,tt),4), c))
                if VAR.get('snake') == 2 and i == 3:
                    ms = o[-8:] if not any(x.kind != "mfma" for x in o[-8:]) else None
                    if ms: o[-8:] = ms[0::2] + ms[7::-2]
                if u == 2 and i == 1 and w_on:
                    o.append(W(lg=f"w{b+1}"))
                    if dma_on: o += dma(b+2)
            if u == 1 and w_on: o += [W(vm=f"d{b+1}")] + wread(b+1)
            if z_on:
                for i in range(4): o += zload(4*g+i+NZF)
        return o
    def block(b, first=False, dma_on=True, z_on=True, w_on=True):
        if VAR.get('burst', 0): return block_burst(b, first, dma_on, z_on, w_on)
        o = []
        dm = []
        if w_on and dma_on:
            cur = []
            for x in dma(b+2):
                cur.append(x)
                if x.kind == "vmem": dm.append(cur); cur = []
            dm[-1] += cur
        wrd = wread(b+1) if w_on else []
        for u in range(4):
            g = 4*b+u
            for i in range(4):
                n = 4*g+i
                for tt in range(2):
                    if tt == 0: o.append(W(vm=[f"z{n}"]))
                    c = "0" if (first and u == 0) else vr(acc(i,tt),16)
                    o.append(mfma32(vr(acc(i,tt),16), vr(ZR+(n%NZF)*4,4), vr(wr(g,tt),4), c))
                    if VAR.get('pace'): o.append(I(f"s_nop {VAR['pace']}"))
                    if tt == 1 and z_on: o += zload(n+NZF)
                    if tt == 0:
                        if u == 2 and w_on:
                            if i == 0: o.append(W(vm=f"d{b+1}"))
                            o += wrd[2*i:2*i+2]
                        if u == 3 and dm:
                            if i == 0: o.append(W(lg=f"w{b+1}"))
                            o += dm.pop(0) + dm.pop(0)
                        elif u == 3 and i == 0 and w_on: o.append(W(lg=f"w{b+1}"))
        return o
    p.add(wread(0)); p.wait(lg="w0"); p.add(dma(1))
    p.add(block(0, first=True))
    p("s_mov_b32 s60, 0")
    hist = dma(0) + sum([zload(n) for n in range(16)], []) + dma(1) + block(0) + block(1) + block(2) + block(3) + [I("L_mark:")] + block(4) + block(5) + block(6)
    full = resolve_waits(hist)
    lb = full[next(i for i, x in enumerate(full) if x.kind == "label" and x.op == "L_mark")+1:]
    first_pass = resolve_waits(dma(0) + sum([zload(n) for n in range(16)], []) + dma(1) + block(0) + [I("L_mark:")] + block(1) + block(2) + block(3))
    fp = first_pass[next(i for i, x in enumerate(first_pass) if x.kind == "label" and x.op == "L_mark")+1:]
    assert len(fp) == len(lb)
    merged = []
    for x, y in zip(fp, lb):
        if x.kind == "wait":
            vm = min(v for v in (x.vm, y.vm) if v is not None) if (x.vm is not None or y.vm is not None) else None
            lg = min(v for v in (x.lg, y.lg) if v is not None) if (x.lg is not None or y.lg is not None) else None
            merged.append(I("s_waitcnt " + " ".join(([f"vmcnt({vm})"] if vm is not None else []) + ([f"lgkmcnt({lg})"] if lg is not None else []))))
        else:
            assert x.text == y.text, (x.text, y.text)
            merged.append(y)
    p.label("L_g_loop")
    p("s_cmp_eq_u32 s60, 1\ns_cselect_b32 s66, 0x30000, s36\ns_cselect_b32 s67, 0x30000, s37")
    p.add(merged)
    p("s_add_u32 s60, s60, 1\ns_cmp_lt_u32 s60, 2\ns_cbranch_scc1 L_g_loop")
    if VAR['fuse3']: p(f"s_mov_b32 s48, {OFL}"); p(f"buffer_load_dword v0, v3, s[12:15], s48 offen sc1", tag="fl")
    p.add(block(7, dma_on=False, z_on=False, w_on=False))
    st(p, 2)
    if VAR.get('stop') == 2: p("s_endpgm")
    p(f"s_setprio {VAR.get('prio_e', 3)}")
    p(f"""
    s_lshl_b32 s38, s30, 1
    s_mul_i32 s39, s38, {56*1024}
    s_lshl_b32 s40, s31, 2
    s_add_u32 s40, s40, s24
    s_lshl_b32 s41, s40, 11
    s_add_u32 s39, s39, s41
    s_add_u32 s39, s39, {Z1F}
    s_add_u32 s42, s39, {56*1024}
    s_mul_i32 s64, s38, {88*1024}
    s_add_u32 s64, s64, s41
    s_add_u32 s64, s64, {A3 + 32*1024}
    s_add_u32 s65, s64, {88*1024}
    s_lshl_b32 s66, s30, 12
    s_lshl_b32 s45, s40, 7
    s_add_u32 s66, s66, s45
    s_add_u32 s66, s66, {UFX}
    s_lshl_b32 s45, s30, 7
    v_lshlrev_b32 v2, 1, v2
    """)
    Z = ZR
    p(f"v_mov_b32 v{G+1}, v{GF}")
    if VAR['fuse3']:
        p.wait(vm="fl")
        p("v_cmp_ne_u32 vcc, s11, v0\ns_cbranch_vccz L_g_fl")
        poll(p, "L_p00", 48, 3, None, 0, sleep=8)
        p.label("L_g_fl")
    p(f"buffer_load_dwordx4 {vr(Z,4)}, v{VL}, s[12:15], s39 offen sc1", tag="z1")
    p(f"buffer_load_dwordx4 {vr(Z+4,4)}, v{VL}, s[12:15], s39 offen offset:1024 sc1", tag="z1")
    p(f"buffer_load_dwordx4 {vr(Z+8,4)}, v{VL}, s[12:15], s42 offen sc1", tag="z1")
    p(f"buffer_load_dwordx4 {vr(Z+12,4)}, v{VL}, s[12:15], s42 offen offset:1024 sc1", tag="z1")
    p(f"buffer_load_ushort v{Z+16}, v2, s[20:23], s45 offen sc1", tag="z1")
    p(f"buffer_load_ushort v{Z+17}, v2, s[20:23], s45 offen offset:64 sc1", tag="z1")
    if VAR['fuse3']:
        g2_scalars(p)
        w_loads(p, 0, 10)
    p(f"v_add_u32 v{G}, s36, v{VL}\nv_mov_b32 v{G+2}, {LDS_FLAG}\ns_lshl_b32 s47, s24, 14\ns_add_u32 s47, s47, {IMG}\nv_add_u32 v{G+3}, s47, v{VL}")
    for k in range(8): p(f"ds_write_b128 v{G}, {vr(acc(1,0)+4*k, 4)} offset:{k*1024}")
    flag_wait(p, "L_g_prog", G+2, 80, 4, G+4)
    for r in (2, 3):
        for k in range(8): p(f"ds_write_b128 v{G+3}, {vr(acc(r,0)+4*k, 4)} offset:{(r-2)*8192 + k*1024}")
    for r in range(1, 4):
        p(f"s_add_u32 s47, s24, {4-r}\ns_and_b32 s47, s47, 3")
        if r == 1: p(f"s_lshl_b32 s47, s47, 13\ns_add_u32 s47, s47, {LDS_STG}\nv_add_u32 v{G}, s47, v{VL}")
        else: p(f"s_lshl_b32 s47, s47, 14\ns_add_u32 s47, s47, {(r-2)*8192 + IMG}\nv_add_u32 v{2 if r == 2 else 3}, s47, v{VL}")
    p(f"v_mov_b32 v{G+3}, 1\ns_waitcnt lgkmcnt(0)\nds_write_b32 v{G+1}, v{G+3} offset:16")
    flag_wait(p, "L_g_dat", G+2, 16, 1, G+4, sleep=0)
    for r in range(1, 4):
        for k in range(8):
            p(f"ds_read_b128 {vr(acc(r,0)+4*k,4)}, v{(G, 2, 3)[r-1]} offset:{k*1024}", tag=f"r{r}_{k}")
        if r > 1:
            for k in range(8):
                p.wait(lg=f"r{r-1}_{k}")
                for e in range(4): p(f"v_add_f32 v{acc(0,0)+4*k+e}, v{acc(0,0)+4*k+e}, v{acc(r-1,0)+4*k+e}")
    for k in range(8):
        p.wait(lg=f"r3_{k}")
        for e in range(4): p(f"v_add_f32 v{acc(0,0)+4*k+e}, v{acc(0,0)+4*k+e}, v{acc(3,0)+4*k+e}")
    if (VAR['sentA'] or VAR.get('sentW')) and not VAR.get('uflag', 1): spin1(p, "L_g_pf", G+1, 64, 1, G+3)
    p.wait(vm="z1")
    T = acc(1, 0)
    p(f"v_lshlrev_b32 v{Z+16}, 16, v{Z+16}\nv_lshlrev_b32 v{Z+17}, 16, v{Z+17}")
    for tt in range(2):
        a = acc(0, tt)
        for r in range(16): p(f"v_add_f32 v{a+r}, v{a+r}, v{Z+16+tt}")
        for d in range(8):
            z = Z + tt*8 + d
            p(f"v_lshlrev_b32 v{T}, 16, v{z}\nv_and_b32 v{T+1}, 0xffff0000, v{z}")
            p(f"v_mul_f32 v{a+2*d}, v{a+2*d}, v{T}\nv_mul_f32 v{a+2*d+1}, v{a+2*d+1}, v{T+1}")
            p(f"v_cvt_pk_bf16_f32 v{T+8+tt*8+d}, v{a+2*d}, v{a+2*d+1}")
        for d in (() if VAR.get('uflag', 1) else range(8)): p(f"v_min_u32 v{T+8+tt*8+d}, -2, v{T+8+tt*8+d}")
        so = 64 + tt
        p(f"buffer_store_dwordx4 {vr(T+8+tt*8,4)}, v{VL}, s[12:15], s{so} offen")
        p(f"buffer_store_dwordx4 {vr(T+12+tt*8,4)}, v{VL}, s[12:15], s{so} offen offset:1024")
    if VAR.get('pf3'):
        p(f"s_lshl_b32 s38, s26, 2\ns_add_u32 s38, s38, s24\ns_mul_i32 s38, s38, 16384\ns_add_u32 s38, s38, {W3F}\nv_lshlrev_b32 v2, 7, v1")
        p(f"buffer_load_dword v3, v2, s[12:15], s38 offen\ns_add_u32 s38, s38, 8192\nbuffer_load_dword v3, v2, s[12:15], s38 offen")
    st(p, 3)
    if VAR['fuse3']:
        if VAR.get('uflag', 1): p(f"v_mov_b32 v{G}, s11\ns_waitcnt vmcnt(0)\nbuffer_store_dword v{G}, off, s[12:15], s66 sc1")
        p("s_branch L_g2")
    else: p("s_endpgm")
    p.label("L_idle")
    p.wait(vm="kv"); p(f"s_waitcnt vmcnt(0) lgkmcnt(0)\nds_write_b32 v{GF}, v0 offset:48")
    mid(p, "b")
    p(f"""
    s_load_dwordx2 s[36:37], s[0:1], {KA_WO}
    s_load_dwordx2 s[38:39], s[0:1], {KA_WOUT}
    s_lshl_b32 s34, s25, 2
    s_add_u32 s34, s34, s26
    s_sub_u32 s34, s34, 28                      ; L
    s_mov_b32 s54, {896*1024}
    v_lshrrev_b32 v2, 2, v1
    v_and_b32 v3, 3, v1
    v_lshlrev_b32 v3, 4, v3
    v_lshl_add_u32 v2, v2, 10, v3
    s_waitcnt lgkmcnt(0)
    s_cmp_lt_u32 s34, 16
    s_cselect_b32 s52, s36, s38
    s_cselect_b32 s53, s37, s39
    s_cselect_b32 s54, {512*1024}, s54
    s_cselect_b32 s35, 8, 14
    s_cselect_b32 s67, 0, {32*1024}
    s_mov_b32 s55, 0x20000
    s_and_b32 s34, s34, 15
    s_mul_i32 s68, s24, s35
    s_lshl_b32 s69, s68, 14
    s_lshl_b32 s60, s34, 6
    s_add_u32 s69, s69, s60
    s_mul_i32 s60, s34, {88*1024}
    s_lshl_b32 s68, s68, 10
    s_add_u32 s60, s60, s68
    s_add_u32 s60, s60, s67
    s_add_u32 s60, s60, {W3F}
    s_lshl_b32 s61, s24, 13
    s_add_u32 s61, s61, {LDS_STG}
    """)
    def w3_dma(n):
        for k in range(n):
            p(f"s_add_u32 m0, s61, {k*1024}\ns_nop 0\nbuffer_load_dwordx4 v2, s[52:55], s69 offen lds\ns_add_u32 s69, s69, 16384")
    def w3_out(n):
        for k in range(n):
            p(f"ds_read_b64_tr_b16 v[{8+4*k}:{9+4*k}], v3 offset:{k*1024}\nds_read_b64_tr_b16 v[{10+4*k}:{11+4*k}], v3 offset:{k*1024+256}")
            if k % 4 == 3: p("s_waitcnt lgkmcnt(0)")
        p("s_waitcnt lgkmcnt(0)")
        for k in range(n):
            p(f"buffer_store_dwordx4 v[{8+4*k}:{11+4*k}], v{VL}, s[12:15], s60 offen\ns_add_u32 s60, s60, 1024")
    p(f"v_mov_b32 v5, s11\ns_waitcnt vmcnt(0)\nbuffer_store_dword v5, off, s[12:15], s89 sc1")
    G0 = VAR.get('ipf0', 0); GB = VAR.get('ipfb', 0)
    NP = (8 - G0 - GB) if VAR.get('ipf', 1) else 0
    if VAR.get('ipf', 1):
        p(f"""
        s_sub_u32 s36, s26, 28
        s_lshl_b32 s36, s36, 2
        s_add_u32 s36, s36, s24                 ; wave16
        v_lshlrev_b32 v5, 12, v1
        s_lshl_b32 s56, s25, 20
        s_and_b32 s37, s36, 3
        s_lshl_b32 s37, s37, 18
        s_add_u32 s56, s56, s37
        s_lshr_b32 s37, s36, 2
        s_lshl_b32 s37, s37, 10
        s_add_u32 s56, s56, s37
        """)
        for g in range(G0, G0+GB): p(f"buffer_load_dword v6, v5, s[16:19], s56 offen offset:{g*128}")
    w3_dma(8)
    if VAR.get('ipf', 1):
        for g in range(G0+GB, 8): p(f"buffer_load_dword v6, v5, s[16:19], s56 offen offset:{g*128}")
    p(f"""
    v_lshrrev_b32 v4, 5, v1
    v_lshlrev_b32 v3, 9, v4
    v_bfe_u32 v4, v1, 2, 2
    v_lshl_add_u32 v3, v4, 6, v3
    v_bfe_u32 v4, v1, 4, 1
    v_lshl_add_u32 v3, v4, 5, v3
    v_and_b32 v4, 1, v1
    v_lshl_add_u32 v3, v4, 4, v3
    v_bfe_u32 v4, v1, 1, 1
    v_lshl_add_u32 v3, v4, 3, v3
    v_add_u32 v3, s61, v3
    s_waitcnt vmcnt({NP if GB == 0 else 0})
    """)
    w3_out(8)
    p("s_cmp_eq_u32 s35, 8\ns_cbranch_scc1 L_w3done")
    w3_dma(6)
    p("s_waitcnt vmcnt(0)")
    w3_out(6)
    p.label("L_w3done")
    if not VAR['fuse3']:
        p("s_endpgm"); return
    p(f"""
    s_lshr_b32 s33, s34, 1
    s_lshl_b32 s33, s33, 7                      ; (nt>>1)*128
    s_and_b32 s34, s34, 1
    s_lshl_b32 s34, s34, 4
    s_add_u32 s33, s33, s34
    s_lshr_b32 s34, s67, 10                     ; 0 or 32
    s_add_u32 s33, s33, s34
    s_lshl_b32 s34, s24, 2
    s_add_u32 s33, s33, s34
    s_add_u32 s33, s33, {WFL}
    v_mov_b32 v0, s11
    s_waitcnt vmcnt(0)
    buffer_store_dword v0, off, s[12:15], s33 sc1
    s_add_u32 s49, s33, {-OFL & 0xffffffff:#x}
    s_and_b32 s49, s49, -64
    """)
    flag_addr(p)
    if VAR.get('stop'): p("s_endpgm")
    p.label("L_g2w")
    p(f"s_mov_b32 s48, {OFL}")
    poll(p, "L_p0", 48, G+6, None, G+5, sleep=32)
    gen_g2(p, st)


FA = 4
def FWr(k): return 152 + 4*k if k < 20 else 68 + 4*(k-20)
def FRr(k): return 100 + 4*k if k < 13 else 232 + 4*(k-13)
FX = 84
FXU = 152
FL_ = 244; FO = 245; FT = 246
def poll(p, name, soff, voff, mask_hi_lo, tmp, bad=0, sleep=None):
    p(f"s_mov_b32 s47, 0")
    p.label(name)
    p(f"buffer_load_dword v{tmp}, v{voff}, s[12:15], s{soff} offen sc1\ns_add_u32 s47, s47, 1\ns_waitcnt vmcnt(0)")
    p(f"{'v_cmp_eq_u32 vcc, -1' if bad == -1 else 'v_cmp_ne_u32 vcc, s11'}, v{tmp}\ns_cbranch_vccz {name}_ok\ns_cmp_gt_u32 s47, 0x10000\ns_cbranch_scc1 {name}_ok\ns_sleep {sleep or VAR.get('psleep', 16)}\ns_branch {name}")
    p.label(name + "_ok")
def g2_scalars(p):
    p(f"""
    s_load_dwordx2 s[6:7], s[0:1], {KA_X}
    s_load_dwordx2 s[8:9], s[0:1], {KA_OUT}
    s_lshr_b32 s27, s26, 3
    s_lshl_b32 s28, s25, 2
    s_add_u32 s27, s27, s28                ; tb
    s_and_b32 s28, s26, 7                  ; nb
    s_and_b32 s29, s24, 1
    s_lshr_b32 s30, s24, 1
    s_lshl_b32 s32, s27, 1
    s_add_u32 s33, s32, s29
    s_xor_b32 s34, s33, 1
    s_lshl_b32 s32, s28, 1
    s_add_u32 s35, s32, s30
    s_xor_b32 s37, s35, 1
    s_mul_i32 s40, s33, {88*1024}
    s_mul_i32 s41, s34, {88*1024}
    s_mul_i32 s42, s35, {88*1024}
    s_mul_i32 s43, s37, {88*1024}
    s_add_u32 s40, s40, {A3}
    s_add_u32 s41, s41, {A3}
    s_add_u32 s42, s42, {W3F}
    s_add_u32 s43, s43, {W3F}
    s_mul_i32 s31, s24, {14*1024}
    s_add_u32 s31, s31, {32*1024}
    s_lshl_b32 s32, s24, 13
    s_lshl_b32 s44, s33, 15
    s_lshl_b32 s45, s35, 6
    s_add_u32 s44, s44, s45
    s_mov_b32 s49, 0
    s_waitcnt lgkmcnt(0)
    """)
def Wu(s_, i): return 152 + 4*(((s_ if s_ < 10 else s_-10))*2 + i)
def Wo(k, i): return (152 + 4*((k+4)*2 + i)) if k < 6 else (68 + 4*((k-6)*2 + i))
def Ur(s_, i):
    n = (s_ % 12)*2 + i
    return FRr(n) if n < 16 else 68 + 4*(n-16)
def w_loads(p, s0, s1, tag=None):
    for s_ in range(s0, s1):
        for i in range(2):
            if s_ == s0 or s_ % 4 == 0: p(f"s_add_u32 s{54+i}, s{42+i}, s31\ns_add_u32 s{54+i}, s{54+i}, {(s_//4)*4096}")
            p(f"buffer_load_dwordx4 {vr(Wu(s_, i),4)}, v{FL_}, s[12:15], s{54+i} offen offset:{(s_%4)*1024} sc1", tag=tag)
def gen_g2(p, st):
    p("s_setprio 3")
    g2_scalars(p)
    p.label("L_g2_redo")
    w_loads(p, 0, 10)
    p.label("L_g2")
    for i in range(2): p(f"s_add_u32 s{52+i}, s{40+i}, s31")
    for i in range(4): p(f"s_add_u32 s{56+i}, s{40+i}, s32")
    p(f"""
    v_and_b32 v2, 31, v1
    """)
    bitswap23(p, 2, 2, 3)
    p(f"v_lshrrev_b32 v3, 5, v1\nv_lshlrev_b32 v3, 4, v3\nv_lshl_add_u32 v{FO}, v2, 10, v3")
    srd(p, 16, 6, 2048*1024); srd(p, 20, 8, 2048*1024)
    if VAR.get('uflag', 1):
        p(f"s_lshl_b32 s46, s27, 12\ns_mul_i32 s47, s24, {7*128}\ns_add_u32 s46, s46, s47\ns_add_u32 s46, s46, {UFX}\nv_min_u32 v{FT+2}, 6, v1\nv_lshlrev_b32 v{FT+2}, 7, v{FT+2}")
        poll(p, "L_p1", 46, FT+2, None, FT+4)
    else: poll(p, "L_p1", 46, FT+2, None, FT+4, bad=-1)
    st(p, 4)
    p(f"s_setprio {VAR.get('prio_u', 3)}")
    NR = VAR.get('nr', 8)
    def ld(s):
        o = []
        if s and s % 4 == 0: o += [I(f"s_add_u32 s{52+i}, s{52+i}, 4096") for i in range(2)]
        for i in range(2):
            o.append(I(f"buffer_load_dwordx4 {vr(Ur(s, i),4)}, v{FL_}, s[12:15], s{52+i} offen offset:{(s%4)*1024} sc1", tag=f"g{s}"))
        return o
    def wo_ld(k):
        for i in range(2):
            p(f"s_add_u32 s47, s{58+i}, {(k//4)*4096}")
            p(f"buffer_load_dwordx4 {vr(Wo(k, i),4)}, v{FL_}, s[12:15], s47 offen offset:{(k%4)*1024} sc1", tag="wo")
    for s_ in range(NR): p.add(ld(s_))
    for s_ in range(14):
        p.wait(vm=[f"g{s_}", f"wu{s_}"])
        for n_, (a, b) in enumerate(((0,0), (0,1), (1,0), (1,1))):
            d = vr(FA + (a*2+b)*16, 16)
            p.add([mfma32(d, vr(Wu(s_, a),4), vr(Ur(s_, b),4), "0" if s_ == 0 else d)])
            r0 = Ur(s_, n_//2) + 2*(n_%2)
            if VAR.get('uflag', 1): pass
            elif VAR.get('fullver', 1): p(f"v_max3_u32 v{FT+5}, v{FT+5}, v{r0}, v{r0+1}")
            elif n_ == 0: p(f"v_max3_u32 v{FT+5}, v{FT+5}, v{Ur(s_,0)}, v{Ur(s_,1)}")
        if s_+NR < 14: p.add(ld(s_+NR))
        if s_ < 4: w_loads(p, 10+s_, 11+s_, tag=f"wu{10+s_}")
        elif s_ < 12: wo_ld(s_-4)
    p(f"buffer_load_dwordx4 {vr(FX,4)}, v{FO}, s[16:19], s44 offen", tag="x")
    p(f"buffer_load_dwordx4 {vr(FX+4,4)}, v{FO}, s[16:19], s44 offen offset:32", tag="x")
    p("s_setprio 3")
    p.label("L_g2_go")
    p.wait(vm="x")
    for d_ in range(7, -1, -1):
        p(f"v_and_b32 v{FXU+2*d_+1}, 0xffff0000, v{FX+d_}\nv_lshlrev_b32 v{FXU+2*d_}, 16, v{FX+d_}")
    st(p, 5)
    p("s_barrier")
    p("s_add_u32 s58, s56, 4096\ns_add_u32 s59, s57, 4096\ns_mov_b32 s49, 0")
    if VAR.get('direct', 1) and not VAR.get('oflag', 1): p("s_branch L_p3b")
    p.label("L_p3")
    if VAR.get('oflag', 1):
        p(f"s_lshl_b32 s45, s27, 12\ns_lshl_b32 s47, s24, 10\ns_add_u32 s45, s45, s47\ns_add_u32 s45, s45, {OFX}\nv_and_b32 v{FT+1}, 7, v1\nv_lshlrev_b32 v{FT+1}, 7, v{FT+1}")
        poll(p, "L_p2", 45, FT+1, None, FT+4, sleep=VAR.get('p3sleep', 8))
    else: poll(p, "L_p2", 45, FT+1, None, FT+4, bad=-1, sleep=VAR.get('p3sleep', 8))
    p.label("L_p3b")
    for s_ in range(8):
        for i in range(2):
            p(f"buffer_load_dwordx4 {vr(FRr(s_*2+i),4)}, v{FL_}, s[12:15], s{56+i+2*(s_//4)} offen offset:{(s_%4)*1024} sc1", tag=f"o{s_}")
    for s_ in range(0 if VAR.get('oflag', 1) else 8):
        p.wait(vm=f"o{s_}")
        for k in range(0, 8, 2): p(f"v_max3_u32 v{FT+4}, v{FT+4}, v{FRr(2*s_+k//4)+k%4}, v{FRr(2*s_+k//4)+k%4+1}")
    if not VAR.get('oflag', 1): p(f"v_cmp_eq_u32 vcc, -1, v{FT+4}\ns_cbranch_vccz L_p3_ok\ns_cmp_lt_u32 s49, 8\ns_cbranch_scc1 L_p3")
    p.label("L_p3_ok")
    st(p, 6)
    for i in range(1, 4):
        p(f"s_xor_b32 s46, s24, {i}\ns_mul_i32 s46, s46, 12288\ns_add_u32 s46, s46, {(i-1)*4096 + IMG}\nv_add_u32 v{FT+i}, s46, v{FL_}")
    p(f"s_mul_i32 s46, s24, 12288\ns_add_u32 s46, s46, {IMG}\nv_add_u32 v{FT}, s46, v{FL_}")
    for s_ in range(8):
        p.wait(vm=f"o{s_}")
        order = ((0,0), (0,1), (1,0), (1,1)) if s_ < 7 else ((0,1), (1,0), (1,1), (0,0))
        for (a, b) in order:
            d = vr(FA + (a*2+b)*16, 16)
            p.add([mfma32(d, vr(Wo(s_, a),4), vr(FRr(s_*2+b),4), d)])
    for i in range(1, 4):
        for k in range(4): p(f"ds_write_b128 v{FT+i}, {vr(FA+i*16+4*k,4)} offset:{k*1024}")
    for r in range(16): p(f"v_add_f32 v{FA+r}, v{FA+r}, v{FXU+r}")
    p("s_waitcnt lgkmcnt(0)\ns_barrier")
    for k in range(12): p(f"ds_read_b128 {vr(FA+16+4*k,4)}, v{FT} offset:{k*1024}", tag=f"r{k}")
    for k in range(12):
        p.wait(lg=f"r{k}")
        for e in range(4): p(f"v_add_f32 v{FA+(4*k+e)%16}, v{FA+(4*k+e)%16}, v{FA+16+4*k+e}")
    for d in range(8): p(f"v_cvt_pk_bf16_f32 v{FX+d}, v{FA+2*d}, v{FA+2*d+1}")
    p(f"buffer_store_dwordx4 {vr(FX,4)}, v{FO}, s[20:23], s44 offen")
    p(f"buffer_store_dwordx4 {vr(FX+4,4)}, v{FO}, s[20:23], s44 offen offset:32")
    st(p, 7)
    if st.on and VAR.get('dbg') is not None:
        D = VAR['dbg']
        p(f"s_cmp_lg_u32 s2, {D}\ns_cbranch_scc1 L_end\ns_cmp_lg_u32 s24, 0\ns_cbranch_scc1 L_end")
        p(f"s_load_dwordx2 s[6:7], s[0:1], {KA_DBG}\ns_waitcnt vmcnt(0)")
        sel = [(0,0,15),(0,0,1),(0,0,5),(0,0,7),(0,0,9),(1,0,15),(1,0,1),(1,0,2),(1,0,3),(1,4,1),(1,4,2),(1,4,3),(1,4,4),(1,4,5),(1,4,6),(1,4,7)]
        for i, (k, w, sl) in enumerate(sel):
            off = STAMP + k*0x80000 + (D*16 + w)*128 + sl*8 + 4
            p(f"v_mov_b32 v3, {off:#x}\nbuffer_load_dword v{100+i}, v3, s[12:15], 0 offen sc1")
        p("s_waitcnt vmcnt(0) lgkmcnt(0)")
        srd(p, 16, 6, 256)
        for i in range(16):
            p(f"v_sub_u32 v2, v{100+i}, v100\nbuffer_store_dword v2, off, s[16:19], 0 offset:{4*i}")
    p("s_endpgm")


def placeholder_addrs(p, m):
    p(f"""
    s_and_b32 s34, s2, 7                   ; xcd
    s_lshr_b32 s35, s2, 3                  ; j
    s_lshr_b32 s53, s35, 3
    s_lshl_b32 s54, s34, 2
    s_add_u32 s53, s53, s54                ; head
    s_and_b32 s36, s35, 7
    s_lshl_b32 s36, s36, 2
    s_add_u32 s36, s36, s{m}
    s_lshl_b32 s37, s36, 7
    s_mul_i32 s36, s36, {2*88*1024}
    s_lshl_b32 s38, s53, 10
    s_add_u32 s36, s36, s38
    s_add_u32 s36, s36, {A3}
    s_lshl_b32 s53, s53, 2
    s_add_u32 s53, s53, s37
    s_add_u32 s53, s53, {OFL}
    s_add_u32 s37, s36, {88*1024}
    s_mul_i32 s38, s35, 9363
    s_lshr_b32 s38, s38, 16                ; j/7
    s_mul_i32 s39, s38, 7
    s_sub_u32 s39, s35, s39                ; fb
    s_add_u32 s38, s38, s54
    s_lshl_b32 s39, s39, 2
    s_add_u32 s39, s39, s{m}               ; ft
    s_lshl_b32 s54, s38, 7
    s_lshl_b32 s34, s39, 2
    s_add_u32 s54, s54, s34
    s_add_u32 s54, s54, {UFL}
    s_mul_i32 s38, s38, {2*88*1024}
    s_lshl_b32 s39, s39, 11
    s_add_u32 s38, s38, s39
    s_add_u32 s38, s38, {A3 + 32*1024}
    s_cmp_lt_u32 s35, 28
    s_cselect_b32 s38, s38, 0x7ff00000
    s_cselect_b32 s54, s54, 0x7ff00000
    s_add_u32 s39, s38, {88*1024}
    """)
```

```python
from common import *
SOLO = True
import struct
def float_hex(f): return hex(struct.unpack("<I", struct.pack("<f", f))[0])

IMG = 1024
LDS_FLAG = 0
LDS_STG = 131072
K2_LDS = 163840
VAR = dict(margin=100.0, U=8, prio_att=1, prio_g=0, fuse3=True, sentA=False, sentW=1, cdelay=2)

QA, QB = 4, 8
CA, CB = 16, 32
OA, OB = 48, 64
SA, SB = 80, 96
PA, PB = 112, 120
KR = [128, 132, 136, 140]
V0R = [144, 148, 152, 156]
V1R = [160, 164, 168, 172]
AK, AV0, AV1 = 176, 177, 178
GK, GV0, GV1 = 179, 180, 181
MA, MB = 182, 183
TM = 184
FL = 188
PF, PFA = 190, 191
STT = 192

def max16(p, S, M, first):
    if first:
        p(f"v_max3_f32 v{M}, v{S}, v{S+1}, v{S+2}")
        p(f"v_max_f32 v{M}, v{M}, v{S+3}")
        r = range(4, 16, 2)
    else: r = range(0, 16, 2)
    for k in r: p(f"v_max3_f32 v{M}, v{M}, v{S+k}, v{S+k+1}")

def flag_wait(p, name, addr_v, off, val, tmpq, sleep=1):
    p.label(name)
    p(f"ds_read_b128 {vr(tmpq,4)}, v{addr_v} offset:{off}")
    p("s_waitcnt lgkmcnt(0)")
    p(f"v_min_u32 v{tmpq}, v{tmpq}, v{tmpq+1}\nv_min3_u32 v{tmpq}, v{tmpq}, v{tmpq+2}, v{tmpq+3}")
    p(f"v_cmp_gt_u32 vcc, {val}, v{tmpq}")
    p(f"s_cbranch_vccz {name}_ok\ns_sleep {sleep}\ns_branch {name}")
    p.label(name + "_ok")

def spin1(p, name, addr_v, off, val, tmp):
    p.label(name)
    p(f"ds_read_b32 v{tmp}, v{addr_v} offset:{off}")
    p("s_waitcnt lgkmcnt(0)")
    p(f"v_cmp_gt_u32 vcc, {val}, v{tmp}")
    p(f"s_cbranch_vccz {name}_ok\ns_sleep 1\ns_branch {name}")
    p.label(name + "_ok")

def att_loop_body(U):
    out = []
    def blk(S, P, So, Po, Mqk, Mpv1, Mpv0, extra):
        e = lambda k: I(f"v_exp_f32 v{S+k}, v{S+k}")
        c = lambda k: I(f"v_cvt_pk_bf16_f32 v{P+k}, v{S+2*k}, v{S+2*k+1}")
        co = lambda k: I(f"v_cvt_pk_bf16_f32 v{Po+k}, v{So+2*k}, v{So+2*k+1}")
        o = []
        pq, p1, p0 = VAR.get('pos', (2, 6, 12))
        cs = VAR.get('cs', {0: [-6], 1: [-7], 3: [0], 5: [1], 7: [2], 9: [3], 11: [4], 13: [5]})
        if VAR.get('perm'):
            c = lambda k: I(f"v_perm_b32 v{P+k}, v{S+2*k+1}, v{S+2*k}, s45")
            co = lambda k: I(f"v_perm_b32 v{Po+k}, v{So+2*k+1}, v{So+2*k}, s45")
        for k in range(16):
            o.append(e(k))
            for j in cs.get(k, []):
                if j < 0: o.append(co(-j))
            if k == pq and not VAR.get('nom'): o.append(Mqk)
            if k == p1 and not VAR.get('nom'): o.append(Mpv1)
            if k == p0 and not VAR.get('nom'): o.append(Mpv0)
            o += extra.get(k, [])
            for j in cs.get(k, []):
                if j >= 0: o.append(c(j))
        return o
    for u in range(U):
        s0 = u % 4; s1 = (u+1) % 4; sm = (u-1) % 4
        exA = {}; exB = {}
        if u % 2 == 0:
            rd = []
            for d in (2, 3):
                o_ = (u+d-1)*KVT
                rd += [I(f"ds_read_b128 {vr(KR[(u+d)%4],4)}, v{AK} offset:{o_}"),
                       I(f"ds_read_b128 {vr(V0R[(u+d)%4],4)}, v{AV0} offset:{o_}"),
                       I(f"ds_read_b128 {vr(V1R[(u+d)%4],4)}, v{AV1} offset:{o_}")]
            exA = {VAR.get('rdpos', 6): rd}
            if VAR.get('nods'): exA = {}
        if u == U-1:
            exB = {2: [I("s_add_u32 s41, s41, 1")], 3: [I("s_bitcmp1_b32 s45, s41" if VAR['sentA'] else "s_cmp_eq_u32 s41, 1")], 4: [I("s_cbranch_scc1 L_att_sync2"), I("L_att_sync2_ret:")],
                   5: [I(f"v_mov_b32 v{TM}, s41")], 7: [I(f"ds_write_b32 v{FL+1}, v{TM} offset:80")],
                   6: [I(f"v_add_u32 v{AK}, {U*KVT}, v{AK}")], 8: [I(f"v_add_u32 v{AV0}, {U*KVT}, v{AV0}")], 10: [I(f"v_add_u32 v{AV1}, {U*KVT}, v{AV1}")],
                   14: [I(f"s_cmp_lt_u32 s41, {64//U}")]}
        if u % 2 == 1: exB[0] = [I("s_waitcnt lgkmcnt(0)")]
        out += blk(SA, PA, SB, PB, mfma32(vr(SB,16), vr(KR[s0],4), vr(QB,4), vr(CB,16)),
                   mfma32(vr(OB,16), vr(V1R[sm],4), vr(PB+4,4), vr(OB,16)),
                   mfma32(vr(OA,16), vr(V0R[s0],4), vr(PA,4), vr(OA,16)), exA)
        out += blk(SB, PB, SA, PA, mfma32(vr(SA,16), vr(KR[s1],4), vr(QA,4), vr(CA,16)),
                   mfma32(vr(OA,16), vr(V1R[s0],4), vr(PA+4,4), vr(OA,16)),
                   mfma32(vr(OB,16), vr(V0R[s0],4), vr(PB,4), vr(OB,16)), exB)
    return out

def k2_ids(p):
    p(f"""
    s_mov_b32 s24, s10
    s_and_b32 s25, s2, 7
    s_lshr_b32 s26, s2, 3
    s_lshr_b32 s27, s26, 3
    s_lshl_b32 s28, s25, 2
    s_add_u32 s27, s27, s28                ; head
    s_and_b32 s28, s26, 7                  ; qb
    """)
def gen_attention(p, st):
    U = VAR['U']
    k2_ids(p)
    p(f"""
    s_mul_i32 s30, s27, {KVH}
    s_add_u32 s30, s30, {KV}
    s_lshl_b32 s31, s27, 16
    s_lshl_b32 s32, s28, 3
    s_lshl_b32 s33, s24, 1
    s_add_u32 s32, s32, s33
    s_lshl_b32 s33, s32, 10
    s_add_u32 s31, s31, s33
    v_lshlrev_b32 v{GK}, 4, v1
    v_mov_b32 v{FL}, {LDS_FLAG}
    s_lshl_b32 s37, s24, 2
    v_add_u32 v{FL+1}, s37, v{FL}
    v_mov_b32 v{TM+1}, 1
    s_waitcnt vmcnt(0)
    ds_write_b32 v{FL+1}, v{TM+1} offset:112
    """)
    st(p, 8)
    p(f"""
    v_and_b32 v{TM}, 31, v1
    v_lshrrev_b32 v{TM+1}, 5, v1
    v_lshlrev_b32 v{TM+1}, 8, v{TM+1}
    v_lshl_add_u32 v{TM+1}, v{TM}, 4, v{TM+1}
    v_and_b32 v{TM+2}, 27, v{TM}
    v_cmp_eq_u32 vcc, 16, v{TM+2}
    v_mov_b32 v{TM+2}, 2064
    v_mov_b32 v{TM+3}, 2048
    v_cndmask_b32 v{TM+2}, v{TM+2}, v{TM+3}, vcc
    v_mov_b32 v{TM+3}, 0x3f803f80
    v_cndmask_b32 v{PF}, 0, v{TM+3}, vcc
    v_cmp_gt_u32 vcc, 16, v{TM}
    v_add_u32 v{GV0}, 1024, v{TM+1}
    v_add_u32 v{GV1}, 1536, v{TM+1}
    v_cndmask_b32 v{AV0}, v{TM+2}, v{GV0}, vcc
    v_cndmask_b32 v{AV1}, v{TM+2}, v{GV1}, vcc
    s_mov_b32 s48, 0xffff
    s_mov_b32 s49, 0xffff
    """)
    for r in V0R[:2] + V1R[:2]:
        for e in range(4): p(f"v_mov_b32 v{r+e}, v{PF}")
    ones_zeros(p, 0, 12, MA, STT+8)
    if VAR.get('sentW') and not VAR.get('oflag', 1):
        p(f"""
        s_mul_i32 s33, s32, {88*1024}
        s_lshl_b32 s34, s27, 10
        s_add_u32 s33, s33, s34
        s_add_u32 s33, s33, {A3}
        s_add_u32 s39, s33, {88*1024}
        s_lshl_b32 s35, s32, 6
        s_lshl_b32 s34, s27, 2
        s_add_u32 s35, s35, s34
        s_add_u32 s35, s35, {OFL}
        s_mul_i32 s42, s26, 9363
        s_lshr_b32 s42, s42, 16                ; j/7
        s_mul_i32 s43, s42, 7
        s_sub_u32 s43, s26, s43                ; fb
        s_lshl_b32 s44, s25, 2
        s_add_u32 s42, s42, s44
        s_lshl_b32 s43, s43, 2
        s_add_u32 s43, s43, s24                ; ft
        s_mul_i32 s46, s42, {2*88*1024}
        s_lshl_b32 s44, s43, 11
        s_add_u32 s46, s46, s44
        s_add_u32 s46, s46, {A3 + 32*1024}
        s_lshl_b32 s42, s42, 7
        s_lshl_b32 s43, s43, 2
        s_add_u32 s42, s42, s43
        s_add_u32 s42, s42, {UFL}
        s_add_u32 s47, s46, {88*1024}
        s_cmp_lt_u32 s26, 28
        s_cselect_b32 s46, s46, 0x7ff00000
        s_cselect_b32 s47, s47, 0x7ff00000
        s_cselect_b32 s42, s42, 0x7ff00000
        s_mov_b32 s43, s47
        """)
        for r in range(4): p(f"v_mov_b32 v{STT+r}, -1")
        def ph_stores():
            p(f"buffer_store_dwordx4 {vr(STT,4)}, v{GK}, s[12:15], s33 offen sc1\nbuffer_store_dwordx4 {vr(STT,4)}, v{GK}, s[12:15], s39 offen sc1")
            for k in range(0 if VAR.get('uflag', 1) else 4): p(f"buffer_store_dwordx4 {vr(STT,4)}, v{GK}, s[12:15], s{(46, 43)[k//2]} offen offset:{(k%2)*1024} sc1")
        def ph_flags():
            p(f"v_mov_b32 v{STT+4}, s11\nv_mov_b32 v{STT+5}, 1\ns_waitcnt vmcnt(0)\nbuffer_store_dword v{STT+4}, off, s[12:15], s35 sc1" + ("" if VAR.get('uflag', 1) else f"\nbuffer_store_dword v{STT+4}, off, s[12:15], s42 sc1\nds_write_b32 v{FL+1}, v{STT+5} offset:64"))
    p("s_cmp_lg_u32 s24, 0\ns_cbranch_scc1 " + ("L_att_ph" if (VAR.get('sentW') and not VAR.get('oflag', 1)) else "L_att_go"))
    flag_wait(p, "L_att_ad", FL, 112, 1, TM, sleep=0)
    p(f"""
    v_mov_b32 v{TM}, s11
    buffer_store_dword v{TM}, off, s[12:15], s83 sc1
    s_lshr_b32 s34, s27, 2
    s_lshl_b32 s34, s34, 12
    s_add_u32 s34, s34, {PFL}
    v_and_b32 v{MA}, 31, v1
    v_lshlrev_b32 v{MA}, 7, v{MA}
    """)
    if VAR.get('pp', 0):
        p("s_mov_b32 s47, 0")
        for k in range(2): p(f"buffer_load_dword v{200+k}, v{MA}, s[12:15], s34 offen sc1\ns_sleep {VAR.get('ppsleep', 3)}")
        p.label("L_att_p")
        for k in range(3):
            p(f"buffer_load_dword v{200+(k+2)%3}, v{MA}, s[12:15], s34 offen sc1\ns_waitcnt vmcnt(2)\nv_cmp_ne_u32 vcc, s11, v{200+k}\ns_cbranch_vccz L_att_p_ok\ns_sleep {VAR.get('ppsleep', 3)}")
        p("s_add_u32 s47, s47, 1\ns_cmp_lt_u32 s47, 0x8000\ns_cbranch_scc1 L_att_p")
        p.label("L_att_p_ok")
    else:
        if VAR.get('sentW') and not VAR.get('oflag', 1): ph_stores(); ph_flags()
        if VAR.get('q0'): p(f"s_sleep {VAR['q0']}")
        poll(p, "L_att_p", 34, MA, None, TM, sleep=VAR.get('qsleep', 4))
    p(f"v_mov_b32 v{TM}, 1\nds_write_b32 v{FL}, v{TM} offset:96")
    if VAR.get('sentW') and not VAR.get('oflag', 1):
        p("s_branch L_att_go")
        p.label("L_att_ph")
        if not VAR.get('oflag', 1): ph_stores(); ph_flags()
    p.label("L_att_go")
    spin1(p, "L_att_gw", FL, 96, 1, TM)
    st(p, 9)
    p(f"buffer_load_dwordx4 {vr(QA,4)}, v{GK}, s[12:15], s31 offen sc1")
    p(f"buffer_load_dwordx4 {vr(QB,4)}, v{GK}, s[12:15], s31 offen offset:1024 sc1")
    p(f"buffer_load_dwordx4 {vr(KR[0],4)}, v{GK}, s[12:15], s30 offen sc1")
    p(f"buffer_load_dwordx4 {vr(KR[1],4)}, v{GK}, s[12:15], s30 offen offset:{KVG} sc1")
    p("s_mov_b64 exec, s[48:49]")
    for t in range(2):
        p(f"buffer_load_dwordx4 {vr(V0R[t],4)}, v{GV0}, s[12:15], s30 offen offset:{t*KVG} sc1")
        p(f"buffer_load_dwordx4 {vr(V1R[t],4)}, v{GV1}, s[12:15], s30 offen offset:{t*KVG} sc1")
    p(f"""
    s_mov_b64 exec, -1
    s_lshl_b32 s38, s24, 11
    s_add_u32 s38, s38, s30
    s_mul_i32 s37, s24, {KVT}
    """)
    for i in range(3):
        p(f"s_add_u32 m0, s37, {(1+4*i)*KVT}\ns_add_u32 s36, s38, {(2+4*i)*KVG}")
        for k in range(2): p(f"buffer_load_dwordx4 v{GK}, s[12:15], s36 offen offset:{k*1024} sc1 lds")
    oz_write(p, 0, 12, MA, STT+8)
    p(f"s_setprio {VAR.get('prio_pro', VAR['prio_att'])}")
    if VAR['sentA']:
        p(f"""
        s_mul_i32 s33, s32, {88*1024}
        s_lshl_b32 s34, s27, 10
        s_add_u32 s33, s33, s34
        s_add_u32 s33, s33, {A3}
        s_add_u32 s39, s33, {88*1024}
        s_lshl_b32 s35, s32, 6
        s_lshl_b32 s34, s27, 2
        s_add_u32 s35, s35, s34
        s_add_u32 s35, s35, {OFL}
        s_mul_i32 s42, s26, 9363
        s_lshr_b32 s42, s42, 16                ; j/7
        s_mul_i32 s43, s42, 7
        s_sub_u32 s43, s26, s43                ; fb
        s_lshl_b32 s44, s25, 2
        s_add_u32 s42, s42, s44
        s_lshl_b32 s43, s43, 2
        s_add_u32 s43, s43, s24                ; ft
        s_mul_i32 s46, s42, {2*88*1024}
        s_lshl_b32 s44, s43, 11
        s_add_u32 s46, s46, s44
        s_add_u32 s46, s46, {A3 + 32*1024}
        s_lshl_b32 s42, s42, 7
        s_lshl_b32 s43, s43, 2
        s_add_u32 s42, s42, s43
        s_add_u32 s42, s42, {UFL}
        s_add_u32 s47, s46, {88*1024}
        s_mov_b32 s45, {2 + (1 << VAR.get('s3it', 2))}
        s_mov_b32 s44, 0
        s_cmp_lt_u32 s26, 28
        s_cbranch_scc1 L_att_nopre
        """)
        for r in range(4): p(f"v_mov_b32 v{STT+r}, -1")
        p(f"buffer_store_dwordx4 {vr(STT,4)}, v{GK}, s[12:15], s33 offen sc1\nbuffer_store_dwordx4 {vr(STT,4)}, v{GK}, s[12:15], s39 offen sc1")
        p(f"v_mov_b32 v{STT}, s11\ns_waitcnt vmcnt(0)\nbuffer_store_dword v{STT}, off, s[12:15], s35 sc1\ns_mov_b32 s45, 2\ns_mov_b32 s44, 1")
        p.label("L_att_nopre")
    p(f"v_mov_b32 v{TM}, 1\nds_write_b32 v{FL+1}, v{TM} offset:176")
    p(f"""
    v_mov_b32 v{AK}, v{GK}
    """)
    for r in list(range(OA, OA+32)) + list(range(PB+4, PB+6)) + list(range(V1R[3], V1R[3]+4)):
        p(f"v_mov_b32 v{r}, 0")
    p(f"s_waitcnt vmcnt(10)")
    p.add([mfma32(vr(SA,16), vr(KR[0],4), vr(QA,4), "0"), mfma32(vr(SB,16), vr(KR[0],4), vr(QB,4), "0"),
           mfma32(vr(CA,16), vr(KR[1],4), vr(QA,4), "0"), mfma32(vr(CB,16), vr(KR[1],4), vr(QB,4), "0")])
    max16(p, SA, MA, True); max16(p, SB, MB, True); max16(p, CA, MA, False); max16(p, CB, MB, False)
    p(f"""
    s_mov_b32 s40, {float_hex(VAR['margin'])}
    v_mov_b32 v{TM}, v{MA}
    v_mov_b32 v{TM+1}, v{MB}
    v_permlane32_swap_b32 v{TM}, v{MA}
    v_permlane32_swap_b32 v{TM+1}, v{MB}
    v_max_f32 v{MA}, v{MA}, v{TM}
    v_max_f32 v{MB}, v{MB}, v{TM+1}
    v_add_f32 v{MA}, s40, v{MA}
    v_add_f32 v{MB}, s40, v{MB}
    """)
    for r in range(16): p(f"v_sub_f32 v{CA+r}, 0, v{MA}")
    for r in range(12, 16): p(f"v_mov_b32 v{SB+r}, 0")
    p.add([mfma32(vr(SA,16), vr(KR[0],4), vr(QA,4), vr(CA,16))])
    for r in range(16): p(f"v_sub_f32 v{CB+r}, 0, v{MB}")
    p(f"s_waitcnt vmcnt(0) lgkmcnt(0)")
    p(f"v_mov_b32 v{TM}, 1\nds_write_b32 v{FL+1}, v{TM}")
    flag_wait(p, "L_att_f1", FL, 0, 1, TM)
    st(p, 1)
    if VAR.get('prio_pro'): p(f"s_setprio {VAR['prio_att']}")
    p("s_mov_b32 s41, 0")
    p(".p2align 6")
    p.label("L_att_loop")
    p.add(att_loop_body(U))
    p("s_cbranch_scc1 L_att_loop")
    st(p, 2)
    if VAR.get('endprio'): p("s_setprio 3")
    p(f"v_cvt_pk_bf16_f32 v{PB+6}, v{SB+12}, v{SB+13}\nv_cvt_pk_bf16_f32 v{PB+7}, v{SB+14}, v{SB+15}")
    p(f"""
    s_mul_i32 s33, s32, {88*1024}
    s_lshl_b32 s34, s27, 10
    s_add_u32 s33, s33, s34
    s_add_u32 s33, s33, {A3}
    """)
    p.add([mfma32(vr(OB,16), vr(V1R[3],4), vr(PB+4,4), vr(OB,16))])
    p("s_waitcnt lgkmcnt(0)")
    p(f"s_mov_b32 s36, 0\ns_mov_b32 s40, {float_hex(2.0**-112)}")
    p.label("L_att_chk")
    p(f"v_mul_f32 v{TM}, 0, v{OA+8}")
    for r in range(8): p(f"v_fmac_f32 v{TM}, 0, v{OA+r}")
    p(f"v_max3_f32 v{TM+1}, |v{OA}|, |v{OA+1}|, |v{OA+2}|\nv_max3_f32 v{TM+1}, v{TM+1}, |v{OA+3}|, |v{OA+4}|\nv_max3_f32 v{TM+1}, v{TM+1}, |v{OA+5}|, |v{OA+6}|\nv_max_f32_e64 v{TM+1}, v{TM+1}, |v{OA+7}|")
    p(f"v_mov_b32 v{TM+2}, v{TM+1}\nv_permlane32_swap_b32 v{TM+1}, v{TM+2}\nv_max_f32 v{TM+1}, v{TM+1}, v{TM+2}")
    p(f"v_cmp_u_f32 vcc, v{TM}, v{TM}\nv_cmp_gt_f32 s[38:39], s40, v{TM+1}\ns_or_b64 vcc, vcc, s[38:39]")
    p("s_cbranch_vccnz L_att_slow")
    p.label("L_att_fin")
    p(f"v_rcp_f32 v{MA}, v{OA+8}")
    p("s_cmp_lg_u32 s36, 0")
    for r in range(8): p(f"v_mul_f32 v{OA+r}, v{OA+r}, v{MA}")
    for k in range(4): p(f"v_cvt_pk_bf16_f32 v{PA+k}, v{OA+2*k}, v{OA+2*k+1}")
    for k in range(0 if VAR.get('oflag', 1) else 4): p(f"v_min_u32 v{PA+k}, -2, v{PA+k}")
    p(f"buffer_store_dwordx4 {vr(PA,4)}, v{GK}, s[12:15], s33 offen")
    p("s_cbranch_scc1 L_att_done")
    p(f"s_mov_b32 s36, 1\ns_add_u32 s33, s33, {88*1024}")
    for r in range(9): p(f"v_mov_b32 v{OA+r}, v{OB+r}")
    for r in range(4): p(f"v_mov_b32 v{QA+r}, v{QB+r}")
    p("s_branch L_att_chk")
    p.label("L_att_done")
    if VAR.get('oflag', 1):
        p(f"s_lshl_b32 s33, s32, 11\ns_lshl_b32 s34, s27, 7\ns_add_u32 s33, s33, s34\ns_add_u32 s33, s33, {OFX}\nv_mov_b32 v{TM}, s11\ns_waitcnt vmcnt(0)\nbuffer_store_dword v{TM}, off, s[12:15], s33 sc1")
    st(p, 3)
    p("s_endpgm")
    p.label("L_att_sync2")
    if VAR['sentA']: p("s_cmp_lg_u32 s41, 1\ns_cbranch_scc1 L_att_sync3")
    if VAR['sentA']:
        p("s_cmp_lg_u32 s44, 0\ns_cbranch_scc1 L_att_f2")
        for r in range(4): p(f"v_mov_b32 v{STT+r}, -1")
        p(f"buffer_store_dwordx4 {vr(STT,4)}, v{GK}, s[12:15], s33 offen sc1\nbuffer_store_dwordx4 {vr(STT,4)}, v{GK}, s[12:15], s39 offen sc1")
        for k in range(4): p(f"buffer_store_dwordx4 {vr(STT,4)}, v{GK}, s[12:15], s{46+k//2} offen offset:{(k%2)*1024} sc1")
    flag_wait(p, "L_att_f2", FL, 48, 1, TM)
    p("s_branch L_att_sync2_ret")
    p.label("L_att_sync3")
    if VAR['sentA']:
        p(f"v_mov_b32 v{TM}, s11\nv_mov_b32 v{TM+1}, 1\ns_waitcnt vmcnt(0)\nbuffer_store_dword v{TM}, off, s[12:15], s35 sc1\nbuffer_store_dword v{TM}, off, s[12:15], s42 sc1\nds_write_b32 v{FL+1}, v{TM+1} offset:64")
    p("s_branch L_att_sync2_ret")
    p.label("L_att_slow")
    p(f"v_mov_b32 v{MA}, 0xff800000\ns_mov_b32 s41, 0\ns_mov_b32 s37, s30")
    p.label("L_att_sl1")
    p(f"buffer_load_dwordx4 {vr(KR[0],4)}, v{GK}, s[12:15], s37 offen sc1")
    p("s_waitcnt vmcnt(0)")
    p.add([mfma32(vr(SA,16), vr(KR[0],4), vr(QA,4), "0")])
    max16(p, SA, MA, False)
    p(f"s_add_u32 s37, s37, {KVG}\ns_add_u32 s41, s41, 1\ns_cmp_lt_u32 s41, 64\ns_cbranch_scc1 L_att_sl1")
    p(f"v_mov_b32 v{TM}, v{MA}\nv_permlane32_swap_b32 v{TM}, v{MA}\nv_max_f32 v{MA}, v{MA}, v{TM}")
    for r in range(16): p(f"v_sub_f32 v{CA+r}, 0, v{MA}\nv_mov_b32 v{OA+r}, 0")
    for e in range(4): p(f"v_mov_b32 v{V0R[0]+e}, v{PF}\nv_mov_b32 v{V1R[0]+e}, v{PF}")
    p("s_mov_b32 s41, 0\ns_mov_b32 s37, s30")
    p.label("L_att_sl2")
    p(f"buffer_load_dwordx4 {vr(KR[0],4)}, v{GK}, s[12:15], s37 offen sc1")
    p("s_mov_b64 exec, s[48:49]")
    p(f"buffer_load_dwordx4 {vr(V0R[0],4)}, v{GV0}, s[12:15], s37 offen sc1")
    p(f"buffer_load_dwordx4 {vr(V1R[0],4)}, v{GV1}, s[12:15], s37 offen sc1")
    p("s_mov_b64 exec, -1")
    p("s_waitcnt vmcnt(0)")
    p.add([mfma32(vr(SA,16), vr(KR[0],4), vr(QA,4), vr(CA,16))])
    for k in range(16): p(f"v_exp_f32 v{SA+k}, v{SA+k}")
    for k in range(8): p(f"v_cvt_pk_bf16_f32 v{PA+k}, v{SA+2*k}, v{SA+2*k+1}")
    p.add([mfma32(vr(OA,16), vr(V0R[0],4), vr(PA,4), vr(OA,16)), mfma32(vr(OA,16), vr(V1R[0],4), vr(PA+4,4), vr(OA,16))])
    p(f"s_add_u32 s37, s37, {KVG}\ns_add_u32 s41, s41, 1\ns_cmp_lt_u32 s41, 64\ns_cbranch_scc1 L_att_sl2")
    p("s_nop 15\ns_branch L_att_fin")

ACC = 4
NZF = 16
ZR = 132
WR = 196
VL = 244; VD = 245; VW = 247
GF = 251
G = 232
def acc(i, tt): return ACC + (i*2+tt)*16

def ones_zeros(p, l0, l1, va, vd):
    p(f"v_mul_u32_u24 v{va+1 if False else vd+8}, {KVT}, v1")
    for e in range(4): p(f"v_mov_b32 v{vd+e}, 0x3f803f80\nv_mov_b32 v{vd+4+e}, 0")
def oz_write(p, l0, l1, va, vd):
    m = ((1 << l1) - 1) ^ ((1 << l0) - 1)
    p(f"s_mov_b32 exec_lo, {m & 0xffffffff:#x}\ns_mov_b32 exec_hi, {m >> 32:#x}")
    p(f"ds_write_b128 v{vd+8}, {vr(vd,4)} offset:{KVT+2048}\nds_write_b128 v{vd+8}, {vr(vd+4,4)} offset:{KVT+2064}")
    p("s_mov_b64 exec, -1")
def kv_rest(p, uniq):
    ones_zeros(p, 12, 62, 0, 8)
    oz_write(p, 12, 62, 0, 8)
    for i in range(13):
        if i == 12: p(f"s_add_u32 s62, s62, {(13+4*i)*KVT}\ns_add_u32 s61, s63, {(14+4*i)*KVG}\ns_cmp_ge_u32 s24, 2\ns_cselect_b32 m0, 0x30000, s62")
        else: p(f"s_add_u32 m0, s62, {(13+4*i)*KVT}\ns_add_u32 s61, s63, {(14+4*i)*KVG}")
        for k in range(2): p(f"buffer_load_dwordx4 v{VL}, s[12:15], s61 offen offset:{k*1024} sc1 lds", tag="kv")

def flag_addr(p):
    p(f"""
    s_lshr_b32 s48, s26, 3
    s_lshl_b32 s47, s25, 2
    s_add_u32 s48, s48, s47
    s_lshl_b32 s48, s48, 7                 ; tb'*128
    s_lshl_b32 s47, s24, 5
    s_add_u32 s46, s48, s47
    s_mul_i32 s47, s24, 28
    s_add_u32 s48, s48, s47
    {"s_mov_b32 s48, s49" if VAR.get('uflag', 1) else "s_add_u32 s48, s48, %d" % (UFL-OFL)}
    s_and_b32 s47, s26, 7
    s_lshl_b32 s47, s47, 7
    s_add_u32 s47, s47, {WFL-OFL}          ; W flags
    v_lshlrev_b32 v{G+5}, 2, v1
    v_mov_b32 v{G+6}, s48
    v_add_u32 v{G+7}, s48, v{G+5}
    v_cmp_gt_u32 vcc, {0 if VAR.get('uflag', 1) else 7}, v1
    v_cndmask_b32 v{G+6}, v{G+6}, v{G+7}, vcc
    v_subrev_u32 v{G+5}, 128, v{G+5}
    v_add_u32 v{G+7}, s47, v{G+5}
    v_cmp_gt_u32 vcc, 64, v{G+5}
    v_cndmask_b32 v{G+6}, v{G+6}, v{G+7}, vcc
    v_subrev_u32 v{G+5}, 64, v{G+5}
    v_add_u32 v{G+7}, s46, v{G+5}
    v_cmp_gt_u32 vcc, {0 if VAR.get('oflag', 1) else 32}, v{G+5}
    v_cndmask_b32 v{G+6}, v{G+6}, v{G+7}, vcc
    v_subrev_u32 v{G+5}, 32, v{G+5}
    v_add_u32 v{G+7}, s49, v{G+5}
    v_cmp_gt_u32 vcc, 8, v{G+5}
    v_cndmask_b32 v{G+6}, v{G+6}, v{G+7}, vcc
    s_mov_b32 s48, {OFL}
    """)
def TILEMAP():
    if not VAR.get('pairmap'):
        return """s_mul_i32 s30, s26, 9363
    s_lshr_b32 s30, s30, 16                ; j/7
    s_mul_i32 s31, s30, 7
    s_sub_u32 s31, s26, s31                ; fb = j%7
    s_lshl_b32 s32, s25, 2
    s_add_u32 s30, s30, s32                ; tb"""
    return """s_mul_i32 s30, s26, 21846
    s_lshr_b32 s30, s30, 16                ; j/3
    s_mul_i32 s31, s30, 3
    s_sub_u32 s31, s26, s31                ; j%3
    s_and_b32 s32, s25, 1
    s_lshl_b32 s32, s32, 2
    s_add_u32 s31, s31, s32                ; fb
    s_add_u32 s32, s32, s26
    s_sub_u32 s32, s32, 24
    s_cmp_ge_u32 s26, 24
    s_cselect_b32 s30, s32, s30
    s_cselect_b32 s31, 3, s31
    s_lshr_b32 s32, s25, 1
    s_lshl_b32 s32, s32, 3
    s_add_u32 s30, s30, s32                ; tb"""
def gen_gemm(p, st, mid=None):
    k2_ids(p)
    p(f"""
    s_load_dwordx4 s[4:7], s[0:1], {KA_WSP}
    s_sub_u32 s24, s24, 4                  ; q = K quarter
    v_lshlrev_b32 v{VL}, 4, v1
    s_mul_i32 s63, s27, {KVH}
    s_lshl_b32 s62, s24, 11
    s_add_u32 s63, s63, s62
    s_add_u32 s63, s63, {KV}
    s_mul_i32 s62, s24, {KVT}
    s_lshl_b32 s46, s24, 2
    s_add_u32 s46, s46, {LDS_FLAG}
    v_mov_b32 v{GF}, s46
    v_mov_b32 v0, 1
    v_mov_b32 v2, {LDS_FLAG}
    s_waitcnt lgkmcnt(0)
    ds_write_b32 v{GF}, v0 offset:160
    """)
    srd(p, 16, 4, 2048*2048*2); srd(p, 20, 6, 4096)
    flag_wait(p, "L_g_bd", 2, 160, 1, 4)
    flag_wait(p, "L_g_go", 2, 176, 1, 4, sleep=2)
    kv_rest(p, "a")
    p(f"""
    s_cmp_ge_u32 s26, 28
    s_cbranch_scc1 L_idle
    s_setprio 3
    {TILEMAP()}
    s_lshl_b32 s33, s31, 19
    s_add_u32 s33, s33, {Z2F}
    s_lshl_b32 s34, s24, 17
    s_add_u32 s33, s33, s34
    s_lshl_b32 s56, s30, 18
    s_lshl_b32 s34, s24, 10
    s_add_u32 s56, s56, s34
    s_lshl_b32 s36, s24, 13
    s_add_u32 s36, s36, {LDS_STG}
    s_add_u32 s37, s36, 4096
    v_lshrrev_b32 v2, 3, v1
    v_lshrrev_b32 v3, 4, v1
    v_xor_b32 v3, v3, v1
    v_and_b32 v3, 7, v3
    v_lshlrev_b32 v3, 4, v3
    v_lshl_add_u32 v{VD}, v2, 12, v3
    v_xor_b32 v{VD+1}, 64, v{VD}
    v_add_u32 v{VD+1}, {8*4096-1024}, v{VD+1}
    """)
    for i in range(4):
        p(f"s_add_u32 s38, s24, {i}\ns_and_b32 s38, s38, 3\ns_lshl_b32 s38, s38, 10\ns_add_u32 s{52+i}, s33, s38")
    p(f"""
    s_lshl_b32 s38, s31, 12                ; (2fb)*16*128
    s_lshl_b32 s39, s24, 9
    s_add_u32 s39, s39, s38
    s_add_u32 s39, s39, {PFL+16}
    s_lshr_b32 s49, s24, 1
    s_lshl_b32 s49, s49, 11
    s_add_u32 s49, s49, s38
    s_lshr_b32 s38, s30, 1
    s_lshl_b32 s38, s38, 7
    s_add_u32 s49, s49, s38
    s_and_b32 s38, s30, 1
    s_lshl_b32 s38, s38, 3
    s_add_u32 s49, s49, s38
    s_add_u32 s49, s49, {PFL+32-OFL}
    v_and_b32 v4, 3, v1
    v_bfe_u32 v5, v1, 2, 1
    v_lshlrev_b32 v5, 11, v5
    v_lshl_add_u32 v4, v4, 7, v5
    v_bfe_u32 v5, v1, 3, 2
    v_lshl_add_u32 v4, v5, 2, v4
    """)
    def dma(b):
        out = []
        for i in range(8):
            if i % 4 == 0: out.append(I(f"s_mov_b32 m0, s{(66 if (b % 3 == 2 and b > 2) else 36) + i//4}"))
            if i % 2 == 0: out.append(I(f"s_add_u32 s57, s56, {(i//2)*16*4096 - (i%4)*1024}"))
            out.append(I(f"buffer_load_dwordx4 v{VD + i%2}, s[16:19], s57 offen offset:{(i%4)*1024} sc1 lds", tag=f"d{b}"))
        out.append(I("s_add_u32 s56, s56, 128"))
        return out
    def zload(n):
        i = n % 4
        return [I(f"buffer_load_dwordx4 {vr(ZR + (n%NZF)*4, 4)}, v{VL}, s[12:15], s{52+i} offen sc1", tag=f"z{n}"),
                I(f"s_add_u32 s{52+i}, s{52+i}, 4096")]
    p.add(dma(0))
    if VAR.get('ordb'):
        p.wait(vm="kv", lg0=True); p(f"ds_write_b32 v{GF}, v0 offset:48")
        poll(p, "L_pz", 39, 4, None, 5, sleep=VAR.get('zsleep', 4))
        st(p, 9)
        if VAR.get('stop') == 1: p("s_endpgm")
        for n in range(16): p.add(zload(n))
        mid(p, "a")
    else:
        mid(p, "a", [W(vm="kv", lg0=True), I(f"ds_write_b32 v{GF}, v0 offset:48")])
        p.wait(vm="kv", lg0=True); p(f"ds_write_b32 v{GF}, v0 offset:48")
        poll(p, "L_pz", 39, 4, None, 5, sleep=VAR.get('zsleep', 4))
        p(f"v_mov_b32 v0, s11\nbuffer_store_dword v0, off, s[12:15], s89 sc1")
        st(p, 9)
        if VAR.get('stop') == 1: p("s_endpgm")
        for n in range(16): p.add(zload(n))
    p(f"v_and_b32 v2, 31, v1")
    bitswap23(p, 2, 2, 3)
    p(f"""
    v_lshrrev_b32 v3, 1, v2
    v_lshrrev_b32 v{VW}, 5, v1
    v_xor_b32 v3, v3, v{VW}
    v_and_b32 v3, 7, v3
    v_lshlrev_b32 v3, 4, v3
    v_lshl_add_u32 v{VW}, v2, 7, v3
    v_add_u32 v{VW}, s36, v{VW}
    v_xor_b32 v{VW+1}, 32, v{VW}
    v_xor_b32 v{VW+2}, 64, v{VW}
    v_xor_b32 v{VW+3}, 96, v{VW}
    """)
    if VAR['fuse3']:
        flag_addr(p); p(f"v_mov_b32 v3, v{G+6}")
    p(f"s_setprio {VAR['prio_g']}")
    st(p, 1)
    wr = lambda g, tt: WR + ((g % 6)*2 + tt)*4
    def wread(b):
        return [I(f"ds_read_b128 {vr(wr(4*b+u, tt), 4)}, v{VW+u} offset:{tt*4096}", tag=f"w{b}", needs=[f"d{b}"]) for u in range(4) for tt in range(2)]
    def block_burst(b, first=False, dma_on=True, z_on=True, w_on=True):
        o = []
        for u in range(4):
            g = 4*b+u
            o.append(W(vm=[f"z{4*g+3}"]))
            for i in range(4):
                n = 4*g+i
                for tt in ((1, 0) if (VAR.get('snake') == 1 and i % 2) else (0, 1)):
                    c = "0" if (first and u == 0) else vr(acc(i,tt),16)
                    o.append(mfma32(vr(acc(i,tt),16), vr(ZR+(n%NZF)*4,4), vr(wr(g,tt),4), c))
                if VAR.get('snake') == 2 and i == 3:
                    ms = o[-8:] if not any(x.kind != "mfma" for x in o[-8:]) else None
                    if ms: o[-8:] = ms[0::2] + ms[7::-2]
                if u == 2 and i == 1 and w_on:
                    o.append(W(lg=f"w{b+1}"))
                    if dma_on: o += dma(b+2)
            if u == 1 and w_on: o += [W(vm=f"d{b+1}")] + wread(b+1)
            if z_on:
                for i in range(4): o += zload(4*g+i+NZF)
        return o
    def block(b, first=False, dma_on=True, z_on=True, w_on=True):
        if VAR.get('burst', 0): return block_burst(b, first, dma_on, z_on, w_on)
        o = []
        dm = []
        if w_on and dma_on:
            cur = []
            for x in dma(b+2):
                cur.append(x)
                if x.kind == "vmem": dm.append(cur); cur = []
            dm[-1] += cur
        wrd = wread(b+1) if w_on else []
        for u in range(4):
            g = 4*b+u
            for i in range(4):
                n = 4*g+i
                for tt in range(2):
                    if tt == 0: o.append(W(vm=[f"z{n}"]))
                    c = "0" if (first and u == 0) else vr(acc(i,tt),16)
                    o.append(mfma32(vr(acc(i,tt),16), vr(ZR+(n%NZF)*4,4), vr(wr(g,tt),4), c))
                    if VAR.get('pace'): o.append(I(f"s_nop {VAR['pace']}"))
                    if tt == 1 and z_on: o += zload(n+NZF)
                    if tt == 0:
                        if u == 2 and w_on:
                            if i == 0: o.append(W(vm=f"d{b+1}"))
                            o += wrd[2*i:2*i+2]
                        if u == 3 and dm:
                            if i == 0: o.append(W(lg=f"w{b+1}"))
                            o += dm.pop(0) + dm.pop(0)
                        elif u == 3 and i == 0 and w_on: o.append(W(lg=f"w{b+1}"))
        return o
    p.add(wread(0)); p.wait(lg="w0"); p.add(dma(1))
    p.add(block(0, first=True))
    p("s_mov_b32 s60, 0")
    hist = dma(0) + sum([zload(n) for n in range(16)], []) + dma(1) + block(0) + block(1) + block(2) + block(3) + [I("L_mark:")] + block(4) + block(5) + block(6)
    full = resolve_waits(hist)
    lb = full[next(i for i, x in enumerate(full) if x.kind == "label" and x.op == "L_mark")+1:]
    first_pass = resolve_waits(dma(0) + sum([zload(n) for n in range(16)], []) + dma(1) + block(0) + [I("L_mark:")] + block(1) + block(2) + block(3))
    fp = first_pass[next(i for i, x in enumerate(first_pass) if x.kind == "label" and x.op == "L_mark")+1:]
    assert len(fp) == len(lb)
    merged = []
    for x, y in zip(fp, lb):
        if x.kind == "wait":
            vm = min(v for v in (x.vm, y.vm) if v is not None) if (x.vm is not None or y.vm is not None) else None
            lg = min(v for v in (x.lg, y.lg) if v is not None) if (x.lg is not None or y.lg is not None) else None
            merged.append(I("s_waitcnt " + " ".join(([f"vmcnt({vm})"] if vm is not None else []) + ([f"lgkmcnt({lg})"] if lg is not None else []))))
        else:
            assert x.text == y.text, (x.text, y.text)
            merged.append(y)
    p.label("L_g_loop")
    p("s_cmp_eq_u32 s60, 1\ns_cselect_b32 s66, 0x30000, s36\ns_cselect_b32 s67, 0x30000, s37")
    p.add(merged)
    p("s_add_u32 s60, s60, 1\ns_cmp_lt_u32 s60, 2\ns_cbranch_scc1 L_g_loop")
    if VAR['fuse3']: p(f"s_mov_b32 s48, {OFL}"); p(f"buffer_load_dword v0, v3, s[12:15], s48 offen sc1", tag="fl")
    p.add(block(7, dma_on=False, z_on=False, w_on=False))
    st(p, 2)
    if VAR.get('stop') == 2: p("s_endpgm")
    p(f"s_setprio {VAR.get('prio_e', 3)}")
    p(f"""
    s_lshl_b32 s38, s30, 1
    s_mul_i32 s39, s38, {56*1024}
    s_lshl_b32 s40, s31, 2
    s_add_u32 s40, s40, s24
    s_lshl_b32 s41, s40, 11
    s_add_u32 s39, s39, s41
    s_add_u32 s39, s39, {Z1F}
    s_add_u32 s42, s39, {56*1024}
    s_mul_i32 s64, s38, {88*1024}
    s_add_u32 s64, s64, s41
    s_add_u32 s64, s64, {A3 + 32*1024}
    s_add_u32 s65, s64, {88*1024}
    s_lshl_b32 s66, s30, 12
    s_lshl_b32 s45, s40, 7
    s_add_u32 s66, s66, s45
    s_add_u32 s66, s66, {UFX}
    s_lshl_b32 s45, s30, 7
    v_lshlrev_b32 v2, 1, v2
    """)
    Z = ZR
    p(f"v_mov_b32 v{G+1}, v{GF}")
    if VAR['fuse3']:
        p.wait(vm="fl")
        p("v_cmp_ne_u32 vcc, s11, v0\ns_cbranch_vccz L_g_fl")
        poll(p, "L_p00", 48, 3, None, 0, sleep=8)
        p.label("L_g_fl")
    p(f"buffer_load_dwordx4 {vr(Z,4)}, v{VL}, s[12:15], s39 offen sc1", tag="z1")
    p(f"buffer_load_dwordx4 {vr(Z+4,4)}, v{VL}, s[12:15], s39 offen offset:1024 sc1", tag="z1")
    p(f"buffer_load_dwordx4 {vr(Z+8,4)}, v{VL}, s[12:15], s42 offen sc1", tag="z1")
    p(f"buffer_load_dwordx4 {vr(Z+12,4)}, v{VL}, s[12:15], s42 offen offset:1024 sc1", tag="z1")
    p(f"buffer_load_ushort v{Z+16}, v2, s[20:23], s45 offen sc1", tag="z1")
    p(f"buffer_load_ushort v{Z+17}, v2, s[20:23], s45 offen offset:64 sc1", tag="z1")
    if VAR['fuse3']:
        g2_scalars(p)
        w_loads(p, 0, 10)
    p(f"v_add_u32 v{G}, s36, v{VL}\nv_mov_b32 v{G+2}, {LDS_FLAG}\ns_lshl_b32 s47, s24, 14\ns_add_u32 s47, s47, {IMG}\nv_add_u32 v{G+3}, s47, v{VL}")
    for k in range(8): p(f"ds_write_b128 v{G}, {vr(acc(1,0)+4*k, 4)} offset:{k*1024}")
    flag_wait(p, "L_g_prog", G+2, 80, 4, G+4)
    for r in (2, 3):
        for k in range(8): p(f"ds_write_b128 v{G+3}, {vr(acc(r,0)+4*k, 4)} offset:{(r-2)*8192 + k*1024}")
    for r in range(1, 4):
        p(f"s_add_u32 s47, s24, {4-r}\ns_and_b32 s47, s47, 3")
        if r == 1: p(f"s_lshl_b32 s47, s47, 13\ns_add_u32 s47, s47, {LDS_STG}\nv_add_u32 v{G}, s47, v{VL}")
        else: p(f"s_lshl_b32 s47, s47, 14\ns_add_u32 s47, s47, {(r-2)*8192 + IMG}\nv_add_u32 v{2 if r == 2 else 3}, s47, v{VL}")
    p(f"v_mov_b32 v{G+3}, 1\ns_waitcnt lgkmcnt(0)\nds_write_b32 v{G+1}, v{G+3} offset:16")
    flag_wait(p, "L_g_dat", G+2, 16, 1, G+4, sleep=0)
    for r in range(1, 4):
        for k in range(8):
            p(f"ds_read_b128 {vr(acc(r,0)+4*k,4)}, v{(G, 2, 3)[r-1]} offset:{k*1024}", tag=f"r{r}_{k}")
        if r > 1:
            for k in range(8):
                p.wait(lg=f"r{r-1}_{k}")
                for e in range(4): p(f"v_add_f32 v{acc(0,0)+4*k+e}, v{acc(0,0)+4*k+e}, v{acc(r-1,0)+4*k+e}")
    for k in range(8):
        p.wait(lg=f"r3_{k}")
        for e in range(4): p(f"v_add_f32 v{acc(0,0)+4*k+e}, v{acc(0,0)+4*k+e}, v{acc(3,0)+4*k+e}")
    if (VAR['sentA'] or VAR.get('sentW')) and not VAR.get('uflag', 1): spin1(p, "L_g_pf", G+1, 64, 1, G+3)
    p.wait(vm="z1")
    T = acc(1, 0)
    p(f"v_lshlrev_b32 v{Z+16}, 16, v{Z+16}\nv_lshlrev_b32 v{Z+17}, 16, v{Z+17}")
    for tt in range(2):
        a = acc(0, tt)
        for r in range(16): p(f"v_add_f32 v{a+r}, v{a+r}, v{Z+16+tt}")
        for d in range(8):
            z = Z + tt*8 + d
            p(f"v_lshlrev_b32 v{T}, 16, v{z}\nv_and_b32 v{T+1}, 0xffff0000, v{z}")
            p(f"v_mul_f32 v{a+2*d}, v{a+2*d}, v{T}\nv_mul_f32 v{a+2*d+1}, v{a+2*d+1}, v{T+1}")
            p(f"v_cvt_pk_bf16_f32 v{T+8+tt*8+d}, v{a+2*d}, v{a+2*d+1}")
        for d in (() if VAR.get('uflag', 1) else range(8)): p(f"v_min_u32 v{T+8+tt*8+d}, -2, v{T+8+tt*8+d}")
        so = 64 + tt
        p(f"buffer_store_dwordx4 {vr(T+8+tt*8,4)}, v{VL}, s[12:15], s{so} offen")
        p(f"buffer_store_dwordx4 {vr(T+12+tt*8,4)}, v{VL}, s[12:15], s{so} offen offset:1024")
    if VAR.get('pf3'):
        p(f"s_lshl_b32 s38, s26, 2\ns_add_u32 s38, s38, s24\ns_mul_i32 s38, s38, 16384\ns_add_u32 s38, s38, {W3F}\nv_lshlrev_b32 v2, 7, v1")
        p(f"buffer_load_dword v3, v2, s[12:15], s38 offen\ns_add_u32 s38, s38, 8192\nbuffer_load_dword v3, v2, s[12:15], s38 offen")
    st(p, 3)
    if VAR['fuse3']:
        if VAR.get('uflag', 1): p(f"v_mov_b32 v{G}, s11\ns_waitcnt vmcnt(0)\nbuffer_store_dword v{G}, off, s[12:15], s66 sc1")
        p("s_branch L_g2")
    else: p("s_endpgm")
    p.label("L_idle")
    p.wait(vm="kv"); p(f"s_waitcnt vmcnt(0) lgkmcnt(0)\nds_write_b32 v{GF}, v0 offset:48")
    mid(p, "b")
    p(f"""
    s_load_dwordx2 s[36:37], s[0:1], {KA_WO}
    s_load_dwordx2 s[38:39], s[0:1], {KA_WOUT}
    s_lshl_b32 s34, s25, 2
    s_add_u32 s34, s34, s26
    s_sub_u32 s34, s34, 28                      ; L
    s_mov_b32 s54, {896*1024}
    v_lshrrev_b32 v2, 2, v1
    v_and_b32 v3, 3, v1
    v_lshlrev_b32 v3, 4, v3
    v_lshl_add_u32 v2, v2, 10, v3
    s_waitcnt lgkmcnt(0)
    s_cmp_lt_u32 s34, 16
    s_cselect_b32 s52, s36, s38
    s_cselect_b32 s53, s37, s39
    s_cselect_b32 s54, {512*1024}, s54
    s_cselect_b32 s35, 8, 14
    s_cselect_b32 s67, 0, {32*1024}
    s_mov_b32 s55, 0x20000
    s_and_b32 s34, s34, 15
    s_mul_i32 s68, s24, s35
    s_lshl_b32 s69, s68, 14
    s_lshl_b32 s60, s34, 6
    s_add_u32 s69, s69, s60
    s_mul_i32 s60, s34, {88*1024}
    s_lshl_b32 s68, s68, 10
    s_add_u32 s60, s60, s68
    s_add_u32 s60, s60, s67
    s_add_u32 s60, s60, {W3F}
    s_lshl_b32 s61, s24, 13
    s_add_u32 s61, s61, {LDS_STG}
    """)
    def w3_dma(n):
        for k in range(n):
            p(f"s_add_u32 m0, s61, {k*1024}\ns_nop 0\nbuffer_load_dwordx4 v2, s[52:55], s69 offen lds\ns_add_u32 s69, s69, 16384")
    def w3_out(n):
        for k in range(n):
            p(f"ds_read_b64_tr_b16 v[{8+4*k}:{9+4*k}], v3 offset:{k*1024}\nds_read_b64_tr_b16 v[{10+4*k}:{11+4*k}], v3 offset:{k*1024+256}")
            if k % 4 == 3: p("s_waitcnt lgkmcnt(0)")
        p("s_waitcnt lgkmcnt(0)")
        for k in range(n):
            p(f"buffer_store_dwordx4 v[{8+4*k}:{11+4*k}], v{VL}, s[12:15], s60 offen\ns_add_u32 s60, s60, 1024")
    p(f"v_mov_b32 v5, s11\ns_waitcnt vmcnt(0)\nbuffer_store_dword v5, off, s[12:15], s89 sc1")
    G0 = VAR.get('ipf0', 0); GB = VAR.get('ipfb', 0)
    NP = (8 - G0 - GB) if VAR.get('ipf', 1) else 0
    if VAR.get('ipf', 1):
        p(f"""
        s_sub_u32 s36, s26, 28
        s_lshl_b32 s36, s36, 2
        s_add_u32 s36, s36, s24                 ; wave16
        v_lshlrev_b32 v5, 12, v1
        s_lshl_b32 s56, s25, 20
        s_and_b32 s37, s36, 3
        s_lshl_b32 s37, s37, 18
        s_add_u32 s56, s56, s37
        s_lshr_b32 s37, s36, 2
        s_lshl_b32 s37, s37, 10
        s_add_u32 s56, s56, s37
        """)
        for g in range(G0, G0+GB): p(f"buffer_load_dword v6, v5, s[16:19], s56 offen offset:{g*128}")
    w3_dma(8)
    if VAR.get('ipf', 1):
        for g in range(G0+GB, 8): p(f"buffer_load_dword v6, v5, s[16:19], s56 offen offset:{g*128}")
    p(f"""
    v_lshrrev_b32 v4, 5, v1
    v_lshlrev_b32 v3, 9, v4
    v_bfe_u32 v4, v1, 2, 2
    v_lshl_add_u32 v3, v4, 6, v3
    v_bfe_u32 v4, v1, 4, 1
    v_lshl_add_u32 v3, v4, 5, v3
    v_and_b32 v4, 1, v1
    v_lshl_add_u32 v3, v4, 4, v3
    v_bfe_u32 v4, v1, 1, 1
    v_lshl_add_u32 v3, v4, 3, v3
    v_add_u32 v3, s61, v3
    s_waitcnt vmcnt({NP if GB == 0 else 0})
    """)
    w3_out(8)
    p("s_cmp_eq_u32 s35, 8\ns_cbranch_scc1 L_w3done")
    w3_dma(6)
    p("s_waitcnt vmcnt(0)")
    w3_out(6)
    p.label("L_w3done")
    if not VAR['fuse3']:
        p("s_endpgm"); return
    p(f"""
    s_lshr_b32 s33, s34, 1
    s_lshl_b32 s33, s33, 7                      ; (nt>>1)*128
    s_and_b32 s34, s34, 1
    s_lshl_b32 s34, s34, 4
    s_add_u32 s33, s33, s34
    s_lshr_b32 s34, s67, 10                     ; 0 or 32
    s_add_u32 s33, s33, s34
    s_lshl_b32 s34, s24, 2
    s_add_u32 s33, s33, s34
    s_add_u32 s33, s33, {WFL}
    v_mov_b32 v0, s11
    s_waitcnt vmcnt(0)
    buffer_store_dword v0, off, s[12:15], s33 sc1
    s_add_u32 s49, s33, {-OFL & 0xffffffff:#x}
    s_and_b32 s49, s49, -64
    """)
    flag_addr(p)
    if VAR.get('stop'): p("s_endpgm")
    p.label("L_g2w")
    p(f"s_mov_b32 s48, {OFL}")
    poll(p, "L_p0", 48, G+6, None, G+5, sleep=32)
    gen_g2(p, st)


FA = 4
def FWr(k): return 152 + 4*k if k < 20 else 68 + 4*(k-20)
def FRr(k): return 100 + 4*k if k < 13 else 232 + 4*(k-13)
FX = 84
FXU = 152
FL_ = 244; FO = 245; FT = 246
def poll(p, name, soff, voff, mask_hi_lo, tmp, bad=0, sleep=None):
    p(f"s_mov_b32 s47, 0")
    p.label(name)
    p(f"buffer_load_dword v{tmp}, v{voff}, s[12:15], s{soff} offen sc1\ns_add_u32 s47, s47, 1\ns_waitcnt vmcnt(0)")
    p(f"{'v_cmp_eq_u32 vcc, -1' if bad == -1 else 'v_cmp_ne_u32 vcc, s11'}, v{tmp}\ns_cbranch_vccz {name}_ok\ns_cmp_gt_u32 s47, 0x10000\ns_cbranch_scc1 {name}_ok\ns_sleep {sleep or VAR.get('psleep', 16)}\ns_branch {name}")
    p.label(name + "_ok")
def g2_scalars(p):
    p(f"""
    s_load_dwordx2 s[6:7], s[0:1], {KA_X}
    s_load_dwordx2 s[8:9], s[0:1], {KA_OUT}
    s_lshr_b32 s27, s26, 3
    s_lshl_b32 s28, s25, 2
    s_add_u32 s27, s27, s28                ; tb
    s_and_b32 s28, s26, 7                  ; nb
    s_and_b32 s29, s24, 1
    s_lshr_b32 s30, s24, 1
    s_lshl_b32 s32, s27, 1
    s_add_u32 s33, s32, s29
    s_xor_b32 s34, s33, 1
    s_lshl_b32 s32, s28, 1
    s_add_u32 s35, s32, s30
    s_xor_b32 s37, s35, 1
    s_mul_i32 s40, s33, {88*1024}
    s_mul_i32 s41, s34, {88*1024}
    s_mul_i32 s42, s35, {88*1024}
    s_mul_i32 s43, s37, {88*1024}
    s_add_u32 s40, s40, {A3}
    s_add_u32 s41, s41, {A3}
    s_add_u32 s42, s42, {W3F}
    s_add_u32 s43, s43, {W3F}
    s_mul_i32 s31, s24, {14*1024}
    s_add_u32 s31, s31, {32*1024}
    s_lshl_b32 s32, s24, 13
    s_lshl_b32 s44, s33, 15
    s_lshl_b32 s45, s35, 6
    s_add_u32 s44, s44, s45
    s_mov_b32 s49, 0
    s_waitcnt lgkmcnt(0)
    """)
def Wu(s_, i): return 152 + 4*(((s_ if s_ < 10 else s_-10))*2 + i)
def Wo(k, i): return (152 + 4*((k+4)*2 + i)) if k < 6 else (68 + 4*((k-6)*2 + i))
def Ur(s_, i):
    n = (s_ % 12)*2 + i
    return FRr(n) if n < 16 else 68 + 4*(n-16)
def w_loads(p, s0, s1, tag=None):
    for s_ in range(s0, s1):
        for i in range(2):
            if s_ == s0 or s_ % 4 == 0: p(f"s_add_u32 s{54+i}, s{42+i}, s31\ns_add_u32 s{54+i}, s{54+i}, {(s_//4)*4096}")
            p(f"buffer_load_dwordx4 {vr(Wu(s_, i),4)}, v{FL_}, s[12:15], s{54+i} offen offset:{(s_%4)*1024} sc1", tag=tag)
def gen_g2(p, st):
    p("s_setprio 3")
    g2_scalars(p)
    p.label("L_g2_redo")
    w_loads(p, 0, 10)
    p.label("L_g2")
    for i in range(2): p(f"s_add_u32 s{52+i}, s{40+i}, s31")
    for i in range(4): p(f"s_add_u32 s{56+i}, s{40+i}, s32")
    p(f"""
    v_and_b32 v2, 31, v1
    """)
    bitswap23(p, 2, 2, 3)
    p(f"v_lshrrev_b32 v3, 5, v1\nv_lshlrev_b32 v3, 4, v3\nv_lshl_add_u32 v{FO}, v2, 10, v3")
    srd(p, 16, 6, 2048*1024); srd(p, 20, 8, 2048*1024)
    if VAR.get('uflag', 1):
        p(f"s_lshl_b32 s46, s27, 12\ns_mul_i32 s47, s24, {7*128}\ns_add_u32 s46, s46, s47\ns_add_u32 s46, s46, {UFX}\nv_min_u32 v{FT+2}, 6, v1\nv_lshlrev_b32 v{FT+2}, 7, v{FT+2}")
        poll(p, "L_p1", 46, FT+2, None, FT+4)
    else: poll(p, "L_p1", 46, FT+2, None, FT+4, bad=-1)
    st(p, 4)
    p(f"s_setprio {VAR.get('prio_u', 0)}")
    NR = VAR.get('nr', 12)
    def ld(s):
        o = []
        if s and s % 4 == 0: o += [I(f"s_add_u32 s{52+i}, s{52+i}, 4096") for i in range(2)]
        for i in range(2):
            o.append(I(f"buffer_load_dwordx4 {vr(Ur(s, i),4)}, v{FL_}, s[12:15], s{52+i} offen offset:{(s%4)*1024} sc1", tag=f"g{s}"))
        return o
    def wo_ld(k):
        for i in range(2):
            p(f"s_add_u32 s47, s{58+i}, {(k//4)*4096}")
            p(f"buffer_load_dwordx4 {vr(Wo(k, i),4)}, v{FL_}, s[12:15], s47 offen offset:{(k%4)*1024} sc1", tag="wo")
    for s_ in range(NR): p.add(ld(s_))
    for s_ in range(14):
        p.wait(vm=[f"g{s_}", f"wu{s_}"])
        for n_, (a, b) in enumerate(((0,0), (0,1), (1,0), (1,1))):
            d = vr(FA + (a*2+b)*16, 16)
            p.add([mfma32(d, vr(Wu(s_, a),4), vr(Ur(s_, b),4), "0" if s_ == 0 else d)])
            r0 = Ur(s_, n_//2) + 2*(n_%2)
            if VAR.get('uflag', 1): pass
            elif VAR.get('fullver', 1): p(f"v_max3_u32 v{FT+5}, v{FT+5}, v{r0}, v{r0+1}")
            elif n_ == 0: p(f"v_max3_u32 v{FT+5}, v{FT+5}, v{Ur(s_,0)}, v{Ur(s_,1)}")
        if s_+NR < 14: p.add(ld(s_+NR))
        if s_ < 4: w_loads(p, 10+s_, 11+s_, tag=f"wu{10+s_}")
        elif s_ < 12: wo_ld(s_-4)
    p(f"buffer_load_dwordx4 {vr(FX,4)}, v{FO}, s[16:19], s44 offen", tag="x")
    p(f"buffer_load_dwordx4 {vr(FX+4,4)}, v{FO}, s[16:19], s44 offen offset:32", tag="x")
    p("s_setprio 3")
    p.label("L_g2_go")
    p.wait(vm="x")
    for d_ in range(7, -1, -1):
        p(f"v_and_b32 v{FXU+2*d_+1}, 0xffff0000, v{FX+d_}\nv_lshlrev_b32 v{FXU+2*d_}, 16, v{FX+d_}")
    st(p, 5)
    p("s_barrier")
    p("s_add_u32 s58, s56, 4096\ns_add_u32 s59, s57, 4096\ns_mov_b32 s49, 0")
    if VAR.get('direct', 1) and not VAR.get('oflag', 1): p("s_branch L_p3b")
    p.label("L_p3")
    if VAR.get('oflag', 1):
        p(f"s_lshl_b32 s45, s27, 12\ns_lshl_b32 s47, s24, 10\ns_add_u32 s45, s45, s47\ns_add_u32 s45, s45, {OFX}\nv_and_b32 v{FT+1}, 7, v1\nv_lshlrev_b32 v{FT+1}, 7, v{FT+1}")
        poll(p, "L_p2", 45, FT+1, None, FT+4, sleep=VAR.get('p3sleep', 8))
    else: poll(p, "L_p2", 45, FT+1, None, FT+4, bad=-1, sleep=VAR.get('p3sleep', 8))
    p.label("L_p3b")
    for s_ in range(8):
        for i in range(2):
            p(f"buffer_load_dwordx4 {vr(FRr(s_*2+i),4)}, v{FL_}, s[12:15], s{56+i+2*(s_//4)} offen offset:{(s_%4)*1024} sc1", tag=f"o{s_}")
    for s_ in range(0 if VAR.get('oflag', 1) else 8):
        p.wait(vm=f"o{s_}")
        for k in range(0, 8, 2): p(f"v_max3_u32 v{FT+4}, v{FT+4}, v{FRr(2*s_+k//4)+k%4}, v{FRr(2*s_+k//4)+k%4+1}")
    if not VAR.get('oflag', 1): p(f"v_cmp_eq_u32 vcc, -1, v{FT+4}\ns_cbranch_vccz L_p3_ok\ns_cmp_lt_u32 s49, 8\ns_cbranch_scc1 L_p3")
    p.label("L_p3_ok")
    st(p, 6)
    for i in range(1, 4):
        p(f"s_xor_b32 s46, s24, {i}\ns_mul_i32 s46, s46, 12288\ns_add_u32 s46, s46, {(i-1)*4096 + IMG}\nv_add_u32 v{FT+i}, s46, v{FL_}")
    p(f"s_mul_i32 s46, s24, 12288\ns_add_u32 s46, s46, {IMG}\nv_add_u32 v{FT}, s46, v{FL_}")
    for s_ in range(8):
        p.wait(vm=f"o{s_}")
        order = ((0,0), (0,1), (1,0), (1,1)) if s_ < 7 else ((0,1), (1,0), (1,1), (0,0))
        for (a, b) in order:
            d = vr(FA + (a*2+b)*16, 16)
            p.add([mfma32(d, vr(Wo(s_, a),4), vr(FRr(s_*2+b),4), d)])
    for i in range(1, 4):
        for k in range(4): p(f"ds_write_b128 v{FT+i}, {vr(FA+i*16+4*k,4)} offset:{k*1024}")
    for r in range(16): p(f"v_add_f32 v{FA+r}, v{FA+r}, v{FXU+r}")
    p("s_waitcnt lgkmcnt(0)\ns_barrier")
    for k in range(12): p(f"ds_read_b128 {vr(FA+16+4*k,4)}, v{FT} offset:{k*1024}", tag=f"r{k}")
    for k in range(12):
        p.wait(lg=f"r{k}")
        for e in range(4): p(f"v_add_f32 v{FA+(4*k+e)%16}, v{FA+(4*k+e)%16}, v{FA+16+4*k+e}")
    for d in range(8): p(f"v_cvt_pk_bf16_f32 v{FX+d}, v{FA+2*d}, v{FA+2*d+1}")
    p(f"buffer_store_dwordx4 {vr(FX,4)}, v{FO}, s[20:23], s44 offen")
    p(f"buffer_store_dwordx4 {vr(FX+4,4)}, v{FO}, s[20:23], s44 offen offset:32")
    st(p, 7)
    if st.on and VAR.get('dbg') is not None:
        D = VAR['dbg']
        p(f"s_cmp_lg_u32 s2, {D}\ns_cbranch_scc1 L_end\ns_cmp_lg_u32 s24, 0\ns_cbranch_scc1 L_end")
        p(f"s_load_dwordx2 s[6:7], s[0:1], {KA_DBG}\ns_waitcnt vmcnt(0)")
        sel = [(0,0,15),(0,0,1),(0,0,5),(0,0,7),(0,0,9),(1,0,15),(1,0,1),(1,0,2),(1,0,3),(1,4,1),(1,4,2),(1,4,3),(1,4,4),(1,4,5),(1,4,6),(1,4,7)]
        for i, (k, w, sl) in enumerate(sel):
            off = STAMP + k*0x80000 + (D*16 + w)*128 + sl*8 + 4
            p(f"v_mov_b32 v3, {off:#x}\nbuffer_load_dword v{100+i}, v3, s[12:15], 0 offen sc1")
        p("s_waitcnt vmcnt(0) lgkmcnt(0)")
        srd(p, 16, 6, 256)
        for i in range(16):
            p(f"v_sub_u32 v2, v{100+i}, v100\nbuffer_store_dword v2, off, s[16:19], 0 offset:{4*i}")
    p("s_endpgm")


def placeholder_addrs(p, m):
    p(f"""
    s_and_b32 s34, s2, 7                   ; xcd
    s_lshr_b32 s35, s2, 3                  ; j
    s_lshr_b32 s53, s35, 3
    s_lshl_b32 s54, s34, 2
    s_add_u32 s53, s53, s54                ; head
    s_and_b32 s36, s35, 7
    s_lshl_b32 s36, s36, 2
    s_add_u32 s36, s36, s{m}
    s_lshl_b32 s37, s36, 7
    s_mul_i32 s36, s36, {2*88*1024}
    s_lshl_b32 s38, s53, 10
    s_add_u32 s36, s36, s38
    s_add_u32 s36, s36, {A3}
    s_lshl_b32 s53, s53, 2
    s_add_u32 s53, s53, s37
    s_add_u32 s53, s53, {OFL}
    s_add_u32 s37, s36, {88*1024}
    s_mul_i32 s38, s35, 9363
    s_lshr_b32 s38, s38, 16                ; j/7
    s_mul_i32 s39, s38, 7
    s_sub_u32 s39, s35, s39                ; fb
    s_add_u32 s38, s38, s54
    s_lshl_b32 s39, s39, 2
    s_add_u32 s39, s39, s{m}               ; ft
    s_lshl_b32 s54, s38, 7
    s_lshl_b32 s34, s39, 2
    s_add_u32 s54, s54, s34
    s_add_u32 s54, s54, {UFL}
    s_mul_i32 s38, s38, {2*88*1024}
    s_lshl_b32 s39, s39, 11
    s_add_u32 s38, s38, s39
    s_add_u32 s38, s38, {A3 + 32*1024}
    s_cmp_lt_u32 s35, 28
    s_cselect_b32 s38, s38, 0x7ff00000
    s_cselect_b32 s54, s54, 0x7ff00000
    s_add_u32 s39, s38, {88*1024}
    """)
```
